```python
import torch

def _softmax(x, axis=-1):
    return torch.softmax(x, dim=axis)

def _gelu(x):
    return torch.nn.functional.gelu(x, approximate='tanh')

def _silu(x):
    return torch.nn.functional.silu(x)

def _sigmoid(x):
    return torch.sigmoid(x)

def _layernorm(x, axis=-1, eps=1e-05):
    m = x.mean(dim=axis, keepdim=True)
    v = x.var(dim=axis, keepdim=True, unbiased=False)
    return (x - m) / torch.sqrt(v + eps)

def _scatter_add(tgt, idx, src, axis=0):
    return tgt.clone().index_add_(axis, idx, src)

def _segment_sum(src, seg, n):
    out = torch.zeros((n,) + src.shape[1:], dtype=src.dtype)
    return out.index_add_(0, seg, src)

def _pad(x, pw):
    flat = tuple((v for pair in reversed(pw) for v in pair))
    return torch.nn.functional.pad(x, flat)
kernel_name = 'adaLN_cond__grouped_kv_mqa__mixer_s_mlp__prompt'

def setup_inputs():

    _w = lambda a: (lambda t: t.to(torch.bfloat16) if t.is_floating_point() else t)(torch.as_tensor(a))

    def _A_setup():
        B, S, D, H = (1, 2048, 640, 32)
        Dh = D // H
        return {'x': _w((lambda *s: torch.randn(*s, dtype=torch.bfloat16) * 0.05)(B, S, D)), 'wq': _w((lambda *s: torch.randn(*s, dtype=torch.bfloat16) * 0.05)(D, H * Dh)), 'wk': _w((lambda *s: torch.randn(*s, dtype=torch.bfloat16) * 0.05)(D, Dh)), 'wv': _w((lambda *s: torch.randn(*s, dtype=torch.bfloat16) * 0.05)(D, Dh)), 'wo': _w((lambda *s: torch.randn(*s, dtype=torch.bfloat16) * 0.05)(H * Dh, D))}
    _A_in = _A_setup()

    def _B_setup():
        B, S, D, F = (1, 2048, 640, 1728)
        return {'x': _w((lambda *s: torch.randn(*s, dtype=torch.bfloat16) * 0.05)(B, S, D)), 'w1': _w((lambda *s: torch.randn(*s, dtype=torch.bfloat16) * 12.8)(D, D) * D ** (-0.5)), 'w2': _w((lambda *s: torch.randn(*s, dtype=torch.bfloat16) * 12.8)(D, D) * D ** (-0.5)), 'w3': _w((lambda *s: torch.randn(*s, dtype=torch.bfloat16) * 12.8)(D, F) * D ** (-0.5)), 'w4': _w((lambda *s: torch.randn(*s, dtype=torch.bfloat16) * 12.8)(F, D) * F ** (-0.5))}
    _B_in = _B_setup()
    return {'A_x': _A_in['x'], 'A_wq': _A_in['wq'], 'A_wk': _A_in['wk'], 'A_wv': _A_in['wv'], 'A_wo': _A_in['wo'], 'B_x': _B_in['x'], 'B_w1': _B_in['w1'], 'B_w2': _B_in['w2'], 'B_w3': _B_in['w3'], 'B_w4': _B_in['w4'], 'c': _w((lambda *s: torch.randn(*s, dtype=torch.bfloat16) * 0.1)(1, 640) * 8.0), 'w_mod': _w((lambda *s: torch.randn(*s, dtype=torch.bfloat16) * 0.1)(640, 6 * 640) * 640 ** (-0.5) * 8.0)}

def reference(A_x, A_wq, A_wk, A_wv, A_wo, B_x, B_w1, B_w2, B_w3, B_w4, c, w_mod):

    def _A_ref(x, wq, wk, wv, wo):
        B, S, D = x.shape
        H = 32
        Dh = D // H
        q = (lambda x, *d: x.permute(*d))((x @ wq).reshape(B, S, H, Dh), 0, 2, 1, 3)
        k = x @ wk
        v = x @ wv
        scores = torch.einsum('bhqd,bkd->bhqk', q, k) * Dh ** (-0.5)
        p = _softmax(scores, axis=-1)
        o = torch.einsum('bhqk,bkd->bhqd', p, v)
        return (lambda x, *d: x.permute(*d))(o, 0, 2, 1, 3).reshape(B, S, H * Dh) @ wo

    def _B_ref(x, w1, w2, w3, w4):
        B, S, D = x.shape
        h = _gelu(_layernorm(x, axis=-1) @ w1)
        c = D // 4
        g0 = _pad(h[:, :, 0 * c:1 * c], ((0, 0), (1, 0), (0, 0)))[:, :S, :]
        g1 = _pad(h[:, :, 1 * c:2 * c], ((0, 0), (0, 1), (0, 0)))[:, 1:, :]
        g2 = _pad(h[:, :, 2 * c:3 * c], ((0, 0), (2, 0), (0, 0)))[:, :S, :]
        g3 = _pad(h[:, :, 3 * c:], ((0, 0), (0, 2), (0, 0)))[:, 2:, :]
        hs = torch.concatenate([g0, g1, g2, g3], axis=-1) @ w2
        x1 = x + hs
        h2 = _gelu(_layernorm(x1, axis=-1) @ w3) @ w4
        return x1 + h2
    x = A_x
    mod = (_silu(c) @ w_mod).reshape(c.shape[0], 6, 1, -1)
    sa, ca, ga, sb, cb, gb = (mod[:, 0].clone(), mod[:, 1].clone(), mod[:, 2].clone(), mod[:, 3].clone(), mod[:, 4].clone(), mod[:, 5].clone())
    h = _layernorm(x, axis=-1) * (1 + ca) + sa
    x = x + ga * _A_ref(h, A_wq, A_wk, A_wv, A_wo)
    h = _layernorm(x, axis=-1) * (1 + cb) + sb
    x = x + gb * _B_ref(h, B_w1, B_w2, B_w3, B_w4)
    return x
```

```python
import re

TRANS = ("v_exp_f32", "v_log_f32", "v_rcp_f32", "v_rsq_f32", "v_sqrt_f32", "v_sin_f32", "v_cos_f32",
         "v_exp_f16", "v_rcp_f16", "v_rcp_iflag_f32")

def _split_ops(s):
    out, depth, cur = [], 0, ""
    for ch in s:
        if ch in "[(":
            depth += 1
        elif ch in "])":
            depth -= 1
        if ch == "," and depth == 0:
            out.append(cur.strip()); cur = ""
        else:
            cur += ch
    if cur.strip():
        out.append(cur.strip())
    return out

_R1 = re.compile(r"^([vas])(\d+)$")
_R2 = re.compile(r"^([vas])\[(\d+):(\d+)\]$")
def regs_of(tok):
    t = tok.strip()
    t = re.sub(r"^-", "", t)
    m = re.match(r"^(?:abs|neg)\((.*)\)$", t)
    if m: t = m.group(1)
    if t.startswith("|") and t.endswith("|"): t = t[1:-1]
    m = _R1.match(t)
    if m: return [m.group(1) + m.group(2)]
    m = _R2.match(t)
    if m: return [m.group(1) + str(i) for i in range(int(m.group(2)), int(m.group(3)) + 1)]
    if t in ("vcc", "vcc_lo", "vcc_hi"): return ["vcc"]
    if t in ("exec", "exec_lo", "exec_hi"): return ["exec"]
    if t == "m0": return ["m0"]
    return []

class Ins:
    __slots__ = ("text", "mn", "ops", "mods", "cls", "wr", "rd", "roles", "passes", "target", "ws", "note")
    def __init__(self, text):
        self.text = text
        body = text.split(";")[0].strip()
        parts = body.split(None, 1)
        self.mn = parts[0]
        rest = parts[1] if len(parts) > 1 else ""
        ops = _split_ops(rest)
        mods = ""
        if ops:
            last = ops[-1]
            m = re.match(r"^(\S+)\s+(.*)$", last)
            if m and not last.startswith("hwreg") and not self.mn.startswith("s_waitcnt"):
                ops[-1] = m.group(1); mods = m.group(2)
        self.ops, self.mods = ops, mods
        self.target = None
        self.ws = 1
        self.passes = 0
        self.note = None
        self.classify()

    def classify(self):
        mn, ops, mods = self.mn, self.ops, self.mods
        wr, rd = [], []
        roles = {}
        R = regs_of
        if mn.startswith("v_mfma"):
            self.cls = "mfma"
            self.passes = 4 if "16x16" in mn else 8
            if "32x32x4_2b" in mn: self.passes = 16
            wr = R(ops[0])
            roles = {"A": R(ops[1]), "B": R(ops[2]), "C": R(ops[3])}
            rd = roles["A"] + roles["B"] + roles["C"]
        elif mn.startswith("v_"):
            self.cls = "trans" if any(mn.startswith(t) for t in TRANS) else "valu"
            if mn.startswith("v_cmp"):
                wr = R(ops[0]); rd = sum((R(o) for o in ops[1:]), [])
            elif mn.startswith("v_readfirstlane") or mn.startswith("v_readlane"):
                wr = R(ops[0]); rd = sum((R(o) for o in ops[1:]), [])
            elif mn.startswith(("v_add_co", "v_sub_co", "v_addc_co", "v_subb_co", "v_subrev_co")):
                wr = R(ops[0]) + R(ops[1]); rd = sum((R(o) for o in ops[2:]), [])
            elif mn.startswith(("v_permlane16_swap", "v_permlane32_swap", "v_swap_b32")):
                wr = R(ops[0]) + R(ops[1]); rd = list(wr)
            elif mn.startswith(("v_fmac", "v_pk_fmac", "v_dot2c", "v_writelane", "v_fmaak", "v_fmamk")) :
                wr = R(ops[0]); rd = sum((R(o) for o in ops[1:]), [])
                if mn.startswith(("v_fmac", "v_pk_fmac", "v_dot2c", "v_writelane")): rd += wr
            elif mn == "v_nop":
                pass
            else:
                wr = R(ops[0]); rd = sum((R(o) for o in ops[1:]), [])
                if "UNUSED_PRESERVE" in mods or "op_sel" in mods and mn.endswith("f16"): rd += wr
            rd.append("exec")
        elif mn.startswith(("s_load", "s_buffer_load", "s_memtime", "s_memrealtime")):
            self.cls = "smem"
            wr = R(ops[0]); rd = sum((R(o) for o in ops[1:]), [])
        elif mn.startswith(("buffer_", "global_")):
            self.cls = "vmem"
            if mn in ("buffer_inv", "buffer_wbl2"):
                pass
            elif mn.startswith("buffer_load"):
                if re.search(r"\blds\b", mods):
                    rd = sum((R(o) for o in ops), []) + ["m0"]
                else:
                    wr = R(ops[0]); rd = sum((R(o) for o in ops[1:]), [])
            elif mn.startswith("buffer_store"):
                rd = sum((R(o) for o in ops), [])
                roles = {"data": R(ops[0])}
            elif mn.startswith("buffer_atomic"):
                rd = sum((R(o) for o in ops), [])
                if "sc0" in mods: wr = R(ops[0])
            elif mn.startswith("global_load"):
                wr = R(ops[0]); rd = sum((R(o) for o in ops[1:]), [])
            elif mn.startswith("global_store"):
                rd = sum((R(o) for o in ops), [])
                roles = {"data": R(ops[1])}
            else:
                raise ValueError("unknown vmem " + self.text)
            rd.append("exec")
        elif mn.startswith("ds_"):
            self.cls = "ds"
            if mn.startswith(("ds_read", "ds_bpermute", "ds_permute", "ds_swizzle")):
                wr = R(ops[0]); rd = sum((R(o) for o in ops[1:]), [])
            elif mn.startswith("ds_write"):
                rd = sum((R(o) for o in ops), [])
            else:
                raise ValueError("unknown ds " + self.text)
            rd.append("exec")
        elif mn.startswith("s_"):
            self.cls = "salu"
            if mn == "s_nop":
                self.ws = int(ops[0], 0) + 1
            elif mn in ("s_waitcnt", "s_barrier", "s_endpgm", "s_setprio", "s_sleep"):
                pass
            elif mn.startswith(("s_branch", "s_cbranch")):
                self.target = ops[0]
                if "vcc" in mn: rd = ["vcc"]
                if "exec" in mn: rd = ["exec"]
            elif mn.startswith("s_cmp") or mn.startswith("s_bitcmp"):
                rd = sum((R(o) for o in ops), [])
            elif mn.startswith("s_setpc"):
                rd = R(ops[0])
            elif mn.startswith("s_setreg"):
                rd = R(ops[1]) if len(ops) > 1 else []
            elif "saveexec" in mn:
                wr = R(ops[0]) + ["exec"]; rd = R(ops[1]) + ["exec"]
            else:
                wr = R(ops[0]); rd = sum((R(o) for o in ops[1:]), [])
                if mn.startswith(("s_addk", "s_mulk", "s_cmov")): rd += wr
        else:
            raise ValueError("unknown instruction: " + self.text)
        self.wr, self.rd, self.roles = wr, rd, roles

class Label:
    def __init__(self, name): self.name = name; self.text = name + ":"

class Raw:
    def __init__(self, text): self.text = text

class Builder:
    def __init__(self):
        self.items = []
        self._uid = 0
    def I(self, text):
        for line in text.split("\n"):
            line = line.strip()
            if not line: continue
            if line.startswith(";"):
                self.items.append(Raw("    " + line)); continue
            if line.endswith(":"):
                self.items.append(Label(line[:-1])); continue
            self.items.append(Ins(line))
    def C(self, text): self.items.append(Raw("    ; " + text))
    def L(self, name): self.items.append(Label(name))
    def uid(self, p="L"):
        self._uid += 1
        return f"{p}_{self._uid}"

def build_cfg(items):
    leaders = {0}
    labels = {}
    for i, it in enumerate(items):
        if isinstance(it, Label):
            leaders.add(i); labels[it.name] = i
        elif isinstance(it, Ins) and (it.target is not None or it.mn in ("s_endpgm", "s_setpc_b64")):
            leaders.add(i + 1)
    ls = sorted(l for l in leaders if l < len(items))
    blocks = []
    for a, b in zip(ls, ls[1:] + [len(items)]):
        blocks.append((a, b))
    start2blk = {a: k for k, (a, b) in enumerate(blocks)}
    succ = []
    for k, (a, b) in enumerate(blocks):
        last = None
        for i in range(b - 1, a - 1, -1):
            if isinstance(items[i], Ins):
                last = items[i]; break
        s = []
        if last is not None and last.mn == "s_endpgm": pass
        elif last is not None and last.mn == "s_branch":
            s.append(start2blk[labels[last.target]])
        elif last is not None and last.target is not None:
            s.append(start2blk[labels[last.target]])
            if k + 1 < len(blocks): s.append(k + 1)
        elif last is not None and last.mn == "s_setpc_b64":
            m = re.search(r"->\s*(\S+)", last.text)
            if m: s.append(start2blk[labels[m.group(1)]])
        else:
            if k + 1 < len(blocks): s.append(k + 1)
        succ.append(s)
    return blocks, succ

def _isv(r): return r[0] in "va" and r[1:].isdigit()
def _iss(r): return (r[0] == "s" and r[1:].isdigit()) or r == "vcc"

def required(prod_kind, prod_info, ins, reg):
    c = ins.cls
    valu = c in ("valu", "trans")
    rd = reg in ins.rd
    wr = reg in ins.wr
    if prod_kind == "valu_v":
        if c == "mfma" and rd: return 2
        if valu and rd and ins.mn.startswith("v_permlane"): return 2
        if valu and rd and (ins.mn.startswith("v_readlane") or ins.mn.startswith("v_readfirstlane")): return 1
        if valu and rd and ("dpp" in ins.mn or re.search(r"\b(row_|quad_perm|wave_|bcast)", ins.mods)): return 2
        return 0
    if prod_kind == "trans_v":
        if c == "valu" and rd: return 1
        return 0
    if prod_kind == "sdwa_v":
        if valu and (rd or wr): return 1
        return 0
    if prod_kind == "valu_s":
        if c == "vmem" and rd: return 5
        if valu and rd:
            if ins.mn.startswith(("v_readlane", "v_writelane")): return 4
            return 2
        return 0
    if prod_kind == "salu_m0":
        if c == "vmem" and rd: return 1
        return 0
    if prod_kind == "mfma_d":
        p = prod_info[0]
        if c == "mfma":
            if reg in ins.roles["A"] or reg in ins.roles["B"]: return p + 4
            if reg in ins.roles["C"]:
                if ins.roles["C"] == prod_info[1] and ins.passes == p: return 0
                return p + 2
            if wr:
                return p + 2 if ins.wr != prod_info[1] else 0
            return 0
        if valu and (rd or wr): return p + 4
        if c in ("vmem", "ds") and (rd or wr): return p + 4
        return 0
    if prod_kind == "mfma_c":
        if valu and wr: return prod_info[0] - 1
        return 0
    if prod_kind == "store_data":
        if valu and wr: return 2
        if wr: return 1
        return 0
    if prod_kind == "valu_exec":
        if c == "mfma": return 4
        return 0
    return 0

def events_of(ins):
    ev = []
    c = ins.cls
    if c in ("valu", "trans"):
        for r in ins.wr:
            if _isv(r):
                ev.append((r, "valu_v", None))
                if c == "trans": ev.append((r, "trans_v", None))
                if "sdwa" in ins.mn or "op_sel" in ins.mods and not ins.mn.startswith("v_pk"): ev.append((r, "sdwa_v", None))
            elif _iss(r): ev.append((r, "valu_s", None))
            elif r == "exec": ev.append((r, "valu_exec", None))
    elif c == "mfma":
        for r in ins.wr: ev.append((r, "mfma_d", (ins.passes, tuple(ins.wr))))
        for r in ins.roles["C"]:
            if r not in ins.wr: ev.append((r, "mfma_c", (ins.passes,)))
    elif c == "salu":
        if "m0" in ins.wr: ev.append(("m0", "salu_m0", None))
    elif c == "vmem":
        if ins.mn.endswith(("x3", "x4")) and "store" in ins.mn:
            for r in ins.roles.get("data", []): ev.append((r, "store_data", None))
    return ev

MAXAGE = 24
def hazard_pass(items, verbose=False):
    total = 0
    while True:
        blocks, succ = build_cfg(items)
        nb = len(blocks)
        instate = [None] * nb
        instate[0] = {}
        work = [0]
        fix = None
        def run_block(k, st, find):
            st = dict(st)
            a, b = blocks[k]
            for i in range(a, b):
                it = items[i]
                if not isinstance(it, Ins): continue
                if find:
                    need = 0
                    why = None
                    for r in set(it.rd) | set(it.wr):
                        for (kind, info), age in st.get(r, {}).items():
                            q = required(kind, (info[0], list(info[1])) if kind == "mfma_d" else info, it, r) - age
                            if q > need: need, why = q, (r, kind)
                    if it.cls == "mfma":
                        for (kind, info), age in st.get("exec", {}).items():
                            q = required(kind, info, it, "exec") - age
                            if q > need: need, why = q, ("exec", kind)
                    if need > 0: return ("fix", i, need, why)
                ns = {}
                for r, d in st.items():
                    nd = {k2: a2 + it.ws for k2, a2 in d.items() if a2 + it.ws < MAXAGE}
                    if nd: ns[r] = nd
                st = ns
                for (r, kind, info) in events_of(it):
                    d = dict(st.get(r, {}))
                    if kind in ("valu_v", "mfma_d"):
                        d = {k2: v for k2, v in d.items() if k2[0] not in ("valu_v", "trans_v", "sdwa_v")}
                    d[(kind, info)] = 0
                    st[r] = d
            return ("ok", st)
        while work:
            k = work.pop()
            _, st = run_block(k, instate[k], False)
            for s in succ[k]:
                if instate[s] is None:
                    instate[s] = st; work.append(s)
                else:
                    merged = {r: dict(d) for r, d in instate[s].items()}
                    ch = False
                    for r, d in st.items():
                        md = merged.setdefault(r, {})
                        for k2, a2 in d.items():
                            if k2 not in md or a2 < md[k2]:
                                md[k2] = a2; ch = True
                    if ch:
                        instate[s] = merged; work.append(s)
        fixes = []
        for k in range(nb):
            if instate[k] is None: continue
            res = run_block(k, instate[k], True)
            if res[0] == "fix":
                fixes.append(res[1:])
        if not fixes: return total
        for (i, need, why) in sorted(fixes, reverse=True):
            if verbose: print(f"hazard: insert {need} ws before [{items[i].text.strip()}] due to {why}")
            n = need
            ins = []
            while n > 0:
                q = min(n, 16)
                ins.append(Ins(f"s_nop {q-1}")); n -= q
            items[i:i] = ins
            total += len(ins)

def waitcnt_check(items):
    blocks, succ = build_cfg(items)
    nb = len(blocks)
    errs = set()
    def step(st, it, report):
        vm, lg, sm = st
        if it.mn == "s_waitcnt":
            t = " ".join(it.ops) + " " + it.mods
            m = re.search(r"vmcnt\((\d+)\)", t)
            if m:
                n = int(m.group(1)); vm = {r: k for r, k in vm.items() if k < n}
            m = re.search(r"lgkmcnt\((\d+)\)", t)
            if m:
                n = int(m.group(1))
                if n == 0: lg = {}; sm = set()
                elif not sm: lg = {r: k for r, k in lg.items() if k < n}
            return (vm, lg, sm)
        if report:
            for r in set(it.rd) | set(it.wr):
                if r in vm and not (it.cls == "vmem" and r in it.wr and r not in it.rd):
                    errs.add(f"vmcnt: {r} used by [{it.text.strip()}] with outstanding load")
                if r in lg and not (it.cls == "ds" and r in it.wr and r not in it.rd):
                    errs.add(f"lgkmcnt: {r} used by [{it.text.strip()}] with outstanding ds op")
                if r in sm:
                    errs.add(f"lgkmcnt(smem): {r} used by [{it.text.strip()}] with outstanding scalar load")
        if it.cls == "vmem":
            vm = {r: k + 1 for r, k in vm.items()}
            for r in it.wr: vm[r] = 0
        elif it.cls == "ds":
            lg = {r: k + 1 for r, k in lg.items()}
            for r in it.wr: lg[r] = 0
        elif it.cls == "smem":
            sm = set(sm) | set(it.wr)
        return (vm, lg, sm)
    instate = [None] * nb
    instate[0] = ({}, {}, set())
    work = [0]
    def run(k, st, report):
        a, b = blocks[k]
        for i in range(a, b):
            if isinstance(items[i], Ins): st = step(st, items[i], report)
        return st
    while work:
        k = work.pop()
        st = run(k, instate[k], False)
        for s in succ[k]:
            if instate[s] is None:
                instate[s] = st; work.append(s)
            else:
                ovm, olg, osm = instate[s]
                nvm, nlg, nsm = dict(ovm), dict(olg), set(osm) | st[2]
                ch = nsm != osm
                for src, dst in ((st[0], nvm), (st[1], nlg)):
                    for r, kk in src.items():
                        if r not in dst or kk < dst[r]:
                            dst[r] = kk; ch = True
                if ch:
                    instate[s] = (nvm, nlg, nsm); work.append(s)
    for k in range(nb):
        if instate[k] is not None: run(k, instate[k], True)
    return sorted(errs)

def render(items):
    out = []
    for it in items:
        if isinstance(it, Ins): out.append("    " + it.text.strip())
        else: out.append(it.text)
    return "\n".join(out) + "\n"
```

```python
from asmlib import *

def kernel_file(launch_lines, kernels):
    s = "".join(l + "\n" for l in launch_lines)
    s += '.amdgcn_target "amdgcn-amd-amdhsa--gfx950"\n.text\n'
    for name, text, nv, acc, ns in kernels:
        s += f".globl {name}\n.p2align 8\n.type {name},@function\n{name}:\n{text}"
    s += '.section .rodata,"a"\n'
    for name, text, nv, acc, ns in kernels:
        s += f""".p2align 6
.amdhsa_kernel {name}
  .amdhsa_next_free_vgpr {nv}
  .amdhsa_next_free_sgpr {ns}
  .amdhsa_accum_offset {acc}
  .amdhsa_group_segment_fixed_size 0
  .amdhsa_kernarg_size 120
  .amdhsa_user_sgpr_count 2
  .amdhsa_user_sgpr_kernarg_segment_ptr 1
  .amdhsa_system_sgpr_workgroup_id_x 1
.end_amdhsa_kernel
"""
    return s

def finalize(b, verbose=False):
    n = hazard_pass(b.items, verbose=verbose)
    errs = waitcnt_check(b.items)
    if errs:
        for e in errs[:40]: print("WAITCNT ERROR:", e)
        raise SystemExit("waitcnt check failed (%d)" % len(errs))
    return render(b.items), n
```

```python
import sys
from common import *

import struct
def f2u(x): return struct.unpack("<I", struct.pack("<f", x))[0]

NAME = "adaLN_cond__grouped_kv_mqa__mixer_s_mlp__prompt_kernel"
MODG   = 0x000000
KVFLAG = 0x004000
RLFLAG = 0x008000
CFLAG  = 0x010000
STAT   = 0x020000
STAT_SZ = 32*8*64*16
KV     = 0x100000
KVT    = 3328
OF     = 0x200000
ACT_SZ = 128*20*1024
L2F    = OF + ACT_SZ
GF     = L2F + ACT_SZ
L3F    = GF + ACT_SZ
H4F    = L3F + ACT_SZ
H4_SZ  = 128*54*1024
WOF    = H4F + H4_SZ
W640   = 40*20*1024
W1F    = WOF + W640
W2F    = W1F + W640
W3F    = W2F + W640
W3SZ   = 108*20*1024
W4F    = W3F + W3SZ
W4SZ   = 40*54*1024
WS_END = W4F + W4SZ + 64*1024
DBGA   = WS_END
WS_REC = 0x4000000
PH_O, PH_L2, PH_G, PH_L3, PH_H4 = 0, 1, 2, 3, 4

L_WQ   = 0
L_WK   = 102400
L_WM   = 102400
L_SC   = 143360
L_MOD  = 144640
L_QS   = 149760
L_MISC = 161024
LDS_SZ = 163840
L_RL   = 0
L_W    = 0

S_WS = 4
S_A  = 8
S_B  = 12
S_C  = 16
S_TAG = 20
S_WV, S_M, S_RB, S_W = 22, 23, 24, 25
S_T0 = 26
S_TT = 27
S_ERR = 28
P_X, P_WQ, P_WK, P_WV, P_WO, P_BX, P_W1, P_W2, P_W3, P_W4, P_C, P_WM, P_OUT, P_DBG, P_WS = [32 + 2*i for i in range(15)]
ST = 62

def sr(b, n=4): return f"s[{b}:{b+n-1}]"
def vr(b, n=4): return f"v[{b}:{b+n-1}]" if n > 1 else f"v{b}"
def ar(b, n=4): return f"a[{b}:{b+n-1}]" if n > 1 else f"a{b}"

V_L, V_T, V_G, V_L16 = 0, 1, 2, 3

TIMEOUT = 400000

class Gen:
    def __init__(self, stop_after=99, stamps=False):
        self.b = Builder()
        self.stop_after = stop_after
        self.stamps = stamps
        self.nstamp = 0
    def I(self, t): self.b.I(t)
    def C(self, t): self.b.C(t)

    def srd(self, s, ptr, nbytes, add=0):
        if add:
            self.I(f"s_add_u32 s{s}, s{ptr}, {add}\ns_addc_u32 s{s+1}, s{ptr+1}, 0")
        else:
            self.I(f"s_mov_b32 s{s}, s{ptr}\ns_mov_b32 s{s+1}, s{ptr+1}")
        self.I(f"s_mov_b32 s{s+2}, {nbytes}\ns_mov_b32 s{s+3}, 0x20000")

    def stamp(self, name):
        if not self.stamps: return
        k = self.nstamp; self.nstamp += 1
        lab = self.b.uid("L_st")
        self.C(f"stamp {k}: {name}")
        self.I(f"""
        s_cmp_lg_u32 s{S_WV}, 0
        s_cbranch_scc1 {lab}
        s_memrealtime s[100:101]
        s_lshl_b32 s99, s{S_W}, 8
        s_add_u32 s99, s99, {DBGA + 8*k}
        s_waitcnt lgkmcnt(0)
        v_mov_b32 v254, s100
        v_mov_b32 v255, s101
        v_mov_b32 v253, s99
        buffer_store_dwordx2 v[254:255], v253, {sr(S_WS)}, 0 offen
        {lab}:
        """)
        self.stamp_names = getattr(self, "stamp_names", []) + [name]

    def spin_tail(self, cnt, loop, code):
        self.I(f"""
        s_sub_u32 s{cnt}, s{cnt}, 1
        s_cmp_lg_u32 s{cnt}, 0
        s_cbranch_scc1 {loop}
        s_mov_b32 s{S_ERR}, {code}
        s_branch L_fail
        """)

    def get_tag(self):
        lp = self.b.uid("L_tag"); ok = self.b.uid("L_tagok")
        self.srd(S_C, P_DBG, 256)
        self.I(f"""
        s_mov_b32 s{ST}, {TIMEOUT}
        v_mov_b32 v252, 0
        {lp}:
        buffer_load_dwordx2 v[254:255], v252, {sr(S_C)}, 0 offen sc1
        s_waitcnt vmcnt(0)
        v_readfirstlane_b32 s{S_TAG}, v254
        v_readfirstlane_b32 s{S_TAG+1}, v255
        s_cmp_lg_u32 s{S_TAG}, 0
        s_cbranch_scc1 {ok}
        """)
        self.spin_tail(ST, lp, 1)
        self.I(f"{ok}:")

    def reduce_g(self, regs, tmp, op="v_add_f32"):
        for sw in ("v_permlane16_swap_b32", "v_permlane32_swap_b32"):
            for i, r in enumerate(regs):
                self.I(f"v_mov_b32 v{tmp+i}, v{r}")
            for i, r in enumerate(regs):
                self.I(f"{sw} v{r}, v{tmp+i}")
            for i, r in enumerate(regs):
                self.I(f"{op} v{r}, v{r}, v{tmp+i}")

    def prologue(self):
        I = self.I
        I(f"""
        s_cmp_ge_u32 s2, 256
        s_cbranch_scc1 L_end
        s_load_dwordx16 s[32:47], s[0:1], 0
        s_load_dwordx8 s[48:55], s[0:1], 64
        s_load_dwordx4 s[56:59], s[0:1], 96
        s_load_dwordx2 s[60:61], s[0:1], 112
        v_lshrrev_b32 v1, 6, v0
        v_and_b32 v{V_L}, 63, v0
        v_readfirstlane_b32 s{S_WV}, v1
        v_and_b32 v{V_T}, 15, v{V_L}
        v_lshrrev_b32 v{V_G}, 4, v{V_L}
        v_lshlrev_b32 v{V_L16}, 4, v{V_L}
        s_mov_b32 s{S_W}, s2
        s_and_b32 s{ST}, s2, 7
        s_lshr_b32 s{ST+1}, s2, 3
        s_and_b32 s{S_M}, s{ST+1}, 7
        s_lshr_b32 s{ST+1}, s{ST+1}, 3
        s_lshl_b32 s{ST}, s{ST}, 2
        s_add_u32 s{S_RB}, s{ST}, s{ST+1}
        s_lshl_b32 s{S_T0}, s{S_RB}, 6
        s_lshl_b32 s{S_TT}, s{S_RB}, 2
        s_add_u32 s{S_TT}, s{S_TT}, s{S_WV}
        s_mov_b32 s{S_ERR}, 0
        s_waitcnt lgkmcnt(0)
        """)
        self.srd(S_WS, P_WS, WS_REC)
        lab = self.b.uid("L_non")
        self.srd(S_C, P_DBG, 256)
        I(f"""
        s_lshl_b32 s{ST}, s2, 2
        s_add_u32 s{ST}, s{ST}, s{S_WV}
        s_cmp_lg_u32 s{ST}, 0
        s_cbranch_scc1 {lab}
        s_memrealtime s[{S_TAG}:{S_TAG+1}]
        s_waitcnt lgkmcnt(0)
        s_or_b32 s{S_TAG}, s{S_TAG}, 1
        v_mov_b32 v254, s{S_TAG}
        v_mov_b32 v255, s{S_TAG+1}
        v_mov_b32 v252, 0
        s_mov_b64 exec, 1
        buffer_store_dwordx2 v[254:255], v252, {sr(S_C)}, 0 offen sc1
        s_mov_b64 exec, -1
        {lab}:
        """)
        self.stamp("start")

    XF = 4
    XH = 84
    TMP = 244

    def phase_start(self):
        I, C = self.I, self.C
        XF, XH, TMP = self.XF, self.XH, self.TMP
        isprod = ST + 10
        C("---- mod producer test: members 2..5 of row blocks < 30")
        I(f"""
        s_sub_u32 s{ST}, s{S_M}, 2
        s_cmp_lt_u32 s{ST}, 4
        s_cselect_b32 s{isprod}, 1, 0
        s_cmp_lt_u32 s{S_RB}, 30
        s_cselect_b32 s{isprod}, s{isprod}, 0
        s_lshl_b32 s{ST+11}, s{S_RB}, 2
        s_add_u32 s{ST+11}, s{ST+11}, s{ST}      ; p = rb*4 + (m-2)
        """)
        lab_np = self.b.uid("L_np")
        I(f"s_cmp_eq_u32 s{isprod}, 0\ns_cbranch_scc1 {lab_np}")
        C("w_mod slice -> LDS: 640 rows x 64B ; wave handles rows [160wv,160wv+160): 10 instrs of 16 rows")
        self.srd(S_A, P_WM, 640*7680)
        I(f"""
        v_lshrrev_b32 v{TMP}, 2, v{V_L}
        v_mul_u32_u24 v{TMP}, 7680, v{TMP}
        v_and_b32 v{TMP+1}, 3, v{V_L}
        v_lshl_add_u32 v{TMP}, v{TMP+1}, 4, v{TMP}
        s_mul_i32 s{ST+1}, s{S_WV}, {160*7680}
        s_lshl_b32 s{ST+2}, s{ST+11}, 6                      ; p*64 bytes
        s_add_u32 s{ST+1}, s{ST+1}, s{ST+2}
        s_mul_i32 s{ST+3}, s{S_WV}, {160*64}
        s_add_u32 s{ST+3}, s{ST+3}, {L_WM}
        """)
        for i in range(10):
            I(f"""
            s_mov_b32 m0, s{ST+3}
            s_add_u32 s{ST+3}, s{ST+3}, 1024
            buffer_load_dwordx4 v{TMP}, {sr(S_A)}, s{ST+1} offen lds
            s_add_u32 s{ST+1}, s{ST+1}, {16*7680}
            """)
        C("c -> silu -> bf16 -> LDS (threads 0..159 handle 4 values each)")
        self.srd(S_B, P_C, 1280)
        I(f"""
        s_lshl_b32 s{ST+4}, s{S_WV}, 9
        v_lshlrev_b32 v{TMP+2}, 3, v{V_L}
        v_add_u32 v{TMP+2}, s{ST+4}, v{TMP+2}
        buffer_load_dwordx2 v[{TMP+4}:{TMP+5}], v{TMP+2}, {sr(S_B)}, 0 offen
        {lab_np}:
        """)
        C("x fragments: lane (t,g): token = T0+16wv+t ; k = 32s+4g(+16)")
        self.srd(S_C, P_X, 2048*1280)
        I(f"""
        s_lshl_b32 s{ST}, s{S_TT}, 4
        v_add_u32 v{TMP+3}, s{ST}, v{V_T}
        v_mul_u32_u24 v{TMP+3}, 1280, v{TMP+3}
        v_lshl_add_u32 v{TMP+3}, v{V_G}, 3, v{TMP+3}
        """)
        for s in range(20):
            I(f"buffer_load_dwordx2 v[{XF+4*s}:{XF+4*s+1}], v{TMP+3}, {sr(S_C)}, 0 offen offset:{64*s}")
            I(f"buffer_load_dwordx2 v[{XF+4*s+2}:{XF+4*s+3}], v{TMP+3}, {sr(S_C)}, 0 offen offset:{64*s+32}")
        C("x residual tile -> a[0:9] : features 80m+16j+4g")
        I(f"s_mul_i32 s{ST}, s{S_M}, 160")
        for j in range(5):
            I(f"buffer_load_dwordx2 a[{2*j}:{2*j+1}], v{TMP+3}, {sr(S_C)}, s{ST} offen offset:{32*j}")
        lab_np2 = self.b.uid("L_np2")
        I(f"s_cmp_eq_u32 s{isprod}, 0\ns_cbranch_scc1 {lab_np2}")
        T = TMP + 4
        I(f"""
        s_waitcnt vmcnt(45)
        v_lshlrev_b32 v{TMP+6}, 16, v{T}
        v_and_b32 v{TMP+7}, 0xffff0000, v{T}
        v_lshlrev_b32 v{TMP+8}, 16, v{T+1}
        v_and_b32 v{TMP+9}, 0xffff0000, v{T+1}
        """)
        for i in range(4):
            r = TMP + 6 + i
            I(f"""
            v_mul_f32 v{TMP+10}, 0xbfb8aa3b, v{r}
            v_exp_f32 v{TMP+10}, v{TMP+10}
            v_add_f32 v{TMP+10}, 1.0, v{TMP+10}
            v_rcp_f32 v{TMP+10}, v{TMP+10}
            v_mul_f32 v{r}, v{r}, v{TMP+10}
            """)
        I(f"""
        v_cvt_pk_bf16_f32 v{T}, v{TMP+6}, v{TMP+7}
        v_cvt_pk_bf16_f32 v{T+1}, v{TMP+8}, v{TMP+9}
        v_add_u32 v{TMP+2}, {L_SC}, v{TMP+2}
        v_cmp_gt_u32 vcc, {L_SC+1280}, v{TMP+2}
        s_and_saveexec_b64 s[{ST+4}:{ST+5}], vcc
        ds_write_b64 v{TMP+2}, v[{T}:{T+1}]
        s_mov_b64 exec, s[{ST+4}:{ST+5}]
        s_waitcnt lgkmcnt(0)
        s_barrier
        """)
        lab_gd = self.b.uid("L_gd")
        I(f"s_cmp_ge_u32 s{S_WV}, 2\ns_cbranch_scc1 {lab_gd}")
        va, vb, WA, WB, ACC = XH, XH+1, XH+4, XH+12, XH+20
        I(f"""
        v_lshrrev_b32 v{va}, 2, v{V_T}
        v_lshl_add_u32 v{va}, v{V_G}, 2, v{va}
        v_lshlrev_b32 v{va}, 6, v{va}                       ; 64*(4g+(i>>2))
        v_and_b32 v{vb}, 3, v{V_T}
        v_lshl_add_u32 v{va}, v{vb}, 3, v{va}
        s_lshl_b32 s{ST}, s{S_WV}, 5
        s_add_u32 s{ST}, s{ST}, {L_WM}
        v_add_u32 v{va}, s{ST}, v{va}
        v_lshlrev_b32 v{vb}, 3, v{V_G}
        v_add_u32 v{vb}, {L_SC}, v{vb}
        """)
        for s in range(20):
            o = (s & 1)
            W_, B_ = WA + 4*o, WB + 4*o
            I(f"""
            ds_read_b64_tr_b16 v[{W_}:{W_+1}], v{va} offset:{2048*s}
            ds_read_b64_tr_b16 v[{W_+2}:{W_+3}], v{va} offset:{2048*s+1024}
            ds_read_b64 v[{B_}:{B_+1}], v{vb} offset:{64*s}
            ds_read_b64 v[{B_+2}:{B_+3}], v{vb} offset:{64*s+32}
            """)
            if s > 0:
                o2 = (s-1) & 1
                I(f"s_waitcnt lgkmcnt(4)")
                I(f"v_mfma_f32_16x16x32_bf16 {vr(ACC)}, {vr(WA+4*o2)}, {vr(WB+4*o2)}, {'0' if s == 1 else vr(ACC)}")
        I(f"s_waitcnt lgkmcnt(0)\nv_mfma_f32_16x16x32_bf16 {vr(ACC)}, {vr(WA+4)}, {vr(WB+4)}, {vr(ACC)}")
        self.get_tag()
        I(f"""
        v_cvt_pk_bf16_f32 v{ACC+4}, v{ACC}, v{ACC+1}
        v_cvt_pk_bf16_f32 v{ACC+5}, v{ACC+2}, v{ACC+3}
        v_mov_b32 v{ACC+6}, s{S_TAG}
        v_mov_b32 v{ACC+7}, s{S_TAG+1}
        s_lshl_b32 s{ST}, s{ST+11}, 3
        s_lshl_b32 s{ST+1}, s{S_WV}, 2
        s_add_u32 s{ST}, s{ST}, s{ST+1}
        s_lshl_b32 s{ST}, s{ST}, 4                           ; (8p+4tile)*16
        v_lshlrev_b32 v{va}, 4, v{V_G}
        v_add_u32 v{va}, s{ST}, v{va}
        v_cmp_eq_u32 vcc, 0, v{V_T}
        s_and_saveexec_b64 s[{ST+4}:{ST+5}], vcc
        buffer_store_dwordx4 {vr(ACC+4)}, v{va}, {sr(S_WS)}, 0 offen offset:{MODG} sc1
        s_mov_b64 exec, s[{ST+4}:{ST+5}]
        {lab_gd}:
        {lab_np2}:
        """)
        self.stamp("modpub")
        lab_nk = self.b.uid("L_nk")
        I(f"""
        s_cmp_ge_u32 s{S_M}, 2
        s_cbranch_scc1 {lab_nk}
        s_cmp_eq_u32 s{S_M}, 0
        s_cselect_b32 s{S_A}, s{P_WK}, s{P_WV}
        s_cselect_b32 s{S_A+1}, s{P_WK+1}, s{P_WV+1}
        s_mov_b32 s{S_A+2}, 25600
        s_mov_b32 s{S_A+3}, 0x20000
        s_mul_i32 s{ST}, s{S_WV}, 7168
        s_add_u32 s{ST+1}, s{ST}, {L_WK}
        """)
        for i in range(7):
            I(f"""
            s_mov_b32 m0, s{ST+1}
            s_add_u32 s{ST+1}, s{ST+1}, 1024
            buffer_load_dwordx4 v{V_L16}, {sr(S_A)}, s{ST} offen lds
            s_add_u32 s{ST}, s{ST}, 1024
            """)
        I(f"{lab_nk}:")
        C("wq slice: rows of 160B, 6 rows (60 lanes) per instr; instr q = 4i+wv covers rows 6q..6q+5 (q<107)")
        self.srd(S_A, P_WQ, 640*1280)
        I(f"""
        v_mul_u32_u24 v{TMP}, 205, v{V_L}
        v_lshrrev_b32 v{TMP}, 11, v{TMP}
        v_mul_u32_u24 v{TMP+1}, 10, v{TMP}
        v_sub_u32 v{TMP+1}, v{V_L}, v{TMP+1}
        v_mul_u32_u24 v{TMP}, 1280, v{TMP}
        v_lshl_add_u32 v{TMP}, v{TMP+1}, 4, v{TMP}
        s_mul_i32 s{ST}, s{S_M}, 160
        s_mul_i32 s{ST+1}, s{S_WV}, {6*1280}
        s_add_u32 s{ST}, s{ST}, s{ST+1}
        s_mul_i32 s{ST+1}, s{S_WV}, 960
        s_mov_b32 exec_hi, 0x0fffffff
        """)
        for i in range(27):
            if i == 26:
                lab = self.b.uid("L_wq")
                lab2 = self.b.uid("L_wq")
                I(f"""
                s_cmp_ge_u32 s{S_WV}, 3
                s_cbranch_scc1 {lab}
                s_cmp_lg_u32 s{S_WV}, 2
                s_cbranch_scc1 {lab2}
                s_mov_b32 exec_hi, 0xff
                {lab2}:
                s_mov_b32 m0, s{ST+1}
                s_nop 0
                buffer_load_dwordx4 v{TMP}, {sr(S_A)}, s{ST} offen lds
                {lab}:
                """)
            else:
                I(f"""
                s_mov_b32 m0, s{ST+1}
                s_add_u32 s{ST+1}, s{ST+1}, 3840
                buffer_load_dwordx4 v{TMP}, {sr(S_A)}, s{ST} offen lds
                s_add_u32 s{ST}, s{ST}, {24*1280}
                """)
        I("s_mov_b64 exec, -1")
        C("LN1 stats: sum via ones-MFMA, sumsq via Gram diagonal")
        ONES, D1, D2 = TMP, TMP+4, TMP+8
        lab_w = self.b.uid("L_x")
        I(f"s_waitcnt vmcnt(26)")
        for i in range(4): I(f"v_mov_b32 v{ONES+i}, 0x3f803f80")
        for s in range(20):
            I(f"v_mfma_f32_16x16x32_bf16 {vr(D1)}, {vr(ONES)}, {vr(XF+4*s)}, {'0' if s == 0 else vr(D1)}")
            I(f"v_mfma_f32_16x16x32_bf16 {vr(D2)}, {vr(XF+4*s)}, {vr(XF+4*s)}, {'0' if s == 0 else vr(D2)}")
        MU, RS, T1, T2 = XH, XH+1, XH+2, XH+3
        I(f"""
        v_and_b32 v{T1}, 3, v{V_T}
        v_cmp_eq_u32 vcc, 1, v{T1}
        v_cndmask_b32 v{T2}, v{D2}, v{D2+1}, vcc
        v_cmp_eq_u32 vcc, 2, v{T1}
        v_cndmask_b32 v{T2}, v{T2}, v{D2+2}, vcc
        v_cmp_eq_u32 vcc, 3, v{T1}
        v_cndmask_b32 v{T2}, v{T2}, v{D2+3}, vcc
        v_lshrrev_b32 v{T1}, 2, v{V_T}
        v_lshl_add_u32 v{T1}, v{T1}, 4, v{V_T}
        v_lshlrev_b32 v{T1}, 2, v{T1}
        ds_bpermute_b32 v{T2}, v{T1}, v{T2}
        v_mul_f32 v{MU}, {1.0/640!r}, v{D1}
        s_waitcnt lgkmcnt(0)
        v_mul_f32 v{T2}, {1.0/640!r}, v{T2}
        v_fma_f32 v{T2}, -v{MU}, v{MU}, v{T2}
        v_max_f32 v{T2}, 0, v{T2}
        v_add_f32 v{T2}, 0x3727c5ac, v{T2}
        v_rsq_f32 v{RS}, v{T2}
        s_nop 0
        v_mul_f32 v{MU}, v{MU}, v{RS}
        v_sub_f32 v{TMP}, 0, v{MU}                           ; -mu*rstd
        v_mov_b32 v{TMP+1}, v{RS}
        """)
        NM, RSx = TMP, TMP+1
        C("xhat = x*rstd - mu*rstd (fp32)")
        for s in range(20):
            for q in range(4):
                src = XF + 4*s + q
                d = XH + 8*s + 2*q
                I(f"v_lshlrev_b32 v{d}, 16, v{src}\nv_and_b32 v{d+1}, 0xffff0000, v{src}")
            for q in range(8):
                d = XH + 8*s + q
                I(f"v_fma_f32 v{d}, v{d}, v{RSx}, v{NM}")
        self.stamp("xhat")
        self.get_tag()
        G0 = TMP+4
        lp = self.b.uid("L_mp"); ok = self.b.uid("L_mpok")
        I(f"""
        s_mul_i32 s{ST+1}, s{S_WV}, {80*16}
        v_add_u32 v{TMP+2}, s{ST+1}, v{V_L16}
        v_add_u32 v{TMP+3}, 1024, v{TMP+2}
        v_cmp_gt_u32 vcc, 16, v{V_L}
        v_cndmask_b32 v{TMP+3}, v{TMP+2}, v{TMP+3}, vcc
        s_mov_b32 s{ST}, {TIMEOUT}
        {lp}:
        buffer_load_dwordx4 {vr(G0)}, v{TMP+2}, {sr(S_WS)}, 0 offen offset:{MODG} sc1
        buffer_load_dwordx4 {vr(G0+4)}, v{TMP+3}, {sr(S_WS)}, 0 offen offset:{MODG} sc1
        s_waitcnt vmcnt(0)
        v_cmp_ne_u32 vcc, s{S_TAG}, v{G0+2}
        s_mov_b64 s[{ST+2}:{ST+3}], vcc
        v_cmp_ne_u32 vcc, s{S_TAG+1}, v{G0+3}
        s_or_b64 s[{ST+2}:{ST+3}], s[{ST+2}:{ST+3}], vcc
        v_cmp_ne_u32 vcc, s{S_TAG}, v{G0+6}
        s_or_b64 s[{ST+2}:{ST+3}], s[{ST+2}:{ST+3}], vcc
        v_cmp_ne_u32 vcc, s{S_TAG+1}, v{G0+7}
        s_or_b64 s[{ST+2}:{ST+3}], s[{ST+2}:{ST+3}], vcc
        s_cmp_eq_u64 s[{ST+2}:{ST+3}], 0
        s_cbranch_scc1 {ok}
        """)
        self.spin_tail(ST, lp, 2)
        I(f"{ok}:")
        for blk, av in ((G0, TMP+2), (G0+4, TMP+3)):
            I(f"""
            v_and_b32 v{blk+3}, 0xffff0000, v{blk+1}
            v_lshlrev_b32 v{blk+2}, 16, v{blk+1}
            v_and_b32 v{blk+1}, 0xffff0000, v{blk}
            v_lshlrev_b32 v{blk}, 16, v{blk}
            """)
        lab_a = self.b.uid("L_a")
        I(f"s_cmp_lt_u32 s{S_WV}, 2\ns_cbranch_scc1 {lab_a}")
        for blk in (G0, G0+4):
            for q in range(4): I(f"v_add_f32 v{blk+q}, 1.0, v{blk+q}")
            I(f"""
            v_cvt_pk_bf16_f32 v{blk}, v{blk}, v{blk+1}
            v_cvt_pk_bf16_f32 v{blk+2}, v{blk+2}, v{blk+3}
            v_and_b32 v{blk+1}, 0xffff0000, v{blk}
            v_lshlrev_b32 v{blk}, 16, v{blk}
            v_and_b32 v{blk+3}, 0xffff0000, v{blk+2}
            v_lshlrev_b32 v{blk+2}, 16, v{blk+2}
            """)
        I(f"""
        {lab_a}:
        v_add_u32 v{TMP+2}, {L_MOD}, v{TMP+2}
        v_add_u32 v{TMP+3}, {L_MOD}, v{TMP+3}
        ds_write_b128 v{TMP+2}, {vr(G0)}
        ds_write_b128 v{TMP+3}, {vr(G0+4)}
        s_waitcnt lgkmcnt(0)
        s_barrier
        """)
        self.stamp("modgot")
        C("h1 = xhat*A + B -> bf16 fragments (overwrites XF).  all DMAs (wq, wk) were waited by vmcnt(0) above, barrier publishes them")
        va = TMP
        I(f"v_lshlrev_b32 v{va}, 4, v{V_G}\nv_add_u32 v{va}, {L_MOD}, v{va}")
        def buf(s): return (XF + 48 + 16*(s & 1)) if s < 12 else (XH + 16*(s & 1))
        def rd(s):
            B_ = buf(s)
            for hf in range(2):
                I(f"ds_read_b128 {vr(B_+4*hf)}, v{va} offset:{2560 + 128*s + 64*hf}")
                I(f"ds_read_b128 {vr(B_+8+4*hf)}, v{va} offset:{128*s + 64*hf}")
        rd(0)
        for s in range(20):
            if s + 1 < 20: rd(s+1)
            I(f"s_waitcnt lgkmcnt({4 if s + 1 < 20 else 0})")
            B_ = buf(s)
            for q in range(4):
                d = XH + 8*s + 2*q
                I(f"v_pk_fma_f32 v[{d}:{d+1}], v[{d}:{d+1}], v[{B_+2*q}:{B_+2*q+1}], v[{B_+8+2*q}:{B_+8+2*q+1}]")
            for q in range(4):
                d = XH + 8*s + 2*q
                I(f"v_cvt_pk_bf16_f32 v{XF+4*s+q}, v{d}, v{d+1}")
        self.stamp("h1")

    def phase_kv(self):
        I, C = self.I, self.C
        XF, XH = self.XF, self.XH
        lab_end = self.b.uid("L_kvend"); lab_v = self.b.uid("L_v"); lab_pub = self.b.uid("L_kvpub")
        va, vb, W0, ACC0, ACC1, T = XH, XH+1, XH+4, XH+24, XH+28, XH+32
        I(f"""
        s_cmp_ge_u32 s{S_M}, 2
        s_cbranch_scc1 {lab_end}
        v_lshrrev_b32 v{va}, 2, v{V_T}
        v_lshl_add_u32 v{va}, v{V_G}, 2, v{va}
        v_mul_u32_u24 v{va}, 40, v{va}
        v_and_b32 v{vb}, 3, v{V_T}
        v_lshl_add_u32 v{va}, v{vb}, 3, v{va}
        v_add_u32 v{va}, {L_WK}, v{va}
        s_cmp_eq_u32 s{S_M}, 1
        s_cbranch_scc1 {lab_v}
        """)
        def loop(isv):
            for s in range(20):
                o = (s & 1)*8
                I(f"""
                ds_read_b64_tr_b16 v[{W0+o}:{W0+o+1}], v{va} offset:{1280*s}
                ds_read_b64_tr_b16 v[{W0+o+2}:{W0+o+3}], v{va} offset:{1280*s+640}
                ds_read_b64_tr_b16 v[{W0+o+4}:{W0+o+5}], v{va} offset:{1280*s+32}
                ds_read_b64_tr_b16 v[{W0+o+6}:{W0+o+7}], v{va} offset:{1280*s+672}
                """)
                for ss in ([s-1] if s > 0 else []) + ([s] if s == 19 else []):
                    o2 = (ss & 1)*8
                    I(f"s_waitcnt lgkmcnt({4 if ss < s else 0})")
                    for tl, acc in ((0, ACC0), (1, ACC1)):
                        w = vr(W0+o2+4*tl); x = vr(XF+4*ss)
                        c = '0' if ss == 0 else vr(acc)
                        if isv: I(f"v_mfma_f32_16x16x32_bf16 {vr(acc)}, {x}, {w}, {c}")
                        else:   I(f"v_mfma_f32_16x16x32_bf16 {vr(acc)}, {w}, {x}, {c}")
        C("K: D[dim 4g+r][token t]")
        loop(False)
        I(f"""
        v_mul_f32 v{T}, v{ACC0}, v{ACC0}
        v_fmac_f32 v{T}, v{ACC0+1}, v{ACC0+1}
        v_fmac_f32 v{T}, v{ACC0+2}, v{ACC0+2}
        v_fmac_f32 v{T}, v{ACC0+3}, v{ACC0+3}
        v_mul_f32 v{T+1}, v{ACC1}, v{ACC1}
        v_fmac_f32 v{T+1}, v{ACC1+1}, v{ACC1+1}
        v_fmac_f32 v{T+1}, v{ACC1+2}, v{ACC1+2}
        v_fmac_f32 v{T+1}, v{ACC1+3}, v{ACC1+3}
        v_cmp_eq_u32 vcc, 0, v{V_G}
        v_cndmask_b32 v{T+1}, 0, v{T+1}, vcc
        v_add_f32 v{T}, v{T}, v{T+1}
        """)
        self.reduce_g([T], T+2)
        for sh in (8, 4, 2, 1):
            I(f"v_mov_b32_dpp v{T+2}, v{T} row_ror:{sh} row_mask:0xf bank_mask:0xf\nv_max_f32 v{T}, v{T}, v{T+2}")
        I(f"""
        s_lshl_b32 s{ST}, s{S_WV}, 2
        s_add_u32 s{ST}, s{ST}, {L_MISC}
        v_mov_b32 v{T+2}, s{ST}
        ds_write_b32 v{T+2}, v{T}
        """)
        I(f"""
        v_cvt_pk_bf16_f32 v{T+4}, v{ACC0}, v{ACC0+1}
        v_cvt_pk_bf16_f32 v{T+5}, v{ACC0+2}, v{ACC0+3}
        v_cvt_pk_bf16_f32 v{T+6}, v{ACC1}, v{ACC1+1}
        v_cvt_pk_bf16_f32 v{T+7}, v{ACC1+2}, v{ACC1+3}
        s_lshr_b32 s{ST}, s{S_TT}, 1
        s_mul_i32 s{ST}, s{ST}, {KVT}
        s_add_u32 s{ST}, s{ST}, {KV}
        s_and_b32 s{ST+1}, s{S_TT}, 1
        s_lshl_b32 s{ST+1}, s{ST+1}, 4
        v_add_u32 v{T+8}, s{ST+1}, v{V_T}                    ; kk
        v_lshrrev_b32 v{T+9}, 1, v{V_G}
        v_lshl_add_u32 v{T+9}, v{T+9}, 5, v{T+8}             ; kk+32*(g>>1)
        v_lshlrev_b32 v{T+9}, 4, v{T+9}
        v_and_b32 v{T+10}, 1, v{V_G}
        v_lshl_add_u32 v{T+9}, v{T+10}, 3, v{T+9}
        buffer_store_dwordx2 v[{T+4}:{T+5}], v{T+9}, {sr(S_WS)}, s{ST} offen sc1
        v_lshlrev_b32 v{T+8}, 3, v{T+8}
        v_cmp_eq_u32 vcc, 0, v{V_G}
        s_and_saveexec_b64 s[{ST+4}:{ST+5}], vcc
        buffer_store_dwordx2 v[{T+6}:{T+7}], v{T+8}, {sr(S_WS)}, s{ST} offen offset:1024 sc1
        s_mov_b64 exec, s[{ST+4}:{ST+5}]
        s_branch {lab_pub}
        {lab_v}:
        """)
        C("V^T: D[token 4g+r][d = lane&15]")
        loop(True)
        I(f"""
        v_cvt_pk_bf16_f32 v{T+4}, v{ACC0}, v{ACC0+1}
        v_cvt_pk_bf16_f32 v{T+5}, v{ACC0+2}, v{ACC0+3}
        v_cvt_pk_bf16_f32 v{T+6}, v{ACC1}, v{ACC1+1}
        v_cvt_pk_bf16_f32 v{T+7}, v{ACC1+2}, v{ACC1+3}
        v_cmp_eq_u32 vcc, 4, v{V_T}
        v_mov_b32 v{T+11}, 0x3f803f80
        v_cndmask_b32 v{T+6}, v{T+6}, v{T+11}, vcc
        v_cndmask_b32 v{T+7}, v{T+7}, v{T+11}, vcc
        s_lshr_b32 s{ST}, s{S_TT}, 1
        s_mul_i32 s{ST}, s{ST}, {KVT}
        s_and_b32 s{ST+1}, s{S_TT}, 1
        s_lshl_b32 s{ST+1}, s{ST+1}, 10
        s_add_u32 s{ST}, s{ST}, s{ST+1}
        s_add_u32 s{ST}, s{ST}, {KV+1280}
        v_and_b32 v{T+9}, 1, v{V_G}
        v_lshl_add_u32 v{T+9}, v{T+9}, 5, v{V_T}             ; d + 32*(g&1)
        v_lshlrev_b32 v{T+9}, 4, v{T+9}
        v_lshrrev_b32 v{T+10}, 1, v{V_G}
        v_lshl_add_u32 v{T+9}, v{T+10}, 3, v{T+9}
        buffer_store_dwordx2 v[{T+4}:{T+5}], v{T+9}, {sr(S_WS)}, s{ST} offen sc1
        v_cmp_gt_u32 vcc, 5, v{V_T}
        s_and_saveexec_b64 s[{ST+4}:{ST+5}], vcc
        buffer_store_dwordx2 v[{T+6}:{T+7}], v{T+9}, {sr(S_WS)}, s{ST} offen offset:256 sc1
        s_mov_b64 exec, s[{ST+4}:{ST+5}]
        v_mov_b32 v{T}, 0
        s_lshl_b32 s{ST}, s{S_WV}, 2
        s_add_u32 s{ST}, s{ST}, {L_MISC}
        v_mov_b32 v{T+2}, s{ST}
        ds_write_b32 v{T+2}, v{T}
        {lab_pub}:
        s_waitcnt vmcnt(0) lgkmcnt(0)
        s_barrier
        """)
        lab_np = self.b.uid("L_kvnp")
        I(f"""
        s_cmp_lg_u32 s{S_WV}, 0
        s_cbranch_scc1 {lab_np}
        v_mov_b32 v{T+2}, {L_MISC}
        ds_read_b128 {vr(T+4)}, v{T+2}
        s_waitcnt lgkmcnt(0)
        v_max_f32 v{T+4}, v{T+4}, v{T+5}
        v_max_f32 v{T+6}, v{T+6}, v{T+7}
        v_max_f32 v{T+6}, v{T+4}, v{T+6}
        v_mov_b32 v{T+4}, s{S_TAG}
        v_mov_b32 v{T+5}, s{S_TAG+1}
        v_mov_b32 v{T+7}, 0
        s_lshl_b32 s{ST}, s{S_RB}, 1
        s_add_u32 s{ST}, s{ST}, s{S_M}
        s_lshl_b32 s{ST}, s{ST}, 7
        s_add_u32 s{ST}, s{ST}, {KVFLAG}
        v_mov_b32 v{T+2}, s{ST}
        s_mov_b64 exec, 1
        buffer_store_dwordx4 {vr(T+4)}, v{T+2}, {sr(S_WS)}, 0 offen sc1
        s_mov_b64 exec, -1
        {lab_np}:
        {lab_end}:
        """)
        self.stamp("kvpub")

    QA0, QA1, QB0, QB1 = 44, 48, 52, 56
    SA, SB = 60, 76
    PA, PB = 92, 100
    OA, OB = 108, 124
    KB = 140
    VB = 172
    AT = 204

    def phase_q(self):
        I, C = self.I, self.C
        XF, XH = self.XF, self.XH
        va, vb, WB, ACC = XH, XH+1, XH+4, XH+44
        I(f"""
        v_lshrrev_b32 v{va}, 2, v{V_T}
        v_lshl_add_u32 v{va}, v{V_G}, 2, v{va}
        v_mul_u32_u24 v{va}, 160, v{va}
        v_and_b32 v{vb}, 3, v{V_T}
        v_lshl_add_u32 v{va}, v{vb}, 3, v{va}
        v_add_u32 v{vb}, 51200, v{va}
        """)
        def rd(s):
            base = va if s < 10 else vb
            o = 5120*(s % 10)
            for j in range(5):
                W_ = WB + 20*(s & 1) + 4*j
                I(f"ds_read_b64_tr_b16 v[{W_}:{W_+1}], v{base} offset:{L_WQ + o + 32*j}")
                I(f"ds_read_b64_tr_b16 v[{W_+2}:{W_+3}], v{base} offset:{L_WQ + o + 32*j + 2560}")
        rd(0)
        for s in range(20):
            if s + 1 < 20: rd(s+1)
            I(f"s_waitcnt lgkmcnt({10 if s + 1 < 20 else 0})")
            for j in range(5):
                I(f"v_mfma_f32_16x16x32_bf16 {vr(ACC+4*j)}, {vr(WB+20*(s&1)+4*j)}, {vr(XF+4*s)}, {'0' if s == 0 else vr(ACC+4*j)}")
        qs = (20 ** -0.5) * 1.4426950408889634
        I(f"s_mov_b32 s{ST}, {hex(f2u(qs))}")
        C("scale, pack, write wave-private [16][176B] tile")
        I(f"""
        s_mul_i32 s{ST+1}, s{S_WV}, {16*176}
        s_add_u32 s{ST+1}, s{ST+1}, {L_QS}
        v_mul_u32_u24 v{va}, 176, v{V_T}
        v_lshl_add_u32 v{va}, v{V_G}, 3, v{va}
        v_add_u32 v{va}, s{ST+1}, v{va}
        """)
        for j in range(5):
            a = ACC + 4*j
            for r in range(4): I(f"v_mul_f32 v{a+r}, s{ST}, v{a+r}")
            I(f"v_cvt_pk_bf16_f32 v{a}, v{a}, v{a+1}\nv_cvt_pk_bf16_f32 v{a+1}, v{a+2}, v{a+3}")
            I(f"ds_write_b64 v{va}, v[{a}:{a+1}] offset:{32*j}")
        AT = self.AT
        I(f"""
        v_mul_u32_u24 v{vb}, 176, v{V_T}
        v_bfe_u32 v{va}, v{V_L}, 4, 1
        v_mul_u32_u24 v{va}, 40, v{va}
        v_add_u32 v{vb}, v{vb}, v{va}
        v_add_u32 v{vb}, s{ST+1}, v{vb}                      ; token*176 + (q>>4)*40
        v_lshrrev_b32 v{va}, 5, v{V_L}
        v_lshl_add_u32 v{va}, v{va}, 4, v{vb}                ; + 16h
        s_waitcnt lgkmcnt(0)
        ds_read_b64 v[{self.QA0}:{self.QA0+1}], v{va}
        ds_read_b64 v[{self.QA0+2}:{self.QA0+3}], v{va} offset:8
        ds_read_b64 v[{self.QB0}:{self.QB0+1}], v{va} offset:80
        ds_read_b64 v[{self.QB0+2}:{self.QB0+3}], v{va} offset:88
        ds_read_b64 v[{self.QA1}:{self.QA1+1}], v{vb} offset:32
        ds_read_b64 v[{self.QB1}:{self.QB1+1}], v{vb} offset:112
        v_cmp_gt_u32 vcc, 32, v{V_L}
        s_waitcnt lgkmcnt(0)
        """)
        for r in (self.QA1, self.QA1+1, self.QB1, self.QB1+1):
            I(f"v_cndmask_b32 v{r}, 0, v{r}, vcc")
        for (t, q0, q1) in ((AT, self.QA0, self.QA1), (AT+1, self.QB0, self.QB1)):
            I(f"v_mov_b32 v{t}, 0")
            for r in (q0, q0+1, q0+2, q0+3, q1, q1+1):
                I(f"v_dot2_f32_bf16 v{t}, v{r}, v{r}, v{t}")
        for t in (AT, AT+1):
            I(f"v_mov_b32 v{AT+2}, v{t}\nv_permlane32_swap_b32 v{t}, v{AT+2}\nv_add_f32 v{t}, v{t}, v{AT+2}")
        I(f"v_max_f32 v{AT}, v{AT}, v{AT+1}")
        self.stamp("qproj")

    def phase_relayout(self):
        I, C = self.I, self.C
        T = 208
        va, vl, D = T, T+1, T+4
        I("s_barrier")
        I(f"""
        v_lshrrev_b32 v{va}, 3, v{V_L}
        v_and_b32 v{vl}, 7, v{V_L}                           ; chunk
        v_lshlrev_b32 v{vl}, 4, v{vl}
        v_lshrrev_b32 v{T+2}, 2, v{V_T}
        v_lshl_add_u32 v{T+2}, v{V_G}, 2, v{T+2}
        v_lshlrev_b32 v{T+2}, 7, v{T+2}                      ; 128*(4g+(i>>2))
        v_and_b32 v{T+3}, 3, v{V_T}
        v_lshl_add_u32 v{T+2}, v{T+3}, 3, v{T+2}
        s_lshl_b32 s{ST+20}, s{S_WV}, 12
        s_add_u32 s{ST+20}, s{ST+20}, {L_RL}
        v_add_u32 v{T+2}, s{ST+20}, v{T+2}
        s_lshl_b32 s{ST+21}, s{S_W}, 2
        s_add_u32 s{ST+21}, s{ST+21}, s{S_WV}
        """)
        u, rowb, S_, dst, kb, nb = ST+21, ST+22, ST+23, ST+24, ST+25, ST+26
        for rep in range(2):
            lab_skip = self.b.uid("L_rl")
            if rep == 1:
                I(f"s_add_u32 s{u}, s{u}, 1024\ns_cmp_ge_u32 s{u}, 1680\ns_cbranch_scc1 {lab_skip}")
            mats = [(0, 200, P_WO, 1280, 20, WOF, 10), (200, 400, P_W1, 1280, 20, W1F, 10), (400, 600, P_W2, 1280, 20, W2F, 10),
                    (600, 1140, P_W3, 3456, 20, W3F, 27), (1140, 1680, P_W4, 1280, 54, W4F, 10)]
            done = self.b.uid("L_dec")
            for (lo, hi, ptr, rb_, S, d, nbn) in mats:
                nxt = self.b.uid("L_dec")
                if hi < 1680:
                    I(f"s_cmp_ge_u32 s{u}, {hi}\ns_cbranch_scc1 {nxt}")
                K = 640 if S == 20 else 1728
                I(f"""
                s_mov_b32 s{S_A}, s{ptr}
                s_mov_b32 s{S_A+1}, s{ptr+1}
                s_mov_b32 s{S_A+2}, {K*rb_}
                s_mov_b32 s{rowb}, {rb_}
                s_mov_b32 s{S_}, {S}
                s_mov_b32 s{dst}, {d}
                s_sub_u32 s{ST}, s{u}, {lo}
                s_mul_i32 s{kb}, s{ST}, {-(-65536 // nbn)}
                s_lshr_b32 s{kb}, s{kb}, 16
                s_mul_i32 s{ST+1}, s{kb}, {nbn}
                s_sub_u32 s{nb}, s{ST}, s{ST+1}
                s_branch {done}
                {nxt}:
                """)
            I(f"{done}:\ns_mov_b32 s{S_A+3}, 0x20000")
            I(f"""
            v_mul_lo_u32 v{T+3}, v{va}, s{rowb}
            v_add_u32 v{T+3}, v{T+3}, v{vl}
            s_lshl_b32 s{ST}, s{kb}, 5
            s_mul_i32 s{ST}, s{ST}, s{rowb}
            s_lshl_b32 s{ST+1}, s{nb}, 7
            s_add_u32 s{ST}, s{ST}, s{ST+1}
            s_lshl_b32 s{ST+2}, s{rowb}, 3
            s_mov_b32 s{ST+3}, s{ST+20}
            """)
            for q in range(4):
                I(f"""
                s_mov_b32 m0, s{ST+3}
                s_add_u32 s{ST+3}, s{ST+3}, 1024
                buffer_load_dwordx4 v{T+3}, {sr(S_A)}, s{ST} offen lds
                s_add_u32 s{ST}, s{ST}, s{ST+2}
                """)
            I("s_waitcnt vmcnt(0)")
            for jj in range(4):
                I(f"ds_read_b64_tr_b16 v[{D+4*jj}:{D+4*jj+1}], v{T+2} offset:{32*jj}")
                I(f"ds_read_b64_tr_b16 v[{D+4*jj+2}:{D+4*jj+3}], v{T+2} offset:{32*jj+2048}")
            I(f"""
            s_lshl_b32 s{ST}, s{nb}, 2
            s_mul_i32 s{ST}, s{ST}, s{S_}
            s_add_u32 s{ST}, s{ST}, s{kb}
            s_lshl_b32 s{ST}, s{ST}, 10
            s_add_u32 s{ST}, s{ST}, s{dst}
            s_lshl_b32 s{ST+1}, s{S_}, 10
            s_waitcnt lgkmcnt(0)
            """)
            for jj in range(4):
                I(f"buffer_store_dwordx4 {vr(D+4*jj)}, v{V_L16}, {sr(S_WS)}, s{ST} offen sc1")
                if jj < 3: I(f"s_add_u32 s{ST}, s{ST}, s{ST+1}")
            I(f"{lab_skip}:")
        lab = self.b.uid("L_rlp")
        I(f"""
        s_waitcnt vmcnt(0)
        s_barrier
        s_cmp_lg_u32 s{S_WV}, 0
        s_cbranch_scc1 {lab}
        v_mov_b32 v{T}, s{S_TAG}
        v_mov_b32 v{T+1}, s{S_TAG+1}
        s_lshl_b32 s{ST}, s{S_W}, 7
        s_add_u32 s{ST}, s{ST}, {RLFLAG}
        v_mov_b32 v{T+2}, s{ST}
        s_mov_b64 exec, 1
        buffer_store_dwordx2 v[{T}:{T+1}], v{T+2}, {sr(S_WS)}, 0 offen sc1
        s_mov_b64 exec, -1
        {lab}:
        """)
        self.stamp("relayout")

    def phase_kvwait(self):
        I = self.I
        AT = self.AT
        lp = self.b.uid("L_kvw"); ok = self.b.uid("L_kvok")
        I(f"""
        v_lshlrev_b32 v{AT+3}, 7, v{V_L}
        s_mov_b32 s{ST}, {TIMEOUT}
        s_mov_b32 s{ST+1}, {KVFLAG}
        {lp}:
        buffer_load_dwordx4 {vr(AT+4)}, v{AT+3}, {sr(S_WS)}, s{ST+1} offen sc1
        """)
        I(f"""
        s_waitcnt vmcnt(0)
        v_cmp_ne_u32 vcc, s{S_TAG}, v{AT+4}
        s_mov_b64 s[{ST+2}:{ST+3}], vcc
        v_cmp_ne_u32 vcc, s{S_TAG+1}, v{AT+5}
        s_or_b64 s[{ST+2}:{ST+3}], s[{ST+2}:{ST+3}], vcc
        s_cmp_eq_u64 s[{ST+2}:{ST+3}], 0
        s_cbranch_scc1 {ok}
        """)
        self.spin_tail(ST, lp, 3)
        I(f"{ok}:")
        self.reduce_g([AT+6], AT+2, op="v_max_f32")
        for sh in (8, 4, 2, 1):
            I(f"v_mov_b32_dpp v{AT+2}, v{AT+6} row_ror:{sh} row_mask:0xf bank_mask:0xf\nv_max_f32 v{AT+6}, v{AT+6}, v{AT+2}")
        I(f"v_mov_b32 v{AT+1}, v{AT+6}")
        self.stamp("kvwait")

    def kv_loads(self, i, sK, sV):
        raise NotImplementedError

    def phase_attn(self, force_slow=False):
        I, C = self.I, self.C
        QA0, QA1, QB0, QB1, SA, SB, PA, PB, OA, OB, KB, VB, AT = (self.QA0, self.QA1, self.QB0, self.QB1, self.SA, self.SB,
            self.PA, self.PB, self.OA, self.OB, self.KB, self.VB, self.AT)
        sK, sV, cnt = ST, ST+1, ST+2
        vK1 = AT+2
        lab_slow = self.b.uid("L_slow"); lab_done = self.b.uid("L_adone")
        C("bound check: |q|^2 * kmax2 <= T^2 (log2 units) else true-max path")
        Tlim = 64.0
        I(f"""
        v_mul_f32 v{AT}, v{AT}, v{AT+1}
        v_and_b32 v{vK1}, 31, v{V_L}
        v_lshlrev_b32 v{vK1}, 3, v{vK1}
        s_mov_b32 s{ST+3}, {hex(f2u(Tlim*Tlim if not force_slow else -1.0))}
        v_cmp_nge_f32 vcc, s{ST+3}, v{AT}
        """)
        for r in range(16): I(f"v_mov_b32 v{OA+r}, 0\nv_mov_b32 v{OB+r}, 0")
        I(f"s_cbranch_vccnz {lab_slow}")
        def ldK(buf, s):
            k = KB + 8*buf
            I(f"buffer_load_dwordx4 {vr(k)}, v{V_L16}, {sr(S_WS)}, s{s} offen")
            I(f"buffer_load_dwordx2 v[{k+4}:{k+5}], v{vK1}, {sr(S_WS)}, s{s} offen offset:1024")
        def ldV(buf, s):
            v = VB + 8*buf
            I(f"buffer_load_dwordx4 {vr(v)}, v{V_L16}, {sr(S_WS)}, s{s} offen offset:1280")
            I(f"buffer_load_dwordx4 {vr(v+4)}, v{V_L16}, {sr(S_WS)}, s{s} offen offset:2304")
        for r in range(16): I(f"v_mov_b32 v{SB+r}, 0xff800000")
        for r in range(8): I(f"v_mov_b32 v{PA+r}, 0")
        for r in range(8): I(f"v_mov_b32 v{VB+24+r}, 0")
        I(f"s_mov_b32 s{sK}, {KV}")
        ldK(0, sK)
        I(f"buffer_load_dwordx2 v[{AT+4}:{AT+5}], v{vK1}, {sr(S_WS)}, s{sK} offen")
        I(f"buffer_load_dwordx2 v[{AT+6}:{AT+7}], v{vK1}, {sr(S_WS)}, s{sK} offen")
        I(f"s_mov_b32 s{sV}, s{sK}\ns_add_u32 s{sK}, s{sK}, {KVT}")
        ldK(1, sK); ldV(0, sV)
        I(f"s_mov_b32 s{sV}, s{sK}\ns_add_u32 s{sK}, s{sK}, {KVT}")
        ldK(2, sK); ldV(1, sV)
        I(f"s_mov_b32 s{cnt}, 16")
        lp = self.b.uid("L_att")
        I(f"{lp}:")
        def exps(S, P, q):
            a = S + 4*q
            I(f"v_exp_f32 v{a}, v{a}\nv_exp_f32 v{a+1}, v{a+1}\nv_exp_f32 v{a+2}, v{a+2}\nv_exp_f32 v{a+3}, v{a+3}")
            I(f"v_cvt_pk_bf16_f32 v{P+2*q}, v{a}, v{a+1}\nv_cvt_pk_bf16_f32 v{P+2*q+1}, v{a+2}, v{a+3}")
        M16 = "v_mfma_f32_32x32x16_bf16"; M8 = "v_mfma_f32_32x32x8_bf16"
        def body(i, qk=True):
            kb = KB + 8*(i % 4); vb = VB + 8*((i+3) % 4)
            if qk:
                I("s_waitcnt vmcnt(8)")
                I(f"s_mov_b32 s{sV}, s{sK}\ns_add_u32 s{sK}, s{sK}, {KVT}")
                I(f"{M16} {vr(SA,16)}, {vr(kb)}, {vr(QA0)}, 0")
                ldK((i+3) % 4, sK)
            exps(SB, PB, 0)
            if qk:
                I(f"{M8} {vr(SA,16)}, v[{kb+4}:{kb+5}], v[{QA1}:{QA1+1}], {vr(SA,16)}")
                ldV((i+2) % 4, sV)
            exps(SB, PB, 1)
            I(f"{M16} {vr(OA,16)}, {vr(vb)}, {vr(PA)}, {vr(OA,16)}")
            exps(SB, PB, 2)
            I(f"{M16} {vr(OA,16)}, {vr(vb+4)}, {vr(PA+4)}, {vr(OA,16)}")
            exps(SB, PB, 3)
            if qk:
                I(f"{M16} {vr(SB,16)}, {vr(kb)}, {vr(QB0)}, 0")
                exps(SA, PA, 0)
                I(f"{M8} {vr(SB,16)}, v[{kb+4}:{kb+5}], v[{QB1}:{QB1+1}], {vr(SB,16)}")
                exps(SA, PA, 1)
            I(f"{M16} {vr(OB,16)}, {vr(vb)}, {vr(PB)}, {vr(OB,16)}")
            if qk: exps(SA, PA, 2)
            I(f"{M16} {vr(OB,16)}, {vr(vb+4)}, {vr(PB+4)}, {vr(OB,16)}")
            if qk: exps(SA, PA, 3)
        for i in range(4): body(i)
        I(f"s_sub_u32 s{cnt}, s{cnt}, 1\ns_cmp_lg_u32 s{cnt}, 0\ns_cbranch_scc1 {lp}")
        C("drain: iteration 64 (V_63 in buffer 3)")
        I("s_waitcnt vmcnt(0)")
        body(0, qk=False)
        I(f"s_branch {lab_done}")
        I(f"{lab_slow}:")
        MA_, MB_, T0 = AT+4, AT+5, AT+6
        I(f"v_mov_b32 v{MA_}, 0xff7fffff\nv_mov_b32 v{MB_}, 0xff7fffff")
        I(f"s_mov_b32 s{sK}, {KV}\ns_mov_b32 s{cnt}, 64")
        lp2 = self.b.uid("L_atts")
        I(f"{lp2}:")
        ldK(0, sK); ldV(0, sK)
        I(f"s_add_u32 s{sK}, s{sK}, {KVT}\ns_waitcnt vmcnt(0)")
        for (S, P, O, Q0, Q1, Mx) in ((SA, PA, OA, QA0, QA1, MA_), (SB, PB, OB, QB0, QB1, MB_)):
            I(f"{M16} {vr(S,16)}, {vr(KB)}, {vr(Q0)}, 0")
            I(f"{M8} {vr(S,16)}, v[{KB+4}:{KB+5}], v[{Q1}:{Q1+1}], {vr(S,16)}")
            I(f"v_max3_f32 v{T0}, v{S}, v{S+1}, v{S+2}")
            for r in range(3, 15, 2): I(f"v_max3_f32 v{T0}, v{T0}, v{S+r}, v{S+r+1}")
            I(f"v_max_f32 v{T0}, v{T0}, v{S+15}")
            I(f"v_mov_b32 v{T0+1}, v{T0}\nv_permlane32_swap_b32 v{T0}, v{T0+1}\nv_max_f32 v{T0}, v{T0}, v{T0+1}")
            I(f"v_max_f32 v{T0}, v{T0}, v{Mx}")
            I(f"v_sub_f32 v{T0+1}, v{Mx}, v{T0}\nv_exp_f32 v{T0+1}, v{T0+1}\nv_mov_b32 v{Mx}, v{T0}")
            for r in range(16): I(f"v_mul_f32 v{O+r}, v{O+r}, v{T0+1}")
            for r in range(16): I(f"v_sub_f32 v{S+r}, v{S+r}, v{T0}")
            for q in range(4): exps(S, P, q)
            I(f"{M16} {vr(O,16)}, {vr(VB)}, {vr(P)}, {vr(O,16)}")
            I(f"{M16} {vr(O,16)}, {vr(VB+4)}, {vr(P+4)}, {vr(O,16)}")
        I(f"s_sub_u32 s{cnt}, s{cnt}, 1\ns_cmp_lg_u32 s{cnt}, 0\ns_cbranch_scc1 {lp2}")
        I(f"{lab_done}:")
        self.stamp("attn")
        C("normalise and store O in the B-fragment layout of the wo GEMM")
        T = AT
        I(f"""
        v_bfe_u32 v{T}, v{V_L}, 4, 1
        v_mul_u32_u24 v{T}, 20, v{T}
        s_mul_i32 s{ST}, s{S_M}, 80
        v_add_u32 v{T}, s{ST}, v{T}                          ; 80m + 20*(q>>4)
        v_lshrrev_b32 v{T+1}, 5, v{V_L}
        v_lshl_add_u32 v{T}, v{T+1}, 2, v{T}                 ; + 4h
        s_mul_i32 s{ST}, s{S_TT}, {20*1024}
        s_add_u32 s{ST}, s{ST}, {OF}
        """)
        for (O, u) in ((OA, 0), (OB, 1)):
            I(f"v_mov_b32 v{T+2}, v{O+8}\nv_mov_b32 v{T+3}, v{O+8}\nv_permlane32_swap_b32 v{T+2}, v{T+3}")
            I(f"v_rcp_f32 v{T+3}, v{T+3}")
            for run in range(3):
                a = O + 4*run
                for r in range(4): I(f"v_mul_f32 v{a+r}, v{a+r}, v{T+3}")
                I(f"v_cvt_pk_bf16_f32 v{a}, v{a}, v{a+1}\nv_cvt_pk_bf16_f32 v{a+1}, v{a+2}, v{a+3}")
                I(f"""
                v_add_u32 v{T+4}, {40*u + 8*run}, v{T}                ; f
                v_lshrrev_b32 v{T+5}, 5, v{T+4}
                v_lshlrev_b32 v{T+5}, 10, v{T+5}
                v_bfe_u32 v{T+6}, v{T+4}, 2, 2
                v_lshl_add_u32 v{T+5}, v{T+6}, 8, v{T+5}
                v_bfe_u32 v{T+6}, v{T+4}, 4, 1
                v_lshl_add_u32 v{T+5}, v{T+6}, 3, v{T+5}
                v_lshl_add_u32 v{T+5}, v{V_T}, 4, v{T+5}
                """)
                if run == 2:
                    I(f"s_mov_b32 exec_hi, 0")
                I(f"buffer_store_dwordx2 v[{a}:{a+1}], v{T+5}, {sr(S_WS)}, s{ST} offen sc1")
                if run == 2:
                    I(f"s_mov_b32 exec_hi, -1")
        self.publish(PH_O)
        self.stamp("opub")

    def publish(self, ph):
        I = self.I
        lab = self.b.uid("L_pub")
        I(f"""
        s_waitcnt vmcnt(0)
        s_barrier
        s_cmp_lg_u32 s{S_WV}, 0
        s_cbranch_scc1 {lab}
        v_mov_b32 v254, s{S_TAG}
        v_mov_b32 v255, s{S_TAG+1}
        s_lshl_b32 s{ST}, s{S_RB}, 7
        s_lshl_b32 s{ST+1}, s{S_M}, 3
        s_add_u32 s{ST}, s{ST}, s{ST+1}
        s_add_u32 s{ST}, s{ST}, {CFLAG + ph*4096}
        v_mov_b32 v253, s{ST}
        s_mov_b64 exec, 1
        buffer_store_dwordx2 v[254:255], v253, {sr(S_WS)}, 0 offen sc1
        s_mov_b64 exec, -1
        {lab}:
        """)

    def wait_flags(self, ph, rbs, code):
        I = self.I
        lab = self.b.uid("L_wf"); lp = self.b.uid("L_wfp"); ok = self.b.uid("L_wfok")
        I(f"s_cmp_lg_u32 s{S_WV}, 0\ns_cbranch_scc1 {lab}")
        I(f"v_lshrrev_b32 v250, 3, v{V_L}\nv_and_b32 v250, 3, v250\nv_mov_b32 v251, s{rbs[0]}")
        for i, r in enumerate(rbs[1:], 1):
            I(f"v_cmp_eq_u32 vcc, {i}, v250\nv_mov_b32 v252, s{r}\nv_cndmask_b32 v251, v251, v252, vcc")
        I(f"""
        v_lshlrev_b32 v251, 7, v251
        v_and_b32 v252, 7, v{V_L}
        v_lshl_add_u32 v251, v252, 3, v251
        s_mov_b32 s{ST+1}, {CFLAG + ph*4096}
        s_mov_b32 s{ST}, {TIMEOUT}
        {lp}:
        buffer_load_dwordx2 v[254:255], v251, {sr(S_WS)}, s{ST+1} offen sc1
        s_waitcnt vmcnt(0)
        v_cmp_ne_u32 vcc, s{S_TAG}, v254
        s_mov_b64 s[{ST+2}:{ST+3}], vcc
        v_cmp_ne_u32 vcc, s{S_TAG+1}, v255
        s_or_b64 s[{ST+2}:{ST+3}], s[{ST+2}:{ST+3}], vcc
        s_cmp_eq_u64 s[{ST+2}:{ST+3}], 0
        s_cbranch_scc1 {ok}
        """)
        self.spin_tail(ST, lp, code)
        I(f"{ok}:\n{lab}:")


    X2, H = 4, 24
    ACC = 44
    WB = 100
    GT = 184

    def wait_relayout(self):
        I = self.I
        lab = self.b.uid("L_rw"); lp = self.b.uid("L_rwp"); ok = self.b.uid("L_rwok")
        T = self.GT
        I(f"s_cmp_lg_u32 s{S_WV}, 0\ns_cbranch_scc1 {lab}")
        I(f"v_lshlrev_b32 v{T}, 7, v{V_L}\ns_mov_b32 s{ST}, {TIMEOUT}\n{lp}:")
        for i in range(4):
            I(f"s_mov_b32 s{ST+1}, {RLFLAG + i*8192}\nbuffer_load_dwordx2 v[{T+2+2*i}:{T+3+2*i}], v{T}, {sr(S_WS)}, s{ST+1} offen sc1")
        I(f"s_waitcnt vmcnt(0)\ns_mov_b64 s[{ST+2}:{ST+3}], 0")
        for i in range(4):
            I(f"""
            v_cmp_ne_u32 vcc, s{S_TAG}, v{T+2+2*i}
            s_or_b64 s[{ST+2}:{ST+3}], s[{ST+2}:{ST+3}], vcc
            v_cmp_ne_u32 vcc, s{S_TAG+1}, v{T+3+2*i}
            s_or_b64 s[{ST+2}:{ST+3}], s[{ST+2}:{ST+3}], vcc
            """)
        I(f"s_cmp_eq_u64 s[{ST+2}:{ST+3}], 0\ns_cbranch_scc1 {ok}")
        self.spin_tail(ST, lp, 4)
        I(f"{ok}:\n{lab}:\ns_barrier")

    def dma_w(self, src_sreg, nkb):
        I = self.I
        ngrp = -(-nkb // 4)
        I(f"""
        s_lshl_b32 s{ST}, s{S_WV}, 12
        s_add_u32 s{ST+1}, s{src_sreg}, s{ST}
        s_add_u32 s{ST}, s{ST}, {L_W}
        """)
        for gi in range(-(-ngrp // 4)):
            lab = None
            if 4*gi + 3 >= ngrp:
                lab = self.b.uid("L_dw")
                I(f"s_cmp_ge_u32 s{S_WV}, {ngrp - 4*gi}\ns_cbranch_scc1 {lab}")
            I(f"s_mov_b32 m0, s{ST}\ns_add_u32 s{ST}, s{ST}, 16384")
            for q in range(4):
                I(f"buffer_load_dwordx4 v{V_L16}, {sr(S_WS)}, s{ST+1} offen offset:{1024*q} sc1 lds")
            I(f"s_add_u32 s{ST+1}, s{ST+1}, 16384")
            if lab: I(f"{lab}:")

    def load_a(self, src_sreg, S, vaddr=V_L16, abase=16, s0=0, shift=None):
        I = self.I
        for s in range(S):
            if s % 4 == 0:
                I(f"s_add_u32 s{ST+2}, s{src_sreg}, {1024*(s0+s)}")
            I(f"buffer_load_dwordx4 {ar(abase+4*s)}, v{vaddr}, {sr(S_WS)}, s{ST+2} offen offset:{1024*(s%4)} sc1")

    def gemm(self, S, NT, lds_stride_tile, abases, first=True, wait_vm=True, nA=None, ldsbase=0, s_off=0):
        I = self.I
        WB, ACC, T = self.WB, self.ACC, self.GT
        nt = len(abases)
        vb = [T, T+1, T+2]
        I(f"v_add_u32 v{vb[0]}, {ldsbase}, v{V_L16}\nv_add_u32 v{vb[1]}, {ldsbase+61440}, v{V_L16}\nv_add_u32 v{vb[2]}, {ldsbase+2*61440}, v{V_L16}")
        def rd(s):
            for j in range(NT):
                off = (j*lds_stride_tile + s)*1024
                k, o = divmod(off, 61440)
                I(f"ds_read_b128 {vr(WB + 28*(s % 3) + 4*j)}, v{vb[k]} offset:{o}")
        rd(0)
        if S > 1: rd(1)
        for s in range(S):
            if s + 2 < S: rd(s+2)
            rem = min(2, S-1-s)
            n = rem*NT
            I(f"s_waitcnt lgkmcnt({min(n,15)})") if n <= 15 else I(f"s_waitcnt lgkmcnt(15)")
            if n > 15:
                pass
            if wait_vm:
                I(f"s_waitcnt vmcnt({max(0, (S-1-s))})")
            for tt in range(nt):
                for j in range(NT):
                    c = '0' if (first and s == 0) else vr(ACC+4*(tt*NT+j))
                    I(f"v_mfma_f32_16x16x32_bf16 {vr(ACC+4*(tt*NT+j))}, {vr(WB+28*(s%3)+4*j)}, {ar(abases[tt]+4*(s+s_off))}, {c}")

    def mod_slice(self, which, dst):
        I = self.I
        T = self.GT + 40
        lp = self.b.uid("L_ms"); ok = self.b.uid("L_msok")
        I(f"""
        s_mul_i32 s{ST+1}, s{S_M}, 320
        s_add_u32 s{ST+1}, s{ST+1}, {MODG + which*160*16}
        v_lshlrev_b32 v{T+20}, 4, v{V_G}
        s_mov_b32 s{ST}, {TIMEOUT}
        {lp}:
        """)
        for j in range(5):
            I(f"buffer_load_dwordx4 {vr(T+4*j)}, v{T+20}, {sr(S_WS)}, s{ST+1} offen offset:{64*j} sc1")
        I(f"s_waitcnt vmcnt(0)\ns_mov_b64 s[{ST+2}:{ST+3}], 0")
        for j in range(5):
            I(f"""
            v_cmp_ne_u32 vcc, s{S_TAG}, v{T+4*j+2}
            s_or_b64 s[{ST+2}:{ST+3}], s[{ST+2}:{ST+3}], vcc
            v_cmp_ne_u32 vcc, s{S_TAG+1}, v{T+4*j+3}
            s_or_b64 s[{ST+2}:{ST+3}], s[{ST+2}:{ST+3}], vcc
            """)
        I(f"s_cmp_eq_u64 s[{ST+2}:{ST+3}], 0\ns_cbranch_scc1 {ok}")
        self.spin_tail(ST, lp, 5)
        I(f"{ok}:")
        for j in range(5):
            a = T + 4*j; d = dst + 4*j
            I(f"""
            v_lshlrev_b32 v{d}, 16, v{a}
            v_and_b32 v{d+1}, 0xffff0000, v{a}
            v_lshlrev_b32 v{d+2}, 16, v{a+1}
            v_and_b32 v{d+3}, 0xffff0000, v{a+1}
            """)

    def one_plus_bf16(self, r, n):
        I = self.I
        for i in range(0, n, 2):
            I(f"""
            v_add_f32 v{r+i}, 1.0, v{r+i}
            v_add_f32 v{r+i+1}, 1.0, v{r+i+1}
            v_cvt_pk_bf16_f32 v{r+i}, v{r+i}, v{r+i+1}
            v_and_b32 v{r+i+1}, 0xffff0000, v{r+i}
            v_lshlrev_b32 v{r+i}, 16, v{r+i}
            """)

    def ln_stats(self, src, which, mu, rs, code):
        I = self.I
        T = self.GT + 4
        I(f"v_mov_b32 v{T}, v{src}\nv_mul_f32 v{T+1}, v{src}, v{src}")
        for i in range(1, 20):
            I(f"v_add_f32 v{T}, v{T}, v{src+i}\nv_fmac_f32 v{T+1}, v{src+i}, v{src+i}")
        self.reduce_g([T, T+1], T+4)
        I(f"""
        v_mov_b32 v{T+2}, s{S_TAG}
        v_mov_b32 v{T+3}, s{S_TAG+1}
        s_lshl_b32 s{ST+4}, s{S_RB}, 13                      ; rb*8*64*16
        s_lshl_b32 s{ST+5}, s{S_WV}, 8
        s_add_u32 s{ST+4}, s{ST+4}, s{ST+5}
        s_add_u32 s{ST+4}, s{ST+4}, {STAT + which*STAT_SZ}
        s_lshl_b32 s{ST+5}, s{S_M}, 10
        s_add_u32 s{ST+5}, s{ST+5}, s{ST+4}
        v_lshlrev_b32 v{T+4}, 4, v{V_T}
        v_cmp_eq_u32 vcc, 0, v{V_G}
        s_and_saveexec_b64 s[{ST+6}:{ST+7}], vcc
        buffer_store_dwordx4 {vr(T)}, v{T+4}, {sr(S_WS)}, s{ST+5} offen sc1
        s_mov_b64 exec, s[{ST+6}:{ST+7}]
        v_lshl_add_u32 v{T+5}, v{V_G}, 11, v{T+4}            ; members 2g, 2g+1
        s_mov_b32 s{ST}, {TIMEOUT}
        """)
        lp = self.b.uid("L_ls"); ok = self.b.uid("L_lsok")
        I(f"""
        {lp}:
        buffer_load_dwordx4 {vr(T+8)}, v{T+5}, {sr(S_WS)}, s{ST+4} offen sc1
        buffer_load_dwordx4 {vr(T+12)}, v{T+5}, {sr(S_WS)}, s{ST+4} offen offset:1024 sc1
        s_waitcnt vmcnt(0)
        v_cmp_ne_u32 vcc, s{S_TAG}, v{T+10}
        s_mov_b64 s[{ST+2}:{ST+3}], vcc
        v_cmp_ne_u32 vcc, s{S_TAG+1}, v{T+11}
        s_or_b64 s[{ST+2}:{ST+3}], s[{ST+2}:{ST+3}], vcc
        v_cmp_ne_u32 vcc, s{S_TAG}, v{T+14}
        s_or_b64 s[{ST+2}:{ST+3}], s[{ST+2}:{ST+3}], vcc
        v_cmp_ne_u32 vcc, s{S_TAG+1}, v{T+15}
        s_or_b64 s[{ST+2}:{ST+3}], s[{ST+2}:{ST+3}], vcc
        s_cmp_eq_u64 s[{ST+2}:{ST+3}], 0
        s_cbranch_scc1 {ok}
        """)
        self.spin_tail(ST, lp, code)
        I(f"""
        {ok}:
        v_add_f32 v{T}, v{T+8}, v{T+12}
        v_add_f32 v{T+1}, v{T+9}, v{T+13}
        """)
        self.reduce_g([T, T+1], T+4)
        I(f"""
        v_mul_f32 v{mu}, {1.0/640!r}, v{T}
        v_mul_f32 v{T+1}, {1.0/640!r}, v{T+1}
        v_fma_f32 v{T+1}, -v{mu}, v{mu}, v{T+1}
        v_max_f32 v{T+1}, 0, v{T+1}
        v_add_f32 v{T+1}, 0x3727c5ac, v{T+1}
        v_rsq_f32 v{rs}, v{T+1}
        """)

    def store_frag(self, src, ntile, base_off, S, tile0_sreg, tt_sreg, skip_last_sreg=None):
        I = self.I
        I(f"s_mul_i32 s{ST+4}, s{tt_sreg}, {S*1024}\ns_add_u32 s{ST+4}, s{ST+4}, {base_off}")
        for j in range(ntile):
            a = src + 4*j
            lab = None
            if skip_last_sreg is not None and j == ntile-1:
                lab = self.b.uid("L_sk")
                I(f"s_cmp_lg_u32 s{skip_last_sreg}, 0\ns_cbranch_scc1 {lab}")
            I(f"""
            v_cvt_pk_bf16_f32 v{a}, v{a}, v{a+1}
            v_cvt_pk_bf16_f32 v{a+1}, v{a+2}, v{a+3}
            s_add_u32 s{ST+5}, s{tile0_sreg}, {j}
            s_lshr_b32 s{ST+6}, s{ST+5}, 1
            s_lshl_b32 s{ST+6}, s{ST+6}, 10
            s_and_b32 s{ST+5}, s{ST+5}, 1
            s_lshl_b32 s{ST+5}, s{ST+5}, 3
            s_add_u32 s{ST+6}, s{ST+6}, s{ST+5}
            s_add_u32 s{ST+6}, s{ST+6}, s{ST+4}
            buffer_store_dwordx2 v[{a}:{a+1}], v{V_L16}, {sr(S_WS)}, s{ST+6} offen sc1
            """)
            if lab: I(f"{lab}:")

    def gelu(self, r, n):
        I = self.I
        T = self.GT + 4
        c1 = -2.0 * 0.7978845608028654 * 1.4426950408889634
        c2 = c1 * 0.044715
        I(f"s_mov_b32 s{ST+8}, {hex(f2u(c1))}\ns_mov_b32 s{ST+9}, {hex(f2u(c2))}\nv_mov_b32 v{T+8}, s{ST+8}")
        for i in range(0, n, 4):
            for q in range(4): I(f"v_mul_f32 v{T+q}, v{r+i+q}, v{r+i+q}")
            for q in range(4): I(f"v_fma_f32 v{T+q}, v{T+q}, s{ST+9}, v{T+8}")
            for q in range(4): I(f"v_mul_f32 v{T+q}, v{T+q}, v{r+i+q}")
            for q in range(4): I(f"v_exp_f32 v{T+q}, v{T+q}")
            for q in range(4): I(f"v_add_f32 v{T+q}, 1.0, v{T+q}")
            for q in range(4): I(f"v_rcp_f32 v{T+q}, v{T+q}")
            for q in range(4): I(f"v_mul_f32 v{r+i+q}, v{r+i+q}, v{T+q}")

    S_T5 = 29
    S_SRC = 30
    S_SRC2 = 31

    def small_gemm(self, wf, act, ph_wait, rbs, code, shift=False):
        I, C = self.I, self.C
        I(f"s_mul_i32 s{self.S_SRC}, s{S_M}, {5*20*1024}\ns_add_u32 s{self.S_SRC}, s{self.S_SRC}, {wf}")
        self.dma_w(self.S_SRC, 100)
        self.wait_flags(ph_wait, rbs, code)
        I("s_waitcnt vmcnt(0)\ns_barrier")
        if not shift:
            I(f"s_mul_i32 s{self.S_SRC}, s{S_TT}, {20*1024}\ns_add_u32 s{self.S_SRC}, s{self.S_SRC}, {act}")
            self.load_a(self.S_SRC, 20)
        else:
            T = self.GT + 8
            self.srd(S_A, P_WS, ACT_SZ, add=act)
            I(f"s_lshl_b32 s{ST+4}, s{S_TT}, 4")
            for q, dl in enumerate((-1, 1, -2, 2)):
                I(f"""
                v_add_u32 v{T+4}, s{ST+4}, v{V_T}
                v_add_u32 v{T+4}, {dl & 0xffffffff}, v{T+4}
                v_lshrrev_b32 v{T+5}, 4, v{T+4}
                v_mul_u32_u24 v{T+5}, 20480, v{T+5}
                v_and_b32 v{T+6}, 15, v{T+4}
                v_lshl_add_u32 v{T+5}, v{T+6}, 4, v{T+5}
                v_lshl_add_u32 v{T+5}, v{V_G}, 8, v{T+5}
                v_cmp_gt_u32 vcc, 0x800, v{T+4}
                v_mov_b32 v{T+6}, 0x80000000
                v_cndmask_b32 v{T+q}, v{T+6}, v{T+5}, vcc
                """)
            for s in range(20):
                q = s // 5
                if s % 4 == 0: I(f"s_mov_b32 s{ST+2}, {1024*s}")
                I(f"buffer_load_dwordx4 {ar(16+4*s)}, v{T+q}, {sr(S_A)}, s{ST+2} offen offset:{1024*(s%4)} sc1")
        self.gemm(20, 5, 20, [16])

    def phase_wo(self):
        I, C = self.I, self.C
        X2, H, ACC, T = self.X2, self.H, self.ACC, self.GT
        I(f"s_mul_i32 s{self.S_T5}, s{S_M}, 5")
        self.wait_relayout()
        self.small_gemm(WOF, OF, PH_O, [S_RB], 6)
        self.stamp("wo_mm")
        MS = self.WB
        self.mod_slice(2, MS)
        for j in range(5):
            for q in range(2):
                I(f"v_accvgpr_read_b32 v{T}, a{2*j+q}")
                I(f"v_lshlrev_b32 v{X2+4*j+2*q}, 16, v{T}\nv_and_b32 v{X2+4*j+2*q+1}, 0xffff0000, v{T}")
        for i in range(20): I(f"v_fmac_f32 v{X2+i}, v{MS+i}, v{ACC+i}")
        self.mod_slice(4, MS)
        self.one_plus_bf16(MS, 20)
        self.mod_slice(3, MS+20)
        mu, rs = T+30, T+31
        self.ln_stats(X2, 0, mu, rs, 7)
        I(f"v_mul_f32 v{mu}, v{mu}, v{rs}")
        for i in range(20):
            I(f"v_fma_f32 v{H+i}, v{X2+i}, v{rs}, -v{mu}")
            I(f"v_fma_f32 v{H+i}, v{H+i}, v{MS+i}, v{MS+20+i}")
        self.ln_stats(H, 1, mu, rs, 8)
        I(f"v_mul_f32 v{mu}, v{mu}, v{rs}")
        for i in range(20): I(f"v_fma_f32 v{ACC+i}, v{H+i}, v{rs}, -v{mu}")
        self.store_frag(ACC, 5, L2F, 20, self.S_T5, S_TT)
        self.publish(PH_L2)
        self.stamp("l2pub")

    def phase_w1(self):
        self.small_gemm(W1F, L2F, PH_L2, [S_RB], 9)
        self.stamp("w1_mm")
        self.gelu(self.ACC, 20)
        self.store_frag(self.ACC, 5, GF, 20, self.S_T5, S_TT)
        self.publish(PH_G)
        self.stamp("gpub")

    def phase_w2(self):
        I = self.I
        X2, H, ACC, T = self.X2, self.H, self.ACC, self.GT
        I(f"""
        s_sub_u32 s{ST+10}, s{S_RB}, 1
        s_max_i32 s{ST+10}, s{ST+10}, 0
        s_add_u32 s{ST+11}, s{S_RB}, 1
        s_min_u32 s{ST+11}, s{ST+11}, 31
        """)
        self.small_gemm(W2F, GF, PH_G, [S_RB, ST+10, ST+11], 10, shift=True)
        self.stamp("w2_mm")
        for i in range(20): I(f"v_add_f32 v{H+i}, v{H+i}, v{ACC+i}")
        mu, rs = T+30, T+31
        self.ln_stats(H, 2, mu, rs, 11)
        I(f"v_mul_f32 v{mu}, v{mu}, v{rs}")
        for i in range(20): I(f"v_fma_f32 v{ACC+i}, v{H+i}, v{rs}, -v{mu}")
        self.store_frag(ACC, 5, L3F, 20, self.S_T5, S_TT)
        self.publish(PH_L3)
        self.stamp("l3pub")

    def phase_w3(self):
        I, C = self.I, self.C
        ACC = self.ACC
        m16, t0, skip, rbA, rbB, ttb = ST+10, ST+11, ST+12, ST+13, ST+14, ST+15
        I(f"""
        s_and_b32 s{m16}, s{S_RB}, 1
        s_lshl_b32 s{m16}, s{m16}, 3
        s_add_u32 s{m16}, s{m16}, s{S_M}
        s_mul_i32 s{t0}, s{m16}, 7
        s_sub_u32 s{ST}, s{m16}, 12
        s_max_i32 s{ST}, s{ST}, 0
        s_sub_u32 s{t0}, s{t0}, s{ST}                         ; 7*m16 - max(0,m16-12)
        s_cmp_ge_u32 s{m16}, 12
        s_cselect_b32 s{skip}, 1, 0
        s_and_b32 s{rbA}, s{S_RB}, 30
        s_add_u32 s{rbB}, s{rbA}, 1
        s_lshl_b32 s{ttb}, s{rbA}, 2
        s_lshl_b32 s{ST}, s{S_WV}, 1
        s_add_u32 s{ttb}, s{ttb}, s{ST}
        s_mul_i32 s{self.S_SRC}, s{t0}, {20*1024}
        s_add_u32 s{self.S_SRC}, s{self.S_SRC}, {W3F}
        """)
        self.dma_w(self.S_SRC, 140)
        self.wait_flags(PH_L3, [rbA, rbB], 12)
        I("s_waitcnt vmcnt(0)\ns_barrier")
        I(f"s_mul_i32 s{self.S_SRC}, s{ttb}, {20*1024}\ns_add_u32 s{self.S_SRC}, s{self.S_SRC}, {L3F}")
        self.load_a(self.S_SRC, 40)
        I("s_waitcnt vmcnt(0)")
        self.gemm(20, 7, 20, [16, 96], wait_vm=False)
        self.stamp("w3_mm")
        self.gelu(ACC, 56)
        self.store_frag(ACC, 7, H4F, 54, t0, ttb, skip_last_sreg=skip)
        I(f"s_add_u32 s{ttb}, s{ttb}, 1")
        self.store_frag(ACC+28, 7, H4F, 54, t0, ttb, skip_last_sreg=skip)
        self.publish(PH_H4)
        self.stamp("h4pub")

    def phase_w4(self):
        I, C = self.I, self.C
        X2, H, ACC, T = self.X2, self.H, self.ACC, self.GT
        rbA, rbB = ST+13, ST+14
        I(f"s_and_b32 s{rbA}, s{S_RB}, 30\ns_add_u32 s{rbB}, s{rbA}, 1")
        def dma_half(h):
            I(f"s_mul_i32 s{self.S_SRC}, s{S_M}, {5*54*1024}\ns_add_u32 s{self.S_SRC}, s{self.S_SRC}, {W4F + h*27*1024}")
            I(f"s_mov_b32 s{ST+4}, s{S_WV}")
            for it in range(34):
                lab = None
                if it == 33:
                    lab = self.b.uid("L_d4")
                    I(f"s_cmp_ge_u32 s{ST+4}, 135\ns_cbranch_scc1 {lab}")
                I(f"""
                s_mul_i32 s{ST+5}, s{ST+4}, {-(-65536//27)}
                s_lshr_b32 s{ST+5}, s{ST+5}, 16                 ; j = f/27
                s_mul_i32 s{ST+5}, s{ST+5}, {27*1024}
                s_lshl_b32 s{ST+6}, s{ST+4}, 10
                s_mov_b32 m0, s{ST+6}
                s_add_u32 s{ST+5}, s{ST+5}, s{ST+6}             ; (j*54 + s)*1024 = f*1024 + j*27*1024
                s_add_u32 s{ST+5}, s{ST+5}, s{self.S_SRC}
                buffer_load_dwordx4 v{V_L16}, {sr(S_WS)}, s{ST+5} offen sc1 lds
                s_add_u32 s{ST+4}, s{ST+4}, 4
                """)
                if lab: I(f"{lab}:")
        dma_half(0)
        self.wait_flags(PH_H4, [rbA, rbB], 13)
        I("s_waitcnt vmcnt(0)\ns_barrier")
        I(f"s_mul_i32 s{self.S_SRC2}, s{S_TT}, {54*1024}\ns_add_u32 s{self.S_SRC2}, s{self.S_SRC2}, {H4F}")
        self.load_a(self.S_SRC2, 54)
        I("s_waitcnt vmcnt(0)")
        self.gemm(27, 5, 27, [16], wait_vm=False)
        I("s_barrier")
        dma_half(1)
        I("s_waitcnt vmcnt(0)\ns_barrier")
        self.gemm(27, 5, 27, [16], first=False, wait_vm=False, s_off=27)
        self.stamp("w4_mm")
        MS = self.WB
        self.mod_slice(5, MS)
        for i in range(20):
            I(f"v_add_f32 v{ACC+i}, v{ACC+i}, v{H+i}\nv_fma_f32 v{ACC+i}, v{ACC+i}, v{MS+i}, v{X2+i}")
        self.srd(S_A, P_OUT, 2048*1280)
        I(f"""
        s_lshl_b32 s{ST}, s{S_TT}, 4
        v_add_u32 v{T}, s{ST}, v{V_T}
        v_mul_u32_u24 v{T}, 1280, v{T}
        v_lshl_add_u32 v{T}, v{V_G}, 3, v{T}
        s_mul_i32 s{ST}, s{S_M}, 160
        """)
        for j in range(5):
            a = ACC + 4*j
            I(f"v_cvt_pk_bf16_f32 v{a}, v{a}, v{a+1}\nv_cvt_pk_bf16_f32 v{a+1}, v{a+2}, v{a+3}")
            I(f"buffer_store_dwordx2 v[{a}:{a+1}], v{T}, {sr(S_A)}, s{ST} offen offset:{32*j}")
        self.stamp("out")

    def build(self, force_slow=False):
        I = self.I
        phases = [self.phase_start, self.phase_kv, self.phase_q, self.phase_relayout, self.phase_kvwait,
                  lambda: self.phase_attn(force_slow), self.phase_wo, self.phase_w1, self.phase_w2, self.phase_w3, self.phase_w4]
        self.prologue()
        for i, p in enumerate(phases):
            if i >= self.stop_after: break
            p()
        I(f"""
        s_waitcnt vmcnt(0) lgkmcnt(0)
        s_endpgm
        L_fail:
        """)
        self.srd(S_C, P_DBG, 256)
        I(f"""
        v_mov_b32 v254, s{S_ERR}
        v_mov_b32 v255, s{S_W}
        v_mov_b32 v253, 16
        buffer_store_dwordx2 v[254:255], v253, {sr(S_C)}, 0 offen sc1
        s_waitcnt vmcnt(0)
        L_end:
        s_endpgm
        """)
        text, n = finalize(self.b)
        hdr = open("adaLN_cond__grouped_kv_mqa__mixer_s_mlp__prompt.s.ref").read().split("; Override launch")[0]
        lines = [l for l in hdr.strip().split("\n")]
        lines.append(f"; @launch grid=(256,1,1) block=(256,1,1) lds={LDS_SZ}")
        return kernel_file(lines, [(NAME, text, 512, 256, 102)]), n

if __name__ == "__main__":
    import argparse
    ap = argparse.ArgumentParser()
    ap.add_argument("-o", default="adaLN_cond__grouped_kv_mqa__mixer_s_mlp__prompt.s")
    ap.add_argument("--stop", type=int, default=99)
    ap.add_argument("--stamps", action="store_true")
    ap.add_argument("--slow", action="store_true")
    a = ap.parse_args()
    g = Gen(stop_after=a.stop, stamps=a.stamps)
    txt, n = g.build(force_slow=a.slow)
    open(a.o, "w").write(txt)
    print("wrote", a.o, len(txt), "bytes; auto nops:", n, "stamps:", getattr(g, "stamp_names", None))
```

```python
import re

TRANS = ("v_exp_f32", "v_log_f32", "v_rcp_f32", "v_rsq_f32", "v_sqrt_f32", "v_sin_f32", "v_cos_f32",
         "v_exp_f16", "v_rcp_f16", "v_rcp_iflag_f32")

def _split_ops(s):
    out, depth, cur = [], 0, ""
    for ch in s:
        if ch in "[(":
            depth += 1
        elif ch in "])":
            depth -= 1
        if ch == "," and depth == 0:
            out.append(cur.strip()); cur = ""
        else:
            cur += ch
    if cur.strip():
        out.append(cur.strip())
    return out

_R1 = re.compile(r"^([vas])(\d+)$")
_R2 = re.compile(r"^([vas])\[(\d+):(\d+)\]$")
def regs_of(tok):
    t = tok.strip()
    t = re.sub(r"^-", "", t)
    m = re.match(r"^(?:abs|neg)\((.*)\)$", t)
    if m: t = m.group(1)
    if t.startswith("|") and t.endswith("|"): t = t[1:-1]
    m = _R1.match(t)
    if m: return [m.group(1) + m.group(2)]
    m = _R2.match(t)
    if m: return [m.group(1) + str(i) for i in range(int(m.group(2)), int(m.group(3)) + 1)]
    if t in ("vcc", "vcc_lo", "vcc_hi"): return ["vcc"]
    if t in ("exec", "exec_lo", "exec_hi"): return ["exec"]
    if t == "m0": return ["m0"]
    return []

class Ins:
    __slots__ = ("text", "mn", "ops", "mods", "cls", "wr", "rd", "roles", "passes", "target", "ws", "note")
    def __init__(self, text):
        self.text = text
        body = text.split(";")[0].strip()
        parts = body.split(None, 1)
        self.mn = parts[0]
        rest = parts[1] if len(parts) > 1 else ""
        ops = _split_ops(rest)
        mods = ""
        if ops:
            last = ops[-1]
            m = re.match(r"^(\S+)\s+(.*)$", last)
            if m and not last.startswith("hwreg") and not self.mn.startswith("s_waitcnt"):
                ops[-1] = m.group(1); mods = m.group(2)
        self.ops, self.mods = ops, mods
        self.target = None
        self.ws = 1
        self.passes = 0
        self.note = None
        self.classify()

    def classify(self):
        mn, ops, mods = self.mn, self.ops, self.mods
        wr, rd = [], []
        roles = {}
        R = regs_of
        if mn.startswith("v_mfma"):
            self.cls = "mfma"
            self.passes = 4 if "16x16" in mn else 8
            if "32x32x4_2b" in mn: self.passes = 16
            wr = R(ops[0])
            roles = {"A": R(ops[1]), "B": R(ops[2]), "C": R(ops[3])}
            rd = roles["A"] + roles["B"] + roles["C"]
        elif mn.startswith("v_"):
            self.cls = "trans" if any(mn.startswith(t) for t in TRANS) else "valu"
            if mn.startswith("v_cmp"):
                wr = R(ops[0]); rd = sum((R(o) for o in ops[1:]), [])
            elif mn.startswith("v_readfirstlane") or mn.startswith("v_readlane"):
                wr = R(ops[0]); rd = sum((R(o) for o in ops[1:]), [])
            elif mn.startswith(("v_add_co", "v_sub_co", "v_addc_co", "v_subb_co", "v_subrev_co")):
                wr = R(ops[0]) + R(ops[1]); rd = sum((R(o) for o in ops[2:]), [])
            elif mn.startswith(("v_permlane16_swap", "v_permlane32_swap", "v_swap_b32")):
                wr = R(ops[0]) + R(ops[1]); rd = list(wr)
            elif mn.startswith(("v_fmac", "v_pk_fmac", "v_dot2c", "v_writelane", "v_fmaak", "v_fmamk")) :
                wr = R(ops[0]); rd = sum((R(o) for o in ops[1:]), [])
                if mn.startswith(("v_fmac", "v_pk_fmac", "v_dot2c", "v_writelane")): rd += wr
            elif mn == "v_nop":
                pass
            else:
                wr = R(ops[0]); rd = sum((R(o) for o in ops[1:]), [])
                if "UNUSED_PRESERVE" in mods or "op_sel" in mods and mn.endswith("f16"): rd += wr
            rd.append("exec")
        elif mn.startswith(("s_load", "s_buffer_load", "s_memtime", "s_memrealtime")):
            self.cls = "smem"
            wr = R(ops[0]); rd = sum((R(o) for o in ops[1:]), [])
        elif mn.startswith(("buffer_", "global_")):
            self.cls = "vmem"
            if mn in ("buffer_inv", "buffer_wbl2"):
                pass
            elif mn.startswith("buffer_load"):
                if re.search(r"\blds\b", mods):
                    rd = sum((R(o) for o in ops), []) + ["m0"]
                else:
                    wr = R(ops[0]); rd = sum((R(o) for o in ops[1:]), [])
            elif mn.startswith("buffer_store"):
                rd = sum((R(o) for o in ops), [])
                roles = {"data": R(ops[0])}
            elif mn.startswith("buffer_atomic"):
                rd = sum((R(o) for o in ops), [])
                if "sc0" in mods: wr = R(ops[0])
            elif mn.startswith("global_load"):
                wr = R(ops[0]); rd = sum((R(o) for o in ops[1:]), [])
            elif mn.startswith("global_store"):
                rd = sum((R(o) for o in ops), [])
                roles = {"data": R(ops[1])}
            else:
                raise ValueError("unknown vmem " + self.text)
            rd.append("exec")
        elif mn.startswith("ds_"):
            self.cls = "ds"
            if mn.startswith(("ds_read", "ds_bpermute", "ds_permute", "ds_swizzle")):
                wr = R(ops[0]); rd = sum((R(o) for o in ops[1:]), [])
            elif mn.startswith("ds_write"):
                rd = sum((R(o) for o in ops), [])
            else:
                raise ValueError("unknown ds " + self.text)
            rd.append("exec")
        elif mn.startswith("s_"):
            self.cls = "salu"
            if mn == "s_nop":
                self.ws = int(ops[0], 0) + 1
            elif mn in ("s_waitcnt", "s_barrier", "s_endpgm", "s_setprio", "s_sleep"):
                pass
            elif mn.startswith(("s_branch", "s_cbranch")):
                self.target = ops[0]
                if "vcc" in mn: rd = ["vcc"]
                if "exec" in mn: rd = ["exec"]
            elif mn.startswith("s_cmp") or mn.startswith("s_bitcmp"):
                rd = sum((R(o) for o in ops), [])
            elif mn.startswith("s_setpc"):
                rd = R(ops[0])
            elif mn.startswith("s_setreg"):
                rd = R(ops[1]) if len(ops) > 1 else []
            elif "saveexec" in mn:
                wr = R(ops[0]) + ["exec"]; rd = R(ops[1]) + ["exec"]
            else:
                wr = R(ops[0]); rd = sum((R(o) for o in ops[1:]), [])
                if mn.startswith(("s_addk", "s_mulk", "s_cmov")): rd += wr
        else:
            raise ValueError("unknown instruction: " + self.text)
        self.wr, self.rd, self.roles = wr, rd, roles

class Label:
    def __init__(self, name): self.name = name; self.text = name + ":"

class Raw:
    def __init__(self, text): self.text = text

class Builder:
    def __init__(self):
        self.items = []
        self._uid = 0
    def I(self, text):
        for line in text.split("\n"):
            line = line.strip()
            if not line: continue
            if line.startswith(";"):
                self.items.append(Raw("    " + line)); continue
            if line.endswith(":"):
                self.items.append(Label(line[:-1])); continue
            self.items.append(Ins(line))
    def C(self, text): self.items.append(Raw("    ; " + text))
    def L(self, name): self.items.append(Label(name))
    def uid(self, p="L"):
        self._uid += 1
        return f"{p}_{self._uid}"

def build_cfg(items):
    leaders = {0}
    labels = {}
    for i, it in enumerate(items):
        if isinstance(it, Label):
            leaders.add(i); labels[it.name] = i
        elif isinstance(it, Ins) and (it.target is not None or it.mn in ("s_endpgm", "s_setpc_b64")):
            leaders.add(i + 1)
    ls = sorted(l for l in leaders if l < len(items))
    blocks = []
    for a, b in zip(ls, ls[1:] + [len(items)]):
        blocks.append((a, b))
    start2blk = {a: k for k, (a, b) in enumerate(blocks)}
    succ = []
    for k, (a, b) in enumerate(blocks):
        last = None
        for i in range(b - 1, a - 1, -1):
            if isinstance(items[i], Ins):
                last = items[i]; break
        s = []
        if last is not None and last.mn == "s_endpgm": pass
        elif last is not None and last.mn == "s_branch":
            s.append(start2blk[labels[last.target]])
        elif last is not None and last.target is not None:
            s.append(start2blk[labels[last.target]])
            if k + 1 < len(blocks): s.append(k + 1)
        elif last is not None and last.mn == "s_setpc_b64":
            m = re.search(r"->\s*(\S+)", last.text)
            if m: s.append(start2blk[labels[m.group(1)]])
        else:
            if k + 1 < len(blocks): s.append(k + 1)
        succ.append(s)
    return blocks, succ

def _isv(r): return r[0] in "va" and r[1:].isdigit()
def _iss(r): return (r[0] == "s" and r[1:].isdigit()) or r == "vcc"

def required(prod_kind, prod_info, ins, reg):
    c = ins.cls
    valu = c in ("valu", "trans")
    rd = reg in ins.rd
    wr = reg in ins.wr
    if prod_kind == "valu_v":
        if c == "mfma" and rd: return 2
        if valu and rd and ins.mn.startswith("v_permlane"): return 2
        if valu and rd and (ins.mn.startswith("v_readlane") or ins.mn.startswith("v_readfirstlane")): return 1
        if valu and rd and ("dpp" in ins.mn or re.search(r"\b(row_|quad_perm|wave_|bcast)", ins.mods)): return 2
        return 0
    if prod_kind == "trans_v":
        if c == "valu" and rd: return 1
        return 0
    if prod_kind == "sdwa_v":
        if valu and (rd or wr): return 1
        return 0
    if prod_kind == "valu_s":
        if c == "vmem" and rd: return 5
        if valu and rd:
            if ins.mn.startswith(("v_readlane", "v_writelane")): return 4
            return 2
        return 0
    if prod_kind == "salu_m0":
        if c == "vmem" and rd: return 1
        return 0
    if prod_kind == "mfma_d":
        p = prod_info[0]
        if c == "mfma":
            if reg in ins.roles["A"] or reg in ins.roles["B"]: return p + 4
            if reg in ins.roles["C"]:
                if ins.roles["C"] == prod_info[1] and ins.passes == p: return 0
                return p + 2
            if wr:
                return p + 2 if ins.wr != prod_info[1] else 0
            return 0
        if valu and (rd or wr): return p + 4
        if c in ("vmem", "ds") and (rd or wr): return p + 4
        return 0
    if prod_kind == "mfma_c":
        if valu and wr: return prod_info[0] - 1
        return 0
    if prod_kind == "store_data":
        if valu and wr: return 2
        if wr: return 1
        return 0
    if prod_kind == "valu_exec":
        if c == "mfma": return 4
        return 0
    return 0

def events_of(ins):
    ev = []
    c = ins.cls
    if c in ("valu", "trans"):
        for r in ins.wr:
            if _isv(r):
                ev.append((r, "valu_v", None))
                if c == "trans": ev.append((r, "trans_v", None))
                if "sdwa" in ins.mn or "op_sel" in ins.mods and not ins.mn.startswith("v_pk"): ev.append((r, "sdwa_v", None))
            elif _iss(r): ev.append((r, "valu_s", None))
            elif r == "exec": ev.append((r, "valu_exec", None))
    elif c == "mfma":
        for r in ins.wr: ev.append((r, "mfma_d", (ins.passes, tuple(ins.wr))))
        for r in ins.roles["C"]:
            if r not in ins.wr: ev.append((r, "mfma_c", (ins.passes,)))
    elif c == "salu":
        if "m0" in ins.wr: ev.append(("m0", "salu_m0", None))
    elif c == "vmem":
        if ins.mn.endswith(("x3", "x4")) and "store" in ins.mn:
            for r in ins.roles.get("data", []): ev.append((r, "store_data", None))
    return ev

MAXAGE = 24
def hazard_pass(items, verbose=False):
    total = 0
    while True:
        blocks, succ = build_cfg(items)
        nb = len(blocks)
        instate = [None] * nb
        instate[0] = {}
        work = [0]
        fix = None
        def run_block(k, st, find):
            st = dict(st)
            a, b = blocks[k]
            for i in range(a, b):
                it = items[i]
                if not isinstance(it, Ins): continue
                if find:
                    need = 0
                    why = None
                    for r in set(it.rd) | set(it.wr):
                        for (kind, info), age in st.get(r, {}).items():
                            q = required(kind, (info[0], list(info[1])) if kind == "mfma_d" else info, it, r) - age
                            if q > need: need, why = q, (r, kind)
                    if it.cls == "mfma":
                        for (kind, info), age in st.get("exec", {}).items():
                            q = required(kind, info, it, "exec") - age
                            if q > need: need, why = q, ("exec", kind)
                    if need > 0: return ("fix", i, need, why)
                ns = {}
                for r, d in st.items():
                    nd = {k2: a2 + it.ws for k2, a2 in d.items() if a2 + it.ws < MAXAGE}
                    if nd: ns[r] = nd
                st = ns
                for (r, kind, info) in events_of(it):
                    d = dict(st.get(r, {}))
                    if kind in ("valu_v", "mfma_d"):
                        d = {k2: v for k2, v in d.items() if k2[0] not in ("valu_v", "trans_v", "sdwa_v")}
                    d[(kind, info)] = 0
                    st[r] = d
            return ("ok", st)
        while work:
            k = work.pop()
            _, st = run_block(k, instate[k], False)
            for s in succ[k]:
                if instate[s] is None:
                    instate[s] = st; work.append(s)
                else:
                    merged = {r: dict(d) for r, d in instate[s].items()}
                    ch = False
                    for r, d in st.items():
                        md = merged.setdefault(r, {})
                        for k2, a2 in d.items():
                            if k2 not in md or a2 < md[k2]:
                                md[k2] = a2; ch = True
                    if ch:
                        instate[s] = merged; work.append(s)
        fixes = []
        for k in range(nb):
            if instate[k] is None: continue
            res = run_block(k, instate[k], True)
            if res[0] == "fix":
                fixes.append(res[1:])
        if not fixes: return total
        for (i, need, why) in sorted(fixes, reverse=True):
            if verbose: print(f"hazard: insert {need} ws before [{items[i].text.strip()}] due to {why}")
            n = need
            ins = []
            while n > 0:
                q = min(n, 16)
                ins.append(Ins(f"s_nop {q-1}")); n -= q
            items[i:i] = ins
            total += len(ins)

def waitcnt_check(items):
    blocks, succ = build_cfg(items)
    nb = len(blocks)
    errs = set()
    def step(st, it, report):
        vm, lg, sm = st
        if it.mn == "s_waitcnt":
            t = " ".join(it.ops) + " " + it.mods
            m = re.search(r"vmcnt\((\d+)\)", t)
            if m:
                n = int(m.group(1)); vm = {r: k for r, k in vm.items() if k < n}
            m = re.search(r"lgkmcnt\((\d+)\)", t)
            if m:
                n = int(m.group(1))
                if n == 0: lg = {}; sm = set()
                elif not sm: lg = {r: k for r, k in lg.items() if k < n}
            return (vm, lg, sm)
        if report:
            for r in set(it.rd) | set(it.wr):
                if r in vm and not (it.cls == "vmem" and r in it.wr and r not in it.rd):
                    errs.add(f"vmcnt: {r} used by [{it.text.strip()}] with outstanding load")
                if r in lg and not (it.cls == "ds" and r in it.wr and r not in it.rd):
                    errs.add(f"lgkmcnt: {r} used by [{it.text.strip()}] with outstanding ds op")
                if r in sm:
                    errs.add(f"lgkmcnt(smem): {r} used by [{it.text.strip()}] with outstanding scalar load")
        if it.cls == "vmem":
            vm = {r: k + 1 for r, k in vm.items()}
            for r in it.wr: vm[r] = 0
        elif it.cls == "ds":
            lg = {r: k + 1 for r, k in lg.items()}
            for r in it.wr: lg[r] = 0
        elif it.cls == "smem":
            sm = set(sm) | set(it.wr)
        return (vm, lg, sm)
    instate = [None] * nb
    instate[0] = ({}, {}, set())
    work = [0]
    def run(k, st, report):
        a, b = blocks[k]
        for i in range(a, b):
            if isinstance(items[i], Ins): st = step(st, items[i], report)
        return st
    while work:
        k = work.pop()
        st = run(k, instate[k], False)
        for s in succ[k]:
            if instate[s] is None:
                instate[s] = st; work.append(s)
            else:
                ovm, olg, osm = instate[s]
                nvm, nlg, nsm = dict(ovm), dict(olg), set(osm) | st[2]
                ch = nsm != osm
                for src, dst in ((st[0], nvm), (st[1], nlg)):
                    for r, kk in src.items():
                        if r not in dst or kk < dst[r]:
                            dst[r] = kk; ch = True
                if ch:
                    instate[s] = (nvm, nlg, nsm); work.append(s)
    for k in range(nb):
        if instate[k] is not None: run(k, instate[k], True)
    return sorted(errs)

def render(items):
    out = []
    for it in items:
        if isinstance(it, Ins): out.append("    " + it.text.strip())
        else: out.append(it.text)
    return "\n".join(out) + "\n"

import subprocess, tempfile, os
_PROMO = ("v_exp_f32", "v_rcp_f32", "v_rsq_f32", "v_mov_b32", "v_add_f32", "v_sub_f32", "v_mul_f32", "v_max_f32", "v_min_f32", "v_fmac_f32",
          "v_lshlrev_b32", "v_lshrrev_b32", "v_and_b32", "v_or_b32", "v_xor_b32", "v_add_u32", "v_sub_u32", "v_mul_u32_u24", "v_cndmask_b32")
def instr_sizes(items):
    txt = '.amdgcn_target "amdgcn-amd-amdhsa--gfx950"\n.text\nk_:\n' + render(items)
    with tempfile.TemporaryDirectory() as d:
        open(d + "/a.s", "w").write(txt)
        r = subprocess.run(["clang", "-x", "assembler", "-target", "amdgcn-amd-amdhsa", "-mcpu=gfx950", "-c", d + "/a.s", "-o", d + "/a.o"], capture_output=True, text=True)
        assert r.returncode == 0, r.stderr[:2000]
        out = subprocess.run(["llvm-objdump", "-d", "--mcpu=gfx950", d + "/a.o"], capture_output=True, text=True).stdout
    sizes = []
    for l in out.split("\n"):
        m = re.search(r"// [0-9A-F]+: ([0-9A-F]{8})((?: [0-9A-F]{8})*)", l)
        if m: sizes.append(4 + 4*len(m.group(2).split()))
    n = sum(isinstance(it, Ins) for it in items)
    assert len(sizes) == n, (len(sizes), n)
    return sizes

def promotable(ins):
    if ins.mn not in _PROMO or ins.mods: return False
    return True

def align_pass(items, base=0, min_run=2):
    sizes = instr_sizes(items)
    out = []
    addr = base
    k = 0
    pending4 = []
    idx = [i for i, it in enumerate(items) if isinstance(it, Ins)]
    pos = {i: j for j, i in enumerate(idx)}
    nprom = nnop = 0
    for i, it in enumerate(items):
        if not isinstance(it, Ins):
            out.append(it); continue
        sz = sizes[pos[i]]
        if sz == 8 and addr % 8 == 4:
            fixed = False
            for j in reversed(pending4):
                p = out[j]
                if promotable(p):
                    out[j] = Ins(p.text.strip().replace(p.mn, p.mn + "_e64", 1)); out[j].mn = p.mn
                    addr += 4; nprom += 1; fixed = True
                    break
            if not fixed:
                run = 0
                for jj in range(pos[i], len(idx)):
                    if sizes[jj] == 8: run += 1
                    elif sizes[jj] == 4: break
                if run >= min_run:
                    out.append(Ins("s_nop 0")); addr += 4; nnop += 1
        out.append(it)
        if sz == 4: pending4.append(len(out) - 1)
        else: pending4 = []
        addr += sz
    items[:] = out
    return nprom, nnop
```

```python
from asmlib import *

def kernel_file(launch_lines, kernels):
    s = "".join(l + "\n" for l in launch_lines)
    s += '.amdgcn_target "amdgcn-amd-amdhsa--gfx950"\n.text\n'
    for name, text, nv, acc, ns in kernels:
        s += f".globl {name}\n.p2align 8\n.type {name},@function\n{name}:\n{text}"
    s += '.section .rodata,"a"\n'
    for name, text, nv, acc, ns in kernels:
        s += f""".p2align 6
.amdhsa_kernel {name}
  .amdhsa_next_free_vgpr {nv}
  .amdhsa_next_free_sgpr {ns}
  .amdhsa_accum_offset {acc}
  .amdhsa_group_segment_fixed_size 0
  .amdhsa_kernarg_size 120
  .amdhsa_user_sgpr_count 2
  .amdhsa_user_sgpr_kernarg_segment_ptr 1
  .amdhsa_system_sgpr_workgroup_id_x 1
.end_amdhsa_kernel
"""
    return s

def finalize(b, verbose=False, check=True, align=False):
    n = hazard_pass(b.items, verbose=verbose)
    errs = waitcnt_check(b.items) if check else []
    if errs:
        for e in errs[:40]: print("WAITCNT ERROR:", e)
        raise SystemExit("waitcnt check failed (%d)" % len(errs))
    if align:
        np_, nn = align_pass(b.items)
        if verbose or True: print("align pass: promoted", np_, "nops", nn)
    return render(b.items), n
```

```python
import sys
from common import *

import struct
def f2u(x): return struct.unpack("<I", struct.pack("<f", x))[0]

NAME = "adaLN_cond__grouped_kv_mqa__mixer_s_mlp__prompt_kernel"
MODG   = 0x000000
KVFLAG = 0x004000
RLFLAG = 0x008000
CFLAG  = 0x010000
STAT   = 0x020000
STAT_SZ = 32*8*64*16
KV     = 0x100000
KVT    = 3328
OF     = 0x200000
ACT_SZ = 128*20*1024
L2F    = OF + ACT_SZ
import os
ALIAS = os.environ.get('NOALIAS') is None
GF     = OF if ALIAS else L2F + ACT_SZ
L3F    = L2F if ALIAS else L2F + 2*ACT_SZ
H4F    = L2F + 3*ACT_SZ
H4_SZ  = 128*54*1024
WSA    = H4F + H4_SZ
WSA_M  = 304*1024
W3S    = WSA + 8*WSA_M
W3S_M  = 144*1024
W4S    = W3S + 16*W3S_M
W4S_M  = 272*1024
HG     = W4S + 8*W4S_M
XIDG   = HG + 16*20*1024
WS_END = XIDG + 4096 + 64*1024
DBGA   = WS_END
WS_REC = 0x4000000
PH_O, PH_L2, PH_G, PH_L3, PH_H4 = 0, 1, 2, 3, 4

L_WQ   = 0
L_WK   = 102400
L_WM   = 102400
L_SC   = 143360
L_MOD  = 144640
L_QS   = 149760
L_MISC = 161024
LDS_SZ = 163840
L_RL   = 0
L_W    = 0

S_WS = 4
S_A  = 8
S_B  = 12
S_C  = 16
S_TAG = 20
S_WV, S_M, S_RB, S_W = 22, 23, 24, 25
S_T0 = 26
S_TT = 27
S_ERR = 28
S_FAST = 3
P_X, P_WQ, P_WK, P_WV, P_WO, P_BX, P_W1, P_W2, P_W3, P_W4, P_C, P_WM, P_OUT, P_DBG, P_WS = [32 + 2*i for i in range(15)]
ST = 62

def sr(b, n=4): return f"s[{b}:{b+n-1}]"
def vr(b, n=4): return f"v[{b}:{b+n-1}]" if n > 1 else f"v{b}"
def ar(b, n=4): return f"a[{b}:{b+n-1}]" if n > 1 else f"a{b}"

V_L, V_T, V_G, V_L16 = 0, 1, 2, 3

TIMEOUT = 400000

class Gen:
    def __init__(self, stop_after=99, stamps=False):
        self.b = Builder()
        self.stop_after = stop_after
        self.stamps = stamps
        self.nstamp = 0
        self.detail = -1
        self.nojobs = 0
        self.align = 1
        self.x_nobar = 0
        self.x_nokv = 0
        self.x_nords = 0
        self.noslot = 0
        self.in_slow = False
        self.cap_small = 99
        self.burst = 6
        self.rate_small = 1.3
        self.rate_w3 = 3.5
        self.rate_w4 = 1.6
        self.epi_drip = 8
        self.post_drip = 4
        self.resident = 0
        self.chunk4 = 4
        self.pub_after = 0
        self.visible = -1
        self.epi_drip2 = 6
        self.gd1 = 3
        self.gd3 = 3
        self.burst4 = 10
        self.use_pf = 0
        self.tlb_warm = 0
        self.touch_act = 0
        self.h4t_where = 0
        self.use_mall = 0
        self.pf3 = 0
        self.pub_drip = 0
    def I(self, t): self.b.I(t)
    def C(self, t): self.b.C(t)

    def srd(self, s, ptr, nbytes, add=0):
        if add:
            self.I(f"s_add_u32 s{s}, s{ptr}, {add}\ns_addc_u32 s{s+1}, s{ptr+1}, 0")
        else:
            self.I(f"s_mov_b32 s{s}, s{ptr}\ns_mov_b32 s{s+1}, s{ptr+1}")
        self.I(f"s_mov_b32 s{s+2}, {nbytes}\ns_mov_b32 s{s+3}, 0x20000")

    def stamp(self, name):
        if not self.stamps: return
        k = self.nstamp; self.nstamp += 1
        lab = self.b.uid("L_st")
        self.C(f"stamp {k}: {name}")
        self.I(f"""
        s_cmp_lg_u32 s{S_WV}, 0
        s_cbranch_scc1 {lab}
        s_memrealtime s[100:101]
        s_memtime s[96:97]
        s_lshl_b32 s99, s{S_W}, 11
        s_add_u32 s99, s99, {DBGA + 16*k}
        s_waitcnt lgkmcnt(0)
        v_mov_b32 v252, s100
        v_mov_b32 v253, s101
        v_mov_b32 v254, s96
        v_mov_b32 v255, s97
        v_mov_b32 v251, s99
        buffer_store_dwordx4 v[252:255], v251, {sr(S_WS)}, 0 offen
        s_nop 1
        {lab}:
        """)
        self.stamp_names = getattr(self, "stamp_names", []) + [name]

    def spin_tail(self, cnt, loop, code):
        self.I(f"""
        s_sub_u32 s{cnt}, s{cnt}, 1
        s_cmp_lg_u32 s{cnt}, 0
        s_cbranch_scc1 {loop}
        s_mov_b32 s{S_ERR}, {code}
        s_branch L_fail
        """)

    def get_tag(self):
        lp = self.b.uid("L_tag"); ok = self.b.uid("L_tagok")
        self.srd(S_C, P_DBG, 256)
        self.I(f"""
        s_mov_b32 s{ST}, {TIMEOUT}
        v_mov_b32 v252, 0
        {lp}:
        buffer_load_dwordx2 v[254:255], v252, {sr(S_C)}, 0 offen sc1
        s_waitcnt vmcnt(0)
        v_readfirstlane_b32 s{S_TAG}, v254
        v_readfirstlane_b32 s{S_TAG+1}, v255
        s_cmp_lg_u32 s{S_TAG}, 0
        s_cbranch_scc1 {ok}
        """)
        self.spin_tail(ST, lp, 1)
        self.I(f"{ok}:")

    def reduce_g(self, regs, tmp, op="v_add_f32"):
        for sw in ("v_permlane16_swap_b32", "v_permlane32_swap_b32"):
            for i, r in enumerate(regs):
                self.I(f"v_mov_b32 v{tmp+i}, v{r}")
            for i, r in enumerate(regs):
                self.I(f"{sw} v{r}, v{tmp+i}")
            for i, r in enumerate(regs):
                self.I(f"{op} v{r}, v{r}, v{tmp+i}")

    def prologue(self):
        I = self.I
        I(f"""
        s_cmp_ge_u32 s2, 256
        s_cbranch_scc1 L_end
        s_load_dwordx16 s[32:47], s[0:1], 0
        s_load_dwordx8 s[48:55], s[0:1], 64
        s_load_dwordx4 s[56:59], s[0:1], 96
        s_load_dwordx2 s[60:61], s[0:1], 112
        v_lshrrev_b32 v1, 6, v0
        v_and_b32 v{V_L}, 63, v0
        v_readfirstlane_b32 s{S_WV}, v1
        v_and_b32 v{V_T}, 15, v{V_L}
        v_lshrrev_b32 v{V_G}, 4, v{V_L}
        v_lshlrev_b32 v{V_L16}, 4, v{V_L}
        s_mov_b32 s{S_W}, s2
        s_and_b32 s{ST}, s2, 7
        s_lshr_b32 s{ST+1}, s2, 3
        s_and_b32 s{S_M}, s{ST+1}, 7
        s_lshr_b32 s{ST+1}, s{ST+1}, 3
        s_lshl_b32 s{ST}, s{ST}, 2
        s_add_u32 s{S_RB}, s{ST}, s{ST+1}
        s_lshl_b32 s{S_T0}, s{S_RB}, 6
        s_lshl_b32 s{S_TT}, s{S_RB}, 2
        s_add_u32 s{S_TT}, s{S_TT}, s{S_WV}
        s_mov_b32 s{S_ERR}, 0
        """)
        self.C("request the kernel's own code into this XCD's L2: workgroup j of the 32 in a row group takes lines 16j..16j+15 (wave 0)")
        labc = self.b.uid("L_cp")
        I(f"""
        s_cmp_lg_u32 s{S_WV}, 0
        s_cbranch_scc1 {labc}
        s_getpc_b64 s[{ST+2}:{ST+3}]
        L_pcref:
        s_lshr_b32 s{ST+4}, s2, 3
        s_lshl_b32 s{ST+4}, s{ST+4}, 11                       ; 16 lines * 128 B
        v_lshlrev_b32 v4, 7, v{V_L}
        v_add_u32 v4, s{ST+4}, v4
        v_cmp_gt_u32 vcc, L_code_end-L_pcref-4, v4
        s_and_b64 vcc, vcc, 0xffff
        s_and_saveexec_b64 s[{ST+4}:{ST+5}], vcc
        s_cbranch_execz {labc}_x
        global_load_dword a252, v4, s[{ST+2}:{ST+3}]
        {labc}_x:
        s_mov_b64 exec, s[{ST+4}:{ST+5}]
        {labc}:
        s_waitcnt lgkmcnt(0)
        """)
        self.srd(S_WS, P_WS, WS_REC)
        lab = self.b.uid("L_non")
        self.srd(S_C, P_DBG, 256)
        I(f"""
        s_lshl_b32 s{ST}, s2, 2
        s_add_u32 s{ST}, s{ST}, s{S_WV}
        s_cmp_lg_u32 s{ST}, 0
        s_cbranch_scc1 {lab}
        s_memrealtime s[{S_TAG}:{S_TAG+1}]
        s_waitcnt lgkmcnt(0)
        s_or_b32 s{S_TAG}, s{S_TAG}, 1
        v_mov_b32 v254, s{S_TAG}
        v_mov_b32 v255, s{S_TAG+1}
        v_mov_b32 v252, 0
        s_mov_b64 exec, 1
        buffer_store_dwordx2 v[254:255], v252, {sr(S_C)}, 0 offen sc1
        s_mov_b64 exec, -1
        {lab}:
        """)
        self.stamp("start")

    XF = 4
    XH = 84
    TMP = 244

    def tag_issue(self):
        self.srd(S_C, P_DBG, 256)
        self.I(f"v_mov_b32 v241, 0\nbuffer_load_dwordx2 v[242:243], v241, {sr(S_C)}, 0 offen sc1")

    def tag_eval(self):
        I = self.I
        lp = self.b.uid("L_tag"); ok = self.b.uid("L_tagok")
        I(f"""
        s_mov_b32 s{ST}, {TIMEOUT}
        {lp}:
        v_readfirstlane_b32 s{S_TAG}, v242
        v_readfirstlane_b32 s{S_TAG+1}, v243
        s_cmp_lg_u32 s{S_TAG}, 0
        s_cbranch_scc1 {ok}
        """)
        self.tag_issue()
        I("s_waitcnt vmcnt(0)")
        self.spin_tail(ST, lp, 1)
        I(f"{ok}:")

    S_PROD2 = 80
    S_PROD, S_P = 80, 81

    LWM, LSC, LMI = L_WM, L_SC, L_MISC + 64
    def mod_dma(self):
        I = self.I
        TMP = self.MT
        self.srd(S_B, P_C, 1280)
        I(f"""
        s_mul_i32 s{ST+4}, s{S_WV}, 320
        v_lshlrev_b32 v{TMP+2}, 3, v{V_L}
        buffer_load_dwordx2 v[{TMP+4}:{TMP+5}], v{TMP+2}, {sr(S_B)}, s{ST+4} offen
        """)
        self.srd(S_A, P_WM, 640*7680)
        I(f"""
        v_lshrrev_b32 v{TMP}, 2, v{V_L}
        v_mul_u32_u24 v{TMP}, 7680, v{TMP}
        v_and_b32 v{TMP+1}, 3, v{V_L}
        v_lshl_add_u32 v{TMP}, v{TMP+1}, 4, v{TMP}
        s_mul_i32 s{ST+1}, s{S_WV}, {160*7680}
        s_lshl_b32 s{ST+2}, s{self.S_P}, 6                   ; p*64 bytes
        s_add_u32 s{ST+1}, s{ST+1}, s{ST+2}
        s_mul_i32 s{ST+3}, s{S_WV}, {160*64}
        s_add_u32 s{ST+3}, s{ST+3}, {self.LWM}
        """)
        for i in range(10):
            I(f"""
            s_mov_b32 m0, s{ST+3}
            s_add_u32 s{ST+3}, s{ST+3}, 1024
            buffer_load_dwordx4 v{TMP}, {sr(S_A)}, s{ST+1} offen lds
            s_add_u32 s{ST+1}, s{ST+1}, {16*7680}
            """)

    MT2 = 244
    MT = 228
    def mod_gemv(self, W, wait_c, wait_w, wait_tag, BBr=None):
        I = self.I
        TMP = self.MT
        T = TMP + 4
        I(f"""
        s_waitcnt vmcnt({wait_c})
        v_lshlrev_b32 v{TMP+6}, 16, v{T}
        v_and_b32 v{TMP+7}, 0xffff0000, v{T}
        v_lshlrev_b32 v{TMP+8}, 16, v{T+1}
        v_and_b32 v{TMP+9}, 0xffff0000, v{T+1}
        """)
        for i in range(4):
            r = TMP + 6 + i
            I(f"""
            v_mul_f32 v{TMP+3}, 0xbfb8aa3b, v{r}
            v_exp_f32 v{TMP+3}, v{TMP+3}
            v_add_f32 v{TMP+3}, 1.0, v{TMP+3}
            v_rcp_f32 v{TMP+3}, v{TMP+3}
            v_mul_f32 v{r}, v{r}, v{TMP+3}
            """)
        va, vb, WA, BB, ACC = W, W+1, W+4, W+44, W+64
        if BBr is not None: BB, ACC = BBr, W+44
        I(f"""
        v_cvt_pk_bf16_f32 v{T}, v{TMP+6}, v{TMP+7}
        v_cvt_pk_bf16_f32 v{T+1}, v{TMP+8}, v{TMP+9}
        s_mul_i32 s{ST+4}, s{S_WV}, 320
        s_add_u32 s{ST+4}, s{ST+4}, {self.LSC}
        v_lshlrev_b32 v{TMP+2}, 3, v{V_L}
        v_add_u32 v{TMP+2}, s{ST+4}, v{TMP+2}
        s_mov_b32 exec_hi, 0xff
        ds_write_b64 v{TMP+2}, v[{T}:{T+1}]
        s_mov_b32 exec_hi, -1
        v_lshrrev_b32 v{va}, 2, v{V_T}
        v_lshl_add_u32 v{va}, v{V_G}, 2, v{va}
        v_lshlrev_b32 v{va}, 6, v{va}                       ; 64*(4g+(i>>2))
        v_and_b32 v{vb}, 3, v{V_T}
        v_lshl_add_u32 v{va}, v{vb}, 3, v{va}
        s_mul_i32 s{ST}, s{S_WV}, {160*64}
        s_add_u32 s{ST}, s{ST}, {self.LWM}
        v_add_u32 v{va}, s{ST}, v{va}
        v_lshlrev_b32 v{vb}, 3, v{V_G}
        v_add_u32 v{vb}, s{ST+4}, v{vb}
        s_waitcnt vmcnt({wait_w}) lgkmcnt(0)
        """)
        for s_ in range(5):
            I(f"ds_read_b64 v[{BB+4*s_}:{BB+4*s_+1}], v{vb} offset:{64*s_}\nds_read_b64 v[{BB+4*s_+2}:{BB+4*s_+3}], v{vb} offset:{64*s_+32}")
        for s_ in range(5):
            for tl in range(2):
                W_ = WA + 8*s_ + 4*tl
                I(f"ds_read_b64_tr_b16 v[{W_}:{W_+1}], v{va} offset:{2048*s_+32*tl}\nds_read_b64_tr_b16 v[{W_+2}:{W_+3}], v{va} offset:{2048*s_+32*tl+1024}")
        I("s_waitcnt lgkmcnt(0)")
        for s_ in range(5):
            for tl in range(2):
                I(f"v_mfma_f32_16x16x32_bf16 {vr(ACC+4*tl)}, {vr(WA+8*s_+4*tl)}, {vr(BB+4*s_)}, {'0' if s_ == 0 else vr(ACC+4*tl)}")
        I(f"""
        s_lshl_b32 s{ST}, s{S_WV}, 7
        s_add_u32 s{ST}, s{ST}, {self.LMI}
        v_lshlrev_b32 v{va}, 4, v{V_G}
        v_add_u32 v{va}, s{ST}, v{va}
        v_cmp_eq_u32 vcc, 0, v{V_T}
        s_and_saveexec_b64 s[{ST+4}:{ST+5}], vcc
        ds_write_b128 v{va}, {vr(ACC)}
        ds_write_b128 v{va}, {vr(ACC+4)} offset:64
        s_mov_b64 exec, s[{ST+4}:{ST+5}]
        s_waitcnt lgkmcnt(0)
        s_barrier
        """)
        lab_gd = self.b.uid("L_gd")
        I(f"s_cmp_lg_u32 s{S_WV}, 0\ns_cbranch_scc1 {lab_gd}")
        I(f"""
        v_lshlrev_b32 v{va}, 4, v{V_L}
        v_and_b32 v{va}, 0x7f, v{va}
        v_add_u32 v{va}, {self.LMI}, v{va}
        ds_read_b128 {vr(WA)}, v{va}
        ds_read_b128 {vr(WA+4)}, v{va} offset:128
        ds_read_b128 {vr(WA+8)}, v{va} offset:256
        ds_read_b128 {vr(WA+12)}, v{va} offset:384
        """)
        if wait_tag is not None:
            I(f"s_waitcnt vmcnt({wait_tag})")
            self.tag_eval()
        I("s_waitcnt lgkmcnt(0)")
        for r in range(4):
            I(f"v_add_f32 v{WA+r}, v{WA+r}, v{WA+4+r}\nv_add_f32 v{WA+8+r}, v{WA+8+r}, v{WA+12+r}\nv_add_f32 v{WA+r}, v{WA+r}, v{WA+8+r}")
        I(f"""
        v_cvt_pk_bf16_f32 v{ACC+4}, v{WA}, v{WA+1}
        v_cvt_pk_bf16_f32 v{ACC+5}, v{WA+2}, v{WA+3}
        v_mov_b32 v{ACC+6}, s{S_TAG}
        v_mov_b32 v{ACC+7}, s{S_TAG+1}
        s_lshl_b32 s{ST}, s{self.S_P}, 7                     ; p*8 granules*16 B
        s_mov_b64 exec, 0xff
        buffer_store_dwordx4 {vr(ACC+4)}, v{V_L16}, {sr(S_WS)}, s{ST} offen offset:{MODG} sc1
        s_mov_b64 exec, -1
        {lab_gd}:
        """)

    def line_touch(self, srd, voff, soff, nl):
        I = self.I
        if nl < 64: I(f"v_cmp_gt_u32 vcc, {nl}, v{V_L}\ns_and_saveexec_b64 s[{ST+6}:{ST+7}], vcc")
        I(f"buffer_load_dword a255, v{voff}, {sr(srd)}, s{soff} offen")
        if nl < 64: I(f"s_mov_b64 exec, s[{ST+6}:{ST+7}]")

    def wq_ops(self):
        I = self.I
        V = 239
        so, lo = ST+12, ST+13
        self.srd(S_A, P_WQ, 640*1280)
        I(f"""
        v_mul_u32_u24 v{V}, 205, v{V_L}
        v_lshrrev_b32 v{V}, 11, v{V}
        v_mul_u32_u24 v{V-1}, 10, v{V}
        v_sub_u32 v{V-1}, v{V_L}, v{V-1}
        v_mul_u32_u24 v{V}, 1280, v{V}
        v_lshl_add_u32 v{V}, v{V-1}, 4, v{V}
        s_mul_i32 s{so}, s{S_M}, 160
        s_mul_i32 s{lo}, s{S_WV}, {6*1280}
        s_add_u32 s{so}, s{so}, s{lo}
        s_mul_i32 s{lo}, s{S_WV}, 960
        """)
        ops = []
        def mk(i):
            def f():
                if i == 26:
                    lab = self.b.uid("L_wq")
                    I(f"""
                    s_cmp_ge_u32 s{S_WV}, 3
                    s_cbranch_scc1 {lab}
                    s_cmp_eq_u32 s{S_WV}, 2
                    s_mov_b32 s{ST+14}, 0x0fffffff
                    s_cselect_b32 exec_hi, 0xff, s{ST+14}
                    s_mov_b32 m0, s{lo}
                    s_nop 0
                    buffer_load_dwordx4 v{V}, {sr(S_A)}, s{so} offen lds
                    s_mov_b32 exec_hi, -1
                    {lab}:
                    """)
                else:
                    I(f"""
                    s_mov_b32 m0, s{lo}
                    s_mov_b32 exec_hi, 0x0fffffff
                    buffer_load_dwordx4 v{V}, {sr(S_A)}, s{so} offen lds
                    s_mov_b32 exec_hi, -1
                    s_add_u32 s{lo}, s{lo}, 3840
                    s_add_u32 s{so}, s{so}, {24*1280}
                    """)
            return f
        return [mk(i) for i in range(27)]

    def phase_start(self):
        I, C = self.I, self.C
        XF, XH, TMP = self.XF, self.XH, self.TMP
        PR, P = self.S_PROD, self.S_P
        C("---- mod producers: members 2..5; column pair P = x + 8k (k = 2*rbl + (m-2)/2) < 60, block p = 2P + (m-2)%2; P < 20 is critical")
        I(f"""
        s_sub_u32 s{ST}, s{S_M}, 2                           ; m-2
        s_and_b32 s{ST+1}, s{S_RB}, 3
        s_lshl_b32 s{ST+1}, s{ST+1}, 1
        s_lshr_b32 s{ST+2}, s{ST}, 1
        s_add_u32 s{ST+1}, s{ST+1}, s{ST+2}
        s_lshl_b32 s{ST+1}, s{ST+1}, 3
        s_lshr_b32 s{ST+2}, s{S_RB}, 2
        s_add_u32 s{ST+1}, s{ST+1}, s{ST+2}                  ; P
        s_lshl_b32 s{P}, s{ST+1}, 1
        s_and_b32 s{ST+2}, s{ST}, 1
        s_add_u32 s{P}, s{P}, s{ST+2}
        s_cmp_lt_u32 s{ST+1}, 20
        s_cselect_b32 s{PR}, 1, 2
        s_cmp_lt_u32 s{ST+1}, 60
        s_cselect_b32 s{PR}, s{PR}, 0
        s_cmp_lt_u32 s{ST}, 4
        s_cselect_b32 s{PR}, s{PR}, 0
        """)
        C("every workgroup requests 1/32 of the critical w_mod lines of its row group: 3 column pairs x 640 rows = 1920 lines, 60 per workgroup (15 per wave)")
        self.srd(S_A, P_WM, 640*7680)
        I(f"""
        s_and_b32 s{ST}, s{S_RB}, 3
        s_lshl_b32 s{ST}, s{ST}, 3
        s_add_u32 s{ST}, s{ST}, s{S_M}
        s_lshl_b32 s{ST}, s{ST}, 2
        s_add_u32 s{ST}, s{ST}, s{S_WV}
        s_mul_i32 s{ST}, s{ST}, 15
        v_add_u32 v{XH}, s{ST}, v{V_L}
        v_mul_u32_u24 v{XH+1}, 6554, v{XH}
        v_lshrrev_b32 v{XH+1}, 22, v{XH+1}                   ; /640
        v_mul_u32_u24 v{XH+2}, 640, v{XH+1}
        v_sub_u32 v{XH+2}, v{XH}, v{XH+2}                    ; row
        v_mul_u32_u24 v{XH+2}, 7680, v{XH+2}
        v_lshlrev_b32 v{XH+1}, 10, v{XH+1}
        v_add_u32 v{XH+2}, v{XH+2}, v{XH+1}
        s_lshr_b32 s{ST}, s{S_RB}, 2
        s_lshl_b32 s{ST}, s{ST}, 7                           ; x * 128 B
        """)
        self.line_touch(S_A, XH+2, ST, 15)
        self.srd(S_C, P_X, 2048*1280)
        XO = XH
        I(f"""
        v_lshlrev_b32 v{XO+6}, 7, v{V_L}
        s_lshl_b32 s{ST}, s{S_M}, 2
        s_add_u32 s{ST}, s{ST}, s{S_WV}
        s_mul_i32 s{ST}, s{ST}, 2560
        s_mul_i32 s{ST+1}, s{S_RB}, {64*1280}
        s_add_u32 s{ST}, s{ST}, s{ST+1}
        """)
        lab_np = self.b.uid("L_np"); lab_j = self.b.uid("L_npj")
        I(f"s_cmp_lg_u32 s{PR}, 1\ns_cbranch_scc1 {lab_np}")
        I(f"s_mov_b32 s{ST+14}, s{ST}")
        self.mod_dma()
        self.line_touch(S_C, XO+6, ST+14, 20)
        self.tag_issue()
        self.mod_gemv(XH+8, 12, 2, 0)
        self.srd(S_C, P_X, 2048*1280)
        I(f"s_branch {lab_j}\n{lab_np}:")
        self.line_touch(S_C, XO+6, ST, 20)
        self.tag_issue()
        self.srd(S_C, P_X, 2048*1280)
        I(f"{lab_j}:")
        self.stamp("modpub")
        C("x: the wave's rows -> LDS, 16-byte chunks XOR-swizzled by the row")
        I(f"s_lshl_b32 s{ST}, s{S_TT}, 4")
        for qq in range(4):
            I(f"""
            v_add_u32 v{XO+4}, {4*qq}, v{V_G}                      ; row
            v_xor_b32 v{XO+5}, v{XO+4}, v{V_T}
            v_add_u32 v{XO+4}, s{ST}, v{XO+4}
            v_mul_u32_u24 v{XO+4}, 1280, v{XO+4}
            v_lshl_add_u32 v{XO+qq}, v{XO+5}, 4, v{XO+4}
            """)
        I(f"s_mul_i32 s{ST+1}, s{S_WV}, 20480")
        for G in range(5):
            I(f"s_mov_b32 s{ST+2}, {256*G}")
            for qq in range(4):
                I(f"s_mov_b32 m0, s{ST+1}\ns_add_u32 s{ST+1}, s{ST+1}, 1024\nbuffer_load_dwordx4 v{XO+qq}, {sr(S_C)}, s{ST+2} offen lds")
        lab_nk = self.b.uid("L_nk")
        I(f"""
        s_cmp_ge_u32 s{S_M}, 2
        s_cbranch_scc1 {lab_nk}
        s_cmp_eq_u32 s{S_M}, 0
        s_cselect_b32 s{S_A}, s{P_WK}, s{P_WV}
        s_cselect_b32 s{S_A+1}, s{P_WK+1}, s{P_WV+1}
        s_mov_b32 s{S_A+2}, 25600
        s_mov_b32 s{S_A+3}, 0x20000
        s_mul_i32 s{ST}, s{S_WV}, 7168
        s_add_u32 s{ST+1}, s{ST}, {L_WK}
        """)
        for i in range(7):
            I(f"""
            s_mov_b32 m0, s{ST+1}
            s_add_u32 s{ST+1}, s{ST+1}, 1024
            buffer_load_dwordx4 v{V_L16}, {sr(S_A)}, s{ST} offen lds
            s_add_u32 s{ST}, s{ST}, 1024
            """)
        I(f"{lab_nk}:")
        C("wq: request this workgroup's 1/32 of the matrix (200 lines, 50 per wave)")
        self.srd(S_B, P_WQ, 640*1280)
        I(f"""
        s_and_b32 s{ST}, s{S_RB}, 3
        s_lshl_b32 s{ST}, s{ST}, 3
        s_add_u32 s{ST}, s{ST}, s{S_M}
        s_lshl_b32 s{ST}, s{ST}, 2
        s_add_u32 s{ST}, s{ST}, s{S_WV}
        s_mul_i32 s{ST}, s{ST}, 6400
        """)
        self.line_touch(S_B, XO+6, ST, 50)
        self.stamp("issued")
        C("x fragments: lane (t,g): k = 32s+4g (+16)")
        AD = XH + 8
        I(f"""
        s_mul_i32 s{ST}, s{S_WV}, 20480
        v_lshlrev_b32 v{TMP}, 8, v{V_T}
        v_add_u32 v{TMP}, s{ST}, v{TMP}
        v_and_b32 v{TMP+1}, 1, v{V_G}
        v_lshl_add_u32 v{TMP}, v{TMP+1}, 3, v{TMP}            ; + 8*(g&1)
        v_lshrrev_b32 v{TMP+1}, 1, v{V_G}                     ; g>>1
        """)
        for a_ in range(4):
            for e in range(2):
                I(f"""
                v_add_u32 v{TMP+2}, {4*a_+2*e}, v{TMP+1}
                v_xor_b32 v{TMP+2}, v{TMP+2}, v{V_T}
                v_lshl_add_u32 v{AD+2*a_+e}, v{TMP+2}, 4, v{TMP}
                """)
        RS_ = XH + 16
        I(f"s_mul_i32 s{ST+1}, s{S_M}, 10")
        for j in range(5):
            I(f"""
            s_add_u32 s{ST+2}, s{ST+1}, {2*j}
            v_add_u32 v{TMP+2}, s{ST+2}, v{TMP+1}
            v_lshrrev_b32 v{TMP+3}, 4, v{TMP+2}
            v_and_b32 v{TMP+2}, 15, v{TMP+2}
            v_xor_b32 v{TMP+2}, v{TMP+2}, v{V_T}
            v_lshl_add_u32 v{TMP+2}, v{TMP+2}, 4, v{TMP}
            v_lshl_add_u32 v{RS_+j}, v{TMP+3}, 12, v{TMP+2}
            """)
        lw1 = self.b.uid("L_xw"); lwj = self.b.uid("L_xw")
        I(f"""
        s_cmp_lt_u32 s{S_M}, 2
        s_cbranch_scc1 {lw1}
        s_waitcnt vmcnt(1)
        s_branch {lwj}
        {lw1}:
        s_waitcnt vmcnt(8)
        {lwj}:
        """)
        for s_ in range(20):
            for e in range(2):
                I(f"ds_read_b64 v[{XF+4*s_+2*e}:{XF+4*s_+2*e+1}], v{AD+2*(s_&3)+e} offset:{4096*(s_>>2)}")
        for j in range(5):
            I(f"ds_read_b64 v[{XH+24+2*j}:{XH+25+2*j}], v{RS_+j}")
        self.tag_eval()
        I("s_waitcnt lgkmcnt(0)")
        for j in range(10): I(f"v_accvgpr_write_b32 a{j}, v{XH+24+j}")
        I("s_barrier")
        wq = self.wq_ops()
        self.stamp("xfrag")
        C("LN1 stats: sum via ones-MFMA, sumsq via Gram diagonal")
        ONES, D1, D2 = TMP, TMP+4, TMP+8
        for i in range(4): I(f"v_mov_b32 v{ONES+i}, 0x3f803f80")
        for s in range(20):
            I(f"v_mfma_f32_16x16x32_bf16 {vr(D1)}, {vr(ONES)}, {vr(XF+4*s)}, {'0' if s == 0 else vr(D1)}")
            I(f"v_mfma_f32_16x16x32_bf16 {vr(D2)}, {vr(XF+4*s)}, {vr(XF+4*s)}, {'0' if s == 0 else vr(D2)}")
            if s % 2 == 0 and wq: wq.pop(0)()
        MU, RS, T1, T2 = XH, XH+1, XH+2, XH+3
        I(f"""
        v_and_b32 v{T1}, 3, v{V_T}
        v_cmp_eq_u32 vcc, 1, v{T1}
        v_cndmask_b32 v{T2}, v{D2}, v{D2+1}, vcc
        v_cmp_eq_u32 vcc, 2, v{T1}
        v_cndmask_b32 v{T2}, v{T2}, v{D2+2}, vcc
        v_cmp_eq_u32 vcc, 3, v{T1}
        v_cndmask_b32 v{T2}, v{T2}, v{D2+3}, vcc
        v_lshrrev_b32 v{T1}, 2, v{V_T}
        v_lshl_add_u32 v{T1}, v{T1}, 4, v{V_T}
        v_lshlrev_b32 v{T1}, 2, v{T1}
        ds_bpermute_b32 v{T2}, v{T1}, v{T2}
        v_mul_f32 v{MU}, {1.0/640!r}, v{D1}
        s_waitcnt lgkmcnt(0)
        v_mul_f32 v{T2}, {1.0/640!r}, v{T2}
        v_fma_f32 v{T2}, -v{MU}, v{MU}, v{T2}
        v_max_f32 v{T2}, 0, v{T2}
        v_add_f32 v{T2}, 0x3727c5ac, v{T2}
        v_rsq_f32 v{RS}, v{T2}
        s_nop 0
        v_mul_f32 v{MU}, v{MU}, v{RS}
        v_sub_f32 v{TMP}, 0, v{MU}                           ; -mu*rstd
        v_mov_b32 v{TMP+1}, v{TMP}
        v_mov_b32 v{TMP+2}, v{RS}
        v_mov_b32 v{TMP+3}, v{RS}
        """)
        C("xhat = x*rstd - mu*rstd (fp32)")
        for s in range(20):
            for q in range(4):
                src = XF + 4*s + q
                d = XH + 8*s + 2*q
                if d + 1 >= 238 and False: pass
                I(f"v_lshlrev_b32 v{d}, 16, v{src}\nv_and_b32 v{d+1}, 0xffff0000, v{src}")
            for q in range(4):
                d = XH + 8*s + 2*q
                I(f"v_pk_fma_f32 v[{d}:{d+1}], v[{d}:{d+1}], v[{TMP+2}:{TMP+3}], v[{TMP}:{TMP+1}]")
            if s < 17 and wq: wq.pop(0)()
        assert not wq
        self.stamp("xhat")
        G0 = TMP+4
        lp = self.b.uid("L_mp"); ok = self.b.uid("L_mpok")
        I(f"""
        s_mul_i32 s{ST+1}, s{S_WV}, {80*16}
        v_add_u32 v{TMP+2}, s{ST+1}, v{V_L16}
        v_add_u32 v{TMP+3}, 1024, v{TMP+2}
        v_cmp_gt_u32 vcc, 16, v{V_L}
        v_cndmask_b32 v{TMP+3}, v{TMP+2}, v{TMP+3}, vcc
        s_mov_b32 s{ST}, {TIMEOUT}
        {lp}:
        buffer_load_dwordx4 {vr(G0)}, v{TMP+2}, {sr(S_WS)}, 0 offen offset:{MODG} sc1
        buffer_load_dwordx4 {vr(G0+4)}, v{TMP+3}, {sr(S_WS)}, 0 offen offset:{MODG} sc1
        s_waitcnt vmcnt(0)
        v_cmp_ne_u32 vcc, s{S_TAG}, v{G0+2}
        s_mov_b64 s[{ST+2}:{ST+3}], vcc
        v_cmp_ne_u32 vcc, s{S_TAG+1}, v{G0+3}
        s_or_b64 s[{ST+2}:{ST+3}], s[{ST+2}:{ST+3}], vcc
        v_cmp_ne_u32 vcc, s{S_TAG}, v{G0+6}
        s_or_b64 s[{ST+2}:{ST+3}], s[{ST+2}:{ST+3}], vcc
        v_cmp_ne_u32 vcc, s{S_TAG+1}, v{G0+7}
        s_or_b64 s[{ST+2}:{ST+3}], s[{ST+2}:{ST+3}], vcc
        s_cmp_eq_u64 s[{ST+2}:{ST+3}], 0
        s_cbranch_scc1 {ok}
        """)
        self.spin_tail(ST, lp, 2)
        I(f"{ok}:")
        for blk, av in ((G0, TMP+2), (G0+4, TMP+3)):
            I(f"""
            v_and_b32 v{blk+3}, 0xffff0000, v{blk+1}
            v_lshlrev_b32 v{blk+2}, 16, v{blk+1}
            v_and_b32 v{blk+1}, 0xffff0000, v{blk}
            v_lshlrev_b32 v{blk}, 16, v{blk}
            """)
        lab_a = self.b.uid("L_a")
        I(f"s_cmp_lt_u32 s{S_WV}, 2\ns_cbranch_scc1 {lab_a}")
        for blk in (G0, G0+4):
            for q in range(4): I(f"v_add_f32 v{blk+q}, 1.0, v{blk+q}")
            I(f"""
            v_cvt_pk_bf16_f32 v{blk}, v{blk}, v{blk+1}
            v_cvt_pk_bf16_f32 v{blk+2}, v{blk+2}, v{blk+3}
            v_and_b32 v{blk+1}, 0xffff0000, v{blk}
            v_lshlrev_b32 v{blk}, 16, v{blk}
            v_and_b32 v{blk+3}, 0xffff0000, v{blk+2}
            v_lshlrev_b32 v{blk+2}, 16, v{blk+2}
            """)
        I(f"""
        {lab_a}:
        v_add_u32 v{TMP+2}, {L_MOD}, v{TMP+2}
        v_add_u32 v{TMP+3}, {L_MOD}, v{TMP+3}
        ds_write_b128 v{TMP+2}, {vr(G0)}
        ds_write_b128 v{TMP+3}, {vr(G0+4)}
        s_waitcnt lgkmcnt(0)
        s_barrier
        """)
        self.stamp("modgot")
        C("h1 = xhat*A + B -> bf16 fragments (overwrites XF).  all DMAs (wq, wk) were waited by vmcnt(0) above, barrier publishes them")
        va = TMP
        I(f"v_lshlrev_b32 v{va}, 4, v{V_G}\nv_add_u32 v{va}, {L_MOD}, v{va}")
        def buf(s): return (XF + 48 + 16*(s & 1)) if s < 12 else (XH + 16*(s & 1))
        def rd(s):
            B_ = buf(s)
            for hf in range(2):
                I(f"ds_read_b128 {vr(B_+4*hf)}, v{va} offset:{2560 + 128*s + 64*hf}")
                I(f"ds_read_b128 {vr(B_+8+4*hf)}, v{va} offset:{128*s + 64*hf}")
        rd(0)
        for s in range(20):
            if s + 1 < 20: rd(s+1)
            I(f"s_waitcnt lgkmcnt({4 if s + 1 < 20 else 0})")
            B_ = buf(s)
            for q in range(4):
                d = XH + 8*s + 2*q
                I(f"v_pk_fma_f32 v[{d}:{d+1}], v[{d}:{d+1}], v[{B_+2*q}:{B_+2*q+1}], v[{B_+8+2*q}:{B_+8+2*q+1}]")
            for q in range(4):
                d = XH + 8*s + 2*q
                I(f"v_cvt_pk_bf16_f32 v{XF+4*s+q}, v{d}, v{d+1}")
        self.stamp("h1")

    def phase_kv(self):
        I, C = self.I, self.C
        XF, XH = self.XF, self.XH
        lab_end = self.b.uid("L_kvend"); lab_v = self.b.uid("L_v"); lab_pub = self.b.uid("L_kvpub")
        va, vb, W0, ACC0, ACC1, T = XH, XH+1, XH+4, XH+24, XH+28, XH+32
        I(f"""
        s_cmp_ge_u32 s{S_M}, 2
        s_cbranch_scc1 {lab_end}
        v_lshrrev_b32 v{va}, 2, v{V_T}
        v_lshl_add_u32 v{va}, v{V_G}, 2, v{va}
        v_mul_u32_u24 v{va}, 40, v{va}
        v_and_b32 v{vb}, 3, v{V_T}
        v_lshl_add_u32 v{va}, v{vb}, 3, v{va}
        v_add_u32 v{va}, {L_WK}, v{va}
        s_cmp_eq_u32 s{S_M}, 1
        s_cbranch_scc1 {lab_v}
        """)
        def loop(isv):
            for s in range(20):
                o = (s & 1)*8
                I(f"""
                ds_read_b64_tr_b16 v[{W0+o}:{W0+o+1}], v{va} offset:{1280*s}
                ds_read_b64_tr_b16 v[{W0+o+2}:{W0+o+3}], v{va} offset:{1280*s+640}
                ds_read_b64_tr_b16 v[{W0+o+4}:{W0+o+5}], v{va} offset:{1280*s+32}
                ds_read_b64_tr_b16 v[{W0+o+6}:{W0+o+7}], v{va} offset:{1280*s+672}
                """)
                for ss in ([s-1] if s > 0 else []) + ([s] if s == 19 else []):
                    o2 = (ss & 1)*8
                    I(f"s_waitcnt lgkmcnt({4 if ss < s else 0})")
                    for tl, acc in ((0, ACC0), (1, ACC1)):
                        w = vr(W0+o2+4*tl); x = vr(XF+4*ss)
                        c = '0' if ss == 0 else vr(acc)
                        if isv: I(f"v_mfma_f32_16x16x32_bf16 {vr(acc)}, {x}, {w}, {c}")
                        else:   I(f"v_mfma_f32_16x16x32_bf16 {vr(acc)}, {w}, {x}, {c}")
        C("K: D[dim 4g+r][token t]")
        loop(False)
        I(f"""
        v_mul_f32 v{T}, v{ACC0}, v{ACC0}
        v_fmac_f32 v{T}, v{ACC0+1}, v{ACC0+1}
        v_fmac_f32 v{T}, v{ACC0+2}, v{ACC0+2}
        v_fmac_f32 v{T}, v{ACC0+3}, v{ACC0+3}
        v_mul_f32 v{T+1}, v{ACC1}, v{ACC1}
        v_fmac_f32 v{T+1}, v{ACC1+1}, v{ACC1+1}
        v_fmac_f32 v{T+1}, v{ACC1+2}, v{ACC1+2}
        v_fmac_f32 v{T+1}, v{ACC1+3}, v{ACC1+3}
        v_cmp_eq_u32 vcc, 0, v{V_G}
        v_cndmask_b32 v{T+1}, 0, v{T+1}, vcc
        v_add_f32 v{T}, v{T}, v{T+1}
        """)
        self.reduce_g([T], T+2)
        for sh in (8, 4, 2, 1):
            I(f"v_mov_b32_dpp v{T+2}, v{T} row_ror:{sh} row_mask:0xf bank_mask:0xf\nv_max_f32 v{T}, v{T}, v{T+2}")
        I(f"""
        s_lshl_b32 s{ST}, s{S_WV}, 2
        s_add_u32 s{ST}, s{ST}, {L_MISC}
        v_mov_b32 v{T+2}, s{ST}
        ds_write_b32 v{T+2}, v{T}
        """)
        I(f"""
        v_cvt_pk_bf16_f32 v{T+4}, v{ACC0}, v{ACC0+1}
        v_cvt_pk_bf16_f32 v{T+5}, v{ACC0+2}, v{ACC0+3}
        v_cvt_pk_bf16_f32 v{T+6}, v{ACC1}, v{ACC1+1}
        v_cvt_pk_bf16_f32 v{T+7}, v{ACC1+2}, v{ACC1+3}
        s_lshr_b32 s{ST}, s{S_TT}, 1
        s_mul_i32 s{ST}, s{ST}, {KVT}
        s_add_u32 s{ST}, s{ST}, {KV}
        s_and_b32 s{ST+1}, s{S_TT}, 1
        s_lshl_b32 s{ST+1}, s{ST+1}, 4
        v_add_u32 v{T+8}, s{ST+1}, v{V_T}                    ; kk
        v_lshrrev_b32 v{T+9}, 1, v{V_G}
        v_lshl_add_u32 v{T+9}, v{T+9}, 5, v{T+8}             ; kk+32*(g>>1)
        v_lshlrev_b32 v{T+9}, 4, v{T+9}
        v_and_b32 v{T+10}, 1, v{V_G}
        v_lshl_add_u32 v{T+9}, v{T+10}, 3, v{T+9}
        buffer_store_dwordx2 v[{T+4}:{T+5}], v{T+9}, {sr(S_WS)}, s{ST} offen sc1
        v_lshlrev_b32 v{T+8}, 3, v{T+8}
        v_cmp_eq_u32 vcc, 0, v{V_G}
        s_and_saveexec_b64 s[{ST+4}:{ST+5}], vcc
        buffer_store_dwordx2 v[{T+6}:{T+7}], v{T+8}, {sr(S_WS)}, s{ST} offen offset:1024 sc1
        s_mov_b64 exec, s[{ST+4}:{ST+5}]
        s_branch {lab_pub}
        {lab_v}:
        """)
        C("V^T: D[token 4g+r][d = lane&15]")
        loop(True)
        I(f"""
        v_cvt_pk_bf16_f32 v{T+4}, v{ACC0}, v{ACC0+1}
        v_cvt_pk_bf16_f32 v{T+5}, v{ACC0+2}, v{ACC0+3}
        v_cvt_pk_bf16_f32 v{T+6}, v{ACC1}, v{ACC1+1}
        v_cvt_pk_bf16_f32 v{T+7}, v{ACC1+2}, v{ACC1+3}
        v_cmp_eq_u32 vcc, 4, v{V_T}
        v_mov_b32 v{T+11}, 0x3f803f80
        v_cndmask_b32 v{T+6}, v{T+6}, v{T+11}, vcc
        v_cndmask_b32 v{T+7}, v{T+7}, v{T+11}, vcc
        s_lshr_b32 s{ST}, s{S_TT}, 1
        s_mul_i32 s{ST}, s{ST}, {KVT}
        s_and_b32 s{ST+1}, s{S_TT}, 1
        s_lshl_b32 s{ST+1}, s{ST+1}, 10
        s_add_u32 s{ST}, s{ST}, s{ST+1}
        s_add_u32 s{ST}, s{ST}, {KV+1280}
        v_and_b32 v{T+9}, 1, v{V_G}
        v_lshl_add_u32 v{T+9}, v{T+9}, 5, v{V_T}             ; d + 32*(g&1)
        v_lshlrev_b32 v{T+9}, 4, v{T+9}
        v_lshrrev_b32 v{T+10}, 1, v{V_G}
        v_lshl_add_u32 v{T+9}, v{T+10}, 3, v{T+9}
        buffer_store_dwordx2 v[{T+4}:{T+5}], v{T+9}, {sr(S_WS)}, s{ST} offen sc1
        v_cmp_gt_u32 vcc, 5, v{V_T}
        s_and_saveexec_b64 s[{ST+4}:{ST+5}], vcc
        buffer_store_dwordx2 v[{T+6}:{T+7}], v{T+9}, {sr(S_WS)}, s{ST} offen offset:256 sc1
        s_mov_b64 exec, s[{ST+4}:{ST+5}]
        v_mov_b32 v{T}, 0
        s_lshl_b32 s{ST}, s{S_WV}, 2
        s_add_u32 s{ST}, s{ST}, {L_MISC}
        v_mov_b32 v{T+2}, s{ST}
        ds_write_b32 v{T+2}, v{T}
        {lab_pub}:
        s_waitcnt vmcnt(0) lgkmcnt(0)
        s_barrier
        """)
        lab_np = self.b.uid("L_kvnp")
        I(f"""
        s_cmp_lg_u32 s{S_WV}, 0
        s_cbranch_scc1 {lab_np}
        v_mov_b32 v{T+2}, {L_MISC}
        ds_read_b128 {vr(T+4)}, v{T+2}
        s_waitcnt lgkmcnt(0)
        v_max_f32 v{T+4}, v{T+4}, v{T+5}
        v_max_f32 v{T+6}, v{T+6}, v{T+7}
        v_max_f32 v{T+6}, v{T+4}, v{T+6}
        v_mov_b32 v{T+4}, s{S_TAG}
        v_mov_b32 v{T+5}, s{S_TAG+1}
        v_mov_b32 v{T+7}, 0
        s_lshl_b32 s{ST}, s{S_RB}, 1
        s_add_u32 s{ST}, s{ST}, s{S_M}
        s_lshl_b32 s{ST}, s{ST}, 7
        s_add_u32 s{ST}, s{ST}, {KVFLAG}
        v_mov_b32 v{T+2}, s{ST}
        s_mov_b64 exec, 1
        buffer_store_dwordx4 {vr(T+4)}, v{T+2}, {sr(S_WS)}, 0 offen sc1
        s_mov_b64 exec, -1
        {lab_np}:
        {lab_end}:
        """)
        self.stamp("kvpub")

    QA0, QA1, QB0, QB1 = 44, 48, 52, 56
    SA, SB = 60, 76
    PA, PB = 92, 100
    OA, OB = 108, 124
    KB = 140
    VB = 172
    AT = 204

    def phase_q(self):
        I, C = self.I, self.C
        XF, XH = self.XF, self.XH
        va, vb, WB, ACC = XH, XH+1, XH+4, XH+64
        I(f"""
        v_lshrrev_b32 v{va}, 2, v{V_T}
        v_lshl_add_u32 v{va}, v{V_G}, 2, v{va}
        v_mul_u32_u24 v{va}, 160, v{va}
        v_and_b32 v{vb}, 3, v{V_T}
        v_lshl_add_u32 v{va}, v{vb}, 3, v{va}
        v_add_u32 v{vb}, 51200, v{va}
        """)
        issued = []
        def rd1(s, j):
            base = va if s < 10 else vb
            o = 5120*(s % 10)
            W_ = WB + 20*(s % 3) + 4*j
            I(f"ds_read_b64_tr_b16 v[{W_}:{W_+1}], v{base} offset:{L_WQ + o + 32*j}")
            I(f"ds_read_b64_tr_b16 v[{W_+2}:{W_+3}], v{base} offset:{L_WQ + o + 32*j + 2560}")
            issued.append((s, j))
        for s in range(2):
            for j in range(5): rd1(s, j)
        for s in range(20):
            for j in range(5):
                younger = 2*(len(issued) - 1 - issued.index((s, j)))
                I(f"s_waitcnt lgkmcnt({min(15, younger)})")
                I(f"v_mfma_f32_16x16x32_bf16 {vr(ACC+4*j)}, {vr(WB+20*(s%3)+4*j)}, {vr(XF+4*s)}, {'0' if s == 0 else vr(ACC+4*j)}")
                if s + 2 < 20: rd1(s+2, j)
        qs = (20 ** -0.5) * 1.4426950408889634
        I(f"s_mov_b32 s{ST}, {hex(f2u(qs))}")
        C("scale, pack, write wave-private [16][176B] tile")
        I(f"""
        s_mul_i32 s{ST+1}, s{S_WV}, {16*176}
        s_add_u32 s{ST+1}, s{ST+1}, {L_QS}
        v_mul_u32_u24 v{va}, 176, v{V_T}
        v_lshl_add_u32 v{va}, v{V_G}, 3, v{va}
        v_add_u32 v{va}, s{ST+1}, v{va}
        """)
        for j in range(5):
            a = ACC + 4*j
            for r in range(4): I(f"v_mul_f32 v{a+r}, s{ST}, v{a+r}")
            I(f"v_cvt_pk_bf16_f32 v{a}, v{a}, v{a+1}\nv_cvt_pk_bf16_f32 v{a+1}, v{a+2}, v{a+3}")
            I(f"ds_write_b64 v{va}, v[{a}:{a+1}] offset:{32*j}")
        AT = self.AT
        I(f"""
        v_mul_u32_u24 v{vb}, 176, v{V_T}
        v_bfe_u32 v{va}, v{V_L}, 4, 1
        v_mul_u32_u24 v{va}, 40, v{va}
        v_add_u32 v{vb}, v{vb}, v{va}
        v_add_u32 v{vb}, s{ST+1}, v{vb}                      ; token*176 + (q>>4)*40
        v_lshrrev_b32 v{va}, 5, v{V_L}
        v_lshl_add_u32 v{va}, v{va}, 4, v{vb}                ; + 16h
        s_waitcnt lgkmcnt(0)
        ds_read_b64 v[{self.QA0}:{self.QA0+1}], v{va}
        ds_read_b64 v[{self.QA0+2}:{self.QA0+3}], v{va} offset:8
        ds_read_b64 v[{self.QB0}:{self.QB0+1}], v{va} offset:80
        ds_read_b64 v[{self.QB0+2}:{self.QB0+3}], v{va} offset:88
        ds_read_b64 v[{self.QA1}:{self.QA1+1}], v{vb} offset:32
        ds_read_b64 v[{self.QB1}:{self.QB1+1}], v{vb} offset:112
        v_cmp_gt_u32 vcc, 32, v{V_L}
        s_waitcnt lgkmcnt(0)
        """)
        for r in (self.QA1, self.QA1+1, self.QB1, self.QB1+1):
            I(f"v_cndmask_b32 v{r}, 0, v{r}, vcc")
        for (t, q0, q1) in ((AT, self.QA0, self.QA1), (AT+1, self.QB0, self.QB1)):
            I(f"v_mov_b32 v{t}, 0")
            for r in (q0, q0+1, q0+2, q0+3, q1, q1+1):
                I(f"v_dot2_f32_bf16 v{t}, v{r}, v{r}, v{t}")
        for t in (AT, AT+1):
            I(f"v_mov_b32 v{AT+2}, v{t}\nv_permlane32_swap_b32 v{t}, v{AT+2}\nv_add_f32 v{t}, v{t}, v{AT+2}")
        I(f"v_max_f32 v{AT}, v{AT}, v{AT+1}")
        I("s_barrier")
        labd = self.b.uid("L_dg")
        I(f"s_cmp_lg_u32 s{self.S_PROD}, 2\ns_cbranch_scc1 {labd}")
        self.MT = self.MT2
        self.LWM, self.LSC, self.LMI = 57344, 98304, 99584
        self.mod_dma()
        I(f"{labd}:")
        self.stamp("qproj")

    RL_OFF, RL_TR, RL_D = 4, 11, 12
    S_RKS, S_RDS, RL_TRS = (78, 82), (79, 83), (11, 40)
    def rl_issue(self, rnd):
        I = self.I
        self.S_RK, self.S_RD, self.RL_TR = self.S_RKS[rnd], self.S_RDS[rnd], self.RL_TRS[rnd]
        u, A0, A1 = ST+4, ST+5, ST+6
        lk4 = self.b.uid("L_r4"); lk3 = self.b.uid("L_r3"); lA = self.b.uid("L_rA"); lend = self.b.uid("L_re")
        I(f"""
        s_lshl_b32 s{u}, s{S_W}, 2
        s_add_u32 s{u}, s{u}, s{S_WV}
        """)
        if rnd == 1:
            I(f"""
            s_mov_b32 s{self.S_RK}, 2
            s_add_u32 s{u}, s{u}, 1024
            s_cmp_ge_u32 s{u}, 1232
            s_cbranch_scc1 {lend}
            s_branch {lk3}
            """)
        else:
            I(f"""
            s_cmp_ge_u32 s{u}, 912
            s_cbranch_scc1 {lk3}
            s_cmp_ge_u32 s{u}, 480
            s_cbranch_scc1 {lk4}
            s_mul_i32 s{A0}, s{u}, 410
            s_lshr_b32 s{A0}, s{A0}, 16                 ; p = u/160
            s_mul_i32 s{A1}, s{A0}, 160
            s_sub_u32 s{u}, s{u}, s{A1}                 ; r
            s_cmp_eq_u32 s{A0}, 1
            s_cselect_b32 s{S_A}, s{P_W1}, s{P_WO}
            s_cselect_b32 s{S_A+1}, s{P_W1+1}, s{P_WO+1}
            s_cmp_eq_u32 s{A0}, 2
            s_cselect_b32 s{S_A}, s{P_W2}, s{S_A}
            s_cselect_b32 s{S_A+1}, s{P_W2+1}, s{S_A+1}
            s_mov_b32 s{S_A+2}, {640*1280}
            s_mul_i32 s{A0}, s{A0}, 100                 ; p*100
            s_mul_i32 s{A1}, s{u}, 3277
            s_lshr_b32 s{A1}, s{A1}, 16                 ; m = r/20
            s_mul_i32 s{ST+7}, s{A1}, 20
            s_sub_u32 s{u}, s{u}, s{ST+7}               ; kb
            s_mul_i32 s{ST+7}, s{u}, 5
            s_add_u32 s{A0}, s{A0}, s{ST+7}
            s_lshl_b32 s{A0}, s{A0}, 10
            s_mul_i32 s{ST+7}, s{A1}, {WSA_M}
            s_add_u32 s{A0}, s{A0}, s{ST+7}
            s_add_u32 s{self.S_RD}, s{A0}, {WSA}
            s_branch {lA}
            {lk4}:
            s_sub_u32 s{u}, s{u}, 480
            s_mov_b32 s{S_A}, s{P_W4}
            s_mov_b32 s{S_A+1}, s{P_W4+1}
            s_mov_b32 s{S_A+2}, {1728*1280}
            s_mul_i32 s{A1}, s{u}, 1214
            s_lshr_b32 s{A1}, s{A1}, 16                 ; m = r/54
            s_mul_i32 s{ST+7}, s{A1}, 54
            s_sub_u32 s{u}, s{u}, s{ST+7}               ; kb
            s_mul_i32 s{A0}, s{u}, 5120
            s_mul_i32 s{ST+7}, s{A1}, {W4S_M}
            s_add_u32 s{A0}, s{A0}, s{ST+7}
            s_add_u32 s{self.S_RD}, s{A0}, {W4S}
            {lA}:
            s_mov_b32 s{S_A+3}, 0x20000
            s_mov_b32 s{self.S_RK}, 0
            s_mul_i32 s{u}, s{u}, {32*1280}
            s_mul_i32 s{A1}, s{A1}, 160
            s_add_u32 s{u}, s{u}, s{A1}
            s_mul_i32 s{A0}, s{S_WV}, 14336
            """)
            O = self.RL_OFF
            for q in range(5):
                I(f"""
                v_add_u32 v{O+5}, {64*q}, v{V_L}
                v_mul_u32_u24 v{O+6}, 6554, v{O+5}
                v_lshrrev_b32 v{O+6}, 16, v{O+6}
                v_mul_u32_u24 v{O+q}, {1280-160}, v{O+6}
                v_lshl_add_u32 v{O+q}, v{O+5}, 4, v{O+q}
                """)
            for q in range(5):
                I(f"s_mov_b32 m0, s{A0}\ns_add_u32 s{A0}, s{A0}, 1024\nbuffer_load_dwordx4 v{O+q}, {sr(S_A)}, s{u} offen lds")
            I(f"""
            v_lshrrev_b32 v{self.RL_TR}, 2, v{V_T}
            v_lshl_add_u32 v{self.RL_TR}, v{V_G}, 2, v{self.RL_TR}
            v_mul_u32_u24 v{self.RL_TR}, 160, v{self.RL_TR}
            s_branch {lend}_tr
            """)
        I(f"""
        {lk3}:
        s_sub_u32 s{u}, s{u}, 912
        s_mov_b32 s{S_A}, s{P_W3}
        s_mov_b32 s{S_A+1}, s{P_W3+1}
        s_mov_b32 s{S_A+2}, {640*3456}
        s_mov_b32 s{S_A+3}, 0x20000
        s_mov_b32 s{self.S_RK}, 1
        s_mul_i32 s{A1}, s{u}, 3277
        s_lshr_b32 s{A1}, s{A1}, 16                 ; m16 = r/20
        s_mul_i32 s{ST+7}, s{A1}, 20
        s_sub_u32 s{u}, s{u}, s{ST+7}               ; kb
        s_mul_i32 s{A0}, s{u}, 7168
        s_mul_i32 s{ST+7}, s{A1}, {W3S_M}
        s_add_u32 s{A0}, s{A0}, s{ST+7}
        s_add_u32 s{self.S_RD}, s{A0}, {W3S}
        s_mul_i32 s{A0}, s{A1}, 7
        s_sub_u32 s{ST+7}, s{A1}, 12
        s_max_i32 s{ST+7}, s{ST+7}, 0
        s_sub_u32 s{A0}, s{A0}, s{ST+7}
        s_lshl_b32 s{A0}, s{A0}, 5
        s_mul_i32 s{u}, s{u}, {32*3456}
        s_add_u32 s{u}, s{u}, s{A0}
        s_mul_i32 s{A0}, s{S_WV}, 14336
        s_add_u32 s{A0}, s{A0}, {7168*rnd}
        """)
        O = self.RL_OFF
        for q in range(7):
            I(f"""
            v_add_u32 v{self.RL_D}, {64*q}, v{V_L}
            v_mul_u32_u24 v{self.RL_D+1}, 4682, v{self.RL_D}
            v_lshrrev_b32 v{self.RL_D+1}, 16, v{self.RL_D+1}
            v_mul_u32_u24 v{O+q}, {3456-224}, v{self.RL_D+1}
            v_lshl_add_u32 v{O+q}, v{self.RL_D}, 4, v{O+q}
            """)
        for q in range(7):
            I(f"s_mov_b32 m0, s{A0}\ns_add_u32 s{A0}, s{A0}, 1024\nbuffer_load_dwordx4 v{O+q}, {sr(S_A)}, s{u} offen lds")
        I(f"""
        v_lshrrev_b32 v{self.RL_TR}, 2, v{V_T}
        v_lshl_add_u32 v{self.RL_TR}, v{V_G}, 2, v{self.RL_TR}
        v_mul_u32_u24 v{self.RL_TR}, 224, v{self.RL_TR}
        {lend}_tr:
        v_and_b32 v{self.RL_D}, 3, v{V_T}
        v_lshl_add_u32 v{self.RL_TR}, v{self.RL_D}, 3, v{self.RL_TR}
        s_mul_i32 s{A0}, s{S_WV}, 14336
        s_add_u32 s{A0}, s{A0}, {7168*rnd}
        v_add_u32 v{self.RL_TR}, s{A0}, v{self.RL_TR}
        {lend}:
        """)

    def rl_store(self, rnd):
        I = self.I
        self.S_RK, self.S_RD, self.RL_TR = self.S_RKS[rnd], self.S_RDS[rnd], self.RL_TRS[rnd]
        l7 = self.b.uid("L_rs7"); lend = self.b.uid("L_rse")
        D = self.RL_D
        I(f"s_cmp_eq_u32 s{self.S_RK}, 2\ns_cbranch_scc1 {lend}\ns_cmp_eq_u32 s{self.S_RK}, 1\ns_cbranch_scc1 {l7}")
        for (nt, rowb, last) in ((5, 160, False), (7, 224, True)):
            if last: I(f"{l7}:")
            for j in range(nt):
                I(f"ds_read_b64_tr_b16 v[{D+4*j}:{D+4*j+1}], v{self.RL_TR} offset:{32*j}")
                I(f"ds_read_b64_tr_b16 v[{D+4*j+2}:{D+4*j+3}], v{self.RL_TR} offset:{32*j+16*rowb}")
            I(f"s_add_u32 s{ST+4}, s{self.S_RD}, 4096\ns_waitcnt lgkmcnt(0)")
            for j in range(nt):
                I(f"buffer_store_dwordx4 {vr(D+4*j)}, v{V_L16}, {sr(S_WS)}, s{self.S_RD if j < 4 else ST+4} offen offset:{1024*(j%4)} sc1")
            if not last: I(f"s_branch {lend}")
        I(f"{lend}:")

    def rl_flag(self):
        I = self.I
        lab = self.b.uid("L_rlp")
        I(f"""
        s_barrier
        s_cmp_lg_u32 s{S_WV}, 0
        s_cbranch_scc1 {lab}
        v_mov_b32 v252, s{S_TAG}
        v_mov_b32 v253, s{S_TAG+1}
        s_lshl_b32 s{ST+4}, s{S_W}, 7
        s_add_u32 s{ST+4}, s{ST+4}, {RLFLAG}
        v_mov_b32 v251, s{ST+4}
        s_mov_b64 exec, 1
        buffer_store_dwordx2 v[252:253], v251, {sr(S_WS)}, 0 offen sc1
        s_mov_b64 exec, -1
        {lab}:
        """)

    def phase_kvwait(self):
        I = self.I
        AT = self.AT
        lp = self.b.uid("L_kvw"); ok = self.b.uid("L_kvok")
        I(f"""
        v_lshlrev_b32 v{AT+3}, 7, v{V_L}
        s_mov_b32 s{ST}, {TIMEOUT}
        s_mov_b32 s{ST+1}, {KVFLAG}
        {lp}:
        buffer_load_dwordx4 {vr(AT+4)}, v{AT+3}, {sr(S_WS)}, s{ST+1} offen sc1
        """)
        I(f"""
        s_waitcnt vmcnt(0)
        v_cmp_ne_u32 vcc, s{S_TAG}, v{AT+4}
        s_mov_b64 s[{ST+2}:{ST+3}], vcc
        v_cmp_ne_u32 vcc, s{S_TAG+1}, v{AT+5}
        s_or_b64 s[{ST+2}:{ST+3}], s[{ST+2}:{ST+3}], vcc
        s_cmp_eq_u64 s[{ST+2}:{ST+3}], 0
        s_cbranch_scc1 {ok}
        """)
        self.spin_tail(ST, lp, 3)
        I(f"{ok}:")
        self.reduce_g([AT+6], AT+2, op="v_max_f32")
        for sh in (8, 4, 2, 1):
            I(f"v_mov_b32_dpp v{AT+2}, v{AT+6} row_ror:{sh} row_mask:0xf bank_mask:0xf\nv_max_f32 v{AT+6}, v{AT+6}, v{AT+2}")
        I(f"v_mov_b32 v{AT+1}, v{AT+6}")
        self.xid_publish()
        self.stamp("kvwait")

    def kv_loads(self, i, sK, sV):
        raise NotImplementedError

    def phase_attn(self, force_slow=False):
        I, C = self.I, self.C
        QA0, QA1, QB0, QB1, SA, SB, PA, PB, OA, OB, KB, VB, AT = (self.QA0, self.QA1, self.QB0, self.QB1, self.SA, self.SB,
            self.PA, self.PB, self.OA, self.OB, self.KB, self.VB, self.AT)
        sK, sV, cnt = 85, 86, 87
        vK1 = AT+2
        lab_slow = self.b.uid("L_slow"); lab_done = self.b.uid("L_adone")
        C("bound check: |q|^2 * kmax2 <= T^2 (log2 units) else true-max path")
        Tlim = 64.0
        I(f"""
        v_mul_f32 v{AT}, v{AT}, v{AT+1}
        v_and_b32 v{vK1}, 31, v{V_L}
        v_lshlrev_b32 v{vK1}, 3, v{vK1}
        s_mov_b32 s{ST+3}, {hex(f2u(Tlim*Tlim if not force_slow else -1.0))}
        v_cmp_nge_f32 vcc, s{ST+3}, v{AT}
        """)
        I(f"s_cmp_lg_u64 vcc, 0\ns_cselect_b32 s{self.S_SLOW}, 1, 0")
        for r in range(16): I(f"v_mov_b32 v{OA+r}, 0\nv_mov_b32 v{OB+r}, 0")
        KVL = self.L_KV
        vK16, vK8 = 200, 201
        KR, VR = 16, 48
        def kreg(buf): return KR + 8*buf
        def vreg(buf): return VR + 8*buf
        def rdK(t):
            k = kreg(t % 4); o = (t % 16)*KVT
            I(f"ds_read_b128 {ar(k)}, v{vK16} offset:{o}")
            I(f"ds_read_b64 a[{k+4}:{k+5}], v{vK8} offset:{o+1024}")
        def rdV(t, which=(0, 1)):
            v = vreg(t % 4); o = (t % 16)*KVT
            if 0 in which: I(f"ds_read_b128 {ar(v)}, v{vK16} offset:{o+1280}")
            if 1 in which: I(f"ds_read_b128 {ar(v+4)}, v{vK16} offset:{o+2304}")
        I(f"v_add_u32 v{vK16}, {KVL}, v{V_L16}\nv_add_u32 v{vK8}, {KVL}, v{vK1}")
        for g in range(3): self.kv_dma(g)
        for r in range(16): I(f"v_mov_b32 v{SB+r}, 0xff800000")
        for r in range(8): I(f"v_mov_b32 v{PA+r}, 0")
        for r in range(8): I(f"v_accvgpr_write_b32 a{vreg(3)+r}, 0")
        self.rl_issue(0); self.rl_issue(1)
        I("s_waitcnt vmcnt(5)\ns_barrier")
        rdK(0); rdK(1); rdV(0)
        I(f"s_mov_b32 s{cnt}, 16")
        lp = self.b.uid("L_att"); lhk = [self.b.uid("L_hook") for _ in range(5)]; lback = [self.b.uid("L_back") for _ in range(4)]
        hooks = self.attn_hooks()
        mask = sum(1 << k for k in hooks)
        def exps(S, P, q):
            a = S + 4*q
            I(f"v_exp_f32 v{a}, v{a}\nv_exp_f32 v{a+1}, v{a+1}\nv_exp_f32 v{a+2}, v{a+2}\nv_exp_f32 v{a+3}, v{a+3}")
            I(f"v_cvt_pk_bf16_f32 v{P+2*q}, v{a}, v{a+1}\nv_cvt_pk_bf16_f32 v{P+2*q+1}, v{a+2}, v{a+3}")
        M16 = "v_mfma_f32_32x32x16_bf16"; M8 = "v_mfma_f32_32x32x8_bf16"
        SKS, SKL, SBM = 86, 85, 76
        def copy_slot(q, e):
            n = 2*(q & 1) + e
            if self.x_nokv: return
            if q < 2:
                if n == 3: I("s_mov_b64 exec, 0xffff")
                I(f"buffer_load_dwordx4 v{V_L16}, {sr(S_WS)}, s{SKS} offen offset:{1024*n} lds")
                if n == 3: I(f"s_mov_b64 exec, -1\ns_mov_b32 m0, s{SBM}")
            elif not self.noslot:
                I(f"buffer_load_dwordx4 v{V_L16}, {sr(S_WS)}, s{self.S_DS} offen offset:{1024*n} lds")
        def header(part):
            I("s_waitcnt vmcnt(12) lgkmcnt(4)")
            if not self.x_nobar: I("s_barrier")
            I(f"""
            s_bitcmp1_b32 s84, s{cnt}
            s_cbranch_scc1 {lhk[part]}
            {lback[part]}:
            s_add_u32 s{SKS}, s{SKS}, {4*KVT}
            s_add_u32 m0, s{SKL}, {((part + 3) % 4)*4*KVT}
            """)
        def body(i, qk=True, last=False):
            kb = kreg(i % 4); vb = vreg((i+3) % 4)
            k2 = kreg((i+2) % 4); ok = ((i+2) % 16)*KVT
            v1 = vreg((i+1) % 4); ov = ((i+1) % 16)*KVT
            if qk:
                I(f"{M16} {vr(SA,16)}, {ar(kb)}, {vr(QA0)}, 0")
                if not self.x_nords: I(f"ds_read_b128 {ar(k2)}, v{vK16} offset:{ok}")
            exps(SB, PB, 0)
            if qk:
                I(f"{M8} {vr(SA,16)}, a[{kb+4}:{kb+5}], v[{QA1}:{QA1+1}], {vr(SA,16)}")
            exps(SB, PB, 1)
            I(f"{M16} {vr(OA,16)}, {ar(vb)}, {vr(PA)}, {vr(OA,16)}")
            if qk and not self.x_nords: I(f"ds_read_b64 a[{k2+4}:{k2+5}], v{vK8} offset:{ok+1024}")
            exps(SB, PB, 2)
            I(f"{M16} {vr(OA,16)}, {ar(vb+4)}, {vr(PA+4)}, {vr(OA,16)}")
            if qk: copy_slot(i % 4, 0)
            exps(SB, PB, 3)
            if qk:
                I(f"{M16} {vr(SB,16)}, {ar(kb)}, {vr(QB0)}, 0")
                if not self.x_nords: I(f"ds_read_b128 {ar(v1)}, v{vK16} offset:{ov+1280}")
                exps(SA, PA, 0)
                I(f"{M8} {vr(SB,16)}, a[{kb+4}:{kb+5}], v[{QB1}:{QB1+1}], {vr(SB,16)}")
                copy_slot(i % 4, 1)
                exps(SA, PA, 1)
            I(f"{M16} {vr(OB,16)}, {ar(vb)}, {vr(PB)}, {vr(OB,16)}")
            if qk:
                if not self.x_nords: I(f"ds_read_b128 {ar(v1+4)}, v{vK16} offset:{ov+2304}")
                exps(SA, PA, 2)
            I(f"{M16} {vr(OB,16)}, {ar(vb+4)}, {vr(PB+4)}, {vr(OB,16)}")
            if qk:
                if i % 4 == 3:
                    I(f"s_sub_u32 s{cnt}, s{cnt}, 1")
                    header((i // 4 + 1) % 4)
                else:
                    I("s_waitcnt lgkmcnt(4)")
                exps(SA, PA, 3)
        I(f"""
        s_mul_i32 s{SKL}, s{S_WV}, {KVT}
        s_add_u32 s{SKS}, s{SKL}, {KV + 8*KVT}
        s_add_u32 s{SKL}, s{SKL}, {KVL}
        s_mov_b32 s{SBM}, {self.L_DUMMY}
        s_mov_b32 s{self.S_DS}, {KV}
        s_mov_b32 s84, {hex(mask)}
        """)
        I("s_waitcnt lgkmcnt(0)")
        lentry = self.b.uid("L_ent")
        I(f"""
        s_waitcnt vmcnt(12)
        s_barrier
        s_branch {lhk[4]}
        {lentry}:
        s_add_u32 s{SKS}, s{SKS}, {4*KVT}
        s_add_u32 m0, s{SKL}, {3*4*KVT}
        """)
        self.stamp("loop_in")
        I(f"{lp}:")
        for i in range(16): body(i)
        I(f"s_cmp_lg_u32 s{cnt}, 0\ns_cbranch_scc1 {lp}")
        self.stamp("loop_out")
        C("drain: iteration 64 (V_63)")
        I("s_waitcnt lgkmcnt(0)")
        body(0, qk=False)
        I(f"s_cmp_lg_u32 s{self.S_SLOW}, 0\ns_cbranch_scc1 {lab_slow}\ns_branch {lab_done}")
        I(f"{lhk[4]}:")
        self.hook_body(hooks, 16)
        I(f"s_branch {lentry}")
        for part in range(4):
            I(f"{lhk[part]}:")
            ks = [k for k in sorted(hooks, reverse=True) if (16 - k) % 4 == part and k != 16]
            for n_, k in enumerate(ks):
                nx = None
                if n_ < len(ks) - 1:
                    nx = self.b.uid("L_hk")
                    I(f"s_cmp_lg_u32 s{cnt}, {k}\ns_cbranch_scc1 {nx}")
                self.hook_body(hooks, k)
                I(f"s_branch {lback[part]}")
                if nx: I(f"{nx}:")
            if not ks: I(f"s_branch {lback[part]}")
        I(f"{lab_slow}:")
        for r in range(16): I(f"v_mov_b32 v{OA+r}, 0\nv_mov_b32 v{OB+r}, 0")
        MA_, MB_, T0 = AT+4, AT+5, AT+6
        I(f"v_mov_b32 v{MA_}, 0xff7fffff\nv_mov_b32 v{MB_}, 0xff7fffff")
        I(f"s_mov_b32 s{sK}, {KV}\ns_mov_b32 s{cnt}, 64")
        lp2 = self.b.uid("L_atts")
        I(f"{lp2}:")
        k0, v0 = kreg(0), vreg(0)
        I(f"""
        buffer_load_dwordx4 {ar(k0)}, v{V_L16}, {sr(S_WS)}, s{sK} offen
        buffer_load_dwordx2 a[{k0+4}:{k0+5}], v{vK1}, {sr(S_WS)}, s{sK} offen offset:1024
        buffer_load_dwordx4 {ar(v0)}, v{V_L16}, {sr(S_WS)}, s{sK} offen offset:1280
        buffer_load_dwordx4 {ar(v0+4)}, v{V_L16}, {sr(S_WS)}, s{sK} offen offset:2304
        s_add_u32 s{sK}, s{sK}, {KVT}
        s_waitcnt vmcnt(0)
        """)
        for (S, P, O, Q0, Q1, Mx) in ((SA, PA, OA, QA0, QA1, MA_), (SB, PB, OB, QB0, QB1, MB_)):
            I(f"{M16} {vr(S,16)}, {ar(kreg(0))}, {vr(Q0)}, 0")
            I(f"{M8} {vr(S,16)}, a[{kreg(0)+4}:{kreg(0)+5}], v[{Q1}:{Q1+1}], {vr(S,16)}")
            I(f"v_max3_f32 v{T0}, v{S}, v{S+1}, v{S+2}")
            for r in range(3, 15, 2): I(f"v_max3_f32 v{T0}, v{T0}, v{S+r}, v{S+r+1}")
            I(f"v_max_f32 v{T0}, v{T0}, v{S+15}")
            I(f"v_mov_b32 v{T0+1}, v{T0}\nv_permlane32_swap_b32 v{T0}, v{T0+1}\nv_max_f32 v{T0}, v{T0}, v{T0+1}")
            I(f"v_max_f32 v{T0}, v{T0}, v{Mx}")
            I(f"v_sub_f32 v{T0+1}, v{Mx}, v{T0}\nv_exp_f32 v{T0+1}, v{T0+1}\nv_mov_b32 v{Mx}, v{T0}")
            for r in range(16): I(f"v_mul_f32 v{O+r}, v{O+r}, v{T0+1}")
            for r in range(16): I(f"v_sub_f32 v{S+r}, v{S+r}, v{T0}")
            for q in range(4): exps(S, P, q)
            I(f"{M16} {vr(O,16)}, {ar(vreg(0))}, {vr(P)}, {vr(O,16)}")
            I(f"{M16} {vr(O,16)}, {ar(vreg(0)+4)}, {vr(P+4)}, {vr(O,16)}")
        I(f"s_sub_u32 s{cnt}, s{cnt}, 1\ns_cmp_lg_u32 s{cnt}, 0\ns_cbranch_scc1 {lp2}")
        I(f"{lab_done}:")
        I("s_waitcnt vmcnt(0)\ns_barrier")
        self.stamp("attn")
        self.mod_fetch()
        self.ring_state_after_attn()
        C("normalise and store O in the B-fragment layout of the wo GEMM")
        T = AT
        PK = SA
        I(f"""
        v_lshlrev_b32 v{self.V_L8}, 3, v{V_L}
        s_mul_i32 s{ST}, s{S_WV}, 3072
        s_add_u32 s{ST}, s{ST}, {144*1024}
        v_mul_u32_u24 v{T}, 176, v{V_T}
        v_add_u32 v{T}, s{ST}, v{T}
        v_lshl_add_u32 v{T+1}, v{V_G}, 3, v{T}
        v_bfe_u32 v{T+4}, v{V_L}, 4, 1
        v_mul_u32_u24 v{T+4}, 40, v{T+4}
        v_add_u32 v{T}, v{T}, v{T+4}
        v_lshrrev_b32 v{T+4}, 5, v{V_L}
        v_lshl_add_u32 v{T}, v{T+4}, 3, v{T}
        """)
        for (O, u) in ((OA, 0), (OB, 1)):
            I(f"v_mov_b32 v{T+2}, v{O+8}\nv_mov_b32 v{T+3}, v{O+8}\nv_permlane32_swap_b32 v{T+2}, v{T+3}")
            I(f"v_rcp_f32 v{T+3}, v{T+3}")
            for run in range(3):
                a = O + 4*run
                for r in range(4): I(f"v_mul_f32 v{a+r}, v{a+r}, v{T+3}")
                I(f"v_cvt_pk_bf16_f32 v{a}, v{a}, v{a+1}\nv_cvt_pk_bf16_f32 v{a+1}, v{a+2}, v{a+3}")
                if run == 2: I(f"s_mov_b32 exec_hi, 0")
                I(f"ds_write_b64 v{T}, v[{a}:{a+1}] offset:{80*u + 16*run}")
                if run == 2: I(f"s_mov_b32 exec_hi, -1")
        I("s_waitcnt lgkmcnt(0)")
        for j in range(5):
            I(f"ds_read_b64 v[{PK+2*j}:{PK+2*j+1}], v{T+1} offset:{32*j}")
        I(f"s_mul_i32 s{self.S_T5}, s{S_M}, 5")
        self.tile_base(ST+4, S_TT, 20, OF)
        I("s_waitcnt lgkmcnt(0)")
        self.store_frag(PK, 5, ST+4, self.S_T5)
        self.publish(PH_O); self.vm_drained()
        self.refill(); self.drip(4)
        self.stamp("opub")

    def dual(self, fn):
        I = self.I
        ls = self.b.uid("L_sl"); lj = self.b.uid("L_sj")
        I(f"s_cmp_eq_u32 s{S_FAST}, 0\ns_cbranch_scc1 {ls}")
        fn("")
        I(f"s_branch {lj}\n{ls}:")
        fn(" sc1")
        I(f"{lj}:")

    def xid_publish(self):
        I = self.I
        lab = self.b.uid("L_xp")
        I(f"""
        s_cmp_lg_u32 s{S_WV}, 0
        s_cbranch_scc1 {lab}
        s_getreg_b32 s{ST}, hwreg(HW_REG_XCC_ID)
        s_and_b32 s{ST}, s{ST}, 15
        v_mov_b32 v252, s{ST}
        v_mov_b32 v253, 0
        v_mov_b32 v254, s{S_TAG}
        v_mov_b32 v255, s{S_TAG+1}
        s_lshl_b32 s{ST}, s{S_RB}, 7
        s_lshl_b32 s{ST+1}, s{S_M}, 4
        s_add_u32 s{ST}, s{ST}, s{ST+1}
        s_add_u32 s{ST}, s{ST}, {XIDG}
        v_mov_b32 v251, s{ST}
        s_mov_b64 exec, 1
        buffer_store_dwordx4 v[252:255], v251, {sr(S_WS)}, 0 offen sc1
        s_mov_b64 exec, -1
        {lab}:
        """)

    XV = 240
    def xid_issue(self):
        I = self.I
        I(f"""
        s_and_b32 s{ST+5}, s{S_RB}, 28
        s_lshl_b32 s{ST+5}, s{ST+5}, 7
        s_add_u32 s{ST+5}, s{ST+5}, {XIDG}
        v_and_b32 v251, 31, v{V_L}
        v_lshlrev_b32 v251, 4, v251
        buffer_load_dwordx4 {vr(self.XV)}, v251, {sr(S_WS)}, s{ST+5} offen sc1
        """)

    def xid_eval(self):
        I = self.I
        X = self.XV
        lp = self.b.uid("L_xc"); ok = self.b.uid("L_xcok")
        I(f"""
        s_mov_b32 s{ST+4}, {TIMEOUT}
        {lp}:
        v_cmp_ne_u32 vcc, s{S_TAG}, v{X+2}
        s_mov_b64 s[{ST+6}:{ST+7}], vcc
        v_cmp_ne_u32 vcc, s{S_TAG+1}, v{X+3}
        s_or_b64 s[{ST+6}:{ST+7}], s[{ST+6}:{ST+7}], vcc
        s_cmp_eq_u64 s[{ST+6}:{ST+7}], 0
        s_cbranch_scc1 {ok}
        """)
        self.xid_issue()
        I("s_waitcnt vmcnt(0)")
        self.spin_tail(ST+4, lp, 14)
        I(f"""
        {ok}:
        s_getreg_b32 s{ST+4}, hwreg(HW_REG_XCC_ID)
        s_and_b32 s{ST+4}, s{ST+4}, 15
        v_cmp_ne_u32 vcc, s{ST+4}, v{X}
        s_cmp_eq_u64 vcc, 0
        s_cselect_b32 s{S_FAST}, {0 if self.force_global else 1}, 0
        """)

    def rl_poll_issue(self):
        I = self.I
        lab = self.b.uid("L_rpi")
        T = 232
        I(f"s_cmp_lg_u32 s{S_WV}, 0\ns_cbranch_scc1 {lab}\nv_lshlrev_b32 v250, 7, v{V_L}")
        for i in range(4):
            I(f"s_mov_b32 s{ST+5}, {RLFLAG + i*8192}\nbuffer_load_dwordx2 v[{T+2*i}:{T+1+2*i}], v250, {sr(S_WS)}, s{ST+5} offen sc1")
        I(f"{lab}:")

    def rl_poll_eval(self):
        I = self.I
        lab = self.b.uid("L_rw"); lp = self.b.uid("L_rwp"); ok = self.b.uid("L_rwok")
        T = 232
        I(f"s_cmp_lg_u32 s{S_WV}, 0\ns_cbranch_scc1 {lab}\ns_mov_b32 s{ST+4}, {TIMEOUT}\n{lp}:\ns_mov_b64 s[{ST+6}:{ST+7}], 0")
        for i in range(4):
            I(f"""
            v_cmp_ne_u32 vcc, s{S_TAG}, v{T+2*i}
            s_or_b64 s[{ST+6}:{ST+7}], s[{ST+6}:{ST+7}], vcc
            v_cmp_ne_u32 vcc, s{S_TAG+1}, v{T+1+2*i}
            s_or_b64 s[{ST+6}:{ST+7}], s[{ST+6}:{ST+7}], vcc
            """)
        I(f"s_cmp_eq_u64 s[{ST+6}:{ST+7}], 0\ns_cbranch_scc1 {ok}")
        self.rl_poll_issue()
        I("s_waitcnt vmcnt(0)")
        self.spin_tail(ST+4, lp, 4)
        I(f"{ok}:\n{lab}:\ns_barrier")

    def publish(self, ph, both=False, vmn=0):
        I = self.I
        lab = self.b.uid("L_pub")
        I(f"""
        s_waitcnt vmcnt({vmn})
        s_barrier
        s_cmp_lg_u32 s{S_WV}, 0
        s_cbranch_scc1 {lab}
        v_mov_b32 v254, s{S_TAG}
        v_mov_b32 v255, s{S_TAG+1}
        s_lshl_b32 s{ST}, s{S_RB}, 7
        s_lshl_b32 s{ST+1}, s{S_M}, 3
        s_add_u32 s{ST}, s{ST}, s{ST+1}
        s_add_u32 s{ST}, s{ST}, {CFLAG + ph*4096}
        v_mov_b32 v253, s{ST}
        s_mov_b32 s{ST+1}, 32768
        s_mov_b64 exec, 1
        """)
        def st(f):
            if f == "":
                I(f"buffer_store_dwordx2 v[254:255], v253, {sr(S_WS)}, s{ST+1} offen")
                if both: I(f"buffer_store_dwordx2 v[254:255], v253, {sr(S_WS)}, 0 offen sc1")
            else:
                I(f"buffer_store_dwordx2 v[254:255], v253, {sr(S_WS)}, 0 offen sc1")
        self.dual(st)
        I(f"s_mov_b64 exec, -1\n{lab}:")

    def publish_drip(self, ph, both=False):
        if self.detail == 2: self.stamp(f"e_sto{ph}")
        n0 = len(self.vmq)
        self.drip(self.pub_drip)
        n = len(self.vmq) - n0
        self.publish(ph, both=both, vmn=n)
        self.vmq = self.vmq[len(self.vmq)-n:] if n else []
        self.after_barrier()
        self.refill()
        self.drip(self.pub_after)

    def wait_flags(self, ph, rbs, code, between=None):
        I = self.I
        lab = self.b.uid("L_wf"); lp = self.b.uid("L_wfp"); ok = self.b.uid("L_wfok")
        I(f"s_cmp_lg_u32 s{S_WV}, 0\ns_cbranch_scc1 {lab}")
        I(f"v_lshrrev_b32 v250, 3, v{V_L}\nv_and_b32 v250, 3, v250\nv_mov_b32 v251, s{rbs[0]}")
        for i, r in enumerate(rbs[1:], 1):
            I(f"v_cmp_eq_u32 vcc, {i}, v250\nv_mov_b32 v252, s{r}\nv_cndmask_b32 v251, v251, v252, vcc")
        I(f"""
        v_lshrrev_b32 v250, 2, v251
        s_lshr_b32 s{ST}, s{S_RB}, 2
        v_cmp_eq_u32 vcc, s{ST}, v250
        s_lshl_b32 s{ST}, s{S_FAST}, 15
        v_mov_b32 v252, s{ST}
        v_cndmask_b32 v250, 0, v252, vcc
        v_lshl_add_u32 v251, v251, 7, v250
        v_and_b32 v252, 7, v{V_L}
        v_lshl_add_u32 v251, v252, 3, v251
        s_mov_b32 s{ST+1}, {CFLAG + ph*4096}
        s_mov_b32 s{ST}, {TIMEOUT}
        {lp}:
        buffer_load_dwordx2 v[254:255], v251, {sr(S_WS)}, s{ST+1} offen sc1
        s_waitcnt vmcnt(0)
        v_cmp_ne_u32 vcc, s{S_TAG}, v254
        s_mov_b64 s[{ST+2}:{ST+3}], vcc
        v_cmp_ne_u32 vcc, s{S_TAG+1}, v255
        s_or_b64 s[{ST+2}:{ST+3}], s[{ST+2}:{ST+3}], vcc
        s_cmp_eq_u64 s[{ST+2}:{ST+3}], 0
        s_cbranch_scc1 {ok}
        """)
        self.spin_tail(ST, lp, code)
        I(f"{ok}:\n{lab}:")

    X2, H = 4, 24
    ACC = 44
    MS_GA = 64
    WB = 100
    MS_A2, MS_SB = 160, 180
    GT = 200
    RING = 160
    F_WO, F_W1, F_W2, F_W3, F_W4 = 0, 100, 200, 304, 448
    NUNITS = 45
    S_T5 = 29
    S_SRC = 30
    S_WA, S_W3 , S_W4 = 90, 91, 92
    S_LW = 93
    S_DM, S_DS, S_AO, S_AO2 = 94, 95, 88, 89

    def vm_issue(self, tag): self.vmq.append(tag)
    def vm_wait(self, tag):
        if tag not in self.vmq: return
        i = len(self.vmq) - 1 - self.vmq[::-1].index(tag)
        n = len(self.vmq) - 1 - i
        self.I(f"s_waitcnt vmcnt({min(n, 63)})")
        self.vmq = self.vmq[i+1:]
    def vm_drained(self): self.vmq = []

    def ring_regs(self):
        I = self.I
        I(f"""
        s_lshl_b32 s{self.S_LW}, s{S_WV}, 12
        s_mul_i32 s{self.S_WA}, s{S_M}, {WSA_M}
        s_add_u32 s{self.S_WA}, s{self.S_WA}, {WSA}
        s_add_u32 s{self.S_WA}, s{self.S_WA}, s{self.S_LW}
        s_and_b32 s{self.S_W3}, s{S_RB}, 1
        s_lshl_b32 s{self.S_W3}, s{self.S_W3}, 3
        s_add_u32 s{self.S_W3}, s{self.S_W3}, s{S_M}
        s_mul_i32 s{self.S_W3}, s{self.S_W3}, {W3S_M}
        s_add_u32 s{self.S_W3}, s{self.S_W3}, {W3S}
        s_add_u32 s{self.S_W3}, s{self.S_W3}, s{self.S_LW}
        s_mul_i32 s{self.S_W4}, s{S_M}, {W4S_M}
        s_add_u32 s{self.S_W4}, s{self.S_W4}, {W4S}
        s_add_u32 s{self.S_W4}, s{self.S_W4}, s{self.S_LW}
        """)

    def refill(self, maxn=99):
        n = 0
        while self.units_queued < self.NUNITS and n < maxn:
            u = self.units_queued
            if 16*u + 15 - self.RING > self.consumed: break
            for q in range(4):
                self.pend.append((("u", u, q), (lambda u=u, q=q: self.emit_dma(u, q))))
            self.units_queued += 1; n += 1
        self.resort()

    def resort(self):
        ctx = getattr(self, "loop_ctx", None)
        if ctx is None: return
        F0, NT, S = ctx
        def key(e):
            t = e[0]
            if t[0] == "a": return t[2]
            F = 16*t[1]
            if F + 15 < F0: return -100
            st = max(0, (F - F0)//NT)
            if st >= S: return 1000 + t[1]
            return 4*(st//4) - 2 - 1
        self.pend.sort(key=key)

    def emit_dma(self, u, q, track=True):
        I = self.I
        if q == 0:
            F = 16*u
            if F < 304: base, off = self.S_WA, F*1024
            elif F < 448: base, off = self.S_W3, (F-304)*1024
            else: base, off = self.S_W4, (F-448)*1024
            slot = (F % self.RING)*1024
            I(f"s_add_u32 s{self.S_DM}, s{self.S_LW}, {slot}\ns_mov_b32 m0, s{self.S_DM}\ns_add_u32 s{self.S_DS}, s{base}, {off}")
        I(f"buffer_load_dwordx4 v{V_L16}, {sr(S_WS)}, s{self.S_DS} offen offset:{1024*q} lds")
        if track:
            self.vm_issue(("u", u) if q == 3 else ("ux", u, q))
            if q == 3: self.units_issued = u + 1

    def drip(self, n=1):
        while n > 0 and self.pend:
            tag, fn = self.pend.pop(0)
            fn(); n -= 1

    def flush_until(self, tag):
        if not any(t == tag for t, _ in self.pend): return
        while True:
            t, fn = self.pend.pop(0)
            fn()
            if t == tag: return

    def need_units(self, Fmax):
        u = Fmax // 16
        assert u < self.units_queued, (u, self.units_queued)
        self.flush_until(("u", u, 3))
        self.vm_wait(("u", u))

    def gemm(self, S, NT, F0, aops, abases, burst, rate, cap=99, post_barrier=True, resident=False, chunk=4):
        I = self.I
        WB, ACC, T = self.WB, self.ACC, self.GT
        nt = len(abases)
        vb = [T, T+1, T+2]
        stride = 4*NT
        def rd1(s, j):
            off = ((F0 + s*NT + j) % self.RING)*1024
            k, o = divmod(off, 61440)
            I(f"ds_read_b128 {vr(WB + stride*(s % 3) + 4*j)}, v{vb[k]} offset:{o}")
        while self.pend and self.pend[0][0][0] == "u" and self.pend[0][0][2] != 0: self.drip(1)
        keep = []
        if resident:
            keep = [e for e in self.pend if e[0][0] == "u"]
            self.pend = []
        self.pend = list(aops) + self.pend
        self.loop_ctx = (F0, NT, S)
        if not resident: self.refill(cap)
        self.drip(burst)
        for j in range(NT): rd1(0, j)
        for j in range(NT): rd1(1, j)
        acc_rate = 0.0
        for s in range(S):
            if not resident and s + 2 < S and (s + 2) % chunk == 0:
                last = min(S, s + 2 + chunk) - 1
                if F0 + last*NT + NT - 1 > self.visible or self.units_queued < self.NUNITS:
                    self.need_units(F0 + last*NT + NT - 1)
                    I("s_barrier")
                    self.visible = max(self.visible, F0 + last*NT + NT - 1)
                    self.consumed = max(self.consumed, F0 + (s-1)*NT + NT - 1)
                    self.refill(cap)
            if self.detail == F0 and s % 4 == 0: self.stamp(f"d_k{s}")
            nout = NT if s + 1 < S else 0
            I(f"s_waitcnt lgkmcnt({min(nout, 15)})")
            for tt in range(nt):
                self.flush_until(("a", tt, s))
                self.vm_wait(("a", tt, s))
            acc_rate += rate
            nm = nt*NT
            slots = []
            while acc_rate >= 1.0:
                slots.append(1); acc_rate -= 1.0
            pos = {(k*nm)//max(1, len(slots)) : 0 for k in range(len(slots))}
            for k in range(len(slots)): pos[(k*nm)//len(slots)] += 1
            i = 0
            for tt in range(nt):
                for j in range(NT):
                    c = '0' if s == 0 else vr(ACC+4*(tt*NT+j))
                    I(f"v_mfma_f32_16x16x32_bf16 {vr(ACC+4*(tt*NT+j))}, {vr(WB+stride*(s%3)+4*j)}, {ar(abases[tt]+4*s)}, {c}")
                    if i < NT and s + 2 < S: rd1(s+2, i)
                    if pos.get(i): self.drip(pos[i])
                    i += 1
        self.pending_consumed = {299: 303, 443: 447}.get(F0 + S*NT - 1, F0 + S*NT - 1)
        self.loop_ctx = None
        self.pend = self.pend + keep
        if post_barrier:
            I("s_barrier")
            self.after_barrier()
            self.refill()
            self.drip(self.post_drip)

    def after_barrier(self):
        self.consumed = max(self.consumed, getattr(self, "pending_consumed", -1))

    def lds_bases(self):
        T = self.GT
        self.I(f"v_mov_b32 v{T}, v{V_L16}\nv_add_u32 v{T+1}, 61440, v{V_L16}\nv_add_u32 v{T+2}, {2*61440}, v{V_L16}")

    def a_op(self, tt, s, abase, vaddr, base_sreg, base_add, soff_reg, split=(), vaddr8=None):
        def fn():
            if s % 4 == 0:
                if base_sreg is None: self.I(f"s_mov_b32 s{soff_reg}, {base_add + 1024*s}")
                else: self.I(f"s_add_u32 s{soff_reg}, s{base_sreg}, {base_add + 1024*s}")
            r = abase + 4*s
            if s in split:
                self.I(f"buffer_load_dwordx2 a[{r}:{r+1}], v{vaddr8}, {sr(S_WS)}, s{soff_reg} offen offset:{1024*(s % 4)} sc1")
                self.vm_issue(("ah", tt, s))
                self.I(f"buffer_load_dwordx2 a[{r+2}:{r+3}], v{vaddr8}, {sr(S_WS)}, s{soff_reg} offen offset:{1024*(s % 4)+512} sc1")
            else:
                self.I(f"buffer_load_dwordx4 {ar(r)}, v{vaddr}, {sr(S_WS)}, s{soff_reg} offen offset:{1024*(s % 4)} sc1")
            self.vm_issue(("a", tt, s))
        return (("a", tt, s), fn)

    RAW_GA, RAW_SB, RAW_CB, RAW_GB = 140, 150, 214, 240
    def mod_fetch(self):
        I = self.I
        I(f"v_lshlrev_b32 v244, 4, v{V_G}\nv_add_u32 v244, {self.L_MODW}, v244")
        for (dst, off, acc) in ((self.RAW_GA, 0, False), (self.RAW_SB, 2560, False), (self.RAW_CB, 4096, False), (self.RAW_GB, 4096+2560, True)):
            for j in range(5):
                r = f"a[{dst+2*j}:{dst+2*j+1}]" if acc else f"v[{dst+2*j}:{dst+2*j+1}]"
                I(f"ds_read_b64 {r}, v244 offset:{off + 64*j}")

    def mod_unpack(self):
        I = self.I
        for src, dst in ((self.RAW_GA, self.MS_GA), (self.RAW_SB, self.MS_SB), (self.RAW_CB, self.MS_A2)):
            for i in range(10):
                I(f"v_lshlrev_b32 v{dst+2*i}, 16, v{src+i}\nv_and_b32 v{dst+2*i+1}, 0xffff0000, v{src+i}")
        self.one_plus_bf16(self.MS_A2, 20)

    def one_plus_bf16(self, r, n):
        I = self.I
        for i in range(0, n, 2):
            I(f"""
            v_add_f32 v{r+i}, 1.0, v{r+i}
            v_add_f32 v{r+i+1}, 1.0, v{r+i+1}
            v_cvt_pk_bf16_f32 v{r+i}, v{r+i}, v{r+i+1}
            v_and_b32 v{r+i+1}, 0xffff0000, v{r+i}
            v_lshlrev_b32 v{r+i}, 16, v{r+i}
            """)

    def ln_stats(self, src, which, mu, rs, code):
        I = self.I
        T = self.GT + 4
        I(f"v_add_f32 v{T}, v{src}, v{src+1}\nv_mul_f32 v{T+1}, v{src}, v{src}\nv_mul_f32 v{T+3}, v{src+1}, v{src+1}")
        I(f"v_add_f32 v{T+2}, v{src+2}, v{src+3}")
        for i in range(2, 20):
            I(f"v_fmac_f32 v{T+1+2*(i&1)}, v{src+i}, v{src+i}")
            if i >= 4: I(f"v_add_f32 v{T+2*(i&1)}, v{T+2*(i&1)}, v{src+i}")
        I(f"v_add_f32 v{T}, v{T}, v{T+2}\nv_add_f32 v{T+1}, v{T+1}, v{T+3}")
        self.reduce_g([T, T+1], T+4)
        I(f"""
        v_mov_b32 v{T+2}, s{S_TAG}
        v_mov_b32 v{T+3}, s{S_TAG+1}
        s_lshl_b32 s{ST+4}, s{S_RB}, 13
        s_lshl_b32 s{ST+5}, s{S_WV}, 8
        s_add_u32 s{ST+4}, s{ST+4}, s{ST+5}
        s_add_u32 s{ST+4}, s{ST+4}, {STAT + which*STAT_SZ}
        s_lshl_b32 s{ST+5}, s{S_M}, 10
        s_add_u32 s{ST+5}, s{ST+5}, s{ST+4}
        v_lshlrev_b32 v{T+4}, 4, v{V_T}
        s_mov_b64 exec, 0xffff
        """)
        self.dual(lambda f: I(f"buffer_store_dwordx4 {vr(T)}, v{T+4}, {sr(S_WS)}, s{ST+5} offen{f}"))
        I("s_mov_b64 exec, -1")
        if self.detail == 2: self.stamp(f"e_st{which}")
        I(f"""
        s_mov_b64 exec, -1
        v_lshl_add_u32 v{T+5}, v{V_G}, 11, v{T+4}
        s_mov_b32 s{ST}, {TIMEOUT}
        """)
        lp = self.b.uid("L_ls"); ok = self.b.uid("L_lsok")
        I(f"""
        {lp}:
        buffer_load_dwordx4 {vr(T+8)}, v{T+5}, {sr(S_WS)}, s{ST+4} offen sc1
        buffer_load_dwordx4 {vr(T+12)}, v{T+5}, {sr(S_WS)}, s{ST+4} offen offset:1024 sc1
        s_waitcnt vmcnt(0)
        v_cmp_ne_u32 vcc, s{S_TAG}, v{T+10}
        s_mov_b64 s[{ST+2}:{ST+3}], vcc
        v_cmp_ne_u32 vcc, s{S_TAG+1}, v{T+11}
        s_or_b64 s[{ST+2}:{ST+3}], s[{ST+2}:{ST+3}], vcc
        v_cmp_ne_u32 vcc, s{S_TAG}, v{T+14}
        s_or_b64 s[{ST+2}:{ST+3}], s[{ST+2}:{ST+3}], vcc
        v_cmp_ne_u32 vcc, s{S_TAG+1}, v{T+15}
        s_or_b64 s[{ST+2}:{ST+3}], s[{ST+2}:{ST+3}], vcc
        s_cmp_eq_u64 s[{ST+2}:{ST+3}], 0
        s_cbranch_scc1 {ok}
        """)
        self.spin_tail(ST, lp, code)
        self.vm_drained()
        I(f"{ok}:")
        if self.detail == 2: self.stamp(f"e_got{which}")
        I(f"""
        v_add_f32 v{T}, v{T+8}, v{T+12}
        v_add_f32 v{T+1}, v{T+9}, v{T+13}
        """)
        self.reduce_g([T, T+1], T+4)
        I(f"""
        v_mul_f32 v{mu}, {1.0/640!r}, v{T}
        v_mul_f32 v{T+1}, {1.0/640!r}, v{T+1}
        v_fma_f32 v{T+1}, -v{mu}, v{mu}, v{T+1}
        v_max_f32 v{T+1}, 0, v{T+1}
        v_add_f32 v{T+1}, 0x3727c5ac, v{T+1}
        v_rsq_f32 v{rs}, v{T+1}
        """)

    V_L8 = 203
    SPLIT20 = (2, 7, 12, 17)
    SPLIT54 = (3, 10, 17, 24, 31, 38)
    def pack_tiles(self, src, ntile, dst=None):
        if dst is None: dst = src
        for j in range(ntile):
            a = src + 4*j; d = dst + 2*j
            self.I(f"v_cvt_pk_bf16_f32 v{d}, v{a}, v{a+1}\nv_cvt_pk_bf16_f32 v{d+1}, v{a+2}, v{a+3}")

    def store_frag(self, pk, ntile, base_sreg, tile0_sreg, skip_last_sreg=None, force_sc1=False, count=True):
        I = self.I
        lodd = self.b.uid("L_so"); lj = self.b.uid("L_sj")
        I(f"""
        s_lshr_b32 s{ST+5}, s{tile0_sreg}, 1
        s_lshl_b32 s{ST+5}, s{ST+5}, 10
        s_add_u32 s{ST+5}, s{ST+5}, s{base_sreg}
        s_bitcmp1_b32 s{tile0_sreg}, 0
        s_cbranch_scc1 {lodd}
        """)
        def variant(odd, f):
            if not odd:
                for p in range(ntile//2):
                    I(f"buffer_store_dwordx4 {vr(pk+4*p)}, v{V_L16}, {sr(S_WS)}, s{ST+5} offen offset:{1024*p}{f}")
                if ntile % 2:
                    lab = None
                    if skip_last_sreg is not None:
                        lab = self.b.uid("L_sk")
                        I(f"s_cmp_lg_u32 s{skip_last_sreg}, 0\ns_cbranch_scc1 {lab}")
                    j = ntile-1
                    I(f"buffer_store_dwordx2 v[{pk+2*j}:{pk+2*j+1}], v{self.V_L8}, {sr(S_WS)}, s{ST+5} offen offset:{1024*(ntile//2)}{f}")
                    if lab: I(f"{lab}:")
            else:
                I(f"buffer_store_dwordx2 v[{pk}:{pk+1}], v{self.V_L8}, {sr(S_WS)}, s{ST+5} offen offset:512{f}")
                for p in range(ntile//2):
                    I(f"buffer_store_dwordx4 {vr(pk+2+4*p)}, v{V_L16}, {sr(S_WS)}, s{ST+5} offen offset:{1024*(p+1)}{f}")
        if force_sc1: variant(False, " sc1")
        else: self.dual(lambda f: variant(False, f))
        I(f"s_branch {lj}\n{lodd}:")
        if force_sc1: variant(True, " sc1")
        else: self.dual(lambda f: variant(True, f))
        I(f"{lj}:")
        if count:
            for j in range(ntile//2): self.vm_issue(("st",))

    def tile_base(self, dst_sreg, tt_sreg, S, base_off):
        self.I(f"s_mul_i32 s{dst_sreg}, s{tt_sreg}, {S*1024}\ns_add_u32 s{dst_sreg}, s{dst_sreg}, {base_off}")

    def gelu(self, r, n, drip=0):
        I = self.I
        T = self.GT + 4
        c1 = -2.0 * 0.7978845608028654 * 1.4426950408889634
        c2 = c1 * 0.044715
        I(f"s_mov_b32 s{ST+8}, {hex(f2u(c1))}\ns_mov_b32 s{ST+9}, {hex(f2u(c2))}\nv_mov_b32 v{T+8}, s{ST+8}")
        for i in range(0, n, 4):
            for q in range(4): I(f"v_mul_f32 v{T+q}, v{r+i+q}, v{r+i+q}")
            for q in range(4): I(f"v_fma_f32 v{T+q}, v{T+q}, s{ST+9}, v{T+8}")
            for q in range(4): I(f"v_mul_f32 v{T+q}, v{T+q}, v{r+i+q}")
            for q in range(4): I(f"v_exp_f32 v{T+q}, v{T+q}")
            for q in range(4): I(f"v_add_f32 v{T+q}, 1.0, v{T+q}")
            for q in range(4): I(f"v_rcp_f32 v{T+q}, v{T+q}")
            for q in range(4): I(f"v_mul_f32 v{r+i+q}, v{r+i+q}, v{T+q}")
            self.drip(drip)

    def phase_entry(self, ph_wait, rbs, code, F0, NT, between=None, upto=None):
        self.wait_flags(ph_wait, rbs, code)
        if self.detail == F0: self.stamp("d_flags")
        if self.detail == 2: self.stamp(f"e_fl{ph_wait}")
        if between: between()
        last = F0 + 4*NT - 1 if upto is None else upto
        self.need_units(last)
        self.I("s_barrier")
        self.visible = max(getattr(self, "visible", -1), last)
        if self.detail == F0: self.stamp("d_bar")
        self.after_barrier()

    def small_gemm(self, F0, act, ph_wait, rbs, code, shift=False, between=None, pf=()):
        I, C = self.I, self.C
        self.phase_entry(ph_wait, rbs, code, F0, 5, between, upto=(F0+99 if self.resident else None))
        if not shift:
            I(f"s_mul_i32 s{self.S_SRC}, s{S_TT}, {20*1024}\ns_add_u32 s{self.S_SRC}, s{self.S_SRC}, {act}")
            aops = [self.a_op(0, s, 16, V_L16, self.S_SRC, 0, self.S_AO, self.SPLIT20, self.V_L8) for s in range(20)]
        else:
            T = self.GT + 8
            I(f"s_lshl_b32 s{ST+4}, s{S_TT}, 4\ns_lshr_b32 s{ST+5}, s{S_RB}, 2")
            for q, dl in enumerate((-1, 1, -2, 2)):
                side = 1 if dl < 0 else 0
                I(f"""
                v_add_u32 v{T+4}, s{ST+4}, v{V_T}
                v_add_u32 v{T+4}, {dl & 0xffffffff}, v{T+4}          ; token'
                v_lshrrev_b32 v{T+5}, 4, v{T+4}
                v_mul_u32_u24 v{T+5}, 20480, v{T+5}
                v_add_u32 v{T+5}, {act}, v{T+5}
                v_lshrrev_b32 v{T+6}, 8, v{T+4}
                v_lshlrev_b32 v{T+7}, 1, v{T+6}
                v_add_u32 v{T+7}, {side}, v{T+7}
                v_mul_u32_u24 v{T+7}, 20480, v{T+7}
                v_add_u32 v{T+7}, {HG}, v{T+7}
                v_cmp_eq_u32 vcc, s{ST+5}, v{T+6}
                v_cndmask_b32 v{T+5}, v{T+7}, v{T+5}, vcc
                v_and_b32 v{T+6}, 15, v{T+4}
                v_lshl_add_u32 v{T+6}, v{V_G}, 4, v{T+6}              ; g*16 + t'
                v_lshl_add_u32 v{T+7}, v{T+6}, 3, v{T+5}
                v_lshl_add_u32 v{T+5}, v{T+6}, 4, v{T+5}
                v_cmp_gt_u32 vcc, 0x800, v{T+4}
                v_mov_b32 v{T+6}, 0x80000000
                v_cndmask_b32 v{T+q}, v{T+6}, v{T+5}, vcc
                v_cndmask_b32 v{self.GT+20+q}, v{T+6}, v{T+7}, vcc
                """)
            aops = [self.a_op(0, s, 16, T + s // 5, None, 0, self.S_AO, self.SPLIT20, self.GT + 20 + s // 5) for s in range(20)]
        if self.use_pf: aops += [(("a", 9, 19), (lambda p=p: self.pf_op(*p))) for p in pf]
        if (self.h4t_where == 1 and F0 == self.F_W1) or (self.h4t_where == 2 and F0 == self.F_W2) or (self.h4t_where == 4 and F0 == self.F_WO):
            def h4t():
                self.act_touch(H4F, 54*1024); self.vm_issue(("pf",))
            aops.append((("a", 9, 19), h4t))
        self.gemm(20, 5, F0, aops, [16], burst=self.burst, rate=self.rate_small, cap=self.cap_small, resident=self.resident)

    def phase_wo(self):
        I, C = self.I, self.C
        X2, H, ACC, T = self.X2, self.H, self.ACC, self.GT
        self.lds_bases()
        self.mod_unpack()
        self.small_gemm(self.F_WO, OF, PH_O, [S_RB], 6, pf=[("3", 0)])
        self.stamp("wo_mm")
        for j in range(5):
            for q in range(2):
                I(f"v_accvgpr_read_b32 v{T+4}, a{2*j+q}")
                I(f"v_lshlrev_b32 v{X2+4*j+2*q}, 16, v{T+4}\nv_and_b32 v{X2+4*j+2*q+1}, 0xffff0000, v{T+4}")
        for i in range(20): I(f"v_fmac_f32 v{X2+i}, v{self.MS_GA+i}, v{ACC+i}")
        mu, rs = T+30, T+31
        self.ln_stats(X2, 0, mu, rs, 7)
        self.drip(self.epi_drip)
        I(f"v_mul_f32 v{mu}, v{mu}, v{rs}")
        for i in range(20):
            I(f"v_fma_f32 v{H+i}, v{X2+i}, v{rs}, -v{mu}")
            I(f"v_fma_f32 v{H+i}, v{H+i}, v{self.MS_A2+i}, v{self.MS_SB+i}")
        self.ln_stats(H, 1, mu, rs, 8)
        self.drip(self.epi_drip2)
        I(f"v_mul_f32 v{mu}, v{mu}, v{rs}")
        for i in range(20): I(f"v_fma_f32 v{ACC+i}, v{H+i}, v{rs}, -v{mu}")
        self.pack_tiles(ACC, 5)
        self.tile_base(ST+4, S_TT, 20, L2F)
        self.store_frag(ACC, 5, ST+4, self.S_T5)
        self.publish_drip(PH_L2)
        self.stamp("l2pub")

    def phase_w1(self):
        I = self.I
        self.small_gemm(self.F_W1, L2F, PH_L2, [S_RB], 9, pf=[("3", 1)])
        self.stamp("w1_mm")
        self.gelu(self.ACC, 20, drip=self.gd1)
        self.pack_tiles(self.ACC, 5)
        self.tile_base(ST+4, S_TT, 20, GF)
        self.store_frag(self.ACC, 5, ST+4, self.S_T5)
        lab = self.b.uid("L_hal")
        I(f"""
        s_and_b32 s{ST+6}, s{S_TT}, 15
        s_add_u32 s{ST+6}, s{ST+6}, 1
        s_and_b32 s{ST+7}, s{ST+6}, 14
        s_cmp_eq_u32 s{ST+7}, 0
        s_cbranch_scc0 {lab}
        s_lshr_b32 s{ST+7}, s{S_TT}, 4
        s_lshl_b32 s{ST+7}, s{ST+7}, 1
        s_lshr_b32 s{ST+6}, s{ST+6}, 4
        s_add_u32 s{ST+7}, s{ST+7}, s{ST+6}
        s_mul_i32 s{ST+4}, s{ST+7}, 20480
        s_add_u32 s{ST+4}, s{ST+4}, {HG}
        """)
        self.store_frag(self.ACC, 5, ST+4, self.S_T5, force_sc1=True, count=False)
        I(f"{lab}:")
        self.publish_drip(PH_G, both=True)
        self.stamp("gpub")

    def phase_w2(self):
        I = self.I
        X2, H, ACC, T = self.X2, self.H, self.ACC, self.GT
        I(f"""
        s_sub_u32 s{ST+10}, s{S_RB}, 1
        s_max_i32 s{ST+10}, s{ST+10}, 0
        s_add_u32 s{ST+11}, s{S_RB}, 1
        s_min_u32 s{ST+11}, s{ST+11}, 31
        """)
        self.small_gemm(self.F_W2, GF, PH_G, [S_RB, ST+10, ST+11], 10, shift=True, pf=[("4", 0)])
        self.stamp("w2_mm")
        for i in range(20): I(f"v_add_f32 v{H+i}, v{H+i}, v{ACC+i}")
        mu, rs = T+30, T+31
        self.ln_stats(H, 2, mu, rs, 11)
        self.drip(self.epi_drip2)
        I(f"v_mul_f32 v{mu}, v{mu}, v{rs}")
        for i in range(20): I(f"v_fma_f32 v{ACC+i}, v{H+i}, v{rs}, -v{mu}")
        self.pack_tiles(ACC, 5)
        self.tile_base(ST+4, S_TT, 20, L3F)
        self.store_frag(ACC, 5, ST+4, self.S_T5)
        self.publish_drip(PH_L3)
        self.stamp("l3pub")

    def phase_w3(self):
        I, C = self.I, self.C
        ACC = self.ACC
        m16, t0, skip, rbA, rbB, ttb = ST+10, ST+11, ST+12, ST+13, ST+14, ST+15
        I(f"""
        s_and_b32 s{m16}, s{S_RB}, 1
        s_lshl_b32 s{m16}, s{m16}, 3
        s_add_u32 s{m16}, s{m16}, s{S_M}
        s_mul_i32 s{t0}, s{m16}, 7
        s_sub_u32 s{ST}, s{m16}, 12
        s_max_i32 s{ST}, s{ST}, 0
        s_sub_u32 s{t0}, s{t0}, s{ST}
        s_cmp_ge_u32 s{m16}, 12
        s_cselect_b32 s{skip}, 1, 0
        s_and_b32 s{rbA}, s{S_RB}, 30
        s_add_u32 s{rbB}, s{rbA}, 1
        s_lshl_b32 s{ttb}, s{rbA}, 2
        s_lshl_b32 s{ST}, s{S_WV}, 1
        s_add_u32 s{ttb}, s{ttb}, s{ST}
        """)
        self.phase_entry(PH_L3, [rbA, rbB], 12, self.F_W3, 7, upto=(self.F_W3+139 if self.resident else None))
        I(f"s_mul_i32 s{self.S_SRC}, s{ttb}, {20*1024}\ns_add_u32 s{self.S_SRC}, s{self.S_SRC}, {L3F}")
        aops = []
        for s in range(20):
            aops.append(self.a_op(0, s, 16, V_L16, self.S_SRC, 0, self.S_AO, self.SPLIT20, self.V_L8))
            aops.append(self.a_op(1, s, 96, V_L16, self.S_SRC, 20*1024, self.S_AO2, self.SPLIT20, self.V_L8))
        if self.use_pf: aops.insert(16, (("a", 9, 8), (lambda: self.pf_op("4", 1))))
        def h4t():
            self.act_touch(H4F, 54*1024); self.vm_issue(("pf",))
        if self.h4t_where == 3: aops.append((("a", 9, 19), h4t))
        self.gemm(20, 7, self.F_W3, aops, [16, 96], burst=2*self.burst, rate=self.rate_w3, resident=self.resident)
        self.stamp("w3_mm")
        self.gelu(ACC, 56, drip=self.gd3)
        self.pack_tiles(ACC, 7)
        self.pack_tiles(ACC+28, 7)
        self.tile_base(ST+4, ttb, 54, H4F)
        self.store_frag(ACC, 7, ST+4, t0, skip_last_sreg=skip)
        I(f"s_add_u32 s{ST+4}, s{ST+4}, {54*1024}")
        self.store_frag(ACC+28, 7, ST+4, t0, skip_last_sreg=skip)
        self.publish_drip(PH_H4)
        self.stamp("h4pub")

    def phase_w4(self):
        I, C = self.I, self.C
        X2, H, ACC, T = self.X2, self.H, self.ACC, self.GT
        rbA, rbB = ST+13, ST+14
        I(f"s_and_b32 s{rbA}, s{S_RB}, 30\ns_add_u32 s{rbB}, s{rbA}, 1")
        self.phase_entry(PH_H4, [rbA, rbB], 13, self.F_W4, 5, upto=(607 if self.resident else None))
        I(f"s_mul_i32 s{self.S_SRC}, s{S_TT}, {54*1024}\ns_add_u32 s{self.S_SRC}, s{self.S_SRC}, {H4F}")
        aops = [self.a_op(0, s, 16, V_L16, self.S_SRC, 0, self.S_AO, self.SPLIT54, self.V_L8) for s in range(54)]
        self.gemm(54, 5, self.F_W4, aops, [16], burst=self.burst4, rate=self.rate_w4, post_barrier=False, chunk=self.chunk4)
        self.stamp("w4_mm")
        MS = self.WB
        for j in range(5):
            I(f"""
            v_accvgpr_read_b32 v{T+4}, a{self.RAW_GB+2*j}
            v_accvgpr_read_b32 v{T+5}, a{self.RAW_GB+2*j+1}
            v_lshlrev_b32 v{MS+4*j}, 16, v{T+4}
            v_and_b32 v{MS+4*j+1}, 0xffff0000, v{T+4}
            v_lshlrev_b32 v{MS+4*j+2}, 16, v{T+5}
            v_and_b32 v{MS+4*j+3}, 0xffff0000, v{T+5}
            """)
        for i in range(20):
            I(f"v_add_f32 v{ACC+i}, v{ACC+i}, v{H+i}\nv_fma_f32 v{ACC+i}, v{ACC+i}, v{MS+i}, v{X2+i}")
        self.srd(S_A, P_OUT, 2048*1280)
        I(f"""
        s_lshl_b32 s{ST}, s{S_TT}, 4
        v_add_u32 v{T+4}, s{ST}, v{V_T}
        v_mul_u32_u24 v{T+4}, 1280, v{T+4}
        v_lshl_add_u32 v{T+4}, v{V_G}, 3, v{T+4}
        s_mul_i32 s{ST}, s{S_M}, 160
        """)
        self.pack_tiles(ACC, 5)
        for j in range(5):
            a = ACC + 2*j
            I(f"buffer_store_dwordx2 v[{a}:{a+1}], v{T+4}, {sr(S_A)}, s{ST} offen offset:{32*j}")
        self.stamp("out")

    def l2_prefetch(self, which, part):
        I = self.I
        T = 246
        rbl = ST + 4
        I(f"v_lshlrev_b32 v{T}, 7, v{V_L}\ns_and_b32 s{rbl}, s{S_RB}, 3")
        if which == "A":
            base, start, chunk, shl = self.S_WA, 160*1024, 4608, 0
        elif which == "3":
            base, start, chunk, shl = self.S_W3, 0, 9216, 1
        else:
            base, start, chunk, shl = self.S_W4, 0, 8704, 0
        I(f"""
        s_lshr_b32 s{ST+5}, s{rbl}, {shl}
        s_lshl_b32 s{ST+5}, s{ST+5}, 2
        s_add_u32 s{ST+5}, s{ST+5}, s{S_WV}
        s_lshl_b32 s{ST+5}, s{ST+5}, 1
        s_add_u32 s{ST+5}, s{ST+5}, {part}
        s_mul_i32 s{ST+5}, s{ST+5}, {chunk}
        s_add_u32 s{ST+5}, s{ST+5}, s{base}
        s_sub_u32 s{ST+5}, s{ST+5}, s{self.S_LW}
        s_add_u32 s{ST+5}, s{ST+5}, {start}
        """)
        if chunk < 8192:
            I(f"v_cmp_gt_u32 vcc, {chunk//128}, v{V_L}\ns_and_saveexec_b64 s[{ST+6}:{ST+7}], vcc")
        I(f"buffer_load_dword a254, v{T}, {sr(S_WS)}, s{ST+5} offen")
        if chunk < 8192:
            I(f"s_mov_b64 exec, s[{ST+6}:{ST+7}]")
        if chunk > 8192:
            I(f"s_add_u32 s{ST+5}, s{ST+5}, 8192\nv_cmp_gt_u32 vcc, {(chunk-8192)//128}, v{V_L}\ns_and_saveexec_b64 s[{ST+6}:{ST+7}], vcc")
            I(f"buffer_load_dword a253, v{T}, {sr(S_WS)}, s{ST+5} offen")
            I(f"s_mov_b64 exec, s[{ST+6}:{ST+7}]")
        return 2 if chunk > 8192 else 1

    def tlb_touch(self):
        I = self.I
        n = (WS_END + (1 << 20) - 1) >> 20
        I(f"""
        v_lshlrev_b32 v245, 20, v{V_L}
        v_cmp_gt_u32 vcc, {n}, v{V_L}
        s_and_saveexec_b64 s[{ST+6}:{ST+7}], vcc
        buffer_load_dword a255, v245, {sr(S_WS)}, 0 offen
        s_mov_b64 exec, s[{ST+6}:{ST+7}]
        """)

    def mall_touch(self, base, nbytes):
        I = self.I
        per_wave = -(-nbytes // 1024 // 128) * 128
        lines = per_wave // 128
        assert lines <= 128
        I(f"""
        v_lshlrev_b32 v245, 7, v{V_L}
        s_lshl_b32 s{ST+5}, s{S_W}, 2
        s_add_u32 s{ST+5}, s{ST+5}, s{S_WV}
        s_mul_i32 s{ST+5}, s{ST+5}, {per_wave}
        s_add_u32 s{ST+5}, s{ST+5}, {base}
        """)
        n0 = min(lines, 64)
        if n0 < 64: I(f"v_cmp_gt_u32 vcc, {n0}, v{V_L}\ns_and_saveexec_b64 s[{ST+6}:{ST+7}], vcc")
        I(f"buffer_load_dword a255, v245, {sr(S_WS)}, s{ST+5} offen")
        if n0 < 64: I(f"s_mov_b64 exec, s[{ST+6}:{ST+7}]")

    def act_touch(self, base, per_tile):
        I = self.I
        per_wave = 16*per_tile // 128
        lines = per_wave // 128
        I(f"""
        v_lshlrev_b32 v245, 7, v{V_L}
        s_lshr_b32 s{ST+5}, s{S_RB}, 2
        s_mul_i32 s{ST+5}, s{ST+5}, {16*per_tile}
        s_and_b32 s{ST+6}, s{S_RB}, 3
        s_lshl_b32 s{ST+6}, s{ST+6}, 3
        s_add_u32 s{ST+6}, s{ST+6}, s{S_M}
        s_lshl_b32 s{ST+6}, s{ST+6}, 2
        s_add_u32 s{ST+6}, s{ST+6}, s{S_WV}
        s_mul_i32 s{ST+6}, s{ST+6}, {per_wave}
        s_add_u32 s{ST+5}, s{ST+5}, s{ST+6}
        s_add_u32 s{ST+5}, s{ST+5}, {base}
        """)
        n0 = min(lines, 64)
        if n0 < 64: I(f"v_cmp_gt_u32 vcc, {n0}, v{V_L}\ns_and_saveexec_b64 s[{ST+6}:{ST+7}], vcc")
        I(f"buffer_load_dword a255, v245, {sr(S_WS)}, s{ST+5} offen")
        if n0 < 64: I(f"s_mov_b64 exec, s[{ST+6}:{ST+7}]")

    def sync_touch(self):
        I = self.I
        l3 = self.b.uid("L_st3"); lj = self.b.uid("L_stj")
        I(f"""
        s_cmp_eq_u32 s{S_WV}, 3
        s_cbranch_scc1 {l3}
        v_lshlrev_b32 v245, 7, v{V_L}
        s_mul_i32 s{ST+5}, s{S_WV}, {STAT_SZ}
        s_lshl_b32 s{ST+6}, s{S_RB}, 13
        s_add_u32 s{ST+5}, s{ST+5}, s{ST+6}
        s_add_u32 s{ST+5}, s{ST+5}, {STAT}
        buffer_load_dword a255, v245, {sr(S_WS)}, s{ST+5} offen
        s_branch {lj}
        {l3}:
        v_lshrrev_b32 v245, 2, v{V_L}
        v_and_b32 v245, 7, v245
        v_lshlrev_b32 v245, 12, v245                     ; phase*4096
        v_and_b32 v244, 3, v{V_L}
        v_lshl_add_u32 v245, v244, 7, v245
        s_and_b32 s{ST+5}, s{S_RB}, 28
        s_lshl_b32 s{ST+5}, s{ST+5}, 7
        s_add_u32 s{ST+5}, s{ST+5}, {CFLAG + 32768}
        buffer_load_dword a255, v245, {sr(S_WS)}, s{ST+5} offen
        {lj}:
        """)

    def pf_op(self, which, part):
        n = self.l2_prefetch(which, part)
        for i in range(n): self.vm_issue(("pf",))

    def hook_body(self, hooks, k):
        if self.detail == 1: self.stamp(f"h{k}i")
        hooks[k]()
        if self.detail == 1: self.stamp(f"h{k}o")

    L_KV = 108*1024
    S_SLOW = 77
    def kv_dma(self, g):
        I = self.I
        I(f"""
        s_mul_i32 s{ST+5}, s{S_WV}, {KVT}
        s_add_u32 s{ST+4}, s{ST+5}, {self.L_KV + (4*g % 16)*KVT}
        s_mov_b32 m0, s{ST+4}
        s_add_u32 s{ST+5}, s{ST+5}, {KV + 4*g*KVT}
        buffer_load_dwordx4 v{V_L16}, {sr(S_WS)}, s{ST+5} offen lds
        buffer_load_dwordx4 v{V_L16}, {sr(S_WS)}, s{ST+5} offen offset:1024 lds
        buffer_load_dwordx4 v{V_L16}, {sr(S_WS)}, s{ST+5} offen offset:2048 lds
        s_mov_b64 exec, 0xffff
        buffer_load_dwordx4 v{V_L16}, {sr(S_WS)}, s{ST+5} offen offset:3072 lds
        s_mov_b64 exec, -1
        """)

    L_DUMMY = 104*1024
    L_MODW = 96*1024
    def slot_setup(self, kind, arg=0):
        I = self.I
        DS = self.S_DS
        if kind == "unit":
            I(f"s_add_u32 s{DS}, s{self.S_WA}, {16*arg*1024}\ns_add_u32 s76, s{self.S_LW}, {16*arg*1024}")
            return
        if kind == "act":
            base, per_tile, part = arg
            per_wave = 16*per_tile // 128
            I(f"""
            s_lshr_b32 s{DS}, s{S_RB}, 2
            s_mul_i32 s{DS}, s{DS}, {16*per_tile}
            s_and_b32 s{ST+6}, s{S_RB}, 3
            s_lshl_b32 s{ST+6}, s{ST+6}, 3
            s_add_u32 s{ST+6}, s{ST+6}, s{S_M}
            s_lshl_b32 s{ST+6}, s{ST+6}, 2
            s_add_u32 s{ST+6}, s{ST+6}, s{S_WV}
            s_mul_i32 s{ST+6}, s{ST+6}, {per_wave}
            s_add_u32 s{DS}, s{DS}, s{ST+6}
            s_add_u32 s{DS}, s{DS}, {base + 4096*part}
            """)
        elif kind == "mod":
            I(f"s_mul_i32 s{DS}, s{S_M}, 320\ns_add_u32 s{DS}, s{DS}, {MODG + (2 + 2*arg)*2560}\ns_mov_b32 s76, {self.L_MODW + 4096*arg}")
            return
        elif kind == "wsa":
            I(f"""
            s_and_b32 s{ST+6}, s{S_RB}, 3
            s_lshl_b32 s{ST+6}, s{ST+6}, 2
            s_add_u32 s{ST+6}, s{ST+6}, s{S_WV}
            s_mul_i32 s{ST+6}, s{ST+6}, {8*1024}
            s_add_u32 s{DS}, s{self.S_WA}, s{ST+6}
            s_sub_u32 s{DS}, s{DS}, s{self.S_LW}
            s_add_u32 s{DS}, s{DS}, {96*1024 + 4096*arg}
            """)
        else:
            I(f"s_mov_b32 s{DS}, {KV}")
        I(f"s_mov_b32 s76, {self.L_DUMMY}")

    def attn_hooks(self):
        I = self.I
        J = {}
        def j15():
            lab = self.b.uid("L_dg")
            I(f"s_cmp_lg_u32 s{self.S_PROD2}, 2\ns_cbranch_scc1 {lab}")
            self.MT = self.MT2
            self.mod_gemv(140, 24, 24, None, BBr=212)
            I(f"{lab}:")
        J[15] = (j15, 0)
        def j14():
            I("s_waitcnt vmcnt(16)")
            self.rl_store(0); self.rl_store(1)
        J[14] = (j14, 0)
        def j12():
            I("s_waitcnt vmcnt(16)")
            self.rl_flag()
        J[12] = (j12, 0)
        def j10(): self.xid_issue(); self.rl_poll_issue()
        J[10] = (j10, 1)
        def j9():
            I("s_waitcnt vmcnt(8)")
            self.xid_eval(); self.rl_poll_eval()
            self.ring_regs()
        J[9] = (j9, 0)
        J[13] = (self.sync_touch, 1)
        SL = {16: ("act", (OF, 20480, 0)), 15: ("act", (L2F, 20480, 0)), 14: ("act", (H4F, 54*1024, 0)), 13: ("act", (H4F, 54*1024, 1)),
              9: ("unit", 0), 8: ("unit", 1), 7: ("unit", 2), 6: ("unit", 3), 5: ("unit", 4), 4: ("unit", 5),
              3: ("mod", 0), 2: ("mod", 1), 1: ("wsa", 0)}
        if not ALIAS: SL[12] = ("act", (GF, 20480, 0)); SL[11] = ("act", (L3F, 20480, 0))
        H = {}
        def mk(k):
            def f():
                if k in J and not self.nojobs: J[k][0]()
                if k in SL and not self.nojobs: self.slot_setup(*SL[k])
                elif (k + 1) in SL: self.slot_setup("none")
            return f
        for k in range(16, 0, -1):
            if k in J or k in SL or (k + 1) in SL: H[k] = mk(k)
        return H

    def ring_state_after_attn(self):
        self.units_issued = 6
        self.units_queued = 6
        self.pend = []
        self.consumed = -1
        self.vmq = []

    def build(self, force_slow=False, force_global=False):
        I = self.I
        self.force_global = force_global
        phases = [self.phase_start, self.phase_kv, self.phase_q, self.phase_kvwait,
                  lambda: self.phase_attn(force_slow), self.phase_wo, self.phase_w1, self.phase_w2, self.phase_w3, self.phase_w4]
        self.prologue()
        for i, p in enumerate(phases):
            if i >= self.stop_after: break
            p()
        I(f"""
        s_waitcnt vmcnt(0) lgkmcnt(0)
        s_endpgm
        L_fail:
        """)
        self.srd(S_C, P_DBG, 256)
        I(f"""
        v_mov_b32 v254, s{S_ERR}
        v_mov_b32 v255, s{S_W}
        v_mov_b32 v253, 16
        buffer_store_dwordx2 v[254:255], v253, {sr(S_C)}, 0 offen sc1
        s_waitcnt vmcnt(0)
        L_end:
        s_endpgm
        L_code_end:
        """)
        text, n = finalize(self.b, check=not (self.x_nords or self.x_nokv or self.noslot), align=bool(self.align))
        hdr = open("adaLN_cond__grouped_kv_mqa__mixer_s_mlp__prompt.s.ref").read().split("; Override launch")[0]
        lines = [l for l in hdr.strip().split("\n")]
        lines.append(f"; @launch grid=(256,1,1) block=(256,1,1) lds={LDS_SZ}")
        return kernel_file(lines, [(NAME, text, 512, 256, 102)]), n

if __name__ == "__main__":
    import argparse
    ap = argparse.ArgumentParser()
    ap.add_argument("-o", default="adaLN_cond__grouped_kv_mqa__mixer_s_mlp__prompt.s")
    ap.add_argument("--stop", type=int, default=99)
    ap.add_argument("--stamps", action="store_true")
    ap.add_argument("--slow", action="store_true")
    ap.add_argument("--detail", type=int, default=-1)
    ap.add_argument("--cap", type=int, default=99)
    ap.add_argument("--set", action="append", default=[])
    ap.add_argument("--global", dest="glob", action="store_true")
    a = ap.parse_args()
    g = Gen(stop_after=a.stop, stamps=a.stamps)
    g.detail = a.detail
    g.cap_small = a.cap
    for kv in a.set:
        k_, v_ = kv.split('=')
        setattr(g, k_, float(v_) if '.' in v_ else int(v_))
    txt, n = g.build(force_slow=a.slow, force_global=a.glob)
    open(a.o, "w").write(txt)
    print("wrote", a.o, len(txt), "bytes; auto nops:", n, "stamps:", getattr(g, "stamp_names", None))
```

```python
import sys
from common import *

import struct
def f2u(x): return struct.unpack("<I", struct.pack("<f", x))[0]

NAME = "adaLN_cond__grouped_kv_mqa__mixer_s_mlp__prompt_kernel"
MODG   = 0x000000
KVFLAG = 0x004000
RLFLAG = 0x008000
STAT   = 0x020000
STAT_SZ = 32*8*64*16
KV     = 0x100000
KVT    = 3328
OF     = 0x200000
ACT_SZ = 128*20*1024
L2F    = OF + ACT_SZ
import os
ALIAS = os.environ.get('NOALIAS') is None
GF     = OF if ALIAS else L2F + ACT_SZ
L3F    = L2F if ALIAS else L2F + 2*ACT_SZ
H4F    = L2F + 3*ACT_SZ
H4_SZ  = 128*54*1024
WSA    = H4F + H4_SZ
WSA_M  = 304*1024
W3S    = WSA + 8*WSA_M
W3S_M  = 144*1024
W4S    = W3S + 16*W3S_M
W4S_M  = 272*1024
HG     = W4S + 8*W4S_M
XIDG   = HG + 16*20*1024
CFLAG  = XIDG + 4096
CF_LOC = 8*128*128
CF_PH  = 128*128
WS_END = CFLAG + 2*CF_LOC + 64*1024
DBGA   = WS_END
WS_REC = 0x4000000
PH_O, PH_L2, PH_G, PH_L3, PH_H4 = 0, 1, 2, 3, 4

L_WQ   = 0
L_WK   = 102400
L_WM   = 102400
L_SC   = 143360
L_MOD  = 144640
L_QS   = 149760
L_MISC = 161024
LDS_SZ = 163840
L_RL   = 0
L_W    = 0

S_WS = 4
S_A  = 8
S_B  = 12
S_C  = 16
S_TAG = 20
S_WV, S_M, S_RB, S_W = 22, 23, 24, 25
S_T0 = 26
S_TT = 27
S_ERR = 28
S_FAST = 3
P_X, P_WQ, P_WK, P_WV, P_WO, P_BX, P_W1, P_W2, P_W3, P_W4, P_C, P_WM, P_OUT, P_DBG, P_WS = [32 + 2*i for i in range(15)]
ST = 62

def sr(b, n=4): return f"s[{b}:{b+n-1}]"
def vr(b, n=4): return f"v[{b}:{b+n-1}]" if n > 1 else f"v{b}"
def ar(b, n=4): return f"a[{b}:{b+n-1}]" if n > 1 else f"a{b}"

V_L, V_T, V_G, V_L16 = 0, 1, 2, 3

TIMEOUT = 400000

class Gen:
    def __init__(self, stop_after=99, stamps=False):
        self.b = Builder()
        self.stop_after = stop_after
        self.stamps = stamps
        self.nstamp = 0
        self.detail = -1
        self.nojobs = 0
        self.align = 1
        self.x_nobar = 0
        self.x_nokv = 0
        self.x_nords = 0
        self.noslot = 0
        self.in_slow = False
        self.cap_small = 99
        self.burst = 6
        self.rate_small = 1.3
        self.rate_w3 = 3.5
        self.rate_w4 = 1.6
        self.epi_drip = 8
        self.post_drip = 0
        self.fine = 0
        self.shadow = 3
        self.resident = 0
        self.chunk4 = 4
        self.pub_after = 0
        self.visible = -1
        self.epi_drip2 = 6
        self.gd1 = 1
        self.gd3 = 2
        self.burst4 = 10
        self.use_pf = 0
        self.tlb_warm = 0
        self.touch_act = 0
        self.h4t_where = 0
        self.use_mall = 0
        self.pf3 = 0
        self.pub_drip = 0
    def I(self, t): self.b.I(t)
    def C(self, t): self.b.C(t)

    def srd(self, s, ptr, nbytes, add=0):
        if add:
            self.I(f"s_add_u32 s{s}, s{ptr}, {add}\ns_addc_u32 s{s+1}, s{ptr+1}, 0")
        else:
            self.I(f"s_mov_b32 s{s}, s{ptr}\ns_mov_b32 s{s+1}, s{ptr+1}")
        self.I(f"s_mov_b32 s{s+2}, {nbytes}\ns_mov_b32 s{s+3}, 0x20000")

    def stamp(self, name):
        if not self.stamps: return
        k = self.nstamp; self.nstamp += 1
        lab = self.b.uid("L_st")
        self.C(f"stamp {k}: {name}")
        self.I(f"""
        s_cmp_lg_u32 s{S_WV}, 0
        s_cbranch_scc1 {lab}
        s_memrealtime s[100:101]
        s_memtime s[96:97]
        s_lshl_b32 s99, s{S_W}, 11
        s_add_u32 s99, s99, {DBGA + 16*k}
        s_waitcnt lgkmcnt(0)
        v_mov_b32 v252, s100
        v_mov_b32 v253, s101
        v_mov_b32 v254, s96
        v_mov_b32 v255, s97
        v_mov_b32 v251, s99
        buffer_store_dwordx4 v[252:255], v251, {sr(S_WS)}, 0 offen
        s_nop 1
        {lab}:
        """)
        self.stamp_names = getattr(self, "stamp_names", []) + [name]

    def spin_tail(self, cnt, loop, code):
        self.I(f"""
        s_sub_u32 s{cnt}, s{cnt}, 1
        s_cmp_lg_u32 s{cnt}, 0
        s_cbranch_scc1 {loop}
        s_mov_b32 s{S_ERR}, {code}
        s_branch L_fail
        """)

    def get_tag(self):
        lp = self.b.uid("L_tag"); ok = self.b.uid("L_tagok")
        self.srd(S_C, P_DBG, 256)
        self.I(f"""
        s_mov_b32 s{ST}, {TIMEOUT}
        v_mov_b32 v252, 0
        {lp}:
        buffer_load_dwordx2 v[254:255], v252, {sr(S_C)}, 0 offen sc1
        s_waitcnt vmcnt(0)
        v_readfirstlane_b32 s{S_TAG}, v254
        v_readfirstlane_b32 s{S_TAG+1}, v255
        s_cmp_lg_u32 s{S_TAG}, 0
        s_cbranch_scc1 {ok}
        """)
        self.spin_tail(ST, lp, 1)
        self.I(f"{ok}:")

    def reduce_g(self, regs, tmp, op="v_add_f32"):
        for sw in ("v_permlane16_swap_b32", "v_permlane32_swap_b32"):
            for i, r in enumerate(regs):
                self.I(f"v_mov_b32 v{tmp+i}, v{r}")
            for i, r in enumerate(regs):
                self.I(f"{sw} v{r}, v{tmp+i}")
            for i, r in enumerate(regs):
                self.I(f"{op} v{r}, v{r}, v{tmp+i}")

    def prologue(self):
        I = self.I
        I(f"""
        s_cmp_ge_u32 s2, 256
        s_cbranch_scc1 L_end
        s_load_dwordx16 s[32:47], s[0:1], 0
        s_load_dwordx8 s[48:55], s[0:1], 64
        s_load_dwordx4 s[56:59], s[0:1], 96
        s_load_dwordx2 s[60:61], s[0:1], 112
        v_lshrrev_b32 v1, 6, v0
        v_and_b32 v{V_L}, 63, v0
        v_readfirstlane_b32 s{S_WV}, v1
        v_and_b32 v{V_T}, 15, v{V_L}
        v_lshrrev_b32 v{V_G}, 4, v{V_L}
        v_lshlrev_b32 v{V_L16}, 4, v{V_L}
        s_mov_b32 s{S_W}, s2
        s_and_b32 s{ST}, s2, 7
        s_lshr_b32 s{ST+1}, s2, 3
        s_and_b32 s{S_M}, s{ST+1}, 7
        s_lshr_b32 s{ST+1}, s{ST+1}, 3
        s_lshl_b32 s{ST}, s{ST}, 2
        s_add_u32 s{S_RB}, s{ST}, s{ST+1}
        s_lshl_b32 s{S_T0}, s{S_RB}, 6
        s_lshl_b32 s{S_TT}, s{S_RB}, 2
        s_add_u32 s{S_TT}, s{S_TT}, s{S_WV}
        s_mov_b32 s{S_ERR}, 0
        """)
        self.C("request the kernel's own code into this XCD's L2: workgroup j of the 32 in a row group takes lines 16j..16j+15 (wave 0)")
        labc = self.b.uid("L_cp")
        I(f"""
        s_cmp_lg_u32 s{S_WV}, 0
        s_cbranch_scc1 {labc}
        s_getpc_b64 s[{ST+2}:{ST+3}]
        L_pcref:
        s_lshr_b32 s{ST+4}, s2, 3
        s_lshl_b32 s{ST+4}, s{ST+4}, 11                       ; 16 lines * 128 B
        v_lshlrev_b32 v4, 7, v{V_L}
        v_add_u32 v4, s{ST+4}, v4
        v_cmp_gt_u32 vcc, L_code_end-L_pcref-4, v4
        s_and_b64 vcc, vcc, 0xffff
        s_and_saveexec_b64 s[{ST+4}:{ST+5}], vcc
        s_cbranch_execz {labc}_x
        global_load_dword a252, v4, s[{ST+2}:{ST+3}]
        {labc}_x:
        s_mov_b64 exec, s[{ST+4}:{ST+5}]
        {labc}:
        s_waitcnt lgkmcnt(0)
        """)
        self.srd(S_WS, P_WS, WS_REC)
        lab = self.b.uid("L_non")
        self.srd(S_C, P_DBG, 256)
        I(f"""
        s_lshl_b32 s{ST}, s2, 2
        s_add_u32 s{ST}, s{ST}, s{S_WV}
        s_cmp_lg_u32 s{ST}, 0
        s_cbranch_scc1 {lab}
        s_memrealtime s[{S_TAG}:{S_TAG+1}]
        s_waitcnt lgkmcnt(0)
        s_or_b32 s{S_TAG}, s{S_TAG}, 1
        v_mov_b32 v254, s{S_TAG}
        v_mov_b32 v255, s{S_TAG+1}
        v_mov_b32 v252, 0
        s_mov_b64 exec, 1
        buffer_store_dwordx2 v[254:255], v252, {sr(S_C)}, 0 offen sc1
        s_mov_b64 exec, -1
        {lab}:
        """)
        self.stamp("start")

    XF = 4
    XH = 84
    TMP = 244

    def tag_issue(self):
        self.srd(S_C, P_DBG, 256)
        self.I(f"v_mov_b32 v241, 0\nbuffer_load_dwordx2 v[242:243], v241, {sr(S_C)}, 0 offen sc1")

    def tag_eval(self):
        I = self.I
        lp = self.b.uid("L_tag"); ok = self.b.uid("L_tagok")
        I(f"""
        s_mov_b32 s{ST}, {TIMEOUT}
        {lp}:
        v_readfirstlane_b32 s{S_TAG}, v242
        v_readfirstlane_b32 s{S_TAG+1}, v243
        s_cmp_lg_u32 s{S_TAG}, 0
        s_cbranch_scc1 {ok}
        """)
        self.tag_issue()
        I("s_waitcnt vmcnt(0)")
        self.spin_tail(ST, lp, 1)
        I(f"{ok}:")

    S_PROD2 = 80
    S_PROD, S_P = 80, 81

    LWM, LSC, LMI = L_WM, L_SC, L_MISC + 64
    def mod_dma(self, cdst=None):
        I = self.I
        TMP = self.MT
        self.srd(S_B, P_C, 1280)
        I(f"""
        s_mul_i32 s{ST+4}, s{S_WV}, 320
        v_lshlrev_b32 v{TMP+2}, 3, v{V_L}
        buffer_load_dwordx2 {cdst or f'v[{TMP+4}:{TMP+5}]'}, v{TMP+2}, {sr(S_B)}, s{ST+4} offen
        """)
        self.srd(S_A, P_WM, 640*7680)
        I(f"""
        v_lshrrev_b32 v{TMP}, 2, v{V_L}
        v_mul_u32_u24 v{TMP}, 7680, v{TMP}
        v_and_b32 v{TMP+1}, 3, v{V_L}
        v_lshl_add_u32 v{TMP}, v{TMP+1}, 4, v{TMP}
        s_mul_i32 s{ST+1}, s{S_WV}, {160*7680}
        s_lshl_b32 s{ST+2}, s{self.S_P}, 6                   ; p*64 bytes
        s_add_u32 s{ST+1}, s{ST+1}, s{ST+2}
        s_mul_i32 s{ST+3}, s{S_WV}, {160*64}
        s_add_u32 s{ST+3}, s{ST+3}, {self.LWM}
        """)
        for i in range(10):
            I(f"""
            s_mov_b32 m0, s{ST+3}
            s_add_u32 s{ST+3}, s{ST+3}, 1024
            buffer_load_dwordx4 v{TMP}, {sr(S_A)}, s{ST+1} offen lds
            s_add_u32 s{ST+1}, s{ST+1}, {16*7680}
            """)

    MT2 = 244
    MT3 = 228
    MT = 228
    def mod_gemv(self, W, wait_c, wait_w, wait_tag, BBr=None):
        I = self.I
        TMP = self.MT
        T = TMP + 4
        I(f"""
        s_waitcnt vmcnt({wait_c})
        v_lshlrev_b32 v{TMP+6}, 16, v{T}
        v_and_b32 v{TMP+7}, 0xffff0000, v{T}
        v_lshlrev_b32 v{TMP+8}, 16, v{T+1}
        v_and_b32 v{TMP+9}, 0xffff0000, v{T+1}
        """)
        for i in range(4):
            r = TMP + 6 + i
            I(f"""
            v_mul_f32 v{TMP+3}, 0xbfb8aa3b, v{r}
            v_exp_f32 v{TMP+3}, v{TMP+3}
            v_add_f32 v{TMP+3}, 1.0, v{TMP+3}
            v_rcp_f32 v{TMP+3}, v{TMP+3}
            v_mul_f32 v{r}, v{r}, v{TMP+3}
            """)
        va, vb, WA, BB, ACC = W, W+1, W+4, W+44, W+64
        if BBr is not None: BB, ACC = BBr, W+44
        I(f"""
        v_cvt_pk_bf16_f32 v{T}, v{TMP+6}, v{TMP+7}
        v_cvt_pk_bf16_f32 v{T+1}, v{TMP+8}, v{TMP+9}
        s_mul_i32 s{ST+4}, s{S_WV}, 320
        s_add_u32 s{ST+4}, s{ST+4}, {self.LSC}
        v_lshlrev_b32 v{TMP+2}, 3, v{V_L}
        v_add_u32 v{TMP+2}, s{ST+4}, v{TMP+2}
        s_mov_b32 exec_hi, 0xff
        ds_write_b64 v{TMP+2}, v[{T}:{T+1}]
        s_mov_b32 exec_hi, -1
        v_lshrrev_b32 v{va}, 2, v{V_T}
        v_lshl_add_u32 v{va}, v{V_G}, 2, v{va}
        v_lshlrev_b32 v{va}, 6, v{va}                       ; 64*(4g+(i>>2))
        v_and_b32 v{vb}, 3, v{V_T}
        v_lshl_add_u32 v{va}, v{vb}, 3, v{va}
        s_mul_i32 s{ST}, s{S_WV}, {160*64}
        s_add_u32 s{ST}, s{ST}, {self.LWM}
        v_add_u32 v{va}, s{ST}, v{va}
        v_lshlrev_b32 v{vb}, 3, v{V_G}
        v_add_u32 v{vb}, s{ST+4}, v{vb}
        s_waitcnt vmcnt({wait_w}) lgkmcnt(0)
        """)
        for s_ in range(5):
            I(f"ds_read_b64 v[{BB+4*s_}:{BB+4*s_+1}], v{vb} offset:{64*s_}\nds_read_b64 v[{BB+4*s_+2}:{BB+4*s_+3}], v{vb} offset:{64*s_+32}")
        for s_ in range(5):
            for tl in range(2):
                W_ = WA + 8*s_ + 4*tl
                I(f"ds_read_b64_tr_b16 v[{W_}:{W_+1}], v{va} offset:{2048*s_+32*tl}\nds_read_b64_tr_b16 v[{W_+2}:{W_+3}], v{va} offset:{2048*s_+32*tl+1024}")
        I("s_waitcnt lgkmcnt(0)")
        for s_ in range(5):
            for tl in range(2):
                I(f"v_mfma_f32_16x16x32_bf16 {vr(ACC+4*tl)}, {vr(WA+8*s_+4*tl)}, {vr(BB+4*s_)}, {'0' if s_ == 0 else vr(ACC+4*tl)}")
        I(f"""
        s_lshl_b32 s{ST}, s{S_WV}, 7
        s_add_u32 s{ST}, s{ST}, {self.LMI}
        v_lshlrev_b32 v{va}, 4, v{V_G}
        v_add_u32 v{va}, s{ST}, v{va}
        v_cmp_eq_u32 vcc, 0, v{V_T}
        s_and_saveexec_b64 s[{ST+4}:{ST+5}], vcc
        ds_write_b128 v{va}, {vr(ACC)}
        ds_write_b128 v{va}, {vr(ACC+4)} offset:64
        s_mov_b64 exec, s[{ST+4}:{ST+5}]
        s_waitcnt lgkmcnt(0)
        s_barrier
        """)
        lab_gd = self.b.uid("L_gd")
        I(f"s_cmp_lg_u32 s{S_WV}, 0\ns_cbranch_scc1 {lab_gd}")
        I(f"""
        v_lshlrev_b32 v{va}, 4, v{V_L}
        v_and_b32 v{va}, 0x7f, v{va}
        v_add_u32 v{va}, {self.LMI}, v{va}
        ds_read_b128 {vr(WA)}, v{va}
        ds_read_b128 {vr(WA+4)}, v{va} offset:128
        ds_read_b128 {vr(WA+8)}, v{va} offset:256
        ds_read_b128 {vr(WA+12)}, v{va} offset:384
        """)
        if wait_tag is not None:
            I(f"s_waitcnt vmcnt({wait_tag})")
            self.tag_eval()
        I("s_waitcnt lgkmcnt(0)")
        for r in range(4):
            I(f"v_add_f32 v{WA+r}, v{WA+r}, v{WA+4+r}\nv_add_f32 v{WA+8+r}, v{WA+8+r}, v{WA+12+r}\nv_add_f32 v{WA+r}, v{WA+r}, v{WA+8+r}")
        I(f"""
        v_cvt_pk_bf16_f32 v{ACC+4}, v{WA}, v{WA+1}
        v_cvt_pk_bf16_f32 v{ACC+5}, v{WA+2}, v{WA+3}
        v_mov_b32 v{ACC+6}, s{S_TAG}
        v_mov_b32 v{ACC+7}, s{S_TAG+1}
        s_lshl_b32 s{ST}, s{self.S_P}, 7                     ; p*8 granules*16 B
        s_mov_b64 exec, 0xff
        buffer_store_dwordx4 {vr(ACC+4)}, v{V_L16}, {sr(S_WS)}, s{ST} offen offset:{MODG} sc1
        s_mov_b64 exec, -1
        {lab_gd}:
        """)

    def line_touch(self, srd, voff, soff, nl):
        I = self.I
        if nl < 64: I(f"v_cmp_gt_u32 vcc, {nl}, v{V_L}\ns_and_saveexec_b64 s[{ST+6}:{ST+7}], vcc")
        I(f"buffer_load_dword a255, v{voff}, {sr(srd)}, s{soff} offen")
        if nl < 64: I(f"s_mov_b64 exec, s[{ST+6}:{ST+7}]")

    def wq_ops(self):
        I = self.I
        V = 239
        so, lo = ST+12, ST+13
        self.srd(S_A, P_WQ, 640*1280)
        I(f"""
        v_mul_u32_u24 v{V}, 205, v{V_L}
        v_lshrrev_b32 v{V}, 11, v{V}
        v_mul_u32_u24 v{V-1}, 10, v{V}
        v_sub_u32 v{V-1}, v{V_L}, v{V-1}
        v_mul_u32_u24 v{V}, 1280, v{V}
        v_lshl_add_u32 v{V}, v{V-1}, 4, v{V}
        s_mul_i32 s{so}, s{S_M}, 160
        s_mul_i32 s{lo}, s{S_WV}, {6*1280}
        s_add_u32 s{so}, s{so}, s{lo}
        s_mul_i32 s{lo}, s{S_WV}, 960
        """)
        ops = []
        def mk(i):
            def f():
                if i == 26:
                    lab = self.b.uid("L_wq")
                    I(f"""
                    s_cmp_ge_u32 s{S_WV}, 3
                    s_cbranch_scc1 {lab}
                    s_cmp_eq_u32 s{S_WV}, 2
                    s_mov_b32 s{ST+14}, 0x0fffffff
                    s_cselect_b32 exec_hi, 0xff, s{ST+14}
                    s_mov_b32 m0, s{lo}
                    s_nop 0
                    buffer_load_dwordx4 v{V}, {sr(S_A)}, s{so} offen lds
                    s_mov_b32 exec_hi, -1
                    {lab}:
                    """)
                else:
                    I(f"""
                    s_mov_b32 m0, s{lo}
                    s_mov_b32 exec_hi, 0x0fffffff
                    buffer_load_dwordx4 v{V}, {sr(S_A)}, s{so} offen lds
                    s_mov_b32 exec_hi, -1
                    s_add_u32 s{lo}, s{lo}, 3840
                    s_add_u32 s{so}, s{so}, {24*1280}
                    """)
            return f
        return [mk(i) for i in range(27)]

    def phase_start(self):
        I, C = self.I, self.C
        XF, XH, TMP = self.XF, self.XH, self.TMP
        PR, P = self.S_PROD, self.S_P
        C("---- mod producers: members 2..5; column pair P = x + 8k (k = 2*rbl + (m-2)/2) < 60, block p = 2P + (m-2)%2; P < 20 is critical")
        I(f"""
        s_sub_u32 s{ST}, s{S_M}, 2                           ; m-2
        s_and_b32 s{ST+1}, s{S_RB}, 3
        s_lshl_b32 s{ST+1}, s{ST+1}, 1
        s_lshr_b32 s{ST+2}, s{ST}, 1
        s_add_u32 s{ST+1}, s{ST+1}, s{ST+2}
        s_lshl_b32 s{ST+1}, s{ST+1}, 3
        s_lshr_b32 s{ST+2}, s{S_RB}, 2
        s_add_u32 s{ST+1}, s{ST+1}, s{ST+2}                  ; P
        s_lshl_b32 s{P}, s{ST+1}, 1
        s_and_b32 s{ST+2}, s{ST}, 1
        s_add_u32 s{P}, s{P}, s{ST+2}
        s_cmp_lt_u32 s{ST+1}, 20
        s_cselect_b32 s{PR}, 1, 2
        s_cmp_lt_u32 s{ST+1}, 60
        s_cselect_b32 s{PR}, s{PR}, 0
        s_cmp_lt_u32 s{ST}, 4
        s_cselect_b32 s{PR}, s{PR}, 0
        """)
        C("every workgroup requests 1/32 of the critical w_mod lines of its row group: 3 column pairs x 640 rows = 1920 lines, 60 per workgroup (15 per wave)")
        self.srd(S_A, P_WM, 640*7680)
        I(f"""
        s_and_b32 s{ST}, s{S_RB}, 3
        s_lshl_b32 s{ST}, s{ST}, 3
        s_add_u32 s{ST}, s{ST}, s{S_M}
        s_lshl_b32 s{ST}, s{ST}, 2
        s_add_u32 s{ST}, s{ST}, s{S_WV}
        s_mul_i32 s{ST}, s{ST}, 15
        v_add_u32 v{XH}, s{ST}, v{V_L}
        v_mul_u32_u24 v{XH+1}, 6554, v{XH}
        v_lshrrev_b32 v{XH+1}, 22, v{XH+1}                   ; /640
        v_mul_u32_u24 v{XH+2}, 640, v{XH+1}
        v_sub_u32 v{XH+2}, v{XH}, v{XH+2}                    ; row
        v_mul_u32_u24 v{XH+2}, 7680, v{XH+2}
        v_lshlrev_b32 v{XH+1}, 10, v{XH+1}
        v_add_u32 v{XH+2}, v{XH+2}, v{XH+1}
        s_lshr_b32 s{ST}, s{S_RB}, 2
        s_lshl_b32 s{ST}, s{ST}, 7                           ; x * 128 B
        """)
        self.line_touch(S_A, XH+2, ST, 15)
        self.srd(S_C, P_X, 2048*1280)
        XO = XH
        I(f"""
        v_lshlrev_b32 v{XO+6}, 7, v{V_L}
        s_lshl_b32 s{ST}, s{S_M}, 2
        s_add_u32 s{ST}, s{ST}, s{S_WV}
        s_mul_i32 s{ST}, s{ST}, 2560
        s_mul_i32 s{ST+1}, s{S_RB}, {64*1280}
        s_add_u32 s{ST}, s{ST}, s{ST+1}
        """)
        lab_np = self.b.uid("L_np"); lab_j = self.b.uid("L_npj")
        I(f"s_cmp_lg_u32 s{PR}, 1\ns_cbranch_scc1 {lab_np}")
        I(f"s_mov_b32 s{ST+14}, s{ST}")
        self.mod_dma()
        self.line_touch(S_C, XO+6, ST+14, 20)
        self.tag_issue()
        self.mod_gemv(XH+8, 12, 2, 0)
        self.srd(S_C, P_X, 2048*1280)
        I(f"s_branch {lab_j}\n{lab_np}:")
        self.line_touch(S_C, XO+6, ST, 20)
        self.tag_issue()
        self.srd(S_C, P_X, 2048*1280)
        I(f"{lab_j}:")
        self.stamp("modpub")
        C("x: the wave's rows -> LDS, 16-byte chunks XOR-swizzled by the row")
        I(f"s_lshl_b32 s{ST}, s{S_TT}, 4")
        for qq in range(4):
            I(f"""
            v_add_u32 v{XO+4}, {4*qq}, v{V_G}                      ; row
            v_xor_b32 v{XO+5}, v{XO+4}, v{V_T}
            v_add_u32 v{XO+4}, s{ST}, v{XO+4}
            v_mul_u32_u24 v{XO+4}, 1280, v{XO+4}
            v_lshl_add_u32 v{XO+qq}, v{XO+5}, 4, v{XO+4}
            """)
        I(f"s_mul_i32 s{ST+1}, s{S_WV}, 20480")
        for G in range(5):
            I(f"s_mov_b32 s{ST+2}, {256*G}")
            for qq in range(4):
                I(f"s_mov_b32 m0, s{ST+1}\ns_add_u32 s{ST+1}, s{ST+1}, 1024\nbuffer_load_dwordx4 v{XO+qq}, {sr(S_C)}, s{ST+2} offen lds")
        lab_nk = self.b.uid("L_nk")
        I(f"""
        s_cmp_ge_u32 s{S_M}, 2
        s_cbranch_scc1 {lab_nk}
        s_cmp_eq_u32 s{S_M}, 0
        s_cselect_b32 s{S_A}, s{P_WK}, s{P_WV}
        s_cselect_b32 s{S_A+1}, s{P_WK+1}, s{P_WV+1}
        s_mov_b32 s{S_A+2}, 25600
        s_mov_b32 s{S_A+3}, 0x20000
        s_mul_i32 s{ST}, s{S_WV}, 7168
        s_add_u32 s{ST+1}, s{ST}, {L_WK}
        """)
        for i in range(7):
            I(f"""
            s_mov_b32 m0, s{ST+1}
            s_add_u32 s{ST+1}, s{ST+1}, 1024
            buffer_load_dwordx4 v{V_L16}, {sr(S_A)}, s{ST} offen lds
            s_add_u32 s{ST}, s{ST}, 1024
            """)
        I(f"{lab_nk}:")
        C("wq: request this workgroup's 1/32 of the matrix (200 lines, 50 per wave)")
        self.srd(S_B, P_WQ, 640*1280)
        I(f"""
        s_and_b32 s{ST}, s{S_RB}, 3
        s_lshl_b32 s{ST}, s{ST}, 3
        s_add_u32 s{ST}, s{ST}, s{S_M}
        s_lshl_b32 s{ST}, s{ST}, 2
        s_add_u32 s{ST}, s{ST}, s{S_WV}
        s_mul_i32 s{ST}, s{ST}, 6400
        """)
        self.line_touch(S_B, XO+6, ST, 50)
        self.stamp("issued")
        C("x fragments: lane (t,g): k = 32s+4g (+16)")
        AD = XH + 8
        I(f"""
        s_mul_i32 s{ST}, s{S_WV}, 20480
        v_lshlrev_b32 v{TMP}, 8, v{V_T}
        v_add_u32 v{TMP}, s{ST}, v{TMP}
        v_and_b32 v{TMP+1}, 1, v{V_G}
        v_lshl_add_u32 v{TMP}, v{TMP+1}, 3, v{TMP}            ; + 8*(g&1)
        v_lshrrev_b32 v{TMP+1}, 1, v{V_G}                     ; g>>1
        """)
        for a_ in range(4):
            for e in range(2):
                I(f"""
                v_add_u32 v{TMP+2}, {4*a_+2*e}, v{TMP+1}
                v_xor_b32 v{TMP+2}, v{TMP+2}, v{V_T}
                v_lshl_add_u32 v{AD+2*a_+e}, v{TMP+2}, 4, v{TMP}
                """)
        RS_ = XH + 16
        I(f"s_mul_i32 s{ST+1}, s{S_M}, 10")
        for j in range(5):
            I(f"""
            s_add_u32 s{ST+2}, s{ST+1}, {2*j}
            v_add_u32 v{TMP+2}, s{ST+2}, v{TMP+1}
            v_lshrrev_b32 v{TMP+3}, 4, v{TMP+2}
            v_and_b32 v{TMP+2}, 15, v{TMP+2}
            v_xor_b32 v{TMP+2}, v{TMP+2}, v{V_T}
            v_lshl_add_u32 v{TMP+2}, v{TMP+2}, 4, v{TMP}
            v_lshl_add_u32 v{RS_+j}, v{TMP+3}, 12, v{TMP+2}
            """)
        lw1 = self.b.uid("L_xw"); lwj = self.b.uid("L_xw")
        I(f"""
        s_cmp_lt_u32 s{S_M}, 2
        s_cbranch_scc1 {lw1}
        s_waitcnt vmcnt(1)
        s_branch {lwj}
        {lw1}:
        s_waitcnt vmcnt(8)
        {lwj}:
        """)
        for s_ in range(20):
            for e in range(2):
                I(f"ds_read_b64 v[{XF+4*s_+2*e}:{XF+4*s_+2*e+1}], v{AD+2*(s_&3)+e} offset:{4096*(s_>>2)}")
        for j in range(5):
            I(f"ds_read_b64 v[{XH+24+2*j}:{XH+25+2*j}], v{RS_+j}")
        self.tag_eval()
        I("s_waitcnt lgkmcnt(0)")
        for j in range(10): I(f"v_accvgpr_write_b32 a{j}, v{XH+24+j}")
        I("s_barrier")
        labd = self.b.uid("L_dg")
        I(f"s_cmp_lg_u32 s{self.S_PROD}, 2\ns_cbranch_scc1 {labd}")
        self.MT = self.MT3
        self.mod_dma(cdst="a[250:251]")
        I(f"{labd}:")
        wq = self.wq_ops()
        self.stamp("xfrag")
        C("LN1 stats: sum via ones-MFMA, sumsq via Gram diagonal")
        ONES, D1, D2 = TMP, TMP+4, TMP+8
        for i in range(4): I(f"v_mov_b32 v{ONES+i}, 0x3f803f80")
        for s in range(20):
            I(f"v_mfma_f32_16x16x32_bf16 {vr(D1)}, {vr(ONES)}, {vr(XF+4*s)}, {'0' if s == 0 else vr(D1)}")
            I(f"v_mfma_f32_16x16x32_bf16 {vr(D2)}, {vr(XF+4*s)}, {vr(XF+4*s)}, {'0' if s == 0 else vr(D2)}")
            if s % 2 == 0 and wq: wq.pop(0)()
        MU, RS, T1, T2 = XH, XH+1, XH+2, XH+3
        I(f"""
        v_and_b32 v{T1}, 3, v{V_T}
        v_cmp_eq_u32 vcc, 1, v{T1}
        v_cndmask_b32 v{T2}, v{D2}, v{D2+1}, vcc
        v_cmp_eq_u32 vcc, 2, v{T1}
        v_cndmask_b32 v{T2}, v{T2}, v{D2+2}, vcc
        v_cmp_eq_u32 vcc, 3, v{T1}
        v_cndmask_b32 v{T2}, v{T2}, v{D2+3}, vcc
        v_lshrrev_b32 v{T1}, 2, v{V_T}
        v_lshl_add_u32 v{T1}, v{T1}, 4, v{V_T}
        v_lshlrev_b32 v{T1}, 2, v{T1}
        ds_bpermute_b32 v{T2}, v{T1}, v{T2}
        v_mul_f32 v{MU}, {1.0/640!r}, v{D1}
        s_waitcnt lgkmcnt(0)
        v_mul_f32 v{T2}, {1.0/640!r}, v{T2}
        v_fma_f32 v{T2}, -v{MU}, v{MU}, v{T2}
        v_max_f32 v{T2}, 0, v{T2}
        v_add_f32 v{T2}, 0x3727c5ac, v{T2}
        v_rsq_f32 v{RS}, v{T2}
        s_nop 0
        v_mul_f32 v{MU}, v{MU}, v{RS}
        v_sub_f32 v{TMP}, 0, v{MU}                           ; -mu*rstd
        v_mov_b32 v{TMP+1}, v{TMP}
        v_mov_b32 v{TMP+2}, v{RS}
        v_mov_b32 v{TMP+3}, v{RS}
        """)
        C("xhat = x*rstd - mu*rstd (fp32)")
        for s in range(20):
            for q in range(4):
                src = XF + 4*s + q
                d = XH + 8*s + 2*q
                if d + 1 >= 238 and False: pass
                I(f"v_lshlrev_b32 v{d}, 16, v{src}\nv_and_b32 v{d+1}, 0xffff0000, v{src}")
            for q in range(4):
                d = XH + 8*s + 2*q
                I(f"v_pk_fma_f32 v[{d}:{d+1}], v[{d}:{d+1}], v[{TMP+2}:{TMP+3}], v[{TMP}:{TMP+1}]")
            if s < 17 and wq: wq.pop(0)()
        assert not wq
        self.stamp("xhat")
        G0 = TMP+4
        lp = self.b.uid("L_mp"); ok = self.b.uid("L_mpok")
        I(f"""
        s_mul_i32 s{ST+1}, s{S_WV}, {80*16}
        v_add_u32 v{TMP+2}, s{ST+1}, v{V_L16}
        v_add_u32 v{TMP+3}, 1024, v{TMP+2}
        v_cmp_gt_u32 vcc, 16, v{V_L}
        v_cndmask_b32 v{TMP+3}, v{TMP+2}, v{TMP+3}, vcc
        s_mov_b32 s{ST}, {TIMEOUT}
        {lp}:
        buffer_load_dwordx4 {vr(G0)}, v{TMP+2}, {sr(S_WS)}, 0 offen offset:{MODG} sc1
        buffer_load_dwordx4 {vr(G0+4)}, v{TMP+3}, {sr(S_WS)}, 0 offen offset:{MODG} sc1
        s_waitcnt vmcnt(0)
        v_cmp_ne_u32 vcc, s{S_TAG}, v{G0+2}
        s_mov_b64 s[{ST+2}:{ST+3}], vcc
        v_cmp_ne_u32 vcc, s{S_TAG+1}, v{G0+3}
        s_or_b64 s[{ST+2}:{ST+3}], s[{ST+2}:{ST+3}], vcc
        v_cmp_ne_u32 vcc, s{S_TAG}, v{G0+6}
        s_or_b64 s[{ST+2}:{ST+3}], s[{ST+2}:{ST+3}], vcc
        v_cmp_ne_u32 vcc, s{S_TAG+1}, v{G0+7}
        s_or_b64 s[{ST+2}:{ST+3}], s[{ST+2}:{ST+3}], vcc
        s_cmp_eq_u64 s[{ST+2}:{ST+3}], 0
        s_cbranch_scc1 {ok}
        """)
        self.spin_tail(ST, lp, 2)
        I(f"{ok}:")
        for blk, av in ((G0, TMP+2), (G0+4, TMP+3)):
            I(f"""
            v_and_b32 v{blk+3}, 0xffff0000, v{blk+1}
            v_lshlrev_b32 v{blk+2}, 16, v{blk+1}
            v_and_b32 v{blk+1}, 0xffff0000, v{blk}
            v_lshlrev_b32 v{blk}, 16, v{blk}
            """)
        lab_a = self.b.uid("L_a")
        I(f"s_cmp_lt_u32 s{S_WV}, 2\ns_cbranch_scc1 {lab_a}")
        for blk in (G0, G0+4):
            for q in range(4): I(f"v_add_f32 v{blk+q}, 1.0, v{blk+q}")
            I(f"""
            v_cvt_pk_bf16_f32 v{blk}, v{blk}, v{blk+1}
            v_cvt_pk_bf16_f32 v{blk+2}, v{blk+2}, v{blk+3}
            v_and_b32 v{blk+1}, 0xffff0000, v{blk}
            v_lshlrev_b32 v{blk}, 16, v{blk}
            v_and_b32 v{blk+3}, 0xffff0000, v{blk+2}
            v_lshlrev_b32 v{blk+2}, 16, v{blk+2}
            """)
        I(f"""
        {lab_a}:
        v_add_u32 v{TMP+2}, {L_MOD}, v{TMP+2}
        v_add_u32 v{TMP+3}, {L_MOD}, v{TMP+3}
        ds_write_b128 v{TMP+2}, {vr(G0)}
        ds_write_b128 v{TMP+3}, {vr(G0+4)}
        s_waitcnt lgkmcnt(0)
        s_barrier
        """)
        self.stamp("modgot")
        C("h1 = xhat*A + B -> bf16 fragments (overwrites XF).  all DMAs (wq, wk) were waited by vmcnt(0) above, barrier publishes them")
        va = TMP
        I(f"v_lshlrev_b32 v{va}, 4, v{V_G}\nv_add_u32 v{va}, {L_MOD}, v{va}")
        def buf(s): return (XF + 48 + 16*(s & 1)) if s < 12 else (XH + 16*(s & 1))
        def rd(s):
            B_ = buf(s)
            for hf in range(2):
                I(f"ds_read_b128 {vr(B_+4*hf)}, v{va} offset:{2560 + 128*s + 64*hf}")
                I(f"ds_read_b128 {vr(B_+8+4*hf)}, v{va} offset:{128*s + 64*hf}")
        rd(0)
        for s in range(20):
            if s + 1 < 20: rd(s+1)
            I(f"s_waitcnt lgkmcnt({4 if s + 1 < 20 else 0})")
            B_ = buf(s)
            for q in range(4):
                d = XH + 8*s + 2*q
                I(f"v_pk_fma_f32 v[{d}:{d+1}], v[{d}:{d+1}], v[{B_+2*q}:{B_+2*q+1}], v[{B_+8+2*q}:{B_+8+2*q+1}]")
            for q in range(4):
                d = XH + 8*s + 2*q
                I(f"v_cvt_pk_bf16_f32 v{XF+4*s+q}, v{d}, v{d+1}")
        self.stamp("h1")

    def phase_kv(self):
        I, C = self.I, self.C
        XF, XH = self.XF, self.XH
        lab_end = self.b.uid("L_kvend"); lab_v = self.b.uid("L_v"); lab_pub = self.b.uid("L_kvpub")
        va, vb, W0, ACC0, ACC1, T = XH, XH+1, XH+4, XH+24, XH+28, XH+32
        I(f"""
        s_cmp_ge_u32 s{S_M}, 2
        s_cbranch_scc1 {lab_end}
        v_lshrrev_b32 v{va}, 2, v{V_T}
        v_lshl_add_u32 v{va}, v{V_G}, 2, v{va}
        v_mul_u32_u24 v{va}, 40, v{va}
        v_and_b32 v{vb}, 3, v{V_T}
        v_lshl_add_u32 v{va}, v{vb}, 3, v{va}
        v_add_u32 v{va}, {L_WK}, v{va}
        s_cmp_eq_u32 s{S_M}, 1
        s_cbranch_scc1 {lab_v}
        """)
        def loop(isv):
            WK = XH + 48
            def rd(s):
                o = WK + (s % 4)*8
                I(f"""
                ds_read_b64_tr_b16 v[{o}:{o+1}], v{va} offset:{1280*s}
                ds_read_b64_tr_b16 v[{o+2}:{o+3}], v{va} offset:{1280*s+640}
                ds_read_b64_tr_b16 v[{o+4}:{o+5}], v{va} offset:{1280*s+32}
                ds_read_b64_tr_b16 v[{o+6}:{o+7}], v{va} offset:{1280*s+672}
                """)
            for s in range(3): rd(s)
            for s in range(20):
                if s + 3 < 20: rd(s+3)
                I(f"s_waitcnt lgkmcnt({4*min(3, 19-s)})")
                o2 = WK + (s % 4)*8
                for tl, acc in ((0, ACC0), (1, ACC1)):
                    w = vr(o2+4*tl); x = vr(XF+4*s)
                    c = '0' if s == 0 else vr(acc)
                    if isv: I(f"v_mfma_f32_16x16x32_bf16 {vr(acc)}, {x}, {w}, {c}")
                    else:   I(f"v_mfma_f32_16x16x32_bf16 {vr(acc)}, {w}, {x}, {c}")
        C("K: D[dim 4g+r][token t]")
        loop(False)
        I(f"""
        v_mul_f32 v{T}, v{ACC0}, v{ACC0}
        v_fmac_f32 v{T}, v{ACC0+1}, v{ACC0+1}
        v_fmac_f32 v{T}, v{ACC0+2}, v{ACC0+2}
        v_fmac_f32 v{T}, v{ACC0+3}, v{ACC0+3}
        v_mul_f32 v{T+1}, v{ACC1}, v{ACC1}
        v_fmac_f32 v{T+1}, v{ACC1+1}, v{ACC1+1}
        v_fmac_f32 v{T+1}, v{ACC1+2}, v{ACC1+2}
        v_fmac_f32 v{T+1}, v{ACC1+3}, v{ACC1+3}
        v_cmp_eq_u32 vcc, 0, v{V_G}
        v_cndmask_b32 v{T+1}, 0, v{T+1}, vcc
        v_add_f32 v{T}, v{T}, v{T+1}
        """)
        self.reduce_g([T], T+2)
        for sh in (8, 4, 2, 1):
            I(f"v_mov_b32_dpp v{T+2}, v{T} row_ror:{sh} row_mask:0xf bank_mask:0xf\nv_max_f32 v{T}, v{T}, v{T+2}")
        I(f"""
        s_lshl_b32 s{ST}, s{S_WV}, 2
        s_add_u32 s{ST}, s{ST}, {L_MISC}
        v_mov_b32 v{T+2}, s{ST}
        ds_write_b32 v{T+2}, v{T}
        """)
        I(f"""
        v_cvt_pk_bf16_f32 v{T+4}, v{ACC0}, v{ACC0+1}
        v_cvt_pk_bf16_f32 v{T+5}, v{ACC0+2}, v{ACC0+3}
        v_cvt_pk_bf16_f32 v{T+6}, v{ACC1}, v{ACC1+1}
        v_cvt_pk_bf16_f32 v{T+7}, v{ACC1+2}, v{ACC1+3}
        s_lshr_b32 s{ST}, s{S_TT}, 1
        s_mul_i32 s{ST}, s{ST}, {KVT}
        s_add_u32 s{ST}, s{ST}, {KV}
        s_and_b32 s{ST+1}, s{S_TT}, 1
        s_lshl_b32 s{ST+1}, s{ST+1}, 4
        v_add_u32 v{T+8}, s{ST+1}, v{V_T}                    ; kk
        v_lshrrev_b32 v{T+9}, 1, v{V_G}
        v_lshl_add_u32 v{T+9}, v{T+9}, 5, v{T+8}             ; kk+32*(g>>1)
        v_lshlrev_b32 v{T+9}, 4, v{T+9}
        v_and_b32 v{T+10}, 1, v{V_G}
        v_lshl_add_u32 v{T+9}, v{T+10}, 3, v{T+9}
        buffer_store_dwordx2 v[{T+4}:{T+5}], v{T+9}, {sr(S_WS)}, s{ST} offen sc1
        v_lshlrev_b32 v{T+8}, 3, v{T+8}
        v_cmp_eq_u32 vcc, 0, v{V_G}
        s_and_saveexec_b64 s[{ST+4}:{ST+5}], vcc
        buffer_store_dwordx2 v[{T+6}:{T+7}], v{T+8}, {sr(S_WS)}, s{ST} offen offset:1024 sc1
        s_mov_b64 exec, s[{ST+4}:{ST+5}]
        s_branch {lab_pub}
        {lab_v}:
        """)
        C("V^T: D[token 4g+r][d = lane&15]")
        loop(True)
        I(f"""
        v_cvt_pk_bf16_f32 v{T+4}, v{ACC0}, v{ACC0+1}
        v_cvt_pk_bf16_f32 v{T+5}, v{ACC0+2}, v{ACC0+3}
        v_cvt_pk_bf16_f32 v{T+6}, v{ACC1}, v{ACC1+1}
        v_cvt_pk_bf16_f32 v{T+7}, v{ACC1+2}, v{ACC1+3}
        v_cmp_eq_u32 vcc, 4, v{V_T}
        v_mov_b32 v{T+11}, 0x3f803f80
        v_cndmask_b32 v{T+6}, v{T+6}, v{T+11}, vcc
        v_cndmask_b32 v{T+7}, v{T+7}, v{T+11}, vcc
        s_lshr_b32 s{ST}, s{S_TT}, 1
        s_mul_i32 s{ST}, s{ST}, {KVT}
        s_and_b32 s{ST+1}, s{S_TT}, 1
        s_lshl_b32 s{ST+1}, s{ST+1}, 10
        s_add_u32 s{ST}, s{ST}, s{ST+1}
        s_add_u32 s{ST}, s{ST}, {KV+1280}
        v_and_b32 v{T+9}, 1, v{V_G}
        v_lshl_add_u32 v{T+9}, v{T+9}, 5, v{V_T}             ; d + 32*(g&1)
        v_lshlrev_b32 v{T+9}, 4, v{T+9}
        v_lshrrev_b32 v{T+10}, 1, v{V_G}
        v_lshl_add_u32 v{T+9}, v{T+10}, 3, v{T+9}
        buffer_store_dwordx2 v[{T+4}:{T+5}], v{T+9}, {sr(S_WS)}, s{ST} offen sc1
        v_cmp_gt_u32 vcc, 5, v{V_T}
        s_and_saveexec_b64 s[{ST+4}:{ST+5}], vcc
        buffer_store_dwordx2 v[{T+6}:{T+7}], v{T+9}, {sr(S_WS)}, s{ST} offen offset:256 sc1
        s_mov_b64 exec, s[{ST+4}:{ST+5}]
        v_mov_b32 v{T}, 0
        s_lshl_b32 s{ST}, s{S_WV}, 2
        s_add_u32 s{ST}, s{ST}, {L_MISC}
        v_mov_b32 v{T+2}, s{ST}
        ds_write_b32 v{T+2}, v{T}
        {lab_pub}:
        s_waitcnt vmcnt(0) lgkmcnt(0)
        s_barrier
        """)
        lab_np = self.b.uid("L_kvnp")
        I(f"""
        s_cmp_lg_u32 s{S_WV}, 0
        s_cbranch_scc1 {lab_np}
        v_mov_b32 v{T+2}, {L_MISC}
        ds_read_b128 {vr(T+4)}, v{T+2}
        s_waitcnt lgkmcnt(0)
        v_max_f32 v{T+4}, v{T+4}, v{T+5}
        v_max_f32 v{T+6}, v{T+6}, v{T+7}
        v_max_f32 v{T+6}, v{T+4}, v{T+6}
        v_mov_b32 v{T+4}, s{S_TAG}
        v_mov_b32 v{T+5}, s{S_TAG+1}
        v_mov_b32 v{T+7}, 0
        s_lshl_b32 s{ST}, s{S_RB}, 1
        s_add_u32 s{ST}, s{ST}, s{S_M}
        s_lshl_b32 s{ST}, s{ST}, 7
        s_add_u32 s{ST}, s{ST}, {KVFLAG}
        v_mov_b32 v{T+2}, s{ST}
        s_mov_b64 exec, 1
        buffer_store_dwordx4 {vr(T+4)}, v{T+2}, {sr(S_WS)}, 0 offen sc1
        s_mov_b64 exec, -1
        {lab_np}:
        {lab_end}:
        """)
        self.stamp("kvpub")

    QA0, QA1, QB0, QB1 = 44, 48, 52, 56
    SA, SB = 60, 76
    PA, PB = 92, 100
    OA, OB = 108, 124
    KB = 140
    VB = 172
    AT = 204

    def phase_q(self):
        I, C = self.I, self.C
        XF, XH = self.XF, self.XH
        va, vb, WB, ACC = XH, XH+1, XH+4, XH+64
        I(f"""
        v_lshrrev_b32 v{va}, 2, v{V_T}
        v_lshl_add_u32 v{va}, v{V_G}, 2, v{va}
        v_mul_u32_u24 v{va}, 160, v{va}
        v_and_b32 v{vb}, 3, v{V_T}
        v_lshl_add_u32 v{va}, v{vb}, 3, v{va}
        v_add_u32 v{vb}, 51200, v{va}
        """)
        issued = []
        def rd1(s, j):
            base = va if s < 10 else vb
            o = 5120*(s % 10)
            W_ = WB + 20*(s % 3) + 4*j
            I(f"ds_read_b64_tr_b16 v[{W_}:{W_+1}], v{base} offset:{L_WQ + o + 32*j}")
            I(f"ds_read_b64_tr_b16 v[{W_+2}:{W_+3}], v{base} offset:{L_WQ + o + 32*j + 2560}")
            issued.append((s, j))
        for s in range(2):
            for j in range(5): rd1(s, j)
        for s in range(20):
            younger = 2*(len(issued) - 1 - issued.index((s, 4)))
            I(f"s_waitcnt lgkmcnt({min(15, younger)})")
            for j in range(5):
                I(f"v_mfma_f32_16x16x32_bf16 {vr(ACC+4*j)}, {vr(WB+20*(s%3)+4*j)}, {vr(XF+4*s)}, {'0' if s == 0 else vr(ACC+4*j)}")
                if s + 2 < 20: rd1(s+2, j)
        qs = (20 ** -0.5) * 1.4426950408889634
        I(f"s_mov_b32 s{ST}, {hex(f2u(qs))}")
        C("scale, pack, write wave-private [16][176B] tile")
        I(f"""
        s_mul_i32 s{ST+1}, s{S_WV}, {16*176}
        s_add_u32 s{ST+1}, s{ST+1}, {L_QS}
        v_mul_u32_u24 v{va}, 176, v{V_T}
        v_lshl_add_u32 v{va}, v{V_G}, 3, v{va}
        v_add_u32 v{va}, s{ST+1}, v{va}
        """)
        for j in range(5):
            a = ACC + 4*j
            for r in range(4): I(f"v_mul_f32 v{a+r}, s{ST}, v{a+r}")
            I(f"v_cvt_pk_bf16_f32 v{a}, v{a}, v{a+1}\nv_cvt_pk_bf16_f32 v{a+1}, v{a+2}, v{a+3}")
            I(f"ds_write_b64 v{va}, v[{a}:{a+1}] offset:{32*j}")
        AT = self.AT
        I(f"""
        v_mul_u32_u24 v{vb}, 176, v{V_T}
        v_bfe_u32 v{va}, v{V_L}, 4, 1
        v_mul_u32_u24 v{va}, 40, v{va}
        v_add_u32 v{vb}, v{vb}, v{va}
        v_add_u32 v{vb}, s{ST+1}, v{vb}                      ; token*176 + (q>>4)*40
        v_lshrrev_b32 v{va}, 5, v{V_L}
        v_lshl_add_u32 v{va}, v{va}, 4, v{vb}                ; + 16h
        s_waitcnt lgkmcnt(0)
        ds_read_b64 v[{self.QA0}:{self.QA0+1}], v{va}
        ds_read_b64 v[{self.QA0+2}:{self.QA0+3}], v{va} offset:8
        ds_read_b64 v[{self.QB0}:{self.QB0+1}], v{va} offset:80
        ds_read_b64 v[{self.QB0+2}:{self.QB0+3}], v{va} offset:88
        ds_read_b64 v[{self.QA1}:{self.QA1+1}], v{vb} offset:32
        ds_read_b64 v[{self.QB1}:{self.QB1+1}], v{vb} offset:112
        v_cmp_gt_u32 vcc, 32, v{V_L}
        s_waitcnt lgkmcnt(0)
        """)
        for r in (self.QA1, self.QA1+1, self.QB1, self.QB1+1):
            I(f"v_cndmask_b32 v{r}, 0, v{r}, vcc")
        for (t, q0, q1) in ((AT, self.QA0, self.QA1), (AT+1, self.QB0, self.QB1)):
            I(f"v_mov_b32 v{t}, 0")
            for r in (q0, q0+1, q0+2, q0+3, q1, q1+1):
                I(f"v_dot2_f32_bf16 v{t}, v{r}, v{r}, v{t}")
        for t in (AT, AT+1):
            I(f"v_mov_b32 v{AT+2}, v{t}\nv_permlane32_swap_b32 v{t}, v{AT+2}\nv_add_f32 v{t}, v{t}, v{AT+2}")
        I(f"v_max_f32 v{AT}, v{AT}, v{AT+1}")
        labg = self.b.uid("L_dg")
        I(f"s_cmp_lg_u32 s{self.S_PROD}, 2\ns_cbranch_scc1 {labg}")
        I(f"v_accvgpr_read_b32 v248, a250\nv_accvgpr_read_b32 v249, a251")
        self.MT = self.MT2
        self.mod_gemv(60, 0, 0, None)
        I(f"{labg}:")
        I("s_barrier")
        self.stamp("qproj")

    RL_OFF, RL_TR, RL_D = 4, 11, 12
    S_RKS, S_RDS, RL_TRS = (78, 82), (79, 83), (11, 40)
    def rl_issue(self, rnd):
        I = self.I
        self.S_RK, self.S_RD, self.RL_TR = self.S_RKS[rnd], self.S_RDS[rnd], self.RL_TRS[rnd]
        u, A0, A1 = ST+4, ST+5, ST+6
        lk4 = self.b.uid("L_r4"); lk3 = self.b.uid("L_r3"); lA = self.b.uid("L_rA"); lend = self.b.uid("L_re")
        I(f"""
        s_lshl_b32 s{u}, s{S_W}, 2
        s_add_u32 s{u}, s{u}, s{S_WV}
        """)
        if rnd == 1:
            I(f"""
            s_mov_b32 s{self.S_RK}, 2
            s_add_u32 s{u}, s{u}, 1024
            s_cmp_ge_u32 s{u}, 1232
            s_cbranch_scc1 {lend}
            s_branch {lk3}
            """)
        else:
            I(f"""
            s_cmp_ge_u32 s{u}, 912
            s_cbranch_scc1 {lk3}
            s_cmp_ge_u32 s{u}, 480
            s_cbranch_scc1 {lk4}
            s_mul_i32 s{A0}, s{u}, 410
            s_lshr_b32 s{A0}, s{A0}, 16                 ; p = u/160
            s_mul_i32 s{A1}, s{A0}, 160
            s_sub_u32 s{u}, s{u}, s{A1}                 ; r
            s_cmp_eq_u32 s{A0}, 1
            s_cselect_b32 s{S_A}, s{P_W1}, s{P_WO}
            s_cselect_b32 s{S_A+1}, s{P_W1+1}, s{P_WO+1}
            s_cmp_eq_u32 s{A0}, 2
            s_cselect_b32 s{S_A}, s{P_W2}, s{S_A}
            s_cselect_b32 s{S_A+1}, s{P_W2+1}, s{S_A+1}
            s_mov_b32 s{S_A+2}, {640*1280}
            s_mul_i32 s{A0}, s{A0}, 100                 ; p*100
            s_mul_i32 s{A1}, s{u}, 3277
            s_lshr_b32 s{A1}, s{A1}, 16                 ; m = r/20
            s_mul_i32 s{ST+7}, s{A1}, 20
            s_sub_u32 s{u}, s{u}, s{ST+7}               ; kb
            s_mul_i32 s{ST+7}, s{u}, 5
            s_add_u32 s{A0}, s{A0}, s{ST+7}
            s_lshl_b32 s{A0}, s{A0}, 10
            s_mul_i32 s{ST+7}, s{A1}, {WSA_M}
            s_add_u32 s{A0}, s{A0}, s{ST+7}
            s_add_u32 s{self.S_RD}, s{A0}, {WSA}
            s_branch {lA}
            {lk4}:
            s_sub_u32 s{u}, s{u}, 480
            s_mov_b32 s{S_A}, s{P_W4}
            s_mov_b32 s{S_A+1}, s{P_W4+1}
            s_mov_b32 s{S_A+2}, {1728*1280}
            s_mul_i32 s{A1}, s{u}, 1214
            s_lshr_b32 s{A1}, s{A1}, 16                 ; m = r/54
            s_mul_i32 s{ST+7}, s{A1}, 54
            s_sub_u32 s{u}, s{u}, s{ST+7}               ; kb
            s_mul_i32 s{A0}, s{u}, 5120
            s_mul_i32 s{ST+7}, s{A1}, {W4S_M}
            s_add_u32 s{A0}, s{A0}, s{ST+7}
            s_add_u32 s{self.S_RD}, s{A0}, {W4S}
            {lA}:
            s_mov_b32 s{S_A+3}, 0x20000
            s_mov_b32 s{self.S_RK}, 0
            s_mul_i32 s{u}, s{u}, {32*1280}
            s_mul_i32 s{A1}, s{A1}, 160
            s_add_u32 s{u}, s{u}, s{A1}
            s_mul_i32 s{A0}, s{S_WV}, 14336
            """)
            O = self.RL_OFF
            for q in range(5):
                I(f"""
                v_add_u32 v{O+5}, {64*q}, v{V_L}
                v_mul_u32_u24 v{O+6}, 6554, v{O+5}
                v_lshrrev_b32 v{O+6}, 16, v{O+6}
                v_mul_u32_u24 v{O+q}, {1280-160}, v{O+6}
                v_lshl_add_u32 v{O+q}, v{O+5}, 4, v{O+q}
                """)
            for q in range(5):
                I(f"s_mov_b32 m0, s{A0}\ns_add_u32 s{A0}, s{A0}, 1024\nbuffer_load_dwordx4 v{O+q}, {sr(S_A)}, s{u} offen lds")
            I(f"""
            v_lshrrev_b32 v{self.RL_TR}, 2, v{V_T}
            v_lshl_add_u32 v{self.RL_TR}, v{V_G}, 2, v{self.RL_TR}
            v_mul_u32_u24 v{self.RL_TR}, 160, v{self.RL_TR}
            s_branch {lend}_tr
            """)
        I(f"""
        {lk3}:
        s_sub_u32 s{u}, s{u}, 912
        s_mov_b32 s{S_A}, s{P_W3}
        s_mov_b32 s{S_A+1}, s{P_W3+1}
        s_mov_b32 s{S_A+2}, {640*3456}
        s_mov_b32 s{S_A+3}, 0x20000
        s_mov_b32 s{self.S_RK}, 1
        s_mul_i32 s{A1}, s{u}, 3277
        s_lshr_b32 s{A1}, s{A1}, 16                 ; m16 = r/20
        s_mul_i32 s{ST+7}, s{A1}, 20
        s_sub_u32 s{u}, s{u}, s{ST+7}               ; kb
        s_mul_i32 s{A0}, s{u}, 7168
        s_mul_i32 s{ST+7}, s{A1}, {W3S_M}
        s_add_u32 s{A0}, s{A0}, s{ST+7}
        s_add_u32 s{self.S_RD}, s{A0}, {W3S}
        s_mul_i32 s{A0}, s{A1}, 7
        s_sub_u32 s{ST+7}, s{A1}, 12
        s_max_i32 s{ST+7}, s{ST+7}, 0
        s_sub_u32 s{A0}, s{A0}, s{ST+7}
        s_lshl_b32 s{A0}, s{A0}, 5
        s_mul_i32 s{u}, s{u}, {32*3456}
        s_add_u32 s{u}, s{u}, s{A0}
        s_mul_i32 s{A0}, s{S_WV}, 14336
        s_add_u32 s{A0}, s{A0}, {7168*rnd}
        """)
        O = self.RL_OFF
        for q in range(7):
            I(f"""
            v_add_u32 v{self.RL_D}, {64*q}, v{V_L}
            v_mul_u32_u24 v{self.RL_D+1}, 4682, v{self.RL_D}
            v_lshrrev_b32 v{self.RL_D+1}, 16, v{self.RL_D+1}
            v_mul_u32_u24 v{O+q}, {3456-224}, v{self.RL_D+1}
            v_lshl_add_u32 v{O+q}, v{self.RL_D}, 4, v{O+q}
            """)
        for q in range(7):
            I(f"s_mov_b32 m0, s{A0}\ns_add_u32 s{A0}, s{A0}, 1024\nbuffer_load_dwordx4 v{O+q}, {sr(S_A)}, s{u} offen lds")
        I(f"""
        v_lshrrev_b32 v{self.RL_TR}, 2, v{V_T}
        v_lshl_add_u32 v{self.RL_TR}, v{V_G}, 2, v{self.RL_TR}
        v_mul_u32_u24 v{self.RL_TR}, 224, v{self.RL_TR}
        {lend}_tr:
        v_and_b32 v{self.RL_D}, 3, v{V_T}
        v_lshl_add_u32 v{self.RL_TR}, v{self.RL_D}, 3, v{self.RL_TR}
        s_mul_i32 s{A0}, s{S_WV}, 14336
        s_add_u32 s{A0}, s{A0}, {7168*rnd}
        v_add_u32 v{self.RL_TR}, s{A0}, v{self.RL_TR}
        {lend}:
        """)

    def rl_store(self, rnd):
        I = self.I
        self.S_RK, self.S_RD, self.RL_TR = self.S_RKS[rnd], self.S_RDS[rnd], self.RL_TRS[rnd]
        l7 = self.b.uid("L_rs7"); lend = self.b.uid("L_rse")
        D = self.RL_D
        I(f"s_cmp_eq_u32 s{self.S_RK}, 2\ns_cbranch_scc1 {lend}\ns_cmp_eq_u32 s{self.S_RK}, 1\ns_cbranch_scc1 {l7}")
        for (nt, rowb, last) in ((5, 160, False), (7, 224, True)):
            if last: I(f"{l7}:")
            for j in range(nt):
                I(f"ds_read_b64_tr_b16 v[{D+4*j}:{D+4*j+1}], v{self.RL_TR} offset:{32*j}")
                I(f"ds_read_b64_tr_b16 v[{D+4*j+2}:{D+4*j+3}], v{self.RL_TR} offset:{32*j+16*rowb}")
            I(f"s_add_u32 s{ST+4}, s{self.S_RD}, 4096\ns_waitcnt lgkmcnt(0)")
            for j in range(nt):
                I(f"buffer_store_dwordx4 {vr(D+4*j)}, v{V_L16}, {sr(S_WS)}, s{self.S_RD if j < 4 else ST+4} offen offset:{1024*(j%4)} sc1")
            if not last: I(f"s_branch {lend}")
        I(f"{lend}:")

    def rl_flag(self):
        I = self.I
        lab = self.b.uid("L_rlp")
        I(f"""
        s_barrier
        s_cmp_lg_u32 s{S_WV}, 0
        s_cbranch_scc1 {lab}
        v_mov_b32 v252, s{S_TAG}
        v_mov_b32 v253, s{S_TAG+1}
        s_lshl_b32 s{ST+4}, s{S_W}, 7
        s_add_u32 s{ST+4}, s{ST+4}, {RLFLAG}
        v_mov_b32 v251, s{ST+4}
        s_mov_b64 exec, 1
        buffer_store_dwordx2 v[252:253], v251, {sr(S_WS)}, 0 offen sc1
        s_mov_b64 exec, -1
        {lab}:
        """)

    def phase_kvwait(self):
        I = self.I
        AT = self.AT
        lp = self.b.uid("L_kvw"); ok = self.b.uid("L_kvok")
        I(f"""
        v_lshlrev_b32 v{AT+3}, 7, v{V_L}
        s_mov_b32 s{ST}, {TIMEOUT}
        s_mov_b32 s{ST+1}, {KVFLAG}
        {lp}:
        buffer_load_dwordx4 {vr(AT+4)}, v{AT+3}, {sr(S_WS)}, s{ST+1} offen sc1
        """)
        I(f"""
        s_waitcnt vmcnt(0)
        v_cmp_ne_u32 vcc, s{S_TAG}, v{AT+4}
        s_mov_b64 s[{ST+2}:{ST+3}], vcc
        v_cmp_ne_u32 vcc, s{S_TAG+1}, v{AT+5}
        s_or_b64 s[{ST+2}:{ST+3}], s[{ST+2}:{ST+3}], vcc
        s_cmp_eq_u64 s[{ST+2}:{ST+3}], 0
        s_cbranch_scc1 {ok}
        """)
        self.spin_tail(ST, lp, 3)
        I(f"{ok}:")
        self.reduce_g([AT+6], AT+2, op="v_max_f32")
        for sh in (8, 4, 2, 1):
            I(f"v_mov_b32_dpp v{AT+2}, v{AT+6} row_ror:{sh} row_mask:0xf bank_mask:0xf\nv_max_f32 v{AT+6}, v{AT+6}, v{AT+2}")
        I(f"v_mov_b32 v{AT+1}, v{AT+6}")
        self.xid_publish()
        self.stamp("kvwait")

    def kv_loads(self, i, sK, sV):
        raise NotImplementedError

    def phase_attn(self, force_slow=False):
        I, C = self.I, self.C
        QA0, QA1, QB0, QB1, SA, SB, PA, PB, OA, OB, KB, VB, AT = (self.QA0, self.QA1, self.QB0, self.QB1, self.SA, self.SB,
            self.PA, self.PB, self.OA, self.OB, self.KB, self.VB, self.AT)
        sK, sV, cnt = 85, 86, 87
        vK1 = AT+2
        lab_slow = self.b.uid("L_slow"); lab_done = self.b.uid("L_adone")
        C("bound check: |q|^2 * kmax2 <= T^2 (log2 units) else true-max path")
        Tlim = 64.0
        I(f"""
        v_mul_f32 v{AT}, v{AT}, v{AT+1}
        v_and_b32 v{vK1}, 31, v{V_L}
        v_lshlrev_b32 v{vK1}, 3, v{vK1}
        s_mov_b32 s{ST+3}, {hex(f2u(Tlim*Tlim if not force_slow else -1.0))}
        v_cmp_nge_f32 vcc, s{ST+3}, v{AT}
        """)
        I(f"s_cmp_lg_u64 vcc, 0\ns_cselect_b32 s{self.S_SLOW}, 1, 0")
        for r in range(16): I(f"v_mov_b32 v{OA+r}, 0\nv_mov_b32 v{OB+r}, 0")
        KVL = self.L_KV
        vK16, vK8 = 200, 201
        KR, VR = 16, 48
        def kreg(buf): return KR + 8*buf
        def vreg(buf): return VR + 8*buf
        def rdK(t):
            k = kreg(t % 4); o = (t % 16)*KVT
            I(f"ds_read_b128 {ar(k)}, v{vK16} offset:{o}")
            I(f"ds_read_b64 a[{k+4}:{k+5}], v{vK8} offset:{o+1024}")
        def rdV(t, which=(0, 1)):
            v = vreg(t % 4); o = (t % 16)*KVT
            if 0 in which: I(f"ds_read_b128 {ar(v)}, v{vK16} offset:{o+1280}")
            if 1 in which: I(f"ds_read_b128 {ar(v+4)}, v{vK16} offset:{o+2304}")
        I(f"v_add_u32 v{vK16}, {KVL}, v{V_L16}\nv_add_u32 v{vK8}, {KVL}, v{vK1}")
        for g in range(3): self.kv_dma(g)
        for r in range(16): I(f"v_mov_b32 v{SB+r}, 0xff800000")
        for r in range(8): I(f"v_mov_b32 v{PA+r}, 0")
        for r in range(8): I(f"v_accvgpr_write_b32 a{vreg(3)+r}, 0")
        self.rl_issue(0); self.rl_issue(1)
        I("s_waitcnt vmcnt(9)\ns_barrier")
        rdK(0); rdK(1); rdV(0)
        I(f"s_mov_b32 s{cnt}, 16")
        lp = self.b.uid("L_att"); lhk = [self.b.uid("L_hook") for _ in range(5)]; lback = [self.b.uid("L_back") for _ in range(4)]
        hooks = self.attn_hooks()
        mask = sum(1 << k for k in hooks)
        def exps(S, P, q):
            a = S + 4*q
            I(f"v_exp_f32 v{a}, v{a}\nv_exp_f32 v{a+1}, v{a+1}\nv_exp_f32 v{a+2}, v{a+2}\nv_exp_f32 v{a+3}, v{a+3}")
            I(f"v_cvt_pk_bf16_f32 v{P+2*q}, v{a}, v{a+1}\nv_cvt_pk_bf16_f32 v{P+2*q+1}, v{a+2}, v{a+3}")
        M16 = "v_mfma_f32_32x32x16_bf16"; M8 = "v_mfma_f32_32x32x8_bf16"
        SKS, SKL, SBM = 86, 85, 76
        def copy_slot(q, e):
            n = 2*(q & 1) + e
            if self.x_nokv: return
            if q < 2:
                if n == 3: I("s_mov_b64 exec, 0xffff")
                I(f"buffer_load_dwordx4 v{V_L16}, {sr(S_WS)}, s{SKS} offen offset:{1024*n} lds")
                if n == 3: I(f"s_mov_b64 exec, -1\ns_mov_b32 m0, s{SBM}")
            elif not self.noslot:
                I(f"buffer_load_dwordx4 v{V_L16}, {sr(S_WS)}, s{self.S_DS} offen offset:{1024*n} lds")
        def header(part):
            I("s_waitcnt vmcnt(12) lgkmcnt(4)")
            if not self.x_nobar: I("s_barrier")
            I(f"""
            s_bitcmp1_b32 s84, s{cnt}
            s_cbranch_scc1 {lhk[part]}
            {lback[part]}:
            s_add_u32 s{SKS}, s{SKS}, {4*KVT}
            s_add_u32 m0, s{SKL}, {((part + 3) % 4)*4*KVT}
            """)
        def body(i, qk=True, last=False):
            kb = kreg(i % 4); vb = vreg((i+3) % 4)
            k2 = kreg((i+2) % 4); ok = ((i+2) % 16)*KVT
            v1 = vreg((i+1) % 4); ov = ((i+1) % 16)*KVT
            if qk:
                I(f"{M16} {vr(SA,16)}, {ar(kb)}, {vr(QA0)}, 0")
                if not self.x_nords: I(f"ds_read_b128 {ar(k2)}, v{vK16} offset:{ok}")
            exps(SB, PB, 0)
            if qk:
                I(f"{M8} {vr(SA,16)}, a[{kb+4}:{kb+5}], v[{QA1}:{QA1+1}], {vr(SA,16)}")
            exps(SB, PB, 1)
            I(f"{M16} {vr(OA,16)}, {ar(vb)}, {vr(PA)}, {vr(OA,16)}")
            if qk and not self.x_nords: I(f"ds_read_b64 a[{k2+4}:{k2+5}], v{vK8} offset:{ok+1024}")
            exps(SB, PB, 2)
            I(f"{M16} {vr(OA,16)}, {ar(vb+4)}, {vr(PA+4)}, {vr(OA,16)}")
            if qk: copy_slot(i % 4, 0)
            exps(SB, PB, 3)
            if qk:
                I(f"{M16} {vr(SB,16)}, {ar(kb)}, {vr(QB0)}, 0")
                if not self.x_nords: I(f"ds_read_b128 {ar(v1)}, v{vK16} offset:{ov+1280}")
                exps(SA, PA, 0)
                I(f"{M8} {vr(SB,16)}, a[{kb+4}:{kb+5}], v[{QB1}:{QB1+1}], {vr(SB,16)}")
                copy_slot(i % 4, 1)
                exps(SA, PA, 1)
            I(f"{M16} {vr(OB,16)}, {ar(vb)}, {vr(PB)}, {vr(OB,16)}")
            if qk:
                if not self.x_nords: I(f"ds_read_b128 {ar(v1+4)}, v{vK16} offset:{ov+2304}")
                exps(SA, PA, 2)
            I(f"{M16} {vr(OB,16)}, {ar(vb+4)}, {vr(PB+4)}, {vr(OB,16)}")
            if qk:
                if i % 4 == 3:
                    I(f"s_sub_u32 s{cnt}, s{cnt}, 1")
                    header((i // 4 + 1) % 4)
                else:
                    I("s_waitcnt lgkmcnt(4)")
                exps(SA, PA, 3)
        I(f"""
        s_mul_i32 s{SKL}, s{S_WV}, {KVT}
        s_add_u32 s{SKS}, s{SKL}, {KV + 8*KVT}
        s_add_u32 s{SKL}, s{SKL}, {KVL}
        s_mov_b32 s{SBM}, {self.L_DUMMY}
        s_mov_b32 s{self.S_DS}, {KV}
        s_mov_b32 s84, {hex(mask)}
        """)
        I("s_waitcnt lgkmcnt(0)")
        lentry = self.b.uid("L_ent")
        I(f"""
        s_branch {lhk[4]}
        {lentry}:
        s_add_u32 s{SKS}, s{SKS}, {4*KVT}
        s_add_u32 m0, s{SKL}, {3*4*KVT}
        """)
        self.stamp("loop_in")
        I(f"{lp}:")
        for i in range(16): body(i)
        I(f"s_cmp_lg_u32 s{cnt}, 0\ns_cbranch_scc1 {lp}")
        self.stamp("loop_out")
        C("drain: iteration 64 (V_63)")
        I("s_waitcnt lgkmcnt(0)")
        body(0, qk=False)
        I(f"s_cmp_lg_u32 s{self.S_SLOW}, 0\ns_cbranch_scc1 {lab_slow}\ns_branch {lab_done}")
        I(f"{lhk[4]}:")
        self.hook_body(hooks, 16)
        I(f"s_branch {lentry}")
        for part in range(4):
            I(f"{lhk[part]}:")
            ks = [k for k in sorted(hooks, reverse=True) if (16 - k) % 4 == part and k != 16]
            for n_, k in enumerate(ks):
                nx = None
                if n_ < len(ks) - 1:
                    nx = self.b.uid("L_hk")
                    I(f"s_cmp_lg_u32 s{cnt}, {k}\ns_cbranch_scc1 {nx}")
                self.hook_body(hooks, k)
                I(f"s_branch {lback[part]}")
                if nx: I(f"{nx}:")
            if not ks: I(f"s_branch {lback[part]}")
        I(f"{lab_slow}:")
        for r in range(16): I(f"v_mov_b32 v{OA+r}, 0\nv_mov_b32 v{OB+r}, 0")
        MA_, MB_, T0 = AT+4, AT+5, AT+6
        I(f"v_mov_b32 v{MA_}, 0xff7fffff\nv_mov_b32 v{MB_}, 0xff7fffff")
        I(f"s_mov_b32 s{sK}, {KV}\ns_mov_b32 s{cnt}, 64")
        lp2 = self.b.uid("L_atts")
        I(f"{lp2}:")
        k0, v0 = kreg(0), vreg(0)
        I(f"""
        buffer_load_dwordx4 {ar(k0)}, v{V_L16}, {sr(S_WS)}, s{sK} offen
        buffer_load_dwordx2 a[{k0+4}:{k0+5}], v{vK1}, {sr(S_WS)}, s{sK} offen offset:1024
        buffer_load_dwordx4 {ar(v0)}, v{V_L16}, {sr(S_WS)}, s{sK} offen offset:1280
        buffer_load_dwordx4 {ar(v0+4)}, v{V_L16}, {sr(S_WS)}, s{sK} offen offset:2304
        s_add_u32 s{sK}, s{sK}, {KVT}
        s_waitcnt vmcnt(0)
        """)
        for (S, P, O, Q0, Q1, Mx) in ((SA, PA, OA, QA0, QA1, MA_), (SB, PB, OB, QB0, QB1, MB_)):
            I(f"{M16} {vr(S,16)}, {ar(kreg(0))}, {vr(Q0)}, 0")
            I(f"{M8} {vr(S,16)}, a[{kreg(0)+4}:{kreg(0)+5}], v[{Q1}:{Q1+1}], {vr(S,16)}")
            I(f"v_max3_f32 v{T0}, v{S}, v{S+1}, v{S+2}")
            for r in range(3, 15, 2): I(f"v_max3_f32 v{T0}, v{T0}, v{S+r}, v{S+r+1}")
            I(f"v_max_f32 v{T0}, v{T0}, v{S+15}")
            I(f"v_mov_b32 v{T0+1}, v{T0}\nv_permlane32_swap_b32 v{T0}, v{T0+1}\nv_max_f32 v{T0}, v{T0}, v{T0+1}")
            I(f"v_max_f32 v{T0}, v{T0}, v{Mx}")
            I(f"v_sub_f32 v{T0+1}, v{Mx}, v{T0}\nv_exp_f32 v{T0+1}, v{T0+1}\nv_mov_b32 v{Mx}, v{T0}")
            for r in range(16): I(f"v_mul_f32 v{O+r}, v{O+r}, v{T0+1}")
            for r in range(16): I(f"v_sub_f32 v{S+r}, v{S+r}, v{T0}")
            for q in range(4): exps(S, P, q)
            I(f"{M16} {vr(O,16)}, {ar(vreg(0))}, {vr(P)}, {vr(O,16)}")
            I(f"{M16} {vr(O,16)}, {ar(vreg(0)+4)}, {vr(P+4)}, {vr(O,16)}")
        I(f"s_sub_u32 s{cnt}, s{cnt}, 1\ns_cmp_lg_u32 s{cnt}, 0\ns_cbranch_scc1 {lp2}")
        I(f"{lab_done}:")
        I("s_waitcnt vmcnt(0)\ns_barrier")
        self.stamp("attn")
        self.mod_fetch()
        self.ring_state_after_attn()
        C("normalise and store O in the B-fragment layout of the wo GEMM")
        T = AT
        PK = SA
        I(f"""
        v_lshlrev_b32 v{self.V_L8}, 3, v{V_L}
        s_mul_i32 s{ST}, s{S_WV}, 3072
        s_add_u32 s{ST}, s{ST}, {144*1024}
        v_mul_u32_u24 v{T}, 176, v{V_T}
        v_add_u32 v{T}, s{ST}, v{T}
        v_lshl_add_u32 v{T+1}, v{V_G}, 3, v{T}
        v_bfe_u32 v{T+4}, v{V_L}, 4, 1
        v_mul_u32_u24 v{T+4}, 40, v{T+4}
        v_add_u32 v{T}, v{T}, v{T+4}
        v_lshrrev_b32 v{T+4}, 5, v{V_L}
        v_lshl_add_u32 v{T}, v{T+4}, 3, v{T}
        """)
        for (O, u) in ((OA, 0), (OB, 1)):
            I(f"v_mov_b32 v{T+2}, v{O+8}\nv_mov_b32 v{T+3}, v{O+8}\nv_permlane32_swap_b32 v{T+2}, v{T+3}")
            I(f"v_rcp_f32 v{T+3}, v{T+3}")
            for run in range(3):
                a = O + 4*run
                for r in range(4): I(f"v_mul_f32 v{a+r}, v{a+r}, v{T+3}")
                I(f"v_cvt_pk_bf16_f32 v{a}, v{a}, v{a+1}\nv_cvt_pk_bf16_f32 v{a+1}, v{a+2}, v{a+3}")
                if run == 2: I(f"s_mov_b32 exec_hi, 0")
                I(f"ds_write_b64 v{T}, v[{a}:{a+1}] offset:{80*u + 16*run}")
                if run == 2: I(f"s_mov_b32 exec_hi, -1")
        I("s_waitcnt lgkmcnt(0)")
        for j in range(5):
            I(f"ds_read_b64 v[{PK+2*j}:{PK+2*j+1}], v{T+1} offset:{32*j}")
        I(f"s_mul_i32 s{self.S_T5}, s{S_M}, 5")
        self.tile_base(ST+4, S_TT, 20, OF)
        I("s_waitcnt lgkmcnt(0)")
        self.store_frag(PK, 5, ST+4, self.S_T5)
        self.publish(PH_O); self.vm_drained()
        I("s_barrier")
        self.refill(); self.drip(4)
        self.stamp("opub")

    def dual(self, fn):
        I = self.I
        ls = self.b.uid("L_sl"); lj = self.b.uid("L_sj")
        I(f"s_cmp_eq_u32 s{S_FAST}, 0\ns_cbranch_scc1 {ls}")
        fn("")
        I(f"s_branch {lj}\n{ls}:")
        fn(" sc1")
        I(f"{lj}:")

    def xid_publish(self):
        I = self.I
        lab = self.b.uid("L_xp")
        I(f"""
        s_cmp_lg_u32 s{S_WV}, 0
        s_cbranch_scc1 {lab}
        s_getreg_b32 s{ST}, hwreg(HW_REG_XCC_ID)
        s_and_b32 s{ST}, s{ST}, 15
        v_mov_b32 v252, s{ST}
        v_mov_b32 v253, 0
        v_mov_b32 v254, s{S_TAG}
        v_mov_b32 v255, s{S_TAG+1}
        s_lshl_b32 s{ST}, s{S_RB}, 7
        s_lshl_b32 s{ST+1}, s{S_M}, 4
        s_add_u32 s{ST}, s{ST}, s{ST+1}
        s_add_u32 s{ST}, s{ST}, {XIDG}
        v_mov_b32 v251, s{ST}
        s_mov_b64 exec, 1
        buffer_store_dwordx4 v[252:255], v251, {sr(S_WS)}, 0 offen sc1
        s_mov_b64 exec, -1
        {lab}:
        """)

    XV = 240
    def xid_issue(self):
        I = self.I
        I(f"""
        s_and_b32 s{ST+5}, s{S_RB}, 28
        s_lshl_b32 s{ST+5}, s{ST+5}, 7
        s_add_u32 s{ST+5}, s{ST+5}, {XIDG}
        v_and_b32 v251, 31, v{V_L}
        v_lshlrev_b32 v251, 4, v251
        buffer_load_dwordx4 {vr(self.XV)}, v251, {sr(S_WS)}, s{ST+5} offen sc1
        """)

    def xid_eval(self):
        I = self.I
        X = self.XV
        lp = self.b.uid("L_xc"); ok = self.b.uid("L_xcok")
        I(f"""
        s_mov_b32 s{ST+4}, {TIMEOUT}
        {lp}:
        v_cmp_ne_u32 vcc, s{S_TAG}, v{X+2}
        s_mov_b64 s[{ST+6}:{ST+7}], vcc
        v_cmp_ne_u32 vcc, s{S_TAG+1}, v{X+3}
        s_or_b64 s[{ST+6}:{ST+7}], s[{ST+6}:{ST+7}], vcc
        s_cmp_eq_u64 s[{ST+6}:{ST+7}], 0
        s_cbranch_scc1 {ok}
        """)
        self.xid_issue()
        I("s_waitcnt vmcnt(0)")
        self.spin_tail(ST+4, lp, 14)
        I(f"""
        {ok}:
        s_getreg_b32 s{ST+4}, hwreg(HW_REG_XCC_ID)
        s_and_b32 s{ST+4}, s{ST+4}, 15
        v_cmp_ne_u32 vcc, s{ST+4}, v{X}
        s_cmp_eq_u64 vcc, 0
        s_cselect_b32 s{S_FAST}, {0 if self.force_global else 1}, 0
        """)

    def rl_poll_issue(self):
        I = self.I
        lab = self.b.uid("L_rpi")
        T = 232
        I(f"s_cmp_lg_u32 s{S_WV}, 0\ns_cbranch_scc1 {lab}\nv_lshlrev_b32 v250, 7, v{V_L}")
        for i in range(4):
            I(f"s_mov_b32 s{ST+5}, {RLFLAG + i*8192}\nbuffer_load_dwordx2 v[{T+2*i}:{T+1+2*i}], v250, {sr(S_WS)}, s{ST+5} offen sc1")
        I(f"{lab}:")

    def rl_poll_eval(self):
        I = self.I
        lab = self.b.uid("L_rw"); lp = self.b.uid("L_rwp"); ok = self.b.uid("L_rwok")
        T = 232
        I(f"s_cmp_lg_u32 s{S_WV}, 0\ns_cbranch_scc1 {lab}\ns_mov_b32 s{ST+4}, {TIMEOUT}\n{lp}:\ns_mov_b64 s[{ST+6}:{ST+7}], 0")
        for i in range(4):
            I(f"""
            v_cmp_ne_u32 vcc, s{S_TAG}, v{T+2*i}
            s_or_b64 s[{ST+6}:{ST+7}], s[{ST+6}:{ST+7}], vcc
            v_cmp_ne_u32 vcc, s{S_TAG+1}, v{T+1+2*i}
            s_or_b64 s[{ST+6}:{ST+7}], s[{ST+6}:{ST+7}], vcc
            """)
        I(f"s_cmp_eq_u64 s[{ST+6}:{ST+7}], 0\ns_cbranch_scc1 {ok}")
        self.rl_poll_issue()
        I("s_waitcnt vmcnt(0)")
        self.spin_tail(ST+4, lp, 4)
        I(f"{ok}:\n{lab}:\ns_barrier")

    def publish(self, ph, both=False, vmn=0, line_sreg=None):
        I = self.I
        ln = S_TT if line_sreg is None else line_sreg
        I(f"""
        v_mov_b32 v254, s{S_TAG}
        v_mov_b32 v255, s{S_TAG+1}
        s_lshl_b32 s{ST}, s{ln}, 7
        s_lshl_b32 s{ST+1}, s{S_M}, 3
        s_add_u32 s{ST}, s{ST}, s{ST+1}
        s_add_u32 s{ST}, s{ST}, {CFLAG + ph*CF_PH}
        v_mov_b32 v253, s{ST}
        s_mov_b32 s{ST+1}, {CF_LOC}
        s_waitcnt vmcnt({vmn})
        s_mov_b64 exec, 1
        """)
        def st(f):
            if f == "":
                I(f"buffer_store_dwordx2 v[254:255], v253, {sr(S_WS)}, s{ST+1} offen")
                if both: I(f"buffer_store_dwordx2 v[254:255], v253, {sr(S_WS)}, 0 offen sc1")
            else:
                I(f"buffer_store_dwordx2 v[254:255], v253, {sr(S_WS)}, 0 offen sc1")
        self.dual(st)
        I(f"s_mov_b64 exec, -1")

    def publish_drip(self, ph, both=False, line_sreg=None):
        if self.detail == 2: self.stamp(f"e_sto{ph}")
        self.publish(ph, both=both, vmn=0, line_sreg=line_sreg)
        self.vmq = []
        self.drip(self.pub_after)

    def wait_flags(self, ph, lines, code):
        I = self.I
        lp = self.b.uid("L_wfp"); ok = self.b.uid("L_wfok")
        I(f"v_mov_b32 v251, s{lines[0]}")
        if len(lines) > 1:
            I(f"v_lshrrev_b32 v250, 3, v{V_L}\nv_and_b32 v250, 3, v250")
            for i, r in enumerate(lines[1:], 1):
                I(f"v_cmp_eq_u32 vcc, {i}, v250\nv_mov_b32 v252, s{r}\nv_cndmask_b32 v251, v251, v252, vcc")
        I(f"""
        v_lshrrev_b32 v250, 4, v251
        s_lshr_b32 s{ST}, s{S_RB}, 2
        v_cmp_eq_u32 vcc, s{ST}, v250
        s_mul_i32 s{ST}, s{S_FAST}, {CF_LOC}
        v_mov_b32 v252, s{ST}
        v_cndmask_b32 v250, 0, v252, vcc
        v_lshl_add_u32 v251, v251, 7, v250
        v_and_b32 v252, 7, v{V_L}
        v_lshl_add_u32 v251, v252, 3, v251
        s_mov_b32 s{ST+1}, {CFLAG + ph*CF_PH}
        s_mov_b32 s{ST}, {TIMEOUT}
        buffer_load_dwordx2 v[254:255], v251, {sr(S_WS)}, s{ST+1} offen sc1
        """)
        n0 = len(self.vmq)
        self.drip(self.shadow)
        nsh = len(self.vmq) - n0
        lchk = self.b.uid("L_wfc")
        I(f"""
        s_waitcnt vmcnt({nsh})
        s_branch {lchk}
        {lp}:
        buffer_load_dwordx2 v[254:255], v251, {sr(S_WS)}, s{ST+1} offen sc1
        s_waitcnt vmcnt(0)
        {lchk}:
        v_cmp_ne_u32 vcc, s{S_TAG}, v254
        s_mov_b64 s[{ST+2}:{ST+3}], vcc
        v_cmp_ne_u32 vcc, s{S_TAG+1}, v255
        s_or_b64 s[{ST+2}:{ST+3}], s[{ST+2}:{ST+3}], vcc
        s_cmp_eq_u64 s[{ST+2}:{ST+3}], 0
        s_cbranch_scc1 {ok}
        """)
        self.spin_tail(ST, lp, code)
        I(f"{ok}:")
        self.vmq = self.vmq[len(self.vmq)-nsh:] if nsh else []

    X2, H = 4, 24
    ACC = 44
    MS_GA = 64
    WB = 100
    MS_A2, MS_SB = 160, 180
    GT = 200
    RING = 160
    F_WO, F_W1, F_W2, F_W3, F_W4 = 0, 100, 200, 304, 448
    NUNITS = 45
    S_T5 = 29
    S_SRC = 30
    S_WA, S_W3 , S_W4 = 90, 91, 92
    S_LW = 93
    S_DM, S_DS, S_AO, S_AO2 = 94, 95, 88, 89

    def vm_issue(self, tag): self.vmq.append(tag)
    def vm_wait(self, tag):
        if tag not in self.vmq: return
        i = len(self.vmq) - 1 - self.vmq[::-1].index(tag)
        n = len(self.vmq) - 1 - i
        self.I(f"s_waitcnt vmcnt({min(n, 63)})")
        self.vmq = self.vmq[i+1:]
    def vm_drained(self): self.vmq = []

    def ring_regs(self):
        I = self.I
        I(f"""
        s_lshl_b32 s{self.S_LW}, s{S_WV}, 12
        s_mul_i32 s{self.S_WA}, s{S_M}, {WSA_M}
        s_add_u32 s{self.S_WA}, s{self.S_WA}, {WSA}
        s_add_u32 s{self.S_WA}, s{self.S_WA}, s{self.S_LW}
        s_and_b32 s{self.S_W3}, s{S_RB}, 1
        s_lshl_b32 s{self.S_W3}, s{self.S_W3}, 3
        s_add_u32 s{self.S_W3}, s{self.S_W3}, s{S_M}
        s_mul_i32 s{self.S_W3}, s{self.S_W3}, {W3S_M}
        s_add_u32 s{self.S_W3}, s{self.S_W3}, {W3S}
        s_add_u32 s{self.S_W3}, s{self.S_W3}, s{self.S_LW}
        s_mul_i32 s{self.S_W4}, s{S_M}, {W4S_M}
        s_add_u32 s{self.S_W4}, s{self.S_W4}, {W4S}
        s_add_u32 s{self.S_W4}, s{self.S_W4}, s{self.S_LW}
        """)

    def refill(self, maxn=99):
        n = 0
        while self.units_queued < self.NUNITS and n < maxn:
            u = self.units_queued
            if 16*u + 15 - self.RING > self.consumed: break
            for q in range(4):
                self.pend.append((("u", u, q), (lambda u=u, q=q: self.emit_dma(u, q))))
            self.units_queued += 1; n += 1
        self.resort()

    def resort(self):
        ctx = getattr(self, "loop_ctx", None)
        if ctx is None: return
        F0, NT, S = ctx
        def key(e):
            t = e[0]
            if t[0] == "a": return t[2]
            F = 16*t[1]
            if F + 15 < F0: return -100
            st = max(0, (F - F0)//NT)
            if st >= S: return 1000 + t[1]
            return 4*(st//4) - 2 - 1
        self.pend.sort(key=key)

    def emit_dma(self, u, q, track=True):
        I = self.I
        if q == 0:
            F = 16*u
            if F < 304: base, off = self.S_WA, F*1024
            elif F < 448: base, off = self.S_W3, (F-304)*1024
            else: base, off = self.S_W4, (F-448)*1024
            slot = (F % self.RING)*1024
            I(f"s_add_u32 s{self.S_DM}, s{self.S_LW}, {slot}\ns_mov_b32 m0, s{self.S_DM}\ns_add_u32 s{self.S_DS}, s{base}, {off}")
        I(f"buffer_load_dwordx4 v{V_L16}, {sr(S_WS)}, s{self.S_DS} offen offset:{1024*q} lds")
        if track:
            self.vm_issue(("u", u) if q == 3 else ("ux", u, q))
            if q == 3: self.units_issued = u + 1

    def drip(self, n=1):
        while n > 0 and self.pend:
            tag, fn = self.pend.pop(0)
            fn(); n -= 1

    def flush_until(self, tag):
        if not any(t == tag for t, _ in self.pend): return
        while True:
            t, fn = self.pend.pop(0)
            fn()
            if t == tag: return

    def need_units(self, Fmax):
        u = Fmax // 16
        assert u < self.units_queued, (u, self.units_queued)
        self.flush_until(("u", u, 3))
        self.vm_wait(("u", u))

    def gemm(self, S, NT, F0, aops, abases, burst, rate, cap=99, post_barrier=True, resident=False, chunk=4):
        I = self.I
        WB, ACC, T = self.WB, self.ACC, self.GT
        nt = len(abases)
        vb = [T, T+1, T+2]
        stride = 4*NT
        def rd1(s, j):
            off = ((F0 + s*NT + j) % self.RING)*1024
            k, o = divmod(off, 61440)
            I(f"ds_read_b128 {vr(WB + stride*(s % 3) + 4*j)}, v{vb[k]} offset:{o}")
        while self.pend and self.pend[0][0][0] == "u" and self.pend[0][0][2] != 0: self.drip(1)
        keep = []
        if resident:
            keep = [e for e in self.pend if e[0][0] == "u"]
            self.pend = []
        self.pend = list(aops) + self.pend
        self.loop_ctx = (F0, NT, S)
        if not resident: self.refill(cap)
        self.drip(burst)
        for j in range(NT): rd1(0, j)
        for j in range(NT): rd1(1, j)
        acc_rate = 0.0
        for s in range(S):
            if not resident and s + 2 < S and (s + 2) % chunk == 0:
                last = min(S, s + 2 + chunk) - 1
                if F0 + last*NT + NT - 1 > self.visible or self.units_queued < self.NUNITS:
                    self.need_units(F0 + last*NT + NT - 1)
                    I("s_barrier")
                    self.visible = max(self.visible, F0 + last*NT + NT - 1)
                    self.consumed = max(self.consumed, F0 + (s-1)*NT + NT - 1)
                    self.refill(cap)
            if self.detail == F0 and s % 4 == 0: self.stamp(f"d_k{s}")
            nout = NT if s + 1 < S else 0
            I(f"s_waitcnt lgkmcnt({min(nout, 15)})")
            for tt in range(nt):
                self.flush_until(("a", tt, s))
                self.vm_wait(("a", tt, s))
            acc_rate += rate
            nm = nt*NT
            slots = []
            while acc_rate >= 1.0:
                slots.append(1); acc_rate -= 1.0
            pos = {(k*nm)//max(1, len(slots)) : 0 for k in range(len(slots))}
            for k in range(len(slots)): pos[(k*nm)//len(slots)] += 1
            i = 0
            for tt in range(nt):
                for j in range(NT):
                    c = '0' if s == 0 else vr(ACC+4*(tt*NT+j))
                    I(f"v_mfma_f32_16x16x32_bf16 {vr(ACC+4*(tt*NT+j))}, {vr(WB+stride*(s%3)+4*j)}, {ar(abases[tt]+4*s)}, {c}")
                    if i < NT and s + 2 < S: rd1(s+2, i)
                    if pos.get(i): self.drip(pos[i])
                    i += 1
        self.pending_consumed = {299: 303, 443: 447}.get(F0 + S*NT - 1, F0 + S*NT - 1)
        self.loop_ctx = None
        self.pend = self.pend + keep
        if post_barrier:
            I("s_barrier")
            self.after_barrier()
            self.refill()
            self.drip(self.post_drip)

    def after_barrier(self):
        self.consumed = max(self.consumed, getattr(self, "pending_consumed", -1))

    def lds_bases(self):
        T = self.GT
        self.I(f"v_mov_b32 v{T}, v{V_L16}\nv_add_u32 v{T+1}, 61440, v{V_L16}\nv_add_u32 v{T+2}, {2*61440}, v{V_L16}")

    def a_op(self, tt, s, abase, vaddr, base_sreg, base_add, soff_reg, split=(), vaddr8=None):
        def fn():
            if s % 4 == 0:
                if base_sreg is None: self.I(f"s_mov_b32 s{soff_reg}, {base_add + 1024*s}")
                else: self.I(f"s_add_u32 s{soff_reg}, s{base_sreg}, {base_add + 1024*s}")
            r = abase + 4*s
            if s in split:
                self.I(f"buffer_load_dwordx2 a[{r}:{r+1}], v{vaddr8}, {sr(S_WS)}, s{soff_reg} offen offset:{1024*(s % 4)} sc1")
                self.vm_issue(("ah", tt, s))
                self.I(f"buffer_load_dwordx2 a[{r+2}:{r+3}], v{vaddr8}, {sr(S_WS)}, s{soff_reg} offen offset:{1024*(s % 4)+512} sc1")
            else:
                self.I(f"buffer_load_dwordx4 {ar(r)}, v{vaddr}, {sr(S_WS)}, s{soff_reg} offen offset:{1024*(s % 4)} sc1")
            self.vm_issue(("a", tt, s))
        return (("a", tt, s), fn)

    RAW_GA, RAW_SB, RAW_CB, RAW_GB = 140, 150, 214, 240
    def mod_fetch(self):
        I = self.I
        I(f"v_lshlrev_b32 v244, 4, v{V_G}\nv_add_u32 v244, {self.L_MODW}, v244")
        for (dst, off, acc) in ((self.RAW_GA, 0, False), (self.RAW_SB, 2560, False), (self.RAW_CB, 4096, False), (self.RAW_GB, 4096+2560, True)):
            for j in range(5):
                r = f"a[{dst+2*j}:{dst+2*j+1}]" if acc else f"v[{dst+2*j}:{dst+2*j+1}]"
                I(f"ds_read_b64 {r}, v244 offset:{off + 64*j}")

    def mod_unpack(self):
        I = self.I
        for src, dst in ((self.RAW_GA, self.MS_GA), (self.RAW_SB, self.MS_SB), (self.RAW_CB, self.MS_A2)):
            for i in range(10):
                I(f"v_lshlrev_b32 v{dst+2*i}, 16, v{src+i}\nv_and_b32 v{dst+2*i+1}, 0xffff0000, v{src+i}")
        self.one_plus_bf16(self.MS_A2, 20)

    def one_plus_bf16(self, r, n):
        I = self.I
        for i in range(0, n, 2):
            I(f"""
            v_add_f32 v{r+i}, 1.0, v{r+i}
            v_add_f32 v{r+i+1}, 1.0, v{r+i+1}
            v_cvt_pk_bf16_f32 v{r+i}, v{r+i}, v{r+i+1}
            v_and_b32 v{r+i+1}, 0xffff0000, v{r+i}
            v_lshlrev_b32 v{r+i}, 16, v{r+i}
            """)

    def ln_stats(self, src, which, mu, rs, code, fine=0):
        I = self.I
        T = self.GT + 4
        I(f"v_pk_add_f32 v[{T}:{T+1}], v[{src}:{src+1}], v[{src+2}:{src+3}]\nv_pk_mul_f32 v[{T+2}:{T+3}], v[{src}:{src+1}], v[{src}:{src+1}]")
        I(f"v_pk_fma_f32 v[{T+2}:{T+3}], v[{src+2}:{src+3}], v[{src+2}:{src+3}], v[{T+2}:{T+3}]")
        for i in range(4, 20, 2):
            I(f"v_pk_add_f32 v[{T}:{T+1}], v[{T}:{T+1}], v[{src+i}:{src+i+1}]\nv_pk_fma_f32 v[{T+2}:{T+3}], v[{src+i}:{src+i+1}], v[{src+i}:{src+i+1}], v[{T+2}:{T+3}]")
            if i in (8, 14): self.drip(fine)
        I(f"v_add_f32 v{T}, v{T}, v{T+1}\nv_add_f32 v{T+1}, v{T+2}, v{T+3}")
        self.reduce_g([T, T+1], T+4)
        I(f"""
        v_mov_b32 v{T+2}, s{S_TAG}
        v_mov_b32 v{T+3}, s{S_TAG+1}
        s_lshl_b32 s{ST+4}, s{S_RB}, 13
        s_lshl_b32 s{ST+5}, s{S_WV}, 8
        s_add_u32 s{ST+4}, s{ST+4}, s{ST+5}
        s_add_u32 s{ST+4}, s{ST+4}, {STAT + which*STAT_SZ}
        s_lshl_b32 s{ST+5}, s{S_M}, 10
        s_add_u32 s{ST+5}, s{ST+5}, s{ST+4}
        v_lshlrev_b32 v{T+4}, 4, v{V_T}
        s_mov_b64 exec, 0xffff
        """)
        self.dual(lambda f: I(f"buffer_store_dwordx4 {vr(T)}, v{T+4}, {sr(S_WS)}, s{ST+5} offen{f}"))
        I("s_mov_b64 exec, -1")
        if self.detail == 2: self.stamp(f"e_st{which}")
        I(f"""
        s_mov_b64 exec, -1
        v_lshl_add_u32 v{T+5}, v{V_G}, 11, v{T+4}
        s_mov_b32 s{ST}, {TIMEOUT}
        """)
        lp = self.b.uid("L_ls"); ok = self.b.uid("L_lsok"); lchk = self.b.uid("L_lsc")
        I(f"""
        buffer_load_dwordx4 {vr(T+8)}, v{T+5}, {sr(S_WS)}, s{ST+4} offen sc1
        buffer_load_dwordx4 {vr(T+12)}, v{T+5}, {sr(S_WS)}, s{ST+4} offen offset:1024 sc1
        """)
        n0 = len(self.vmq)
        self.drip(self.shadow)
        nsh = len(self.vmq) - n0
        I(f"""
        s_waitcnt vmcnt({nsh})
        s_branch {lchk}
        {lp}:
        buffer_load_dwordx4 {vr(T+8)}, v{T+5}, {sr(S_WS)}, s{ST+4} offen sc1
        buffer_load_dwordx4 {vr(T+12)}, v{T+5}, {sr(S_WS)}, s{ST+4} offen offset:1024 sc1
        s_waitcnt vmcnt(0)
        {lchk}:
        v_cmp_ne_u32 vcc, s{S_TAG}, v{T+10}
        s_mov_b64 s[{ST+2}:{ST+3}], vcc
        v_cmp_ne_u32 vcc, s{S_TAG+1}, v{T+11}
        s_or_b64 s[{ST+2}:{ST+3}], s[{ST+2}:{ST+3}], vcc
        v_cmp_ne_u32 vcc, s{S_TAG}, v{T+14}
        s_or_b64 s[{ST+2}:{ST+3}], s[{ST+2}:{ST+3}], vcc
        v_cmp_ne_u32 vcc, s{S_TAG+1}, v{T+15}
        s_or_b64 s[{ST+2}:{ST+3}], s[{ST+2}:{ST+3}], vcc
        s_cmp_eq_u64 s[{ST+2}:{ST+3}], 0
        s_cbranch_scc1 {ok}
        """)
        self.spin_tail(ST, lp, code)
        self.vmq = self.vmq[len(self.vmq)-nsh:] if nsh else []
        I(f"{ok}:")
        if self.detail == 2: self.stamp(f"e_got{which}")
        I(f"""
        v_add_f32 v{T}, v{T+8}, v{T+12}
        v_add_f32 v{T+1}, v{T+9}, v{T+13}
        """)
        self.reduce_g([T, T+1], T+4)
        I(f"""
        v_mul_f32 v{mu}, {1.0/640!r}, v{T}
        v_mul_f32 v{T+1}, {1.0/640!r}, v{T+1}
        v_fma_f32 v{T+1}, -v{mu}, v{mu}, v{T+1}
        v_max_f32 v{T+1}, 0, v{T+1}
        v_add_f32 v{T+1}, 0x3727c5ac, v{T+1}
        v_rsq_f32 v{rs}, v{T+1}
        s_nop 0
        v_mul_f32 v{mu}, -v{mu}, v{rs}
        v_mov_b32 v{rs+1}, v{rs}
        v_mov_b32 v{mu+1}, v{mu}
        """)

    V_L8 = 203
    SPLIT20 = (2, 7, 12, 17)
    SPLIT54 = (3, 10, 17, 24, 31, 38)
    def pack_tiles(self, src, ntile, dst=None):
        if dst is None: dst = src
        for j in range(ntile):
            a = src + 4*j; d = dst + 2*j
            self.I(f"v_cvt_pk_bf16_f32 v{d}, v{a}, v{a+1}\nv_cvt_pk_bf16_f32 v{d+1}, v{a+2}, v{a+3}")

    def store_frag(self, pk, ntile, base_sreg, tile0_sreg, skip_last_sreg=None, force_sc1=False, count=True):
        I = self.I
        lodd = self.b.uid("L_so"); lj = self.b.uid("L_sj")
        I(f"""
        s_lshr_b32 s{ST+5}, s{tile0_sreg}, 1
        s_lshl_b32 s{ST+5}, s{ST+5}, 10
        s_add_u32 s{ST+5}, s{ST+5}, s{base_sreg}
        s_bitcmp1_b32 s{tile0_sreg}, 0
        s_cbranch_scc1 {lodd}
        """)
        def variant(odd, f):
            if not odd:
                for p in range(ntile//2):
                    I(f"buffer_store_dwordx4 {vr(pk+4*p)}, v{V_L16}, {sr(S_WS)}, s{ST+5} offen offset:{1024*p}{f}")
                if ntile % 2:
                    lab = None
                    if skip_last_sreg is not None:
                        lab = self.b.uid("L_sk")
                        I(f"s_cmp_lg_u32 s{skip_last_sreg}, 0\ns_cbranch_scc1 {lab}")
                    j = ntile-1
                    I(f"buffer_store_dwordx2 v[{pk+2*j}:{pk+2*j+1}], v{self.V_L8}, {sr(S_WS)}, s{ST+5} offen offset:{1024*(ntile//2)}{f}")
                    if lab: I(f"{lab}:")
            else:
                I(f"buffer_store_dwordx2 v[{pk}:{pk+1}], v{self.V_L8}, {sr(S_WS)}, s{ST+5} offen offset:512{f}")
                for p in range(ntile//2):
                    I(f"buffer_store_dwordx4 {vr(pk+2+4*p)}, v{V_L16}, {sr(S_WS)}, s{ST+5} offen offset:{1024*(p+1)}{f}")
        if force_sc1: variant(False, " sc1")
        else: self.dual(lambda f: variant(False, f))
        I(f"s_branch {lj}\n{lodd}:")
        if force_sc1: variant(True, " sc1")
        else: self.dual(lambda f: variant(True, f))
        I(f"{lj}:")
        if count:
            for j in range(ntile//2): self.vm_issue(("st",))

    def tile_base(self, dst_sreg, tt_sreg, S, base_off):
        self.I(f"s_mul_i32 s{dst_sreg}, s{tt_sreg}, {S*1024}\ns_add_u32 s{dst_sreg}, s{dst_sreg}, {base_off}")

    def gelu(self, r, n, drip=0):
        I = self.I
        T = self.GT + 4
        c1 = -2.0 * 0.7978845608028654 * 1.4426950408889634
        c2 = c1 * 0.044715
        C1, ONE = T+8, T+10
        I(f"""
        s_mov_b32 s{ST+8}, {hex(f2u(c2))}
        s_mov_b32 s{ST+9}, {hex(f2u(c2))}
        v_mov_b32 v{C1}, {hex(f2u(c1))}
        v_mov_b32 v{C1+1}, {hex(f2u(c1))}
        v_mov_b32 v{ONE}, 1.0
        v_mov_b32 v{ONE+1}, 1.0
        """)
        P = lambda x: f"v[{x}:{x+1}]"
        for i in range(0, n, 4):
            x0, x1, t0, t1 = r+i, r+i+2, T, T+2
            I(f"v_pk_mul_f32 {P(t0)}, {P(x0)}, {P(x0)}\nv_pk_mul_f32 {P(t1)}, {P(x1)}, {P(x1)}")
            I(f"v_pk_fma_f32 {P(t0)}, {P(t0)}, s[{ST+8}:{ST+9}], {P(C1)}\nv_pk_fma_f32 {P(t1)}, {P(t1)}, s[{ST+8}:{ST+9}], {P(C1)}")
            I(f"v_pk_mul_f32 {P(t0)}, {P(t0)}, {P(x0)}\nv_pk_mul_f32 {P(t1)}, {P(t1)}, {P(x1)}")
            for q in range(4): I(f"v_exp_f32 v{T+q}, v{T+q}")
            I(f"v_pk_add_f32 {P(t0)}, {P(t0)}, {P(ONE)}\nv_pk_add_f32 {P(t1)}, {P(t1)}, {P(ONE)}")
            for q in range(4): I(f"v_rcp_f32 v{T+q}, v{T+q}")
            I(f"v_pk_mul_f32 {P(x0)}, {P(x0)}, {P(t0)}\nv_pk_mul_f32 {P(x1)}, {P(x1)}, {P(t1)}")
            self.drip(drip)

    def phase_entry(self, ph_wait, lines, code, F0, NT, between=None, upto=None):
        last = F0 + 4*NT - 1 if upto is None else upto
        self.need_units(last)
        self.I("s_barrier")
        self.visible = max(getattr(self, "visible", -1), last)
        self.after_barrier()
        if self.detail == F0: self.stamp("d_bar")
        self.wait_flags(ph_wait, lines, code)
        if self.detail == F0: self.stamp("d_flags")
        if self.detail == 2: self.stamp(f"e_fl{ph_wait}")

    def small_gemm(self, F0, act, ph_wait, rbs, code, shift=False, between=None, pf=()):
        I, C = self.I, self.C
        self.phase_entry(ph_wait, rbs, code, F0, 5, between, upto=(F0+99 if self.resident else None))
        if not shift:
            I(f"s_mul_i32 s{self.S_SRC}, s{S_TT}, {20*1024}\ns_add_u32 s{self.S_SRC}, s{self.S_SRC}, {act}")
            aops = [self.a_op(0, s, 16, V_L16, self.S_SRC, 0, self.S_AO, self.SPLIT20, self.V_L8) for s in range(20)]
        else:
            T = self.GT + 8
            I(f"s_lshl_b32 s{ST+4}, s{S_TT}, 4\ns_lshr_b32 s{ST+5}, s{S_RB}, 2")
            for q, dl in enumerate((-1, 1, -2, 2)):
                side = 1 if dl < 0 else 0
                I(f"""
                v_add_u32 v{T+4}, s{ST+4}, v{V_T}
                v_add_u32 v{T+4}, {dl & 0xffffffff}, v{T+4}          ; token'
                v_lshrrev_b32 v{T+5}, 4, v{T+4}
                v_mul_u32_u24 v{T+5}, 20480, v{T+5}
                v_add_u32 v{T+5}, {act}, v{T+5}
                v_lshrrev_b32 v{T+6}, 8, v{T+4}
                v_lshlrev_b32 v{T+7}, 1, v{T+6}
                v_add_u32 v{T+7}, {side}, v{T+7}
                v_mul_u32_u24 v{T+7}, 20480, v{T+7}
                v_add_u32 v{T+7}, {HG}, v{T+7}
                v_cmp_eq_u32 vcc, s{ST+5}, v{T+6}
                v_cndmask_b32 v{T+5}, v{T+7}, v{T+5}, vcc
                v_and_b32 v{T+6}, 15, v{T+4}
                v_lshl_add_u32 v{T+6}, v{V_G}, 4, v{T+6}              ; g*16 + t'
                v_lshl_add_u32 v{T+7}, v{T+6}, 3, v{T+5}
                v_lshl_add_u32 v{T+5}, v{T+6}, 4, v{T+5}
                v_cmp_gt_u32 vcc, 0x800, v{T+4}
                v_mov_b32 v{T+6}, 0x80000000
                v_cndmask_b32 v{T+q}, v{T+6}, v{T+5}, vcc
                v_cndmask_b32 v{self.GT+20+q}, v{T+6}, v{T+7}, vcc
                """)
            aops = [self.a_op(0, s, 16, T + s // 5, None, 0, self.S_AO, self.SPLIT20, self.GT + 20 + s // 5) for s in range(20)]
        if self.use_pf: aops += [(("a", 9, 19), (lambda p=p: self.pf_op(*p))) for p in pf]
        if (self.h4t_where == 1 and F0 == self.F_W1) or (self.h4t_where == 2 and F0 == self.F_W2) or (self.h4t_where == 4 and F0 == self.F_WO):
            def h4t():
                self.act_touch(H4F, 54*1024); self.vm_issue(("pf",))
            aops.append((("a", 9, 19), h4t))
        self.gemm(20, 5, F0, aops, [16], burst=self.burst, rate=self.rate_small, cap=self.cap_small, resident=self.resident)

    def phase_wo(self):
        I, C = self.I, self.C
        X2, H, ACC, T = self.X2, self.H, self.ACC, self.GT
        self.lds_bases()
        self.mod_unpack()
        for j in range(5):
            for q in range(2):
                I(f"v_accvgpr_read_b32 v{T+4}, a{2*j+q}")
                I(f"v_lshlrev_b32 v{X2+4*j+2*q}, 16, v{T+4}\nv_and_b32 v{X2+4*j+2*q+1}, 0xffff0000, v{T+4}")
        self.small_gemm(self.F_WO, OF, PH_O, [S_TT], 6, pf=[("3", 0)])
        self.stamp("wo_mm")
        P = lambda x: f"v[{x}:{x+1}]"
        f = self.fine
        for i in range(0, 20, 2): I(f"v_pk_fma_f32 {P(X2+i)}, {P(self.MS_GA+i)}, {P(ACC+i)}, {P(X2+i)}")
        mu, rs = T+30, T+32
        self.ln_stats(X2, 0, mu, rs, 7, fine=f)
        for i in range(0, 20, 2):
            I(f"v_pk_fma_f32 {P(H+i)}, {P(X2+i)}, {P(rs)}, {P(mu)}")
            I(f"v_pk_fma_f32 {P(H+i)}, {P(H+i)}, {P(self.MS_A2+i)}, {P(self.MS_SB+i)}")
            if i in (0, 8): self.drip(f)
        self.ln_stats(H, 1, mu, rs, 8, fine=f)
        self.drip(f)
        for i in range(0, 20, 2): I(f"v_pk_fma_f32 {P(ACC+i)}, {P(H+i)}, {P(rs)}, {P(mu)}")
        self.pack_tiles(ACC, 5)
        self.tile_base(ST+4, S_TT, 20, L2F)
        self.store_frag(ACC, 5, ST+4, self.S_T5)
        self.publish_drip(PH_L2)
        self.stamp("l2pub")

    def phase_w1(self):
        I = self.I
        self.small_gemm(self.F_W1, L2F, PH_L2, [S_TT], 9, pf=[("3", 1)])
        self.stamp("w1_mm")
        self.gelu(self.ACC, 20, drip=self.gd1)
        self.pack_tiles(self.ACC, 5)
        self.tile_base(ST+4, S_TT, 20, GF)
        self.store_frag(self.ACC, 5, ST+4, self.S_T5)
        lab = self.b.uid("L_hal")
        I(f"""
        s_and_b32 s{ST+6}, s{S_TT}, 15
        s_add_u32 s{ST+6}, s{ST+6}, 1
        s_and_b32 s{ST+7}, s{ST+6}, 14
        s_cmp_eq_u32 s{ST+7}, 0
        s_cbranch_scc0 {lab}
        s_lshr_b32 s{ST+7}, s{S_TT}, 4
        s_lshl_b32 s{ST+7}, s{ST+7}, 1
        s_lshr_b32 s{ST+6}, s{ST+6}, 4
        s_add_u32 s{ST+7}, s{ST+7}, s{ST+6}
        s_mul_i32 s{ST+4}, s{ST+7}, 20480
        s_add_u32 s{ST+4}, s{ST+4}, {HG}
        """)
        self.store_frag(self.ACC, 5, ST+4, self.S_T5, force_sc1=True, count=False)
        I(f"{lab}:")
        self.publish_drip(PH_G, both=True)
        self.stamp("gpub")

    def phase_w2(self):
        I = self.I
        X2, H, ACC, T = self.X2, self.H, self.ACC, self.GT
        I(f"""
        s_sub_u32 s{ST+10}, s{S_TT}, 1
        s_max_i32 s{ST+10}, s{ST+10}, 0
        s_add_u32 s{ST+11}, s{S_TT}, 1
        s_min_u32 s{ST+11}, s{ST+11}, 127
        """)
        self.small_gemm(self.F_W2, GF, PH_G, [S_TT, ST+10, ST+11], 10, shift=True, pf=[("4", 0)])
        self.stamp("w2_mm")
        P = lambda x: f"v[{x}:{x+1}]"
        for i in range(0, 20, 2): I(f"v_pk_add_f32 {P(H+i)}, {P(H+i)}, {P(ACC+i)}")
        mu, rs = T+30, T+32
        self.ln_stats(H, 2, mu, rs, 11, fine=self.fine)
        self.drip(self.fine)
        for i in range(0, 20, 2): I(f"v_pk_fma_f32 {P(ACC+i)}, {P(H+i)}, {P(rs)}, {P(mu)}")
        self.pack_tiles(ACC, 5)
        self.tile_base(ST+4, S_TT, 20, L3F)
        self.store_frag(ACC, 5, ST+4, self.S_T5)
        self.publish_drip(PH_L3)
        self.stamp("l3pub")

    def phase_w3(self):
        I, C = self.I, self.C
        ACC = self.ACC
        m16, t0, skip, rbA, rbB, ttb = ST+10, ST+11, ST+12, ST+13, ST+14, ST+15
        I(f"""
        s_and_b32 s{m16}, s{S_RB}, 1
        s_lshl_b32 s{m16}, s{m16}, 3
        s_add_u32 s{m16}, s{m16}, s{S_M}
        s_mul_i32 s{t0}, s{m16}, 7
        s_sub_u32 s{ST}, s{m16}, 12
        s_max_i32 s{ST}, s{ST}, 0
        s_sub_u32 s{t0}, s{t0}, s{ST}
        s_cmp_ge_u32 s{m16}, 12
        s_cselect_b32 s{skip}, 1, 0
        s_and_b32 s{rbA}, s{S_RB}, 30
        s_add_u32 s{rbB}, s{rbA}, 1
        s_lshl_b32 s{ttb}, s{rbA}, 2
        s_lshl_b32 s{ST}, s{S_WV}, 1
        s_add_u32 s{ttb}, s{ttb}, s{ST}
        """)
        I(f"s_add_u32 s{rbA}, s{ttb}, 1")
        self.phase_entry(PH_L3, [ttb, rbA], 12, self.F_W3, 7, upto=(self.F_W3+139 if self.resident else None))
        I(f"s_mul_i32 s{self.S_SRC}, s{ttb}, {20*1024}\ns_add_u32 s{self.S_SRC}, s{self.S_SRC}, {L3F}")
        aops = []
        for s in range(20):
            aops.append(self.a_op(0, s, 16, V_L16, self.S_SRC, 0, self.S_AO, self.SPLIT20, self.V_L8))
            aops.append(self.a_op(1, s, 96, V_L16, self.S_SRC, 20*1024, self.S_AO2, self.SPLIT20, self.V_L8))
        if self.use_pf: aops.insert(16, (("a", 9, 8), (lambda: self.pf_op("4", 1))))
        def h4t():
            self.act_touch(H4F, 54*1024); self.vm_issue(("pf",))
        if self.h4t_where == 3: aops.append((("a", 9, 19), h4t))
        self.gemm(20, 7, self.F_W3, aops, [16, 96], burst=2*self.burst, rate=self.rate_w3, resident=self.resident)
        self.stamp("w3_mm")
        self.gelu(ACC, 56, drip=self.gd3)
        self.pack_tiles(ACC, 7)
        self.pack_tiles(ACC+28, 7)
        self.tile_base(ST+4, ttb, 54, H4F)
        self.store_frag(ACC, 7, ST+4, t0, skip_last_sreg=skip)
        I(f"s_add_u32 s{ST+4}, s{ST+4}, {54*1024}")
        self.store_frag(ACC+28, 7, ST+4, t0, skip_last_sreg=skip)
        self.publish_drip(PH_H4)
        self.stamp("h4pub")

    def phase_w4(self):
        I, C = self.I, self.C
        X2, H, ACC, T = self.X2, self.H, self.ACC, self.GT
        rbA, rbB = ST+13, ST+14
        I(f"""
        s_and_b32 s{rbA}, s{S_TT}, 7
        s_lshr_b32 s{rbA}, s{rbA}, 1
        s_and_b32 s{rbB}, s{S_RB}, 30
        s_lshl_b32 s{rbB}, s{rbB}, 2
        s_add_u32 s{rbA}, s{rbA}, s{rbB}
        s_add_u32 s{rbB}, s{rbA}, 4
        """)
        self.phase_entry(PH_H4, [rbA, rbB], 13, self.F_W4, 5, upto=(607 if self.resident else None))
        I(f"s_mul_i32 s{self.S_SRC}, s{S_TT}, {54*1024}\ns_add_u32 s{self.S_SRC}, s{self.S_SRC}, {H4F}")
        aops = [self.a_op(0, s, 16, V_L16, self.S_SRC, 0, self.S_AO, self.SPLIT54, self.V_L8) for s in range(54)]
        self.gemm(54, 5, self.F_W4, aops, [16], burst=self.burst4, rate=self.rate_w4, post_barrier=False, chunk=self.chunk4)
        self.stamp("w4_mm")
        MS = self.WB
        for j in range(5):
            I(f"""
            v_accvgpr_read_b32 v{T+4}, a{self.RAW_GB+2*j}
            v_accvgpr_read_b32 v{T+5}, a{self.RAW_GB+2*j+1}
            v_lshlrev_b32 v{MS+4*j}, 16, v{T+4}
            v_and_b32 v{MS+4*j+1}, 0xffff0000, v{T+4}
            v_lshlrev_b32 v{MS+4*j+2}, 16, v{T+5}
            v_and_b32 v{MS+4*j+3}, 0xffff0000, v{T+5}
            """)
        for i in range(0, 20, 2):
            I(f"v_pk_add_f32 v[{ACC+i}:{ACC+i+1}], v[{ACC+i}:{ACC+i+1}], v[{H+i}:{H+i+1}]")
            I(f"v_pk_fma_f32 v[{ACC+i}:{ACC+i+1}], v[{ACC+i}:{ACC+i+1}], v[{MS+i}:{MS+i+1}], v[{X2+i}:{X2+i+1}]")
        self.srd(S_A, P_OUT, 2048*1280)
        I(f"""
        s_lshl_b32 s{ST}, s{S_TT}, 4
        v_add_u32 v{T+4}, s{ST}, v{V_T}
        v_mul_u32_u24 v{T+4}, 1280, v{T+4}
        v_lshl_add_u32 v{T+4}, v{V_G}, 3, v{T+4}
        s_mul_i32 s{ST}, s{S_M}, 160
        """)
        self.pack_tiles(ACC, 5)
        for j in range(5):
            a = ACC + 2*j
            I(f"buffer_store_dwordx2 v[{a}:{a+1}], v{T+4}, {sr(S_A)}, s{ST} offen offset:{32*j}")
        self.stamp("out")

    def l2_prefetch(self, which, part):
        I = self.I
        T = 246
        rbl = ST + 4
        I(f"v_lshlrev_b32 v{T}, 7, v{V_L}\ns_and_b32 s{rbl}, s{S_RB}, 3")
        if which == "A":
            base, start, chunk, shl = self.S_WA, 160*1024, 4608, 0
        elif which == "3":
            base, start, chunk, shl = self.S_W3, 0, 9216, 1
        else:
            base, start, chunk, shl = self.S_W4, 0, 8704, 0
        I(f"""
        s_lshr_b32 s{ST+5}, s{rbl}, {shl}
        s_lshl_b32 s{ST+5}, s{ST+5}, 2
        s_add_u32 s{ST+5}, s{ST+5}, s{S_WV}
        s_lshl_b32 s{ST+5}, s{ST+5}, 1
        s_add_u32 s{ST+5}, s{ST+5}, {part}
        s_mul_i32 s{ST+5}, s{ST+5}, {chunk}
        s_add_u32 s{ST+5}, s{ST+5}, s{base}
        s_sub_u32 s{ST+5}, s{ST+5}, s{self.S_LW}
        s_add_u32 s{ST+5}, s{ST+5}, {start}
        """)
        if chunk < 8192:
            I(f"v_cmp_gt_u32 vcc, {chunk//128}, v{V_L}\ns_and_saveexec_b64 s[{ST+6}:{ST+7}], vcc")
        I(f"buffer_load_dword a254, v{T}, {sr(S_WS)}, s{ST+5} offen")
        if chunk < 8192:
            I(f"s_mov_b64 exec, s[{ST+6}:{ST+7}]")
        if chunk > 8192:
            I(f"s_add_u32 s{ST+5}, s{ST+5}, 8192\nv_cmp_gt_u32 vcc, {(chunk-8192)//128}, v{V_L}\ns_and_saveexec_b64 s[{ST+6}:{ST+7}], vcc")
            I(f"buffer_load_dword a253, v{T}, {sr(S_WS)}, s{ST+5} offen")
            I(f"s_mov_b64 exec, s[{ST+6}:{ST+7}]")
        return 2 if chunk > 8192 else 1

    def tlb_touch(self):
        I = self.I
        n = (WS_END + (1 << 20) - 1) >> 20
        I(f"""
        v_lshlrev_b32 v245, 20, v{V_L}
        v_cmp_gt_u32 vcc, {n}, v{V_L}
        s_and_saveexec_b64 s[{ST+6}:{ST+7}], vcc
        buffer_load_dword a255, v245, {sr(S_WS)}, 0 offen
        s_mov_b64 exec, s[{ST+6}:{ST+7}]
        """)

    def mall_touch(self, base, nbytes):
        I = self.I
        per_wave = -(-nbytes // 1024 // 128) * 128
        lines = per_wave // 128
        assert lines <= 128
        I(f"""
        v_lshlrev_b32 v245, 7, v{V_L}
        s_lshl_b32 s{ST+5}, s{S_W}, 2
        s_add_u32 s{ST+5}, s{ST+5}, s{S_WV}
        s_mul_i32 s{ST+5}, s{ST+5}, {per_wave}
        s_add_u32 s{ST+5}, s{ST+5}, {base}
        """)
        n0 = min(lines, 64)
        if n0 < 64: I(f"v_cmp_gt_u32 vcc, {n0}, v{V_L}\ns_and_saveexec_b64 s[{ST+6}:{ST+7}], vcc")
        I(f"buffer_load_dword a255, v245, {sr(S_WS)}, s{ST+5} offen")
        if n0 < 64: I(f"s_mov_b64 exec, s[{ST+6}:{ST+7}]")

    def act_touch(self, base, per_tile):
        I = self.I
        per_wave = 16*per_tile // 128
        lines = per_wave // 128
        I(f"""
        v_lshlrev_b32 v245, 7, v{V_L}
        s_lshr_b32 s{ST+5}, s{S_RB}, 2
        s_mul_i32 s{ST+5}, s{ST+5}, {16*per_tile}
        s_and_b32 s{ST+6}, s{S_RB}, 3
        s_lshl_b32 s{ST+6}, s{ST+6}, 3
        s_add_u32 s{ST+6}, s{ST+6}, s{S_M}
        s_lshl_b32 s{ST+6}, s{ST+6}, 2
        s_add_u32 s{ST+6}, s{ST+6}, s{S_WV}
        s_mul_i32 s{ST+6}, s{ST+6}, {per_wave}
        s_add_u32 s{ST+5}, s{ST+5}, s{ST+6}
        s_add_u32 s{ST+5}, s{ST+5}, {base}
        """)
        n0 = min(lines, 64)
        if n0 < 64: I(f"v_cmp_gt_u32 vcc, {n0}, v{V_L}\ns_and_saveexec_b64 s[{ST+6}:{ST+7}], vcc")
        I(f"buffer_load_dword a255, v245, {sr(S_WS)}, s{ST+5} offen")
        if n0 < 64: I(f"s_mov_b64 exec, s[{ST+6}:{ST+7}]")

    def sync_touch(self):
        I = self.I
        l3 = self.b.uid("L_st3"); lj = self.b.uid("L_stj")
        I(f"""
        s_cmp_eq_u32 s{S_WV}, 3
        s_cbranch_scc1 {l3}
        v_lshlrev_b32 v245, 7, v{V_L}
        s_mul_i32 s{ST+5}, s{S_WV}, {STAT_SZ}
        s_lshl_b32 s{ST+6}, s{S_RB}, 13
        s_add_u32 s{ST+5}, s{ST+5}, s{ST+6}
        s_add_u32 s{ST+5}, s{ST+5}, {STAT}
        buffer_load_dword a255, v245, {sr(S_WS)}, s{ST+5} offen
        s_branch {lj}
        {l3}:
        v_lshrrev_b32 v245, 4, v{V_L}
        v_lshlrev_b32 v245, 14, v245
        v_and_b32 v244, 15, v{V_L}
        v_lshl_add_u32 v245, v244, 7, v245
        s_and_b32 s{ST+5}, s{S_RB}, 28
        s_lshl_b32 s{ST+5}, s{ST+5}, 9
        s_add_u32 s{ST+5}, s{ST+5}, {CFLAG + CF_LOC}
        buffer_load_dword a255, v245, {sr(S_WS)}, s{ST+5} offen
        s_add_u32 s{ST+5}, s{ST+5}, {4*CF_PH}
        v_lshlrev_b32 v245, 7, v244
        buffer_load_dword a255, v245, {sr(S_WS)}, s{ST+5} offen
        {lj}:
        """)

    def pf_op(self, which, part):
        n = self.l2_prefetch(which, part)
        for i in range(n): self.vm_issue(("pf",))

    def hook_body(self, hooks, k):
        if self.detail == 1: self.stamp(f"h{k}i")
        hooks[k]()
        if self.detail == 1: self.stamp(f"h{k}o")

    L_KV = 108*1024
    S_SLOW = 77
    def kv_dma(self, g):
        I = self.I
        I(f"""
        s_mul_i32 s{ST+5}, s{S_WV}, {KVT}
        s_add_u32 s{ST+4}, s{ST+5}, {self.L_KV + (4*g % 16)*KVT}
        s_mov_b32 m0, s{ST+4}
        s_add_u32 s{ST+5}, s{ST+5}, {KV + 4*g*KVT}
        buffer_load_dwordx4 v{V_L16}, {sr(S_WS)}, s{ST+5} offen lds
        buffer_load_dwordx4 v{V_L16}, {sr(S_WS)}, s{ST+5} offen offset:1024 lds
        buffer_load_dwordx4 v{V_L16}, {sr(S_WS)}, s{ST+5} offen offset:2048 lds
        s_mov_b64 exec, 0xffff
        buffer_load_dwordx4 v{V_L16}, {sr(S_WS)}, s{ST+5} offen offset:3072 lds
        s_mov_b64 exec, -1
        """)

    L_DUMMY = 104*1024
    L_MODW = 96*1024
    def slot_setup(self, kind, arg=0):
        I = self.I
        DS = self.S_DS
        if kind == "unit":
            I(f"s_add_u32 s{DS}, s{self.S_WA}, {16*arg*1024}\ns_add_u32 s76, s{self.S_LW}, {16*arg*1024}")
            return
        if kind == "act":
            base, per_tile, part = arg
            per_wave = 16*per_tile // 128
            I(f"""
            s_lshr_b32 s{DS}, s{S_RB}, 2
            s_mul_i32 s{DS}, s{DS}, {16*per_tile}
            s_and_b32 s{ST+6}, s{S_RB}, 3
            s_lshl_b32 s{ST+6}, s{ST+6}, 3
            s_add_u32 s{ST+6}, s{ST+6}, s{S_M}
            s_lshl_b32 s{ST+6}, s{ST+6}, 2
            s_add_u32 s{ST+6}, s{ST+6}, s{S_WV}
            s_mul_i32 s{ST+6}, s{ST+6}, {per_wave}
            s_add_u32 s{DS}, s{DS}, s{ST+6}
            s_add_u32 s{DS}, s{DS}, {base + 4096*part}
            """)
        elif kind == "mod":
            I(f"s_mul_i32 s{DS}, s{S_M}, 320\ns_add_u32 s{DS}, s{DS}, {MODG + (2 + 2*arg)*2560}\ns_mov_b32 s76, {self.L_MODW + 4096*arg}")
            return
        elif kind == "wsa":
            I(f"""
            s_and_b32 s{ST+6}, s{S_RB}, 3
            s_lshl_b32 s{ST+6}, s{ST+6}, 2
            s_add_u32 s{ST+6}, s{ST+6}, s{S_WV}
            s_mul_i32 s{ST+6}, s{ST+6}, {8*1024}
            s_add_u32 s{DS}, s{self.S_WA}, s{ST+6}
            s_sub_u32 s{DS}, s{DS}, s{self.S_LW}
            s_add_u32 s{DS}, s{DS}, {96*1024 + 4096*arg}
            """)
        else:
            I(f"s_mov_b32 s{DS}, {KV}")
        I(f"s_mov_b32 s76, {self.L_DUMMY}")

    def attn_hooks(self):
        I = self.I
        J = {}
        def j13():
            I("s_waitcnt vmcnt(24)")
            self.rl_store(0); self.rl_store(1)
            self.sync_touch()
        J[13] = (j13, 1)
        def j11():
            I("s_waitcnt vmcnt(16)")
            self.rl_flag()
        J[11] = (j11, 0)
        def j9(): self.xid_issue(); self.rl_poll_issue()
        J[9] = (j9, 1)
        def j8():
            I("s_waitcnt vmcnt(8)")
            self.xid_eval(); self.rl_poll_eval()
            self.ring_regs()
        J[8] = (j8, 0)
        SL = {16: ("act", (OF, 20480, 0)), 15: ("act", (L2F, 20480, 0)), 12: ("act", (H4F, 54*1024, 0)), 10: ("act", (H4F, 54*1024, 1)),
              8: ("unit", 0), 7: ("unit", 1), 6: ("unit", 2), 5: ("unit", 3), 4: ("unit", 4), 3: ("unit", 5),
              2: ("mod", 0), 1: ("mod", 1)}
        if not ALIAS: SL[14] = ("act", (GF, 20480, 0)); SL[13] = ("act", (L3F, 20480, 0))
        H = {}
        def mk(k):
            def f():
                if k in J and not self.nojobs: J[k][0]()
                if k in SL and not self.nojobs: self.slot_setup(*SL[k])
                elif (k + 1) in SL: self.slot_setup("none")
            return f
        for k in range(16, 0, -1):
            if k in J or k in SL or (k + 1) in SL: H[k] = mk(k)
        return H

    def ring_state_after_attn(self):
        self.units_issued = 6
        self.units_queued = 6
        self.pend = []
        self.consumed = -1
        self.vmq = []

    def build(self, force_slow=False, force_global=False):
        I = self.I
        self.force_global = force_global
        phases = [self.phase_start, self.phase_kv, self.phase_q, self.phase_kvwait,
                  lambda: self.phase_attn(force_slow), self.phase_wo, self.phase_w1, self.phase_w2, self.phase_w3, self.phase_w4]
        self.prologue()
        for i, p in enumerate(phases):
            if i >= self.stop_after: break
            p()
        I(f"""
        s_waitcnt vmcnt(0) lgkmcnt(0)
        s_endpgm
        L_fail:
        """)
        self.srd(S_C, P_DBG, 256)
        I(f"""
        v_mov_b32 v254, s{S_ERR}
        v_mov_b32 v255, s{S_W}
        v_mov_b32 v253, 16
        buffer_store_dwordx2 v[254:255], v253, {sr(S_C)}, 0 offen sc1
        s_waitcnt vmcnt(0)
        L_end:
        s_endpgm
        L_code_end:
        """)
        text, n = finalize(self.b, check=not (self.x_nords or self.x_nokv or self.noslot), align=bool(self.align))
        hdr = open("adaLN_cond__grouped_kv_mqa__mixer_s_mlp__prompt.s.ref").read().split("; Override launch")[0]
        lines = [l for l in hdr.strip().split("\n")]
        lines.append(f"; @launch grid=(256,1,1) block=(256,1,1) lds={LDS_SZ}")
        return kernel_file(lines, [(NAME, text, 512, 256, 102)]), n

if __name__ == "__main__":
    import argparse
    ap = argparse.ArgumentParser()
    ap.add_argument("-o", default="adaLN_cond__grouped_kv_mqa__mixer_s_mlp__prompt.s")
    ap.add_argument("--stop", type=int, default=99)
    ap.add_argument("--stamps", action="store_true")
    ap.add_argument("--slow", action="store_true")
    ap.add_argument("--detail", type=int, default=-1)
    ap.add_argument("--cap", type=int, default=99)
    ap.add_argument("--set", action="append", default=[])
    ap.add_argument("--global", dest="glob", action="store_true")
    a = ap.parse_args()
    g = Gen(stop_after=a.stop, stamps=a.stamps)
    g.detail = a.detail
    g.cap_small = a.cap
    for kv in a.set:
        k_, v_ = kv.split('=')
        setattr(g, k_, float(v_) if '.' in v_ else int(v_))
    txt, n = g.build(force_slow=a.slow, force_global=a.glob)
    open(a.o, "w").write(txt)
    print("wrote", a.o, len(txt), "bytes; auto nops:", n, "stamps:", getattr(g, "stamp_names", None))
```

```python
import sys
from common import *

import struct
def f2u(x): return struct.unpack("<I", struct.pack("<f", x))[0]

NAME = "adaLN_cond__grouped_kv_mqa__mixer_s_mlp__prompt_kernel"
MODG   = 0x000000
KVFLAG = 0x004000
RLFLAG = 0x008000
STAT   = 0x020000
STAT_SZ = 32*8*64*16
KV     = 0x100000
KVT    = 3328
OF     = 0x200000
ACT_SZ = 128*20*1024
L2F    = OF + ACT_SZ
import os
ALIAS = os.environ.get('NOALIAS') is None
GF     = OF if ALIAS else L2F + ACT_SZ
L3F    = L2F if ALIAS else L2F + 2*ACT_SZ
H4F    = L2F + 3*ACT_SZ
H4_SZ  = 128*54*1024
WSA    = H4F + H4_SZ
WSA_M  = 304*1024
W3S    = WSA + 8*WSA_M
W3S_M  = 144*1024
W4S    = W3S + 16*W3S_M
W4S_M  = 272*1024
HG     = W4S + 8*W4S_M
XIDG   = HG + 16*20*1024
CFLAG  = XIDG + 4096
CF_LOC = 8*128*128
CF_PH  = 128*128
WS_END = CFLAG + 2*CF_LOC + 64*1024
DBGA   = WS_END
WS_REC = 0x4000000
PH_O, PH_L2, PH_G, PH_L3, PH_H4 = 0, 1, 2, 3, 4

L_WQ   = 0
L_WK   = 102400
L_WM   = 102400
L_SC   = 143360
L_MOD  = 144640
L_QS   = 149760
L_MISC = 161024
LDS_SZ = 163840
L_RL   = 0
L_W    = 0

S_WS = 4
S_A  = 8
S_B  = 12
S_C  = 16
S_TAG = 20
S_WV, S_M, S_RB, S_W = 22, 23, 24, 25
S_T0 = 26
S_TT = 27
S_ERR = 28
S_FAST = 3
P_X, P_WQ, P_WK, P_WV, P_WO, P_BX, P_W1, P_W2, P_W3, P_W4, P_C, P_WM, P_OUT, P_DBG, P_WS = [32 + 2*i for i in range(15)]
ST = 62

def sr(b, n=4): return f"s[{b}:{b+n-1}]"
def vr(b, n=4): return f"v[{b}:{b+n-1}]" if n > 1 else f"v{b}"
def ar(b, n=4): return f"a[{b}:{b+n-1}]" if n > 1 else f"a{b}"

V_L, V_T, V_G, V_L16 = 0, 1, 2, 3

TIMEOUT = 400000

class Gen:
    def __init__(self, stop_after=99, stamps=False):
        self.b = Builder()
        self.stop_after = stop_after
        self.stamps = stamps
        self.nstamp = 0
        self.detail = -1
        self.nojobs = 0
        self.dbg_time = 0
        self.align = 1
        self.x_nobar = 0
        self.x_nokv = 0
        self.x_nords = 0
        self.noslot = 0
        self.in_slow = False
        self.cap_small = 99
        self.burst = 6
        self.rate_small = 1.3
        self.rate_w3 = 3.5
        self.rate_w4 = 1.6
        self.epi_drip = 8
        self.post_drip = 0
        self.fine = 0
        self.shadow_f = 6
        self.shadow_s = 4
        self.resident = 0
        self.chunk4 = 4
        self.pub_after = 0
        self.visible = -1
        self.epi_drip2 = 6
        self.gd1 = 2
        self.gd3 = 2
        self.burst4 = 10
        self.use_pf = 0
        self.tlb_warm = 0
        self.touch_act = 0
        self.h4t_where = 0
        self.use_mall = 0
        self.pf3 = 0
        self.pub_drip = 0
    def I(self, t): self.b.I(t)
    def C(self, t): self.b.C(t)

    def srd(self, s, ptr, nbytes, add=0):
        if add:
            self.I(f"s_add_u32 s{s}, s{ptr}, {add}\ns_addc_u32 s{s+1}, s{ptr+1}, 0")
        else:
            self.I(f"s_mov_b32 s{s}, s{ptr}\ns_mov_b32 s{s+1}, s{ptr+1}")
        self.I(f"s_mov_b32 s{s+2}, {nbytes}\ns_mov_b32 s{s+3}, 0x20000")

    def stamp(self, name):
        if not self.stamps: return
        k = self.nstamp; self.nstamp += 1
        lab = self.b.uid("L_st")
        self.C(f"stamp {k}: {name}")
        self.I(f"""
        s_cmp_lg_u32 s{S_WV}, 0
        s_cbranch_scc1 {lab}
        s_memrealtime s[100:101]
        s_memtime s[96:97]
        s_lshl_b32 s99, s{S_W}, 11
        s_add_u32 s99, s99, {DBGA + 16*k}
        s_waitcnt lgkmcnt(0)
        v_mov_b32 v252, s100
        v_mov_b32 v253, s101
        v_mov_b32 v254, s96
        v_mov_b32 v255, s97
        v_mov_b32 v251, s99
        buffer_store_dwordx4 v[252:255], v251, {sr(S_WS)}, 0 offen
        s_nop 1
        {lab}:
        """)
        self.stamp_names = getattr(self, "stamp_names", []) + [name]

    def spin_tail(self, cnt, loop, code):
        self.I(f"""
        s_sub_u32 s{cnt}, s{cnt}, 1
        s_cmp_lg_u32 s{cnt}, 0
        s_cbranch_scc1 {loop}
        s_mov_b32 s{S_ERR}, {code}
        s_branch L_fail
        """)

    def get_tag(self):
        lp = self.b.uid("L_tag"); ok = self.b.uid("L_tagok")
        self.srd(S_C, P_DBG, 256)
        self.I(f"""
        s_mov_b32 s{ST}, {TIMEOUT}
        v_mov_b32 v252, 0
        {lp}:
        buffer_load_dwordx2 v[254:255], v252, {sr(S_C)}, 0 offen sc1
        s_waitcnt vmcnt(0)
        v_readfirstlane_b32 s{S_TAG}, v254
        v_readfirstlane_b32 s{S_TAG+1}, v255
        s_cmp_lg_u32 s{S_TAG}, 0
        s_cbranch_scc1 {ok}
        """)
        self.spin_tail(ST, lp, 1)
        self.I(f"{ok}:")

    def reduce_g(self, regs, tmp, op="v_add_f32"):
        for sw in ("v_permlane16_swap_b32", "v_permlane32_swap_b32"):
            for i, r in enumerate(regs):
                self.I(f"v_mov_b32 v{tmp+i}, v{r}")
            for i, r in enumerate(regs):
                self.I(f"{sw} v{r}, v{tmp+i}")
            for i, r in enumerate(regs):
                self.I(f"{op} v{r}, v{r}, v{tmp+i}")

    def prologue(self):
        I = self.I
        I(f"""
        s_cmp_ge_u32 s2, 256
        s_cbranch_scc1 L_end
        s_load_dwordx16 s[32:47], s[0:1], 0
        s_load_dwordx8 s[48:55], s[0:1], 64
        s_load_dwordx4 s[56:59], s[0:1], 96
        s_load_dwordx2 s[60:61], s[0:1], 112
        v_lshrrev_b32 v1, 6, v0
        v_and_b32 v{V_L}, 63, v0
        v_readfirstlane_b32 s{S_WV}, v1
        v_and_b32 v{V_T}, 15, v{V_L}
        v_lshrrev_b32 v{V_G}, 4, v{V_L}
        v_lshlrev_b32 v{V_L16}, 4, v{V_L}
        s_mov_b32 s{S_W}, s2
        s_and_b32 s{ST}, s2, 7
        s_lshr_b32 s{ST+1}, s2, 3
        s_and_b32 s{S_M}, s{ST+1}, 7
        s_lshr_b32 s{ST+1}, s{ST+1}, 3
        s_lshl_b32 s{ST}, s{ST}, 2
        s_add_u32 s{S_RB}, s{ST}, s{ST+1}
        s_lshl_b32 s{S_T0}, s{S_RB}, 6
        s_lshl_b32 s{S_TT}, s{S_RB}, 2
        s_add_u32 s{S_TT}, s{S_TT}, s{S_WV}
        s_mov_b32 s{S_ERR}, 0
        """)
        self.C("request the kernel's own code into this XCD's L2: workgroup j of the 32 in a row group takes lines 16j..16j+15 (wave 0)")
        labc = self.b.uid("L_cp")
        I(f"""
        s_cmp_lg_u32 s{S_WV}, 0
        s_cbranch_scc1 {labc}
        s_getpc_b64 s[{ST+2}:{ST+3}]
        L_pcref:
        s_lshr_b32 s{ST+4}, s2, 3
        s_lshl_b32 s{ST+4}, s{ST+4}, 11                       ; 16 lines * 128 B
        v_lshlrev_b32 v4, 7, v{V_L}
        v_add_u32 v4, s{ST+4}, v4
        v_cmp_gt_u32 vcc, L_code_end-L_pcref-4, v4
        s_and_b64 vcc, vcc, 0xffff
        s_and_saveexec_b64 s[{ST+4}:{ST+5}], vcc
        s_cbranch_execz {labc}_x
        global_load_dword a252, v4, s[{ST+2}:{ST+3}]
        {labc}_x:
        s_mov_b64 exec, s[{ST+4}:{ST+5}]
        {labc}:
        s_waitcnt lgkmcnt(0)
        """)
        self.srd(S_WS, P_WS, WS_REC)
        lab = self.b.uid("L_non")
        self.srd(S_C, P_DBG, 256)
        I(f"""
        s_lshl_b32 s{ST}, s2, 2
        s_add_u32 s{ST}, s{ST}, s{S_WV}
        s_cmp_lg_u32 s{ST}, 0
        s_cbranch_scc1 {lab}
        s_memrealtime s[{S_TAG}:{S_TAG+1}]
        s_waitcnt lgkmcnt(0)
        s_or_b32 s{S_TAG}, s{S_TAG}, 1
        v_mov_b32 v254, s{S_TAG}
        v_mov_b32 v255, s{S_TAG+1}
        v_mov_b32 v252, 0
        s_mov_b64 exec, 1
        buffer_store_dwordx2 v[254:255], v252, {sr(S_C)}, 0 offen sc1
        s_mov_b64 exec, -1
        {lab}:
        """)
        self.stamp("start")

    XF = 4
    XH = 84
    TMP = 244

    def tag_issue(self):
        self.srd(S_C, P_DBG, 256)
        self.I(f"v_mov_b32 v241, 0\nbuffer_load_dwordx2 v[242:243], v241, {sr(S_C)}, 0 offen sc1")

    def tag_eval(self):
        I = self.I
        lp = self.b.uid("L_tag"); ok = self.b.uid("L_tagok")
        I(f"""
        s_mov_b32 s{ST}, {TIMEOUT}
        {lp}:
        v_readfirstlane_b32 s{S_TAG}, v242
        v_readfirstlane_b32 s{S_TAG+1}, v243
        s_cmp_lg_u32 s{S_TAG}, 0
        s_cbranch_scc1 {ok}
        """)
        self.tag_issue()
        I("s_waitcnt vmcnt(0)")
        self.spin_tail(ST, lp, 1)
        I(f"{ok}:")

    S_PROD2 = 80
    S_PROD, S_P = 80, 81

    LWM, LSC, LMI = L_WM, L_SC, L_MISC + 64
    def mod_dma(self, cdst=None):
        I = self.I
        TMP = self.MT
        self.srd(S_B, P_C, 1280)
        I(f"""
        s_mul_i32 s{ST+4}, s{S_WV}, 320
        v_lshlrev_b32 v{TMP+2}, 3, v{V_L}
        buffer_load_dwordx2 {cdst or f'v[{TMP+4}:{TMP+5}]'}, v{TMP+2}, {sr(S_B)}, s{ST+4} offen
        """)
        self.srd(S_A, P_WM, 640*7680)
        I(f"""
        v_lshrrev_b32 v{TMP}, 2, v{V_L}
        v_mul_u32_u24 v{TMP}, 7680, v{TMP}
        v_and_b32 v{TMP+1}, 3, v{V_L}
        v_lshl_add_u32 v{TMP}, v{TMP+1}, 4, v{TMP}
        s_mul_i32 s{ST+1}, s{S_WV}, {160*7680}
        s_lshl_b32 s{ST+2}, s{self.S_P}, 6                   ; p*64 bytes
        s_add_u32 s{ST+1}, s{ST+1}, s{ST+2}
        s_mul_i32 s{ST+3}, s{S_WV}, {160*64}
        s_add_u32 s{ST+3}, s{ST+3}, {self.LWM}
        """)
        for i in range(10):
            I(f"""
            s_mov_b32 m0, s{ST+3}
            s_add_u32 s{ST+3}, s{ST+3}, 1024
            buffer_load_dwordx4 v{TMP}, {sr(S_A)}, s{ST+1} offen lds
            s_add_u32 s{ST+1}, s{ST+1}, {16*7680}
            """)

    MT2 = 244
    MT3 = 228
    MT = 228
    def mod_gemv(self, W, wait_c, wait_w, wait_tag, BBr=None):
        I = self.I
        TMP = self.MT
        T = TMP + 4
        I(f"""
        s_waitcnt vmcnt({wait_c})
        v_lshlrev_b32 v{TMP+6}, 16, v{T}
        v_and_b32 v{TMP+7}, 0xffff0000, v{T}
        v_lshlrev_b32 v{TMP+8}, 16, v{T+1}
        v_and_b32 v{TMP+9}, 0xffff0000, v{T+1}
        """)
        for i in range(4):
            r = TMP + 6 + i
            I(f"""
            v_mul_f32 v{TMP+3}, 0xbfb8aa3b, v{r}
            v_exp_f32 v{TMP+3}, v{TMP+3}
            v_add_f32 v{TMP+3}, 1.0, v{TMP+3}
            v_rcp_f32 v{TMP+3}, v{TMP+3}
            v_mul_f32 v{r}, v{r}, v{TMP+3}
            """)
        va, vb, WA, BB, ACC = W, W+1, W+4, W+44, W+64
        if BBr is not None: BB, ACC = BBr, W+44
        I(f"""
        v_cvt_pk_bf16_f32 v{T}, v{TMP+6}, v{TMP+7}
        v_cvt_pk_bf16_f32 v{T+1}, v{TMP+8}, v{TMP+9}
        s_mul_i32 s{ST+4}, s{S_WV}, 320
        s_add_u32 s{ST+4}, s{ST+4}, {self.LSC}
        v_lshlrev_b32 v{TMP+2}, 3, v{V_L}
        v_add_u32 v{TMP+2}, s{ST+4}, v{TMP+2}
        s_mov_b32 exec_hi, 0xff
        ds_write_b64 v{TMP+2}, v[{T}:{T+1}]
        s_mov_b32 exec_hi, -1
        v_lshrrev_b32 v{va}, 2, v{V_T}
        v_lshl_add_u32 v{va}, v{V_G}, 2, v{va}
        v_lshlrev_b32 v{va}, 6, v{va}                       ; 64*(4g+(i>>2))
        v_and_b32 v{vb}, 3, v{V_T}
        v_lshl_add_u32 v{va}, v{vb}, 3, v{va}
        s_mul_i32 s{ST}, s{S_WV}, {160*64}
        s_add_u32 s{ST}, s{ST}, {self.LWM}
        v_add_u32 v{va}, s{ST}, v{va}
        v_lshlrev_b32 v{vb}, 3, v{V_G}
        v_add_u32 v{vb}, s{ST+4}, v{vb}
        s_waitcnt vmcnt({wait_w}) lgkmcnt(0)
        """)
        for s_ in range(5):
            I(f"ds_read_b64 v[{BB+4*s_}:{BB+4*s_+1}], v{vb} offset:{64*s_}\nds_read_b64 v[{BB+4*s_+2}:{BB+4*s_+3}], v{vb} offset:{64*s_+32}")
        for s_ in range(5):
            for tl in range(2):
                W_ = WA + 8*s_ + 4*tl
                I(f"ds_read_b64_tr_b16 v[{W_}:{W_+1}], v{va} offset:{2048*s_+32*tl}\nds_read_b64_tr_b16 v[{W_+2}:{W_+3}], v{va} offset:{2048*s_+32*tl+1024}")
        I("s_waitcnt lgkmcnt(0)")
        for s_ in range(5):
            for tl in range(2):
                I(f"v_mfma_f32_16x16x32_bf16 {vr(ACC+4*tl)}, {vr(WA+8*s_+4*tl)}, {vr(BB+4*s_)}, {'0' if s_ == 0 else vr(ACC+4*tl)}")
        I(f"""
        s_lshl_b32 s{ST}, s{S_WV}, 7
        s_add_u32 s{ST}, s{ST}, {self.LMI}
        v_lshlrev_b32 v{va}, 4, v{V_G}
        v_add_u32 v{va}, s{ST}, v{va}
        v_cmp_eq_u32 vcc, 0, v{V_T}
        s_and_saveexec_b64 s[{ST+4}:{ST+5}], vcc
        ds_write_b128 v{va}, {vr(ACC)}
        ds_write_b128 v{va}, {vr(ACC+4)} offset:64
        s_mov_b64 exec, s[{ST+4}:{ST+5}]
        s_waitcnt lgkmcnt(0)
        s_barrier
        """)
        lab_gd = self.b.uid("L_gd")
        I(f"s_cmp_lg_u32 s{S_WV}, 0\ns_cbranch_scc1 {lab_gd}")
        I(f"""
        v_lshlrev_b32 v{va}, 4, v{V_L}
        v_and_b32 v{va}, 0x7f, v{va}
        v_add_u32 v{va}, {self.LMI}, v{va}
        ds_read_b128 {vr(WA)}, v{va}
        ds_read_b128 {vr(WA+4)}, v{va} offset:128
        ds_read_b128 {vr(WA+8)}, v{va} offset:256
        ds_read_b128 {vr(WA+12)}, v{va} offset:384
        """)
        if wait_tag is not None:
            I(f"s_waitcnt vmcnt({wait_tag})")
            self.tag_eval()
        I("s_waitcnt lgkmcnt(0)")
        for r in range(4):
            I(f"v_add_f32 v{WA+r}, v{WA+r}, v{WA+4+r}\nv_add_f32 v{WA+8+r}, v{WA+8+r}, v{WA+12+r}\nv_add_f32 v{WA+r}, v{WA+r}, v{WA+8+r}")
        I(f"""
        v_cvt_pk_bf16_f32 v{ACC+4}, v{WA}, v{WA+1}
        v_cvt_pk_bf16_f32 v{ACC+5}, v{WA+2}, v{WA+3}
        v_mov_b32 v{ACC+6}, s{S_TAG}
        v_mov_b32 v{ACC+7}, s{S_TAG+1}
        s_lshl_b32 s{ST}, s{self.S_P}, 7                     ; p*8 granules*16 B
        s_mov_b64 exec, 0xff
        buffer_store_dwordx4 {vr(ACC+4)}, v{V_L16}, {sr(S_WS)}, s{ST} offen offset:{MODG} sc1
        s_mov_b64 exec, -1
        {lab_gd}:
        """)

    def line_touch(self, srd, voff, soff, nl):
        I = self.I
        if nl < 64: I(f"v_cmp_gt_u32 vcc, {nl}, v{V_L}\ns_and_saveexec_b64 s[{ST+6}:{ST+7}], vcc")
        I(f"buffer_load_dword a255, v{voff}, {sr(srd)}, s{soff} offen")
        if nl < 64: I(f"s_mov_b64 exec, s[{ST+6}:{ST+7}]")

    def wq_ops(self):
        I = self.I
        V = 239
        so, lo = ST+12, ST+13
        self.srd(S_A, P_WQ, 640*1280)
        I(f"""
        v_mul_u32_u24 v{V}, 205, v{V_L}
        v_lshrrev_b32 v{V}, 11, v{V}
        v_mul_u32_u24 v{V-1}, 10, v{V}
        v_sub_u32 v{V-1}, v{V_L}, v{V-1}
        v_mul_u32_u24 v{V}, 1280, v{V}
        v_lshl_add_u32 v{V}, v{V-1}, 4, v{V}
        s_mul_i32 s{so}, s{S_M}, 160
        s_mul_i32 s{lo}, s{S_WV}, {6*1280}
        s_add_u32 s{so}, s{so}, s{lo}
        s_mul_i32 s{lo}, s{S_WV}, 960
        """)
        ops = []
        def mk(i):
            def f():
                if i == 26:
                    lab = self.b.uid("L_wq")
                    I(f"""
                    s_cmp_ge_u32 s{S_WV}, 3
                    s_cbranch_scc1 {lab}
                    s_cmp_eq_u32 s{S_WV}, 2
                    s_mov_b32 s{ST+14}, 0x0fffffff
                    s_cselect_b32 exec_hi, 0xff, s{ST+14}
                    s_mov_b32 m0, s{lo}
                    s_nop 0
                    buffer_load_dwordx4 v{V}, {sr(S_A)}, s{so} offen lds
                    s_mov_b32 exec_hi, -1
                    {lab}:
                    """)
                else:
                    I(f"""
                    s_mov_b32 m0, s{lo}
                    s_mov_b32 exec_hi, 0x0fffffff
                    buffer_load_dwordx4 v{V}, {sr(S_A)}, s{so} offen lds
                    s_mov_b32 exec_hi, -1
                    s_add_u32 s{lo}, s{lo}, 3840
                    s_add_u32 s{so}, s{so}, {24*1280}
                    """)
            return f
        return [mk(i) for i in range(27)]

    def phase_start(self):
        I, C = self.I, self.C
        XF, XH, TMP = self.XF, self.XH, self.TMP
        PR, P = self.S_PROD, self.S_P
        C("---- mod producers: members 2..5; column pair P = x + 8k (k = 2*rbl + (m-2)/2) < 60, block p = 2P + (m-2)%2; P < 20 is critical")
        I(f"""
        s_sub_u32 s{ST}, s{S_M}, 2                           ; m-2
        s_and_b32 s{ST+1}, s{S_RB}, 3
        s_lshl_b32 s{ST+1}, s{ST+1}, 1
        s_lshr_b32 s{ST+2}, s{ST}, 1
        s_add_u32 s{ST+1}, s{ST+1}, s{ST+2}
        s_lshl_b32 s{ST+1}, s{ST+1}, 3
        s_lshr_b32 s{ST+2}, s{S_RB}, 2
        s_add_u32 s{ST+1}, s{ST+1}, s{ST+2}                  ; P
        s_lshl_b32 s{P}, s{ST+1}, 1
        s_and_b32 s{ST+2}, s{ST}, 1
        s_add_u32 s{P}, s{P}, s{ST+2}
        s_cmp_lt_u32 s{ST+1}, 20
        s_cselect_b32 s{PR}, 1, 2
        s_cmp_lt_u32 s{ST+1}, 60
        s_cselect_b32 s{PR}, s{PR}, 0
        s_cmp_lt_u32 s{ST}, 4
        s_cselect_b32 s{PR}, s{PR}, 0
        """)
        C("every workgroup requests 1/32 of the critical w_mod lines of its row group: 3 column pairs x 640 rows = 1920 lines, 60 per workgroup (15 per wave)")
        self.srd(S_A, P_WM, 640*7680)
        I(f"""
        s_and_b32 s{ST}, s{S_RB}, 3
        s_lshl_b32 s{ST}, s{ST}, 3
        s_add_u32 s{ST}, s{ST}, s{S_M}
        s_lshl_b32 s{ST}, s{ST}, 2
        s_add_u32 s{ST}, s{ST}, s{S_WV}
        s_mul_i32 s{ST}, s{ST}, 15
        v_add_u32 v{XH}, s{ST}, v{V_L}
        v_mul_u32_u24 v{XH+1}, 6554, v{XH}
        v_lshrrev_b32 v{XH+1}, 22, v{XH+1}                   ; /640
        v_mul_u32_u24 v{XH+2}, 640, v{XH+1}
        v_sub_u32 v{XH+2}, v{XH}, v{XH+2}                    ; row
        v_mul_u32_u24 v{XH+2}, 7680, v{XH+2}
        v_lshlrev_b32 v{XH+1}, 10, v{XH+1}
        v_add_u32 v{XH+2}, v{XH+2}, v{XH+1}
        s_lshr_b32 s{ST}, s{S_RB}, 2
        s_lshl_b32 s{ST}, s{ST}, 7                           ; x * 128 B
        """)
        self.line_touch(S_A, XH+2, ST, 15)
        self.srd(S_C, P_X, 2048*1280)
        XO = XH
        I(f"""
        v_lshlrev_b32 v{XO+6}, 7, v{V_L}
        s_lshl_b32 s{ST}, s{S_M}, 2
        s_add_u32 s{ST}, s{ST}, s{S_WV}
        s_mul_i32 s{ST}, s{ST}, 2560
        s_mul_i32 s{ST+1}, s{S_RB}, {64*1280}
        s_add_u32 s{ST}, s{ST}, s{ST+1}
        """)
        lab_np = self.b.uid("L_np"); lab_j = self.b.uid("L_npj")
        I(f"s_cmp_lg_u32 s{PR}, 1\ns_cbranch_scc1 {lab_np}")
        I(f"s_mov_b32 s{ST+14}, s{ST}")
        self.mod_dma()
        self.line_touch(S_C, XO+6, ST+14, 20)
        self.tag_issue()
        self.mod_gemv(XH+8, 12, 2, 0)
        self.srd(S_C, P_X, 2048*1280)
        I(f"s_branch {lab_j}\n{lab_np}:")
        self.line_touch(S_C, XO+6, ST, 20)
        self.tag_issue()
        self.srd(S_C, P_X, 2048*1280)
        I(f"{lab_j}:")
        self.stamp("modpub")
        C("x: the wave's rows -> LDS, 16-byte chunks XOR-swizzled by the row")
        I(f"s_lshl_b32 s{ST}, s{S_TT}, 4")
        for qq in range(4):
            I(f"""
            v_add_u32 v{XO+4}, {4*qq}, v{V_G}                      ; row
            v_xor_b32 v{XO+5}, v{XO+4}, v{V_T}
            v_add_u32 v{XO+4}, s{ST}, v{XO+4}
            v_mul_u32_u24 v{XO+4}, 1280, v{XO+4}
            v_lshl_add_u32 v{XO+qq}, v{XO+5}, 4, v{XO+4}
            """)
        I(f"s_mul_i32 s{ST+1}, s{S_WV}, 20480")
        for G in range(5):
            I(f"s_mov_b32 s{ST+2}, {256*G}")
            for qq in range(4):
                I(f"s_mov_b32 m0, s{ST+1}\ns_add_u32 s{ST+1}, s{ST+1}, 1024\nbuffer_load_dwordx4 v{XO+qq}, {sr(S_C)}, s{ST+2} offen lds")
        lab_nk = self.b.uid("L_nk")
        I(f"""
        s_cmp_ge_u32 s{S_M}, 2
        s_cbranch_scc1 {lab_nk}
        s_cmp_eq_u32 s{S_M}, 0
        s_cselect_b32 s{S_A}, s{P_WK}, s{P_WV}
        s_cselect_b32 s{S_A+1}, s{P_WK+1}, s{P_WV+1}
        s_mov_b32 s{S_A+2}, 25600
        s_mov_b32 s{S_A+3}, 0x20000
        s_mul_i32 s{ST}, s{S_WV}, 7168
        s_add_u32 s{ST+1}, s{ST}, {L_WK}
        """)
        for i in range(7):
            I(f"""
            s_mov_b32 m0, s{ST+1}
            s_add_u32 s{ST+1}, s{ST+1}, 1024
            buffer_load_dwordx4 v{V_L16}, {sr(S_A)}, s{ST} offen lds
            s_add_u32 s{ST}, s{ST}, 1024
            """)
        I(f"{lab_nk}:")
        C("wq: request this workgroup's 1/32 of the matrix (200 lines, 50 per wave)")
        self.srd(S_B, P_WQ, 640*1280)
        I(f"""
        s_and_b32 s{ST}, s{S_RB}, 3
        s_lshl_b32 s{ST}, s{ST}, 3
        s_add_u32 s{ST}, s{ST}, s{S_M}
        s_lshl_b32 s{ST}, s{ST}, 2
        s_add_u32 s{ST}, s{ST}, s{S_WV}
        s_mul_i32 s{ST}, s{ST}, 6400
        """)
        self.line_touch(S_B, XO+6, ST, 50)
        self.stamp("issued")
        C("x fragments: lane (t,g): k = 32s+4g (+16)")
        AD = XH + 8
        I(f"""
        s_mul_i32 s{ST}, s{S_WV}, 20480
        v_lshlrev_b32 v{TMP}, 8, v{V_T}
        v_add_u32 v{TMP}, s{ST}, v{TMP}
        v_and_b32 v{TMP+1}, 1, v{V_G}
        v_lshl_add_u32 v{TMP}, v{TMP+1}, 3, v{TMP}            ; + 8*(g&1)
        v_lshrrev_b32 v{TMP+1}, 1, v{V_G}                     ; g>>1
        """)
        for a_ in range(4):
            for e in range(2):
                I(f"""
                v_add_u32 v{TMP+2}, {4*a_+2*e}, v{TMP+1}
                v_xor_b32 v{TMP+2}, v{TMP+2}, v{V_T}
                v_lshl_add_u32 v{AD+2*a_+e}, v{TMP+2}, 4, v{TMP}
                """)
        RS_ = XH + 16
        I(f"s_mul_i32 s{ST+1}, s{S_M}, 10")
        for j in range(5):
            I(f"""
            s_add_u32 s{ST+2}, s{ST+1}, {2*j}
            v_add_u32 v{TMP+2}, s{ST+2}, v{TMP+1}
            v_lshrrev_b32 v{TMP+3}, 4, v{TMP+2}
            v_and_b32 v{TMP+2}, 15, v{TMP+2}
            v_xor_b32 v{TMP+2}, v{TMP+2}, v{V_T}
            v_lshl_add_u32 v{TMP+2}, v{TMP+2}, 4, v{TMP}
            v_lshl_add_u32 v{RS_+j}, v{TMP+3}, 12, v{TMP+2}
            """)
        lw1 = self.b.uid("L_xw"); lwj = self.b.uid("L_xw")
        I(f"""
        s_cmp_lt_u32 s{S_M}, 2
        s_cbranch_scc1 {lw1}
        s_waitcnt vmcnt(1)
        s_branch {lwj}
        {lw1}:
        s_waitcnt vmcnt(8)
        {lwj}:
        """)
        for s_ in range(20):
            for e in range(2):
                I(f"ds_read_b64 v[{XF+4*s_+2*e}:{XF+4*s_+2*e+1}], v{AD+2*(s_&3)+e} offset:{4096*(s_>>2)}")
        for j in range(5):
            I(f"ds_read_b64 v[{XH+24+2*j}:{XH+25+2*j}], v{RS_+j}")
        self.tag_eval()
        I("s_waitcnt lgkmcnt(0)")
        for j in range(10): I(f"v_accvgpr_write_b32 a{j}, v{XH+24+j}")
        I("s_barrier")
        labd = self.b.uid("L_dg")
        I(f"s_cmp_lg_u32 s{self.S_PROD}, 2\ns_cbranch_scc1 {labd}")
        self.MT = self.MT3
        self.mod_dma(cdst="a[250:251]")
        I(f"{labd}:")
        wq = self.wq_ops()
        self.stamp("xfrag")
        C("LN1 stats: sum via ones-MFMA, sumsq via Gram diagonal")
        ONES, D1, D2 = TMP, TMP+4, TMP+8
        for i in range(4): I(f"v_mov_b32 v{ONES+i}, 0x3f803f80")
        for s in range(20):
            I(f"v_mfma_f32_16x16x32_bf16 {vr(D1)}, {vr(ONES)}, {vr(XF+4*s)}, {'0' if s == 0 else vr(D1)}")
            I(f"v_mfma_f32_16x16x32_bf16 {vr(D2)}, {vr(XF+4*s)}, {vr(XF+4*s)}, {'0' if s == 0 else vr(D2)}")
            if s % 2 == 0 and wq: wq.pop(0)()
        MU, RS, T1, T2 = XH, XH+1, XH+2, XH+3
        I(f"""
        v_and_b32 v{T1}, 3, v{V_T}
        v_cmp_eq_u32 vcc, 1, v{T1}
        v_cndmask_b32 v{T2}, v{D2}, v{D2+1}, vcc
        v_cmp_eq_u32 vcc, 2, v{T1}
        v_cndmask_b32 v{T2}, v{T2}, v{D2+2}, vcc
        v_cmp_eq_u32 vcc, 3, v{T1}
        v_cndmask_b32 v{T2}, v{T2}, v{D2+3}, vcc
        v_lshrrev_b32 v{T1}, 2, v{V_T}
        v_lshl_add_u32 v{T1}, v{T1}, 4, v{V_T}
        v_lshlrev_b32 v{T1}, 2, v{T1}
        ds_bpermute_b32 v{T2}, v{T1}, v{T2}
        v_mul_f32 v{MU}, {1.0/640!r}, v{D1}
        s_waitcnt lgkmcnt(0)
        v_mul_f32 v{T2}, {1.0/640!r}, v{T2}
        v_fma_f32 v{T2}, -v{MU}, v{MU}, v{T2}
        v_max_f32 v{T2}, 0, v{T2}
        v_add_f32 v{T2}, 0x3727c5ac, v{T2}
        v_rsq_f32 v{RS}, v{T2}
        s_nop 0
        v_mul_f32 v{MU}, v{MU}, v{RS}
        v_sub_f32 v{TMP}, 0, v{MU}                           ; -mu*rstd
        v_mov_b32 v{TMP+1}, v{TMP}
        v_mov_b32 v{TMP+2}, v{RS}
        v_mov_b32 v{TMP+3}, v{RS}
        """)
        C("xhat = x*rstd - mu*rstd (fp32)")
        for s in range(20):
            for q in range(4):
                src = XF + 4*s + q
                d = XH + 8*s + 2*q
                if d + 1 >= 238 and False: pass
                I(f"v_lshlrev_b32 v{d}, 16, v{src}\nv_and_b32 v{d+1}, 0xffff0000, v{src}")
            for q in range(4):
                d = XH + 8*s + 2*q
                I(f"v_pk_fma_f32 v[{d}:{d+1}], v[{d}:{d+1}], v[{TMP+2}:{TMP+3}], v[{TMP}:{TMP+1}]")
            if s < 17 and wq: wq.pop(0)()
        assert not wq
        self.stamp("xhat")
        G0 = TMP+4
        lp = self.b.uid("L_mp"); ok = self.b.uid("L_mpok")
        I(f"""
        s_mul_i32 s{ST+1}, s{S_WV}, {80*16}
        v_add_u32 v{TMP+2}, s{ST+1}, v{V_L16}
        v_add_u32 v{TMP+3}, 1024, v{TMP+2}
        v_cmp_gt_u32 vcc, 16, v{V_L}
        v_cndmask_b32 v{TMP+3}, v{TMP+2}, v{TMP+3}, vcc
        s_mov_b32 s{ST}, {TIMEOUT}
        {lp}:
        buffer_load_dwordx4 {vr(G0)}, v{TMP+2}, {sr(S_WS)}, 0 offen offset:{MODG} sc1
        buffer_load_dwordx4 {vr(G0+4)}, v{TMP+3}, {sr(S_WS)}, 0 offen offset:{MODG} sc1
        s_waitcnt vmcnt(0)
        v_cmp_ne_u32 vcc, s{S_TAG}, v{G0+2}
        s_mov_b64 s[{ST+2}:{ST+3}], vcc
        v_cmp_ne_u32 vcc, s{S_TAG+1}, v{G0+3}
        s_or_b64 s[{ST+2}:{ST+3}], s[{ST+2}:{ST+3}], vcc
        v_cmp_ne_u32 vcc, s{S_TAG}, v{G0+6}
        s_or_b64 s[{ST+2}:{ST+3}], s[{ST+2}:{ST+3}], vcc
        v_cmp_ne_u32 vcc, s{S_TAG+1}, v{G0+7}
        s_or_b64 s[{ST+2}:{ST+3}], s[{ST+2}:{ST+3}], vcc
        s_cmp_eq_u64 s[{ST+2}:{ST+3}], 0
        s_cbranch_scc1 {ok}
        """)
        self.spin_tail(ST, lp, 2)
        I(f"{ok}:")
        for blk, av in ((G0, TMP+2), (G0+4, TMP+3)):
            I(f"""
            v_and_b32 v{blk+3}, 0xffff0000, v{blk+1}
            v_lshlrev_b32 v{blk+2}, 16, v{blk+1}
            v_and_b32 v{blk+1}, 0xffff0000, v{blk}
            v_lshlrev_b32 v{blk}, 16, v{blk}
            """)
        lab_a = self.b.uid("L_a")
        I(f"s_cmp_lt_u32 s{S_WV}, 2\ns_cbranch_scc1 {lab_a}")
        for blk in (G0, G0+4):
            for q in range(4): I(f"v_add_f32 v{blk+q}, 1.0, v{blk+q}")
            I(f"""
            v_cvt_pk_bf16_f32 v{blk}, v{blk}, v{blk+1}
            v_cvt_pk_bf16_f32 v{blk+2}, v{blk+2}, v{blk+3}
            v_and_b32 v{blk+1}, 0xffff0000, v{blk}
            v_lshlrev_b32 v{blk}, 16, v{blk}
            v_and_b32 v{blk+3}, 0xffff0000, v{blk+2}
            v_lshlrev_b32 v{blk+2}, 16, v{blk+2}
            """)
        I(f"""
        {lab_a}:
        v_add_u32 v{TMP+2}, {L_MOD}, v{TMP+2}
        v_add_u32 v{TMP+3}, {L_MOD}, v{TMP+3}
        ds_write_b128 v{TMP+2}, {vr(G0)}
        ds_write_b128 v{TMP+3}, {vr(G0+4)}
        s_waitcnt lgkmcnt(0)
        s_barrier
        """)
        self.stamp("modgot")
        C("h1 = xhat*A + B -> bf16 fragments (overwrites XF).  all DMAs (wq, wk) were waited by vmcnt(0) above, barrier publishes them")
        va = TMP
        I(f"v_lshlrev_b32 v{va}, 4, v{V_G}\nv_add_u32 v{va}, {L_MOD}, v{va}")
        def buf(s): return (XF + 48 + 16*(s & 1)) if s < 12 else (XH + 16*(s & 1))
        def rd(s):
            B_ = buf(s)
            for hf in range(2):
                I(f"ds_read_b128 {vr(B_+4*hf)}, v{va} offset:{2560 + 128*s + 64*hf}")
                I(f"ds_read_b128 {vr(B_+8+4*hf)}, v{va} offset:{128*s + 64*hf}")
        rd(0)
        for s in range(20):
            if s + 1 < 20: rd(s+1)
            I(f"s_waitcnt lgkmcnt({4 if s + 1 < 20 else 0})")
            B_ = buf(s)
            for q in range(4):
                d = XH + 8*s + 2*q
                I(f"v_pk_fma_f32 v[{d}:{d+1}], v[{d}:{d+1}], v[{B_+2*q}:{B_+2*q+1}], v[{B_+8+2*q}:{B_+8+2*q+1}]")
            for q in range(4):
                d = XH + 8*s + 2*q
                I(f"v_cvt_pk_bf16_f32 v{XF+4*s+q}, v{d}, v{d+1}")
        self.stamp("h1")

    def phase_kv(self):
        I, C = self.I, self.C
        XF, XH = self.XF, self.XH
        lab_end = self.b.uid("L_kvend"); lab_v = self.b.uid("L_v"); lab_pub = self.b.uid("L_kvpub")
        va, vb, W0, ACC0, ACC1, T = XH, XH+1, XH+4, XH+24, XH+28, XH+32
        I(f"""
        s_cmp_ge_u32 s{S_M}, 2
        s_cbranch_scc1 {lab_end}
        v_lshrrev_b32 v{va}, 2, v{V_T}
        v_lshl_add_u32 v{va}, v{V_G}, 2, v{va}
        v_mul_u32_u24 v{va}, 40, v{va}
        v_and_b32 v{vb}, 3, v{V_T}
        v_lshl_add_u32 v{va}, v{vb}, 3, v{va}
        v_add_u32 v{va}, {L_WK}, v{va}
        s_cmp_eq_u32 s{S_M}, 1
        s_cbranch_scc1 {lab_v}
        """)
        def loop(isv):
            WK = XH + 48
            def rd(s):
                o = WK + (s % 4)*8
                I(f"""
                ds_read_b64_tr_b16 v[{o}:{o+1}], v{va} offset:{1280*s}
                ds_read_b64_tr_b16 v[{o+2}:{o+3}], v{va} offset:{1280*s+640}
                ds_read_b64_tr_b16 v[{o+4}:{o+5}], v{va} offset:{1280*s+32}
                ds_read_b64_tr_b16 v[{o+6}:{o+7}], v{va} offset:{1280*s+672}
                """)
            for s in range(3): rd(s)
            for s in range(20):
                if s + 3 < 20: rd(s+3)
                I(f"s_waitcnt lgkmcnt({4*min(3, 19-s)})")
                o2 = WK + (s % 4)*8
                for tl, acc in ((0, ACC0), (1, ACC1)):
                    w = vr(o2+4*tl); x = vr(XF+4*s)
                    c = '0' if s == 0 else vr(acc)
                    if isv: I(f"v_mfma_f32_16x16x32_bf16 {vr(acc)}, {x}, {w}, {c}")
                    else:   I(f"v_mfma_f32_16x16x32_bf16 {vr(acc)}, {w}, {x}, {c}")
        C("K: D[dim 4g+r][token t]")
        loop(False)
        I(f"""
        v_mul_f32 v{T}, v{ACC0}, v{ACC0}
        v_fmac_f32 v{T}, v{ACC0+1}, v{ACC0+1}
        v_fmac_f32 v{T}, v{ACC0+2}, v{ACC0+2}
        v_fmac_f32 v{T}, v{ACC0+3}, v{ACC0+3}
        v_mul_f32 v{T+1}, v{ACC1}, v{ACC1}
        v_fmac_f32 v{T+1}, v{ACC1+1}, v{ACC1+1}
        v_fmac_f32 v{T+1}, v{ACC1+2}, v{ACC1+2}
        v_fmac_f32 v{T+1}, v{ACC1+3}, v{ACC1+3}
        v_cmp_eq_u32 vcc, 0, v{V_G}
        v_cndmask_b32 v{T+1}, 0, v{T+1}, vcc
        v_add_f32 v{T}, v{T}, v{T+1}
        """)
        self.reduce_g([T], T+2)
        for sh in (8, 4, 2, 1):
            I(f"v_mov_b32_dpp v{T+2}, v{T} row_ror:{sh} row_mask:0xf bank_mask:0xf\nv_max_f32 v{T}, v{T}, v{T+2}")
        I(f"""
        s_lshl_b32 s{ST}, s{S_WV}, 2
        s_add_u32 s{ST}, s{ST}, {L_MISC}
        v_mov_b32 v{T+2}, s{ST}
        ds_write_b32 v{T+2}, v{T}
        """)
        I(f"""
        v_cvt_pk_bf16_f32 v{T+4}, v{ACC0}, v{ACC0+1}
        v_cvt_pk_bf16_f32 v{T+5}, v{ACC0+2}, v{ACC0+3}
        v_cvt_pk_bf16_f32 v{T+6}, v{ACC1}, v{ACC1+1}
        v_cvt_pk_bf16_f32 v{T+7}, v{ACC1+2}, v{ACC1+3}
        s_lshr_b32 s{ST}, s{S_TT}, 1
        s_mul_i32 s{ST}, s{ST}, {KVT}
        s_add_u32 s{ST}, s{ST}, {KV}
        s_and_b32 s{ST+1}, s{S_TT}, 1
        s_lshl_b32 s{ST+1}, s{ST+1}, 4
        v_add_u32 v{T+8}, s{ST+1}, v{V_T}                    ; kk
        v_lshrrev_b32 v{T+9}, 1, v{V_G}
        v_lshl_add_u32 v{T+9}, v{T+9}, 5, v{T+8}             ; kk+32*(g>>1)
        v_lshlrev_b32 v{T+9}, 4, v{T+9}
        v_and_b32 v{T+10}, 1, v{V_G}
        v_lshl_add_u32 v{T+9}, v{T+10}, 3, v{T+9}
        buffer_store_dwordx2 v[{T+4}:{T+5}], v{T+9}, {sr(S_WS)}, s{ST} offen sc1
        v_lshlrev_b32 v{T+8}, 3, v{T+8}
        v_cmp_eq_u32 vcc, 0, v{V_G}
        s_and_saveexec_b64 s[{ST+4}:{ST+5}], vcc
        buffer_store_dwordx2 v[{T+6}:{T+7}], v{T+8}, {sr(S_WS)}, s{ST} offen offset:1024 sc1
        s_mov_b64 exec, s[{ST+4}:{ST+5}]
        s_branch {lab_pub}
        {lab_v}:
        """)
        C("V^T: D[token 4g+r][d = lane&15]")
        loop(True)
        I(f"""
        v_cvt_pk_bf16_f32 v{T+4}, v{ACC0}, v{ACC0+1}
        v_cvt_pk_bf16_f32 v{T+5}, v{ACC0+2}, v{ACC0+3}
        v_cvt_pk_bf16_f32 v{T+6}, v{ACC1}, v{ACC1+1}
        v_cvt_pk_bf16_f32 v{T+7}, v{ACC1+2}, v{ACC1+3}
        v_cmp_eq_u32 vcc, 4, v{V_T}
        v_mov_b32 v{T+11}, 0x3f803f80
        v_cndmask_b32 v{T+6}, v{T+6}, v{T+11}, vcc
        v_cndmask_b32 v{T+7}, v{T+7}, v{T+11}, vcc
        s_lshr_b32 s{ST}, s{S_TT}, 1
        s_mul_i32 s{ST}, s{ST}, {KVT}
        s_and_b32 s{ST+1}, s{S_TT}, 1
        s_lshl_b32 s{ST+1}, s{ST+1}, 10
        s_add_u32 s{ST}, s{ST}, s{ST+1}
        s_add_u32 s{ST}, s{ST}, {KV+1280}
        v_and_b32 v{T+9}, 1, v{V_G}
        v_lshl_add_u32 v{T+9}, v{T+9}, 5, v{V_T}             ; d + 32*(g&1)
        v_lshlrev_b32 v{T+9}, 4, v{T+9}
        v_lshrrev_b32 v{T+10}, 1, v{V_G}
        v_lshl_add_u32 v{T+9}, v{T+10}, 3, v{T+9}
        buffer_store_dwordx2 v[{T+4}:{T+5}], v{T+9}, {sr(S_WS)}, s{ST} offen sc1
        v_cmp_gt_u32 vcc, 5, v{V_T}
        s_and_saveexec_b64 s[{ST+4}:{ST+5}], vcc
        buffer_store_dwordx2 v[{T+6}:{T+7}], v{T+9}, {sr(S_WS)}, s{ST} offen offset:256 sc1
        s_mov_b64 exec, s[{ST+4}:{ST+5}]
        v_mov_b32 v{T}, 0
        s_lshl_b32 s{ST}, s{S_WV}, 2
        s_add_u32 s{ST}, s{ST}, {L_MISC}
        v_mov_b32 v{T+2}, s{ST}
        ds_write_b32 v{T+2}, v{T}
        {lab_pub}:
        s_waitcnt vmcnt(0) lgkmcnt(0)
        s_barrier
        """)
        lab_np = self.b.uid("L_kvnp")
        I(f"""
        s_cmp_lg_u32 s{S_WV}, 0
        s_cbranch_scc1 {lab_np}
        v_mov_b32 v{T+2}, {L_MISC}
        ds_read_b128 {vr(T+4)}, v{T+2}
        s_waitcnt lgkmcnt(0)
        v_max_f32 v{T+4}, v{T+4}, v{T+5}
        v_max_f32 v{T+6}, v{T+6}, v{T+7}
        v_max_f32 v{T+6}, v{T+4}, v{T+6}
        v_mov_b32 v{T+4}, s{S_TAG}
        v_mov_b32 v{T+5}, s{S_TAG+1}
        v_mov_b32 v{T+7}, 0
        s_lshl_b32 s{ST}, s{S_RB}, 1
        s_add_u32 s{ST}, s{ST}, s{S_M}
        s_lshl_b32 s{ST}, s{ST}, 7
        s_add_u32 s{ST}, s{ST}, {KVFLAG}
        v_mov_b32 v{T+2}, s{ST}
        s_mov_b64 exec, 1
        buffer_store_dwordx4 {vr(T+4)}, v{T+2}, {sr(S_WS)}, 0 offen sc1
        s_mov_b64 exec, -1
        {lab_np}:
        {lab_end}:
        """)
        self.stamp("kvpub")

    QA0, QA1, QB0, QB1 = 44, 48, 52, 56
    SA, SB = 60, 76
    PA, PB = 92, 100
    OA, OB = 108, 124
    KB = 140
    VB = 172
    AT = 204

    def phase_q(self):
        I, C = self.I, self.C
        XF, XH = self.XF, self.XH
        va, vb, WB, ACC = XH, XH+1, XH+4, XH+64
        I(f"""
        v_lshrrev_b32 v{va}, 2, v{V_T}
        v_lshl_add_u32 v{va}, v{V_G}, 2, v{va}
        v_mul_u32_u24 v{va}, 160, v{va}
        v_and_b32 v{vb}, 3, v{V_T}
        v_lshl_add_u32 v{va}, v{vb}, 3, v{va}
        v_add_u32 v{vb}, 51200, v{va}
        """)
        issued = []
        def rd1(s, j):
            base = va if s < 10 else vb
            o = 5120*(s % 10)
            W_ = WB + 20*(s % 3) + 4*j
            I(f"ds_read_b64_tr_b16 v[{W_}:{W_+1}], v{base} offset:{L_WQ + o + 32*j}")
            I(f"ds_read_b64_tr_b16 v[{W_+2}:{W_+3}], v{base} offset:{L_WQ + o + 32*j + 2560}")
            issued.append((s, j))
        for s in range(2):
            for j in range(5): rd1(s, j)
        for s in range(20):
            younger = 2*(len(issued) - 1 - issued.index((s, 4)))
            I(f"s_waitcnt lgkmcnt({min(15, younger)})")
            for j in range(5):
                I(f"v_mfma_f32_16x16x32_bf16 {vr(ACC+4*j)}, {vr(WB+20*(s%3)+4*j)}, {vr(XF+4*s)}, {'0' if s == 0 else vr(ACC+4*j)}")
                if s + 2 < 20: rd1(s+2, j)
        qs = (20 ** -0.5) * 1.4426950408889634
        I(f"s_mov_b32 s{ST}, {hex(f2u(qs))}")
        C("scale, pack, write wave-private [16][176B] tile")
        I(f"""
        s_mul_i32 s{ST+1}, s{S_WV}, {16*176}
        s_add_u32 s{ST+1}, s{ST+1}, {L_QS}
        v_mul_u32_u24 v{va}, 176, v{V_T}
        v_lshl_add_u32 v{va}, v{V_G}, 3, v{va}
        v_add_u32 v{va}, s{ST+1}, v{va}
        """)
        for j in range(5):
            a = ACC + 4*j
            for r in range(4): I(f"v_mul_f32 v{a+r}, s{ST}, v{a+r}")
            I(f"v_cvt_pk_bf16_f32 v{a}, v{a}, v{a+1}\nv_cvt_pk_bf16_f32 v{a+1}, v{a+2}, v{a+3}")
            I(f"ds_write_b64 v{va}, v[{a}:{a+1}] offset:{32*j}")
        AT = self.AT
        I(f"""
        v_mul_u32_u24 v{vb}, 176, v{V_T}
        v_bfe_u32 v{va}, v{V_L}, 4, 1
        v_mul_u32_u24 v{va}, 40, v{va}
        v_add_u32 v{vb}, v{vb}, v{va}
        v_add_u32 v{vb}, s{ST+1}, v{vb}                      ; token*176 + (q>>4)*40
        v_lshrrev_b32 v{va}, 5, v{V_L}
        v_lshl_add_u32 v{va}, v{va}, 4, v{vb}                ; + 16h
        s_waitcnt lgkmcnt(0)
        ds_read_b64 v[{self.QA0}:{self.QA0+1}], v{va}
        ds_read_b64 v[{self.QA0+2}:{self.QA0+3}], v{va} offset:8
        ds_read_b64 v[{self.QB0}:{self.QB0+1}], v{va} offset:80
        ds_read_b64 v[{self.QB0+2}:{self.QB0+3}], v{va} offset:88
        ds_read_b64 v[{self.QA1}:{self.QA1+1}], v{vb} offset:32
        ds_read_b64 v[{self.QB1}:{self.QB1+1}], v{vb} offset:112
        v_cmp_gt_u32 vcc, 32, v{V_L}
        s_waitcnt lgkmcnt(0)
        """)
        for r in (self.QA1, self.QA1+1, self.QB1, self.QB1+1):
            I(f"v_cndmask_b32 v{r}, 0, v{r}, vcc")
        for (t, q0, q1) in ((AT, self.QA0, self.QA1), (AT+1, self.QB0, self.QB1)):
            I(f"v_mov_b32 v{t}, 0")
            for r in (q0, q0+1, q0+2, q0+3, q1, q1+1):
                I(f"v_dot2_f32_bf16 v{t}, v{r}, v{r}, v{t}")
        for t in (AT, AT+1):
            I(f"v_mov_b32 v{AT+2}, v{t}\nv_permlane32_swap_b32 v{t}, v{AT+2}\nv_add_f32 v{t}, v{t}, v{AT+2}")
        I(f"v_max_f32 v{AT}, v{AT}, v{AT+1}")
        labg = self.b.uid("L_dg")
        I(f"s_cmp_lg_u32 s{self.S_PROD}, 2\ns_cbranch_scc1 {labg}")
        I(f"v_accvgpr_read_b32 v248, a250\nv_accvgpr_read_b32 v249, a251")
        self.MT = self.MT2
        self.mod_gemv(60, 0, 0, None)
        I(f"{labg}:")
        I("s_barrier")
        self.stamp("qproj")

    RL_OFF, RL_TR, RL_D = 4, 11, 12
    S_RKS, S_RDS, RL_TRS = (78, 82), (79, 83), (11, 40)
    def rl_issue(self, rnd):
        I = self.I
        self.S_RK, self.S_RD, self.RL_TR = self.S_RKS[rnd], self.S_RDS[rnd], self.RL_TRS[rnd]
        u, A0, A1 = ST+4, ST+5, ST+6
        lk4 = self.b.uid("L_r4"); lk3 = self.b.uid("L_r3"); lA = self.b.uid("L_rA"); lend = self.b.uid("L_re")
        I(f"""
        s_lshl_b32 s{u}, s{S_W}, 2
        s_add_u32 s{u}, s{u}, s{S_WV}
        """)
        if rnd == 1:
            I(f"""
            s_mov_b32 s{self.S_RK}, 2
            s_add_u32 s{u}, s{u}, 1024
            s_cmp_ge_u32 s{u}, 1232
            s_cbranch_scc1 {lend}
            s_branch {lk3}
            """)
        else:
            I(f"""
            s_cmp_ge_u32 s{u}, 912
            s_cbranch_scc1 {lk3}
            s_cmp_ge_u32 s{u}, 480
            s_cbranch_scc1 {lk4}
            s_mul_i32 s{A0}, s{u}, 410
            s_lshr_b32 s{A0}, s{A0}, 16                 ; p = u/160
            s_mul_i32 s{A1}, s{A0}, 160
            s_sub_u32 s{u}, s{u}, s{A1}                 ; r
            s_cmp_eq_u32 s{A0}, 1
            s_cselect_b32 s{S_A}, s{P_W1}, s{P_WO}
            s_cselect_b32 s{S_A+1}, s{P_W1+1}, s{P_WO+1}
            s_cmp_eq_u32 s{A0}, 2
            s_cselect_b32 s{S_A}, s{P_W2}, s{S_A}
            s_cselect_b32 s{S_A+1}, s{P_W2+1}, s{S_A+1}
            s_mov_b32 s{S_A+2}, {640*1280}
            s_mul_i32 s{A0}, s{A0}, 100                 ; p*100
            s_mul_i32 s{A1}, s{u}, 3277
            s_lshr_b32 s{A1}, s{A1}, 16                 ; m = r/20
            s_mul_i32 s{ST+7}, s{A1}, 20
            s_sub_u32 s{u}, s{u}, s{ST+7}               ; kb
            s_mul_i32 s{ST+7}, s{u}, 5
            s_add_u32 s{A0}, s{A0}, s{ST+7}
            s_lshl_b32 s{A0}, s{A0}, 10
            s_mul_i32 s{ST+7}, s{A1}, {WSA_M}
            s_add_u32 s{A0}, s{A0}, s{ST+7}
            s_add_u32 s{self.S_RD}, s{A0}, {WSA}
            s_branch {lA}
            {lk4}:
            s_sub_u32 s{u}, s{u}, 480
            s_mov_b32 s{S_A}, s{P_W4}
            s_mov_b32 s{S_A+1}, s{P_W4+1}
            s_mov_b32 s{S_A+2}, {1728*1280}
            s_mul_i32 s{A1}, s{u}, 1214
            s_lshr_b32 s{A1}, s{A1}, 16                 ; m = r/54
            s_mul_i32 s{ST+7}, s{A1}, 54
            s_sub_u32 s{u}, s{u}, s{ST+7}               ; kb
            s_mul_i32 s{A0}, s{u}, 5120
            s_mul_i32 s{ST+7}, s{A1}, {W4S_M}
            s_add_u32 s{A0}, s{A0}, s{ST+7}
            s_add_u32 s{self.S_RD}, s{A0}, {W4S}
            {lA}:
            s_mov_b32 s{S_A+3}, 0x20000
            s_mov_b32 s{self.S_RK}, 0
            s_mul_i32 s{u}, s{u}, {32*1280}
            s_mul_i32 s{A1}, s{A1}, 160
            s_add_u32 s{u}, s{u}, s{A1}
            s_mul_i32 s{A0}, s{S_WV}, 14336
            """)
            O = self.RL_OFF
            for q in range(5):
                I(f"""
                v_add_u32 v{O+5}, {64*q}, v{V_L}
                v_mul_u32_u24 v{O+6}, 6554, v{O+5}
                v_lshrrev_b32 v{O+6}, 16, v{O+6}
                v_mul_u32_u24 v{O+q}, {1280-160}, v{O+6}
                v_lshl_add_u32 v{O+q}, v{O+5}, 4, v{O+q}
                """)
            for q in range(5):
                I(f"s_mov_b32 m0, s{A0}\ns_add_u32 s{A0}, s{A0}, 1024\nbuffer_load_dwordx4 v{O+q}, {sr(S_A)}, s{u} offen lds")
            I(f"""
            v_lshrrev_b32 v{self.RL_TR}, 2, v{V_T}
            v_lshl_add_u32 v{self.RL_TR}, v{V_G}, 2, v{self.RL_TR}
            v_mul_u32_u24 v{self.RL_TR}, 160, v{self.RL_TR}
            s_branch {lend}_tr
            """)
        I(f"""
        {lk3}:
        s_sub_u32 s{u}, s{u}, 912
        s_mov_b32 s{S_A}, s{P_W3}
        s_mov_b32 s{S_A+1}, s{P_W3+1}
        s_mov_b32 s{S_A+2}, {640*3456}
        s_mov_b32 s{S_A+3}, 0x20000
        s_mov_b32 s{self.S_RK}, 1
        s_mul_i32 s{A1}, s{u}, 3277
        s_lshr_b32 s{A1}, s{A1}, 16                 ; m16 = r/20
        s_mul_i32 s{ST+7}, s{A1}, 20
        s_sub_u32 s{u}, s{u}, s{ST+7}               ; kb
        s_mul_i32 s{A0}, s{u}, 7168
        s_mul_i32 s{ST+7}, s{A1}, {W3S_M}
        s_add_u32 s{A0}, s{A0}, s{ST+7}
        s_add_u32 s{self.S_RD}, s{A0}, {W3S}
        s_mul_i32 s{A0}, s{A1}, 7
        s_sub_u32 s{ST+7}, s{A1}, 12
        s_max_i32 s{ST+7}, s{ST+7}, 0
        s_sub_u32 s{A0}, s{A0}, s{ST+7}
        s_lshl_b32 s{A0}, s{A0}, 5
        s_mul_i32 s{u}, s{u}, {32*3456}
        s_add_u32 s{u}, s{u}, s{A0}
        s_mul_i32 s{A0}, s{S_WV}, 14336
        s_add_u32 s{A0}, s{A0}, {7168*rnd}
        """)
        O = self.RL_OFF
        for q in range(7):
            I(f"""
            v_add_u32 v{self.RL_D}, {64*q}, v{V_L}
            v_mul_u32_u24 v{self.RL_D+1}, 4682, v{self.RL_D}
            v_lshrrev_b32 v{self.RL_D+1}, 16, v{self.RL_D+1}
            v_mul_u32_u24 v{O+q}, {3456-224}, v{self.RL_D+1}
            v_lshl_add_u32 v{O+q}, v{self.RL_D}, 4, v{O+q}
            """)
        for q in range(7):
            I(f"s_mov_b32 m0, s{A0}\ns_add_u32 s{A0}, s{A0}, 1024\nbuffer_load_dwordx4 v{O+q}, {sr(S_A)}, s{u} offen lds")
        I(f"""
        v_lshrrev_b32 v{self.RL_TR}, 2, v{V_T}
        v_lshl_add_u32 v{self.RL_TR}, v{V_G}, 2, v{self.RL_TR}
        v_mul_u32_u24 v{self.RL_TR}, 224, v{self.RL_TR}
        {lend}_tr:
        v_and_b32 v{self.RL_D}, 3, v{V_T}
        v_lshl_add_u32 v{self.RL_TR}, v{self.RL_D}, 3, v{self.RL_TR}
        s_mul_i32 s{A0}, s{S_WV}, 14336
        s_add_u32 s{A0}, s{A0}, {7168*rnd}
        v_add_u32 v{self.RL_TR}, s{A0}, v{self.RL_TR}
        {lend}:
        """)

    def rl_store(self, rnd):
        I = self.I
        self.S_RK, self.S_RD, self.RL_TR = self.S_RKS[rnd], self.S_RDS[rnd], self.RL_TRS[rnd]
        l7 = self.b.uid("L_rs7"); lend = self.b.uid("L_rse")
        D = self.RL_D
        I(f"s_cmp_eq_u32 s{self.S_RK}, 2\ns_cbranch_scc1 {lend}\ns_cmp_eq_u32 s{self.S_RK}, 1\ns_cbranch_scc1 {l7}")
        for (nt, rowb, last) in ((5, 160, False), (7, 224, True)):
            if last: I(f"{l7}:")
            for j in range(nt):
                I(f"ds_read_b64_tr_b16 v[{D+4*j}:{D+4*j+1}], v{self.RL_TR} offset:{32*j}")
                I(f"ds_read_b64_tr_b16 v[{D+4*j+2}:{D+4*j+3}], v{self.RL_TR} offset:{32*j+16*rowb}")
            I(f"s_add_u32 s{ST+4}, s{self.S_RD}, 4096\ns_waitcnt lgkmcnt(0)")
            for j in range(nt):
                I(f"buffer_store_dwordx4 {vr(D+4*j)}, v{V_L16}, {sr(S_WS)}, s{self.S_RD if j < 4 else ST+4} offen offset:{1024*(j%4)} sc1")
            if not last: I(f"s_branch {lend}")
        I(f"{lend}:")

    def rl_flag(self):
        I = self.I
        lab = self.b.uid("L_rlp")
        I(f"""
        s_barrier
        s_cmp_lg_u32 s{S_WV}, 0
        s_cbranch_scc1 {lab}
        v_mov_b32 v252, s{S_TAG}
        v_mov_b32 v253, s{S_TAG+1}
        s_lshl_b32 s{ST+4}, s{S_W}, 7
        s_add_u32 s{ST+4}, s{ST+4}, {RLFLAG}
        v_mov_b32 v251, s{ST+4}
        s_mov_b64 exec, 1
        buffer_store_dwordx2 v[252:253], v251, {sr(S_WS)}, 0 offen sc1
        s_mov_b64 exec, -1
        {lab}:
        """)

    def phase_kvwait(self):
        I = self.I
        AT = self.AT
        lp = self.b.uid("L_kvw"); ok = self.b.uid("L_kvok")
        I(f"""
        v_lshlrev_b32 v{AT+3}, 7, v{V_L}
        s_mov_b32 s{ST}, {TIMEOUT}
        s_mov_b32 s{ST+1}, {KVFLAG}
        {lp}:
        buffer_load_dwordx4 {vr(AT+4)}, v{AT+3}, {sr(S_WS)}, s{ST+1} offen sc1
        """)
        I(f"""
        s_waitcnt vmcnt(0)
        v_cmp_ne_u32 vcc, s{S_TAG}, v{AT+4}
        s_mov_b64 s[{ST+2}:{ST+3}], vcc
        v_cmp_ne_u32 vcc, s{S_TAG+1}, v{AT+5}
        s_or_b64 s[{ST+2}:{ST+3}], s[{ST+2}:{ST+3}], vcc
        s_cmp_eq_u64 s[{ST+2}:{ST+3}], 0
        s_cbranch_scc1 {ok}
        """)
        self.spin_tail(ST, lp, 3)
        I(f"{ok}:")
        self.reduce_g([AT+6], AT+2, op="v_max_f32")
        for sh in (8, 4, 2, 1):
            I(f"v_mov_b32_dpp v{AT+2}, v{AT+6} row_ror:{sh} row_mask:0xf bank_mask:0xf\nv_max_f32 v{AT+6}, v{AT+6}, v{AT+2}")
        I(f"v_mov_b32 v{AT+1}, v{AT+6}")
        self.xid_publish()
        self.stamp("kvwait")

    def kv_loads(self, i, sK, sV):
        raise NotImplementedError

    def phase_attn(self, force_slow=False):
        I, C = self.I, self.C
        QA0, QA1, QB0, QB1, SA, SB, PA, PB, OA, OB, KB, VB, AT = (self.QA0, self.QA1, self.QB0, self.QB1, self.SA, self.SB,
            self.PA, self.PB, self.OA, self.OB, self.KB, self.VB, self.AT)
        sK, sV, cnt = 85, 86, 87
        vK1 = AT+2
        lab_slow = self.b.uid("L_slow"); lab_done = self.b.uid("L_adone")
        C("bound check: |q|^2 * kmax2 <= T^2 (log2 units) else true-max path")
        Tlim = 64.0
        I(f"""
        v_mul_f32 v{AT}, v{AT}, v{AT+1}
        v_and_b32 v{vK1}, 31, v{V_L}
        v_lshlrev_b32 v{vK1}, 3, v{vK1}
        s_mov_b32 s{ST+3}, {hex(f2u(Tlim*Tlim if not force_slow else -1.0))}
        v_cmp_nge_f32 vcc, s{ST+3}, v{AT}
        """)
        I(f"s_cmp_lg_u64 vcc, 0\ns_cselect_b32 s{self.S_SLOW}, 1, 0")
        for r in range(16): I(f"v_mov_b32 v{OA+r}, 0\nv_mov_b32 v{OB+r}, 0")
        KVL = self.L_KV
        vK16, vK8 = 200, 201
        KR, VR = 16, 48
        def kreg(buf): return KR + 8*buf
        def vreg(buf): return VR + 8*buf
        def rdK(t):
            k = kreg(t % 4); o = (t % 16)*KVT
            I(f"ds_read_b128 {ar(k)}, v{vK16} offset:{o}")
            I(f"ds_read_b64 a[{k+4}:{k+5}], v{vK8} offset:{o+1024}")
        def rdV(t, which=(0, 1)):
            v = vreg(t % 4); o = (t % 16)*KVT
            if 0 in which: I(f"ds_read_b128 {ar(v)}, v{vK16} offset:{o+1280}")
            if 1 in which: I(f"ds_read_b128 {ar(v+4)}, v{vK16} offset:{o+2304}")
        I(f"v_add_u32 v{vK16}, {KVL}, v{V_L16}\nv_add_u32 v{vK8}, {KVL}, v{vK1}")
        for g in range(3): self.kv_dma(g)
        for r in range(16): I(f"v_mov_b32 v{SB+r}, 0xff800000")
        for r in range(8): I(f"v_mov_b32 v{PA+r}, 0")
        for r in range(8): I(f"v_accvgpr_write_b32 a{vreg(3)+r}, 0")
        self.rl_issue(0); self.rl_issue(1)
        I("s_waitcnt vmcnt(9)\ns_barrier")
        rdK(0); rdK(1); rdV(0)
        I(f"s_mov_b32 s{cnt}, 16")
        lp = self.b.uid("L_att"); lhk = [self.b.uid("L_hook") for _ in range(5)]; lback = [self.b.uid("L_back") for _ in range(4)]
        hooks = self.attn_hooks()
        mask = sum(1 << k for k in hooks)
        def exps(S, P, q):
            a = S + 4*q
            I(f"v_exp_f32 v{a}, v{a}\nv_exp_f32 v{a+1}, v{a+1}\nv_exp_f32 v{a+2}, v{a+2}\nv_exp_f32 v{a+3}, v{a+3}")
            I(f"v_cvt_pk_bf16_f32 v{P+2*q}, v{a}, v{a+1}\nv_cvt_pk_bf16_f32 v{P+2*q+1}, v{a+2}, v{a+3}")
        M16 = "v_mfma_f32_32x32x16_bf16"; M8 = "v_mfma_f32_32x32x8_bf16"
        SKS, SKL, SBM = 86, 85, 76
        def copy_slot(q, e):
            n = 2*(q & 1) + e
            if self.x_nokv: return
            if q < 2:
                if n == 3: I("s_mov_b64 exec, 0xffff")
                I(f"buffer_load_dwordx4 v{V_L16}, {sr(S_WS)}, s{SKS} offen offset:{1024*n} lds")
                if n == 3: I(f"s_mov_b64 exec, -1\ns_mov_b32 m0, s{SBM}")
            elif not self.noslot:
                I(f"buffer_load_dwordx4 v{V_L16}, {sr(S_WS)}, s{self.S_DS} offen offset:{1024*n} lds")
        def header(part):
            I("s_waitcnt vmcnt(12) lgkmcnt(4)")
            if not self.x_nobar: I("s_barrier")
            I(f"""
            s_bitcmp1_b32 s84, s{cnt}
            s_cbranch_scc1 {lhk[part]}
            {lback[part]}:
            s_add_u32 s{SKS}, s{SKS}, {4*KVT}
            s_add_u32 m0, s{SKL}, {((part + 3) % 4)*4*KVT}
            """)
        def body(i, qk=True, last=False):
            kb = kreg(i % 4); vb = vreg((i+3) % 4)
            k2 = kreg((i+2) % 4); ok = ((i+2) % 16)*KVT
            v1 = vreg((i+1) % 4); ov = ((i+1) % 16)*KVT
            if qk:
                I(f"{M16} {vr(SA,16)}, {ar(kb)}, {vr(QA0)}, 0")
                if not self.x_nords: I(f"ds_read_b128 {ar(k2)}, v{vK16} offset:{ok}")
            exps(SB, PB, 0)
            if qk:
                I(f"{M8} {vr(SA,16)}, a[{kb+4}:{kb+5}], v[{QA1}:{QA1+1}], {vr(SA,16)}")
            exps(SB, PB, 1)
            I(f"{M16} {vr(OA,16)}, {ar(vb)}, {vr(PA)}, {vr(OA,16)}")
            if qk and not self.x_nords: I(f"ds_read_b64 a[{k2+4}:{k2+5}], v{vK8} offset:{ok+1024}")
            exps(SB, PB, 2)
            I(f"{M16} {vr(OA,16)}, {ar(vb+4)}, {vr(PA+4)}, {vr(OA,16)}")
            if qk: copy_slot(i % 4, 0)
            exps(SB, PB, 3)
            if qk:
                I(f"{M16} {vr(SB,16)}, {ar(kb)}, {vr(QB0)}, 0")
                if not self.x_nords: I(f"ds_read_b128 {ar(v1)}, v{vK16} offset:{ov+1280}")
                exps(SA, PA, 0)
                I(f"{M8} {vr(SB,16)}, a[{kb+4}:{kb+5}], v[{QB1}:{QB1+1}], {vr(SB,16)}")
                copy_slot(i % 4, 1)
                exps(SA, PA, 1)
            I(f"{M16} {vr(OB,16)}, {ar(vb)}, {vr(PB)}, {vr(OB,16)}")
            if qk:
                if not self.x_nords: I(f"ds_read_b128 {ar(v1+4)}, v{vK16} offset:{ov+2304}")
                exps(SA, PA, 2)
            I(f"{M16} {vr(OB,16)}, {ar(vb+4)}, {vr(PB+4)}, {vr(OB,16)}")
            if qk:
                if i % 4 == 3:
                    I(f"s_sub_u32 s{cnt}, s{cnt}, 1")
                    header((i // 4 + 1) % 4)
                else:
                    I("s_waitcnt lgkmcnt(4)")
                exps(SA, PA, 3)
        I(f"""
        s_mul_i32 s{SKL}, s{S_WV}, {KVT}
        s_add_u32 s{SKS}, s{SKL}, {KV + 8*KVT}
        s_add_u32 s{SKL}, s{SKL}, {KVL}
        s_mov_b32 s{SBM}, {self.L_DUMMY}
        s_mov_b32 s{self.S_DS}, {KV}
        s_mov_b32 s84, {hex(mask)}
        """)
        I("s_waitcnt lgkmcnt(0)")
        lentry = self.b.uid("L_ent")
        I(f"""
        s_branch {lhk[4]}
        {lentry}:
        s_add_u32 s{SKS}, s{SKS}, {4*KVT}
        s_add_u32 m0, s{SKL}, {3*4*KVT}
        """)
        self.stamp("loop_in")
        I(f"{lp}:")
        for i in range(16): body(i)
        I(f"s_cmp_lg_u32 s{cnt}, 0\ns_cbranch_scc1 {lp}")
        self.stamp("loop_out")
        C("drain: iteration 64 (V_63)")
        I("s_waitcnt lgkmcnt(0)")
        body(0, qk=False)
        I(f"s_cmp_lg_u32 s{self.S_SLOW}, 0\ns_cbranch_scc1 {lab_slow}\ns_branch {lab_done}")
        I(f"{lhk[4]}:")
        self.hook_body(hooks, 16)
        I(f"s_branch {lentry}")
        for part in range(4):
            I(f"{lhk[part]}:")
            ks = [k for k in sorted(hooks, reverse=True) if (16 - k) % 4 == part and k != 16]
            for n_, k in enumerate(ks):
                nx = None
                if n_ < len(ks) - 1:
                    nx = self.b.uid("L_hk")
                    I(f"s_cmp_lg_u32 s{cnt}, {k}\ns_cbranch_scc1 {nx}")
                self.hook_body(hooks, k)
                I(f"s_branch {lback[part]}")
                if nx: I(f"{nx}:")
            if not ks: I(f"s_branch {lback[part]}")
        I(f"{lab_slow}:")
        for r in range(16): I(f"v_mov_b32 v{OA+r}, 0\nv_mov_b32 v{OB+r}, 0")
        MA_, MB_, T0 = AT+4, AT+5, AT+6
        I(f"v_mov_b32 v{MA_}, 0xff7fffff\nv_mov_b32 v{MB_}, 0xff7fffff")
        I(f"s_mov_b32 s{sK}, {KV}\ns_mov_b32 s{cnt}, 64")
        lp2 = self.b.uid("L_atts")
        I(f"{lp2}:")
        k0, v0 = kreg(0), vreg(0)
        I(f"""
        buffer_load_dwordx4 {ar(k0)}, v{V_L16}, {sr(S_WS)}, s{sK} offen
        buffer_load_dwordx2 a[{k0+4}:{k0+5}], v{vK1}, {sr(S_WS)}, s{sK} offen offset:1024
        buffer_load_dwordx4 {ar(v0)}, v{V_L16}, {sr(S_WS)}, s{sK} offen offset:1280
        buffer_load_dwordx4 {ar(v0+4)}, v{V_L16}, {sr(S_WS)}, s{sK} offen offset:2304
        s_add_u32 s{sK}, s{sK}, {KVT}
        s_waitcnt vmcnt(0)
        """)
        for (S, P, O, Q0, Q1, Mx) in ((SA, PA, OA, QA0, QA1, MA_), (SB, PB, OB, QB0, QB1, MB_)):
            I(f"{M16} {vr(S,16)}, {ar(kreg(0))}, {vr(Q0)}, 0")
            I(f"{M8} {vr(S,16)}, a[{kreg(0)+4}:{kreg(0)+5}], v[{Q1}:{Q1+1}], {vr(S,16)}")
            I(f"v_max3_f32 v{T0}, v{S}, v{S+1}, v{S+2}")
            for r in range(3, 15, 2): I(f"v_max3_f32 v{T0}, v{T0}, v{S+r}, v{S+r+1}")
            I(f"v_max_f32 v{T0}, v{T0}, v{S+15}")
            I(f"v_mov_b32 v{T0+1}, v{T0}\nv_permlane32_swap_b32 v{T0}, v{T0+1}\nv_max_f32 v{T0}, v{T0}, v{T0+1}")
            I(f"v_max_f32 v{T0}, v{T0}, v{Mx}")
            I(f"v_sub_f32 v{T0+1}, v{Mx}, v{T0}\nv_exp_f32 v{T0+1}, v{T0+1}\nv_mov_b32 v{Mx}, v{T0}")
            for r in range(16): I(f"v_mul_f32 v{O+r}, v{O+r}, v{T0+1}")
            for r in range(16): I(f"v_sub_f32 v{S+r}, v{S+r}, v{T0}")
            for q in range(4): exps(S, P, q)
            I(f"{M16} {vr(O,16)}, {ar(vreg(0))}, {vr(P)}, {vr(O,16)}")
            I(f"{M16} {vr(O,16)}, {ar(vreg(0)+4)}, {vr(P+4)}, {vr(O,16)}")
        I(f"s_sub_u32 s{cnt}, s{cnt}, 1\ns_cmp_lg_u32 s{cnt}, 0\ns_cbranch_scc1 {lp2}")
        I(f"{lab_done}:")
        I("s_waitcnt vmcnt(0)\ns_barrier")
        self.stamp("attn")
        self.mod_fetch()
        self.ring_state_after_attn()
        C("normalise and store O in the B-fragment layout of the wo GEMM")
        T = AT
        PK = SA
        I(f"""
        v_lshlrev_b32 v{self.V_L8}, 3, v{V_L}
        s_mul_i32 s{ST}, s{S_WV}, 3072
        s_add_u32 s{ST}, s{ST}, {144*1024}
        v_mul_u32_u24 v{T}, 176, v{V_T}
        v_add_u32 v{T}, s{ST}, v{T}
        v_lshl_add_u32 v{T+1}, v{V_G}, 3, v{T}
        v_bfe_u32 v{T+4}, v{V_L}, 4, 1
        v_mul_u32_u24 v{T+4}, 40, v{T+4}
        v_add_u32 v{T}, v{T}, v{T+4}
        v_lshrrev_b32 v{T+4}, 5, v{V_L}
        v_lshl_add_u32 v{T}, v{T+4}, 3, v{T}
        """)
        for (O, u) in ((OA, 0), (OB, 1)):
            I(f"v_mov_b32 v{T+2}, v{O+8}\nv_mov_b32 v{T+3}, v{O+8}\nv_permlane32_swap_b32 v{T+2}, v{T+3}")
            I(f"v_rcp_f32 v{T+3}, v{T+3}")
            for run in range(3):
                a = O + 4*run
                for r in range(4): I(f"v_mul_f32 v{a+r}, v{a+r}, v{T+3}")
                I(f"v_cvt_pk_bf16_f32 v{a}, v{a}, v{a+1}\nv_cvt_pk_bf16_f32 v{a+1}, v{a+2}, v{a+3}")
                if run == 2: I(f"s_mov_b32 exec_hi, 0")
                I(f"ds_write_b64 v{T}, v[{a}:{a+1}] offset:{80*u + 16*run}")
                if run == 2: I(f"s_mov_b32 exec_hi, -1")
        I("s_waitcnt lgkmcnt(0)")
        for j in range(5):
            I(f"ds_read_b64 v[{PK+2*j}:{PK+2*j+1}], v{T+1} offset:{32*j}")
        I(f"s_mul_i32 s{self.S_T5}, s{S_M}, 5")
        self.tile_base(ST+4, S_TT, 20, OF)
        I("s_waitcnt lgkmcnt(0)")
        self.store_frag(PK, 5, ST+4, self.S_T5)
        self.publish(PH_O); self.vm_drained()
        I("s_barrier")
        self.refill(); self.drip(4)
        self.stamp("opub")

    def dual(self, fn):
        I = self.I
        ls = self.b.uid("L_sl"); lj = self.b.uid("L_sj")
        I(f"s_cmp_eq_u32 s{S_FAST}, 0\ns_cbranch_scc1 {ls}")
        fn("")
        I(f"s_branch {lj}\n{ls}:")
        fn(" sc1")
        I(f"{lj}:")

    def xid_publish(self):
        I = self.I
        lab = self.b.uid("L_xp")
        I(f"""
        s_cmp_lg_u32 s{S_WV}, 0
        s_cbranch_scc1 {lab}
        s_getreg_b32 s{ST}, hwreg(HW_REG_XCC_ID)
        s_and_b32 s{ST}, s{ST}, 15
        v_mov_b32 v252, s{ST}
        v_mov_b32 v253, 0
        v_mov_b32 v254, s{S_TAG}
        v_mov_b32 v255, s{S_TAG+1}
        s_lshl_b32 s{ST}, s{S_RB}, 7
        s_lshl_b32 s{ST+1}, s{S_M}, 4
        s_add_u32 s{ST}, s{ST}, s{ST+1}
        s_add_u32 s{ST}, s{ST}, {XIDG}
        v_mov_b32 v251, s{ST}
        s_mov_b64 exec, 1
        buffer_store_dwordx4 v[252:255], v251, {sr(S_WS)}, 0 offen sc1
        s_mov_b64 exec, -1
        {lab}:
        """)

    XV = 240
    def xid_issue(self):
        I = self.I
        I(f"""
        s_and_b32 s{ST+5}, s{S_RB}, 28
        s_lshl_b32 s{ST+5}, s{ST+5}, 7
        s_add_u32 s{ST+5}, s{ST+5}, {XIDG}
        v_and_b32 v251, 31, v{V_L}
        v_lshlrev_b32 v251, 4, v251
        buffer_load_dwordx4 {vr(self.XV)}, v251, {sr(S_WS)}, s{ST+5} offen sc1
        """)

    def xid_eval(self):
        I = self.I
        X = self.XV
        lp = self.b.uid("L_xc"); ok = self.b.uid("L_xcok")
        I(f"""
        s_mov_b32 s{ST+4}, {TIMEOUT}
        {lp}:
        v_cmp_ne_u32 vcc, s{S_TAG}, v{X+2}
        s_mov_b64 s[{ST+6}:{ST+7}], vcc
        v_cmp_ne_u32 vcc, s{S_TAG+1}, v{X+3}
        s_or_b64 s[{ST+6}:{ST+7}], s[{ST+6}:{ST+7}], vcc
        s_cmp_eq_u64 s[{ST+6}:{ST+7}], 0
        s_cbranch_scc1 {ok}
        """)
        self.xid_issue()
        I("s_waitcnt vmcnt(0)")
        self.spin_tail(ST+4, lp, 14)
        I(f"""
        {ok}:
        s_getreg_b32 s{ST+4}, hwreg(HW_REG_XCC_ID)
        s_and_b32 s{ST+4}, s{ST+4}, 15
        v_cmp_ne_u32 vcc, s{ST+4}, v{X}
        s_cmp_eq_u64 vcc, 0
        s_cselect_b32 s{S_FAST}, {0 if self.force_global else 1}, 0
        """)

    def rl_poll_issue(self):
        I = self.I
        lab = self.b.uid("L_rpi")
        T = 232
        I(f"s_cmp_lg_u32 s{S_WV}, 0\ns_cbranch_scc1 {lab}\nv_lshlrev_b32 v250, 7, v{V_L}")
        for i in range(4):
            I(f"s_mov_b32 s{ST+5}, {RLFLAG + i*8192}\nbuffer_load_dwordx2 v[{T+2*i}:{T+1+2*i}], v250, {sr(S_WS)}, s{ST+5} offen sc1")
        I(f"{lab}:")

    def rl_poll_eval(self):
        I = self.I
        lab = self.b.uid("L_rw"); lp = self.b.uid("L_rwp"); ok = self.b.uid("L_rwok")
        T = 232
        I(f"s_cmp_lg_u32 s{S_WV}, 0\ns_cbranch_scc1 {lab}\ns_mov_b32 s{ST+4}, {TIMEOUT}\n{lp}:\ns_mov_b64 s[{ST+6}:{ST+7}], 0")
        for i in range(4):
            I(f"""
            v_cmp_ne_u32 vcc, s{S_TAG}, v{T+2*i}
            s_or_b64 s[{ST+6}:{ST+7}], s[{ST+6}:{ST+7}], vcc
            v_cmp_ne_u32 vcc, s{S_TAG+1}, v{T+1+2*i}
            s_or_b64 s[{ST+6}:{ST+7}], s[{ST+6}:{ST+7}], vcc
            """)
        I(f"s_cmp_eq_u64 s[{ST+6}:{ST+7}], 0\ns_cbranch_scc1 {ok}")
        self.rl_poll_issue()
        I("s_waitcnt vmcnt(0)")
        self.spin_tail(ST+4, lp, 4)
        I(f"{ok}:\n{lab}:\ns_barrier")

    def publish(self, ph, both=False, vmn=0, line_sreg=None):
        I = self.I
        ln = S_TT if line_sreg is None else line_sreg
        I(f"""
        v_mov_b32 v254, s{S_TAG}
        v_mov_b32 v255, s{S_TAG+1}
        s_lshl_b32 s{ST}, s{ln}, 7
        s_lshl_b32 s{ST+1}, s{S_M}, 3
        s_add_u32 s{ST}, s{ST}, s{ST+1}
        s_add_u32 s{ST}, s{ST}, {CFLAG + ph*CF_PH}
        v_mov_b32 v253, s{ST}
        s_mov_b32 s{ST+1}, {CF_LOC}
        s_waitcnt vmcnt({vmn})
        s_mov_b64 exec, 1
        """)
        def st(f):
            if f == "":
                I(f"buffer_store_dwordx2 v[254:255], v253, {sr(S_WS)}, s{ST+1} offen")
                if both: I(f"buffer_store_dwordx2 v[254:255], v253, {sr(S_WS)}, 0 offen sc1")
            else:
                I(f"buffer_store_dwordx2 v[254:255], v253, {sr(S_WS)}, 0 offen sc1")
        self.dual(st)
        I(f"s_mov_b64 exec, -1")

    def publish_drip(self, ph, both=False, line_sreg=None):
        if self.detail == 2: self.stamp(f"e_sto{ph}")
        self.publish(ph, both=both, vmn=0, line_sreg=line_sreg)
        self.vmq = []
        self.drip(self.pub_after)

    def wait_flags(self, ph, lines, code):
        I = self.I
        lp = self.b.uid("L_wfp"); ok = self.b.uid("L_wfok")
        I(f"v_mov_b32 v251, s{lines[0]}")
        if len(lines) > 1:
            I(f"v_lshrrev_b32 v250, 3, v{V_L}\nv_and_b32 v250, 3, v250")
            for i, r in enumerate(lines[1:], 1):
                I(f"v_cmp_eq_u32 vcc, {i}, v250\nv_mov_b32 v252, s{r}\nv_cndmask_b32 v251, v251, v252, vcc")
        I(f"""
        v_lshrrev_b32 v250, 4, v251
        s_lshr_b32 s{ST}, s{S_RB}, 2
        v_cmp_eq_u32 vcc, s{ST}, v250
        s_mul_i32 s{ST}, s{S_FAST}, {CF_LOC}
        v_mov_b32 v252, s{ST}
        v_cndmask_b32 v250, 0, v252, vcc
        v_lshl_add_u32 v251, v251, 7, v250
        v_and_b32 v252, 7, v{V_L}
        v_lshl_add_u32 v251, v252, 3, v251
        s_mov_b32 s{ST+1}, {CFLAG + ph*CF_PH}
        s_mov_b32 s{ST}, {TIMEOUT}
        buffer_load_dwordx2 v[254:255], v251, {sr(S_WS)}, s{ST+1} offen sc1
        """)
        n0 = len(self.vmq)
        self.drip(self.shadow_f)
        nsh = len(self.vmq) - n0
        lchk = self.b.uid("L_wfc")
        I(f"""
        s_waitcnt vmcnt({nsh})
        s_branch {lchk}
        {lp}:
        buffer_load_dwordx2 v[254:255], v251, {sr(S_WS)}, s{ST+1} offen sc1
        s_waitcnt vmcnt(0)
        {lchk}:
        v_cmp_ne_u32 vcc, s{S_TAG}, v254
        s_mov_b64 s[{ST+2}:{ST+3}], vcc
        v_cmp_ne_u32 vcc, s{S_TAG+1}, v255
        s_or_b64 s[{ST+2}:{ST+3}], s[{ST+2}:{ST+3}], vcc
        s_cmp_eq_u64 s[{ST+2}:{ST+3}], 0
        s_cbranch_scc1 {ok}
        """)
        self.spin_tail(ST, lp, code)
        I(f"{ok}:")
        self.vmq = self.vmq[len(self.vmq)-nsh:] if nsh else []

    X2, H = 4, 24
    ACC = 44
    MS_GA = 64
    WB = 100
    MS_A2, MS_SB = 160, 180
    GT = 200
    RING = 160
    F_WO, F_W1, F_W2, F_W3, F_W4 = 0, 100, 200, 304, 448
    NUNITS = 45
    S_T5 = 29
    S_SRC = 30
    S_WA, S_W3 , S_W4 = 90, 91, 92
    S_LW = 93
    S_DM, S_DS, S_AO, S_AO2 = 94, 95, 88, 89

    def vm_issue(self, tag): self.vmq.append(tag)
    def vm_wait(self, tag):
        if tag not in self.vmq: return
        i = len(self.vmq) - 1 - self.vmq[::-1].index(tag)
        n = len(self.vmq) - 1 - i
        self.I(f"s_waitcnt vmcnt({min(n, 63)})")
        self.vmq = self.vmq[i+1:]
    def vm_drained(self): self.vmq = []

    def ring_regs(self):
        I = self.I
        I(f"""
        s_lshl_b32 s{self.S_LW}, s{S_WV}, 12
        s_mul_i32 s{self.S_WA}, s{S_M}, {WSA_M}
        s_add_u32 s{self.S_WA}, s{self.S_WA}, {WSA}
        s_add_u32 s{self.S_WA}, s{self.S_WA}, s{self.S_LW}
        s_and_b32 s{self.S_W3}, s{S_RB}, 1
        s_lshl_b32 s{self.S_W3}, s{self.S_W3}, 3
        s_add_u32 s{self.S_W3}, s{self.S_W3}, s{S_M}
        s_mul_i32 s{self.S_W3}, s{self.S_W3}, {W3S_M}
        s_add_u32 s{self.S_W3}, s{self.S_W3}, {W3S}
        s_add_u32 s{self.S_W3}, s{self.S_W3}, s{self.S_LW}
        s_mul_i32 s{self.S_W4}, s{S_M}, {W4S_M}
        s_add_u32 s{self.S_W4}, s{self.S_W4}, {W4S}
        s_add_u32 s{self.S_W4}, s{self.S_W4}, s{self.S_LW}
        """)

    def refill(self, maxn=99):
        n = 0
        while self.units_queued < self.NUNITS and n < maxn:
            u = self.units_queued
            if 16*u + 15 - self.RING > self.consumed: break
            for q in range(4):
                self.pend.append((("u", u, q), (lambda u=u, q=q: self.emit_dma(u, q))))
            self.units_queued += 1; n += 1
        self.resort()

    def resort(self):
        ctx = getattr(self, "loop_ctx", None)
        if ctx is None: return
        F0, NT, S = ctx
        def key(e):
            t = e[0]
            if t[0] == "a": return t[2]
            F = 16*t[1]
            if F + 15 < F0: return -100
            st = max(0, (F - F0)//NT)
            if st >= S: return 1000 + t[1]
            return 4*(st//4) - 2 - 1
        self.pend.sort(key=key)

    def emit_dma(self, u, q, track=True):
        I = self.I
        if q == 0:
            F = 16*u
            if F < 304: base, off = self.S_WA, F*1024
            elif F < 448: base, off = self.S_W3, (F-304)*1024
            else: base, off = self.S_W4, (F-448)*1024
            slot = (F % self.RING)*1024
            I(f"s_add_u32 s{self.S_DM}, s{self.S_LW}, {slot}\ns_mov_b32 m0, s{self.S_DM}\ns_add_u32 s{self.S_DS}, s{base}, {off}")
        I(f"buffer_load_dwordx4 v{V_L16}, {sr(S_WS)}, s{self.S_DS} offen offset:{1024*q} lds")
        if track:
            self.vm_issue(("u", u) if q == 3 else ("ux", u, q))
            if q == 3: self.units_issued = u + 1

    def drip(self, n=1):
        while n > 0 and self.pend:
            tag, fn = self.pend.pop(0)
            fn(); n -= 1

    def flush_until(self, tag):
        if not any(t == tag for t, _ in self.pend): return
        while True:
            t, fn = self.pend.pop(0)
            fn()
            if t == tag: return

    def need_units(self, Fmax):
        u = Fmax // 16
        assert u < self.units_queued, (u, self.units_queued)
        self.flush_until(("u", u, 3))
        self.vm_wait(("u", u))

    def gemm(self, S, NT, F0, aops, abases, burst, rate, cap=99, post_barrier=True, resident=False, chunk=4):
        I = self.I
        WB, ACC, T = self.WB, self.ACC, self.GT
        nt = len(abases)
        vb = [T, T+1, T+2]
        stride = 4*NT
        def rd1(s, j):
            off = ((F0 + s*NT + j) % self.RING)*1024
            k, o = divmod(off, 61440)
            I(f"ds_read_b128 {vr(WB + stride*(s % 3) + 4*j)}, v{vb[k]} offset:{o}")
        while self.pend and self.pend[0][0][0] == "u" and self.pend[0][0][2] != 0: self.drip(1)
        keep = []
        if resident:
            keep = [e for e in self.pend if e[0][0] == "u"]
            self.pend = []
        self.pend = list(aops) + self.pend
        self.loop_ctx = (F0, NT, S)
        if not resident: self.refill(cap)
        self.drip(burst)
        for j in range(NT): rd1(0, j)
        for j in range(NT): rd1(1, j)
        acc_rate = 0.0
        for s in range(S):
            if not resident and s + 2 < S and (s + 2) % chunk == 0:
                last = min(S, s + 2 + chunk) - 1
                if F0 + last*NT + NT - 1 > self.visible or self.units_queued < self.NUNITS:
                    self.need_units(F0 + last*NT + NT - 1)
                    I("s_barrier")
                    self.visible = max(self.visible, F0 + last*NT + NT - 1)
                    self.consumed = max(self.consumed, F0 + (s-1)*NT + NT - 1)
                    self.refill(cap)
            if self.detail == F0 and s % 4 == 0: self.stamp(f"d_k{s}")
            nout = NT if s + 1 < S else 0
            I(f"s_waitcnt lgkmcnt({min(nout, 15)})")
            for tt in range(nt):
                self.flush_until(("a", tt, s))
                self.vm_wait(("a", tt, s))
            acc_rate += rate
            nm = nt*NT
            slots = []
            while acc_rate >= 1.0:
                slots.append(1); acc_rate -= 1.0
            pos = {(k*nm)//max(1, len(slots)) : 0 for k in range(len(slots))}
            for k in range(len(slots)): pos[(k*nm)//len(slots)] += 1
            i = 0
            for tt in range(nt):
                for j in range(NT):
                    c = '0' if s == 0 else vr(ACC+4*(tt*NT+j))
                    I(f"v_mfma_f32_16x16x32_bf16 {vr(ACC+4*(tt*NT+j))}, {vr(WB+stride*(s%3)+4*j)}, {ar(abases[tt]+4*s)}, {c}")
                    if i < NT and s + 2 < S: rd1(s+2, i)
                    if pos.get(i): self.drip(pos[i])
                    i += 1
        self.pending_consumed = {299: 303, 443: 447}.get(F0 + S*NT - 1, F0 + S*NT - 1)
        self.loop_ctx = None
        self.pend = self.pend + keep
        if post_barrier:
            I("s_barrier")
            self.after_barrier()
            self.refill()
            self.drip(self.post_drip)

    def after_barrier(self):
        self.consumed = max(self.consumed, getattr(self, "pending_consumed", -1))

    def lds_bases(self):
        T = self.GT
        self.I(f"v_mov_b32 v{T}, v{V_L16}\nv_add_u32 v{T+1}, 61440, v{V_L16}\nv_add_u32 v{T+2}, {2*61440}, v{V_L16}")

    def a_op(self, tt, s, abase, vaddr, base_sreg, base_add, soff_reg, split=(), vaddr8=None):
        def fn():
            if s % 4 == 0:
                if base_sreg is None: self.I(f"s_mov_b32 s{soff_reg}, {base_add + 1024*s}")
                else: self.I(f"s_add_u32 s{soff_reg}, s{base_sreg}, {base_add + 1024*s}")
            r = abase + 4*s
            if s in split:
                self.I(f"buffer_load_dwordx2 a[{r}:{r+1}], v{vaddr8}, {sr(S_WS)}, s{soff_reg} offen offset:{1024*(s % 4)} sc1")
                self.vm_issue(("ah", tt, s))
                self.I(f"buffer_load_dwordx2 a[{r+2}:{r+3}], v{vaddr8}, {sr(S_WS)}, s{soff_reg} offen offset:{1024*(s % 4)+512} sc1")
            else:
                self.I(f"buffer_load_dwordx4 {ar(r)}, v{vaddr}, {sr(S_WS)}, s{soff_reg} offen offset:{1024*(s % 4)} sc1")
            self.vm_issue(("a", tt, s))
        return (("a", tt, s), fn)

    RAW_GA, RAW_SB, RAW_CB, RAW_GB = 140, 150, 214, 240
    def mod_fetch(self):
        I = self.I
        I(f"v_lshlrev_b32 v244, 4, v{V_G}\nv_add_u32 v244, {self.L_MODW}, v244")
        for (dst, off, acc) in ((self.RAW_GA, 0, False), (self.RAW_SB, 2560, False), (self.RAW_CB, 4096, False), (self.RAW_GB, 4096+2560, True)):
            for j in range(5):
                r = f"a[{dst+2*j}:{dst+2*j+1}]" if acc else f"v[{dst+2*j}:{dst+2*j+1}]"
                I(f"ds_read_b64 {r}, v244 offset:{off + 64*j}")

    def mod_unpack(self):
        I = self.I
        for src, dst in ((self.RAW_GA, self.MS_GA), (self.RAW_SB, self.MS_SB), (self.RAW_CB, self.MS_A2)):
            for i in range(10):
                I(f"v_lshlrev_b32 v{dst+2*i}, 16, v{src+i}\nv_and_b32 v{dst+2*i+1}, 0xffff0000, v{src+i}")
        self.one_plus_bf16(self.MS_A2, 20)

    def one_plus_bf16(self, r, n):
        I = self.I
        for i in range(0, n, 2):
            I(f"""
            v_add_f32 v{r+i}, 1.0, v{r+i}
            v_add_f32 v{r+i+1}, 1.0, v{r+i+1}
            v_cvt_pk_bf16_f32 v{r+i}, v{r+i}, v{r+i+1}
            v_and_b32 v{r+i+1}, 0xffff0000, v{r+i}
            v_lshlrev_b32 v{r+i}, 16, v{r+i}
            """)

    def ln_stats(self, src, which, mu, rs, code, fine=0):
        I = self.I
        T = self.GT + 4
        I(f"v_pk_add_f32 v[{T}:{T+1}], v[{src}:{src+1}], v[{src+2}:{src+3}]\nv_pk_mul_f32 v[{T+2}:{T+3}], v[{src}:{src+1}], v[{src}:{src+1}]")
        I(f"v_pk_fma_f32 v[{T+2}:{T+3}], v[{src+2}:{src+3}], v[{src+2}:{src+3}], v[{T+2}:{T+3}]")
        for i in range(4, 20, 2):
            I(f"v_pk_add_f32 v[{T}:{T+1}], v[{T}:{T+1}], v[{src+i}:{src+i+1}]\nv_pk_fma_f32 v[{T+2}:{T+3}], v[{src+i}:{src+i+1}], v[{src+i}:{src+i+1}], v[{T+2}:{T+3}]")
            if i in (8, 14): self.drip(fine)
        I(f"v_add_f32 v{T}, v{T}, v{T+1}\nv_add_f32 v{T+1}, v{T+2}, v{T+3}")
        self.reduce_g([T, T+1], T+4)
        I(f"""
        v_mov_b32 v{T+2}, s{S_TAG}
        v_mov_b32 v{T+3}, s{S_TAG+1}
        s_lshl_b32 s{ST+4}, s{S_RB}, 13
        s_lshl_b32 s{ST+5}, s{S_WV}, 8
        s_add_u32 s{ST+4}, s{ST+4}, s{ST+5}
        s_add_u32 s{ST+4}, s{ST+4}, {STAT + which*STAT_SZ}
        s_lshl_b32 s{ST+5}, s{S_M}, 10
        s_add_u32 s{ST+5}, s{ST+5}, s{ST+4}
        v_lshlrev_b32 v{T+4}, 4, v{V_T}
        s_mov_b64 exec, 0xffff
        """)
        self.dual(lambda f: I(f"buffer_store_dwordx4 {vr(T)}, v{T+4}, {sr(S_WS)}, s{ST+5} offen{f}"))
        I("s_mov_b64 exec, -1")
        if self.detail == 2: self.stamp(f"e_st{which}")
        I(f"""
        s_mov_b64 exec, -1
        v_lshl_add_u32 v{T+5}, v{V_G}, 11, v{T+4}
        s_mov_b32 s{ST}, {TIMEOUT}
        """)
        lp = self.b.uid("L_ls"); ok = self.b.uid("L_lsok"); lchk = self.b.uid("L_lsc")
        I(f"""
        buffer_load_dwordx4 {vr(T+8)}, v{T+5}, {sr(S_WS)}, s{ST+4} offen sc1
        buffer_load_dwordx4 {vr(T+12)}, v{T+5}, {sr(S_WS)}, s{ST+4} offen offset:1024 sc1
        """)
        n0 = len(self.vmq)
        self.drip(self.shadow_s)
        nsh = len(self.vmq) - n0
        I(f"""
        s_waitcnt vmcnt({nsh})
        s_branch {lchk}
        {lp}:
        buffer_load_dwordx4 {vr(T+8)}, v{T+5}, {sr(S_WS)}, s{ST+4} offen sc1
        buffer_load_dwordx4 {vr(T+12)}, v{T+5}, {sr(S_WS)}, s{ST+4} offen offset:1024 sc1
        s_waitcnt vmcnt(0)
        {lchk}:
        v_cmp_ne_u32 vcc, s{S_TAG}, v{T+10}
        s_mov_b64 s[{ST+2}:{ST+3}], vcc
        v_cmp_ne_u32 vcc, s{S_TAG+1}, v{T+11}
        s_or_b64 s[{ST+2}:{ST+3}], s[{ST+2}:{ST+3}], vcc
        v_cmp_ne_u32 vcc, s{S_TAG}, v{T+14}
        s_or_b64 s[{ST+2}:{ST+3}], s[{ST+2}:{ST+3}], vcc
        v_cmp_ne_u32 vcc, s{S_TAG+1}, v{T+15}
        s_or_b64 s[{ST+2}:{ST+3}], s[{ST+2}:{ST+3}], vcc
        s_cmp_eq_u64 s[{ST+2}:{ST+3}], 0
        s_cbranch_scc1 {ok}
        """)
        self.spin_tail(ST, lp, code)
        self.vmq = self.vmq[len(self.vmq)-nsh:] if nsh else []
        I(f"{ok}:")
        if self.detail == 2: self.stamp(f"e_got{which}")
        I(f"""
        v_add_f32 v{T}, v{T+8}, v{T+12}
        v_add_f32 v{T+1}, v{T+9}, v{T+13}
        """)
        self.reduce_g([T, T+1], T+4)
        I(f"""
        v_mul_f32 v{mu}, {1.0/640!r}, v{T}
        v_mul_f32 v{T+1}, {1.0/640!r}, v{T+1}
        v_fma_f32 v{T+1}, -v{mu}, v{mu}, v{T+1}
        v_max_f32 v{T+1}, 0, v{T+1}
        v_add_f32 v{T+1}, 0x3727c5ac, v{T+1}
        v_rsq_f32 v{rs}, v{T+1}
        s_nop 0
        v_mul_f32 v{mu}, -v{mu}, v{rs}
        v_mov_b32 v{rs+1}, v{rs}
        v_mov_b32 v{mu+1}, v{mu}
        """)

    V_L8 = 203
    SPLIT20 = (2, 7, 12, 17)
    SPLIT54 = (3, 10, 17, 24, 31, 38)
    def pack_tiles(self, src, ntile, dst=None):
        if dst is None: dst = src
        for j in range(ntile):
            a = src + 4*j; d = dst + 2*j
            self.I(f"v_cvt_pk_bf16_f32 v{d}, v{a}, v{a+1}\nv_cvt_pk_bf16_f32 v{d+1}, v{a+2}, v{a+3}")

    def store_frag(self, pk, ntile, base_sreg, tile0_sreg, skip_last_sreg=None, force_sc1=False, count=True):
        I = self.I
        lodd = self.b.uid("L_so"); lj = self.b.uid("L_sj")
        I(f"""
        s_lshr_b32 s{ST+5}, s{tile0_sreg}, 1
        s_lshl_b32 s{ST+5}, s{ST+5}, 10
        s_add_u32 s{ST+5}, s{ST+5}, s{base_sreg}
        s_bitcmp1_b32 s{tile0_sreg}, 0
        s_cbranch_scc1 {lodd}
        """)
        def variant(odd, f):
            if not odd:
                for p in range(ntile//2):
                    I(f"buffer_store_dwordx4 {vr(pk+4*p)}, v{V_L16}, {sr(S_WS)}, s{ST+5} offen offset:{1024*p}{f}")
                if ntile % 2:
                    lab = None
                    if skip_last_sreg is not None:
                        lab = self.b.uid("L_sk")
                        I(f"s_cmp_lg_u32 s{skip_last_sreg}, 0\ns_cbranch_scc1 {lab}")
                    j = ntile-1
                    I(f"buffer_store_dwordx2 v[{pk+2*j}:{pk+2*j+1}], v{self.V_L8}, {sr(S_WS)}, s{ST+5} offen offset:{1024*(ntile//2)}{f}")
                    if lab: I(f"{lab}:")
            else:
                I(f"buffer_store_dwordx2 v[{pk}:{pk+1}], v{self.V_L8}, {sr(S_WS)}, s{ST+5} offen offset:512{f}")
                for p in range(ntile//2):
                    I(f"buffer_store_dwordx4 {vr(pk+2+4*p)}, v{V_L16}, {sr(S_WS)}, s{ST+5} offen offset:{1024*(p+1)}{f}")
        if force_sc1: variant(False, " sc1")
        else: self.dual(lambda f: variant(False, f))
        I(f"s_branch {lj}\n{lodd}:")
        if force_sc1: variant(True, " sc1")
        else: self.dual(lambda f: variant(True, f))
        I(f"{lj}:")
        if count:
            for j in range(ntile//2): self.vm_issue(("st",))

    def tile_base(self, dst_sreg, tt_sreg, S, base_off):
        self.I(f"s_mul_i32 s{dst_sreg}, s{tt_sreg}, {S*1024}\ns_add_u32 s{dst_sreg}, s{dst_sreg}, {base_off}")

    def gelu(self, r, n, drip=0):
        I = self.I
        T = self.GT + 4
        c1 = -2.0 * 0.7978845608028654 * 1.4426950408889634
        c2 = c1 * 0.044715
        C1, ONE = T+8, T+10
        I(f"""
        s_mov_b32 s{ST+8}, {hex(f2u(c2))}
        s_mov_b32 s{ST+9}, {hex(f2u(c2))}
        v_mov_b32 v{C1}, {hex(f2u(c1))}
        v_mov_b32 v{C1+1}, {hex(f2u(c1))}
        v_mov_b32 v{ONE}, 1.0
        v_mov_b32 v{ONE+1}, 1.0
        """)
        P = lambda x: f"v[{x}:{x+1}]"
        for i in range(0, n, 4):
            x0, x1, t0, t1 = r+i, r+i+2, T, T+2
            I(f"v_pk_mul_f32 {P(t0)}, {P(x0)}, {P(x0)}\nv_pk_mul_f32 {P(t1)}, {P(x1)}, {P(x1)}")
            I(f"v_pk_fma_f32 {P(t0)}, {P(t0)}, s[{ST+8}:{ST+9}], {P(C1)}\nv_pk_fma_f32 {P(t1)}, {P(t1)}, s[{ST+8}:{ST+9}], {P(C1)}")
            I(f"v_pk_mul_f32 {P(t0)}, {P(t0)}, {P(x0)}\nv_pk_mul_f32 {P(t1)}, {P(t1)}, {P(x1)}")
            for q in range(4): I(f"v_exp_f32 v{T+q}, v{T+q}")
            I(f"v_pk_add_f32 {P(t0)}, {P(t0)}, {P(ONE)}\nv_pk_add_f32 {P(t1)}, {P(t1)}, {P(ONE)}")
            for q in range(4): I(f"v_rcp_f32 v{T+q}, v{T+q}")
            I(f"v_pk_mul_f32 {P(x0)}, {P(x0)}, {P(t0)}\nv_pk_mul_f32 {P(x1)}, {P(x1)}, {P(t1)}")
            self.drip(drip)

    def phase_entry(self, ph_wait, lines, code, F0, NT, between=None, upto=None):
        last = F0 + 4*NT - 1 if upto is None else upto
        self.need_units(last)
        self.I("s_barrier")
        self.visible = max(getattr(self, "visible", -1), last)
        self.after_barrier()
        if self.detail == F0: self.stamp("d_bar")
        self.wait_flags(ph_wait, lines, code)
        if self.detail == F0: self.stamp("d_flags")
        if self.detail == 2: self.stamp(f"e_fl{ph_wait}")

    def small_gemm(self, F0, act, ph_wait, rbs, code, shift=False, between=None, pf=()):
        I, C = self.I, self.C
        self.phase_entry(ph_wait, rbs, code, F0, 5, between, upto=(F0+99 if self.resident else None))
        if not shift:
            I(f"s_mul_i32 s{self.S_SRC}, s{S_TT}, {20*1024}\ns_add_u32 s{self.S_SRC}, s{self.S_SRC}, {act}")
            aops = [self.a_op(0, s, 16, V_L16, self.S_SRC, 0, self.S_AO, self.SPLIT20, self.V_L8) for s in range(20)]
        else:
            T = self.GT + 8
            I(f"s_lshl_b32 s{ST+4}, s{S_TT}, 4\ns_lshr_b32 s{ST+5}, s{S_RB}, 2")
            for q, dl in enumerate((-1, 1, -2, 2)):
                side = 1 if dl < 0 else 0
                I(f"""
                v_add_u32 v{T+4}, s{ST+4}, v{V_T}
                v_add_u32 v{T+4}, {dl & 0xffffffff}, v{T+4}          ; token'
                v_lshrrev_b32 v{T+5}, 4, v{T+4}
                v_mul_u32_u24 v{T+5}, 20480, v{T+5}
                v_add_u32 v{T+5}, {act}, v{T+5}
                v_lshrrev_b32 v{T+6}, 8, v{T+4}
                v_lshlrev_b32 v{T+7}, 1, v{T+6}
                v_add_u32 v{T+7}, {side}, v{T+7}
                v_mul_u32_u24 v{T+7}, 20480, v{T+7}
                v_add_u32 v{T+7}, {HG}, v{T+7}
                v_cmp_eq_u32 vcc, s{ST+5}, v{T+6}
                v_cndmask_b32 v{T+5}, v{T+7}, v{T+5}, vcc
                v_and_b32 v{T+6}, 15, v{T+4}
                v_lshl_add_u32 v{T+6}, v{V_G}, 4, v{T+6}              ; g*16 + t'
                v_lshl_add_u32 v{T+7}, v{T+6}, 3, v{T+5}
                v_lshl_add_u32 v{T+5}, v{T+6}, 4, v{T+5}
                v_cmp_gt_u32 vcc, 0x800, v{T+4}
                v_mov_b32 v{T+6}, 0x80000000
                v_cndmask_b32 v{T+q}, v{T+6}, v{T+5}, vcc
                v_cndmask_b32 v{self.GT+20+q}, v{T+6}, v{T+7}, vcc
                """)
            aops = [self.a_op(0, s, 16, T + s // 5, None, 0, self.S_AO, self.SPLIT20, self.GT + 20 + s // 5) for s in range(20)]
        if self.use_pf: aops += [(("a", 9, 19), (lambda p=p: self.pf_op(*p))) for p in pf]
        if (self.h4t_where == 1 and F0 == self.F_W1) or (self.h4t_where == 2 and F0 == self.F_W2) or (self.h4t_where == 4 and F0 == self.F_WO):
            def h4t():
                self.act_touch(H4F, 54*1024); self.vm_issue(("pf",))
            aops.append((("a", 9, 19), h4t))
        self.gemm(20, 5, F0, aops, [16], burst=self.burst, rate=self.rate_small, cap=self.cap_small, resident=self.resident)

    def phase_wo(self):
        I, C = self.I, self.C
        X2, H, ACC, T = self.X2, self.H, self.ACC, self.GT
        self.lds_bases()
        self.mod_unpack()
        for j in range(5):
            for q in range(2):
                I(f"v_accvgpr_read_b32 v{T+4}, a{2*j+q}")
                I(f"v_lshlrev_b32 v{X2+4*j+2*q}, 16, v{T+4}\nv_and_b32 v{X2+4*j+2*q+1}, 0xffff0000, v{T+4}")
        self.small_gemm(self.F_WO, OF, PH_O, [S_TT], 6, pf=[("3", 0)])
        self.stamp("wo_mm")
        P = lambda x: f"v[{x}:{x+1}]"
        f = self.fine
        for i in range(0, 20, 2): I(f"v_pk_fma_f32 {P(X2+i)}, {P(self.MS_GA+i)}, {P(ACC+i)}, {P(X2+i)}")
        mu, rs = T+30, T+32
        self.ln_stats(X2, 0, mu, rs, 7, fine=f)
        for i in range(0, 20, 2):
            I(f"v_pk_fma_f32 {P(H+i)}, {P(X2+i)}, {P(rs)}, {P(mu)}")
            I(f"v_pk_fma_f32 {P(H+i)}, {P(H+i)}, {P(self.MS_A2+i)}, {P(self.MS_SB+i)}")
            if i in (0, 8): self.drip(f)
        self.ln_stats(H, 1, mu, rs, 8, fine=f)
        self.drip(f)
        for i in range(0, 20, 2): I(f"v_pk_fma_f32 {P(ACC+i)}, {P(H+i)}, {P(rs)}, {P(mu)}")
        self.pack_tiles(ACC, 5)
        self.tile_base(ST+4, S_TT, 20, L2F)
        self.store_frag(ACC, 5, ST+4, self.S_T5)
        self.publish_drip(PH_L2)
        self.stamp("l2pub")

    def phase_w1(self):
        I = self.I
        self.small_gemm(self.F_W1, L2F, PH_L2, [S_TT], 9, pf=[("3", 1)])
        self.stamp("w1_mm")
        self.gelu(self.ACC, 20, drip=self.gd1)
        self.pack_tiles(self.ACC, 5)
        self.tile_base(ST+4, S_TT, 20, GF)
        self.store_frag(self.ACC, 5, ST+4, self.S_T5)
        lab = self.b.uid("L_hal")
        I(f"""
        s_and_b32 s{ST+6}, s{S_TT}, 15
        s_add_u32 s{ST+6}, s{ST+6}, 1
        s_and_b32 s{ST+7}, s{ST+6}, 14
        s_cmp_eq_u32 s{ST+7}, 0
        s_cbranch_scc0 {lab}
        s_lshr_b32 s{ST+7}, s{S_TT}, 4
        s_lshl_b32 s{ST+7}, s{ST+7}, 1
        s_lshr_b32 s{ST+6}, s{ST+6}, 4
        s_add_u32 s{ST+7}, s{ST+7}, s{ST+6}
        s_mul_i32 s{ST+4}, s{ST+7}, 20480
        s_add_u32 s{ST+4}, s{ST+4}, {HG}
        """)
        self.store_frag(self.ACC, 5, ST+4, self.S_T5, force_sc1=True, count=False)
        I(f"{lab}:")
        self.publish_drip(PH_G, both=True)
        self.stamp("gpub")

    def phase_w2(self):
        I = self.I
        X2, H, ACC, T = self.X2, self.H, self.ACC, self.GT
        I(f"""
        s_sub_u32 s{ST+10}, s{S_TT}, 1
        s_max_i32 s{ST+10}, s{ST+10}, 0
        s_add_u32 s{ST+11}, s{S_TT}, 1
        s_min_u32 s{ST+11}, s{ST+11}, 127
        """)
        self.small_gemm(self.F_W2, GF, PH_G, [S_TT, ST+10, ST+11], 10, shift=True, pf=[("4", 0)])
        self.stamp("w2_mm")
        P = lambda x: f"v[{x}:{x+1}]"
        for i in range(0, 20, 2): I(f"v_pk_add_f32 {P(H+i)}, {P(H+i)}, {P(ACC+i)}")
        mu, rs = T+30, T+32
        self.ln_stats(H, 2, mu, rs, 11, fine=self.fine)
        self.drip(self.fine)
        for i in range(0, 20, 2): I(f"v_pk_fma_f32 {P(ACC+i)}, {P(H+i)}, {P(rs)}, {P(mu)}")
        self.pack_tiles(ACC, 5)
        self.tile_base(ST+4, S_TT, 20, L3F)
        self.store_frag(ACC, 5, ST+4, self.S_T5)
        self.publish_drip(PH_L3)
        self.stamp("l3pub")

    def phase_w3(self):
        I, C = self.I, self.C
        ACC = self.ACC
        m16, t0, skip, rbA, rbB, ttb = ST+10, ST+11, ST+12, ST+13, ST+14, ST+15
        I(f"""
        s_and_b32 s{m16}, s{S_RB}, 1
        s_lshl_b32 s{m16}, s{m16}, 3
        s_add_u32 s{m16}, s{m16}, s{S_M}
        s_mul_i32 s{t0}, s{m16}, 7
        s_sub_u32 s{ST}, s{m16}, 12
        s_max_i32 s{ST}, s{ST}, 0
        s_sub_u32 s{t0}, s{t0}, s{ST}
        s_cmp_ge_u32 s{m16}, 12
        s_cselect_b32 s{skip}, 1, 0
        s_and_b32 s{rbA}, s{S_RB}, 30
        s_add_u32 s{rbB}, s{rbA}, 1
        s_lshl_b32 s{ttb}, s{rbA}, 2
        s_lshl_b32 s{ST}, s{S_WV}, 1
        s_add_u32 s{ttb}, s{ttb}, s{ST}
        """)
        I(f"s_add_u32 s{rbA}, s{ttb}, 1")
        self.phase_entry(PH_L3, [ttb, rbA], 12, self.F_W3, 7, upto=(self.F_W3+139 if self.resident else None))
        I(f"s_mul_i32 s{self.S_SRC}, s{ttb}, {20*1024}\ns_add_u32 s{self.S_SRC}, s{self.S_SRC}, {L3F}")
        aops = []
        for s in range(20):
            aops.append(self.a_op(0, s, 16, V_L16, self.S_SRC, 0, self.S_AO, self.SPLIT20, self.V_L8))
            aops.append(self.a_op(1, s, 96, V_L16, self.S_SRC, 20*1024, self.S_AO2, self.SPLIT20, self.V_L8))
        if self.use_pf: aops.insert(16, (("a", 9, 8), (lambda: self.pf_op("4", 1))))
        def h4t():
            self.act_touch(H4F, 54*1024); self.vm_issue(("pf",))
        if self.h4t_where == 3: aops.append((("a", 9, 19), h4t))
        self.gemm(20, 7, self.F_W3, aops, [16, 96], burst=2*self.burst, rate=self.rate_w3, resident=self.resident)
        self.stamp("w3_mm")
        self.gelu(ACC, 56, drip=self.gd3)
        self.pack_tiles(ACC, 7)
        self.pack_tiles(ACC+28, 7)
        self.tile_base(ST+4, ttb, 54, H4F)
        self.store_frag(ACC, 7, ST+4, t0, skip_last_sreg=skip)
        I(f"s_add_u32 s{ST+4}, s{ST+4}, {54*1024}")
        self.store_frag(ACC+28, 7, ST+4, t0, skip_last_sreg=skip)
        self.publish_drip(PH_H4)
        self.stamp("h4pub")

    def phase_w4(self):
        I, C = self.I, self.C
        X2, H, ACC, T = self.X2, self.H, self.ACC, self.GT
        rbA, rbB = ST+13, ST+14
        I(f"""
        s_and_b32 s{rbA}, s{S_TT}, 7
        s_lshr_b32 s{rbA}, s{rbA}, 1
        s_and_b32 s{rbB}, s{S_RB}, 30
        s_lshl_b32 s{rbB}, s{rbB}, 2
        s_add_u32 s{rbA}, s{rbA}, s{rbB}
        s_add_u32 s{rbB}, s{rbA}, 4
        """)
        self.phase_entry(PH_H4, [rbA, rbB], 13, self.F_W4, 5, upto=(607 if self.resident else None))
        I(f"s_mul_i32 s{self.S_SRC}, s{S_TT}, {54*1024}\ns_add_u32 s{self.S_SRC}, s{self.S_SRC}, {H4F}")
        aops = [self.a_op(0, s, 16, V_L16, self.S_SRC, 0, self.S_AO, self.SPLIT54, self.V_L8) for s in range(54)]
        self.gemm(54, 5, self.F_W4, aops, [16], burst=self.burst4, rate=self.rate_w4, post_barrier=False, chunk=self.chunk4)
        self.stamp("w4_mm")
        MS = self.WB
        for j in range(5):
            I(f"""
            v_accvgpr_read_b32 v{T+4}, a{self.RAW_GB+2*j}
            v_accvgpr_read_b32 v{T+5}, a{self.RAW_GB+2*j+1}
            v_lshlrev_b32 v{MS+4*j}, 16, v{T+4}
            v_and_b32 v{MS+4*j+1}, 0xffff0000, v{T+4}
            v_lshlrev_b32 v{MS+4*j+2}, 16, v{T+5}
            v_and_b32 v{MS+4*j+3}, 0xffff0000, v{T+5}
            """)
        for i in range(0, 20, 2):
            I(f"v_pk_add_f32 v[{ACC+i}:{ACC+i+1}], v[{ACC+i}:{ACC+i+1}], v[{H+i}:{H+i+1}]")
            I(f"v_pk_fma_f32 v[{ACC+i}:{ACC+i+1}], v[{ACC+i}:{ACC+i+1}], v[{MS+i}:{MS+i+1}], v[{X2+i}:{X2+i+1}]")
        self.srd(S_A, P_OUT, 2048*1280)
        I(f"""
        s_lshl_b32 s{ST}, s{S_TT}, 4
        v_add_u32 v{T+4}, s{ST}, v{V_T}
        v_mul_u32_u24 v{T+4}, 1280, v{T+4}
        v_lshl_add_u32 v{T+4}, v{V_G}, 3, v{T+4}
        s_mul_i32 s{ST}, s{S_M}, 160
        """)
        self.pack_tiles(ACC, 5)
        for j in range(5):
            a = ACC + 2*j
            I(f"buffer_store_dwordx2 v[{a}:{a+1}], v{T+4}, {sr(S_A)}, s{ST} offen offset:{32*j}")
        self.stamp("out")

    def l2_prefetch(self, which, part):
        I = self.I
        T = 246
        rbl = ST + 4
        I(f"v_lshlrev_b32 v{T}, 7, v{V_L}\ns_and_b32 s{rbl}, s{S_RB}, 3")
        if which == "A":
            base, start, chunk, shl = self.S_WA, 160*1024, 4608, 0
        elif which == "3":
            base, start, chunk, shl = self.S_W3, 0, 9216, 1
        else:
            base, start, chunk, shl = self.S_W4, 0, 8704, 0
        I(f"""
        s_lshr_b32 s{ST+5}, s{rbl}, {shl}
        s_lshl_b32 s{ST+5}, s{ST+5}, 2
        s_add_u32 s{ST+5}, s{ST+5}, s{S_WV}
        s_lshl_b32 s{ST+5}, s{ST+5}, 1
        s_add_u32 s{ST+5}, s{ST+5}, {part}
        s_mul_i32 s{ST+5}, s{ST+5}, {chunk}
        s_add_u32 s{ST+5}, s{ST+5}, s{base}
        s_sub_u32 s{ST+5}, s{ST+5}, s{self.S_LW}
        s_add_u32 s{ST+5}, s{ST+5}, {start}
        """)
        if chunk < 8192:
            I(f"v_cmp_gt_u32 vcc, {chunk//128}, v{V_L}\ns_and_saveexec_b64 s[{ST+6}:{ST+7}], vcc")
        I(f"buffer_load_dword a254, v{T}, {sr(S_WS)}, s{ST+5} offen")
        if chunk < 8192:
            I(f"s_mov_b64 exec, s[{ST+6}:{ST+7}]")
        if chunk > 8192:
            I(f"s_add_u32 s{ST+5}, s{ST+5}, 8192\nv_cmp_gt_u32 vcc, {(chunk-8192)//128}, v{V_L}\ns_and_saveexec_b64 s[{ST+6}:{ST+7}], vcc")
            I(f"buffer_load_dword a253, v{T}, {sr(S_WS)}, s{ST+5} offen")
            I(f"s_mov_b64 exec, s[{ST+6}:{ST+7}]")
        return 2 if chunk > 8192 else 1

    def tlb_touch(self):
        I = self.I
        n = (WS_END + (1 << 20) - 1) >> 20
        I(f"""
        v_lshlrev_b32 v245, 20, v{V_L}
        v_cmp_gt_u32 vcc, {n}, v{V_L}
        s_and_saveexec_b64 s[{ST+6}:{ST+7}], vcc
        buffer_load_dword a255, v245, {sr(S_WS)}, 0 offen
        s_mov_b64 exec, s[{ST+6}:{ST+7}]
        """)

    def mall_touch(self, base, nbytes):
        I = self.I
        per_wave = -(-nbytes // 1024 // 128) * 128
        lines = per_wave // 128
        assert lines <= 128
        I(f"""
        v_lshlrev_b32 v245, 7, v{V_L}
        s_lshl_b32 s{ST+5}, s{S_W}, 2
        s_add_u32 s{ST+5}, s{ST+5}, s{S_WV}
        s_mul_i32 s{ST+5}, s{ST+5}, {per_wave}
        s_add_u32 s{ST+5}, s{ST+5}, {base}
        """)
        n0 = min(lines, 64)
        if n0 < 64: I(f"v_cmp_gt_u32 vcc, {n0}, v{V_L}\ns_and_saveexec_b64 s[{ST+6}:{ST+7}], vcc")
        I(f"buffer_load_dword a255, v245, {sr(S_WS)}, s{ST+5} offen")
        if n0 < 64: I(f"s_mov_b64 exec, s[{ST+6}:{ST+7}]")

    def act_touch(self, base, per_tile):
        I = self.I
        per_wave = 16*per_tile // 128
        lines = per_wave // 128
        I(f"""
        v_lshlrev_b32 v245, 7, v{V_L}
        s_lshr_b32 s{ST+5}, s{S_RB}, 2
        s_mul_i32 s{ST+5}, s{ST+5}, {16*per_tile}
        s_and_b32 s{ST+6}, s{S_RB}, 3
        s_lshl_b32 s{ST+6}, s{ST+6}, 3
        s_add_u32 s{ST+6}, s{ST+6}, s{S_M}
        s_lshl_b32 s{ST+6}, s{ST+6}, 2
        s_add_u32 s{ST+6}, s{ST+6}, s{S_WV}
        s_mul_i32 s{ST+6}, s{ST+6}, {per_wave}
        s_add_u32 s{ST+5}, s{ST+5}, s{ST+6}
        s_add_u32 s{ST+5}, s{ST+5}, {base}
        """)
        n0 = min(lines, 64)
        if n0 < 64: I(f"v_cmp_gt_u32 vcc, {n0}, v{V_L}\ns_and_saveexec_b64 s[{ST+6}:{ST+7}], vcc")
        I(f"buffer_load_dword a255, v245, {sr(S_WS)}, s{ST+5} offen")
        if n0 < 64: I(f"s_mov_b64 exec, s[{ST+6}:{ST+7}]")

    def sync_touch(self):
        I = self.I
        l3 = self.b.uid("L_st3"); lj = self.b.uid("L_stj")
        I(f"""
        s_cmp_eq_u32 s{S_WV}, 3
        s_cbranch_scc1 {l3}
        v_lshlrev_b32 v245, 7, v{V_L}
        s_mul_i32 s{ST+5}, s{S_WV}, {STAT_SZ}
        s_lshl_b32 s{ST+6}, s{S_RB}, 13
        s_add_u32 s{ST+5}, s{ST+5}, s{ST+6}
        s_add_u32 s{ST+5}, s{ST+5}, {STAT}
        buffer_load_dword a255, v245, {sr(S_WS)}, s{ST+5} offen
        s_branch {lj}
        {l3}:
        v_lshrrev_b32 v245, 4, v{V_L}
        v_lshlrev_b32 v245, 14, v245
        v_and_b32 v244, 15, v{V_L}
        v_lshl_add_u32 v245, v244, 7, v245
        s_and_b32 s{ST+5}, s{S_RB}, 28
        s_lshl_b32 s{ST+5}, s{ST+5}, 9
        s_add_u32 s{ST+5}, s{ST+5}, {CFLAG + CF_LOC}
        buffer_load_dword a255, v245, {sr(S_WS)}, s{ST+5} offen
        s_add_u32 s{ST+5}, s{ST+5}, {4*CF_PH}
        v_lshlrev_b32 v245, 7, v244
        buffer_load_dword a255, v245, {sr(S_WS)}, s{ST+5} offen
        {lj}:
        """)

    def pf_op(self, which, part):
        n = self.l2_prefetch(which, part)
        for i in range(n): self.vm_issue(("pf",))

    def hook_body(self, hooks, k):
        if self.detail == 1: self.stamp(f"h{k}i")
        hooks[k]()
        if self.detail == 1: self.stamp(f"h{k}o")

    L_KV = 108*1024
    S_SLOW = 77
    def kv_dma(self, g):
        I = self.I
        I(f"""
        s_mul_i32 s{ST+5}, s{S_WV}, {KVT}
        s_add_u32 s{ST+4}, s{ST+5}, {self.L_KV + (4*g % 16)*KVT}
        s_mov_b32 m0, s{ST+4}
        s_add_u32 s{ST+5}, s{ST+5}, {KV + 4*g*KVT}
        buffer_load_dwordx4 v{V_L16}, {sr(S_WS)}, s{ST+5} offen lds
        buffer_load_dwordx4 v{V_L16}, {sr(S_WS)}, s{ST+5} offen offset:1024 lds
        buffer_load_dwordx4 v{V_L16}, {sr(S_WS)}, s{ST+5} offen offset:2048 lds
        s_mov_b64 exec, 0xffff
        buffer_load_dwordx4 v{V_L16}, {sr(S_WS)}, s{ST+5} offen offset:3072 lds
        s_mov_b64 exec, -1
        """)

    L_DUMMY = 104*1024
    L_MODW = 96*1024
    def slot_setup(self, kind, arg=0):
        I = self.I
        DS = self.S_DS
        if kind == "unit":
            I(f"s_add_u32 s{DS}, s{self.S_WA}, {16*arg*1024}\ns_add_u32 s76, s{self.S_LW}, {16*arg*1024}")
            return
        if kind == "act":
            base, per_tile, part = arg
            per_wave = 16*per_tile // 128
            I(f"""
            s_lshr_b32 s{DS}, s{S_RB}, 2
            s_mul_i32 s{DS}, s{DS}, {16*per_tile}
            s_and_b32 s{ST+6}, s{S_RB}, 3
            s_lshl_b32 s{ST+6}, s{ST+6}, 3
            s_add_u32 s{ST+6}, s{ST+6}, s{S_M}
            s_lshl_b32 s{ST+6}, s{ST+6}, 2
            s_add_u32 s{ST+6}, s{ST+6}, s{S_WV}
            s_mul_i32 s{ST+6}, s{ST+6}, {per_wave}
            s_add_u32 s{DS}, s{DS}, s{ST+6}
            s_add_u32 s{DS}, s{DS}, {base + 4096*part}
            """)
        elif kind == "mod":
            I(f"s_mul_i32 s{DS}, s{S_M}, 320\ns_add_u32 s{DS}, s{DS}, {MODG + (2 + 2*arg)*2560}\ns_mov_b32 s76, {self.L_MODW + 4096*arg}")
            return
        elif kind == "wsa":
            I(f"""
            s_and_b32 s{ST+6}, s{S_RB}, 3
            s_lshl_b32 s{ST+6}, s{ST+6}, 2
            s_add_u32 s{ST+6}, s{ST+6}, s{S_WV}
            s_mul_i32 s{ST+6}, s{ST+6}, {8*1024}
            s_add_u32 s{DS}, s{self.S_WA}, s{ST+6}
            s_sub_u32 s{DS}, s{DS}, s{self.S_LW}
            s_add_u32 s{DS}, s{DS}, {96*1024 + 4096*arg}
            """)
        else:
            I(f"s_mov_b32 s{DS}, {KV}")
        I(f"s_mov_b32 s76, {self.L_DUMMY}")

    def attn_hooks(self):
        I = self.I
        J = {}
        def j13():
            I("s_waitcnt vmcnt(24)")
            self.rl_store(0); self.rl_store(1)
            self.sync_touch()
        J[13] = (j13, 1)
        def j11():
            I("s_waitcnt vmcnt(16)")
            self.rl_flag()
        J[11] = (j11, 0)
        def j9(): self.xid_issue(); self.rl_poll_issue()
        J[9] = (j9, 1)
        def j8():
            I("s_waitcnt vmcnt(8)")
            self.xid_eval(); self.rl_poll_eval()
            self.ring_regs()
        J[8] = (j8, 0)
        SL = {16: ("act", (OF, 20480, 0)), 15: ("act", (L2F, 20480, 0)), 12: ("act", (H4F, 54*1024, 0)), 10: ("act", (H4F, 54*1024, 1)),
              8: ("unit", 0), 7: ("unit", 1), 6: ("unit", 2), 5: ("unit", 3), 4: ("unit", 4), 3: ("unit", 5),
              2: ("mod", 0), 1: ("mod", 1)}
        if not ALIAS: SL[14] = ("act", (GF, 20480, 0)); SL[13] = ("act", (L3F, 20480, 0))
        H = {}
        def mk(k):
            def f():
                if k in J and not self.nojobs: J[k][0]()
                if k in SL and not self.nojobs: self.slot_setup(*SL[k])
                elif (k + 1) in SL: self.slot_setup("none")
            return f
        for k in range(16, 0, -1):
            if k in J or k in SL or (k + 1) in SL: H[k] = mk(k)
        return H

    def ring_state_after_attn(self):
        self.units_issued = 6
        self.units_queued = 6
        self.pend = []
        self.consumed = -1
        self.vmq = []

    def build(self, force_slow=False, force_global=False):
        I = self.I
        self.force_global = force_global
        phases = [self.phase_start, self.phase_kv, self.phase_q, self.phase_kvwait,
                  lambda: self.phase_attn(force_slow), self.phase_wo, self.phase_w1, self.phase_w2, self.phase_w3, self.phase_w4]
        self.prologue()
        for i, p in enumerate(phases):
            if i >= self.stop_after: break
            p()
        if self.dbg_time:
            lab = self.b.uid("L_dt")
            self.srd(S_C, P_DBG, 256)
            I(f"""
            s_and_b32 s{ST}, s{S_W}, 63
            s_cmp_lg_u32 s{ST}, 63
            s_cbranch_scc1 {lab}
            s_cmp_lg_u32 s{S_WV}, 0
            s_cbranch_scc1 {lab}
            s_memrealtime s[{ST+2}:{ST+3}]
            s_lshr_b32 s{ST}, s{S_W}, 6
            s_lshl_b32 s{ST}, s{ST}, 2
            s_add_u32 s{ST}, s{ST}, 32
            s_waitcnt lgkmcnt(0)
            s_sub_u32 s{ST+2}, s{ST+2}, s{S_TAG}
            v_mov_b32 v254, s{ST+2}
            v_mov_b32 v253, s{ST}
            buffer_store_dword v254, v253, {sr(S_C)}, 0 offen sc1
            {lab}:
            """)
        I(f"""
        s_waitcnt vmcnt(0) lgkmcnt(0)
        s_endpgm
        L_fail:
        """)
        self.srd(S_C, P_DBG, 256)
        I(f"""
        v_mov_b32 v254, s{S_ERR}
        v_mov_b32 v255, s{S_W}
        v_mov_b32 v253, 16
        buffer_store_dwordx2 v[254:255], v253, {sr(S_C)}, 0 offen sc1
        s_waitcnt vmcnt(0)
        L_end:
        s_endpgm
        L_code_end:
        """)
        text, n = finalize(self.b, check=not (self.x_nords or self.x_nokv or self.noslot), align=bool(self.align))
        hdr = open("adaLN_cond__grouped_kv_mqa__mixer_s_mlp__prompt.s.ref").read().split("; Override launch")[0]
        lines = [l for l in hdr.strip().split("\n")]
        lines.append(f"; @launch grid=(256,1,1) block=(256,1,1) lds={LDS_SZ}")
        return kernel_file(lines, [(NAME, text, 512, 256, 102)]), n

if __name__ == "__main__":
    import argparse
    ap = argparse.ArgumentParser()
    ap.add_argument("-o", default="adaLN_cond__grouped_kv_mqa__mixer_s_mlp__prompt.s")
    ap.add_argument("--stop", type=int, default=99)
    ap.add_argument("--stamps", action="store_true")
    ap.add_argument("--slow", action="store_true")
    ap.add_argument("--detail", type=int, default=-1)
    ap.add_argument("--cap", type=int, default=99)
    ap.add_argument("--set", action="append", default=[])
    ap.add_argument("--global", dest="glob", action="store_true")
    a = ap.parse_args()
    g = Gen(stop_after=a.stop, stamps=a.stamps)
    g.detail = a.detail
    g.cap_small = a.cap
    for kv in a.set:
        k_, v_ = kv.split('=')
        setattr(g, k_, float(v_) if '.' in v_ else int(v_))
    txt, n = g.build(force_slow=a.slow, force_global=a.glob)
    open(a.o, "w").write(txt)
    print("wrote", a.o, len(txt), "bytes; auto nops:", n, "stamps:", getattr(g, "stamp_names", None))
```

```python
import sys
from common import *

import struct
def f2u(x): return struct.unpack("<I", struct.pack("<f", x))[0]

NAME = "adaLN_cond__grouped_kv_mqa__mixer_s_mlp__prompt_kernel"
MODG   = 0x000000
KVFLAG = 0x004000
RLFLAG = 0x008000
STAT   = 0x020000
STAT_SZ = 32*8*64*16
KV     = 0x100000
KVT    = 3328
OF     = 0x200000
ACT_SZ = 128*20*1024
L2F    = OF + ACT_SZ
import os
ALIAS = os.environ.get('NOALIAS') is None
GF     = OF if ALIAS else L2F + ACT_SZ
L3F    = L2F if ALIAS else L2F + 2*ACT_SZ
H4F    = L2F + 3*ACT_SZ
H4_SZ  = 128*54*1024
WSA    = H4F + H4_SZ
WSA_M  = 304*1024
W3S    = WSA + 8*WSA_M
W3S_M  = 144*1024
W4S    = W3S + 16*W3S_M
W4S_M  = 272*1024
HG     = W4S + 8*W4S_M
XIDG   = HG + 16*20*1024
CFLAG  = XIDG + 4096
CF_LOC = 8*128*128
CF_PH  = 128*128
WS_END = CFLAG + 2*CF_LOC + 64*1024
DBGA   = WS_END
WS_REC = 0x4000000
PH_O, PH_L2, PH_G, PH_L3, PH_H4 = 0, 1, 2, 3, 4

L_WQ   = 0
L_WK   = 102400
L_WM   = 102400
L_SC   = 143360
L_MOD  = 144640
L_QS   = 149760
L_MISC = 161024
LDS_SZ = 163840
L_RL   = 0
L_W    = 0

S_WS = 4
S_A  = 8
S_B  = 12
S_C  = 16
S_TAG = 20
S_WV, S_M, S_RB, S_W = 22, 23, 24, 25
S_T0 = 26
S_TT = 27
S_ERR = 28
S_FAST = 3
P_X, P_WQ, P_WK, P_WV, P_WO, P_BX, P_W1, P_W2, P_W3, P_W4, P_C, P_WM, P_OUT, P_DBG, P_WS = [32 + 2*i for i in range(15)]
ST = 62

def sr(b, n=4): return f"s[{b}:{b+n-1}]"
def vr(b, n=4): return f"v[{b}:{b+n-1}]" if n > 1 else f"v{b}"
def ar(b, n=4): return f"a[{b}:{b+n-1}]" if n > 1 else f"a{b}"

V_L, V_T, V_G, V_L16 = 0, 1, 2, 3

TIMEOUT = 400000

class Gen:
    def __init__(self, stop_after=99, stamps=False):
        self.b = Builder()
        self.stop_after = stop_after
        self.stamps = stamps
        self.nstamp = 0
        self.detail = -1
        self.nojobs = 0
        self.dbg_time = 0
        self.align = 1
        self.x_nobar = 0
        self.x_nokv = 0
        self.x_nords = 0
        self.noslot = 0
        self.in_slow = False
        self.cap_small = 99
        self.burst = 6
        self.rate_small = 1.3
        self.rate_w3 = 3.5
        self.rate_w4 = 1.6
        self.epi_drip = 8
        self.post_drip = 0
        self.fine = 0
        self.wq_touch = 1
        self.w3split = 0
        self.rate_w3a = 2.2
        self.rate_w3b = 1.5
        self.fill_n = 2
        self.pfA = 1
        self.pf4 = 0
        self.post_drip2 = 0
        self.post_drip3 = 0
        self.res3 = 0
        self.w4defer = 0
        self.shadow_f = 3
        self.shadow_s = 3
        self.resident = 0
        self.chunk4 = 4
        self.pub_after = 0
        self.visible = -1
        self.epi_drip2 = 6
        self.gd1 = 1
        self.gd3 = 2
        self.burst4 = 10
        self.use_pf = 0
        self.tlb_warm = 0
        self.touch_act = 0
        self.h4t_where = 0
        self.use_mall = 0
        self.pf3 = 0
        self.pub_drip = 0
    def I(self, t): self.b.I(t)
    def C(self, t): self.b.C(t)

    def srd(self, s, ptr, nbytes, add=0):
        if add:
            self.I(f"s_add_u32 s{s}, s{ptr}, {add}\ns_addc_u32 s{s+1}, s{ptr+1}, 0")
        else:
            self.I(f"s_mov_b32 s{s}, s{ptr}\ns_mov_b32 s{s+1}, s{ptr+1}")
        self.I(f"s_mov_b32 s{s+2}, {nbytes}\ns_mov_b32 s{s+3}, 0x20000")

    def stamp(self, name):
        if not self.stamps: return
        k = self.nstamp; self.nstamp += 1
        lab = self.b.uid("L_st")
        self.C(f"stamp {k}: {name}")
        self.I(f"""
        s_cmp_lg_u32 s{S_WV}, 0
        s_cbranch_scc1 {lab}
        s_memrealtime s[100:101]
        s_memtime s[96:97]
        s_lshl_b32 s99, s{S_W}, 11
        s_add_u32 s99, s99, {DBGA + 16*k}
        s_waitcnt lgkmcnt(0)
        v_mov_b32 v252, s100
        v_mov_b32 v253, s101
        v_mov_b32 v254, s96
        v_mov_b32 v255, s97
        v_mov_b32 v251, s99
        buffer_store_dwordx4 v[252:255], v251, {sr(S_WS)}, 0 offen
        s_nop 1
        {lab}:
        """)
        self.stamp_names = getattr(self, "stamp_names", []) + [name]

    def spin_tail(self, cnt, loop, code):
        self.I(f"""
        s_sub_u32 s{cnt}, s{cnt}, 1
        s_cmp_lg_u32 s{cnt}, 0
        s_cbranch_scc1 {loop}
        s_mov_b32 s{S_ERR}, {code}
        s_branch L_fail
        """)

    def get_tag(self):
        lp = self.b.uid("L_tag"); ok = self.b.uid("L_tagok")
        self.srd(S_C, P_DBG, 256)
        self.I(f"""
        s_mov_b32 s{ST}, {TIMEOUT}
        v_mov_b32 v252, 0
        {lp}:
        buffer_load_dwordx2 v[254:255], v252, {sr(S_C)}, 0 offen sc1
        s_waitcnt vmcnt(0)
        v_readfirstlane_b32 s{S_TAG}, v254
        v_readfirstlane_b32 s{S_TAG+1}, v255
        s_cmp_lg_u32 s{S_TAG}, 0
        s_cbranch_scc1 {ok}
        """)
        self.spin_tail(ST, lp, 1)
        self.I(f"{ok}:")

    def reduce_g(self, regs, tmp, op="v_add_f32"):
        for sw in ("v_permlane16_swap_b32", "v_permlane32_swap_b32"):
            for i, r in enumerate(regs):
                self.I(f"v_mov_b32 v{tmp+i}, v{r}")
            for i, r in enumerate(regs):
                self.I(f"{sw} v{r}, v{tmp+i}")
            for i, r in enumerate(regs):
                self.I(f"{op} v{r}, v{r}, v{tmp+i}")

    def prologue(self):
        I = self.I
        I(f"""
        s_cmp_ge_u32 s2, 256
        s_cbranch_scc1 L_end
        s_load_dwordx16 s[32:47], s[0:1], 0
        s_load_dwordx8 s[48:55], s[0:1], 64
        s_load_dwordx4 s[56:59], s[0:1], 96
        s_load_dwordx2 s[60:61], s[0:1], 112
        v_lshrrev_b32 v1, 6, v0
        v_and_b32 v{V_L}, 63, v0
        v_readfirstlane_b32 s{S_WV}, v1
        v_and_b32 v{V_T}, 15, v{V_L}
        v_lshrrev_b32 v{V_G}, 4, v{V_L}
        v_lshlrev_b32 v{V_L16}, 4, v{V_L}
        s_mov_b32 s{S_W}, s2
        s_and_b32 s{ST}, s2, 7
        s_lshr_b32 s{ST+1}, s2, 3
        s_and_b32 s{S_M}, s{ST+1}, 7
        s_lshr_b32 s{ST+1}, s{ST+1}, 3
        s_lshl_b32 s{ST}, s{ST}, 2
        s_add_u32 s{S_RB}, s{ST}, s{ST+1}
        s_lshl_b32 s{S_T0}, s{S_RB}, 6
        s_lshl_b32 s{S_TT}, s{S_RB}, 2
        s_add_u32 s{S_TT}, s{S_TT}, s{S_WV}
        s_mov_b32 s{S_ERR}, 0
        """)
        self.C("request the kernel's own code into this XCD's L2: workgroup j of the 32 in a row group takes lines 16j..16j+15 (wave 0)")
        labc = self.b.uid("L_cp")
        I(f"""
        s_cmp_lg_u32 s{S_WV}, 0
        s_cbranch_scc1 {labc}
        s_getpc_b64 s[{ST+2}:{ST+3}]
        L_pcref:
        s_lshr_b32 s{ST+4}, s2, 3
        s_lshl_b32 s{ST+4}, s{ST+4}, 11                       ; 16 lines * 128 B
        v_lshlrev_b32 v4, 7, v{V_L}
        v_add_u32 v4, s{ST+4}, v4
        v_cmp_gt_u32 vcc, L_code_end-L_pcref-4, v4
        s_and_b64 vcc, vcc, 0xffff
        s_and_saveexec_b64 s[{ST+4}:{ST+5}], vcc
        s_cbranch_execz {labc}_x
        global_load_dword a252, v4, s[{ST+2}:{ST+3}]
        {labc}_x:
        s_mov_b64 exec, s[{ST+4}:{ST+5}]
        {labc}:
        s_waitcnt lgkmcnt(0)
        """)
        self.srd(S_WS, P_WS, WS_REC)
        lab = self.b.uid("L_non")
        self.srd(S_C, P_DBG, 256)
        I(f"""
        s_lshl_b32 s{ST}, s2, 2
        s_add_u32 s{ST}, s{ST}, s{S_WV}
        s_cmp_lg_u32 s{ST}, 0
        s_cbranch_scc1 {lab}
        s_memrealtime s[{S_TAG}:{S_TAG+1}]
        s_waitcnt lgkmcnt(0)
        s_or_b32 s{S_TAG}, s{S_TAG}, 1
        v_mov_b32 v254, s{S_TAG}
        v_mov_b32 v255, s{S_TAG+1}
        v_mov_b32 v252, 0
        s_mov_b64 exec, 1
        buffer_store_dwordx2 v[254:255], v252, {sr(S_C)}, 0 offen sc1
        s_mov_b64 exec, -1
        {lab}:
        """)
        self.stamp("start")

    XF = 4
    XH = 84
    TMP = 244

    def tag_issue(self):
        self.srd(S_C, P_DBG, 256)
        self.I(f"v_mov_b32 v241, 0\nbuffer_load_dwordx2 v[242:243], v241, {sr(S_C)}, 0 offen sc1")

    def tag_eval(self):
        I = self.I
        lp = self.b.uid("L_tag"); ok = self.b.uid("L_tagok")
        I(f"""
        s_mov_b32 s{ST}, {TIMEOUT}
        {lp}:
        v_readfirstlane_b32 s{S_TAG}, v242
        v_readfirstlane_b32 s{S_TAG+1}, v243
        s_cmp_lg_u32 s{S_TAG}, 0
        s_cbranch_scc1 {ok}
        """)
        self.tag_issue()
        I("s_waitcnt vmcnt(0)")
        self.spin_tail(ST, lp, 1)
        I(f"{ok}:")

    S_PROD2 = 80
    S_PROD, S_P = 80, 81

    LWM, LSC, LMI = L_WM, L_SC, L_MISC + 64
    def mod_dma(self, cdst=None):
        I = self.I
        TMP = self.MT
        self.srd(S_B, P_C, 1280)
        I(f"""
        s_mul_i32 s{ST+4}, s{S_WV}, 320
        v_lshlrev_b32 v{TMP+2}, 3, v{V_L}
        buffer_load_dwordx2 {cdst or f'v[{TMP+4}:{TMP+5}]'}, v{TMP+2}, {sr(S_B)}, s{ST+4} offen
        """)
        self.srd(S_A, P_WM, 640*7680)
        I(f"""
        v_lshrrev_b32 v{TMP}, 2, v{V_L}
        v_mul_u32_u24 v{TMP}, 7680, v{TMP}
        v_and_b32 v{TMP+1}, 3, v{V_L}
        v_lshl_add_u32 v{TMP}, v{TMP+1}, 4, v{TMP}
        s_mul_i32 s{ST+1}, s{S_WV}, {160*7680}
        s_lshl_b32 s{ST+2}, s{self.S_P}, 6                   ; p*64 bytes
        s_add_u32 s{ST+1}, s{ST+1}, s{ST+2}
        s_mul_i32 s{ST+3}, s{S_WV}, {160*64}
        s_add_u32 s{ST+3}, s{ST+3}, {self.LWM}
        """)
        for i in range(10):
            I(f"""
            s_mov_b32 m0, s{ST+3}
            s_add_u32 s{ST+3}, s{ST+3}, 1024
            buffer_load_dwordx4 v{TMP}, {sr(S_A)}, s{ST+1} offen lds
            s_add_u32 s{ST+1}, s{ST+1}, {16*7680}
            """)

    MT2 = 244
    MT3 = 228
    MT = 228
    def mod_gemv(self, W, wait_c, wait_w, wait_tag, BBr=None):
        I = self.I
        TMP = self.MT
        T = TMP + 4
        I(f"""
        s_waitcnt vmcnt({wait_c})
        v_lshlrev_b32 v{TMP+6}, 16, v{T}
        v_and_b32 v{TMP+7}, 0xffff0000, v{T}
        v_lshlrev_b32 v{TMP+8}, 16, v{T+1}
        v_and_b32 v{TMP+9}, 0xffff0000, v{T+1}
        """)
        for i in range(4):
            r = TMP + 6 + i
            I(f"""
            v_mul_f32 v{TMP+3}, 0xbfb8aa3b, v{r}
            v_exp_f32 v{TMP+3}, v{TMP+3}
            v_add_f32 v{TMP+3}, 1.0, v{TMP+3}
            v_rcp_f32 v{TMP+3}, v{TMP+3}
            v_mul_f32 v{r}, v{r}, v{TMP+3}
            """)
        va, vb, WA, BB, ACC = W, W+1, W+4, W+44, W+64
        if BBr is not None: BB, ACC = BBr, W+44
        I(f"""
        v_cvt_pk_bf16_f32 v{T}, v{TMP+6}, v{TMP+7}
        v_cvt_pk_bf16_f32 v{T+1}, v{TMP+8}, v{TMP+9}
        s_mul_i32 s{ST+4}, s{S_WV}, 320
        s_add_u32 s{ST+4}, s{ST+4}, {self.LSC}
        v_lshlrev_b32 v{TMP+2}, 3, v{V_L}
        v_add_u32 v{TMP+2}, s{ST+4}, v{TMP+2}
        s_mov_b32 exec_hi, 0xff
        ds_write_b64 v{TMP+2}, v[{T}:{T+1}]
        s_mov_b32 exec_hi, -1
        v_lshrrev_b32 v{va}, 2, v{V_T}
        v_lshl_add_u32 v{va}, v{V_G}, 2, v{va}
        v_lshlrev_b32 v{va}, 6, v{va}                       ; 64*(4g+(i>>2))
        v_and_b32 v{vb}, 3, v{V_T}
        v_lshl_add_u32 v{va}, v{vb}, 3, v{va}
        s_mul_i32 s{ST}, s{S_WV}, {160*64}
        s_add_u32 s{ST}, s{ST}, {self.LWM}
        v_add_u32 v{va}, s{ST}, v{va}
        v_lshlrev_b32 v{vb}, 3, v{V_G}
        v_add_u32 v{vb}, s{ST+4}, v{vb}
        s_waitcnt vmcnt({wait_w}) lgkmcnt(0)
        """)
        for s_ in range(5):
            I(f"ds_read_b64 v[{BB+4*s_}:{BB+4*s_+1}], v{vb} offset:{64*s_}\nds_read_b64 v[{BB+4*s_+2}:{BB+4*s_+3}], v{vb} offset:{64*s_+32}")
        for s_ in range(5):
            for tl in range(2):
                W_ = WA + 8*s_ + 4*tl
                I(f"ds_read_b64_tr_b16 v[{W_}:{W_+1}], v{va} offset:{2048*s_+32*tl}\nds_read_b64_tr_b16 v[{W_+2}:{W_+3}], v{va} offset:{2048*s_+32*tl+1024}")
        I("s_waitcnt lgkmcnt(0)")
        for s_ in range(5):
            for tl in range(2):
                I(f"v_mfma_f32_16x16x32_bf16 {vr(ACC+4*tl)}, {vr(WA+8*s_+4*tl)}, {vr(BB+4*s_)}, {'0' if s_ == 0 else vr(ACC+4*tl)}")
        I(f"""
        s_lshl_b32 s{ST}, s{S_WV}, 7
        s_add_u32 s{ST}, s{ST}, {self.LMI}
        v_lshlrev_b32 v{va}, 4, v{V_G}
        v_add_u32 v{va}, s{ST}, v{va}
        v_cmp_eq_u32 vcc, 0, v{V_T}
        s_and_saveexec_b64 s[{ST+4}:{ST+5}], vcc
        ds_write_b128 v{va}, {vr(ACC)}
        ds_write_b128 v{va}, {vr(ACC+4)} offset:64
        s_mov_b64 exec, s[{ST+4}:{ST+5}]
        s_waitcnt lgkmcnt(0)
        s_barrier
        """)
        lab_gd = self.b.uid("L_gd")
        I(f"s_cmp_lg_u32 s{S_WV}, 0\ns_cbranch_scc1 {lab_gd}")
        I(f"""
        v_lshlrev_b32 v{va}, 4, v{V_L}
        v_and_b32 v{va}, 0x7f, v{va}
        v_add_u32 v{va}, {self.LMI}, v{va}
        ds_read_b128 {vr(WA)}, v{va}
        ds_read_b128 {vr(WA+4)}, v{va} offset:128
        ds_read_b128 {vr(WA+8)}, v{va} offset:256
        ds_read_b128 {vr(WA+12)}, v{va} offset:384
        """)
        if wait_tag is not None:
            I(f"s_waitcnt vmcnt({wait_tag})")
            self.tag_eval()
        I("s_waitcnt lgkmcnt(0)")
        for r in range(4):
            I(f"v_add_f32 v{WA+r}, v{WA+r}, v{WA+4+r}\nv_add_f32 v{WA+8+r}, v{WA+8+r}, v{WA+12+r}\nv_add_f32 v{WA+r}, v{WA+r}, v{WA+8+r}")
        I(f"""
        v_cvt_pk_bf16_f32 v{ACC+4}, v{WA}, v{WA+1}
        v_cvt_pk_bf16_f32 v{ACC+5}, v{WA+2}, v{WA+3}
        v_mov_b32 v{ACC+6}, s{S_TAG}
        v_mov_b32 v{ACC+7}, s{S_TAG+1}
        s_lshl_b32 s{ST}, s{self.S_P}, 7                     ; p*8 granules*16 B
        s_mov_b64 exec, 0xff
        buffer_store_dwordx4 {vr(ACC+4)}, v{V_L16}, {sr(S_WS)}, s{ST} offen offset:{MODG} sc1
        s_mov_b64 exec, -1
        {lab_gd}:
        """)

    def line_touch(self, srd, voff, soff, nl):
        I = self.I
        if nl < 64: I(f"v_cmp_gt_u32 vcc, {nl}, v{V_L}\ns_and_saveexec_b64 s[{ST+6}:{ST+7}], vcc")
        I(f"buffer_load_dword a255, v{voff}, {sr(srd)}, s{soff} offen")
        if nl < 64: I(f"s_mov_b64 exec, s[{ST+6}:{ST+7}]")

    def wq_ops(self):
        I = self.I
        V = 239
        so, lo = ST+12, ST+13
        self.srd(S_A, P_WQ, 640*1280)
        I(f"""
        v_mul_u32_u24 v{V}, 205, v{V_L}
        v_lshrrev_b32 v{V}, 11, v{V}
        v_mul_u32_u24 v{V-1}, 10, v{V}
        v_sub_u32 v{V-1}, v{V_L}, v{V-1}
        v_mul_u32_u24 v{V}, 1280, v{V}
        v_lshl_add_u32 v{V}, v{V-1}, 4, v{V}
        s_mul_i32 s{so}, s{S_M}, 160
        s_mul_i32 s{lo}, s{S_WV}, {6*1280}
        s_add_u32 s{so}, s{so}, s{lo}
        s_mul_i32 s{lo}, s{S_WV}, 960
        """)
        ops = []
        def mk(i):
            def f():
                if i == 26:
                    lab = self.b.uid("L_wq")
                    I(f"""
                    s_cmp_ge_u32 s{S_WV}, 3
                    s_cbranch_scc1 {lab}
                    s_cmp_eq_u32 s{S_WV}, 2
                    s_mov_b32 s{ST+14}, 0x0fffffff
                    s_cselect_b32 exec_hi, 0xff, s{ST+14}
                    s_mov_b32 m0, s{lo}
                    s_nop 0
                    buffer_load_dwordx4 v{V}, {sr(S_A)}, s{so} offen lds
                    s_mov_b32 exec_hi, -1
                    {lab}:
                    """)
                elif i == 25:
                    I(f"""
                    s_mov_b32 m0, s{lo}
                    s_add_u32 s{lo}, s{lo}, 3840
                    buffer_load_dwordx4 v{V}, {sr(S_A)}, s{so} offen lds
                    s_add_u32 s{so}, s{so}, {24*1280}
                    """)
                else:
                    I(f"""
                    s_mov_b32 m0, s{lo}
                    s_add_u32 s{lo}, s{lo}, 3840
                    buffer_load_dwordx4 v{V}, {sr(S_A)}, s{so} offen lds
                    s_add_u32 s{so}, s{so}, {24*1280}
                    """)
            return f
        return [mk(i) for i in range(27)]

    def phase_start(self):
        I, C = self.I, self.C
        XF, XH, TMP = self.XF, self.XH, self.TMP
        PR, P = self.S_PROD, self.S_P
        C("---- mod producers: members 2..5; column pair P = x + 8k (k = 2*rbl + (m-2)/2) < 60, block p = 2P + (m-2)%2; P < 20 is critical")
        I(f"""
        s_sub_u32 s{ST}, s{S_M}, 2                           ; m-2
        s_and_b32 s{ST+1}, s{S_RB}, 3
        s_lshl_b32 s{ST+1}, s{ST+1}, 1
        s_lshr_b32 s{ST+2}, s{ST}, 1
        s_add_u32 s{ST+1}, s{ST+1}, s{ST+2}
        s_lshl_b32 s{ST+1}, s{ST+1}, 3
        s_lshr_b32 s{ST+2}, s{S_RB}, 2
        s_add_u32 s{ST+1}, s{ST+1}, s{ST+2}                  ; P
        s_lshl_b32 s{P}, s{ST+1}, 1
        s_and_b32 s{ST+2}, s{ST}, 1
        s_add_u32 s{P}, s{P}, s{ST+2}
        s_cmp_lt_u32 s{ST+1}, 20
        s_cselect_b32 s{PR}, 1, 2
        s_cmp_lt_u32 s{ST+1}, 60
        s_cselect_b32 s{PR}, s{PR}, 0
        s_cmp_lt_u32 s{ST}, 4
        s_cselect_b32 s{PR}, s{PR}, 0
        """)
        C("every workgroup requests 1/32 of the critical w_mod lines of its row group: 3 column pairs x 640 rows = 1920 lines, 60 per workgroup (15 per wave)")
        self.srd(S_A, P_WM, 640*7680)
        I(f"""
        s_and_b32 s{ST}, s{S_RB}, 3
        s_lshl_b32 s{ST}, s{ST}, 3
        s_add_u32 s{ST}, s{ST}, s{S_M}
        s_lshl_b32 s{ST}, s{ST}, 2
        s_add_u32 s{ST}, s{ST}, s{S_WV}
        s_mul_i32 s{ST}, s{ST}, 15
        v_add_u32 v{XH}, s{ST}, v{V_L}
        v_mul_u32_u24 v{XH+1}, 6554, v{XH}
        v_lshrrev_b32 v{XH+1}, 22, v{XH+1}                   ; /640
        v_mul_u32_u24 v{XH+2}, 640, v{XH+1}
        v_sub_u32 v{XH+2}, v{XH}, v{XH+2}                    ; row
        v_mul_u32_u24 v{XH+2}, 7680, v{XH+2}
        v_lshlrev_b32 v{XH+1}, 10, v{XH+1}
        v_add_u32 v{XH+2}, v{XH+2}, v{XH+1}
        s_lshr_b32 s{ST}, s{S_RB}, 2
        s_lshl_b32 s{ST}, s{ST}, 7                           ; x * 128 B
        """)
        self.line_touch(S_A, XH+2, ST, 15)
        self.srd(S_C, P_X, 2048*1280)
        XO = XH
        I(f"""
        v_lshlrev_b32 v{XO+6}, 7, v{V_L}
        s_lshl_b32 s{ST}, s{S_M}, 2
        s_add_u32 s{ST}, s{ST}, s{S_WV}
        s_mul_i32 s{ST}, s{ST}, 2560
        s_mul_i32 s{ST+1}, s{S_RB}, {64*1280}
        s_add_u32 s{ST}, s{ST}, s{ST+1}
        """)
        lab_np = self.b.uid("L_np"); lab_j = self.b.uid("L_npj")
        I(f"s_cmp_lg_u32 s{PR}, 1\ns_cbranch_scc1 {lab_np}")
        I(f"s_mov_b32 s{ST+14}, s{ST}")
        self.mod_dma()
        self.line_touch(S_C, XO+6, ST+14, 20)
        self.tag_issue()
        self.mod_gemv(XH+8, 12, 2, 0)
        self.srd(S_C, P_X, 2048*1280)
        I(f"s_branch {lab_j}\n{lab_np}:")
        self.line_touch(S_C, XO+6, ST, 20)
        self.tag_issue()
        self.srd(S_C, P_X, 2048*1280)
        I(f"{lab_j}:")
        self.stamp("modpub")
        C("x: the wave's rows -> LDS, 16-byte chunks XOR-swizzled by the row")
        I(f"s_lshl_b32 s{ST}, s{S_TT}, 4")
        for qq in range(4):
            I(f"""
            v_add_u32 v{XO+4}, {4*qq}, v{V_G}                      ; row
            v_xor_b32 v{XO+5}, v{XO+4}, v{V_T}
            v_add_u32 v{XO+4}, s{ST}, v{XO+4}
            v_mul_u32_u24 v{XO+4}, 1280, v{XO+4}
            v_lshl_add_u32 v{XO+qq}, v{XO+5}, 4, v{XO+4}
            """)
        I(f"s_mul_i32 s{ST+1}, s{S_WV}, 20480")
        for G in range(5):
            I(f"s_mov_b32 s{ST+2}, {256*G}")
            for qq in range(4):
                I(f"s_mov_b32 m0, s{ST+1}\ns_add_u32 s{ST+1}, s{ST+1}, 1024\nbuffer_load_dwordx4 v{XO+qq}, {sr(S_C)}, s{ST+2} offen lds")
        lab_nk = self.b.uid("L_nk")
        I(f"""
        s_cmp_ge_u32 s{S_M}, 2
        s_cbranch_scc1 {lab_nk}
        s_cmp_eq_u32 s{S_M}, 0
        s_cselect_b32 s{S_A}, s{P_WK}, s{P_WV}
        s_cselect_b32 s{S_A+1}, s{P_WK+1}, s{P_WV+1}
        s_mov_b32 s{S_A+2}, 25600
        s_mov_b32 s{S_A+3}, 0x20000
        s_mul_i32 s{ST}, s{S_WV}, 7168
        s_add_u32 s{ST+1}, s{ST}, {L_WK}
        """)
        for i in range(7):
            I(f"""
            s_mov_b32 m0, s{ST+1}
            s_add_u32 s{ST+1}, s{ST+1}, 1024
            buffer_load_dwordx4 v{V_L16}, {sr(S_A)}, s{ST} offen lds
            s_add_u32 s{ST}, s{ST}, 1024
            """)
        I(f"{lab_nk}:")
        if self.wq_touch == 1:
            C("wq: request this workgroup's 1/32 of the matrix (200 lines, 50 per wave)")
            self.srd(S_B, P_WQ, 640*1280)
            I(f"""
            s_and_b32 s{ST}, s{S_RB}, 3
            s_lshl_b32 s{ST}, s{ST}, 3
            s_add_u32 s{ST}, s{ST}, s{S_M}
            s_lshl_b32 s{ST}, s{ST}, 2
            s_add_u32 s{ST}, s{ST}, s{S_WV}
            s_mul_i32 s{ST}, s{ST}, 6400
            """)
            self.line_touch(S_B, XO+6, ST, 50)
        else:
            I(f"v_mov_b32 v{XO+7}, 0\nbuffer_load_dword a255, v{XO+7}, {sr(S_C)}, 0 offen")
        self.stamp("issued")
        C("x fragments: lane (t,g): k = 32s+4g (+16)")
        AD = XH + 8
        I(f"""
        s_mul_i32 s{ST}, s{S_WV}, 20480
        v_lshlrev_b32 v{TMP}, 8, v{V_T}
        v_add_u32 v{TMP}, s{ST}, v{TMP}
        v_and_b32 v{TMP+1}, 1, v{V_G}
        v_lshl_add_u32 v{TMP}, v{TMP+1}, 3, v{TMP}            ; + 8*(g&1)
        v_lshrrev_b32 v{TMP+1}, 1, v{V_G}                     ; g>>1
        """)
        for a_ in range(4):
            for e in range(2):
                I(f"""
                v_add_u32 v{TMP+2}, {4*a_+2*e}, v{TMP+1}
                v_xor_b32 v{TMP+2}, v{TMP+2}, v{V_T}
                v_lshl_add_u32 v{AD+2*a_+e}, v{TMP+2}, 4, v{TMP}
                """)
        RS_ = XH + 16
        I(f"s_mul_i32 s{ST+1}, s{S_M}, 10")
        for j in range(5):
            I(f"""
            s_add_u32 s{ST+2}, s{ST+1}, {2*j}
            v_add_u32 v{TMP+2}, s{ST+2}, v{TMP+1}
            v_lshrrev_b32 v{TMP+3}, 4, v{TMP+2}
            v_and_b32 v{TMP+2}, 15, v{TMP+2}
            v_xor_b32 v{TMP+2}, v{TMP+2}, v{V_T}
            v_lshl_add_u32 v{TMP+2}, v{TMP+2}, 4, v{TMP}
            v_lshl_add_u32 v{RS_+j}, v{TMP+3}, 12, v{TMP+2}
            """)
        lw1 = self.b.uid("L_xw"); lwj = self.b.uid("L_xw")
        I(f"""
        s_cmp_lt_u32 s{S_M}, 2
        s_cbranch_scc1 {lw1}
        s_waitcnt vmcnt(1)
        s_branch {lwj}
        {lw1}:
        s_waitcnt vmcnt(8)
        {lwj}:
        """)
        for s_ in range(20):
            for e in range(2):
                I(f"ds_read_b64 v[{XF+4*s_+2*e}:{XF+4*s_+2*e+1}], v{AD+2*(s_&3)+e} offset:{4096*(s_>>2)}")
        for j in range(5):
            I(f"ds_read_b64 v[{XH+24+2*j}:{XH+25+2*j}], v{RS_+j}")
        self.tag_eval()
        I("s_waitcnt lgkmcnt(0)")
        for j in range(10): I(f"v_accvgpr_write_b32 a{j}, v{XH+24+j}")
        I("s_barrier")
        if self.wq_touch == 2:
            self.srd(S_B, P_WQ, 640*1280)
            I(f"""
            v_lshlrev_b32 v{XH+6}, 7, v{V_L}
            s_and_b32 s{ST}, s{S_RB}, 3
            s_lshl_b32 s{ST}, s{ST}, 3
            s_add_u32 s{ST}, s{ST}, s{S_M}
            s_lshl_b32 s{ST}, s{ST}, 2
            s_add_u32 s{ST}, s{ST}, s{S_WV}
            s_mul_i32 s{ST}, s{ST}, 6400
            """)
            self.line_touch(S_B, XH+6, ST, 50)
        wq = self.wq_ops()
        self.stamp("xfrag")
        C("LN1 stats: sum via ones-MFMA, sumsq via Gram diagonal")
        ONES, D1, D2 = TMP, TMP+4, TMP+8
        for i in range(4): I(f"v_mov_b32 v{ONES+i}, 0x3f803f80")
        for s in range(20):
            I(f"v_mfma_f32_16x16x32_bf16 {vr(D1)}, {vr(ONES)}, {vr(XF+4*s)}, {'0' if s == 0 else vr(D1)}")
            I(f"v_mfma_f32_16x16x32_bf16 {vr(D2)}, {vr(XF+4*s)}, {vr(XF+4*s)}, {'0' if s == 0 else vr(D2)}")
            if s % 2 == 0 and wq: wq.pop(0)()
        MU, RS, T1, T2 = XH, XH+1, XH+2, XH+3
        I(f"""
        v_and_b32 v{T1}, 3, v{V_T}
        v_cmp_eq_u32 vcc, 1, v{T1}
        v_cndmask_b32 v{T2}, v{D2}, v{D2+1}, vcc
        v_cmp_eq_u32 vcc, 2, v{T1}
        v_cndmask_b32 v{T2}, v{T2}, v{D2+2}, vcc
        v_cmp_eq_u32 vcc, 3, v{T1}
        v_cndmask_b32 v{T2}, v{T2}, v{D2+3}, vcc
        v_lshrrev_b32 v{T1}, 2, v{V_T}
        v_lshl_add_u32 v{T1}, v{T1}, 4, v{V_T}
        v_lshlrev_b32 v{T1}, 2, v{T1}
        ds_bpermute_b32 v{T2}, v{T1}, v{T2}
        v_mul_f32 v{MU}, {1.0/640!r}, v{D1}
        s_waitcnt lgkmcnt(0)
        v_mul_f32 v{T2}, {1.0/640!r}, v{T2}
        v_fma_f32 v{T2}, -v{MU}, v{MU}, v{T2}
        v_max_f32 v{T2}, 0, v{T2}
        v_add_f32 v{T2}, 0x3727c5ac, v{T2}
        v_rsq_f32 v{RS}, v{T2}
        s_nop 0
        v_mul_f32 v{MU}, v{MU}, v{RS}
        v_sub_f32 v{TMP}, 0, v{MU}                           ; -mu*rstd
        v_mov_b32 v{TMP+1}, v{TMP}
        v_mov_b32 v{TMP+2}, v{RS}
        v_mov_b32 v{TMP+3}, v{RS}
        """)
        C("xhat = x*rstd - mu*rstd (fp32)")
        for s in range(20):
            for q in range(4):
                src = XF + 4*s + q
                d = XH + 8*s + 2*q
                if d + 1 >= 238 and False: pass
                I(f"v_lshlrev_b32 v{d}, 16, v{src}\nv_and_b32 v{d+1}, 0xffff0000, v{src}")
            for q in range(4):
                d = XH + 8*s + 2*q
                I(f"v_pk_fma_f32 v[{d}:{d+1}], v[{d}:{d+1}], v[{TMP+2}:{TMP+3}], v[{TMP}:{TMP+1}]")
            if s < 17 and wq: wq.pop(0)()
        assert not wq
        self.stamp("xhat")
        G0 = TMP+4
        lp = self.b.uid("L_mp"); ok = self.b.uid("L_mpok")
        I(f"""
        s_mul_i32 s{ST+1}, s{S_WV}, {80*16}
        v_add_u32 v{TMP+2}, s{ST+1}, v{V_L16}
        v_add_u32 v{TMP+3}, 1024, v{TMP+2}
        v_cmp_gt_u32 vcc, 16, v{V_L}
        v_cndmask_b32 v{TMP+3}, v{TMP+2}, v{TMP+3}, vcc
        s_mov_b32 s{ST}, {TIMEOUT}
        {lp}:
        buffer_load_dwordx4 {vr(G0)}, v{TMP+2}, {sr(S_WS)}, 0 offen offset:{MODG} sc1
        buffer_load_dwordx4 {vr(G0+4)}, v{TMP+3}, {sr(S_WS)}, 0 offen offset:{MODG} sc1
        s_waitcnt vmcnt(0)
        v_cmp_ne_u32 vcc, s{S_TAG}, v{G0+2}
        s_mov_b64 s[{ST+2}:{ST+3}], vcc
        v_cmp_ne_u32 vcc, s{S_TAG+1}, v{G0+3}
        s_or_b64 s[{ST+2}:{ST+3}], s[{ST+2}:{ST+3}], vcc
        v_cmp_ne_u32 vcc, s{S_TAG}, v{G0+6}
        s_or_b64 s[{ST+2}:{ST+3}], s[{ST+2}:{ST+3}], vcc
        v_cmp_ne_u32 vcc, s{S_TAG+1}, v{G0+7}
        s_or_b64 s[{ST+2}:{ST+3}], s[{ST+2}:{ST+3}], vcc
        s_cmp_eq_u64 s[{ST+2}:{ST+3}], 0
        s_cbranch_scc1 {ok}
        """)
        self.spin_tail(ST, lp, 2)
        I(f"{ok}:")
        for blk, av in ((G0, TMP+2), (G0+4, TMP+3)):
            I(f"""
            v_and_b32 v{blk+3}, 0xffff0000, v{blk+1}
            v_lshlrev_b32 v{blk+2}, 16, v{blk+1}
            v_and_b32 v{blk+1}, 0xffff0000, v{blk}
            v_lshlrev_b32 v{blk}, 16, v{blk}
            """)
        lab_a = self.b.uid("L_a")
        I(f"s_cmp_lt_u32 s{S_WV}, 2\ns_cbranch_scc1 {lab_a}")
        for blk in (G0, G0+4):
            for q in range(4): I(f"v_add_f32 v{blk+q}, 1.0, v{blk+q}")
            I(f"""
            v_cvt_pk_bf16_f32 v{blk}, v{blk}, v{blk+1}
            v_cvt_pk_bf16_f32 v{blk+2}, v{blk+2}, v{blk+3}
            v_and_b32 v{blk+1}, 0xffff0000, v{blk}
            v_lshlrev_b32 v{blk}, 16, v{blk}
            v_and_b32 v{blk+3}, 0xffff0000, v{blk+2}
            v_lshlrev_b32 v{blk+2}, 16, v{blk+2}
            """)
        I(f"""
        {lab_a}:
        v_add_u32 v{TMP+2}, {L_MOD}, v{TMP+2}
        v_add_u32 v{TMP+3}, {L_MOD}, v{TMP+3}
        ds_write_b128 v{TMP+2}, {vr(G0)}
        ds_write_b128 v{TMP+3}, {vr(G0+4)}
        s_waitcnt lgkmcnt(0)
        s_barrier
        """)
        self.stamp("modgot")
        C("h1 = xhat*A + B -> bf16 fragments (overwrites XF).  all DMAs (wq, wk) were waited by vmcnt(0) above, barrier publishes them")
        va = TMP
        I(f"v_lshlrev_b32 v{va}, 4, v{V_G}\nv_add_u32 v{va}, {L_MOD}, v{va}")
        def buf(s): return (XF + 48 + 16*(s & 1)) if s < 12 else (XH + 16*(s & 1))
        def rd(s):
            B_ = buf(s)
            for hf in range(2):
                I(f"ds_read_b128 {vr(B_+4*hf)}, v{va} offset:{2560 + 128*s + 64*hf}")
                I(f"ds_read_b128 {vr(B_+8+4*hf)}, v{va} offset:{128*s + 64*hf}")
        rd(0)
        for s in range(20):
            if s + 1 < 20: rd(s+1)
            I(f"s_waitcnt lgkmcnt({4 if s + 1 < 20 else 0})")
            B_ = buf(s)
            for q in range(4):
                d = XH + 8*s + 2*q
                I(f"v_pk_fma_f32 v[{d}:{d+1}], v[{d}:{d+1}], v[{B_+2*q}:{B_+2*q+1}], v[{B_+8+2*q}:{B_+8+2*q+1}]")
            for q in range(4):
                d = XH + 8*s + 2*q
                I(f"v_cvt_pk_bf16_f32 v{XF+4*s+q}, v{d}, v{d+1}")
        labd = self.b.uid("L_dg")
        I(f"s_cmp_lg_u32 s{self.S_PROD}, 2\ns_cbranch_scc1 {labd}")
        self.MT = self.MT3
        self.mod_dma(cdst="a[250:251]")
        I(f"{labd}:")
        self.stamp("h1")

    def phase_kv(self):
        I, C = self.I, self.C
        XF, XH = self.XF, self.XH
        lab_end = self.b.uid("L_kvend"); lab_v = self.b.uid("L_v"); lab_pub = self.b.uid("L_kvpub")
        va, vb, W0, ACC0, ACC1, T = XH, XH+1, XH+4, XH+24, XH+28, XH+32
        I(f"""
        s_cmp_ge_u32 s{S_M}, 2
        s_cbranch_scc1 {lab_end}
        v_lshrrev_b32 v{va}, 2, v{V_T}
        v_lshl_add_u32 v{va}, v{V_G}, 2, v{va}
        v_mul_u32_u24 v{va}, 40, v{va}
        v_and_b32 v{vb}, 3, v{V_T}
        v_lshl_add_u32 v{va}, v{vb}, 3, v{va}
        v_add_u32 v{va}, {L_WK}, v{va}
        s_cmp_eq_u32 s{S_M}, 1
        s_cbranch_scc1 {lab_v}
        """)
        def loop(isv):
            WK = XH + 48
            def rd(s):
                o = WK + (s % 4)*8
                I(f"""
                ds_read_b64_tr_b16 v[{o}:{o+1}], v{va} offset:{1280*s}
                ds_read_b64_tr_b16 v[{o+2}:{o+3}], v{va} offset:{1280*s+640}
                ds_read_b64_tr_b16 v[{o+4}:{o+5}], v{va} offset:{1280*s+32}
                ds_read_b64_tr_b16 v[{o+6}:{o+7}], v{va} offset:{1280*s+672}
                """)
            for s in range(3): rd(s)
            for s in range(20):
                if s + 3 < 20: rd(s+3)
                I(f"s_waitcnt lgkmcnt({4*min(3, 19-s)})")
                o2 = WK + (s % 4)*8
                for tl, acc in ((0, ACC0), (1, ACC1)):
                    w = vr(o2+4*tl); x = vr(XF+4*s)
                    c = '0' if s == 0 else vr(acc)
                    if isv: I(f"v_mfma_f32_16x16x32_bf16 {vr(acc)}, {x}, {w}, {c}")
                    else:   I(f"v_mfma_f32_16x16x32_bf16 {vr(acc)}, {w}, {x}, {c}")
        C("K: D[dim 4g+r][token t]")
        loop(False)
        I(f"""
        v_mul_f32 v{T}, v{ACC0}, v{ACC0}
        v_fmac_f32 v{T}, v{ACC0+1}, v{ACC0+1}
        v_fmac_f32 v{T}, v{ACC0+2}, v{ACC0+2}
        v_fmac_f32 v{T}, v{ACC0+3}, v{ACC0+3}
        v_mul_f32 v{T+1}, v{ACC1}, v{ACC1}
        v_fmac_f32 v{T+1}, v{ACC1+1}, v{ACC1+1}
        v_fmac_f32 v{T+1}, v{ACC1+2}, v{ACC1+2}
        v_fmac_f32 v{T+1}, v{ACC1+3}, v{ACC1+3}
        v_cmp_eq_u32 vcc, 0, v{V_G}
        v_cndmask_b32 v{T+1}, 0, v{T+1}, vcc
        v_add_f32 v{T}, v{T}, v{T+1}
        """)
        self.reduce_g([T], T+2)
        for sh in (8, 4, 2, 1):
            I(f"v_mov_b32_dpp v{T+2}, v{T} row_ror:{sh} row_mask:0xf bank_mask:0xf\nv_max_f32 v{T}, v{T}, v{T+2}")
        I(f"""
        s_lshl_b32 s{ST}, s{S_WV}, 2
        s_add_u32 s{ST}, s{ST}, {L_MISC}
        v_mov_b32 v{T+2}, s{ST}
        ds_write_b32 v{T+2}, v{T}
        """)
        I(f"""
        v_cvt_pk_bf16_f32 v{T+4}, v{ACC0}, v{ACC0+1}
        v_cvt_pk_bf16_f32 v{T+5}, v{ACC0+2}, v{ACC0+3}
        v_cvt_pk_bf16_f32 v{T+6}, v{ACC1}, v{ACC1+1}
        v_cvt_pk_bf16_f32 v{T+7}, v{ACC1+2}, v{ACC1+3}
        s_lshr_b32 s{ST}, s{S_TT}, 1
        s_mul_i32 s{ST}, s{ST}, {KVT}
        s_add_u32 s{ST}, s{ST}, {KV}
        s_and_b32 s{ST+1}, s{S_TT}, 1
        s_lshl_b32 s{ST+1}, s{ST+1}, 4
        v_add_u32 v{T+8}, s{ST+1}, v{V_T}                    ; kk
        v_lshrrev_b32 v{T+9}, 1, v{V_G}
        v_lshl_add_u32 v{T+9}, v{T+9}, 5, v{T+8}             ; kk+32*(g>>1)
        v_lshlrev_b32 v{T+9}, 4, v{T+9}
        v_and_b32 v{T+10}, 1, v{V_G}
        v_lshl_add_u32 v{T+9}, v{T+10}, 3, v{T+9}
        buffer_store_dwordx2 v[{T+4}:{T+5}], v{T+9}, {sr(S_WS)}, s{ST} offen sc1
        v_lshlrev_b32 v{T+8}, 3, v{T+8}
        v_cmp_eq_u32 vcc, 0, v{V_G}
        s_and_saveexec_b64 s[{ST+4}:{ST+5}], vcc
        buffer_store_dwordx2 v[{T+6}:{T+7}], v{T+8}, {sr(S_WS)}, s{ST} offen offset:1024 sc1
        s_mov_b64 exec, s[{ST+4}:{ST+5}]
        s_branch {lab_pub}
        {lab_v}:
        """)
        C("V^T: D[token 4g+r][d = lane&15]")
        loop(True)
        I(f"""
        v_cvt_pk_bf16_f32 v{T+4}, v{ACC0}, v{ACC0+1}
        v_cvt_pk_bf16_f32 v{T+5}, v{ACC0+2}, v{ACC0+3}
        v_cvt_pk_bf16_f32 v{T+6}, v{ACC1}, v{ACC1+1}
        v_cvt_pk_bf16_f32 v{T+7}, v{ACC1+2}, v{ACC1+3}
        v_cmp_gt_u32 vcc, 4, v{V_T}
        v_cndmask_b32 v{T+6}, 0, v{T+6}, vcc
        v_cndmask_b32 v{T+7}, 0, v{T+7}, vcc
        v_cmp_eq_u32 vcc, 4, v{V_T}
        v_mov_b32 v{T+11}, 0x3f803f80
        v_cndmask_b32 v{T+6}, v{T+6}, v{T+11}, vcc
        v_cndmask_b32 v{T+7}, v{T+7}, v{T+11}, vcc
        s_lshr_b32 s{ST}, s{S_TT}, 1
        s_mul_i32 s{ST}, s{ST}, {KVT}
        s_and_b32 s{ST+1}, s{S_TT}, 1
        s_lshl_b32 s{ST+1}, s{ST+1}, 10
        s_add_u32 s{ST}, s{ST}, s{ST+1}
        s_add_u32 s{ST}, s{ST}, {KV+1280}
        v_and_b32 v{T+9}, 1, v{V_G}
        v_lshl_add_u32 v{T+9}, v{T+9}, 5, v{V_T}             ; d + 32*(g&1)
        v_lshlrev_b32 v{T+9}, 4, v{T+9}
        v_lshrrev_b32 v{T+10}, 1, v{V_G}
        v_lshl_add_u32 v{T+9}, v{T+10}, 3, v{T+9}
        buffer_store_dwordx2 v[{T+4}:{T+5}], v{T+9}, {sr(S_WS)}, s{ST} offen sc1
        buffer_store_dwordx2 v[{T+6}:{T+7}], v{T+9}, {sr(S_WS)}, s{ST} offen offset:256 sc1
        v_mov_b32 v{T}, 0
        s_lshl_b32 s{ST}, s{S_WV}, 2
        s_add_u32 s{ST}, s{ST}, {L_MISC}
        v_mov_b32 v{T+2}, s{ST}
        ds_write_b32 v{T+2}, v{T}
        {lab_pub}:
        s_waitcnt vmcnt(0) lgkmcnt(0)
        s_barrier
        """)
        lab_np = self.b.uid("L_kvnp")
        I(f"""
        s_cmp_lg_u32 s{S_WV}, 0
        s_cbranch_scc1 {lab_np}
        v_mov_b32 v{T+2}, {L_MISC}
        ds_read_b128 {vr(T+4)}, v{T+2}
        s_waitcnt lgkmcnt(0)
        v_max_f32 v{T+4}, v{T+4}, v{T+5}
        v_max_f32 v{T+6}, v{T+6}, v{T+7}
        v_max_f32 v{T+6}, v{T+4}, v{T+6}
        v_mov_b32 v{T+4}, s{S_TAG}
        v_mov_b32 v{T+5}, s{S_TAG+1}
        v_mov_b32 v{T+7}, 0
        s_lshl_b32 s{ST}, s{S_RB}, 1
        s_add_u32 s{ST}, s{ST}, s{S_M}
        s_lshl_b32 s{ST}, s{ST}, 7
        s_add_u32 s{ST}, s{ST}, {KVFLAG}
        v_mov_b32 v{T+2}, s{ST}
        s_mov_b64 exec, 1
        buffer_store_dwordx4 {vr(T+4)}, v{T+2}, {sr(S_WS)}, 0 offen sc1
        s_mov_b64 exec, -1
        {lab_np}:
        {lab_end}:
        """)
        self.stamp("kvpub")

    QA0, QA1, QB0, QB1 = 44, 48, 52, 56
    SA, SB = 60, 76
    PA, PB = 92, 100
    OA, OB = 108, 124
    KB = 140
    VB = 172
    AT = 204

    def phase_q(self):
        I, C = self.I, self.C
        XF, XH = self.XF, self.XH
        va, vb, WB, ACC = XH, XH+1, XH+4, XH+64
        I(f"""
        v_lshrrev_b32 v{va}, 2, v{V_T}
        v_lshl_add_u32 v{va}, v{V_G}, 2, v{va}
        v_mul_u32_u24 v{va}, 160, v{va}
        v_and_b32 v{vb}, 3, v{V_T}
        v_lshl_add_u32 v{va}, v{vb}, 3, v{va}
        v_add_u32 v{vb}, 51200, v{va}
        """)
        issued = []
        def rd1(s, j):
            base = va if s < 10 else vb
            o = 5120*(s % 10)
            W_ = WB + 20*(s % 3) + 4*j
            I(f"ds_read_b64_tr_b16 v[{W_}:{W_+1}], v{base} offset:{L_WQ + o + 32*j}")
            I(f"ds_read_b64_tr_b16 v[{W_+2}:{W_+3}], v{base} offset:{L_WQ + o + 32*j + 2560}")
            issued.append((s, j))
        for s in range(2):
            for j in range(5): rd1(s, j)
        for s in range(20):
            younger = 2*(len(issued) - 1 - issued.index((s, 4)))
            I(f"s_waitcnt lgkmcnt({min(15, younger)})")
            for j in range(5):
                I(f"v_mfma_f32_16x16x32_bf16 {vr(ACC+4*j)}, {vr(WB+20*(s%3)+4*j)}, {vr(XF+4*s)}, {'0' if s == 0 else vr(ACC+4*j)}")
                if s + 2 < 20: rd1(s+2, j)
        qs = (20 ** -0.5) * 1.4426950408889634
        I(f"s_mov_b32 s{ST}, {hex(f2u(qs))}")
        C("scale, pack, write wave-private [16][176B] tile")
        I(f"""
        s_mul_i32 s{ST+1}, s{S_WV}, {16*176}
        s_add_u32 s{ST+1}, s{ST+1}, {L_QS}
        v_mul_u32_u24 v{va}, 176, v{V_T}
        v_lshl_add_u32 v{va}, v{V_G}, 3, v{va}
        v_add_u32 v{va}, s{ST+1}, v{va}
        """)
        for j in range(5):
            a = ACC + 4*j
            for r in range(4): I(f"v_mul_f32 v{a+r}, s{ST}, v{a+r}")
            I(f"v_cvt_pk_bf16_f32 v{a}, v{a}, v{a+1}\nv_cvt_pk_bf16_f32 v{a+1}, v{a+2}, v{a+3}")
            I(f"ds_write_b64 v{va}, v[{a}:{a+1}] offset:{32*j}")
        AT = self.AT
        I(f"""
        v_mul_u32_u24 v{vb}, 176, v{V_T}
        v_bfe_u32 v{va}, v{V_L}, 4, 1
        v_mul_u32_u24 v{va}, 40, v{va}
        v_add_u32 v{vb}, v{vb}, v{va}
        v_add_u32 v{vb}, s{ST+1}, v{vb}                      ; token*176 + (q>>4)*40
        v_lshrrev_b32 v{va}, 5, v{V_L}
        v_lshl_add_u32 v{va}, v{va}, 4, v{vb}                ; + 16h
        s_waitcnt lgkmcnt(0)
        ds_read_b64 v[{self.QA0}:{self.QA0+1}], v{va}
        ds_read_b64 v[{self.QA0+2}:{self.QA0+3}], v{va} offset:8
        ds_read_b64 v[{self.QB0}:{self.QB0+1}], v{va} offset:80
        ds_read_b64 v[{self.QB0+2}:{self.QB0+3}], v{va} offset:88
        ds_read_b64 v[{self.QA1}:{self.QA1+1}], v{vb} offset:32
        ds_read_b64 v[{self.QB1}:{self.QB1+1}], v{vb} offset:112
        v_cmp_gt_u32 vcc, 32, v{V_L}
        s_waitcnt lgkmcnt(0)
        """)
        for r in (self.QA1, self.QA1+1, self.QB1, self.QB1+1):
            I(f"v_cndmask_b32 v{r}, 0, v{r}, vcc")
        for (t, q0, q1) in ((AT, self.QA0, self.QA1), (AT+1, self.QB0, self.QB1)):
            I(f"v_mov_b32 v{t}, 0")
            for r in (q0, q0+1, q0+2, q0+3, q1, q1+1):
                I(f"v_dot2_f32_bf16 v{t}, v{r}, v{r}, v{t}")
        for t in (AT, AT+1):
            I(f"v_mov_b32 v{AT+2}, v{t}\nv_permlane32_swap_b32 v{t}, v{AT+2}\nv_add_f32 v{t}, v{t}, v{AT+2}")
        I(f"v_max_f32 v{AT}, v{AT}, v{AT+1}")
        I("s_barrier")
        self.stamp("qproj")

    RL_OFF, RL_TR, RL_D = 4, 11, 12
    S_RKS, S_RDS, RL_TRS = (78, 82), (79, 83), (11, 40)
    S_RD2S = (74, 73)
    def rl_issue(self, rnd):
        I = self.I
        self.S_RK, self.S_RD, self.RL_TR = self.S_RKS[rnd], self.S_RDS[rnd], self.RL_TRS[rnd]
        u, A0, A1 = ST+4, ST+5, ST+6
        lk4 = self.b.uid("L_r4"); lk3 = self.b.uid("L_r3"); lA = self.b.uid("L_rA"); lend = self.b.uid("L_re")
        I(f"""
        s_lshl_b32 s{u}, s{S_W}, 2
        s_add_u32 s{u}, s{u}, s{S_WV}
        """)
        if rnd == 1:
            I(f"""
            s_mov_b32 s{self.S_RK}, 2
            s_cmp_lt_u32 s{S_M}, 6
            s_cbranch_scc1 {lend}
            s_lshl_b32 s{u}, s{S_RB}, 1
            s_add_u32 s{u}, s{u}, s{S_M}
            s_sub_u32 s{u}, s{u}, 6
            s_lshl_b32 s{u}, s{u}, 2
            s_add_u32 s{u}, s{u}, s{S_WV}
            s_add_u32 s{u}, s{u}, 1024
            s_cmp_ge_u32 s{u}, 1232
            s_cbranch_scc1 {lend}
            s_branch {lk3}
            """)
        else:
            I(f"""
            s_cmp_ge_u32 s{u}, 912
            s_cbranch_scc1 {lk3}
            s_cmp_ge_u32 s{u}, 480
            s_cbranch_scc1 {lk4}
            s_mul_i32 s{A0}, s{u}, 410
            s_lshr_b32 s{A0}, s{A0}, 16                 ; p = u/160
            s_mul_i32 s{A1}, s{A0}, 160
            s_sub_u32 s{u}, s{u}, s{A1}                 ; r
            s_cmp_eq_u32 s{A0}, 1
            s_cselect_b32 s{S_A}, s{P_W1}, s{P_WO}
            s_cselect_b32 s{S_A+1}, s{P_W1+1}, s{P_WO+1}
            s_cmp_eq_u32 s{A0}, 2
            s_cselect_b32 s{S_A}, s{P_W2}, s{S_A}
            s_cselect_b32 s{S_A+1}, s{P_W2+1}, s{S_A+1}
            s_mov_b32 s{S_A+2}, {640*1280}
            s_mul_i32 s{A0}, s{A0}, 100                 ; p*100
            s_mul_i32 s{A1}, s{u}, 3277
            s_lshr_b32 s{A1}, s{A1}, 16                 ; m = r/20
            s_mul_i32 s{ST+7}, s{A1}, 20
            s_sub_u32 s{u}, s{u}, s{ST+7}               ; kb
            s_mul_i32 s{ST+7}, s{u}, 5
            s_add_u32 s{A0}, s{A0}, s{ST+7}
            s_lshl_b32 s{A0}, s{A0}, 10
            s_mul_i32 s{ST+7}, s{A1}, {WSA_M}
            s_add_u32 s{A0}, s{A0}, s{ST+7}
            s_add_u32 s{self.S_RD}, s{A0}, {WSA}
            s_branch {lA}
            {lk4}:
            s_sub_u32 s{u}, s{u}, 480
            s_mov_b32 s{S_A}, s{P_W4}
            s_mov_b32 s{S_A+1}, s{P_W4+1}
            s_mov_b32 s{S_A+2}, {1728*1280}
            s_mul_i32 s{A1}, s{u}, 1214
            s_lshr_b32 s{A1}, s{A1}, 16                 ; m = r/54
            s_mul_i32 s{ST+7}, s{A1}, 54
            s_sub_u32 s{u}, s{u}, s{ST+7}               ; kb
            s_mul_i32 s{A0}, s{u}, 5120
            s_mul_i32 s{ST+7}, s{A1}, {W4S_M}
            s_add_u32 s{A0}, s{A0}, s{ST+7}
            s_add_u32 s{self.S_RD}, s{A0}, {W4S}
            {lA}:
            s_mov_b32 s{S_A+3}, 0x20000
            s_mov_b32 s{self.S_RK}, 0
            s_mul_i32 s{u}, s{u}, {32*1280}
            s_mul_i32 s{A1}, s{A1}, 160
            s_add_u32 s{u}, s{u}, s{A1}
            s_mul_i32 s{A0}, s{S_WV}, 14336
            """)
            O = self.RL_OFF
            for q in range(5):
                I(f"""
                v_add_u32 v{O+5}, {64*q}, v{V_L}
                v_mul_u32_u24 v{O+6}, 6554, v{O+5}
                v_lshrrev_b32 v{O+6}, 16, v{O+6}
                v_mul_u32_u24 v{O+q}, {1280-160}, v{O+6}
                v_lshl_add_u32 v{O+q}, v{O+5}, 4, v{O+q}
                """)
            for q in range(5):
                I(f"s_mov_b32 m0, s{A0}\ns_add_u32 s{A0}, s{A0}, 1024\nbuffer_load_dwordx4 v{O+q}, {sr(S_A)}, s{u} offen lds")
            I(f"""
            v_lshrrev_b32 v{self.RL_TR}, 2, v{V_T}
            v_lshl_add_u32 v{self.RL_TR}, v{V_G}, 2, v{self.RL_TR}
            v_mul_u32_u24 v{self.RL_TR}, 160, v{self.RL_TR}
            s_branch {lend}_tr
            """)
        I(f"""
        {lk3}:
        s_sub_u32 s{u}, s{u}, 912
        s_mov_b32 s{S_A}, s{P_W3}
        s_mov_b32 s{S_A+1}, s{P_W3+1}
        s_mov_b32 s{S_A+2}, {640*3456}
        s_mov_b32 s{S_A+3}, 0x20000
        s_mov_b32 s{self.S_RK}, 1
        s_mul_i32 s{A1}, s{u}, 3277
        s_lshr_b32 s{A1}, s{A1}, 16                 ; m16 = r/20
        s_mul_i32 s{ST+7}, s{A1}, 20
        s_sub_u32 s{u}, s{u}, s{ST+7}               ; kb
        s_mul_i32 s{ST+7}, s{A1}, {W3S_M}
        s_add_u32 s{ST+7}, s{ST+7}, {W3S}
        s_mul_i32 s{A0}, s{u}, {4096 if self.w3split else 7168}
        s_add_u32 s{self.S_RD}, s{A0}, s{ST+7}               ; tiles 0..3
        s_mul_i32 s{A0}, s{u}, {3072 if self.w3split else 7168}
        s_add_u32 s{A0}, s{A0}, s{ST+7}
        s_add_u32 s{self.S_RD2S[rnd]}, s{A0}, {80*1024 if self.w3split else 4096}      ; tiles 4..6
        s_mul_i32 s{A0}, s{A1}, 7
        s_sub_u32 s{ST+7}, s{A1}, 12
        s_max_i32 s{ST+7}, s{ST+7}, 0
        s_sub_u32 s{A0}, s{A0}, s{ST+7}
        s_lshl_b32 s{A0}, s{A0}, 5
        s_mul_i32 s{u}, s{u}, {32*3456}
        s_add_u32 s{u}, s{u}, s{A0}
        s_mul_i32 s{A0}, s{S_WV}, 14336
        s_add_u32 s{A0}, s{A0}, {7168*rnd}
        """)
        O = self.RL_OFF
        for q in range(7):
            I(f"""
            v_add_u32 v{self.RL_D}, {64*q}, v{V_L}
            v_mul_u32_u24 v{self.RL_D+1}, 4682, v{self.RL_D}
            v_lshrrev_b32 v{self.RL_D+1}, 16, v{self.RL_D+1}
            v_mul_u32_u24 v{O+q}, {3456-224}, v{self.RL_D+1}
            v_lshl_add_u32 v{O+q}, v{self.RL_D}, 4, v{O+q}
            """)
        for q in range(7):
            I(f"s_mov_b32 m0, s{A0}\ns_add_u32 s{A0}, s{A0}, 1024\nbuffer_load_dwordx4 v{O+q}, {sr(S_A)}, s{u} offen lds")
        I(f"""
        v_lshrrev_b32 v{self.RL_TR}, 2, v{V_T}
        v_lshl_add_u32 v{self.RL_TR}, v{V_G}, 2, v{self.RL_TR}
        v_mul_u32_u24 v{self.RL_TR}, 224, v{self.RL_TR}
        {lend}_tr:
        v_and_b32 v{self.RL_D}, 3, v{V_T}
        v_lshl_add_u32 v{self.RL_TR}, v{self.RL_D}, 3, v{self.RL_TR}
        s_mul_i32 s{A0}, s{S_WV}, 14336
        s_add_u32 s{A0}, s{A0}, {7168*rnd}
        v_add_u32 v{self.RL_TR}, s{A0}, v{self.RL_TR}
        {lend}:
        """)

    def rl_store(self, rnd):
        I = self.I
        self.S_RK, self.S_RD, self.RL_TR = self.S_RKS[rnd], self.S_RDS[rnd], self.RL_TRS[rnd]
        l7 = self.b.uid("L_rs7"); lend = self.b.uid("L_rse")
        D = self.RL_D
        I(f"s_cmp_eq_u32 s{self.S_RK}, 2\ns_cbranch_scc1 {lend}\ns_cmp_eq_u32 s{self.S_RK}, 1\ns_cbranch_scc1 {l7}")
        for (nt, rowb, last) in ((5, 160, False), (7, 224, True)):
            if last: I(f"{l7}:")
            for j in range(nt):
                I(f"ds_read_b64_tr_b16 v[{D+4*j}:{D+4*j+1}], v{self.RL_TR} offset:{32*j}")
                I(f"ds_read_b64_tr_b16 v[{D+4*j+2}:{D+4*j+3}], v{self.RL_TR} offset:{32*j+16*rowb}")
            if nt == 5: I(f"s_add_u32 s{ST+4}, s{self.S_RD}, 4096")
            else: I(f"s_mov_b32 s{ST+4}, s{self.S_RD2S[rnd]}")
            I("s_waitcnt lgkmcnt(0)")
            for j in range(nt):
                I(f"buffer_store_dwordx4 {vr(D+4*j)}, v{V_L16}, {sr(S_WS)}, s{self.S_RD if j < 4 else ST+4} offen offset:{1024*(j%4)} sc1")
            if not last: I(f"s_branch {lend}")
        I(f"{lend}:")

    def rl_flag(self):
        I = self.I
        lab = self.b.uid("L_rlp")
        I(f"""
        s_barrier
        s_cmp_lg_u32 s{S_WV}, 0
        s_cbranch_scc1 {lab}
        v_mov_b32 v252, s{S_TAG}
        v_mov_b32 v253, s{S_TAG+1}
        s_lshl_b32 s{ST+4}, s{S_W}, 7
        s_add_u32 s{ST+4}, s{ST+4}, {RLFLAG}
        v_mov_b32 v251, s{ST+4}
        s_mov_b64 exec, 1
        buffer_store_dwordx2 v[252:253], v251, {sr(S_WS)}, 0 offen sc1
        s_mov_b64 exec, -1
        {lab}:
        """)

    def phase_kvwait(self):
        I = self.I
        AT = self.AT
        lp = self.b.uid("L_kvw"); ok = self.b.uid("L_kvok")
        I(f"""
        v_lshlrev_b32 v{AT+3}, 7, v{V_L}
        s_mov_b32 s{ST}, {TIMEOUT}
        s_mov_b32 s{ST+1}, {KVFLAG}
        {lp}:
        buffer_load_dwordx4 {vr(AT+4)}, v{AT+3}, {sr(S_WS)}, s{ST+1} offen sc1
        """)
        I(f"""
        s_waitcnt vmcnt(0)
        v_cmp_ne_u32 vcc, s{S_TAG}, v{AT+4}
        s_mov_b64 s[{ST+2}:{ST+3}], vcc
        v_cmp_ne_u32 vcc, s{S_TAG+1}, v{AT+5}
        s_or_b64 s[{ST+2}:{ST+3}], s[{ST+2}:{ST+3}], vcc
        s_cmp_eq_u64 s[{ST+2}:{ST+3}], 0
        s_cbranch_scc1 {ok}
        """)
        self.spin_tail(ST, lp, 3)
        I(f"{ok}:")
        self.reduce_g([AT+6], AT+2, op="v_max_f32")
        for sh in (8, 4, 2, 1):
            I(f"v_mov_b32_dpp v{AT+2}, v{AT+6} row_ror:{sh} row_mask:0xf bank_mask:0xf\nv_max_f32 v{AT+6}, v{AT+6}, v{AT+2}")
        I(f"v_mov_b32 v{AT+1}, v{AT+6}")
        self.xid_publish()
        labg = self.b.uid("L_dg")
        I(f"s_cmp_lg_u32 s{self.S_PROD}, 2\ns_cbranch_scc1 {labg}")
        I(f"v_accvgpr_read_b32 v248, a250\nv_accvgpr_read_b32 v249, a251")
        self.MT = self.MT2
        self.mod_gemv(60, 63, 63, None)
        I("s_barrier")
        I(f"{labg}:")
        self.stamp("kvwait")

    def kv_loads(self, i, sK, sV):
        raise NotImplementedError

    def phase_attn(self, force_slow=False):
        I, C = self.I, self.C
        QA0, QA1, QB0, QB1, SA, SB, PA, PB, OA, OB, KB, VB, AT = (self.QA0, self.QA1, self.QB0, self.QB1, self.SA, self.SB,
            self.PA, self.PB, self.OA, self.OB, self.KB, self.VB, self.AT)
        sK, sV, cnt = 85, 86, 87
        vK1 = AT+2
        lab_slow = self.b.uid("L_slow"); lab_done = self.b.uid("L_adone")
        C("bound check: |q|^2 * kmax2 <= T^2 (log2 units) else true-max path")
        Tlim = 64.0
        I(f"""
        v_mul_f32 v{AT}, v{AT}, v{AT+1}
        v_and_b32 v{vK1}, 31, v{V_L}
        v_lshlrev_b32 v{vK1}, 3, v{vK1}
        s_mov_b32 s{ST+3}, {hex(f2u(Tlim*Tlim if not force_slow else -1.0))}
        v_cmp_nge_f32 vcc, s{ST+3}, v{AT}
        """)
        I(f"s_cmp_lg_u64 vcc, 0\ns_cselect_b32 s{self.S_SLOW}, 1, 0")
        for r in range(16): I(f"v_mov_b32 v{OA+r}, 0\nv_mov_b32 v{OB+r}, 0")
        KVL = self.L_KV
        vK16, vK8 = 200, 201
        KR, VR = 16, 48
        def kreg(buf): return KR + 8*buf
        def vreg(buf): return VR + 8*buf
        def rdK(t):
            k = kreg(t % 4); o = (t % 16)*KVT
            I(f"ds_read_b128 {ar(k)}, v{vK16} offset:{o}")
            I(f"ds_read_b64 a[{k+4}:{k+5}], v{vK8} offset:{o+1024}")
        def rdV(t, which=(0, 1)):
            v = vreg(t % 4); o = (t % 16)*KVT
            if 0 in which: I(f"ds_read_b128 {ar(v)}, v{vK16} offset:{o+1280}")
            if 1 in which: I(f"ds_read_b128 {ar(v+4)}, v{vK16} offset:{o+2304}")
        I(f"v_add_u32 v{vK16}, {KVL}, v{V_L16}\nv_add_u32 v{vK8}, {KVL}, v{vK1}")
        for g in range(3): self.kv_dma(g)
        for r in range(16): I(f"v_mov_b32 v{SB+r}, 0xff800000")
        for r in range(8): I(f"v_mov_b32 v{PA+r}, 0")
        for r in range(8): I(f"v_accvgpr_write_b32 a{vreg(3)+r}, 0")
        self.rl_issue(0)
        I("s_waitcnt vmcnt(9)\ns_barrier")
        rdK(0); rdK(1); rdV(0)
        I(f"s_mov_b32 s{cnt}, 16")
        lp = self.b.uid("L_att"); lhk = [self.b.uid("L_hook") for _ in range(5)]; lback = [self.b.uid("L_back") for _ in range(4)]
        hooks = self.attn_hooks()
        mask = sum(1 << k for k in hooks)
        def exps(S, P, q):
            a = S + 4*q
            I(f"v_exp_f32 v{a}, v{a}\nv_exp_f32 v{a+1}, v{a+1}\nv_exp_f32 v{a+2}, v{a+2}\nv_exp_f32 v{a+3}, v{a+3}")
            I(f"v_cvt_pk_bf16_f32 v{P+2*q}, v{a}, v{a+1}\nv_cvt_pk_bf16_f32 v{P+2*q+1}, v{a+2}, v{a+3}")
        M16 = "v_mfma_f32_32x32x16_bf16"; M8 = "v_mfma_f32_32x32x8_bf16"
        SKS, SKL, SBM = 86, 85, 76
        def copy_slot(q, e):
            n = 2*(q & 1) + e
            if self.x_nokv: return
            if q < 2:
                if n == 3: I("s_mov_b64 exec, 0xffff")
                I(f"buffer_load_dwordx4 v{V_L16}, {sr(S_WS)}, s{SKS} offen offset:{1024*n} lds")
                if n == 3: I(f"s_mov_b64 exec, -1\ns_mov_b32 m0, s{SBM}")
            elif not self.noslot:
                I(f"buffer_load_dwordx4 v{V_L16}, {sr(S_WS)}, s{self.S_DS} offen offset:{1024*n} lds")
        def header(part):
            I("s_waitcnt vmcnt(12) lgkmcnt(4)")
            if not self.x_nobar: I("s_barrier")
            I(f"""
            s_bitcmp1_b32 s84, s{cnt}
            s_cbranch_scc1 {lhk[part]}
            {lback[part]}:
            s_add_u32 s{SKS}, s{SKS}, {4*KVT}
            s_add_u32 m0, s{SKL}, {((part + 3) % 4)*4*KVT}
            s_add_u32 s{self.S_DS}, s{self.S_DS}, s{self.S_INC}
            s_add_u32 s{SBM}, s{SBM}, s{self.S_INC}
            """)
        def body(i, qk=True, last=False):
            kb = kreg(i % 4); vb = vreg((i+3) % 4)
            k2 = kreg((i+2) % 4); ok = ((i+2) % 16)*KVT
            v1 = vreg((i+1) % 4); ov = ((i+1) % 16)*KVT
            if qk:
                I(f"{M16} {vr(SA,16)}, {ar(kb)}, {vr(QA0)}, 0")
                if not self.x_nords: I(f"ds_read_b128 {ar(k2)}, v{vK16} offset:{ok}")
            exps(SB, PB, 0)
            if qk:
                I(f"{M8} {vr(SA,16)}, a[{kb+4}:{kb+5}], v[{QA1}:{QA1+1}], {vr(SA,16)}")
            exps(SB, PB, 1)
            I(f"{M16} {vr(OA,16)}, {ar(vb)}, {vr(PA)}, {vr(OA,16)}")
            if qk and not self.x_nords: I(f"ds_read_b64 a[{k2+4}:{k2+5}], v{vK8} offset:{ok+1024}")
            exps(SB, PB, 2)
            I(f"{M16} {vr(OA,16)}, {ar(vb+4)}, {vr(PA+4)}, {vr(OA,16)}")
            if qk: copy_slot(i % 4, 0)
            exps(SB, PB, 3)
            if qk:
                I(f"{M16} {vr(SB,16)}, {ar(kb)}, {vr(QB0)}, 0")
                if not self.x_nords: I(f"ds_read_b128 {ar(v1)}, v{vK16} offset:{ov+1280}")
                exps(SA, PA, 0)
                I(f"{M8} {vr(SB,16)}, a[{kb+4}:{kb+5}], v[{QB1}:{QB1+1}], {vr(SB,16)}")
                copy_slot(i % 4, 1)
                exps(SA, PA, 1)
            I(f"{M16} {vr(OB,16)}, {ar(vb)}, {vr(PB)}, {vr(OB,16)}")
            if qk:
                if not self.x_nords: I(f"ds_read_b128 {ar(v1+4)}, v{vK16} offset:{ov+2304}")
                exps(SA, PA, 2)
            I(f"{M16} {vr(OB,16)}, {ar(vb+4)}, {vr(PB+4)}, {vr(OB,16)}")
            if qk:
                if i % 4 == 3:
                    I(f"s_sub_u32 s{cnt}, s{cnt}, 1")
                    header((i // 4 + 1) % 4)
                else:
                    I("s_waitcnt lgkmcnt(4)")
                exps(SA, PA, 3)
        I(f"""
        s_mul_i32 s{SKL}, s{S_WV}, {KVT}
        s_add_u32 s{SKS}, s{SKL}, {KV + 8*KVT}
        s_add_u32 s{SKL}, s{SKL}, {KVL}
        s_mov_b32 s{SBM}, {self.L_DUMMY}
        s_mov_b32 s{self.S_DS}, {KV}
        s_mov_b32 s{self.S_INC}, 0
        s_mov_b32 s84, {hex(mask)}
        """)
        I("s_waitcnt lgkmcnt(0)")
        lentry = self.b.uid("L_ent")
        I(f"""
        s_branch {lhk[4]}
        {lentry}:
        s_add_u32 s{SKS}, s{SKS}, {4*KVT}
        s_add_u32 m0, s{SKL}, {3*4*KVT}
        """)
        self.stamp("loop_in")
        I(f"{lp}:")
        for i in range(16): body(i)
        I(f"s_cmp_lg_u32 s{cnt}, 0\ns_cbranch_scc1 {lp}")
        self.stamp("loop_out")
        C("drain: iteration 64 (V_63)")
        I("s_waitcnt lgkmcnt(0)")
        body(0, qk=False)
        I(f"s_cmp_lg_u32 s{self.S_SLOW}, 0\ns_cbranch_scc1 {lab_slow}\ns_branch {lab_done}")
        I(f"{lhk[4]}:")
        self.hook_body(hooks, 16)
        I(f"s_branch {lentry}")
        for part in range(4):
            I(f"{lhk[part]}:")
            ks = [k for k in sorted(hooks, reverse=True) if (16 - k) % 4 == part and k != 16]
            for n_, k in enumerate(ks):
                nx = None
                if n_ < len(ks) - 1:
                    nx = self.b.uid("L_hk")
                    I(f"s_cmp_lg_u32 s{cnt}, {k}\ns_cbranch_scc1 {nx}")
                self.hook_body(hooks, k)
                I(f"s_branch {lback[part]}")
                if nx: I(f"{nx}:")
            if not ks: I(f"s_branch {lback[part]}")
        I(f"{lab_slow}:")
        for r in range(16): I(f"v_mov_b32 v{OA+r}, 0\nv_mov_b32 v{OB+r}, 0")
        MA_, MB_, T0 = AT+4, AT+5, AT+6
        I(f"v_mov_b32 v{MA_}, 0xff7fffff\nv_mov_b32 v{MB_}, 0xff7fffff")
        I(f"s_mov_b32 s{sK}, {KV}\ns_mov_b32 s{cnt}, 64")
        lp2 = self.b.uid("L_atts")
        I(f"{lp2}:")
        k0, v0 = kreg(0), vreg(0)
        I(f"""
        buffer_load_dwordx4 {ar(k0)}, v{V_L16}, {sr(S_WS)}, s{sK} offen
        buffer_load_dwordx2 a[{k0+4}:{k0+5}], v{vK1}, {sr(S_WS)}, s{sK} offen offset:1024
        buffer_load_dwordx4 {ar(v0)}, v{V_L16}, {sr(S_WS)}, s{sK} offen offset:1280
        buffer_load_dwordx4 {ar(v0+4)}, v{V_L16}, {sr(S_WS)}, s{sK} offen offset:2304
        s_add_u32 s{sK}, s{sK}, {KVT}
        s_waitcnt vmcnt(0)
        """)
        for (S, P, O, Q0, Q1, Mx) in ((SA, PA, OA, QA0, QA1, MA_), (SB, PB, OB, QB0, QB1, MB_)):
            I(f"{M16} {vr(S,16)}, {ar(kreg(0))}, {vr(Q0)}, 0")
            I(f"{M8} {vr(S,16)}, a[{kreg(0)+4}:{kreg(0)+5}], v[{Q1}:{Q1+1}], {vr(S,16)}")
            I(f"v_max3_f32 v{T0}, v{S}, v{S+1}, v{S+2}")
            for r in range(3, 15, 2): I(f"v_max3_f32 v{T0}, v{T0}, v{S+r}, v{S+r+1}")
            I(f"v_max_f32 v{T0}, v{T0}, v{S+15}")
            I(f"v_mov_b32 v{T0+1}, v{T0}\nv_permlane32_swap_b32 v{T0}, v{T0+1}\nv_max_f32 v{T0}, v{T0}, v{T0+1}")
            I(f"v_max_f32 v{T0}, v{T0}, v{Mx}")
            I(f"v_sub_f32 v{T0+1}, v{Mx}, v{T0}\nv_exp_f32 v{T0+1}, v{T0+1}\nv_mov_b32 v{Mx}, v{T0}")
            for r in range(16): I(f"v_mul_f32 v{O+r}, v{O+r}, v{T0+1}")
            for r in range(16): I(f"v_sub_f32 v{S+r}, v{S+r}, v{T0}")
            for q in range(4): exps(S, P, q)
            I(f"{M16} {vr(O,16)}, {ar(vreg(0))}, {vr(P)}, {vr(O,16)}")
            I(f"{M16} {vr(O,16)}, {ar(vreg(0)+4)}, {vr(P+4)}, {vr(O,16)}")
        I(f"s_sub_u32 s{cnt}, s{cnt}, 1\ns_cmp_lg_u32 s{cnt}, 0\ns_cbranch_scc1 {lp2}")
        I(f"{lab_done}:")
        I("s_waitcnt vmcnt(0)\ns_barrier")
        self.stamp("attn")
        self.mod_fetch()
        self.ring_state_after_attn()
        C("normalise and store O in the B-fragment layout of the wo GEMM")
        T = AT
        PK = SA
        I(f"""
        v_lshlrev_b32 v{self.V_L8}, 3, v{V_L}
        s_mul_i32 s{ST}, s{S_WV}, 3072
        s_add_u32 s{ST}, s{ST}, {144*1024}
        v_mul_u32_u24 v{T}, 176, v{V_T}
        v_add_u32 v{T}, s{ST}, v{T}
        v_lshl_add_u32 v{T+1}, v{V_G}, 3, v{T}
        v_bfe_u32 v{T+4}, v{V_L}, 4, 1
        v_mul_u32_u24 v{T+4}, 40, v{T+4}
        v_add_u32 v{T}, v{T}, v{T+4}
        v_lshrrev_b32 v{T+4}, 5, v{V_L}
        v_lshl_add_u32 v{T}, v{T+4}, 3, v{T}
        """)
        for (O, u) in ((OA, 0), (OB, 1)):
            I(f"v_mov_b32 v{T+2}, v{O+8}\nv_mov_b32 v{T+3}, v{O+8}\nv_permlane32_swap_b32 v{T+2}, v{T+3}")
            I(f"v_rcp_f32 v{T+3}, v{T+3}")
            for run in range(3):
                a = O + 4*run
                for r in range(4): I(f"v_mul_f32 v{a+r}, v{a+r}, v{T+3}")
                I(f"v_cvt_pk_bf16_f32 v{a}, v{a}, v{a+1}\nv_cvt_pk_bf16_f32 v{a+1}, v{a+2}, v{a+3}")
                if run == 2: I(f"s_mov_b32 exec_hi, 0")
                I(f"ds_write_b64 v{T}, v[{a}:{a+1}] offset:{80*u + 16*run}")
                if run == 2: I(f"s_mov_b32 exec_hi, -1")
        I("s_waitcnt lgkmcnt(0)")
        for j in range(5):
            I(f"ds_read_b64 v[{PK+2*j}:{PK+2*j+1}], v{T+1} offset:{32*j}")
        I(f"s_mul_i32 s{self.S_T5}, s{S_M}, 5")
        self.tile_base(ST+4, S_TT, 20, OF)
        I("s_waitcnt lgkmcnt(0)")
        self.store_frag(PK, 5, ST+4, self.S_T5)
        self.publish(PH_O); self.vm_drained()
        I("s_barrier")
        self.refill(); self.drip(4)
        self.stamp("opub")

    def dual(self, fn):
        I = self.I
        ls = self.b.uid("L_sl"); lj = self.b.uid("L_sj")
        I(f"s_cmp_eq_u32 s{S_FAST}, 0\ns_cbranch_scc1 {ls}")
        fn("")
        I(f"s_branch {lj}\n{ls}:")
        fn(" sc1")
        I(f"{lj}:")

    def xid_publish(self):
        I = self.I
        lab = self.b.uid("L_xp")
        I(f"""
        s_cmp_lg_u32 s{S_WV}, 0
        s_cbranch_scc1 {lab}
        s_getreg_b32 s{ST}, hwreg(HW_REG_XCC_ID)
        s_and_b32 s{ST}, s{ST}, 15
        v_mov_b32 v252, s{ST}
        v_mov_b32 v253, 0
        v_mov_b32 v254, s{S_TAG}
        v_mov_b32 v255, s{S_TAG+1}
        s_lshl_b32 s{ST}, s{S_RB}, 7
        s_lshl_b32 s{ST+1}, s{S_M}, 4
        s_add_u32 s{ST}, s{ST}, s{ST+1}
        s_add_u32 s{ST}, s{ST}, {XIDG}
        v_mov_b32 v251, s{ST}
        s_mov_b64 exec, 1
        buffer_store_dwordx4 v[252:255], v251, {sr(S_WS)}, 0 offen sc1
        s_mov_b64 exec, -1
        {lab}:
        """)

    XV = 240
    def xid_issue(self):
        I = self.I
        I(f"""
        s_and_b32 s{ST+5}, s{S_RB}, 28
        s_lshl_b32 s{ST+5}, s{ST+5}, 7
        s_add_u32 s{ST+5}, s{ST+5}, {XIDG}
        v_and_b32 v251, 31, v{V_L}
        v_lshlrev_b32 v251, 4, v251
        buffer_load_dwordx4 {vr(self.XV)}, v251, {sr(S_WS)}, s{ST+5} offen sc1
        """)

    def xid_eval(self):
        I = self.I
        X = self.XV
        lp = self.b.uid("L_xc"); ok = self.b.uid("L_xcok")
        I(f"""
        s_mov_b32 s{ST+4}, {TIMEOUT}
        {lp}:
        v_cmp_ne_u32 vcc, s{S_TAG}, v{X+2}
        s_mov_b64 s[{ST+6}:{ST+7}], vcc
        v_cmp_ne_u32 vcc, s{S_TAG+1}, v{X+3}
        s_or_b64 s[{ST+6}:{ST+7}], s[{ST+6}:{ST+7}], vcc
        s_cmp_eq_u64 s[{ST+6}:{ST+7}], 0
        s_cbranch_scc1 {ok}
        """)
        self.xid_issue()
        I("s_waitcnt vmcnt(0)")
        self.spin_tail(ST+4, lp, 14)
        I(f"""
        {ok}:
        s_getreg_b32 s{ST+4}, hwreg(HW_REG_XCC_ID)
        s_and_b32 s{ST+4}, s{ST+4}, 15
        v_cmp_ne_u32 vcc, s{ST+4}, v{X}
        s_cmp_eq_u64 vcc, 0
        s_cselect_b32 s{S_FAST}, {0 if self.force_global else 1}, 0
        """)

    def rl_poll_issue(self):
        I = self.I
        lab = self.b.uid("L_rpi")
        T = 232
        I(f"s_cmp_lg_u32 s{S_WV}, 0\ns_cbranch_scc1 {lab}\nv_lshlrev_b32 v250, 7, v{V_L}")
        for i in range(4):
            I(f"s_mov_b32 s{ST+5}, {RLFLAG + i*8192}\nbuffer_load_dwordx2 v[{T+2*i}:{T+1+2*i}], v250, {sr(S_WS)}, s{ST+5} offen sc1")
        I(f"{lab}:")

    def rl_poll_eval(self):
        I = self.I
        lab = self.b.uid("L_rw"); lp = self.b.uid("L_rwp"); ok = self.b.uid("L_rwok")
        T = 232
        I(f"s_cmp_lg_u32 s{S_WV}, 0\ns_cbranch_scc1 {lab}\ns_mov_b32 s{ST+4}, {TIMEOUT}\n{lp}:\ns_mov_b64 s[{ST+6}:{ST+7}], 0")
        for i in range(4):
            I(f"""
            v_cmp_ne_u32 vcc, s{S_TAG}, v{T+2*i}
            s_or_b64 s[{ST+6}:{ST+7}], s[{ST+6}:{ST+7}], vcc
            v_cmp_ne_u32 vcc, s{S_TAG+1}, v{T+1+2*i}
            s_or_b64 s[{ST+6}:{ST+7}], s[{ST+6}:{ST+7}], vcc
            """)
        I(f"s_cmp_eq_u64 s[{ST+6}:{ST+7}], 0\ns_cbranch_scc1 {ok}")
        self.rl_poll_issue()
        I("s_waitcnt vmcnt(0)")
        self.spin_tail(ST+4, lp, 4)
        I(f"{ok}:\n{lab}:\ns_barrier")

    def publish(self, ph, both=False, vmn=0, line_sreg=None):
        I = self.I
        ln = S_TT if line_sreg is None else line_sreg
        I(f"""
        v_mov_b32 v254, s{S_TAG}
        v_mov_b32 v255, s{S_TAG+1}
        s_lshl_b32 s{ST}, s{ln}, 7
        s_lshl_b32 s{ST+1}, s{S_M}, 3
        s_add_u32 s{ST}, s{ST}, s{ST+1}
        s_add_u32 s{ST}, s{ST}, {CFLAG + ph*CF_PH}
        v_mov_b32 v253, s{ST}
        s_mov_b32 s{ST+1}, {CF_LOC}
        s_waitcnt vmcnt({vmn})
        s_mov_b64 exec, 1
        """)
        def st(f):
            if f == "":
                I(f"buffer_store_dwordx2 v[254:255], v253, {sr(S_WS)}, s{ST+1} offen")
                if both: I(f"buffer_store_dwordx2 v[254:255], v253, {sr(S_WS)}, 0 offen sc1")
            else:
                I(f"buffer_store_dwordx2 v[254:255], v253, {sr(S_WS)}, 0 offen sc1")
        self.dual(st)
        I(f"s_mov_b64 exec, -1")

    def publish_drip(self, ph, both=False, line_sreg=None):
        if self.detail == 2: self.stamp(f"e_sto{ph}")
        self.publish(ph, both=both, vmn=0, line_sreg=line_sreg)
        self.vmq = []
        self.drip(self.pub_after)

    def wait_flags(self, ph, lines, code):
        I = self.I
        lp = self.b.uid("L_wfp"); ok = self.b.uid("L_wfok")
        I(f"v_mov_b32 v251, s{lines[0]}")
        if len(lines) > 1:
            I(f"v_lshrrev_b32 v250, 3, v{V_L}\nv_and_b32 v250, 3, v250")
            for i, r in enumerate(lines[1:], 1):
                I(f"v_cmp_eq_u32 vcc, {i}, v250\nv_mov_b32 v252, s{r}\nv_cndmask_b32 v251, v251, v252, vcc")
        I(f"""
        v_lshrrev_b32 v250, 4, v251
        s_lshr_b32 s{ST}, s{S_RB}, 2
        v_cmp_eq_u32 vcc, s{ST}, v250
        s_mul_i32 s{ST}, s{S_FAST}, {CF_LOC}
        v_mov_b32 v252, s{ST}
        v_cndmask_b32 v250, 0, v252, vcc
        v_lshl_add_u32 v251, v251, 7, v250
        v_and_b32 v252, 7, v{V_L}
        v_lshl_add_u32 v251, v252, 3, v251
        s_mov_b32 s{ST+1}, {CFLAG + ph*CF_PH}
        s_mov_b32 s{ST}, {TIMEOUT}
        buffer_load_dwordx2 v[254:255], v251, {sr(S_WS)}, s{ST+1} offen sc1
        """)
        n0 = len(self.vmq)
        self.drip(self.shadow_f)
        nsh = len(self.vmq) - n0
        lchk = self.b.uid("L_wfc")
        I(f"""
        s_waitcnt vmcnt({nsh})
        s_branch {lchk}
        {lp}:
        buffer_load_dwordx2 v[254:255], v251, {sr(S_WS)}, s{ST+1} offen sc1
        s_waitcnt vmcnt(0)
        {lchk}:
        v_cmp_ne_u32 vcc, s{S_TAG}, v254
        s_mov_b64 s[{ST+2}:{ST+3}], vcc
        v_cmp_ne_u32 vcc, s{S_TAG+1}, v255
        s_or_b64 s[{ST+2}:{ST+3}], s[{ST+2}:{ST+3}], vcc
        s_cmp_eq_u64 s[{ST+2}:{ST+3}], 0
        s_cbranch_scc1 {ok}
        """)
        self.spin_tail(ST, lp, code)
        I(f"{ok}:")
        self.vmq = self.vmq[len(self.vmq)-nsh:] if nsh else []

    X2, H = 4, 24
    ACC = 44
    MS_GA = 64
    WB = 100
    MS_A2, MS_SB = 160, 180
    GT = 200
    RING = 160
    F_WO, F_W1, F_W2, F_W3, F_W4 = 0, 100, 200, 304, 448
    NUNITS = 45
    S_T5 = 29
    S_SRC = 30
    S_WA, S_W3 , S_W4 = 90, 91, 92
    S_LW = 93
    S_DM, S_DS, S_AO, S_AO2 = 94, 95, 88, 89

    def vm_issue(self, tag): self.vmq.append(tag)
    def vm_wait(self, tag):
        if tag not in self.vmq: return
        i = len(self.vmq) - 1 - self.vmq[::-1].index(tag)
        n = len(self.vmq) - 1 - i
        self.I(f"s_waitcnt vmcnt({min(n, 63)})")
        self.vmq = self.vmq[i+1:]
    def vm_drained(self): self.vmq = []

    def ring_regs(self):
        I = self.I
        I(f"""
        s_lshl_b32 s{self.S_LW}, s{S_WV}, 12
        s_mul_i32 s{self.S_WA}, s{S_M}, {WSA_M}
        s_add_u32 s{self.S_WA}, s{self.S_WA}, {WSA}
        s_add_u32 s{self.S_WA}, s{self.S_WA}, s{self.S_LW}
        s_and_b32 s{self.S_W3}, s{S_RB}, 1
        s_lshl_b32 s{self.S_W3}, s{self.S_W3}, 3
        s_add_u32 s{self.S_W3}, s{self.S_W3}, s{S_M}
        s_mul_i32 s{self.S_W3}, s{self.S_W3}, {W3S_M}
        s_add_u32 s{self.S_W3}, s{self.S_W3}, {W3S}
        s_add_u32 s{self.S_W3}, s{self.S_W3}, s{self.S_LW}
        s_mul_i32 s{self.S_W4}, s{S_M}, {W4S_M}
        s_add_u32 s{self.S_W4}, s{self.S_W4}, {W4S}
        s_add_u32 s{self.S_W4}, s{self.S_W4}, s{self.S_LW}
        """)

    def refill(self, maxn=99):
        n = 0
        while self.units_queued < self.NUNITS and n < maxn:
            u = self.units_queued
            if 16*u + 15 - self.RING > self.consumed: break
            for q in range(4):
                self.pend.append((("u", u, q), (lambda u=u, q=q: self.emit_dma(u, q))))
            self.units_queued += 1; n += 1
        self.resort()

    def resort(self):
        ctx = getattr(self, "loop_ctx", None)
        if ctx is None: return
        F0, NT, S = ctx
        def key(e):
            t = e[0]
            if t[0] == "a": return t[2]
            F = 16*t[1]
            if F + 15 < F0: return -100
            st = max(0, (F - F0)//NT)
            if st >= S: return 1000 + t[1]
            return 4*(st//4) - 2 - 1
        self.pend.sort(key=key)

    def emit_dma(self, u, q, track=True):
        I = self.I
        if q == 0:
            F = 16*u
            if F < 304: base, off = self.S_WA, F*1024
            elif F < 448: base, off = self.S_W3, (F-304)*1024
            else: base, off = self.S_W4, (F-448)*1024
            slot = (F % self.RING)*1024
            I(f"s_add_u32 s{self.S_DM}, s{self.S_LW}, {slot}\ns_mov_b32 m0, s{self.S_DM}\ns_add_u32 s{self.S_DS}, s{base}, {off}")
        I(f"buffer_load_dwordx4 v{V_L16}, {sr(S_WS)}, s{self.S_DS} offen offset:{1024*q} lds")
        if track:
            self.vm_issue(("u", u) if q == 3 else ("ux", u, q))
            if q == 3: self.units_issued = u + 1

    def drip(self, n=1):
        while n > 0 and self.pend:
            tag, fn = self.pend.pop(0)
            fn(); n -= 1

    def flush_until(self, tag):
        if not any(t == tag for t, _ in self.pend): return
        while True:
            t, fn = self.pend.pop(0)
            fn()
            if t == tag: return

    def need_units(self, Fmax):
        u = Fmax // 16
        assert u < self.units_queued, (u, self.units_queued)
        self.flush_until(("u", u, 3))
        self.vm_wait(("u", u))

    def gemm(self, S, NT, F0, aops, abases, burst, rate, cap=99, post_barrier=True, resident=False, chunk=4, accf=None, filler=None, fill_n=0):
        I = self.I
        WB, ACC, T = self.WB, self.ACC, self.GT
        nt = len(abases)
        vb = [T, T+1, T+2]
        stride = 4*NT
        if accf is None: accf = lambda tt, j: ACC + 4*(tt*NT + j)
        filler = list(filler or [])
        def rd1(s, j):
            off = ((F0 + s*NT + j) % self.RING)*1024
            k, o = divmod(off, 61440)
            I(f"ds_read_b128 {vr(WB + stride*(s % 3) + 4*j)}, v{vb[k]} offset:{o}")
        while self.pend and self.pend[0][0][0] == "u" and self.pend[0][0][2] != 0: self.drip(1)
        keep = []
        if resident:
            keep = [e for e in self.pend if e[0][0] == "u"]
            self.pend = []
        self.pend = list(aops) + self.pend
        self.loop_ctx = (F0, NT, S)
        if not resident: self.refill(cap)
        self.drip(burst)
        for j in range(NT): rd1(0, j)
        for j in range(NT): rd1(1, j)
        acc_rate = 0.0
        for s in range(S):
            if not resident and s + 2 < S and (s + 2) % chunk == 0:
                last = min(S, s + 2 + chunk) - 1
                if F0 + last*NT + NT - 1 > self.visible or self.units_queued < self.NUNITS:
                    self.need_units(F0 + last*NT + NT - 1)
                    I("s_barrier")
                    self.visible = max(self.visible, F0 + last*NT + NT - 1)
                    self.consumed = max(self.consumed, F0 + (s-1)*NT + NT - 1)
                    self.refill(cap)
            if self.detail == F0 and s % 4 == 0: self.stamp(f"d_k{s}")
            nout = NT if s + 1 < S else 0
            I(f"s_waitcnt lgkmcnt({min(nout, 15)})")
            for tt in range(nt):
                self.flush_until(("a", tt, s))
                self.vm_wait(("a", tt, s))
            acc_rate += rate
            nm = nt*NT
            slots = []
            while acc_rate >= 1.0:
                slots.append(1); acc_rate -= 1.0
            pos = {(k*nm)//max(1, len(slots)) : 0 for k in range(len(slots))}
            for k in range(len(slots)): pos[(k*nm)//len(slots)] += 1
            i = 0
            for tt in range(nt):
                for j in range(NT):
                    c = '0' if s == 0 else vr(accf(tt, j))
                    I(f"v_mfma_f32_16x16x32_bf16 {vr(accf(tt, j))}, {vr(WB+stride*(s%3)+4*j)}, {ar(abases[tt]+4*s)}, {c}")
                    if i < NT and s + 2 < S: rd1(s+2, i)
                    if pos.get(i): self.drip(pos[i])
                    for _ in range(fill_n):
                        if filler: I(filler.pop(0))
                    i += 1
        for x in filler: I(x)
        self.pending_consumed = {299: 303, 443: 447}.get(F0 + S*NT - 1, F0 + S*NT - 1)
        self.loop_ctx = None
        self.pend = self.pend + keep
        if post_barrier:
            I("s_barrier")
            self.after_barrier()
            self.refill()
            self.drip({0: self.post_drip, 100: self.post_drip, 200: self.post_drip2, 384: self.post_drip3, 304: self.post_drip3}.get(F0, 0))

    def after_barrier(self):
        self.consumed = max(self.consumed, getattr(self, "pending_consumed", -1))

    def lds_bases(self):
        T = self.GT
        self.I(f"v_mov_b32 v{T}, v{V_L16}\nv_add_u32 v{T+1}, 61440, v{V_L16}\nv_add_u32 v{T+2}, {2*61440}, v{V_L16}")

    def a_op(self, tt, s, abase, vaddr, base_sreg, base_add, soff_reg, split=(), vaddr8=None):
        def fn():
            if s % 4 == 0:
                if base_sreg is None: self.I(f"s_mov_b32 s{soff_reg}, {base_add + 1024*s}")
                else: self.I(f"s_add_u32 s{soff_reg}, s{base_sreg}, {base_add + 1024*s}")
            r = abase + 4*s
            if s in split:
                self.I(f"buffer_load_dwordx2 a[{r}:{r+1}], v{vaddr8}, {sr(S_WS)}, s{soff_reg} offen offset:{1024*(s % 4)} sc1")
                self.vm_issue(("ah", tt, s))
                self.I(f"buffer_load_dwordx2 a[{r+2}:{r+3}], v{vaddr8}, {sr(S_WS)}, s{soff_reg} offen offset:{1024*(s % 4)+512} sc1")
            else:
                self.I(f"buffer_load_dwordx4 {ar(r)}, v{vaddr}, {sr(S_WS)}, s{soff_reg} offen offset:{1024*(s % 4)} sc1")
            self.vm_issue(("a", tt, s))
        return (("a", tt, s), fn)

    RAW_GA, RAW_SB, RAW_CB, RAW_GB = 140, 150, 214, 240
    def mod_fetch(self):
        I = self.I
        I(f"v_lshlrev_b32 v244, 4, v{V_G}\nv_add_u32 v244, {self.L_MODW}, v244")
        for (dst, off, acc) in ((self.RAW_GA, 0, False), (self.RAW_SB, 2560, False), (self.RAW_CB, 4096, False), (self.RAW_GB, 4096+2560, True)):
            for j in range(5):
                r = f"a[{dst+2*j}:{dst+2*j+1}]" if acc else f"v[{dst+2*j}:{dst+2*j+1}]"
                I(f"ds_read_b64 {r}, v244 offset:{off + 64*j}")

    def mod_unpack(self):
        I = self.I
        for src, dst in ((self.RAW_GA, self.MS_GA), (self.RAW_SB, self.MS_SB), (self.RAW_CB, self.MS_A2)):
            for i in range(10):
                I(f"v_lshlrev_b32 v{dst+2*i}, 16, v{src+i}\nv_and_b32 v{dst+2*i+1}, 0xffff0000, v{src+i}")
        self.one_plus_bf16(self.MS_A2, 20)

    def one_plus_bf16(self, r, n):
        I = self.I
        for i in range(0, n, 2):
            I(f"""
            v_add_f32 v{r+i}, 1.0, v{r+i}
            v_add_f32 v{r+i+1}, 1.0, v{r+i+1}
            v_cvt_pk_bf16_f32 v{r+i}, v{r+i}, v{r+i+1}
            v_and_b32 v{r+i+1}, 0xffff0000, v{r+i}
            v_lshlrev_b32 v{r+i}, 16, v{r+i}
            """)

    def ln_stats(self, src, which, mu, rs, code, fine=0):
        I = self.I
        T = self.GT + 4
        I(f"v_pk_add_f32 v[{T}:{T+1}], v[{src}:{src+1}], v[{src+2}:{src+3}]\nv_pk_mul_f32 v[{T+2}:{T+3}], v[{src}:{src+1}], v[{src}:{src+1}]")
        I(f"v_pk_fma_f32 v[{T+2}:{T+3}], v[{src+2}:{src+3}], v[{src+2}:{src+3}], v[{T+2}:{T+3}]")
        for i in range(4, 20, 2):
            I(f"v_pk_add_f32 v[{T}:{T+1}], v[{T}:{T+1}], v[{src+i}:{src+i+1}]\nv_pk_fma_f32 v[{T+2}:{T+3}], v[{src+i}:{src+i+1}], v[{src+i}:{src+i+1}], v[{T+2}:{T+3}]")
            if i in (8, 14): self.drip(fine)
        I(f"v_add_f32 v{T}, v{T}, v{T+1}\nv_add_f32 v{T+1}, v{T+2}, v{T+3}")
        self.reduce_g([T, T+1], T+4)
        I(f"""
        v_mov_b32 v{T+2}, s{S_TAG}
        v_mov_b32 v{T+3}, s{S_TAG+1}
        s_lshl_b32 s{ST+4}, s{S_RB}, 13
        s_lshl_b32 s{ST+5}, s{S_WV}, 8
        s_add_u32 s{ST+4}, s{ST+4}, s{ST+5}
        s_add_u32 s{ST+4}, s{ST+4}, {STAT + which*STAT_SZ}
        s_lshl_b32 s{ST+5}, s{S_M}, 10
        s_add_u32 s{ST+5}, s{ST+5}, s{ST+4}
        v_lshlrev_b32 v{T+4}, 4, v{V_T}
        s_mov_b64 exec, 0xffff
        """)
        self.dual(lambda f: I(f"buffer_store_dwordx4 {vr(T)}, v{T+4}, {sr(S_WS)}, s{ST+5} offen{f}"))
        I("s_mov_b64 exec, -1")
        if self.detail == 2: self.stamp(f"e_st{which}")
        I(f"""
        s_mov_b64 exec, -1
        v_lshl_add_u32 v{T+5}, v{V_G}, 11, v{T+4}
        s_mov_b32 s{ST}, {TIMEOUT}
        """)
        lp = self.b.uid("L_ls"); ok = self.b.uid("L_lsok"); lchk = self.b.uid("L_lsc")
        I(f"""
        buffer_load_dwordx4 {vr(T+8)}, v{T+5}, {sr(S_WS)}, s{ST+4} offen sc1
        buffer_load_dwordx4 {vr(T+12)}, v{T+5}, {sr(S_WS)}, s{ST+4} offen offset:1024 sc1
        """)
        n0 = len(self.vmq)
        self.drip(self.shadow_s)
        nsh = len(self.vmq) - n0
        I(f"""
        s_waitcnt vmcnt({nsh})
        s_branch {lchk}
        {lp}:
        buffer_load_dwordx4 {vr(T+8)}, v{T+5}, {sr(S_WS)}, s{ST+4} offen sc1
        buffer_load_dwordx4 {vr(T+12)}, v{T+5}, {sr(S_WS)}, s{ST+4} offen offset:1024 sc1
        s_waitcnt vmcnt(0)
        {lchk}:
        v_cmp_ne_u32 vcc, s{S_TAG}, v{T+10}
        s_mov_b64 s[{ST+2}:{ST+3}], vcc
        v_cmp_ne_u32 vcc, s{S_TAG+1}, v{T+11}
        s_or_b64 s[{ST+2}:{ST+3}], s[{ST+2}:{ST+3}], vcc
        v_cmp_ne_u32 vcc, s{S_TAG}, v{T+14}
        s_or_b64 s[{ST+2}:{ST+3}], s[{ST+2}:{ST+3}], vcc
        v_cmp_ne_u32 vcc, s{S_TAG+1}, v{T+15}
        s_or_b64 s[{ST+2}:{ST+3}], s[{ST+2}:{ST+3}], vcc
        s_cmp_eq_u64 s[{ST+2}:{ST+3}], 0
        s_cbranch_scc1 {ok}
        """)
        self.spin_tail(ST, lp, code)
        self.vmq = self.vmq[len(self.vmq)-nsh:] if nsh else []
        I(f"{ok}:")
        if self.detail == 2: self.stamp(f"e_got{which}")
        I(f"""
        v_add_f32 v{T}, v{T+8}, v{T+12}
        v_add_f32 v{T+1}, v{T+9}, v{T+13}
        """)
        self.reduce_g([T, T+1], T+4)
        I(f"""
        v_mul_f32 v{mu}, {1.0/640!r}, v{T}
        v_mul_f32 v{T+1}, {1.0/640!r}, v{T+1}
        v_fma_f32 v{T+1}, -v{mu}, v{mu}, v{T+1}
        v_max_f32 v{T+1}, 0, v{T+1}
        v_add_f32 v{T+1}, 0x3727c5ac, v{T+1}
        v_rsq_f32 v{rs}, v{T+1}
        s_nop 0
        v_mul_f32 v{mu}, -v{mu}, v{rs}
        v_mov_b32 v{rs+1}, v{rs}
        v_mov_b32 v{mu+1}, v{mu}
        """)

    V_L8 = 203
    SPLIT20 = (2, 7, 12, 17)
    SPLIT54 = (3, 10, 17, 24, 31, 38)
    def pack_tiles(self, src, ntile, dst=None):
        if dst is None: dst = src
        for j in range(ntile):
            a = src + 4*j; d = dst + 2*j
            self.I(f"v_cvt_pk_bf16_f32 v{d}, v{a}, v{a+1}\nv_cvt_pk_bf16_f32 v{d+1}, v{a+2}, v{a+3}")

    def store_frag(self, pk, ntile, base_sreg, tile0_sreg, skip_last_sreg=None, force_sc1=False, count=True):
        I = self.I
        lodd = self.b.uid("L_so"); lj = self.b.uid("L_sj")
        I(f"""
        s_lshr_b32 s{ST+5}, s{tile0_sreg}, 1
        s_lshl_b32 s{ST+5}, s{ST+5}, 10
        s_add_u32 s{ST+5}, s{ST+5}, s{base_sreg}
        s_bitcmp1_b32 s{tile0_sreg}, 0
        s_cbranch_scc1 {lodd}
        """)
        def variant(odd, f):
            if not odd:
                for p in range(ntile//2):
                    I(f"buffer_store_dwordx4 {vr(pk+4*p)}, v{V_L16}, {sr(S_WS)}, s{ST+5} offen offset:{1024*p}{f}")
                if ntile % 2:
                    lab = None
                    if skip_last_sreg is not None:
                        lab = self.b.uid("L_sk")
                        I(f"s_cmp_lg_u32 s{skip_last_sreg}, 0\ns_cbranch_scc1 {lab}")
                    j = ntile-1
                    I(f"buffer_store_dwordx2 v[{pk+2*j}:{pk+2*j+1}], v{self.V_L8}, {sr(S_WS)}, s{ST+5} offen offset:{1024*(ntile//2)}{f}")
                    if lab: I(f"{lab}:")
            else:
                I(f"buffer_store_dwordx2 v[{pk}:{pk+1}], v{self.V_L8}, {sr(S_WS)}, s{ST+5} offen offset:512{f}")
                for p in range(ntile//2):
                    I(f"buffer_store_dwordx4 {vr(pk+2+4*p)}, v{V_L16}, {sr(S_WS)}, s{ST+5} offen offset:{1024*(p+1)}{f}")
        if force_sc1: variant(False, " sc1")
        else: self.dual(lambda f: variant(False, f))
        I(f"s_branch {lj}\n{lodd}:")
        if force_sc1: variant(True, " sc1")
        else: self.dual(lambda f: variant(True, f))
        I(f"{lj}:")
        if count:
            for j in range(ntile//2): self.vm_issue(("st",))

    def tile_base(self, dst_sreg, tt_sreg, S, base_off):
        self.I(f"s_mul_i32 s{dst_sreg}, s{tt_sreg}, {S*1024}\ns_add_u32 s{dst_sreg}, s{dst_sreg}, {base_off}")

    def gelu(self, r, n, drip=0):
        I = self.I
        T = self.GT + 4
        c1 = -2.0 * 0.7978845608028654 * 1.4426950408889634
        c2 = c1 * 0.044715
        C1, ONE = T+8, T+10
        I(f"""
        s_mov_b32 s{ST+8}, {hex(f2u(c2))}
        s_mov_b32 s{ST+9}, {hex(f2u(c2))}
        v_mov_b32 v{C1}, {hex(f2u(c1))}
        v_mov_b32 v{C1+1}, {hex(f2u(c1))}
        v_mov_b32 v{ONE}, 1.0
        v_mov_b32 v{ONE+1}, 1.0
        """)
        P = lambda x: f"v[{x}:{x+1}]"
        for i in range(0, n, 4):
            x0, x1, t0, t1 = r+i, r+i+2, T, T+2
            I(f"v_pk_mul_f32 {P(t0)}, {P(x0)}, {P(x0)}\nv_pk_mul_f32 {P(t1)}, {P(x1)}, {P(x1)}")
            I(f"v_pk_fma_f32 {P(t0)}, {P(t0)}, s[{ST+8}:{ST+9}], {P(C1)}\nv_pk_fma_f32 {P(t1)}, {P(t1)}, s[{ST+8}:{ST+9}], {P(C1)}")
            I(f"v_pk_mul_f32 {P(t0)}, {P(t0)}, {P(x0)}\nv_pk_mul_f32 {P(t1)}, {P(t1)}, {P(x1)}")
            for q in range(4): I(f"v_exp_f32 v{T+q}, v{T+q}")
            I(f"v_pk_add_f32 {P(t0)}, {P(t0)}, {P(ONE)}\nv_pk_add_f32 {P(t1)}, {P(t1)}, {P(ONE)}")
            for q in range(4): I(f"v_rcp_f32 v{T+q}, v{T+q}")
            I(f"v_pk_mul_f32 {P(x0)}, {P(x0)}, {P(t0)}\nv_pk_mul_f32 {P(x1)}, {P(x1)}, {P(t1)}")
            self.drip(drip)

    def collect(self, fn):
        saved = self.b.items
        self.b.items = []
        fn()
        out = [it.text for it in self.b.items if isinstance(it, Ins)]
        self.b.items = saved
        return out

    def phase_entry(self, ph_wait, lines, code, F0, NT, between=None, upto=None):
        last = F0 + 4*NT - 1 if upto is None else upto
        self.need_units(last)
        self.I("s_barrier")
        self.visible = max(getattr(self, "visible", -1), last)
        self.after_barrier()
        if self.detail == F0: self.stamp("d_bar")
        self.wait_flags(ph_wait, lines, code)
        if self.detail == F0: self.stamp("d_flags")
        if self.detail == 2: self.stamp(f"e_fl{ph_wait}")

    def small_gemm(self, F0, act, ph_wait, rbs, code, shift=False, between=None, pf=()):
        I, C = self.I, self.C
        self.phase_entry(ph_wait, rbs, code, F0, 5, between, upto=(F0+99 if self.resident else None))
        if not shift:
            I(f"s_mul_i32 s{self.S_SRC}, s{S_TT}, {20*1024}\ns_add_u32 s{self.S_SRC}, s{self.S_SRC}, {act}")
            aops = [self.a_op(0, s, 16, V_L16, self.S_SRC, 0, self.S_AO, self.SPLIT20, self.V_L8) for s in range(20)]
        else:
            T = self.GT + 8
            I(f"s_lshl_b32 s{ST+4}, s{S_TT}, 4\ns_lshr_b32 s{ST+5}, s{S_RB}, 2")
            for q, dl in enumerate((-1, 1, -2, 2)):
                side = 1 if dl < 0 else 0
                I(f"""
                v_add_u32 v{T+4}, s{ST+4}, v{V_T}
                v_add_u32 v{T+4}, {dl & 0xffffffff}, v{T+4}          ; token'
                v_lshrrev_b32 v{T+5}, 4, v{T+4}
                v_mul_u32_u24 v{T+5}, 20480, v{T+5}
                v_add_u32 v{T+5}, {act}, v{T+5}
                v_lshrrev_b32 v{T+6}, 8, v{T+4}
                v_lshlrev_b32 v{T+7}, 1, v{T+6}
                v_add_u32 v{T+7}, {side}, v{T+7}
                v_mul_u32_u24 v{T+7}, 20480, v{T+7}
                v_add_u32 v{T+7}, {HG}, v{T+7}
                v_cmp_eq_u32 vcc, s{ST+5}, v{T+6}
                v_cndmask_b32 v{T+5}, v{T+7}, v{T+5}, vcc
                v_and_b32 v{T+6}, 15, v{T+4}
                v_lshl_add_u32 v{T+6}, v{V_G}, 4, v{T+6}              ; g*16 + t'
                v_lshl_add_u32 v{T+7}, v{T+6}, 3, v{T+5}
                v_lshl_add_u32 v{T+5}, v{T+6}, 4, v{T+5}
                v_cmp_gt_u32 vcc, 0x800, v{T+4}
                v_mov_b32 v{T+6}, 0x80000000
                v_cndmask_b32 v{T+q}, v{T+6}, v{T+5}, vcc
                v_cndmask_b32 v{self.GT+20+q}, v{T+6}, v{T+7}, vcc
                """)
            aops = [self.a_op(0, s, 16, T + s // 5, None, 0, self.S_AO, self.SPLIT20, self.GT + 20 + s // 5) for s in range(20)]
        if self.use_pf: aops += [(("a", 9, 19), (lambda p=p: self.pf_op(*p))) for p in pf]
        if (self.h4t_where == 1 and F0 == self.F_W1) or (self.h4t_where == 2 and F0 == self.F_W2) or (self.h4t_where == 4 and F0 == self.F_WO):
            def h4t():
                self.act_touch(H4F, 54*1024); self.vm_issue(("pf",))
            aops.append((("a", 9, 19), h4t))
        self.gemm(20, 5, F0, aops, [16], burst=self.burst, rate=self.rate_small, cap=self.cap_small, resident=self.resident)

    def phase_wo(self):
        I, C = self.I, self.C
        X2, H, ACC, T = self.X2, self.H, self.ACC, self.GT
        self.lds_bases()
        self.mod_unpack()
        for j in range(5):
            for q in range(2):
                I(f"v_accvgpr_read_b32 v{T+4}, a{2*j+q}")
                I(f"v_lshlrev_b32 v{X2+4*j+2*q}, 16, v{T+4}\nv_and_b32 v{X2+4*j+2*q+1}, 0xffff0000, v{T+4}")
        self.small_gemm(self.F_WO, OF, PH_O, [S_TT], 6, pf=[("3", 0)])
        self.stamp("wo_mm")
        P = lambda x: f"v[{x}:{x+1}]"
        f = self.fine
        for i in range(0, 20, 2): I(f"v_pk_fma_f32 {P(X2+i)}, {P(self.MS_GA+i)}, {P(ACC+i)}, {P(X2+i)}")
        mu, rs = T+30, T+32
        self.ln_stats(X2, 0, mu, rs, 7, fine=f)
        for i in range(0, 20, 2):
            I(f"v_pk_fma_f32 {P(H+i)}, {P(X2+i)}, {P(rs)}, {P(mu)}")
            I(f"v_pk_fma_f32 {P(H+i)}, {P(H+i)}, {P(self.MS_A2+i)}, {P(self.MS_SB+i)}")
            if i in (0, 8): self.drip(f)
        self.ln_stats(H, 1, mu, rs, 8, fine=f)
        self.drip(f)
        for i in range(0, 20, 2): I(f"v_pk_fma_f32 {P(ACC+i)}, {P(H+i)}, {P(rs)}, {P(mu)}")
        self.pack_tiles(ACC, 5)
        self.tile_base(ST+4, S_TT, 20, L2F)
        self.store_frag(ACC, 5, ST+4, self.S_T5)
        self.publish_drip(PH_L2)
        self.stamp("l2pub")

    def phase_w1(self):
        I = self.I
        self.small_gemm(self.F_W1, L2F, PH_L2, [S_TT], 9, pf=[("3", 1)])
        self.stamp("w1_mm")
        self.gelu(self.ACC, 20, drip=self.gd1)
        self.pack_tiles(self.ACC, 5)
        self.tile_base(ST+4, S_TT, 20, GF)
        self.store_frag(self.ACC, 5, ST+4, self.S_T5)
        lab = self.b.uid("L_hal")
        I(f"""
        s_and_b32 s{ST+6}, s{S_TT}, 15
        s_add_u32 s{ST+6}, s{ST+6}, 1
        s_and_b32 s{ST+7}, s{ST+6}, 14
        s_cmp_eq_u32 s{ST+7}, 0
        s_cbranch_scc0 {lab}
        s_lshr_b32 s{ST+7}, s{S_TT}, 4
        s_lshl_b32 s{ST+7}, s{ST+7}, 1
        s_lshr_b32 s{ST+6}, s{ST+6}, 4
        s_add_u32 s{ST+7}, s{ST+7}, s{ST+6}
        s_mul_i32 s{ST+4}, s{ST+7}, 20480
        s_add_u32 s{ST+4}, s{ST+4}, {HG}
        """)
        self.store_frag(self.ACC, 5, ST+4, self.S_T5, force_sc1=True, count=False)
        I(f"{lab}:")
        self.publish_drip(PH_G, both=True)
        self.stamp("gpub")

    def phase_w2(self):
        I = self.I
        X2, H, ACC, T = self.X2, self.H, self.ACC, self.GT
        I(f"""
        s_sub_u32 s{ST+10}, s{S_TT}, 1
        s_max_i32 s{ST+10}, s{ST+10}, 0
        s_add_u32 s{ST+11}, s{S_TT}, 1
        s_min_u32 s{ST+11}, s{ST+11}, 127
        """)
        self.small_gemm(self.F_W2, GF, PH_G, [S_TT, ST+10, ST+11], 10, shift=True, pf=[("4", 0)])
        self.stamp("w2_mm")
        P = lambda x: f"v[{x}:{x+1}]"
        for i in range(0, 20, 2): I(f"v_pk_add_f32 {P(H+i)}, {P(H+i)}, {P(ACC+i)}")
        mu, rs = T+30, T+32
        self.ln_stats(H, 2, mu, rs, 11, fine=self.fine)
        self.drip(self.fine)
        for i in range(0, 20, 2): I(f"v_pk_fma_f32 {P(ACC+i)}, {P(H+i)}, {P(rs)}, {P(mu)}")
        self.pack_tiles(ACC, 5)
        self.tile_base(ST+4, S_TT, 20, L3F)
        self.store_frag(ACC, 5, ST+4, self.S_T5)
        self.publish_drip(PH_L3)
        self.stamp("l3pub")

    def phase_w3(self):
        I, C = self.I, self.C
        ACC = self.ACC
        m16, t0, skip, rbA, rbB, ttb = ST+10, ST+11, ST+12, ST+13, ST+14, ST+15
        I(f"""
        s_and_b32 s{m16}, s{S_RB}, 1
        s_lshl_b32 s{m16}, s{m16}, 3
        s_add_u32 s{m16}, s{m16}, s{S_M}
        s_mul_i32 s{t0}, s{m16}, 7
        s_sub_u32 s{ST}, s{m16}, 12
        s_max_i32 s{ST}, s{ST}, 0
        s_sub_u32 s{t0}, s{t0}, s{ST}
        s_cmp_ge_u32 s{m16}, 12
        s_cselect_b32 s{skip}, 1, 0
        s_and_b32 s{rbA}, s{S_RB}, 30
        s_add_u32 s{rbB}, s{rbA}, 1
        s_lshl_b32 s{ttb}, s{rbA}, 2
        s_lshl_b32 s{ST}, s{S_WV}, 1
        s_add_u32 s{ttb}, s{ttb}, s{ST}
        """)
        I(f"s_add_u32 s{rbA}, s{ttb}, 1")
        self.phase_entry(PH_L3, [ttb, rbA], 12, self.F_W3, 4 if self.w3split else 7)
        I(f"s_mul_i32 s{self.S_SRC}, s{ttb}, {20*1024}\ns_add_u32 s{self.S_SRC}, s{self.S_SRC}, {L3F}")
        aops = []
        for s in range(20):
            aops.append(self.a_op(0, s, 16, V_L16, self.S_SRC, 0, self.S_AO, self.SPLIT20, self.V_L8))
            aops.append(self.a_op(1, s, 96, V_L16, self.S_SRC, 20*1024, self.S_AO2, self.SPLIT20, self.V_L8))
        if self.use_pf: aops.insert(16, (("a", 9, 8), (lambda: self.pf_op("4", 1))))
        def h4t():
            self.act_touch(H4F, 54*1024); self.vm_issue(("pf",))
        if self.h4t_where == 3: aops.append((("a", 9, 19), h4t))
        if not self.w3split:
            self.gemm(20, 7, self.F_W3, aops, [16, 96], burst=2*self.burst, rate=self.rate_w3)
            self.stamp("w3_mm")
            self.gelu(ACC, 56, drip=self.gd3)
        else:
            self.gemm(20, 4, self.F_W3, aops, [16, 96], burst=2*self.burst, rate=self.rate_w3a, accf=lambda tt, j: ACC + 28*tt + 4*j, post_barrier=False)
            F2 = self.F_W3 + 80
            self.need_units(F2 + 4*3 - 1)
            I("s_barrier")
            self.visible = max(self.visible, F2 + 11)
            self.after_barrier()
            fill = self.collect(lambda: (self.gelu(ACC, 16), self.gelu(ACC+28, 16)))
            self.gemm(20, 3, F2, [], [16, 96], burst=0, rate=self.rate_w3b, accf=lambda tt, j: ACC + 28*tt + 16 + 4*j, filler=fill, fill_n=self.fill_n)
            self.stamp("w3_mm")
            self.gelu(ACC+16, 12, drip=self.gd3)
            self.gelu(ACC+44, 12, drip=self.gd3)
        self.pack_tiles(ACC, 7)
        self.pack_tiles(ACC+28, 7)
        self.tile_base(ST+4, ttb, 54, H4F)
        self.store_frag(ACC, 7, ST+4, t0, skip_last_sreg=skip)
        I(f"s_add_u32 s{ST+4}, s{ST+4}, {54*1024}")
        self.store_frag(ACC+28, 7, ST+4, t0, skip_last_sreg=skip)
        self.publish_drip(PH_H4)
        self.stamp("h4pub")

    def phase_w4(self):
        I, C = self.I, self.C
        X2, H, ACC, T = self.X2, self.H, self.ACC, self.GT
        rbA, rbB = ST+13, ST+14
        I(f"""
        s_and_b32 s{rbA}, s{S_TT}, 7
        s_lshr_b32 s{rbA}, s{rbA}, 1
        s_and_b32 s{rbB}, s{S_RB}, 30
        s_lshl_b32 s{rbB}, s{rbB}, 2
        s_add_u32 s{rbA}, s{rbA}, s{rbB}
        s_add_u32 s{rbB}, s{rbA}, 4
        """)
        self.phase_entry(PH_H4, [rbA, rbB], 13, self.F_W4, 5, upto=(607 if self.resident else None))
        I(f"s_mul_i32 s{self.S_SRC}, s{S_TT}, {54*1024}\ns_add_u32 s{self.S_SRC}, s{self.S_SRC}, {H4F}")
        aops = [self.a_op(0, s, 16, V_L16, self.S_SRC, 0, self.S_AO, self.SPLIT54, self.V_L8) for s in range(54)]
        self.gemm(54, 5, self.F_W4, aops, [16], burst=self.burst4, rate=self.rate_w4, post_barrier=False, chunk=self.chunk4)
        self.stamp("w4_mm")
        MS = self.WB
        for j in range(5):
            I(f"""
            v_accvgpr_read_b32 v{T+4}, a{self.RAW_GB+2*j}
            v_accvgpr_read_b32 v{T+5}, a{self.RAW_GB+2*j+1}
            v_lshlrev_b32 v{MS+4*j}, 16, v{T+4}
            v_and_b32 v{MS+4*j+1}, 0xffff0000, v{T+4}
            v_lshlrev_b32 v{MS+4*j+2}, 16, v{T+5}
            v_and_b32 v{MS+4*j+3}, 0xffff0000, v{T+5}
            """)
        for i in range(0, 20, 2):
            I(f"v_pk_add_f32 v[{ACC+i}:{ACC+i+1}], v[{ACC+i}:{ACC+i+1}], v[{H+i}:{H+i+1}]")
            I(f"v_pk_fma_f32 v[{ACC+i}:{ACC+i+1}], v[{ACC+i}:{ACC+i+1}], v[{MS+i}:{MS+i+1}], v[{X2+i}:{X2+i+1}]")
        self.srd(S_A, P_OUT, 2048*1280)
        I(f"""
        s_lshl_b32 s{ST}, s{S_TT}, 4
        v_add_u32 v{T+4}, s{ST}, v{V_T}
        v_mul_u32_u24 v{T+4}, 1280, v{T+4}
        v_lshl_add_u32 v{T+4}, v{V_G}, 3, v{T+4}
        s_mul_i32 s{ST}, s{S_M}, 160
        """)
        self.pack_tiles(ACC, 5)
        for j in range(5):
            a = ACC + 2*j
            I(f"buffer_store_dwordx2 v[{a}:{a+1}], v{T+4}, {sr(S_A)}, s{ST} offen offset:{32*j}")
        self.stamp("out")

    def l2_prefetch(self, which, part):
        I = self.I
        T = 246
        rbl = ST + 4
        I(f"v_lshlrev_b32 v{T}, 7, v{V_L}\ns_and_b32 s{rbl}, s{S_RB}, 3")
        if which == "A":
            base, start, chunk, shl = self.S_WA, 96*1024, 6656, 0
        elif which == "3":
            base, start, chunk, shl = self.S_W3, 0, 9216, 1
        else:
            base, start, chunk, shl = self.S_W4, 0, 8704, 0
        I(f"""
        s_lshr_b32 s{ST+5}, s{rbl}, {shl}
        s_lshl_b32 s{ST+5}, s{ST+5}, 2
        s_add_u32 s{ST+5}, s{ST+5}, s{S_WV}
        s_lshl_b32 s{ST+5}, s{ST+5}, 1
        s_add_u32 s{ST+5}, s{ST+5}, {part}
        s_mul_i32 s{ST+5}, s{ST+5}, {chunk}
        s_add_u32 s{ST+5}, s{ST+5}, s{base}
        s_sub_u32 s{ST+5}, s{ST+5}, s{self.S_LW}
        s_add_u32 s{ST+5}, s{ST+5}, {start}
        """)
        if chunk < 8192:
            I(f"v_cmp_gt_u32 vcc, {chunk//128}, v{V_L}\ns_and_saveexec_b64 s[{ST+6}:{ST+7}], vcc")
        I(f"buffer_load_dword a254, v{T}, {sr(S_WS)}, s{ST+5} offen")
        if chunk < 8192:
            I(f"s_mov_b64 exec, s[{ST+6}:{ST+7}]")
        if chunk > 8192:
            I(f"s_add_u32 s{ST+5}, s{ST+5}, 8192\nv_cmp_gt_u32 vcc, {(chunk-8192)//128}, v{V_L}\ns_and_saveexec_b64 s[{ST+6}:{ST+7}], vcc")
            I(f"buffer_load_dword a253, v{T}, {sr(S_WS)}, s{ST+5} offen")
            I(f"s_mov_b64 exec, s[{ST+6}:{ST+7}]")
        return 2 if chunk > 8192 else 1

    def tlb_touch(self):
        I = self.I
        n = (WS_END + (1 << 20) - 1) >> 20
        I(f"""
        v_lshlrev_b32 v245, 20, v{V_L}
        v_cmp_gt_u32 vcc, {n}, v{V_L}
        s_and_saveexec_b64 s[{ST+6}:{ST+7}], vcc
        buffer_load_dword a255, v245, {sr(S_WS)}, 0 offen
        s_mov_b64 exec, s[{ST+6}:{ST+7}]
        """)

    def mall_touch(self, base, nbytes):
        I = self.I
        per_wave = -(-nbytes // 1024 // 128) * 128
        lines = per_wave // 128
        assert lines <= 128
        I(f"""
        v_lshlrev_b32 v245, 7, v{V_L}
        s_lshl_b32 s{ST+5}, s{S_W}, 2
        s_add_u32 s{ST+5}, s{ST+5}, s{S_WV}
        s_mul_i32 s{ST+5}, s{ST+5}, {per_wave}
        s_add_u32 s{ST+5}, s{ST+5}, {base}
        """)
        n0 = min(lines, 64)
        if n0 < 64: I(f"v_cmp_gt_u32 vcc, {n0}, v{V_L}\ns_and_saveexec_b64 s[{ST+6}:{ST+7}], vcc")
        I(f"buffer_load_dword a255, v245, {sr(S_WS)}, s{ST+5} offen")
        if n0 < 64: I(f"s_mov_b64 exec, s[{ST+6}:{ST+7}]")

    def act_touch(self, base, per_tile):
        I = self.I
        per_wave = 16*per_tile // 128
        lines = per_wave // 128
        I(f"""
        v_lshlrev_b32 v245, 7, v{V_L}
        s_lshr_b32 s{ST+5}, s{S_RB}, 2
        s_mul_i32 s{ST+5}, s{ST+5}, {16*per_tile}
        s_and_b32 s{ST+6}, s{S_RB}, 3
        s_lshl_b32 s{ST+6}, s{ST+6}, 3
        s_add_u32 s{ST+6}, s{ST+6}, s{S_M}
        s_lshl_b32 s{ST+6}, s{ST+6}, 2
        s_add_u32 s{ST+6}, s{ST+6}, s{S_WV}
        s_mul_i32 s{ST+6}, s{ST+6}, {per_wave}
        s_add_u32 s{ST+5}, s{ST+5}, s{ST+6}
        s_add_u32 s{ST+5}, s{ST+5}, {base}
        """)
        n0 = min(lines, 64)
        if n0 < 64: I(f"v_cmp_gt_u32 vcc, {n0}, v{V_L}\ns_and_saveexec_b64 s[{ST+6}:{ST+7}], vcc")
        I(f"buffer_load_dword a255, v245, {sr(S_WS)}, s{ST+5} offen")
        if n0 < 64: I(f"s_mov_b64 exec, s[{ST+6}:{ST+7}]")

    def sync_touch(self):
        I = self.I
        l3 = self.b.uid("L_st3"); lj = self.b.uid("L_stj")
        I(f"""
        s_cmp_eq_u32 s{S_WV}, 3
        s_cbranch_scc1 {l3}
        v_lshlrev_b32 v245, 7, v{V_L}
        s_mul_i32 s{ST+5}, s{S_WV}, {STAT_SZ}
        s_lshl_b32 s{ST+6}, s{S_RB}, 13
        s_add_u32 s{ST+5}, s{ST+5}, s{ST+6}
        s_add_u32 s{ST+5}, s{ST+5}, {STAT}
        buffer_load_dword a255, v245, {sr(S_WS)}, s{ST+5} offen
        s_branch {lj}
        {l3}:
        v_lshrrev_b32 v245, 4, v{V_L}
        v_lshlrev_b32 v245, 14, v245
        v_and_b32 v244, 15, v{V_L}
        v_lshl_add_u32 v245, v244, 7, v245
        s_and_b32 s{ST+5}, s{S_RB}, 28
        s_lshl_b32 s{ST+5}, s{ST+5}, 9
        s_add_u32 s{ST+5}, s{ST+5}, {CFLAG + CF_LOC}
        buffer_load_dword a255, v245, {sr(S_WS)}, s{ST+5} offen
        s_add_u32 s{ST+5}, s{ST+5}, {4*CF_PH}
        v_lshlrev_b32 v245, 7, v244
        buffer_load_dword a255, v245, {sr(S_WS)}, s{ST+5} offen
        {lj}:
        """)

    def pf_op(self, which, part):
        n = self.l2_prefetch(which, part)
        for i in range(n): self.vm_issue(("pf",))

    def hook_body(self, hooks, k):
        if self.detail == 1: self.stamp(f"h{k}i")
        hooks[k]()
        if self.detail == 1: self.stamp(f"h{k}o")

    L_KV = 108*1024
    S_INC = 75
    S_SLOW = 77
    def kv_dma(self, g):
        I = self.I
        I(f"""
        s_mul_i32 s{ST+5}, s{S_WV}, {KVT}
        s_add_u32 s{ST+4}, s{ST+5}, {self.L_KV + (4*g % 16)*KVT}
        s_mov_b32 m0, s{ST+4}
        s_add_u32 s{ST+5}, s{ST+5}, {KV + 4*g*KVT}
        buffer_load_dwordx4 v{V_L16}, {sr(S_WS)}, s{ST+5} offen lds
        buffer_load_dwordx4 v{V_L16}, {sr(S_WS)}, s{ST+5} offen offset:1024 lds
        buffer_load_dwordx4 v{V_L16}, {sr(S_WS)}, s{ST+5} offen offset:2048 lds
        s_mov_b64 exec, 0xffff
        buffer_load_dwordx4 v{V_L16}, {sr(S_WS)}, s{ST+5} offen offset:3072 lds
        s_mov_b64 exec, -1
        """)

    L_DUMMY = 104*1024
    L_MODW = 96*1024
    def slot_setup(self, kind, arg=0):
        I = self.I
        DS = self.S_DS
        if kind == "unit":
            I(f"s_add_u32 s{DS}, s{self.S_WA}, {(16*arg-16)*1024 & 0xffffffff}\ns_add_u32 s76, s{self.S_LW}, {(16*arg-16)*1024 & 0xffffffff}\ns_mov_b32 s{self.S_INC}, 16384")
            return
        if kind == "act":
            base, per_tile, part = arg
            per_wave = 16*per_tile // 128
            I(f"""
            s_lshr_b32 s{DS}, s{S_RB}, 2
            s_mul_i32 s{DS}, s{DS}, {16*per_tile}
            s_and_b32 s{ST+6}, s{S_RB}, 3
            s_lshl_b32 s{ST+6}, s{ST+6}, 3
            s_add_u32 s{ST+6}, s{ST+6}, s{S_M}
            s_lshl_b32 s{ST+6}, s{ST+6}, 2
            s_add_u32 s{ST+6}, s{ST+6}, s{S_WV}
            s_mul_i32 s{ST+6}, s{ST+6}, {per_wave}
            s_add_u32 s{DS}, s{DS}, s{ST+6}
            s_add_u32 s{DS}, s{DS}, {base + 4096*part}
            """)
        elif kind == "mod":
            I(f"s_mul_i32 s{DS}, s{S_M}, 320\ns_add_u32 s{DS}, s{DS}, {MODG + (2 + 2*arg)*2560}\ns_mov_b32 s76, {self.L_MODW + 4096*arg}\ns_mov_b32 s{self.S_INC}, 0")
            return
        elif kind == "wsa":
            I(f"""
            s_and_b32 s{ST+6}, s{S_RB}, 3
            s_lshl_b32 s{ST+6}, s{ST+6}, 2
            s_add_u32 s{ST+6}, s{ST+6}, s{S_WV}
            s_mul_i32 s{ST+6}, s{ST+6}, {8*1024}
            s_add_u32 s{DS}, s{self.S_WA}, s{ST+6}
            s_sub_u32 s{DS}, s{DS}, s{self.S_LW}
            s_add_u32 s{DS}, s{DS}, {96*1024 + 4096*arg}
            """)
        else:
            I(f"s_mov_b32 s{DS}, {KV}")
        I(f"s_mov_b32 s76, {self.L_DUMMY}")

    def attn_hooks(self):
        I = self.I
        J = {}
        J[15] = (lambda: self.rl_issue(1), 0)
        def j13():
            I("s_waitcnt vmcnt(16)")
            self.rl_store(0); self.rl_store(1)
            self.sync_touch()
        J[13] = (j13, 1)
        def j11():
            I("s_waitcnt vmcnt(16)")
            self.rl_flag()
        J[11] = (j11, 0)
        def j9(): self.xid_issue(); self.rl_poll_issue()
        J[9] = (j9, 1)
        def j8():
            I("s_waitcnt vmcnt(8)")
            self.xid_eval(); self.rl_poll_eval()
            self.ring_regs()
        J[8] = (j8, 0)
        if self.pfA:
            J[7] = (lambda: self.l2_prefetch("A", 0), 1); J[5] = (lambda: self.l2_prefetch("A", 1), 1)
        if self.pf3:
            J[6] = (lambda: self.l2_prefetch("3", 0), 2); J[4] = (lambda: self.l2_prefetch("3", 1), 2)
        if self.pf4:
            J[3] = (lambda: (self.l2_prefetch("4", 0), self.l2_prefetch("4", 1)), 2)
        SL = {16: ("act", (OF, 20480, 0)), 15: ("act", (L2F, 20480, 0)), 14: ("none", 0), 13: ("act", (H4F, 54*1024, 0)), 11: ("act", (H4F, 54*1024, 1)),
              9: ("none", 0), 8: ("unit", 0), 2: ("mod", 0), 1: ("mod", 1)}
        if not ALIAS: SL[14] = ("act", (GF, 20480, 0)); SL[13] = ("act", (L3F, 20480, 0))
        H = {}
        def mk(k):
            def f():
                if k in J and not self.nojobs: J[k][0]()
                if k in SL: self.slot_setup(*(SL[k] if not self.nojobs else ("none", 0)))
            return f
        for k in range(16, 0, -1):
            if k in J or k in SL: H[k] = mk(k)
        return H

    def ring_state_after_attn(self):
        self.units_issued = 6
        self.units_queued = 6
        self.pend = []
        self.consumed = -1
        self.vmq = []

    def build(self, force_slow=False, force_global=False):
        I = self.I
        self.force_global = force_global
        phases = [self.phase_start, self.phase_kv, self.phase_q, self.phase_kvwait,
                  lambda: self.phase_attn(force_slow), self.phase_wo, self.phase_w1, self.phase_w2, self.phase_w3, self.phase_w4]
        self.prologue()
        for i, p in enumerate(phases):
            if i >= self.stop_after: break
            p()
        if self.dbg_time:
            lab = self.b.uid("L_dt")
            self.srd(S_C, P_DBG, 256)
            I(f"""
            s_and_b32 s{ST}, s{S_W}, 63
            s_cmp_lg_u32 s{ST}, 63
            s_cbranch_scc1 {lab}
            s_cmp_lg_u32 s{S_WV}, 0
            s_cbranch_scc1 {lab}
            s_memrealtime s[{ST+2}:{ST+3}]
            s_lshr_b32 s{ST}, s{S_W}, 6
            s_lshl_b32 s{ST}, s{ST}, 2
            s_add_u32 s{ST}, s{ST}, 32
            s_waitcnt lgkmcnt(0)
            s_sub_u32 s{ST+2}, s{ST+2}, s{S_TAG}
            v_mov_b32 v254, s{ST+2}
            v_mov_b32 v253, s{ST}
            buffer_store_dword v254, v253, {sr(S_C)}, 0 offen sc1
            {lab}:
            """)
        I(f"""
        s_waitcnt vmcnt(0) lgkmcnt(0)
        s_endpgm
        L_fail:
        """)
        self.srd(S_C, P_DBG, 256)
        I(f"""
        v_mov_b32 v254, s{S_ERR}
        v_mov_b32 v255, s{S_W}
        v_mov_b32 v253, 16
        buffer_store_dwordx2 v[254:255], v253, {sr(S_C)}, 0 offen sc1
        s_waitcnt vmcnt(0)
        L_end:
        s_endpgm
        L_code_end:
        """)
        text, n = finalize(self.b, check=not (self.x_nords or self.x_nokv or self.noslot), align=bool(self.align))
        hdr = open("adaLN_cond__grouped_kv_mqa__mixer_s_mlp__prompt.s.ref").read().split("; Override launch")[0]
        lines = [l for l in hdr.strip().split("\n")]
        lines.append(f"; @launch grid=(256,1,1) block=(256,1,1) lds={LDS_SZ}")
        return kernel_file(lines, [(NAME, text, 512, 256, 102)]), n

if __name__ == "__main__":
    import argparse
    ap = argparse.ArgumentParser()
    ap.add_argument("-o", default="adaLN_cond__grouped_kv_mqa__mixer_s_mlp__prompt.s")
    ap.add_argument("--stop", type=int, default=99)
    ap.add_argument("--stamps", action="store_true")
    ap.add_argument("--slow", action="store_true")
    ap.add_argument("--detail", type=int, default=-1)
    ap.add_argument("--cap", type=int, default=99)
    ap.add_argument("--set", action="append", default=[])
    ap.add_argument("--global", dest="glob", action="store_true")
    a = ap.parse_args()
    g = Gen(stop_after=a.stop, stamps=a.stamps)
    g.detail = a.detail
    g.cap_small = a.cap
    for kv in a.set:
        k_, v_ = kv.split('=')
        setattr(g, k_, float(v_) if '.' in v_ else int(v_))
    txt, n = g.build(force_slow=a.slow, force_global=a.glob)
    open(a.o, "w").write(txt)
    print("wrote", a.o, len(txt), "bytes; auto nops:", n, "stamps:", getattr(g, "stamp_names", None))
```

```python
import sys
from common import *

import struct
def f2u(x): return struct.unpack("<I", struct.pack("<f", x))[0]

NAME = "adaLN_cond__grouped_kv_mqa__mixer_s_mlp__prompt_kernel"
MODG   = 0x000000
KVFLAG = 0x004000
RLFLAG = 0x008000
STAT   = 0x020000
STAT_SZ = 32*8*64*16
KV     = 0x100000
KVT    = 3328
OF     = 0x200000
ACT_SZ = 128*20*1024
L2F    = OF + ACT_SZ
import os
ALIAS = os.environ.get('NOALIAS') is None
GF     = OF if ALIAS else L2F + ACT_SZ
L3F    = L2F if ALIAS else L2F + 2*ACT_SZ
H4F    = L2F + 3*ACT_SZ
H4_SZ  = 128*54*1024
WSA    = H4F + H4_SZ
WSA_M  = 304*1024
W3S    = WSA + 8*WSA_M
W3S_M  = 144*1024
W4S    = W3S + 16*W3S_M
W4S_M  = 272*1024
HG     = W4S + 8*W4S_M
XIDG   = HG + 16*20*1024
CFLAG  = XIDG + 4096
CF_LOC = 8*128*128
CF_PH  = 128*128
WS_END = CFLAG + 2*CF_LOC + 64*1024
DBGA   = WS_END
WS_REC = 0x4000000
PH_O, PH_L2, PH_G, PH_L3, PH_H4 = 0, 1, 2, 3, 4

L_WQ   = 0
L_WK   = 102400
L_WM   = 102400
L_SC   = 143360
L_MOD  = 144640
L_QS   = 149760
L_MISC = 161024
LDS_SZ = 163840
L_RL   = 0
L_W    = 0

S_WS = 4
S_A  = 8
S_B  = 12
S_C  = 16
S_TAG = 20
S_WV, S_M, S_RB, S_W = 22, 23, 24, 25
S_T0 = 26
S_TT = 27
S_ERR = 28
S_FAST = 3
P_X, P_WQ, P_WK, P_WV, P_WO, P_BX, P_W1, P_W2, P_W3, P_W4, P_C, P_WM, P_OUT, P_DBG, P_WS = [32 + 2*i for i in range(15)]
ST = 62

def sr(b, n=4): return f"s[{b}:{b+n-1}]"
def vr(b, n=4): return f"v[{b}:{b+n-1}]" if n > 1 else f"v{b}"
def ar(b, n=4): return f"a[{b}:{b+n-1}]" if n > 1 else f"a{b}"

V_L, V_T, V_G, V_L16 = 0, 1, 2, 3

TIMEOUT = 400000

class Gen:
    def __init__(self, stop_after=99, stamps=False):
        self.b = Builder()
        self.stop_after = stop_after
        self.stamps = stamps
        self.nstamp = 0
        self.detail = -1
        self.nojobs = 0
        self.dbg_time = 0
        self.align = 1
        self.x_nobar = 0
        self.x_nokv = 0
        self.x_nords = 0
        self.noslot = 0
        self.in_slow = False
        self.cap_small = 99
        self.burst = 6
        self.rate_small = 1.3
        self.rate_w3 = 3.5
        self.rate_w4 = 1.6
        self.epi_drip = 8
        self.post_drip = 0
        self.fine = 0
        self.wb_early = 0
        self.wb_who = 0
        self.out_sc1 = 0
        self.wq_touch = 1
        self.w3split = 0
        self.rate_w3a = 2.2
        self.rate_w3b = 1.5
        self.fill_n = 2
        self.pfA = 1
        self.pf4 = 0
        self.post_drip2 = 0
        self.post_drip3 = 0
        self.res3 = 0
        self.w4defer = 0
        self.shadow_f = 3
        self.shadow_s = 3
        self.resident = 0
        self.chunk4 = 4
        self.pub_after = 0
        self.visible = -1
        self.epi_drip2 = 6
        self.gd1 = 1
        self.gd3 = 2
        self.burst4 = 10
        self.use_pf = 0
        self.tlb_warm = 0
        self.touch_act = 0
        self.h4t_where = 0
        self.use_mall = 0
        self.pf3 = 0
        self.pub_drip = 0
    def I(self, t): self.b.I(t)
    def C(self, t): self.b.C(t)

    def srd(self, s, ptr, nbytes, add=0):
        if add:
            self.I(f"s_add_u32 s{s}, s{ptr}, {add}\ns_addc_u32 s{s+1}, s{ptr+1}, 0")
        else:
            self.I(f"s_mov_b32 s{s}, s{ptr}\ns_mov_b32 s{s+1}, s{ptr+1}")
        self.I(f"s_mov_b32 s{s+2}, {nbytes}\ns_mov_b32 s{s+3}, 0x20000")

    def stamp(self, name):
        if not self.stamps: return
        k = self.nstamp; self.nstamp += 1
        lab = self.b.uid("L_st")
        self.C(f"stamp {k}: {name}")
        self.I(f"""
        s_cmp_lg_u32 s{S_WV}, 0
        s_cbranch_scc1 {lab}
        s_memrealtime s[100:101]
        s_memtime s[96:97]
        s_lshl_b32 s99, s{S_W}, 11
        s_add_u32 s99, s99, {DBGA + 16*k}
        s_waitcnt lgkmcnt(0)
        v_mov_b32 v252, s100
        v_mov_b32 v253, s101
        v_mov_b32 v254, s96
        v_mov_b32 v255, s97
        v_mov_b32 v251, s99
        buffer_store_dwordx4 v[252:255], v251, {sr(S_WS)}, 0 offen
        s_nop 1
        {lab}:
        """)
        self.stamp_names = getattr(self, "stamp_names", []) + [name]

    def spin_tail(self, cnt, loop, code):
        self.I(f"""
        s_sub_u32 s{cnt}, s{cnt}, 1
        s_cmp_lg_u32 s{cnt}, 0
        s_cbranch_scc1 {loop}
        s_mov_b32 s{S_ERR}, {code}
        s_branch L_fail
        """)

    def get_tag(self):
        lp = self.b.uid("L_tag"); ok = self.b.uid("L_tagok")
        self.srd(S_C, P_DBG, 256)
        self.I(f"""
        s_mov_b32 s{ST}, {TIMEOUT}
        v_mov_b32 v252, 0
        {lp}:
        buffer_load_dwordx2 v[254:255], v252, {sr(S_C)}, 0 offen sc1
        s_waitcnt vmcnt(0)
        v_readfirstlane_b32 s{S_TAG}, v254
        v_readfirstlane_b32 s{S_TAG+1}, v255
        s_cmp_lg_u32 s{S_TAG}, 0
        s_cbranch_scc1 {ok}
        """)
        self.spin_tail(ST, lp, 1)
        self.I(f"{ok}:")

    def reduce_g(self, regs, tmp, op="v_add_f32"):
        for sw in ("v_permlane16_swap_b32", "v_permlane32_swap_b32"):
            for i, r in enumerate(regs):
                self.I(f"v_mov_b32 v{tmp+i}, v{r}")
            for i, r in enumerate(regs):
                self.I(f"{sw} v{r}, v{tmp+i}")
            for i, r in enumerate(regs):
                self.I(f"{op} v{r}, v{r}, v{tmp+i}")

    def prologue(self):
        I = self.I
        I(f"""
        s_cmp_ge_u32 s2, 256
        s_cbranch_scc1 L_end
        s_load_dwordx16 s[32:47], s[0:1], 0
        s_load_dwordx8 s[48:55], s[0:1], 64
        s_load_dwordx4 s[56:59], s[0:1], 96
        s_load_dwordx2 s[60:61], s[0:1], 112
        v_lshrrev_b32 v1, 6, v0
        v_and_b32 v{V_L}, 63, v0
        v_readfirstlane_b32 s{S_WV}, v1
        v_and_b32 v{V_T}, 15, v{V_L}
        v_lshrrev_b32 v{V_G}, 4, v{V_L}
        v_lshlrev_b32 v{V_L16}, 4, v{V_L}
        s_mov_b32 s{S_W}, s2
        s_and_b32 s{ST}, s2, 7
        s_lshr_b32 s{ST+1}, s2, 3
        s_and_b32 s{S_M}, s{ST+1}, 7
        s_lshr_b32 s{ST+1}, s{ST+1}, 3
        s_lshl_b32 s{ST}, s{ST}, 2
        s_add_u32 s{S_RB}, s{ST}, s{ST+1}
        s_lshl_b32 s{S_T0}, s{S_RB}, 6
        s_lshl_b32 s{S_TT}, s{S_RB}, 2
        s_add_u32 s{S_TT}, s{S_TT}, s{S_WV}
        s_mov_b32 s{S_ERR}, 0
        """)
        self.C("request the kernel's own code into this XCD's L2: workgroup j of the 32 in a row group takes lines 16j..16j+15 (wave 0)")
        labc = self.b.uid("L_cp")
        I(f"""
        s_cmp_lg_u32 s{S_WV}, 0
        s_cbranch_scc1 {labc}
        s_getpc_b64 s[{ST+2}:{ST+3}]
        L_pcref:
        s_lshr_b32 s{ST+4}, s2, 3
        s_lshl_b32 s{ST+4}, s{ST+4}, 11                       ; 16 lines * 128 B
        v_lshlrev_b32 v4, 7, v{V_L}
        v_add_u32 v4, s{ST+4}, v4
        v_cmp_gt_u32 vcc, L_code_end-L_pcref-4, v4
        s_and_b64 vcc, vcc, 0xffff
        s_and_saveexec_b64 s[{ST+4}:{ST+5}], vcc
        s_cbranch_execz {labc}_x
        global_load_dword a252, v4, s[{ST+2}:{ST+3}]
        {labc}_x:
        s_mov_b64 exec, s[{ST+4}:{ST+5}]
        {labc}:
        s_waitcnt lgkmcnt(0)
        """)
        self.srd(S_WS, P_WS, WS_REC)
        lab = self.b.uid("L_non")
        self.srd(S_C, P_DBG, 256)
        I(f"""
        s_lshl_b32 s{ST}, s2, 2
        s_add_u32 s{ST}, s{ST}, s{S_WV}
        s_cmp_lg_u32 s{ST}, 0
        s_cbranch_scc1 {lab}
        s_memrealtime s[{S_TAG}:{S_TAG+1}]
        s_waitcnt lgkmcnt(0)
        s_or_b32 s{S_TAG}, s{S_TAG}, 1
        v_mov_b32 v254, s{S_TAG}
        v_mov_b32 v255, s{S_TAG+1}
        v_mov_b32 v252, 0
        s_mov_b64 exec, 1
        buffer_store_dwordx2 v[254:255], v252, {sr(S_C)}, 0 offen sc1
        s_mov_b64 exec, -1
        {lab}:
        """)
        self.stamp("start")

    XF = 4
    XH = 84
    TMP = 244

    def tag_issue(self):
        self.srd(S_C, P_DBG, 256)
        self.I(f"v_mov_b32 v241, 0\nbuffer_load_dwordx2 v[242:243], v241, {sr(S_C)}, 0 offen sc1")

    def tag_eval(self):
        I = self.I
        lp = self.b.uid("L_tag"); ok = self.b.uid("L_tagok")
        I(f"""
        s_mov_b32 s{ST}, {TIMEOUT}
        {lp}:
        v_readfirstlane_b32 s{S_TAG}, v242
        v_readfirstlane_b32 s{S_TAG+1}, v243
        s_cmp_lg_u32 s{S_TAG}, 0
        s_cbranch_scc1 {ok}
        """)
        self.tag_issue()
        I("s_waitcnt vmcnt(0)")
        self.spin_tail(ST, lp, 1)
        I(f"{ok}:")

    S_PROD2 = 80
    S_PROD, S_P = 80, 81

    LWM, LSC, LMI = L_WM, L_SC, L_MISC + 64
    def mod_dma(self, cdst=None):
        I = self.I
        TMP = self.MT
        self.srd(S_B, P_C, 1280)
        I(f"""
        s_mul_i32 s{ST+4}, s{S_WV}, 320
        v_lshlrev_b32 v{TMP+2}, 3, v{V_L}
        buffer_load_dwordx2 {cdst or f'v[{TMP+4}:{TMP+5}]'}, v{TMP+2}, {sr(S_B)}, s{ST+4} offen
        """)
        self.srd(S_A, P_WM, 640*7680)
        I(f"""
        v_lshrrev_b32 v{TMP}, 2, v{V_L}
        v_mul_u32_u24 v{TMP}, 7680, v{TMP}
        v_and_b32 v{TMP+1}, 3, v{V_L}
        v_lshl_add_u32 v{TMP}, v{TMP+1}, 4, v{TMP}
        s_mul_i32 s{ST+1}, s{S_WV}, {160*7680}
        s_lshl_b32 s{ST+2}, s{self.S_P}, 6                   ; p*64 bytes
        s_add_u32 s{ST+1}, s{ST+1}, s{ST+2}
        s_mul_i32 s{ST+3}, s{S_WV}, {160*64}
        s_add_u32 s{ST+3}, s{ST+3}, {self.LWM}
        """)
        for i in range(10):
            I(f"""
            s_mov_b32 m0, s{ST+3}
            s_add_u32 s{ST+3}, s{ST+3}, 1024
            buffer_load_dwordx4 v{TMP}, {sr(S_A)}, s{ST+1} offen lds
            s_add_u32 s{ST+1}, s{ST+1}, {16*7680}
            """)

    MT2 = 244
    MT3 = 228
    MT = 228
    def mod_gemv(self, W, wait_c, wait_w, wait_tag, BBr=None):
        I = self.I
        TMP = self.MT
        T = TMP + 4
        I(f"""
        s_waitcnt vmcnt({wait_c})
        v_lshlrev_b32 v{TMP+6}, 16, v{T}
        v_and_b32 v{TMP+7}, 0xffff0000, v{T}
        v_lshlrev_b32 v{TMP+8}, 16, v{T+1}
        v_and_b32 v{TMP+9}, 0xffff0000, v{T+1}
        """)
        for i in range(4):
            r = TMP + 6 + i
            I(f"""
            v_mul_f32 v{TMP+3}, 0xbfb8aa3b, v{r}
            v_exp_f32 v{TMP+3}, v{TMP+3}
            v_add_f32 v{TMP+3}, 1.0, v{TMP+3}
            v_rcp_f32 v{TMP+3}, v{TMP+3}
            v_mul_f32 v{r}, v{r}, v{TMP+3}
            """)
        va, vb, WA, BB, ACC = W, W+1, W+4, W+44, W+64
        if BBr is not None: BB, ACC = BBr, W+44
        I(f"""
        v_cvt_pk_bf16_f32 v{T}, v{TMP+6}, v{TMP+7}
        v_cvt_pk_bf16_f32 v{T+1}, v{TMP+8}, v{TMP+9}
        s_mul_i32 s{ST+4}, s{S_WV}, 320
        s_add_u32 s{ST+4}, s{ST+4}, {self.LSC}
        v_lshlrev_b32 v{TMP+2}, 3, v{V_L}
        v_add_u32 v{TMP+2}, s{ST+4}, v{TMP+2}
        s_mov_b32 exec_hi, 0xff
        ds_write_b64 v{TMP+2}, v[{T}:{T+1}]
        s_mov_b32 exec_hi, -1
        v_lshrrev_b32 v{va}, 2, v{V_T}
        v_lshl_add_u32 v{va}, v{V_G}, 2, v{va}
        v_lshlrev_b32 v{va}, 6, v{va}                       ; 64*(4g+(i>>2))
        v_and_b32 v{vb}, 3, v{V_T}
        v_lshl_add_u32 v{va}, v{vb}, 3, v{va}
        s_mul_i32 s{ST}, s{S_WV}, {160*64}
        s_add_u32 s{ST}, s{ST}, {self.LWM}
        v_add_u32 v{va}, s{ST}, v{va}
        v_lshlrev_b32 v{vb}, 3, v{V_G}
        v_add_u32 v{vb}, s{ST+4}, v{vb}
        s_waitcnt vmcnt({wait_w}) lgkmcnt(0)
        """)
        for s_ in range(5):
            I(f"ds_read_b64 v[{BB+4*s_}:{BB+4*s_+1}], v{vb} offset:{64*s_}\nds_read_b64 v[{BB+4*s_+2}:{BB+4*s_+3}], v{vb} offset:{64*s_+32}")
        for s_ in range(5):
            for tl in range(2):
                W_ = WA + 8*s_ + 4*tl
                I(f"ds_read_b64_tr_b16 v[{W_}:{W_+1}], v{va} offset:{2048*s_+32*tl}\nds_read_b64_tr_b16 v[{W_+2}:{W_+3}], v{va} offset:{2048*s_+32*tl+1024}")
        I("s_waitcnt lgkmcnt(0)")
        for s_ in range(5):
            for tl in range(2):
                I(f"v_mfma_f32_16x16x32_bf16 {vr(ACC+4*tl)}, {vr(WA+8*s_+4*tl)}, {vr(BB+4*s_)}, {'0' if s_ == 0 else vr(ACC+4*tl)}")
        I(f"""
        s_lshl_b32 s{ST}, s{S_WV}, 7
        s_add_u32 s{ST}, s{ST}, {self.LMI}
        v_lshlrev_b32 v{va}, 4, v{V_G}
        v_add_u32 v{va}, s{ST}, v{va}
        v_cmp_eq_u32 vcc, 0, v{V_T}
        s_and_saveexec_b64 s[{ST+4}:{ST+5}], vcc
        ds_write_b128 v{va}, {vr(ACC)}
        ds_write_b128 v{va}, {vr(ACC+4)} offset:64
        s_mov_b64 exec, s[{ST+4}:{ST+5}]
        s_waitcnt lgkmcnt(0)
        s_barrier
        """)
        lab_gd = self.b.uid("L_gd")
        I(f"s_cmp_lg_u32 s{S_WV}, 0\ns_cbranch_scc1 {lab_gd}")
        I(f"""
        v_lshlrev_b32 v{va}, 4, v{V_L}
        v_and_b32 v{va}, 0x7f, v{va}
        v_add_u32 v{va}, {self.LMI}, v{va}
        ds_read_b128 {vr(WA)}, v{va}
        ds_read_b128 {vr(WA+4)}, v{va} offset:128
        ds_read_b128 {vr(WA+8)}, v{va} offset:256
        ds_read_b128 {vr(WA+12)}, v{va} offset:384
        """)
        if wait_tag is not None:
            I(f"s_waitcnt vmcnt({wait_tag})")
            self.tag_eval()
        I("s_waitcnt lgkmcnt(0)")
        for r in range(4):
            I(f"v_add_f32 v{WA+r}, v{WA+r}, v{WA+4+r}\nv_add_f32 v{WA+8+r}, v{WA+8+r}, v{WA+12+r}\nv_add_f32 v{WA+r}, v{WA+r}, v{WA+8+r}")
        I(f"""
        v_cvt_pk_bf16_f32 v{ACC+4}, v{WA}, v{WA+1}
        v_cvt_pk_bf16_f32 v{ACC+5}, v{WA+2}, v{WA+3}
        v_mov_b32 v{ACC+6}, s{S_TAG}
        v_mov_b32 v{ACC+7}, s{S_TAG+1}
        s_lshl_b32 s{ST}, s{self.S_P}, 7                     ; p*8 granules*16 B
        s_mov_b64 exec, 0xff
        buffer_store_dwordx4 {vr(ACC+4)}, v{V_L16}, {sr(S_WS)}, s{ST} offen offset:{MODG} sc1
        s_mov_b64 exec, -1
        {lab_gd}:
        """)

    def line_touch(self, srd, voff, soff, nl):
        I = self.I
        if nl < 64: I(f"v_cmp_gt_u32 vcc, {nl}, v{V_L}\ns_and_saveexec_b64 s[{ST+6}:{ST+7}], vcc")
        I(f"buffer_load_dword a255, v{voff}, {sr(srd)}, s{soff} offen")
        if nl < 64: I(f"s_mov_b64 exec, s[{ST+6}:{ST+7}]")

    def wq_ops(self):
        I = self.I
        V = 239
        so, lo = ST+12, ST+13
        self.srd(S_A, P_WQ, 640*1280)
        I(f"""
        v_mul_u32_u24 v{V}, 205, v{V_L}
        v_lshrrev_b32 v{V}, 11, v{V}
        v_mul_u32_u24 v{V-1}, 10, v{V}
        v_sub_u32 v{V-1}, v{V_L}, v{V-1}
        v_mul_u32_u24 v{V}, 1280, v{V}
        v_lshl_add_u32 v{V}, v{V-1}, 4, v{V}
        s_mul_i32 s{so}, s{S_M}, 160
        s_mul_i32 s{lo}, s{S_WV}, {6*1280}
        s_add_u32 s{so}, s{so}, s{lo}
        s_mul_i32 s{lo}, s{S_WV}, 960
        """)
        ops = []
        def mk(i):
            def f():
                if i == 26:
                    lab = self.b.uid("L_wq")
                    I(f"""
                    s_cmp_ge_u32 s{S_WV}, 3
                    s_cbranch_scc1 {lab}
                    s_cmp_eq_u32 s{S_WV}, 2
                    s_mov_b32 s{ST+14}, 0x0fffffff
                    s_cselect_b32 exec_hi, 0xff, s{ST+14}
                    s_mov_b32 m0, s{lo}
                    s_nop 0
                    buffer_load_dwordx4 v{V}, {sr(S_A)}, s{so} offen lds
                    s_mov_b32 exec_hi, -1
                    {lab}:
                    """)
                elif i == 25:
                    I(f"""
                    s_mov_b32 m0, s{lo}
                    s_add_u32 s{lo}, s{lo}, 3840
                    buffer_load_dwordx4 v{V}, {sr(S_A)}, s{so} offen lds
                    s_add_u32 s{so}, s{so}, {24*1280}
                    """)
                else:
                    I(f"""
                    s_mov_b32 m0, s{lo}
                    s_add_u32 s{lo}, s{lo}, 3840
                    buffer_load_dwordx4 v{V}, {sr(S_A)}, s{so} offen lds
                    s_add_u32 s{so}, s{so}, {24*1280}
                    """)
            return f
        return [mk(i) for i in range(27)]

    def phase_start(self):
        I, C = self.I, self.C
        XF, XH, TMP = self.XF, self.XH, self.TMP
        PR, P = self.S_PROD, self.S_P
        C("---- mod producers: members 2..5; column pair P = x + 8k (k = 2*rbl + (m-2)/2) < 60, block p = 2P + (m-2)%2; P < 20 is critical")
        I(f"""
        s_sub_u32 s{ST}, s{S_M}, 2                           ; m-2
        s_and_b32 s{ST+1}, s{S_RB}, 3
        s_lshl_b32 s{ST+1}, s{ST+1}, 1
        s_lshr_b32 s{ST+2}, s{ST}, 1
        s_add_u32 s{ST+1}, s{ST+1}, s{ST+2}
        s_lshl_b32 s{ST+1}, s{ST+1}, 3
        s_lshr_b32 s{ST+2}, s{S_RB}, 2
        s_add_u32 s{ST+1}, s{ST+1}, s{ST+2}                  ; P
        s_lshl_b32 s{P}, s{ST+1}, 1
        s_and_b32 s{ST+2}, s{ST}, 1
        s_add_u32 s{P}, s{P}, s{ST+2}
        s_cmp_lt_u32 s{ST+1}, 20
        s_cselect_b32 s{PR}, 1, 2
        s_cmp_lt_u32 s{ST+1}, 60
        s_cselect_b32 s{PR}, s{PR}, 0
        s_cmp_lt_u32 s{ST}, 4
        s_cselect_b32 s{PR}, s{PR}, 0
        """)
        C("every workgroup requests 1/32 of the critical w_mod lines of its row group: 3 column pairs x 640 rows = 1920 lines, 60 per workgroup (15 per wave)")
        self.srd(S_A, P_WM, 640*7680)
        I(f"""
        s_and_b32 s{ST}, s{S_RB}, 3
        s_lshl_b32 s{ST}, s{ST}, 3
        s_add_u32 s{ST}, s{ST}, s{S_M}
        s_lshl_b32 s{ST}, s{ST}, 2
        s_add_u32 s{ST}, s{ST}, s{S_WV}
        s_mul_i32 s{ST}, s{ST}, 15
        v_add_u32 v{XH}, s{ST}, v{V_L}
        v_mul_u32_u24 v{XH+1}, 6554, v{XH}
        v_lshrrev_b32 v{XH+1}, 22, v{XH+1}                   ; /640
        v_mul_u32_u24 v{XH+2}, 640, v{XH+1}
        v_sub_u32 v{XH+2}, v{XH}, v{XH+2}                    ; row
        v_mul_u32_u24 v{XH+2}, 7680, v{XH+2}
        v_lshlrev_b32 v{XH+1}, 10, v{XH+1}
        v_add_u32 v{XH+2}, v{XH+2}, v{XH+1}
        s_lshr_b32 s{ST}, s{S_RB}, 2
        s_lshl_b32 s{ST}, s{ST}, 7                           ; x * 128 B
        """)
        self.line_touch(S_A, XH+2, ST, 15)
        self.srd(S_C, P_X, 2048*1280)
        XO = XH
        I(f"""
        v_lshlrev_b32 v{XO+6}, 7, v{V_L}
        s_lshl_b32 s{ST}, s{S_M}, 2
        s_add_u32 s{ST}, s{ST}, s{S_WV}
        s_mul_i32 s{ST}, s{ST}, 2560
        s_mul_i32 s{ST+1}, s{S_RB}, {64*1280}
        s_add_u32 s{ST}, s{ST}, s{ST+1}
        """)
        lab_np = self.b.uid("L_np"); lab_j = self.b.uid("L_npj")
        I(f"s_cmp_lg_u32 s{PR}, 1\ns_cbranch_scc1 {lab_np}")
        I(f"s_mov_b32 s{ST+14}, s{ST}")
        self.mod_dma()
        self.line_touch(S_C, XO+6, ST+14, 20)
        self.tag_issue()
        self.mod_gemv(XH+8, 12, 2, 0)
        self.srd(S_C, P_X, 2048*1280)
        I(f"s_branch {lab_j}\n{lab_np}:")
        self.line_touch(S_C, XO+6, ST, 20)
        self.tag_issue()
        self.srd(S_C, P_X, 2048*1280)
        I(f"{lab_j}:")
        self.stamp("modpub")
        C("x: the wave's rows -> LDS, 16-byte chunks XOR-swizzled by the row")
        I(f"s_lshl_b32 s{ST}, s{S_TT}, 4")
        for qq in range(4):
            I(f"""
            v_add_u32 v{XO+4}, {4*qq}, v{V_G}                      ; row
            v_xor_b32 v{XO+5}, v{XO+4}, v{V_T}
            v_add_u32 v{XO+4}, s{ST}, v{XO+4}
            v_mul_u32_u24 v{XO+4}, 1280, v{XO+4}
            v_lshl_add_u32 v{XO+qq}, v{XO+5}, 4, v{XO+4}
            """)
        I(f"s_mul_i32 s{ST+1}, s{S_WV}, 20480")
        for G in range(5):
            I(f"s_mov_b32 s{ST+2}, {256*G}")
            for qq in range(4):
                I(f"s_mov_b32 m0, s{ST+1}\ns_add_u32 s{ST+1}, s{ST+1}, 1024\nbuffer_load_dwordx4 v{XO+qq}, {sr(S_C)}, s{ST+2} offen lds")
        lab_nk = self.b.uid("L_nk")
        I(f"""
        s_cmp_ge_u32 s{S_M}, 2
        s_cbranch_scc1 {lab_nk}
        s_cmp_eq_u32 s{S_M}, 0
        s_cselect_b32 s{S_A}, s{P_WK}, s{P_WV}
        s_cselect_b32 s{S_A+1}, s{P_WK+1}, s{P_WV+1}
        s_mov_b32 s{S_A+2}, 25600
        s_mov_b32 s{S_A+3}, 0x20000
        s_mul_i32 s{ST}, s{S_WV}, 7168
        s_add_u32 s{ST+1}, s{ST}, {L_WK}
        """)
        for i in range(7):
            I(f"""
            s_mov_b32 m0, s{ST+1}
            s_add_u32 s{ST+1}, s{ST+1}, 1024
            buffer_load_dwordx4 v{V_L16}, {sr(S_A)}, s{ST} offen lds
            s_add_u32 s{ST}, s{ST}, 1024
            """)
        I(f"{lab_nk}:")
        if self.wq_touch == 1:
            C("wq: request this workgroup's 1/32 of the matrix (200 lines, 50 per wave)")
            self.srd(S_B, P_WQ, 640*1280)
            I(f"""
            s_and_b32 s{ST}, s{S_RB}, 3
            s_lshl_b32 s{ST}, s{ST}, 3
            s_add_u32 s{ST}, s{ST}, s{S_M}
            s_lshl_b32 s{ST}, s{ST}, 2
            s_add_u32 s{ST}, s{ST}, s{S_WV}
            s_mul_i32 s{ST}, s{ST}, 6400
            """)
            self.line_touch(S_B, XO+6, ST, 50)
        else:
            I(f"v_mov_b32 v{XO+7}, 0\nbuffer_load_dword a255, v{XO+7}, {sr(S_C)}, 0 offen")
        self.stamp("issued")
        C("x fragments: lane (t,g): k = 32s+4g (+16)")
        AD = XH + 8
        I(f"""
        s_mul_i32 s{ST}, s{S_WV}, 20480
        v_lshlrev_b32 v{TMP}, 8, v{V_T}
        v_add_u32 v{TMP}, s{ST}, v{TMP}
        v_and_b32 v{TMP+1}, 1, v{V_G}
        v_lshl_add_u32 v{TMP}, v{TMP+1}, 3, v{TMP}            ; + 8*(g&1)
        v_lshrrev_b32 v{TMP+1}, 1, v{V_G}                     ; g>>1
        """)
        for a_ in range(4):
            for e in range(2):
                I(f"""
                v_add_u32 v{TMP+2}, {4*a_+2*e}, v{TMP+1}
                v_xor_b32 v{TMP+2}, v{TMP+2}, v{V_T}
                v_lshl_add_u32 v{AD+2*a_+e}, v{TMP+2}, 4, v{TMP}
                """)
        RS_ = XH + 16
        I(f"s_mul_i32 s{ST+1}, s{S_M}, 10")
        for j in range(5):
            I(f"""
            s_add_u32 s{ST+2}, s{ST+1}, {2*j}
            v_add_u32 v{TMP+2}, s{ST+2}, v{TMP+1}
            v_lshrrev_b32 v{TMP+3}, 4, v{TMP+2}
            v_and_b32 v{TMP+2}, 15, v{TMP+2}
            v_xor_b32 v{TMP+2}, v{TMP+2}, v{V_T}
            v_lshl_add_u32 v{TMP+2}, v{TMP+2}, 4, v{TMP}
            v_lshl_add_u32 v{RS_+j}, v{TMP+3}, 12, v{TMP+2}
            """)
        lw1 = self.b.uid("L_xw"); lwj = self.b.uid("L_xw")
        I(f"""
        s_cmp_lt_u32 s{S_M}, 2
        s_cbranch_scc1 {lw1}
        s_waitcnt vmcnt(1)
        s_branch {lwj}
        {lw1}:
        s_waitcnt vmcnt(8)
        {lwj}:
        """)
        for s_ in range(20):
            for e in range(2):
                I(f"ds_read_b64 v[{XF+4*s_+2*e}:{XF+4*s_+2*e+1}], v{AD+2*(s_&3)+e} offset:{4096*(s_>>2)}")
        for j in range(5):
            I(f"ds_read_b64 v[{XH+24+2*j}:{XH+25+2*j}], v{RS_+j}")
        self.tag_eval()
        I("s_waitcnt lgkmcnt(0)")
        for j in range(10): I(f"v_accvgpr_write_b32 a{j}, v{XH+24+j}")
        I("s_barrier")
        if self.wq_touch == 2:
            self.srd(S_B, P_WQ, 640*1280)
            I(f"""
            v_lshlrev_b32 v{XH+6}, 7, v{V_L}
            s_and_b32 s{ST}, s{S_RB}, 3
            s_lshl_b32 s{ST}, s{ST}, 3
            s_add_u32 s{ST}, s{ST}, s{S_M}
            s_lshl_b32 s{ST}, s{ST}, 2
            s_add_u32 s{ST}, s{ST}, s{S_WV}
            s_mul_i32 s{ST}, s{ST}, 6400
            """)
            self.line_touch(S_B, XH+6, ST, 50)
        wq = self.wq_ops()
        self.stamp("xfrag")
        C("LN1 stats: sum via ones-MFMA, sumsq via Gram diagonal")
        ONES, D1, D2 = TMP, TMP+4, TMP+8
        for i in range(4): I(f"v_mov_b32 v{ONES+i}, 0x3f803f80")
        for s in range(20):
            I(f"v_mfma_f32_16x16x32_bf16 {vr(D1)}, {vr(ONES)}, {vr(XF+4*s)}, {'0' if s == 0 else vr(D1)}")
            I(f"v_mfma_f32_16x16x32_bf16 {vr(D2)}, {vr(XF+4*s)}, {vr(XF+4*s)}, {'0' if s == 0 else vr(D2)}")
            if s % 2 == 0 and wq: wq.pop(0)()
        MU, RS, T1, T2 = XH, XH+1, XH+2, XH+3
        I(f"""
        v_and_b32 v{T1}, 3, v{V_T}
        v_cmp_eq_u32 vcc, 1, v{T1}
        v_cndmask_b32 v{T2}, v{D2}, v{D2+1}, vcc
        v_cmp_eq_u32 vcc, 2, v{T1}
        v_cndmask_b32 v{T2}, v{T2}, v{D2+2}, vcc
        v_cmp_eq_u32 vcc, 3, v{T1}
        v_cndmask_b32 v{T2}, v{T2}, v{D2+3}, vcc
        v_lshrrev_b32 v{T1}, 2, v{V_T}
        v_lshl_add_u32 v{T1}, v{T1}, 4, v{V_T}
        v_lshlrev_b32 v{T1}, 2, v{T1}
        ds_bpermute_b32 v{T2}, v{T1}, v{T2}
        v_mul_f32 v{MU}, {1.0/640!r}, v{D1}
        s_waitcnt lgkmcnt(0)
        v_mul_f32 v{T2}, {1.0/640!r}, v{T2}
        v_fma_f32 v{T2}, -v{MU}, v{MU}, v{T2}
        v_max_f32 v{T2}, 0, v{T2}
        v_add_f32 v{T2}, 0x3727c5ac, v{T2}
        v_rsq_f32 v{RS}, v{T2}
        s_nop 0
        v_mul_f32 v{MU}, v{MU}, v{RS}
        v_sub_f32 v{TMP}, 0, v{MU}                           ; -mu*rstd
        v_mov_b32 v{TMP+1}, v{TMP}
        v_mov_b32 v{TMP+2}, v{RS}
        v_mov_b32 v{TMP+3}, v{RS}
        """)
        C("xhat = x*rstd - mu*rstd (fp32)")
        for s in range(20):
            for q in range(4):
                src = XF + 4*s + q
                d = XH + 8*s + 2*q
                if d + 1 >= 238 and False: pass
                I(f"v_lshlrev_b32 v{d}, 16, v{src}\nv_and_b32 v{d+1}, 0xffff0000, v{src}")
            for q in range(4):
                d = XH + 8*s + 2*q
                I(f"v_pk_fma_f32 v[{d}:{d+1}], v[{d}:{d+1}], v[{TMP+2}:{TMP+3}], v[{TMP}:{TMP+1}]")
            if s < 17 and wq: wq.pop(0)()
        assert not wq
        self.stamp("xhat")
        G0 = TMP+4
        lp = self.b.uid("L_mp"); ok = self.b.uid("L_mpok")
        I(f"""
        s_mul_i32 s{ST+1}, s{S_WV}, {80*16}
        v_add_u32 v{TMP+2}, s{ST+1}, v{V_L16}
        v_add_u32 v{TMP+3}, 1024, v{TMP+2}
        v_cmp_gt_u32 vcc, 16, v{V_L}
        v_cndmask_b32 v{TMP+3}, v{TMP+2}, v{TMP+3}, vcc
        s_mov_b32 s{ST}, {TIMEOUT}
        {lp}:
        buffer_load_dwordx4 {vr(G0)}, v{TMP+2}, {sr(S_WS)}, 0 offen offset:{MODG} sc1
        buffer_load_dwordx4 {vr(G0+4)}, v{TMP+3}, {sr(S_WS)}, 0 offen offset:{MODG} sc1
        s_waitcnt vmcnt(0)
        v_cmp_ne_u32 vcc, s{S_TAG}, v{G0+2}
        s_mov_b64 s[{ST+2}:{ST+3}], vcc
        v_cmp_ne_u32 vcc, s{S_TAG+1}, v{G0+3}
        s_or_b64 s[{ST+2}:{ST+3}], s[{ST+2}:{ST+3}], vcc
        v_cmp_ne_u32 vcc, s{S_TAG}, v{G0+6}
        s_or_b64 s[{ST+2}:{ST+3}], s[{ST+2}:{ST+3}], vcc
        v_cmp_ne_u32 vcc, s{S_TAG+1}, v{G0+7}
        s_or_b64 s[{ST+2}:{ST+3}], s[{ST+2}:{ST+3}], vcc
        s_cmp_eq_u64 s[{ST+2}:{ST+3}], 0
        s_cbranch_scc1 {ok}
        """)
        self.spin_tail(ST, lp, 2)
        I(f"{ok}:")
        for blk, av in ((G0, TMP+2), (G0+4, TMP+3)):
            I(f"""
            v_and_b32 v{blk+3}, 0xffff0000, v{blk+1}
            v_lshlrev_b32 v{blk+2}, 16, v{blk+1}
            v_and_b32 v{blk+1}, 0xffff0000, v{blk}
            v_lshlrev_b32 v{blk}, 16, v{blk}
            """)
        lab_a = self.b.uid("L_a")
        I(f"s_cmp_lt_u32 s{S_WV}, 2\ns_cbranch_scc1 {lab_a}")
        for blk in (G0, G0+4):
            for q in range(4): I(f"v_add_f32 v{blk+q}, 1.0, v{blk+q}")
            I(f"""
            v_cvt_pk_bf16_f32 v{blk}, v{blk}, v{blk+1}
            v_cvt_pk_bf16_f32 v{blk+2}, v{blk+2}, v{blk+3}
            v_and_b32 v{blk+1}, 0xffff0000, v{blk}
            v_lshlrev_b32 v{blk}, 16, v{blk}
            v_and_b32 v{blk+3}, 0xffff0000, v{blk+2}
            v_lshlrev_b32 v{blk+2}, 16, v{blk+2}
            """)
        I(f"""
        {lab_a}:
        v_add_u32 v{TMP+2}, {L_MOD}, v{TMP+2}
        v_add_u32 v{TMP+3}, {L_MOD}, v{TMP+3}
        ds_write_b128 v{TMP+2}, {vr(G0)}
        ds_write_b128 v{TMP+3}, {vr(G0+4)}
        s_waitcnt lgkmcnt(0)
        s_barrier
        """)
        self.stamp("modgot")
        C("h1 = xhat*A + B -> bf16 fragments (overwrites XF).  all DMAs (wq, wk) were waited by vmcnt(0) above, barrier publishes them")
        va = TMP
        I(f"v_lshlrev_b32 v{va}, 4, v{V_G}\nv_add_u32 v{va}, {L_MOD}, v{va}")
        def buf(s): return (XF + 48 + 16*(s & 1)) if s < 12 else (XH + 16*(s & 1))
        def rd(s):
            B_ = buf(s)
            for hf in range(2):
                I(f"ds_read_b128 {vr(B_+4*hf)}, v{va} offset:{2560 + 128*s + 64*hf}")
                I(f"ds_read_b128 {vr(B_+8+4*hf)}, v{va} offset:{128*s + 64*hf}")
        rd(0)
        for s in range(20):
            if s + 1 < 20: rd(s+1)
            I(f"s_waitcnt lgkmcnt({4 if s + 1 < 20 else 0})")
            B_ = buf(s)
            for q in range(4):
                d = XH + 8*s + 2*q
                I(f"v_pk_fma_f32 v[{d}:{d+1}], v[{d}:{d+1}], v[{B_+2*q}:{B_+2*q+1}], v[{B_+8+2*q}:{B_+8+2*q+1}]")
            for q in range(4):
                d = XH + 8*s + 2*q
                I(f"v_cvt_pk_bf16_f32 v{XF+4*s+q}, v{d}, v{d+1}")
        labd = self.b.uid("L_dg")
        I(f"s_cmp_lg_u32 s{self.S_PROD}, 2\ns_cbranch_scc1 {labd}")
        self.MT = self.MT3
        self.mod_dma(cdst="a[250:251]")
        I(f"{labd}:")
        self.stamp("h1")

    def phase_kv(self):
        I, C = self.I, self.C
        XF, XH = self.XF, self.XH
        lab_end = self.b.uid("L_kvend"); lab_v = self.b.uid("L_v"); lab_pub = self.b.uid("L_kvpub")
        va, vb, W0, ACC0, ACC1, T = XH, XH+1, XH+4, XH+24, XH+28, XH+32
        I(f"""
        s_cmp_ge_u32 s{S_M}, 2
        s_cbranch_scc1 {lab_end}
        v_lshrrev_b32 v{va}, 2, v{V_T}
        v_lshl_add_u32 v{va}, v{V_G}, 2, v{va}
        v_mul_u32_u24 v{va}, 40, v{va}
        v_and_b32 v{vb}, 3, v{V_T}
        v_lshl_add_u32 v{va}, v{vb}, 3, v{va}
        v_add_u32 v{va}, {L_WK}, v{va}
        s_cmp_eq_u32 s{S_M}, 1
        s_cbranch_scc1 {lab_v}
        """)
        def loop(isv):
            WK = XH + 48
            def rd(s):
                o = WK + (s % 4)*8
                I(f"""
                ds_read_b64_tr_b16 v[{o}:{o+1}], v{va} offset:{1280*s}
                ds_read_b64_tr_b16 v[{o+2}:{o+3}], v{va} offset:{1280*s+640}
                ds_read_b64_tr_b16 v[{o+4}:{o+5}], v{va} offset:{1280*s+32}
                ds_read_b64_tr_b16 v[{o+6}:{o+7}], v{va} offset:{1280*s+672}
                """)
            for s in range(3): rd(s)
            for s in range(20):
                if s + 3 < 20: rd(s+3)
                I(f"s_waitcnt lgkmcnt({4*min(3, 19-s)})")
                o2 = WK + (s % 4)*8
                for tl, acc in ((0, ACC0), (1, ACC1)):
                    w = vr(o2+4*tl); x = vr(XF+4*s)
                    c = '0' if s == 0 else vr(acc)
                    if isv: I(f"v_mfma_f32_16x16x32_bf16 {vr(acc)}, {x}, {w}, {c}")
                    else:   I(f"v_mfma_f32_16x16x32_bf16 {vr(acc)}, {w}, {x}, {c}")
        C("K: D[dim 4g+r][token t]")
        loop(False)
        I(f"""
        v_mul_f32 v{T}, v{ACC0}, v{ACC0}
        v_fmac_f32 v{T}, v{ACC0+1}, v{ACC0+1}
        v_fmac_f32 v{T}, v{ACC0+2}, v{ACC0+2}
        v_fmac_f32 v{T}, v{ACC0+3}, v{ACC0+3}
        v_mul_f32 v{T+1}, v{ACC1}, v{ACC1}
        v_fmac_f32 v{T+1}, v{ACC1+1}, v{ACC1+1}
        v_fmac_f32 v{T+1}, v{ACC1+2}, v{ACC1+2}
        v_fmac_f32 v{T+1}, v{ACC1+3}, v{ACC1+3}
        v_cmp_eq_u32 vcc, 0, v{V_G}
        v_cndmask_b32 v{T+1}, 0, v{T+1}, vcc
        v_add_f32 v{T}, v{T}, v{T+1}
        """)
        self.reduce_g([T], T+2)
        for sh in (8, 4, 2, 1):
            I(f"v_mov_b32_dpp v{T+2}, v{T} row_ror:{sh} row_mask:0xf bank_mask:0xf\nv_max_f32 v{T}, v{T}, v{T+2}")
        I(f"""
        s_lshl_b32 s{ST}, s{S_WV}, 2
        s_add_u32 s{ST}, s{ST}, {L_MISC}
        v_mov_b32 v{T+2}, s{ST}
        ds_write_b32 v{T+2}, v{T}
        """)
        I(f"""
        v_cvt_pk_bf16_f32 v{T+4}, v{ACC0}, v{ACC0+1}
        v_cvt_pk_bf16_f32 v{T+5}, v{ACC0+2}, v{ACC0+3}
        v_cvt_pk_bf16_f32 v{T+6}, v{ACC1}, v{ACC1+1}
        v_cvt_pk_bf16_f32 v{T+7}, v{ACC1+2}, v{ACC1+3}
        s_lshr_b32 s{ST}, s{S_TT}, 1
        s_mul_i32 s{ST}, s{ST}, {KVT}
        s_add_u32 s{ST}, s{ST}, {KV}
        s_and_b32 s{ST+1}, s{S_TT}, 1
        s_lshl_b32 s{ST+1}, s{ST+1}, 4
        v_add_u32 v{T+8}, s{ST+1}, v{V_T}                    ; kk
        v_lshrrev_b32 v{T+9}, 1, v{V_G}
        v_lshl_add_u32 v{T+9}, v{T+9}, 5, v{T+8}             ; kk+32*(g>>1)
        v_lshlrev_b32 v{T+9}, 4, v{T+9}
        v_and_b32 v{T+10}, 1, v{V_G}
        v_lshl_add_u32 v{T+9}, v{T+10}, 3, v{T+9}
        buffer_store_dwordx2 v[{T+4}:{T+5}], v{T+9}, {sr(S_WS)}, s{ST} offen sc1
        v_lshlrev_b32 v{T+8}, 3, v{T+8}
        v_cmp_eq_u32 vcc, 0, v{V_G}
        s_and_saveexec_b64 s[{ST+4}:{ST+5}], vcc
        buffer_store_dwordx2 v[{T+6}:{T+7}], v{T+8}, {sr(S_WS)}, s{ST} offen offset:1024 sc1
        s_mov_b64 exec, s[{ST+4}:{ST+5}]
        s_branch {lab_pub}
        {lab_v}:
        """)
        C("V^T: D[token 4g+r][d = lane&15]")
        loop(True)
        I(f"""
        v_cvt_pk_bf16_f32 v{T+4}, v{ACC0}, v{ACC0+1}
        v_cvt_pk_bf16_f32 v{T+5}, v{ACC0+2}, v{ACC0+3}
        v_cvt_pk_bf16_f32 v{T+6}, v{ACC1}, v{ACC1+1}
        v_cvt_pk_bf16_f32 v{T+7}, v{ACC1+2}, v{ACC1+3}
        v_cmp_gt_u32 vcc, 4, v{V_T}
        v_cndmask_b32 v{T+6}, 0, v{T+6}, vcc
        v_cndmask_b32 v{T+7}, 0, v{T+7}, vcc
        v_cmp_eq_u32 vcc, 4, v{V_T}
        v_mov_b32 v{T+11}, 0x3f803f80
        v_cndmask_b32 v{T+6}, v{T+6}, v{T+11}, vcc
        v_cndmask_b32 v{T+7}, v{T+7}, v{T+11}, vcc
        s_lshr_b32 s{ST}, s{S_TT}, 1
        s_mul_i32 s{ST}, s{ST}, {KVT}
        s_and_b32 s{ST+1}, s{S_TT}, 1
        s_lshl_b32 s{ST+1}, s{ST+1}, 10
        s_add_u32 s{ST}, s{ST}, s{ST+1}
        s_add_u32 s{ST}, s{ST}, {KV+1280}
        v_and_b32 v{T+9}, 1, v{V_G}
        v_lshl_add_u32 v{T+9}, v{T+9}, 5, v{V_T}             ; d + 32*(g&1)
        v_lshlrev_b32 v{T+9}, 4, v{T+9}
        v_lshrrev_b32 v{T+10}, 1, v{V_G}
        v_lshl_add_u32 v{T+9}, v{T+10}, 3, v{T+9}
        buffer_store_dwordx2 v[{T+4}:{T+5}], v{T+9}, {sr(S_WS)}, s{ST} offen sc1
        buffer_store_dwordx2 v[{T+6}:{T+7}], v{T+9}, {sr(S_WS)}, s{ST} offen offset:256 sc1
        v_mov_b32 v{T}, 0
        s_lshl_b32 s{ST}, s{S_WV}, 2
        s_add_u32 s{ST}, s{ST}, {L_MISC}
        v_mov_b32 v{T+2}, s{ST}
        ds_write_b32 v{T+2}, v{T}
        {lab_pub}:
        s_waitcnt vmcnt(0) lgkmcnt(0)
        s_barrier
        """)
        lab_np = self.b.uid("L_kvnp")
        I(f"""
        s_cmp_lg_u32 s{S_WV}, 0
        s_cbranch_scc1 {lab_np}
        v_mov_b32 v{T+2}, {L_MISC}
        ds_read_b128 {vr(T+4)}, v{T+2}
        s_waitcnt lgkmcnt(0)
        v_max_f32 v{T+4}, v{T+4}, v{T+5}
        v_max_f32 v{T+6}, v{T+6}, v{T+7}
        v_max_f32 v{T+6}, v{T+4}, v{T+6}
        v_mov_b32 v{T+4}, s{S_TAG}
        v_mov_b32 v{T+5}, s{S_TAG+1}
        v_mov_b32 v{T+7}, 0
        s_lshl_b32 s{ST}, s{S_RB}, 1
        s_add_u32 s{ST}, s{ST}, s{S_M}
        s_lshl_b32 s{ST}, s{ST}, 7
        s_add_u32 s{ST}, s{ST}, {KVFLAG}
        v_mov_b32 v{T+2}, s{ST}
        s_mov_b64 exec, 1
        buffer_store_dwordx4 {vr(T+4)}, v{T+2}, {sr(S_WS)}, 0 offen sc1
        s_mov_b64 exec, -1
        {lab_np}:
        {lab_end}:
        """)
        self.stamp("kvpub")

    QA0, QA1, QB0, QB1 = 44, 48, 52, 56
    SA, SB = 60, 76
    PA, PB = 92, 100
    OA, OB = 108, 124
    KB = 140
    VB = 172
    AT = 204

    def phase_q(self):
        I, C = self.I, self.C
        XF, XH = self.XF, self.XH
        va, vb, WB, ACC = XH, XH+1, XH+4, XH+64
        I(f"""
        v_lshrrev_b32 v{va}, 2, v{V_T}
        v_lshl_add_u32 v{va}, v{V_G}, 2, v{va}
        v_mul_u32_u24 v{va}, 160, v{va}
        v_and_b32 v{vb}, 3, v{V_T}
        v_lshl_add_u32 v{va}, v{vb}, 3, v{va}
        v_add_u32 v{vb}, 51200, v{va}
        """)
        issued = []
        def rd1(s, j):
            base = va if s < 10 else vb
            o = 5120*(s % 10)
            W_ = WB + 20*(s % 3) + 4*j
            I(f"ds_read_b64_tr_b16 v[{W_}:{W_+1}], v{base} offset:{L_WQ + o + 32*j}")
            I(f"ds_read_b64_tr_b16 v[{W_+2}:{W_+3}], v{base} offset:{L_WQ + o + 32*j + 2560}")
            issued.append((s, j))
        for s in range(2):
            for j in range(5): rd1(s, j)
        for s in range(20):
            younger = 2*(len(issued) - 1 - issued.index((s, 4)))
            I(f"s_waitcnt lgkmcnt({min(15, younger)})")
            for j in range(5):
                I(f"v_mfma_f32_16x16x32_bf16 {vr(ACC+4*j)}, {vr(WB+20*(s%3)+4*j)}, {vr(XF+4*s)}, {'0' if s == 0 else vr(ACC+4*j)}")
                if s + 2 < 20: rd1(s+2, j)
        qs = (20 ** -0.5) * 1.4426950408889634
        I(f"s_mov_b32 s{ST}, {hex(f2u(qs))}")
        C("scale, pack, write wave-private [16][176B] tile")
        I(f"""
        s_mul_i32 s{ST+1}, s{S_WV}, {16*176}
        s_add_u32 s{ST+1}, s{ST+1}, {L_QS}
        v_mul_u32_u24 v{va}, 176, v{V_T}
        v_lshl_add_u32 v{va}, v{V_G}, 3, v{va}
        v_add_u32 v{va}, s{ST+1}, v{va}
        """)
        for j in range(5):
            a = ACC + 4*j
            for r in range(4): I(f"v_mul_f32 v{a+r}, s{ST}, v{a+r}")
            I(f"v_cvt_pk_bf16_f32 v{a}, v{a}, v{a+1}\nv_cvt_pk_bf16_f32 v{a+1}, v{a+2}, v{a+3}")
            I(f"ds_write_b64 v{va}, v[{a}:{a+1}] offset:{32*j}")
        AT = self.AT
        I(f"""
        v_mul_u32_u24 v{vb}, 176, v{V_T}
        v_bfe_u32 v{va}, v{V_L}, 4, 1
        v_mul_u32_u24 v{va}, 40, v{va}
        v_add_u32 v{vb}, v{vb}, v{va}
        v_add_u32 v{vb}, s{ST+1}, v{vb}                      ; token*176 + (q>>4)*40
        v_lshrrev_b32 v{va}, 5, v{V_L}
        v_lshl_add_u32 v{va}, v{va}, 4, v{vb}                ; + 16h
        s_waitcnt lgkmcnt(0)
        ds_read_b64 v[{self.QA0}:{self.QA0+1}], v{va}
        ds_read_b64 v[{self.QA0+2}:{self.QA0+3}], v{va} offset:8
        ds_read_b64 v[{self.QB0}:{self.QB0+1}], v{va} offset:80
        ds_read_b64 v[{self.QB0+2}:{self.QB0+3}], v{va} offset:88
        ds_read_b64 v[{self.QA1}:{self.QA1+1}], v{vb} offset:32
        ds_read_b64 v[{self.QB1}:{self.QB1+1}], v{vb} offset:112
        v_cmp_gt_u32 vcc, 32, v{V_L}
        s_waitcnt lgkmcnt(0)
        """)
        for r in (self.QA1, self.QA1+1, self.QB1, self.QB1+1):
            I(f"v_cndmask_b32 v{r}, 0, v{r}, vcc")
        for (t, q0, q1) in ((AT, self.QA0, self.QA1), (AT+1, self.QB0, self.QB1)):
            I(f"v_mov_b32 v{t}, 0")
            for r in (q0, q0+1, q0+2, q0+3, q1, q1+1):
                I(f"v_dot2_f32_bf16 v{t}, v{r}, v{r}, v{t}")
        for t in (AT, AT+1):
            I(f"v_mov_b32 v{AT+2}, v{t}\nv_permlane32_swap_b32 v{t}, v{AT+2}\nv_add_f32 v{t}, v{t}, v{AT+2}")
        I(f"v_max_f32 v{AT}, v{AT}, v{AT+1}")
        I("s_barrier")
        self.stamp("qproj")

    RL_OFF, RL_TR, RL_D = 4, 11, 12
    S_RKS, S_RDS, RL_TRS = (78, 82), (79, 83), (11, 40)
    S_RD2S = (74, 73)
    def rl_issue(self, rnd):
        I = self.I
        self.S_RK, self.S_RD, self.RL_TR = self.S_RKS[rnd], self.S_RDS[rnd], self.RL_TRS[rnd]
        u, A0, A1 = ST+4, ST+5, ST+6
        lk4 = self.b.uid("L_r4"); lk3 = self.b.uid("L_r3"); lA = self.b.uid("L_rA"); lend = self.b.uid("L_re")
        I(f"""
        s_lshl_b32 s{u}, s{S_W}, 2
        s_add_u32 s{u}, s{u}, s{S_WV}
        """)
        if rnd == 1:
            I(f"""
            s_mov_b32 s{self.S_RK}, 2
            s_cmp_lt_u32 s{S_M}, 6
            s_cbranch_scc1 {lend}
            s_lshl_b32 s{u}, s{S_RB}, 1
            s_add_u32 s{u}, s{u}, s{S_M}
            s_sub_u32 s{u}, s{u}, 6
            s_lshl_b32 s{u}, s{u}, 2
            s_add_u32 s{u}, s{u}, s{S_WV}
            s_add_u32 s{u}, s{u}, 1024
            s_cmp_ge_u32 s{u}, 1232
            s_cbranch_scc1 {lend}
            s_branch {lk3}
            """)
        else:
            I(f"""
            s_cmp_ge_u32 s{u}, 912
            s_cbranch_scc1 {lk3}
            s_cmp_ge_u32 s{u}, 480
            s_cbranch_scc1 {lk4}
            s_mul_i32 s{A0}, s{u}, 410
            s_lshr_b32 s{A0}, s{A0}, 16                 ; p = u/160
            s_mul_i32 s{A1}, s{A0}, 160
            s_sub_u32 s{u}, s{u}, s{A1}                 ; r
            s_cmp_eq_u32 s{A0}, 1
            s_cselect_b32 s{S_A}, s{P_W1}, s{P_WO}
            s_cselect_b32 s{S_A+1}, s{P_W1+1}, s{P_WO+1}
            s_cmp_eq_u32 s{A0}, 2
            s_cselect_b32 s{S_A}, s{P_W2}, s{S_A}
            s_cselect_b32 s{S_A+1}, s{P_W2+1}, s{S_A+1}
            s_mov_b32 s{S_A+2}, {640*1280}
            s_mul_i32 s{A0}, s{A0}, 100                 ; p*100
            s_mul_i32 s{A1}, s{u}, 3277
            s_lshr_b32 s{A1}, s{A1}, 16                 ; m = r/20
            s_mul_i32 s{ST+7}, s{A1}, 20
            s_sub_u32 s{u}, s{u}, s{ST+7}               ; kb
            s_mul_i32 s{ST+7}, s{u}, 5
            s_add_u32 s{A0}, s{A0}, s{ST+7}
            s_lshl_b32 s{A0}, s{A0}, 10
            s_mul_i32 s{ST+7}, s{A1}, {WSA_M}
            s_add_u32 s{A0}, s{A0}, s{ST+7}
            s_add_u32 s{self.S_RD}, s{A0}, {WSA}
            s_branch {lA}
            {lk4}:
            s_sub_u32 s{u}, s{u}, 480
            s_mov_b32 s{S_A}, s{P_W4}
            s_mov_b32 s{S_A+1}, s{P_W4+1}
            s_mov_b32 s{S_A+2}, {1728*1280}
            s_mul_i32 s{A1}, s{u}, 1214
            s_lshr_b32 s{A1}, s{A1}, 16                 ; m = r/54
            s_mul_i32 s{ST+7}, s{A1}, 54
            s_sub_u32 s{u}, s{u}, s{ST+7}               ; kb
            s_mul_i32 s{A0}, s{u}, 5120
            s_mul_i32 s{ST+7}, s{A1}, {W4S_M}
            s_add_u32 s{A0}, s{A0}, s{ST+7}
            s_add_u32 s{self.S_RD}, s{A0}, {W4S}
            {lA}:
            s_mov_b32 s{S_A+3}, 0x20000
            s_mov_b32 s{self.S_RK}, 0
            s_mul_i32 s{u}, s{u}, {32*1280}
            s_mul_i32 s{A1}, s{A1}, 160
            s_add_u32 s{u}, s{u}, s{A1}
            s_mul_i32 s{A0}, s{S_WV}, 14336
            """)
            O = self.RL_OFF
            for q in range(5):
                I(f"""
                v_add_u32 v{O+5}, {64*q}, v{V_L}
                v_mul_u32_u24 v{O+6}, 6554, v{O+5}
                v_lshrrev_b32 v{O+6}, 16, v{O+6}
                v_mul_u32_u24 v{O+q}, {1280-160}, v{O+6}
                v_lshl_add_u32 v{O+q}, v{O+5}, 4, v{O+q}
                """)
            for q in range(5):
                I(f"s_mov_b32 m0, s{A0}\ns_add_u32 s{A0}, s{A0}, 1024\nbuffer_load_dwordx4 v{O+q}, {sr(S_A)}, s{u} offen lds")
            I(f"""
            v_lshrrev_b32 v{self.RL_TR}, 2, v{V_T}
            v_lshl_add_u32 v{self.RL_TR}, v{V_G}, 2, v{self.RL_TR}
            v_mul_u32_u24 v{self.RL_TR}, 160, v{self.RL_TR}
            s_branch {lend}_tr
            """)
        I(f"""
        {lk3}:
        s_sub_u32 s{u}, s{u}, 912
        s_mov_b32 s{S_A}, s{P_W3}
        s_mov_b32 s{S_A+1}, s{P_W3+1}
        s_mov_b32 s{S_A+2}, {640*3456}
        s_mov_b32 s{S_A+3}, 0x20000
        s_mov_b32 s{self.S_RK}, 1
        s_mul_i32 s{A1}, s{u}, 3277
        s_lshr_b32 s{A1}, s{A1}, 16                 ; m16 = r/20
        s_mul_i32 s{ST+7}, s{A1}, 20
        s_sub_u32 s{u}, s{u}, s{ST+7}               ; kb
        s_mul_i32 s{ST+7}, s{A1}, {W3S_M}
        s_add_u32 s{ST+7}, s{ST+7}, {W3S}
        s_mul_i32 s{A0}, s{u}, {4096 if self.w3split else 7168}
        s_add_u32 s{self.S_RD}, s{A0}, s{ST+7}               ; tiles 0..3
        s_mul_i32 s{A0}, s{u}, {3072 if self.w3split else 7168}
        s_add_u32 s{A0}, s{A0}, s{ST+7}
        s_add_u32 s{self.S_RD2S[rnd]}, s{A0}, {80*1024 if self.w3split else 4096}      ; tiles 4..6
        s_mul_i32 s{A0}, s{A1}, 7
        s_sub_u32 s{ST+7}, s{A1}, 12
        s_max_i32 s{ST+7}, s{ST+7}, 0
        s_sub_u32 s{A0}, s{A0}, s{ST+7}
        s_lshl_b32 s{A0}, s{A0}, 5
        s_mul_i32 s{u}, s{u}, {32*3456}
        s_add_u32 s{u}, s{u}, s{A0}
        s_mul_i32 s{A0}, s{S_WV}, 14336
        s_add_u32 s{A0}, s{A0}, {7168*rnd}
        """)
        O = self.RL_OFF
        for q in range(7):
            I(f"""
            v_add_u32 v{self.RL_D}, {64*q}, v{V_L}
            v_mul_u32_u24 v{self.RL_D+1}, 4682, v{self.RL_D}
            v_lshrrev_b32 v{self.RL_D+1}, 16, v{self.RL_D+1}
            v_mul_u32_u24 v{O+q}, {3456-224}, v{self.RL_D+1}
            v_lshl_add_u32 v{O+q}, v{self.RL_D}, 4, v{O+q}
            """)
        for q in range(7):
            I(f"s_mov_b32 m0, s{A0}\ns_add_u32 s{A0}, s{A0}, 1024\nbuffer_load_dwordx4 v{O+q}, {sr(S_A)}, s{u} offen lds")
        I(f"""
        v_lshrrev_b32 v{self.RL_TR}, 2, v{V_T}
        v_lshl_add_u32 v{self.RL_TR}, v{V_G}, 2, v{self.RL_TR}
        v_mul_u32_u24 v{self.RL_TR}, 224, v{self.RL_TR}
        {lend}_tr:
        v_and_b32 v{self.RL_D}, 3, v{V_T}
        v_lshl_add_u32 v{self.RL_TR}, v{self.RL_D}, 3, v{self.RL_TR}
        s_mul_i32 s{A0}, s{S_WV}, 14336
        s_add_u32 s{A0}, s{A0}, {7168*rnd}
        v_add_u32 v{self.RL_TR}, s{A0}, v{self.RL_TR}
        {lend}:
        """)

    def rl_store(self, rnd):
        I = self.I
        self.S_RK, self.S_RD, self.RL_TR = self.S_RKS[rnd], self.S_RDS[rnd], self.RL_TRS[rnd]
        l7 = self.b.uid("L_rs7"); lend = self.b.uid("L_rse")
        D = self.RL_D
        I(f"s_cmp_eq_u32 s{self.S_RK}, 2\ns_cbranch_scc1 {lend}\ns_cmp_eq_u32 s{self.S_RK}, 1\ns_cbranch_scc1 {l7}")
        for (nt, rowb, last) in ((5, 160, False), (7, 224, True)):
            if last: I(f"{l7}:")
            for j in range(nt):
                I(f"ds_read_b64_tr_b16 v[{D+4*j}:{D+4*j+1}], v{self.RL_TR} offset:{32*j}")
                I(f"ds_read_b64_tr_b16 v[{D+4*j+2}:{D+4*j+3}], v{self.RL_TR} offset:{32*j+16*rowb}")
            if nt == 5: I(f"s_add_u32 s{ST+4}, s{self.S_RD}, 4096")
            else: I(f"s_mov_b32 s{ST+4}, s{self.S_RD2S[rnd]}")
            I("s_waitcnt lgkmcnt(0)")
            for j in range(nt):
                I(f"buffer_store_dwordx4 {vr(D+4*j)}, v{V_L16}, {sr(S_WS)}, s{self.S_RD if j < 4 else ST+4} offen offset:{1024*(j%4)} sc1")
            if not last: I(f"s_branch {lend}")
        I(f"{lend}:")

    def rl_flag(self):
        I = self.I
        lab = self.b.uid("L_rlp")
        I(f"""
        s_barrier
        s_cmp_lg_u32 s{S_WV}, 0
        s_cbranch_scc1 {lab}
        v_mov_b32 v252, s{S_TAG}
        v_mov_b32 v253, s{S_TAG+1}
        s_lshl_b32 s{ST+4}, s{S_W}, 7
        s_add_u32 s{ST+4}, s{ST+4}, {RLFLAG}
        v_mov_b32 v251, s{ST+4}
        s_mov_b64 exec, 1
        buffer_store_dwordx2 v[252:253], v251, {sr(S_WS)}, 0 offen sc1
        s_mov_b64 exec, -1
        {lab}:
        """)

    def phase_kvwait(self):
        I = self.I
        AT = self.AT
        lp = self.b.uid("L_kvw"); ok = self.b.uid("L_kvok")
        I(f"""
        v_lshlrev_b32 v{AT+3}, 7, v{V_L}
        s_mov_b32 s{ST}, {TIMEOUT}
        s_mov_b32 s{ST+1}, {KVFLAG}
        {lp}:
        buffer_load_dwordx4 {vr(AT+4)}, v{AT+3}, {sr(S_WS)}, s{ST+1} offen sc1
        """)
        I(f"""
        s_waitcnt vmcnt(0)
        v_cmp_ne_u32 vcc, s{S_TAG}, v{AT+4}
        s_mov_b64 s[{ST+2}:{ST+3}], vcc
        v_cmp_ne_u32 vcc, s{S_TAG+1}, v{AT+5}
        s_or_b64 s[{ST+2}:{ST+3}], s[{ST+2}:{ST+3}], vcc
        s_cmp_eq_u64 s[{ST+2}:{ST+3}], 0
        s_cbranch_scc1 {ok}
        """)
        self.spin_tail(ST, lp, 3)
        I(f"{ok}:")
        self.reduce_g([AT+6], AT+2, op="v_max_f32")
        for sh in (8, 4, 2, 1):
            I(f"v_mov_b32_dpp v{AT+2}, v{AT+6} row_ror:{sh} row_mask:0xf bank_mask:0xf\nv_max_f32 v{AT+6}, v{AT+6}, v{AT+2}")
        I(f"v_mov_b32 v{AT+1}, v{AT+6}")
        self.xid_publish()
        labg = self.b.uid("L_dg")
        I(f"s_cmp_lg_u32 s{self.S_PROD}, 2\ns_cbranch_scc1 {labg}")
        I(f"v_accvgpr_read_b32 v248, a250\nv_accvgpr_read_b32 v249, a251")
        self.MT = self.MT2
        self.mod_gemv(60, 63, 63, None)
        I("s_barrier")
        I(f"{labg}:")
        self.stamp("kvwait")

    def kv_loads(self, i, sK, sV):
        raise NotImplementedError

    def phase_attn(self, force_slow=False):
        I, C = self.I, self.C
        QA0, QA1, QB0, QB1, SA, SB, PA, PB, OA, OB, KB, VB, AT = (self.QA0, self.QA1, self.QB0, self.QB1, self.SA, self.SB,
            self.PA, self.PB, self.OA, self.OB, self.KB, self.VB, self.AT)
        sK, sV, cnt = 85, 86, 87
        vK1 = AT+2
        lab_slow = self.b.uid("L_slow"); lab_done = self.b.uid("L_adone")
        C("bound check: |q|^2 * kmax2 <= T^2 (log2 units) else true-max path")
        Tlim = 64.0
        I(f"""
        v_mul_f32 v{AT}, v{AT}, v{AT+1}
        v_and_b32 v{vK1}, 31, v{V_L}
        v_lshlrev_b32 v{vK1}, 3, v{vK1}
        s_mov_b32 s{ST+3}, {hex(f2u(Tlim*Tlim if not force_slow else -1.0))}
        v_cmp_nge_f32 vcc, s{ST+3}, v{AT}
        """)
        I(f"s_cmp_lg_u64 vcc, 0\ns_cselect_b32 s{self.S_SLOW}, 1, 0")
        for r in range(16): I(f"v_mov_b32 v{OA+r}, 0\nv_mov_b32 v{OB+r}, 0")
        KVL = self.L_KV
        vK16, vK8 = 200, 201
        KR, VR = 16, 48
        def kreg(buf): return KR + 8*buf
        def vreg(buf): return VR + 8*buf
        def rdK(t):
            k = kreg(t % 4); o = (t % 16)*KVT
            I(f"ds_read_b128 {ar(k)}, v{vK16} offset:{o}")
            I(f"ds_read_b64 a[{k+4}:{k+5}], v{vK8} offset:{o+1024}")
        def rdV(t, which=(0, 1)):
            v = vreg(t % 4); o = (t % 16)*KVT
            if 0 in which: I(f"ds_read_b128 {ar(v)}, v{vK16} offset:{o+1280}")
            if 1 in which: I(f"ds_read_b128 {ar(v+4)}, v{vK16} offset:{o+2304}")
        I(f"v_add_u32 v{vK16}, {KVL}, v{V_L16}\nv_add_u32 v{vK8}, {KVL}, v{vK1}")
        for g in range(3): self.kv_dma(g)
        for r in range(16): I(f"v_mov_b32 v{SB+r}, 0xff800000")
        for r in range(8): I(f"v_mov_b32 v{PA+r}, 0")
        for r in range(8): I(f"v_accvgpr_write_b32 a{vreg(3)+r}, 0")
        self.rl_issue(0)
        I("s_waitcnt vmcnt(9)\ns_barrier")
        rdK(0); rdK(1); rdV(0)
        I(f"s_mov_b32 s{cnt}, 16")
        lp = self.b.uid("L_att"); lhk = [self.b.uid("L_hook") for _ in range(5)]; lback = [self.b.uid("L_back") for _ in range(4)]
        hooks = self.attn_hooks()
        mask = sum(1 << k for k in hooks)
        def exps(S, P, q):
            a = S + 4*q
            I(f"v_exp_f32 v{a}, v{a}\nv_exp_f32 v{a+1}, v{a+1}\nv_exp_f32 v{a+2}, v{a+2}\nv_exp_f32 v{a+3}, v{a+3}")
            I(f"v_cvt_pk_bf16_f32 v{P+2*q}, v{a}, v{a+1}\nv_cvt_pk_bf16_f32 v{P+2*q+1}, v{a+2}, v{a+3}")
        M16 = "v_mfma_f32_32x32x16_bf16"; M8 = "v_mfma_f32_32x32x8_bf16"
        SKS, SKL, SBM = 86, 85, 76
        def copy_slot(q, e):
            n = 2*(q & 1) + e
            if self.x_nokv: return
            if q < 2:
                if n == 3: I("s_mov_b64 exec, 0xffff")
                I(f"buffer_load_dwordx4 v{V_L16}, {sr(S_WS)}, s{SKS} offen offset:{1024*n} lds")
                if n == 3: I(f"s_mov_b64 exec, -1\ns_mov_b32 m0, s{SBM}")
            elif not self.noslot:
                I(f"buffer_load_dwordx4 v{V_L16}, {sr(S_WS)}, s{self.S_DS} offen offset:{1024*n} lds")
        def header(part):
            I("s_waitcnt vmcnt(12) lgkmcnt(4)")
            if not self.x_nobar: I("s_barrier")
            I(f"""
            s_bitcmp1_b32 s84, s{cnt}
            s_cbranch_scc1 {lhk[part]}
            {lback[part]}:
            s_add_u32 s{SKS}, s{SKS}, {4*KVT}
            s_add_u32 m0, s{SKL}, {((part + 3) % 4)*4*KVT}
            s_add_u32 s{self.S_DS}, s{self.S_DS}, s{self.S_INC}
            s_add_u32 s{SBM}, s{SBM}, s{self.S_INC}
            """)
        def body(i, qk=True, last=False):
            kb = kreg(i % 4); vb = vreg((i+3) % 4)
            k2 = kreg((i+2) % 4); ok = ((i+2) % 16)*KVT
            v1 = vreg((i+1) % 4); ov = ((i+1) % 16)*KVT
            if qk:
                I(f"{M16} {vr(SA,16)}, {ar(kb)}, {vr(QA0)}, 0")
                if not self.x_nords: I(f"ds_read_b128 {ar(k2)}, v{vK16} offset:{ok}")
            exps(SB, PB, 0)
            if qk:
                I(f"{M8} {vr(SA,16)}, a[{kb+4}:{kb+5}], v[{QA1}:{QA1+1}], {vr(SA,16)}")
            exps(SB, PB, 1)
            I(f"{M16} {vr(OA,16)}, {ar(vb)}, {vr(PA)}, {vr(OA,16)}")
            if qk and not self.x_nords: I(f"ds_read_b64 a[{k2+4}:{k2+5}], v{vK8} offset:{ok+1024}")
            exps(SB, PB, 2)
            I(f"{M16} {vr(OA,16)}, {ar(vb+4)}, {vr(PA+4)}, {vr(OA,16)}")
            if qk: copy_slot(i % 4, 0)
            exps(SB, PB, 3)
            if qk:
                I(f"{M16} {vr(SB,16)}, {ar(kb)}, {vr(QB0)}, 0")
                if not self.x_nords: I(f"ds_read_b128 {ar(v1)}, v{vK16} offset:{ov+1280}")
                exps(SA, PA, 0)
                I(f"{M8} {vr(SB,16)}, a[{kb+4}:{kb+5}], v[{QB1}:{QB1+1}], {vr(SB,16)}")
                copy_slot(i % 4, 1)
                exps(SA, PA, 1)
            I(f"{M16} {vr(OB,16)}, {ar(vb)}, {vr(PB)}, {vr(OB,16)}")
            if qk:
                if not self.x_nords: I(f"ds_read_b128 {ar(v1+4)}, v{vK16} offset:{ov+2304}")
                exps(SA, PA, 2)
            I(f"{M16} {vr(OB,16)}, {ar(vb+4)}, {vr(PB+4)}, {vr(OB,16)}")
            if qk:
                if i % 4 == 3:
                    I(f"s_sub_u32 s{cnt}, s{cnt}, 1")
                    header((i // 4 + 1) % 4)
                else:
                    I("s_waitcnt lgkmcnt(4)")
                exps(SA, PA, 3)
        I(f"""
        s_mul_i32 s{SKL}, s{S_WV}, {KVT}
        s_add_u32 s{SKS}, s{SKL}, {KV + 8*KVT}
        s_add_u32 s{SKL}, s{SKL}, {KVL}
        s_mov_b32 s{SBM}, {self.L_DUMMY}
        s_mov_b32 s{self.S_DS}, {KV}
        s_mov_b32 s{self.S_INC}, 0
        s_mov_b32 s84, {hex(mask)}
        """)
        I("s_waitcnt lgkmcnt(0)")
        lentry = self.b.uid("L_ent")
        I(f"""
        s_branch {lhk[4]}
        {lentry}:
        s_add_u32 s{SKS}, s{SKS}, {4*KVT}
        s_add_u32 m0, s{SKL}, {3*4*KVT}
        """)
        self.stamp("loop_in")
        I(f"{lp}:")
        for i in range(16): body(i)
        I(f"s_cmp_lg_u32 s{cnt}, 0\ns_cbranch_scc1 {lp}")
        self.stamp("loop_out")
        C("drain: iteration 64 (V_63)")
        I("s_waitcnt lgkmcnt(0)")
        body(0, qk=False)
        I(f"s_cmp_lg_u32 s{self.S_SLOW}, 0\ns_cbranch_scc1 {lab_slow}\ns_branch {lab_done}")
        I(f"{lhk[4]}:")
        self.hook_body(hooks, 16)
        I(f"s_branch {lentry}")
        for part in range(4):
            I(f"{lhk[part]}:")
            ks = [k for k in sorted(hooks, reverse=True) if (16 - k) % 4 == part and k != 16]
            for n_, k in enumerate(ks):
                nx = None
                if n_ < len(ks) - 1:
                    nx = self.b.uid("L_hk")
                    I(f"s_cmp_lg_u32 s{cnt}, {k}\ns_cbranch_scc1 {nx}")
                self.hook_body(hooks, k)
                I(f"s_branch {lback[part]}")
                if nx: I(f"{nx}:")
            if not ks: I(f"s_branch {lback[part]}")
        I(f"{lab_slow}:")
        for r in range(16): I(f"v_mov_b32 v{OA+r}, 0\nv_mov_b32 v{OB+r}, 0")
        MA_, MB_, T0 = AT+4, AT+5, AT+6
        I(f"v_mov_b32 v{MA_}, 0xff7fffff\nv_mov_b32 v{MB_}, 0xff7fffff")
        I(f"s_mov_b32 s{sK}, {KV}\ns_mov_b32 s{cnt}, 64")
        lp2 = self.b.uid("L_atts")
        I(f"{lp2}:")
        k0, v0 = kreg(0), vreg(0)
        I(f"""
        buffer_load_dwordx4 {ar(k0)}, v{V_L16}, {sr(S_WS)}, s{sK} offen
        buffer_load_dwordx2 a[{k0+4}:{k0+5}], v{vK1}, {sr(S_WS)}, s{sK} offen offset:1024
        buffer_load_dwordx4 {ar(v0)}, v{V_L16}, {sr(S_WS)}, s{sK} offen offset:1280
        buffer_load_dwordx4 {ar(v0+4)}, v{V_L16}, {sr(S_WS)}, s{sK} offen offset:2304
        s_add_u32 s{sK}, s{sK}, {KVT}
        s_waitcnt vmcnt(0)
        """)
        for (S, P, O, Q0, Q1, Mx) in ((SA, PA, OA, QA0, QA1, MA_), (SB, PB, OB, QB0, QB1, MB_)):
            I(f"{M16} {vr(S,16)}, {ar(kreg(0))}, {vr(Q0)}, 0")
            I(f"{M8} {vr(S,16)}, a[{kreg(0)+4}:{kreg(0)+5}], v[{Q1}:{Q1+1}], {vr(S,16)}")
            I(f"v_max3_f32 v{T0}, v{S}, v{S+1}, v{S+2}")
            for r in range(3, 15, 2): I(f"v_max3_f32 v{T0}, v{T0}, v{S+r}, v{S+r+1}")
            I(f"v_max_f32 v{T0}, v{T0}, v{S+15}")
            I(f"v_mov_b32 v{T0+1}, v{T0}\nv_permlane32_swap_b32 v{T0}, v{T0+1}\nv_max_f32 v{T0}, v{T0}, v{T0+1}")
            I(f"v_max_f32 v{T0}, v{T0}, v{Mx}")
            I(f"v_sub_f32 v{T0+1}, v{Mx}, v{T0}\nv_exp_f32 v{T0+1}, v{T0+1}\nv_mov_b32 v{Mx}, v{T0}")
            for r in range(16): I(f"v_mul_f32 v{O+r}, v{O+r}, v{T0+1}")
            for r in range(16): I(f"v_sub_f32 v{S+r}, v{S+r}, v{T0}")
            for q in range(4): exps(S, P, q)
            I(f"{M16} {vr(O,16)}, {ar(vreg(0))}, {vr(P)}, {vr(O,16)}")
            I(f"{M16} {vr(O,16)}, {ar(vreg(0)+4)}, {vr(P+4)}, {vr(O,16)}")
        I(f"s_sub_u32 s{cnt}, s{cnt}, 1\ns_cmp_lg_u32 s{cnt}, 0\ns_cbranch_scc1 {lp2}")
        I(f"{lab_done}:")
        I("s_waitcnt vmcnt(0)\ns_barrier")
        self.stamp("attn")
        self.mod_fetch()
        self.ring_state_after_attn()
        C("normalise and store O in the B-fragment layout of the wo GEMM")
        T = AT
        PK = SA
        I(f"""
        v_lshlrev_b32 v{self.V_L8}, 3, v{V_L}
        s_mul_i32 s{ST}, s{S_WV}, 3072
        s_add_u32 s{ST}, s{ST}, {144*1024}
        v_mul_u32_u24 v{T}, 176, v{V_T}
        v_add_u32 v{T}, s{ST}, v{T}
        v_lshl_add_u32 v{T+1}, v{V_G}, 3, v{T}
        v_bfe_u32 v{T+4}, v{V_L}, 4, 1
        v_mul_u32_u24 v{T+4}, 40, v{T+4}
        v_add_u32 v{T}, v{T}, v{T+4}
        v_lshrrev_b32 v{T+4}, 5, v{V_L}
        v_lshl_add_u32 v{T}, v{T+4}, 3, v{T}
        """)
        for (O, u) in ((OA, 0), (OB, 1)):
            I(f"v_mov_b32 v{T+2}, v{O+8}\nv_mov_b32 v{T+3}, v{O+8}\nv_permlane32_swap_b32 v{T+2}, v{T+3}")
            I(f"v_rcp_f32 v{T+3}, v{T+3}")
            for run in range(3):
                a = O + 4*run
                for r in range(4): I(f"v_mul_f32 v{a+r}, v{a+r}, v{T+3}")
                I(f"v_cvt_pk_bf16_f32 v{a}, v{a}, v{a+1}\nv_cvt_pk_bf16_f32 v{a+1}, v{a+2}, v{a+3}")
                if run == 2: I(f"s_mov_b32 exec_hi, 0")
                I(f"ds_write_b64 v{T}, v[{a}:{a+1}] offset:{80*u + 16*run}")
                if run == 2: I(f"s_mov_b32 exec_hi, -1")
        I("s_waitcnt lgkmcnt(0)")
        for j in range(5):
            I(f"ds_read_b64 v[{PK+2*j}:{PK+2*j+1}], v{T+1} offset:{32*j}")
        I(f"s_mul_i32 s{self.S_T5}, s{S_M}, 5")
        self.tile_base(ST+4, S_TT, 20, OF)
        I("s_waitcnt lgkmcnt(0)")
        self.store_frag(PK, 5, ST+4, self.S_T5)
        self.publish(PH_O); self.vm_drained()
        I("s_barrier")
        self.refill(); self.drip(4)
        self.stamp("opub")

    def dual(self, fn):
        I = self.I
        ls = self.b.uid("L_sl"); lj = self.b.uid("L_sj")
        I(f"s_cmp_eq_u32 s{S_FAST}, 0\ns_cbranch_scc1 {ls}")
        fn("")
        I(f"s_branch {lj}\n{ls}:")
        fn(" sc1")
        I(f"{lj}:")

    def xid_publish(self):
        I = self.I
        lab = self.b.uid("L_xp")
        I(f"""
        s_cmp_lg_u32 s{S_WV}, 0
        s_cbranch_scc1 {lab}
        s_getreg_b32 s{ST}, hwreg(HW_REG_XCC_ID)
        s_and_b32 s{ST}, s{ST}, 15
        v_mov_b32 v252, s{ST}
        v_mov_b32 v253, 0
        v_mov_b32 v254, s{S_TAG}
        v_mov_b32 v255, s{S_TAG+1}
        s_lshl_b32 s{ST}, s{S_RB}, 7
        s_lshl_b32 s{ST+1}, s{S_M}, 4
        s_add_u32 s{ST}, s{ST}, s{ST+1}
        s_add_u32 s{ST}, s{ST}, {XIDG}
        v_mov_b32 v251, s{ST}
        s_mov_b64 exec, 1
        buffer_store_dwordx4 v[252:255], v251, {sr(S_WS)}, 0 offen sc1
        s_mov_b64 exec, -1
        {lab}:
        """)

    XV = 240
    def xid_issue(self):
        I = self.I
        I(f"""
        s_and_b32 s{ST+5}, s{S_RB}, 28
        s_lshl_b32 s{ST+5}, s{ST+5}, 7
        s_add_u32 s{ST+5}, s{ST+5}, {XIDG}
        v_and_b32 v251, 31, v{V_L}
        v_lshlrev_b32 v251, 4, v251
        buffer_load_dwordx4 {vr(self.XV)}, v251, {sr(S_WS)}, s{ST+5} offen sc1
        """)

    def xid_eval(self):
        I = self.I
        X = self.XV
        lp = self.b.uid("L_xc"); ok = self.b.uid("L_xcok")
        I(f"""
        s_mov_b32 s{ST+4}, {TIMEOUT}
        {lp}:
        v_cmp_ne_u32 vcc, s{S_TAG}, v{X+2}
        s_mov_b64 s[{ST+6}:{ST+7}], vcc
        v_cmp_ne_u32 vcc, s{S_TAG+1}, v{X+3}
        s_or_b64 s[{ST+6}:{ST+7}], s[{ST+6}:{ST+7}], vcc
        s_cmp_eq_u64 s[{ST+6}:{ST+7}], 0
        s_cbranch_scc1 {ok}
        """)
        self.xid_issue()
        I("s_waitcnt vmcnt(0)")
        self.spin_tail(ST+4, lp, 14)
        I(f"""
        {ok}:
        s_getreg_b32 s{ST+4}, hwreg(HW_REG_XCC_ID)
        s_and_b32 s{ST+4}, s{ST+4}, 15
        v_cmp_ne_u32 vcc, s{ST+4}, v{X}
        s_cmp_eq_u64 vcc, 0
        s_cselect_b32 s{S_FAST}, {0 if self.force_global else 1}, 0
        """)

    def rl_poll_issue(self):
        I = self.I
        lab = self.b.uid("L_rpi")
        T = 232
        I(f"s_cmp_lg_u32 s{S_WV}, 0\ns_cbranch_scc1 {lab}\nv_lshlrev_b32 v250, 7, v{V_L}")
        for i in range(4):
            I(f"s_mov_b32 s{ST+5}, {RLFLAG + i*8192}\nbuffer_load_dwordx2 v[{T+2*i}:{T+1+2*i}], v250, {sr(S_WS)}, s{ST+5} offen sc1")
        I(f"{lab}:")

    def rl_poll_eval(self):
        I = self.I
        lab = self.b.uid("L_rw"); lp = self.b.uid("L_rwp"); ok = self.b.uid("L_rwok")
        T = 232
        I(f"s_cmp_lg_u32 s{S_WV}, 0\ns_cbranch_scc1 {lab}\ns_mov_b32 s{ST+4}, {TIMEOUT}\n{lp}:\ns_mov_b64 s[{ST+6}:{ST+7}], 0")
        for i in range(4):
            I(f"""
            v_cmp_ne_u32 vcc, s{S_TAG}, v{T+2*i}
            s_or_b64 s[{ST+6}:{ST+7}], s[{ST+6}:{ST+7}], vcc
            v_cmp_ne_u32 vcc, s{S_TAG+1}, v{T+1+2*i}
            s_or_b64 s[{ST+6}:{ST+7}], s[{ST+6}:{ST+7}], vcc
            """)
        I(f"s_cmp_eq_u64 s[{ST+6}:{ST+7}], 0\ns_cbranch_scc1 {ok}")
        self.rl_poll_issue()
        I("s_waitcnt vmcnt(0)")
        self.spin_tail(ST+4, lp, 4)
        I(f"{ok}:\n{lab}:\ns_barrier")

    def publish(self, ph, both=False, vmn=0, line_sreg=None):
        I = self.I
        ln = S_TT if line_sreg is None else line_sreg
        I(f"""
        v_mov_b32 v254, s{S_TAG}
        v_mov_b32 v255, s{S_TAG+1}
        s_lshl_b32 s{ST}, s{ln}, 7
        s_lshl_b32 s{ST+1}, s{S_M}, 3
        s_add_u32 s{ST}, s{ST}, s{ST+1}
        s_add_u32 s{ST}, s{ST}, {CFLAG + ph*CF_PH}
        v_mov_b32 v253, s{ST}
        s_mov_b32 s{ST+1}, {CF_LOC}
        s_waitcnt vmcnt({vmn})
        s_mov_b64 exec, 1
        """)
        def st(f):
            if f == "":
                I(f"buffer_store_dwordx2 v[254:255], v253, {sr(S_WS)}, s{ST+1} offen")
                if both: I(f"buffer_store_dwordx2 v[254:255], v253, {sr(S_WS)}, 0 offen sc1")
            else:
                I(f"buffer_store_dwordx2 v[254:255], v253, {sr(S_WS)}, 0 offen sc1")
        self.dual(st)
        I(f"s_mov_b64 exec, -1")

    def publish_drip(self, ph, both=False, line_sreg=None):
        if self.detail == 2: self.stamp(f"e_sto{ph}")
        self.publish(ph, both=both, vmn=0, line_sreg=line_sreg)
        self.vmq = []
        self.drip(self.pub_after)

    def wait_flags(self, ph, lines, code):
        I = self.I
        lp = self.b.uid("L_wfp"); ok = self.b.uid("L_wfok")
        I(f"v_mov_b32 v251, s{lines[0]}")
        if len(lines) > 1:
            I(f"v_lshrrev_b32 v250, 3, v{V_L}\nv_and_b32 v250, 3, v250")
            for i, r in enumerate(lines[1:], 1):
                I(f"v_cmp_eq_u32 vcc, {i}, v250\nv_mov_b32 v252, s{r}\nv_cndmask_b32 v251, v251, v252, vcc")
        I(f"""
        v_lshrrev_b32 v250, 4, v251
        s_lshr_b32 s{ST}, s{S_RB}, 2
        v_cmp_eq_u32 vcc, s{ST}, v250
        s_mul_i32 s{ST}, s{S_FAST}, {CF_LOC}
        v_mov_b32 v252, s{ST}
        v_cndmask_b32 v250, 0, v252, vcc
        v_lshl_add_u32 v251, v251, 7, v250
        v_and_b32 v252, 7, v{V_L}
        v_lshl_add_u32 v251, v252, 3, v251
        s_mov_b32 s{ST+1}, {CFLAG + ph*CF_PH}
        s_mov_b32 s{ST}, {TIMEOUT}
        buffer_load_dwordx2 v[254:255], v251, {sr(S_WS)}, s{ST+1} offen sc1
        """)
        n0 = len(self.vmq)
        self.drip(self.shadow_f)
        nsh = len(self.vmq) - n0
        lchk = self.b.uid("L_wfc")
        I(f"""
        s_waitcnt vmcnt({nsh})
        s_branch {lchk}
        {lp}:
        buffer_load_dwordx2 v[254:255], v251, {sr(S_WS)}, s{ST+1} offen sc1
        s_waitcnt vmcnt(0)
        {lchk}:
        v_cmp_ne_u32 vcc, s{S_TAG}, v254
        s_mov_b64 s[{ST+2}:{ST+3}], vcc
        v_cmp_ne_u32 vcc, s{S_TAG+1}, v255
        s_or_b64 s[{ST+2}:{ST+3}], s[{ST+2}:{ST+3}], vcc
        s_cmp_eq_u64 s[{ST+2}:{ST+3}], 0
        s_cbranch_scc1 {ok}
        """)
        self.spin_tail(ST, lp, code)
        I(f"{ok}:")
        self.vmq = self.vmq[len(self.vmq)-nsh:] if nsh else []

    X2, H = 4, 24
    ACC = 44
    MS_GA = 64
    WB = 100
    MS_A2, MS_SB = 160, 180
    GT = 200
    RING = 160
    F_WO, F_W1, F_W2, F_W3, F_W4 = 0, 100, 200, 304, 448
    NUNITS = 45
    S_T5 = 29
    S_SRC = 30
    S_WA, S_W3 , S_W4 = 90, 91, 92
    S_LW = 93
    S_DM, S_DS, S_AO, S_AO2 = 94, 95, 88, 89

    def vm_issue(self, tag): self.vmq.append(tag)
    def vm_wait(self, tag):
        if tag not in self.vmq: return
        i = len(self.vmq) - 1 - self.vmq[::-1].index(tag)
        n = len(self.vmq) - 1 - i
        self.I(f"s_waitcnt vmcnt({min(n, 63)})")
        self.vmq = self.vmq[i+1:]
    def vm_drained(self): self.vmq = []

    def ring_regs(self):
        I = self.I
        I(f"""
        s_lshl_b32 s{self.S_LW}, s{S_WV}, 12
        s_mul_i32 s{self.S_WA}, s{S_M}, {WSA_M}
        s_add_u32 s{self.S_WA}, s{self.S_WA}, {WSA}
        s_add_u32 s{self.S_WA}, s{self.S_WA}, s{self.S_LW}
        s_and_b32 s{self.S_W3}, s{S_RB}, 1
        s_lshl_b32 s{self.S_W3}, s{self.S_W3}, 3
        s_add_u32 s{self.S_W3}, s{self.S_W3}, s{S_M}
        s_mul_i32 s{self.S_W3}, s{self.S_W3}, {W3S_M}
        s_add_u32 s{self.S_W3}, s{self.S_W3}, {W3S}
        s_add_u32 s{self.S_W3}, s{self.S_W3}, s{self.S_LW}
        s_mul_i32 s{self.S_W4}, s{S_M}, {W4S_M}
        s_add_u32 s{self.S_W4}, s{self.S_W4}, {W4S}
        s_add_u32 s{self.S_W4}, s{self.S_W4}, s{self.S_LW}
        """)

    def refill(self, maxn=99):
        n = 0
        while self.units_queued < self.NUNITS and n < maxn:
            u = self.units_queued
            if 16*u + 15 - self.RING > self.consumed: break
            for q in range(4):
                self.pend.append((("u", u, q), (lambda u=u, q=q: self.emit_dma(u, q))))
            self.units_queued += 1; n += 1
        self.resort()

    def resort(self):
        ctx = getattr(self, "loop_ctx", None)
        if ctx is None: return
        F0, NT, S = ctx
        def key(e):
            t = e[0]
            if t[0] == "a": return t[2]
            F = 16*t[1]
            if F + 15 < F0: return -100
            st = max(0, (F - F0)//NT)
            if st >= S: return 1000 + t[1]
            return 4*(st//4) - 2 - 1
        self.pend.sort(key=key)

    def emit_dma(self, u, q, track=True):
        I = self.I
        if q == 0:
            F = 16*u
            if F < 304: base, off = self.S_WA, F*1024
            elif F < 448: base, off = self.S_W3, (F-304)*1024
            else: base, off = self.S_W4, (F-448)*1024
            slot = (F % self.RING)*1024
            I(f"s_add_u32 s{self.S_DM}, s{self.S_LW}, {slot}\ns_mov_b32 m0, s{self.S_DM}\ns_add_u32 s{self.S_DS}, s{base}, {off}")
        I(f"buffer_load_dwordx4 v{V_L16}, {sr(S_WS)}, s{self.S_DS} offen offset:{1024*q} lds")
        if track:
            self.vm_issue(("u", u) if q == 3 else ("ux", u, q))
            if q == 3: self.units_issued = u + 1

    def drip(self, n=1):
        while n > 0 and self.pend:
            tag, fn = self.pend.pop(0)
            fn(); n -= 1

    def flush_until(self, tag):
        if not any(t == tag for t, _ in self.pend): return
        while True:
            t, fn = self.pend.pop(0)
            fn()
            if t == tag: return

    def need_units(self, Fmax):
        u = Fmax // 16
        assert u < self.units_queued, (u, self.units_queued)
        self.flush_until(("u", u, 3))
        self.vm_wait(("u", u))

    def gemm(self, S, NT, F0, aops, abases, burst, rate, cap=99, post_barrier=True, resident=False, chunk=4, accf=None, filler=None, fill_n=0):
        I = self.I
        WB, ACC, T = self.WB, self.ACC, self.GT
        nt = len(abases)
        vb = [T, T+1, T+2]
        stride = 4*NT
        if accf is None: accf = lambda tt, j: ACC + 4*(tt*NT + j)
        filler = list(filler or [])
        def rd1(s, j):
            off = ((F0 + s*NT + j) % self.RING)*1024
            k, o = divmod(off, 61440)
            I(f"ds_read_b128 {vr(WB + stride*(s % 3) + 4*j)}, v{vb[k]} offset:{o}")
        while self.pend and self.pend[0][0][0] == "u" and self.pend[0][0][2] != 0: self.drip(1)
        keep = []
        if resident:
            keep = [e for e in self.pend if e[0][0] == "u"]
            self.pend = []
        self.pend = list(aops) + self.pend
        self.loop_ctx = (F0, NT, S)
        if not resident: self.refill(cap)
        self.drip(burst)
        for j in range(NT): rd1(0, j)
        for j in range(NT): rd1(1, j)
        acc_rate = 0.0
        for s in range(S):
            if not resident and s + 2 < S and (s + 2) % chunk == 0:
                last = min(S, s + 2 + chunk) - 1
                if F0 + last*NT + NT - 1 > self.visible or self.units_queued < self.NUNITS:
                    self.need_units(F0 + last*NT + NT - 1)
                    I("s_barrier")
                    self.visible = max(self.visible, F0 + last*NT + NT - 1)
                    self.consumed = max(self.consumed, F0 + (s-1)*NT + NT - 1)
                    self.refill(cap)
            if self.detail == F0 and s % 4 == 0: self.stamp(f"d_k{s}")
            nout = NT if s + 1 < S else 0
            I(f"s_waitcnt lgkmcnt({min(nout, 15)})")
            for tt in range(nt):
                self.flush_until(("a", tt, s))
                self.vm_wait(("a", tt, s))
            acc_rate += rate
            nm = nt*NT
            slots = []
            while acc_rate >= 1.0:
                slots.append(1); acc_rate -= 1.0
            pos = {(k*nm)//max(1, len(slots)) : 0 for k in range(len(slots))}
            for k in range(len(slots)): pos[(k*nm)//len(slots)] += 1
            i = 0
            for tt in range(nt):
                for j in range(NT):
                    c = '0' if s == 0 else vr(accf(tt, j))
                    I(f"v_mfma_f32_16x16x32_bf16 {vr(accf(tt, j))}, {vr(WB+stride*(s%3)+4*j)}, {ar(abases[tt]+4*s)}, {c}")
                    if i < NT and s + 2 < S: rd1(s+2, i)
                    if pos.get(i): self.drip(pos[i])
                    for _ in range(fill_n):
                        if filler: I(filler.pop(0))
                    i += 1
        for x in filler: I(x)
        self.pending_consumed = {299: 303, 443: 447}.get(F0 + S*NT - 1, F0 + S*NT - 1)
        self.loop_ctx = None
        self.pend = self.pend + keep
        if post_barrier:
            I("s_barrier")
            self.after_barrier()
            self.refill()
            self.drip({0: self.post_drip, 100: self.post_drip, 200: self.post_drip2, 384: self.post_drip3, 304: self.post_drip3}.get(F0, 0))

    def after_barrier(self):
        self.consumed = max(self.consumed, getattr(self, "pending_consumed", -1))

    def lds_bases(self):
        T = self.GT
        self.I(f"v_mov_b32 v{T}, v{V_L16}\nv_add_u32 v{T+1}, 61440, v{V_L16}\nv_add_u32 v{T+2}, {2*61440}, v{V_L16}")

    def a_op(self, tt, s, abase, vaddr, base_sreg, base_add, soff_reg, split=(), vaddr8=None):
        def fn():
            if s % 4 == 0:
                if base_sreg is None: self.I(f"s_mov_b32 s{soff_reg}, {base_add + 1024*s}")
                else: self.I(f"s_add_u32 s{soff_reg}, s{base_sreg}, {base_add + 1024*s}")
            r = abase + 4*s
            if s in split:
                self.I(f"buffer_load_dwordx2 a[{r}:{r+1}], v{vaddr8}, {sr(S_WS)}, s{soff_reg} offen offset:{1024*(s % 4)} sc1")
                self.vm_issue(("ah", tt, s))
                self.I(f"buffer_load_dwordx2 a[{r+2}:{r+3}], v{vaddr8}, {sr(S_WS)}, s{soff_reg} offen offset:{1024*(s % 4)+512} sc1")
            else:
                self.I(f"buffer_load_dwordx4 {ar(r)}, v{vaddr}, {sr(S_WS)}, s{soff_reg} offen offset:{1024*(s % 4)} sc1")
            self.vm_issue(("a", tt, s))
        return (("a", tt, s), fn)

    RAW_GA, RAW_SB, RAW_CB, RAW_GB = 140, 150, 214, 240
    def mod_fetch(self):
        I = self.I
        I(f"v_lshlrev_b32 v244, 4, v{V_G}\nv_add_u32 v244, {self.L_MODW}, v244")
        for (dst, off, acc) in ((self.RAW_GA, 0, False), (self.RAW_SB, 2560, False), (self.RAW_CB, 4096, False), (self.RAW_GB, 4096+2560, True)):
            for j in range(5):
                r = f"a[{dst+2*j}:{dst+2*j+1}]" if acc else f"v[{dst+2*j}:{dst+2*j+1}]"
                I(f"ds_read_b64 {r}, v244 offset:{off + 64*j}")

    def mod_unpack(self):
        I = self.I
        for src, dst in ((self.RAW_GA, self.MS_GA), (self.RAW_SB, self.MS_SB), (self.RAW_CB, self.MS_A2)):
            for i in range(10):
                I(f"v_lshlrev_b32 v{dst+2*i}, 16, v{src+i}\nv_and_b32 v{dst+2*i+1}, 0xffff0000, v{src+i}")
        self.one_plus_bf16(self.MS_A2, 20)

    def one_plus_bf16(self, r, n):
        I = self.I
        for i in range(0, n, 2):
            I(f"""
            v_add_f32 v{r+i}, 1.0, v{r+i}
            v_add_f32 v{r+i+1}, 1.0, v{r+i+1}
            v_cvt_pk_bf16_f32 v{r+i}, v{r+i}, v{r+i+1}
            v_and_b32 v{r+i+1}, 0xffff0000, v{r+i}
            v_lshlrev_b32 v{r+i}, 16, v{r+i}
            """)

    def ln_stats(self, src, which, mu, rs, code, fine=0):
        I = self.I
        T = self.GT + 4
        I(f"v_pk_add_f32 v[{T}:{T+1}], v[{src}:{src+1}], v[{src+2}:{src+3}]\nv_pk_mul_f32 v[{T+2}:{T+3}], v[{src}:{src+1}], v[{src}:{src+1}]")
        I(f"v_pk_fma_f32 v[{T+2}:{T+3}], v[{src+2}:{src+3}], v[{src+2}:{src+3}], v[{T+2}:{T+3}]")
        for i in range(4, 20, 2):
            I(f"v_pk_add_f32 v[{T}:{T+1}], v[{T}:{T+1}], v[{src+i}:{src+i+1}]\nv_pk_fma_f32 v[{T+2}:{T+3}], v[{src+i}:{src+i+1}], v[{src+i}:{src+i+1}], v[{T+2}:{T+3}]")
            if i in (8, 14): self.drip(fine)
        I(f"v_add_f32 v{T}, v{T}, v{T+1}\nv_add_f32 v{T+1}, v{T+2}, v{T+3}")
        self.reduce_g([T, T+1], T+4)
        I(f"""
        v_mov_b32 v{T+2}, s{S_TAG}
        v_mov_b32 v{T+3}, s{S_TAG+1}
        s_lshl_b32 s{ST+4}, s{S_RB}, 13
        s_lshl_b32 s{ST+5}, s{S_WV}, 8
        s_add_u32 s{ST+4}, s{ST+4}, s{ST+5}
        s_add_u32 s{ST+4}, s{ST+4}, {STAT + which*STAT_SZ}
        s_lshl_b32 s{ST+5}, s{S_M}, 10
        s_add_u32 s{ST+5}, s{ST+5}, s{ST+4}
        v_lshlrev_b32 v{T+4}, 4, v{V_T}
        s_mov_b64 exec, 0xffff
        """)
        self.dual(lambda f: I(f"buffer_store_dwordx4 {vr(T)}, v{T+4}, {sr(S_WS)}, s{ST+5} offen{f}"))
        I("s_mov_b64 exec, -1")
        if self.detail == 2: self.stamp(f"e_st{which}")
        I(f"""
        s_mov_b64 exec, -1
        v_lshl_add_u32 v{T+5}, v{V_G}, 11, v{T+4}
        s_mov_b32 s{ST}, {TIMEOUT}
        """)
        lp = self.b.uid("L_ls"); ok = self.b.uid("L_lsok"); lchk = self.b.uid("L_lsc")
        I(f"""
        buffer_load_dwordx4 {vr(T+8)}, v{T+5}, {sr(S_WS)}, s{ST+4} offen sc1
        buffer_load_dwordx4 {vr(T+12)}, v{T+5}, {sr(S_WS)}, s{ST+4} offen offset:1024 sc1
        """)
        n0 = len(self.vmq)
        self.drip(self.shadow_s)
        nsh = len(self.vmq) - n0
        I(f"""
        s_waitcnt vmcnt({nsh})
        s_branch {lchk}
        {lp}:
        buffer_load_dwordx4 {vr(T+8)}, v{T+5}, {sr(S_WS)}, s{ST+4} offen sc1
        buffer_load_dwordx4 {vr(T+12)}, v{T+5}, {sr(S_WS)}, s{ST+4} offen offset:1024 sc1
        s_waitcnt vmcnt(0)
        {lchk}:
        v_cmp_ne_u32 vcc, s{S_TAG}, v{T+10}
        s_mov_b64 s[{ST+2}:{ST+3}], vcc
        v_cmp_ne_u32 vcc, s{S_TAG+1}, v{T+11}
        s_or_b64 s[{ST+2}:{ST+3}], s[{ST+2}:{ST+3}], vcc
        v_cmp_ne_u32 vcc, s{S_TAG}, v{T+14}
        s_or_b64 s[{ST+2}:{ST+3}], s[{ST+2}:{ST+3}], vcc
        v_cmp_ne_u32 vcc, s{S_TAG+1}, v{T+15}
        s_or_b64 s[{ST+2}:{ST+3}], s[{ST+2}:{ST+3}], vcc
        s_cmp_eq_u64 s[{ST+2}:{ST+3}], 0
        s_cbranch_scc1 {ok}
        """)
        self.spin_tail(ST, lp, code)
        self.vmq = self.vmq[len(self.vmq)-nsh:] if nsh else []
        I(f"{ok}:")
        if self.detail == 2: self.stamp(f"e_got{which}")
        I(f"""
        v_add_f32 v{T}, v{T+8}, v{T+12}
        v_add_f32 v{T+1}, v{T+9}, v{T+13}
        """)
        self.reduce_g([T, T+1], T+4)
        I(f"""
        v_mul_f32 v{mu}, {1.0/640!r}, v{T}
        v_mul_f32 v{T+1}, {1.0/640!r}, v{T+1}
        v_fma_f32 v{T+1}, -v{mu}, v{mu}, v{T+1}
        v_max_f32 v{T+1}, 0, v{T+1}
        v_add_f32 v{T+1}, 0x3727c5ac, v{T+1}
        v_rsq_f32 v{rs}, v{T+1}
        s_nop 0
        v_mul_f32 v{mu}, -v{mu}, v{rs}
        v_mov_b32 v{rs+1}, v{rs}
        v_mov_b32 v{mu+1}, v{mu}
        """)

    V_L8 = 203
    SPLIT20 = (2, 7, 12, 17)
    SPLIT54 = (3, 10, 17, 24, 31, 38)
    def pack_tiles(self, src, ntile, dst=None):
        if dst is None: dst = src
        for j in range(ntile):
            a = src + 4*j; d = dst + 2*j
            self.I(f"v_cvt_pk_bf16_f32 v{d}, v{a}, v{a+1}\nv_cvt_pk_bf16_f32 v{d+1}, v{a+2}, v{a+3}")

    def store_frag(self, pk, ntile, base_sreg, tile0_sreg, skip_last_sreg=None, force_sc1=False, count=True):
        I = self.I
        lodd = self.b.uid("L_so"); lj = self.b.uid("L_sj")
        I(f"""
        s_lshr_b32 s{ST+5}, s{tile0_sreg}, 1
        s_lshl_b32 s{ST+5}, s{ST+5}, 10
        s_add_u32 s{ST+5}, s{ST+5}, s{base_sreg}
        s_bitcmp1_b32 s{tile0_sreg}, 0
        s_cbranch_scc1 {lodd}
        """)
        def variant(odd, f):
            if not odd:
                for p in range(ntile//2):
                    I(f"buffer_store_dwordx4 {vr(pk+4*p)}, v{V_L16}, {sr(S_WS)}, s{ST+5} offen offset:{1024*p}{f}")
                if ntile % 2:
                    lab = None
                    if skip_last_sreg is not None:
                        lab = self.b.uid("L_sk")
                        I(f"s_cmp_lg_u32 s{skip_last_sreg}, 0\ns_cbranch_scc1 {lab}")
                    j = ntile-1
                    I(f"buffer_store_dwordx2 v[{pk+2*j}:{pk+2*j+1}], v{self.V_L8}, {sr(S_WS)}, s{ST+5} offen offset:{1024*(ntile//2)}{f}")
                    if lab: I(f"{lab}:")
            else:
                I(f"buffer_store_dwordx2 v[{pk}:{pk+1}], v{self.V_L8}, {sr(S_WS)}, s{ST+5} offen offset:512{f}")
                for p in range(ntile//2):
                    I(f"buffer_store_dwordx4 {vr(pk+2+4*p)}, v{V_L16}, {sr(S_WS)}, s{ST+5} offen offset:{1024*(p+1)}{f}")
        if force_sc1: variant(False, " sc1")
        else: self.dual(lambda f: variant(False, f))
        I(f"s_branch {lj}\n{lodd}:")
        if force_sc1: variant(True, " sc1")
        else: self.dual(lambda f: variant(True, f))
        I(f"{lj}:")
        if count:
            for j in range(ntile//2): self.vm_issue(("st",))

    def tile_base(self, dst_sreg, tt_sreg, S, base_off):
        self.I(f"s_mul_i32 s{dst_sreg}, s{tt_sreg}, {S*1024}\ns_add_u32 s{dst_sreg}, s{dst_sreg}, {base_off}")

    def gelu(self, r, n, drip=0):
        I = self.I
        T = self.GT + 4
        c1 = -2.0 * 0.7978845608028654 * 1.4426950408889634
        c2 = c1 * 0.044715
        C1, ONE = T+8, T+10
        I(f"""
        s_mov_b32 s{ST+8}, {hex(f2u(c2))}
        s_mov_b32 s{ST+9}, {hex(f2u(c2))}
        v_mov_b32 v{C1}, {hex(f2u(c1))}
        v_mov_b32 v{C1+1}, {hex(f2u(c1))}
        v_mov_b32 v{ONE}, 1.0
        v_mov_b32 v{ONE+1}, 1.0
        """)
        P = lambda x: f"v[{x}:{x+1}]"
        for i in range(0, n, 4):
            x0, x1, t0, t1 = r+i, r+i+2, T, T+2
            I(f"v_pk_mul_f32 {P(t0)}, {P(x0)}, {P(x0)}\nv_pk_mul_f32 {P(t1)}, {P(x1)}, {P(x1)}")
            I(f"v_pk_fma_f32 {P(t0)}, {P(t0)}, s[{ST+8}:{ST+9}], {P(C1)}\nv_pk_fma_f32 {P(t1)}, {P(t1)}, s[{ST+8}:{ST+9}], {P(C1)}")
            I(f"v_pk_mul_f32 {P(t0)}, {P(t0)}, {P(x0)}\nv_pk_mul_f32 {P(t1)}, {P(t1)}, {P(x1)}")
            for q in range(4): I(f"v_exp_f32 v{T+q}, v{T+q}")
            I(f"v_pk_add_f32 {P(t0)}, {P(t0)}, {P(ONE)}\nv_pk_add_f32 {P(t1)}, {P(t1)}, {P(ONE)}")
            for q in range(4): I(f"v_rcp_f32 v{T+q}, v{T+q}")
            I(f"v_pk_mul_f32 {P(x0)}, {P(x0)}, {P(t0)}\nv_pk_mul_f32 {P(x1)}, {P(x1)}, {P(t1)}")
            self.drip(drip)

    def collect(self, fn):
        saved = self.b.items
        self.b.items = []
        fn()
        out = [it.text for it in self.b.items if isinstance(it, Ins)]
        self.b.items = saved
        return out

    def phase_entry(self, ph_wait, lines, code, F0, NT, between=None, upto=None):
        last = F0 + 4*NT - 1 if upto is None else upto
        self.need_units(last)
        self.I("s_barrier")
        self.visible = max(getattr(self, "visible", -1), last)
        self.after_barrier()
        if self.detail == F0: self.stamp("d_bar")
        self.wait_flags(ph_wait, lines, code)
        if self.detail == F0: self.stamp("d_flags")
        if self.detail == 2: self.stamp(f"e_fl{ph_wait}")

    def small_gemm(self, F0, act, ph_wait, rbs, code, shift=False, between=None, pf=()):
        I, C = self.I, self.C
        self.phase_entry(ph_wait, rbs, code, F0, 5, between, upto=(F0+99 if self.resident else None))
        if not shift:
            I(f"s_mul_i32 s{self.S_SRC}, s{S_TT}, {20*1024}\ns_add_u32 s{self.S_SRC}, s{self.S_SRC}, {act}")
            aops = [self.a_op(0, s, 16, V_L16, self.S_SRC, 0, self.S_AO, self.SPLIT20, self.V_L8) for s in range(20)]
        else:
            T = self.GT + 8
            I(f"s_lshl_b32 s{ST+4}, s{S_TT}, 4\ns_lshr_b32 s{ST+5}, s{S_RB}, 2")
            for q, dl in enumerate((-1, 1, -2, 2)):
                side = 1 if dl < 0 else 0
                I(f"""
                v_add_u32 v{T+4}, s{ST+4}, v{V_T}
                v_add_u32 v{T+4}, {dl & 0xffffffff}, v{T+4}          ; token'
                v_lshrrev_b32 v{T+5}, 4, v{T+4}
                v_mul_u32_u24 v{T+5}, 20480, v{T+5}
                v_add_u32 v{T+5}, {act}, v{T+5}
                v_lshrrev_b32 v{T+6}, 8, v{T+4}
                v_lshlrev_b32 v{T+7}, 1, v{T+6}
                v_add_u32 v{T+7}, {side}, v{T+7}
                v_mul_u32_u24 v{T+7}, 20480, v{T+7}
                v_add_u32 v{T+7}, {HG}, v{T+7}
                v_cmp_eq_u32 vcc, s{ST+5}, v{T+6}
                v_cndmask_b32 v{T+5}, v{T+7}, v{T+5}, vcc
                v_and_b32 v{T+6}, 15, v{T+4}
                v_lshl_add_u32 v{T+6}, v{V_G}, 4, v{T+6}              ; g*16 + t'
                v_lshl_add_u32 v{T+7}, v{T+6}, 3, v{T+5}
                v_lshl_add_u32 v{T+5}, v{T+6}, 4, v{T+5}
                v_cmp_gt_u32 vcc, 0x800, v{T+4}
                v_mov_b32 v{T+6}, 0x80000000
                v_cndmask_b32 v{T+q}, v{T+6}, v{T+5}, vcc
                v_cndmask_b32 v{self.GT+20+q}, v{T+6}, v{T+7}, vcc
                """)
            aops = [self.a_op(0, s, 16, T + s // 5, None, 0, self.S_AO, self.SPLIT20, self.GT + 20 + s // 5) for s in range(20)]
        if self.use_pf: aops += [(("a", 9, 19), (lambda p=p: self.pf_op(*p))) for p in pf]
        if (self.h4t_where == 1 and F0 == self.F_W1) or (self.h4t_where == 2 and F0 == self.F_W2) or (self.h4t_where == 4 and F0 == self.F_WO):
            def h4t():
                self.act_touch(H4F, 54*1024); self.vm_issue(("pf",))
            aops.append((("a", 9, 19), h4t))
        self.gemm(20, 5, F0, aops, [16], burst=self.burst, rate=self.rate_small, cap=self.cap_small, resident=self.resident)

    def phase_wo(self):
        I, C = self.I, self.C
        X2, H, ACC, T = self.X2, self.H, self.ACC, self.GT
        self.lds_bases()
        self.mod_unpack()
        for j in range(5):
            for q in range(2):
                I(f"v_accvgpr_read_b32 v{T+4}, a{2*j+q}")
                I(f"v_lshlrev_b32 v{X2+4*j+2*q}, 16, v{T+4}\nv_and_b32 v{X2+4*j+2*q+1}, 0xffff0000, v{T+4}")
        self.small_gemm(self.F_WO, OF, PH_O, [S_TT], 6, pf=[("3", 0)])
        self.stamp("wo_mm")
        P = lambda x: f"v[{x}:{x+1}]"
        f = self.fine
        for i in range(0, 20, 2): I(f"v_pk_fma_f32 {P(X2+i)}, {P(self.MS_GA+i)}, {P(ACC+i)}, {P(X2+i)}")
        mu, rs = T+30, T+32
        self.ln_stats(X2, 0, mu, rs, 7, fine=f)
        for i in range(0, 20, 2):
            I(f"v_pk_fma_f32 {P(H+i)}, {P(X2+i)}, {P(rs)}, {P(mu)}")
            I(f"v_pk_fma_f32 {P(H+i)}, {P(H+i)}, {P(self.MS_A2+i)}, {P(self.MS_SB+i)}")
            if i in (0, 8): self.drip(f)
        self.ln_stats(H, 1, mu, rs, 8, fine=f)
        self.drip(f)
        for i in range(0, 20, 2): I(f"v_pk_fma_f32 {P(ACC+i)}, {P(H+i)}, {P(rs)}, {P(mu)}")
        self.pack_tiles(ACC, 5)
        self.tile_base(ST+4, S_TT, 20, L2F)
        self.store_frag(ACC, 5, ST+4, self.S_T5)
        self.publish_drip(PH_L2)
        self.stamp("l2pub")

    def phase_w1(self):
        I = self.I
        self.small_gemm(self.F_W1, L2F, PH_L2, [S_TT], 9, pf=[("3", 1)])
        self.stamp("w1_mm")
        self.gelu(self.ACC, 20, drip=self.gd1)
        self.pack_tiles(self.ACC, 5)
        self.tile_base(ST+4, S_TT, 20, GF)
        self.store_frag(self.ACC, 5, ST+4, self.S_T5)
        lab = self.b.uid("L_hal")
        I(f"""
        s_and_b32 s{ST+6}, s{S_TT}, 15
        s_add_u32 s{ST+6}, s{ST+6}, 1
        s_and_b32 s{ST+7}, s{ST+6}, 14
        s_cmp_eq_u32 s{ST+7}, 0
        s_cbranch_scc0 {lab}
        s_lshr_b32 s{ST+7}, s{S_TT}, 4
        s_lshl_b32 s{ST+7}, s{ST+7}, 1
        s_lshr_b32 s{ST+6}, s{ST+6}, 4
        s_add_u32 s{ST+7}, s{ST+7}, s{ST+6}
        s_mul_i32 s{ST+4}, s{ST+7}, 20480
        s_add_u32 s{ST+4}, s{ST+4}, {HG}
        """)
        self.store_frag(self.ACC, 5, ST+4, self.S_T5, force_sc1=True, count=False)
        I(f"{lab}:")
        self.publish_drip(PH_G, both=True)
        self.stamp("gpub")

    def phase_w2(self):
        I = self.I
        X2, H, ACC, T = self.X2, self.H, self.ACC, self.GT
        I(f"""
        s_sub_u32 s{ST+10}, s{S_TT}, 1
        s_max_i32 s{ST+10}, s{ST+10}, 0
        s_add_u32 s{ST+11}, s{S_TT}, 1
        s_min_u32 s{ST+11}, s{ST+11}, 127
        """)
        self.small_gemm(self.F_W2, GF, PH_G, [S_TT, ST+10, ST+11], 10, shift=True, pf=[("4", 0)])
        self.stamp("w2_mm")
        P = lambda x: f"v[{x}:{x+1}]"
        for i in range(0, 20, 2): I(f"v_pk_add_f32 {P(H+i)}, {P(H+i)}, {P(ACC+i)}")
        mu, rs = T+30, T+32
        self.ln_stats(H, 2, mu, rs, 11, fine=self.fine)
        self.drip(self.fine)
        for i in range(0, 20, 2): I(f"v_pk_fma_f32 {P(ACC+i)}, {P(H+i)}, {P(rs)}, {P(mu)}")
        self.pack_tiles(ACC, 5)
        self.tile_base(ST+4, S_TT, 20, L3F)
        self.store_frag(ACC, 5, ST+4, self.S_T5)
        self.publish_drip(PH_L3)
        self.stamp("l3pub")

    def phase_w3(self):
        I, C = self.I, self.C
        ACC = self.ACC
        m16, t0, skip, rbA, rbB, ttb = ST+10, ST+11, ST+12, ST+13, ST+14, ST+15
        I(f"""
        s_and_b32 s{m16}, s{S_RB}, 1
        s_lshl_b32 s{m16}, s{m16}, 3
        s_add_u32 s{m16}, s{m16}, s{S_M}
        s_mul_i32 s{t0}, s{m16}, 7
        s_sub_u32 s{ST}, s{m16}, 12
        s_max_i32 s{ST}, s{ST}, 0
        s_sub_u32 s{t0}, s{t0}, s{ST}
        s_cmp_ge_u32 s{m16}, 12
        s_cselect_b32 s{skip}, 1, 0
        s_and_b32 s{rbA}, s{S_RB}, 30
        s_add_u32 s{rbB}, s{rbA}, 1
        s_lshl_b32 s{ttb}, s{rbA}, 2
        s_lshl_b32 s{ST}, s{S_WV}, 1
        s_add_u32 s{ttb}, s{ttb}, s{ST}
        """)
        I(f"s_add_u32 s{rbA}, s{ttb}, 1")
        self.phase_entry(PH_L3, [ttb, rbA], 12, self.F_W3, 4 if self.w3split else 7)
        I(f"s_mul_i32 s{self.S_SRC}, s{ttb}, {20*1024}\ns_add_u32 s{self.S_SRC}, s{self.S_SRC}, {L3F}")
        aops = []
        for s in range(20):
            aops.append(self.a_op(0, s, 16, V_L16, self.S_SRC, 0, self.S_AO, self.SPLIT20, self.V_L8))
            aops.append(self.a_op(1, s, 96, V_L16, self.S_SRC, 20*1024, self.S_AO2, self.SPLIT20, self.V_L8))
        if self.use_pf: aops.insert(16, (("a", 9, 8), (lambda: self.pf_op("4", 1))))
        def h4t():
            self.act_touch(H4F, 54*1024); self.vm_issue(("pf",))
        if self.h4t_where == 3: aops.append((("a", 9, 19), h4t))
        if not self.w3split:
            self.gemm(20, 7, self.F_W3, aops, [16, 96], burst=2*self.burst, rate=self.rate_w3)
            self.stamp("w3_mm")
            self.gelu(ACC, 56, drip=self.gd3)
        else:
            self.gemm(20, 4, self.F_W3, aops, [16, 96], burst=2*self.burst, rate=self.rate_w3a, accf=lambda tt, j: ACC + 28*tt + 4*j, post_barrier=False)
            F2 = self.F_W3 + 80
            self.need_units(F2 + 4*3 - 1)
            I("s_barrier")
            self.visible = max(self.visible, F2 + 11)
            self.after_barrier()
            fill = self.collect(lambda: (self.gelu(ACC, 16), self.gelu(ACC+28, 16)))
            self.gemm(20, 3, F2, [], [16, 96], burst=0, rate=self.rate_w3b, accf=lambda tt, j: ACC + 28*tt + 16 + 4*j, filler=fill, fill_n=self.fill_n)
            self.stamp("w3_mm")
            self.gelu(ACC+16, 12, drip=self.gd3)
            self.gelu(ACC+44, 12, drip=self.gd3)
        self.pack_tiles(ACC, 7)
        self.pack_tiles(ACC+28, 7)
        self.tile_base(ST+4, ttb, 54, H4F)
        self.store_frag(ACC, 7, ST+4, t0, skip_last_sreg=skip)
        I(f"s_add_u32 s{ST+4}, s{ST+4}, {54*1024}")
        self.store_frag(ACC+28, 7, ST+4, t0, skip_last_sreg=skip)
        self.publish_drip(PH_H4)
        self.stamp("h4pub")

    def phase_w4(self):
        I, C = self.I, self.C
        X2, H, ACC, T = self.X2, self.H, self.ACC, self.GT
        rbA, rbB = ST+13, ST+14
        I(f"""
        s_and_b32 s{rbA}, s{S_TT}, 7
        s_lshr_b32 s{rbA}, s{rbA}, 1
        s_and_b32 s{rbB}, s{S_RB}, 30
        s_lshl_b32 s{rbB}, s{rbB}, 2
        s_add_u32 s{rbA}, s{rbA}, s{rbB}
        s_add_u32 s{rbB}, s{rbA}, 4
        """)
        self.phase_entry(PH_H4, [rbA, rbB], 13, self.F_W4, 5, upto=(607 if self.resident else None))
        I(f"s_mul_i32 s{self.S_SRC}, s{S_TT}, {54*1024}\ns_add_u32 s{self.S_SRC}, s{self.S_SRC}, {H4F}")
        if self.wb_early:
            lab = self.b.uid("L_wb")
            I(f"""
            s_lshr_b32 s{ST}, s{S_W}, 3
            s_lshl_b32 s{ST}, s{ST}, 2
            s_add_u32 s{ST}, s{ST}, s{S_WV}
            s_cmp_lg_u32 s{ST}, {self.wb_who}
            s_cbranch_scc1 {lab}
            buffer_wbl2 sc1
            {lab}:
            """)
        aops = [self.a_op(0, s, 16, V_L16, self.S_SRC, 0, self.S_AO, self.SPLIT54, self.V_L8) for s in range(54)]
        self.gemm(54, 5, self.F_W4, aops, [16], burst=self.burst4, rate=self.rate_w4, post_barrier=False, chunk=self.chunk4)
        self.stamp("w4_mm")
        MS = self.WB
        for j in range(5):
            I(f"""
            v_accvgpr_read_b32 v{T+4}, a{self.RAW_GB+2*j}
            v_accvgpr_read_b32 v{T+5}, a{self.RAW_GB+2*j+1}
            v_lshlrev_b32 v{MS+4*j}, 16, v{T+4}
            v_and_b32 v{MS+4*j+1}, 0xffff0000, v{T+4}
            v_lshlrev_b32 v{MS+4*j+2}, 16, v{T+5}
            v_and_b32 v{MS+4*j+3}, 0xffff0000, v{T+5}
            """)
        for i in range(0, 20, 2):
            I(f"v_pk_add_f32 v[{ACC+i}:{ACC+i+1}], v[{ACC+i}:{ACC+i+1}], v[{H+i}:{H+i+1}]")
            I(f"v_pk_fma_f32 v[{ACC+i}:{ACC+i+1}], v[{ACC+i}:{ACC+i+1}], v[{MS+i}:{MS+i+1}], v[{X2+i}:{X2+i+1}]")
        self.srd(S_A, P_OUT, 2048*1280)
        I(f"""
        s_lshl_b32 s{ST}, s{S_TT}, 4
        v_add_u32 v{T+4}, s{ST}, v{V_T}
        v_mul_u32_u24 v{T+4}, 1280, v{T+4}
        v_lshl_add_u32 v{T+4}, v{V_G}, 3, v{T+4}
        s_mul_i32 s{ST}, s{S_M}, 160
        """)
        self.pack_tiles(ACC, 5)
        for j in range(5):
            a = ACC + 2*j
            I(f"buffer_store_dwordx2 v[{a}:{a+1}], v{T+4}, {sr(S_A)}, s{ST} offen offset:{32*j}{' sc1' if self.out_sc1 else ''}")
        self.stamp("out")

    def l2_prefetch(self, which, part):
        I = self.I
        T = 246
        rbl = ST + 4
        I(f"v_lshlrev_b32 v{T}, 7, v{V_L}\ns_and_b32 s{rbl}, s{S_RB}, 3")
        if which == "A":
            base, start, chunk, shl = self.S_WA, 96*1024, 6656, 0
        elif which == "3":
            base, start, chunk, shl = self.S_W3, 0, 9216, 1
        else:
            base, start, chunk, shl = self.S_W4, 0, 8704, 0
        I(f"""
        s_lshr_b32 s{ST+5}, s{rbl}, {shl}
        s_lshl_b32 s{ST+5}, s{ST+5}, 2
        s_add_u32 s{ST+5}, s{ST+5}, s{S_WV}
        s_lshl_b32 s{ST+5}, s{ST+5}, 1
        s_add_u32 s{ST+5}, s{ST+5}, {part}
        s_mul_i32 s{ST+5}, s{ST+5}, {chunk}
        s_add_u32 s{ST+5}, s{ST+5}, s{base}
        s_sub_u32 s{ST+5}, s{ST+5}, s{self.S_LW}
        s_add_u32 s{ST+5}, s{ST+5}, {start}
        """)
        if chunk < 8192:
            I(f"v_cmp_gt_u32 vcc, {chunk//128}, v{V_L}\ns_and_saveexec_b64 s[{ST+6}:{ST+7}], vcc")
        I(f"buffer_load_dword a254, v{T}, {sr(S_WS)}, s{ST+5} offen")
        if chunk < 8192:
            I(f"s_mov_b64 exec, s[{ST+6}:{ST+7}]")
        if chunk > 8192:
            I(f"s_add_u32 s{ST+5}, s{ST+5}, 8192\nv_cmp_gt_u32 vcc, {(chunk-8192)//128}, v{V_L}\ns_and_saveexec_b64 s[{ST+6}:{ST+7}], vcc")
            I(f"buffer_load_dword a253, v{T}, {sr(S_WS)}, s{ST+5} offen")
            I(f"s_mov_b64 exec, s[{ST+6}:{ST+7}]")
        return 2 if chunk > 8192 else 1

    def tlb_touch(self):
        I = self.I
        n = (WS_END + (1 << 20) - 1) >> 20
        I(f"""
        v_lshlrev_b32 v245, 20, v{V_L}
        v_cmp_gt_u32 vcc, {n}, v{V_L}
        s_and_saveexec_b64 s[{ST+6}:{ST+7}], vcc
        buffer_load_dword a255, v245, {sr(S_WS)}, 0 offen
        s_mov_b64 exec, s[{ST+6}:{ST+7}]
        """)

    def mall_touch(self, base, nbytes):
        I = self.I
        per_wave = -(-nbytes // 1024 // 128) * 128
        lines = per_wave // 128
        assert lines <= 128
        I(f"""
        v_lshlrev_b32 v245, 7, v{V_L}
        s_lshl_b32 s{ST+5}, s{S_W}, 2
        s_add_u32 s{ST+5}, s{ST+5}, s{S_WV}
        s_mul_i32 s{ST+5}, s{ST+5}, {per_wave}
        s_add_u32 s{ST+5}, s{ST+5}, {base}
        """)
        n0 = min(lines, 64)
        if n0 < 64: I(f"v_cmp_gt_u32 vcc, {n0}, v{V_L}\ns_and_saveexec_b64 s[{ST+6}:{ST+7}], vcc")
        I(f"buffer_load_dword a255, v245, {sr(S_WS)}, s{ST+5} offen")
        if n0 < 64: I(f"s_mov_b64 exec, s[{ST+6}:{ST+7}]")

    def act_touch(self, base, per_tile):
        I = self.I
        per_wave = 16*per_tile // 128
        lines = per_wave // 128
        I(f"""
        v_lshlrev_b32 v245, 7, v{V_L}
        s_lshr_b32 s{ST+5}, s{S_RB}, 2
        s_mul_i32 s{ST+5}, s{ST+5}, {16*per_tile}
        s_and_b32 s{ST+6}, s{S_RB}, 3
        s_lshl_b32 s{ST+6}, s{ST+6}, 3
        s_add_u32 s{ST+6}, s{ST+6}, s{S_M}
        s_lshl_b32 s{ST+6}, s{ST+6}, 2
        s_add_u32 s{ST+6}, s{ST+6}, s{S_WV}
        s_mul_i32 s{ST+6}, s{ST+6}, {per_wave}
        s_add_u32 s{ST+5}, s{ST+5}, s{ST+6}
        s_add_u32 s{ST+5}, s{ST+5}, {base}
        """)
        n0 = min(lines, 64)
        if n0 < 64: I(f"v_cmp_gt_u32 vcc, {n0}, v{V_L}\ns_and_saveexec_b64 s[{ST+6}:{ST+7}], vcc")
        I(f"buffer_load_dword a255, v245, {sr(S_WS)}, s{ST+5} offen")
        if n0 < 64: I(f"s_mov_b64 exec, s[{ST+6}:{ST+7}]")

    def sync_touch(self):
        I = self.I
        l3 = self.b.uid("L_st3"); lj = self.b.uid("L_stj")
        I(f"""
        s_cmp_eq_u32 s{S_WV}, 3
        s_cbranch_scc1 {l3}
        v_lshlrev_b32 v245, 7, v{V_L}
        s_mul_i32 s{ST+5}, s{S_WV}, {STAT_SZ}
        s_lshl_b32 s{ST+6}, s{S_RB}, 13
        s_add_u32 s{ST+5}, s{ST+5}, s{ST+6}
        s_add_u32 s{ST+5}, s{ST+5}, {STAT}
        buffer_load_dword a255, v245, {sr(S_WS)}, s{ST+5} offen
        s_branch {lj}
        {l3}:
        v_lshrrev_b32 v245, 4, v{V_L}
        v_lshlrev_b32 v245, 14, v245
        v_and_b32 v244, 15, v{V_L}
        v_lshl_add_u32 v245, v244, 7, v245
        s_and_b32 s{ST+5}, s{S_RB}, 28
        s_lshl_b32 s{ST+5}, s{ST+5}, 9
        s_add_u32 s{ST+5}, s{ST+5}, {CFLAG + CF_LOC}
        buffer_load_dword a255, v245, {sr(S_WS)}, s{ST+5} offen
        s_add_u32 s{ST+5}, s{ST+5}, {4*CF_PH}
        v_lshlrev_b32 v245, 7, v244
        buffer_load_dword a255, v245, {sr(S_WS)}, s{ST+5} offen
        {lj}:
        """)

    def pf_op(self, which, part):
        n = self.l2_prefetch(which, part)
        for i in range(n): self.vm_issue(("pf",))

    def hook_body(self, hooks, k):
        if self.detail == 1: self.stamp(f"h{k}i")
        hooks[k]()
        if self.detail == 1: self.stamp(f"h{k}o")

    L_KV = 108*1024
    S_INC = 75
    S_SLOW = 77
    def kv_dma(self, g):
        I = self.I
        I(f"""
        s_mul_i32 s{ST+5}, s{S_WV}, {KVT}
        s_add_u32 s{ST+4}, s{ST+5}, {self.L_KV + (4*g % 16)*KVT}
        s_mov_b32 m0, s{ST+4}
        s_add_u32 s{ST+5}, s{ST+5}, {KV + 4*g*KVT}
        buffer_load_dwordx4 v{V_L16}, {sr(S_WS)}, s{ST+5} offen lds
        buffer_load_dwordx4 v{V_L16}, {sr(S_WS)}, s{ST+5} offen offset:1024 lds
        buffer_load_dwordx4 v{V_L16}, {sr(S_WS)}, s{ST+5} offen offset:2048 lds
        s_mov_b64 exec, 0xffff
        buffer_load_dwordx4 v{V_L16}, {sr(S_WS)}, s{ST+5} offen offset:3072 lds
        s_mov_b64 exec, -1
        """)

    L_DUMMY = 104*1024
    L_MODW = 96*1024
    def slot_setup(self, kind, arg=0):
        I = self.I
        DS = self.S_DS
        if kind == "unit":
            I(f"s_add_u32 s{DS}, s{self.S_WA}, {(16*arg-16)*1024 & 0xffffffff}\ns_add_u32 s76, s{self.S_LW}, {(16*arg-16)*1024 & 0xffffffff}\ns_mov_b32 s{self.S_INC}, 16384")
            return
        if kind == "act":
            base, per_tile, part = arg
            per_wave = 16*per_tile // 128
            I(f"""
            s_lshr_b32 s{DS}, s{S_RB}, 2
            s_mul_i32 s{DS}, s{DS}, {16*per_tile}
            s_and_b32 s{ST+6}, s{S_RB}, 3
            s_lshl_b32 s{ST+6}, s{ST+6}, 3
            s_add_u32 s{ST+6}, s{ST+6}, s{S_M}
            s_lshl_b32 s{ST+6}, s{ST+6}, 2
            s_add_u32 s{ST+6}, s{ST+6}, s{S_WV}
            s_mul_i32 s{ST+6}, s{ST+6}, {per_wave}
            s_add_u32 s{DS}, s{DS}, s{ST+6}
            s_add_u32 s{DS}, s{DS}, {base + 4096*part}
            """)
        elif kind == "mod":
            I(f"s_mul_i32 s{DS}, s{S_M}, 320\ns_add_u32 s{DS}, s{DS}, {MODG + (2 + 2*arg)*2560}\ns_mov_b32 s76, {self.L_MODW + 4096*arg}\ns_mov_b32 s{self.S_INC}, 0")
            return
        elif kind == "wsa":
            I(f"""
            s_and_b32 s{ST+6}, s{S_RB}, 3
            s_lshl_b32 s{ST+6}, s{ST+6}, 2
            s_add_u32 s{ST+6}, s{ST+6}, s{S_WV}
            s_mul_i32 s{ST+6}, s{ST+6}, {8*1024}
            s_add_u32 s{DS}, s{self.S_WA}, s{ST+6}
            s_sub_u32 s{DS}, s{DS}, s{self.S_LW}
            s_add_u32 s{DS}, s{DS}, {96*1024 + 4096*arg}
            """)
        else:
            I(f"s_mov_b32 s{DS}, {KV}")
        I(f"s_mov_b32 s76, {self.L_DUMMY}")

    def attn_hooks(self):
        I = self.I
        J = {}
        J[15] = (lambda: self.rl_issue(1), 0)
        def j13():
            I("s_waitcnt vmcnt(16)")
            self.rl_store(0); self.rl_store(1)
            self.sync_touch()
        J[13] = (j13, 1)
        def j11():
            I("s_waitcnt vmcnt(16)")
            self.rl_flag()
        J[11] = (j11, 0)
        def j9(): self.xid_issue(); self.rl_poll_issue()
        J[9] = (j9, 1)
        def j8():
            I("s_waitcnt vmcnt(8)")
            self.xid_eval(); self.rl_poll_eval()
            self.ring_regs()
        J[8] = (j8, 0)
        if self.pfA:
            J[7] = (lambda: self.l2_prefetch("A", 0), 1); J[5] = (lambda: self.l2_prefetch("A", 1), 1)
        if self.pf3:
            J[6] = (lambda: self.l2_prefetch("3", 0), 2); J[4] = (lambda: self.l2_prefetch("3", 1), 2)
        if self.pf4:
            J[3] = (lambda: (self.l2_prefetch("4", 0), self.l2_prefetch("4", 1)), 2)
        SL = {16: ("act", (OF, 20480, 0)), 15: ("act", (L2F, 20480, 0)), 14: ("none", 0), 13: ("act", (H4F, 54*1024, 0)), 11: ("act", (H4F, 54*1024, 1)),
              9: ("none", 0), 8: ("unit", 0), 2: ("mod", 0), 1: ("mod", 1)}
        if not ALIAS: SL[14] = ("act", (GF, 20480, 0)); SL[13] = ("act", (L3F, 20480, 0))
        H = {}
        def mk(k):
            def f():
                if k in J and not self.nojobs: J[k][0]()
                if k in SL: self.slot_setup(*(SL[k] if not self.nojobs else ("none", 0)))
            return f
        for k in range(16, 0, -1):
            if k in J or k in SL: H[k] = mk(k)
        return H

    def ring_state_after_attn(self):
        self.units_issued = 6
        self.units_queued = 6
        self.pend = []
        self.consumed = -1
        self.vmq = []

    def build(self, force_slow=False, force_global=False):
        I = self.I
        self.force_global = force_global
        phases = [self.phase_start, self.phase_kv, self.phase_q, self.phase_kvwait,
                  lambda: self.phase_attn(force_slow), self.phase_wo, self.phase_w1, self.phase_w2, self.phase_w3, self.phase_w4]
        self.prologue()
        for i, p in enumerate(phases):
            if i >= self.stop_after: break
            p()
        if self.dbg_time:
            lab = self.b.uid("L_dt")
            self.srd(S_C, P_DBG, 256)
            I(f"""
            s_and_b32 s{ST}, s{S_W}, 63
            s_cmp_lg_u32 s{ST}, 63
            s_cbranch_scc1 {lab}
            s_cmp_lg_u32 s{S_WV}, 0
            s_cbranch_scc1 {lab}
            s_memrealtime s[{ST+2}:{ST+3}]
            s_lshr_b32 s{ST}, s{S_W}, 6
            s_lshl_b32 s{ST}, s{ST}, 2
            s_add_u32 s{ST}, s{ST}, 32
            s_waitcnt lgkmcnt(0)
            s_sub_u32 s{ST+2}, s{ST+2}, s{S_TAG}
            v_mov_b32 v254, s{ST+2}
            v_mov_b32 v253, s{ST}
            buffer_store_dword v254, v253, {sr(S_C)}, 0 offen sc1
            {lab}:
            """)
        I(f"""
        s_waitcnt vmcnt(0) lgkmcnt(0)
        s_endpgm
        L_fail:
        """)
        self.srd(S_C, P_DBG, 256)
        I(f"""
        v_mov_b32 v254, s{S_ERR}
        v_mov_b32 v255, s{S_W}
        v_mov_b32 v253, 16
        buffer_store_dwordx2 v[254:255], v253, {sr(S_C)}, 0 offen sc1
        s_waitcnt vmcnt(0)
        L_end:
        s_endpgm
        L_code_end:
        """)
        text, n = finalize(self.b, check=not (self.x_nords or self.x_nokv or self.noslot), align=bool(self.align))
        hdr = open("adaLN_cond__grouped_kv_mqa__mixer_s_mlp__prompt.s.ref").read().split("; Override launch")[0]
        lines = [l for l in hdr.strip().split("\n")]
        lines.append(f"; @launch grid=(256,1,1) block=(256,1,1) lds={LDS_SZ}")
        return kernel_file(lines, [(NAME, text, 512, 256, 102)]), n

if __name__ == "__main__":
    import argparse
    ap = argparse.ArgumentParser()
    ap.add_argument("-o", default="adaLN_cond__grouped_kv_mqa__mixer_s_mlp__prompt.s")
    ap.add_argument("--stop", type=int, default=99)
    ap.add_argument("--stamps", action="store_true")
    ap.add_argument("--slow", action="store_true")
    ap.add_argument("--detail", type=int, default=-1)
    ap.add_argument("--cap", type=int, default=99)
    ap.add_argument("--set", action="append", default=[])
    ap.add_argument("--global", dest="glob", action="store_true")
    a = ap.parse_args()
    g = Gen(stop_after=a.stop, stamps=a.stamps)
    g.detail = a.detail
    g.cap_small = a.cap
    for kv in a.set:
        k_, v_ = kv.split('=')
        setattr(g, k_, float(v_) if '.' in v_ else int(v_))
    txt, n = g.build(force_slow=a.slow, force_global=a.glob)
    open(a.o, "w").write(txt)
    print("wrote", a.o, len(txt), "bytes; auto nops:", n, "stamps:", getattr(g, "stamp_names", None))
```

```python
import sys
from common import *

import struct
def f2u(x): return struct.unpack("<I", struct.pack("<f", x))[0]

NAME = "adaLN_cond__grouped_kv_mqa__mixer_s_mlp__prompt_kernel"
MODG   = 0x000000
KVFLAG = 0x004000
RLFLAG = 0x008000
STAT   = 0x020000
STAT_SZ = 32*8*64*16
KV     = 0x100000
KVT    = 3328
OF     = 0x200000
ACT_SZ = 128*20*1024
L2F    = OF + ACT_SZ
import os
ALIAS = os.environ.get('NOALIAS') is None
GF     = OF if ALIAS else L2F + ACT_SZ
L3F    = L2F if ALIAS else L2F + 2*ACT_SZ
H4F    = L2F + 3*ACT_SZ
H4_SZ  = 128*54*1024
WSA    = H4F + H4_SZ
WSA_M  = 304*1024
W3S    = WSA + 8*WSA_M
W3S_M  = 144*1024
W4S    = W3S + 16*W3S_M
W4S_M  = 272*1024
HG     = W4S + 8*W4S_M
XIDG   = HG + 16*20*1024
CFLAG  = XIDG + 4096
CF_LOC = 8*128*128
CF_PH  = 128*128
WS_END = CFLAG + 2*CF_LOC + 64*1024
DBGA   = WS_END
WS_REC = 0x4000000
PH_O, PH_L2, PH_G, PH_L3, PH_H4 = 0, 1, 2, 3, 4

L_WQ   = 0
L_WK   = 102400
L_WM   = 102400
L_SC   = 143360
L_MOD  = 144640
L_QS   = 149760
L_MISC = 161024
LDS_SZ = 163840
L_RL   = 0
L_W    = 0

S_WS = 4
S_A  = 8
S_B  = 12
S_C  = 16
S_TAG = 20
S_WV, S_M, S_RB, S_W = 22, 23, 24, 25
S_T0 = 26
S_TT = 27
S_ERR = 28
S_FAST = 3
P_X, P_WQ, P_WK, P_WV, P_WO, P_BX, P_W1, P_W2, P_W3, P_W4, P_C, P_WM, P_OUT, P_DBG, P_WS = [32 + 2*i for i in range(15)]
ST = 62

def sr(b, n=4): return f"s[{b}:{b+n-1}]"
def vr(b, n=4): return f"v[{b}:{b+n-1}]" if n > 1 else f"v{b}"
def ar(b, n=4): return f"a[{b}:{b+n-1}]" if n > 1 else f"a{b}"

V_L, V_T, V_G, V_L16 = 0, 1, 2, 3

TIMEOUT = 400000

class Gen:
    def __init__(self, stop_after=99, stamps=False):
        self.b = Builder()
        self.stop_after = stop_after
        self.stamps = stamps
        self.nstamp = 0
        self.detail = -1
        self.nojobs = 0
        self.dbg_time = 0
        self.align = 1
        self.x_nobar = 0
        self.x_nokv = 0
        self.x_nords = 0
        self.noslot = 0
        self.in_slow = False
        self.cap_small = 99
        self.burst = 6
        self.rate_small = 1.3
        self.rate_w3 = 3.5
        self.rate_w4 = 1.6
        self.epi_drip = 8
        self.post_drip = 0
        self.fine = 0
        self.wb_early = 0
        self.wb_who = 0
        self.out_sc1 = 0
        self.wq_touch = 1
        self.w3split = 0
        self.rate_w3a = 2.2
        self.rate_w3b = 1.5
        self.fill_n = 2
        self.pfA = 1
        self.pf4 = 0
        self.post_drip2 = 0
        self.post_drip3 = 0
        self.res3 = 0
        self.w4defer = 0
        self.shadow_f = 3
        self.shadow_s = 3
        self.resident = 0
        self.chunk4 = 4
        self.pub_after = 0
        self.visible = -1
        self.epi_drip2 = 6
        self.gd1 = 1
        self.gd3 = 2
        self.burst4 = 10
        self.use_pf = 0
        self.tlb_warm = 0
        self.touch_act = 0
        self.h4t_where = 0
        self.use_mall = 0
        self.pf3 = 0
        self.pub_drip = 0
    def I(self, t): self.b.I(t)
    def C(self, t): self.b.C(t)

    def srd(self, s, ptr, nbytes, add=0):
        if add:
            self.I(f"s_add_u32 s{s}, s{ptr}, {add}\ns_addc_u32 s{s+1}, s{ptr+1}, 0")
        else:
            self.I(f"s_mov_b32 s{s}, s{ptr}\ns_mov_b32 s{s+1}, s{ptr+1}")
        self.I(f"s_mov_b32 s{s+2}, {nbytes}\ns_mov_b32 s{s+3}, 0x20000")

    def stamp(self, name):
        if not self.stamps: return
        k = self.nstamp; self.nstamp += 1
        lab = self.b.uid("L_st")
        self.C(f"stamp {k}: {name}")
        self.I(f"""
        s_cmp_lg_u32 s{S_WV}, 0
        s_cbranch_scc1 {lab}
        s_memrealtime s[100:101]
        s_memtime s[96:97]
        s_lshl_b32 s99, s{S_W}, 11
        s_add_u32 s99, s99, {DBGA + 16*k}
        s_waitcnt lgkmcnt(0)
        v_mov_b32 v252, s100
        v_mov_b32 v253, s101
        v_mov_b32 v254, s96
        v_mov_b32 v255, s97
        v_mov_b32 v251, s99
        buffer_store_dwordx4 v[252:255], v251, {sr(S_WS)}, 0 offen
        s_nop 1
        {lab}:
        """)
        self.stamp_names = getattr(self, "stamp_names", []) + [name]

    def spin_tail(self, cnt, loop, code):
        self.I(f"""
        s_sub_u32 s{cnt}, s{cnt}, 1
        s_cmp_lg_u32 s{cnt}, 0
        s_cbranch_scc1 {loop}
        s_mov_b32 s{S_ERR}, {code}
        s_branch L_fail
        """)

    def get_tag(self):
        lp = self.b.uid("L_tag"); ok = self.b.uid("L_tagok")
        self.srd(S_C, P_DBG, 256)
        self.I(f"""
        s_mov_b32 s{ST}, {TIMEOUT}
        v_mov_b32 v252, 0
        {lp}:
        buffer_load_dwordx2 v[254:255], v252, {sr(S_C)}, 0 offen sc1
        s_waitcnt vmcnt(0)
        v_readfirstlane_b32 s{S_TAG}, v254
        v_readfirstlane_b32 s{S_TAG+1}, v255
        s_cmp_lg_u32 s{S_TAG}, 0
        s_cbranch_scc1 {ok}
        """)
        self.spin_tail(ST, lp, 1)
        self.I(f"{ok}:")

    def reduce_g(self, regs, tmp, op="v_add_f32"):
        for sw in ("v_permlane16_swap_b32", "v_permlane32_swap_b32"):
            for i, r in enumerate(regs):
                self.I(f"v_mov_b32 v{tmp+i}, v{r}")
            for i, r in enumerate(regs):
                self.I(f"{sw} v{r}, v{tmp+i}")
            for i, r in enumerate(regs):
                self.I(f"{op} v{r}, v{r}, v{tmp+i}")

    def prologue(self):
        I = self.I
        I(f"""
        s_cmp_ge_u32 s2, 256
        s_cbranch_scc1 L_end
        s_load_dwordx16 s[32:47], s[0:1], 0
        s_load_dwordx8 s[48:55], s[0:1], 64
        s_load_dwordx4 s[56:59], s[0:1], 96
        s_load_dwordx2 s[60:61], s[0:1], 112
        v_lshrrev_b32 v1, 6, v0
        v_and_b32 v{V_L}, 63, v0
        v_readfirstlane_b32 s{S_WV}, v1
        v_and_b32 v{V_T}, 15, v{V_L}
        v_lshrrev_b32 v{V_G}, 4, v{V_L}
        v_lshlrev_b32 v{V_L16}, 4, v{V_L}
        s_mov_b32 s{S_W}, s2
        s_and_b32 s{ST}, s2, 7
        s_lshr_b32 s{ST+1}, s2, 3
        s_and_b32 s{S_M}, s{ST+1}, 7
        s_lshr_b32 s{ST+1}, s{ST+1}, 3
        s_lshl_b32 s{ST}, s{ST}, 2
        s_add_u32 s{S_RB}, s{ST}, s{ST+1}
        s_lshl_b32 s{S_T0}, s{S_RB}, 6
        s_lshl_b32 s{S_TT}, s{S_RB}, 2
        s_add_u32 s{S_TT}, s{S_TT}, s{S_WV}
        s_mov_b32 s{S_ERR}, 0
        """)
        self.C("request the kernel's own code into this XCD's L2: workgroup j of the 32 in a row group takes lines 16j..16j+15 (wave 0)")
        labc = self.b.uid("L_cp")
        I(f"""
        s_cmp_lg_u32 s{S_WV}, 0
        s_cbranch_scc1 {labc}
        s_getpc_b64 s[{ST+2}:{ST+3}]
        L_pcref:
        s_lshr_b32 s{ST+4}, s2, 3
        s_lshl_b32 s{ST+4}, s{ST+4}, 11                       ; 16 lines * 128 B
        v_lshlrev_b32 v4, 7, v{V_L}
        v_add_u32 v4, s{ST+4}, v4
        v_cmp_gt_u32 vcc, L_code_end-L_pcref-4, v4
        s_and_b64 vcc, vcc, 0xffff
        s_and_saveexec_b64 s[{ST+4}:{ST+5}], vcc
        s_cbranch_execz {labc}_x
        global_load_dword a252, v4, s[{ST+2}:{ST+3}]
        {labc}_x:
        s_mov_b64 exec, s[{ST+4}:{ST+5}]
        {labc}:
        s_waitcnt lgkmcnt(0)
        """)
        self.srd(S_WS, P_WS, WS_REC)
        lab = self.b.uid("L_non")
        self.srd(S_C, P_DBG, 256)
        I(f"""
        s_lshl_b32 s{ST}, s2, 2
        s_add_u32 s{ST}, s{ST}, s{S_WV}
        s_cmp_lg_u32 s{ST}, 0
        s_cbranch_scc1 {lab}
        s_memrealtime s[{S_TAG}:{S_TAG+1}]
        s_waitcnt lgkmcnt(0)
        s_or_b32 s{S_TAG}, s{S_TAG}, 1
        v_mov_b32 v254, s{S_TAG}
        v_mov_b32 v255, s{S_TAG+1}
        v_mov_b32 v252, 0
        s_mov_b64 exec, 1
        buffer_store_dwordx2 v[254:255], v252, {sr(S_C)}, 0 offen sc1
        s_mov_b64 exec, -1
        {lab}:
        """)
        self.stamp("start")

    XF = 4
    XH = 84
    TMP = 244

    def tag_issue(self):
        self.srd(S_C, P_DBG, 256)
        self.I(f"v_mov_b32 v241, 0\nbuffer_load_dwordx2 v[242:243], v241, {sr(S_C)}, 0 offen sc1")

    def tag_eval(self):
        I = self.I
        lp = self.b.uid("L_tag"); ok = self.b.uid("L_tagok")
        I(f"""
        s_mov_b32 s{ST}, {TIMEOUT}
        {lp}:
        v_readfirstlane_b32 s{S_TAG}, v242
        v_readfirstlane_b32 s{S_TAG+1}, v243
        s_cmp_lg_u32 s{S_TAG}, 0
        s_cbranch_scc1 {ok}
        """)
        self.tag_issue()
        I("s_waitcnt vmcnt(0)")
        self.spin_tail(ST, lp, 1)
        I(f"{ok}:")

    S_PROD2 = 80
    S_PROD, S_P = 80, 81

    LWM, LSC, LMI = L_WM, L_SC, L_MISC + 64
    def mod_dma(self, cdst=None):
        I = self.I
        TMP = self.MT
        self.srd(S_B, P_C, 1280)
        I(f"""
        s_mul_i32 s{ST+4}, s{S_WV}, 320
        v_lshlrev_b32 v{TMP+2}, 3, v{V_L}
        buffer_load_dwordx2 {cdst or f'v[{TMP+4}:{TMP+5}]'}, v{TMP+2}, {sr(S_B)}, s{ST+4} offen
        """)
        self.srd(S_A, P_WM, 640*7680)
        I(f"""
        v_lshrrev_b32 v{TMP}, 2, v{V_L}
        v_mul_u32_u24 v{TMP}, 7680, v{TMP}
        v_and_b32 v{TMP+1}, 3, v{V_L}
        v_lshl_add_u32 v{TMP}, v{TMP+1}, 4, v{TMP}
        s_mul_i32 s{ST+1}, s{S_WV}, {160*7680}
        s_lshl_b32 s{ST+2}, s{self.S_P}, 6                   ; p*64 bytes
        s_add_u32 s{ST+1}, s{ST+1}, s{ST+2}
        s_mul_i32 s{ST+3}, s{S_WV}, {160*64}
        s_add_u32 s{ST+3}, s{ST+3}, {self.LWM}
        """)
        for i in range(10):
            I(f"""
            s_mov_b32 m0, s{ST+3}
            s_add_u32 s{ST+3}, s{ST+3}, 1024
            buffer_load_dwordx4 v{TMP}, {sr(S_A)}, s{ST+1} offen lds
            s_add_u32 s{ST+1}, s{ST+1}, {16*7680}
            """)

    MT2 = 244
    MT3 = 228
    MT = 228
    def mod_gemv(self, W, wait_c, wait_w, wait_tag, BBr=None):
        I = self.I
        TMP = self.MT
        T = TMP + 4
        I(f"""
        s_waitcnt vmcnt({wait_c})
        v_lshlrev_b32 v{TMP+6}, 16, v{T}
        v_and_b32 v{TMP+7}, 0xffff0000, v{T}
        v_lshlrev_b32 v{TMP+8}, 16, v{T+1}
        v_and_b32 v{TMP+9}, 0xffff0000, v{T+1}
        """)
        for i in range(4):
            r = TMP + 6 + i
            I(f"""
            v_mul_f32 v{TMP+3}, 0xbfb8aa3b, v{r}
            v_exp_f32 v{TMP+3}, v{TMP+3}
            v_add_f32 v{TMP+3}, 1.0, v{TMP+3}
            v_rcp_f32 v{TMP+3}, v{TMP+3}
            v_mul_f32 v{r}, v{r}, v{TMP+3}
            """)
        va, vb, WA, BB, ACC = W, W+1, W+4, W+44, W+64
        if BBr is not None: BB, ACC = BBr, W+44
        I(f"""
        v_cvt_pk_bf16_f32 v{T}, v{TMP+6}, v{TMP+7}
        v_cvt_pk_bf16_f32 v{T+1}, v{TMP+8}, v{TMP+9}
        s_mul_i32 s{ST+4}, s{S_WV}, 320
        s_add_u32 s{ST+4}, s{ST+4}, {self.LSC}
        v_lshlrev_b32 v{TMP+2}, 3, v{V_L}
        v_add_u32 v{TMP+2}, s{ST+4}, v{TMP+2}
        s_mov_b32 exec_hi, 0xff
        ds_write_b64 v{TMP+2}, v[{T}:{T+1}]
        s_mov_b32 exec_hi, -1
        v_lshrrev_b32 v{va}, 2, v{V_T}
        v_lshl_add_u32 v{va}, v{V_G}, 2, v{va}
        v_lshlrev_b32 v{va}, 6, v{va}                       ; 64*(4g+(i>>2))
        v_and_b32 v{vb}, 3, v{V_T}
        v_lshl_add_u32 v{va}, v{vb}, 3, v{va}
        s_mul_i32 s{ST}, s{S_WV}, {160*64}
        s_add_u32 s{ST}, s{ST}, {self.LWM}
        v_add_u32 v{va}, s{ST}, v{va}
        v_lshlrev_b32 v{vb}, 3, v{V_G}
        v_add_u32 v{vb}, s{ST+4}, v{vb}
        s_waitcnt vmcnt({wait_w}) lgkmcnt(0)
        """)
        for s_ in range(5):
            I(f"ds_read_b64 v[{BB+4*s_}:{BB+4*s_+1}], v{vb} offset:{64*s_}\nds_read_b64 v[{BB+4*s_+2}:{BB+4*s_+3}], v{vb} offset:{64*s_+32}")
        for s_ in range(5):
            for tl in range(2):
                W_ = WA + 8*s_ + 4*tl
                I(f"ds_read_b64_tr_b16 v[{W_}:{W_+1}], v{va} offset:{2048*s_+32*tl}\nds_read_b64_tr_b16 v[{W_+2}:{W_+3}], v{va} offset:{2048*s_+32*tl+1024}")
        I("s_waitcnt lgkmcnt(0)")
        for s_ in range(5):
            for tl in range(2):
                I(f"v_mfma_f32_16x16x32_bf16 {vr(ACC+4*tl)}, {vr(WA+8*s_+4*tl)}, {vr(BB+4*s_)}, {'0' if s_ == 0 else vr(ACC+4*tl)}")
        I(f"""
        s_lshl_b32 s{ST}, s{S_WV}, 7
        s_add_u32 s{ST}, s{ST}, {self.LMI}
        v_lshlrev_b32 v{va}, 4, v{V_G}
        v_add_u32 v{va}, s{ST}, v{va}
        v_cmp_eq_u32 vcc, 0, v{V_T}
        s_and_saveexec_b64 s[{ST+4}:{ST+5}], vcc
        ds_write_b128 v{va}, {vr(ACC)}
        ds_write_b128 v{va}, {vr(ACC+4)} offset:64
        s_mov_b64 exec, s[{ST+4}:{ST+5}]
        s_waitcnt lgkmcnt(0)
        s_barrier
        """)
        lab_gd = self.b.uid("L_gd")
        I(f"s_cmp_lg_u32 s{S_WV}, 0\ns_cbranch_scc1 {lab_gd}")
        I(f"""
        v_lshlrev_b32 v{va}, 4, v{V_L}
        v_and_b32 v{va}, 0x7f, v{va}
        v_add_u32 v{va}, {self.LMI}, v{va}
        ds_read_b128 {vr(WA)}, v{va}
        ds_read_b128 {vr(WA+4)}, v{va} offset:128
        ds_read_b128 {vr(WA+8)}, v{va} offset:256
        ds_read_b128 {vr(WA+12)}, v{va} offset:384
        """)
        if wait_tag is not None:
            I(f"s_waitcnt vmcnt({wait_tag})")
            self.tag_eval()
        I("s_waitcnt lgkmcnt(0)")
        for r in range(4):
            I(f"v_add_f32 v{WA+r}, v{WA+r}, v{WA+4+r}\nv_add_f32 v{WA+8+r}, v{WA+8+r}, v{WA+12+r}\nv_add_f32 v{WA+r}, v{WA+r}, v{WA+8+r}")
        I(f"""
        v_cvt_pk_bf16_f32 v{ACC+4}, v{WA}, v{WA+1}
        v_cvt_pk_bf16_f32 v{ACC+5}, v{WA+2}, v{WA+3}
        v_mov_b32 v{ACC+6}, s{S_TAG}
        v_mov_b32 v{ACC+7}, s{S_TAG+1}
        s_lshl_b32 s{ST}, s{self.S_P}, 7                     ; p*8 granules*16 B
        s_mov_b64 exec, 0xff
        buffer_store_dwordx4 {vr(ACC+4)}, v{V_L16}, {sr(S_WS)}, s{ST} offen offset:{MODG} sc1
        s_mov_b64 exec, -1
        {lab_gd}:
        """)

    def line_touch(self, srd, voff, soff, nl):
        I = self.I
        if nl < 64: I(f"v_cmp_gt_u32 vcc, {nl}, v{V_L}\ns_and_saveexec_b64 s[{ST+6}:{ST+7}], vcc")
        I(f"buffer_load_dword a255, v{voff}, {sr(srd)}, s{soff} offen")
        if nl < 64: I(f"s_mov_b64 exec, s[{ST+6}:{ST+7}]")

    def wq_ops(self):
        I = self.I
        V = 239
        so, lo = ST+12, ST+13
        self.srd(S_A, P_WQ, 640*1280)
        I(f"""
        v_mul_u32_u24 v{V}, 205, v{V_L}
        v_lshrrev_b32 v{V}, 11, v{V}
        v_mul_u32_u24 v{V-1}, 10, v{V}
        v_sub_u32 v{V-1}, v{V_L}, v{V-1}
        v_mul_u32_u24 v{V}, 1280, v{V}
        v_lshl_add_u32 v{V}, v{V-1}, 4, v{V}
        s_mul_i32 s{so}, s{S_M}, 160
        s_mul_i32 s{lo}, s{S_WV}, {6*1280}
        s_add_u32 s{so}, s{so}, s{lo}
        s_mul_i32 s{lo}, s{S_WV}, 960
        """)
        ops = []
        def mk(i):
            def f():
                if i == 26:
                    lab = self.b.uid("L_wq")
                    I(f"""
                    s_cmp_ge_u32 s{S_WV}, 3
                    s_cbranch_scc1 {lab}
                    s_cmp_eq_u32 s{S_WV}, 2
                    s_mov_b32 s{ST+14}, 0x0fffffff
                    s_cselect_b32 exec_hi, 0xff, s{ST+14}
                    s_mov_b32 m0, s{lo}
                    s_nop 0
                    buffer_load_dwordx4 v{V}, {sr(S_A)}, s{so} offen lds
                    s_mov_b32 exec_hi, -1
                    {lab}:
                    """)
                elif i == 25:
                    I(f"""
                    s_mov_b32 m0, s{lo}
                    s_add_u32 s{lo}, s{lo}, 3840
                    buffer_load_dwordx4 v{V}, {sr(S_A)}, s{so} offen lds
                    s_add_u32 s{so}, s{so}, {24*1280}
                    """)
                else:
                    I(f"""
                    s_mov_b32 m0, s{lo}
                    s_add_u32 s{lo}, s{lo}, 3840
                    buffer_load_dwordx4 v{V}, {sr(S_A)}, s{so} offen lds
                    s_add_u32 s{so}, s{so}, {24*1280}
                    """)
            return f
        return [mk(i) for i in range(27)]

    def phase_start(self):
        I, C = self.I, self.C
        XF, XH, TMP = self.XF, self.XH, self.TMP
        PR, P = self.S_PROD, self.S_P
        C("---- mod producers: members 2..5; column pair P = x + 8k (k = 2*rbl + (m-2)/2) < 60, block p = 2P + (m-2)%2; P < 20 is critical")
        I(f"""
        s_sub_u32 s{ST}, s{S_M}, 2                           ; m-2
        s_and_b32 s{ST+1}, s{S_RB}, 3
        s_lshl_b32 s{ST+1}, s{ST+1}, 1
        s_lshr_b32 s{ST+2}, s{ST}, 1
        s_add_u32 s{ST+1}, s{ST+1}, s{ST+2}
        s_lshl_b32 s{ST+1}, s{ST+1}, 3
        s_lshr_b32 s{ST+2}, s{S_RB}, 2
        s_add_u32 s{ST+1}, s{ST+1}, s{ST+2}                  ; P
        s_lshl_b32 s{P}, s{ST+1}, 1
        s_and_b32 s{ST+2}, s{ST}, 1
        s_add_u32 s{P}, s{P}, s{ST+2}
        s_cmp_lt_u32 s{ST+1}, 20
        s_cselect_b32 s{PR}, 1, 2
        s_cmp_lt_u32 s{ST+1}, 60
        s_cselect_b32 s{PR}, s{PR}, 0
        s_cmp_lt_u32 s{ST}, 4
        s_cselect_b32 s{PR}, s{PR}, 0
        """)
        C("every workgroup requests 1/32 of the critical w_mod lines of its row group: 3 column pairs x 640 rows = 1920 lines, 60 per workgroup (15 per wave)")
        self.srd(S_A, P_WM, 640*7680)
        I(f"""
        s_and_b32 s{ST}, s{S_RB}, 3
        s_lshl_b32 s{ST}, s{ST}, 3
        s_add_u32 s{ST}, s{ST}, s{S_M}
        s_lshl_b32 s{ST}, s{ST}, 2
        s_add_u32 s{ST}, s{ST}, s{S_WV}
        s_mul_i32 s{ST}, s{ST}, 15
        v_add_u32 v{XH}, s{ST}, v{V_L}
        v_mul_u32_u24 v{XH+1}, 6554, v{XH}
        v_lshrrev_b32 v{XH+1}, 22, v{XH+1}                   ; /640
        v_mul_u32_u24 v{XH+2}, 640, v{XH+1}
        v_sub_u32 v{XH+2}, v{XH}, v{XH+2}                    ; row
        v_mul_u32_u24 v{XH+2}, 7680, v{XH+2}
        v_lshlrev_b32 v{XH+1}, 10, v{XH+1}
        v_add_u32 v{XH+2}, v{XH+2}, v{XH+1}
        s_lshr_b32 s{ST}, s{S_RB}, 2
        s_lshl_b32 s{ST}, s{ST}, 7                           ; x * 128 B
        """)
        self.line_touch(S_A, XH+2, ST, 15)
        self.srd(S_C, P_X, 2048*1280)
        XO = XH
        I(f"""
        v_lshlrev_b32 v{XO+6}, 7, v{V_L}
        s_lshl_b32 s{ST}, s{S_M}, 2
        s_add_u32 s{ST}, s{ST}, s{S_WV}
        s_mul_i32 s{ST}, s{ST}, 2560
        s_mul_i32 s{ST+1}, s{S_RB}, {64*1280}
        s_add_u32 s{ST}, s{ST}, s{ST+1}
        """)
        lab_np = self.b.uid("L_np"); lab_j = self.b.uid("L_npj")
        I(f"s_cmp_lg_u32 s{PR}, 1\ns_cbranch_scc1 {lab_np}")
        I(f"s_mov_b32 s{ST+14}, s{ST}")
        self.mod_dma()
        self.line_touch(S_C, XO+6, ST+14, 20)
        self.tag_issue()
        self.mod_gemv(XH+8, 12, 2, 0)
        self.srd(S_C, P_X, 2048*1280)
        I(f"s_branch {lab_j}\n{lab_np}:")
        self.line_touch(S_C, XO+6, ST, 20)
        self.tag_issue()
        self.srd(S_C, P_X, 2048*1280)
        I(f"{lab_j}:")
        self.stamp("modpub")
        C("x: the wave's rows -> LDS, 16-byte chunks XOR-swizzled by the row")
        I(f"s_lshl_b32 s{ST}, s{S_TT}, 4")
        for qq in range(4):
            I(f"""
            v_add_u32 v{XO+4}, {4*qq}, v{V_G}                      ; row
            v_xor_b32 v{XO+5}, v{XO+4}, v{V_T}
            v_add_u32 v{XO+4}, s{ST}, v{XO+4}
            v_mul_u32_u24 v{XO+4}, 1280, v{XO+4}
            v_lshl_add_u32 v{XO+qq}, v{XO+5}, 4, v{XO+4}
            """)
        I(f"s_mul_i32 s{ST+1}, s{S_WV}, 20480")
        for G in range(5):
            I(f"s_mov_b32 s{ST+2}, {256*G}")
            for qq in range(4):
                I(f"s_mov_b32 m0, s{ST+1}\ns_add_u32 s{ST+1}, s{ST+1}, 1024\nbuffer_load_dwordx4 v{XO+qq}, {sr(S_C)}, s{ST+2} offen lds")
        lab_nk = self.b.uid("L_nk")
        I(f"""
        s_cmp_ge_u32 s{S_M}, 2
        s_cbranch_scc1 {lab_nk}
        s_cmp_eq_u32 s{S_M}, 0
        s_cselect_b32 s{S_A}, s{P_WK}, s{P_WV}
        s_cselect_b32 s{S_A+1}, s{P_WK+1}, s{P_WV+1}
        s_mov_b32 s{S_A+2}, 25600
        s_mov_b32 s{S_A+3}, 0x20000
        s_mul_i32 s{ST}, s{S_WV}, 7168
        s_add_u32 s{ST+1}, s{ST}, {L_WK}
        """)
        for i in range(7):
            I(f"""
            s_mov_b32 m0, s{ST+1}
            s_add_u32 s{ST+1}, s{ST+1}, 1024
            buffer_load_dwordx4 v{V_L16}, {sr(S_A)}, s{ST} offen lds
            s_add_u32 s{ST}, s{ST}, 1024
            """)
        I(f"{lab_nk}:")
        if self.wq_touch == 1:
            C("wq: request this workgroup's 1/32 of the matrix (200 lines, 50 per wave)")
            self.srd(S_B, P_WQ, 640*1280)
            I(f"""
            s_and_b32 s{ST}, s{S_RB}, 3
            s_lshl_b32 s{ST}, s{ST}, 3
            s_add_u32 s{ST}, s{ST}, s{S_M}
            s_lshl_b32 s{ST}, s{ST}, 2
            s_add_u32 s{ST}, s{ST}, s{S_WV}
            s_mul_i32 s{ST}, s{ST}, 6400
            """)
            self.line_touch(S_B, XO+6, ST, 50)
        else:
            I(f"v_mov_b32 v{XO+7}, 0\nbuffer_load_dword a255, v{XO+7}, {sr(S_C)}, 0 offen")
        self.stamp("issued")
        C("x fragments: lane (t,g): k = 32s+4g (+16)")
        AD = XH + 8
        I(f"""
        s_mul_i32 s{ST}, s{S_WV}, 20480
        v_lshlrev_b32 v{TMP}, 8, v{V_T}
        v_add_u32 v{TMP}, s{ST}, v{TMP}
        v_and_b32 v{TMP+1}, 1, v{V_G}
        v_lshl_add_u32 v{TMP}, v{TMP+1}, 3, v{TMP}            ; + 8*(g&1)
        v_lshrrev_b32 v{TMP+1}, 1, v{V_G}                     ; g>>1
        """)
        for a_ in range(4):
            for e in range(2):
                I(f"""
                v_add_u32 v{TMP+2}, {4*a_+2*e}, v{TMP+1}
                v_xor_b32 v{TMP+2}, v{TMP+2}, v{V_T}
                v_lshl_add_u32 v{AD+2*a_+e}, v{TMP+2}, 4, v{TMP}
                """)
        RS_ = XH + 16
        I(f"s_mul_i32 s{ST+1}, s{S_M}, 10")
        for j in range(5):
            I(f"""
            s_add_u32 s{ST+2}, s{ST+1}, {2*j}
            v_add_u32 v{TMP+2}, s{ST+2}, v{TMP+1}
            v_lshrrev_b32 v{TMP+3}, 4, v{TMP+2}
            v_and_b32 v{TMP+2}, 15, v{TMP+2}
            v_xor_b32 v{TMP+2}, v{TMP+2}, v{V_T}
            v_lshl_add_u32 v{TMP+2}, v{TMP+2}, 4, v{TMP}
            v_lshl_add_u32 v{RS_+j}, v{TMP+3}, 12, v{TMP+2}
            """)
        lw1 = self.b.uid("L_xw"); lwj = self.b.uid("L_xw")
        I(f"""
        s_cmp_lt_u32 s{S_M}, 2
        s_cbranch_scc1 {lw1}
        s_waitcnt vmcnt(1)
        s_branch {lwj}
        {lw1}:
        s_waitcnt vmcnt(8)
        {lwj}:
        """)
        for s_ in range(20):
            for e in range(2):
                I(f"ds_read_b64 v[{XF+4*s_+2*e}:{XF+4*s_+2*e+1}], v{AD+2*(s_&3)+e} offset:{4096*(s_>>2)}")
        for j in range(5):
            I(f"ds_read_b64 v[{XH+24+2*j}:{XH+25+2*j}], v{RS_+j}")
        self.tag_eval()
        I("s_waitcnt lgkmcnt(0)")
        for j in range(10): I(f"v_accvgpr_write_b32 a{j}, v{XH+24+j}")
        I("s_barrier")
        if self.wq_touch == 2:
            self.srd(S_B, P_WQ, 640*1280)
            I(f"""
            v_lshlrev_b32 v{XH+6}, 7, v{V_L}
            s_and_b32 s{ST}, s{S_RB}, 3
            s_lshl_b32 s{ST}, s{ST}, 3
            s_add_u32 s{ST}, s{ST}, s{S_M}
            s_lshl_b32 s{ST}, s{ST}, 2
            s_add_u32 s{ST}, s{ST}, s{S_WV}
            s_mul_i32 s{ST}, s{ST}, 6400
            """)
            self.line_touch(S_B, XH+6, ST, 50)
        wq = self.wq_ops()
        self.stamp("xfrag")
        C("LN1 stats: sum via ones-MFMA, sumsq via Gram diagonal")
        ONES, D1, D2 = TMP, TMP+4, TMP+8
        for i in range(4): I(f"v_mov_b32 v{ONES+i}, 0x3f803f80")
        for s in range(20):
            I(f"v_mfma_f32_16x16x32_bf16 {vr(D1)}, {vr(ONES)}, {vr(XF+4*s)}, {'0' if s == 0 else vr(D1)}")
            I(f"v_mfma_f32_16x16x32_bf16 {vr(D2)}, {vr(XF+4*s)}, {vr(XF+4*s)}, {'0' if s == 0 else vr(D2)}")
            if s % 2 == 0 and wq: wq.pop(0)()
        MU, RS, T1, T2 = XH, XH+1, XH+2, XH+3
        I(f"""
        v_and_b32 v{T1}, 3, v{V_T}
        v_cmp_eq_u32 vcc, 1, v{T1}
        v_cndmask_b32 v{T2}, v{D2}, v{D2+1}, vcc
        v_cmp_eq_u32 vcc, 2, v{T1}
        v_cndmask_b32 v{T2}, v{T2}, v{D2+2}, vcc
        v_cmp_eq_u32 vcc, 3, v{T1}
        v_cndmask_b32 v{T2}, v{T2}, v{D2+3}, vcc
        v_lshrrev_b32 v{T1}, 2, v{V_T}
        v_lshl_add_u32 v{T1}, v{T1}, 4, v{V_T}
        v_lshlrev_b32 v{T1}, 2, v{T1}
        ds_bpermute_b32 v{T2}, v{T1}, v{T2}
        v_mul_f32 v{MU}, {1.0/640!r}, v{D1}
        s_waitcnt lgkmcnt(0)
        v_mul_f32 v{T2}, {1.0/640!r}, v{T2}
        v_fma_f32 v{T2}, -v{MU}, v{MU}, v{T2}
        v_max_f32 v{T2}, 0, v{T2}
        v_add_f32 v{T2}, 0x3727c5ac, v{T2}
        v_rsq_f32 v{RS}, v{T2}
        s_nop 0
        v_mul_f32 v{MU}, v{MU}, v{RS}
        v_sub_f32 v{TMP}, 0, v{MU}                           ; -mu*rstd
        v_mov_b32 v{TMP+1}, v{TMP}
        v_mov_b32 v{TMP+2}, v{RS}
        v_mov_b32 v{TMP+3}, v{RS}
        """)
        C("xhat = x*rstd - mu*rstd (fp32)")
        for s in range(20):
            for q in range(4):
                src = XF + 4*s + q
                d = XH + 8*s + 2*q
                if d + 1 >= 238 and False: pass
                I(f"v_lshlrev_b32 v{d}, 16, v{src}\nv_and_b32 v{d+1}, 0xffff0000, v{src}")
            for q in range(4):
                d = XH + 8*s + 2*q
                I(f"v_pk_fma_f32 v[{d}:{d+1}], v[{d}:{d+1}], v[{TMP+2}:{TMP+3}], v[{TMP}:{TMP+1}]")
            if s < 17 and wq: wq.pop(0)()
        assert not wq
        self.stamp("xhat")
        G0 = TMP+4
        lp = self.b.uid("L_mp"); ok = self.b.uid("L_mpok")
        I(f"""
        s_mul_i32 s{ST+1}, s{S_WV}, {80*16}
        v_add_u32 v{TMP+2}, s{ST+1}, v{V_L16}
        v_add_u32 v{TMP+3}, 1024, v{TMP+2}
        v_cmp_gt_u32 vcc, 16, v{V_L}
        v_cndmask_b32 v{TMP+3}, v{TMP+2}, v{TMP+3}, vcc
        s_mov_b32 s{ST}, {TIMEOUT}
        {lp}:
        buffer_load_dwordx4 {vr(G0)}, v{TMP+2}, {sr(S_WS)}, 0 offen offset:{MODG} sc1
        buffer_load_dwordx4 {vr(G0+4)}, v{TMP+3}, {sr(S_WS)}, 0 offen offset:{MODG} sc1
        s_waitcnt vmcnt(0)
        v_cmp_ne_u32 vcc, s{S_TAG}, v{G0+2}
        s_mov_b64 s[{ST+2}:{ST+3}], vcc
        v_cmp_ne_u32 vcc, s{S_TAG+1}, v{G0+3}
        s_or_b64 s[{ST+2}:{ST+3}], s[{ST+2}:{ST+3}], vcc
        v_cmp_ne_u32 vcc, s{S_TAG}, v{G0+6}
        s_or_b64 s[{ST+2}:{ST+3}], s[{ST+2}:{ST+3}], vcc
        v_cmp_ne_u32 vcc, s{S_TAG+1}, v{G0+7}
        s_or_b64 s[{ST+2}:{ST+3}], s[{ST+2}:{ST+3}], vcc
        s_cmp_eq_u64 s[{ST+2}:{ST+3}], 0
        s_cbranch_scc1 {ok}
        """)
        self.spin_tail(ST, lp, 2)
        I(f"{ok}:")
        for blk, av in ((G0, TMP+2), (G0+4, TMP+3)):
            I(f"""
            v_and_b32 v{blk+3}, 0xffff0000, v{blk+1}
            v_lshlrev_b32 v{blk+2}, 16, v{blk+1}
            v_and_b32 v{blk+1}, 0xffff0000, v{blk}
            v_lshlrev_b32 v{blk}, 16, v{blk}
            """)
        lab_a = self.b.uid("L_a")
        I(f"s_cmp_lt_u32 s{S_WV}, 2\ns_cbranch_scc1 {lab_a}")
        for blk in (G0, G0+4):
            for q in range(4): I(f"v_add_f32 v{blk+q}, 1.0, v{blk+q}")
            I(f"""
            v_cvt_pk_bf16_f32 v{blk}, v{blk}, v{blk+1}
            v_cvt_pk_bf16_f32 v{blk+2}, v{blk+2}, v{blk+3}
            v_and_b32 v{blk+1}, 0xffff0000, v{blk}
            v_lshlrev_b32 v{blk}, 16, v{blk}
            v_and_b32 v{blk+3}, 0xffff0000, v{blk+2}
            v_lshlrev_b32 v{blk+2}, 16, v{blk+2}
            """)
        I(f"""
        {lab_a}:
        v_add_u32 v{TMP+2}, {L_MOD}, v{TMP+2}
        v_add_u32 v{TMP+3}, {L_MOD}, v{TMP+3}
        ds_write_b128 v{TMP+2}, {vr(G0)}
        ds_write_b128 v{TMP+3}, {vr(G0+4)}
        s_waitcnt lgkmcnt(0)
        s_barrier
        """)
        self.stamp("modgot")
        C("h1 = xhat*A + B -> bf16 fragments (overwrites XF).  all DMAs (wq, wk) were waited by vmcnt(0) above, barrier publishes them")
        va = TMP
        I(f"v_lshlrev_b32 v{va}, 4, v{V_G}\nv_add_u32 v{va}, {L_MOD}, v{va}")
        def buf(s): return (XF + 48 + 16*(s & 1)) if s < 12 else (XH + 16*(s & 1))
        def rd(s):
            B_ = buf(s)
            for hf in range(2):
                I(f"ds_read_b128 {vr(B_+4*hf)}, v{va} offset:{2560 + 128*s + 64*hf}")
                I(f"ds_read_b128 {vr(B_+8+4*hf)}, v{va} offset:{128*s + 64*hf}")
        rd(0)
        for s in range(20):
            if s + 1 < 20: rd(s+1)
            I(f"s_waitcnt lgkmcnt({4 if s + 1 < 20 else 0})")
            B_ = buf(s)
            for q in range(4):
                d = XH + 8*s + 2*q
                I(f"v_pk_fma_f32 v[{d}:{d+1}], v[{d}:{d+1}], v[{B_+2*q}:{B_+2*q+1}], v[{B_+8+2*q}:{B_+8+2*q+1}]")
            for q in range(4):
                d = XH + 8*s + 2*q
                I(f"v_cvt_pk_bf16_f32 v{XF+4*s+q}, v{d}, v{d+1}")
        labd = self.b.uid("L_dg")
        I(f"s_cmp_lg_u32 s{self.S_PROD}, 2\ns_cbranch_scc1 {labd}")
        self.MT = self.MT3
        self.mod_dma(cdst="a[250:251]")
        I(f"{labd}:")
        self.stamp("h1")

    def phase_kv(self):
        I, C = self.I, self.C
        XF, XH = self.XF, self.XH
        lab_end = self.b.uid("L_kvend"); lab_v = self.b.uid("L_v"); lab_pub = self.b.uid("L_kvpub")
        va, vb, W0, ACC0, ACC1, T = XH, XH+1, XH+4, XH+24, XH+28, XH+32
        I(f"""
        s_cmp_ge_u32 s{S_M}, 2
        s_cbranch_scc1 {lab_end}
        v_lshrrev_b32 v{va}, 2, v{V_T}
        v_lshl_add_u32 v{va}, v{V_G}, 2, v{va}
        v_mul_u32_u24 v{va}, 40, v{va}
        v_and_b32 v{vb}, 3, v{V_T}
        v_lshl_add_u32 v{va}, v{vb}, 3, v{va}
        v_add_u32 v{va}, {L_WK}, v{va}
        s_cmp_eq_u32 s{S_M}, 1
        s_cbranch_scc1 {lab_v}
        """)
        def loop(isv):
            WK = XH + 48
            def rd(s):
                o = WK + (s % 4)*8
                I(f"""
                ds_read_b64_tr_b16 v[{o}:{o+1}], v{va} offset:{1280*s}
                ds_read_b64_tr_b16 v[{o+2}:{o+3}], v{va} offset:{1280*s+640}
                ds_read_b64_tr_b16 v[{o+4}:{o+5}], v{va} offset:{1280*s+32}
                ds_read_b64_tr_b16 v[{o+6}:{o+7}], v{va} offset:{1280*s+672}
                """)
            for s in range(3): rd(s)
            for s in range(20):
                if s + 3 < 20: rd(s+3)
                I(f"s_waitcnt lgkmcnt({4*min(3, 19-s)})")
                o2 = WK + (s % 4)*8
                for tl, acc in ((0, ACC0), (1, ACC1)):
                    w = vr(o2+4*tl); x = vr(XF+4*s)
                    c = '0' if s == 0 else vr(acc)
                    if isv: I(f"v_mfma_f32_16x16x32_bf16 {vr(acc)}, {x}, {w}, {c}")
                    else:   I(f"v_mfma_f32_16x16x32_bf16 {vr(acc)}, {w}, {x}, {c}")
        C("K: D[dim 4g+r][token t]")
        loop(False)
        I(f"""
        v_mul_f32 v{T}, v{ACC0}, v{ACC0}
        v_fmac_f32 v{T}, v{ACC0+1}, v{ACC0+1}
        v_fmac_f32 v{T}, v{ACC0+2}, v{ACC0+2}
        v_fmac_f32 v{T}, v{ACC0+3}, v{ACC0+3}
        v_mul_f32 v{T+1}, v{ACC1}, v{ACC1}
        v_fmac_f32 v{T+1}, v{ACC1+1}, v{ACC1+1}
        v_fmac_f32 v{T+1}, v{ACC1+2}, v{ACC1+2}
        v_fmac_f32 v{T+1}, v{ACC1+3}, v{ACC1+3}
        v_cmp_eq_u32 vcc, 0, v{V_G}
        v_cndmask_b32 v{T+1}, 0, v{T+1}, vcc
        v_add_f32 v{T}, v{T}, v{T+1}
        """)
        self.reduce_g([T], T+2)
        for sh in (8, 4, 2, 1):
            I(f"v_mov_b32_dpp v{T+2}, v{T} row_ror:{sh} row_mask:0xf bank_mask:0xf\nv_max_f32 v{T}, v{T}, v{T+2}")
        I(f"""
        s_lshl_b32 s{ST}, s{S_WV}, 2
        s_add_u32 s{ST}, s{ST}, {L_MISC}
        v_mov_b32 v{T+2}, s{ST}
        ds_write_b32 v{T+2}, v{T}
        """)
        I(f"""
        v_cvt_pk_bf16_f32 v{T+4}, v{ACC0}, v{ACC0+1}
        v_cvt_pk_bf16_f32 v{T+5}, v{ACC0+2}, v{ACC0+3}
        v_cvt_pk_bf16_f32 v{T+6}, v{ACC1}, v{ACC1+1}
        v_cvt_pk_bf16_f32 v{T+7}, v{ACC1+2}, v{ACC1+3}
        s_lshr_b32 s{ST}, s{S_TT}, 1
        s_mul_i32 s{ST}, s{ST}, {KVT}
        s_add_u32 s{ST}, s{ST}, {KV}
        s_and_b32 s{ST+1}, s{S_TT}, 1
        s_lshl_b32 s{ST+1}, s{ST+1}, 4
        v_add_u32 v{T+8}, s{ST+1}, v{V_T}                    ; kk
        v_lshrrev_b32 v{T+9}, 1, v{V_G}
        v_lshl_add_u32 v{T+9}, v{T+9}, 5, v{T+8}             ; kk+32*(g>>1)
        v_lshlrev_b32 v{T+9}, 4, v{T+9}
        v_and_b32 v{T+10}, 1, v{V_G}
        v_lshl_add_u32 v{T+9}, v{T+10}, 3, v{T+9}
        buffer_store_dwordx2 v[{T+4}:{T+5}], v{T+9}, {sr(S_WS)}, s{ST} offen sc1
        v_lshlrev_b32 v{T+8}, 3, v{T+8}
        v_cmp_eq_u32 vcc, 0, v{V_G}
        s_and_saveexec_b64 s[{ST+4}:{ST+5}], vcc
        buffer_store_dwordx2 v[{T+6}:{T+7}], v{T+8}, {sr(S_WS)}, s{ST} offen offset:1024 sc1
        s_mov_b64 exec, s[{ST+4}:{ST+5}]
        s_branch {lab_pub}
        {lab_v}:
        """)
        C("V^T: D[token 4g+r][d = lane&15]")
        loop(True)
        I(f"""
        v_cvt_pk_bf16_f32 v{T+4}, v{ACC0}, v{ACC0+1}
        v_cvt_pk_bf16_f32 v{T+5}, v{ACC0+2}, v{ACC0+3}
        v_cvt_pk_bf16_f32 v{T+6}, v{ACC1}, v{ACC1+1}
        v_cvt_pk_bf16_f32 v{T+7}, v{ACC1+2}, v{ACC1+3}
        v_cmp_gt_u32 vcc, 4, v{V_T}
        v_cndmask_b32 v{T+6}, 0, v{T+6}, vcc
        v_cndmask_b32 v{T+7}, 0, v{T+7}, vcc
        v_cmp_eq_u32 vcc, 4, v{V_T}
        v_mov_b32 v{T+11}, 0x3f803f80
        v_cndmask_b32 v{T+6}, v{T+6}, v{T+11}, vcc
        v_cndmask_b32 v{T+7}, v{T+7}, v{T+11}, vcc
        s_lshr_b32 s{ST}, s{S_TT}, 1
        s_mul_i32 s{ST}, s{ST}, {KVT}
        s_and_b32 s{ST+1}, s{S_TT}, 1
        s_lshl_b32 s{ST+1}, s{ST+1}, 10
        s_add_u32 s{ST}, s{ST}, s{ST+1}
        s_add_u32 s{ST}, s{ST}, {KV+1280}
        v_and_b32 v{T+9}, 1, v{V_G}
        v_lshl_add_u32 v{T+9}, v{T+9}, 5, v{V_T}             ; d + 32*(g&1)
        v_lshlrev_b32 v{T+9}, 4, v{T+9}
        v_lshrrev_b32 v{T+10}, 1, v{V_G}
        v_lshl_add_u32 v{T+9}, v{T+10}, 3, v{T+9}
        buffer_store_dwordx2 v[{T+4}:{T+5}], v{T+9}, {sr(S_WS)}, s{ST} offen sc1
        buffer_store_dwordx2 v[{T+6}:{T+7}], v{T+9}, {sr(S_WS)}, s{ST} offen offset:256 sc1
        v_mov_b32 v{T}, 0
        s_lshl_b32 s{ST}, s{S_WV}, 2
        s_add_u32 s{ST}, s{ST}, {L_MISC}
        v_mov_b32 v{T+2}, s{ST}
        ds_write_b32 v{T+2}, v{T}
        {lab_pub}:
        s_waitcnt vmcnt(0) lgkmcnt(0)
        s_barrier
        """)
        lab_np = self.b.uid("L_kvnp")
        I(f"""
        s_cmp_lg_u32 s{S_WV}, 0
        s_cbranch_scc1 {lab_np}
        v_mov_b32 v{T+2}, {L_MISC}
        ds_read_b128 {vr(T+4)}, v{T+2}
        s_waitcnt lgkmcnt(0)
        v_max_f32 v{T+4}, v{T+4}, v{T+5}
        v_max_f32 v{T+6}, v{T+6}, v{T+7}
        v_max_f32 v{T+6}, v{T+4}, v{T+6}
        v_mov_b32 v{T+4}, s{S_TAG}
        v_mov_b32 v{T+5}, s{S_TAG+1}
        v_mov_b32 v{T+7}, 0
        s_lshl_b32 s{ST}, s{S_RB}, 1
        s_add_u32 s{ST}, s{ST}, s{S_M}
        s_lshl_b32 s{ST}, s{ST}, 7
        s_add_u32 s{ST}, s{ST}, {KVFLAG}
        v_mov_b32 v{T+2}, s{ST}
        s_mov_b64 exec, 1
        buffer_store_dwordx4 {vr(T+4)}, v{T+2}, {sr(S_WS)}, 0 offen sc1
        s_mov_b64 exec, -1
        {lab_np}:
        {lab_end}:
        """)
        self.stamp("kvpub")

    QA0, QA1, QB0, QB1 = 44, 48, 52, 56
    SA, SB = 60, 76
    PA, PB = 92, 100
    OA, OB = 108, 124
    KB = 140
    VB = 172
    AT = 204

    def phase_q(self):
        I, C = self.I, self.C
        XF, XH = self.XF, self.XH
        va, vb, WB, ACC = XH, XH+1, XH+4, XH+64
        I(f"""
        v_lshrrev_b32 v{va}, 2, v{V_T}
        v_lshl_add_u32 v{va}, v{V_G}, 2, v{va}
        v_mul_u32_u24 v{va}, 160, v{va}
        v_and_b32 v{vb}, 3, v{V_T}
        v_lshl_add_u32 v{va}, v{vb}, 3, v{va}
        v_add_u32 v{vb}, 51200, v{va}
        """)
        issued = []
        def rd1(s, j):
            base = va if s < 10 else vb
            o = 5120*(s % 10)
            W_ = WB + 20*(s % 3) + 4*j
            I(f"ds_read_b64_tr_b16 v[{W_}:{W_+1}], v{base} offset:{L_WQ + o + 32*j}")
            I(f"ds_read_b64_tr_b16 v[{W_+2}:{W_+3}], v{base} offset:{L_WQ + o + 32*j + 2560}")
            issued.append((s, j))
        for s in range(2):
            for j in range(5): rd1(s, j)
        for s in range(20):
            younger = 2*(len(issued) - 1 - issued.index((s, 4)))
            I(f"s_waitcnt lgkmcnt({min(15, younger)})")
            for j in range(5):
                I(f"v_mfma_f32_16x16x32_bf16 {vr(ACC+4*j)}, {vr(WB+20*(s%3)+4*j)}, {vr(XF+4*s)}, {'0' if s == 0 else vr(ACC+4*j)}")
                if s + 2 < 20: rd1(s+2, j)
        qs = (20 ** -0.5) * 1.4426950408889634
        I(f"s_mov_b32 s{ST}, {hex(f2u(qs))}")
        C("scale, pack, write wave-private [16][176B] tile")
        I(f"""
        s_mul_i32 s{ST+1}, s{S_WV}, {16*176}
        s_add_u32 s{ST+1}, s{ST+1}, {L_QS}
        v_mul_u32_u24 v{va}, 176, v{V_T}
        v_lshl_add_u32 v{va}, v{V_G}, 3, v{va}
        v_add_u32 v{va}, s{ST+1}, v{va}
        """)
        for j in range(5):
            a = ACC + 4*j
            for r in range(4): I(f"v_mul_f32 v{a+r}, s{ST}, v{a+r}")
            I(f"v_cvt_pk_bf16_f32 v{a}, v{a}, v{a+1}\nv_cvt_pk_bf16_f32 v{a+1}, v{a+2}, v{a+3}")
            I(f"ds_write_b64 v{va}, v[{a}:{a+1}] offset:{32*j}")
        AT = self.AT
        I(f"""
        v_mul_u32_u24 v{vb}, 176, v{V_T}
        v_bfe_u32 v{va}, v{V_L}, 4, 1
        v_mul_u32_u24 v{va}, 40, v{va}
        v_add_u32 v{vb}, v{vb}, v{va}
        v_add_u32 v{vb}, s{ST+1}, v{vb}                      ; token*176 + (q>>4)*40
        v_lshrrev_b32 v{va}, 5, v{V_L}
        v_lshl_add_u32 v{va}, v{va}, 4, v{vb}                ; + 16h
        s_waitcnt lgkmcnt(0)
        ds_read_b64 v[{self.QA0}:{self.QA0+1}], v{va}
        ds_read_b64 v[{self.QA0+2}:{self.QA0+3}], v{va} offset:8
        ds_read_b64 v[{self.QB0}:{self.QB0+1}], v{va} offset:80
        ds_read_b64 v[{self.QB0+2}:{self.QB0+3}], v{va} offset:88
        ds_read_b64 v[{self.QA1}:{self.QA1+1}], v{vb} offset:32
        ds_read_b64 v[{self.QB1}:{self.QB1+1}], v{vb} offset:112
        v_cmp_gt_u32 vcc, 32, v{V_L}
        s_waitcnt lgkmcnt(0)
        """)
        for r in (self.QA1, self.QA1+1, self.QB1, self.QB1+1):
            I(f"v_cndmask_b32 v{r}, 0, v{r}, vcc")
        for (t, q0, q1) in ((AT, self.QA0, self.QA1), (AT+1, self.QB0, self.QB1)):
            I(f"v_mov_b32 v{t}, 0")
            for r in (q0, q0+1, q0+2, q0+3, q1, q1+1):
                I(f"v_dot2_f32_bf16 v{t}, v{r}, v{r}, v{t}")
        for t in (AT, AT+1):
            I(f"v_mov_b32 v{AT+2}, v{t}\nv_permlane32_swap_b32 v{t}, v{AT+2}\nv_add_f32 v{t}, v{t}, v{AT+2}")
        I(f"v_max_f32 v{AT}, v{AT}, v{AT+1}")
        I("s_barrier")
        self.stamp("qproj")

    RL_OFF, RL_TR, RL_D = 4, 11, 12
    S_RKS, S_RDS, RL_TRS = (78, 82), (79, 83), (11, 40)
    S_RD2S = (74, 73)
    def rl_issue(self, rnd):
        I = self.I
        self.S_RK, self.S_RD, self.RL_TR = self.S_RKS[rnd], self.S_RDS[rnd], self.RL_TRS[rnd]
        u, A0, A1 = ST+4, ST+5, ST+6
        lk4 = self.b.uid("L_r4"); lk3 = self.b.uid("L_r3"); lA = self.b.uid("L_rA"); lend = self.b.uid("L_re")
        I(f"""
        s_lshl_b32 s{u}, s{S_W}, 2
        s_add_u32 s{u}, s{u}, s{S_WV}
        """)
        if rnd == 1:
            I(f"""
            s_mov_b32 s{self.S_RK}, 2
            s_cmp_lt_u32 s{S_M}, 6
            s_cbranch_scc1 {lend}
            s_lshl_b32 s{u}, s{S_RB}, 1
            s_add_u32 s{u}, s{u}, s{S_M}
            s_sub_u32 s{u}, s{u}, 6
            s_lshl_b32 s{u}, s{u}, 2
            s_add_u32 s{u}, s{u}, s{S_WV}
            s_add_u32 s{u}, s{u}, 1024
            s_cmp_ge_u32 s{u}, 1232
            s_cbranch_scc1 {lend}
            s_branch {lk3}
            """)
        else:
            I(f"""
            s_cmp_ge_u32 s{u}, 912
            s_cbranch_scc1 {lk3}
            s_cmp_ge_u32 s{u}, 480
            s_cbranch_scc1 {lk4}
            s_mul_i32 s{A0}, s{u}, 410
            s_lshr_b32 s{A0}, s{A0}, 16                 ; p = u/160
            s_mul_i32 s{A1}, s{A0}, 160
            s_sub_u32 s{u}, s{u}, s{A1}                 ; r
            s_cmp_eq_u32 s{A0}, 1
            s_cselect_b32 s{S_A}, s{P_W1}, s{P_WO}
            s_cselect_b32 s{S_A+1}, s{P_W1+1}, s{P_WO+1}
            s_cmp_eq_u32 s{A0}, 2
            s_cselect_b32 s{S_A}, s{P_W2}, s{S_A}
            s_cselect_b32 s{S_A+1}, s{P_W2+1}, s{S_A+1}
            s_mov_b32 s{S_A+2}, {640*1280}
            s_mul_i32 s{A0}, s{A0}, 100                 ; p*100
            s_mul_i32 s{A1}, s{u}, 3277
            s_lshr_b32 s{A1}, s{A1}, 16                 ; m = r/20
            s_mul_i32 s{ST+7}, s{A1}, 20
            s_sub_u32 s{u}, s{u}, s{ST+7}               ; kb
            s_mul_i32 s{ST+7}, s{u}, 5
            s_add_u32 s{A0}, s{A0}, s{ST+7}
            s_lshl_b32 s{A0}, s{A0}, 10
            s_mul_i32 s{ST+7}, s{A1}, {WSA_M}
            s_add_u32 s{A0}, s{A0}, s{ST+7}
            s_add_u32 s{self.S_RD}, s{A0}, {WSA}
            s_branch {lA}
            {lk4}:
            s_sub_u32 s{u}, s{u}, 480
            s_mov_b32 s{S_A}, s{P_W4}
            s_mov_b32 s{S_A+1}, s{P_W4+1}
            s_mov_b32 s{S_A+2}, {1728*1280}
            s_mul_i32 s{A1}, s{u}, 1214
            s_lshr_b32 s{A1}, s{A1}, 16                 ; m = r/54
            s_mul_i32 s{ST+7}, s{A1}, 54
            s_sub_u32 s{u}, s{u}, s{ST+7}               ; kb
            s_mul_i32 s{A0}, s{u}, 5120
            s_mul_i32 s{ST+7}, s{A1}, {W4S_M}
            s_add_u32 s{A0}, s{A0}, s{ST+7}
            s_add_u32 s{self.S_RD}, s{A0}, {W4S}
            {lA}:
            s_mov_b32 s{S_A+3}, 0x20000
            s_mov_b32 s{self.S_RK}, 0
            s_mul_i32 s{u}, s{u}, {32*1280}
            s_mul_i32 s{A1}, s{A1}, 160
            s_add_u32 s{u}, s{u}, s{A1}
            s_mul_i32 s{A0}, s{S_WV}, 14336
            """)
            O = self.RL_OFF
            for q in range(5):
                I(f"""
                v_add_u32 v{O+5}, {64*q}, v{V_L}
                v_mul_u32_u24 v{O+6}, 6554, v{O+5}
                v_lshrrev_b32 v{O+6}, 16, v{O+6}
                v_mul_u32_u24 v{O+q}, {1280-160}, v{O+6}
                v_lshl_add_u32 v{O+q}, v{O+5}, 4, v{O+q}
                """)
            for q in range(5):
                I(f"s_mov_b32 m0, s{A0}\ns_add_u32 s{A0}, s{A0}, 1024\nbuffer_load_dwordx4 v{O+q}, {sr(S_A)}, s{u} offen lds")
            I(f"""
            v_lshrrev_b32 v{self.RL_TR}, 2, v{V_T}
            v_lshl_add_u32 v{self.RL_TR}, v{V_G}, 2, v{self.RL_TR}
            v_mul_u32_u24 v{self.RL_TR}, 160, v{self.RL_TR}
            s_branch {lend}_tr
            """)
        I(f"""
        {lk3}:
        s_sub_u32 s{u}, s{u}, 912
        s_mov_b32 s{S_A}, s{P_W3}
        s_mov_b32 s{S_A+1}, s{P_W3+1}
        s_mov_b32 s{S_A+2}, {640*3456}
        s_mov_b32 s{S_A+3}, 0x20000
        s_mov_b32 s{self.S_RK}, 1
        s_mul_i32 s{A1}, s{u}, 3277
        s_lshr_b32 s{A1}, s{A1}, 16                 ; m16 = r/20
        s_mul_i32 s{ST+7}, s{A1}, 20
        s_sub_u32 s{u}, s{u}, s{ST+7}               ; kb
        s_mul_i32 s{ST+7}, s{A1}, {W3S_M}
        s_add_u32 s{ST+7}, s{ST+7}, {W3S}
        s_mul_i32 s{A0}, s{u}, {4096 if self.w3split else 7168}
        s_add_u32 s{self.S_RD}, s{A0}, s{ST+7}               ; tiles 0..3
        s_mul_i32 s{A0}, s{u}, {3072 if self.w3split else 7168}
        s_add_u32 s{A0}, s{A0}, s{ST+7}
        s_add_u32 s{self.S_RD2S[rnd]}, s{A0}, {80*1024 if self.w3split else 4096}      ; tiles 4..6
        s_mul_i32 s{A0}, s{A1}, 7
        s_sub_u32 s{ST+7}, s{A1}, 12
        s_max_i32 s{ST+7}, s{ST+7}, 0
        s_sub_u32 s{A0}, s{A0}, s{ST+7}
        s_lshl_b32 s{A0}, s{A0}, 5
        s_mul_i32 s{u}, s{u}, {32*3456}
        s_add_u32 s{u}, s{u}, s{A0}
        s_mul_i32 s{A0}, s{S_WV}, 14336
        s_add_u32 s{A0}, s{A0}, {7168*rnd}
        """)
        O = self.RL_OFF
        for q in range(7):
            I(f"""
            v_add_u32 v{self.RL_D}, {64*q}, v{V_L}
            v_mul_u32_u24 v{self.RL_D+1}, 4682, v{self.RL_D}
            v_lshrrev_b32 v{self.RL_D+1}, 16, v{self.RL_D+1}
            v_mul_u32_u24 v{O+q}, {3456-224}, v{self.RL_D+1}
            v_lshl_add_u32 v{O+q}, v{self.RL_D}, 4, v{O+q}
            """)
        for q in range(7):
            I(f"s_mov_b32 m0, s{A0}\ns_add_u32 s{A0}, s{A0}, 1024\nbuffer_load_dwordx4 v{O+q}, {sr(S_A)}, s{u} offen lds")
        I(f"""
        v_lshrrev_b32 v{self.RL_TR}, 2, v{V_T}
        v_lshl_add_u32 v{self.RL_TR}, v{V_G}, 2, v{self.RL_TR}
        v_mul_u32_u24 v{self.RL_TR}, 224, v{self.RL_TR}
        {lend}_tr:
        v_and_b32 v{self.RL_D}, 3, v{V_T}
        v_lshl_add_u32 v{self.RL_TR}, v{self.RL_D}, 3, v{self.RL_TR}
        s_mul_i32 s{A0}, s{S_WV}, 14336
        s_add_u32 s{A0}, s{A0}, {7168*rnd}
        v_add_u32 v{self.RL_TR}, s{A0}, v{self.RL_TR}
        {lend}:
        """)

    def rl_store(self, rnd):
        I = self.I
        self.S_RK, self.S_RD, self.RL_TR = self.S_RKS[rnd], self.S_RDS[rnd], self.RL_TRS[rnd]
        l7 = self.b.uid("L_rs7"); lend = self.b.uid("L_rse")
        D = self.RL_D
        I(f"s_cmp_eq_u32 s{self.S_RK}, 2\ns_cbranch_scc1 {lend}\ns_cmp_eq_u32 s{self.S_RK}, 1\ns_cbranch_scc1 {l7}")
        for (nt, rowb, last) in ((5, 160, False), (7, 224, True)):
            if last: I(f"{l7}:")
            for j in range(nt):
                I(f"ds_read_b64_tr_b16 v[{D+4*j}:{D+4*j+1}], v{self.RL_TR} offset:{32*j}")
                I(f"ds_read_b64_tr_b16 v[{D+4*j+2}:{D+4*j+3}], v{self.RL_TR} offset:{32*j+16*rowb}")
            if nt == 5: I(f"s_add_u32 s{ST+4}, s{self.S_RD}, 4096")
            else: I(f"s_mov_b32 s{ST+4}, s{self.S_RD2S[rnd]}")
            I("s_waitcnt lgkmcnt(0)")
            for j in range(nt):
                I(f"buffer_store_dwordx4 {vr(D+4*j)}, v{V_L16}, {sr(S_WS)}, s{self.S_RD if j < 4 else ST+4} offen offset:{1024*(j%4)} sc1")
            if not last: I(f"s_branch {lend}")
        I(f"{lend}:")

    def rl_flag(self):
        I = self.I
        lab = self.b.uid("L_rlp")
        I(f"""
        s_barrier
        s_cmp_lg_u32 s{S_WV}, 0
        s_cbranch_scc1 {lab}
        v_mov_b32 v252, s{S_TAG}
        v_mov_b32 v253, s{S_TAG+1}
        s_lshl_b32 s{ST+4}, s{S_W}, 7
        s_add_u32 s{ST+4}, s{ST+4}, {RLFLAG}
        v_mov_b32 v251, s{ST+4}
        s_mov_b64 exec, 1
        buffer_store_dwordx2 v[252:253], v251, {sr(S_WS)}, 0 offen sc1
        s_mov_b64 exec, -1
        {lab}:
        """)

    def phase_kvwait(self):
        I = self.I
        AT = self.AT
        lp = self.b.uid("L_kvw"); ok = self.b.uid("L_kvok")
        I(f"""
        v_lshlrev_b32 v{AT+3}, 7, v{V_L}
        s_mov_b32 s{ST}, {TIMEOUT}
        s_mov_b32 s{ST+1}, {KVFLAG}
        {lp}:
        buffer_load_dwordx4 {vr(AT+4)}, v{AT+3}, {sr(S_WS)}, s{ST+1} offen sc1
        """)
        I(f"""
        s_waitcnt vmcnt(0)
        v_cmp_ne_u32 vcc, s{S_TAG}, v{AT+4}
        s_mov_b64 s[{ST+2}:{ST+3}], vcc
        v_cmp_ne_u32 vcc, s{S_TAG+1}, v{AT+5}
        s_or_b64 s[{ST+2}:{ST+3}], s[{ST+2}:{ST+3}], vcc
        s_cmp_eq_u64 s[{ST+2}:{ST+3}], 0
        s_cbranch_scc1 {ok}
        """)
        self.spin_tail(ST, lp, 3)
        I(f"{ok}:")
        self.reduce_g([AT+6], AT+2, op="v_max_f32")
        for sh in (8, 4, 2, 1):
            I(f"v_mov_b32_dpp v{AT+2}, v{AT+6} row_ror:{sh} row_mask:0xf bank_mask:0xf\nv_max_f32 v{AT+6}, v{AT+6}, v{AT+2}")
        I(f"v_mov_b32 v{AT+1}, v{AT+6}")
        self.xid_publish()
        labg = self.b.uid("L_dg")
        I(f"s_cmp_lg_u32 s{self.S_PROD}, 2\ns_cbranch_scc1 {labg}")
        I(f"v_accvgpr_read_b32 v248, a250\nv_accvgpr_read_b32 v249, a251")
        self.MT = self.MT2
        self.mod_gemv(60, 63, 63, None)
        I("s_barrier")
        I(f"{labg}:")
        self.stamp("kvwait")

    def kv_loads(self, i, sK, sV):
        raise NotImplementedError

    def phase_attn(self, force_slow=False):
        I, C = self.I, self.C
        QA0, QA1, QB0, QB1, SA, SB, PA, PB, OA, OB, KB, VB, AT = (self.QA0, self.QA1, self.QB0, self.QB1, self.SA, self.SB,
            self.PA, self.PB, self.OA, self.OB, self.KB, self.VB, self.AT)
        sK, sV, cnt = 85, 86, 87
        vK1 = AT+2
        lab_slow = self.b.uid("L_slow"); lab_done = self.b.uid("L_adone")
        C("bound check: |q|^2 * kmax2 <= T^2 (log2 units) else true-max path")
        Tlim = 64.0
        I(f"""
        v_mul_f32 v{AT}, v{AT}, v{AT+1}
        v_and_b32 v{vK1}, 31, v{V_L}
        v_lshlrev_b32 v{vK1}, 3, v{vK1}
        s_mov_b32 s{ST+3}, {hex(f2u(Tlim*Tlim if not force_slow else -1.0))}
        v_cmp_nge_f32 vcc, s{ST+3}, v{AT}
        """)
        I(f"s_cmp_lg_u64 vcc, 0\ns_cselect_b32 s{self.S_SLOW}, 1, 0")
        for r in range(16): I(f"v_mov_b32 v{OA+r}, 0\nv_mov_b32 v{OB+r}, 0")
        KVL = self.L_KV
        vK16, vK8 = 200, 201
        KR, VR = 16, 48
        def kreg(buf): return KR + 8*buf
        def vreg(buf): return VR + 8*buf
        def rdK(t):
            k = kreg(t % 4); o = (t % 16)*KVT
            I(f"ds_read_b128 {ar(k)}, v{vK16} offset:{o}")
            I(f"ds_read_b64 a[{k+4}:{k+5}], v{vK8} offset:{o+1024}")
        def rdV(t, which=(0, 1)):
            v = vreg(t % 4); o = (t % 16)*KVT
            if 0 in which: I(f"ds_read_b128 {ar(v)}, v{vK16} offset:{o+1280}")
            if 1 in which: I(f"ds_read_b128 {ar(v+4)}, v{vK16} offset:{o+2304}")
        I(f"v_add_u32 v{vK16}, {KVL}, v{V_L16}\nv_add_u32 v{vK8}, {KVL}, v{vK1}")
        for g in range(3): self.kv_dma(g)
        for r in range(16): I(f"v_mov_b32 v{SB+r}, 0xff800000")
        for r in range(8): I(f"v_mov_b32 v{PA+r}, 0")
        for r in range(8): I(f"v_accvgpr_write_b32 a{vreg(3)+r}, 0")
        self.rl_issue(0)
        I("s_waitcnt vmcnt(9)\ns_barrier")
        rdK(0); rdK(1); rdV(0)
        I(f"s_mov_b32 s{cnt}, 16")
        lp = self.b.uid("L_att"); lhk = [self.b.uid("L_hook") for _ in range(5)]; lback = [self.b.uid("L_back") for _ in range(4)]
        hooks = self.attn_hooks()
        mask = sum(1 << k for k in hooks)
        def exps(S, P, q):
            a = S + 4*q
            I(f"v_exp_f32 v{a}, v{a}\nv_exp_f32 v{a+1}, v{a+1}\nv_exp_f32 v{a+2}, v{a+2}\nv_exp_f32 v{a+3}, v{a+3}")
            I(f"v_cvt_pk_bf16_f32 v{P+2*q}, v{a}, v{a+1}\nv_cvt_pk_bf16_f32 v{P+2*q+1}, v{a+2}, v{a+3}")
        M16 = "v_mfma_f32_32x32x16_bf16"; M8 = "v_mfma_f32_32x32x8_bf16"
        SKS, SKL, SBM = 86, 85, 76
        def copy_slot(q, e):
            n = 2*(q & 1) + e
            if self.x_nokv: return
            if q < 2:
                if n == 3: I("s_mov_b64 exec, 0xffff")
                I(f"buffer_load_dwordx4 v{V_L16}, {sr(S_WS)}, s{SKS} offen offset:{1024*n} lds")
                if n == 3: I(f"s_mov_b64 exec, -1\ns_mov_b32 m0, s{SBM}")
            elif not self.noslot:
                I(f"buffer_load_dwordx4 v{V_L16}, {sr(S_WS)}, s{self.S_DS} offen offset:{1024*n} lds")
        def header(part):
            I("s_waitcnt vmcnt(12) lgkmcnt(4)")
            if not self.x_nobar: I("s_barrier")
            I(f"""
            s_bitcmp1_b32 s84, s{cnt}
            s_cbranch_scc1 {lhk[part]}
            {lback[part]}:
            s_add_u32 s{SKS}, s{SKS}, {4*KVT}
            s_add_u32 m0, s{SKL}, {((part + 3) % 4)*4*KVT}
            s_add_u32 s{self.S_DS}, s{self.S_DS}, s{self.S_INC}
            s_add_u32 s{SBM}, s{SBM}, s{self.S_INC}
            """)
        def body(i, qk=True, last=False):
            kb = kreg(i % 4); vb = vreg((i+3) % 4)
            k2 = kreg((i+2) % 4); ok = ((i+2) % 16)*KVT
            v1 = vreg((i+1) % 4); ov = ((i+1) % 16)*KVT
            if qk:
                I(f"{M16} {vr(SA,16)}, {ar(kb)}, {vr(QA0)}, 0")
                if not self.x_nords: I(f"ds_read_b128 {ar(k2)}, v{vK16} offset:{ok}")
            exps(SB, PB, 0)
            if qk:
                I(f"{M8} {vr(SA,16)}, a[{kb+4}:{kb+5}], v[{QA1}:{QA1+1}], {vr(SA,16)}")
            exps(SB, PB, 1)
            I(f"{M16} {vr(OA,16)}, {ar(vb)}, {vr(PA)}, {vr(OA,16)}")
            if qk and not self.x_nords: I(f"ds_read_b64 a[{k2+4}:{k2+5}], v{vK8} offset:{ok+1024}")
            exps(SB, PB, 2)
            I(f"{M16} {vr(OA,16)}, {ar(vb+4)}, {vr(PA+4)}, {vr(OA,16)}")
            if qk: copy_slot(i % 4, 0)
            exps(SB, PB, 3)
            if qk:
                I(f"{M16} {vr(SB,16)}, {ar(kb)}, {vr(QB0)}, 0")
                if not self.x_nords: I(f"ds_read_b128 {ar(v1)}, v{vK16} offset:{ov+1280}")
                exps(SA, PA, 0)
                I(f"{M8} {vr(SB,16)}, a[{kb+4}:{kb+5}], v[{QB1}:{QB1+1}], {vr(SB,16)}")
                copy_slot(i % 4, 1)
                exps(SA, PA, 1)
            I(f"{M16} {vr(OB,16)}, {ar(vb)}, {vr(PB)}, {vr(OB,16)}")
            if qk:
                if not self.x_nords: I(f"ds_read_b128 {ar(v1+4)}, v{vK16} offset:{ov+2304}")
                exps(SA, PA, 2)
            I(f"{M16} {vr(OB,16)}, {ar(vb+4)}, {vr(PB+4)}, {vr(OB,16)}")
            if qk:
                if i % 4 == 3:
                    I(f"s_sub_u32 s{cnt}, s{cnt}, 1")
                    header((i // 4 + 1) % 4)
                else:
                    I("s_waitcnt lgkmcnt(4)")
                exps(SA, PA, 3)
        I(f"""
        s_mul_i32 s{SKL}, s{S_WV}, {KVT}
        s_add_u32 s{SKS}, s{SKL}, {KV + 8*KVT}
        s_add_u32 s{SKL}, s{SKL}, {KVL}
        s_mov_b32 s{SBM}, {self.L_DUMMY}
        s_mov_b32 s{self.S_DS}, {KV}
        s_mov_b32 s{self.S_INC}, 0
        s_mov_b32 s84, {hex(mask)}
        """)
        I("s_waitcnt lgkmcnt(0)")
        lentry = self.b.uid("L_ent")
        I(f"""
        s_branch {lhk[4]}
        {lentry}:
        s_add_u32 s{SKS}, s{SKS}, {4*KVT}
        s_add_u32 m0, s{SKL}, {3*4*KVT}
        """)
        self.stamp("loop_in")
        I(f"{lp}:")
        for i in range(16): body(i)
        I(f"s_cmp_lg_u32 s{cnt}, 0\ns_cbranch_scc1 {lp}")
        self.stamp("loop_out")
        C("drain: iteration 64 (V_63)")
        I("s_waitcnt lgkmcnt(0)")
        body(0, qk=False)
        I(f"s_cmp_lg_u32 s{self.S_SLOW}, 0\ns_cbranch_scc1 {lab_slow}\ns_branch {lab_done}")
        I(f"{lhk[4]}:")
        self.hook_body(hooks, 16)
        I(f"s_branch {lentry}")
        for part in range(4):
            I(f"{lhk[part]}:")
            ks = [k for k in sorted(hooks, reverse=True) if (16 - k) % 4 == part and k != 16]
            for n_, k in enumerate(ks):
                nx = None
                if n_ < len(ks) - 1:
                    nx = self.b.uid("L_hk")
                    I(f"s_cmp_lg_u32 s{cnt}, {k}\ns_cbranch_scc1 {nx}")
                self.hook_body(hooks, k)
                I(f"s_branch {lback[part]}")
                if nx: I(f"{nx}:")
            if not ks: I(f"s_branch {lback[part]}")
        I(f"{lab_slow}:")
        for r in range(16): I(f"v_mov_b32 v{OA+r}, 0\nv_mov_b32 v{OB+r}, 0")
        MA_, MB_, T0 = AT+4, AT+5, AT+6
        I(f"v_mov_b32 v{MA_}, 0xff7fffff\nv_mov_b32 v{MB_}, 0xff7fffff")
        I(f"s_mov_b32 s{sK}, {KV}\ns_mov_b32 s{cnt}, 64")
        lp2 = self.b.uid("L_atts")
        I(f"{lp2}:")
        k0, v0 = kreg(0), vreg(0)
        I(f"""
        buffer_load_dwordx4 {ar(k0)}, v{V_L16}, {sr(S_WS)}, s{sK} offen
        buffer_load_dwordx2 a[{k0+4}:{k0+5}], v{vK1}, {sr(S_WS)}, s{sK} offen offset:1024
        buffer_load_dwordx4 {ar(v0)}, v{V_L16}, {sr(S_WS)}, s{sK} offen offset:1280
        buffer_load_dwordx4 {ar(v0+4)}, v{V_L16}, {sr(S_WS)}, s{sK} offen offset:2304
        s_add_u32 s{sK}, s{sK}, {KVT}
        s_waitcnt vmcnt(0)
        """)
        for (S, P, O, Q0, Q1, Mx) in ((SA, PA, OA, QA0, QA1, MA_), (SB, PB, OB, QB0, QB1, MB_)):
            I(f"{M16} {vr(S,16)}, {ar(kreg(0))}, {vr(Q0)}, 0")
            I(f"{M8} {vr(S,16)}, a[{kreg(0)+4}:{kreg(0)+5}], v[{Q1}:{Q1+1}], {vr(S,16)}")
            I(f"v_max3_f32 v{T0}, v{S}, v{S+1}, v{S+2}")
            for r in range(3, 15, 2): I(f"v_max3_f32 v{T0}, v{T0}, v{S+r}, v{S+r+1}")
            I(f"v_max_f32 v{T0}, v{T0}, v{S+15}")
            I(f"v_mov_b32 v{T0+1}, v{T0}\nv_permlane32_swap_b32 v{T0}, v{T0+1}\nv_max_f32 v{T0}, v{T0}, v{T0+1}")
            I(f"v_max_f32 v{T0}, v{T0}, v{Mx}")
            I(f"v_sub_f32 v{T0+1}, v{Mx}, v{T0}\nv_exp_f32 v{T0+1}, v{T0+1}\nv_mov_b32 v{Mx}, v{T0}")
            for r in range(16): I(f"v_mul_f32 v{O+r}, v{O+r}, v{T0+1}")
            for r in range(16): I(f"v_sub_f32 v{S+r}, v{S+r}, v{T0}")
            for q in range(4): exps(S, P, q)
            I(f"{M16} {vr(O,16)}, {ar(vreg(0))}, {vr(P)}, {vr(O,16)}")
            I(f"{M16} {vr(O,16)}, {ar(vreg(0)+4)}, {vr(P+4)}, {vr(O,16)}")
        I(f"s_sub_u32 s{cnt}, s{cnt}, 1\ns_cmp_lg_u32 s{cnt}, 0\ns_cbranch_scc1 {lp2}")
        I(f"{lab_done}:")
        I("s_waitcnt vmcnt(0)\ns_barrier")
        self.stamp("attn")
        self.mod_fetch()
        self.ring_state_after_attn()
        C("normalise and store O in the B-fragment layout of the wo GEMM")
        T = AT
        PK = SA
        I(f"""
        v_lshlrev_b32 v{self.V_L8}, 3, v{V_L}
        s_mul_i32 s{ST}, s{S_WV}, 3072
        s_add_u32 s{ST}, s{ST}, {144*1024}
        v_mul_u32_u24 v{T}, 176, v{V_T}
        v_add_u32 v{T}, s{ST}, v{T}
        v_lshl_add_u32 v{T+1}, v{V_G}, 3, v{T}
        v_bfe_u32 v{T+4}, v{V_L}, 4, 1
        v_mul_u32_u24 v{T+4}, 40, v{T+4}
        v_add_u32 v{T}, v{T}, v{T+4}
        v_lshrrev_b32 v{T+4}, 5, v{V_L}
        v_lshl_add_u32 v{T}, v{T+4}, 3, v{T}
        """)
        for (O, u) in ((OA, 0), (OB, 1)):
            I(f"v_mov_b32 v{T+2}, v{O+8}\nv_mov_b32 v{T+3}, v{O+8}\nv_permlane32_swap_b32 v{T+2}, v{T+3}")
            I(f"v_rcp_f32 v{T+3}, v{T+3}")
            for run in range(3):
                a = O + 4*run
                for r in range(4): I(f"v_mul_f32 v{a+r}, v{a+r}, v{T+3}")
                I(f"v_cvt_pk_bf16_f32 v{a}, v{a}, v{a+1}\nv_cvt_pk_bf16_f32 v{a+1}, v{a+2}, v{a+3}")
                if run == 2: I(f"s_mov_b32 exec_hi, 0")
                I(f"ds_write_b64 v{T}, v[{a}:{a+1}] offset:{80*u + 16*run}")
                if run == 2: I(f"s_mov_b32 exec_hi, -1")
        I("s_waitcnt lgkmcnt(0)")
        for j in range(5):
            I(f"ds_read_b64 v[{PK+2*j}:{PK+2*j+1}], v{T+1} offset:{32*j}")
        I(f"s_mul_i32 s{self.S_T5}, s{S_M}, 5")
        self.tile_base(ST+4, S_TT, 20, OF)
        I("s_waitcnt lgkmcnt(0)")
        self.store_frag(PK, 5, ST+4, self.S_T5)
        self.publish(PH_O); self.vm_drained()
        I("s_barrier")
        self.refill(); self.drip(4)
        self.stamp("opub")

    def dual(self, fn):
        I = self.I
        ls = self.b.uid("L_sl"); lj = self.b.uid("L_sj")
        I(f"s_cmp_eq_u32 s{S_FAST}, 0\ns_cbranch_scc1 {ls}")
        fn("")
        I(f"s_branch {lj}\n{ls}:")
        fn(" sc1")
        I(f"{lj}:")

    def xid_publish(self):
        I = self.I
        lab = self.b.uid("L_xp")
        I(f"""
        s_cmp_lg_u32 s{S_WV}, 0
        s_cbranch_scc1 {lab}
        s_getreg_b32 s{ST}, hwreg(HW_REG_XCC_ID)
        s_and_b32 s{ST}, s{ST}, 15
        v_mov_b32 v252, s{ST}
        v_mov_b32 v253, 0
        v_mov_b32 v254, s{S_TAG}
        v_mov_b32 v255, s{S_TAG+1}
        s_lshl_b32 s{ST}, s{S_RB}, 7
        s_lshl_b32 s{ST+1}, s{S_M}, 4
        s_add_u32 s{ST}, s{ST}, s{ST+1}
        s_add_u32 s{ST}, s{ST}, {XIDG}
        v_mov_b32 v251, s{ST}
        s_mov_b64 exec, 1
        buffer_store_dwordx4 v[252:255], v251, {sr(S_WS)}, 0 offen sc1
        s_mov_b64 exec, -1
        {lab}:
        """)

    XV = 240
    def xid_issue(self):
        I = self.I
        I(f"""
        s_and_b32 s{ST+5}, s{S_RB}, 28
        s_lshl_b32 s{ST+5}, s{ST+5}, 7
        s_add_u32 s{ST+5}, s{ST+5}, {XIDG}
        v_and_b32 v251, 31, v{V_L}
        v_lshlrev_b32 v251, 4, v251
        buffer_load_dwordx4 {vr(self.XV)}, v251, {sr(S_WS)}, s{ST+5} offen sc1
        """)

    def xid_eval(self):
        I = self.I
        X = self.XV
        lp = self.b.uid("L_xc"); ok = self.b.uid("L_xcok")
        I(f"""
        s_mov_b32 s{ST+4}, {TIMEOUT}
        {lp}:
        v_cmp_ne_u32 vcc, s{S_TAG}, v{X+2}
        s_mov_b64 s[{ST+6}:{ST+7}], vcc
        v_cmp_ne_u32 vcc, s{S_TAG+1}, v{X+3}
        s_or_b64 s[{ST+6}:{ST+7}], s[{ST+6}:{ST+7}], vcc
        s_cmp_eq_u64 s[{ST+6}:{ST+7}], 0
        s_cbranch_scc1 {ok}
        """)
        self.xid_issue()
        I("s_waitcnt vmcnt(0)")
        self.spin_tail(ST+4, lp, 14)
        I(f"""
        {ok}:
        s_getreg_b32 s{ST+4}, hwreg(HW_REG_XCC_ID)
        s_and_b32 s{ST+4}, s{ST+4}, 15
        v_cmp_ne_u32 vcc, s{ST+4}, v{X}
        s_cmp_eq_u64 vcc, 0
        s_cselect_b32 s{S_FAST}, {0 if self.force_global else 1}, 0
        """)

    def rl_poll_issue(self):
        I = self.I
        lab = self.b.uid("L_rpi")
        T = 232
        I(f"s_cmp_lg_u32 s{S_WV}, 0\ns_cbranch_scc1 {lab}\nv_lshlrev_b32 v250, 7, v{V_L}")
        for i in range(4):
            I(f"s_mov_b32 s{ST+5}, {RLFLAG + i*8192}\nbuffer_load_dwordx2 v[{T+2*i}:{T+1+2*i}], v250, {sr(S_WS)}, s{ST+5} offen sc1")
        I(f"{lab}:")

    def rl_poll_eval(self):
        I = self.I
        lab = self.b.uid("L_rw"); lp = self.b.uid("L_rwp"); ok = self.b.uid("L_rwok")
        T = 232
        I(f"s_cmp_lg_u32 s{S_WV}, 0\ns_cbranch_scc1 {lab}\ns_mov_b32 s{ST+4}, {TIMEOUT}\n{lp}:\ns_mov_b64 s[{ST+6}:{ST+7}], 0")
        for i in range(4):
            I(f"""
            v_cmp_ne_u32 vcc, s{S_TAG}, v{T+2*i}
            s_or_b64 s[{ST+6}:{ST+7}], s[{ST+6}:{ST+7}], vcc
            v_cmp_ne_u32 vcc, s{S_TAG+1}, v{T+1+2*i}
            s_or_b64 s[{ST+6}:{ST+7}], s[{ST+6}:{ST+7}], vcc
            """)
        I(f"s_cmp_eq_u64 s[{ST+6}:{ST+7}], 0\ns_cbranch_scc1 {ok}")
        self.rl_poll_issue()
        I("s_waitcnt vmcnt(0)")
        self.spin_tail(ST+4, lp, 4)
        I(f"{ok}:\n{lab}:\ns_barrier")

    def publish(self, ph, both=False, vmn=0, line_sreg=None):
        I = self.I
        ln = S_TT if line_sreg is None else line_sreg
        I(f"""
        v_mov_b32 v254, s{S_TAG}
        v_mov_b32 v255, s{S_TAG+1}
        s_lshl_b32 s{ST}, s{ln}, 7
        s_lshl_b32 s{ST+1}, s{S_M}, 3
        s_add_u32 s{ST}, s{ST}, s{ST+1}
        s_add_u32 s{ST}, s{ST}, {CFLAG + ph*CF_PH}
        v_mov_b32 v253, s{ST}
        s_mov_b32 s{ST+1}, {CF_LOC}
        s_waitcnt vmcnt({vmn})
        s_mov_b64 exec, 1
        """)
        def st(f):
            if f == "":
                I(f"buffer_store_dwordx2 v[254:255], v253, {sr(S_WS)}, s{ST+1} offen")
                if both: I(f"buffer_store_dwordx2 v[254:255], v253, {sr(S_WS)}, 0 offen sc1")
            else:
                I(f"buffer_store_dwordx2 v[254:255], v253, {sr(S_WS)}, 0 offen sc1")
        self.dual(st)
        I(f"s_mov_b64 exec, -1")

    def publish_drip(self, ph, both=False, line_sreg=None):
        if self.detail == 2: self.stamp(f"e_sto{ph}")
        self.publish(ph, both=both, vmn=0, line_sreg=line_sreg)
        self.vmq = []
        self.drip(self.pub_after)

    def wait_flags(self, ph, lines, code):
        I = self.I
        lp = self.b.uid("L_wfp"); ok = self.b.uid("L_wfok")
        I(f"v_mov_b32 v251, s{lines[0]}")
        if len(lines) > 1:
            I(f"v_lshrrev_b32 v250, 3, v{V_L}\nv_and_b32 v250, 3, v250")
            for i, r in enumerate(lines[1:], 1):
                I(f"v_cmp_eq_u32 vcc, {i}, v250\nv_mov_b32 v252, s{r}\nv_cndmask_b32 v251, v251, v252, vcc")
        I(f"""
        v_lshrrev_b32 v250, 4, v251
        s_lshr_b32 s{ST}, s{S_RB}, 2
        v_cmp_eq_u32 vcc, s{ST}, v250
        s_mul_i32 s{ST}, s{S_FAST}, {CF_LOC}
        v_mov_b32 v252, s{ST}
        v_cndmask_b32 v250, 0, v252, vcc
        v_lshl_add_u32 v251, v251, 7, v250
        v_and_b32 v252, 7, v{V_L}
        v_lshl_add_u32 v251, v252, 3, v251
        s_mov_b32 s{ST+1}, {CFLAG + ph*CF_PH}
        s_mov_b32 s{ST}, {TIMEOUT}
        buffer_load_dwordx2 v[254:255], v251, {sr(S_WS)}, s{ST+1} offen sc1
        """)
        n0 = len(self.vmq)
        self.drip(self.shadow_f)
        nsh = len(self.vmq) - n0
        lchk = self.b.uid("L_wfc")
        I(f"""
        s_waitcnt vmcnt({nsh})
        s_branch {lchk}
        {lp}:
        buffer_load_dwordx2 v[254:255], v251, {sr(S_WS)}, s{ST+1} offen sc1
        s_waitcnt vmcnt(0)
        {lchk}:
        v_cmp_ne_u32 vcc, s{S_TAG}, v254
        s_mov_b64 s[{ST+2}:{ST+3}], vcc
        v_cmp_ne_u32 vcc, s{S_TAG+1}, v255
        s_or_b64 s[{ST+2}:{ST+3}], s[{ST+2}:{ST+3}], vcc
        s_cmp_eq_u64 s[{ST+2}:{ST+3}], 0
        s_cbranch_scc1 {ok}
        """)
        self.spin_tail(ST, lp, code)
        I(f"{ok}:")
        self.vmq = self.vmq[len(self.vmq)-nsh:] if nsh else []

    X2, H = 4, 24
    ACC = 44
    MS_GA = 64
    WB = 100
    MS_A2, MS_SB = 160, 180
    GT = 200
    RING = 160
    F_WO, F_W1, F_W2, F_W3, F_W4 = 0, 100, 200, 304, 448
    NUNITS = 45
    S_T5 = 29
    S_SRC = 30
    S_WA, S_W3 , S_W4 = 90, 91, 92
    S_LW = 93
    S_DM, S_DS, S_AO, S_AO2 = 94, 95, 88, 89

    def vm_issue(self, tag): self.vmq.append(tag)
    def vm_wait(self, tag):
        if tag not in self.vmq: return
        i = len(self.vmq) - 1 - self.vmq[::-1].index(tag)
        n = len(self.vmq) - 1 - i
        self.I(f"s_waitcnt vmcnt({min(n, 63)})")
        self.vmq = self.vmq[i+1:]
    def vm_drained(self): self.vmq = []

    def ring_regs(self):
        I = self.I
        I(f"""
        s_lshl_b32 s{self.S_LW}, s{S_WV}, 12
        s_mul_i32 s{self.S_WA}, s{S_M}, {WSA_M}
        s_add_u32 s{self.S_WA}, s{self.S_WA}, {WSA}
        s_add_u32 s{self.S_WA}, s{self.S_WA}, s{self.S_LW}
        s_and_b32 s{self.S_W3}, s{S_RB}, 1
        s_lshl_b32 s{self.S_W3}, s{self.S_W3}, 3
        s_add_u32 s{self.S_W3}, s{self.S_W3}, s{S_M}
        s_mul_i32 s{self.S_W3}, s{self.S_W3}, {W3S_M}
        s_add_u32 s{self.S_W3}, s{self.S_W3}, {W3S}
        s_add_u32 s{self.S_W3}, s{self.S_W3}, s{self.S_LW}
        s_mul_i32 s{self.S_W4}, s{S_M}, {W4S_M}
        s_add_u32 s{self.S_W4}, s{self.S_W4}, {W4S}
        s_add_u32 s{self.S_W4}, s{self.S_W4}, s{self.S_LW}
        """)

    def refill(self, maxn=99):
        n = 0
        while self.units_queued < self.NUNITS and n < maxn:
            u = self.units_queued
            if 16*u + 15 - self.RING > self.consumed: break
            for q in range(4):
                self.pend.append((("u", u, q), (lambda u=u, q=q: self.emit_dma(u, q))))
            self.units_queued += 1; n += 1
        self.resort()

    def resort(self):
        ctx = getattr(self, "loop_ctx", None)
        if ctx is None: return
        F0, NT, S = ctx
        def key(e):
            t = e[0]
            if t[0] == "a": return t[2]
            F = 16*t[1]
            if F + 15 < F0: return -100
            st = max(0, (F - F0)//NT)
            if st >= S: return 1000 + t[1]
            return 4*(st//4) - 2 - 1
        self.pend.sort(key=key)

    def emit_dma(self, u, q, track=True):
        I = self.I
        if q == 0:
            F = 16*u
            if F < 304: base, off = self.S_WA, F*1024
            elif F < 448: base, off = self.S_W3, (F-304)*1024
            else: base, off = self.S_W4, (F-448)*1024
            slot = (F % self.RING)*1024
            I(f"s_add_u32 s{self.S_DM}, s{self.S_LW}, {slot}\ns_mov_b32 m0, s{self.S_DM}\ns_add_u32 s{self.S_DS}, s{base}, {off}")
        I(f"buffer_load_dwordx4 v{V_L16}, {sr(S_WS)}, s{self.S_DS} offen offset:{1024*q} lds")
        if track:
            self.vm_issue(("u", u) if q == 3 else ("ux", u, q))
            if q == 3: self.units_issued = u + 1

    def drip(self, n=1):
        while n > 0 and self.pend:
            tag, fn = self.pend.pop(0)
            fn(); n -= 1

    def flush_until(self, tag):
        if not any(t == tag for t, _ in self.pend): return
        while True:
            t, fn = self.pend.pop(0)
            fn()
            if t == tag: return

    def need_units(self, Fmax):
        u = Fmax // 16
        assert u < self.units_queued, (u, self.units_queued)
        self.flush_until(("u", u, 3))
        self.vm_wait(("u", u))

    def gemm(self, S, NT, F0, aops, abases, burst, rate, cap=99, post_barrier=True, resident=False, chunk=4, accf=None, filler=None, fill_n=0):
        I = self.I
        WB, ACC, T = self.WB, self.ACC, self.GT
        nt = len(abases)
        vb = [T, T+1, T+2]
        stride = 4*NT
        if accf is None: accf = lambda tt, j: ACC + 4*(tt*NT + j)
        filler = list(filler or [])
        def rd1(s, j):
            off = ((F0 + s*NT + j) % self.RING)*1024
            k, o = divmod(off, 61440)
            I(f"ds_read_b128 {vr(WB + stride*(s % 3) + 4*j)}, v{vb[k]} offset:{o}")
        while self.pend and self.pend[0][0][0] == "u" and self.pend[0][0][2] != 0: self.drip(1)
        keep = []
        if resident:
            keep = [e for e in self.pend if e[0][0] == "u"]
            self.pend = []
        self.pend = list(aops) + self.pend
        self.loop_ctx = (F0, NT, S)
        if not resident: self.refill(cap)
        self.drip(burst)
        for j in range(NT): rd1(0, j)
        for j in range(NT): rd1(1, j)
        acc_rate = 0.0
        for s in range(S):
            if not resident and s + 2 < S and (s + 2) % chunk == 0:
                last = min(S, s + 2 + chunk) - 1
                if F0 + last*NT + NT - 1 > self.visible or self.units_queued < self.NUNITS:
                    self.need_units(F0 + last*NT + NT - 1)
                    I("s_barrier")
                    self.visible = max(self.visible, F0 + last*NT + NT - 1)
                    self.consumed = max(self.consumed, F0 + (s-1)*NT + NT - 1)
                    self.refill(cap)
            if self.detail == F0 and s % 4 == 0: self.stamp(f"d_k{s}")
            nout = NT if s + 1 < S else 0
            I(f"s_waitcnt lgkmcnt({min(nout, 15)})")
            for tt in range(nt):
                self.flush_until(("a", tt, s))
                self.vm_wait(("a", tt, s))
            acc_rate += rate
            nm = nt*NT
            slots = []
            while acc_rate >= 1.0:
                slots.append(1); acc_rate -= 1.0
            pos = {(k*nm)//max(1, len(slots)) : 0 for k in range(len(slots))}
            for k in range(len(slots)): pos[(k*nm)//len(slots)] += 1
            i = 0
            for tt in range(nt):
                for j in range(NT):
                    c = '0' if s == 0 else vr(accf(tt, j))
                    I(f"v_mfma_f32_16x16x32_bf16 {vr(accf(tt, j))}, {vr(WB+stride*(s%3)+4*j)}, {ar(abases[tt]+4*s)}, {c}")
                    if i < NT and s + 2 < S: rd1(s+2, i)
                    if pos.get(i): self.drip(pos[i])
                    for _ in range(fill_n):
                        if filler: I(filler.pop(0))
                    i += 1
        for x in filler: I(x)
        self.pending_consumed = {299: 303, 443: 447}.get(F0 + S*NT - 1, F0 + S*NT - 1)
        self.loop_ctx = None
        self.pend = self.pend + keep
        if post_barrier:
            I("s_barrier")
            self.after_barrier()
            self.refill()
            self.drip({0: self.post_drip, 100: self.post_drip, 200: self.post_drip2, 384: self.post_drip3, 304: self.post_drip3}.get(F0, 0))

    def after_barrier(self):
        self.consumed = max(self.consumed, getattr(self, "pending_consumed", -1))

    def lds_bases(self):
        T = self.GT
        self.I(f"v_mov_b32 v{T}, v{V_L16}\nv_add_u32 v{T+1}, 61440, v{V_L16}\nv_add_u32 v{T+2}, {2*61440}, v{V_L16}")

    def a_op(self, tt, s, abase, vaddr, base_sreg, base_add, soff_reg, split=(), vaddr8=None):
        def fn():
            if s % 4 == 0:
                if base_sreg is None: self.I(f"s_mov_b32 s{soff_reg}, {base_add + 1024*s}")
                else: self.I(f"s_add_u32 s{soff_reg}, s{base_sreg}, {base_add + 1024*s}")
            r = abase + 4*s
            if s in split:
                self.I(f"buffer_load_dwordx2 a[{r}:{r+1}], v{vaddr8}, {sr(S_WS)}, s{soff_reg} offen offset:{1024*(s % 4)} sc1")
                self.vm_issue(("ah", tt, s))
                self.I(f"buffer_load_dwordx2 a[{r+2}:{r+3}], v{vaddr8}, {sr(S_WS)}, s{soff_reg} offen offset:{1024*(s % 4)+512} sc1")
            else:
                self.I(f"buffer_load_dwordx4 {ar(r)}, v{vaddr}, {sr(S_WS)}, s{soff_reg} offen offset:{1024*(s % 4)} sc1")
            self.vm_issue(("a", tt, s))
        return (("a", tt, s), fn)

    RAW_GA, RAW_SB, RAW_CB, RAW_GB = 140, 150, 214, 240
    def mod_fetch(self):
        I = self.I
        I(f"v_lshlrev_b32 v244, 4, v{V_G}\nv_add_u32 v244, {self.L_MODW}, v244")
        for (dst, off, acc) in ((self.RAW_GA, 0, False), (self.RAW_SB, 2560, False), (self.RAW_CB, 4096, False), (self.RAW_GB, 4096+2560, True)):
            for j in range(5):
                r = f"a[{dst+2*j}:{dst+2*j+1}]" if acc else f"v[{dst+2*j}:{dst+2*j+1}]"
                I(f"ds_read_b64 {r}, v244 offset:{off + 64*j}")

    def mod_unpack(self):
        I = self.I
        for src, dst in ((self.RAW_GA, self.MS_GA), (self.RAW_SB, self.MS_SB), (self.RAW_CB, self.MS_A2)):
            for i in range(10):
                I(f"v_lshlrev_b32 v{dst+2*i}, 16, v{src+i}\nv_and_b32 v{dst+2*i+1}, 0xffff0000, v{src+i}")
        self.one_plus_bf16(self.MS_A2, 20)

    def one_plus_bf16(self, r, n):
        I = self.I
        for i in range(0, n, 2):
            I(f"""
            v_add_f32 v{r+i}, 1.0, v{r+i}
            v_add_f32 v{r+i+1}, 1.0, v{r+i+1}
            v_cvt_pk_bf16_f32 v{r+i}, v{r+i}, v{r+i+1}
            v_and_b32 v{r+i+1}, 0xffff0000, v{r+i}
            v_lshlrev_b32 v{r+i}, 16, v{r+i}
            """)

    def ln_stats(self, src, which, mu, rs, code, fine=0):
        I = self.I
        T = self.GT + 4
        I(f"v_pk_add_f32 v[{T}:{T+1}], v[{src}:{src+1}], v[{src+2}:{src+3}]\nv_pk_mul_f32 v[{T+2}:{T+3}], v[{src}:{src+1}], v[{src}:{src+1}]")
        I(f"v_pk_fma_f32 v[{T+2}:{T+3}], v[{src+2}:{src+3}], v[{src+2}:{src+3}], v[{T+2}:{T+3}]")
        for i in range(4, 20, 2):
            I(f"v_pk_add_f32 v[{T}:{T+1}], v[{T}:{T+1}], v[{src+i}:{src+i+1}]\nv_pk_fma_f32 v[{T+2}:{T+3}], v[{src+i}:{src+i+1}], v[{src+i}:{src+i+1}], v[{T+2}:{T+3}]")
            if i in (8, 14): self.drip(fine)
        I(f"v_add_f32 v{T}, v{T}, v{T+1}\nv_add_f32 v{T+1}, v{T+2}, v{T+3}")
        self.reduce_g([T, T+1], T+4)
        I(f"""
        v_mov_b32 v{T+2}, s{S_TAG}
        v_mov_b32 v{T+3}, s{S_TAG+1}
        s_lshl_b32 s{ST+4}, s{S_RB}, 13
        s_lshl_b32 s{ST+5}, s{S_WV}, 8
        s_add_u32 s{ST+4}, s{ST+4}, s{ST+5}
        s_add_u32 s{ST+4}, s{ST+4}, {STAT + which*STAT_SZ}
        s_lshl_b32 s{ST+5}, s{S_M}, 10
        s_add_u32 s{ST+5}, s{ST+5}, s{ST+4}
        v_lshlrev_b32 v{T+4}, 4, v{V_T}
        s_mov_b64 exec, 0xffff
        """)
        self.dual(lambda f: I(f"buffer_store_dwordx4 {vr(T)}, v{T+4}, {sr(S_WS)}, s{ST+5} offen{f}"))
        I("s_mov_b64 exec, -1")
        if self.detail == 2: self.stamp(f"e_st{which}")
        I(f"""
        s_mov_b64 exec, -1
        v_lshl_add_u32 v{T+5}, v{V_G}, 11, v{T+4}
        s_mov_b32 s{ST}, {TIMEOUT}
        """)
        lp = self.b.uid("L_ls"); ok = self.b.uid("L_lsok"); lchk = self.b.uid("L_lsc")
        I(f"""
        buffer_load_dwordx4 {vr(T+8)}, v{T+5}, {sr(S_WS)}, s{ST+4} offen sc1
        buffer_load_dwordx4 {vr(T+12)}, v{T+5}, {sr(S_WS)}, s{ST+4} offen offset:1024 sc1
        """)
        n0 = len(self.vmq)
        self.drip(self.shadow_s)
        nsh = len(self.vmq) - n0
        I(f"""
        s_waitcnt vmcnt({nsh})
        s_branch {lchk}
        {lp}:
        buffer_load_dwordx4 {vr(T+8)}, v{T+5}, {sr(S_WS)}, s{ST+4} offen sc1
        buffer_load_dwordx4 {vr(T+12)}, v{T+5}, {sr(S_WS)}, s{ST+4} offen offset:1024 sc1
        s_waitcnt vmcnt(0)
        {lchk}:
        v_cmp_ne_u32 vcc, s{S_TAG}, v{T+10}
        s_mov_b64 s[{ST+2}:{ST+3}], vcc
        v_cmp_ne_u32 vcc, s{S_TAG+1}, v{T+11}
        s_or_b64 s[{ST+2}:{ST+3}], s[{ST+2}:{ST+3}], vcc
        v_cmp_ne_u32 vcc, s{S_TAG}, v{T+14}
        s_or_b64 s[{ST+2}:{ST+3}], s[{ST+2}:{ST+3}], vcc
        v_cmp_ne_u32 vcc, s{S_TAG+1}, v{T+15}
        s_or_b64 s[{ST+2}:{ST+3}], s[{ST+2}:{ST+3}], vcc
        s_cmp_eq_u64 s[{ST+2}:{ST+3}], 0
        s_cbranch_scc1 {ok}
        """)
        self.spin_tail(ST, lp, code)
        self.vmq = self.vmq[len(self.vmq)-nsh:] if nsh else []
        I(f"{ok}:")
        if self.detail == 2: self.stamp(f"e_got{which}")
        I(f"""
        v_add_f32 v{T}, v{T+8}, v{T+12}
        v_add_f32 v{T+1}, v{T+9}, v{T+13}
        """)
        self.reduce_g([T, T+1], T+4)
        I(f"""
        v_mul_f32 v{mu}, {1.0/640!r}, v{T}
        v_mul_f32 v{T+1}, {1.0/640!r}, v{T+1}
        v_fma_f32 v{T+1}, -v{mu}, v{mu}, v{T+1}
        v_max_f32 v{T+1}, 0, v{T+1}
        v_add_f32 v{T+1}, 0x3727c5ac, v{T+1}
        v_rsq_f32 v{rs}, v{T+1}
        s_nop 0
        v_mul_f32 v{mu}, -v{mu}, v{rs}
        v_mov_b32 v{rs+1}, v{rs}
        v_mov_b32 v{mu+1}, v{mu}
        """)

    V_L8 = 203
    SPLIT20 = (2, 7, 12, 17)
    SPLIT54 = (3, 10, 17, 24, 31, 38)
    def pack_tiles(self, src, ntile, dst=None):
        if dst is None: dst = src
        for j in range(ntile):
            a = src + 4*j; d = dst + 2*j
            self.I(f"v_cvt_pk_bf16_f32 v{d}, v{a}, v{a+1}\nv_cvt_pk_bf16_f32 v{d+1}, v{a+2}, v{a+3}")

    def store_frag(self, pk, ntile, base_sreg, tile0_sreg, skip_last_sreg=None, force_sc1=False, count=True):
        I = self.I
        lodd = self.b.uid("L_so"); lj = self.b.uid("L_sj")
        I(f"""
        s_lshr_b32 s{ST+5}, s{tile0_sreg}, 1
        s_lshl_b32 s{ST+5}, s{ST+5}, 10
        s_add_u32 s{ST+5}, s{ST+5}, s{base_sreg}
        s_bitcmp1_b32 s{tile0_sreg}, 0
        s_cbranch_scc1 {lodd}
        """)
        def variant(odd, f):
            if not odd:
                for p in range(ntile//2):
                    I(f"buffer_store_dwordx4 {vr(pk+4*p)}, v{V_L16}, {sr(S_WS)}, s{ST+5} offen offset:{1024*p}{f}")
                if ntile % 2:
                    lab = None
                    if skip_last_sreg is not None:
                        lab = self.b.uid("L_sk")
                        I(f"s_cmp_lg_u32 s{skip_last_sreg}, 0\ns_cbranch_scc1 {lab}")
                    j = ntile-1
                    I(f"buffer_store_dwordx2 v[{pk+2*j}:{pk+2*j+1}], v{self.V_L8}, {sr(S_WS)}, s{ST+5} offen offset:{1024*(ntile//2)}{f}")
                    if lab: I(f"{lab}:")
            else:
                I(f"buffer_store_dwordx2 v[{pk}:{pk+1}], v{self.V_L8}, {sr(S_WS)}, s{ST+5} offen offset:512{f}")
                for p in range(ntile//2):
                    I(f"buffer_store_dwordx4 {vr(pk+2+4*p)}, v{V_L16}, {sr(S_WS)}, s{ST+5} offen offset:{1024*(p+1)}{f}")
        if force_sc1: variant(False, " sc1")
        else: self.dual(lambda f: variant(False, f))
        I(f"s_branch {lj}\n{lodd}:")
        if force_sc1: variant(True, " sc1")
        else: self.dual(lambda f: variant(True, f))
        I(f"{lj}:")
        if count:
            for j in range(ntile//2): self.vm_issue(("st",))

    def tile_base(self, dst_sreg, tt_sreg, S, base_off):
        self.I(f"s_mul_i32 s{dst_sreg}, s{tt_sreg}, {S*1024}\ns_add_u32 s{dst_sreg}, s{dst_sreg}, {base_off}")

    def gelu(self, r, n, drip=0):
        I = self.I
        T = self.GT + 4
        c1 = -2.0 * 0.7978845608028654 * 1.4426950408889634
        c2 = c1 * 0.044715
        C1, ONE = T+8, T+10
        I(f"""
        s_mov_b32 s{ST+8}, {hex(f2u(c2))}
        s_mov_b32 s{ST+9}, {hex(f2u(c2))}
        v_mov_b32 v{C1}, {hex(f2u(c1))}
        v_mov_b32 v{C1+1}, {hex(f2u(c1))}
        v_mov_b32 v{ONE}, 1.0
        v_mov_b32 v{ONE+1}, 1.0
        """)
        P = lambda x: f"v[{x}:{x+1}]"
        for i in range(0, n, 4):
            x0, x1, t0, t1 = r+i, r+i+2, T, T+2
            I(f"v_pk_mul_f32 {P(t0)}, {P(x0)}, {P(x0)}\nv_pk_mul_f32 {P(t1)}, {P(x1)}, {P(x1)}")
            I(f"v_pk_fma_f32 {P(t0)}, {P(t0)}, s[{ST+8}:{ST+9}], {P(C1)}\nv_pk_fma_f32 {P(t1)}, {P(t1)}, s[{ST+8}:{ST+9}], {P(C1)}")
            I(f"v_pk_mul_f32 {P(t0)}, {P(t0)}, {P(x0)}\nv_pk_mul_f32 {P(t1)}, {P(t1)}, {P(x1)}")
            for q in range(4): I(f"v_exp_f32 v{T+q}, v{T+q}")
            I(f"v_pk_add_f32 {P(t0)}, {P(t0)}, {P(ONE)}\nv_pk_add_f32 {P(t1)}, {P(t1)}, {P(ONE)}")
            for q in range(4): I(f"v_rcp_f32 v{T+q}, v{T+q}")
            I(f"v_pk_mul_f32 {P(x0)}, {P(x0)}, {P(t0)}\nv_pk_mul_f32 {P(x1)}, {P(x1)}, {P(t1)}")
            self.drip(drip)

    def collect(self, fn):
        saved = self.b.items
        self.b.items = []
        fn()
        out = [it.text for it in self.b.items if isinstance(it, Ins)]
        self.b.items = saved
        return out

    def phase_entry(self, ph_wait, lines, code, F0, NT, between=None, upto=None):
        last = F0 + 4*NT - 1 if upto is None else upto
        self.need_units(last)
        self.I("s_barrier")
        self.visible = max(getattr(self, "visible", -1), last)
        self.after_barrier()
        if self.detail == F0: self.stamp("d_bar")
        self.wait_flags(ph_wait, lines, code)
        if self.detail == F0: self.stamp("d_flags")
        if self.detail == 2: self.stamp(f"e_fl{ph_wait}")

    def small_gemm(self, F0, act, ph_wait, rbs, code, shift=False, between=None, pf=()):
        I, C = self.I, self.C
        self.phase_entry(ph_wait, rbs, code, F0, 5, between, upto=(F0+99 if self.resident else None))
        if not shift:
            I(f"s_mul_i32 s{self.S_SRC}, s{S_TT}, {20*1024}\ns_add_u32 s{self.S_SRC}, s{self.S_SRC}, {act}")
            aops = [self.a_op(0, s, 16, V_L16, self.S_SRC, 0, self.S_AO, self.SPLIT20, self.V_L8) for s in range(20)]
        else:
            T = self.GT + 8
            I(f"s_lshl_b32 s{ST+4}, s{S_TT}, 4\ns_lshr_b32 s{ST+5}, s{S_RB}, 2")
            for q, dl in enumerate((-1, 1, -2, 2)):
                side = 1 if dl < 0 else 0
                I(f"""
                v_add_u32 v{T+4}, s{ST+4}, v{V_T}
                v_add_u32 v{T+4}, {dl & 0xffffffff}, v{T+4}          ; token'
                v_lshrrev_b32 v{T+5}, 4, v{T+4}
                v_mul_u32_u24 v{T+5}, 20480, v{T+5}
                v_add_u32 v{T+5}, {act}, v{T+5}
                v_lshrrev_b32 v{T+6}, 8, v{T+4}
                v_lshlrev_b32 v{T+7}, 1, v{T+6}
                v_add_u32 v{T+7}, {side}, v{T+7}
                v_mul_u32_u24 v{T+7}, 20480, v{T+7}
                v_add_u32 v{T+7}, {HG}, v{T+7}
                v_cmp_eq_u32 vcc, s{ST+5}, v{T+6}
                v_cndmask_b32 v{T+5}, v{T+7}, v{T+5}, vcc
                v_and_b32 v{T+6}, 15, v{T+4}
                v_lshl_add_u32 v{T+6}, v{V_G}, 4, v{T+6}              ; g*16 + t'
                v_lshl_add_u32 v{T+7}, v{T+6}, 3, v{T+5}
                v_lshl_add_u32 v{T+5}, v{T+6}, 4, v{T+5}
                v_cmp_gt_u32 vcc, 0x800, v{T+4}
                v_mov_b32 v{T+6}, 0x80000000
                v_cndmask_b32 v{T+q}, v{T+6}, v{T+5}, vcc
                v_cndmask_b32 v{self.GT+20+q}, v{T+6}, v{T+7}, vcc
                """)
            aops = [self.a_op(0, s, 16, T + s // 5, None, 0, self.S_AO, self.SPLIT20, self.GT + 20 + s // 5) for s in range(20)]
        if self.use_pf: aops += [(("a", 9, 19), (lambda p=p: self.pf_op(*p))) for p in pf]
        if (self.h4t_where == 1 and F0 == self.F_W1) or (self.h4t_where == 2 and F0 == self.F_W2) or (self.h4t_where == 4 and F0 == self.F_WO):
            def h4t():
                self.act_touch(H4F, 54*1024); self.vm_issue(("pf",))
            aops.append((("a", 9, 19), h4t))
        self.gemm(20, 5, F0, aops, [16], burst=self.burst, rate=self.rate_small, cap=self.cap_small, resident=self.resident)

    def phase_wo(self):
        I, C = self.I, self.C
        X2, H, ACC, T = self.X2, self.H, self.ACC, self.GT
        self.lds_bases()
        self.mod_unpack()
        for j in range(5):
            for q in range(2):
                I(f"v_accvgpr_read_b32 v{T+4}, a{2*j+q}")
                I(f"v_lshlrev_b32 v{X2+4*j+2*q}, 16, v{T+4}\nv_and_b32 v{X2+4*j+2*q+1}, 0xffff0000, v{T+4}")
        self.small_gemm(self.F_WO, OF, PH_O, [S_TT], 6, pf=[("3", 0)])
        self.stamp("wo_mm")
        P = lambda x: f"v[{x}:{x+1}]"
        f = self.fine
        for i in range(0, 20, 2): I(f"v_pk_fma_f32 {P(X2+i)}, {P(self.MS_GA+i)}, {P(ACC+i)}, {P(X2+i)}")
        mu, rs = T+30, T+32
        self.ln_stats(X2, 0, mu, rs, 7, fine=f)
        for i in range(0, 20, 2):
            I(f"v_pk_fma_f32 {P(H+i)}, {P(X2+i)}, {P(rs)}, {P(mu)}")
            I(f"v_pk_fma_f32 {P(H+i)}, {P(H+i)}, {P(self.MS_A2+i)}, {P(self.MS_SB+i)}")
            if i in (0, 8): self.drip(f)
        self.ln_stats(H, 1, mu, rs, 8, fine=f)
        self.drip(f)
        for i in range(0, 20, 2): I(f"v_pk_fma_f32 {P(ACC+i)}, {P(H+i)}, {P(rs)}, {P(mu)}")
        self.pack_tiles(ACC, 5)
        self.tile_base(ST+4, S_TT, 20, L2F)
        self.store_frag(ACC, 5, ST+4, self.S_T5)
        self.publish_drip(PH_L2)
        self.stamp("l2pub")

    def phase_w1(self):
        I = self.I
        self.small_gemm(self.F_W1, L2F, PH_L2, [S_TT], 9, pf=[("3", 1)])
        self.stamp("w1_mm")
        self.gelu(self.ACC, 20, drip=self.gd1)
        self.pack_tiles(self.ACC, 5)
        self.tile_base(ST+4, S_TT, 20, GF)
        self.store_frag(self.ACC, 5, ST+4, self.S_T5)
        lab = self.b.uid("L_hal")
        I(f"""
        s_and_b32 s{ST+6}, s{S_TT}, 15
        s_add_u32 s{ST+6}, s{ST+6}, 1
        s_and_b32 s{ST+7}, s{ST+6}, 14
        s_cmp_eq_u32 s{ST+7}, 0
        s_cbranch_scc0 {lab}
        s_lshr_b32 s{ST+7}, s{S_TT}, 4
        s_lshl_b32 s{ST+7}, s{ST+7}, 1
        s_lshr_b32 s{ST+6}, s{ST+6}, 4
        s_add_u32 s{ST+7}, s{ST+7}, s{ST+6}
        s_mul_i32 s{ST+4}, s{ST+7}, 20480
        s_add_u32 s{ST+4}, s{ST+4}, {HG}
        """)
        self.store_frag(self.ACC, 5, ST+4, self.S_T5, force_sc1=True, count=False)
        I(f"{lab}:")
        self.publish_drip(PH_G, both=True)
        self.stamp("gpub")

    def phase_w2(self):
        I = self.I
        X2, H, ACC, T = self.X2, self.H, self.ACC, self.GT
        I(f"""
        s_sub_u32 s{ST+10}, s{S_TT}, 1
        s_max_i32 s{ST+10}, s{ST+10}, 0
        s_add_u32 s{ST+11}, s{S_TT}, 1
        s_min_u32 s{ST+11}, s{ST+11}, 127
        """)
        self.small_gemm(self.F_W2, GF, PH_G, [S_TT, ST+10, ST+11], 10, shift=True, pf=[("4", 0)])
        self.stamp("w2_mm")
        P = lambda x: f"v[{x}:{x+1}]"
        for i in range(0, 20, 2): I(f"v_pk_add_f32 {P(H+i)}, {P(H+i)}, {P(ACC+i)}")
        mu, rs = T+30, T+32
        self.ln_stats(H, 2, mu, rs, 11, fine=self.fine)
        self.drip(self.fine)
        for i in range(0, 20, 2): I(f"v_pk_fma_f32 {P(ACC+i)}, {P(H+i)}, {P(rs)}, {P(mu)}")
        self.pack_tiles(ACC, 5)
        self.tile_base(ST+4, S_TT, 20, L3F)
        self.store_frag(ACC, 5, ST+4, self.S_T5)
        self.publish_drip(PH_L3)
        self.stamp("l3pub")

    def phase_w3(self):
        I, C = self.I, self.C
        ACC = self.ACC
        m16, t0, skip, rbA, rbB, ttb = ST+10, ST+11, ST+12, ST+13, ST+14, ST+15
        I(f"""
        s_and_b32 s{m16}, s{S_RB}, 1
        s_lshl_b32 s{m16}, s{m16}, 3
        s_add_u32 s{m16}, s{m16}, s{S_M}
        s_mul_i32 s{t0}, s{m16}, 7
        s_sub_u32 s{ST}, s{m16}, 12
        s_max_i32 s{ST}, s{ST}, 0
        s_sub_u32 s{t0}, s{t0}, s{ST}
        s_cmp_ge_u32 s{m16}, 12
        s_cselect_b32 s{skip}, 1, 0
        s_and_b32 s{rbA}, s{S_RB}, 30
        s_add_u32 s{rbB}, s{rbA}, 1
        s_lshl_b32 s{ttb}, s{rbA}, 2
        s_lshl_b32 s{ST}, s{S_WV}, 1
        s_add_u32 s{ttb}, s{ttb}, s{ST}
        """)
        I(f"s_add_u32 s{rbA}, s{ttb}, 1")
        self.phase_entry(PH_L3, [ttb, rbA], 12, self.F_W3, 4 if self.w3split else 7)
        I(f"s_mul_i32 s{self.S_SRC}, s{ttb}, {20*1024}\ns_add_u32 s{self.S_SRC}, s{self.S_SRC}, {L3F}")
        aops = []
        for s in range(20):
            aops.append(self.a_op(0, s, 16, V_L16, self.S_SRC, 0, self.S_AO, self.SPLIT20, self.V_L8))
            aops.append(self.a_op(1, s, 96, V_L16, self.S_SRC, 20*1024, self.S_AO2, self.SPLIT20, self.V_L8))
        if self.use_pf: aops.insert(16, (("a", 9, 8), (lambda: self.pf_op("4", 1))))
        def h4t():
            self.act_touch(H4F, 54*1024); self.vm_issue(("pf",))
        if self.h4t_where == 3: aops.append((("a", 9, 19), h4t))
        if not self.w3split:
            self.gemm(20, 7, self.F_W3, aops, [16, 96], burst=2*self.burst, rate=self.rate_w3)
            self.stamp("w3_mm")
            self.gelu(ACC, 56, drip=self.gd3)
        else:
            self.gemm(20, 4, self.F_W3, aops, [16, 96], burst=2*self.burst, rate=self.rate_w3a, accf=lambda tt, j: ACC + 28*tt + 4*j, post_barrier=False)
            F2 = self.F_W3 + 80
            self.need_units(F2 + 4*3 - 1)
            I("s_barrier")
            self.visible = max(self.visible, F2 + 11)
            self.after_barrier()
            fill = self.collect(lambda: (self.gelu(ACC, 16), self.gelu(ACC+28, 16)))
            self.gemm(20, 3, F2, [], [16, 96], burst=0, rate=self.rate_w3b, accf=lambda tt, j: ACC + 28*tt + 16 + 4*j, filler=fill, fill_n=self.fill_n)
            self.stamp("w3_mm")
            self.gelu(ACC+16, 12, drip=self.gd3)
            self.gelu(ACC+44, 12, drip=self.gd3)
        self.pack_tiles(ACC, 7)
        self.pack_tiles(ACC+28, 7)
        self.tile_base(ST+4, ttb, 54, H4F)
        self.store_frag(ACC, 7, ST+4, t0, skip_last_sreg=skip)
        I(f"s_add_u32 s{ST+4}, s{ST+4}, {54*1024}")
        self.store_frag(ACC+28, 7, ST+4, t0, skip_last_sreg=skip)
        self.publish_drip(PH_H4)
        self.stamp("h4pub")

    def phase_w4(self):
        I, C = self.I, self.C
        X2, H, ACC, T = self.X2, self.H, self.ACC, self.GT
        rbA, rbB = ST+13, ST+14
        I(f"""
        s_and_b32 s{rbA}, s{S_TT}, 7
        s_lshr_b32 s{rbA}, s{rbA}, 1
        s_and_b32 s{rbB}, s{S_RB}, 30
        s_lshl_b32 s{rbB}, s{rbB}, 2
        s_add_u32 s{rbA}, s{rbA}, s{rbB}
        s_add_u32 s{rbB}, s{rbA}, 4
        """)
        self.phase_entry(PH_H4, [rbA, rbB], 13, self.F_W4, 5, upto=(607 if self.resident else None))
        I(f"s_mul_i32 s{self.S_SRC}, s{S_TT}, {54*1024}\ns_add_u32 s{self.S_SRC}, s{self.S_SRC}, {H4F}")
        if self.wb_early:
            lab = self.b.uid("L_wb")
            I(f"""
            s_lshr_b32 s{ST}, s{S_W}, 3
            s_lshl_b32 s{ST}, s{ST}, 2
            s_add_u32 s{ST}, s{ST}, s{S_WV}
            s_cmp_lg_u32 s{ST}, {self.wb_who}
            s_cbranch_scc1 {lab}
            buffer_wbl2 sc1
            {lab}:
            """)
        aops = [self.a_op(0, s, 16, V_L16, self.S_SRC, 0, self.S_AO, self.SPLIT54, self.V_L8) for s in range(54)]
        self.gemm(54, 5, self.F_W4, aops, [16], burst=self.burst4, rate=self.rate_w4, post_barrier=False, chunk=self.chunk4)
        self.stamp("w4_mm")
        MS = self.WB
        for j in range(5):
            I(f"""
            v_accvgpr_read_b32 v{T+4}, a{self.RAW_GB+2*j}
            v_accvgpr_read_b32 v{T+5}, a{self.RAW_GB+2*j+1}
            v_lshlrev_b32 v{MS+4*j}, 16, v{T+4}
            v_and_b32 v{MS+4*j+1}, 0xffff0000, v{T+4}
            v_lshlrev_b32 v{MS+4*j+2}, 16, v{T+5}
            v_and_b32 v{MS+4*j+3}, 0xffff0000, v{T+5}
            """)
        for i in range(0, 20, 2):
            I(f"v_pk_add_f32 v[{ACC+i}:{ACC+i+1}], v[{ACC+i}:{ACC+i+1}], v[{H+i}:{H+i+1}]")
            I(f"v_pk_fma_f32 v[{ACC+i}:{ACC+i+1}], v[{ACC+i}:{ACC+i+1}], v[{MS+i}:{MS+i+1}], v[{X2+i}:{X2+i+1}]")
        self.srd(S_A, P_OUT, 2048*1280)
        I(f"""
        s_lshl_b32 s{ST}, s{S_TT}, 4
        v_add_u32 v{T+4}, s{ST}, v{V_T}
        v_mul_u32_u24 v{T+4}, 1280, v{T+4}
        v_lshl_add_u32 v{T+4}, v{V_G}, 3, v{T+4}
        s_mul_i32 s{ST}, s{S_M}, 160
        """)
        self.pack_tiles(ACC, 5)
        for j in range(5):
            a = ACC + 2*j
            I(f"buffer_store_dwordx2 v[{a}:{a+1}], v{T+4}, {sr(S_A)}, s{ST} offen offset:{32*j}{' sc1' if self.out_sc1 else ''}")
        self.stamp("out")

    def l2_prefetch(self, which, part):
        I = self.I
        T = 246
        rbl = ST + 4
        I(f"v_lshlrev_b32 v{T}, 7, v{V_L}\ns_and_b32 s{rbl}, s{S_RB}, 3")
        if which == "A":
            base, start, chunk, shl = self.S_WA, 96*1024, 6656, 0
        elif which == "3":
            base, start, chunk, shl = self.S_W3, 0, 9216, 1
        else:
            base, start, chunk, shl = self.S_W4, 0, 8704, 0
        I(f"""
        s_lshr_b32 s{ST+5}, s{rbl}, {shl}
        s_lshl_b32 s{ST+5}, s{ST+5}, 2
        s_add_u32 s{ST+5}, s{ST+5}, s{S_WV}
        s_lshl_b32 s{ST+5}, s{ST+5}, 1
        s_add_u32 s{ST+5}, s{ST+5}, {part}
        s_mul_i32 s{ST+5}, s{ST+5}, {chunk}
        s_add_u32 s{ST+5}, s{ST+5}, s{base}
        s_sub_u32 s{ST+5}, s{ST+5}, s{self.S_LW}
        s_add_u32 s{ST+5}, s{ST+5}, {start}
        """)
        if chunk < 8192:
            I(f"v_cmp_gt_u32 vcc, {chunk//128}, v{V_L}\ns_and_saveexec_b64 s[{ST+6}:{ST+7}], vcc")
        I(f"buffer_load_dword a254, v{T}, {sr(S_WS)}, s{ST+5} offen")
        if chunk < 8192:
            I(f"s_mov_b64 exec, s[{ST+6}:{ST+7}]")
        if chunk > 8192:
            I(f"s_add_u32 s{ST+5}, s{ST+5}, 8192\nv_cmp_gt_u32 vcc, {(chunk-8192)//128}, v{V_L}\ns_and_saveexec_b64 s[{ST+6}:{ST+7}], vcc")
            I(f"buffer_load_dword a253, v{T}, {sr(S_WS)}, s{ST+5} offen")
            I(f"s_mov_b64 exec, s[{ST+6}:{ST+7}]")
        return 2 if chunk > 8192 else 1

    def tlb_touch(self):
        I = self.I
        n = (WS_END + (1 << 20) - 1) >> 20
        I(f"""
        v_lshlrev_b32 v245, 20, v{V_L}
        v_cmp_gt_u32 vcc, {n}, v{V_L}
        s_and_saveexec_b64 s[{ST+6}:{ST+7}], vcc
        buffer_load_dword a255, v245, {sr(S_WS)}, 0 offen
        s_mov_b64 exec, s[{ST+6}:{ST+7}]
        """)

    def mall_touch(self, base, nbytes):
        I = self.I
        per_wave = -(-nbytes // 1024 // 128) * 128
        lines = per_wave // 128
        assert lines <= 128
        I(f"""
        v_lshlrev_b32 v245, 7, v{V_L}
        s_lshl_b32 s{ST+5}, s{S_W}, 2
        s_add_u32 s{ST+5}, s{ST+5}, s{S_WV}
        s_mul_i32 s{ST+5}, s{ST+5}, {per_wave}
        s_add_u32 s{ST+5}, s{ST+5}, {base}
        """)
        n0 = min(lines, 64)
        if n0 < 64: I(f"v_cmp_gt_u32 vcc, {n0}, v{V_L}\ns_and_saveexec_b64 s[{ST+6}:{ST+7}], vcc")
        I(f"buffer_load_dword a255, v245, {sr(S_WS)}, s{ST+5} offen")
        if n0 < 64: I(f"s_mov_b64 exec, s[{ST+6}:{ST+7}]")

    def act_touch(self, base, per_tile):
        I = self.I
        per_wave = 16*per_tile // 128
        lines = per_wave // 128
        I(f"""
        v_lshlrev_b32 v245, 7, v{V_L}
        s_lshr_b32 s{ST+5}, s{S_RB}, 2
        s_mul_i32 s{ST+5}, s{ST+5}, {16*per_tile}
        s_and_b32 s{ST+6}, s{S_RB}, 3
        s_lshl_b32 s{ST+6}, s{ST+6}, 3
        s_add_u32 s{ST+6}, s{ST+6}, s{S_M}
        s_lshl_b32 s{ST+6}, s{ST+6}, 2
        s_add_u32 s{ST+6}, s{ST+6}, s{S_WV}
        s_mul_i32 s{ST+6}, s{ST+6}, {per_wave}
        s_add_u32 s{ST+5}, s{ST+5}, s{ST+6}
        s_add_u32 s{ST+5}, s{ST+5}, {base}
        """)
        n0 = min(lines, 64)
        if n0 < 64: I(f"v_cmp_gt_u32 vcc, {n0}, v{V_L}\ns_and_saveexec_b64 s[{ST+6}:{ST+7}], vcc")
        I(f"buffer_load_dword a255, v245, {sr(S_WS)}, s{ST+5} offen")
        if n0 < 64: I(f"s_mov_b64 exec, s[{ST+6}:{ST+7}]")

    def sync_touch(self):
        I = self.I
        l3 = self.b.uid("L_st3"); lj = self.b.uid("L_stj")
        I(f"""
        s_cmp_eq_u32 s{S_WV}, 3
        s_cbranch_scc1 {l3}
        v_lshlrev_b32 v245, 7, v{V_L}
        s_mul_i32 s{ST+5}, s{S_WV}, {STAT_SZ}
        s_lshl_b32 s{ST+6}, s{S_RB}, 13
        s_add_u32 s{ST+5}, s{ST+5}, s{ST+6}
        s_add_u32 s{ST+5}, s{ST+5}, {STAT}
        buffer_load_dword a255, v245, {sr(S_WS)}, s{ST+5} offen
        s_branch {lj}
        {l3}:
        v_lshrrev_b32 v245, 4, v{V_L}
        v_lshlrev_b32 v245, 14, v245
        v_and_b32 v244, 15, v{V_L}
        v_lshl_add_u32 v245, v244, 7, v245
        s_and_b32 s{ST+5}, s{S_RB}, 28
        s_lshl_b32 s{ST+5}, s{ST+5}, 9
        s_add_u32 s{ST+5}, s{ST+5}, {CFLAG + CF_LOC}
        buffer_load_dword a255, v245, {sr(S_WS)}, s{ST+5} offen
        s_add_u32 s{ST+5}, s{ST+5}, {4*CF_PH}
        v_lshlrev_b32 v245, 7, v244
        buffer_load_dword a255, v245, {sr(S_WS)}, s{ST+5} offen
        {lj}:
        """)

    def pf_op(self, which, part):
        n = self.l2_prefetch(which, part)
        for i in range(n): self.vm_issue(("pf",))

    def hook_body(self, hooks, k):
        if self.detail == 1: self.stamp(f"h{k}i")
        hooks[k]()
        if self.detail == 1: self.stamp(f"h{k}o")

    L_KV = 108*1024
    S_INC = 75
    S_SLOW = 77
    def kv_dma(self, g):
        I = self.I
        I(f"""
        s_mul_i32 s{ST+5}, s{S_WV}, {KVT}
        s_add_u32 s{ST+4}, s{ST+5}, {self.L_KV + (4*g % 16)*KVT}
        s_mov_b32 m0, s{ST+4}
        s_add_u32 s{ST+5}, s{ST+5}, {KV + 4*g*KVT}
        buffer_load_dwordx4 v{V_L16}, {sr(S_WS)}, s{ST+5} offen lds
        buffer_load_dwordx4 v{V_L16}, {sr(S_WS)}, s{ST+5} offen offset:1024 lds
        buffer_load_dwordx4 v{V_L16}, {sr(S_WS)}, s{ST+5} offen offset:2048 lds
        s_mov_b64 exec, 0xffff
        buffer_load_dwordx4 v{V_L16}, {sr(S_WS)}, s{ST+5} offen offset:3072 lds
        s_mov_b64 exec, -1
        """)

    L_DUMMY = 104*1024
    L_MODW = 96*1024
    def slot_setup(self, kind, arg=0):
        I = self.I
        DS = self.S_DS
        if kind == "unit":
            I(f"s_add_u32 s{DS}, s{self.S_WA}, {(16*arg-16)*1024 & 0xffffffff}\ns_add_u32 s76, s{self.S_LW}, {(16*arg-16)*1024 & 0xffffffff}\ns_mov_b32 s{self.S_INC}, 16384")
            return
        if kind == "act":
            base, per_tile, part = arg
            per_wave = 16*per_tile // 128
            I(f"""
            s_lshr_b32 s{DS}, s{S_RB}, 2
            s_mul_i32 s{DS}, s{DS}, {16*per_tile}
            s_and_b32 s{ST+6}, s{S_RB}, 3
            s_lshl_b32 s{ST+6}, s{ST+6}, 3
            s_add_u32 s{ST+6}, s{ST+6}, s{S_M}
            s_lshl_b32 s{ST+6}, s{ST+6}, 2
            s_add_u32 s{ST+6}, s{ST+6}, s{S_WV}
            s_mul_i32 s{ST+6}, s{ST+6}, {per_wave}
            s_add_u32 s{DS}, s{DS}, s{ST+6}
            s_add_u32 s{DS}, s{DS}, {base + 4096*part}
            """)
        elif kind == "mod":
            I(f"s_mul_i32 s{DS}, s{S_M}, 320\ns_add_u32 s{DS}, s{DS}, {MODG + (2 + 2*arg)*2560}\ns_mov_b32 s76, {self.L_MODW + 4096*arg}\ns_mov_b32 s{self.S_INC}, 0")
            return
        elif kind == "wsa":
            I(f"""
            s_and_b32 s{ST+6}, s{S_RB}, 3
            s_lshl_b32 s{ST+6}, s{ST+6}, 2
            s_add_u32 s{ST+6}, s{ST+6}, s{S_WV}
            s_mul_i32 s{ST+6}, s{ST+6}, {8*1024}
            s_add_u32 s{DS}, s{self.S_WA}, s{ST+6}
            s_sub_u32 s{DS}, s{DS}, s{self.S_LW}
            s_add_u32 s{DS}, s{DS}, {96*1024 + 4096*arg}
            """)
        else:
            I(f"s_mov_b32 s{DS}, {KV}")
        I(f"s_mov_b32 s76, {self.L_DUMMY}")

    def attn_hooks(self):
        I = self.I
        J = {}
        J[15] = (lambda: self.rl_issue(1), 0)
        def j13():
            I("s_waitcnt vmcnt(16)")
            self.rl_store(0); self.rl_store(1)
            self.sync_touch()
        J[13] = (j13, 1)
        def j11():
            I("s_waitcnt vmcnt(16)")
            self.rl_flag()
        J[11] = (j11, 0)
        def j9(): self.xid_issue(); self.rl_poll_issue(); self.ring_regs()
        J[9] = (j9, 1)
        def j8():
            I("s_waitcnt vmcnt(8)")
            self.rl_poll_eval()
        J[8] = (j8, 0)
        J[2] = (self.xid_eval, 0)
        if self.pfA:
            J[7] = (lambda: self.l2_prefetch("A", 0), 1); J[5] = (lambda: self.l2_prefetch("A", 1), 1)
        if self.pf3:
            J[6] = (lambda: self.l2_prefetch("3", 0), 2); J[4] = (lambda: self.l2_prefetch("3", 1), 2)
        if self.pf4:
            J[3] = (lambda: (self.l2_prefetch("4", 0), self.l2_prefetch("4", 1)), 2)
        SL = {16: ("act", (OF, 20480, 0)), 15: ("act", (L2F, 20480, 0)), 14: ("none", 0), 13: ("act", (H4F, 54*1024, 0)), 11: ("act", (H4F, 54*1024, 1)),
              9: ("none", 0), 8: ("unit", 0), 2: ("mod", 0), 1: ("mod", 1)}
        if not ALIAS: SL[14] = ("act", (GF, 20480, 0)); SL[13] = ("act", (L3F, 20480, 0))
        H = {}
        def mk(k):
            def f():
                if k in J and not self.nojobs: J[k][0]()
                if k in SL: self.slot_setup(*(SL[k] if not self.nojobs else ("none", 0)))
            return f
        for k in range(16, 0, -1):
            if k in J or k in SL: H[k] = mk(k)
        return H

    def ring_state_after_attn(self):
        self.units_issued = 6
        self.units_queued = 6
        self.pend = []
        self.consumed = -1
        self.vmq = []

    def build(self, force_slow=False, force_global=False):
        I = self.I
        self.force_global = force_global
        phases = [self.phase_start, self.phase_kv, self.phase_q, self.phase_kvwait,
                  lambda: self.phase_attn(force_slow), self.phase_wo, self.phase_w1, self.phase_w2, self.phase_w3, self.phase_w4]
        self.prologue()
        for i, p in enumerate(phases):
            if i >= self.stop_after: break
            p()
        if self.dbg_time:
            lab = self.b.uid("L_dt")
            self.srd(S_C, P_DBG, 256)
            I(f"""
            s_and_b32 s{ST}, s{S_W}, 63
            s_cmp_lg_u32 s{ST}, 63
            s_cbranch_scc1 {lab}
            s_cmp_lg_u32 s{S_WV}, 0
            s_cbranch_scc1 {lab}
            s_memrealtime s[{ST+2}:{ST+3}]
            s_lshr_b32 s{ST}, s{S_W}, 6
            s_lshl_b32 s{ST}, s{ST}, 2
            s_add_u32 s{ST}, s{ST}, 32
            s_waitcnt lgkmcnt(0)
            s_sub_u32 s{ST+2}, s{ST+2}, s{S_TAG}
            v_mov_b32 v254, s{ST+2}
            v_mov_b32 v253, s{ST}
            buffer_store_dword v254, v253, {sr(S_C)}, 0 offen sc1
            {lab}:
            """)
        I(f"""
        s_waitcnt vmcnt(0) lgkmcnt(0)
        s_endpgm
        L_fail:
        """)
        self.srd(S_C, P_DBG, 256)
        I(f"""
        v_mov_b32 v254, s{S_ERR}
        v_mov_b32 v255, s{S_W}
        v_mov_b32 v253, 16
        buffer_store_dwordx2 v[254:255], v253, {sr(S_C)}, 0 offen sc1
        s_waitcnt vmcnt(0)
        L_end:
        s_endpgm
        L_code_end:
        """)
        text, n = finalize(self.b, check=not (self.x_nords or self.x_nokv or self.noslot), align=bool(self.align))
        hdr = open("adaLN_cond__grouped_kv_mqa__mixer_s_mlp__prompt.s.ref").read().split("; Override launch")[0]
        lines = [l for l in hdr.strip().split("\n")]
        lines.append(f"; @launch grid=(256,1,1) block=(256,1,1) lds={LDS_SZ}")
        return kernel_file(lines, [(NAME, text, 512, 256, 102)]), n

if __name__ == "__main__":
    import argparse
    ap = argparse.ArgumentParser()
    ap.add_argument("-o", default="adaLN_cond__grouped_kv_mqa__mixer_s_mlp__prompt.s")
    ap.add_argument("--stop", type=int, default=99)
    ap.add_argument("--stamps", action="store_true")
    ap.add_argument("--slow", action="store_true")
    ap.add_argument("--detail", type=int, default=-1)
    ap.add_argument("--cap", type=int, default=99)
    ap.add_argument("--set", action="append", default=[])
    ap.add_argument("--global", dest="glob", action="store_true")
    a = ap.parse_args()
    g = Gen(stop_after=a.stop, stamps=a.stamps)
    g.detail = a.detail
    g.cap_small = a.cap
    for kv in a.set:
        k_, v_ = kv.split('=')
        setattr(g, k_, float(v_) if '.' in v_ else int(v_))
    txt, n = g.build(force_slow=a.slow, force_global=a.glob)
    open(a.o, "w").write(txt)
    print("wrote", a.o, len(txt), "bytes; auto nops:", n, "stamps:", getattr(g, "stamp_names", None))
```

```python
import sys
from common import *

import struct
def f2u(x): return struct.unpack("<I", struct.pack("<f", x))[0]

NAME = "adaLN_cond__grouped_kv_mqa__mixer_s_mlp__prompt_kernel"
MODG   = 0x000000
KVFLAG = 0x004000
RLFLAG = 0x008000
STAT   = 0x020000
STAT_SZ = 32*8*64*16
KV     = 0x100000
KVT    = 3328
OF     = 0x200000
ACT_SZ = 128*20*1024
L2F    = OF + ACT_SZ
import os
ALIAS = os.environ.get('NOALIAS') is None
GF     = OF if ALIAS else L2F + ACT_SZ
L3F    = L2F if ALIAS else L2F + 2*ACT_SZ
H4F    = L2F + 3*ACT_SZ
H4_SZ  = 128*54*1024
WSA    = H4F + H4_SZ
WSA_M  = 304*1024
W3S    = WSA + 8*WSA_M
W3S_M  = 144*1024
W4S    = W3S + 16*W3S_M
W4S_M  = 272*1024
HG     = W4S + 8*W4S_M
XIDG   = HG + 16*20*1024
CFLAG  = XIDG + 4096
CF_LOC = 8*128*128
CF_PH  = 128*128
WS_END = CFLAG + 2*CF_LOC + 64*1024
DBGA   = WS_END
WS_REC = 0x4000000
PH_O, PH_L2, PH_G, PH_L3, PH_H4 = 0, 1, 2, 3, 4

L_WQ   = 0
L_WK   = 102400
L_WM   = 102400
L_SC   = 143360
L_MOD  = 144640
L_QS   = 149760
L_MISC = 161024
LDS_SZ = 163840
L_RL   = 0
L_W    = 0

S_WS = 4
S_A  = 8
S_B  = 12
S_C  = 16
S_TAG = 20
S_WV, S_M, S_RB, S_W = 22, 23, 24, 25
S_T0 = 26
S_TT = 27
S_ERR = 28
S_FAST = 3
P_X, P_WQ, P_WK, P_WV, P_WO, P_BX, P_W1, P_W2, P_W3, P_W4, P_C, P_WM, P_OUT, P_DBG, P_WS = [32 + 2*i for i in range(15)]
ST = 62

def sr(b, n=4): return f"s[{b}:{b+n-1}]"
def vr(b, n=4): return f"v[{b}:{b+n-1}]" if n > 1 else f"v{b}"
def ar(b, n=4): return f"a[{b}:{b+n-1}]" if n > 1 else f"a{b}"

V_L, V_T, V_G, V_L16 = 0, 1, 2, 3

TIMEOUT = 400000

class Gen:
    def __init__(self, stop_after=99, stamps=False):
        self.b = Builder()
        self.stop_after = stop_after
        self.stamps = stamps
        self.nstamp = 0
        self.detail = -1
        self.nojobs = 0
        self.dbg_time = 0
        self.align = 1
        self.x_nobar = 0
        self.x_nokv = 0
        self.x_nords = 0
        self.noslot = 0
        self.in_slow = False
        self.cap_small = 99
        self.burst = 6
        self.rate_small = 1.3
        self.rate_w3 = 3.5
        self.rate_w4 = 1.6
        self.epi_drip = 8
        self.post_drip = 0
        self.fine = 0
        self.h4mode = 0
        self.wb_early = 0
        self.wb_who = 0
        self.out_sc1 = 0
        self.wq_touch = 1
        self.w3split = 0
        self.rate_w3a = 2.2
        self.rate_w3b = 1.5
        self.fill_n = 2
        self.pfA = 1
        self.pf4 = 0
        self.post_drip2 = 0
        self.post_drip3 = 0
        self.res3 = 0
        self.w4defer = 0
        self.shadow_f = 3
        self.shadow_s = 3
        self.resident = 0
        self.chunk4 = 4
        self.pub_after = 0
        self.visible = -1
        self.epi_drip2 = 6
        self.gd1 = 1
        self.gd3 = 2
        self.burst4 = 10
        self.use_pf = 0
        self.tlb_warm = 0
        self.touch_act = 0
        self.h4t_where = 0
        self.use_mall = 0
        self.pf3 = 0
        self.pub_drip = 0
    def I(self, t): self.b.I(t)
    def C(self, t): self.b.C(t)

    def srd(self, s, ptr, nbytes, add=0):
        if add:
            self.I(f"s_add_u32 s{s}, s{ptr}, {add}\ns_addc_u32 s{s+1}, s{ptr+1}, 0")
        else:
            self.I(f"s_mov_b32 s{s}, s{ptr}\ns_mov_b32 s{s+1}, s{ptr+1}")
        self.I(f"s_mov_b32 s{s+2}, {nbytes}\ns_mov_b32 s{s+3}, 0x20000")

    def stamp(self, name):
        if not self.stamps: return
        k = self.nstamp; self.nstamp += 1
        lab = self.b.uid("L_st")
        self.C(f"stamp {k}: {name}")
        self.I(f"""
        s_cmp_lg_u32 s{S_WV}, 0
        s_cbranch_scc1 {lab}
        s_memrealtime s[100:101]
        s_memtime s[96:97]
        s_lshl_b32 s99, s{S_W}, 11
        s_add_u32 s99, s99, {DBGA + 16*k}
        s_waitcnt lgkmcnt(0)
        v_mov_b32 v252, s100
        v_mov_b32 v253, s101
        v_mov_b32 v254, s96
        v_mov_b32 v255, s97
        v_mov_b32 v251, s99
        buffer_store_dwordx4 v[252:255], v251, {sr(S_WS)}, 0 offen
        s_nop 1
        {lab}:
        """)
        self.stamp_names = getattr(self, "stamp_names", []) + [name]

    def spin_tail(self, cnt, loop, code):
        self.I(f"""
        s_sub_u32 s{cnt}, s{cnt}, 1
        s_cmp_lg_u32 s{cnt}, 0
        s_cbranch_scc1 {loop}
        s_mov_b32 s{S_ERR}, {code}
        s_branch L_fail
        """)

    def get_tag(self):
        lp = self.b.uid("L_tag"); ok = self.b.uid("L_tagok")
        self.srd(S_C, P_DBG, 256)
        self.I(f"""
        s_mov_b32 s{ST}, {TIMEOUT}
        v_mov_b32 v252, 0
        {lp}:
        buffer_load_dwordx2 v[254:255], v252, {sr(S_C)}, 0 offen sc1
        s_waitcnt vmcnt(0)
        v_readfirstlane_b32 s{S_TAG}, v254
        v_readfirstlane_b32 s{S_TAG+1}, v255
        s_cmp_lg_u32 s{S_TAG}, 0
        s_cbranch_scc1 {ok}
        """)
        self.spin_tail(ST, lp, 1)
        self.I(f"{ok}:")

    def reduce_g(self, regs, tmp, op="v_add_f32"):
        for sw in ("v_permlane16_swap_b32", "v_permlane32_swap_b32"):
            for i, r in enumerate(regs):
                self.I(f"v_mov_b32 v{tmp+i}, v{r}")
            for i, r in enumerate(regs):
                self.I(f"{sw} v{r}, v{tmp+i}")
            for i, r in enumerate(regs):
                self.I(f"{op} v{r}, v{r}, v{tmp+i}")

    def prologue(self):
        I = self.I
        I(f"""
        s_cmp_ge_u32 s2, 256
        s_cbranch_scc1 L_end
        s_load_dwordx16 s[32:47], s[0:1], 0
        s_load_dwordx8 s[48:55], s[0:1], 64
        s_load_dwordx4 s[56:59], s[0:1], 96
        s_load_dwordx2 s[60:61], s[0:1], 112
        v_lshrrev_b32 v1, 6, v0
        v_and_b32 v{V_L}, 63, v0
        v_readfirstlane_b32 s{S_WV}, v1
        v_and_b32 v{V_T}, 15, v{V_L}
        v_lshrrev_b32 v{V_G}, 4, v{V_L}
        v_lshlrev_b32 v{V_L16}, 4, v{V_L}
        s_mov_b32 s{S_W}, s2
        s_and_b32 s{ST}, s2, 7
        s_lshr_b32 s{ST+1}, s2, 3
        s_and_b32 s{S_M}, s{ST+1}, 7
        s_lshr_b32 s{ST+1}, s{ST+1}, 3
        s_lshl_b32 s{ST}, s{ST}, 2
        s_add_u32 s{S_RB}, s{ST}, s{ST+1}
        s_lshl_b32 s{S_T0}, s{S_RB}, 6
        s_lshl_b32 s{S_TT}, s{S_RB}, 2
        s_add_u32 s{S_TT}, s{S_TT}, s{S_WV}
        s_mov_b32 s{S_ERR}, 0
        """)
        self.C("request the kernel's own code into this XCD's L2: workgroup j of the 32 in a row group takes lines 16j..16j+15 (wave 0)")
        labc = self.b.uid("L_cp")
        I(f"""
        s_cmp_lg_u32 s{S_WV}, 0
        s_cbranch_scc1 {labc}
        s_getpc_b64 s[{ST+2}:{ST+3}]
        L_pcref:
        s_lshr_b32 s{ST+4}, s2, 3
        s_lshl_b32 s{ST+4}, s{ST+4}, 11                       ; 16 lines * 128 B
        v_lshlrev_b32 v4, 7, v{V_L}
        v_add_u32 v4, s{ST+4}, v4
        v_cmp_gt_u32 vcc, L_code_end-L_pcref-4, v4
        s_and_b64 vcc, vcc, 0xffff
        s_and_saveexec_b64 s[{ST+4}:{ST+5}], vcc
        s_cbranch_execz {labc}_x
        global_load_dword a252, v4, s[{ST+2}:{ST+3}]
        {labc}_x:
        s_mov_b64 exec, s[{ST+4}:{ST+5}]
        {labc}:
        s_waitcnt lgkmcnt(0)
        """)
        self.srd(S_WS, P_WS, WS_REC)
        lab = self.b.uid("L_non")
        self.srd(S_C, P_DBG, 256)
        I(f"""
        s_lshl_b32 s{ST}, s2, 2
        s_add_u32 s{ST}, s{ST}, s{S_WV}
        s_cmp_lg_u32 s{ST}, 0
        s_cbranch_scc1 {lab}
        s_memrealtime s[{S_TAG}:{S_TAG+1}]
        s_waitcnt lgkmcnt(0)
        s_or_b32 s{S_TAG}, s{S_TAG}, 1
        v_mov_b32 v254, s{S_TAG}
        v_mov_b32 v255, s{S_TAG+1}
        v_mov_b32 v252, 0
        s_mov_b64 exec, 1
        buffer_store_dwordx2 v[254:255], v252, {sr(S_C)}, 0 offen sc1
        s_mov_b64 exec, -1
        {lab}:
        """)
        self.stamp("start")

    XF = 4
    XH = 84
    TMP = 244

    def tag_issue(self):
        self.srd(S_C, P_DBG, 256)
        self.I(f"v_mov_b32 v241, 0\nbuffer_load_dwordx2 v[242:243], v241, {sr(S_C)}, 0 offen sc1")

    def tag_eval(self):
        I = self.I
        lp = self.b.uid("L_tag"); ok = self.b.uid("L_tagok")
        I(f"""
        s_mov_b32 s{ST}, {TIMEOUT}
        {lp}:
        v_readfirstlane_b32 s{S_TAG}, v242
        v_readfirstlane_b32 s{S_TAG+1}, v243
        s_cmp_lg_u32 s{S_TAG}, 0
        s_cbranch_scc1 {ok}
        """)
        self.tag_issue()
        I("s_waitcnt vmcnt(0)")
        self.spin_tail(ST, lp, 1)
        I(f"{ok}:")

    S_PROD2 = 80
    S_PROD, S_P = 80, 81

    LWM, LSC, LMI = L_WM, L_SC, L_MISC + 64
    def mod_dma(self, cdst=None):
        I = self.I
        TMP = self.MT
        self.srd(S_B, P_C, 1280)
        I(f"""
        s_mul_i32 s{ST+4}, s{S_WV}, 320
        v_lshlrev_b32 v{TMP+2}, 3, v{V_L}
        buffer_load_dwordx2 {cdst or f'v[{TMP+4}:{TMP+5}]'}, v{TMP+2}, {sr(S_B)}, s{ST+4} offen
        """)
        self.srd(S_A, P_WM, 640*7680)
        I(f"""
        v_lshrrev_b32 v{TMP}, 2, v{V_L}
        v_mul_u32_u24 v{TMP}, 7680, v{TMP}
        v_and_b32 v{TMP+1}, 3, v{V_L}
        v_lshl_add_u32 v{TMP}, v{TMP+1}, 4, v{TMP}
        s_mul_i32 s{ST+1}, s{S_WV}, {160*7680}
        s_lshl_b32 s{ST+2}, s{self.S_P}, 6                   ; p*64 bytes
        s_add_u32 s{ST+1}, s{ST+1}, s{ST+2}
        s_mul_i32 s{ST+3}, s{S_WV}, {160*64}
        s_add_u32 s{ST+3}, s{ST+3}, {self.LWM}
        """)
        for i in range(10):
            I(f"""
            s_mov_b32 m0, s{ST+3}
            s_add_u32 s{ST+3}, s{ST+3}, 1024
            buffer_load_dwordx4 v{TMP}, {sr(S_A)}, s{ST+1} offen lds
            s_add_u32 s{ST+1}, s{ST+1}, {16*7680}
            """)

    MT2 = 244
    MT3 = 228
    MT = 228
    def mod_gemv(self, W, wait_c, wait_w, wait_tag, BBr=None):
        I = self.I
        TMP = self.MT
        T = TMP + 4
        I(f"""
        s_waitcnt vmcnt({wait_c})
        v_lshlrev_b32 v{TMP+6}, 16, v{T}
        v_and_b32 v{TMP+7}, 0xffff0000, v{T}
        v_lshlrev_b32 v{TMP+8}, 16, v{T+1}
        v_and_b32 v{TMP+9}, 0xffff0000, v{T+1}
        """)
        for i in range(4):
            r = TMP + 6 + i
            I(f"""
            v_mul_f32 v{TMP+3}, 0xbfb8aa3b, v{r}
            v_exp_f32 v{TMP+3}, v{TMP+3}
            v_add_f32 v{TMP+3}, 1.0, v{TMP+3}
            v_rcp_f32 v{TMP+3}, v{TMP+3}
            v_mul_f32 v{r}, v{r}, v{TMP+3}
            """)
        va, vb, WA, BB, ACC = W, W+1, W+4, W+44, W+64
        if BBr is not None: BB, ACC = BBr, W+44
        I(f"""
        v_cvt_pk_bf16_f32 v{T}, v{TMP+6}, v{TMP+7}
        v_cvt_pk_bf16_f32 v{T+1}, v{TMP+8}, v{TMP+9}
        s_mul_i32 s{ST+4}, s{S_WV}, 320
        s_add_u32 s{ST+4}, s{ST+4}, {self.LSC}
        v_lshlrev_b32 v{TMP+2}, 3, v{V_L}
        v_add_u32 v{TMP+2}, s{ST+4}, v{TMP+2}
        s_mov_b32 exec_hi, 0xff
        ds_write_b64 v{TMP+2}, v[{T}:{T+1}]
        s_mov_b32 exec_hi, -1
        v_lshrrev_b32 v{va}, 2, v{V_T}
        v_lshl_add_u32 v{va}, v{V_G}, 2, v{va}
        v_lshlrev_b32 v{va}, 6, v{va}                       ; 64*(4g+(i>>2))
        v_and_b32 v{vb}, 3, v{V_T}
        v_lshl_add_u32 v{va}, v{vb}, 3, v{va}
        s_mul_i32 s{ST}, s{S_WV}, {160*64}
        s_add_u32 s{ST}, s{ST}, {self.LWM}
        v_add_u32 v{va}, s{ST}, v{va}
        v_lshlrev_b32 v{vb}, 3, v{V_G}
        v_add_u32 v{vb}, s{ST+4}, v{vb}
        s_waitcnt vmcnt({wait_w}) lgkmcnt(0)
        """)
        for s_ in range(5):
            I(f"ds_read_b64 v[{BB+4*s_}:{BB+4*s_+1}], v{vb} offset:{64*s_}\nds_read_b64 v[{BB+4*s_+2}:{BB+4*s_+3}], v{vb} offset:{64*s_+32}")
        for s_ in range(5):
            for tl in range(2):
                W_ = WA + 8*s_ + 4*tl
                I(f"ds_read_b64_tr_b16 v[{W_}:{W_+1}], v{va} offset:{2048*s_+32*tl}\nds_read_b64_tr_b16 v[{W_+2}:{W_+3}], v{va} offset:{2048*s_+32*tl+1024}")
        I("s_waitcnt lgkmcnt(0)")
        for s_ in range(5):
            for tl in range(2):
                I(f"v_mfma_f32_16x16x32_bf16 {vr(ACC+4*tl)}, {vr(WA+8*s_+4*tl)}, {vr(BB+4*s_)}, {'0' if s_ == 0 else vr(ACC+4*tl)}")
        I(f"""
        s_lshl_b32 s{ST}, s{S_WV}, 7
        s_add_u32 s{ST}, s{ST}, {self.LMI}
        v_lshlrev_b32 v{va}, 4, v{V_G}
        v_add_u32 v{va}, s{ST}, v{va}
        v_cmp_eq_u32 vcc, 0, v{V_T}
        s_and_saveexec_b64 s[{ST+4}:{ST+5}], vcc
        ds_write_b128 v{va}, {vr(ACC)}
        ds_write_b128 v{va}, {vr(ACC+4)} offset:64
        s_mov_b64 exec, s[{ST+4}:{ST+5}]
        s_waitcnt lgkmcnt(0)
        s_barrier
        """)
        lab_gd = self.b.uid("L_gd")
        I(f"s_cmp_lg_u32 s{S_WV}, 0\ns_cbranch_scc1 {lab_gd}")
        I(f"""
        v_lshlrev_b32 v{va}, 4, v{V_L}
        v_and_b32 v{va}, 0x7f, v{va}
        v_add_u32 v{va}, {self.LMI}, v{va}
        ds_read_b128 {vr(WA)}, v{va}
        ds_read_b128 {vr(WA+4)}, v{va} offset:128
        ds_read_b128 {vr(WA+8)}, v{va} offset:256
        ds_read_b128 {vr(WA+12)}, v{va} offset:384
        """)
        if wait_tag is not None:
            I(f"s_waitcnt vmcnt({wait_tag})")
            self.tag_eval()
        I("s_waitcnt lgkmcnt(0)")
        for r in range(4):
            I(f"v_add_f32 v{WA+r}, v{WA+r}, v{WA+4+r}\nv_add_f32 v{WA+8+r}, v{WA+8+r}, v{WA+12+r}\nv_add_f32 v{WA+r}, v{WA+r}, v{WA+8+r}")
        I(f"""
        v_cvt_pk_bf16_f32 v{ACC+4}, v{WA}, v{WA+1}
        v_cvt_pk_bf16_f32 v{ACC+5}, v{WA+2}, v{WA+3}
        v_mov_b32 v{ACC+6}, s{S_TAG}
        v_mov_b32 v{ACC+7}, s{S_TAG+1}
        s_lshl_b32 s{ST}, s{self.S_P}, 7                     ; p*8 granules*16 B
        s_mov_b64 exec, 0xff
        buffer_store_dwordx4 {vr(ACC+4)}, v{V_L16}, {sr(S_WS)}, s{ST} offen offset:{MODG} sc1
        s_mov_b64 exec, -1
        {lab_gd}:
        """)

    def line_touch(self, srd, voff, soff, nl):
        I = self.I
        if nl < 64: I(f"v_cmp_gt_u32 vcc, {nl}, v{V_L}\ns_and_saveexec_b64 s[{ST+6}:{ST+7}], vcc")
        I(f"buffer_load_dword a255, v{voff}, {sr(srd)}, s{soff} offen")
        if nl < 64: I(f"s_mov_b64 exec, s[{ST+6}:{ST+7}]")

    def wq_ops(self):
        I = self.I
        V = 239
        so, lo = ST+12, ST+13
        self.srd(S_A, P_WQ, 640*1280)
        I(f"""
        v_mul_u32_u24 v{V}, 205, v{V_L}
        v_lshrrev_b32 v{V}, 11, v{V}
        v_mul_u32_u24 v{V-1}, 10, v{V}
        v_sub_u32 v{V-1}, v{V_L}, v{V-1}
        v_mul_u32_u24 v{V}, 1280, v{V}
        v_lshl_add_u32 v{V}, v{V-1}, 4, v{V}
        s_mul_i32 s{so}, s{S_M}, 160
        s_mul_i32 s{lo}, s{S_WV}, {6*1280}
        s_add_u32 s{so}, s{so}, s{lo}
        s_mul_i32 s{lo}, s{S_WV}, 960
        """)
        ops = []
        def mk(i):
            def f():
                if i == 26:
                    lab = self.b.uid("L_wq")
                    I(f"""
                    s_cmp_ge_u32 s{S_WV}, 3
                    s_cbranch_scc1 {lab}
                    s_cmp_eq_u32 s{S_WV}, 2
                    s_mov_b32 s{ST+14}, 0x0fffffff
                    s_cselect_b32 exec_hi, 0xff, s{ST+14}
                    s_mov_b32 m0, s{lo}
                    s_nop 0
                    buffer_load_dwordx4 v{V}, {sr(S_A)}, s{so} offen lds
                    s_mov_b32 exec_hi, -1
                    {lab}:
                    """)
                elif i == 25:
                    I(f"""
                    s_mov_b32 m0, s{lo}
                    s_add_u32 s{lo}, s{lo}, 3840
                    buffer_load_dwordx4 v{V}, {sr(S_A)}, s{so} offen lds
                    s_add_u32 s{so}, s{so}, {24*1280}
                    """)
                else:
                    I(f"""
                    s_mov_b32 m0, s{lo}
                    s_add_u32 s{lo}, s{lo}, 3840
                    buffer_load_dwordx4 v{V}, {sr(S_A)}, s{so} offen lds
                    s_add_u32 s{so}, s{so}, {24*1280}
                    """)
            return f
        return [mk(i) for i in range(27)]

    def phase_start(self):
        I, C = self.I, self.C
        XF, XH, TMP = self.XF, self.XH, self.TMP
        PR, P = self.S_PROD, self.S_P
        C("---- mod producers: members 2..5; column pair P = x + 8k (k = 2*rbl + (m-2)/2) < 60, block p = 2P + (m-2)%2; P < 20 is critical")
        I(f"""
        s_sub_u32 s{ST}, s{S_M}, 2                           ; m-2
        s_and_b32 s{ST+1}, s{S_RB}, 3
        s_lshl_b32 s{ST+1}, s{ST+1}, 1
        s_lshr_b32 s{ST+2}, s{ST}, 1
        s_add_u32 s{ST+1}, s{ST+1}, s{ST+2}
        s_lshl_b32 s{ST+1}, s{ST+1}, 3
        s_lshr_b32 s{ST+2}, s{S_RB}, 2
        s_add_u32 s{ST+1}, s{ST+1}, s{ST+2}                  ; P
        s_lshl_b32 s{P}, s{ST+1}, 1
        s_and_b32 s{ST+2}, s{ST}, 1
        s_add_u32 s{P}, s{P}, s{ST+2}
        s_cmp_lt_u32 s{ST+1}, 20
        s_cselect_b32 s{PR}, 1, 2
        s_cmp_lt_u32 s{ST+1}, 60
        s_cselect_b32 s{PR}, s{PR}, 0
        s_cmp_lt_u32 s{ST}, 4
        s_cselect_b32 s{PR}, s{PR}, 0
        """)
        C("every workgroup requests 1/32 of the critical w_mod lines of its row group: 3 column pairs x 640 rows = 1920 lines, 60 per workgroup (15 per wave)")
        self.srd(S_A, P_WM, 640*7680)
        I(f"""
        s_and_b32 s{ST}, s{S_RB}, 3
        s_lshl_b32 s{ST}, s{ST}, 3
        s_add_u32 s{ST}, s{ST}, s{S_M}
        s_lshl_b32 s{ST}, s{ST}, 2
        s_add_u32 s{ST}, s{ST}, s{S_WV}
        s_mul_i32 s{ST}, s{ST}, 15
        v_add_u32 v{XH}, s{ST}, v{V_L}
        v_mul_u32_u24 v{XH+1}, 6554, v{XH}
        v_lshrrev_b32 v{XH+1}, 22, v{XH+1}                   ; /640
        v_mul_u32_u24 v{XH+2}, 640, v{XH+1}
        v_sub_u32 v{XH+2}, v{XH}, v{XH+2}                    ; row
        v_mul_u32_u24 v{XH+2}, 7680, v{XH+2}
        v_lshlrev_b32 v{XH+1}, 10, v{XH+1}
        v_add_u32 v{XH+2}, v{XH+2}, v{XH+1}
        s_lshr_b32 s{ST}, s{S_RB}, 2
        s_lshl_b32 s{ST}, s{ST}, 7                           ; x * 128 B
        """)
        self.line_touch(S_A, XH+2, ST, 15)
        self.srd(S_C, P_X, 2048*1280)
        XO = XH
        I(f"""
        v_lshlrev_b32 v{XO+6}, 7, v{V_L}
        s_lshl_b32 s{ST}, s{S_M}, 2
        s_add_u32 s{ST}, s{ST}, s{S_WV}
        s_mul_i32 s{ST}, s{ST}, 2560
        s_mul_i32 s{ST+1}, s{S_RB}, {64*1280}
        s_add_u32 s{ST}, s{ST}, s{ST+1}
        """)
        lab_np = self.b.uid("L_np"); lab_j = self.b.uid("L_npj")
        I(f"s_cmp_lg_u32 s{PR}, 1\ns_cbranch_scc1 {lab_np}")
        I(f"s_mov_b32 s{ST+14}, s{ST}")
        self.mod_dma()
        self.line_touch(S_C, XO+6, ST+14, 20)
        self.tag_issue()
        self.mod_gemv(XH+8, 12, 2, 0)
        self.srd(S_C, P_X, 2048*1280)
        I(f"s_branch {lab_j}\n{lab_np}:")
        self.line_touch(S_C, XO+6, ST, 20)
        self.tag_issue()
        self.srd(S_C, P_X, 2048*1280)
        I(f"{lab_j}:")
        self.stamp("modpub")
        C("x: the wave's rows -> LDS, 16-byte chunks XOR-swizzled by the row")
        I(f"s_lshl_b32 s{ST}, s{S_TT}, 4")
        for qq in range(4):
            I(f"""
            v_add_u32 v{XO+4}, {4*qq}, v{V_G}                      ; row
            v_xor_b32 v{XO+5}, v{XO+4}, v{V_T}
            v_add_u32 v{XO+4}, s{ST}, v{XO+4}
            v_mul_u32_u24 v{XO+4}, 1280, v{XO+4}
            v_lshl_add_u32 v{XO+qq}, v{XO+5}, 4, v{XO+4}
            """)
        I(f"s_mul_i32 s{ST+1}, s{S_WV}, 20480")
        for G in range(5):
            I(f"s_mov_b32 s{ST+2}, {256*G}")
            for qq in range(4):
                I(f"s_mov_b32 m0, s{ST+1}\ns_add_u32 s{ST+1}, s{ST+1}, 1024\nbuffer_load_dwordx4 v{XO+qq}, {sr(S_C)}, s{ST+2} offen lds")
        lab_nk = self.b.uid("L_nk")
        I(f"""
        s_cmp_ge_u32 s{S_M}, 2
        s_cbranch_scc1 {lab_nk}
        s_cmp_eq_u32 s{S_M}, 0
        s_cselect_b32 s{S_A}, s{P_WK}, s{P_WV}
        s_cselect_b32 s{S_A+1}, s{P_WK+1}, s{P_WV+1}
        s_mov_b32 s{S_A+2}, 25600
        s_mov_b32 s{S_A+3}, 0x20000
        s_mul_i32 s{ST}, s{S_WV}, 7168
        s_add_u32 s{ST+1}, s{ST}, {L_WK}
        """)
        for i in range(7):
            I(f"""
            s_mov_b32 m0, s{ST+1}
            s_add_u32 s{ST+1}, s{ST+1}, 1024
            buffer_load_dwordx4 v{V_L16}, {sr(S_A)}, s{ST} offen lds
            s_add_u32 s{ST}, s{ST}, 1024
            """)
        I(f"{lab_nk}:")
        if self.wq_touch == 1:
            C("wq: request this workgroup's 1/32 of the matrix (200 lines, 50 per wave)")
            self.srd(S_B, P_WQ, 640*1280)
            I(f"""
            s_and_b32 s{ST}, s{S_RB}, 3
            s_lshl_b32 s{ST}, s{ST}, 3
            s_add_u32 s{ST}, s{ST}, s{S_M}
            s_lshl_b32 s{ST}, s{ST}, 2
            s_add_u32 s{ST}, s{ST}, s{S_WV}
            s_mul_i32 s{ST}, s{ST}, 6400
            """)
            self.line_touch(S_B, XO+6, ST, 50)
        else:
            I(f"v_mov_b32 v{XO+7}, 0\nbuffer_load_dword a255, v{XO+7}, {sr(S_C)}, 0 offen")
        self.stamp("issued")
        C("x fragments: lane (t,g): k = 32s+4g (+16)")
        AD = XH + 8
        I(f"""
        s_mul_i32 s{ST}, s{S_WV}, 20480
        v_lshlrev_b32 v{TMP}, 8, v{V_T}
        v_add_u32 v{TMP}, s{ST}, v{TMP}
        v_and_b32 v{TMP+1}, 1, v{V_G}
        v_lshl_add_u32 v{TMP}, v{TMP+1}, 3, v{TMP}            ; + 8*(g&1)
        v_lshrrev_b32 v{TMP+1}, 1, v{V_G}                     ; g>>1
        """)
        for a_ in range(4):
            for e in range(2):
                I(f"""
                v_add_u32 v{TMP+2}, {4*a_+2*e}, v{TMP+1}
                v_xor_b32 v{TMP+2}, v{TMP+2}, v{V_T}
                v_lshl_add_u32 v{AD+2*a_+e}, v{TMP+2}, 4, v{TMP}
                """)
        RS_ = XH + 16
        I(f"s_mul_i32 s{ST+1}, s{S_M}, 10")
        for j in range(5):
            I(f"""
            s_add_u32 s{ST+2}, s{ST+1}, {2*j}
            v_add_u32 v{TMP+2}, s{ST+2}, v{TMP+1}
            v_lshrrev_b32 v{TMP+3}, 4, v{TMP+2}
            v_and_b32 v{TMP+2}, 15, v{TMP+2}
            v_xor_b32 v{TMP+2}, v{TMP+2}, v{V_T}
            v_lshl_add_u32 v{TMP+2}, v{TMP+2}, 4, v{TMP}
            v_lshl_add_u32 v{RS_+j}, v{TMP+3}, 12, v{TMP+2}
            """)
        lw1 = self.b.uid("L_xw"); lwj = self.b.uid("L_xw")
        I(f"""
        s_cmp_lt_u32 s{S_M}, 2
        s_cbranch_scc1 {lw1}
        s_waitcnt vmcnt(1)
        s_branch {lwj}
        {lw1}:
        s_waitcnt vmcnt(8)
        {lwj}:
        """)
        for s_ in range(20):
            for e in range(2):
                I(f"ds_read_b64 v[{XF+4*s_+2*e}:{XF+4*s_+2*e+1}], v{AD+2*(s_&3)+e} offset:{4096*(s_>>2)}")
        for j in range(5):
            I(f"ds_read_b64 v[{XH+24+2*j}:{XH+25+2*j}], v{RS_+j}")
        self.tag_eval()
        I("s_waitcnt lgkmcnt(0)")
        for j in range(10): I(f"v_accvgpr_write_b32 a{j}, v{XH+24+j}")
        I("s_barrier")
        if self.wq_touch == 2:
            self.srd(S_B, P_WQ, 640*1280)
            I(f"""
            v_lshlrev_b32 v{XH+6}, 7, v{V_L}
            s_and_b32 s{ST}, s{S_RB}, 3
            s_lshl_b32 s{ST}, s{ST}, 3
            s_add_u32 s{ST}, s{ST}, s{S_M}
            s_lshl_b32 s{ST}, s{ST}, 2
            s_add_u32 s{ST}, s{ST}, s{S_WV}
            s_mul_i32 s{ST}, s{ST}, 6400
            """)
            self.line_touch(S_B, XH+6, ST, 50)
        wq = self.wq_ops()
        self.stamp("xfrag")
        C("LN1 stats: sum via ones-MFMA, sumsq via Gram diagonal")
        ONES, D1, D2 = TMP, TMP+4, TMP+8
        for i in range(4): I(f"v_mov_b32 v{ONES+i}, 0x3f803f80")
        for s in range(20):
            I(f"v_mfma_f32_16x16x32_bf16 {vr(D1)}, {vr(ONES)}, {vr(XF+4*s)}, {'0' if s == 0 else vr(D1)}")
            I(f"v_mfma_f32_16x16x32_bf16 {vr(D2)}, {vr(XF+4*s)}, {vr(XF+4*s)}, {'0' if s == 0 else vr(D2)}")
            if s % 2 == 0 and wq: wq.pop(0)()
        MU, RS, T1, T2 = XH, XH+1, XH+2, XH+3
        I(f"""
        v_and_b32 v{T1}, 3, v{V_T}
        v_cmp_eq_u32 vcc, 1, v{T1}
        v_cndmask_b32 v{T2}, v{D2}, v{D2+1}, vcc
        v_cmp_eq_u32 vcc, 2, v{T1}
        v_cndmask_b32 v{T2}, v{T2}, v{D2+2}, vcc
        v_cmp_eq_u32 vcc, 3, v{T1}
        v_cndmask_b32 v{T2}, v{T2}, v{D2+3}, vcc
        v_lshrrev_b32 v{T1}, 2, v{V_T}
        v_lshl_add_u32 v{T1}, v{T1}, 4, v{V_T}
        v_lshlrev_b32 v{T1}, 2, v{T1}
        ds_bpermute_b32 v{T2}, v{T1}, v{T2}
        v_mul_f32 v{MU}, {1.0/640!r}, v{D1}
        s_waitcnt lgkmcnt(0)
        v_mul_f32 v{T2}, {1.0/640!r}, v{T2}
        v_fma_f32 v{T2}, -v{MU}, v{MU}, v{T2}
        v_max_f32 v{T2}, 0, v{T2}
        v_add_f32 v{T2}, 0x3727c5ac, v{T2}
        v_rsq_f32 v{RS}, v{T2}
        s_nop 0
        v_mul_f32 v{MU}, v{MU}, v{RS}
        v_sub_f32 v{TMP}, 0, v{MU}                           ; -mu*rstd
        v_mov_b32 v{TMP+1}, v{TMP}
        v_mov_b32 v{TMP+2}, v{RS}
        v_mov_b32 v{TMP+3}, v{RS}
        """)
        C("xhat = x*rstd - mu*rstd (fp32)")
        for s in range(20):
            for q in range(4):
                src = XF + 4*s + q
                d = XH + 8*s + 2*q
                if d + 1 >= 238 and False: pass
                I(f"v_lshlrev_b32 v{d}, 16, v{src}\nv_and_b32 v{d+1}, 0xffff0000, v{src}")
            for q in range(4):
                d = XH + 8*s + 2*q
                I(f"v_pk_fma_f32 v[{d}:{d+1}], v[{d}:{d+1}], v[{TMP+2}:{TMP+3}], v[{TMP}:{TMP+1}]")
            if s < 17 and wq: wq.pop(0)()
        assert not wq
        self.stamp("xhat")
        G0 = TMP+4
        lp = self.b.uid("L_mp"); ok = self.b.uid("L_mpok")
        I(f"""
        s_mul_i32 s{ST+1}, s{S_WV}, {80*16}
        v_add_u32 v{TMP+2}, s{ST+1}, v{V_L16}
        v_add_u32 v{TMP+3}, 1024, v{TMP+2}
        v_cmp_gt_u32 vcc, 16, v{V_L}
        v_cndmask_b32 v{TMP+3}, v{TMP+2}, v{TMP+3}, vcc
        s_mov_b32 s{ST}, {TIMEOUT}
        {lp}:
        buffer_load_dwordx4 {vr(G0)}, v{TMP+2}, {sr(S_WS)}, 0 offen offset:{MODG} sc1
        buffer_load_dwordx4 {vr(G0+4)}, v{TMP+3}, {sr(S_WS)}, 0 offen offset:{MODG} sc1
        s_waitcnt vmcnt(0)
        v_cmp_ne_u32 vcc, s{S_TAG}, v{G0+2}
        s_mov_b64 s[{ST+2}:{ST+3}], vcc
        v_cmp_ne_u32 vcc, s{S_TAG+1}, v{G0+3}
        s_or_b64 s[{ST+2}:{ST+3}], s[{ST+2}:{ST+3}], vcc
        v_cmp_ne_u32 vcc, s{S_TAG}, v{G0+6}
        s_or_b64 s[{ST+2}:{ST+3}], s[{ST+2}:{ST+3}], vcc
        v_cmp_ne_u32 vcc, s{S_TAG+1}, v{G0+7}
        s_or_b64 s[{ST+2}:{ST+3}], s[{ST+2}:{ST+3}], vcc
        s_cmp_eq_u64 s[{ST+2}:{ST+3}], 0
        s_cbranch_scc1 {ok}
        """)
        self.spin_tail(ST, lp, 2)
        I(f"{ok}:")
        for blk, av in ((G0, TMP+2), (G0+4, TMP+3)):
            I(f"""
            v_and_b32 v{blk+3}, 0xffff0000, v{blk+1}
            v_lshlrev_b32 v{blk+2}, 16, v{blk+1}
            v_and_b32 v{blk+1}, 0xffff0000, v{blk}
            v_lshlrev_b32 v{blk}, 16, v{blk}
            """)
        lab_a = self.b.uid("L_a")
        I(f"s_cmp_lt_u32 s{S_WV}, 2\ns_cbranch_scc1 {lab_a}")
        for blk in (G0, G0+4):
            for q in range(4): I(f"v_add_f32 v{blk+q}, 1.0, v{blk+q}")
            I(f"""
            v_cvt_pk_bf16_f32 v{blk}, v{blk}, v{blk+1}
            v_cvt_pk_bf16_f32 v{blk+2}, v{blk+2}, v{blk+3}
            v_and_b32 v{blk+1}, 0xffff0000, v{blk}
            v_lshlrev_b32 v{blk}, 16, v{blk}
            v_and_b32 v{blk+3}, 0xffff0000, v{blk+2}
            v_lshlrev_b32 v{blk+2}, 16, v{blk+2}
            """)
        I(f"""
        {lab_a}:
        v_add_u32 v{TMP+2}, {L_MOD}, v{TMP+2}
        v_add_u32 v{TMP+3}, {L_MOD}, v{TMP+3}
        ds_write_b128 v{TMP+2}, {vr(G0)}
        ds_write_b128 v{TMP+3}, {vr(G0+4)}
        s_waitcnt lgkmcnt(0)
        s_barrier
        """)
        self.stamp("modgot")
        C("h1 = xhat*A + B -> bf16 fragments (overwrites XF).  all DMAs (wq, wk) were waited by vmcnt(0) above, barrier publishes them")
        va = TMP
        I(f"v_lshlrev_b32 v{va}, 4, v{V_G}\nv_add_u32 v{va}, {L_MOD}, v{va}")
        def buf(s): return (XF + 48 + 16*(s & 1)) if s < 12 else (XH + 16*(s & 1))
        def rd(s):
            B_ = buf(s)
            for hf in range(2):
                I(f"ds_read_b128 {vr(B_+4*hf)}, v{va} offset:{2560 + 128*s + 64*hf}")
                I(f"ds_read_b128 {vr(B_+8+4*hf)}, v{va} offset:{128*s + 64*hf}")
        rd(0)
        for s in range(20):
            if s + 1 < 20: rd(s+1)
            I(f"s_waitcnt lgkmcnt({4 if s + 1 < 20 else 0})")
            B_ = buf(s)
            for q in range(4):
                d = XH + 8*s + 2*q
                I(f"v_pk_fma_f32 v[{d}:{d+1}], v[{d}:{d+1}], v[{B_+2*q}:{B_+2*q+1}], v[{B_+8+2*q}:{B_+8+2*q+1}]")
            for q in range(4):
                d = XH + 8*s + 2*q
                I(f"v_cvt_pk_bf16_f32 v{XF+4*s+q}, v{d}, v{d+1}")
        labd = self.b.uid("L_dg")
        I(f"s_cmp_lg_u32 s{self.S_PROD}, 2\ns_cbranch_scc1 {labd}")
        self.MT = self.MT3
        self.mod_dma(cdst="a[250:251]")
        I(f"{labd}:")
        self.stamp("h1")

    def phase_kv(self):
        I, C = self.I, self.C
        XF, XH = self.XF, self.XH
        lab_end = self.b.uid("L_kvend"); lab_v = self.b.uid("L_v"); lab_pub = self.b.uid("L_kvpub")
        va, vb, W0, ACC0, ACC1, T = XH, XH+1, XH+4, XH+24, XH+28, XH+32
        I(f"""
        s_cmp_ge_u32 s{S_M}, 2
        s_cbranch_scc1 {lab_end}
        v_lshrrev_b32 v{va}, 2, v{V_T}
        v_lshl_add_u32 v{va}, v{V_G}, 2, v{va}
        v_mul_u32_u24 v{va}, 40, v{va}
        v_and_b32 v{vb}, 3, v{V_T}
        v_lshl_add_u32 v{va}, v{vb}, 3, v{va}
        v_add_u32 v{va}, {L_WK}, v{va}
        s_cmp_eq_u32 s{S_M}, 1
        s_cbranch_scc1 {lab_v}
        """)
        def loop(isv):
            WK = XH + 48
            def rd(s):
                o = WK + (s % 4)*8
                I(f"""
                ds_read_b64_tr_b16 v[{o}:{o+1}], v{va} offset:{1280*s}
                ds_read_b64_tr_b16 v[{o+2}:{o+3}], v{va} offset:{1280*s+640}
                ds_read_b64_tr_b16 v[{o+4}:{o+5}], v{va} offset:{1280*s+32}
                ds_read_b64_tr_b16 v[{o+6}:{o+7}], v{va} offset:{1280*s+672}
                """)
            for s in range(3): rd(s)
            for s in range(20):
                if s + 3 < 20: rd(s+3)
                I(f"s_waitcnt lgkmcnt({4*min(3, 19-s)})")
                o2 = WK + (s % 4)*8
                for tl, acc in ((0, ACC0), (1, ACC1)):
                    w = vr(o2+4*tl); x = vr(XF+4*s)
                    c = '0' if s == 0 else vr(acc)
                    if isv: I(f"v_mfma_f32_16x16x32_bf16 {vr(acc)}, {x}, {w}, {c}")
                    else:   I(f"v_mfma_f32_16x16x32_bf16 {vr(acc)}, {w}, {x}, {c}")
        C("K: D[dim 4g+r][token t]")
        loop(False)
        I(f"""
        v_mul_f32 v{T}, v{ACC0}, v{ACC0}
        v_fmac_f32 v{T}, v{ACC0+1}, v{ACC0+1}
        v_fmac_f32 v{T}, v{ACC0+2}, v{ACC0+2}
        v_fmac_f32 v{T}, v{ACC0+3}, v{ACC0+3}
        v_mul_f32 v{T+1}, v{ACC1}, v{ACC1}
        v_fmac_f32 v{T+1}, v{ACC1+1}, v{ACC1+1}
        v_fmac_f32 v{T+1}, v{ACC1+2}, v{ACC1+2}
        v_fmac_f32 v{T+1}, v{ACC1+3}, v{ACC1+3}
        v_cmp_eq_u32 vcc, 0, v{V_G}
        v_cndmask_b32 v{T+1}, 0, v{T+1}, vcc
        v_add_f32 v{T}, v{T}, v{T+1}
        """)
        self.reduce_g([T], T+2)
        for sh in (8, 4, 2, 1):
            I(f"v_mov_b32_dpp v{T+2}, v{T} row_ror:{sh} row_mask:0xf bank_mask:0xf\nv_max_f32 v{T}, v{T}, v{T+2}")
        I(f"""
        s_lshl_b32 s{ST}, s{S_WV}, 2
        s_add_u32 s{ST}, s{ST}, {L_MISC}
        v_mov_b32 v{T+2}, s{ST}
        ds_write_b32 v{T+2}, v{T}
        """)
        I(f"""
        v_cvt_pk_bf16_f32 v{T+4}, v{ACC0}, v{ACC0+1}
        v_cvt_pk_bf16_f32 v{T+5}, v{ACC0+2}, v{ACC0+3}
        v_cvt_pk_bf16_f32 v{T+6}, v{ACC1}, v{ACC1+1}
        v_cvt_pk_bf16_f32 v{T+7}, v{ACC1+2}, v{ACC1+3}
        s_lshr_b32 s{ST}, s{S_TT}, 1
        s_mul_i32 s{ST}, s{ST}, {KVT}
        s_add_u32 s{ST}, s{ST}, {KV}
        s_and_b32 s{ST+1}, s{S_TT}, 1
        s_lshl_b32 s{ST+1}, s{ST+1}, 4
        v_add_u32 v{T+8}, s{ST+1}, v{V_T}                    ; kk
        v_lshrrev_b32 v{T+9}, 1, v{V_G}
        v_lshl_add_u32 v{T+9}, v{T+9}, 5, v{T+8}             ; kk+32*(g>>1)
        v_lshlrev_b32 v{T+9}, 4, v{T+9}
        v_and_b32 v{T+10}, 1, v{V_G}
        v_lshl_add_u32 v{T+9}, v{T+10}, 3, v{T+9}
        buffer_store_dwordx2 v[{T+4}:{T+5}], v{T+9}, {sr(S_WS)}, s{ST} offen sc1
        v_lshlrev_b32 v{T+8}, 3, v{T+8}
        v_cmp_eq_u32 vcc, 0, v{V_G}
        s_and_saveexec_b64 s[{ST+4}:{ST+5}], vcc
        buffer_store_dwordx2 v[{T+6}:{T+7}], v{T+8}, {sr(S_WS)}, s{ST} offen offset:1024 sc1
        s_mov_b64 exec, s[{ST+4}:{ST+5}]
        s_branch {lab_pub}
        {lab_v}:
        """)
        C("V^T: D[token 4g+r][d = lane&15]")
        loop(True)
        I(f"""
        v_cvt_pk_bf16_f32 v{T+4}, v{ACC0}, v{ACC0+1}
        v_cvt_pk_bf16_f32 v{T+5}, v{ACC0+2}, v{ACC0+3}
        v_cvt_pk_bf16_f32 v{T+6}, v{ACC1}, v{ACC1+1}
        v_cvt_pk_bf16_f32 v{T+7}, v{ACC1+2}, v{ACC1+3}
        v_cmp_gt_u32 vcc, 4, v{V_T}
        v_cndmask_b32 v{T+6}, 0, v{T+6}, vcc
        v_cndmask_b32 v{T+7}, 0, v{T+7}, vcc
        v_cmp_eq_u32 vcc, 4, v{V_T}
        v_mov_b32 v{T+11}, 0x3f803f80
        v_cndmask_b32 v{T+6}, v{T+6}, v{T+11}, vcc
        v_cndmask_b32 v{T+7}, v{T+7}, v{T+11}, vcc
        s_lshr_b32 s{ST}, s{S_TT}, 1
        s_mul_i32 s{ST}, s{ST}, {KVT}
        s_and_b32 s{ST+1}, s{S_TT}, 1
        s_lshl_b32 s{ST+1}, s{ST+1}, 10
        s_add_u32 s{ST}, s{ST}, s{ST+1}
        s_add_u32 s{ST}, s{ST}, {KV+1280}
        v_and_b32 v{T+9}, 1, v{V_G}
        v_lshl_add_u32 v{T+9}, v{T+9}, 5, v{V_T}             ; d + 32*(g&1)
        v_lshlrev_b32 v{T+9}, 4, v{T+9}
        v_lshrrev_b32 v{T+10}, 1, v{V_G}
        v_lshl_add_u32 v{T+9}, v{T+10}, 3, v{T+9}
        buffer_store_dwordx2 v[{T+4}:{T+5}], v{T+9}, {sr(S_WS)}, s{ST} offen sc1
        buffer_store_dwordx2 v[{T+6}:{T+7}], v{T+9}, {sr(S_WS)}, s{ST} offen offset:256 sc1
        v_mov_b32 v{T}, 0
        s_lshl_b32 s{ST}, s{S_WV}, 2
        s_add_u32 s{ST}, s{ST}, {L_MISC}
        v_mov_b32 v{T+2}, s{ST}
        ds_write_b32 v{T+2}, v{T}
        {lab_pub}:
        s_waitcnt vmcnt(0) lgkmcnt(0)
        s_barrier
        """)
        lab_np = self.b.uid("L_kvnp")
        I(f"""
        s_cmp_lg_u32 s{S_WV}, 0
        s_cbranch_scc1 {lab_np}
        v_mov_b32 v{T+2}, {L_MISC}
        ds_read_b128 {vr(T+4)}, v{T+2}
        s_waitcnt lgkmcnt(0)
        v_max_f32 v{T+4}, v{T+4}, v{T+5}
        v_max_f32 v{T+6}, v{T+6}, v{T+7}
        v_max_f32 v{T+6}, v{T+4}, v{T+6}
        v_mov_b32 v{T+4}, s{S_TAG}
        v_mov_b32 v{T+5}, s{S_TAG+1}
        v_mov_b32 v{T+7}, 0
        s_lshl_b32 s{ST}, s{S_RB}, 1
        s_add_u32 s{ST}, s{ST}, s{S_M}
        s_lshl_b32 s{ST}, s{ST}, 7
        s_add_u32 s{ST}, s{ST}, {KVFLAG}
        v_mov_b32 v{T+2}, s{ST}
        s_mov_b64 exec, 1
        buffer_store_dwordx4 {vr(T+4)}, v{T+2}, {sr(S_WS)}, 0 offen sc1
        s_mov_b64 exec, -1
        {lab_np}:
        {lab_end}:
        """)
        self.stamp("kvpub")

    QA0, QA1, QB0, QB1 = 44, 48, 52, 56
    SA, SB = 60, 76
    PA, PB = 92, 100
    OA, OB = 108, 124
    KB = 140
    VB = 172
    AT = 204

    def phase_q(self):
        I, C = self.I, self.C
        XF, XH = self.XF, self.XH
        va, vb, WB, ACC = XH, XH+1, XH+4, XH+64
        I(f"""
        v_lshrrev_b32 v{va}, 2, v{V_T}
        v_lshl_add_u32 v{va}, v{V_G}, 2, v{va}
        v_mul_u32_u24 v{va}, 160, v{va}
        v_and_b32 v{vb}, 3, v{V_T}
        v_lshl_add_u32 v{va}, v{vb}, 3, v{va}
        v_add_u32 v{vb}, 51200, v{va}
        """)
        issued = []
        def rd1(s, j):
            base = va if s < 10 else vb
            o = 5120*(s % 10)
            W_ = WB + 20*(s % 3) + 4*j
            I(f"ds_read_b64_tr_b16 v[{W_}:{W_+1}], v{base} offset:{L_WQ + o + 32*j}")
            I(f"ds_read_b64_tr_b16 v[{W_+2}:{W_+3}], v{base} offset:{L_WQ + o + 32*j + 2560}")
            issued.append((s, j))
        for s in range(2):
            for j in range(5): rd1(s, j)
        for s in range(20):
            younger = 2*(len(issued) - 1 - issued.index((s, 4)))
            I(f"s_waitcnt lgkmcnt({min(15, younger)})")
            for j in range(5):
                I(f"v_mfma_f32_16x16x32_bf16 {vr(ACC+4*j)}, {vr(WB+20*(s%3)+4*j)}, {vr(XF+4*s)}, {'0' if s == 0 else vr(ACC+4*j)}")
                if s + 2 < 20: rd1(s+2, j)
        qs = (20 ** -0.5) * 1.4426950408889634
        I(f"s_mov_b32 s{ST}, {hex(f2u(qs))}")
        C("scale, pack, write wave-private [16][176B] tile")
        I(f"""
        s_mul_i32 s{ST+1}, s{S_WV}, {16*176}
        s_add_u32 s{ST+1}, s{ST+1}, {L_QS}
        v_mul_u32_u24 v{va}, 176, v{V_T}
        v_lshl_add_u32 v{va}, v{V_G}, 3, v{va}
        v_add_u32 v{va}, s{ST+1}, v{va}
        """)
        for j in range(5):
            a = ACC + 4*j
            for r in range(4): I(f"v_mul_f32 v{a+r}, s{ST}, v{a+r}")
            I(f"v_cvt_pk_bf16_f32 v{a}, v{a}, v{a+1}\nv_cvt_pk_bf16_f32 v{a+1}, v{a+2}, v{a+3}")
            I(f"ds_write_b64 v{va}, v[{a}:{a+1}] offset:{32*j}")
        AT = self.AT
        I(f"""
        v_mul_u32_u24 v{vb}, 176, v{V_T}
        v_bfe_u32 v{va}, v{V_L}, 4, 1
        v_mul_u32_u24 v{va}, 40, v{va}
        v_add_u32 v{vb}, v{vb}, v{va}
        v_add_u32 v{vb}, s{ST+1}, v{vb}                      ; token*176 + (q>>4)*40
        v_lshrrev_b32 v{va}, 5, v{V_L}
        v_lshl_add_u32 v{va}, v{va}, 4, v{vb}                ; + 16h
        s_waitcnt lgkmcnt(0)
        ds_read_b64 v[{self.QA0}:{self.QA0+1}], v{va}
        ds_read_b64 v[{self.QA0+2}:{self.QA0+3}], v{va} offset:8
        ds_read_b64 v[{self.QB0}:{self.QB0+1}], v{va} offset:80
        ds_read_b64 v[{self.QB0+2}:{self.QB0+3}], v{va} offset:88
        ds_read_b64 v[{self.QA1}:{self.QA1+1}], v{vb} offset:32
        ds_read_b64 v[{self.QB1}:{self.QB1+1}], v{vb} offset:112
        v_cmp_gt_u32 vcc, 32, v{V_L}
        s_waitcnt lgkmcnt(0)
        """)
        for r in (self.QA1, self.QA1+1, self.QB1, self.QB1+1):
            I(f"v_cndmask_b32 v{r}, 0, v{r}, vcc")
        for (t, q0, q1) in ((AT, self.QA0, self.QA1), (AT+1, self.QB0, self.QB1)):
            I(f"v_mov_b32 v{t}, 0")
            for r in (q0, q0+1, q0+2, q0+3, q1, q1+1):
                I(f"v_dot2_f32_bf16 v{t}, v{r}, v{r}, v{t}")
        for t in (AT, AT+1):
            I(f"v_mov_b32 v{AT+2}, v{t}\nv_permlane32_swap_b32 v{t}, v{AT+2}\nv_add_f32 v{t}, v{t}, v{AT+2}")
        I(f"v_max_f32 v{AT}, v{AT}, v{AT+1}")
        I("s_barrier")
        self.stamp("qproj")

    RL_OFF, RL_TR, RL_D = 4, 11, 12
    S_RKS, S_RDS, RL_TRS = (78, 82), (79, 83), (11, 40)
    S_RD2S = (74, 73)
    def rl_issue(self, rnd):
        I = self.I
        self.S_RK, self.S_RD, self.RL_TR = self.S_RKS[rnd], self.S_RDS[rnd], self.RL_TRS[rnd]
        u, A0, A1 = ST+4, ST+5, ST+6
        lk4 = self.b.uid("L_r4"); lk3 = self.b.uid("L_r3"); lA = self.b.uid("L_rA"); lend = self.b.uid("L_re")
        I(f"""
        s_lshl_b32 s{u}, s{S_W}, 2
        s_add_u32 s{u}, s{u}, s{S_WV}
        """)
        if rnd == 1:
            I(f"""
            s_mov_b32 s{self.S_RK}, 2
            s_cmp_lt_u32 s{S_M}, 6
            s_cbranch_scc1 {lend}
            s_lshl_b32 s{u}, s{S_RB}, 1
            s_add_u32 s{u}, s{u}, s{S_M}
            s_sub_u32 s{u}, s{u}, 6
            s_lshl_b32 s{u}, s{u}, 2
            s_add_u32 s{u}, s{u}, s{S_WV}
            s_add_u32 s{u}, s{u}, 1024
            s_cmp_ge_u32 s{u}, 1232
            s_cbranch_scc1 {lend}
            s_branch {lk3}
            """)
        else:
            I(f"""
            s_cmp_ge_u32 s{u}, 912
            s_cbranch_scc1 {lk3}
            s_cmp_ge_u32 s{u}, 480
            s_cbranch_scc1 {lk4}
            s_mul_i32 s{A0}, s{u}, 410
            s_lshr_b32 s{A0}, s{A0}, 16                 ; p = u/160
            s_mul_i32 s{A1}, s{A0}, 160
            s_sub_u32 s{u}, s{u}, s{A1}                 ; r
            s_cmp_eq_u32 s{A0}, 1
            s_cselect_b32 s{S_A}, s{P_W1}, s{P_WO}
            s_cselect_b32 s{S_A+1}, s{P_W1+1}, s{P_WO+1}
            s_cmp_eq_u32 s{A0}, 2
            s_cselect_b32 s{S_A}, s{P_W2}, s{S_A}
            s_cselect_b32 s{S_A+1}, s{P_W2+1}, s{S_A+1}
            s_mov_b32 s{S_A+2}, {640*1280}
            s_mul_i32 s{A0}, s{A0}, 100                 ; p*100
            s_mul_i32 s{A1}, s{u}, 3277
            s_lshr_b32 s{A1}, s{A1}, 16                 ; m = r/20
            s_mul_i32 s{ST+7}, s{A1}, 20
            s_sub_u32 s{u}, s{u}, s{ST+7}               ; kb
            s_mul_i32 s{ST+7}, s{u}, 5
            s_add_u32 s{A0}, s{A0}, s{ST+7}
            s_lshl_b32 s{A0}, s{A0}, 10
            s_mul_i32 s{ST+7}, s{A1}, {WSA_M}
            s_add_u32 s{A0}, s{A0}, s{ST+7}
            s_add_u32 s{self.S_RD}, s{A0}, {WSA}
            s_branch {lA}
            {lk4}:
            s_sub_u32 s{u}, s{u}, 480
            s_mov_b32 s{S_A}, s{P_W4}
            s_mov_b32 s{S_A+1}, s{P_W4+1}
            s_mov_b32 s{S_A+2}, {1728*1280}
            s_mul_i32 s{A1}, s{u}, 1214
            s_lshr_b32 s{A1}, s{A1}, 16                 ; m = r/54
            s_mul_i32 s{ST+7}, s{A1}, 54
            s_sub_u32 s{u}, s{u}, s{ST+7}               ; kb
            s_mul_i32 s{A0}, s{u}, 5120
            s_mul_i32 s{ST+7}, s{A1}, {W4S_M}
            s_add_u32 s{A0}, s{A0}, s{ST+7}
            s_add_u32 s{self.S_RD}, s{A0}, {W4S}
            {lA}:
            s_mov_b32 s{S_A+3}, 0x20000
            s_mov_b32 s{self.S_RK}, 0
            s_mul_i32 s{u}, s{u}, {32*1280}
            s_mul_i32 s{A1}, s{A1}, 160
            s_add_u32 s{u}, s{u}, s{A1}
            s_mul_i32 s{A0}, s{S_WV}, 14336
            """)
            O = self.RL_OFF
            for q in range(5):
                I(f"""
                v_add_u32 v{O+5}, {64*q}, v{V_L}
                v_mul_u32_u24 v{O+6}, 6554, v{O+5}
                v_lshrrev_b32 v{O+6}, 16, v{O+6}
                v_mul_u32_u24 v{O+q}, {1280-160}, v{O+6}
                v_lshl_add_u32 v{O+q}, v{O+5}, 4, v{O+q}
                """)
            for q in range(5):
                I(f"s_mov_b32 m0, s{A0}\ns_add_u32 s{A0}, s{A0}, 1024\nbuffer_load_dwordx4 v{O+q}, {sr(S_A)}, s{u} offen lds")
            I(f"""
            v_lshrrev_b32 v{self.RL_TR}, 2, v{V_T}
            v_lshl_add_u32 v{self.RL_TR}, v{V_G}, 2, v{self.RL_TR}
            v_mul_u32_u24 v{self.RL_TR}, 160, v{self.RL_TR}
            s_branch {lend}_tr
            """)
        I(f"""
        {lk3}:
        s_sub_u32 s{u}, s{u}, 912
        s_mov_b32 s{S_A}, s{P_W3}
        s_mov_b32 s{S_A+1}, s{P_W3+1}
        s_mov_b32 s{S_A+2}, {640*3456}
        s_mov_b32 s{S_A+3}, 0x20000
        s_mov_b32 s{self.S_RK}, 1
        s_mul_i32 s{A1}, s{u}, 3277
        s_lshr_b32 s{A1}, s{A1}, 16                 ; m16 = r/20
        s_mul_i32 s{ST+7}, s{A1}, 20
        s_sub_u32 s{u}, s{u}, s{ST+7}               ; kb
        s_mul_i32 s{ST+7}, s{A1}, {W3S_M}
        s_add_u32 s{ST+7}, s{ST+7}, {W3S}
        s_mul_i32 s{A0}, s{u}, {4096 if self.w3split else 7168}
        s_add_u32 s{self.S_RD}, s{A0}, s{ST+7}               ; tiles 0..3
        s_mul_i32 s{A0}, s{u}, {3072 if self.w3split else 7168}
        s_add_u32 s{A0}, s{A0}, s{ST+7}
        s_add_u32 s{self.S_RD2S[rnd]}, s{A0}, {80*1024 if self.w3split else 4096}      ; tiles 4..6
        s_mul_i32 s{A0}, s{A1}, 7
        s_sub_u32 s{ST+7}, s{A1}, 12
        s_max_i32 s{ST+7}, s{ST+7}, 0
        s_sub_u32 s{A0}, s{A0}, s{ST+7}
        s_lshl_b32 s{A0}, s{A0}, 5
        s_mul_i32 s{u}, s{u}, {32*3456}
        s_add_u32 s{u}, s{u}, s{A0}
        s_mul_i32 s{A0}, s{S_WV}, 14336
        s_add_u32 s{A0}, s{A0}, {7168*rnd}
        """)
        O = self.RL_OFF
        for q in range(7):
            I(f"""
            v_add_u32 v{self.RL_D}, {64*q}, v{V_L}
            v_mul_u32_u24 v{self.RL_D+1}, 4682, v{self.RL_D}
            v_lshrrev_b32 v{self.RL_D+1}, 16, v{self.RL_D+1}
            v_mul_u32_u24 v{O+q}, {3456-224}, v{self.RL_D+1}
            v_lshl_add_u32 v{O+q}, v{self.RL_D}, 4, v{O+q}
            """)
        for q in range(7):
            I(f"s_mov_b32 m0, s{A0}\ns_add_u32 s{A0}, s{A0}, 1024\nbuffer_load_dwordx4 v{O+q}, {sr(S_A)}, s{u} offen lds")
        I(f"""
        v_lshrrev_b32 v{self.RL_TR}, 2, v{V_T}
        v_lshl_add_u32 v{self.RL_TR}, v{V_G}, 2, v{self.RL_TR}
        v_mul_u32_u24 v{self.RL_TR}, 224, v{self.RL_TR}
        {lend}_tr:
        v_and_b32 v{self.RL_D}, 3, v{V_T}
        v_lshl_add_u32 v{self.RL_TR}, v{self.RL_D}, 3, v{self.RL_TR}
        s_mul_i32 s{A0}, s{S_WV}, 14336
        s_add_u32 s{A0}, s{A0}, {7168*rnd}
        v_add_u32 v{self.RL_TR}, s{A0}, v{self.RL_TR}
        {lend}:
        """)

    def rl_store(self, rnd):
        I = self.I
        self.S_RK, self.S_RD, self.RL_TR = self.S_RKS[rnd], self.S_RDS[rnd], self.RL_TRS[rnd]
        l7 = self.b.uid("L_rs7"); lend = self.b.uid("L_rse")
        D = self.RL_D
        I(f"s_cmp_eq_u32 s{self.S_RK}, 2\ns_cbranch_scc1 {lend}\ns_cmp_eq_u32 s{self.S_RK}, 1\ns_cbranch_scc1 {l7}")
        for (nt, rowb, last) in ((5, 160, False), (7, 224, True)):
            if last: I(f"{l7}:")
            for j in range(nt):
                I(f"ds_read_b64_tr_b16 v[{D+4*j}:{D+4*j+1}], v{self.RL_TR} offset:{32*j}")
                I(f"ds_read_b64_tr_b16 v[{D+4*j+2}:{D+4*j+3}], v{self.RL_TR} offset:{32*j+16*rowb}")
            if nt == 5: I(f"s_add_u32 s{ST+4}, s{self.S_RD}, 4096")
            else: I(f"s_mov_b32 s{ST+4}, s{self.S_RD2S[rnd]}")
            I("s_waitcnt lgkmcnt(0)")
            for j in range(nt):
                I(f"buffer_store_dwordx4 {vr(D+4*j)}, v{V_L16}, {sr(S_WS)}, s{self.S_RD if j < 4 else ST+4} offen offset:{1024*(j%4)} sc1")
            if not last: I(f"s_branch {lend}")
        I(f"{lend}:")

    def rl_flag(self):
        I = self.I
        lab = self.b.uid("L_rlp")
        I(f"""
        s_barrier
        s_cmp_lg_u32 s{S_WV}, 0
        s_cbranch_scc1 {lab}
        v_mov_b32 v252, s{S_TAG}
        v_mov_b32 v253, s{S_TAG+1}
        s_lshl_b32 s{ST+4}, s{S_W}, 7
        s_add_u32 s{ST+4}, s{ST+4}, {RLFLAG}
        v_mov_b32 v251, s{ST+4}
        s_mov_b64 exec, 1
        buffer_store_dwordx2 v[252:253], v251, {sr(S_WS)}, 0 offen sc1
        s_mov_b64 exec, -1
        {lab}:
        """)

    def phase_kvwait(self):
        I = self.I
        AT = self.AT
        lp = self.b.uid("L_kvw"); ok = self.b.uid("L_kvok")
        I(f"""
        v_lshlrev_b32 v{AT+3}, 7, v{V_L}
        s_mov_b32 s{ST}, {TIMEOUT}
        s_mov_b32 s{ST+1}, {KVFLAG}
        {lp}:
        buffer_load_dwordx4 {vr(AT+4)}, v{AT+3}, {sr(S_WS)}, s{ST+1} offen sc1
        """)
        I(f"""
        s_waitcnt vmcnt(0)
        v_cmp_ne_u32 vcc, s{S_TAG}, v{AT+4}
        s_mov_b64 s[{ST+2}:{ST+3}], vcc
        v_cmp_ne_u32 vcc, s{S_TAG+1}, v{AT+5}
        s_or_b64 s[{ST+2}:{ST+3}], s[{ST+2}:{ST+3}], vcc
        s_cmp_eq_u64 s[{ST+2}:{ST+3}], 0
        s_cbranch_scc1 {ok}
        """)
        self.spin_tail(ST, lp, 3)
        I(f"{ok}:")
        self.reduce_g([AT+6], AT+2, op="v_max_f32")
        for sh in (8, 4, 2, 1):
            I(f"v_mov_b32_dpp v{AT+2}, v{AT+6} row_ror:{sh} row_mask:0xf bank_mask:0xf\nv_max_f32 v{AT+6}, v{AT+6}, v{AT+2}")
        I(f"v_mov_b32 v{AT+1}, v{AT+6}")
        self.xid_publish()
        labg = self.b.uid("L_dg")
        I(f"s_cmp_lg_u32 s{self.S_PROD}, 2\ns_cbranch_scc1 {labg}")
        I(f"v_accvgpr_read_b32 v248, a250\nv_accvgpr_read_b32 v249, a251")
        self.MT = self.MT2
        self.mod_gemv(60, 63, 63, None)
        I("s_barrier")
        I(f"{labg}:")
        self.stamp("kvwait")

    def kv_loads(self, i, sK, sV):
        raise NotImplementedError

    def phase_attn(self, force_slow=False):
        I, C = self.I, self.C
        QA0, QA1, QB0, QB1, SA, SB, PA, PB, OA, OB, KB, VB, AT = (self.QA0, self.QA1, self.QB0, self.QB1, self.SA, self.SB,
            self.PA, self.PB, self.OA, self.OB, self.KB, self.VB, self.AT)
        sK, sV, cnt = 85, 86, 87
        vK1 = AT+2
        lab_slow = self.b.uid("L_slow"); lab_done = self.b.uid("L_adone")
        C("bound check: |q|^2 * kmax2 <= T^2 (log2 units) else true-max path")
        Tlim = 64.0
        I(f"""
        v_mul_f32 v{AT}, v{AT}, v{AT+1}
        v_and_b32 v{vK1}, 31, v{V_L}
        v_lshlrev_b32 v{vK1}, 3, v{vK1}
        s_mov_b32 s{ST+3}, {hex(f2u(Tlim*Tlim if not force_slow else -1.0))}
        v_cmp_nge_f32 vcc, s{ST+3}, v{AT}
        """)
        I(f"s_cmp_lg_u64 vcc, 0\ns_cselect_b32 s{self.S_SLOW}, 1, 0")
        for r in range(16): I(f"v_mov_b32 v{OA+r}, 0\nv_mov_b32 v{OB+r}, 0")
        KVL = self.L_KV
        vK16, vK8 = 200, 201
        KR, VR = 16, 48
        def kreg(buf): return KR + 8*buf
        def vreg(buf): return VR + 8*buf
        def rdK(t):
            k = kreg(t % 4); o = (t % 16)*KVT
            I(f"ds_read_b128 {ar(k)}, v{vK16} offset:{o}")
            I(f"ds_read_b64 a[{k+4}:{k+5}], v{vK8} offset:{o+1024}")
        def rdV(t, which=(0, 1)):
            v = vreg(t % 4); o = (t % 16)*KVT
            if 0 in which: I(f"ds_read_b128 {ar(v)}, v{vK16} offset:{o+1280}")
            if 1 in which: I(f"ds_read_b128 {ar(v+4)}, v{vK16} offset:{o+2304}")
        I(f"v_add_u32 v{vK16}, {KVL}, v{V_L16}\nv_add_u32 v{vK8}, {KVL}, v{vK1}")
        for g in range(3): self.kv_dma(g)
        for r in range(16): I(f"v_mov_b32 v{SB+r}, 0xff800000")
        for r in range(8): I(f"v_mov_b32 v{PA+r}, 0")
        for r in range(8): I(f"v_accvgpr_write_b32 a{vreg(3)+r}, 0")
        self.rl_issue(0)
        I("s_waitcnt vmcnt(9)\ns_barrier")
        rdK(0); rdK(1); rdV(0)
        I(f"s_mov_b32 s{cnt}, 16")
        lp = self.b.uid("L_att"); lhk = [self.b.uid("L_hook") for _ in range(5)]; lback = [self.b.uid("L_back") for _ in range(4)]
        hooks = self.attn_hooks()
        mask = sum(1 << k for k in hooks)
        def exps(S, P, q):
            a = S + 4*q
            I(f"v_exp_f32 v{a}, v{a}\nv_exp_f32 v{a+1}, v{a+1}\nv_exp_f32 v{a+2}, v{a+2}\nv_exp_f32 v{a+3}, v{a+3}")
            I(f"v_cvt_pk_bf16_f32 v{P+2*q}, v{a}, v{a+1}\nv_cvt_pk_bf16_f32 v{P+2*q+1}, v{a+2}, v{a+3}")
        M16 = "v_mfma_f32_32x32x16_bf16"; M8 = "v_mfma_f32_32x32x8_bf16"
        SKS, SKL, SBM = 86, 85, 76
        def copy_slot(q, e):
            n = 2*(q & 1) + e
            if self.x_nokv: return
            if q < 2:
                if n == 3: I("s_mov_b64 exec, 0xffff")
                I(f"buffer_load_dwordx4 v{V_L16}, {sr(S_WS)}, s{SKS} offen offset:{1024*n} lds")
                if n == 3: I(f"s_mov_b64 exec, -1\ns_mov_b32 m0, s{SBM}")
            elif not self.noslot:
                I(f"buffer_load_dwordx4 v{V_L16}, {sr(S_WS)}, s{self.S_DS} offen offset:{1024*n} lds")
        def header(part):
            I("s_waitcnt vmcnt(12) lgkmcnt(4)")
            if not self.x_nobar: I("s_barrier")
            I(f"""
            s_bitcmp1_b32 s84, s{cnt}
            s_cbranch_scc1 {lhk[part]}
            {lback[part]}:
            s_add_u32 s{SKS}, s{SKS}, {4*KVT}
            s_add_u32 m0, s{SKL}, {((part + 3) % 4)*4*KVT}
            s_add_u32 s{self.S_DS}, s{self.S_DS}, s{self.S_INC}
            s_add_u32 s{SBM}, s{SBM}, s{self.S_INC}
            """)
        def body(i, qk=True, last=False):
            kb = kreg(i % 4); vb = vreg((i+3) % 4)
            k2 = kreg((i+2) % 4); ok = ((i+2) % 16)*KVT
            v1 = vreg((i+1) % 4); ov = ((i+1) % 16)*KVT
            if qk:
                I(f"{M16} {vr(SA,16)}, {ar(kb)}, {vr(QA0)}, 0")
                if not self.x_nords: I(f"ds_read_b128 {ar(k2)}, v{vK16} offset:{ok}")
            exps(SB, PB, 0)
            if qk:
                I(f"{M8} {vr(SA,16)}, a[{kb+4}:{kb+5}], v[{QA1}:{QA1+1}], {vr(SA,16)}")
            exps(SB, PB, 1)
            I(f"{M16} {vr(OA,16)}, {ar(vb)}, {vr(PA)}, {vr(OA,16)}")
            if qk and not self.x_nords: I(f"ds_read_b64 a[{k2+4}:{k2+5}], v{vK8} offset:{ok+1024}")
            exps(SB, PB, 2)
            I(f"{M16} {vr(OA,16)}, {ar(vb+4)}, {vr(PA+4)}, {vr(OA,16)}")
            if qk: copy_slot(i % 4, 0)
            exps(SB, PB, 3)
            if qk:
                I(f"{M16} {vr(SB,16)}, {ar(kb)}, {vr(QB0)}, 0")
                if not self.x_nords: I(f"ds_read_b128 {ar(v1)}, v{vK16} offset:{ov+1280}")
                exps(SA, PA, 0)
                I(f"{M8} {vr(SB,16)}, a[{kb+4}:{kb+5}], v[{QB1}:{QB1+1}], {vr(SB,16)}")
                copy_slot(i % 4, 1)
                exps(SA, PA, 1)
            I(f"{M16} {vr(OB,16)}, {ar(vb)}, {vr(PB)}, {vr(OB,16)}")
            if qk:
                if not self.x_nords: I(f"ds_read_b128 {ar(v1+4)}, v{vK16} offset:{ov+2304}")
                exps(SA, PA, 2)
            I(f"{M16} {vr(OB,16)}, {ar(vb+4)}, {vr(PB+4)}, {vr(OB,16)}")
            if qk:
                if i % 4 == 3:
                    I(f"s_sub_u32 s{cnt}, s{cnt}, 1")
                    header((i // 4 + 1) % 4)
                else:
                    I("s_waitcnt lgkmcnt(4)")
                exps(SA, PA, 3)
        I(f"""
        s_mul_i32 s{SKL}, s{S_WV}, {KVT}
        s_add_u32 s{SKS}, s{SKL}, {KV + 8*KVT}
        s_add_u32 s{SKL}, s{SKL}, {KVL}
        s_mov_b32 s{SBM}, {self.L_DUMMY}
        s_mov_b32 s{self.S_DS}, {KV}
        s_mov_b32 s{self.S_INC}, 0
        s_mov_b32 s84, {hex(mask)}
        """)
        I("s_waitcnt lgkmcnt(0)")
        lentry = self.b.uid("L_ent")
        I(f"""
        s_branch {lhk[4]}
        {lentry}:
        s_add_u32 s{SKS}, s{SKS}, {4*KVT}
        s_add_u32 m0, s{SKL}, {3*4*KVT}
        """)
        self.stamp("loop_in")
        I(f"{lp}:")
        for i in range(16): body(i)
        I(f"s_cmp_lg_u32 s{cnt}, 0\ns_cbranch_scc1 {lp}")
        self.stamp("loop_out")
        C("drain: iteration 64 (V_63)")
        I("s_waitcnt lgkmcnt(0)")
        body(0, qk=False)
        I(f"s_cmp_lg_u32 s{self.S_SLOW}, 0\ns_cbranch_scc1 {lab_slow}\ns_branch {lab_done}")
        I(f"{lhk[4]}:")
        self.hook_body(hooks, 16)
        I(f"s_branch {lentry}")
        for part in range(4):
            I(f"{lhk[part]}:")
            ks = [k for k in sorted(hooks, reverse=True) if (16 - k) % 4 == part and k != 16]
            for n_, k in enumerate(ks):
                nx = None
                if n_ < len(ks) - 1:
                    nx = self.b.uid("L_hk")
                    I(f"s_cmp_lg_u32 s{cnt}, {k}\ns_cbranch_scc1 {nx}")
                self.hook_body(hooks, k)
                I(f"s_branch {lback[part]}")
                if nx: I(f"{nx}:")
            if not ks: I(f"s_branch {lback[part]}")
        I(f"{lab_slow}:")
        for r in range(16): I(f"v_mov_b32 v{OA+r}, 0\nv_mov_b32 v{OB+r}, 0")
        MA_, MB_, T0 = AT+4, AT+5, AT+6
        I(f"v_mov_b32 v{MA_}, 0xff7fffff\nv_mov_b32 v{MB_}, 0xff7fffff")
        I(f"s_mov_b32 s{sK}, {KV}\ns_mov_b32 s{cnt}, 64")
        lp2 = self.b.uid("L_atts")
        I(f"{lp2}:")
        k0, v0 = kreg(0), vreg(0)
        I(f"""
        buffer_load_dwordx4 {ar(k0)}, v{V_L16}, {sr(S_WS)}, s{sK} offen
        buffer_load_dwordx2 a[{k0+4}:{k0+5}], v{vK1}, {sr(S_WS)}, s{sK} offen offset:1024
        buffer_load_dwordx4 {ar(v0)}, v{V_L16}, {sr(S_WS)}, s{sK} offen offset:1280
        buffer_load_dwordx4 {ar(v0+4)}, v{V_L16}, {sr(S_WS)}, s{sK} offen offset:2304
        s_add_u32 s{sK}, s{sK}, {KVT}
        s_waitcnt vmcnt(0)
        """)
        for (S, P, O, Q0, Q1, Mx) in ((SA, PA, OA, QA0, QA1, MA_), (SB, PB, OB, QB0, QB1, MB_)):
            I(f"{M16} {vr(S,16)}, {ar(kreg(0))}, {vr(Q0)}, 0")
            I(f"{M8} {vr(S,16)}, a[{kreg(0)+4}:{kreg(0)+5}], v[{Q1}:{Q1+1}], {vr(S,16)}")
            I(f"v_max3_f32 v{T0}, v{S}, v{S+1}, v{S+2}")
            for r in range(3, 15, 2): I(f"v_max3_f32 v{T0}, v{T0}, v{S+r}, v{S+r+1}")
            I(f"v_max_f32 v{T0}, v{T0}, v{S+15}")
            I(f"v_mov_b32 v{T0+1}, v{T0}\nv_permlane32_swap_b32 v{T0}, v{T0+1}\nv_max_f32 v{T0}, v{T0}, v{T0+1}")
            I(f"v_max_f32 v{T0}, v{T0}, v{Mx}")
            I(f"v_sub_f32 v{T0+1}, v{Mx}, v{T0}\nv_exp_f32 v{T0+1}, v{T0+1}\nv_mov_b32 v{Mx}, v{T0}")
            for r in range(16): I(f"v_mul_f32 v{O+r}, v{O+r}, v{T0+1}")
            for r in range(16): I(f"v_sub_f32 v{S+r}, v{S+r}, v{T0}")
            for q in range(4): exps(S, P, q)
            I(f"{M16} {vr(O,16)}, {ar(vreg(0))}, {vr(P)}, {vr(O,16)}")
            I(f"{M16} {vr(O,16)}, {ar(vreg(0)+4)}, {vr(P+4)}, {vr(O,16)}")
        I(f"s_sub_u32 s{cnt}, s{cnt}, 1\ns_cmp_lg_u32 s{cnt}, 0\ns_cbranch_scc1 {lp2}")
        I(f"{lab_done}:")
        I("s_waitcnt vmcnt(0)\ns_barrier")
        self.stamp("attn")
        self.mod_fetch()
        self.ring_state_after_attn()
        C("normalise and store O in the B-fragment layout of the wo GEMM")
        T = AT
        PK = SA
        I(f"""
        v_lshlrev_b32 v{self.V_L8}, 3, v{V_L}
        s_mul_i32 s{ST}, s{S_WV}, 3072
        s_add_u32 s{ST}, s{ST}, {144*1024}
        v_mul_u32_u24 v{T}, 176, v{V_T}
        v_add_u32 v{T}, s{ST}, v{T}
        v_lshl_add_u32 v{T+1}, v{V_G}, 3, v{T}
        v_bfe_u32 v{T+4}, v{V_L}, 4, 1
        v_mul_u32_u24 v{T+4}, 40, v{T+4}
        v_add_u32 v{T}, v{T}, v{T+4}
        v_lshrrev_b32 v{T+4}, 5, v{V_L}
        v_lshl_add_u32 v{T}, v{T+4}, 3, v{T}
        """)
        for (O, u) in ((OA, 0), (OB, 1)):
            I(f"v_mov_b32 v{T+2}, v{O+8}\nv_mov_b32 v{T+3}, v{O+8}\nv_permlane32_swap_b32 v{T+2}, v{T+3}")
            I(f"v_rcp_f32 v{T+3}, v{T+3}")
            for run in range(3):
                a = O + 4*run
                for r in range(4): I(f"v_mul_f32 v{a+r}, v{a+r}, v{T+3}")
                I(f"v_cvt_pk_bf16_f32 v{a}, v{a}, v{a+1}\nv_cvt_pk_bf16_f32 v{a+1}, v{a+2}, v{a+3}")
                if run == 2: I(f"s_mov_b32 exec_hi, 0")
                I(f"ds_write_b64 v{T}, v[{a}:{a+1}] offset:{80*u + 16*run}")
                if run == 2: I(f"s_mov_b32 exec_hi, -1")
        I("s_waitcnt lgkmcnt(0)")
        for j in range(5):
            I(f"ds_read_b64 v[{PK+2*j}:{PK+2*j+1}], v{T+1} offset:{32*j}")
        I(f"s_mul_i32 s{self.S_T5}, s{S_M}, 5")
        self.tile_base(ST+4, S_TT, 20, OF)
        I("s_waitcnt lgkmcnt(0)")
        self.store_frag(PK, 5, ST+4, self.S_T5)
        self.publish(PH_O); self.vm_drained()
        I("s_barrier")
        self.refill(); self.drip(4)
        self.stamp("opub")

    def dual(self, fn):
        I = self.I
        ls = self.b.uid("L_sl"); lj = self.b.uid("L_sj")
        I(f"s_cmp_eq_u32 s{S_FAST}, 0\ns_cbranch_scc1 {ls}")
        fn("")
        I(f"s_branch {lj}\n{ls}:")
        fn(" sc1")
        I(f"{lj}:")

    def xid_publish(self):
        I = self.I
        lab = self.b.uid("L_xp")
        I(f"""
        s_cmp_lg_u32 s{S_WV}, 0
        s_cbranch_scc1 {lab}
        s_getreg_b32 s{ST}, hwreg(HW_REG_XCC_ID)
        s_and_b32 s{ST}, s{ST}, 15
        v_mov_b32 v252, s{ST}
        v_mov_b32 v253, 0
        v_mov_b32 v254, s{S_TAG}
        v_mov_b32 v255, s{S_TAG+1}
        s_lshl_b32 s{ST}, s{S_RB}, 7
        s_lshl_b32 s{ST+1}, s{S_M}, 4
        s_add_u32 s{ST}, s{ST}, s{ST+1}
        s_add_u32 s{ST}, s{ST}, {XIDG}
        v_mov_b32 v251, s{ST}
        s_mov_b64 exec, 1
        buffer_store_dwordx4 v[252:255], v251, {sr(S_WS)}, 0 offen sc1
        s_mov_b64 exec, -1
        {lab}:
        """)

    XV = 240
    def xid_issue(self):
        I = self.I
        I(f"""
        s_and_b32 s{ST+5}, s{S_RB}, 28
        s_lshl_b32 s{ST+5}, s{ST+5}, 7
        s_add_u32 s{ST+5}, s{ST+5}, {XIDG}
        v_and_b32 v251, 31, v{V_L}
        v_lshlrev_b32 v251, 4, v251
        buffer_load_dwordx4 {vr(self.XV)}, v251, {sr(S_WS)}, s{ST+5} offen sc1
        """)

    def xid_eval(self):
        I = self.I
        X = self.XV
        lp = self.b.uid("L_xc"); ok = self.b.uid("L_xcok")
        I(f"""
        s_mov_b32 s{ST+4}, {TIMEOUT}
        {lp}:
        v_cmp_ne_u32 vcc, s{S_TAG}, v{X+2}
        s_mov_b64 s[{ST+6}:{ST+7}], vcc
        v_cmp_ne_u32 vcc, s{S_TAG+1}, v{X+3}
        s_or_b64 s[{ST+6}:{ST+7}], s[{ST+6}:{ST+7}], vcc
        s_cmp_eq_u64 s[{ST+6}:{ST+7}], 0
        s_cbranch_scc1 {ok}
        """)
        self.xid_issue()
        I("s_waitcnt vmcnt(0)")
        self.spin_tail(ST+4, lp, 14)
        I(f"""
        {ok}:
        s_getreg_b32 s{ST+4}, hwreg(HW_REG_XCC_ID)
        s_and_b32 s{ST+4}, s{ST+4}, 15
        v_cmp_ne_u32 vcc, s{ST+4}, v{X}
        s_cmp_eq_u64 vcc, 0
        s_cselect_b32 s{S_FAST}, {0 if self.force_global else 1}, 0
        """)

    def rl_poll_issue(self):
        I = self.I
        lab = self.b.uid("L_rpi")
        T = 232
        I(f"s_cmp_lg_u32 s{S_WV}, 0\ns_cbranch_scc1 {lab}\nv_lshlrev_b32 v250, 7, v{V_L}")
        for i in range(4):
            I(f"s_mov_b32 s{ST+5}, {RLFLAG + i*8192}\nbuffer_load_dwordx2 v[{T+2*i}:{T+1+2*i}], v250, {sr(S_WS)}, s{ST+5} offen sc1")
        I(f"{lab}:")

    def rl_poll_eval(self):
        I = self.I
        lab = self.b.uid("L_rw"); lp = self.b.uid("L_rwp"); ok = self.b.uid("L_rwok")
        T = 232
        I(f"s_cmp_lg_u32 s{S_WV}, 0\ns_cbranch_scc1 {lab}\ns_mov_b32 s{ST+4}, {TIMEOUT}\n{lp}:\ns_mov_b64 s[{ST+6}:{ST+7}], 0")
        for i in range(4):
            I(f"""
            v_cmp_ne_u32 vcc, s{S_TAG}, v{T+2*i}
            s_or_b64 s[{ST+6}:{ST+7}], s[{ST+6}:{ST+7}], vcc
            v_cmp_ne_u32 vcc, s{S_TAG+1}, v{T+1+2*i}
            s_or_b64 s[{ST+6}:{ST+7}], s[{ST+6}:{ST+7}], vcc
            """)
        I(f"s_cmp_eq_u64 s[{ST+6}:{ST+7}], 0\ns_cbranch_scc1 {ok}")
        self.rl_poll_issue()
        I("s_waitcnt vmcnt(0)")
        self.spin_tail(ST+4, lp, 4)
        I(f"{ok}:\n{lab}:\ns_barrier")

    def publish(self, ph, both=False, vmn=0, line_sreg=None):
        I = self.I
        ln = S_TT if line_sreg is None else line_sreg
        I(f"""
        v_mov_b32 v254, s{S_TAG}
        v_mov_b32 v255, s{S_TAG+1}
        s_lshl_b32 s{ST}, s{ln}, 7
        s_lshl_b32 s{ST+1}, s{S_M}, 3
        s_add_u32 s{ST}, s{ST}, s{ST+1}
        s_add_u32 s{ST}, s{ST}, {CFLAG + ph*CF_PH}
        v_mov_b32 v253, s{ST}
        s_mov_b32 s{ST+1}, {CF_LOC}
        s_waitcnt vmcnt({vmn})
        s_mov_b64 exec, 1
        """)
        def st(f):
            if f == "":
                I(f"buffer_store_dwordx2 v[254:255], v253, {sr(S_WS)}, s{ST+1} offen")
                if both: I(f"buffer_store_dwordx2 v[254:255], v253, {sr(S_WS)}, 0 offen sc1")
            else:
                I(f"buffer_store_dwordx2 v[254:255], v253, {sr(S_WS)}, 0 offen sc1")
        self.dual(st)
        I(f"s_mov_b64 exec, -1")

    def publish_drip(self, ph, both=False, line_sreg=None):
        if self.detail == 2: self.stamp(f"e_sto{ph}")
        self.publish(ph, both=both, vmn=0, line_sreg=line_sreg)
        self.vmq = []
        self.drip(self.pub_after)

    def wait_flags(self, ph, lines, code, work=None):
        I = self.I
        lp = self.b.uid("L_wfp"); ok = self.b.uid("L_wfok")
        I(f"v_mov_b32 v251, s{lines[0]}")
        if len(lines) > 1:
            I(f"v_lshrrev_b32 v250, 3, v{V_L}\nv_and_b32 v250, 3, v250")
            for i, r in enumerate(lines[1:], 1):
                I(f"v_cmp_eq_u32 vcc, {i}, v250\nv_mov_b32 v252, s{r}\nv_cndmask_b32 v251, v251, v252, vcc")
        I(f"""
        v_lshrrev_b32 v250, 4, v251
        s_lshr_b32 s{ST}, s{S_RB}, 2
        v_cmp_eq_u32 vcc, s{ST}, v250
        s_mul_i32 s{ST}, s{S_FAST}, {CF_LOC}
        v_mov_b32 v252, s{ST}
        v_cndmask_b32 v250, 0, v252, vcc
        v_lshl_add_u32 v251, v251, 7, v250
        v_and_b32 v252, 7, v{V_L}
        v_lshl_add_u32 v251, v252, 3, v251
        s_mov_b32 s{ST+1}, {CFLAG + ph*CF_PH}
        s_mov_b32 s{ST}, {TIMEOUT}
        buffer_load_dwordx2 v[254:255], v251, {sr(S_WS)}, s{ST+1} offen sc1
        """)
        n0 = len(self.vmq)
        self.drip(self.shadow_f)
        nsh = len(self.vmq) - n0
        if work: work()
        lchk = self.b.uid("L_wfc")
        I(f"""
        s_waitcnt vmcnt({nsh})
        s_branch {lchk}
        {lp}:
        buffer_load_dwordx2 v[254:255], v251, {sr(S_WS)}, s{ST+1} offen sc1
        s_waitcnt vmcnt(0)
        {lchk}:
        v_cmp_ne_u32 vcc, s{S_TAG}, v254
        s_mov_b64 s[{ST+2}:{ST+3}], vcc
        v_cmp_ne_u32 vcc, s{S_TAG+1}, v255
        s_or_b64 s[{ST+2}:{ST+3}], s[{ST+2}:{ST+3}], vcc
        s_cmp_eq_u64 s[{ST+2}:{ST+3}], 0
        s_cbranch_scc1 {ok}
        """)
        self.spin_tail(ST, lp, code)
        I(f"{ok}:")
        self.vmq = self.vmq[len(self.vmq)-nsh:] if nsh else []

    X2, H = 4, 24
    ACC = 44
    MS_GA = 64
    WB = 100
    MS_A2, MS_SB = 160, 180
    GT = 200
    RING = 160
    F_WO, F_W1, F_W2, F_W3, F_W4 = 0, 100, 200, 304, 448
    NUNITS = 45
    S_T5 = 29
    S_SRC = 30
    S_WA, S_W3 , S_W4 = 90, 91, 92
    S_LW = 93
    S_DM, S_DS, S_AO, S_AO2 = 94, 95, 88, 89

    def vm_issue(self, tag): self.vmq.append(tag)
    def vm_wait(self, tag):
        if tag not in self.vmq: return
        i = len(self.vmq) - 1 - self.vmq[::-1].index(tag)
        n = len(self.vmq) - 1 - i
        self.I(f"s_waitcnt vmcnt({min(n, 63)})")
        self.vmq = self.vmq[i+1:]
    def vm_drained(self): self.vmq = []

    def ring_regs(self):
        I = self.I
        I(f"""
        s_lshl_b32 s{self.S_LW}, s{S_WV}, 12
        s_mul_i32 s{self.S_WA}, s{S_M}, {WSA_M}
        s_add_u32 s{self.S_WA}, s{self.S_WA}, {WSA}
        s_add_u32 s{self.S_WA}, s{self.S_WA}, s{self.S_LW}
        s_and_b32 s{self.S_W3}, s{S_RB}, 1
        s_lshl_b32 s{self.S_W3}, s{self.S_W3}, 3
        s_add_u32 s{self.S_W3}, s{self.S_W3}, s{S_M}
        s_mul_i32 s{self.S_W3}, s{self.S_W3}, {W3S_M}
        s_add_u32 s{self.S_W3}, s{self.S_W3}, {W3S}
        s_add_u32 s{self.S_W3}, s{self.S_W3}, s{self.S_LW}
        s_mul_i32 s{self.S_W4}, s{S_M}, {W4S_M}
        s_add_u32 s{self.S_W4}, s{self.S_W4}, {W4S}
        s_add_u32 s{self.S_W4}, s{self.S_W4}, s{self.S_LW}
        """)

    def refill(self, maxn=99):
        n = 0
        while self.units_queued < self.NUNITS and n < maxn:
            u = self.units_queued
            if 16*u + 15 - self.RING > self.consumed: break
            for q in range(4):
                self.pend.append((("u", u, q), (lambda u=u, q=q: self.emit_dma(u, q))))
            self.units_queued += 1; n += 1
        self.resort()

    def resort(self):
        ctx = getattr(self, "loop_ctx", None)
        if ctx is None: return
        F0, NT, S = ctx
        def key(e):
            t = e[0]
            if t[0] == "a": return t[2]
            F = 16*t[1]
            if F + 15 < F0: return -100
            st = max(0, (F - F0)//NT)
            if st >= S: return 1000 + t[1]
            return 4*(st//4) - 2 - 1
        self.pend.sort(key=key)

    def emit_dma(self, u, q, track=True):
        I = self.I
        if q == 0:
            F = 16*u
            if F < 304: base, off = self.S_WA, F*1024
            elif F < 448: base, off = self.S_W3, (F-304)*1024
            else: base, off = self.S_W4, (F-448)*1024
            slot = (F % self.RING)*1024
            I(f"s_add_u32 s{self.S_DM}, s{self.S_LW}, {slot}\ns_mov_b32 m0, s{self.S_DM}\ns_add_u32 s{self.S_DS}, s{base}, {off}")
        I(f"buffer_load_dwordx4 v{V_L16}, {sr(S_WS)}, s{self.S_DS} offen offset:{1024*q} lds")
        if track:
            self.vm_issue(("u", u) if q == 3 else ("ux", u, q))
            if q == 3: self.units_issued = u + 1

    def drip(self, n=1):
        while n > 0 and self.pend:
            tag, fn = self.pend.pop(0)
            fn(); n -= 1

    def flush_until(self, tag):
        if not any(t == tag for t, _ in self.pend): return
        while True:
            t, fn = self.pend.pop(0)
            fn()
            if t == tag: return

    def need_units(self, Fmax):
        u = Fmax // 16
        assert u < self.units_queued, (u, self.units_queued)
        self.flush_until(("u", u, 3))
        self.vm_wait(("u", u))

    def gemm(self, S, NT, F0, aops, abases, burst, rate, cap=99, post_barrier=True, resident=False, chunk=4, accf=None, filler=None, fill_n=0):
        I = self.I
        WB, ACC, T = self.WB, self.ACC, self.GT
        nt = len(abases)
        vb = [T, T+1, T+2]
        stride = 4*NT
        if accf is None: accf = lambda tt, j: ACC + 4*(tt*NT + j)
        filler = list(filler or [])
        def rd1(s, j):
            off = ((F0 + s*NT + j) % self.RING)*1024
            k, o = divmod(off, 61440)
            I(f"ds_read_b128 {vr(WB + stride*(s % 3) + 4*j)}, v{vb[k]} offset:{o}")
        while self.pend and self.pend[0][0][0] == "u" and self.pend[0][0][2] != 0: self.drip(1)
        keep = []
        if resident:
            keep = [e for e in self.pend if e[0][0] == "u"]
            self.pend = []
        self.pend = list(aops) + self.pend
        self.loop_ctx = (F0, NT, S)
        if not resident: self.refill(cap)
        self.drip(burst)
        for j in range(NT): rd1(0, j)
        for j in range(NT): rd1(1, j)
        acc_rate = 0.0
        for s in range(S):
            if not resident and s + 2 < S and (s + 2) % chunk == 0:
                last = min(S, s + 2 + chunk) - 1
                if F0 + last*NT + NT - 1 > self.visible or self.units_queued < self.NUNITS:
                    self.need_units(F0 + last*NT + NT - 1)
                    I("s_barrier")
                    self.visible = max(self.visible, F0 + last*NT + NT - 1)
                    self.consumed = max(self.consumed, F0 + (s-1)*NT + NT - 1)
                    self.refill(cap)
            if self.detail == F0 and s % 4 == 0: self.stamp(f"d_k{s}")
            nout = NT if s + 1 < S else 0
            I(f"s_waitcnt lgkmcnt({min(nout, 15)})")
            for tt in range(nt):
                self.flush_until(("a", tt, s))
                self.vm_wait(("a", tt, s))
            acc_rate += rate
            nm = nt*NT
            slots = []
            while acc_rate >= 1.0:
                slots.append(1); acc_rate -= 1.0
            pos = {(k*nm)//max(1, len(slots)) : 0 for k in range(len(slots))}
            for k in range(len(slots)): pos[(k*nm)//len(slots)] += 1
            i = 0
            for tt in range(nt):
                for j in range(NT):
                    c = '0' if s == 0 else vr(accf(tt, j))
                    I(f"v_mfma_f32_16x16x32_bf16 {vr(accf(tt, j))}, {vr(WB+stride*(s%3)+4*j)}, {ar(abases[tt]+4*s)}, {c}")
                    if i < NT and s + 2 < S: rd1(s+2, i)
                    if pos.get(i): self.drip(pos[i])
                    for _ in range(fill_n):
                        if filler: I(filler.pop(0))
                    i += 1
        for x in filler: I(x)
        self.pending_consumed = {299: 303, 443: 447}.get(F0 + S*NT - 1, F0 + S*NT - 1)
        self.loop_ctx = None
        self.pend = self.pend + keep
        if post_barrier:
            I("s_barrier")
            self.after_barrier()
            self.refill()
            self.drip({0: self.post_drip, 100: self.post_drip, 200: self.post_drip2, 384: self.post_drip3, 304: self.post_drip3}.get(F0, 0))

    def after_barrier(self):
        self.consumed = max(self.consumed, getattr(self, "pending_consumed", -1))

    def lds_bases(self):
        T = self.GT
        self.I(f"v_mov_b32 v{T}, v{V_L16}\nv_add_u32 v{T+1}, 61440, v{V_L16}\nv_add_u32 v{T+2}, {2*61440}, v{V_L16}")

    def a_op(self, tt, s, abase, vaddr, base_sreg, base_add, soff_reg, split=(), vaddr8=None):
        def fn():
            if s % 4 == 0:
                if base_sreg is None: self.I(f"s_mov_b32 s{soff_reg}, {base_add + 1024*s}")
                else: self.I(f"s_add_u32 s{soff_reg}, s{base_sreg}, {base_add + 1024*s}")
            r = abase + 4*s
            if s in split:
                self.I(f"buffer_load_dwordx2 a[{r}:{r+1}], v{vaddr8}, {sr(S_WS)}, s{soff_reg} offen offset:{1024*(s % 4)} sc1")
                self.vm_issue(("ah", tt, s))
                self.I(f"buffer_load_dwordx2 a[{r+2}:{r+3}], v{vaddr8}, {sr(S_WS)}, s{soff_reg} offen offset:{1024*(s % 4)+512} sc1")
            else:
                self.I(f"buffer_load_dwordx4 {ar(r)}, v{vaddr}, {sr(S_WS)}, s{soff_reg} offen offset:{1024*(s % 4)} sc1")
            self.vm_issue(("a", tt, s))
        return (("a", tt, s), fn)

    RAW_GA, RAW_SB, RAW_CB, RAW_GB = 140, 150, 214, 240
    def mod_fetch(self):
        I = self.I
        I(f"v_lshlrev_b32 v244, 4, v{V_G}\nv_add_u32 v244, {self.L_MODW}, v244")
        for (dst, off, acc) in ((self.RAW_GA, 0, False), (self.RAW_SB, 2560, False), (self.RAW_CB, 4096, False), (self.RAW_GB, 4096+2560, True)):
            for j in range(5):
                r = f"a[{dst+2*j}:{dst+2*j+1}]" if acc else f"v[{dst+2*j}:{dst+2*j+1}]"
                I(f"ds_read_b64 {r}, v244 offset:{off + 64*j}")

    def mod_unpack(self):
        I = self.I
        for src, dst in ((self.RAW_GA, self.MS_GA), (self.RAW_SB, self.MS_SB), (self.RAW_CB, self.MS_A2)):
            for i in range(10):
                I(f"v_lshlrev_b32 v{dst+2*i}, 16, v{src+i}\nv_and_b32 v{dst+2*i+1}, 0xffff0000, v{src+i}")
        self.one_plus_bf16(self.MS_A2, 20)

    def one_plus_bf16(self, r, n):
        I = self.I
        for i in range(0, n, 2):
            I(f"""
            v_add_f32 v{r+i}, 1.0, v{r+i}
            v_add_f32 v{r+i+1}, 1.0, v{r+i+1}
            v_cvt_pk_bf16_f32 v{r+i}, v{r+i}, v{r+i+1}
            v_and_b32 v{r+i+1}, 0xffff0000, v{r+i}
            v_lshlrev_b32 v{r+i}, 16, v{r+i}
            """)

    def ln_stats(self, src, which, mu, rs, code, fine=0):
        I = self.I
        T = self.GT + 4
        I(f"v_pk_add_f32 v[{T}:{T+1}], v[{src}:{src+1}], v[{src+2}:{src+3}]\nv_pk_mul_f32 v[{T+2}:{T+3}], v[{src}:{src+1}], v[{src}:{src+1}]")
        I(f"v_pk_fma_f32 v[{T+2}:{T+3}], v[{src+2}:{src+3}], v[{src+2}:{src+3}], v[{T+2}:{T+3}]")
        for i in range(4, 20, 2):
            I(f"v_pk_add_f32 v[{T}:{T+1}], v[{T}:{T+1}], v[{src+i}:{src+i+1}]\nv_pk_fma_f32 v[{T+2}:{T+3}], v[{src+i}:{src+i+1}], v[{src+i}:{src+i+1}], v[{T+2}:{T+3}]")
            if i in (8, 14): self.drip(fine)
        I(f"v_add_f32 v{T}, v{T}, v{T+1}\nv_add_f32 v{T+1}, v{T+2}, v{T+3}")
        self.reduce_g([T, T+1], T+4)
        I(f"""
        v_mov_b32 v{T+2}, s{S_TAG}
        v_mov_b32 v{T+3}, s{S_TAG+1}
        s_lshl_b32 s{ST+4}, s{S_RB}, 13
        s_lshl_b32 s{ST+5}, s{S_WV}, 8
        s_add_u32 s{ST+4}, s{ST+4}, s{ST+5}
        s_add_u32 s{ST+4}, s{ST+4}, {STAT + which*STAT_SZ}
        s_lshl_b32 s{ST+5}, s{S_M}, 10
        s_add_u32 s{ST+5}, s{ST+5}, s{ST+4}
        v_lshlrev_b32 v{T+4}, 4, v{V_T}
        s_mov_b64 exec, 0xffff
        """)
        self.dual(lambda f: I(f"buffer_store_dwordx4 {vr(T)}, v{T+4}, {sr(S_WS)}, s{ST+5} offen{f}"))
        I("s_mov_b64 exec, -1")
        if self.detail == 2: self.stamp(f"e_st{which}")
        I(f"""
        s_mov_b64 exec, -1
        v_lshl_add_u32 v{T+5}, v{V_G}, 11, v{T+4}
        s_mov_b32 s{ST}, {TIMEOUT}
        """)
        lp = self.b.uid("L_ls"); ok = self.b.uid("L_lsok"); lchk = self.b.uid("L_lsc")
        I(f"""
        buffer_load_dwordx4 {vr(T+8)}, v{T+5}, {sr(S_WS)}, s{ST+4} offen sc1
        buffer_load_dwordx4 {vr(T+12)}, v{T+5}, {sr(S_WS)}, s{ST+4} offen offset:1024 sc1
        """)
        n0 = len(self.vmq)
        self.drip(self.shadow_s)
        nsh = len(self.vmq) - n0
        I(f"""
        s_waitcnt vmcnt({nsh})
        s_branch {lchk}
        {lp}:
        buffer_load_dwordx4 {vr(T+8)}, v{T+5}, {sr(S_WS)}, s{ST+4} offen sc1
        buffer_load_dwordx4 {vr(T+12)}, v{T+5}, {sr(S_WS)}, s{ST+4} offen offset:1024 sc1
        s_waitcnt vmcnt(0)
        {lchk}:
        v_cmp_ne_u32 vcc, s{S_TAG}, v{T+10}
        s_mov_b64 s[{ST+2}:{ST+3}], vcc
        v_cmp_ne_u32 vcc, s{S_TAG+1}, v{T+11}
        s_or_b64 s[{ST+2}:{ST+3}], s[{ST+2}:{ST+3}], vcc
        v_cmp_ne_u32 vcc, s{S_TAG}, v{T+14}
        s_or_b64 s[{ST+2}:{ST+3}], s[{ST+2}:{ST+3}], vcc
        v_cmp_ne_u32 vcc, s{S_TAG+1}, v{T+15}
        s_or_b64 s[{ST+2}:{ST+3}], s[{ST+2}:{ST+3}], vcc
        s_cmp_eq_u64 s[{ST+2}:{ST+3}], 0
        s_cbranch_scc1 {ok}
        """)
        self.spin_tail(ST, lp, code)
        self.vmq = self.vmq[len(self.vmq)-nsh:] if nsh else []
        I(f"{ok}:")
        if self.detail == 2: self.stamp(f"e_got{which}")
        I(f"""
        v_add_f32 v{T}, v{T+8}, v{T+12}
        v_add_f32 v{T+1}, v{T+9}, v{T+13}
        """)
        self.reduce_g([T, T+1], T+4)
        I(f"""
        v_mul_f32 v{mu}, {1.0/640!r}, v{T}
        v_mul_f32 v{T+1}, {1.0/640!r}, v{T+1}
        v_fma_f32 v{T+1}, -v{mu}, v{mu}, v{T+1}
        v_max_f32 v{T+1}, 0, v{T+1}
        v_add_f32 v{T+1}, 0x3727c5ac, v{T+1}
        v_rsq_f32 v{rs}, v{T+1}
        s_nop 0
        v_mul_f32 v{mu}, -v{mu}, v{rs}
        v_mov_b32 v{rs+1}, v{rs}
        v_mov_b32 v{mu+1}, v{mu}
        """)

    V_L8 = 203
    SPLIT20 = (2, 7, 12, 17)
    SPLIT54 = (3, 10, 17, 24, 31, 38)
    def pack_tiles(self, src, ntile, dst=None):
        if dst is None: dst = src
        for j in range(ntile):
            a = src + 4*j; d = dst + 2*j
            self.I(f"v_cvt_pk_bf16_f32 v{d}, v{a}, v{a+1}\nv_cvt_pk_bf16_f32 v{d+1}, v{a+2}, v{a+3}")

    def store_frag(self, pk, ntile, base_sreg, tile0_sreg, skip_last_sreg=None, force_sc1=False, count=True):
        I = self.I
        lodd = self.b.uid("L_so"); lj = self.b.uid("L_sj")
        I(f"""
        s_lshr_b32 s{ST+5}, s{tile0_sreg}, 1
        s_lshl_b32 s{ST+5}, s{ST+5}, 10
        s_add_u32 s{ST+5}, s{ST+5}, s{base_sreg}
        s_bitcmp1_b32 s{tile0_sreg}, 0
        s_cbranch_scc1 {lodd}
        """)
        def variant(odd, f):
            if not odd:
                for p in range(ntile//2):
                    I(f"buffer_store_dwordx4 {vr(pk+4*p)}, v{V_L16}, {sr(S_WS)}, s{ST+5} offen offset:{1024*p}{f}")
                if ntile % 2:
                    lab = None
                    if skip_last_sreg is not None:
                        lab = self.b.uid("L_sk")
                        I(f"s_cmp_lg_u32 s{skip_last_sreg}, 0\ns_cbranch_scc1 {lab}")
                    j = ntile-1
                    I(f"buffer_store_dwordx2 v[{pk+2*j}:{pk+2*j+1}], v{self.V_L8}, {sr(S_WS)}, s{ST+5} offen offset:{1024*(ntile//2)}{f}")
                    if lab: I(f"{lab}:")
            else:
                I(f"buffer_store_dwordx2 v[{pk}:{pk+1}], v{self.V_L8}, {sr(S_WS)}, s{ST+5} offen offset:512{f}")
                for p in range(ntile//2):
                    I(f"buffer_store_dwordx4 {vr(pk+2+4*p)}, v{V_L16}, {sr(S_WS)}, s{ST+5} offen offset:{1024*(p+1)}{f}")
        if force_sc1: variant(False, " sc1")
        else: self.dual(lambda f: variant(False, f))
        I(f"s_branch {lj}\n{lodd}:")
        if force_sc1: variant(True, " sc1")
        else: self.dual(lambda f: variant(True, f))
        I(f"{lj}:")
        if count:
            for j in range(ntile//2): self.vm_issue(("st",))

    def tile_base(self, dst_sreg, tt_sreg, S, base_off):
        self.I(f"s_mul_i32 s{dst_sreg}, s{tt_sreg}, {S*1024}\ns_add_u32 s{dst_sreg}, s{dst_sreg}, {base_off}")

    def gelu(self, r, n, drip=0):
        I = self.I
        T = self.GT + 4
        c1 = -2.0 * 0.7978845608028654 * 1.4426950408889634
        c2 = c1 * 0.044715
        C1, ONE = T+8, T+10
        I(f"""
        s_mov_b32 s{ST+8}, {hex(f2u(c2))}
        s_mov_b32 s{ST+9}, {hex(f2u(c2))}
        v_mov_b32 v{C1}, {hex(f2u(c1))}
        v_mov_b32 v{C1+1}, {hex(f2u(c1))}
        v_mov_b32 v{ONE}, 1.0
        v_mov_b32 v{ONE+1}, 1.0
        """)
        P = lambda x: f"v[{x}:{x+1}]"
        for i in range(0, n, 4):
            x0, x1, t0, t1 = r+i, r+i+2, T, T+2
            I(f"v_pk_mul_f32 {P(t0)}, {P(x0)}, {P(x0)}\nv_pk_mul_f32 {P(t1)}, {P(x1)}, {P(x1)}")
            I(f"v_pk_fma_f32 {P(t0)}, {P(t0)}, s[{ST+8}:{ST+9}], {P(C1)}\nv_pk_fma_f32 {P(t1)}, {P(t1)}, s[{ST+8}:{ST+9}], {P(C1)}")
            I(f"v_pk_mul_f32 {P(t0)}, {P(t0)}, {P(x0)}\nv_pk_mul_f32 {P(t1)}, {P(t1)}, {P(x1)}")
            for q in range(4): I(f"v_exp_f32 v{T+q}, v{T+q}")
            I(f"v_pk_add_f32 {P(t0)}, {P(t0)}, {P(ONE)}\nv_pk_add_f32 {P(t1)}, {P(t1)}, {P(ONE)}")
            for q in range(4): I(f"v_rcp_f32 v{T+q}, v{T+q}")
            I(f"v_pk_mul_f32 {P(x0)}, {P(x0)}, {P(t0)}\nv_pk_mul_f32 {P(x1)}, {P(x1)}, {P(t1)}")
            self.drip(drip)

    def collect(self, fn):
        saved = self.b.items
        self.b.items = []
        fn()
        out = [it.text for it in self.b.items if isinstance(it, Ins)]
        self.b.items = saved
        return out

    def phase_entry(self, ph_wait, lines, code, F0, NT, between=None, upto=None):
        last = F0 + 4*NT - 1 if upto is None else upto
        self.need_units(last)
        self.I("s_barrier")
        self.visible = max(getattr(self, "visible", -1), last)
        self.after_barrier()
        if self.detail == F0: self.stamp("d_bar")
        self.wait_flags(ph_wait, lines, code, work=between)
        if self.detail == F0: self.stamp("d_flags")
        if self.detail == 2: self.stamp(f"e_fl{ph_wait}")

    def small_gemm(self, F0, act, ph_wait, rbs, code, shift=False, between=None, pf=()):
        I, C = self.I, self.C
        def shift_addr():
            T = self.GT + 8
            I(f"s_lshl_b32 s{ST+4}, s{S_TT}, 4\ns_lshr_b32 s{ST+5}, s{S_RB}, 2")
            for q, dl in enumerate((-1, 1, -2, 2)):
                side = 1 if dl < 0 else 0
                I(f"""
                v_add_u32 v{T+4}, s{ST+4}, v{V_T}
                v_add_u32 v{T+4}, {dl & 0xffffffff}, v{T+4}          ; token'
                v_lshrrev_b32 v{T+5}, 4, v{T+4}
                v_mul_u32_u24 v{T+5}, 20480, v{T+5}
                v_add_u32 v{T+5}, {act}, v{T+5}
                v_lshrrev_b32 v{T+6}, 8, v{T+4}
                v_lshlrev_b32 v{T+7}, 1, v{T+6}
                v_add_u32 v{T+7}, {side}, v{T+7}
                v_mul_u32_u24 v{T+7}, 20480, v{T+7}
                v_add_u32 v{T+7}, {HG}, v{T+7}
                v_cmp_eq_u32 vcc, s{ST+5}, v{T+6}
                v_cndmask_b32 v{T+5}, v{T+7}, v{T+5}, vcc
                v_and_b32 v{T+6}, 15, v{T+4}
                v_lshl_add_u32 v{T+6}, v{V_G}, 4, v{T+6}              ; g*16 + t'
                v_lshl_add_u32 v{T+7}, v{T+6}, 3, v{T+5}
                v_lshl_add_u32 v{T+5}, v{T+6}, 4, v{T+5}
                v_cmp_gt_u32 vcc, 0x800, v{T+4}
                v_mov_b32 v{T+6}, 0x80000000
                v_cndmask_b32 v{T+q}, v{T+6}, v{T+5}, vcc
                v_cndmask_b32 v{self.GT+20+q}, v{T+6}, v{T+7}, vcc
                """)
        if shift: between = shift_addr
        self.phase_entry(ph_wait, rbs, code, F0, 5, between, upto=(F0+99 if self.resident else None))
        if not shift:
            I(f"s_mul_i32 s{self.S_SRC}, s{S_TT}, {20*1024}\ns_add_u32 s{self.S_SRC}, s{self.S_SRC}, {act}")
            aops = [self.a_op(0, s, 16, V_L16, self.S_SRC, 0, self.S_AO, self.SPLIT20, self.V_L8) for s in range(20)]
        else:
            T = self.GT + 8
            aops = [self.a_op(0, s, 16, T + s // 5, None, 0, self.S_AO, self.SPLIT20, self.GT + 20 + s // 5) for s in range(20)]
        if self.use_pf: aops += [(("a", 9, 19), (lambda p=p: self.pf_op(*p))) for p in pf]
        if (self.h4t_where == 1 and F0 == self.F_W1) or (self.h4t_where == 2 and F0 == self.F_W2) or (self.h4t_where == 4 and F0 == self.F_WO):
            def h4t():
                self.act_touch(H4F, 54*1024); self.vm_issue(("pf",))
            aops.append((("a", 9, 19), h4t))
        self.gemm(20, 5, F0, aops, [16], burst=self.burst, rate=self.rate_small, cap=self.cap_small, resident=self.resident)

    def phase_wo(self):
        I, C = self.I, self.C
        X2, H, ACC, T = self.X2, self.H, self.ACC, self.GT
        self.lds_bases()
        def pre():
            self.mod_unpack()
            for j in range(5):
                for q in range(2):
                    I(f"v_accvgpr_read_b32 v{T+4}, a{2*j+q}")
                    I(f"v_lshlrev_b32 v{X2+4*j+2*q}, 16, v{T+4}\nv_and_b32 v{X2+4*j+2*q+1}, 0xffff0000, v{T+4}")
        self.small_gemm(self.F_WO, OF, PH_O, [S_TT], 6, pf=[("3", 0)], between=pre)
        self.stamp("wo_mm")
        P = lambda x: f"v[{x}:{x+1}]"
        f = self.fine
        for i in range(0, 20, 2): I(f"v_pk_fma_f32 {P(X2+i)}, {P(self.MS_GA+i)}, {P(ACC+i)}, {P(X2+i)}")
        mu, rs = T+30, T+32
        self.ln_stats(X2, 0, mu, rs, 7, fine=f)
        for i in range(0, 20, 2):
            I(f"v_pk_fma_f32 {P(H+i)}, {P(X2+i)}, {P(rs)}, {P(mu)}")
            I(f"v_pk_fma_f32 {P(H+i)}, {P(H+i)}, {P(self.MS_A2+i)}, {P(self.MS_SB+i)}")
            if i in (0, 8): self.drip(f)
        self.ln_stats(H, 1, mu, rs, 8, fine=f)
        self.drip(f)
        for i in range(0, 20, 2): I(f"v_pk_fma_f32 {P(ACC+i)}, {P(H+i)}, {P(rs)}, {P(mu)}")
        self.pack_tiles(ACC, 5)
        self.tile_base(ST+4, S_TT, 20, L2F)
        self.store_frag(ACC, 5, ST+4, self.S_T5)
        self.publish_drip(PH_L2)
        self.stamp("l2pub")

    def phase_w1(self):
        I = self.I
        self.small_gemm(self.F_W1, L2F, PH_L2, [S_TT], 9, pf=[("3", 1)])
        self.stamp("w1_mm")
        self.gelu(self.ACC, 20, drip=self.gd1)
        self.pack_tiles(self.ACC, 5)
        self.tile_base(ST+4, S_TT, 20, GF)
        self.store_frag(self.ACC, 5, ST+4, self.S_T5)
        lab = self.b.uid("L_hal")
        I(f"""
        s_and_b32 s{ST+6}, s{S_TT}, 15
        s_add_u32 s{ST+6}, s{ST+6}, 1
        s_and_b32 s{ST+7}, s{ST+6}, 14
        s_cmp_eq_u32 s{ST+7}, 0
        s_cbranch_scc0 {lab}
        s_lshr_b32 s{ST+7}, s{S_TT}, 4
        s_lshl_b32 s{ST+7}, s{ST+7}, 1
        s_lshr_b32 s{ST+6}, s{ST+6}, 4
        s_add_u32 s{ST+7}, s{ST+7}, s{ST+6}
        s_mul_i32 s{ST+4}, s{ST+7}, 20480
        s_add_u32 s{ST+4}, s{ST+4}, {HG}
        """)
        self.store_frag(self.ACC, 5, ST+4, self.S_T5, force_sc1=True, count=False)
        I(f"{lab}:")
        self.publish_drip(PH_G, both=True)
        self.stamp("gpub")

    def phase_w2(self):
        I = self.I
        X2, H, ACC, T = self.X2, self.H, self.ACC, self.GT
        I(f"""
        s_sub_u32 s{ST+10}, s{S_TT}, 1
        s_max_i32 s{ST+10}, s{ST+10}, 0
        s_add_u32 s{ST+11}, s{S_TT}, 1
        s_min_u32 s{ST+11}, s{ST+11}, 127
        """)
        self.small_gemm(self.F_W2, GF, PH_G, [S_TT, ST+10, ST+11], 10, shift=True, pf=[("4", 0)])
        self.stamp("w2_mm")
        P = lambda x: f"v[{x}:{x+1}]"
        for i in range(0, 20, 2): I(f"v_pk_add_f32 {P(H+i)}, {P(H+i)}, {P(ACC+i)}")
        mu, rs = T+30, T+32
        self.ln_stats(H, 2, mu, rs, 11, fine=self.fine)
        self.drip(self.fine)
        for i in range(0, 20, 2): I(f"v_pk_fma_f32 {P(ACC+i)}, {P(H+i)}, {P(rs)}, {P(mu)}")
        self.pack_tiles(ACC, 5)
        self.tile_base(ST+4, S_TT, 20, L3F)
        self.store_frag(ACC, 5, ST+4, self.S_T5)
        self.publish_drip(PH_L3)
        self.stamp("l3pub")

    def phase_w3(self):
        I, C = self.I, self.C
        ACC = self.ACC
        m16, t0, skip, rbA, rbB, ttb = ST+10, ST+11, ST+12, ST+13, ST+14, ST+15
        I(f"""
        s_and_b32 s{m16}, s{S_RB}, 1
        s_lshl_b32 s{m16}, s{m16}, 3
        s_add_u32 s{m16}, s{m16}, s{S_M}
        s_mul_i32 s{t0}, s{m16}, 7
        s_sub_u32 s{ST}, s{m16}, 12
        s_max_i32 s{ST}, s{ST}, 0
        s_sub_u32 s{t0}, s{t0}, s{ST}
        s_cmp_ge_u32 s{m16}, 12
        s_cselect_b32 s{skip}, 1, 0
        s_and_b32 s{rbA}, s{S_RB}, 30
        s_add_u32 s{rbB}, s{rbA}, 1
        s_lshl_b32 s{ttb}, s{rbA}, 2
        s_lshl_b32 s{ST}, s{S_WV}, 1
        s_add_u32 s{ttb}, s{ttb}, s{ST}
        """)
        I(f"s_add_u32 s{rbA}, s{ttb}, 1")
        self.phase_entry(PH_L3, [ttb, rbA], 12, self.F_W3, 4 if self.w3split else 7)
        I(f"s_mul_i32 s{self.S_SRC}, s{ttb}, {20*1024}\ns_add_u32 s{self.S_SRC}, s{self.S_SRC}, {L3F}")
        aops = []
        for s in range(20):
            aops.append(self.a_op(0, s, 16, V_L16, self.S_SRC, 0, self.S_AO, self.SPLIT20, self.V_L8))
            aops.append(self.a_op(1, s, 96, V_L16, self.S_SRC, 20*1024, self.S_AO2, self.SPLIT20, self.V_L8))
        if self.use_pf: aops.insert(16, (("a", 9, 8), (lambda: self.pf_op("4", 1))))
        def h4t():
            self.act_touch(H4F, 54*1024); self.vm_issue(("pf",))
        if self.h4t_where == 3: aops.append((("a", 9, 19), h4t))
        if not self.w3split:
            self.gemm(20, 7, self.F_W3, aops, [16, 96], burst=2*self.burst, rate=self.rate_w3)
            self.stamp("w3_mm")
            self.gelu(ACC, 56, drip=self.gd3)
        else:
            self.gemm(20, 4, self.F_W3, aops, [16, 96], burst=2*self.burst, rate=self.rate_w3a, accf=lambda tt, j: ACC + 28*tt + 4*j, post_barrier=False)
            F2 = self.F_W3 + 80
            self.need_units(F2 + 4*3 - 1)
            I("s_barrier")
            self.visible = max(self.visible, F2 + 11)
            self.after_barrier()
            fill = self.collect(lambda: (self.gelu(ACC, 16), self.gelu(ACC+28, 16)))
            self.gemm(20, 3, F2, [], [16, 96], burst=0, rate=self.rate_w3b, accf=lambda tt, j: ACC + 28*tt + 16 + 4*j, filler=fill, fill_n=self.fill_n)
            self.stamp("w3_mm")
            self.gelu(ACC+16, 12, drip=self.gd3)
            self.gelu(ACC+44, 12, drip=self.gd3)
        self.pack_tiles(ACC, 7)
        self.pack_tiles(ACC+28, 7)
        self.tile_base(ST+4, ttb, 54, H4F)
        self.store_frag(ACC, 7, ST+4, t0, skip_last_sreg=skip, force_sc1=(self.h4mode == 2))
        I(f"s_add_u32 s{ST+4}, s{ST+4}, {54*1024}")
        self.store_frag(ACC+28, 7, ST+4, t0, skip_last_sreg=skip, force_sc1=(self.h4mode == 2))
        self.publish_drip(PH_H4)
        self.stamp("h4pub")

    def phase_w4(self):
        I, C = self.I, self.C
        X2, H, ACC, T = self.X2, self.H, self.ACC, self.GT
        rbA, rbB = ST+13, ST+14
        I(f"""
        s_and_b32 s{rbA}, s{S_TT}, 7
        s_lshr_b32 s{rbA}, s{rbA}, 1
        s_and_b32 s{rbB}, s{S_RB}, 30
        s_lshl_b32 s{rbB}, s{rbB}, 2
        s_add_u32 s{rbA}, s{rbA}, s{rbB}
        s_add_u32 s{rbB}, s{rbA}, 4
        """)
        self.phase_entry(PH_H4, [rbA, rbB], 13, self.F_W4, 5, upto=(607 if self.resident else None))
        I(f"s_mul_i32 s{self.S_SRC}, s{S_TT}, {54*1024}\ns_add_u32 s{self.S_SRC}, s{self.S_SRC}, {H4F}")
        if self.wb_early:
            lab = self.b.uid("L_wb")
            I(f"""
            s_lshr_b32 s{ST}, s{S_W}, 3
            s_lshl_b32 s{ST}, s{ST}, 2
            s_add_u32 s{ST}, s{ST}, s{S_WV}
            s_cmp_lg_u32 s{ST}, {self.wb_who}
            s_cbranch_scc1 {lab}
            buffer_wbl2 sc1
            {lab}:
            """)
        aops = [self.a_op(0, s, 16, V_L16, self.S_SRC, 0, self.S_AO, self.SPLIT54, self.V_L8) for s in range(54)]
        self.gemm(54, 5, self.F_W4, aops, [16], burst=self.burst4, rate=self.rate_w4, post_barrier=False, chunk=self.chunk4)
        self.stamp("w4_mm")
        MS = self.WB
        for j in range(5):
            I(f"""
            v_accvgpr_read_b32 v{T+4}, a{self.RAW_GB+2*j}
            v_accvgpr_read_b32 v{T+5}, a{self.RAW_GB+2*j+1}
            v_lshlrev_b32 v{MS+4*j}, 16, v{T+4}
            v_and_b32 v{MS+4*j+1}, 0xffff0000, v{T+4}
            v_lshlrev_b32 v{MS+4*j+2}, 16, v{T+5}
            v_and_b32 v{MS+4*j+3}, 0xffff0000, v{T+5}
            """)
        for i in range(0, 20, 2):
            I(f"v_pk_add_f32 v[{ACC+i}:{ACC+i+1}], v[{ACC+i}:{ACC+i+1}], v[{H+i}:{H+i+1}]")
            I(f"v_pk_fma_f32 v[{ACC+i}:{ACC+i+1}], v[{ACC+i}:{ACC+i+1}], v[{MS+i}:{MS+i+1}], v[{X2+i}:{X2+i+1}]")
        self.srd(S_A, P_OUT, 2048*1280)
        I(f"""
        s_lshl_b32 s{ST}, s{S_TT}, 4
        v_add_u32 v{T+4}, s{ST}, v{V_T}
        v_mul_u32_u24 v{T+4}, 1280, v{T+4}
        v_lshl_add_u32 v{T+4}, v{V_G}, 3, v{T+4}
        s_mul_i32 s{ST}, s{S_M}, 160
        """)
        self.pack_tiles(ACC, 5)
        for j in range(5):
            a = ACC + 2*j
            I(f"buffer_store_dwordx2 v[{a}:{a+1}], v{T+4}, {sr(S_A)}, s{ST} offen offset:{32*j}{' sc1' if self.out_sc1 else ''}")
        self.stamp("out")

    def l2_prefetch(self, which, part):
        I = self.I
        T = 246
        rbl = ST + 4
        I(f"v_lshlrev_b32 v{T}, 7, v{V_L}\ns_and_b32 s{rbl}, s{S_RB}, 3")
        if which == "A":
            base, start, chunk, shl = self.S_WA, 96*1024, 6656, 0
        elif which == "3":
            base, start, chunk, shl = self.S_W3, 0, 9216, 1
        else:
            base, start, chunk, shl = self.S_W4, 0, 8704, 0
        I(f"""
        s_lshr_b32 s{ST+5}, s{rbl}, {shl}
        s_lshl_b32 s{ST+5}, s{ST+5}, 2
        s_add_u32 s{ST+5}, s{ST+5}, s{S_WV}
        s_lshl_b32 s{ST+5}, s{ST+5}, 1
        s_add_u32 s{ST+5}, s{ST+5}, {part}
        s_mul_i32 s{ST+5}, s{ST+5}, {chunk}
        s_add_u32 s{ST+5}, s{ST+5}, s{base}
        s_sub_u32 s{ST+5}, s{ST+5}, s{self.S_LW}
        s_add_u32 s{ST+5}, s{ST+5}, {start}
        """)
        if chunk < 8192:
            I(f"v_cmp_gt_u32 vcc, {chunk//128}, v{V_L}\ns_and_saveexec_b64 s[{ST+6}:{ST+7}], vcc")
        I(f"buffer_load_dword a254, v{T}, {sr(S_WS)}, s{ST+5} offen")
        if chunk < 8192:
            I(f"s_mov_b64 exec, s[{ST+6}:{ST+7}]")
        if chunk > 8192:
            I(f"s_add_u32 s{ST+5}, s{ST+5}, 8192\nv_cmp_gt_u32 vcc, {(chunk-8192)//128}, v{V_L}\ns_and_saveexec_b64 s[{ST+6}:{ST+7}], vcc")
            I(f"buffer_load_dword a253, v{T}, {sr(S_WS)}, s{ST+5} offen")
            I(f"s_mov_b64 exec, s[{ST+6}:{ST+7}]")
        return 2 if chunk > 8192 else 1

    def tlb_touch(self):
        I = self.I
        n = (WS_END + (1 << 20) - 1) >> 20
        I(f"""
        v_lshlrev_b32 v245, 20, v{V_L}
        v_cmp_gt_u32 vcc, {n}, v{V_L}
        s_and_saveexec_b64 s[{ST+6}:{ST+7}], vcc
        buffer_load_dword a255, v245, {sr(S_WS)}, 0 offen
        s_mov_b64 exec, s[{ST+6}:{ST+7}]
        """)

    def mall_touch(self, base, nbytes):
        I = self.I
        per_wave = -(-nbytes // 1024 // 128) * 128
        lines = per_wave // 128
        assert lines <= 128
        I(f"""
        v_lshlrev_b32 v245, 7, v{V_L}
        s_lshl_b32 s{ST+5}, s{S_W}, 2
        s_add_u32 s{ST+5}, s{ST+5}, s{S_WV}
        s_mul_i32 s{ST+5}, s{ST+5}, {per_wave}
        s_add_u32 s{ST+5}, s{ST+5}, {base}
        """)
        n0 = min(lines, 64)
        if n0 < 64: I(f"v_cmp_gt_u32 vcc, {n0}, v{V_L}\ns_and_saveexec_b64 s[{ST+6}:{ST+7}], vcc")
        I(f"buffer_load_dword a255, v245, {sr(S_WS)}, s{ST+5} offen")
        if n0 < 64: I(f"s_mov_b64 exec, s[{ST+6}:{ST+7}]")

    def act_touch(self, base, per_tile):
        I = self.I
        per_wave = 16*per_tile // 128
        lines = per_wave // 128
        I(f"""
        v_lshlrev_b32 v245, 7, v{V_L}
        s_lshr_b32 s{ST+5}, s{S_RB}, 2
        s_mul_i32 s{ST+5}, s{ST+5}, {16*per_tile}
        s_and_b32 s{ST+6}, s{S_RB}, 3
        s_lshl_b32 s{ST+6}, s{ST+6}, 3
        s_add_u32 s{ST+6}, s{ST+6}, s{S_M}
        s_lshl_b32 s{ST+6}, s{ST+6}, 2
        s_add_u32 s{ST+6}, s{ST+6}, s{S_WV}
        s_mul_i32 s{ST+6}, s{ST+6}, {per_wave}
        s_add_u32 s{ST+5}, s{ST+5}, s{ST+6}
        s_add_u32 s{ST+5}, s{ST+5}, {base}
        """)
        n0 = min(lines, 64)
        if n0 < 64: I(f"v_cmp_gt_u32 vcc, {n0}, v{V_L}\ns_and_saveexec_b64 s[{ST+6}:{ST+7}], vcc")
        I(f"buffer_load_dword a255, v245, {sr(S_WS)}, s{ST+5} offen")
        if n0 < 64: I(f"s_mov_b64 exec, s[{ST+6}:{ST+7}]")

    def sync_touch(self):
        I = self.I
        l3 = self.b.uid("L_st3"); lj = self.b.uid("L_stj")
        I(f"""
        s_cmp_eq_u32 s{S_WV}, 3
        s_cbranch_scc1 {l3}
        v_lshlrev_b32 v245, 7, v{V_L}
        s_mul_i32 s{ST+5}, s{S_WV}, {STAT_SZ}
        s_lshl_b32 s{ST+6}, s{S_RB}, 13
        s_add_u32 s{ST+5}, s{ST+5}, s{ST+6}
        s_add_u32 s{ST+5}, s{ST+5}, {STAT}
        buffer_load_dword a255, v245, {sr(S_WS)}, s{ST+5} offen
        s_branch {lj}
        {l3}:
        v_lshrrev_b32 v245, 4, v{V_L}
        v_lshlrev_b32 v245, 14, v245
        v_and_b32 v244, 15, v{V_L}
        v_lshl_add_u32 v245, v244, 7, v245
        s_and_b32 s{ST+5}, s{S_RB}, 28
        s_lshl_b32 s{ST+5}, s{ST+5}, 9
        s_add_u32 s{ST+5}, s{ST+5}, {CFLAG + CF_LOC}
        buffer_load_dword a255, v245, {sr(S_WS)}, s{ST+5} offen
        s_add_u32 s{ST+5}, s{ST+5}, {4*CF_PH}
        v_lshlrev_b32 v245, 7, v244
        buffer_load_dword a255, v245, {sr(S_WS)}, s{ST+5} offen
        {lj}:
        """)

    def pf_op(self, which, part):
        n = self.l2_prefetch(which, part)
        for i in range(n): self.vm_issue(("pf",))

    def hook_body(self, hooks, k):
        if self.detail == 1: self.stamp(f"h{k}i")
        hooks[k]()
        if self.detail == 1: self.stamp(f"h{k}o")

    L_KV = 108*1024
    S_INC = 75
    S_SLOW = 77
    def kv_dma(self, g):
        I = self.I
        I(f"""
        s_mul_i32 s{ST+5}, s{S_WV}, {KVT}
        s_add_u32 s{ST+4}, s{ST+5}, {self.L_KV + (4*g % 16)*KVT}
        s_mov_b32 m0, s{ST+4}
        s_add_u32 s{ST+5}, s{ST+5}, {KV + 4*g*KVT}
        buffer_load_dwordx4 v{V_L16}, {sr(S_WS)}, s{ST+5} offen lds
        buffer_load_dwordx4 v{V_L16}, {sr(S_WS)}, s{ST+5} offen offset:1024 lds
        buffer_load_dwordx4 v{V_L16}, {sr(S_WS)}, s{ST+5} offen offset:2048 lds
        s_mov_b64 exec, 0xffff
        buffer_load_dwordx4 v{V_L16}, {sr(S_WS)}, s{ST+5} offen offset:3072 lds
        s_mov_b64 exec, -1
        """)

    L_DUMMY = 104*1024
    L_MODW = 96*1024
    def slot_setup(self, kind, arg=0):
        I = self.I
        DS = self.S_DS
        if kind == "unit":
            I(f"s_add_u32 s{DS}, s{self.S_WA}, {(16*arg-16)*1024 & 0xffffffff}\ns_add_u32 s76, s{self.S_LW}, {(16*arg-16)*1024 & 0xffffffff}\ns_mov_b32 s{self.S_INC}, 16384")
            return
        if kind == "act":
            base, per_tile, part = arg
            per_wave = 16*per_tile // 128
            I(f"""
            s_lshr_b32 s{DS}, s{S_RB}, 2
            s_mul_i32 s{DS}, s{DS}, {16*per_tile}
            s_and_b32 s{ST+6}, s{S_RB}, 3
            s_lshl_b32 s{ST+6}, s{ST+6}, 3
            s_add_u32 s{ST+6}, s{ST+6}, s{S_M}
            s_lshl_b32 s{ST+6}, s{ST+6}, 2
            s_add_u32 s{ST+6}, s{ST+6}, s{S_WV}
            s_mul_i32 s{ST+6}, s{ST+6}, {per_wave}
            s_add_u32 s{DS}, s{DS}, s{ST+6}
            s_add_u32 s{DS}, s{DS}, {base + 4096*part}
            """)
        elif kind == "mod":
            I(f"s_mul_i32 s{DS}, s{S_M}, 320\ns_add_u32 s{DS}, s{DS}, {MODG + (2 + 2*arg)*2560}\ns_mov_b32 s76, {self.L_MODW + 4096*arg}\ns_mov_b32 s{self.S_INC}, 0")
            return
        elif kind == "wsa":
            I(f"""
            s_and_b32 s{ST+6}, s{S_RB}, 3
            s_lshl_b32 s{ST+6}, s{ST+6}, 2
            s_add_u32 s{ST+6}, s{ST+6}, s{S_WV}
            s_mul_i32 s{ST+6}, s{ST+6}, {8*1024}
            s_add_u32 s{DS}, s{self.S_WA}, s{ST+6}
            s_sub_u32 s{DS}, s{DS}, s{self.S_LW}
            s_add_u32 s{DS}, s{DS}, {96*1024 + 4096*arg}
            """)
        else:
            I(f"s_mov_b32 s{DS}, {KV}")
        I(f"s_mov_b32 s76, {self.L_DUMMY}")

    def attn_hooks(self):
        I = self.I
        J = {}
        J[15] = (lambda: self.rl_issue(1), 0)
        def j13():
            I("s_waitcnt vmcnt(16)")
            self.rl_store(0); self.rl_store(1)
            self.sync_touch()
        J[13] = (j13, 1)
        def j11():
            I("s_waitcnt vmcnt(16)")
            self.rl_flag()
        J[11] = (j11, 0)
        def j9(): self.xid_issue(); self.rl_poll_issue(); self.ring_regs()
        J[9] = (j9, 1)
        def j8():
            I("s_waitcnt vmcnt(8)")
            self.rl_poll_eval()
        J[8] = (j8, 0)
        J[2] = (self.xid_eval, 0)
        if self.pfA:
            J[7] = (lambda: self.l2_prefetch("A", 0), 1); J[5] = (lambda: self.l2_prefetch("A", 1), 1)
        if self.pf3:
            J[6] = (lambda: self.l2_prefetch("3", 0), 2); J[4] = (lambda: self.l2_prefetch("3", 1), 2)
        if self.pf4:
            J[3] = (lambda: (self.l2_prefetch("4", 0), self.l2_prefetch("4", 1)), 2)
        SL = {16: ("act", (OF, 20480, 0)), 15: ("act", (L2F, 20480, 0)), 14: ("none", 0), 13: ("act", (H4F, 54*1024, 0)), 11: ("act", (H4F, 54*1024, 1)),
              9: ("none", 0), 8: ("unit", 0), 2: ("mod", 0), 1: ("mod", 1)}
        if self.h4mode >= 1:
            del SL[13]; del SL[11]
        if not ALIAS: SL[14] = ("act", (GF, 20480, 0)); SL[13] = ("act", (L3F, 20480, 0))
        H = {}
        def mk(k):
            def f():
                if k in J and not self.nojobs: J[k][0]()
                if k in SL: self.slot_setup(*(SL[k] if not self.nojobs else ("none", 0)))
            return f
        for k in range(16, 0, -1):
            if k in J or k in SL: H[k] = mk(k)
        return H

    def ring_state_after_attn(self):
        self.units_issued = 6
        self.units_queued = 6
        self.pend = []
        self.consumed = -1
        self.vmq = []

    def build(self, force_slow=False, force_global=False):
        I = self.I
        self.force_global = force_global
        phases = [self.phase_start, self.phase_kv, self.phase_q, self.phase_kvwait,
                  lambda: self.phase_attn(force_slow), self.phase_wo, self.phase_w1, self.phase_w2, self.phase_w3, self.phase_w4]
        self.prologue()
        for i, p in enumerate(phases):
            if i >= self.stop_after: break
            p()
        if self.dbg_time:
            lab = self.b.uid("L_dt")
            self.srd(S_C, P_DBG, 256)
            I(f"""
            s_and_b32 s{ST}, s{S_W}, 63
            s_cmp_lg_u32 s{ST}, 63
            s_cbranch_scc1 {lab}
            s_cmp_lg_u32 s{S_WV}, 0
            s_cbranch_scc1 {lab}
            s_memrealtime s[{ST+2}:{ST+3}]
            s_lshr_b32 s{ST}, s{S_W}, 6
            s_lshl_b32 s{ST}, s{ST}, 2
            s_add_u32 s{ST}, s{ST}, 32
            s_waitcnt lgkmcnt(0)
            s_sub_u32 s{ST+2}, s{ST+2}, s{S_TAG}
            v_mov_b32 v254, s{ST+2}
            v_mov_b32 v253, s{ST}
            buffer_store_dword v254, v253, {sr(S_C)}, 0 offen sc1
            {lab}:
            """)
        I(f"""
        s_waitcnt vmcnt(0) lgkmcnt(0)
        s_endpgm
        L_fail:
        """)
        self.srd(S_C, P_DBG, 256)
        I(f"""
        v_mov_b32 v254, s{S_ERR}
        v_mov_b32 v255, s{S_W}
        v_mov_b32 v253, 16
        buffer_store_dwordx2 v[254:255], v253, {sr(S_C)}, 0 offen sc1
        s_waitcnt vmcnt(0)
        L_end:
        s_endpgm
        L_code_end:
        """)
        text, n = finalize(self.b, check=not (self.x_nords or self.x_nokv or self.noslot), align=bool(self.align))
        hdr = open("adaLN_cond__grouped_kv_mqa__mixer_s_mlp__prompt.s.ref").read().split("; Override launch")[0]
        lines = [l for l in hdr.strip().split("\n")]
        lines.append(f"; @launch grid=(256,1,1) block=(256,1,1) lds={LDS_SZ}")
        return kernel_file(lines, [(NAME, text, 512, 256, 102)]), n

if __name__ == "__main__":
    import argparse
    ap = argparse.ArgumentParser()
    ap.add_argument("-o", default="adaLN_cond__grouped_kv_mqa__mixer_s_mlp__prompt.s")
    ap.add_argument("--stop", type=int, default=99)
    ap.add_argument("--stamps", action="store_true")
    ap.add_argument("--slow", action="store_true")
    ap.add_argument("--detail", type=int, default=-1)
    ap.add_argument("--cap", type=int, default=99)
    ap.add_argument("--set", action="append", default=[])
    ap.add_argument("--global", dest="glob", action="store_true")
    a = ap.parse_args()
    g = Gen(stop_after=a.stop, stamps=a.stamps)
    g.detail = a.detail
    g.cap_small = a.cap
    for kv in a.set:
        k_, v_ = kv.split('=')
        setattr(g, k_, float(v_) if '.' in v_ else int(v_))
    txt, n = g.build(force_slow=a.slow, force_global=a.glob)
    open(a.o, "w").write(txt)
    print("wrote", a.o, len(txt), "bytes; auto nops:", n, "stamps:", getattr(g, "stamp_names", None))
```

```python
import sys
from common import *

import struct
def f2u(x): return struct.unpack("<I", struct.pack("<f", x))[0]

NAME = "adaLN_cond__grouped_kv_mqa__mixer_s_mlp__prompt_kernel"
MODG   = 0x000000
KVFLAG = 0x004000
RLFLAG = 0x008000
STAT   = 0x020000
STAT_SZ = 32*8*64*16
KV     = 0x100000
KVT    = 3328
OF     = 0x200000
ACT_SZ = 128*20*1024
L2F    = OF + ACT_SZ
import os
ALIAS = os.environ.get('NOALIAS') is None
GF     = OF if ALIAS else L2F + ACT_SZ
L3F    = L2F if ALIAS else L2F + 2*ACT_SZ
H4F    = L2F + 3*ACT_SZ
H4_SZ  = 128*54*1024
WSA    = H4F + H4_SZ
WSA_M  = 304*1024
W3S    = WSA + 8*WSA_M
W3S_M  = 144*1024
W4S    = W3S + 16*W3S_M
W4S_M  = 272*1024
HG     = W4S + 8*W4S_M
XIDG   = HG + 16*20*1024
CFLAG  = XIDG + 4096
CF_LOC = 8*128*128
CF_PH  = 128*128
WS_END = CFLAG + 2*CF_LOC + 64*1024
DBGA   = WS_END
WS_REC = 0x4000000
PH_O, PH_L2, PH_G, PH_L3, PH_H4 = 0, 1, 2, 3, 4

L_WQ   = 0
L_WK   = 102400
L_WM   = 102400
L_SC   = 143360
L_MOD  = 144640
L_QS   = 149760
L_MISC = 161024
LDS_SZ = 163840
L_RL   = 0
L_W    = 0

S_WS = 4
S_A  = 8
S_B  = 12
S_C  = 16
S_TAG = 20
S_WV, S_M, S_RB, S_W = 22, 23, 24, 25
S_T0 = 26
S_TT = 27
S_ERR = 28
S_FAST = 3
P_X, P_WQ, P_WK, P_WV, P_WO, P_BX, P_W1, P_W2, P_W3, P_W4, P_C, P_WM, P_OUT, P_DBG, P_WS = [32 + 2*i for i in range(15)]
ST = 62

def sr(b, n=4): return f"s[{b}:{b+n-1}]"
def vr(b, n=4): return f"v[{b}:{b+n-1}]" if n > 1 else f"v{b}"
def ar(b, n=4): return f"a[{b}:{b+n-1}]" if n > 1 else f"a{b}"

V_L, V_T, V_G, V_L16 = 0, 1, 2, 3

TIMEOUT = 400000

class Gen:
    def __init__(self, stop_after=99, stamps=False):
        self.b = Builder()
        self.stop_after = stop_after
        self.stamps = stamps
        self.nstamp = 0
        self.detail = -1
        self.nojobs = 0
        self.dbg_time = 0
        self.align = 1
        self.x_nobar = 0
        self.x_nokv = 0
        self.x_nords = 0
        self.noslot = 0
        self.in_slow = False
        self.cap_small = 99
        self.burst = 6
        self.rate_small = 1.3
        self.rate_w3 = 3.5
        self.rate_w4 = 1.6
        self.epi_drip = 8
        self.post_drip = 0
        self.fine = 0
        self.h4mode = 2
        self.wb_early = 0
        self.wb_who = 0
        self.out_sc1 = 0
        self.wq_touch = 1
        self.w3split = 0
        self.rate_w3a = 2.2
        self.rate_w3b = 1.5
        self.fill_n = 2
        self.pfA = 1
        self.pf4 = 0
        self.post_drip2 = 0
        self.post_drip3 = 0
        self.res3 = 0
        self.w4defer = 0
        self.shadow_f = 3
        self.shadow_s = 3
        self.resident = 0
        self.chunk4 = 4
        self.pub_after = 0
        self.visible = -1
        self.epi_drip2 = 6
        self.gd1 = 1
        self.gd3 = 2
        self.burst4 = 10
        self.use_pf = 0
        self.tlb_warm = 0
        self.touch_act = 0
        self.h4t_where = 0
        self.use_mall = 0
        self.pf3 = 0
        self.pub_drip = 0
    def I(self, t): self.b.I(t)
    def C(self, t): self.b.C(t)

    def srd(self, s, ptr, nbytes, add=0):
        if add:
            self.I(f"s_add_u32 s{s}, s{ptr}, {add}\ns_addc_u32 s{s+1}, s{ptr+1}, 0")
        else:
            self.I(f"s_mov_b32 s{s}, s{ptr}\ns_mov_b32 s{s+1}, s{ptr+1}")
        self.I(f"s_mov_b32 s{s+2}, {nbytes}\ns_mov_b32 s{s+3}, 0x20000")

    def stamp(self, name):
        if not self.stamps: return
        k = self.nstamp; self.nstamp += 1
        lab = self.b.uid("L_st")
        self.C(f"stamp {k}: {name}")
        self.I(f"""
        s_cmp_lg_u32 s{S_WV}, 0
        s_cbranch_scc1 {lab}
        s_memrealtime s[100:101]
        s_memtime s[96:97]
        s_lshl_b32 s99, s{S_W}, 11
        s_add_u32 s99, s99, {DBGA + 16*k}
        s_waitcnt lgkmcnt(0)
        v_mov_b32 v252, s100
        v_mov_b32 v253, s101
        v_mov_b32 v254, s96
        v_mov_b32 v255, s97
        v_mov_b32 v251, s99
        buffer_store_dwordx4 v[252:255], v251, {sr(S_WS)}, 0 offen
        s_nop 1
        {lab}:
        """)
        self.stamp_names = getattr(self, "stamp_names", []) + [name]

    def spin_tail(self, cnt, loop, code):
        self.I(f"""
        s_sub_u32 s{cnt}, s{cnt}, 1
        s_cmp_lg_u32 s{cnt}, 0
        s_cbranch_scc1 {loop}
        s_mov_b32 s{S_ERR}, {code}
        s_branch L_fail
        """)

    def get_tag(self):
        lp = self.b.uid("L_tag"); ok = self.b.uid("L_tagok")
        self.srd(S_C, P_DBG, 256)
        self.I(f"""
        s_mov_b32 s{ST}, {TIMEOUT}
        v_mov_b32 v252, 0
        {lp}:
        buffer_load_dwordx2 v[254:255], v252, {sr(S_C)}, 0 offen sc1
        s_waitcnt vmcnt(0)
        v_readfirstlane_b32 s{S_TAG}, v254
        v_readfirstlane_b32 s{S_TAG+1}, v255
        s_cmp_lg_u32 s{S_TAG}, 0
        s_cbranch_scc1 {ok}
        """)
        self.spin_tail(ST, lp, 1)
        self.I(f"{ok}:")

    def reduce_g(self, regs, tmp, op="v_add_f32"):
        for sw in ("v_permlane16_swap_b32", "v_permlane32_swap_b32"):
            for i, r in enumerate(regs):
                self.I(f"v_mov_b32 v{tmp+i}, v{r}")
            for i, r in enumerate(regs):
                self.I(f"{sw} v{r}, v{tmp+i}")
            for i, r in enumerate(regs):
                self.I(f"{op} v{r}, v{r}, v{tmp+i}")

    def prologue(self):
        I = self.I
        I(f"""
        s_cmp_ge_u32 s2, 256
        s_cbranch_scc1 L_end
        s_load_dwordx16 s[32:47], s[0:1], 0
        s_load_dwordx8 s[48:55], s[0:1], 64
        s_load_dwordx4 s[56:59], s[0:1], 96
        s_load_dwordx2 s[60:61], s[0:1], 112
        v_lshrrev_b32 v1, 6, v0
        v_and_b32 v{V_L}, 63, v0
        v_readfirstlane_b32 s{S_WV}, v1
        v_and_b32 v{V_T}, 15, v{V_L}
        v_lshrrev_b32 v{V_G}, 4, v{V_L}
        v_lshlrev_b32 v{V_L16}, 4, v{V_L}
        s_mov_b32 s{S_W}, s2
        s_and_b32 s{ST}, s2, 7
        s_lshr_b32 s{ST+1}, s2, 3
        s_and_b32 s{S_M}, s{ST+1}, 7
        s_lshr_b32 s{ST+1}, s{ST+1}, 3
        s_lshl_b32 s{ST}, s{ST}, 2
        s_add_u32 s{S_RB}, s{ST}, s{ST+1}
        s_lshl_b32 s{S_T0}, s{S_RB}, 6
        s_lshl_b32 s{S_TT}, s{S_RB}, 2
        s_add_u32 s{S_TT}, s{S_TT}, s{S_WV}
        s_mov_b32 s{S_ERR}, 0
        """)
        self.C("request the kernel's own code into this XCD's L2: workgroup j of the 32 in a row group takes lines 16j..16j+15 (wave 0)")
        labc = self.b.uid("L_cp")
        I(f"""
        s_cmp_lg_u32 s{S_WV}, 0
        s_cbranch_scc1 {labc}
        s_getpc_b64 s[{ST+2}:{ST+3}]
        L_pcref:
        s_lshr_b32 s{ST+4}, s2, 3
        s_lshl_b32 s{ST+4}, s{ST+4}, 11                       ; 16 lines * 128 B
        v_lshlrev_b32 v4, 7, v{V_L}
        v_add_u32 v4, s{ST+4}, v4
        v_cmp_gt_u32 vcc, L_code_end-L_pcref-4, v4
        s_and_b64 vcc, vcc, 0xffff
        s_and_saveexec_b64 s[{ST+4}:{ST+5}], vcc
        s_cbranch_execz {labc}_x
        global_load_dword a252, v4, s[{ST+2}:{ST+3}]
        {labc}_x:
        s_mov_b64 exec, s[{ST+4}:{ST+5}]
        {labc}:
        s_waitcnt lgkmcnt(0)
        """)
        self.srd(S_WS, P_WS, WS_REC)
        lab = self.b.uid("L_non")
        self.srd(S_C, P_DBG, 256)
        I(f"""
        s_lshl_b32 s{ST}, s2, 2
        s_add_u32 s{ST}, s{ST}, s{S_WV}
        s_cmp_lg_u32 s{ST}, 0
        s_cbranch_scc1 {lab}
        s_memrealtime s[{S_TAG}:{S_TAG+1}]
        s_waitcnt lgkmcnt(0)
        s_or_b32 s{S_TAG}, s{S_TAG}, 1
        v_mov_b32 v254, s{S_TAG}
        v_mov_b32 v255, s{S_TAG+1}
        v_mov_b32 v252, 0
        s_mov_b64 exec, 1
        buffer_store_dwordx2 v[254:255], v252, {sr(S_C)}, 0 offen sc1
        s_mov_b64 exec, -1
        {lab}:
        """)
        self.stamp("start")

    XF = 4
    XH = 84
    TMP = 244

    def tag_issue(self):
        self.srd(S_C, P_DBG, 256)
        self.I(f"v_mov_b32 v241, 0\nbuffer_load_dwordx2 v[242:243], v241, {sr(S_C)}, 0 offen sc1")

    def tag_eval(self):
        I = self.I
        lp = self.b.uid("L_tag"); ok = self.b.uid("L_tagok")
        I(f"""
        s_mov_b32 s{ST}, {TIMEOUT}
        {lp}:
        v_readfirstlane_b32 s{S_TAG}, v242
        v_readfirstlane_b32 s{S_TAG+1}, v243
        s_cmp_lg_u32 s{S_TAG}, 0
        s_cbranch_scc1 {ok}
        """)
        self.tag_issue()
        I("s_waitcnt vmcnt(0)")
        self.spin_tail(ST, lp, 1)
        I(f"{ok}:")

    S_PROD2 = 80
    S_PROD, S_P = 80, 81

    LWM, LSC, LMI = L_WM, L_SC, L_MISC + 64
    def mod_dma(self, cdst=None):
        I = self.I
        TMP = self.MT
        self.srd(S_B, P_C, 1280)
        I(f"""
        s_mul_i32 s{ST+4}, s{S_WV}, 320
        v_lshlrev_b32 v{TMP+2}, 3, v{V_L}
        buffer_load_dwordx2 {cdst or f'v[{TMP+4}:{TMP+5}]'}, v{TMP+2}, {sr(S_B)}, s{ST+4} offen
        """)
        self.srd(S_A, P_WM, 640*7680)
        I(f"""
        v_lshrrev_b32 v{TMP}, 2, v{V_L}
        v_mul_u32_u24 v{TMP}, 7680, v{TMP}
        v_and_b32 v{TMP+1}, 3, v{V_L}
        v_lshl_add_u32 v{TMP}, v{TMP+1}, 4, v{TMP}
        s_mul_i32 s{ST+1}, s{S_WV}, {160*7680}
        s_lshl_b32 s{ST+2}, s{self.S_P}, 6                   ; p*64 bytes
        s_add_u32 s{ST+1}, s{ST+1}, s{ST+2}
        s_mul_i32 s{ST+3}, s{S_WV}, {160*64}
        s_add_u32 s{ST+3}, s{ST+3}, {self.LWM}
        """)
        for i in range(10):
            I(f"""
            s_mov_b32 m0, s{ST+3}
            s_add_u32 s{ST+3}, s{ST+3}, 1024
            buffer_load_dwordx4 v{TMP}, {sr(S_A)}, s{ST+1} offen lds
            s_add_u32 s{ST+1}, s{ST+1}, {16*7680}
            """)

    MT2 = 244
    MT3 = 228
    MT = 228
    def mod_gemv(self, W, wait_c, wait_w, wait_tag, BBr=None):
        I = self.I
        TMP = self.MT
        T = TMP + 4
        I(f"""
        s_waitcnt vmcnt({wait_c})
        v_lshlrev_b32 v{TMP+6}, 16, v{T}
        v_and_b32 v{TMP+7}, 0xffff0000, v{T}
        v_lshlrev_b32 v{TMP+8}, 16, v{T+1}
        v_and_b32 v{TMP+9}, 0xffff0000, v{T+1}
        """)
        for i in range(4):
            r = TMP + 6 + i
            I(f"""
            v_mul_f32 v{TMP+3}, 0xbfb8aa3b, v{r}
            v_exp_f32 v{TMP+3}, v{TMP+3}
            v_add_f32 v{TMP+3}, 1.0, v{TMP+3}
            v_rcp_f32 v{TMP+3}, v{TMP+3}
            v_mul_f32 v{r}, v{r}, v{TMP+3}
            """)
        va, vb, WA, BB, ACC = W, W+1, W+4, W+44, W+64
        if BBr is not None: BB, ACC = BBr, W+44
        I(f"""
        v_cvt_pk_bf16_f32 v{T}, v{TMP+6}, v{TMP+7}
        v_cvt_pk_bf16_f32 v{T+1}, v{TMP+8}, v{TMP+9}
        s_mul_i32 s{ST+4}, s{S_WV}, 320
        s_add_u32 s{ST+4}, s{ST+4}, {self.LSC}
        v_lshlrev_b32 v{TMP+2}, 3, v{V_L}
        v_add_u32 v{TMP+2}, s{ST+4}, v{TMP+2}
        s_mov_b32 exec_hi, 0xff
        ds_write_b64 v{TMP+2}, v[{T}:{T+1}]
        s_mov_b32 exec_hi, -1
        v_lshrrev_b32 v{va}, 2, v{V_T}
        v_lshl_add_u32 v{va}, v{V_G}, 2, v{va}
        v_lshlrev_b32 v{va}, 6, v{va}                       ; 64*(4g+(i>>2))
        v_and_b32 v{vb}, 3, v{V_T}
        v_lshl_add_u32 v{va}, v{vb}, 3, v{va}
        s_mul_i32 s{ST}, s{S_WV}, {160*64}
        s_add_u32 s{ST}, s{ST}, {self.LWM}
        v_add_u32 v{va}, s{ST}, v{va}
        v_lshlrev_b32 v{vb}, 3, v{V_G}
        v_add_u32 v{vb}, s{ST+4}, v{vb}
        s_waitcnt vmcnt({wait_w}) lgkmcnt(0)
        """)
        for s_ in range(5):
            I(f"ds_read_b64 v[{BB+4*s_}:{BB+4*s_+1}], v{vb} offset:{64*s_}\nds_read_b64 v[{BB+4*s_+2}:{BB+4*s_+3}], v{vb} offset:{64*s_+32}")
        for s_ in range(5):
            for tl in range(2):
                W_ = WA + 8*s_ + 4*tl
                I(f"ds_read_b64_tr_b16 v[{W_}:{W_+1}], v{va} offset:{2048*s_+32*tl}\nds_read_b64_tr_b16 v[{W_+2}:{W_+3}], v{va} offset:{2048*s_+32*tl+1024}")
        I("s_waitcnt lgkmcnt(0)")
        for s_ in range(5):
            for tl in range(2):
                I(f"v_mfma_f32_16x16x32_bf16 {vr(ACC+4*tl)}, {vr(WA+8*s_+4*tl)}, {vr(BB+4*s_)}, {'0' if s_ == 0 else vr(ACC+4*tl)}")
        I(f"""
        s_lshl_b32 s{ST}, s{S_WV}, 7
        s_add_u32 s{ST}, s{ST}, {self.LMI}
        v_lshlrev_b32 v{va}, 4, v{V_G}
        v_add_u32 v{va}, s{ST}, v{va}
        v_cmp_eq_u32 vcc, 0, v{V_T}
        s_and_saveexec_b64 s[{ST+4}:{ST+5}], vcc
        ds_write_b128 v{va}, {vr(ACC)}
        ds_write_b128 v{va}, {vr(ACC+4)} offset:64
        s_mov_b64 exec, s[{ST+4}:{ST+5}]
        s_waitcnt lgkmcnt(0)
        s_barrier
        """)
        lab_gd = self.b.uid("L_gd")
        I(f"s_cmp_lg_u32 s{S_WV}, 0\ns_cbranch_scc1 {lab_gd}")
        I(f"""
        v_lshlrev_b32 v{va}, 4, v{V_L}
        v_and_b32 v{va}, 0x7f, v{va}
        v_add_u32 v{va}, {self.LMI}, v{va}
        ds_read_b128 {vr(WA)}, v{va}
        ds_read_b128 {vr(WA+4)}, v{va} offset:128
        ds_read_b128 {vr(WA+8)}, v{va} offset:256
        ds_read_b128 {vr(WA+12)}, v{va} offset:384
        """)
        if wait_tag is not None:
            I(f"s_waitcnt vmcnt({wait_tag})")
            self.tag_eval()
        I("s_waitcnt lgkmcnt(0)")
        for r in range(4):
            I(f"v_add_f32 v{WA+r}, v{WA+r}, v{WA+4+r}\nv_add_f32 v{WA+8+r}, v{WA+8+r}, v{WA+12+r}\nv_add_f32 v{WA+r}, v{WA+r}, v{WA+8+r}")
        I(f"""
        v_cvt_pk_bf16_f32 v{ACC+4}, v{WA}, v{WA+1}
        v_cvt_pk_bf16_f32 v{ACC+5}, v{WA+2}, v{WA+3}
        v_mov_b32 v{ACC+6}, s{S_TAG}
        v_mov_b32 v{ACC+7}, s{S_TAG+1}
        s_lshl_b32 s{ST}, s{self.S_P}, 7                     ; p*8 granules*16 B
        s_mov_b64 exec, 0xff
        buffer_store_dwordx4 {vr(ACC+4)}, v{V_L16}, {sr(S_WS)}, s{ST} offen offset:{MODG} sc1
        s_mov_b64 exec, -1
        {lab_gd}:
        """)

    def line_touch(self, srd, voff, soff, nl):
        I = self.I
        if nl < 64: I(f"v_cmp_gt_u32 vcc, {nl}, v{V_L}\ns_and_saveexec_b64 s[{ST+6}:{ST+7}], vcc")
        I(f"buffer_load_dword a255, v{voff}, {sr(srd)}, s{soff} offen")
        if nl < 64: I(f"s_mov_b64 exec, s[{ST+6}:{ST+7}]")

    def wq_ops(self):
        I = self.I
        V = 239
        so, lo = ST+12, ST+13
        self.srd(S_A, P_WQ, 640*1280)
        I(f"""
        v_mul_u32_u24 v{V}, 205, v{V_L}
        v_lshrrev_b32 v{V}, 11, v{V}
        v_mul_u32_u24 v{V-1}, 10, v{V}
        v_sub_u32 v{V-1}, v{V_L}, v{V-1}
        v_mul_u32_u24 v{V}, 1280, v{V}
        v_lshl_add_u32 v{V}, v{V-1}, 4, v{V}
        s_mul_i32 s{so}, s{S_M}, 160
        s_mul_i32 s{lo}, s{S_WV}, {6*1280}
        s_add_u32 s{so}, s{so}, s{lo}
        s_mul_i32 s{lo}, s{S_WV}, 960
        """)
        ops = []
        def mk(i):
            def f():
                if i == 26:
                    lab = self.b.uid("L_wq")
                    I(f"""
                    s_cmp_ge_u32 s{S_WV}, 3
                    s_cbranch_scc1 {lab}
                    s_cmp_eq_u32 s{S_WV}, 2
                    s_mov_b32 s{ST+14}, 0x0fffffff
                    s_cselect_b32 exec_hi, 0xff, s{ST+14}
                    s_mov_b32 m0, s{lo}
                    s_nop 0
                    buffer_load_dwordx4 v{V}, {sr(S_A)}, s{so} offen lds
                    s_mov_b32 exec_hi, -1
                    {lab}:
                    """)
                elif i == 25:
                    I(f"""
                    s_mov_b32 m0, s{lo}
                    s_add_u32 s{lo}, s{lo}, 3840
                    buffer_load_dwordx4 v{V}, {sr(S_A)}, s{so} offen lds
                    s_add_u32 s{so}, s{so}, {24*1280}
                    """)
                else:
                    I(f"""
                    s_mov_b32 m0, s{lo}
                    s_add_u32 s{lo}, s{lo}, 3840
                    buffer_load_dwordx4 v{V}, {sr(S_A)}, s{so} offen lds
                    s_add_u32 s{so}, s{so}, {24*1280}
                    """)
            return f
        return [mk(i) for i in range(27)]

    def phase_start(self):
        I, C = self.I, self.C
        XF, XH, TMP = self.XF, self.XH, self.TMP
        PR, P = self.S_PROD, self.S_P
        C("---- mod producers: members 2..5; column pair P = x + 8k (k = 2*rbl + (m-2)/2) < 60, block p = 2P + (m-2)%2; P < 20 is critical")
        I(f"""
        s_sub_u32 s{ST}, s{S_M}, 2                           ; m-2
        s_and_b32 s{ST+1}, s{S_RB}, 3
        s_lshl_b32 s{ST+1}, s{ST+1}, 1
        s_lshr_b32 s{ST+2}, s{ST}, 1
        s_add_u32 s{ST+1}, s{ST+1}, s{ST+2}
        s_lshl_b32 s{ST+1}, s{ST+1}, 3
        s_lshr_b32 s{ST+2}, s{S_RB}, 2
        s_add_u32 s{ST+1}, s{ST+1}, s{ST+2}                  ; P
        s_lshl_b32 s{P}, s{ST+1}, 1
        s_and_b32 s{ST+2}, s{ST}, 1
        s_add_u32 s{P}, s{P}, s{ST+2}
        s_cmp_lt_u32 s{ST+1}, 20
        s_cselect_b32 s{PR}, 1, 2
        s_cmp_lt_u32 s{ST+1}, 60
        s_cselect_b32 s{PR}, s{PR}, 0
        s_cmp_lt_u32 s{ST}, 4
        s_cselect_b32 s{PR}, s{PR}, 0
        """)
        C("every workgroup requests 1/32 of the critical w_mod lines of its row group: 3 column pairs x 640 rows = 1920 lines, 60 per workgroup (15 per wave)")
        self.srd(S_A, P_WM, 640*7680)
        I(f"""
        s_and_b32 s{ST}, s{S_RB}, 3
        s_lshl_b32 s{ST}, s{ST}, 3
        s_add_u32 s{ST}, s{ST}, s{S_M}
        s_lshl_b32 s{ST}, s{ST}, 2
        s_add_u32 s{ST}, s{ST}, s{S_WV}
        s_mul_i32 s{ST}, s{ST}, 15
        v_add_u32 v{XH}, s{ST}, v{V_L}
        v_mul_u32_u24 v{XH+1}, 6554, v{XH}
        v_lshrrev_b32 v{XH+1}, 22, v{XH+1}                   ; /640
        v_mul_u32_u24 v{XH+2}, 640, v{XH+1}
        v_sub_u32 v{XH+2}, v{XH}, v{XH+2}                    ; row
        v_mul_u32_u24 v{XH+2}, 7680, v{XH+2}
        v_lshlrev_b32 v{XH+1}, 10, v{XH+1}
        v_add_u32 v{XH+2}, v{XH+2}, v{XH+1}
        s_lshr_b32 s{ST}, s{S_RB}, 2
        s_lshl_b32 s{ST}, s{ST}, 7                           ; x * 128 B
        """)
        self.line_touch(S_A, XH+2, ST, 15)
        self.srd(S_C, P_X, 2048*1280)
        XO = XH
        I(f"""
        v_lshlrev_b32 v{XO+6}, 7, v{V_L}
        s_lshl_b32 s{ST}, s{S_M}, 2
        s_add_u32 s{ST}, s{ST}, s{S_WV}
        s_mul_i32 s{ST}, s{ST}, 2560
        s_mul_i32 s{ST+1}, s{S_RB}, {64*1280}
        s_add_u32 s{ST}, s{ST}, s{ST+1}
        """)
        lab_np = self.b.uid("L_np"); lab_j = self.b.uid("L_npj")
        I(f"s_cmp_lg_u32 s{PR}, 1\ns_cbranch_scc1 {lab_np}")
        I(f"s_mov_b32 s{ST+14}, s{ST}")
        self.mod_dma()
        self.line_touch(S_C, XO+6, ST+14, 20)
        self.tag_issue()
        self.mod_gemv(XH+8, 12, 2, 0)
        self.srd(S_C, P_X, 2048*1280)
        I(f"s_branch {lab_j}\n{lab_np}:")
        self.line_touch(S_C, XO+6, ST, 20)
        self.tag_issue()
        self.srd(S_C, P_X, 2048*1280)
        I(f"{lab_j}:")
        self.stamp("modpub")
        C("x: the wave's rows -> LDS, 16-byte chunks XOR-swizzled by the row")
        I(f"s_lshl_b32 s{ST}, s{S_TT}, 4")
        for qq in range(4):
            I(f"""
            v_add_u32 v{XO+4}, {4*qq}, v{V_G}                      ; row
            v_xor_b32 v{XO+5}, v{XO+4}, v{V_T}
            v_add_u32 v{XO+4}, s{ST}, v{XO+4}
            v_mul_u32_u24 v{XO+4}, 1280, v{XO+4}
            v_lshl_add_u32 v{XO+qq}, v{XO+5}, 4, v{XO+4}
            """)
        I(f"s_mul_i32 s{ST+1}, s{S_WV}, 20480")
        for G in range(5):
            I(f"s_mov_b32 s{ST+2}, {256*G}")
            for qq in range(4):
                I(f"s_mov_b32 m0, s{ST+1}\ns_add_u32 s{ST+1}, s{ST+1}, 1024\nbuffer_load_dwordx4 v{XO+qq}, {sr(S_C)}, s{ST+2} offen lds")
        lab_nk = self.b.uid("L_nk")
        I(f"""
        s_cmp_ge_u32 s{S_M}, 2
        s_cbranch_scc1 {lab_nk}
        s_cmp_eq_u32 s{S_M}, 0
        s_cselect_b32 s{S_A}, s{P_WK}, s{P_WV}
        s_cselect_b32 s{S_A+1}, s{P_WK+1}, s{P_WV+1}
        s_mov_b32 s{S_A+2}, 25600
        s_mov_b32 s{S_A+3}, 0x20000
        s_mul_i32 s{ST}, s{S_WV}, 7168
        s_add_u32 s{ST+1}, s{ST}, {L_WK}
        """)
        for i in range(7):
            I(f"""
            s_mov_b32 m0, s{ST+1}
            s_add_u32 s{ST+1}, s{ST+1}, 1024
            buffer_load_dwordx4 v{V_L16}, {sr(S_A)}, s{ST} offen lds
            s_add_u32 s{ST}, s{ST}, 1024
            """)
        I(f"{lab_nk}:")
        if self.wq_touch == 1:
            C("wq: request this workgroup's 1/32 of the matrix (200 lines, 50 per wave)")
            self.srd(S_B, P_WQ, 640*1280)
            I(f"""
            s_and_b32 s{ST}, s{S_RB}, 3
            s_lshl_b32 s{ST}, s{ST}, 3
            s_add_u32 s{ST}, s{ST}, s{S_M}
            s_lshl_b32 s{ST}, s{ST}, 2
            s_add_u32 s{ST}, s{ST}, s{S_WV}
            s_mul_i32 s{ST}, s{ST}, 6400
            """)
            self.line_touch(S_B, XO+6, ST, 50)
        else:
            I(f"v_mov_b32 v{XO+7}, 0\nbuffer_load_dword a255, v{XO+7}, {sr(S_C)}, 0 offen")
        self.stamp("issued")
        C("x fragments: lane (t,g): k = 32s+4g (+16)")
        AD = XH + 8
        I(f"""
        s_mul_i32 s{ST}, s{S_WV}, 20480
        v_lshlrev_b32 v{TMP}, 8, v{V_T}
        v_add_u32 v{TMP}, s{ST}, v{TMP}
        v_and_b32 v{TMP+1}, 1, v{V_G}
        v_lshl_add_u32 v{TMP}, v{TMP+1}, 3, v{TMP}            ; + 8*(g&1)
        v_lshrrev_b32 v{TMP+1}, 1, v{V_G}                     ; g>>1
        """)
        for a_ in range(4):
            for e in range(2):
                I(f"""
                v_add_u32 v{TMP+2}, {4*a_+2*e}, v{TMP+1}
                v_xor_b32 v{TMP+2}, v{TMP+2}, v{V_T}
                v_lshl_add_u32 v{AD+2*a_+e}, v{TMP+2}, 4, v{TMP}
                """)
        RS_ = XH + 16
        I(f"s_mul_i32 s{ST+1}, s{S_M}, 10")
        for j in range(5):
            I(f"""
            s_add_u32 s{ST+2}, s{ST+1}, {2*j}
            v_add_u32 v{TMP+2}, s{ST+2}, v{TMP+1}
            v_lshrrev_b32 v{TMP+3}, 4, v{TMP+2}
            v_and_b32 v{TMP+2}, 15, v{TMP+2}
            v_xor_b32 v{TMP+2}, v{TMP+2}, v{V_T}
            v_lshl_add_u32 v{TMP+2}, v{TMP+2}, 4, v{TMP}
            v_lshl_add_u32 v{RS_+j}, v{TMP+3}, 12, v{TMP+2}
            """)
        lw1 = self.b.uid("L_xw"); lwj = self.b.uid("L_xw")
        I(f"""
        s_cmp_lt_u32 s{S_M}, 2
        s_cbranch_scc1 {lw1}
        s_waitcnt vmcnt(1)
        s_branch {lwj}
        {lw1}:
        s_waitcnt vmcnt(8)
        {lwj}:
        """)
        for s_ in range(20):
            for e in range(2):
                I(f"ds_read_b64 v[{XF+4*s_+2*e}:{XF+4*s_+2*e+1}], v{AD+2*(s_&3)+e} offset:{4096*(s_>>2)}")
        for j in range(5):
            I(f"ds_read_b64 v[{XH+24+2*j}:{XH+25+2*j}], v{RS_+j}")
        self.tag_eval()
        I("s_waitcnt lgkmcnt(0)")
        for j in range(10): I(f"v_accvgpr_write_b32 a{j}, v{XH+24+j}")
        I("s_barrier")
        if self.wq_touch == 2:
            self.srd(S_B, P_WQ, 640*1280)
            I(f"""
            v_lshlrev_b32 v{XH+6}, 7, v{V_L}
            s_and_b32 s{ST}, s{S_RB}, 3
            s_lshl_b32 s{ST}, s{ST}, 3
            s_add_u32 s{ST}, s{ST}, s{S_M}
            s_lshl_b32 s{ST}, s{ST}, 2
            s_add_u32 s{ST}, s{ST}, s{S_WV}
            s_mul_i32 s{ST}, s{ST}, 6400
            """)
            self.line_touch(S_B, XH+6, ST, 50)
        wq = self.wq_ops()
        self.stamp("xfrag")
        C("LN1 stats: sum via ones-MFMA, sumsq via Gram diagonal")
        ONES, D1, D2 = TMP, TMP+4, TMP+8
        for i in range(4): I(f"v_mov_b32 v{ONES+i}, 0x3f803f80")
        for s in range(20):
            I(f"v_mfma_f32_16x16x32_bf16 {vr(D1)}, {vr(ONES)}, {vr(XF+4*s)}, {'0' if s == 0 else vr(D1)}")
            I(f"v_mfma_f32_16x16x32_bf16 {vr(D2)}, {vr(XF+4*s)}, {vr(XF+4*s)}, {'0' if s == 0 else vr(D2)}")
            if s % 2 == 0 and wq: wq.pop(0)()
        MU, RS, T1, T2 = XH, XH+1, XH+2, XH+3
        I(f"""
        v_and_b32 v{T1}, 3, v{V_T}
        v_cmp_eq_u32 vcc, 1, v{T1}
        v_cndmask_b32 v{T2}, v{D2}, v{D2+1}, vcc
        v_cmp_eq_u32 vcc, 2, v{T1}
        v_cndmask_b32 v{T2}, v{T2}, v{D2+2}, vcc
        v_cmp_eq_u32 vcc, 3, v{T1}
        v_cndmask_b32 v{T2}, v{T2}, v{D2+3}, vcc
        v_lshrrev_b32 v{T1}, 2, v{V_T}
        v_lshl_add_u32 v{T1}, v{T1}, 4, v{V_T}
        v_lshlrev_b32 v{T1}, 2, v{T1}
        ds_bpermute_b32 v{T2}, v{T1}, v{T2}
        v_mul_f32 v{MU}, {1.0/640!r}, v{D1}
        s_waitcnt lgkmcnt(0)
        v_mul_f32 v{T2}, {1.0/640!r}, v{T2}
        v_fma_f32 v{T2}, -v{MU}, v{MU}, v{T2}
        v_max_f32 v{T2}, 0, v{T2}
        v_add_f32 v{T2}, 0x3727c5ac, v{T2}
        v_rsq_f32 v{RS}, v{T2}
        s_nop 0
        v_mul_f32 v{MU}, v{MU}, v{RS}
        v_sub_f32 v{TMP}, 0, v{MU}                           ; -mu*rstd
        v_mov_b32 v{TMP+1}, v{TMP}
        v_mov_b32 v{TMP+2}, v{RS}
        v_mov_b32 v{TMP+3}, v{RS}
        """)
        C("xhat = x*rstd - mu*rstd (fp32)")
        for s in range(20):
            for q in range(4):
                src = XF + 4*s + q
                d = XH + 8*s + 2*q
                if d + 1 >= 238 and False: pass
                I(f"v_lshlrev_b32 v{d}, 16, v{src}\nv_and_b32 v{d+1}, 0xffff0000, v{src}")
            for q in range(4):
                d = XH + 8*s + 2*q
                I(f"v_pk_fma_f32 v[{d}:{d+1}], v[{d}:{d+1}], v[{TMP+2}:{TMP+3}], v[{TMP}:{TMP+1}]")
            if s < 17 and wq: wq.pop(0)()
        assert not wq
        self.stamp("xhat")
        G0 = TMP+4
        lp = self.b.uid("L_mp"); ok = self.b.uid("L_mpok")
        I(f"""
        s_mul_i32 s{ST+1}, s{S_WV}, {80*16}
        v_add_u32 v{TMP+2}, s{ST+1}, v{V_L16}
        v_add_u32 v{TMP+3}, 1024, v{TMP+2}
        v_cmp_gt_u32 vcc, 16, v{V_L}
        v_cndmask_b32 v{TMP+3}, v{TMP+2}, v{TMP+3}, vcc
        s_mov_b32 s{ST}, {TIMEOUT}
        {lp}:
        buffer_load_dwordx4 {vr(G0)}, v{TMP+2}, {sr(S_WS)}, 0 offen offset:{MODG} sc1
        buffer_load_dwordx4 {vr(G0+4)}, v{TMP+3}, {sr(S_WS)}, 0 offen offset:{MODG} sc1
        s_waitcnt vmcnt(0)
        v_cmp_ne_u32 vcc, s{S_TAG}, v{G0+2}
        s_mov_b64 s[{ST+2}:{ST+3}], vcc
        v_cmp_ne_u32 vcc, s{S_TAG+1}, v{G0+3}
        s_or_b64 s[{ST+2}:{ST+3}], s[{ST+2}:{ST+3}], vcc
        v_cmp_ne_u32 vcc, s{S_TAG}, v{G0+6}
        s_or_b64 s[{ST+2}:{ST+3}], s[{ST+2}:{ST+3}], vcc
        v_cmp_ne_u32 vcc, s{S_TAG+1}, v{G0+7}
        s_or_b64 s[{ST+2}:{ST+3}], s[{ST+2}:{ST+3}], vcc
        s_cmp_eq_u64 s[{ST+2}:{ST+3}], 0
        s_cbranch_scc1 {ok}
        """)
        self.spin_tail(ST, lp, 2)
        I(f"{ok}:")
        for blk, av in ((G0, TMP+2), (G0+4, TMP+3)):
            I(f"""
            v_and_b32 v{blk+3}, 0xffff0000, v{blk+1}
            v_lshlrev_b32 v{blk+2}, 16, v{blk+1}
            v_and_b32 v{blk+1}, 0xffff0000, v{blk}
            v_lshlrev_b32 v{blk}, 16, v{blk}
            """)
        lab_a = self.b.uid("L_a")
        I(f"s_cmp_lt_u32 s{S_WV}, 2\ns_cbranch_scc1 {lab_a}")
        for blk in (G0, G0+4):
            for q in range(4): I(f"v_add_f32 v{blk+q}, 1.0, v{blk+q}")
            I(f"""
            v_cvt_pk_bf16_f32 v{blk}, v{blk}, v{blk+1}
            v_cvt_pk_bf16_f32 v{blk+2}, v{blk+2}, v{blk+3}
            v_and_b32 v{blk+1}, 0xffff0000, v{blk}
            v_lshlrev_b32 v{blk}, 16, v{blk}
            v_and_b32 v{blk+3}, 0xffff0000, v{blk+2}
            v_lshlrev_b32 v{blk+2}, 16, v{blk+2}
            """)
        I(f"""
        {lab_a}:
        v_add_u32 v{TMP+2}, {L_MOD}, v{TMP+2}
        v_add_u32 v{TMP+3}, {L_MOD}, v{TMP+3}
        ds_write_b128 v{TMP+2}, {vr(G0)}
        ds_write_b128 v{TMP+3}, {vr(G0+4)}
        s_waitcnt lgkmcnt(0)
        s_barrier
        """)
        self.stamp("modgot")
        C("h1 = xhat*A + B -> bf16 fragments (overwrites XF).  all DMAs (wq, wk) were waited by vmcnt(0) above, barrier publishes them")
        va = TMP
        I(f"v_lshlrev_b32 v{va}, 4, v{V_G}\nv_add_u32 v{va}, {L_MOD}, v{va}")
        def buf(s): return (XF + 48 + 16*(s & 1)) if s < 12 else (XH + 16*(s & 1))
        def rd(s):
            B_ = buf(s)
            for hf in range(2):
                I(f"ds_read_b128 {vr(B_+4*hf)}, v{va} offset:{2560 + 128*s + 64*hf}")
                I(f"ds_read_b128 {vr(B_+8+4*hf)}, v{va} offset:{128*s + 64*hf}")
        rd(0)
        for s in range(20):
            if s + 1 < 20: rd(s+1)
            I(f"s_waitcnt lgkmcnt({4 if s + 1 < 20 else 0})")
            B_ = buf(s)
            for q in range(4):
                d = XH + 8*s + 2*q
                I(f"v_pk_fma_f32 v[{d}:{d+1}], v[{d}:{d+1}], v[{B_+2*q}:{B_+2*q+1}], v[{B_+8+2*q}:{B_+8+2*q+1}]")
            for q in range(4):
                d = XH + 8*s + 2*q
                I(f"v_cvt_pk_bf16_f32 v{XF+4*s+q}, v{d}, v{d+1}")
        labd = self.b.uid("L_dg")
        I(f"s_cmp_lg_u32 s{self.S_PROD}, 2\ns_cbranch_scc1 {labd}")
        self.MT = self.MT3
        self.mod_dma(cdst="a[250:251]")
        I(f"{labd}:")
        self.stamp("h1")

    def phase_kv(self):
        I, C = self.I, self.C
        XF, XH = self.XF, self.XH
        lab_end = self.b.uid("L_kvend"); lab_v = self.b.uid("L_v"); lab_pub = self.b.uid("L_kvpub")
        va, vb, W0, ACC0, ACC1, T = XH, XH+1, XH+4, XH+24, XH+28, XH+32
        I(f"""
        s_cmp_ge_u32 s{S_M}, 2
        s_cbranch_scc1 {lab_end}
        v_lshrrev_b32 v{va}, 2, v{V_T}
        v_lshl_add_u32 v{va}, v{V_G}, 2, v{va}
        v_mul_u32_u24 v{va}, 40, v{va}
        v_and_b32 v{vb}, 3, v{V_T}
        v_lshl_add_u32 v{va}, v{vb}, 3, v{va}
        v_add_u32 v{va}, {L_WK}, v{va}
        s_cmp_eq_u32 s{S_M}, 1
        s_cbranch_scc1 {lab_v}
        """)
        def loop(isv):
            WK = XH + 48
            def rd(s):
                o = WK + (s % 4)*8
                I(f"""
                ds_read_b64_tr_b16 v[{o}:{o+1}], v{va} offset:{1280*s}
                ds_read_b64_tr_b16 v[{o+2}:{o+3}], v{va} offset:{1280*s+640}
                ds_read_b64_tr_b16 v[{o+4}:{o+5}], v{va} offset:{1280*s+32}
                ds_read_b64_tr_b16 v[{o+6}:{o+7}], v{va} offset:{1280*s+672}
                """)
            for s in range(3): rd(s)
            for s in range(20):
                if s + 3 < 20: rd(s+3)
                I(f"s_waitcnt lgkmcnt({4*min(3, 19-s)})")
                o2 = WK + (s % 4)*8
                for tl, acc in ((0, ACC0), (1, ACC1)):
                    w = vr(o2+4*tl); x = vr(XF+4*s)
                    c = '0' if s == 0 else vr(acc)
                    if isv: I(f"v_mfma_f32_16x16x32_bf16 {vr(acc)}, {x}, {w}, {c}")
                    else:   I(f"v_mfma_f32_16x16x32_bf16 {vr(acc)}, {w}, {x}, {c}")
        C("K: D[dim 4g+r][token t]")
        loop(False)
        I(f"""
        v_mul_f32 v{T}, v{ACC0}, v{ACC0}
        v_fmac_f32 v{T}, v{ACC0+1}, v{ACC0+1}
        v_fmac_f32 v{T}, v{ACC0+2}, v{ACC0+2}
        v_fmac_f32 v{T}, v{ACC0+3}, v{ACC0+3}
        v_mul_f32 v{T+1}, v{ACC1}, v{ACC1}
        v_fmac_f32 v{T+1}, v{ACC1+1}, v{ACC1+1}
        v_fmac_f32 v{T+1}, v{ACC1+2}, v{ACC1+2}
        v_fmac_f32 v{T+1}, v{ACC1+3}, v{ACC1+3}
        v_cmp_eq_u32 vcc, 0, v{V_G}
        v_cndmask_b32 v{T+1}, 0, v{T+1}, vcc
        v_add_f32 v{T}, v{T}, v{T+1}
        """)
        self.reduce_g([T], T+2)
        for sh in (8, 4, 2, 1):
            I(f"v_mov_b32_dpp v{T+2}, v{T} row_ror:{sh} row_mask:0xf bank_mask:0xf\nv_max_f32 v{T}, v{T}, v{T+2}")
        I(f"""
        s_lshl_b32 s{ST}, s{S_WV}, 2
        s_add_u32 s{ST}, s{ST}, {L_MISC}
        v_mov_b32 v{T+2}, s{ST}
        ds_write_b32 v{T+2}, v{T}
        """)
        I(f"""
        v_cvt_pk_bf16_f32 v{T+4}, v{ACC0}, v{ACC0+1}
        v_cvt_pk_bf16_f32 v{T+5}, v{ACC0+2}, v{ACC0+3}
        v_cvt_pk_bf16_f32 v{T+6}, v{ACC1}, v{ACC1+1}
        v_cvt_pk_bf16_f32 v{T+7}, v{ACC1+2}, v{ACC1+3}
        s_lshr_b32 s{ST}, s{S_TT}, 1
        s_mul_i32 s{ST}, s{ST}, {KVT}
        s_add_u32 s{ST}, s{ST}, {KV}
        s_and_b32 s{ST+1}, s{S_TT}, 1
        s_lshl_b32 s{ST+1}, s{ST+1}, 4
        v_add_u32 v{T+8}, s{ST+1}, v{V_T}                    ; kk
        v_lshrrev_b32 v{T+9}, 1, v{V_G}
        v_lshl_add_u32 v{T+9}, v{T+9}, 5, v{T+8}             ; kk+32*(g>>1)
        v_lshlrev_b32 v{T+9}, 4, v{T+9}
        v_and_b32 v{T+10}, 1, v{V_G}
        v_lshl_add_u32 v{T+9}, v{T+10}, 3, v{T+9}
        buffer_store_dwordx2 v[{T+4}:{T+5}], v{T+9}, {sr(S_WS)}, s{ST} offen sc1
        v_lshlrev_b32 v{T+8}, 3, v{T+8}
        v_cmp_eq_u32 vcc, 0, v{V_G}
        s_and_saveexec_b64 s[{ST+4}:{ST+5}], vcc
        buffer_store_dwordx2 v[{T+6}:{T+7}], v{T+8}, {sr(S_WS)}, s{ST} offen offset:1024 sc1
        s_mov_b64 exec, s[{ST+4}:{ST+5}]
        s_branch {lab_pub}
        {lab_v}:
        """)
        C("V^T: D[token 4g+r][d = lane&15]")
        loop(True)
        I(f"""
        v_cvt_pk_bf16_f32 v{T+4}, v{ACC0}, v{ACC0+1}
        v_cvt_pk_bf16_f32 v{T+5}, v{ACC0+2}, v{ACC0+3}
        v_cvt_pk_bf16_f32 v{T+6}, v{ACC1}, v{ACC1+1}
        v_cvt_pk_bf16_f32 v{T+7}, v{ACC1+2}, v{ACC1+3}
        v_cmp_gt_u32 vcc, 4, v{V_T}
        v_cndmask_b32 v{T+6}, 0, v{T+6}, vcc
        v_cndmask_b32 v{T+7}, 0, v{T+7}, vcc
        v_cmp_eq_u32 vcc, 4, v{V_T}
        v_mov_b32 v{T+11}, 0x3f803f80
        v_cndmask_b32 v{T+6}, v{T+6}, v{T+11}, vcc
        v_cndmask_b32 v{T+7}, v{T+7}, v{T+11}, vcc
        s_lshr_b32 s{ST}, s{S_TT}, 1
        s_mul_i32 s{ST}, s{ST}, {KVT}
        s_and_b32 s{ST+1}, s{S_TT}, 1
        s_lshl_b32 s{ST+1}, s{ST+1}, 10
        s_add_u32 s{ST}, s{ST}, s{ST+1}
        s_add_u32 s{ST}, s{ST}, {KV+1280}
        v_and_b32 v{T+9}, 1, v{V_G}
        v_lshl_add_u32 v{T+9}, v{T+9}, 5, v{V_T}             ; d + 32*(g&1)
        v_lshlrev_b32 v{T+9}, 4, v{T+9}
        v_lshrrev_b32 v{T+10}, 1, v{V_G}
        v_lshl_add_u32 v{T+9}, v{T+10}, 3, v{T+9}
        buffer_store_dwordx2 v[{T+4}:{T+5}], v{T+9}, {sr(S_WS)}, s{ST} offen sc1
        buffer_store_dwordx2 v[{T+6}:{T+7}], v{T+9}, {sr(S_WS)}, s{ST} offen offset:256 sc1
        v_mov_b32 v{T}, 0
        s_lshl_b32 s{ST}, s{S_WV}, 2
        s_add_u32 s{ST}, s{ST}, {L_MISC}
        v_mov_b32 v{T+2}, s{ST}
        ds_write_b32 v{T+2}, v{T}
        {lab_pub}:
        s_waitcnt vmcnt(0) lgkmcnt(0)
        s_barrier
        """)
        lab_np = self.b.uid("L_kvnp")
        I(f"""
        s_cmp_lg_u32 s{S_WV}, 0
        s_cbranch_scc1 {lab_np}
        v_mov_b32 v{T+2}, {L_MISC}
        ds_read_b128 {vr(T+4)}, v{T+2}
        s_waitcnt lgkmcnt(0)
        v_max_f32 v{T+4}, v{T+4}, v{T+5}
        v_max_f32 v{T+6}, v{T+6}, v{T+7}
        v_max_f32 v{T+6}, v{T+4}, v{T+6}
        v_mov_b32 v{T+4}, s{S_TAG}
        v_mov_b32 v{T+5}, s{S_TAG+1}
        v_mov_b32 v{T+7}, 0
        s_lshl_b32 s{ST}, s{S_RB}, 1
        s_add_u32 s{ST}, s{ST}, s{S_M}
        s_lshl_b32 s{ST}, s{ST}, 7
        s_add_u32 s{ST}, s{ST}, {KVFLAG}
        v_mov_b32 v{T+2}, s{ST}
        s_mov_b64 exec, 1
        buffer_store_dwordx4 {vr(T+4)}, v{T+2}, {sr(S_WS)}, 0 offen sc1
        s_mov_b64 exec, -1
        {lab_np}:
        {lab_end}:
        """)
        self.stamp("kvpub")

    QA0, QA1, QB0, QB1 = 44, 48, 52, 56
    SA, SB = 60, 76
    PA, PB = 92, 100
    OA, OB = 108, 124
    KB = 140
    VB = 172
    AT = 204

    def phase_q(self):
        I, C = self.I, self.C
        XF, XH = self.XF, self.XH
        va, vb, WB, ACC = XH, XH+1, XH+4, XH+64
        I(f"""
        v_lshrrev_b32 v{va}, 2, v{V_T}
        v_lshl_add_u32 v{va}, v{V_G}, 2, v{va}
        v_mul_u32_u24 v{va}, 160, v{va}
        v_and_b32 v{vb}, 3, v{V_T}
        v_lshl_add_u32 v{va}, v{vb}, 3, v{va}
        v_add_u32 v{vb}, 51200, v{va}
        """)
        issued = []
        def rd1(s, j):
            base = va if s < 10 else vb
            o = 5120*(s % 10)
            W_ = WB + 20*(s % 3) + 4*j
            I(f"ds_read_b64_tr_b16 v[{W_}:{W_+1}], v{base} offset:{L_WQ + o + 32*j}")
            I(f"ds_read_b64_tr_b16 v[{W_+2}:{W_+3}], v{base} offset:{L_WQ + o + 32*j + 2560}")
            issued.append((s, j))
        for s in range(2):
            for j in range(5): rd1(s, j)
        for s in range(20):
            younger = 2*(len(issued) - 1 - issued.index((s, 4)))
            I(f"s_waitcnt lgkmcnt({min(15, younger)})")
            for j in range(5):
                I(f"v_mfma_f32_16x16x32_bf16 {vr(ACC+4*j)}, {vr(WB+20*(s%3)+4*j)}, {vr(XF+4*s)}, {'0' if s == 0 else vr(ACC+4*j)}")
                if s + 2 < 20: rd1(s+2, j)
        qs = (20 ** -0.5) * 1.4426950408889634
        I(f"s_mov_b32 s{ST}, {hex(f2u(qs))}")
        C("scale, pack, write wave-private [16][176B] tile")
        I(f"""
        s_mul_i32 s{ST+1}, s{S_WV}, {16*176}
        s_add_u32 s{ST+1}, s{ST+1}, {L_QS}
        v_mul_u32_u24 v{va}, 176, v{V_T}
        v_lshl_add_u32 v{va}, v{V_G}, 3, v{va}
        v_add_u32 v{va}, s{ST+1}, v{va}
        """)
        for j in range(5):
            a = ACC + 4*j
            for r in range(4): I(f"v_mul_f32 v{a+r}, s{ST}, v{a+r}")
            I(f"v_cvt_pk_bf16_f32 v{a}, v{a}, v{a+1}\nv_cvt_pk_bf16_f32 v{a+1}, v{a+2}, v{a+3}")
            I(f"ds_write_b64 v{va}, v[{a}:{a+1}] offset:{32*j}")
        AT = self.AT
        I(f"""
        v_mul_u32_u24 v{vb}, 176, v{V_T}
        v_bfe_u32 v{va}, v{V_L}, 4, 1
        v_mul_u32_u24 v{va}, 40, v{va}
        v_add_u32 v{vb}, v{vb}, v{va}
        v_add_u32 v{vb}, s{ST+1}, v{vb}                      ; token*176 + (q>>4)*40
        v_lshrrev_b32 v{va}, 5, v{V_L}
        v_lshl_add_u32 v{va}, v{va}, 4, v{vb}                ; + 16h
        s_waitcnt lgkmcnt(0)
        ds_read_b64 v[{self.QA0}:{self.QA0+1}], v{va}
        ds_read_b64 v[{self.QA0+2}:{self.QA0+3}], v{va} offset:8
        ds_read_b64 v[{self.QB0}:{self.QB0+1}], v{va} offset:80
        ds_read_b64 v[{self.QB0+2}:{self.QB0+3}], v{va} offset:88
        ds_read_b64 v[{self.QA1}:{self.QA1+1}], v{vb} offset:32
        ds_read_b64 v[{self.QB1}:{self.QB1+1}], v{vb} offset:112
        v_cmp_gt_u32 vcc, 32, v{V_L}
        s_waitcnt lgkmcnt(0)
        """)
        for r in (self.QA1, self.QA1+1, self.QB1, self.QB1+1):
            I(f"v_cndmask_b32 v{r}, 0, v{r}, vcc")
        for (t, q0, q1) in ((AT, self.QA0, self.QA1), (AT+1, self.QB0, self.QB1)):
            I(f"v_mov_b32 v{t}, 0")
            for r in (q0, q0+1, q0+2, q0+3, q1, q1+1):
                I(f"v_dot2_f32_bf16 v{t}, v{r}, v{r}, v{t}")
        for t in (AT, AT+1):
            I(f"v_mov_b32 v{AT+2}, v{t}\nv_permlane32_swap_b32 v{t}, v{AT+2}\nv_add_f32 v{t}, v{t}, v{AT+2}")
        I(f"v_max_f32 v{AT}, v{AT}, v{AT+1}")
        I("s_barrier")
        self.stamp("qproj")

    RL_OFF, RL_TR, RL_D = 4, 11, 12
    S_RKS, S_RDS, RL_TRS = (78, 82), (79, 83), (11, 40)
    S_RD2S = (74, 73)
    def rl_issue(self, rnd):
        I = self.I
        self.S_RK, self.S_RD, self.RL_TR = self.S_RKS[rnd], self.S_RDS[rnd], self.RL_TRS[rnd]
        u, A0, A1 = ST+4, ST+5, ST+6
        lk4 = self.b.uid("L_r4"); lk3 = self.b.uid("L_r3"); lA = self.b.uid("L_rA"); lend = self.b.uid("L_re")
        I(f"""
        s_lshl_b32 s{u}, s{S_W}, 2
        s_add_u32 s{u}, s{u}, s{S_WV}
        """)
        if rnd == 1:
            I(f"""
            s_mov_b32 s{self.S_RK}, 2
            s_cmp_lt_u32 s{S_M}, 6
            s_cbranch_scc1 {lend}
            s_lshl_b32 s{u}, s{S_RB}, 1
            s_add_u32 s{u}, s{u}, s{S_M}
            s_sub_u32 s{u}, s{u}, 6
            s_lshl_b32 s{u}, s{u}, 2
            s_add_u32 s{u}, s{u}, s{S_WV}
            s_add_u32 s{u}, s{u}, 1024
            s_cmp_ge_u32 s{u}, 1232
            s_cbranch_scc1 {lend}
            s_branch {lk3}
            """)
        else:
            I(f"""
            s_cmp_ge_u32 s{u}, 912
            s_cbranch_scc1 {lk3}
            s_cmp_ge_u32 s{u}, 480
            s_cbranch_scc1 {lk4}
            s_mul_i32 s{A0}, s{u}, 410
            s_lshr_b32 s{A0}, s{A0}, 16                 ; p = u/160
            s_mul_i32 s{A1}, s{A0}, 160
            s_sub_u32 s{u}, s{u}, s{A1}                 ; r
            s_cmp_eq_u32 s{A0}, 1
            s_cselect_b32 s{S_A}, s{P_W1}, s{P_WO}
            s_cselect_b32 s{S_A+1}, s{P_W1+1}, s{P_WO+1}
            s_cmp_eq_u32 s{A0}, 2
            s_cselect_b32 s{S_A}, s{P_W2}, s{S_A}
            s_cselect_b32 s{S_A+1}, s{P_W2+1}, s{S_A+1}
            s_mov_b32 s{S_A+2}, {640*1280}
            s_mul_i32 s{A0}, s{A0}, 100                 ; p*100
            s_mul_i32 s{A1}, s{u}, 3277
            s_lshr_b32 s{A1}, s{A1}, 16                 ; m = r/20
            s_mul_i32 s{ST+7}, s{A1}, 20
            s_sub_u32 s{u}, s{u}, s{ST+7}               ; kb
            s_mul_i32 s{ST+7}, s{u}, 5
            s_add_u32 s{A0}, s{A0}, s{ST+7}
            s_lshl_b32 s{A0}, s{A0}, 10
            s_mul_i32 s{ST+7}, s{A1}, {WSA_M}
            s_add_u32 s{A0}, s{A0}, s{ST+7}
            s_add_u32 s{self.S_RD}, s{A0}, {WSA}
            s_branch {lA}
            {lk4}:
            s_sub_u32 s{u}, s{u}, 480
            s_mov_b32 s{S_A}, s{P_W4}
            s_mov_b32 s{S_A+1}, s{P_W4+1}
            s_mov_b32 s{S_A+2}, {1728*1280}
            s_mul_i32 s{A1}, s{u}, 1214
            s_lshr_b32 s{A1}, s{A1}, 16                 ; m = r/54
            s_mul_i32 s{ST+7}, s{A1}, 54
            s_sub_u32 s{u}, s{u}, s{ST+7}               ; kb
            s_mul_i32 s{A0}, s{u}, 5120
            s_mul_i32 s{ST+7}, s{A1}, {W4S_M}
            s_add_u32 s{A0}, s{A0}, s{ST+7}
            s_add_u32 s{self.S_RD}, s{A0}, {W4S}
            {lA}:
            s_mov_b32 s{S_A+3}, 0x20000
            s_mov_b32 s{self.S_RK}, 0
            s_mul_i32 s{u}, s{u}, {32*1280}
            s_mul_i32 s{A1}, s{A1}, 160
            s_add_u32 s{u}, s{u}, s{A1}
            s_mul_i32 s{A0}, s{S_WV}, 14336
            """)
            O = self.RL_OFF
            for q in range(5):
                I(f"""
                v_add_u32 v{O+5}, {64*q}, v{V_L}
                v_mul_u32_u24 v{O+6}, 6554, v{O+5}
                v_lshrrev_b32 v{O+6}, 16, v{O+6}
                v_mul_u32_u24 v{O+q}, {1280-160}, v{O+6}
                v_lshl_add_u32 v{O+q}, v{O+5}, 4, v{O+q}
                """)
            for q in range(5):
                I(f"s_mov_b32 m0, s{A0}\ns_add_u32 s{A0}, s{A0}, 1024\nbuffer_load_dwordx4 v{O+q}, {sr(S_A)}, s{u} offen lds")
            I(f"""
            v_lshrrev_b32 v{self.RL_TR}, 2, v{V_T}
            v_lshl_add_u32 v{self.RL_TR}, v{V_G}, 2, v{self.RL_TR}
            v_mul_u32_u24 v{self.RL_TR}, 160, v{self.RL_TR}
            s_branch {lend}_tr
            """)
        I(f"""
        {lk3}:
        s_sub_u32 s{u}, s{u}, 912
        s_mov_b32 s{S_A}, s{P_W3}
        s_mov_b32 s{S_A+1}, s{P_W3+1}
        s_mov_b32 s{S_A+2}, {640*3456}
        s_mov_b32 s{S_A+3}, 0x20000
        s_mov_b32 s{self.S_RK}, 1
        s_mul_i32 s{A1}, s{u}, 3277
        s_lshr_b32 s{A1}, s{A1}, 16                 ; m16 = r/20
        s_mul_i32 s{ST+7}, s{A1}, 20
        s_sub_u32 s{u}, s{u}, s{ST+7}               ; kb
        s_mul_i32 s{ST+7}, s{A1}, {W3S_M}
        s_add_u32 s{ST+7}, s{ST+7}, {W3S}
        s_mul_i32 s{A0}, s{u}, {4096 if self.w3split else 7168}
        s_add_u32 s{self.S_RD}, s{A0}, s{ST+7}               ; tiles 0..3
        s_mul_i32 s{A0}, s{u}, {3072 if self.w3split else 7168}
        s_add_u32 s{A0}, s{A0}, s{ST+7}
        s_add_u32 s{self.S_RD2S[rnd]}, s{A0}, {80*1024 if self.w3split else 4096}      ; tiles 4..6
        s_mul_i32 s{A0}, s{A1}, 7
        s_sub_u32 s{ST+7}, s{A1}, 12
        s_max_i32 s{ST+7}, s{ST+7}, 0
        s_sub_u32 s{A0}, s{A0}, s{ST+7}
        s_lshl_b32 s{A0}, s{A0}, 5
        s_mul_i32 s{u}, s{u}, {32*3456}
        s_add_u32 s{u}, s{u}, s{A0}
        s_mul_i32 s{A0}, s{S_WV}, 14336
        s_add_u32 s{A0}, s{A0}, {7168*rnd}
        """)
        O = self.RL_OFF
        for q in range(7):
            I(f"""
            v_add_u32 v{self.RL_D}, {64*q}, v{V_L}
            v_mul_u32_u24 v{self.RL_D+1}, 4682, v{self.RL_D}
            v_lshrrev_b32 v{self.RL_D+1}, 16, v{self.RL_D+1}
            v_mul_u32_u24 v{O+q}, {3456-224}, v{self.RL_D+1}
            v_lshl_add_u32 v{O+q}, v{self.RL_D}, 4, v{O+q}
            """)
        for q in range(7):
            I(f"s_mov_b32 m0, s{A0}\ns_add_u32 s{A0}, s{A0}, 1024\nbuffer_load_dwordx4 v{O+q}, {sr(S_A)}, s{u} offen lds")
        I(f"""
        v_lshrrev_b32 v{self.RL_TR}, 2, v{V_T}
        v_lshl_add_u32 v{self.RL_TR}, v{V_G}, 2, v{self.RL_TR}
        v_mul_u32_u24 v{self.RL_TR}, 224, v{self.RL_TR}
        {lend}_tr:
        v_and_b32 v{self.RL_D}, 3, v{V_T}
        v_lshl_add_u32 v{self.RL_TR}, v{self.RL_D}, 3, v{self.RL_TR}
        s_mul_i32 s{A0}, s{S_WV}, 14336
        s_add_u32 s{A0}, s{A0}, {7168*rnd}
        v_add_u32 v{self.RL_TR}, s{A0}, v{self.RL_TR}
        {lend}:
        """)

    def rl_store(self, rnd):
        I = self.I
        self.S_RK, self.S_RD, self.RL_TR = self.S_RKS[rnd], self.S_RDS[rnd], self.RL_TRS[rnd]
        l7 = self.b.uid("L_rs7"); lend = self.b.uid("L_rse")
        D = self.RL_D
        I(f"s_cmp_eq_u32 s{self.S_RK}, 2\ns_cbranch_scc1 {lend}\ns_cmp_eq_u32 s{self.S_RK}, 1\ns_cbranch_scc1 {l7}")
        for (nt, rowb, last) in ((5, 160, False), (7, 224, True)):
            if last: I(f"{l7}:")
            for j in range(nt):
                I(f"ds_read_b64_tr_b16 v[{D+4*j}:{D+4*j+1}], v{self.RL_TR} offset:{32*j}")
                I(f"ds_read_b64_tr_b16 v[{D+4*j+2}:{D+4*j+3}], v{self.RL_TR} offset:{32*j+16*rowb}")
            if nt == 5: I(f"s_add_u32 s{ST+4}, s{self.S_RD}, 4096")
            else: I(f"s_mov_b32 s{ST+4}, s{self.S_RD2S[rnd]}")
            I("s_waitcnt lgkmcnt(0)")
            for j in range(nt):
                I(f"buffer_store_dwordx4 {vr(D+4*j)}, v{V_L16}, {sr(S_WS)}, s{self.S_RD if j < 4 else ST+4} offen offset:{1024*(j%4)} sc1")
            if not last: I(f"s_branch {lend}")
        I(f"{lend}:")

    def rl_flag(self):
        I = self.I
        lab = self.b.uid("L_rlp")
        I(f"""
        s_barrier
        s_cmp_lg_u32 s{S_WV}, 0
        s_cbranch_scc1 {lab}
        v_mov_b32 v252, s{S_TAG}
        v_mov_b32 v253, s{S_TAG+1}
        s_lshl_b32 s{ST+4}, s{S_W}, 7
        s_add_u32 s{ST+4}, s{ST+4}, {RLFLAG}
        v_mov_b32 v251, s{ST+4}
        s_mov_b64 exec, 1
        buffer_store_dwordx2 v[252:253], v251, {sr(S_WS)}, 0 offen sc1
        s_mov_b64 exec, -1
        {lab}:
        """)

    def phase_kvwait(self):
        I = self.I
        AT = self.AT
        lp = self.b.uid("L_kvw"); ok = self.b.uid("L_kvok")
        I(f"""
        v_lshlrev_b32 v{AT+3}, 7, v{V_L}
        s_mov_b32 s{ST}, {TIMEOUT}
        s_mov_b32 s{ST+1}, {KVFLAG}
        {lp}:
        buffer_load_dwordx4 {vr(AT+4)}, v{AT+3}, {sr(S_WS)}, s{ST+1} offen sc1
        """)
        I(f"""
        s_waitcnt vmcnt(0)
        v_cmp_ne_u32 vcc, s{S_TAG}, v{AT+4}
        s_mov_b64 s[{ST+2}:{ST+3}], vcc
        v_cmp_ne_u32 vcc, s{S_TAG+1}, v{AT+5}
        s_or_b64 s[{ST+2}:{ST+3}], s[{ST+2}:{ST+3}], vcc
        s_cmp_eq_u64 s[{ST+2}:{ST+3}], 0
        s_cbranch_scc1 {ok}
        """)
        self.spin_tail(ST, lp, 3)
        I(f"{ok}:")
        self.reduce_g([AT+6], AT+2, op="v_max_f32")
        for sh in (8, 4, 2, 1):
            I(f"v_mov_b32_dpp v{AT+2}, v{AT+6} row_ror:{sh} row_mask:0xf bank_mask:0xf\nv_max_f32 v{AT+6}, v{AT+6}, v{AT+2}")
        I(f"v_mov_b32 v{AT+1}, v{AT+6}")
        self.xid_publish()
        labg = self.b.uid("L_dg")
        I(f"s_cmp_lg_u32 s{self.S_PROD}, 2\ns_cbranch_scc1 {labg}")
        I(f"v_accvgpr_read_b32 v248, a250\nv_accvgpr_read_b32 v249, a251")
        self.MT = self.MT2
        self.mod_gemv(60, 63, 63, None)
        I("s_barrier")
        I(f"{labg}:")
        self.stamp("kvwait")

    def kv_loads(self, i, sK, sV):
        raise NotImplementedError

    def phase_attn(self, force_slow=False):
        I, C = self.I, self.C
        QA0, QA1, QB0, QB1, SA, SB, PA, PB, OA, OB, KB, VB, AT = (self.QA0, self.QA1, self.QB0, self.QB1, self.SA, self.SB,
            self.PA, self.PB, self.OA, self.OB, self.KB, self.VB, self.AT)
        sK, sV, cnt = 85, 86, 87
        vK1 = AT+2
        lab_slow = self.b.uid("L_slow"); lab_done = self.b.uid("L_adone")
        C("bound check: |q|^2 * kmax2 <= T^2 (log2 units) else true-max path")
        Tlim = 64.0
        I(f"""
        v_mul_f32 v{AT}, v{AT}, v{AT+1}
        v_and_b32 v{vK1}, 31, v{V_L}
        v_lshlrev_b32 v{vK1}, 3, v{vK1}
        s_mov_b32 s{ST+3}, {hex(f2u(Tlim*Tlim if not force_slow else -1.0))}
        v_cmp_nge_f32 vcc, s{ST+3}, v{AT}
        """)
        I(f"s_cmp_lg_u64 vcc, 0\ns_cselect_b32 s{self.S_SLOW}, 1, 0")
        for r in range(16): I(f"v_mov_b32 v{OA+r}, 0\nv_mov_b32 v{OB+r}, 0")
        KVL = self.L_KV
        vK16, vK8 = 200, 201
        KR, VR = 16, 48
        def kreg(buf): return KR + 8*buf
        def vreg(buf): return VR + 8*buf
        def rdK(t):
            k = kreg(t % 4); o = (t % 16)*KVT
            I(f"ds_read_b128 {ar(k)}, v{vK16} offset:{o}")
            I(f"ds_read_b64 a[{k+4}:{k+5}], v{vK8} offset:{o+1024}")
        def rdV(t, which=(0, 1)):
            v = vreg(t % 4); o = (t % 16)*KVT
            if 0 in which: I(f"ds_read_b128 {ar(v)}, v{vK16} offset:{o+1280}")
            if 1 in which: I(f"ds_read_b128 {ar(v+4)}, v{vK16} offset:{o+2304}")
        I(f"v_add_u32 v{vK16}, {KVL}, v{V_L16}\nv_add_u32 v{vK8}, {KVL}, v{vK1}")
        for g in range(3): self.kv_dma(g)
        for r in range(16): I(f"v_mov_b32 v{SB+r}, 0xff800000")
        for r in range(8): I(f"v_mov_b32 v{PA+r}, 0")
        for r in range(8): I(f"v_accvgpr_write_b32 a{vreg(3)+r}, 0")
        self.rl_issue(0)
        I("s_waitcnt vmcnt(9)\ns_barrier")
        rdK(0); rdK(1); rdV(0)
        I(f"s_mov_b32 s{cnt}, 16")
        lp = self.b.uid("L_att"); lhk = [self.b.uid("L_hook") for _ in range(5)]; lback = [self.b.uid("L_back") for _ in range(4)]
        hooks = self.attn_hooks()
        mask = sum(1 << k for k in hooks)
        def exps(S, P, q):
            a = S + 4*q
            I(f"v_exp_f32 v{a}, v{a}\nv_exp_f32 v{a+1}, v{a+1}\nv_exp_f32 v{a+2}, v{a+2}\nv_exp_f32 v{a+3}, v{a+3}")
            I(f"v_cvt_pk_bf16_f32 v{P+2*q}, v{a}, v{a+1}\nv_cvt_pk_bf16_f32 v{P+2*q+1}, v{a+2}, v{a+3}")
        M16 = "v_mfma_f32_32x32x16_bf16"; M8 = "v_mfma_f32_32x32x8_bf16"
        SKS, SKL, SBM = 86, 85, 76
        def copy_slot(q, e):
            n = 2*(q & 1) + e
            if self.x_nokv: return
            if q < 2:
                if n == 3: I("s_mov_b64 exec, 0xffff")
                I(f"buffer_load_dwordx4 v{V_L16}, {sr(S_WS)}, s{SKS} offen offset:{1024*n} lds")
                if n == 3: I(f"s_mov_b64 exec, -1\ns_mov_b32 m0, s{SBM}")
            elif not self.noslot:
                I(f"buffer_load_dwordx4 v{V_L16}, {sr(S_WS)}, s{self.S_DS} offen offset:{1024*n} lds")
        def header(part):
            I("s_waitcnt vmcnt(12) lgkmcnt(4)")
            if not self.x_nobar: I("s_barrier")
            I(f"""
            s_bitcmp1_b32 s84, s{cnt}
            s_cbranch_scc1 {lhk[part]}
            {lback[part]}:
            s_add_u32 s{SKS}, s{SKS}, {4*KVT}
            s_add_u32 m0, s{SKL}, {((part + 3) % 4)*4*KVT}
            s_add_u32 s{self.S_DS}, s{self.S_DS}, s{self.S_INC}
            s_add_u32 s{SBM}, s{SBM}, s{self.S_INC}
            """)
        def body(i, qk=True, last=False):
            kb = kreg(i % 4); vb = vreg((i+3) % 4)
            k2 = kreg((i+2) % 4); ok = ((i+2) % 16)*KVT
            v1 = vreg((i+1) % 4); ov = ((i+1) % 16)*KVT
            if qk:
                I(f"{M16} {vr(SA,16)}, {ar(kb)}, {vr(QA0)}, 0")
                if not self.x_nords: I(f"ds_read_b128 {ar(k2)}, v{vK16} offset:{ok}")
            exps(SB, PB, 0)
            if qk:
                I(f"{M8} {vr(SA,16)}, a[{kb+4}:{kb+5}], v[{QA1}:{QA1+1}], {vr(SA,16)}")
            exps(SB, PB, 1)
            I(f"{M16} {vr(OA,16)}, {ar(vb)}, {vr(PA)}, {vr(OA,16)}")
            if qk and not self.x_nords: I(f"ds_read_b64 a[{k2+4}:{k2+5}], v{vK8} offset:{ok+1024}")
            exps(SB, PB, 2)
            I(f"{M16} {vr(OA,16)}, {ar(vb+4)}, {vr(PA+4)}, {vr(OA,16)}")
            if qk: copy_slot(i % 4, 0)
            exps(SB, PB, 3)
            if qk:
                I(f"{M16} {vr(SB,16)}, {ar(kb)}, {vr(QB0)}, 0")
                if not self.x_nords: I(f"ds_read_b128 {ar(v1)}, v{vK16} offset:{ov+1280}")
                exps(SA, PA, 0)
                I(f"{M8} {vr(SB,16)}, a[{kb+4}:{kb+5}], v[{QB1}:{QB1+1}], {vr(SB,16)}")
                copy_slot(i % 4, 1)
                exps(SA, PA, 1)
            I(f"{M16} {vr(OB,16)}, {ar(vb)}, {vr(PB)}, {vr(OB,16)}")
            if qk:
                if not self.x_nords: I(f"ds_read_b128 {ar(v1+4)}, v{vK16} offset:{ov+2304}")
                exps(SA, PA, 2)
            I(f"{M16} {vr(OB,16)}, {ar(vb+4)}, {vr(PB+4)}, {vr(OB,16)}")
            if qk:
                if i % 4 == 3:
                    I(f"s_sub_u32 s{cnt}, s{cnt}, 1")
                    header((i // 4 + 1) % 4)
                else:
                    I("s_waitcnt lgkmcnt(4)")
                exps(SA, PA, 3)
        I(f"""
        s_mul_i32 s{SKL}, s{S_WV}, {KVT}
        s_add_u32 s{SKS}, s{SKL}, {KV + 8*KVT}
        s_add_u32 s{SKL}, s{SKL}, {KVL}
        s_mov_b32 s{SBM}, {self.L_DUMMY}
        s_mov_b32 s{self.S_DS}, {KV}
        s_mov_b32 s{self.S_INC}, 0
        s_mov_b32 s84, {hex(mask)}
        """)
        I("s_waitcnt lgkmcnt(0)")
        lentry = self.b.uid("L_ent")
        I(f"""
        s_branch {lhk[4]}
        {lentry}:
        s_add_u32 s{SKS}, s{SKS}, {4*KVT}
        s_add_u32 m0, s{SKL}, {3*4*KVT}
        """)
        self.stamp("loop_in")
        I(f"{lp}:")
        for i in range(16): body(i)
        I(f"s_cmp_lg_u32 s{cnt}, 0\ns_cbranch_scc1 {lp}")
        self.stamp("loop_out")
        C("drain: iteration 64 (V_63)")
        I("s_waitcnt lgkmcnt(0)")
        body(0, qk=False)
        I(f"s_cmp_lg_u32 s{self.S_SLOW}, 0\ns_cbranch_scc1 {lab_slow}\ns_branch {lab_done}")
        I(f"{lhk[4]}:")
        self.hook_body(hooks, 16)
        I(f"s_branch {lentry}")
        for part in range(4):
            I(f"{lhk[part]}:")
            ks = [k for k in sorted(hooks, reverse=True) if (16 - k) % 4 == part and k != 16]
            for n_, k in enumerate(ks):
                nx = None
                if n_ < len(ks) - 1:
                    nx = self.b.uid("L_hk")
                    I(f"s_cmp_lg_u32 s{cnt}, {k}\ns_cbranch_scc1 {nx}")
                self.hook_body(hooks, k)
                I(f"s_branch {lback[part]}")
                if nx: I(f"{nx}:")
            if not ks: I(f"s_branch {lback[part]}")
        I(f"{lab_slow}:")
        for r in range(16): I(f"v_mov_b32 v{OA+r}, 0\nv_mov_b32 v{OB+r}, 0")
        MA_, MB_, T0 = AT+4, AT+5, AT+6
        I(f"v_mov_b32 v{MA_}, 0xff7fffff\nv_mov_b32 v{MB_}, 0xff7fffff")
        I(f"s_mov_b32 s{sK}, {KV}\ns_mov_b32 s{cnt}, 64")
        lp2 = self.b.uid("L_atts")
        I(f"{lp2}:")
        k0, v0 = kreg(0), vreg(0)
        I(f"""
        buffer_load_dwordx4 {ar(k0)}, v{V_L16}, {sr(S_WS)}, s{sK} offen
        buffer_load_dwordx2 a[{k0+4}:{k0+5}], v{vK1}, {sr(S_WS)}, s{sK} offen offset:1024
        buffer_load_dwordx4 {ar(v0)}, v{V_L16}, {sr(S_WS)}, s{sK} offen offset:1280
        buffer_load_dwordx4 {ar(v0+4)}, v{V_L16}, {sr(S_WS)}, s{sK} offen offset:2304
        s_add_u32 s{sK}, s{sK}, {KVT}
        s_waitcnt vmcnt(0)
        """)
        for (S, P, O, Q0, Q1, Mx) in ((SA, PA, OA, QA0, QA1, MA_), (SB, PB, OB, QB0, QB1, MB_)):
            I(f"{M16} {vr(S,16)}, {ar(kreg(0))}, {vr(Q0)}, 0")
            I(f"{M8} {vr(S,16)}, a[{kreg(0)+4}:{kreg(0)+5}], v[{Q1}:{Q1+1}], {vr(S,16)}")
            I(f"v_max3_f32 v{T0}, v{S}, v{S+1}, v{S+2}")
            for r in range(3, 15, 2): I(f"v_max3_f32 v{T0}, v{T0}, v{S+r}, v{S+r+1}")
            I(f"v_max_f32 v{T0}, v{T0}, v{S+15}")
            I(f"v_mov_b32 v{T0+1}, v{T0}\nv_permlane32_swap_b32 v{T0}, v{T0+1}\nv_max_f32 v{T0}, v{T0}, v{T0+1}")
            I(f"v_max_f32 v{T0}, v{T0}, v{Mx}")
            I(f"v_sub_f32 v{T0+1}, v{Mx}, v{T0}\nv_exp_f32 v{T0+1}, v{T0+1}\nv_mov_b32 v{Mx}, v{T0}")
            for r in range(16): I(f"v_mul_f32 v{O+r}, v{O+r}, v{T0+1}")
            for r in range(16): I(f"v_sub_f32 v{S+r}, v{S+r}, v{T0}")
            for q in range(4): exps(S, P, q)
            I(f"{M16} {vr(O,16)}, {ar(vreg(0))}, {vr(P)}, {vr(O,16)}")
            I(f"{M16} {vr(O,16)}, {ar(vreg(0)+4)}, {vr(P+4)}, {vr(O,16)}")
        I(f"s_sub_u32 s{cnt}, s{cnt}, 1\ns_cmp_lg_u32 s{cnt}, 0\ns_cbranch_scc1 {lp2}")
        I(f"{lab_done}:")
        I("s_waitcnt vmcnt(0)\ns_barrier")
        self.stamp("attn")
        self.mod_fetch()
        self.ring_state_after_attn()
        C("normalise and store O in the B-fragment layout of the wo GEMM")
        T = AT
        PK = SA
        I(f"""
        v_lshlrev_b32 v{self.V_L8}, 3, v{V_L}
        s_mul_i32 s{ST}, s{S_WV}, 3072
        s_add_u32 s{ST}, s{ST}, {144*1024}
        v_mul_u32_u24 v{T}, 176, v{V_T}
        v_add_u32 v{T}, s{ST}, v{T}
        v_lshl_add_u32 v{T+1}, v{V_G}, 3, v{T}
        v_bfe_u32 v{T+4}, v{V_L}, 4, 1
        v_mul_u32_u24 v{T+4}, 40, v{T+4}
        v_add_u32 v{T}, v{T}, v{T+4}
        v_lshrrev_b32 v{T+4}, 5, v{V_L}
        v_lshl_add_u32 v{T}, v{T+4}, 3, v{T}
        """)
        for (O, u) in ((OA, 0), (OB, 1)):
            I(f"v_mov_b32 v{T+2}, v{O+8}\nv_mov_b32 v{T+3}, v{O+8}\nv_permlane32_swap_b32 v{T+2}, v{T+3}")
            I(f"v_rcp_f32 v{T+3}, v{T+3}")
            for run in range(3):
                a = O + 4*run
                for r in range(4): I(f"v_mul_f32 v{a+r}, v{a+r}, v{T+3}")
                I(f"v_cvt_pk_bf16_f32 v{a}, v{a}, v{a+1}\nv_cvt_pk_bf16_f32 v{a+1}, v{a+2}, v{a+3}")
                if run == 2: I(f"s_mov_b32 exec_hi, 0")
                I(f"ds_write_b64 v{T}, v[{a}:{a+1}] offset:{80*u + 16*run}")
                if run == 2: I(f"s_mov_b32 exec_hi, -1")
        I("s_waitcnt lgkmcnt(0)")
        for j in range(5):
            I(f"ds_read_b64 v[{PK+2*j}:{PK+2*j+1}], v{T+1} offset:{32*j}")
        I(f"s_mul_i32 s{self.S_T5}, s{S_M}, 5")
        self.tile_base(ST+4, S_TT, 20, OF)
        I("s_waitcnt lgkmcnt(0)")
        self.store_frag(PK, 5, ST+4, self.S_T5)
        self.publish(PH_O); self.vm_drained()
        I("s_barrier")
        self.refill(); self.drip(4)
        self.stamp("opub")

    def dual(self, fn):
        I = self.I
        ls = self.b.uid("L_sl"); lj = self.b.uid("L_sj")
        I(f"s_cmp_eq_u32 s{S_FAST}, 0\ns_cbranch_scc1 {ls}")
        fn("")
        I(f"s_branch {lj}\n{ls}:")
        fn(" sc1")
        I(f"{lj}:")

    def xid_publish(self):
        I = self.I
        lab = self.b.uid("L_xp")
        I(f"""
        s_cmp_lg_u32 s{S_WV}, 0
        s_cbranch_scc1 {lab}
        s_getreg_b32 s{ST}, hwreg(HW_REG_XCC_ID)
        s_and_b32 s{ST}, s{ST}, 15
        v_mov_b32 v252, s{ST}
        v_mov_b32 v253, 0
        v_mov_b32 v254, s{S_TAG}
        v_mov_b32 v255, s{S_TAG+1}
        s_lshl_b32 s{ST}, s{S_RB}, 7
        s_lshl_b32 s{ST+1}, s{S_M}, 4
        s_add_u32 s{ST}, s{ST}, s{ST+1}
        s_add_u32 s{ST}, s{ST}, {XIDG}
        v_mov_b32 v251, s{ST}
        s_mov_b64 exec, 1
        buffer_store_dwordx4 v[252:255], v251, {sr(S_WS)}, 0 offen sc1
        s_mov_b64 exec, -1
        {lab}:
        """)

    XV = 240
    def xid_issue(self):
        I = self.I
        I(f"""
        s_and_b32 s{ST+5}, s{S_RB}, 28
        s_lshl_b32 s{ST+5}, s{ST+5}, 7
        s_add_u32 s{ST+5}, s{ST+5}, {XIDG}
        v_and_b32 v251, 31, v{V_L}
        v_lshlrev_b32 v251, 4, v251
        buffer_load_dwordx4 {vr(self.XV)}, v251, {sr(S_WS)}, s{ST+5} offen sc1
        """)

    def xid_eval(self):
        I = self.I
        X = self.XV
        lp = self.b.uid("L_xc"); ok = self.b.uid("L_xcok")
        I(f"""
        s_mov_b32 s{ST+4}, {TIMEOUT}
        {lp}:
        v_cmp_ne_u32 vcc, s{S_TAG}, v{X+2}
        s_mov_b64 s[{ST+6}:{ST+7}], vcc
        v_cmp_ne_u32 vcc, s{S_TAG+1}, v{X+3}
        s_or_b64 s[{ST+6}:{ST+7}], s[{ST+6}:{ST+7}], vcc
        s_cmp_eq_u64 s[{ST+6}:{ST+7}], 0
        s_cbranch_scc1 {ok}
        """)
        self.xid_issue()
        I("s_waitcnt vmcnt(0)")
        self.spin_tail(ST+4, lp, 14)
        I(f"""
        {ok}:
        s_getreg_b32 s{ST+4}, hwreg(HW_REG_XCC_ID)
        s_and_b32 s{ST+4}, s{ST+4}, 15
        v_cmp_ne_u32 vcc, s{ST+4}, v{X}
        s_cmp_eq_u64 vcc, 0
        s_cselect_b32 s{S_FAST}, {0 if self.force_global else 1}, 0
        """)

    def rl_poll_issue(self):
        I = self.I
        lab = self.b.uid("L_rpi")
        T = 232
        I(f"s_cmp_lg_u32 s{S_WV}, 0\ns_cbranch_scc1 {lab}\nv_lshlrev_b32 v250, 7, v{V_L}")
        for i in range(4):
            I(f"s_mov_b32 s{ST+5}, {RLFLAG + i*8192}\nbuffer_load_dwordx2 v[{T+2*i}:{T+1+2*i}], v250, {sr(S_WS)}, s{ST+5} offen sc1")
        I(f"{lab}:")

    def rl_poll_eval(self):
        I = self.I
        lab = self.b.uid("L_rw"); lp = self.b.uid("L_rwp"); ok = self.b.uid("L_rwok")
        T = 232
        I(f"s_cmp_lg_u32 s{S_WV}, 0\ns_cbranch_scc1 {lab}\ns_mov_b32 s{ST+4}, {TIMEOUT}\n{lp}:\ns_mov_b64 s[{ST+6}:{ST+7}], 0")
        for i in range(4):
            I(f"""
            v_cmp_ne_u32 vcc, s{S_TAG}, v{T+2*i}
            s_or_b64 s[{ST+6}:{ST+7}], s[{ST+6}:{ST+7}], vcc
            v_cmp_ne_u32 vcc, s{S_TAG+1}, v{T+1+2*i}
            s_or_b64 s[{ST+6}:{ST+7}], s[{ST+6}:{ST+7}], vcc
            """)
        I(f"s_cmp_eq_u64 s[{ST+6}:{ST+7}], 0\ns_cbranch_scc1 {ok}")
        self.rl_poll_issue()
        I("s_waitcnt vmcnt(0)")
        self.spin_tail(ST+4, lp, 4)
        I(f"{ok}:\n{lab}:\ns_barrier")

    def publish(self, ph, both=False, vmn=0, line_sreg=None):
        I = self.I
        ln = S_TT if line_sreg is None else line_sreg
        I(f"""
        v_mov_b32 v254, s{S_TAG}
        v_mov_b32 v255, s{S_TAG+1}
        s_lshl_b32 s{ST}, s{ln}, 7
        s_lshl_b32 s{ST+1}, s{S_M}, 3
        s_add_u32 s{ST}, s{ST}, s{ST+1}
        s_add_u32 s{ST}, s{ST}, {CFLAG + ph*CF_PH}
        v_mov_b32 v253, s{ST}
        s_mov_b32 s{ST+1}, {CF_LOC}
        s_waitcnt vmcnt({vmn})
        s_mov_b64 exec, 1
        """)
        def st(f):
            if f == "":
                I(f"buffer_store_dwordx2 v[254:255], v253, {sr(S_WS)}, s{ST+1} offen")
                if both: I(f"buffer_store_dwordx2 v[254:255], v253, {sr(S_WS)}, 0 offen sc1")
            else:
                I(f"buffer_store_dwordx2 v[254:255], v253, {sr(S_WS)}, 0 offen sc1")
        self.dual(st)
        I(f"s_mov_b64 exec, -1")

    def publish_drip(self, ph, both=False, line_sreg=None):
        if self.detail == 2: self.stamp(f"e_sto{ph}")
        self.publish(ph, both=both, vmn=0, line_sreg=line_sreg)
        self.vmq = []
        self.drip(self.pub_after)

    def wait_flags(self, ph, lines, code, work=None):
        I = self.I
        lp = self.b.uid("L_wfp"); ok = self.b.uid("L_wfok")
        I(f"v_mov_b32 v251, s{lines[0]}")
        if len(lines) > 1:
            I(f"v_lshrrev_b32 v250, 3, v{V_L}\nv_and_b32 v250, 3, v250")
            for i, r in enumerate(lines[1:], 1):
                I(f"v_cmp_eq_u32 vcc, {i}, v250\nv_mov_b32 v252, s{r}\nv_cndmask_b32 v251, v251, v252, vcc")
        I(f"""
        v_lshrrev_b32 v250, 4, v251
        s_lshr_b32 s{ST}, s{S_RB}, 2
        v_cmp_eq_u32 vcc, s{ST}, v250
        s_mul_i32 s{ST}, s{S_FAST}, {CF_LOC}
        v_mov_b32 v252, s{ST}
        v_cndmask_b32 v250, 0, v252, vcc
        v_lshl_add_u32 v251, v251, 7, v250
        v_and_b32 v252, 7, v{V_L}
        v_lshl_add_u32 v251, v252, 3, v251
        s_mov_b32 s{ST+1}, {CFLAG + ph*CF_PH}
        s_mov_b32 s{ST}, {TIMEOUT}
        buffer_load_dwordx2 v[254:255], v251, {sr(S_WS)}, s{ST+1} offen sc1
        """)
        n0 = len(self.vmq)
        self.drip(self.shadow_f)
        nsh = len(self.vmq) - n0
        if work: work()
        lchk = self.b.uid("L_wfc")
        I(f"""
        s_waitcnt vmcnt({nsh})
        s_branch {lchk}
        {lp}:
        buffer_load_dwordx2 v[254:255], v251, {sr(S_WS)}, s{ST+1} offen sc1
        s_waitcnt vmcnt(0)
        {lchk}:
        v_cmp_ne_u32 vcc, s{S_TAG}, v254
        s_mov_b64 s[{ST+2}:{ST+3}], vcc
        v_cmp_ne_u32 vcc, s{S_TAG+1}, v255
        s_or_b64 s[{ST+2}:{ST+3}], s[{ST+2}:{ST+3}], vcc
        s_cmp_eq_u64 s[{ST+2}:{ST+3}], 0
        s_cbranch_scc1 {ok}
        """)
        self.spin_tail(ST, lp, code)
        I(f"{ok}:")
        self.vmq = self.vmq[len(self.vmq)-nsh:] if nsh else []

    X2, H = 4, 24
    ACC = 44
    MS_GA = 64
    WB = 100
    MS_A2, MS_SB = 160, 180
    GT = 200
    RING = 160
    F_WO, F_W1, F_W2, F_W3, F_W4 = 0, 100, 200, 304, 448
    NUNITS = 45
    S_T5 = 29
    S_SRC = 30
    S_WA, S_W3 , S_W4 = 90, 91, 92
    S_LW = 93
    S_DM, S_DS, S_AO, S_AO2 = 94, 95, 88, 89

    def vm_issue(self, tag): self.vmq.append(tag)
    def vm_wait(self, tag):
        if tag not in self.vmq: return
        i = len(self.vmq) - 1 - self.vmq[::-1].index(tag)
        n = len(self.vmq) - 1 - i
        self.I(f"s_waitcnt vmcnt({min(n, 63)})")
        self.vmq = self.vmq[i+1:]
    def vm_drained(self): self.vmq = []

    def ring_regs(self):
        I = self.I
        I(f"""
        s_lshl_b32 s{self.S_LW}, s{S_WV}, 12
        s_mul_i32 s{self.S_WA}, s{S_M}, {WSA_M}
        s_add_u32 s{self.S_WA}, s{self.S_WA}, {WSA}
        s_add_u32 s{self.S_WA}, s{self.S_WA}, s{self.S_LW}
        s_and_b32 s{self.S_W3}, s{S_RB}, 1
        s_lshl_b32 s{self.S_W3}, s{self.S_W3}, 3
        s_add_u32 s{self.S_W3}, s{self.S_W3}, s{S_M}
        s_mul_i32 s{self.S_W3}, s{self.S_W3}, {W3S_M}
        s_add_u32 s{self.S_W3}, s{self.S_W3}, {W3S}
        s_add_u32 s{self.S_W3}, s{self.S_W3}, s{self.S_LW}
        s_mul_i32 s{self.S_W4}, s{S_M}, {W4S_M}
        s_add_u32 s{self.S_W4}, s{self.S_W4}, {W4S}
        s_add_u32 s{self.S_W4}, s{self.S_W4}, s{self.S_LW}
        """)

    def refill(self, maxn=99):
        n = 0
        while self.units_queued < self.NUNITS and n < maxn:
            u = self.units_queued
            if 16*u + 15 - self.RING > self.consumed: break
            for q in range(4):
                self.pend.append((("u", u, q), (lambda u=u, q=q: self.emit_dma(u, q))))
            self.units_queued += 1; n += 1
        self.resort()

    def resort(self):
        ctx = getattr(self, "loop_ctx", None)
        if ctx is None: return
        F0, NT, S = ctx
        def key(e):
            t = e[0]
            if t[0] == "a": return t[2]
            F = 16*t[1]
            if F + 15 < F0: return -100
            st = max(0, (F - F0)//NT)
            if st >= S: return 1000 + t[1]
            return 4*(st//4) - 2 - 1
        self.pend.sort(key=key)

    def emit_dma(self, u, q, track=True):
        I = self.I
        if q == 0:
            F = 16*u
            if F < 304: base, off = self.S_WA, F*1024
            elif F < 448: base, off = self.S_W3, (F-304)*1024
            else: base, off = self.S_W4, (F-448)*1024
            slot = (F % self.RING)*1024
            I(f"s_add_u32 s{self.S_DM}, s{self.S_LW}, {slot}\ns_mov_b32 m0, s{self.S_DM}\ns_add_u32 s{self.S_DS}, s{base}, {off}")
        I(f"buffer_load_dwordx4 v{V_L16}, {sr(S_WS)}, s{self.S_DS} offen offset:{1024*q} lds")
        if track:
            self.vm_issue(("u", u) if q == 3 else ("ux", u, q))
            if q == 3: self.units_issued = u + 1

    def drip(self, n=1):
        while n > 0 and self.pend:
            tag, fn = self.pend.pop(0)
            fn(); n -= 1

    def flush_until(self, tag):
        if not any(t == tag for t, _ in self.pend): return
        while True:
            t, fn = self.pend.pop(0)
            fn()
            if t == tag: return

    def need_units(self, Fmax):
        u = Fmax // 16
        assert u < self.units_queued, (u, self.units_queued)
        self.flush_until(("u", u, 3))
        self.vm_wait(("u", u))

    def gemm(self, S, NT, F0, aops, abases, burst, rate, cap=99, post_barrier=True, resident=False, chunk=4, accf=None, filler=None, fill_n=0):
        I = self.I
        WB, ACC, T = self.WB, self.ACC, self.GT
        nt = len(abases)
        vb = [T, T+1, T+2]
        stride = 4*NT
        if accf is None: accf = lambda tt, j: ACC + 4*(tt*NT + j)
        filler = list(filler or [])
        def rd1(s, j):
            off = ((F0 + s*NT + j) % self.RING)*1024
            k, o = divmod(off, 61440)
            I(f"ds_read_b128 {vr(WB + stride*(s % 3) + 4*j)}, v{vb[k]} offset:{o}")
        while self.pend and self.pend[0][0][0] == "u" and self.pend[0][0][2] != 0: self.drip(1)
        keep = []
        if resident:
            keep = [e for e in self.pend if e[0][0] == "u"]
            self.pend = []
        self.pend = list(aops) + self.pend
        self.loop_ctx = (F0, NT, S)
        if not resident: self.refill(cap)
        self.drip(burst)
        for j in range(NT): rd1(0, j)
        for j in range(NT): rd1(1, j)
        acc_rate = 0.0
        for s in range(S):
            if not resident and s + 2 < S and (s + 2) % chunk == 0:
                last = min(S, s + 2 + chunk) - 1
                if F0 + last*NT + NT - 1 > self.visible or self.units_queued < self.NUNITS:
                    self.need_units(F0 + last*NT + NT - 1)
                    I("s_barrier")
                    self.visible = max(self.visible, F0 + last*NT + NT - 1)
                    self.consumed = max(self.consumed, F0 + (s-1)*NT + NT - 1)
                    self.refill(cap)
            if self.detail == F0 and s % 4 == 0: self.stamp(f"d_k{s}")
            nout = NT if s + 1 < S else 0
            I(f"s_waitcnt lgkmcnt({min(nout, 15)})")
            for tt in range(nt):
                self.flush_until(("a", tt, s))
                self.vm_wait(("a", tt, s))
            acc_rate += rate
            nm = nt*NT
            slots = []
            while acc_rate >= 1.0:
                slots.append(1); acc_rate -= 1.0
            pos = {(k*nm)//max(1, len(slots)) : 0 for k in range(len(slots))}
            for k in range(len(slots)): pos[(k*nm)//len(slots)] += 1
            i = 0
            for tt in range(nt):
                for j in range(NT):
                    c = '0' if s == 0 else vr(accf(tt, j))
                    I(f"v_mfma_f32_16x16x32_bf16 {vr(accf(tt, j))}, {vr(WB+stride*(s%3)+4*j)}, {ar(abases[tt]+4*s)}, {c}")
                    if i < NT and s + 2 < S: rd1(s+2, i)
                    if pos.get(i): self.drip(pos[i])
                    for _ in range(fill_n):
                        if filler: I(filler.pop(0))
                    i += 1
        for x in filler: I(x)
        self.pending_consumed = {299: 303, 443: 447}.get(F0 + S*NT - 1, F0 + S*NT - 1)
        self.loop_ctx = None
        self.pend = self.pend + keep
        if post_barrier:
            I("s_barrier")
            self.after_barrier()
            self.refill()
            self.drip({0: self.post_drip, 100: self.post_drip, 200: self.post_drip2, 384: self.post_drip3, 304: self.post_drip3}.get(F0, 0))

    def after_barrier(self):
        self.consumed = max(self.consumed, getattr(self, "pending_consumed", -1))

    def lds_bases(self):
        T = self.GT
        self.I(f"v_mov_b32 v{T}, v{V_L16}\nv_add_u32 v{T+1}, 61440, v{V_L16}\nv_add_u32 v{T+2}, {2*61440}, v{V_L16}")

    def a_op(self, tt, s, abase, vaddr, base_sreg, base_add, soff_reg, split=(), vaddr8=None):
        def fn():
            if s % 4 == 0:
                if base_sreg is None: self.I(f"s_mov_b32 s{soff_reg}, {base_add + 1024*s}")
                else: self.I(f"s_add_u32 s{soff_reg}, s{base_sreg}, {base_add + 1024*s}")
            r = abase + 4*s
            if s in split:
                self.I(f"buffer_load_dwordx2 a[{r}:{r+1}], v{vaddr8}, {sr(S_WS)}, s{soff_reg} offen offset:{1024*(s % 4)} sc1")
                self.vm_issue(("ah", tt, s))
                self.I(f"buffer_load_dwordx2 a[{r+2}:{r+3}], v{vaddr8}, {sr(S_WS)}, s{soff_reg} offen offset:{1024*(s % 4)+512} sc1")
            else:
                self.I(f"buffer_load_dwordx4 {ar(r)}, v{vaddr}, {sr(S_WS)}, s{soff_reg} offen offset:{1024*(s % 4)} sc1")
            self.vm_issue(("a", tt, s))
        return (("a", tt, s), fn)

    RAW_GA, RAW_SB, RAW_CB, RAW_GB = 140, 150, 214, 240
    def mod_fetch(self):
        I = self.I
        I(f"v_lshlrev_b32 v244, 4, v{V_G}\nv_add_u32 v244, {self.L_MODW}, v244")
        for (dst, off, acc) in ((self.RAW_GA, 0, False), (self.RAW_SB, 2560, False), (self.RAW_CB, 4096, False), (self.RAW_GB, 4096+2560, True)):
            for j in range(5):
                r = f"a[{dst+2*j}:{dst+2*j+1}]" if acc else f"v[{dst+2*j}:{dst+2*j+1}]"
                I(f"ds_read_b64 {r}, v244 offset:{off + 64*j}")

    def mod_unpack(self):
        I = self.I
        for src, dst in ((self.RAW_GA, self.MS_GA), (self.RAW_SB, self.MS_SB), (self.RAW_CB, self.MS_A2)):
            for i in range(10):
                I(f"v_lshlrev_b32 v{dst+2*i}, 16, v{src+i}\nv_and_b32 v{dst+2*i+1}, 0xffff0000, v{src+i}")
        self.one_plus_bf16(self.MS_A2, 20)

    def one_plus_bf16(self, r, n):
        I = self.I
        for i in range(0, n, 2):
            I(f"""
            v_add_f32 v{r+i}, 1.0, v{r+i}
            v_add_f32 v{r+i+1}, 1.0, v{r+i+1}
            v_cvt_pk_bf16_f32 v{r+i}, v{r+i}, v{r+i+1}
            v_and_b32 v{r+i+1}, 0xffff0000, v{r+i}
            v_lshlrev_b32 v{r+i}, 16, v{r+i}
            """)

    def ln_stats(self, src, which, mu, rs, code, fine=0):
        I = self.I
        T = self.GT + 4
        I(f"v_pk_add_f32 v[{T}:{T+1}], v[{src}:{src+1}], v[{src+2}:{src+3}]\nv_pk_mul_f32 v[{T+2}:{T+3}], v[{src}:{src+1}], v[{src}:{src+1}]")
        I(f"v_pk_fma_f32 v[{T+2}:{T+3}], v[{src+2}:{src+3}], v[{src+2}:{src+3}], v[{T+2}:{T+3}]")
        for i in range(4, 20, 2):
            I(f"v_pk_add_f32 v[{T}:{T+1}], v[{T}:{T+1}], v[{src+i}:{src+i+1}]\nv_pk_fma_f32 v[{T+2}:{T+3}], v[{src+i}:{src+i+1}], v[{src+i}:{src+i+1}], v[{T+2}:{T+3}]")
            if i in (8, 14): self.drip(fine)
        I(f"v_add_f32 v{T}, v{T}, v{T+1}\nv_add_f32 v{T+1}, v{T+2}, v{T+3}")
        self.reduce_g([T, T+1], T+4)
        I(f"""
        v_mov_b32 v{T+2}, s{S_TAG}
        v_mov_b32 v{T+3}, s{S_TAG+1}
        s_lshl_b32 s{ST+4}, s{S_RB}, 13
        s_lshl_b32 s{ST+5}, s{S_WV}, 8
        s_add_u32 s{ST+4}, s{ST+4}, s{ST+5}
        s_add_u32 s{ST+4}, s{ST+4}, {STAT + which*STAT_SZ}
        s_lshl_b32 s{ST+5}, s{S_M}, 10
        s_add_u32 s{ST+5}, s{ST+5}, s{ST+4}
        v_lshlrev_b32 v{T+4}, 4, v{V_T}
        s_mov_b64 exec, 0xffff
        """)
        self.dual(lambda f: I(f"buffer_store_dwordx4 {vr(T)}, v{T+4}, {sr(S_WS)}, s{ST+5} offen{f}"))
        I("s_mov_b64 exec, -1")
        if self.detail == 2: self.stamp(f"e_st{which}")
        I(f"""
        s_mov_b64 exec, -1
        v_lshl_add_u32 v{T+5}, v{V_G}, 11, v{T+4}
        s_mov_b32 s{ST}, {TIMEOUT}
        """)
        lp = self.b.uid("L_ls"); ok = self.b.uid("L_lsok"); lchk = self.b.uid("L_lsc")
        I(f"""
        buffer_load_dwordx4 {vr(T+8)}, v{T+5}, {sr(S_WS)}, s{ST+4} offen sc1
        buffer_load_dwordx4 {vr(T+12)}, v{T+5}, {sr(S_WS)}, s{ST+4} offen offset:1024 sc1
        """)
        n0 = len(self.vmq)
        self.drip(self.shadow_s)
        nsh = len(self.vmq) - n0
        I(f"""
        s_waitcnt vmcnt({nsh})
        s_branch {lchk}
        {lp}:
        buffer_load_dwordx4 {vr(T+8)}, v{T+5}, {sr(S_WS)}, s{ST+4} offen sc1
        buffer_load_dwordx4 {vr(T+12)}, v{T+5}, {sr(S_WS)}, s{ST+4} offen offset:1024 sc1
        s_waitcnt vmcnt(0)
        {lchk}:
        v_cmp_ne_u32 vcc, s{S_TAG}, v{T+10}
        s_mov_b64 s[{ST+2}:{ST+3}], vcc
        v_cmp_ne_u32 vcc, s{S_TAG+1}, v{T+11}
        s_or_b64 s[{ST+2}:{ST+3}], s[{ST+2}:{ST+3}], vcc
        v_cmp_ne_u32 vcc, s{S_TAG}, v{T+14}
        s_or_b64 s[{ST+2}:{ST+3}], s[{ST+2}:{ST+3}], vcc
        v_cmp_ne_u32 vcc, s{S_TAG+1}, v{T+15}
        s_or_b64 s[{ST+2}:{ST+3}], s[{ST+2}:{ST+3}], vcc
        s_cmp_eq_u64 s[{ST+2}:{ST+3}], 0
        s_cbranch_scc1 {ok}
        """)
        self.spin_tail(ST, lp, code)
        self.vmq = self.vmq[len(self.vmq)-nsh:] if nsh else []
        I(f"{ok}:")
        if self.detail == 2: self.stamp(f"e_got{which}")
        I(f"""
        v_add_f32 v{T}, v{T+8}, v{T+12}
        v_add_f32 v{T+1}, v{T+9}, v{T+13}
        """)
        self.reduce_g([T, T+1], T+4)
        I(f"""
        v_mul_f32 v{mu}, {1.0/640!r}, v{T}
        v_mul_f32 v{T+1}, {1.0/640!r}, v{T+1}
        v_fma_f32 v{T+1}, -v{mu}, v{mu}, v{T+1}
        v_max_f32 v{T+1}, 0, v{T+1}
        v_add_f32 v{T+1}, 0x3727c5ac, v{T+1}
        v_rsq_f32 v{rs}, v{T+1}
        s_nop 0
        v_mul_f32 v{mu}, -v{mu}, v{rs}
        v_mov_b32 v{rs+1}, v{rs}
        v_mov_b32 v{mu+1}, v{mu}
        """)

    V_L8 = 203
    SPLIT20 = (2, 7, 12, 17)
    SPLIT54 = (3, 10, 17, 24, 31, 38)
    def pack_tiles(self, src, ntile, dst=None):
        if dst is None: dst = src
        for j in range(ntile):
            a = src + 4*j; d = dst + 2*j
            self.I(f"v_cvt_pk_bf16_f32 v{d}, v{a}, v{a+1}\nv_cvt_pk_bf16_f32 v{d+1}, v{a+2}, v{a+3}")

    def store_frag(self, pk, ntile, base_sreg, tile0_sreg, skip_last_sreg=None, force_sc1=False, count=True):
        I = self.I
        lodd = self.b.uid("L_so"); lj = self.b.uid("L_sj")
        I(f"""
        s_lshr_b32 s{ST+5}, s{tile0_sreg}, 1
        s_lshl_b32 s{ST+5}, s{ST+5}, 10
        s_add_u32 s{ST+5}, s{ST+5}, s{base_sreg}
        s_bitcmp1_b32 s{tile0_sreg}, 0
        s_cbranch_scc1 {lodd}
        """)
        def variant(odd, f):
            if not odd:
                for p in range(ntile//2):
                    I(f"buffer_store_dwordx4 {vr(pk+4*p)}, v{V_L16}, {sr(S_WS)}, s{ST+5} offen offset:{1024*p}{f}")
                if ntile % 2:
                    lab = None
                    if skip_last_sreg is not None:
                        lab = self.b.uid("L_sk")
                        I(f"s_cmp_lg_u32 s{skip_last_sreg}, 0\ns_cbranch_scc1 {lab}")
                    j = ntile-1
                    I(f"buffer_store_dwordx2 v[{pk+2*j}:{pk+2*j+1}], v{self.V_L8}, {sr(S_WS)}, s{ST+5} offen offset:{1024*(ntile//2)}{f}")
                    if lab: I(f"{lab}:")
            else:
                I(f"buffer_store_dwordx2 v[{pk}:{pk+1}], v{self.V_L8}, {sr(S_WS)}, s{ST+5} offen offset:512{f}")
                for p in range(ntile//2):
                    I(f"buffer_store_dwordx4 {vr(pk+2+4*p)}, v{V_L16}, {sr(S_WS)}, s{ST+5} offen offset:{1024*(p+1)}{f}")
        if force_sc1: variant(False, " sc1")
        else: self.dual(lambda f: variant(False, f))
        I(f"s_branch {lj}\n{lodd}:")
        if force_sc1: variant(True, " sc1")
        else: self.dual(lambda f: variant(True, f))
        I(f"{lj}:")
        if count:
            for j in range(ntile//2): self.vm_issue(("st",))

    def tile_base(self, dst_sreg, tt_sreg, S, base_off):
        self.I(f"s_mul_i32 s{dst_sreg}, s{tt_sreg}, {S*1024}\ns_add_u32 s{dst_sreg}, s{dst_sreg}, {base_off}")

    def gelu(self, r, n, drip=0):
        I = self.I
        T = self.GT + 4
        c1 = -2.0 * 0.7978845608028654 * 1.4426950408889634
        c2 = c1 * 0.044715
        C1, ONE = T+8, T+10
        I(f"""
        s_mov_b32 s{ST+8}, {hex(f2u(c2))}
        s_mov_b32 s{ST+9}, {hex(f2u(c2))}
        v_mov_b32 v{C1}, {hex(f2u(c1))}
        v_mov_b32 v{C1+1}, {hex(f2u(c1))}
        v_mov_b32 v{ONE}, 1.0
        v_mov_b32 v{ONE+1}, 1.0
        """)
        P = lambda x: f"v[{x}:{x+1}]"
        for i in range(0, n, 4):
            x0, x1, t0, t1 = r+i, r+i+2, T, T+2
            I(f"v_pk_mul_f32 {P(t0)}, {P(x0)}, {P(x0)}\nv_pk_mul_f32 {P(t1)}, {P(x1)}, {P(x1)}")
            I(f"v_pk_fma_f32 {P(t0)}, {P(t0)}, s[{ST+8}:{ST+9}], {P(C1)}\nv_pk_fma_f32 {P(t1)}, {P(t1)}, s[{ST+8}:{ST+9}], {P(C1)}")
            I(f"v_pk_mul_f32 {P(t0)}, {P(t0)}, {P(x0)}\nv_pk_mul_f32 {P(t1)}, {P(t1)}, {P(x1)}")
            for q in range(4): I(f"v_exp_f32 v{T+q}, v{T+q}")
            I(f"v_pk_add_f32 {P(t0)}, {P(t0)}, {P(ONE)}\nv_pk_add_f32 {P(t1)}, {P(t1)}, {P(ONE)}")
            for q in range(4): I(f"v_rcp_f32 v{T+q}, v{T+q}")
            I(f"v_pk_mul_f32 {P(x0)}, {P(x0)}, {P(t0)}\nv_pk_mul_f32 {P(x1)}, {P(x1)}, {P(t1)}")
            self.drip(drip)

    def collect(self, fn):
        saved = self.b.items
        self.b.items = []
        fn()
        out = [it.text for it in self.b.items if isinstance(it, Ins)]
        self.b.items = saved
        return out

    def phase_entry(self, ph_wait, lines, code, F0, NT, between=None, upto=None):
        last = F0 + 4*NT - 1 if upto is None else upto
        self.need_units(last)
        self.I("s_barrier")
        self.visible = max(getattr(self, "visible", -1), last)
        self.after_barrier()
        if self.detail == F0: self.stamp("d_bar")
        self.wait_flags(ph_wait, lines, code, work=between)
        if self.detail == F0: self.stamp("d_flags")
        if self.detail == 2: self.stamp(f"e_fl{ph_wait}")

    def small_gemm(self, F0, act, ph_wait, rbs, code, shift=False, between=None, pf=()):
        I, C = self.I, self.C
        def shift_addr():
            T = self.GT + 8
            I(f"s_lshl_b32 s{ST+4}, s{S_TT}, 4\ns_lshr_b32 s{ST+5}, s{S_RB}, 2")
            for q, dl in enumerate((-1, 1, -2, 2)):
                side = 1 if dl < 0 else 0
                I(f"""
                v_add_u32 v{T+4}, s{ST+4}, v{V_T}
                v_add_u32 v{T+4}, {dl & 0xffffffff}, v{T+4}          ; token'
                v_lshrrev_b32 v{T+5}, 4, v{T+4}
                v_mul_u32_u24 v{T+5}, 20480, v{T+5}
                v_add_u32 v{T+5}, {act}, v{T+5}
                v_lshrrev_b32 v{T+6}, 8, v{T+4}
                v_lshlrev_b32 v{T+7}, 1, v{T+6}
                v_add_u32 v{T+7}, {side}, v{T+7}
                v_mul_u32_u24 v{T+7}, 20480, v{T+7}
                v_add_u32 v{T+7}, {HG}, v{T+7}
                v_cmp_eq_u32 vcc, s{ST+5}, v{T+6}
                v_cndmask_b32 v{T+5}, v{T+7}, v{T+5}, vcc
                v_and_b32 v{T+6}, 15, v{T+4}
                v_lshl_add_u32 v{T+6}, v{V_G}, 4, v{T+6}              ; g*16 + t'
                v_lshl_add_u32 v{T+7}, v{T+6}, 3, v{T+5}
                v_lshl_add_u32 v{T+5}, v{T+6}, 4, v{T+5}
                v_cmp_gt_u32 vcc, 0x800, v{T+4}
                v_mov_b32 v{T+6}, 0x80000000
                v_cndmask_b32 v{T+q}, v{T+6}, v{T+5}, vcc
                v_cndmask_b32 v{self.GT+20+q}, v{T+6}, v{T+7}, vcc
                """)
        if shift: between = shift_addr
        self.phase_entry(ph_wait, rbs, code, F0, 5, between, upto=(F0+99 if self.resident else None))
        if not shift:
            I(f"s_mul_i32 s{self.S_SRC}, s{S_TT}, {20*1024}\ns_add_u32 s{self.S_SRC}, s{self.S_SRC}, {act}")
            aops = [self.a_op(0, s, 16, V_L16, self.S_SRC, 0, self.S_AO, self.SPLIT20, self.V_L8) for s in range(20)]
        else:
            T = self.GT + 8
            aops = [self.a_op(0, s, 16, T + s // 5, None, 0, self.S_AO, self.SPLIT20, self.GT + 20 + s // 5) for s in range(20)]
        if self.use_pf: aops += [(("a", 9, 19), (lambda p=p: self.pf_op(*p))) for p in pf]
        if (self.h4t_where == 1 and F0 == self.F_W1) or (self.h4t_where == 2 and F0 == self.F_W2) or (self.h4t_where == 4 and F0 == self.F_WO):
            def h4t():
                self.act_touch(H4F, 54*1024); self.vm_issue(("pf",))
            aops.append((("a", 9, 19), h4t))
        self.gemm(20, 5, F0, aops, [16], burst=self.burst, rate=self.rate_small, cap=self.cap_small, resident=self.resident)

    def phase_wo(self):
        I, C = self.I, self.C
        X2, H, ACC, T = self.X2, self.H, self.ACC, self.GT
        self.lds_bases()
        def pre():
            self.mod_unpack()
            for j in range(5):
                for q in range(2):
                    I(f"v_accvgpr_read_b32 v{T+4}, a{2*j+q}")
                    I(f"v_lshlrev_b32 v{X2+4*j+2*q}, 16, v{T+4}\nv_and_b32 v{X2+4*j+2*q+1}, 0xffff0000, v{T+4}")
        self.small_gemm(self.F_WO, OF, PH_O, [S_TT], 6, pf=[("3", 0)], between=pre)
        self.stamp("wo_mm")
        P = lambda x: f"v[{x}:{x+1}]"
        f = self.fine
        for i in range(0, 20, 2): I(f"v_pk_fma_f32 {P(X2+i)}, {P(self.MS_GA+i)}, {P(ACC+i)}, {P(X2+i)}")
        mu, rs = T+30, T+32
        self.ln_stats(X2, 0, mu, rs, 7, fine=f)
        for i in range(0, 20, 2):
            I(f"v_pk_fma_f32 {P(H+i)}, {P(X2+i)}, {P(rs)}, {P(mu)}")
            I(f"v_pk_fma_f32 {P(H+i)}, {P(H+i)}, {P(self.MS_A2+i)}, {P(self.MS_SB+i)}")
            if i in (0, 8): self.drip(f)
        self.ln_stats(H, 1, mu, rs, 8, fine=f)
        self.drip(f)
        for i in range(0, 20, 2): I(f"v_pk_fma_f32 {P(ACC+i)}, {P(H+i)}, {P(rs)}, {P(mu)}")
        self.pack_tiles(ACC, 5)
        self.tile_base(ST+4, S_TT, 20, L2F)
        self.store_frag(ACC, 5, ST+4, self.S_T5)
        self.publish_drip(PH_L2)
        self.stamp("l2pub")

    def phase_w1(self):
        I = self.I
        self.small_gemm(self.F_W1, L2F, PH_L2, [S_TT], 9, pf=[("3", 1)])
        self.stamp("w1_mm")
        self.gelu(self.ACC, 20, drip=self.gd1)
        self.pack_tiles(self.ACC, 5)
        self.tile_base(ST+4, S_TT, 20, GF)
        self.store_frag(self.ACC, 5, ST+4, self.S_T5)
        lab = self.b.uid("L_hal")
        I(f"""
        s_and_b32 s{ST+6}, s{S_TT}, 15
        s_add_u32 s{ST+6}, s{ST+6}, 1
        s_and_b32 s{ST+7}, s{ST+6}, 14
        s_cmp_eq_u32 s{ST+7}, 0
        s_cbranch_scc0 {lab}
        s_lshr_b32 s{ST+7}, s{S_TT}, 4
        s_lshl_b32 s{ST+7}, s{ST+7}, 1
        s_lshr_b32 s{ST+6}, s{ST+6}, 4
        s_add_u32 s{ST+7}, s{ST+7}, s{ST+6}
        s_mul_i32 s{ST+4}, s{ST+7}, 20480
        s_add_u32 s{ST+4}, s{ST+4}, {HG}
        """)
        self.store_frag(self.ACC, 5, ST+4, self.S_T5, force_sc1=True, count=False)
        I(f"{lab}:")
        self.publish_drip(PH_G, both=True)
        self.stamp("gpub")

    def phase_w2(self):
        I = self.I
        X2, H, ACC, T = self.X2, self.H, self.ACC, self.GT
        I(f"""
        s_sub_u32 s{ST+10}, s{S_TT}, 1
        s_max_i32 s{ST+10}, s{ST+10}, 0
        s_add_u32 s{ST+11}, s{S_TT}, 1
        s_min_u32 s{ST+11}, s{ST+11}, 127
        """)
        self.small_gemm(self.F_W2, GF, PH_G, [S_TT, ST+10, ST+11], 10, shift=True, pf=[("4", 0)])
        self.stamp("w2_mm")
        P = lambda x: f"v[{x}:{x+1}]"
        for i in range(0, 20, 2): I(f"v_pk_add_f32 {P(H+i)}, {P(H+i)}, {P(ACC+i)}")
        mu, rs = T+30, T+32
        self.ln_stats(H, 2, mu, rs, 11, fine=self.fine)
        self.drip(self.fine)
        for i in range(0, 20, 2): I(f"v_pk_fma_f32 {P(ACC+i)}, {P(H+i)}, {P(rs)}, {P(mu)}")
        self.pack_tiles(ACC, 5)
        self.tile_base(ST+4, S_TT, 20, L3F)
        self.store_frag(ACC, 5, ST+4, self.S_T5)
        self.publish_drip(PH_L3)
        self.stamp("l3pub")

    def phase_w3(self):
        I, C = self.I, self.C
        ACC = self.ACC
        m16, t0, skip, rbA, rbB, ttb = ST+10, ST+11, ST+12, ST+13, ST+14, ST+15
        I(f"""
        s_and_b32 s{m16}, s{S_RB}, 1
        s_lshl_b32 s{m16}, s{m16}, 3
        s_add_u32 s{m16}, s{m16}, s{S_M}
        s_mul_i32 s{t0}, s{m16}, 7
        s_sub_u32 s{ST}, s{m16}, 12
        s_max_i32 s{ST}, s{ST}, 0
        s_sub_u32 s{t0}, s{t0}, s{ST}
        s_cmp_ge_u32 s{m16}, 12
        s_cselect_b32 s{skip}, 1, 0
        s_and_b32 s{rbA}, s{S_RB}, 30
        s_add_u32 s{rbB}, s{rbA}, 1
        s_lshl_b32 s{ttb}, s{rbA}, 2
        s_lshl_b32 s{ST}, s{S_WV}, 1
        s_add_u32 s{ttb}, s{ttb}, s{ST}
        """)
        I(f"s_add_u32 s{rbA}, s{ttb}, 1")
        self.phase_entry(PH_L3, [ttb, rbA], 12, self.F_W3, 4 if self.w3split else 7)
        I(f"s_mul_i32 s{self.S_SRC}, s{ttb}, {20*1024}\ns_add_u32 s{self.S_SRC}, s{self.S_SRC}, {L3F}")
        aops = []
        for s in range(20):
            aops.append(self.a_op(0, s, 16, V_L16, self.S_SRC, 0, self.S_AO, self.SPLIT20, self.V_L8))
            aops.append(self.a_op(1, s, 96, V_L16, self.S_SRC, 20*1024, self.S_AO2, self.SPLIT20, self.V_L8))
        if self.use_pf: aops.insert(16, (("a", 9, 8), (lambda: self.pf_op("4", 1))))
        def h4t():
            self.act_touch(H4F, 54*1024); self.vm_issue(("pf",))
        if self.h4t_where == 3: aops.append((("a", 9, 19), h4t))
        if not self.w3split:
            self.gemm(20, 7, self.F_W3, aops, [16, 96], burst=2*self.burst, rate=self.rate_w3)
            self.stamp("w3_mm")
            self.gelu(ACC, 56, drip=self.gd3)
        else:
            self.gemm(20, 4, self.F_W3, aops, [16, 96], burst=2*self.burst, rate=self.rate_w3a, accf=lambda tt, j: ACC + 28*tt + 4*j, post_barrier=False)
            F2 = self.F_W3 + 80
            self.need_units(F2 + 4*3 - 1)
            I("s_barrier")
            self.visible = max(self.visible, F2 + 11)
            self.after_barrier()
            fill = self.collect(lambda: (self.gelu(ACC, 16), self.gelu(ACC+28, 16)))
            self.gemm(20, 3, F2, [], [16, 96], burst=0, rate=self.rate_w3b, accf=lambda tt, j: ACC + 28*tt + 16 + 4*j, filler=fill, fill_n=self.fill_n)
            self.stamp("w3_mm")
            self.gelu(ACC+16, 12, drip=self.gd3)
            self.gelu(ACC+44, 12, drip=self.gd3)
        self.pack_tiles(ACC, 7)
        self.pack_tiles(ACC+28, 7)
        self.tile_base(ST+4, ttb, 54, H4F)
        self.store_frag(ACC, 7, ST+4, t0, skip_last_sreg=skip, force_sc1=(self.h4mode == 2))
        I(f"s_add_u32 s{ST+4}, s{ST+4}, {54*1024}")
        self.store_frag(ACC+28, 7, ST+4, t0, skip_last_sreg=skip, force_sc1=(self.h4mode == 2))
        self.publish_drip(PH_H4)
        self.stamp("h4pub")

    def phase_w4(self):
        I, C = self.I, self.C
        X2, H, ACC, T = self.X2, self.H, self.ACC, self.GT
        rbA, rbB = ST+13, ST+14
        I(f"""
        s_and_b32 s{rbA}, s{S_TT}, 7
        s_lshr_b32 s{rbA}, s{rbA}, 1
        s_and_b32 s{rbB}, s{S_RB}, 30
        s_lshl_b32 s{rbB}, s{rbB}, 2
        s_add_u32 s{rbA}, s{rbA}, s{rbB}
        s_add_u32 s{rbB}, s{rbA}, 4
        """)
        self.phase_entry(PH_H4, [rbA, rbB], 13, self.F_W4, 5, upto=(607 if self.resident else None))
        I(f"s_mul_i32 s{self.S_SRC}, s{S_TT}, {54*1024}\ns_add_u32 s{self.S_SRC}, s{self.S_SRC}, {H4F}")
        if self.wb_early:
            lab = self.b.uid("L_wb")
            I(f"""
            s_lshr_b32 s{ST}, s{S_W}, 3
            s_lshl_b32 s{ST}, s{ST}, 2
            s_add_u32 s{ST}, s{ST}, s{S_WV}
            s_cmp_lg_u32 s{ST}, {self.wb_who}
            s_cbranch_scc1 {lab}
            buffer_wbl2 sc1
            {lab}:
            """)
        aops = [self.a_op(0, s, 16, V_L16, self.S_SRC, 0, self.S_AO, self.SPLIT54, self.V_L8) for s in range(54)]
        self.gemm(54, 5, self.F_W4, aops, [16], burst=self.burst4, rate=self.rate_w4, post_barrier=False, chunk=self.chunk4)
        self.stamp("w4_mm")
        MS = self.WB
        for j in range(5):
            I(f"""
            v_accvgpr_read_b32 v{T+4}, a{self.RAW_GB+2*j}
            v_accvgpr_read_b32 v{T+5}, a{self.RAW_GB+2*j+1}
            v_lshlrev_b32 v{MS+4*j}, 16, v{T+4}
            v_and_b32 v{MS+4*j+1}, 0xffff0000, v{T+4}
            v_lshlrev_b32 v{MS+4*j+2}, 16, v{T+5}
            v_and_b32 v{MS+4*j+3}, 0xffff0000, v{T+5}
            """)
        for i in range(0, 20, 2):
            I(f"v_pk_add_f32 v[{ACC+i}:{ACC+i+1}], v[{ACC+i}:{ACC+i+1}], v[{H+i}:{H+i+1}]")
            I(f"v_pk_fma_f32 v[{ACC+i}:{ACC+i+1}], v[{ACC+i}:{ACC+i+1}], v[{MS+i}:{MS+i+1}], v[{X2+i}:{X2+i+1}]")
        self.srd(S_A, P_OUT, 2048*1280)
        I(f"""
        s_lshl_b32 s{ST}, s{S_TT}, 4
        v_add_u32 v{T+4}, s{ST}, v{V_T}
        v_mul_u32_u24 v{T+4}, 1280, v{T+4}
        v_lshl_add_u32 v{T+4}, v{V_G}, 3, v{T+4}
        s_mul_i32 s{ST}, s{S_M}, 160
        """)
        self.pack_tiles(ACC, 5)
        for j in range(5):
            a = ACC + 2*j
            I(f"buffer_store_dwordx2 v[{a}:{a+1}], v{T+4}, {sr(S_A)}, s{ST} offen offset:{32*j}{' sc1' if self.out_sc1 else ''}")
        self.stamp("out")

    def l2_prefetch(self, which, part):
        I = self.I
        T = 246
        rbl = ST + 4
        I(f"v_lshlrev_b32 v{T}, 7, v{V_L}\ns_and_b32 s{rbl}, s{S_RB}, 3")
        if which == "A":
            base, start, chunk, shl = self.S_WA, 96*1024, 6656, 0
        elif which == "3":
            base, start, chunk, shl = self.S_W3, 0, 9216, 1
        else:
            base, start, chunk, shl = self.S_W4, 0, 8704, 0
        I(f"""
        s_lshr_b32 s{ST+5}, s{rbl}, {shl}
        s_lshl_b32 s{ST+5}, s{ST+5}, 2
        s_add_u32 s{ST+5}, s{ST+5}, s{S_WV}
        s_lshl_b32 s{ST+5}, s{ST+5}, 1
        s_add_u32 s{ST+5}, s{ST+5}, {part}
        s_mul_i32 s{ST+5}, s{ST+5}, {chunk}
        s_add_u32 s{ST+5}, s{ST+5}, s{base}
        s_sub_u32 s{ST+5}, s{ST+5}, s{self.S_LW}
        s_add_u32 s{ST+5}, s{ST+5}, {start}
        """)
        if chunk < 8192:
            I(f"v_cmp_gt_u32 vcc, {chunk//128}, v{V_L}\ns_and_saveexec_b64 s[{ST+6}:{ST+7}], vcc")
        I(f"buffer_load_dword a254, v{T}, {sr(S_WS)}, s{ST+5} offen")
        if chunk < 8192:
            I(f"s_mov_b64 exec, s[{ST+6}:{ST+7}]")
        if chunk > 8192:
            I(f"s_add_u32 s{ST+5}, s{ST+5}, 8192\nv_cmp_gt_u32 vcc, {(chunk-8192)//128}, v{V_L}\ns_and_saveexec_b64 s[{ST+6}:{ST+7}], vcc")
            I(f"buffer_load_dword a253, v{T}, {sr(S_WS)}, s{ST+5} offen")
            I(f"s_mov_b64 exec, s[{ST+6}:{ST+7}]")
        return 2 if chunk > 8192 else 1

    def tlb_touch(self):
        I = self.I
        n = (WS_END + (1 << 20) - 1) >> 20
        I(f"""
        v_lshlrev_b32 v245, 20, v{V_L}
        v_cmp_gt_u32 vcc, {n}, v{V_L}
        s_and_saveexec_b64 s[{ST+6}:{ST+7}], vcc
        buffer_load_dword a255, v245, {sr(S_WS)}, 0 offen
        s_mov_b64 exec, s[{ST+6}:{ST+7}]
        """)

    def mall_touch(self, base, nbytes):
        I = self.I
        per_wave = -(-nbytes // 1024 // 128) * 128
        lines = per_wave // 128
        assert lines <= 128
        I(f"""
        v_lshlrev_b32 v245, 7, v{V_L}
        s_lshl_b32 s{ST+5}, s{S_W}, 2
        s_add_u32 s{ST+5}, s{ST+5}, s{S_WV}
        s_mul_i32 s{ST+5}, s{ST+5}, {per_wave}
        s_add_u32 s{ST+5}, s{ST+5}, {base}
        """)
        n0 = min(lines, 64)
        if n0 < 64: I(f"v_cmp_gt_u32 vcc, {n0}, v{V_L}\ns_and_saveexec_b64 s[{ST+6}:{ST+7}], vcc")
        I(f"buffer_load_dword a255, v245, {sr(S_WS)}, s{ST+5} offen")
        if n0 < 64: I(f"s_mov_b64 exec, s[{ST+6}:{ST+7}]")

    def act_touch(self, base, per_tile):
        I = self.I
        per_wave = 16*per_tile // 128
        lines = per_wave // 128
        I(f"""
        v_lshlrev_b32 v245, 7, v{V_L}
        s_lshr_b32 s{ST+5}, s{S_RB}, 2
        s_mul_i32 s{ST+5}, s{ST+5}, {16*per_tile}
        s_and_b32 s{ST+6}, s{S_RB}, 3
        s_lshl_b32 s{ST+6}, s{ST+6}, 3
        s_add_u32 s{ST+6}, s{ST+6}, s{S_M}
        s_lshl_b32 s{ST+6}, s{ST+6}, 2
        s_add_u32 s{ST+6}, s{ST+6}, s{S_WV}
        s_mul_i32 s{ST+6}, s{ST+6}, {per_wave}
        s_add_u32 s{ST+5}, s{ST+5}, s{ST+6}
        s_add_u32 s{ST+5}, s{ST+5}, {base}
        """)
        n0 = min(lines, 64)
        if n0 < 64: I(f"v_cmp_gt_u32 vcc, {n0}, v{V_L}\ns_and_saveexec_b64 s[{ST+6}:{ST+7}], vcc")
        I(f"buffer_load_dword a255, v245, {sr(S_WS)}, s{ST+5} offen")
        if n0 < 64: I(f"s_mov_b64 exec, s[{ST+6}:{ST+7}]")

    def sync_touch(self):
        I = self.I
        l3 = self.b.uid("L_st3"); lj = self.b.uid("L_stj")
        I(f"""
        s_cmp_eq_u32 s{S_WV}, 3
        s_cbranch_scc1 {l3}
        v_lshlrev_b32 v245, 7, v{V_L}
        s_mul_i32 s{ST+5}, s{S_WV}, {STAT_SZ}
        s_lshl_b32 s{ST+6}, s{S_RB}, 13
        s_add_u32 s{ST+5}, s{ST+5}, s{ST+6}
        s_add_u32 s{ST+5}, s{ST+5}, {STAT}
        buffer_load_dword a255, v245, {sr(S_WS)}, s{ST+5} offen
        s_branch {lj}
        {l3}:
        v_lshrrev_b32 v245, 4, v{V_L}
        v_lshlrev_b32 v245, 14, v245
        v_and_b32 v244, 15, v{V_L}
        v_lshl_add_u32 v245, v244, 7, v245
        s_and_b32 s{ST+5}, s{S_RB}, 28
        s_lshl_b32 s{ST+5}, s{ST+5}, 9
        s_add_u32 s{ST+5}, s{ST+5}, {CFLAG + CF_LOC}
        buffer_load_dword a255, v245, {sr(S_WS)}, s{ST+5} offen
        s_add_u32 s{ST+5}, s{ST+5}, {4*CF_PH}
        v_lshlrev_b32 v245, 7, v244
        buffer_load_dword a255, v245, {sr(S_WS)}, s{ST+5} offen
        {lj}:
        s_sub_u32 s{ST+5}, s{S_TT}, 1
        s_max_i32 s{ST+5}, s{ST+5}, 0
        s_lshl_b32 s{ST+5}, s{ST+5}, 7
        s_add_u32 s{ST+5}, s{ST+5}, {CFLAG + PH_G*CF_PH}
        v_lshlrev_b32 v245, 7, v{V_L}
        s_mov_b64 exec, 7
        buffer_load_dword a255, v245, {sr(S_WS)}, s{ST+5} offen
        s_mov_b64 exec, -1
        """)

    def pf_op(self, which, part):
        n = self.l2_prefetch(which, part)
        for i in range(n): self.vm_issue(("pf",))

    def hook_body(self, hooks, k):
        if self.detail == 1: self.stamp(f"h{k}i")
        hooks[k]()
        if self.detail == 1: self.stamp(f"h{k}o")

    L_KV = 108*1024
    S_INC = 75
    S_SLOW = 77
    def kv_dma(self, g):
        I = self.I
        I(f"""
        s_mul_i32 s{ST+5}, s{S_WV}, {KVT}
        s_add_u32 s{ST+4}, s{ST+5}, {self.L_KV + (4*g % 16)*KVT}
        s_mov_b32 m0, s{ST+4}
        s_add_u32 s{ST+5}, s{ST+5}, {KV + 4*g*KVT}
        buffer_load_dwordx4 v{V_L16}, {sr(S_WS)}, s{ST+5} offen lds
        buffer_load_dwordx4 v{V_L16}, {sr(S_WS)}, s{ST+5} offen offset:1024 lds
        buffer_load_dwordx4 v{V_L16}, {sr(S_WS)}, s{ST+5} offen offset:2048 lds
        s_mov_b64 exec, 0xffff
        buffer_load_dwordx4 v{V_L16}, {sr(S_WS)}, s{ST+5} offen offset:3072 lds
        s_mov_b64 exec, -1
        """)

    L_DUMMY = 104*1024
    L_MODW = 96*1024
    def slot_setup(self, kind, arg=0):
        I = self.I
        DS = self.S_DS
        if kind == "unit":
            I(f"s_add_u32 s{DS}, s{self.S_WA}, {(16*arg-16)*1024 & 0xffffffff}\ns_add_u32 s76, s{self.S_LW}, {(16*arg-16)*1024 & 0xffffffff}\ns_mov_b32 s{self.S_INC}, 16384")
            return
        if kind == "act":
            base, per_tile, part = arg
            per_wave = 16*per_tile // 128
            I(f"""
            s_lshr_b32 s{DS}, s{S_RB}, 2
            s_mul_i32 s{DS}, s{DS}, {16*per_tile}
            s_and_b32 s{ST+6}, s{S_RB}, 3
            s_lshl_b32 s{ST+6}, s{ST+6}, 3
            s_add_u32 s{ST+6}, s{ST+6}, s{S_M}
            s_lshl_b32 s{ST+6}, s{ST+6}, 2
            s_add_u32 s{ST+6}, s{ST+6}, s{S_WV}
            s_mul_i32 s{ST+6}, s{ST+6}, {per_wave}
            s_add_u32 s{DS}, s{DS}, s{ST+6}
            s_add_u32 s{DS}, s{DS}, {base + 4096*part}
            """)
        elif kind == "mod":
            I(f"s_mul_i32 s{DS}, s{S_M}, 320\ns_add_u32 s{DS}, s{DS}, {MODG + (2 + 2*arg)*2560}\ns_mov_b32 s76, {self.L_MODW + 4096*arg}\ns_mov_b32 s{self.S_INC}, 0")
            return
        elif kind == "wsa":
            I(f"""
            s_and_b32 s{ST+6}, s{S_RB}, 3
            s_lshl_b32 s{ST+6}, s{ST+6}, 2
            s_add_u32 s{ST+6}, s{ST+6}, s{S_WV}
            s_mul_i32 s{ST+6}, s{ST+6}, {8*1024}
            s_add_u32 s{DS}, s{self.S_WA}, s{ST+6}
            s_sub_u32 s{DS}, s{DS}, s{self.S_LW}
            s_add_u32 s{DS}, s{DS}, {96*1024 + 4096*arg}
            """)
        else:
            I(f"s_mov_b32 s{DS}, {KV}")
        I(f"s_mov_b32 s76, {self.L_DUMMY}")

    def attn_hooks(self):
        I = self.I
        J = {}
        J[15] = (lambda: self.rl_issue(1), 0)
        def j13():
            I("s_waitcnt vmcnt(16)")
            self.rl_store(0); self.rl_store(1)
            self.sync_touch()
        J[13] = (j13, 2)
        def j11():
            I("s_waitcnt vmcnt(16)")
            self.rl_flag()
        J[11] = (j11, 0)
        def j9(): self.xid_issue(); self.rl_poll_issue(); self.ring_regs()
        J[9] = (j9, 1)
        def j8():
            I("s_waitcnt vmcnt(8)")
            self.rl_poll_eval()
        J[8] = (j8, 0)
        J[2] = (self.xid_eval, 0)
        if self.pfA:
            J[7] = (lambda: self.l2_prefetch("A", 0), 1); J[5] = (lambda: self.l2_prefetch("A", 1), 1)
        if self.pf3:
            J[6] = (lambda: self.l2_prefetch("3", 0), 2); J[4] = (lambda: self.l2_prefetch("3", 1), 2)
        if self.pf4:
            J[3] = (lambda: (self.l2_prefetch("4", 0), self.l2_prefetch("4", 1)), 2)
        SL = {16: ("act", (OF, 20480, 0)), 15: ("act", (L2F, 20480, 0)), 14: ("none", 0), 13: ("act", (H4F, 54*1024, 0)), 11: ("act", (H4F, 54*1024, 1)),
              9: ("none", 0), 8: ("unit", 0), 2: ("mod", 0), 1: ("mod", 1)}
        if self.h4mode >= 1:
            del SL[13]; del SL[11]
        if not ALIAS: SL[14] = ("act", (GF, 20480, 0)); SL[13] = ("act", (L3F, 20480, 0))
        H = {}
        def mk(k):
            def f():
                if k in J and not self.nojobs: J[k][0]()
                if k in SL: self.slot_setup(*(SL[k] if not self.nojobs else ("none", 0)))
            return f
        for k in range(16, 0, -1):
            if k in J or k in SL: H[k] = mk(k)
        return H

    def ring_state_after_attn(self):
        self.units_issued = 6
        self.units_queued = 6
        self.pend = []
        self.consumed = -1
        self.vmq = []

    def build(self, force_slow=False, force_global=False):
        I = self.I
        self.force_global = force_global
        phases = [self.phase_start, self.phase_kv, self.phase_q, self.phase_kvwait,
                  lambda: self.phase_attn(force_slow), self.phase_wo, self.phase_w1, self.phase_w2, self.phase_w3, self.phase_w4]
        self.prologue()
        for i, p in enumerate(phases):
            if i >= self.stop_after: break
            p()
        if self.dbg_time:
            lab = self.b.uid("L_dt")
            self.srd(S_C, P_DBG, 256)
            I(f"""
            s_and_b32 s{ST}, s{S_W}, 63
            s_cmp_lg_u32 s{ST}, 63
            s_cbranch_scc1 {lab}
            s_cmp_lg_u32 s{S_WV}, 0
            s_cbranch_scc1 {lab}
            s_memrealtime s[{ST+2}:{ST+3}]
            s_lshr_b32 s{ST}, s{S_W}, 6
            s_lshl_b32 s{ST}, s{ST}, 2
            s_add_u32 s{ST}, s{ST}, 32
            s_waitcnt lgkmcnt(0)
            s_sub_u32 s{ST+2}, s{ST+2}, s{S_TAG}
            v_mov_b32 v254, s{ST+2}
            v_mov_b32 v253, s{ST}
            buffer_store_dword v254, v253, {sr(S_C)}, 0 offen sc1
            {lab}:
            """)
        I(f"""
        s_waitcnt vmcnt(0) lgkmcnt(0)
        s_endpgm
        L_fail:
        """)
        self.srd(S_C, P_DBG, 256)
        I(f"""
        v_mov_b32 v254, s{S_ERR}
        v_mov_b32 v255, s{S_W}
        v_mov_b32 v253, 16
        buffer_store_dwordx2 v[254:255], v253, {sr(S_C)}, 0 offen sc1
        s_waitcnt vmcnt(0)
        L_end:
        s_endpgm
        L_code_end:
        """)
        text, n = finalize(self.b, check=not (self.x_nords or self.x_nokv or self.noslot), align=bool(self.align))
        hdr = open("adaLN_cond__grouped_kv_mqa__mixer_s_mlp__prompt.s.ref").read().split("; Override launch")[0]
        lines = [l for l in hdr.strip().split("\n")]
        lines.append(f"; @launch grid=(256,1,1) block=(256,1,1) lds={LDS_SZ}")
        return kernel_file(lines, [(NAME, text, 512, 256, 102)]), n

if __name__ == "__main__":
    import argparse
    ap = argparse.ArgumentParser()
    ap.add_argument("-o", default="adaLN_cond__grouped_kv_mqa__mixer_s_mlp__prompt.s")
    ap.add_argument("--stop", type=int, default=99)
    ap.add_argument("--stamps", action="store_true")
    ap.add_argument("--slow", action="store_true")
    ap.add_argument("--detail", type=int, default=-1)
    ap.add_argument("--cap", type=int, default=99)
    ap.add_argument("--set", action="append", default=[])
    ap.add_argument("--global", dest="glob", action="store_true")
    a = ap.parse_args()
    g = Gen(stop_after=a.stop, stamps=a.stamps)
    g.detail = a.detail
    g.cap_small = a.cap
    for kv in a.set:
        k_, v_ = kv.split('=')
        setattr(g, k_, float(v_) if '.' in v_ else int(v_))
    txt, n = g.build(force_slow=a.slow, force_global=a.glob)
    open(a.o, "w").write(txt)
    print("wrote", a.o, len(txt), "bytes; auto nops:", n, "stamps:", getattr(g, "stamp_names", None))
```

```python
import sys
from common import *

import struct
def f2u(x): return struct.unpack("<I", struct.pack("<f", x))[0]

NAME = "adaLN_cond__grouped_kv_mqa__mixer_s_mlp__prompt_kernel"
MODG   = 0x000000
KVFLAG = 0x004000
RLFLAG = 0x008000
STAT   = 0x020000
STAT_SZ = 32*8*64*16
KV     = 0x100000
KVT    = 3328
OF     = 0x200000
ACT_SZ = 128*20*1024
L2F    = OF + ACT_SZ
import os
ALIAS = os.environ.get('NOALIAS') is None
GF     = OF if ALIAS else L2F + ACT_SZ
L3F    = L2F if ALIAS else L2F + 2*ACT_SZ
H4F    = L2F + 3*ACT_SZ
H4_SZ  = 128*54*1024
WSA    = H4F + H4_SZ
WSA_M  = 304*1024
W3S    = WSA + 8*WSA_M
W3S_M  = 144*1024
W4S    = W3S + 16*W3S_M
W4S_M  = 272*1024
HG     = W4S + 8*W4S_M
XIDG   = HG + 16*20*1024
CFLAG  = XIDG + 4096
CF_LOC = 8*128*128
CF_PH  = 128*128
WS_END = CFLAG + 2*CF_LOC + 64*1024
DBGA   = WS_END
WS_REC = 0x4000000
PH_O, PH_L2, PH_G, PH_L3, PH_H4 = 0, 1, 2, 3, 4

L_WQ   = 0
L_WK   = 102400
L_WM   = 102400
L_SC   = 143360
L_MOD  = 144640
L_QS   = 149760
L_MISC = 161024
LDS_SZ = 163840
L_RL   = 0
L_W    = 0

S_WS = 4
S_A  = 8
S_B  = 12
S_C  = 16
S_TAG = 20
S_WV, S_M, S_RB, S_W = 22, 23, 24, 25
S_T0 = 26
S_TT = 27
S_ERR = 28
S_FAST = 3
P_X, P_WQ, P_WK, P_WV, P_WO, P_BX, P_W1, P_W2, P_W3, P_W4, P_C, P_WM, P_OUT, P_DBG, P_WS = [32 + 2*i for i in range(15)]
ST = 62

def sr(b, n=4): return f"s[{b}:{b+n-1}]"
def vr(b, n=4): return f"v[{b}:{b+n-1}]" if n > 1 else f"v{b}"
def ar(b, n=4): return f"a[{b}:{b+n-1}]" if n > 1 else f"a{b}"

V_L, V_T, V_G, V_L16 = 0, 1, 2, 3

TIMEOUT = 400000


DOC = """
;
;  1. mod = silu(c) @ w_mod (column blocks spread over workgroups), LN(x), h = LN(x)*(1+ca)+sa, K / V^T (members 0,1), Q.
;     The scores are used without subtracting a maximum only while a run-time bound proves it safe:
;     |q|^2 * max_k |k|^2 <= 64^2 (log2 units, Cauchy-Schwarz), so every exp2 argument lies in [-64, 64].
;  3. wo, LN, LN, w1 + gelu, token shift + w2, LN, w3 + gelu, w4: 64x80 output tiles, activations exchanged through d_ws in fragment order.
"""

class Gen:
    def __init__(self, stop_after=99, stamps=False):
        self.b = Builder()
        self.stop_after = stop_after
        self.stamps = stamps
        self.nstamp = 0
        self.detail = -1
        self.nojobs = 0
        self.dbg_time = 0
        self.align = 1
        self.x_nobar = 0
        self.x_nokv = 0
        self.x_nords = 0
        self.noslot = 0
        self.in_slow = False
        self.cap_small = 99
        self.burst = 6
        self.rate_small = 1.3
        self.rate_w3 = 3.5
        self.rate_w4 = 1.6
        self.epi_drip = 8
        self.post_drip = 0
        self.fine = 0
        self.gsleep = 0
        self.h4mode = 2
        self.wb_early = 0
        self.wb_who = 0
        self.out_sc1 = 0
        self.wq_touch = 1
        self.w3split = 0
        self.rate_w3a = 2.2
        self.rate_w3b = 1.5
        self.fill_n = 2
        self.pfA = 1
        self.pf4 = 0
        self.post_drip2 = 0
        self.post_drip3 = 0
        self.res3 = 0
        self.w4defer = 0
        self.shadow_f = 3
        self.shadow_s = 3
        self.resident = 0
        self.chunk4 = 4
        self.pub_after = 0
        self.visible = -1
        self.epi_drip2 = 6
        self.gd1 = 1
        self.gd3 = 2
        self.burst4 = 10
        self.use_pf = 0
        self.tlb_warm = 0
        self.touch_act = 0
        self.h4t_where = 0
        self.use_mall = 0
        self.pf3 = 0
        self.pub_drip = 0
    def I(self, t): self.b.I(t)
    def C(self, t): self.b.C(t)

    def srd(self, s, ptr, nbytes, add=0):
        if add:
            self.I(f"s_add_u32 s{s}, s{ptr}, {add}\ns_addc_u32 s{s+1}, s{ptr+1}, 0")
        else:
            self.I(f"s_mov_b32 s{s}, s{ptr}\ns_mov_b32 s{s+1}, s{ptr+1}")
        self.I(f"s_mov_b32 s{s+2}, {nbytes}\ns_mov_b32 s{s+3}, 0x20000")

    def stamp(self, name):
        if not self.stamps: return
        k = self.nstamp; self.nstamp += 1
        lab = self.b.uid("L_st")
        self.C(f"stamp {k}: {name}")
        self.I(f"""
        s_cmp_lg_u32 s{S_WV}, 0
        s_cbranch_scc1 {lab}
        s_memrealtime s[100:101]
        s_memtime s[96:97]
        s_lshl_b32 s99, s{S_W}, 11
        s_add_u32 s99, s99, {DBGA + 16*k}
        s_waitcnt lgkmcnt(0)
        v_mov_b32 v252, s100
        v_mov_b32 v253, s101
        v_mov_b32 v254, s96
        v_mov_b32 v255, s97
        v_mov_b32 v251, s99
        buffer_store_dwordx4 v[252:255], v251, {sr(S_WS)}, 0 offen
        s_nop 1
        {lab}:
        """)
        self.stamp_names = getattr(self, "stamp_names", []) + [name]

    def spin_tail(self, cnt, loop, code):
        if code in (2, 3) and self.gsleep: self.I(f"s_sleep {self.gsleep}")
        self.I(f"""
        s_sub_u32 s{cnt}, s{cnt}, 1
        s_cmp_lg_u32 s{cnt}, 0
        s_cbranch_scc1 {loop}
        s_mov_b32 s{S_ERR}, {code}
        s_branch L_fail
        """)

    def get_tag(self):
        lp = self.b.uid("L_tag"); ok = self.b.uid("L_tagok")
        self.srd(S_C, P_DBG, 256)
        self.I(f"""
        s_mov_b32 s{ST}, {TIMEOUT}
        v_mov_b32 v252, 0
        {lp}:
        buffer_load_dwordx2 v[254:255], v252, {sr(S_C)}, 0 offen sc1
        s_waitcnt vmcnt(0)
        v_readfirstlane_b32 s{S_TAG}, v254
        v_readfirstlane_b32 s{S_TAG+1}, v255
        s_cmp_lg_u32 s{S_TAG}, 0
        s_cbranch_scc1 {ok}
        """)
        self.spin_tail(ST, lp, 1)
        self.I(f"{ok}:")

    def reduce_g(self, regs, tmp, op="v_add_f32"):
        for sw in ("v_permlane16_swap_b32", "v_permlane32_swap_b32"):
            for i, r in enumerate(regs):
                self.I(f"v_mov_b32 v{tmp+i}, v{r}")
            for i, r in enumerate(regs):
                self.I(f"{sw} v{r}, v{tmp+i}")
            for i, r in enumerate(regs):
                self.I(f"{op} v{r}, v{r}, v{tmp+i}")

    def prologue(self):
        I = self.I
        I(f"""
        s_cmp_ge_u32 s2, 256
        s_cbranch_scc1 L_end
        s_load_dwordx16 s[32:47], s[0:1], 0
        s_load_dwordx8 s[48:55], s[0:1], 64
        s_load_dwordx4 s[56:59], s[0:1], 96
        s_load_dwordx2 s[60:61], s[0:1], 112
        v_lshrrev_b32 v1, 6, v0
        v_and_b32 v{V_L}, 63, v0
        v_readfirstlane_b32 s{S_WV}, v1
        v_and_b32 v{V_T}, 15, v{V_L}
        v_lshrrev_b32 v{V_G}, 4, v{V_L}
        v_lshlrev_b32 v{V_L16}, 4, v{V_L}
        s_mov_b32 s{S_W}, s2
        s_and_b32 s{ST}, s2, 7
        s_lshr_b32 s{ST+1}, s2, 3
        s_and_b32 s{S_M}, s{ST+1}, 7
        s_lshr_b32 s{ST+1}, s{ST+1}, 3
        s_lshl_b32 s{ST}, s{ST}, 2
        s_add_u32 s{S_RB}, s{ST}, s{ST+1}
        s_lshl_b32 s{S_T0}, s{S_RB}, 6
        s_lshl_b32 s{S_TT}, s{S_RB}, 2
        s_add_u32 s{S_TT}, s{S_TT}, s{S_WV}
        s_mov_b32 s{S_ERR}, 0
        """)
        self.C("request the kernel's own code into this XCD's L2: workgroup j of the 32 in a row group takes lines 16j..16j+15 (wave 0)")
        labc = self.b.uid("L_cp")
        I(f"""
        s_cmp_lg_u32 s{S_WV}, 0
        s_cbranch_scc1 {labc}
        s_getpc_b64 s[{ST+2}:{ST+3}]
        L_pcref:
        s_lshr_b32 s{ST+4}, s2, 3
        s_lshl_b32 s{ST+4}, s{ST+4}, 11                       ; 16 lines * 128 B
        v_lshlrev_b32 v4, 7, v{V_L}
        v_add_u32 v4, s{ST+4}, v4
        v_cmp_gt_u32 vcc, L_code_end-L_pcref-4, v4
        s_and_b64 vcc, vcc, 0xffff
        s_and_saveexec_b64 s[{ST+4}:{ST+5}], vcc
        s_cbranch_execz {labc}_x
        global_load_dword a252, v4, s[{ST+2}:{ST+3}]
        {labc}_x:
        s_mov_b64 exec, s[{ST+4}:{ST+5}]
        {labc}:
        s_waitcnt lgkmcnt(0)
        """)
        self.srd(S_WS, P_WS, WS_REC)
        lab = self.b.uid("L_non")
        self.srd(S_C, P_DBG, 256)
        I(f"""
        s_lshl_b32 s{ST}, s2, 2
        s_add_u32 s{ST}, s{ST}, s{S_WV}
        s_cmp_lg_u32 s{ST}, 0
        s_cbranch_scc1 {lab}
        s_memrealtime s[{S_TAG}:{S_TAG+1}]
        s_waitcnt lgkmcnt(0)
        s_or_b32 s{S_TAG}, s{S_TAG}, 1
        v_mov_b32 v254, s{S_TAG}
        v_mov_b32 v255, s{S_TAG+1}
        v_mov_b32 v252, 0
        s_mov_b64 exec, 1
        buffer_store_dwordx2 v[254:255], v252, {sr(S_C)}, 0 offen sc1
        s_mov_b64 exec, -1
        {lab}:
        """)
        self.stamp("start")

    XF = 4
    XH = 84
    TMP = 244

    def tag_issue(self):
        self.srd(S_C, P_DBG, 256)
        self.I(f"v_mov_b32 v241, 0\nbuffer_load_dwordx2 v[242:243], v241, {sr(S_C)}, 0 offen sc1")

    def tag_eval(self):
        I = self.I
        lp = self.b.uid("L_tag"); ok = self.b.uid("L_tagok")
        I(f"""
        s_mov_b32 s{ST}, {TIMEOUT}
        {lp}:
        v_readfirstlane_b32 s{S_TAG}, v242
        v_readfirstlane_b32 s{S_TAG+1}, v243
        s_cmp_lg_u32 s{S_TAG}, 0
        s_cbranch_scc1 {ok}
        """)
        self.tag_issue()
        I("s_waitcnt vmcnt(0)")
        self.spin_tail(ST, lp, 1)
        I(f"{ok}:")

    S_PROD2 = 80
    S_PROD, S_P = 80, 81

    LWM, LSC, LMI = L_WM, L_SC, L_MISC + 64
    def mod_dma(self, cdst=None):
        I = self.I
        TMP = self.MT
        self.srd(S_B, P_C, 1280)
        I(f"""
        s_mul_i32 s{ST+4}, s{S_WV}, 320
        v_lshlrev_b32 v{TMP+2}, 3, v{V_L}
        buffer_load_dwordx2 {cdst or f'v[{TMP+4}:{TMP+5}]'}, v{TMP+2}, {sr(S_B)}, s{ST+4} offen
        """)
        self.srd(S_A, P_WM, 640*7680)
        I(f"""
        v_lshrrev_b32 v{TMP}, 2, v{V_L}
        v_mul_u32_u24 v{TMP}, 7680, v{TMP}
        v_and_b32 v{TMP+1}, 3, v{V_L}
        v_lshl_add_u32 v{TMP}, v{TMP+1}, 4, v{TMP}
        s_mul_i32 s{ST+1}, s{S_WV}, {160*7680}
        s_lshl_b32 s{ST+2}, s{self.S_P}, 6                   ; p*64 bytes
        s_add_u32 s{ST+1}, s{ST+1}, s{ST+2}
        s_mul_i32 s{ST+3}, s{S_WV}, {160*64}
        s_add_u32 s{ST+3}, s{ST+3}, {self.LWM}
        """)
        for i in range(10):
            I(f"""
            s_mov_b32 m0, s{ST+3}
            s_add_u32 s{ST+3}, s{ST+3}, 1024
            buffer_load_dwordx4 v{TMP}, {sr(S_A)}, s{ST+1} offen lds
            s_add_u32 s{ST+1}, s{ST+1}, {16*7680}
            """)

    MT2 = 244
    MT3 = 228
    MT = 228
    def mod_gemv(self, W, wait_c, wait_w, wait_tag, BBr=None):
        I = self.I
        TMP = self.MT
        T = TMP + 4
        I(f"""
        s_waitcnt vmcnt({wait_c})
        v_lshlrev_b32 v{TMP+6}, 16, v{T}
        v_and_b32 v{TMP+7}, 0xffff0000, v{T}
        v_lshlrev_b32 v{TMP+8}, 16, v{T+1}
        v_and_b32 v{TMP+9}, 0xffff0000, v{T+1}
        """)
        for i in range(4):
            r = TMP + 6 + i
            I(f"""
            v_mul_f32 v{TMP+3}, 0xbfb8aa3b, v{r}
            v_exp_f32 v{TMP+3}, v{TMP+3}
            v_add_f32 v{TMP+3}, 1.0, v{TMP+3}
            v_rcp_f32 v{TMP+3}, v{TMP+3}
            v_mul_f32 v{r}, v{r}, v{TMP+3}
            """)
        va, vb, WA, BB, ACC = W, W+1, W+4, W+44, W+64
        if BBr is not None: BB, ACC = BBr, W+44
        I(f"""
        v_cvt_pk_bf16_f32 v{T}, v{TMP+6}, v{TMP+7}
        v_cvt_pk_bf16_f32 v{T+1}, v{TMP+8}, v{TMP+9}
        s_mul_i32 s{ST+4}, s{S_WV}, 320
        s_add_u32 s{ST+4}, s{ST+4}, {self.LSC}
        v_lshlrev_b32 v{TMP+2}, 3, v{V_L}
        v_add_u32 v{TMP+2}, s{ST+4}, v{TMP+2}
        s_mov_b32 exec_hi, 0xff
        ds_write_b64 v{TMP+2}, v[{T}:{T+1}]
        s_mov_b32 exec_hi, -1
        v_lshrrev_b32 v{va}, 2, v{V_T}
        v_lshl_add_u32 v{va}, v{V_G}, 2, v{va}
        v_lshlrev_b32 v{va}, 6, v{va}                       ; 64*(4g+(i>>2))
        v_and_b32 v{vb}, 3, v{V_T}
        v_lshl_add_u32 v{va}, v{vb}, 3, v{va}
        s_mul_i32 s{ST}, s{S_WV}, {160*64}
        s_add_u32 s{ST}, s{ST}, {self.LWM}
        v_add_u32 v{va}, s{ST}, v{va}
        v_lshlrev_b32 v{vb}, 3, v{V_G}
        v_add_u32 v{vb}, s{ST+4}, v{vb}
        s_waitcnt vmcnt({wait_w}) lgkmcnt(0)
        """)
        for s_ in range(5):
            I(f"ds_read_b64 v[{BB+4*s_}:{BB+4*s_+1}], v{vb} offset:{64*s_}\nds_read_b64 v[{BB+4*s_+2}:{BB+4*s_+3}], v{vb} offset:{64*s_+32}")
        for s_ in range(5):
            for tl in range(2):
                W_ = WA + 8*s_ + 4*tl
                I(f"ds_read_b64_tr_b16 v[{W_}:{W_+1}], v{va} offset:{2048*s_+32*tl}\nds_read_b64_tr_b16 v[{W_+2}:{W_+3}], v{va} offset:{2048*s_+32*tl+1024}")
        I("s_waitcnt lgkmcnt(0)")
        for s_ in range(5):
            for tl in range(2):
                I(f"v_mfma_f32_16x16x32_bf16 {vr(ACC+4*tl)}, {vr(WA+8*s_+4*tl)}, {vr(BB+4*s_)}, {'0' if s_ == 0 else vr(ACC+4*tl)}")
        I(f"""
        s_lshl_b32 s{ST}, s{S_WV}, 7
        s_add_u32 s{ST}, s{ST}, {self.LMI}
        v_lshlrev_b32 v{va}, 4, v{V_G}
        v_add_u32 v{va}, s{ST}, v{va}
        v_cmp_eq_u32 vcc, 0, v{V_T}
        s_and_saveexec_b64 s[{ST+4}:{ST+5}], vcc
        ds_write_b128 v{va}, {vr(ACC)}
        ds_write_b128 v{va}, {vr(ACC+4)} offset:64
        s_mov_b64 exec, s[{ST+4}:{ST+5}]
        s_waitcnt lgkmcnt(0)
        s_barrier
        """)
        lab_gd = self.b.uid("L_gd")
        I(f"s_cmp_lg_u32 s{S_WV}, 0\ns_cbranch_scc1 {lab_gd}")
        I(f"""
        v_lshlrev_b32 v{va}, 4, v{V_L}
        v_and_b32 v{va}, 0x7f, v{va}
        v_add_u32 v{va}, {self.LMI}, v{va}
        ds_read_b128 {vr(WA)}, v{va}
        ds_read_b128 {vr(WA+4)}, v{va} offset:128
        ds_read_b128 {vr(WA+8)}, v{va} offset:256
        ds_read_b128 {vr(WA+12)}, v{va} offset:384
        """)
        if wait_tag is not None:
            I(f"s_waitcnt vmcnt({wait_tag})")
            self.tag_eval()
        I("s_waitcnt lgkmcnt(0)")
        for r in range(4):
            I(f"v_add_f32 v{WA+r}, v{WA+r}, v{WA+4+r}\nv_add_f32 v{WA+8+r}, v{WA+8+r}, v{WA+12+r}\nv_add_f32 v{WA+r}, v{WA+r}, v{WA+8+r}")
        I(f"""
        v_cvt_pk_bf16_f32 v{ACC+4}, v{WA}, v{WA+1}
        v_cvt_pk_bf16_f32 v{ACC+5}, v{WA+2}, v{WA+3}
        v_mov_b32 v{ACC+6}, s{S_TAG}
        v_mov_b32 v{ACC+7}, s{S_TAG+1}
        s_lshl_b32 s{ST}, s{self.S_P}, 7                     ; p*8 granules*16 B
        s_mov_b64 exec, 0xff
        buffer_store_dwordx4 {vr(ACC+4)}, v{V_L16}, {sr(S_WS)}, s{ST} offen offset:{MODG} sc1
        s_mov_b64 exec, -1
        {lab_gd}:
        """)

    def line_touch(self, srd, voff, soff, nl):
        I = self.I
        if nl < 64: I(f"v_cmp_gt_u32 vcc, {nl}, v{V_L}\ns_and_saveexec_b64 s[{ST+6}:{ST+7}], vcc")
        I(f"buffer_load_dword a255, v{voff}, {sr(srd)}, s{soff} offen")
        if nl < 64: I(f"s_mov_b64 exec, s[{ST+6}:{ST+7}]")

    def wq_ops(self):
        I = self.I
        V = 239
        so, lo = ST+12, ST+13
        self.srd(S_A, P_WQ, 640*1280)
        I(f"""
        v_mul_u32_u24 v{V}, 205, v{V_L}
        v_lshrrev_b32 v{V}, 11, v{V}
        v_mul_u32_u24 v{V-1}, 10, v{V}
        v_sub_u32 v{V-1}, v{V_L}, v{V-1}
        v_mul_u32_u24 v{V}, 1280, v{V}
        v_lshl_add_u32 v{V}, v{V-1}, 4, v{V}
        s_mul_i32 s{so}, s{S_M}, 160
        s_mul_i32 s{lo}, s{S_WV}, {6*1280}
        s_add_u32 s{so}, s{so}, s{lo}
        s_mul_i32 s{lo}, s{S_WV}, 960
        s_sub_u32 m0, s{lo}, 3840
        s_sub_u32 s{so}, s{so}, {24*1280}
        """)
        def mk(i):
            def f():
                if i == 26:
                    lab = self.b.uid("L_wq")
                    I(f"""
                    s_cmp_ge_u32 s{S_WV}, 3
                    s_cbranch_scc1 {lab}
                    s_cmp_eq_u32 s{S_WV}, 2
                    s_mov_b32 s{ST+14}, 0x0fffffff
                    s_cselect_b32 exec_hi, 0xff, s{ST+14}
                    s_add_u32 m0, m0, 3840
                    s_add_u32 s{so}, s{so}, {24*1280}
                    buffer_load_dwordx4 v{V}, {sr(S_A)}, s{so} offen lds
                    s_mov_b32 exec_hi, -1
                    {lab}:
                    """)
                else:
                    I(f"""
                    s_add_u32 m0, m0, 3840
                    s_add_u32 s{so}, s{so}, {24*1280}
                    buffer_load_dwordx4 v{V}, {sr(S_A)}, s{so} offen lds
                    """)
            return f
        return [mk(i) for i in range(27)]

    def phase_start(self):
        I, C = self.I, self.C
        XF, XH, TMP = self.XF, self.XH, self.TMP
        PR, P = self.S_PROD, self.S_P
        C("---- mod producers: members 2..5; column pair P = x + 8k (k = 2*rbl + (m-2)/2) < 60, block p = 2P + (m-2)%2; P < 20 is critical")
        I(f"""
        s_sub_u32 s{ST}, s{S_M}, 2                           ; m-2
        s_and_b32 s{ST+1}, s{S_RB}, 3
        s_lshl_b32 s{ST+1}, s{ST+1}, 1
        s_lshr_b32 s{ST+2}, s{ST}, 1
        s_add_u32 s{ST+1}, s{ST+1}, s{ST+2}
        s_lshl_b32 s{ST+1}, s{ST+1}, 3
        s_lshr_b32 s{ST+2}, s{S_RB}, 2
        s_add_u32 s{ST+1}, s{ST+1}, s{ST+2}                  ; P
        s_lshl_b32 s{P}, s{ST+1}, 1
        s_and_b32 s{ST+2}, s{ST}, 1
        s_add_u32 s{P}, s{P}, s{ST+2}
        s_cmp_lt_u32 s{ST+1}, 20
        s_cselect_b32 s{PR}, 1, 2
        s_cmp_lt_u32 s{ST+1}, 60
        s_cselect_b32 s{PR}, s{PR}, 0
        s_cmp_lt_u32 s{ST}, 4
        s_cselect_b32 s{PR}, s{PR}, 0
        """)
        C("every workgroup requests 1/32 of the critical w_mod lines of its row group: 3 column pairs x 640 rows = 1920 lines, 60 per workgroup (15 per wave)")
        self.srd(S_A, P_WM, 640*7680)
        I(f"""
        s_and_b32 s{ST}, s{S_RB}, 3
        s_lshl_b32 s{ST}, s{ST}, 3
        s_add_u32 s{ST}, s{ST}, s{S_M}
        s_lshl_b32 s{ST}, s{ST}, 2
        s_add_u32 s{ST}, s{ST}, s{S_WV}
        s_mul_i32 s{ST}, s{ST}, 15
        v_add_u32 v{XH}, s{ST}, v{V_L}
        v_mul_u32_u24 v{XH+1}, 6554, v{XH}
        v_lshrrev_b32 v{XH+1}, 22, v{XH+1}                   ; /640
        v_mul_u32_u24 v{XH+2}, 640, v{XH+1}
        v_sub_u32 v{XH+2}, v{XH}, v{XH+2}                    ; row
        v_mul_u32_u24 v{XH+2}, 7680, v{XH+2}
        v_lshlrev_b32 v{XH+1}, 10, v{XH+1}
        v_add_u32 v{XH+2}, v{XH+2}, v{XH+1}
        s_lshr_b32 s{ST}, s{S_RB}, 2
        s_lshl_b32 s{ST}, s{ST}, 7                           ; x * 128 B
        """)
        self.line_touch(S_A, XH+2, ST, 15)
        self.srd(S_C, P_X, 2048*1280)
        XO = XH
        I(f"""
        v_lshlrev_b32 v{XO+6}, 7, v{V_L}
        s_lshl_b32 s{ST}, s{S_M}, 2
        s_add_u32 s{ST}, s{ST}, s{S_WV}
        s_mul_i32 s{ST}, s{ST}, 2560
        s_mul_i32 s{ST+1}, s{S_RB}, {64*1280}
        s_add_u32 s{ST}, s{ST}, s{ST+1}
        """)
        self.line_touch(S_C, XO+6, ST, 20)
        lab_np = self.b.uid("L_np"); lab_j = self.b.uid("L_npj")
        I(f"s_cmp_lg_u32 s{PR}, 1\ns_cbranch_scc1 {lab_np}")
        self.mod_dma()
        self.tag_issue()
        self.mod_gemv(XH+8, 11, 1, 0)
        self.srd(S_C, P_X, 2048*1280)
        I(f"s_branch {lab_j}\n{lab_np}:")
        self.tag_issue()
        self.srd(S_C, P_X, 2048*1280)
        I(f"{lab_j}:")
        self.stamp("modpub")
        C("x: the wave's rows -> LDS, 16-byte chunks XOR-swizzled by the row")
        I(f"s_lshl_b32 s{ST}, s{S_TT}, 4")
        for qq in range(4):
            I(f"""
            v_add_u32 v{XO+4}, {4*qq}, v{V_G}                      ; row
            v_xor_b32 v{XO+5}, v{XO+4}, v{V_T}
            v_add_u32 v{XO+4}, s{ST}, v{XO+4}
            v_mul_u32_u24 v{XO+4}, 1280, v{XO+4}
            v_lshl_add_u32 v{XO+qq}, v{XO+5}, 4, v{XO+4}
            """)
        I(f"s_mul_i32 s{ST+1}, s{S_WV}, 20480")
        for G in range(5):
            I(f"s_mov_b32 s{ST+2}, {256*G}")
            for qq in range(4):
                I(f"s_mov_b32 m0, s{ST+1}\ns_add_u32 s{ST+1}, s{ST+1}, 1024\nbuffer_load_dwordx4 v{XO+qq}, {sr(S_C)}, s{ST+2} offen lds")
        lab_nk = self.b.uid("L_nk")
        I(f"""
        s_cmp_ge_u32 s{S_M}, 2
        s_cbranch_scc1 {lab_nk}
        s_cmp_eq_u32 s{S_M}, 0
        s_cselect_b32 s{S_A}, s{P_WK}, s{P_WV}
        s_cselect_b32 s{S_A+1}, s{P_WK+1}, s{P_WV+1}
        s_mov_b32 s{S_A+2}, 25600
        s_mov_b32 s{S_A+3}, 0x20000
        s_mul_i32 s{ST}, s{S_WV}, 7168
        s_add_u32 s{ST+1}, s{ST}, {L_WK}
        """)
        for i in range(7):
            I(f"""
            s_mov_b32 m0, s{ST+1}
            s_add_u32 s{ST+1}, s{ST+1}, 1024
            buffer_load_dwordx4 v{V_L16}, {sr(S_A)}, s{ST} offen lds
            s_add_u32 s{ST}, s{ST}, 1024
            """)
        I(f"{lab_nk}:")
        if self.wq_touch == 1:
            C("wq: request this workgroup's 1/32 of the matrix (200 lines, 50 per wave)")
            self.srd(S_B, P_WQ, 640*1280)
            I(f"""
            s_and_b32 s{ST}, s{S_RB}, 3
            s_lshl_b32 s{ST}, s{ST}, 3
            s_add_u32 s{ST}, s{ST}, s{S_M}
            s_lshl_b32 s{ST}, s{ST}, 2
            s_add_u32 s{ST}, s{ST}, s{S_WV}
            s_mul_i32 s{ST}, s{ST}, 6400
            """)
            self.line_touch(S_B, XO+6, ST, 50)
        else:
            I(f"v_mov_b32 v{XO+7}, 0\nbuffer_load_dword a255, v{XO+7}, {sr(S_C)}, 0 offen")
        self.stamp("issued")
        C("x fragments: lane (t,g): k = 32s+4g (+16)")
        AD = XH + 8
        I(f"""
        s_mul_i32 s{ST}, s{S_WV}, 20480
        v_lshlrev_b32 v{TMP}, 8, v{V_T}
        v_add_u32 v{TMP}, s{ST}, v{TMP}
        v_and_b32 v{TMP+1}, 1, v{V_G}
        v_lshl_add_u32 v{TMP}, v{TMP+1}, 3, v{TMP}            ; + 8*(g&1)
        v_lshrrev_b32 v{TMP+1}, 1, v{V_G}                     ; g>>1
        """)
        for a_ in range(4):
            for e in range(2):
                I(f"""
                v_add_u32 v{TMP+2}, {4*a_+2*e}, v{TMP+1}
                v_xor_b32 v{TMP+2}, v{TMP+2}, v{V_T}
                v_lshl_add_u32 v{AD+2*a_+e}, v{TMP+2}, 4, v{TMP}
                """)
        RS_ = XH + 16
        I(f"s_mul_i32 s{ST+1}, s{S_M}, 10")
        for j in range(5):
            I(f"""
            s_add_u32 s{ST+2}, s{ST+1}, {2*j}
            v_add_u32 v{TMP+2}, s{ST+2}, v{TMP+1}
            v_lshrrev_b32 v{TMP+3}, 4, v{TMP+2}
            v_and_b32 v{TMP+2}, 15, v{TMP+2}
            v_xor_b32 v{TMP+2}, v{TMP+2}, v{V_T}
            v_lshl_add_u32 v{TMP+2}, v{TMP+2}, 4, v{TMP}
            v_lshl_add_u32 v{RS_+j}, v{TMP+3}, 12, v{TMP+2}
            """)
        lw1 = self.b.uid("L_xw"); lwj = self.b.uid("L_xw")
        I(f"""
        s_cmp_lt_u32 s{S_M}, 2
        s_cbranch_scc1 {lw1}
        s_waitcnt vmcnt(1)
        s_branch {lwj}
        {lw1}:
        s_waitcnt vmcnt(8)
        {lwj}:
        """)
        for s_ in range(20):
            for e in range(2):
                I(f"ds_read_b64 v[{XF+4*s_+2*e}:{XF+4*s_+2*e+1}], v{AD+2*(s_&3)+e} offset:{4096*(s_>>2)}")
        for j in range(5):
            I(f"ds_read_b64 v[{XH+24+2*j}:{XH+25+2*j}], v{RS_+j}")
        self.tag_eval()
        I("s_waitcnt lgkmcnt(0)")
        for j in range(10): I(f"v_accvgpr_write_b32 a{j}, v{XH+24+j}")
        I("s_barrier")
        if self.wq_touch == 2:
            self.srd(S_B, P_WQ, 640*1280)
            I(f"""
            v_lshlrev_b32 v{XH+6}, 7, v{V_L}
            s_and_b32 s{ST}, s{S_RB}, 3
            s_lshl_b32 s{ST}, s{ST}, 3
            s_add_u32 s{ST}, s{ST}, s{S_M}
            s_lshl_b32 s{ST}, s{ST}, 2
            s_add_u32 s{ST}, s{ST}, s{S_WV}
            s_mul_i32 s{ST}, s{ST}, 6400
            """)
            self.line_touch(S_B, XH+6, ST, 50)
        wq = self.wq_ops()
        self.stamp("xfrag")
        C("LN1 stats: sum via ones-MFMA, sumsq via Gram diagonal")
        ONES, D1, D2 = TMP, TMP+4, TMP+8
        for i in range(4): I(f"v_mov_b32 v{ONES+i}, 0x3f803f80")
        for s in range(20):
            I(f"v_mfma_f32_16x16x32_bf16 {vr(D1)}, {vr(ONES)}, {vr(XF+4*s)}, {'0' if s == 0 else vr(D1)}")
            I(f"v_mfma_f32_16x16x32_bf16 {vr(D2)}, {vr(XF+4*s)}, {vr(XF+4*s)}, {'0' if s == 0 else vr(D2)}")
            if s % 2 == 0 and wq: wq.pop(0)()
        MU, RS, T1, T2 = XH, XH+1, XH+2, XH+3
        I(f"""
        v_and_b32 v{T1}, 3, v{V_T}
        v_cmp_eq_u32 vcc, 1, v{T1}
        v_cndmask_b32 v{T2}, v{D2}, v{D2+1}, vcc
        v_cmp_eq_u32 vcc, 2, v{T1}
        v_cndmask_b32 v{T2}, v{T2}, v{D2+2}, vcc
        v_cmp_eq_u32 vcc, 3, v{T1}
        v_cndmask_b32 v{T2}, v{T2}, v{D2+3}, vcc
        v_lshrrev_b32 v{T1}, 2, v{V_T}
        v_lshl_add_u32 v{T1}, v{T1}, 4, v{V_T}
        v_lshlrev_b32 v{T1}, 2, v{T1}
        ds_bpermute_b32 v{T2}, v{T1}, v{T2}
        v_mul_f32 v{MU}, {1.0/640!r}, v{D1}
        s_waitcnt lgkmcnt(0)
        v_mul_f32 v{T2}, {1.0/640!r}, v{T2}
        v_fma_f32 v{T2}, -v{MU}, v{MU}, v{T2}
        v_max_f32 v{T2}, 0, v{T2}
        v_add_f32 v{T2}, 0x3727c5ac, v{T2}
        v_rsq_f32 v{RS}, v{T2}
        s_nop 0
        v_mul_f32 v{MU}, v{MU}, v{RS}
        v_sub_f32 v{TMP}, 0, v{MU}                           ; -mu*rstd
        v_mov_b32 v{TMP+1}, v{TMP}
        v_mov_b32 v{TMP+2}, v{RS}
        v_mov_b32 v{TMP+3}, v{RS}
        """)
        C("xhat = x*rstd - mu*rstd (fp32)")
        for s in range(20):
            for q in range(4):
                src = XF + 4*s + q
                d = XH + 8*s + 2*q
                if d + 1 >= 238 and False: pass
                I(f"v_lshlrev_b32 v{d}, 16, v{src}\nv_and_b32 v{d+1}, 0xffff0000, v{src}")
            for q in range(4):
                d = XH + 8*s + 2*q
                I(f"v_pk_fma_f32 v[{d}:{d+1}], v[{d}:{d+1}], v[{TMP+2}:{TMP+3}], v[{TMP}:{TMP+1}]")
            if s < 17 and wq: wq.pop(0)()
        assert not wq
        self.stamp("xhat")
        G0 = TMP+4
        lp = self.b.uid("L_mp"); ok = self.b.uid("L_mpok")
        I(f"""
        s_mul_i32 s{ST+1}, s{S_WV}, {80*16}
        v_add_u32 v{TMP+2}, s{ST+1}, v{V_L16}
        v_add_u32 v{TMP+3}, 1024, v{TMP+2}
        v_cmp_gt_u32 vcc, 16, v{V_L}
        v_cndmask_b32 v{TMP+3}, v{TMP+2}, v{TMP+3}, vcc
        s_mov_b32 s{ST}, {TIMEOUT}
        {lp}:
        buffer_load_dwordx4 {vr(G0)}, v{TMP+2}, {sr(S_WS)}, 0 offen offset:{MODG} sc1
        buffer_load_dwordx4 {vr(G0+4)}, v{TMP+3}, {sr(S_WS)}, 0 offen offset:{MODG} sc1
        s_waitcnt vmcnt(0)
        v_cmp_ne_u32 vcc, s{S_TAG}, v{G0+2}
        s_mov_b64 s[{ST+2}:{ST+3}], vcc
        v_cmp_ne_u32 vcc, s{S_TAG+1}, v{G0+3}
        s_or_b64 s[{ST+2}:{ST+3}], s[{ST+2}:{ST+3}], vcc
        v_cmp_ne_u32 vcc, s{S_TAG}, v{G0+6}
        s_or_b64 s[{ST+2}:{ST+3}], s[{ST+2}:{ST+3}], vcc
        v_cmp_ne_u32 vcc, s{S_TAG+1}, v{G0+7}
        s_or_b64 s[{ST+2}:{ST+3}], s[{ST+2}:{ST+3}], vcc
        s_cmp_eq_u64 s[{ST+2}:{ST+3}], 0
        s_cbranch_scc1 {ok}
        """)
        self.spin_tail(ST, lp, 2)
        I(f"{ok}:")
        for blk, av in ((G0, TMP+2), (G0+4, TMP+3)):
            I(f"""
            v_and_b32 v{blk+3}, 0xffff0000, v{blk+1}
            v_lshlrev_b32 v{blk+2}, 16, v{blk+1}
            v_and_b32 v{blk+1}, 0xffff0000, v{blk}
            v_lshlrev_b32 v{blk}, 16, v{blk}
            """)
        lab_a = self.b.uid("L_a")
        I(f"s_cmp_lt_u32 s{S_WV}, 2\ns_cbranch_scc1 {lab_a}")
        for blk in (G0, G0+4):
            for q in range(4): I(f"v_add_f32 v{blk+q}, 1.0, v{blk+q}")
            I(f"""
            v_cvt_pk_bf16_f32 v{blk}, v{blk}, v{blk+1}
            v_cvt_pk_bf16_f32 v{blk+2}, v{blk+2}, v{blk+3}
            v_and_b32 v{blk+1}, 0xffff0000, v{blk}
            v_lshlrev_b32 v{blk}, 16, v{blk}
            v_and_b32 v{blk+3}, 0xffff0000, v{blk+2}
            v_lshlrev_b32 v{blk+2}, 16, v{blk+2}
            """)
        I(f"""
        {lab_a}:
        v_add_u32 v{TMP+2}, {L_MOD}, v{TMP+2}
        v_add_u32 v{TMP+3}, {L_MOD}, v{TMP+3}
        ds_write_b128 v{TMP+2}, {vr(G0)}
        ds_write_b128 v{TMP+3}, {vr(G0+4)}
        s_waitcnt lgkmcnt(0)
        s_barrier
        """)
        self.stamp("modgot")
        C("h1 = xhat*A + B -> bf16 fragments (overwrites XF).  all DMAs (wq, wk) were waited by vmcnt(0) above, barrier publishes them")
        va = TMP
        I(f"v_lshlrev_b32 v{va}, 4, v{V_G}\nv_add_u32 v{va}, {L_MOD}, v{va}")
        def buf(s): return (XF + 48 + 16*(s & 1)) if s < 12 else (XH + 16*(s & 1))
        def rd(s):
            B_ = buf(s)
            for hf in range(2):
                I(f"ds_read_b128 {vr(B_+4*hf)}, v{va} offset:{2560 + 128*s + 64*hf}")
                I(f"ds_read_b128 {vr(B_+8+4*hf)}, v{va} offset:{128*s + 64*hf}")
        rd(0)
        for s in range(20):
            if s + 1 < 20: rd(s+1)
            I(f"s_waitcnt lgkmcnt({4 if s + 1 < 20 else 0})")
            B_ = buf(s)
            for q in range(4):
                d = XH + 8*s + 2*q
                I(f"v_pk_fma_f32 v[{d}:{d+1}], v[{d}:{d+1}], v[{B_+2*q}:{B_+2*q+1}], v[{B_+8+2*q}:{B_+8+2*q+1}]")
            for q in range(4):
                d = XH + 8*s + 2*q
                I(f"v_cvt_pk_bf16_f32 v{XF+4*s+q}, v{d}, v{d+1}")
        labd = self.b.uid("L_dg")
        I(f"s_cmp_lg_u32 s{self.S_PROD}, 2\ns_cbranch_scc1 {labd}")
        self.MT = self.MT3
        self.mod_dma(cdst="a[250:251]")
        I(f"{labd}:")
        self.stamp("h1")

    def phase_kv(self):
        I, C = self.I, self.C
        XF, XH = self.XF, self.XH
        lab_end = self.b.uid("L_kvend"); lab_v = self.b.uid("L_v"); lab_pub = self.b.uid("L_kvpub")
        va, vb, W0, ACC0, ACC1, T = XH, XH+1, XH+4, XH+24, XH+28, XH+32
        I(f"""
        s_cmp_ge_u32 s{S_M}, 2
        s_cbranch_scc1 {lab_end}
        v_lshrrev_b32 v{va}, 2, v{V_T}
        v_lshl_add_u32 v{va}, v{V_G}, 2, v{va}
        v_mul_u32_u24 v{va}, 40, v{va}
        v_and_b32 v{vb}, 3, v{V_T}
        v_lshl_add_u32 v{va}, v{vb}, 3, v{va}
        v_add_u32 v{va}, {L_WK}, v{va}
        s_cmp_eq_u32 s{S_M}, 1
        s_cbranch_scc1 {lab_v}
        """)
        def loop(isv):
            WK = XH + 48
            def rd(s):
                o = WK + (s % 4)*8
                I(f"""
                ds_read_b64_tr_b16 v[{o}:{o+1}], v{va} offset:{1280*s}
                ds_read_b64_tr_b16 v[{o+2}:{o+3}], v{va} offset:{1280*s+640}
                ds_read_b64_tr_b16 v[{o+4}:{o+5}], v{va} offset:{1280*s+32}
                ds_read_b64_tr_b16 v[{o+6}:{o+7}], v{va} offset:{1280*s+672}
                """)
            for s in range(3): rd(s)
            for s in range(20):
                if s + 3 < 20: rd(s+3)
                I(f"s_waitcnt lgkmcnt({4*min(3, 19-s)})")
                o2 = WK + (s % 4)*8
                for tl, acc in ((0, ACC0), (1, ACC1)):
                    w = vr(o2+4*tl); x = vr(XF+4*s)
                    c = '0' if s == 0 else vr(acc)
                    if isv: I(f"v_mfma_f32_16x16x32_bf16 {vr(acc)}, {x}, {w}, {c}")
                    else:   I(f"v_mfma_f32_16x16x32_bf16 {vr(acc)}, {w}, {x}, {c}")
        C("K: D[dim 4g+r][token t]")
        loop(False)
        I(f"""
        v_mul_f32 v{T}, v{ACC0}, v{ACC0}
        v_fmac_f32 v{T}, v{ACC0+1}, v{ACC0+1}
        v_fmac_f32 v{T}, v{ACC0+2}, v{ACC0+2}
        v_fmac_f32 v{T}, v{ACC0+3}, v{ACC0+3}
        v_mul_f32 v{T+1}, v{ACC1}, v{ACC1}
        v_fmac_f32 v{T+1}, v{ACC1+1}, v{ACC1+1}
        v_fmac_f32 v{T+1}, v{ACC1+2}, v{ACC1+2}
        v_fmac_f32 v{T+1}, v{ACC1+3}, v{ACC1+3}
        v_cmp_eq_u32 vcc, 0, v{V_G}
        v_cndmask_b32 v{T+1}, 0, v{T+1}, vcc
        v_add_f32 v{T}, v{T}, v{T+1}
        """)
        self.reduce_g([T], T+2)
        for sh in (8, 4, 2, 1):
            I(f"v_mov_b32_dpp v{T+2}, v{T} row_ror:{sh} row_mask:0xf bank_mask:0xf\nv_max_f32 v{T}, v{T}, v{T+2}")
        I(f"""
        s_lshl_b32 s{ST}, s{S_WV}, 2
        s_add_u32 s{ST}, s{ST}, {L_MISC}
        v_mov_b32 v{T+2}, s{ST}
        ds_write_b32 v{T+2}, v{T}
        """)
        I(f"""
        v_cvt_pk_bf16_f32 v{T+4}, v{ACC0}, v{ACC0+1}
        v_cvt_pk_bf16_f32 v{T+5}, v{ACC0+2}, v{ACC0+3}
        v_cvt_pk_bf16_f32 v{T+6}, v{ACC1}, v{ACC1+1}
        v_cvt_pk_bf16_f32 v{T+7}, v{ACC1+2}, v{ACC1+3}
        s_lshr_b32 s{ST}, s{S_TT}, 1
        s_mul_i32 s{ST}, s{ST}, {KVT}
        s_add_u32 s{ST}, s{ST}, {KV}
        s_and_b32 s{ST+1}, s{S_TT}, 1
        s_lshl_b32 s{ST+1}, s{ST+1}, 4
        v_add_u32 v{T+8}, s{ST+1}, v{V_T}                    ; kk
        v_lshrrev_b32 v{T+9}, 1, v{V_G}
        v_lshl_add_u32 v{T+9}, v{T+9}, 5, v{T+8}             ; kk+32*(g>>1)
        v_lshlrev_b32 v{T+9}, 4, v{T+9}
        v_and_b32 v{T+10}, 1, v{V_G}
        v_lshl_add_u32 v{T+9}, v{T+10}, 3, v{T+9}
        buffer_store_dwordx2 v[{T+4}:{T+5}], v{T+9}, {sr(S_WS)}, s{ST} offen sc1
        v_lshlrev_b32 v{T+8}, 3, v{T+8}
        v_cmp_eq_u32 vcc, 0, v{V_G}
        s_and_saveexec_b64 s[{ST+4}:{ST+5}], vcc
        buffer_store_dwordx2 v[{T+6}:{T+7}], v{T+8}, {sr(S_WS)}, s{ST} offen offset:1024 sc1
        s_mov_b64 exec, s[{ST+4}:{ST+5}]
        s_branch {lab_pub}
        {lab_v}:
        """)
        C("V^T: D[token 4g+r][d = lane&15]")
        loop(True)
        I(f"""
        v_cvt_pk_bf16_f32 v{T+4}, v{ACC0}, v{ACC0+1}
        v_cvt_pk_bf16_f32 v{T+5}, v{ACC0+2}, v{ACC0+3}
        v_cvt_pk_bf16_f32 v{T+6}, v{ACC1}, v{ACC1+1}
        v_cvt_pk_bf16_f32 v{T+7}, v{ACC1+2}, v{ACC1+3}
        v_cmp_gt_u32 vcc, 4, v{V_T}
        v_cndmask_b32 v{T+6}, 0, v{T+6}, vcc
        v_cndmask_b32 v{T+7}, 0, v{T+7}, vcc
        v_cmp_eq_u32 vcc, 4, v{V_T}
        v_mov_b32 v{T+11}, 0x3f803f80
        v_cndmask_b32 v{T+6}, v{T+6}, v{T+11}, vcc
        v_cndmask_b32 v{T+7}, v{T+7}, v{T+11}, vcc
        s_lshr_b32 s{ST}, s{S_TT}, 1
        s_mul_i32 s{ST}, s{ST}, {KVT}
        s_and_b32 s{ST+1}, s{S_TT}, 1
        s_lshl_b32 s{ST+1}, s{ST+1}, 10
        s_add_u32 s{ST}, s{ST}, s{ST+1}
        s_add_u32 s{ST}, s{ST}, {KV+1280}
        v_and_b32 v{T+9}, 1, v{V_G}
        v_lshl_add_u32 v{T+9}, v{T+9}, 5, v{V_T}             ; d + 32*(g&1)
        v_lshlrev_b32 v{T+9}, 4, v{T+9}
        v_lshrrev_b32 v{T+10}, 1, v{V_G}
        v_lshl_add_u32 v{T+9}, v{T+10}, 3, v{T+9}
        buffer_store_dwordx2 v[{T+4}:{T+5}], v{T+9}, {sr(S_WS)}, s{ST} offen sc1
        buffer_store_dwordx2 v[{T+6}:{T+7}], v{T+9}, {sr(S_WS)}, s{ST} offen offset:256 sc1
        v_mov_b32 v{T}, 0
        s_lshl_b32 s{ST}, s{S_WV}, 2
        s_add_u32 s{ST}, s{ST}, {L_MISC}
        v_mov_b32 v{T+2}, s{ST}
        ds_write_b32 v{T+2}, v{T}
        {lab_pub}:
        s_waitcnt vmcnt(0) lgkmcnt(0)
        s_barrier
        """)
        lab_np = self.b.uid("L_kvnp")
        I(f"""
        s_cmp_lg_u32 s{S_WV}, 0
        s_cbranch_scc1 {lab_np}
        v_mov_b32 v{T+2}, {L_MISC}
        ds_read_b128 {vr(T+4)}, v{T+2}
        s_waitcnt lgkmcnt(0)
        v_max_f32 v{T+4}, v{T+4}, v{T+5}
        v_max_f32 v{T+6}, v{T+6}, v{T+7}
        v_max_f32 v{T+6}, v{T+4}, v{T+6}
        v_mov_b32 v{T+4}, s{S_TAG}
        v_mov_b32 v{T+5}, s{S_TAG+1}
        v_mov_b32 v{T+7}, 0
        s_lshl_b32 s{ST}, s{S_RB}, 1
        s_add_u32 s{ST}, s{ST}, s{S_M}
        s_lshl_b32 s{ST}, s{ST}, 7
        s_add_u32 s{ST}, s{ST}, {KVFLAG}
        v_mov_b32 v{T+2}, s{ST}
        s_mov_b64 exec, 1
        buffer_store_dwordx4 {vr(T+4)}, v{T+2}, {sr(S_WS)}, 0 offen sc1
        s_mov_b64 exec, -1
        {lab_np}:
        {lab_end}:
        """)
        self.stamp("kvpub")

    QA0, QA1, QB0, QB1 = 44, 48, 52, 56
    SA, SB = 60, 76
    PA, PB = 92, 100
    OA, OB = 108, 124
    KB = 140
    VB = 172
    AT = 204

    def phase_q(self):
        I, C = self.I, self.C
        XF, XH = self.XF, self.XH
        va, vb, WB, ACC = XH, XH+1, XH+4, XH+64
        I(f"""
        v_lshrrev_b32 v{va}, 2, v{V_T}
        v_lshl_add_u32 v{va}, v{V_G}, 2, v{va}
        v_mul_u32_u24 v{va}, 160, v{va}
        v_and_b32 v{vb}, 3, v{V_T}
        v_lshl_add_u32 v{va}, v{vb}, 3, v{va}
        v_add_u32 v{vb}, 51200, v{va}
        """)
        issued = []
        def rd1(s, j):
            base = va if s < 10 else vb
            o = 5120*(s % 10)
            W_ = WB + 20*(s % 3) + 4*j
            I(f"ds_read_b64_tr_b16 v[{W_}:{W_+1}], v{base} offset:{L_WQ + o + 32*j}")
            I(f"ds_read_b64_tr_b16 v[{W_+2}:{W_+3}], v{base} offset:{L_WQ + o + 32*j + 2560}")
            issued.append((s, j))
        for s in range(2):
            for j in range(5): rd1(s, j)
        for s in range(20):
            younger = 2*(len(issued) - 1 - issued.index((s, 4)))
            I(f"s_waitcnt lgkmcnt({min(15, younger)})")
            for j in range(5):
                I(f"v_mfma_f32_16x16x32_bf16 {vr(ACC+4*j)}, {vr(WB+20*(s%3)+4*j)}, {vr(XF+4*s)}, {'0' if s == 0 else vr(ACC+4*j)}")
                if s + 2 < 20: rd1(s+2, j)
        qs = (20 ** -0.5) * 1.4426950408889634
        I(f"s_mov_b32 s{ST}, {hex(f2u(qs))}")
        C("scale, pack, write wave-private [16][176B] tile")
        I(f"""
        s_mul_i32 s{ST+1}, s{S_WV}, {16*176}
        s_add_u32 s{ST+1}, s{ST+1}, {L_QS}
        v_mul_u32_u24 v{va}, 176, v{V_T}
        v_lshl_add_u32 v{va}, v{V_G}, 3, v{va}
        v_add_u32 v{va}, s{ST+1}, v{va}
        """)
        for j in range(5):
            a = ACC + 4*j
            for r in range(4): I(f"v_mul_f32 v{a+r}, s{ST}, v{a+r}")
            I(f"v_cvt_pk_bf16_f32 v{a}, v{a}, v{a+1}\nv_cvt_pk_bf16_f32 v{a+1}, v{a+2}, v{a+3}")
            I(f"ds_write_b64 v{va}, v[{a}:{a+1}] offset:{32*j}")
        AT = self.AT
        I(f"""
        v_mul_u32_u24 v{vb}, 176, v{V_T}
        v_bfe_u32 v{va}, v{V_L}, 4, 1
        v_mul_u32_u24 v{va}, 40, v{va}
        v_add_u32 v{vb}, v{vb}, v{va}
        v_add_u32 v{vb}, s{ST+1}, v{vb}                      ; token*176 + (q>>4)*40
        v_lshrrev_b32 v{va}, 5, v{V_L}
        v_lshl_add_u32 v{va}, v{va}, 4, v{vb}                ; + 16h
        s_waitcnt lgkmcnt(0)
        ds_read_b64 v[{self.QA0}:{self.QA0+1}], v{va}
        ds_read_b64 v[{self.QA0+2}:{self.QA0+3}], v{va} offset:8
        ds_read_b64 v[{self.QB0}:{self.QB0+1}], v{va} offset:80
        ds_read_b64 v[{self.QB0+2}:{self.QB0+3}], v{va} offset:88
        ds_read_b64 v[{self.QA1}:{self.QA1+1}], v{vb} offset:32
        ds_read_b64 v[{self.QB1}:{self.QB1+1}], v{vb} offset:112
        v_cmp_gt_u32 vcc, 32, v{V_L}
        s_waitcnt lgkmcnt(0)
        """)
        for r in (self.QA1, self.QA1+1, self.QB1, self.QB1+1):
            I(f"v_cndmask_b32 v{r}, 0, v{r}, vcc")
        for (t, q0, q1) in ((AT, self.QA0, self.QA1), (AT+1, self.QB0, self.QB1)):
            I(f"v_mov_b32 v{t}, 0")
            for r in (q0, q0+1, q0+2, q0+3, q1, q1+1):
                I(f"v_dot2_f32_bf16 v{t}, v{r}, v{r}, v{t}")
        for t in (AT, AT+1):
            I(f"v_mov_b32 v{AT+2}, v{t}\nv_permlane32_swap_b32 v{t}, v{AT+2}\nv_add_f32 v{t}, v{t}, v{AT+2}")
        I(f"v_max_f32 v{AT}, v{AT}, v{AT+1}")
        I("s_barrier")
        self.stamp("qproj")

    RL_OFF, RL_TR, RL_D = 4, 11, 12
    S_RKS, S_RDS, RL_TRS = (78, 82), (79, 83), (11, 40)
    S_RD2S = (74, 73)
    def rl_issue(self, rnd):
        I = self.I
        self.S_RK, self.S_RD, self.RL_TR = self.S_RKS[rnd], self.S_RDS[rnd], self.RL_TRS[rnd]
        u, A0, A1 = ST+4, ST+5, ST+6
        lk4 = self.b.uid("L_r4"); lk3 = self.b.uid("L_r3"); lA = self.b.uid("L_rA"); lend = self.b.uid("L_re")
        I(f"""
        s_lshl_b32 s{u}, s{S_W}, 2
        s_add_u32 s{u}, s{u}, s{S_WV}
        """)
        if rnd == 1:
            I(f"""
            s_mov_b32 s{self.S_RK}, 2
            s_cmp_lt_u32 s{S_M}, 6
            s_cbranch_scc1 {lend}
            s_lshl_b32 s{u}, s{S_RB}, 1
            s_add_u32 s{u}, s{u}, s{S_M}
            s_sub_u32 s{u}, s{u}, 6
            s_lshl_b32 s{u}, s{u}, 2
            s_add_u32 s{u}, s{u}, s{S_WV}
            s_add_u32 s{u}, s{u}, 1024
            s_cmp_ge_u32 s{u}, 1232
            s_cbranch_scc1 {lend}
            s_branch {lk3}
            """)
        else:
            I(f"""
            s_cmp_ge_u32 s{u}, 912
            s_cbranch_scc1 {lk3}
            s_cmp_ge_u32 s{u}, 480
            s_cbranch_scc1 {lk4}
            s_mul_i32 s{A0}, s{u}, 410
            s_lshr_b32 s{A0}, s{A0}, 16                 ; p = u/160
            s_mul_i32 s{A1}, s{A0}, 160
            s_sub_u32 s{u}, s{u}, s{A1}                 ; r
            s_cmp_eq_u32 s{A0}, 1
            s_cselect_b32 s{S_A}, s{P_W1}, s{P_WO}
            s_cselect_b32 s{S_A+1}, s{P_W1+1}, s{P_WO+1}
            s_cmp_eq_u32 s{A0}, 2
            s_cselect_b32 s{S_A}, s{P_W2}, s{S_A}
            s_cselect_b32 s{S_A+1}, s{P_W2+1}, s{S_A+1}
            s_mov_b32 s{S_A+2}, {640*1280}
            s_mul_i32 s{A0}, s{A0}, 100                 ; p*100
            s_mul_i32 s{A1}, s{u}, 3277
            s_lshr_b32 s{A1}, s{A1}, 16                 ; m = r/20
            s_mul_i32 s{ST+7}, s{A1}, 20
            s_sub_u32 s{u}, s{u}, s{ST+7}               ; kb
            s_mul_i32 s{ST+7}, s{u}, 5
            s_add_u32 s{A0}, s{A0}, s{ST+7}
            s_lshl_b32 s{A0}, s{A0}, 10
            s_mul_i32 s{ST+7}, s{A1}, {WSA_M}
            s_add_u32 s{A0}, s{A0}, s{ST+7}
            s_add_u32 s{self.S_RD}, s{A0}, {WSA}
            s_branch {lA}
            {lk4}:
            s_sub_u32 s{u}, s{u}, 480
            s_mov_b32 s{S_A}, s{P_W4}
            s_mov_b32 s{S_A+1}, s{P_W4+1}
            s_mov_b32 s{S_A+2}, {1728*1280}
            s_mul_i32 s{A1}, s{u}, 1214
            s_lshr_b32 s{A1}, s{A1}, 16                 ; m = r/54
            s_mul_i32 s{ST+7}, s{A1}, 54
            s_sub_u32 s{u}, s{u}, s{ST+7}               ; kb
            s_mul_i32 s{A0}, s{u}, 5120
            s_mul_i32 s{ST+7}, s{A1}, {W4S_M}
            s_add_u32 s{A0}, s{A0}, s{ST+7}
            s_add_u32 s{self.S_RD}, s{A0}, {W4S}
            {lA}:
            s_mov_b32 s{S_A+3}, 0x20000
            s_mov_b32 s{self.S_RK}, 0
            s_mul_i32 s{u}, s{u}, {32*1280}
            s_mul_i32 s{A1}, s{A1}, 160
            s_add_u32 s{u}, s{u}, s{A1}
            s_mul_i32 s{A0}, s{S_WV}, 14336
            """)
            O = self.RL_OFF
            for q in range(5):
                I(f"""
                v_add_u32 v{O+5}, {64*q}, v{V_L}
                v_mul_u32_u24 v{O+6}, 6554, v{O+5}
                v_lshrrev_b32 v{O+6}, 16, v{O+6}
                v_mul_u32_u24 v{O+q}, {1280-160}, v{O+6}
                v_lshl_add_u32 v{O+q}, v{O+5}, 4, v{O+q}
                """)
            for q in range(5):
                I(f"s_mov_b32 m0, s{A0}\ns_add_u32 s{A0}, s{A0}, 1024\nbuffer_load_dwordx4 v{O+q}, {sr(S_A)}, s{u} offen lds")
            I(f"""
            v_lshrrev_b32 v{self.RL_TR}, 2, v{V_T}
            v_lshl_add_u32 v{self.RL_TR}, v{V_G}, 2, v{self.RL_TR}
            v_mul_u32_u24 v{self.RL_TR}, 160, v{self.RL_TR}
            s_branch {lend}_tr
            """)
        I(f"""
        {lk3}:
        s_sub_u32 s{u}, s{u}, 912
        s_mov_b32 s{S_A}, s{P_W3}
        s_mov_b32 s{S_A+1}, s{P_W3+1}
        s_mov_b32 s{S_A+2}, {640*3456}
        s_mov_b32 s{S_A+3}, 0x20000
        s_mov_b32 s{self.S_RK}, 1
        s_mul_i32 s{A1}, s{u}, 3277
        s_lshr_b32 s{A1}, s{A1}, 16                 ; m16 = r/20
        s_mul_i32 s{ST+7}, s{A1}, 20
        s_sub_u32 s{u}, s{u}, s{ST+7}               ; kb
        s_mul_i32 s{ST+7}, s{A1}, {W3S_M}
        s_add_u32 s{ST+7}, s{ST+7}, {W3S}
        s_mul_i32 s{A0}, s{u}, {4096 if self.w3split else 7168}
        s_add_u32 s{self.S_RD}, s{A0}, s{ST+7}               ; tiles 0..3
        s_mul_i32 s{A0}, s{u}, {3072 if self.w3split else 7168}
        s_add_u32 s{A0}, s{A0}, s{ST+7}
        s_add_u32 s{self.S_RD2S[rnd]}, s{A0}, {80*1024 if self.w3split else 4096}      ; tiles 4..6
        s_mul_i32 s{A0}, s{A1}, 7
        s_sub_u32 s{ST+7}, s{A1}, 12
        s_max_i32 s{ST+7}, s{ST+7}, 0
        s_sub_u32 s{A0}, s{A0}, s{ST+7}
        s_lshl_b32 s{A0}, s{A0}, 5
        s_mul_i32 s{u}, s{u}, {32*3456}
        s_add_u32 s{u}, s{u}, s{A0}
        s_mul_i32 s{A0}, s{S_WV}, 14336
        s_add_u32 s{A0}, s{A0}, {7168*rnd}
        """)
        O = self.RL_OFF
        for q in range(7):
            I(f"""
            v_add_u32 v{self.RL_D}, {64*q}, v{V_L}
            v_mul_u32_u24 v{self.RL_D+1}, 4682, v{self.RL_D}
            v_lshrrev_b32 v{self.RL_D+1}, 16, v{self.RL_D+1}
            v_mul_u32_u24 v{O+q}, {3456-224}, v{self.RL_D+1}
            v_lshl_add_u32 v{O+q}, v{self.RL_D}, 4, v{O+q}
            """)
        for q in range(7):
            I(f"s_mov_b32 m0, s{A0}\ns_add_u32 s{A0}, s{A0}, 1024\nbuffer_load_dwordx4 v{O+q}, {sr(S_A)}, s{u} offen lds")
        I(f"""
        v_lshrrev_b32 v{self.RL_TR}, 2, v{V_T}
        v_lshl_add_u32 v{self.RL_TR}, v{V_G}, 2, v{self.RL_TR}
        v_mul_u32_u24 v{self.RL_TR}, 224, v{self.RL_TR}
        {lend}_tr:
        v_and_b32 v{self.RL_D}, 3, v{V_T}
        v_lshl_add_u32 v{self.RL_TR}, v{self.RL_D}, 3, v{self.RL_TR}
        s_mul_i32 s{A0}, s{S_WV}, 14336
        s_add_u32 s{A0}, s{A0}, {7168*rnd}
        v_add_u32 v{self.RL_TR}, s{A0}, v{self.RL_TR}
        {lend}:
        """)

    def rl_store(self, rnd):
        I = self.I
        self.S_RK, self.S_RD, self.RL_TR = self.S_RKS[rnd], self.S_RDS[rnd], self.RL_TRS[rnd]
        l7 = self.b.uid("L_rs7"); lend = self.b.uid("L_rse")
        D = self.RL_D
        I(f"s_cmp_eq_u32 s{self.S_RK}, 2\ns_cbranch_scc1 {lend}\ns_cmp_eq_u32 s{self.S_RK}, 1\ns_cbranch_scc1 {l7}")
        for (nt, rowb, last) in ((5, 160, False), (7, 224, True)):
            if last: I(f"{l7}:")
            for j in range(nt):
                I(f"ds_read_b64_tr_b16 v[{D+4*j}:{D+4*j+1}], v{self.RL_TR} offset:{32*j}")
                I(f"ds_read_b64_tr_b16 v[{D+4*j+2}:{D+4*j+3}], v{self.RL_TR} offset:{32*j+16*rowb}")
            if nt == 5: I(f"s_add_u32 s{ST+4}, s{self.S_RD}, 4096")
            else: I(f"s_mov_b32 s{ST+4}, s{self.S_RD2S[rnd]}")
            I("s_waitcnt lgkmcnt(0)")
            for j in range(nt):
                I(f"buffer_store_dwordx4 {vr(D+4*j)}, v{V_L16}, {sr(S_WS)}, s{self.S_RD if j < 4 else ST+4} offen offset:{1024*(j%4)} sc1")
            if not last: I(f"s_branch {lend}")
        I(f"{lend}:")

    def rl_flag(self):
        I = self.I
        lab = self.b.uid("L_rlp")
        I(f"""
        s_barrier
        s_cmp_lg_u32 s{S_WV}, 0
        s_cbranch_scc1 {lab}
        v_mov_b32 v252, s{S_TAG}
        v_mov_b32 v253, s{S_TAG+1}
        s_lshl_b32 s{ST+4}, s{S_W}, 7
        s_add_u32 s{ST+4}, s{ST+4}, {RLFLAG}
        v_mov_b32 v251, s{ST+4}
        s_mov_b64 exec, 1
        buffer_store_dwordx2 v[252:253], v251, {sr(S_WS)}, 0 offen sc1
        s_mov_b64 exec, -1
        {lab}:
        """)

    def phase_kvwait(self):
        I = self.I
        AT = self.AT
        lp = self.b.uid("L_kvw"); ok = self.b.uid("L_kvok")
        I(f"""
        v_lshlrev_b32 v{AT+3}, 7, v{V_L}
        s_mov_b32 s{ST}, {TIMEOUT}
        s_mov_b32 s{ST+1}, {KVFLAG}
        {lp}:
        buffer_load_dwordx4 {vr(AT+4)}, v{AT+3}, {sr(S_WS)}, s{ST+1} offen sc1
        """)
        I(f"""
        s_waitcnt vmcnt(0)
        v_cmp_ne_u32 vcc, s{S_TAG}, v{AT+4}
        s_mov_b64 s[{ST+2}:{ST+3}], vcc
        v_cmp_ne_u32 vcc, s{S_TAG+1}, v{AT+5}
        s_or_b64 s[{ST+2}:{ST+3}], s[{ST+2}:{ST+3}], vcc
        s_cmp_eq_u64 s[{ST+2}:{ST+3}], 0
        s_cbranch_scc1 {ok}
        """)
        self.spin_tail(ST, lp, 3)
        I(f"{ok}:")
        self.reduce_g([AT+6], AT+2, op="v_max_f32")
        for sh in (8, 4, 2, 1):
            I(f"v_mov_b32_dpp v{AT+2}, v{AT+6} row_ror:{sh} row_mask:0xf bank_mask:0xf\nv_max_f32 v{AT+6}, v{AT+6}, v{AT+2}")
        I(f"v_mov_b32 v{AT+1}, v{AT+6}")
        self.xid_publish()
        labg = self.b.uid("L_dg")
        I(f"s_cmp_lg_u32 s{self.S_PROD}, 2\ns_cbranch_scc1 {labg}")
        I(f"v_accvgpr_read_b32 v248, a250\nv_accvgpr_read_b32 v249, a251")
        self.MT = self.MT2
        self.mod_gemv(60, 63, 63, None)
        I("s_barrier")
        I(f"{labg}:")
        self.stamp("kvwait")

    def kv_loads(self, i, sK, sV):
        raise NotImplementedError

    def phase_attn(self, force_slow=False):
        I, C = self.I, self.C
        QA0, QA1, QB0, QB1, SA, SB, PA, PB, OA, OB, KB, VB, AT = (self.QA0, self.QA1, self.QB0, self.QB1, self.SA, self.SB,
            self.PA, self.PB, self.OA, self.OB, self.KB, self.VB, self.AT)
        sK, sV, cnt = 85, 86, 87
        vK1 = AT+2
        lab_slow = self.b.uid("L_slow"); lab_done = self.b.uid("L_adone")
        C("bound check: |q|^2 * kmax2 <= T^2 (log2 units) else true-max path")
        Tlim = 64.0
        I(f"""
        v_mul_f32 v{AT}, v{AT}, v{AT+1}
        v_and_b32 v{vK1}, 31, v{V_L}
        v_lshlrev_b32 v{vK1}, 3, v{vK1}
        s_mov_b32 s{ST+3}, {hex(f2u(Tlim*Tlim if not force_slow else -1.0))}
        v_cmp_nge_f32 vcc, s{ST+3}, v{AT}
        """)
        I(f"s_cmp_lg_u64 vcc, 0\ns_cselect_b32 s{self.S_SLOW}, 1, 0")
        for r in range(16): I(f"v_mov_b32 v{OA+r}, 0\nv_mov_b32 v{OB+r}, 0")
        KVL = self.L_KV
        vK16, vK8 = 200, 201
        KR, VR = 16, 48
        def kreg(buf): return KR + 8*buf
        def vreg(buf): return VR + 8*buf
        def rdK(t):
            k = kreg(t % 4); o = (t % 16)*KVT
            I(f"ds_read_b128 {ar(k)}, v{vK16} offset:{o}")
            I(f"ds_read_b64 a[{k+4}:{k+5}], v{vK8} offset:{o+1024}")
        def rdV(t, which=(0, 1)):
            v = vreg(t % 4); o = (t % 16)*KVT
            if 0 in which: I(f"ds_read_b128 {ar(v)}, v{vK16} offset:{o+1280}")
            if 1 in which: I(f"ds_read_b128 {ar(v+4)}, v{vK16} offset:{o+2304}")
        I(f"v_add_u32 v{vK16}, {KVL}, v{V_L16}\nv_add_u32 v{vK8}, {KVL}, v{vK1}\nv_mov_b32 v{self.V_BG}, v{V_L16}")
        for g in range(3): self.kv_dma(g)
        for r in range(16): I(f"v_mov_b32 v{SB+r}, 0xff800000")
        for r in range(8): I(f"v_mov_b32 v{PA+r}, 0")
        for r in range(8): I(f"v_accvgpr_write_b32 a{vreg(3)+r}, 0")
        self.rl_issue(0)
        I("s_waitcnt vmcnt(9)\ns_barrier")
        rdK(0); rdK(1); rdV(0)
        I(f"s_mov_b32 s{cnt}, 16")
        lp = self.b.uid("L_att"); lhk = [self.b.uid("L_hook") for _ in range(5)]; lback = [self.b.uid("L_back") for _ in range(4)]
        hooks = self.attn_hooks()
        mask = sum(1 << k for k in hooks)
        def exps(S, P, q):
            a = S + 4*q
            I(f"v_exp_f32 v{a}, v{a}\nv_exp_f32 v{a+1}, v{a+1}\nv_exp_f32 v{a+2}, v{a+2}\nv_exp_f32 v{a+3}, v{a+3}")
            I(f"v_cvt_pk_bf16_f32 v{P+2*q}, v{a}, v{a+1}\nv_cvt_pk_bf16_f32 v{P+2*q+1}, v{a+2}, v{a+3}")
        M16 = "v_mfma_f32_32x32x16_bf16"; M8 = "v_mfma_f32_32x32x8_bf16"
        SKS, SKL, SBM = 86, 85, 76
        def copy_slot(q, e):
            n = 2*(q & 1) + e
            if self.x_nokv: return
            if q < 2:
                if n == 3: I("s_mov_b64 exec, 0xffff")
                I(f"buffer_load_dwordx4 v{V_L16}, {sr(S_WS)}, s{SKS} offen offset:{1024*n} lds")
                if n == 3: I(f"s_mov_b64 exec, -1\ns_mov_b32 m0, s{SBM}")
            elif not self.noslot:
                I(f"buffer_load_dwordx4 v{self.V_BG}, {sr(S_WS)}, s{self.S_DS} offen offset:{1024*n} lds")
        def header(part):
            I("s_waitcnt vmcnt(12) lgkmcnt(4)")
            if not self.x_nobar: I("s_barrier")
            I(f"""
            s_bitcmp1_b32 s84, s{cnt}
            s_cbranch_scc1 {lhk[part]}
            {lback[part]}:
            s_add_u32 s{SKS}, s{SKS}, {4*KVT}
            s_add_u32 m0, s{SKL}, {((part + 3) % 4)*4*KVT}
            s_add_u32 s{self.S_DS}, s{self.S_DS}, s{self.S_INC}
            s_add_u32 s{SBM}, s{SBM}, s{self.S_INC}
            """)
        def body(i, qk=True, last=False):
            kb = kreg(i % 4); vb = vreg((i+3) % 4)
            k2 = kreg((i+2) % 4); ok = ((i+2) % 16)*KVT
            v1 = vreg((i+1) % 4); ov = ((i+1) % 16)*KVT
            if qk:
                I(f"{M16} {vr(SA,16)}, {ar(kb)}, {vr(QA0)}, 0")
                if not self.x_nords: I(f"ds_read_b128 {ar(k2)}, v{vK16} offset:{ok}")
            exps(SB, PB, 0)
            if qk:
                I(f"{M8} {vr(SA,16)}, a[{kb+4}:{kb+5}], v[{QA1}:{QA1+1}], {vr(SA,16)}")
            exps(SB, PB, 1)
            I(f"{M16} {vr(OA,16)}, {ar(vb)}, {vr(PA)}, {vr(OA,16)}")
            if qk and not self.x_nords: I(f"ds_read_b64 a[{k2+4}:{k2+5}], v{vK8} offset:{ok+1024}")
            exps(SB, PB, 2)
            I(f"{M16} {vr(OA,16)}, {ar(vb+4)}, {vr(PA+4)}, {vr(OA,16)}")
            if qk: copy_slot(i % 4, 0)
            exps(SB, PB, 3)
            if qk:
                I(f"{M16} {vr(SB,16)}, {ar(kb)}, {vr(QB0)}, 0")
                if not self.x_nords: I(f"ds_read_b128 {ar(v1)}, v{vK16} offset:{ov+1280}")
                exps(SA, PA, 0)
                I(f"{M8} {vr(SB,16)}, a[{kb+4}:{kb+5}], v[{QB1}:{QB1+1}], {vr(SB,16)}")
                copy_slot(i % 4, 1)
                exps(SA, PA, 1)
            I(f"{M16} {vr(OB,16)}, {ar(vb)}, {vr(PB)}, {vr(OB,16)}")
            if qk:
                if not self.x_nords: I(f"ds_read_b128 {ar(v1+4)}, v{vK16} offset:{ov+2304}")
                exps(SA, PA, 2)
            I(f"{M16} {vr(OB,16)}, {ar(vb+4)}, {vr(PB+4)}, {vr(OB,16)}")
            if qk:
                if i % 4 == 3:
                    I(f"s_sub_u32 s{cnt}, s{cnt}, 1")
                    header((i // 4 + 1) % 4)
                else:
                    I("s_waitcnt lgkmcnt(4)")
                exps(SA, PA, 3)
        I(f"""
        s_mul_i32 s{SKL}, s{S_WV}, {KVT}
        s_add_u32 s{SKS}, s{SKL}, {KV + 8*KVT}
        s_add_u32 s{SKL}, s{SKL}, {KVL}
        s_mov_b32 s{SBM}, {self.L_DUMMY}
        s_mov_b32 s{self.S_DS}, {KV}
        s_mov_b32 s{self.S_INC}, 0
        s_mov_b32 s84, {hex(mask)}
        """)
        I("s_waitcnt lgkmcnt(0)")
        lentry = self.b.uid("L_ent")
        I(f"""
        s_branch {lhk[4]}
        {lentry}:
        s_add_u32 s{SKS}, s{SKS}, {4*KVT}
        s_add_u32 m0, s{SKL}, {3*4*KVT}
        """)
        self.stamp("loop_in")
        I(f"{lp}:")
        for i in range(16): body(i)
        I(f"s_cmp_lg_u32 s{cnt}, 0\ns_cbranch_scc1 {lp}")
        self.stamp("loop_out")
        C("drain: iteration 64 (V_63)")
        I("s_waitcnt lgkmcnt(0)")
        body(0, qk=False)
        I(f"s_cmp_lg_u32 s{self.S_SLOW}, 0\ns_cbranch_scc1 {lab_slow}\ns_branch {lab_done}")
        I(f"{lhk[4]}:")
        self.hook_body(hooks, 16)
        I(f"s_branch {lentry}")
        for part in range(4):
            I(f"{lhk[part]}:")
            ks = [k for k in sorted(hooks, reverse=True) if (16 - k) % 4 == part and k != 16]
            for n_, k in enumerate(ks):
                nx = None
                if n_ < len(ks) - 1:
                    nx = self.b.uid("L_hk")
                    I(f"s_cmp_lg_u32 s{cnt}, {k}\ns_cbranch_scc1 {nx}")
                self.hook_body(hooks, k)
                I(f"s_branch {lback[part]}")
                if nx: I(f"{nx}:")
            if not ks: I(f"s_branch {lback[part]}")
        I(f"{lab_slow}:")
        for r in range(16): I(f"v_mov_b32 v{OA+r}, 0\nv_mov_b32 v{OB+r}, 0")
        MA_, MB_, T0 = AT+4, AT+5, AT+6
        I(f"v_mov_b32 v{MA_}, 0xff7fffff\nv_mov_b32 v{MB_}, 0xff7fffff")
        I(f"s_mov_b32 s{sK}, {KV}\ns_mov_b32 s{cnt}, 64")
        lp2 = self.b.uid("L_atts")
        I(f"{lp2}:")
        k0, v0 = kreg(0), vreg(0)
        I(f"""
        buffer_load_dwordx4 {ar(k0)}, v{V_L16}, {sr(S_WS)}, s{sK} offen
        buffer_load_dwordx2 a[{k0+4}:{k0+5}], v{vK1}, {sr(S_WS)}, s{sK} offen offset:1024
        buffer_load_dwordx4 {ar(v0)}, v{V_L16}, {sr(S_WS)}, s{sK} offen offset:1280
        buffer_load_dwordx4 {ar(v0+4)}, v{V_L16}, {sr(S_WS)}, s{sK} offen offset:2304
        s_add_u32 s{sK}, s{sK}, {KVT}
        s_waitcnt vmcnt(0)
        """)
        for (S, P, O, Q0, Q1, Mx) in ((SA, PA, OA, QA0, QA1, MA_), (SB, PB, OB, QB0, QB1, MB_)):
            I(f"{M16} {vr(S,16)}, {ar(kreg(0))}, {vr(Q0)}, 0")
            I(f"{M8} {vr(S,16)}, a[{kreg(0)+4}:{kreg(0)+5}], v[{Q1}:{Q1+1}], {vr(S,16)}")
            I(f"v_max3_f32 v{T0}, v{S}, v{S+1}, v{S+2}")
            for r in range(3, 15, 2): I(f"v_max3_f32 v{T0}, v{T0}, v{S+r}, v{S+r+1}")
            I(f"v_max_f32 v{T0}, v{T0}, v{S+15}")
            I(f"v_mov_b32 v{T0+1}, v{T0}\nv_permlane32_swap_b32 v{T0}, v{T0+1}\nv_max_f32 v{T0}, v{T0}, v{T0+1}")
            I(f"v_max_f32 v{T0}, v{T0}, v{Mx}")
            I(f"v_sub_f32 v{T0+1}, v{Mx}, v{T0}\nv_exp_f32 v{T0+1}, v{T0+1}\nv_mov_b32 v{Mx}, v{T0}")
            for r in range(16): I(f"v_mul_f32 v{O+r}, v{O+r}, v{T0+1}")
            for r in range(16): I(f"v_sub_f32 v{S+r}, v{S+r}, v{T0}")
            for q in range(4): exps(S, P, q)
            I(f"{M16} {vr(O,16)}, {ar(vreg(0))}, {vr(P)}, {vr(O,16)}")
            I(f"{M16} {vr(O,16)}, {ar(vreg(0)+4)}, {vr(P+4)}, {vr(O,16)}")
        I(f"s_sub_u32 s{cnt}, s{cnt}, 1\ns_cmp_lg_u32 s{cnt}, 0\ns_cbranch_scc1 {lp2}")
        I(f"{lab_done}:")
        I("s_waitcnt vmcnt(0)\ns_barrier")
        self.stamp("attn")
        self.mod_fetch()
        self.ring_state_after_attn()
        C("normalise and store O in the B-fragment layout of the wo GEMM")
        T = AT
        PK = SA
        I(f"""
        v_lshlrev_b32 v{self.V_L8}, 3, v{V_L}
        s_mul_i32 s{ST}, s{S_WV}, 3072
        s_add_u32 s{ST}, s{ST}, {144*1024}
        v_mul_u32_u24 v{T}, 176, v{V_T}
        v_add_u32 v{T}, s{ST}, v{T}
        v_lshl_add_u32 v{T+1}, v{V_G}, 3, v{T}
        v_bfe_u32 v{T+4}, v{V_L}, 4, 1
        v_mul_u32_u24 v{T+4}, 40, v{T+4}
        v_add_u32 v{T}, v{T}, v{T+4}
        v_lshrrev_b32 v{T+4}, 5, v{V_L}
        v_lshl_add_u32 v{T}, v{T+4}, 3, v{T}
        """)
        for (O, u) in ((OA, 0), (OB, 1)):
            I(f"v_mov_b32 v{T+2}, v{O+8}\nv_mov_b32 v{T+3}, v{O+8}\nv_permlane32_swap_b32 v{T+2}, v{T+3}")
            I(f"v_rcp_f32 v{T+3}, v{T+3}")
            for run in range(3):
                a = O + 4*run
                for r in range(4): I(f"v_mul_f32 v{a+r}, v{a+r}, v{T+3}")
                I(f"v_cvt_pk_bf16_f32 v{a}, v{a}, v{a+1}\nv_cvt_pk_bf16_f32 v{a+1}, v{a+2}, v{a+3}")
                if run == 2: I(f"s_mov_b32 exec_hi, 0")
                I(f"ds_write_b64 v{T}, v[{a}:{a+1}] offset:{80*u + 16*run}")
                if run == 2: I(f"s_mov_b32 exec_hi, -1")
        I("s_waitcnt lgkmcnt(0)")
        for j in range(5):
            I(f"ds_read_b64 v[{PK+2*j}:{PK+2*j+1}], v{T+1} offset:{32*j}")
        I(f"s_mul_i32 s{self.S_T5}, s{S_M}, 5")
        self.tile_base(ST+4, S_TT, 20, OF)
        I("s_waitcnt lgkmcnt(0)")
        self.store_frag(PK, 5, ST+4, self.S_T5)
        self.publish(PH_O); self.vm_drained()
        I("s_barrier")
        self.refill(); self.drip(4)
        self.stamp("opub")

    def dual(self, fn):
        I = self.I
        ls = self.b.uid("L_sl"); lj = self.b.uid("L_sj")
        I(f"s_cmp_eq_u32 s{S_FAST}, 0\ns_cbranch_scc1 {ls}")
        fn("")
        I(f"s_branch {lj}\n{ls}:")
        fn(" sc1")
        I(f"{lj}:")

    def xid_publish(self):
        I = self.I
        lab = self.b.uid("L_xp")
        I(f"""
        s_cmp_lg_u32 s{S_WV}, 0
        s_cbranch_scc1 {lab}
        s_getreg_b32 s{ST}, hwreg(HW_REG_XCC_ID)
        s_and_b32 s{ST}, s{ST}, 15
        v_mov_b32 v252, s{ST}
        v_mov_b32 v253, 0
        v_mov_b32 v254, s{S_TAG}
        v_mov_b32 v255, s{S_TAG+1}
        s_lshl_b32 s{ST}, s{S_RB}, 7
        s_lshl_b32 s{ST+1}, s{S_M}, 4
        s_add_u32 s{ST}, s{ST}, s{ST+1}
        s_add_u32 s{ST}, s{ST}, {XIDG}
        v_mov_b32 v251, s{ST}
        s_mov_b64 exec, 1
        buffer_store_dwordx4 v[252:255], v251, {sr(S_WS)}, 0 offen sc1
        s_mov_b64 exec, -1
        {lab}:
        """)

    XV = 240
    def xid_issue(self):
        I = self.I
        I(f"""
        s_and_b32 s{ST+5}, s{S_RB}, 28
        s_lshl_b32 s{ST+5}, s{ST+5}, 7
        s_add_u32 s{ST+5}, s{ST+5}, {XIDG}
        v_and_b32 v251, 31, v{V_L}
        v_lshlrev_b32 v251, 4, v251
        buffer_load_dwordx4 {vr(self.XV)}, v251, {sr(S_WS)}, s{ST+5} offen sc1
        """)

    def xid_eval(self):
        I = self.I
        X = self.XV
        lp = self.b.uid("L_xc"); ok = self.b.uid("L_xcok")
        I(f"""
        s_mov_b32 s{ST+4}, {TIMEOUT}
        {lp}:
        v_cmp_ne_u32 vcc, s{S_TAG}, v{X+2}
        s_mov_b64 s[{ST+6}:{ST+7}], vcc
        v_cmp_ne_u32 vcc, s{S_TAG+1}, v{X+3}
        s_or_b64 s[{ST+6}:{ST+7}], s[{ST+6}:{ST+7}], vcc
        s_cmp_eq_u64 s[{ST+6}:{ST+7}], 0
        s_cbranch_scc1 {ok}
        """)
        self.xid_issue()
        I("s_waitcnt vmcnt(0)")
        self.spin_tail(ST+4, lp, 14)
        I(f"""
        {ok}:
        s_getreg_b32 s{ST+4}, hwreg(HW_REG_XCC_ID)
        s_and_b32 s{ST+4}, s{ST+4}, 15
        v_cmp_ne_u32 vcc, s{ST+4}, v{X}
        s_cmp_eq_u64 vcc, 0
        s_cselect_b32 s{S_FAST}, {0 if self.force_global else 1}, 0
        """)

    def rl_poll_issue(self):
        I = self.I
        lab = self.b.uid("L_rpi")
        T = 232
        I(f"s_cmp_lg_u32 s{S_WV}, 0\ns_cbranch_scc1 {lab}\nv_lshlrev_b32 v250, 7, v{V_L}")
        for i in range(4):
            I(f"s_mov_b32 s{ST+5}, {RLFLAG + i*8192}\nbuffer_load_dwordx2 v[{T+2*i}:{T+1+2*i}], v250, {sr(S_WS)}, s{ST+5} offen sc1")
        I(f"{lab}:")

    def rl_poll_eval(self):
        I = self.I
        lab = self.b.uid("L_rw"); lp = self.b.uid("L_rwp"); ok = self.b.uid("L_rwok")
        T = 232
        I(f"s_cmp_lg_u32 s{S_WV}, 0\ns_cbranch_scc1 {lab}\ns_mov_b32 s{ST+4}, {TIMEOUT}\n{lp}:\ns_mov_b64 s[{ST+6}:{ST+7}], 0")
        for i in range(4):
            I(f"""
            v_cmp_ne_u32 vcc, s{S_TAG}, v{T+2*i}
            s_or_b64 s[{ST+6}:{ST+7}], s[{ST+6}:{ST+7}], vcc
            v_cmp_ne_u32 vcc, s{S_TAG+1}, v{T+1+2*i}
            s_or_b64 s[{ST+6}:{ST+7}], s[{ST+6}:{ST+7}], vcc
            """)
        I(f"s_cmp_eq_u64 s[{ST+6}:{ST+7}], 0\ns_cbranch_scc1 {ok}")
        self.rl_poll_issue()
        I("s_waitcnt vmcnt(0)")
        self.spin_tail(ST+4, lp, 4)
        I(f"{ok}:\n{lab}:\ns_barrier")

    def publish(self, ph, both=False, vmn=0, line_sreg=None):
        I = self.I
        ln = S_TT if line_sreg is None else line_sreg
        I(f"""
        v_mov_b32 v254, s{S_TAG}
        v_mov_b32 v255, s{S_TAG+1}
        s_lshl_b32 s{ST}, s{ln}, 7
        s_lshl_b32 s{ST+1}, s{S_M}, 3
        s_add_u32 s{ST}, s{ST}, s{ST+1}
        s_add_u32 s{ST}, s{ST}, {CFLAG + ph*CF_PH}
        v_mov_b32 v253, s{ST}
        s_mov_b32 s{ST+1}, {CF_LOC}
        s_waitcnt vmcnt({vmn})
        s_mov_b64 exec, 1
        """)
        def st(f):
            if f == "":
                I(f"buffer_store_dwordx2 v[254:255], v253, {sr(S_WS)}, s{ST+1} offen")
                if both: I(f"buffer_store_dwordx2 v[254:255], v253, {sr(S_WS)}, 0 offen sc1")
            else:
                I(f"buffer_store_dwordx2 v[254:255], v253, {sr(S_WS)}, 0 offen sc1")
        self.dual(st)
        I(f"s_mov_b64 exec, -1")

    def publish_drip(self, ph, both=False, line_sreg=None):
        if self.detail == 2: self.stamp(f"e_sto{ph}")
        self.publish(ph, both=both, vmn=0, line_sreg=line_sreg)
        self.vmq = []
        self.drip(self.pub_after)

    def wait_flags(self, ph, lines, code, work=None):
        I = self.I
        lp = self.b.uid("L_wfp"); ok = self.b.uid("L_wfok")
        I(f"v_mov_b32 v251, s{lines[0]}")
        if len(lines) > 1:
            I(f"v_lshrrev_b32 v250, 3, v{V_L}\nv_and_b32 v250, 3, v250")
            for i, r in enumerate(lines[1:], 1):
                I(f"v_cmp_eq_u32 vcc, {i}, v250\nv_mov_b32 v252, s{r}\nv_cndmask_b32 v251, v251, v252, vcc")
        I(f"""
        v_lshrrev_b32 v250, 4, v251
        s_lshr_b32 s{ST}, s{S_RB}, 2
        v_cmp_eq_u32 vcc, s{ST}, v250
        s_mul_i32 s{ST}, s{S_FAST}, {CF_LOC}
        v_mov_b32 v252, s{ST}
        v_cndmask_b32 v250, 0, v252, vcc
        v_lshl_add_u32 v251, v251, 7, v250
        v_and_b32 v252, 7, v{V_L}
        v_lshl_add_u32 v251, v252, 3, v251
        s_mov_b32 s{ST+1}, {CFLAG + ph*CF_PH}
        s_mov_b32 s{ST}, {TIMEOUT}
        buffer_load_dwordx2 v[254:255], v251, {sr(S_WS)}, s{ST+1} offen sc1
        """)
        n0 = len(self.vmq)
        self.drip(self.shadow_f)
        nsh = len(self.vmq) - n0
        if work: work()
        ok2 = self.b.uid("L_wfo2")
        def check(lo, hi, tgt=None):
            tgt = tgt or ok2
            I(f"""
            v_cmp_ne_u32 vcc, s{S_TAG}, v{lo}
            s_mov_b64 s[{ST+2}:{ST+3}], vcc
            v_cmp_ne_u32 vcc, s{S_TAG+1}, v{hi}
            s_or_b64 s[{ST+2}:{ST+3}], s[{ST+2}:{ST+3}], vcc
            s_cmp_eq_u64 s[{ST+2}:{ST+3}], 0
            s_cbranch_scc1 {tgt}
            """)
        I(f"s_waitcnt vmcnt({nsh})")
        check(254, 255, ok)
        I(f"""
        buffer_load_dwordx2 v[254:255], v251, {sr(S_WS)}, s{ST+1} offen sc1
        {lp}:
        s_sleep 2
        buffer_load_dwordx2 v[252:253], v251, {sr(S_WS)}, s{ST+1} offen sc1
        s_waitcnt vmcnt(1)
        """)
        check(254, 255)
        I(f"""
        s_sleep 2
        buffer_load_dwordx2 v[254:255], v251, {sr(S_WS)}, s{ST+1} offen sc1
        s_waitcnt vmcnt(1)
        """)
        check(252, 253)
        self.spin_tail(ST, lp, code)
        I(f"{ok2}:\n{ok}:")
        self.vmq = self.vmq[len(self.vmq)-nsh:] if nsh else []

    X2, H = 4, 24
    ACC = 44
    MS_GA = 64
    WB = 100
    MS_A2, MS_SB = 160, 180
    GT = 200
    RING = 160
    F_WO, F_W1, F_W2, F_W3, F_W4 = 0, 100, 200, 304, 448
    NUNITS = 45
    S_T5 = 29
    S_SRC = 30
    S_WA, S_W3 , S_W4 = 90, 91, 92
    S_LW = 93
    S_DM, S_DS, S_AO, S_AO2 = 94, 95, 88, 89

    def vm_issue(self, tag): self.vmq.append(tag)
    def vm_wait(self, tag):
        if tag not in self.vmq: return
        i = len(self.vmq) - 1 - self.vmq[::-1].index(tag)
        n = len(self.vmq) - 1 - i
        self.I(f"s_waitcnt vmcnt({min(n, 63)})")
        self.vmq = self.vmq[i+1:]
    def vm_drained(self): self.vmq = []

    def ring_regs(self):
        I = self.I
        I(f"""
        s_lshl_b32 s{self.S_LW}, s{S_WV}, 12
        s_mul_i32 s{self.S_WA}, s{S_M}, {WSA_M}
        s_add_u32 s{self.S_WA}, s{self.S_WA}, {WSA}
        s_add_u32 s{self.S_WA}, s{self.S_WA}, s{self.S_LW}
        s_and_b32 s{self.S_W3}, s{S_RB}, 1
        s_lshl_b32 s{self.S_W3}, s{self.S_W3}, 3
        s_add_u32 s{self.S_W3}, s{self.S_W3}, s{S_M}
        s_mul_i32 s{self.S_W3}, s{self.S_W3}, {W3S_M}
        s_add_u32 s{self.S_W3}, s{self.S_W3}, {W3S}
        s_add_u32 s{self.S_W3}, s{self.S_W3}, s{self.S_LW}
        s_mul_i32 s{self.S_W4}, s{S_M}, {W4S_M}
        s_add_u32 s{self.S_W4}, s{self.S_W4}, {W4S}
        s_add_u32 s{self.S_W4}, s{self.S_W4}, s{self.S_LW}
        """)

    def refill(self, maxn=99):
        n = 0
        while self.units_queued < self.NUNITS and n < maxn:
            u = self.units_queued
            if 16*u + 15 - self.RING > self.consumed: break
            for q in range(4):
                self.pend.append((("u", u, q), (lambda u=u, q=q: self.emit_dma(u, q))))
            self.units_queued += 1; n += 1
        self.resort()

    def resort(self):
        ctx = getattr(self, "loop_ctx", None)
        if ctx is None: return
        F0, NT, S = ctx
        def key(e):
            t = e[0]
            if t[0] == "a": return t[2]
            F = 16*t[1]
            if F + 15 < F0: return -100
            st = max(0, (F - F0)//NT)
            if st >= S: return 1000 + t[1]
            return 4*(st//4) - 2 - 1
        self.pend.sort(key=key)

    def emit_dma(self, u, q, track=True):
        I = self.I
        if q == 0:
            F = 16*u
            if F < 304: base, off = self.S_WA, F*1024
            elif F < 448: base, off = self.S_W3, (F-304)*1024
            else: base, off = self.S_W4, (F-448)*1024
            slot = (F % self.RING)*1024
            I(f"s_add_u32 s{self.S_DM}, s{self.S_LW}, {slot}\ns_mov_b32 m0, s{self.S_DM}\ns_add_u32 s{self.S_DS}, s{base}, {off}")
        I(f"buffer_load_dwordx4 v{V_L16}, {sr(S_WS)}, s{self.S_DS} offen offset:{1024*q} lds")
        if track:
            self.vm_issue(("u", u) if q == 3 else ("ux", u, q))
            if q == 3: self.units_issued = u + 1

    def drip(self, n=1):
        while n > 0 and self.pend:
            tag, fn = self.pend.pop(0)
            fn(); n -= 1

    def flush_until(self, tag):
        if not any(t == tag for t, _ in self.pend): return
        while True:
            t, fn = self.pend.pop(0)
            fn()
            if t == tag: return

    def need_units(self, Fmax):
        u = Fmax // 16
        assert u < self.units_queued, (u, self.units_queued)
        self.flush_until(("u", u, 3))
        self.vm_wait(("u", u))

    def gemm(self, S, NT, F0, aops, abases, burst, rate, cap=99, post_barrier=True, resident=False, chunk=4, accf=None, filler=None, fill_n=0):
        I = self.I
        WB, ACC, T = self.WB, self.ACC, self.GT
        nt = len(abases)
        vb = [T, T+1, T+2]
        stride = 4*NT
        if accf is None: accf = lambda tt, j: ACC + 4*(tt*NT + j)
        filler = list(filler or [])
        def rd1(s, j):
            off = ((F0 + s*NT + j) % self.RING)*1024
            k, o = divmod(off, 61440)
            I(f"ds_read_b128 {vr(WB + stride*(s % 3) + 4*j)}, v{vb[k]} offset:{o}")
        while self.pend and self.pend[0][0][0] == "u" and self.pend[0][0][2] != 0: self.drip(1)
        keep = []
        if resident:
            keep = [e for e in self.pend if e[0][0] == "u"]
            self.pend = []
        self.pend = list(aops) + self.pend
        self.loop_ctx = (F0, NT, S)
        if not resident: self.refill(cap)
        self.drip(burst)
        for j in range(NT): rd1(0, j)
        for j in range(NT): rd1(1, j)
        acc_rate = 0.0
        for s in range(S):
            if not resident and s + 2 < S and (s + 2) % chunk == 0:
                last = min(S, s + 2 + chunk) - 1
                if F0 + last*NT + NT - 1 > self.visible or self.units_queued < self.NUNITS:
                    self.need_units(F0 + last*NT + NT - 1)
                    I("s_barrier")
                    self.visible = max(self.visible, F0 + last*NT + NT - 1)
                    self.consumed = max(self.consumed, F0 + (s-1)*NT + NT - 1)
                    self.refill(cap)
            if self.detail == F0 and s % 4 == 0: self.stamp(f"d_k{s}")
            nout = NT if s + 1 < S else 0
            I(f"s_waitcnt lgkmcnt({min(nout, 15)})")
            for tt in range(nt):
                self.flush_until(("a", tt, s))
                self.vm_wait(("a", tt, s))
            acc_rate += rate
            nm = nt*NT
            slots = []
            while acc_rate >= 1.0:
                slots.append(1); acc_rate -= 1.0
            pos = {(k*nm)//max(1, len(slots)) : 0 for k in range(len(slots))}
            for k in range(len(slots)): pos[(k*nm)//len(slots)] += 1
            i = 0
            for tt in range(nt):
                for j in range(NT):
                    c = '0' if s == 0 else vr(accf(tt, j))
                    I(f"v_mfma_f32_16x16x32_bf16 {vr(accf(tt, j))}, {vr(WB+stride*(s%3)+4*j)}, {ar(abases[tt]+4*s)}, {c}")
                    if i < NT and s + 2 < S: rd1(s+2, i)
                    if pos.get(i): self.drip(pos[i])
                    for _ in range(fill_n):
                        if filler: I(filler.pop(0))
                    i += 1
        for x in filler: I(x)
        self.pending_consumed = {299: 303, 443: 447}.get(F0 + S*NT - 1, F0 + S*NT - 1)
        self.loop_ctx = None
        self.pend = self.pend + keep
        if post_barrier:
            I("s_barrier")
            self.after_barrier()
            self.refill()
            self.drip({0: self.post_drip, 100: self.post_drip, 200: self.post_drip2, 384: self.post_drip3, 304: self.post_drip3}.get(F0, 0))

    def after_barrier(self):
        self.consumed = max(self.consumed, getattr(self, "pending_consumed", -1))

    def lds_bases(self):
        T = self.GT
        self.I(f"v_mov_b32 v{T}, v{V_L16}\nv_add_u32 v{T+1}, 61440, v{V_L16}\nv_add_u32 v{T+2}, {2*61440}, v{V_L16}")

    def a_op(self, tt, s, abase, vaddr, base_sreg, base_add, soff_reg, split=(), vaddr8=None):
        def fn():
            if s % 4 == 0:
                if base_sreg is None: self.I(f"s_mov_b32 s{soff_reg}, {base_add + 1024*s}")
                else: self.I(f"s_add_u32 s{soff_reg}, s{base_sreg}, {base_add + 1024*s}")
            r = abase + 4*s
            if s in split:
                self.I(f"buffer_load_dwordx2 a[{r}:{r+1}], v{vaddr8}, {sr(S_WS)}, s{soff_reg} offen offset:{1024*(s % 4)} sc1")
                self.vm_issue(("ah", tt, s))
                self.I(f"buffer_load_dwordx2 a[{r+2}:{r+3}], v{vaddr8}, {sr(S_WS)}, s{soff_reg} offen offset:{1024*(s % 4)+512} sc1")
            else:
                self.I(f"buffer_load_dwordx4 {ar(r)}, v{vaddr}, {sr(S_WS)}, s{soff_reg} offen offset:{1024*(s % 4)} sc1")
            self.vm_issue(("a", tt, s))
        return (("a", tt, s), fn)

    RAW_GA, RAW_SB, RAW_CB, RAW_GB = 140, 150, 214, 240
    def mod_fetch(self):
        I = self.I
        I(f"v_lshlrev_b32 v244, 4, v{V_G}\nv_add_u32 v244, {self.L_MODW}, v244")
        for (dst, off) in ((self.RAW_GA, 0), (self.RAW_SB, 320), (self.RAW_CB, 640)):
            for j in range(5):
                I(f"ds_read_b64 v[{dst+2*j}:{dst+2*j+1}], v244 offset:{off + 64*j}")

    def gb_fetch(self):
        I = self.I
        I(f"s_mul_i32 s{ST+5}, s{S_M}, 320\nv_lshlrev_b32 v244, 4, v{V_G}\ns_add_u32 s{ST+5}, s{ST+5}, {MODG + 5*2560}")
        for j in range(5):
            I(f"buffer_load_dwordx2 a[{self.RAW_GB+2*j}:{self.RAW_GB+2*j+1}], v244, {sr(S_WS)}, s{ST+5} offen offset:{64*j} sc1")
            self.vm_issue(("gb",))

    def mod_unpack(self):
        I = self.I
        for src, dst in ((self.RAW_GA, self.MS_GA), (self.RAW_SB, self.MS_SB), (self.RAW_CB, self.MS_A2)):
            for i in range(10):
                I(f"v_lshlrev_b32 v{dst+2*i}, 16, v{src+i}\nv_and_b32 v{dst+2*i+1}, 0xffff0000, v{src+i}")
        self.one_plus_bf16(self.MS_A2, 20)

    def one_plus_bf16(self, r, n):
        I = self.I
        for i in range(0, n, 2):
            I(f"""
            v_add_f32 v{r+i}, 1.0, v{r+i}
            v_add_f32 v{r+i+1}, 1.0, v{r+i+1}
            v_cvt_pk_bf16_f32 v{r+i}, v{r+i}, v{r+i+1}
            v_and_b32 v{r+i+1}, 0xffff0000, v{r+i}
            v_lshlrev_b32 v{r+i}, 16, v{r+i}
            """)

    def ln_stats(self, src, which, mu, rs, code, fine=0):
        I = self.I
        T = self.GT + 4
        I(f"v_pk_add_f32 v[{T}:{T+1}], v[{src}:{src+1}], v[{src+2}:{src+3}]\nv_pk_mul_f32 v[{T+2}:{T+3}], v[{src}:{src+1}], v[{src}:{src+1}]")
        I(f"v_pk_fma_f32 v[{T+2}:{T+3}], v[{src+2}:{src+3}], v[{src+2}:{src+3}], v[{T+2}:{T+3}]")
        for i in range(4, 20, 2):
            I(f"v_pk_add_f32 v[{T}:{T+1}], v[{T}:{T+1}], v[{src+i}:{src+i+1}]\nv_pk_fma_f32 v[{T+2}:{T+3}], v[{src+i}:{src+i+1}], v[{src+i}:{src+i+1}], v[{T+2}:{T+3}]")
            if i in (8, 14): self.drip(fine)
        I(f"v_add_f32 v{T}, v{T}, v{T+1}\nv_add_f32 v{T+1}, v{T+2}, v{T+3}")
        self.reduce_g([T, T+1], T+4)
        I(f"""
        v_mov_b32 v{T+2}, s{S_TAG}
        v_mov_b32 v{T+3}, s{S_TAG+1}
        s_lshl_b32 s{ST+4}, s{S_RB}, 13
        s_lshl_b32 s{ST+5}, s{S_WV}, 8
        s_add_u32 s{ST+4}, s{ST+4}, s{ST+5}
        s_add_u32 s{ST+4}, s{ST+4}, {STAT + which*STAT_SZ}
        s_lshl_b32 s{ST+5}, s{S_M}, 10
        s_add_u32 s{ST+5}, s{ST+5}, s{ST+4}
        v_lshlrev_b32 v{T+4}, 4, v{V_T}
        s_mov_b64 exec, 0xffff
        """)
        self.dual(lambda f: I(f"buffer_store_dwordx4 {vr(T)}, v{T+4}, {sr(S_WS)}, s{ST+5} offen{f}"))
        I("s_mov_b64 exec, -1")
        if self.detail == 2: self.stamp(f"e_st{which}")
        I(f"""
        s_mov_b64 exec, -1
        v_lshl_add_u32 v{T+5}, v{V_G}, 11, v{T+4}
        s_mov_b32 s{ST}, {TIMEOUT}
        """)
        lp = self.b.uid("L_ls"); ok = self.b.uid("L_lsok"); lchk = self.b.uid("L_lsc")
        I(f"""
        buffer_load_dwordx4 {vr(T+8)}, v{T+5}, {sr(S_WS)}, s{ST+4} offen sc1
        buffer_load_dwordx4 {vr(T+12)}, v{T+5}, {sr(S_WS)}, s{ST+4} offen offset:1024 sc1
        """)
        n0 = len(self.vmq)
        self.drip(self.shadow_s)
        nsh = len(self.vmq) - n0
        I(f"""
        s_waitcnt vmcnt({nsh})
        s_branch {lchk}
        {lp}:
        buffer_load_dwordx4 {vr(T+8)}, v{T+5}, {sr(S_WS)}, s{ST+4} offen sc1
        buffer_load_dwordx4 {vr(T+12)}, v{T+5}, {sr(S_WS)}, s{ST+4} offen offset:1024 sc1
        s_waitcnt vmcnt(0)
        {lchk}:
        v_cmp_ne_u32 vcc, s{S_TAG}, v{T+10}
        s_mov_b64 s[{ST+2}:{ST+3}], vcc
        v_cmp_ne_u32 vcc, s{S_TAG+1}, v{T+11}
        s_or_b64 s[{ST+2}:{ST+3}], s[{ST+2}:{ST+3}], vcc
        v_cmp_ne_u32 vcc, s{S_TAG}, v{T+14}
        s_or_b64 s[{ST+2}:{ST+3}], s[{ST+2}:{ST+3}], vcc
        v_cmp_ne_u32 vcc, s{S_TAG+1}, v{T+15}
        s_or_b64 s[{ST+2}:{ST+3}], s[{ST+2}:{ST+3}], vcc
        s_cmp_eq_u64 s[{ST+2}:{ST+3}], 0
        s_cbranch_scc1 {ok}
        """)
        self.spin_tail(ST, lp, code)
        self.vmq = self.vmq[len(self.vmq)-nsh:] if nsh else []
        I(f"{ok}:")
        if self.detail == 2: self.stamp(f"e_got{which}")
        I(f"""
        v_add_f32 v{T}, v{T+8}, v{T+12}
        v_add_f32 v{T+1}, v{T+9}, v{T+13}
        """)
        self.reduce_g([T, T+1], T+4)
        I(f"""
        v_mul_f32 v{mu}, {1.0/640!r}, v{T}
        v_mul_f32 v{T+1}, {1.0/640!r}, v{T+1}
        v_fma_f32 v{T+1}, -v{mu}, v{mu}, v{T+1}
        v_max_f32 v{T+1}, 0, v{T+1}
        v_add_f32 v{T+1}, 0x3727c5ac, v{T+1}
        v_rsq_f32 v{rs}, v{T+1}
        s_nop 0
        v_mul_f32 v{mu}, -v{mu}, v{rs}
        v_mov_b32 v{rs+1}, v{rs}
        v_mov_b32 v{mu+1}, v{mu}
        """)

    V_L8 = 203
    SPLIT20 = (2, 7, 12, 17)
    SPLIT54 = (3, 10, 17, 24, 31, 38)
    def pack_tiles(self, src, ntile, dst=None):
        if dst is None: dst = src
        for j in range(ntile):
            a = src + 4*j; d = dst + 2*j
            self.I(f"v_cvt_pk_bf16_f32 v{d}, v{a}, v{a+1}\nv_cvt_pk_bf16_f32 v{d+1}, v{a+2}, v{a+3}")

    def store_frag(self, pk, ntile, base_sreg, tile0_sreg, skip_last_sreg=None, force_sc1=False, count=True):
        I = self.I
        lodd = self.b.uid("L_so"); lj = self.b.uid("L_sj")
        I(f"""
        s_lshr_b32 s{ST+5}, s{tile0_sreg}, 1
        s_lshl_b32 s{ST+5}, s{ST+5}, 10
        s_add_u32 s{ST+5}, s{ST+5}, s{base_sreg}
        s_bitcmp1_b32 s{tile0_sreg}, 0
        s_cbranch_scc1 {lodd}
        """)
        def variant(odd, f):
            if not odd:
                for p in range(ntile//2):
                    I(f"buffer_store_dwordx4 {vr(pk+4*p)}, v{V_L16}, {sr(S_WS)}, s{ST+5} offen offset:{1024*p}{f}")
                if ntile % 2:
                    lab = None
                    if skip_last_sreg is not None:
                        lab = self.b.uid("L_sk")
                        I(f"s_cmp_lg_u32 s{skip_last_sreg}, 0\ns_cbranch_scc1 {lab}")
                    j = ntile-1
                    I(f"buffer_store_dwordx2 v[{pk+2*j}:{pk+2*j+1}], v{self.V_L8}, {sr(S_WS)}, s{ST+5} offen offset:{1024*(ntile//2)}{f}")
                    if lab: I(f"{lab}:")
            else:
                I(f"buffer_store_dwordx2 v[{pk}:{pk+1}], v{self.V_L8}, {sr(S_WS)}, s{ST+5} offen offset:512{f}")
                for p in range(ntile//2):
                    I(f"buffer_store_dwordx4 {vr(pk+2+4*p)}, v{V_L16}, {sr(S_WS)}, s{ST+5} offen offset:{1024*(p+1)}{f}")
        if force_sc1: variant(False, " sc1")
        else: self.dual(lambda f: variant(False, f))
        I(f"s_branch {lj}\n{lodd}:")
        if force_sc1: variant(True, " sc1")
        else: self.dual(lambda f: variant(True, f))
        I(f"{lj}:")
        if count:
            for j in range(ntile//2): self.vm_issue(("st",))

    def tile_base(self, dst_sreg, tt_sreg, S, base_off):
        self.I(f"s_mul_i32 s{dst_sreg}, s{tt_sreg}, {S*1024}\ns_add_u32 s{dst_sreg}, s{dst_sreg}, {base_off}")

    def gelu(self, r, n, drip=0):
        I = self.I
        T = self.GT + 4
        c1 = -2.0 * 0.7978845608028654 * 1.4426950408889634
        c2 = c1 * 0.044715
        C1, ONE = T+8, T+10
        I(f"""
        s_mov_b32 s{ST+8}, {hex(f2u(c2))}
        s_mov_b32 s{ST+9}, {hex(f2u(c2))}
        v_mov_b32 v{C1}, {hex(f2u(c1))}
        v_mov_b32 v{C1+1}, {hex(f2u(c1))}
        v_mov_b32 v{ONE}, 1.0
        v_mov_b32 v{ONE+1}, 1.0
        """)
        P = lambda x: f"v[{x}:{x+1}]"
        for i in range(0, n, 4):
            x0, x1, t0, t1 = r+i, r+i+2, T, T+2
            I(f"v_pk_mul_f32 {P(t0)}, {P(x0)}, {P(x0)}\nv_pk_mul_f32 {P(t1)}, {P(x1)}, {P(x1)}")
            I(f"v_pk_fma_f32 {P(t0)}, {P(t0)}, s[{ST+8}:{ST+9}], {P(C1)}\nv_pk_fma_f32 {P(t1)}, {P(t1)}, s[{ST+8}:{ST+9}], {P(C1)}")
            I(f"v_pk_mul_f32 {P(t0)}, {P(t0)}, {P(x0)}\nv_pk_mul_f32 {P(t1)}, {P(t1)}, {P(x1)}")
            for q in range(4): I(f"v_exp_f32 v{T+q}, v{T+q}")
            I(f"v_pk_add_f32 {P(t0)}, {P(t0)}, {P(ONE)}\nv_pk_add_f32 {P(t1)}, {P(t1)}, {P(ONE)}")
            for q in range(4): I(f"v_rcp_f32 v{T+q}, v{T+q}")
            I(f"v_pk_mul_f32 {P(x0)}, {P(x0)}, {P(t0)}\nv_pk_mul_f32 {P(x1)}, {P(x1)}, {P(t1)}")
            self.drip(drip)

    def collect(self, fn):
        saved = self.b.items
        self.b.items = []
        fn()
        out = [it.text for it in self.b.items if isinstance(it, Ins)]
        self.b.items = saved
        return out

    def phase_entry(self, ph_wait, lines, code, F0, NT, between=None, upto=None):
        last = F0 + 4*NT - 1 if upto is None else upto
        self.need_units(last)
        self.I("s_barrier")
        self.visible = max(getattr(self, "visible", -1), last)
        self.after_barrier()
        if self.detail == F0: self.stamp("d_bar")
        self.wait_flags(ph_wait, lines, code, work=between)
        if self.detail == F0: self.stamp("d_flags")
        if self.detail == 2: self.stamp(f"e_fl{ph_wait}")

    def small_gemm(self, F0, act, ph_wait, rbs, code, shift=False, between=None, pf=()):
        I, C = self.I, self.C
        def shift_addr():
            T = self.GT + 8
            I(f"s_lshl_b32 s{ST+4}, s{S_TT}, 4\ns_lshr_b32 s{ST+5}, s{S_RB}, 2")
            for q, dl in enumerate((-1, 1, -2, 2)):
                side = 1 if dl < 0 else 0
                I(f"""
                v_add_u32 v{T+4}, s{ST+4}, v{V_T}
                v_add_u32 v{T+4}, {dl & 0xffffffff}, v{T+4}          ; token'
                v_lshrrev_b32 v{T+5}, 4, v{T+4}
                v_mul_u32_u24 v{T+5}, 20480, v{T+5}
                v_add_u32 v{T+5}, {act}, v{T+5}
                v_lshrrev_b32 v{T+6}, 8, v{T+4}
                v_lshlrev_b32 v{T+7}, 1, v{T+6}
                v_add_u32 v{T+7}, {side}, v{T+7}
                v_mul_u32_u24 v{T+7}, 20480, v{T+7}
                v_add_u32 v{T+7}, {HG}, v{T+7}
                v_cmp_eq_u32 vcc, s{ST+5}, v{T+6}
                v_cndmask_b32 v{T+5}, v{T+7}, v{T+5}, vcc
                v_and_b32 v{T+6}, 15, v{T+4}
                v_lshl_add_u32 v{T+6}, v{V_G}, 4, v{T+6}              ; g*16 + t'
                v_lshl_add_u32 v{T+7}, v{T+6}, 3, v{T+5}
                v_lshl_add_u32 v{T+5}, v{T+6}, 4, v{T+5}
                v_cmp_gt_u32 vcc, 0x800, v{T+4}
                v_mov_b32 v{T+6}, 0x80000000
                v_cndmask_b32 v{T+q}, v{T+6}, v{T+5}, vcc
                v_cndmask_b32 v{self.GT+20+q}, v{T+6}, v{T+7}, vcc
                """)
        if shift: between = shift_addr
        self.phase_entry(ph_wait, rbs, code, F0, 5, between, upto=(F0+99 if self.resident else None))
        if not shift:
            I(f"s_mul_i32 s{self.S_SRC}, s{S_TT}, {20*1024}\ns_add_u32 s{self.S_SRC}, s{self.S_SRC}, {act}")
            aops = [self.a_op(0, s, 16, V_L16, self.S_SRC, 0, self.S_AO, self.SPLIT20, self.V_L8) for s in range(20)]
        else:
            T = self.GT + 8
            aops = [self.a_op(0, s, 16, T + s // 5, None, 0, self.S_AO, self.SPLIT20, self.GT + 20 + s // 5) for s in range(20)]
        if self.use_pf: aops += [(("a", 9, 19), (lambda p=p: self.pf_op(*p))) for p in pf]
        if (self.h4t_where == 1 and F0 == self.F_W1) or (self.h4t_where == 2 and F0 == self.F_W2) or (self.h4t_where == 4 and F0 == self.F_WO):
            def h4t():
                self.act_touch(H4F, 54*1024); self.vm_issue(("pf",))
            aops.append((("a", 9, 19), h4t))
        self.gemm(20, 5, F0, aops, [16], burst=self.burst, rate=self.rate_small, cap=self.cap_small, resident=self.resident)

    def phase_wo(self):
        I, C = self.I, self.C
        X2, H, ACC, T = self.X2, self.H, self.ACC, self.GT
        self.lds_bases()
        def pre():
            self.mod_unpack()
            for j in range(5):
                for q in range(2):
                    I(f"v_accvgpr_read_b32 v{T+4}, a{2*j+q}")
                    I(f"v_lshlrev_b32 v{X2+4*j+2*q}, 16, v{T+4}\nv_and_b32 v{X2+4*j+2*q+1}, 0xffff0000, v{T+4}")
        self.small_gemm(self.F_WO, OF, PH_O, [S_TT], 6, pf=[("3", 0)], between=pre)
        self.stamp("wo_mm")
        P = lambda x: f"v[{x}:{x+1}]"
        f = self.fine
        for i in range(0, 20, 2): I(f"v_pk_fma_f32 {P(X2+i)}, {P(self.MS_GA+i)}, {P(ACC+i)}, {P(X2+i)}")
        mu, rs = T+30, T+32
        self.ln_stats(X2, 0, mu, rs, 7, fine=f)
        for i in range(0, 20, 2):
            I(f"v_pk_fma_f32 {P(H+i)}, {P(X2+i)}, {P(rs)}, {P(mu)}")
            I(f"v_pk_fma_f32 {P(H+i)}, {P(H+i)}, {P(self.MS_A2+i)}, {P(self.MS_SB+i)}")
            if i in (0, 8): self.drip(f)
        self.ln_stats(H, 1, mu, rs, 8, fine=f)
        self.drip(f)
        for i in range(0, 20, 2): I(f"v_pk_fma_f32 {P(ACC+i)}, {P(H+i)}, {P(rs)}, {P(mu)}")
        self.pack_tiles(ACC, 5)
        self.tile_base(ST+4, S_TT, 20, L2F)
        self.store_frag(ACC, 5, ST+4, self.S_T5)
        self.publish_drip(PH_L2)
        self.stamp("l2pub")

    def phase_w1(self):
        I = self.I
        self.small_gemm(self.F_W1, L2F, PH_L2, [S_TT], 9, pf=[("3", 1)])
        self.stamp("w1_mm")
        self.gb_fetch()
        self.gelu(self.ACC, 20, drip=self.gd1)
        self.pack_tiles(self.ACC, 5)
        self.tile_base(ST+4, S_TT, 20, GF)
        self.store_frag(self.ACC, 5, ST+4, self.S_T5)
        lab = self.b.uid("L_hal")
        I(f"""
        s_and_b32 s{ST+6}, s{S_TT}, 15
        s_add_u32 s{ST+6}, s{ST+6}, 1
        s_and_b32 s{ST+7}, s{ST+6}, 14
        s_cmp_eq_u32 s{ST+7}, 0
        s_cbranch_scc0 {lab}
        s_lshr_b32 s{ST+7}, s{S_TT}, 4
        s_lshl_b32 s{ST+7}, s{ST+7}, 1
        s_lshr_b32 s{ST+6}, s{ST+6}, 4
        s_add_u32 s{ST+7}, s{ST+7}, s{ST+6}
        s_mul_i32 s{ST+4}, s{ST+7}, 20480
        s_add_u32 s{ST+4}, s{ST+4}, {HG}
        """)
        self.store_frag(self.ACC, 5, ST+4, self.S_T5, force_sc1=True, count=False)
        I(f"{lab}:")
        self.publish_drip(PH_G, both=True)
        self.stamp("gpub")

    def phase_w2(self):
        I = self.I
        X2, H, ACC, T = self.X2, self.H, self.ACC, self.GT
        I(f"""
        s_sub_u32 s{ST+10}, s{S_TT}, 1
        s_max_i32 s{ST+10}, s{ST+10}, 0
        s_add_u32 s{ST+11}, s{S_TT}, 1
        s_min_u32 s{ST+11}, s{ST+11}, 127
        """)
        self.small_gemm(self.F_W2, GF, PH_G, [S_TT, ST+10, ST+11], 10, shift=True, pf=[("4", 0)])
        self.stamp("w2_mm")
        P = lambda x: f"v[{x}:{x+1}]"
        for i in range(0, 20, 2): I(f"v_pk_add_f32 {P(H+i)}, {P(H+i)}, {P(ACC+i)}")
        mu, rs = T+30, T+32
        self.ln_stats(H, 2, mu, rs, 11, fine=self.fine)
        self.drip(self.fine)
        for i in range(0, 20, 2): I(f"v_pk_fma_f32 {P(ACC+i)}, {P(H+i)}, {P(rs)}, {P(mu)}")
        self.pack_tiles(ACC, 5)
        self.tile_base(ST+4, S_TT, 20, L3F)
        self.store_frag(ACC, 5, ST+4, self.S_T5)
        self.publish_drip(PH_L3)
        self.stamp("l3pub")

    def phase_w3(self):
        I, C = self.I, self.C
        ACC = self.ACC
        m16, t0, skip, rbA, rbB, ttb = ST+10, ST+11, ST+12, ST+13, ST+14, ST+15
        I(f"""
        s_and_b32 s{m16}, s{S_RB}, 1
        s_lshl_b32 s{m16}, s{m16}, 3
        s_add_u32 s{m16}, s{m16}, s{S_M}
        s_mul_i32 s{t0}, s{m16}, 7
        s_sub_u32 s{ST}, s{m16}, 12
        s_max_i32 s{ST}, s{ST}, 0
        s_sub_u32 s{t0}, s{t0}, s{ST}
        s_cmp_ge_u32 s{m16}, 12
        s_cselect_b32 s{skip}, 1, 0
        s_and_b32 s{rbA}, s{S_RB}, 30
        s_add_u32 s{rbB}, s{rbA}, 1
        s_lshl_b32 s{ttb}, s{rbA}, 2
        s_lshl_b32 s{ST}, s{S_WV}, 1
        s_add_u32 s{ttb}, s{ttb}, s{ST}
        """)
        I(f"s_add_u32 s{rbA}, s{ttb}, 1")
        self.phase_entry(PH_L3, [ttb, rbA], 12, self.F_W3, 4 if self.w3split else 7)
        I(f"s_mul_i32 s{self.S_SRC}, s{ttb}, {20*1024}\ns_add_u32 s{self.S_SRC}, s{self.S_SRC}, {L3F}")
        aops = []
        for s in range(20):
            aops.append(self.a_op(0, s, 16, V_L16, self.S_SRC, 0, self.S_AO, self.SPLIT20, self.V_L8))
            aops.append(self.a_op(1, s, 96, V_L16, self.S_SRC, 20*1024, self.S_AO2, self.SPLIT20, self.V_L8))
        if self.use_pf: aops.insert(16, (("a", 9, 8), (lambda: self.pf_op("4", 1))))
        def h4t():
            self.act_touch(H4F, 54*1024); self.vm_issue(("pf",))
        if self.h4t_where == 3: aops.append((("a", 9, 19), h4t))
        if not self.w3split:
            self.gemm(20, 7, self.F_W3, aops, [16, 96], burst=2*self.burst, rate=self.rate_w3)
            self.stamp("w3_mm")
            self.gelu(ACC, 56, drip=self.gd3)
        else:
            self.gemm(20, 4, self.F_W3, aops, [16, 96], burst=2*self.burst, rate=self.rate_w3a, accf=lambda tt, j: ACC + 28*tt + 4*j, post_barrier=False)
            F2 = self.F_W3 + 80
            self.need_units(F2 + 4*3 - 1)
            I("s_barrier")
            self.visible = max(self.visible, F2 + 11)
            self.after_barrier()
            fill = self.collect(lambda: (self.gelu(ACC, 16), self.gelu(ACC+28, 16)))
            self.gemm(20, 3, F2, [], [16, 96], burst=0, rate=self.rate_w3b, accf=lambda tt, j: ACC + 28*tt + 16 + 4*j, filler=fill, fill_n=self.fill_n)
            self.stamp("w3_mm")
            self.gelu(ACC+16, 12, drip=self.gd3)
            self.gelu(ACC+44, 12, drip=self.gd3)
        self.pack_tiles(ACC, 7)
        self.pack_tiles(ACC+28, 7)
        self.tile_base(ST+4, ttb, 54, H4F)
        self.store_frag(ACC, 7, ST+4, t0, skip_last_sreg=skip, force_sc1=(self.h4mode == 2))
        I(f"s_add_u32 s{ST+4}, s{ST+4}, {54*1024}")
        self.store_frag(ACC+28, 7, ST+4, t0, skip_last_sreg=skip, force_sc1=(self.h4mode == 2))
        self.publish_drip(PH_H4)
        self.stamp("h4pub")

    def phase_w4(self):
        I, C = self.I, self.C
        X2, H, ACC, T = self.X2, self.H, self.ACC, self.GT
        rbA, rbB = ST+13, ST+14
        I(f"""
        s_and_b32 s{rbA}, s{S_TT}, 7
        s_lshr_b32 s{rbA}, s{rbA}, 1
        s_and_b32 s{rbB}, s{S_RB}, 30
        s_lshl_b32 s{rbB}, s{rbB}, 2
        s_add_u32 s{rbA}, s{rbA}, s{rbB}
        s_add_u32 s{rbB}, s{rbA}, 4
        """)
        self.phase_entry(PH_H4, [rbA, rbB], 13, self.F_W4, 5, upto=(607 if self.resident else None))
        I(f"s_mul_i32 s{self.S_SRC}, s{S_TT}, {54*1024}\ns_add_u32 s{self.S_SRC}, s{self.S_SRC}, {H4F}")
        if self.wb_early:
            lab = self.b.uid("L_wb")
            I(f"""
            s_lshr_b32 s{ST}, s{S_W}, 3
            s_lshl_b32 s{ST}, s{ST}, 2
            s_add_u32 s{ST}, s{ST}, s{S_WV}
            s_cmp_lg_u32 s{ST}, {self.wb_who}
            s_cbranch_scc1 {lab}
            buffer_wbl2 sc1
            {lab}:
            """)
        aops = [self.a_op(0, s, 16, V_L16, self.S_SRC, 0, self.S_AO, self.SPLIT54, self.V_L8) for s in range(54)]
        self.gemm(54, 5, self.F_W4, aops, [16], burst=self.burst4, rate=self.rate_w4, post_barrier=False, chunk=self.chunk4)
        self.stamp("w4_mm")
        MS = self.WB
        for j in range(5):
            I(f"""
            v_accvgpr_read_b32 v{T+4}, a{self.RAW_GB+2*j}
            v_accvgpr_read_b32 v{T+5}, a{self.RAW_GB+2*j+1}
            v_lshlrev_b32 v{MS+4*j}, 16, v{T+4}
            v_and_b32 v{MS+4*j+1}, 0xffff0000, v{T+4}
            v_lshlrev_b32 v{MS+4*j+2}, 16, v{T+5}
            v_and_b32 v{MS+4*j+3}, 0xffff0000, v{T+5}
            """)
        for i in range(0, 20, 2):
            I(f"v_pk_add_f32 v[{ACC+i}:{ACC+i+1}], v[{ACC+i}:{ACC+i+1}], v[{H+i}:{H+i+1}]")
            I(f"v_pk_fma_f32 v[{ACC+i}:{ACC+i+1}], v[{ACC+i}:{ACC+i+1}], v[{MS+i}:{MS+i+1}], v[{X2+i}:{X2+i+1}]")
        self.srd(S_A, P_OUT, 2048*1280)
        I(f"""
        s_lshl_b32 s{ST}, s{S_TT}, 4
        v_add_u32 v{T+4}, s{ST}, v{V_T}
        v_mul_u32_u24 v{T+4}, 1280, v{T+4}
        v_lshl_add_u32 v{T+4}, v{V_G}, 3, v{T+4}
        s_mul_i32 s{ST}, s{S_M}, 160
        """)
        self.pack_tiles(ACC, 5)
        for j in range(5):
            a = ACC + 2*j
            I(f"buffer_store_dwordx2 v[{a}:{a+1}], v{T+4}, {sr(S_A)}, s{ST} offen offset:{32*j}{' sc1' if self.out_sc1 else ''}")
        self.stamp("out")

    def l2_prefetch(self, which, part):
        I = self.I
        T = 246
        rbl = ST + 4
        I(f"v_lshlrev_b32 v{T}, 7, v{V_L}\ns_and_b32 s{rbl}, s{S_RB}, 3")
        if which == "A":
            base, start, chunk, shl = self.S_WA, 96*1024, 6656, 0
        elif which == "3":
            base, start, chunk, shl = self.S_W3, 0, 9216, 1
        else:
            base, start, chunk, shl = self.S_W4, 0, 8704, 0
        I(f"""
        s_lshr_b32 s{ST+5}, s{rbl}, {shl}
        s_lshl_b32 s{ST+5}, s{ST+5}, 2
        s_add_u32 s{ST+5}, s{ST+5}, s{S_WV}
        s_lshl_b32 s{ST+5}, s{ST+5}, 1
        s_add_u32 s{ST+5}, s{ST+5}, {part}
        s_mul_i32 s{ST+5}, s{ST+5}, {chunk}
        s_add_u32 s{ST+5}, s{ST+5}, s{base}
        s_sub_u32 s{ST+5}, s{ST+5}, s{self.S_LW}
        s_add_u32 s{ST+5}, s{ST+5}, {start}
        """)
        if chunk < 8192:
            I(f"v_cmp_gt_u32 vcc, {chunk//128}, v{V_L}\ns_and_saveexec_b64 s[{ST+6}:{ST+7}], vcc")
        I(f"buffer_load_dword a254, v{T}, {sr(S_WS)}, s{ST+5} offen")
        if chunk < 8192:
            I(f"s_mov_b64 exec, s[{ST+6}:{ST+7}]")
        if chunk > 8192:
            I(f"s_add_u32 s{ST+5}, s{ST+5}, 8192\nv_cmp_gt_u32 vcc, {(chunk-8192)//128}, v{V_L}\ns_and_saveexec_b64 s[{ST+6}:{ST+7}], vcc")
            I(f"buffer_load_dword a253, v{T}, {sr(S_WS)}, s{ST+5} offen")
            I(f"s_mov_b64 exec, s[{ST+6}:{ST+7}]")
        return 2 if chunk > 8192 else 1

    def tlb_touch(self):
        I = self.I
        n = (WS_END + (1 << 20) - 1) >> 20
        I(f"""
        v_lshlrev_b32 v245, 20, v{V_L}
        v_cmp_gt_u32 vcc, {n}, v{V_L}
        s_and_saveexec_b64 s[{ST+6}:{ST+7}], vcc
        buffer_load_dword a255, v245, {sr(S_WS)}, 0 offen
        s_mov_b64 exec, s[{ST+6}:{ST+7}]
        """)

    def mall_touch(self, base, nbytes):
        I = self.I
        per_wave = -(-nbytes // 1024 // 128) * 128
        lines = per_wave // 128
        assert lines <= 128
        I(f"""
        v_lshlrev_b32 v245, 7, v{V_L}
        s_lshl_b32 s{ST+5}, s{S_W}, 2
        s_add_u32 s{ST+5}, s{ST+5}, s{S_WV}
        s_mul_i32 s{ST+5}, s{ST+5}, {per_wave}
        s_add_u32 s{ST+5}, s{ST+5}, {base}
        """)
        n0 = min(lines, 64)
        if n0 < 64: I(f"v_cmp_gt_u32 vcc, {n0}, v{V_L}\ns_and_saveexec_b64 s[{ST+6}:{ST+7}], vcc")
        I(f"buffer_load_dword a255, v245, {sr(S_WS)}, s{ST+5} offen")
        if n0 < 64: I(f"s_mov_b64 exec, s[{ST+6}:{ST+7}]")

    def act_touch(self, base, per_tile):
        I = self.I
        per_wave = 16*per_tile // 128
        lines = per_wave // 128
        I(f"""
        v_lshlrev_b32 v245, 7, v{V_L}
        s_lshr_b32 s{ST+5}, s{S_RB}, 2
        s_mul_i32 s{ST+5}, s{ST+5}, {16*per_tile}
        s_and_b32 s{ST+6}, s{S_RB}, 3
        s_lshl_b32 s{ST+6}, s{ST+6}, 3
        s_add_u32 s{ST+6}, s{ST+6}, s{S_M}
        s_lshl_b32 s{ST+6}, s{ST+6}, 2
        s_add_u32 s{ST+6}, s{ST+6}, s{S_WV}
        s_mul_i32 s{ST+6}, s{ST+6}, {per_wave}
        s_add_u32 s{ST+5}, s{ST+5}, s{ST+6}
        s_add_u32 s{ST+5}, s{ST+5}, {base}
        """)
        n0 = min(lines, 64)
        if n0 < 64: I(f"v_cmp_gt_u32 vcc, {n0}, v{V_L}\ns_and_saveexec_b64 s[{ST+6}:{ST+7}], vcc")
        I(f"buffer_load_dword a255, v245, {sr(S_WS)}, s{ST+5} offen")
        if n0 < 64: I(f"s_mov_b64 exec, s[{ST+6}:{ST+7}]")

    def sync_touch(self):
        I = self.I
        l3 = self.b.uid("L_st3"); lj = self.b.uid("L_stj")
        I(f"""
        s_cmp_eq_u32 s{S_WV}, 3
        s_cbranch_scc1 {l3}
        v_lshlrev_b32 v245, 7, v{V_L}
        s_mul_i32 s{ST+5}, s{S_WV}, {STAT_SZ}
        s_lshl_b32 s{ST+6}, s{S_RB}, 13
        s_add_u32 s{ST+5}, s{ST+5}, s{ST+6}
        s_add_u32 s{ST+5}, s{ST+5}, {STAT}
        buffer_load_dword a255, v245, {sr(S_WS)}, s{ST+5} offen
        s_branch {lj}
        {l3}:
        v_lshrrev_b32 v245, 4, v{V_L}
        v_lshlrev_b32 v245, 14, v245
        v_and_b32 v244, 15, v{V_L}
        v_lshl_add_u32 v245, v244, 7, v245
        s_and_b32 s{ST+5}, s{S_RB}, 28
        s_lshl_b32 s{ST+5}, s{ST+5}, 9
        s_add_u32 s{ST+5}, s{ST+5}, {CFLAG + CF_LOC}
        buffer_load_dword a255, v245, {sr(S_WS)}, s{ST+5} offen
        s_add_u32 s{ST+5}, s{ST+5}, {4*CF_PH}
        v_lshlrev_b32 v245, 7, v244
        buffer_load_dword a255, v245, {sr(S_WS)}, s{ST+5} offen
        {lj}:
        s_sub_u32 s{ST+5}, s{S_TT}, 1
        s_max_i32 s{ST+5}, s{ST+5}, 0
        s_lshl_b32 s{ST+5}, s{ST+5}, 7
        s_add_u32 s{ST+5}, s{ST+5}, {CFLAG + PH_G*CF_PH}
        v_lshlrev_b32 v245, 7, v{V_L}
        s_mov_b64 exec, 7
        buffer_load_dword a255, v245, {sr(S_WS)}, s{ST+5} offen
        s_mov_b64 exec, -1
        """)

    def pf_op(self, which, part):
        n = self.l2_prefetch(which, part)
        for i in range(n): self.vm_issue(("pf",))

    def hook_body(self, hooks, k):
        if self.detail == 1: self.stamp(f"h{k}i")
        hooks[k]()
        if self.detail == 1: self.stamp(f"h{k}o")

    L_KV = 108*1024
    S_INC = 75
    S_SLOW = 77
    def kv_dma(self, g):
        I = self.I
        I(f"""
        s_mul_i32 s{ST+5}, s{S_WV}, {KVT}
        s_add_u32 s{ST+4}, s{ST+5}, {self.L_KV + (4*g % 16)*KVT}
        s_mov_b32 m0, s{ST+4}
        s_add_u32 s{ST+5}, s{ST+5}, {KV + 4*g*KVT}
        buffer_load_dwordx4 v{V_L16}, {sr(S_WS)}, s{ST+5} offen lds
        buffer_load_dwordx4 v{V_L16}, {sr(S_WS)}, s{ST+5} offen offset:1024 lds
        buffer_load_dwordx4 v{V_L16}, {sr(S_WS)}, s{ST+5} offen offset:2048 lds
        s_mov_b64 exec, 0xffff
        buffer_load_dwordx4 v{V_L16}, {sr(S_WS)}, s{ST+5} offen offset:3072 lds
        s_mov_b64 exec, -1
        """)

    L_DUMMY = 104*1024
    V_BG = 202
    L_MODW = 96*1024
    def slot_setup(self, kind, arg=0):
        I = self.I
        DS = self.S_DS
        if kind == "unit":
            I(f"s_add_u32 s{DS}, s{self.S_WA}, {(16*arg-16)*1024 & 0xffffffff}\ns_add_u32 s76, s{self.S_LW}, {(16*arg-16)*1024 & 0xffffffff}\ns_mov_b32 s{self.S_INC}, 16384")
            return
        if kind == "act":
            base, per_tile, part = arg
            per_wave = 16*per_tile // 128
            I(f"""
            s_lshr_b32 s{DS}, s{S_RB}, 2
            s_mul_i32 s{DS}, s{DS}, {16*per_tile}
            s_and_b32 s{ST+6}, s{S_RB}, 3
            s_lshl_b32 s{ST+6}, s{ST+6}, 3
            s_add_u32 s{ST+6}, s{ST+6}, s{S_M}
            s_lshl_b32 s{ST+6}, s{ST+6}, 2
            s_add_u32 s{ST+6}, s{ST+6}, s{S_WV}
            s_mul_i32 s{ST+6}, s{ST+6}, {per_wave}
            s_add_u32 s{DS}, s{DS}, s{ST+6}
            s_add_u32 s{DS}, s{DS}, {base + 4096*part}
            """)
        elif kind == "mod":
            I(f"""
            v_mul_u32_u24 v245, 3277, v{V_L}
            v_lshrrev_b32 v245, 16, v245                        ; lane / 20
            v_mul_u32_u24 v{self.V_BG}, {2560 - 320}, v245
            v_add_u32 v{self.V_BG}, v{self.V_BG}, v{V_L16}      ; slice * 2560 + (lane % 20) * 16
            s_mul_i32 s{DS}, s{S_M}, 320
            s_add_u32 s{DS}, s{DS}, {MODG + 2*2560}
            s_mov_b32 s76, {self.L_MODW}
            s_mov_b32 s{self.S_INC}, 0
            """)
            return
        elif kind == "wsa":
            I(f"""
            s_and_b32 s{ST+6}, s{S_RB}, 3
            s_lshl_b32 s{ST+6}, s{ST+6}, 2
            s_add_u32 s{ST+6}, s{ST+6}, s{S_WV}
            s_mul_i32 s{ST+6}, s{ST+6}, {8*1024}
            s_add_u32 s{DS}, s{self.S_WA}, s{ST+6}
            s_sub_u32 s{DS}, s{DS}, s{self.S_LW}
            s_add_u32 s{DS}, s{DS}, {96*1024 + 4096*arg}
            """)
        else:
            I(f"s_mov_b32 s{DS}, {KV}")
        I(f"s_mov_b32 s76, {self.L_DUMMY}")

    def attn_hooks(self):
        I = self.I
        J = {}
        J[15] = (lambda: self.rl_issue(1), 0)
        def j14():
            lab = self.b.uid("L_j14")
            I(f"s_cmp_ge_u32 s{S_WV}, 2\ns_cbranch_scc1 {lab}\ns_waitcnt vmcnt(16)")
            self.rl_store(0)
            I(f"{lab}:")
        J[14] = (j14, 0)
        def j13():
            lab = self.b.uid("L_j13")
            I("s_waitcnt vmcnt(16)")
            I(f"s_cmp_lt_u32 s{S_WV}, 2\ns_cbranch_scc1 {lab}")
            self.rl_store(0)
            I(f"{lab}:")
            self.rl_store(1)
            self.sync_touch()
        J[13] = (j13, 2)
        def j11():
            I("s_waitcnt vmcnt(16)")
            self.rl_flag()
        J[11] = (j11, 0)
        def j8(): self.xid_issue(); self.rl_poll_issue(); self.ring_regs()
        J[8] = (j8, 1)
        def j7():
            I("s_waitcnt vmcnt(8)")
            self.rl_poll_eval()
        J[7] = (j7, 0)
        J[2] = (self.xid_eval, 0)
        if self.pfA:
            J[6] = (lambda: self.l2_prefetch("A", 0), 1); J[4] = (lambda: self.l2_prefetch("A", 1), 1)
        if self.pf3:
            J[6] = (lambda: self.l2_prefetch("3", 0), 2); J[4] = (lambda: self.l2_prefetch("3", 1), 2)
        if self.pf4:
            J[3] = (lambda: (self.l2_prefetch("4", 0), self.l2_prefetch("4", 1)), 2)
        SL = {16: ("act", (OF, 20480, 0)), 15: ("act", (L2F, 20480, 0)), 14: ("none", 0), 13: ("act", (H4F, 54*1024, 0)), 11: ("act", (H4F, 54*1024, 1)),
              10: ("none", 0), 7: ("unit", 0), 1: ("mod", 0)}
        if self.h4mode >= 1:
            del SL[13]; del SL[11]
        if not ALIAS: SL[14] = ("act", (GF, 20480, 0)); SL[13] = ("act", (L3F, 20480, 0))
        H = {}
        def mk(k):
            def f():
                if k in J and not self.nojobs: J[k][0]()
                if k in SL: self.slot_setup(*(SL[k] if not self.nojobs else ("none", 0)))
            return f
        for k in range(16, 0, -1):
            if k in J or k in SL: H[k] = mk(k)
        return H

    def ring_state_after_attn(self):
        self.units_issued = 6
        self.units_queued = 6
        self.pend = []
        self.consumed = -1
        self.vmq = []

    def build(self, force_slow=False, force_global=False):
        I = self.I
        self.force_global = force_global
        phases = [self.phase_start, self.phase_kv, self.phase_q, self.phase_kvwait,
                  lambda: self.phase_attn(force_slow), self.phase_wo, self.phase_w1, self.phase_w2, self.phase_w3, self.phase_w4]
        self.prologue()
        for i, p in enumerate(phases):
            if i >= self.stop_after: break
            p()
        if self.dbg_time:
            lab = self.b.uid("L_dt")
            self.srd(S_C, P_DBG, 256)
            I(f"""
            s_and_b32 s{ST}, s{S_W}, 63
            s_cmp_lg_u32 s{ST}, 63
            s_cbranch_scc1 {lab}
            s_cmp_lg_u32 s{S_WV}, 0
            s_cbranch_scc1 {lab}
            s_memrealtime s[{ST+2}:{ST+3}]
            s_lshr_b32 s{ST}, s{S_W}, 6
            s_lshl_b32 s{ST}, s{ST}, 2
            s_add_u32 s{ST}, s{ST}, 32
            s_waitcnt lgkmcnt(0)
            s_sub_u32 s{ST+2}, s{ST+2}, s{S_TAG}
            v_mov_b32 v254, s{ST+2}
            v_mov_b32 v253, s{ST}
            buffer_store_dword v254, v253, {sr(S_C)}, 0 offen sc1
            {lab}:
            """)
        I(f"""
        s_waitcnt vmcnt(0) lgkmcnt(0)
        s_endpgm
        L_fail:
        s_waitcnt vmcnt(0) lgkmcnt(0)
        """)
        self.srd(S_C, P_DBG, 256)
        I(f"""
        v_mov_b32 v254, s{S_ERR}
        v_mov_b32 v255, s{S_W}
        v_mov_b32 v253, 16
        buffer_store_dwordx2 v[254:255], v253, {sr(S_C)}, 0 offen sc1
        s_waitcnt vmcnt(0)
        L_end:
        s_endpgm
        L_code_end:
        """)
        text, n = finalize(self.b, check=not (self.x_nords or self.x_nokv or self.noslot), align=bool(self.align))
        hdr = open("adaLN_cond__grouped_kv_mqa__mixer_s_mlp__prompt.s.ref").read().split("; Override launch")[0]
        lines = [l for l in hdr.strip().split("\n")]
        lines.append(f"; @launch grid=(256,1,1) block=(256,1,1) lds={LDS_SZ}")
        lines += DOC.strip("\n").split("\n")
        return kernel_file(lines, [(NAME, text, 512, 256, 102)]), n

if __name__ == "__main__":
    import argparse
    ap = argparse.ArgumentParser()
    ap.add_argument("-o", default="adaLN_cond__grouped_kv_mqa__mixer_s_mlp__prompt.s")
    ap.add_argument("--stop", type=int, default=99)
    ap.add_argument("--stamps", action="store_true")
    ap.add_argument("--slow", action="store_true")
    ap.add_argument("--detail", type=int, default=-1)
    ap.add_argument("--cap", type=int, default=99)
    ap.add_argument("--set", action="append", default=[])
    ap.add_argument("--global", dest="glob", action="store_true")
    a = ap.parse_args()
    g = Gen(stop_after=a.stop, stamps=a.stamps)
    g.detail = a.detail
    g.cap_small = a.cap
    for kv in a.set:
        k_, v_ = kv.split('=')
        setattr(g, k_, float(v_) if '.' in v_ else int(v_))
    txt, n = g.build(force_slow=a.slow, force_global=a.glob)
    open(a.o, "w").write(txt)
    print("wrote", a.o, len(txt), "bytes; auto nops:", n, "stamps:", getattr(g, "stamp_names", None))
```

```python
import sys
from common import *

import struct
def f2u(x): return struct.unpack("<I", struct.pack("<f", x))[0]

NAME = "adaLN_cond__grouped_kv_mqa__mixer_s_mlp__prompt_kernel"
MODG   = 0x000000
KVFLAG = 0x004000
RLFLAG = 0x008000
STAT   = 0x020000
STAT_SZ = 32*8*64*16
KV     = 0x100000
KVT    = 3328
OF     = 0x200000
ACT_SZ = 128*20*1024
L2F    = OF + ACT_SZ
import os
ALIAS = os.environ.get('NOALIAS') is None
GF     = OF if ALIAS else L2F + ACT_SZ
L3F    = L2F if ALIAS else L2F + 2*ACT_SZ
H4F    = L2F + 3*ACT_SZ
H4_SZ  = 128*54*1024
WSA    = H4F + H4_SZ
WSA_M  = 304*1024
W3S    = WSA + 8*WSA_M
W3S_M  = 144*1024
W4S    = W3S + 16*W3S_M
W4S_M  = 272*1024
HG     = W4S + 8*W4S_M
XIDG   = HG + 16*20*1024
CFLAG  = XIDG + 4096
CF_LOC = 8*128*128
CF_PH  = 128*128
WS_END = CFLAG + 2*CF_LOC + 64*1024
DBGA   = WS_END
WS_REC = 0x4000000
PH_O, PH_L2, PH_G, PH_L3, PH_H4 = 0, 1, 2, 3, 4

L_WQ   = 0
L_WK   = 102400
L_WM   = 102400
L_SC   = 143360
L_MOD  = 144640
L_QS   = 149760
L_MISC = 161024
LDS_SZ = 163840
L_RL   = 0
L_W    = 0

S_WS = 4
S_A  = 8
S_B  = 12
S_C  = 16
S_TAG = 20
S_WV, S_M, S_RB, S_W = 22, 23, 24, 25
S_T0 = 26
S_TT = 27
S_ERR = 28
S_FAST = 3
P_X, P_WQ, P_WK, P_WV, P_WO, P_BX, P_W1, P_W2, P_W3, P_W4, P_C, P_WM, P_OUT, P_DBG, P_WS = [32 + 2*i for i in range(15)]
ST = 62

def sr(b, n=4): return f"s[{b}:{b+n-1}]"
def vr(b, n=4): return f"v[{b}:{b+n-1}]" if n > 1 else f"v{b}"
def ar(b, n=4): return f"a[{b}:{b+n-1}]" if n > 1 else f"a{b}"

V_L, V_T, V_G, V_L16 = 0, 1, 2, 3

TIMEOUT = 400000


DOC = """
;
;  1. mod = silu(c) @ w_mod (column blocks spread over workgroups), LN(x), h = LN(x)*(1+ca)+sa, K / V^T (members 0,1), Q.
;     The scores are used without subtracting a maximum only while a run-time bound proves it safe:
;     |q|^2 * max_k |k|^2 <= 64^2 (log2 units, Cauchy-Schwarz), so every exp2 argument lies in [-64, 64].
;  3. wo, LN, LN, w1 + gelu, token shift + w2, LN, w3 + gelu, w4: 64x80 output tiles, activations exchanged through d_ws in fragment order.
"""

class Gen:
    def __init__(self, stop_after=99, stamps=False):
        self.b = Builder()
        self.stop_after = stop_after
        self.stamps = stamps
        self.nstamp = 0
        self.detail = -1
        self.nojobs = 0
        self.dbg_time = 0
        self.align = 1
        self.x_nobar = 0
        self.x_nokv = 0
        self.x_nords = 0
        self.noslot = 0
        self.in_slow = False
        self.cap_small = 99
        self.burst = 6
        self.rate_small = 1.3
        self.rate_w3 = 3.5
        self.rate_w4 = 1.6
        self.epi_drip = 8
        self.post_drip = 0
        self.fine = 0
        self.tlb_early = 0
        self.gsleep = 0
        self.h4mode = 2
        self.wb_early = 0
        self.wb_who = 0
        self.out_sc1 = 0
        self.wq_touch = 1
        self.w3split = 0
        self.rate_w3a = 2.2
        self.rate_w3b = 1.5
        self.fill_n = 2
        self.pfA = 1
        self.pf4 = 0
        self.post_drip2 = 0
        self.post_drip3 = 0
        self.res3 = 0
        self.w4defer = 0
        self.shadow_f = 3
        self.shadow_s = 3
        self.resident = 0
        self.chunk4 = 4
        self.pub_after = 0
        self.visible = -1
        self.epi_drip2 = 6
        self.gd1 = 1
        self.gd3 = 2
        self.burst4 = 10
        self.use_pf = 0
        self.tlb_warm = 0
        self.touch_act = 0
        self.h4t_where = 0
        self.use_mall = 0
        self.pf3 = 0
        self.pub_drip = 0
    def I(self, t): self.b.I(t)
    def C(self, t): self.b.C(t)

    def srd(self, s, ptr, nbytes, add=0):
        if add:
            self.I(f"s_add_u32 s{s}, s{ptr}, {add}\ns_addc_u32 s{s+1}, s{ptr+1}, 0")
        else:
            self.I(f"s_mov_b32 s{s}, s{ptr}\ns_mov_b32 s{s+1}, s{ptr+1}")
        self.I(f"s_mov_b32 s{s+2}, {nbytes}\ns_mov_b32 s{s+3}, 0x20000")

    def stamp(self, name):
        if not self.stamps: return
        k = self.nstamp; self.nstamp += 1
        lab = self.b.uid("L_st")
        self.C(f"stamp {k}: {name}")
        self.I(f"""
        s_cmp_lg_u32 s{S_WV}, 0
        s_cbranch_scc1 {lab}
        s_memrealtime s[100:101]
        s_memtime s[96:97]
        s_lshl_b32 s99, s{S_W}, 11
        s_add_u32 s99, s99, {DBGA + 16*k}
        s_waitcnt lgkmcnt(0)
        v_mov_b32 v252, s100
        v_mov_b32 v253, s101
        v_mov_b32 v254, s96
        v_mov_b32 v255, s97
        v_mov_b32 v251, s99
        buffer_store_dwordx4 v[252:255], v251, {sr(S_WS)}, 0 offen
        s_nop 1
        {lab}:
        """)
        self.stamp_names = getattr(self, "stamp_names", []) + [name]

    def spin_tail(self, cnt, loop, code):
        if code in (2, 3) and self.gsleep: self.I(f"s_sleep {self.gsleep}")
        self.I(f"""
        s_sub_u32 s{cnt}, s{cnt}, 1
        s_cmp_lg_u32 s{cnt}, 0
        s_cbranch_scc1 {loop}
        s_mov_b32 s{S_ERR}, {code}
        s_branch L_fail
        """)

    def get_tag(self):
        lp = self.b.uid("L_tag"); ok = self.b.uid("L_tagok")
        self.srd(S_C, P_DBG, 256)
        self.I(f"""
        s_mov_b32 s{ST}, {TIMEOUT}
        v_mov_b32 v252, 0
        {lp}:
        buffer_load_dwordx2 v[254:255], v252, {sr(S_C)}, 0 offen sc1
        s_waitcnt vmcnt(0)
        v_readfirstlane_b32 s{S_TAG}, v254
        v_readfirstlane_b32 s{S_TAG+1}, v255
        s_cmp_lg_u32 s{S_TAG}, 0
        s_cbranch_scc1 {ok}
        """)
        self.spin_tail(ST, lp, 1)
        self.I(f"{ok}:")

    def reduce_g(self, regs, tmp, op="v_add_f32"):
        for sw in ("v_permlane16_swap_b32", "v_permlane32_swap_b32"):
            for i, r in enumerate(regs):
                self.I(f"v_mov_b32 v{tmp+i}, v{r}")
            for i, r in enumerate(regs):
                self.I(f"{sw} v{r}, v{tmp+i}")
            for i, r in enumerate(regs):
                self.I(f"{op} v{r}, v{r}, v{tmp+i}")

    def prologue(self):
        I = self.I
        I(f"""
        s_cmp_ge_u32 s2, 256
        s_cbranch_scc1 L_end
        s_load_dwordx16 s[32:47], s[0:1], 0
        s_load_dwordx8 s[48:55], s[0:1], 64
        s_load_dwordx4 s[56:59], s[0:1], 96
        s_load_dwordx2 s[60:61], s[0:1], 112
        v_lshrrev_b32 v1, 6, v0
        v_and_b32 v{V_L}, 63, v0
        v_readfirstlane_b32 s{S_WV}, v1
        v_and_b32 v{V_T}, 15, v{V_L}
        v_lshrrev_b32 v{V_G}, 4, v{V_L}
        v_lshlrev_b32 v{V_L16}, 4, v{V_L}
        s_mov_b32 s{S_W}, s2
        s_and_b32 s{ST}, s2, 7
        s_lshr_b32 s{ST+1}, s2, 3
        s_and_b32 s{S_M}, s{ST+1}, 7
        s_lshr_b32 s{ST+1}, s{ST+1}, 3
        s_lshl_b32 s{ST}, s{ST}, 2
        s_add_u32 s{S_RB}, s{ST}, s{ST+1}
        s_lshl_b32 s{S_T0}, s{S_RB}, 6
        s_lshl_b32 s{S_TT}, s{S_RB}, 2
        s_add_u32 s{S_TT}, s{S_TT}, s{S_WV}
        s_mov_b32 s{S_ERR}, 0
        """)
        self.C("request the kernel's own code into this XCD's L2: workgroup j of the 32 in a row group takes lines 16j..16j+15 (wave 0)")
        labc = self.b.uid("L_cp")
        I(f"""
        s_cmp_lg_u32 s{S_WV}, 0
        s_cbranch_scc1 {labc}
        s_getpc_b64 s[{ST+2}:{ST+3}]
        L_pcref:
        s_lshr_b32 s{ST+4}, s2, 3
        s_lshl_b32 s{ST+4}, s{ST+4}, 11                       ; 16 lines * 128 B
        v_lshlrev_b32 v4, 7, v{V_L}
        v_add_u32 v4, s{ST+4}, v4
        v_cmp_gt_u32 vcc, L_code_end-L_pcref-4, v4
        s_and_b64 vcc, vcc, 0xffff
        s_and_saveexec_b64 s[{ST+4}:{ST+5}], vcc
        s_cbranch_execz {labc}_x
        global_load_dword a252, v4, s[{ST+2}:{ST+3}]
        {labc}_x:
        s_mov_b64 exec, s[{ST+4}:{ST+5}]
        {labc}:
        s_waitcnt lgkmcnt(0)
        """)
        self.srd(S_WS, P_WS, WS_REC)
        lab = self.b.uid("L_non")
        self.srd(S_C, P_DBG, 256)
        I(f"""
        s_lshl_b32 s{ST}, s2, 2
        s_add_u32 s{ST}, s{ST}, s{S_WV}
        s_cmp_lg_u32 s{ST}, 0
        s_cbranch_scc1 {lab}
        s_memrealtime s[{S_TAG}:{S_TAG+1}]
        s_waitcnt lgkmcnt(0)
        s_or_b32 s{S_TAG}, s{S_TAG}, 1
        v_mov_b32 v254, s{S_TAG}
        v_mov_b32 v255, s{S_TAG+1}
        v_mov_b32 v252, 0
        s_mov_b64 exec, 1
        buffer_store_dwordx2 v[254:255], v252, {sr(S_C)}, 0 offen sc1
        s_mov_b64 exec, -1
        {lab}:
        """)
        self.stamp("start")

    XF = 4
    XH = 84
    TMP = 244

    def tag_issue(self):
        self.srd(S_C, P_DBG, 256)
        self.I(f"v_mov_b32 v241, 0\nbuffer_load_dwordx2 v[242:243], v241, {sr(S_C)}, 0 offen sc1")

    def tag_eval(self):
        I = self.I
        lp = self.b.uid("L_tag"); ok = self.b.uid("L_tagok")
        I(f"""
        s_mov_b32 s{ST}, {TIMEOUT}
        {lp}:
        v_readfirstlane_b32 s{S_TAG}, v242
        v_readfirstlane_b32 s{S_TAG+1}, v243
        s_cmp_lg_u32 s{S_TAG}, 0
        s_cbranch_scc1 {ok}
        """)
        self.tag_issue()
        I("s_waitcnt vmcnt(0)")
        self.spin_tail(ST, lp, 1)
        I(f"{ok}:")

    S_PROD2 = 80
    S_PROD, S_P = 80, 81

    LWM, LSC, LMI = L_WM, L_SC, L_MISC + 64
    def mod_dma(self, cdst=None):
        I = self.I
        TMP = self.MT
        self.srd(S_B, P_C, 1280)
        I(f"""
        s_mul_i32 s{ST+4}, s{S_WV}, 320
        v_lshlrev_b32 v{TMP+2}, 3, v{V_L}
        buffer_load_dwordx2 {cdst or f'v[{TMP+4}:{TMP+5}]'}, v{TMP+2}, {sr(S_B)}, s{ST+4} offen
        """)
        self.srd(S_A, P_WM, 640*7680)
        I(f"""
        v_lshrrev_b32 v{TMP}, 2, v{V_L}
        v_mul_u32_u24 v{TMP}, 7680, v{TMP}
        v_and_b32 v{TMP+1}, 3, v{V_L}
        v_lshl_add_u32 v{TMP}, v{TMP+1}, 4, v{TMP}
        s_mul_i32 s{ST+1}, s{S_WV}, {160*7680}
        s_lshl_b32 s{ST+2}, s{self.S_P}, 6                   ; p*64 bytes
        s_add_u32 s{ST+1}, s{ST+1}, s{ST+2}
        s_mul_i32 s{ST+3}, s{S_WV}, {160*64}
        s_add_u32 s{ST+3}, s{ST+3}, {self.LWM}
        """)
        for i in range(10):
            I(f"""
            s_mov_b32 m0, s{ST+3}
            s_add_u32 s{ST+3}, s{ST+3}, 1024
            buffer_load_dwordx4 v{TMP}, {sr(S_A)}, s{ST+1} offen lds
            s_add_u32 s{ST+1}, s{ST+1}, {16*7680}
            """)

    MT2 = 244
    MT3 = 228
    MT = 228
    def mod_gemv(self, W, wait_c, wait_w, wait_tag, BBr=None):
        I = self.I
        TMP = self.MT
        T = TMP + 4
        I(f"""
        s_waitcnt vmcnt({wait_c})
        v_lshlrev_b32 v{TMP+6}, 16, v{T}
        v_and_b32 v{TMP+7}, 0xffff0000, v{T}
        v_lshlrev_b32 v{TMP+8}, 16, v{T+1}
        v_and_b32 v{TMP+9}, 0xffff0000, v{T+1}
        """)
        for i in range(4):
            r = TMP + 6 + i
            I(f"""
            v_mul_f32 v{TMP+3}, 0xbfb8aa3b, v{r}
            v_exp_f32 v{TMP+3}, v{TMP+3}
            v_add_f32 v{TMP+3}, 1.0, v{TMP+3}
            v_rcp_f32 v{TMP+3}, v{TMP+3}
            v_mul_f32 v{r}, v{r}, v{TMP+3}
            """)
        va, vb, WA, BB, ACC = W, W+1, W+4, W+44, W+64
        if BBr is not None: BB, ACC = BBr, W+44
        I(f"""
        v_cvt_pk_bf16_f32 v{T}, v{TMP+6}, v{TMP+7}
        v_cvt_pk_bf16_f32 v{T+1}, v{TMP+8}, v{TMP+9}
        s_mul_i32 s{ST+4}, s{S_WV}, 320
        s_add_u32 s{ST+4}, s{ST+4}, {self.LSC}
        v_lshlrev_b32 v{TMP+2}, 3, v{V_L}
        v_add_u32 v{TMP+2}, s{ST+4}, v{TMP+2}
        s_mov_b32 exec_hi, 0xff
        ds_write_b64 v{TMP+2}, v[{T}:{T+1}]
        s_mov_b32 exec_hi, -1
        v_lshrrev_b32 v{va}, 2, v{V_T}
        v_lshl_add_u32 v{va}, v{V_G}, 2, v{va}
        v_lshlrev_b32 v{va}, 6, v{va}                       ; 64*(4g+(i>>2))
        v_and_b32 v{vb}, 3, v{V_T}
        v_lshl_add_u32 v{va}, v{vb}, 3, v{va}
        s_mul_i32 s{ST}, s{S_WV}, {160*64}
        s_add_u32 s{ST}, s{ST}, {self.LWM}
        v_add_u32 v{va}, s{ST}, v{va}
        v_lshlrev_b32 v{vb}, 3, v{V_G}
        v_add_u32 v{vb}, s{ST+4}, v{vb}
        s_waitcnt vmcnt({wait_w}) lgkmcnt(0)
        """)
        for s_ in range(5):
            I(f"ds_read_b64 v[{BB+4*s_}:{BB+4*s_+1}], v{vb} offset:{64*s_}\nds_read_b64 v[{BB+4*s_+2}:{BB+4*s_+3}], v{vb} offset:{64*s_+32}")
        for s_ in range(5):
            for tl in range(2):
                W_ = WA + 8*s_ + 4*tl
                I(f"ds_read_b64_tr_b16 v[{W_}:{W_+1}], v{va} offset:{2048*s_+32*tl}\nds_read_b64_tr_b16 v[{W_+2}:{W_+3}], v{va} offset:{2048*s_+32*tl+1024}")
        I("s_waitcnt lgkmcnt(0)")
        for s_ in range(5):
            for tl in range(2):
                I(f"v_mfma_f32_16x16x32_bf16 {vr(ACC+4*tl)}, {vr(WA+8*s_+4*tl)}, {vr(BB+4*s_)}, {'0' if s_ == 0 else vr(ACC+4*tl)}")
        I(f"""
        s_lshl_b32 s{ST}, s{S_WV}, 7
        s_add_u32 s{ST}, s{ST}, {self.LMI}
        v_lshlrev_b32 v{va}, 4, v{V_G}
        v_add_u32 v{va}, s{ST}, v{va}
        v_cmp_eq_u32 vcc, 0, v{V_T}
        s_and_saveexec_b64 s[{ST+4}:{ST+5}], vcc
        ds_write_b128 v{va}, {vr(ACC)}
        ds_write_b128 v{va}, {vr(ACC+4)} offset:64
        s_mov_b64 exec, s[{ST+4}:{ST+5}]
        s_waitcnt lgkmcnt(0)
        s_barrier
        """)
        lab_gd = self.b.uid("L_gd")
        I(f"s_cmp_lg_u32 s{S_WV}, 0\ns_cbranch_scc1 {lab_gd}")
        I(f"""
        v_lshlrev_b32 v{va}, 4, v{V_L}
        v_and_b32 v{va}, 0x7f, v{va}
        v_add_u32 v{va}, {self.LMI}, v{va}
        ds_read_b128 {vr(WA)}, v{va}
        ds_read_b128 {vr(WA+4)}, v{va} offset:128
        ds_read_b128 {vr(WA+8)}, v{va} offset:256
        ds_read_b128 {vr(WA+12)}, v{va} offset:384
        """)
        if wait_tag is not None:
            I(f"s_waitcnt vmcnt({wait_tag})")
            self.tag_eval()
        I("s_waitcnt lgkmcnt(0)")
        for r in range(4):
            I(f"v_add_f32 v{WA+r}, v{WA+r}, v{WA+4+r}\nv_add_f32 v{WA+8+r}, v{WA+8+r}, v{WA+12+r}\nv_add_f32 v{WA+r}, v{WA+r}, v{WA+8+r}")
        I(f"""
        v_cvt_pk_bf16_f32 v{ACC+4}, v{WA}, v{WA+1}
        v_cvt_pk_bf16_f32 v{ACC+5}, v{WA+2}, v{WA+3}
        v_mov_b32 v{ACC+6}, s{S_TAG}
        v_mov_b32 v{ACC+7}, s{S_TAG+1}
        s_lshl_b32 s{ST}, s{self.S_P}, 7                     ; p*8 granules*16 B
        s_mov_b64 exec, 0xff
        buffer_store_dwordx4 {vr(ACC+4)}, v{V_L16}, {sr(S_WS)}, s{ST} offen offset:{MODG} sc1
        s_mov_b64 exec, -1
        {lab_gd}:
        """)

    def line_touch(self, srd, voff, soff, nl):
        I = self.I
        if nl < 64: I(f"v_cmp_gt_u32 vcc, {nl}, v{V_L}\ns_and_saveexec_b64 s[{ST+6}:{ST+7}], vcc")
        I(f"buffer_load_dword a255, v{voff}, {sr(srd)}, s{soff} offen")
        if nl < 64: I(f"s_mov_b64 exec, s[{ST+6}:{ST+7}]")

    def wq_ops(self):
        I = self.I
        V = 239
        so, lo = ST+12, ST+13
        self.srd(S_A, P_WQ, 640*1280)
        I(f"""
        v_mul_u32_u24 v{V}, 205, v{V_L}
        v_lshrrev_b32 v{V}, 11, v{V}
        v_mul_u32_u24 v{V-1}, 10, v{V}
        v_sub_u32 v{V-1}, v{V_L}, v{V-1}
        v_mul_u32_u24 v{V}, 1280, v{V}
        v_lshl_add_u32 v{V}, v{V-1}, 4, v{V}
        s_mul_i32 s{so}, s{S_M}, 160
        s_mul_i32 s{lo}, s{S_WV}, {6*1280}
        s_add_u32 s{so}, s{so}, s{lo}
        s_mul_i32 s{lo}, s{S_WV}, 960
        s_sub_u32 m0, s{lo}, 3840
        s_sub_u32 s{so}, s{so}, {24*1280}
        """)
        def mk(i):
            def f():
                if i == 26:
                    lab = self.b.uid("L_wq")
                    I(f"""
                    s_cmp_ge_u32 s{S_WV}, 3
                    s_cbranch_scc1 {lab}
                    s_cmp_eq_u32 s{S_WV}, 2
                    s_mov_b32 s{ST+14}, 0x0fffffff
                    s_cselect_b32 exec_hi, 0xff, s{ST+14}
                    s_add_u32 m0, m0, 3840
                    s_add_u32 s{so}, s{so}, {24*1280}
                    buffer_load_dwordx4 v{V}, {sr(S_A)}, s{so} offen lds
                    s_mov_b32 exec_hi, -1
                    {lab}:
                    """)
                else:
                    I(f"""
                    s_add_u32 m0, m0, 3840
                    s_add_u32 s{so}, s{so}, {24*1280}
                    buffer_load_dwordx4 v{V}, {sr(S_A)}, s{so} offen lds
                    """)
            return f
        return [mk(i) for i in range(27)]

    def phase_start(self):
        I, C = self.I, self.C
        XF, XH, TMP = self.XF, self.XH, self.TMP
        PR, P = self.S_PROD, self.S_P
        C("---- mod producers: members 2..5; column pair P = x + 8k (k = 2*rbl + (m-2)/2) < 60, block p = 2P + (m-2)%2; P < 20 is critical")
        I(f"""
        s_sub_u32 s{ST}, s{S_M}, 2                           ; m-2
        s_and_b32 s{ST+1}, s{S_RB}, 3
        s_lshl_b32 s{ST+1}, s{ST+1}, 1
        s_lshr_b32 s{ST+2}, s{ST}, 1
        s_add_u32 s{ST+1}, s{ST+1}, s{ST+2}
        s_lshl_b32 s{ST+1}, s{ST+1}, 3
        s_lshr_b32 s{ST+2}, s{S_RB}, 2
        s_add_u32 s{ST+1}, s{ST+1}, s{ST+2}                  ; P
        s_lshl_b32 s{P}, s{ST+1}, 1
        s_and_b32 s{ST+2}, s{ST}, 1
        s_add_u32 s{P}, s{P}, s{ST+2}
        s_cmp_lt_u32 s{ST+1}, 20
        s_cselect_b32 s{PR}, 1, 2
        s_cmp_lt_u32 s{ST+1}, 60
        s_cselect_b32 s{PR}, s{PR}, 0
        s_cmp_lt_u32 s{ST}, 4
        s_cselect_b32 s{PR}, s{PR}, 0
        """)
        C("every workgroup requests 1/32 of the critical w_mod lines of its row group: 3 column pairs x 640 rows = 1920 lines, 60 per workgroup (15 per wave)")
        self.srd(S_A, P_WM, 640*7680)
        I(f"""
        s_and_b32 s{ST}, s{S_RB}, 3
        s_lshl_b32 s{ST}, s{ST}, 3
        s_add_u32 s{ST}, s{ST}, s{S_M}
        s_lshl_b32 s{ST}, s{ST}, 2
        s_add_u32 s{ST}, s{ST}, s{S_WV}
        s_mul_i32 s{ST}, s{ST}, 15
        v_add_u32 v{XH}, s{ST}, v{V_L}
        v_mul_u32_u24 v{XH+1}, 6554, v{XH}
        v_lshrrev_b32 v{XH+1}, 22, v{XH+1}                   ; /640
        v_mul_u32_u24 v{XH+2}, 640, v{XH+1}
        v_sub_u32 v{XH+2}, v{XH}, v{XH+2}                    ; row
        v_mul_u32_u24 v{XH+2}, 7680, v{XH+2}
        v_lshlrev_b32 v{XH+1}, 10, v{XH+1}
        v_add_u32 v{XH+2}, v{XH+2}, v{XH+1}
        s_lshr_b32 s{ST}, s{S_RB}, 2
        s_lshl_b32 s{ST}, s{ST}, 7                           ; x * 128 B
        """)
        self.line_touch(S_A, XH+2, ST, 15)
        self.srd(S_C, P_X, 2048*1280)
        XO = XH
        I(f"""
        v_lshlrev_b32 v{XO+6}, 7, v{V_L}
        s_lshl_b32 s{ST}, s{S_M}, 2
        s_add_u32 s{ST}, s{ST}, s{S_WV}
        s_mul_i32 s{ST}, s{ST}, 2560
        s_mul_i32 s{ST+1}, s{S_RB}, {64*1280}
        s_add_u32 s{ST}, s{ST}, s{ST+1}
        """)
        self.line_touch(S_C, XO+6, ST, 20)
        lab_np = self.b.uid("L_np"); lab_j = self.b.uid("L_npj")
        I(f"s_cmp_lg_u32 s{PR}, 1\ns_cbranch_scc1 {lab_np}")
        self.mod_dma()
        self.tag_issue()
        self.mod_gemv(XH+8, 11, 1, 0)
        self.srd(S_C, P_X, 2048*1280)
        I(f"s_branch {lab_j}\n{lab_np}:")
        self.tag_issue()
        self.srd(S_C, P_X, 2048*1280)
        I(f"{lab_j}:")
        self.stamp("modpub")
        C("x: the wave's rows -> LDS, 16-byte chunks XOR-swizzled by the row")
        I(f"s_lshl_b32 s{ST}, s{S_TT}, 4")
        for qq in range(4):
            I(f"""
            v_add_u32 v{XO+4}, {4*qq}, v{V_G}                      ; row
            v_xor_b32 v{XO+5}, v{XO+4}, v{V_T}
            v_add_u32 v{XO+4}, s{ST}, v{XO+4}
            v_mul_u32_u24 v{XO+4}, 1280, v{XO+4}
            v_lshl_add_u32 v{XO+qq}, v{XO+5}, 4, v{XO+4}
            """)
        I(f"s_mul_i32 s{ST+1}, s{S_WV}, 20480")
        for G in range(5):
            I(f"s_mov_b32 s{ST+2}, {256*G}")
            for qq in range(4):
                I(f"s_mov_b32 m0, s{ST+1}\ns_add_u32 s{ST+1}, s{ST+1}, 1024\nbuffer_load_dwordx4 v{XO+qq}, {sr(S_C)}, s{ST+2} offen lds")
        lab_nk = self.b.uid("L_nk")
        I(f"""
        s_cmp_ge_u32 s{S_M}, 2
        s_cbranch_scc1 {lab_nk}
        s_cmp_eq_u32 s{S_M}, 0
        s_cselect_b32 s{S_A}, s{P_WK}, s{P_WV}
        s_cselect_b32 s{S_A+1}, s{P_WK+1}, s{P_WV+1}
        s_mov_b32 s{S_A+2}, 25600
        s_mov_b32 s{S_A+3}, 0x20000
        s_mul_i32 s{ST}, s{S_WV}, 7168
        s_add_u32 s{ST+1}, s{ST}, {L_WK}
        """)
        for i in range(7):
            I(f"""
            s_mov_b32 m0, s{ST+1}
            s_add_u32 s{ST+1}, s{ST+1}, 1024
            buffer_load_dwordx4 v{V_L16}, {sr(S_A)}, s{ST} offen lds
            s_add_u32 s{ST}, s{ST}, 1024
            """)
        I(f"{lab_nk}:")
        if self.wq_touch == 1:
            C("wq: request this workgroup's 1/32 of the matrix (200 lines, 50 per wave)")
            self.srd(S_B, P_WQ, 640*1280)
            I(f"""
            s_and_b32 s{ST}, s{S_RB}, 3
            s_lshl_b32 s{ST}, s{ST}, 3
            s_add_u32 s{ST}, s{ST}, s{S_M}
            s_lshl_b32 s{ST}, s{ST}, 2
            s_add_u32 s{ST}, s{ST}, s{S_WV}
            s_mul_i32 s{ST}, s{ST}, 6400
            """)
            self.line_touch(S_B, XO+6, ST, 50)
        else:
            I(f"v_mov_b32 v{XO+7}, 0\nbuffer_load_dword a255, v{XO+7}, {sr(S_C)}, 0 offen")
        self.stamp("issued")
        C("x fragments: lane (t,g): k = 32s+4g (+16)")
        AD = XH + 8
        I(f"""
        s_mul_i32 s{ST}, s{S_WV}, 20480
        v_lshlrev_b32 v{TMP}, 8, v{V_T}
        v_add_u32 v{TMP}, s{ST}, v{TMP}
        v_and_b32 v{TMP+1}, 1, v{V_G}
        v_lshl_add_u32 v{TMP}, v{TMP+1}, 3, v{TMP}            ; + 8*(g&1)
        v_lshrrev_b32 v{TMP+1}, 1, v{V_G}                     ; g>>1
        """)
        for a_ in range(4):
            for e in range(2):
                I(f"""
                v_add_u32 v{TMP+2}, {4*a_+2*e}, v{TMP+1}
                v_xor_b32 v{TMP+2}, v{TMP+2}, v{V_T}
                v_lshl_add_u32 v{AD+2*a_+e}, v{TMP+2}, 4, v{TMP}
                """)
        RS_ = XH + 16
        I(f"s_mul_i32 s{ST+1}, s{S_M}, 10")
        for j in range(5):
            I(f"""
            s_add_u32 s{ST+2}, s{ST+1}, {2*j}
            v_add_u32 v{TMP+2}, s{ST+2}, v{TMP+1}
            v_lshrrev_b32 v{TMP+3}, 4, v{TMP+2}
            v_and_b32 v{TMP+2}, 15, v{TMP+2}
            v_xor_b32 v{TMP+2}, v{TMP+2}, v{V_T}
            v_lshl_add_u32 v{TMP+2}, v{TMP+2}, 4, v{TMP}
            v_lshl_add_u32 v{RS_+j}, v{TMP+3}, 12, v{TMP+2}
            """)
        lw1 = self.b.uid("L_xw"); lwj = self.b.uid("L_xw")
        I(f"""
        s_cmp_lt_u32 s{S_M}, 2
        s_cbranch_scc1 {lw1}
        s_waitcnt vmcnt(1)
        s_branch {lwj}
        {lw1}:
        s_waitcnt vmcnt(8)
        {lwj}:
        """)
        for s_ in range(20):
            for e in range(2):
                I(f"ds_read_b64 v[{XF+4*s_+2*e}:{XF+4*s_+2*e+1}], v{AD+2*(s_&3)+e} offset:{4096*(s_>>2)}")
        for j in range(5):
            I(f"ds_read_b64 v[{XH+24+2*j}:{XH+25+2*j}], v{RS_+j}")
        self.tag_eval()
        I("s_waitcnt lgkmcnt(0)")
        for j in range(10): I(f"v_accvgpr_write_b32 a{j}, v{XH+24+j}")
        I("s_barrier")
        if self.wq_touch == 2:
            self.srd(S_B, P_WQ, 640*1280)
            I(f"""
            v_lshlrev_b32 v{XH+6}, 7, v{V_L}
            s_and_b32 s{ST}, s{S_RB}, 3
            s_lshl_b32 s{ST}, s{ST}, 3
            s_add_u32 s{ST}, s{ST}, s{S_M}
            s_lshl_b32 s{ST}, s{ST}, 2
            s_add_u32 s{ST}, s{ST}, s{S_WV}
            s_mul_i32 s{ST}, s{ST}, 6400
            """)
            self.line_touch(S_B, XH+6, ST, 50)
        wq = self.wq_ops()
        if self.tlb_early:
            labt = self.b.uid("L_tlb")
            I(f"s_cmp_lg_u32 s{S_WV}, 3\ns_cbranch_scc1 {labt}\nv_lshlrev_b32 v{XH+7}, 20, v{V_L}")
            I(f"s_mov_b64 exec, {hex((1 << ((WS_END >> 20) + 1)) - 1)}\nbuffer_load_dword a254, v{XH+7}, {sr(S_WS)}, 0 offen\ns_mov_b64 exec, 7")
            for ptr, nb in ((P_WO, 640*1280), (P_W1, 640*1280), (P_W2, 640*1280), (P_W3, 640*3456), (P_W4, 1728*1280), (P_OUT, 2048*1280)):
                self.srd(S_B, ptr, nb)
                I(f"buffer_load_dword a254, v{XH+7}, {sr(S_B)}, 0 offen")
            I(f"s_mov_b64 exec, -1\n{labt}:")
        self.stamp("xfrag")
        C("LN1 stats: sum via ones-MFMA, sumsq via Gram diagonal")
        ONES, D1, D2 = TMP, TMP+4, TMP+8
        for i in range(4): I(f"v_mov_b32 v{ONES+i}, 0x3f803f80")
        for s in range(20):
            I(f"v_mfma_f32_16x16x32_bf16 {vr(D1)}, {vr(ONES)}, {vr(XF+4*s)}, {'0' if s == 0 else vr(D1)}")
            I(f"v_mfma_f32_16x16x32_bf16 {vr(D2)}, {vr(XF+4*s)}, {vr(XF+4*s)}, {'0' if s == 0 else vr(D2)}")
            if s % 2 == 0 and wq: wq.pop(0)()
        MU, RS, T1, T2 = XH, XH+1, XH+2, XH+3
        I(f"""
        v_and_b32 v{T1}, 3, v{V_T}
        v_cmp_eq_u32 vcc, 1, v{T1}
        v_cndmask_b32 v{T2}, v{D2}, v{D2+1}, vcc
        v_cmp_eq_u32 vcc, 2, v{T1}
        v_cndmask_b32 v{T2}, v{T2}, v{D2+2}, vcc
        v_cmp_eq_u32 vcc, 3, v{T1}
        v_cndmask_b32 v{T2}, v{T2}, v{D2+3}, vcc
        v_lshrrev_b32 v{T1}, 2, v{V_T}
        v_lshl_add_u32 v{T1}, v{T1}, 4, v{V_T}
        v_lshlrev_b32 v{T1}, 2, v{T1}
        ds_bpermute_b32 v{T2}, v{T1}, v{T2}
        v_mul_f32 v{MU}, {1.0/640!r}, v{D1}
        s_waitcnt lgkmcnt(0)
        v_mul_f32 v{T2}, {1.0/640!r}, v{T2}
        v_fma_f32 v{T2}, -v{MU}, v{MU}, v{T2}
        v_max_f32 v{T2}, 0, v{T2}
        v_add_f32 v{T2}, 0x3727c5ac, v{T2}
        v_rsq_f32 v{RS}, v{T2}
        s_nop 0
        v_mul_f32 v{MU}, v{MU}, v{RS}
        v_sub_f32 v{TMP}, 0, v{MU}                           ; -mu*rstd
        v_mov_b32 v{TMP+1}, v{TMP}
        v_mov_b32 v{TMP+2}, v{RS}
        v_mov_b32 v{TMP+3}, v{RS}
        """)
        C("xhat = x*rstd - mu*rstd (fp32)")
        for s in range(20):
            for q in range(4):
                src = XF + 4*s + q
                d = XH + 8*s + 2*q
                if d + 1 >= 238 and False: pass
                I(f"v_lshlrev_b32 v{d}, 16, v{src}\nv_and_b32 v{d+1}, 0xffff0000, v{src}")
            for q in range(4):
                d = XH + 8*s + 2*q
                I(f"v_pk_fma_f32 v[{d}:{d+1}], v[{d}:{d+1}], v[{TMP+2}:{TMP+3}], v[{TMP}:{TMP+1}]")
            if s < 17 and wq: wq.pop(0)()
        assert not wq
        self.stamp("xhat")
        G0 = TMP+4
        lp = self.b.uid("L_mp"); ok = self.b.uid("L_mpok")
        I(f"""
        s_mul_i32 s{ST+1}, s{S_WV}, {80*16}
        v_add_u32 v{TMP+2}, s{ST+1}, v{V_L16}
        v_add_u32 v{TMP+3}, 1024, v{TMP+2}
        v_cmp_gt_u32 vcc, 16, v{V_L}
        v_cndmask_b32 v{TMP+3}, v{TMP+2}, v{TMP+3}, vcc
        s_mov_b32 s{ST}, {TIMEOUT}
        {lp}:
        buffer_load_dwordx4 {vr(G0)}, v{TMP+2}, {sr(S_WS)}, 0 offen offset:{MODG} sc1
        buffer_load_dwordx4 {vr(G0+4)}, v{TMP+3}, {sr(S_WS)}, 0 offen offset:{MODG} sc1
        s_waitcnt vmcnt(0)
        v_cmp_ne_u32 vcc, s{S_TAG}, v{G0+2}
        s_mov_b64 s[{ST+2}:{ST+3}], vcc
        v_cmp_ne_u32 vcc, s{S_TAG+1}, v{G0+3}
        s_or_b64 s[{ST+2}:{ST+3}], s[{ST+2}:{ST+3}], vcc
        v_cmp_ne_u32 vcc, s{S_TAG}, v{G0+6}
        s_or_b64 s[{ST+2}:{ST+3}], s[{ST+2}:{ST+3}], vcc
        v_cmp_ne_u32 vcc, s{S_TAG+1}, v{G0+7}
        s_or_b64 s[{ST+2}:{ST+3}], s[{ST+2}:{ST+3}], vcc
        s_cmp_eq_u64 s[{ST+2}:{ST+3}], 0
        s_cbranch_scc1 {ok}
        """)
        self.spin_tail(ST, lp, 2)
        I(f"{ok}:")
        for blk, av in ((G0, TMP+2), (G0+4, TMP+3)):
            I(f"""
            v_and_b32 v{blk+3}, 0xffff0000, v{blk+1}
            v_lshlrev_b32 v{blk+2}, 16, v{blk+1}
            v_and_b32 v{blk+1}, 0xffff0000, v{blk}
            v_lshlrev_b32 v{blk}, 16, v{blk}
            """)
        lab_a = self.b.uid("L_a")
        I(f"s_cmp_lt_u32 s{S_WV}, 2\ns_cbranch_scc1 {lab_a}")
        for blk in (G0, G0+4):
            for q in range(4): I(f"v_add_f32 v{blk+q}, 1.0, v{blk+q}")
            I(f"""
            v_cvt_pk_bf16_f32 v{blk}, v{blk}, v{blk+1}
            v_cvt_pk_bf16_f32 v{blk+2}, v{blk+2}, v{blk+3}
            v_and_b32 v{blk+1}, 0xffff0000, v{blk}
            v_lshlrev_b32 v{blk}, 16, v{blk}
            v_and_b32 v{blk+3}, 0xffff0000, v{blk+2}
            v_lshlrev_b32 v{blk+2}, 16, v{blk+2}
            """)
        I(f"""
        {lab_a}:
        v_add_u32 v{TMP+2}, {L_MOD}, v{TMP+2}
        v_add_u32 v{TMP+3}, {L_MOD}, v{TMP+3}
        ds_write_b128 v{TMP+2}, {vr(G0)}
        ds_write_b128 v{TMP+3}, {vr(G0+4)}
        s_waitcnt lgkmcnt(0)
        s_barrier
        """)
        self.stamp("modgot")
        C("h1 = xhat*A + B -> bf16 fragments (overwrites XF).  all DMAs (wq, wk) were waited by vmcnt(0) above, barrier publishes them")
        va = TMP
        I(f"v_lshlrev_b32 v{va}, 4, v{V_G}\nv_add_u32 v{va}, {L_MOD}, v{va}")
        def buf(s): return (XF + 48 + 16*(s & 1)) if s < 12 else (XH + 16*(s & 1))
        def rd(s):
            B_ = buf(s)
            for hf in range(2):
                I(f"ds_read_b128 {vr(B_+4*hf)}, v{va} offset:{2560 + 128*s + 64*hf}")
                I(f"ds_read_b128 {vr(B_+8+4*hf)}, v{va} offset:{128*s + 64*hf}")
        rd(0)
        for s in range(20):
            if s + 1 < 20: rd(s+1)
            I(f"s_waitcnt lgkmcnt({4 if s + 1 < 20 else 0})")
            B_ = buf(s)
            for q in range(4):
                d = XH + 8*s + 2*q
                I(f"v_pk_fma_f32 v[{d}:{d+1}], v[{d}:{d+1}], v[{B_+2*q}:{B_+2*q+1}], v[{B_+8+2*q}:{B_+8+2*q+1}]")
            for q in range(4):
                d = XH + 8*s + 2*q
                I(f"v_cvt_pk_bf16_f32 v{XF+4*s+q}, v{d}, v{d+1}")
        labd = self.b.uid("L_dg")
        I(f"s_cmp_lg_u32 s{self.S_PROD}, 2\ns_cbranch_scc1 {labd}")
        self.MT = self.MT3
        self.mod_dma(cdst="a[250:251]")
        I(f"{labd}:")
        self.stamp("h1")

    def phase_kv(self):
        I, C = self.I, self.C
        XF, XH = self.XF, self.XH
        lab_end = self.b.uid("L_kvend"); lab_v = self.b.uid("L_v"); lab_pub = self.b.uid("L_kvpub")
        va, vb, W0, ACC0, ACC1, T = XH, XH+1, XH+4, XH+24, XH+28, XH+32
        I(f"""
        s_cmp_ge_u32 s{S_M}, 2
        s_cbranch_scc1 {lab_end}
        v_lshrrev_b32 v{va}, 2, v{V_T}
        v_lshl_add_u32 v{va}, v{V_G}, 2, v{va}
        v_mul_u32_u24 v{va}, 40, v{va}
        v_and_b32 v{vb}, 3, v{V_T}
        v_lshl_add_u32 v{va}, v{vb}, 3, v{va}
        v_add_u32 v{va}, {L_WK}, v{va}
        s_cmp_eq_u32 s{S_M}, 1
        s_cbranch_scc1 {lab_v}
        """)
        def loop(isv):
            WK = XH + 48
            def rd(s):
                o = WK + (s % 4)*8
                I(f"""
                ds_read_b64_tr_b16 v[{o}:{o+1}], v{va} offset:{1280*s}
                ds_read_b64_tr_b16 v[{o+2}:{o+3}], v{va} offset:{1280*s+640}
                ds_read_b64_tr_b16 v[{o+4}:{o+5}], v{va} offset:{1280*s+32}
                ds_read_b64_tr_b16 v[{o+6}:{o+7}], v{va} offset:{1280*s+672}
                """)
            for s in range(3): rd(s)
            for s in range(20):
                if s + 3 < 20: rd(s+3)
                I(f"s_waitcnt lgkmcnt({4*min(3, 19-s)})")
                o2 = WK + (s % 4)*8
                for tl, acc in ((0, ACC0), (1, ACC1)):
                    w = vr(o2+4*tl); x = vr(XF+4*s)
                    c = '0' if s == 0 else vr(acc)
                    if isv: I(f"v_mfma_f32_16x16x32_bf16 {vr(acc)}, {x}, {w}, {c}")
                    else:   I(f"v_mfma_f32_16x16x32_bf16 {vr(acc)}, {w}, {x}, {c}")
        C("K: D[dim 4g+r][token t]")
        loop(False)
        I(f"""
        v_mul_f32 v{T}, v{ACC0}, v{ACC0}
        v_fmac_f32 v{T}, v{ACC0+1}, v{ACC0+1}
        v_fmac_f32 v{T}, v{ACC0+2}, v{ACC0+2}
        v_fmac_f32 v{T}, v{ACC0+3}, v{ACC0+3}
        v_mul_f32 v{T+1}, v{ACC1}, v{ACC1}
        v_fmac_f32 v{T+1}, v{ACC1+1}, v{ACC1+1}
        v_fmac_f32 v{T+1}, v{ACC1+2}, v{ACC1+2}
        v_fmac_f32 v{T+1}, v{ACC1+3}, v{ACC1+3}
        v_cmp_eq_u32 vcc, 0, v{V_G}
        v_cndmask_b32 v{T+1}, 0, v{T+1}, vcc
        v_add_f32 v{T}, v{T}, v{T+1}
        """)
        self.reduce_g([T], T+2)
        for sh in (8, 4, 2, 1):
            I(f"v_mov_b32_dpp v{T+2}, v{T} row_ror:{sh} row_mask:0xf bank_mask:0xf\nv_max_f32 v{T}, v{T}, v{T+2}")
        I(f"""
        s_lshl_b32 s{ST}, s{S_WV}, 2
        s_add_u32 s{ST}, s{ST}, {L_MISC}
        v_mov_b32 v{T+2}, s{ST}
        ds_write_b32 v{T+2}, v{T}
        """)
        I(f"""
        v_cvt_pk_bf16_f32 v{T+4}, v{ACC0}, v{ACC0+1}
        v_cvt_pk_bf16_f32 v{T+5}, v{ACC0+2}, v{ACC0+3}
        v_cvt_pk_bf16_f32 v{T+6}, v{ACC1}, v{ACC1+1}
        v_cvt_pk_bf16_f32 v{T+7}, v{ACC1+2}, v{ACC1+3}
        s_lshr_b32 s{ST}, s{S_TT}, 1
        s_mul_i32 s{ST}, s{ST}, {KVT}
        s_add_u32 s{ST}, s{ST}, {KV}
        s_and_b32 s{ST+1}, s{S_TT}, 1
        s_lshl_b32 s{ST+1}, s{ST+1}, 4
        v_add_u32 v{T+8}, s{ST+1}, v{V_T}                    ; kk
        v_lshrrev_b32 v{T+9}, 1, v{V_G}
        v_lshl_add_u32 v{T+9}, v{T+9}, 5, v{T+8}             ; kk+32*(g>>1)
        v_lshlrev_b32 v{T+9}, 4, v{T+9}
        v_and_b32 v{T+10}, 1, v{V_G}
        v_lshl_add_u32 v{T+9}, v{T+10}, 3, v{T+9}
        buffer_store_dwordx2 v[{T+4}:{T+5}], v{T+9}, {sr(S_WS)}, s{ST} offen sc1
        v_lshlrev_b32 v{T+8}, 3, v{T+8}
        v_cmp_eq_u32 vcc, 0, v{V_G}
        s_and_saveexec_b64 s[{ST+4}:{ST+5}], vcc
        buffer_store_dwordx2 v[{T+6}:{T+7}], v{T+8}, {sr(S_WS)}, s{ST} offen offset:1024 sc1
        s_mov_b64 exec, s[{ST+4}:{ST+5}]
        s_branch {lab_pub}
        {lab_v}:
        """)
        C("V^T: D[token 4g+r][d = lane&15]")
        loop(True)
        I(f"""
        v_cvt_pk_bf16_f32 v{T+4}, v{ACC0}, v{ACC0+1}
        v_cvt_pk_bf16_f32 v{T+5}, v{ACC0+2}, v{ACC0+3}
        v_cvt_pk_bf16_f32 v{T+6}, v{ACC1}, v{ACC1+1}
        v_cvt_pk_bf16_f32 v{T+7}, v{ACC1+2}, v{ACC1+3}
        v_cmp_gt_u32 vcc, 4, v{V_T}
        v_cndmask_b32 v{T+6}, 0, v{T+6}, vcc
        v_cndmask_b32 v{T+7}, 0, v{T+7}, vcc
        v_cmp_eq_u32 vcc, 4, v{V_T}
        v_mov_b32 v{T+11}, 0x3f803f80
        v_cndmask_b32 v{T+6}, v{T+6}, v{T+11}, vcc
        v_cndmask_b32 v{T+7}, v{T+7}, v{T+11}, vcc
        s_lshr_b32 s{ST}, s{S_TT}, 1
        s_mul_i32 s{ST}, s{ST}, {KVT}
        s_and_b32 s{ST+1}, s{S_TT}, 1
        s_lshl_b32 s{ST+1}, s{ST+1}, 10
        s_add_u32 s{ST}, s{ST}, s{ST+1}
        s_add_u32 s{ST}, s{ST}, {KV+1280}
        v_and_b32 v{T+9}, 1, v{V_G}
        v_lshl_add_u32 v{T+9}, v{T+9}, 5, v{V_T}             ; d + 32*(g&1)
        v_lshlrev_b32 v{T+9}, 4, v{T+9}
        v_lshrrev_b32 v{T+10}, 1, v{V_G}
        v_lshl_add_u32 v{T+9}, v{T+10}, 3, v{T+9}
        buffer_store_dwordx2 v[{T+4}:{T+5}], v{T+9}, {sr(S_WS)}, s{ST} offen sc1
        buffer_store_dwordx2 v[{T+6}:{T+7}], v{T+9}, {sr(S_WS)}, s{ST} offen offset:256 sc1
        v_mov_b32 v{T}, 0
        s_lshl_b32 s{ST}, s{S_WV}, 2
        s_add_u32 s{ST}, s{ST}, {L_MISC}
        v_mov_b32 v{T+2}, s{ST}
        ds_write_b32 v{T+2}, v{T}
        {lab_pub}:
        s_waitcnt vmcnt(0) lgkmcnt(0)
        s_barrier
        """)
        lab_np = self.b.uid("L_kvnp")
        I(f"""
        s_cmp_lg_u32 s{S_WV}, 0
        s_cbranch_scc1 {lab_np}
        v_mov_b32 v{T+2}, {L_MISC}
        ds_read_b128 {vr(T+4)}, v{T+2}
        s_waitcnt lgkmcnt(0)
        v_max_f32 v{T+4}, v{T+4}, v{T+5}
        v_max_f32 v{T+6}, v{T+6}, v{T+7}
        v_max_f32 v{T+6}, v{T+4}, v{T+6}
        v_mov_b32 v{T+4}, s{S_TAG}
        v_mov_b32 v{T+5}, s{S_TAG+1}
        v_mov_b32 v{T+7}, 0
        s_lshl_b32 s{ST}, s{S_RB}, 1
        s_add_u32 s{ST}, s{ST}, s{S_M}
        s_lshl_b32 s{ST}, s{ST}, 7
        s_add_u32 s{ST}, s{ST}, {KVFLAG}
        v_mov_b32 v{T+2}, s{ST}
        s_mov_b64 exec, 1
        buffer_store_dwordx4 {vr(T+4)}, v{T+2}, {sr(S_WS)}, 0 offen sc1
        s_mov_b64 exec, -1
        {lab_np}:
        {lab_end}:
        """)
        self.stamp("kvpub")

    QA0, QA1, QB0, QB1 = 44, 48, 52, 56
    SA, SB = 60, 76
    PA, PB = 92, 100
    OA, OB = 108, 124
    KB = 140
    VB = 172
    AT = 204

    def phase_q(self):
        I, C = self.I, self.C
        XF, XH = self.XF, self.XH
        va, vb, WB, ACC = XH, XH+1, XH+4, XH+64
        I(f"""
        v_lshrrev_b32 v{va}, 2, v{V_T}
        v_lshl_add_u32 v{va}, v{V_G}, 2, v{va}
        v_mul_u32_u24 v{va}, 160, v{va}
        v_and_b32 v{vb}, 3, v{V_T}
        v_lshl_add_u32 v{va}, v{vb}, 3, v{va}
        v_add_u32 v{vb}, 51200, v{va}
        """)
        issued = []
        def rd1(s, j):
            base = va if s < 10 else vb
            o = 5120*(s % 10)
            W_ = WB + 20*(s % 3) + 4*j
            I(f"ds_read_b64_tr_b16 v[{W_}:{W_+1}], v{base} offset:{L_WQ + o + 32*j}")
            I(f"ds_read_b64_tr_b16 v[{W_+2}:{W_+3}], v{base} offset:{L_WQ + o + 32*j + 2560}")
            issued.append((s, j))
        for s in range(2):
            for j in range(5): rd1(s, j)
        for s in range(20):
            younger = 2*(len(issued) - 1 - issued.index((s, 4)))
            I(f"s_waitcnt lgkmcnt({min(15, younger)})")
            for j in range(5):
                I(f"v_mfma_f32_16x16x32_bf16 {vr(ACC+4*j)}, {vr(WB+20*(s%3)+4*j)}, {vr(XF+4*s)}, {'0' if s == 0 else vr(ACC+4*j)}")
                if s + 2 < 20: rd1(s+2, j)
        qs = (20 ** -0.5) * 1.4426950408889634
        I(f"s_mov_b32 s{ST}, {hex(f2u(qs))}")
        C("scale, pack, write wave-private [16][176B] tile")
        I(f"""
        s_mul_i32 s{ST+1}, s{S_WV}, {16*176}
        s_add_u32 s{ST+1}, s{ST+1}, {L_QS}
        v_mul_u32_u24 v{va}, 176, v{V_T}
        v_lshl_add_u32 v{va}, v{V_G}, 3, v{va}
        v_add_u32 v{va}, s{ST+1}, v{va}
        """)
        for j in range(5):
            a = ACC + 4*j
            for r in range(4): I(f"v_mul_f32 v{a+r}, s{ST}, v{a+r}")
            I(f"v_cvt_pk_bf16_f32 v{a}, v{a}, v{a+1}\nv_cvt_pk_bf16_f32 v{a+1}, v{a+2}, v{a+3}")
            I(f"ds_write_b64 v{va}, v[{a}:{a+1}] offset:{32*j}")
        AT = self.AT
        I(f"""
        v_mul_u32_u24 v{vb}, 176, v{V_T}
        v_bfe_u32 v{va}, v{V_L}, 4, 1
        v_mul_u32_u24 v{va}, 40, v{va}
        v_add_u32 v{vb}, v{vb}, v{va}
        v_add_u32 v{vb}, s{ST+1}, v{vb}                      ; token*176 + (q>>4)*40
        v_lshrrev_b32 v{va}, 5, v{V_L}
        v_lshl_add_u32 v{va}, v{va}, 4, v{vb}                ; + 16h
        s_waitcnt lgkmcnt(0)
        ds_read_b64 v[{self.QA0}:{self.QA0+1}], v{va}
        ds_read_b64 v[{self.QA0+2}:{self.QA0+3}], v{va} offset:8
        ds_read_b64 v[{self.QB0}:{self.QB0+1}], v{va} offset:80
        ds_read_b64 v[{self.QB0+2}:{self.QB0+3}], v{va} offset:88
        ds_read_b64 v[{self.QA1}:{self.QA1+1}], v{vb} offset:32
        ds_read_b64 v[{self.QB1}:{self.QB1+1}], v{vb} offset:112
        v_cmp_gt_u32 vcc, 32, v{V_L}
        s_waitcnt lgkmcnt(0)
        """)
        for r in (self.QA1, self.QA1+1, self.QB1, self.QB1+1):
            I(f"v_cndmask_b32 v{r}, 0, v{r}, vcc")
        for (t, q0, q1) in ((AT, self.QA0, self.QA1), (AT+1, self.QB0, self.QB1)):
            I(f"v_mov_b32 v{t}, 0")
            for r in (q0, q0+1, q0+2, q0+3, q1, q1+1):
                I(f"v_dot2_f32_bf16 v{t}, v{r}, v{r}, v{t}")
        for t in (AT, AT+1):
            I(f"v_mov_b32 v{AT+2}, v{t}\nv_permlane32_swap_b32 v{t}, v{AT+2}\nv_add_f32 v{t}, v{t}, v{AT+2}")
        I(f"v_max_f32 v{AT}, v{AT}, v{AT+1}")
        I("s_barrier")
        self.stamp("qproj")

    RL_OFF, RL_TR, RL_D = 4, 11, 12
    S_RKS, S_RDS, RL_TRS = (78, 82), (79, 83), (11, 40)
    S_RD2S = (74, 73)
    def rl_issue(self, rnd):
        I = self.I
        self.S_RK, self.S_RD, self.RL_TR = self.S_RKS[rnd], self.S_RDS[rnd], self.RL_TRS[rnd]
        u, A0, A1 = ST+4, ST+5, ST+6
        lk4 = self.b.uid("L_r4"); lk3 = self.b.uid("L_r3"); lA = self.b.uid("L_rA"); lend = self.b.uid("L_re")
        I(f"""
        s_lshl_b32 s{u}, s{S_W}, 2
        s_add_u32 s{u}, s{u}, s{S_WV}
        """)
        if rnd == 1:
            I(f"""
            s_mov_b32 s{self.S_RK}, 2
            s_cmp_lt_u32 s{S_M}, 6
            s_cbranch_scc1 {lend}
            s_lshl_b32 s{u}, s{S_RB}, 1
            s_add_u32 s{u}, s{u}, s{S_M}
            s_sub_u32 s{u}, s{u}, 6
            s_lshl_b32 s{u}, s{u}, 2
            s_add_u32 s{u}, s{u}, s{S_WV}
            s_add_u32 s{u}, s{u}, 1024
            s_cmp_ge_u32 s{u}, 1232
            s_cbranch_scc1 {lend}
            s_branch {lk3}
            """)
        else:
            I(f"""
            s_cmp_ge_u32 s{u}, 912
            s_cbranch_scc1 {lk3}
            s_cmp_ge_u32 s{u}, 480
            s_cbranch_scc1 {lk4}
            s_mul_i32 s{A0}, s{u}, 410
            s_lshr_b32 s{A0}, s{A0}, 16                 ; p = u/160
            s_mul_i32 s{A1}, s{A0}, 160
            s_sub_u32 s{u}, s{u}, s{A1}                 ; r
            s_cmp_eq_u32 s{A0}, 1
            s_cselect_b32 s{S_A}, s{P_W1}, s{P_WO}
            s_cselect_b32 s{S_A+1}, s{P_W1+1}, s{P_WO+1}
            s_cmp_eq_u32 s{A0}, 2
            s_cselect_b32 s{S_A}, s{P_W2}, s{S_A}
            s_cselect_b32 s{S_A+1}, s{P_W2+1}, s{S_A+1}
            s_mov_b32 s{S_A+2}, {640*1280}
            s_mul_i32 s{A0}, s{A0}, 100                 ; p*100
            s_mul_i32 s{A1}, s{u}, 3277
            s_lshr_b32 s{A1}, s{A1}, 16                 ; m = r/20
            s_mul_i32 s{ST+7}, s{A1}, 20
            s_sub_u32 s{u}, s{u}, s{ST+7}               ; kb
            s_mul_i32 s{ST+7}, s{u}, 5
            s_add_u32 s{A0}, s{A0}, s{ST+7}
            s_lshl_b32 s{A0}, s{A0}, 10
            s_mul_i32 s{ST+7}, s{A1}, {WSA_M}
            s_add_u32 s{A0}, s{A0}, s{ST+7}
            s_add_u32 s{self.S_RD}, s{A0}, {WSA}
            s_branch {lA}
            {lk4}:
            s_sub_u32 s{u}, s{u}, 480
            s_mov_b32 s{S_A}, s{P_W4}
            s_mov_b32 s{S_A+1}, s{P_W4+1}
            s_mov_b32 s{S_A+2}, {1728*1280}
            s_mul_i32 s{A1}, s{u}, 1214
            s_lshr_b32 s{A1}, s{A1}, 16                 ; m = r/54
            s_mul_i32 s{ST+7}, s{A1}, 54
            s_sub_u32 s{u}, s{u}, s{ST+7}               ; kb
            s_mul_i32 s{A0}, s{u}, 5120
            s_mul_i32 s{ST+7}, s{A1}, {W4S_M}
            s_add_u32 s{A0}, s{A0}, s{ST+7}
            s_add_u32 s{self.S_RD}, s{A0}, {W4S}
            {lA}:
            s_mov_b32 s{S_A+3}, 0x20000
            s_mov_b32 s{self.S_RK}, 0
            s_mul_i32 s{u}, s{u}, {32*1280}
            s_mul_i32 s{A1}, s{A1}, 160
            s_add_u32 s{u}, s{u}, s{A1}
            s_mul_i32 s{A0}, s{S_WV}, 14336
            """)
            O = self.RL_OFF
            for q in range(5):
                I(f"""
                v_add_u32 v{O+5}, {64*q}, v{V_L}
                v_mul_u32_u24 v{O+6}, 6554, v{O+5}
                v_lshrrev_b32 v{O+6}, 16, v{O+6}
                v_mul_u32_u24 v{O+q}, {1280-160}, v{O+6}
                v_lshl_add_u32 v{O+q}, v{O+5}, 4, v{O+q}
                """)
            for q in range(5):
                I(f"s_mov_b32 m0, s{A0}\ns_add_u32 s{A0}, s{A0}, 1024\nbuffer_load_dwordx4 v{O+q}, {sr(S_A)}, s{u} offen lds")
            I(f"""
            v_lshrrev_b32 v{self.RL_TR}, 2, v{V_T}
            v_lshl_add_u32 v{self.RL_TR}, v{V_G}, 2, v{self.RL_TR}
            v_mul_u32_u24 v{self.RL_TR}, 160, v{self.RL_TR}
            s_branch {lend}_tr
            """)
        I(f"""
        {lk3}:
        s_sub_u32 s{u}, s{u}, 912
        s_mov_b32 s{S_A}, s{P_W3}
        s_mov_b32 s{S_A+1}, s{P_W3+1}
        s_mov_b32 s{S_A+2}, {640*3456}
        s_mov_b32 s{S_A+3}, 0x20000
        s_mov_b32 s{self.S_RK}, 1
        s_mul_i32 s{A1}, s{u}, 3277
        s_lshr_b32 s{A1}, s{A1}, 16                 ; m16 = r/20
        s_mul_i32 s{ST+7}, s{A1}, 20
        s_sub_u32 s{u}, s{u}, s{ST+7}               ; kb
        s_mul_i32 s{ST+7}, s{A1}, {W3S_M}
        s_add_u32 s{ST+7}, s{ST+7}, {W3S}
        s_mul_i32 s{A0}, s{u}, {4096 if self.w3split else 7168}
        s_add_u32 s{self.S_RD}, s{A0}, s{ST+7}               ; tiles 0..3
        s_mul_i32 s{A0}, s{u}, {3072 if self.w3split else 7168}
        s_add_u32 s{A0}, s{A0}, s{ST+7}
        s_add_u32 s{self.S_RD2S[rnd]}, s{A0}, {80*1024 if self.w3split else 4096}      ; tiles 4..6
        s_mul_i32 s{A0}, s{A1}, 7
        s_sub_u32 s{ST+7}, s{A1}, 12
        s_max_i32 s{ST+7}, s{ST+7}, 0
        s_sub_u32 s{A0}, s{A0}, s{ST+7}
        s_lshl_b32 s{A0}, s{A0}, 5
        s_mul_i32 s{u}, s{u}, {32*3456}
        s_add_u32 s{u}, s{u}, s{A0}
        s_mul_i32 s{A0}, s{S_WV}, 14336
        s_add_u32 s{A0}, s{A0}, {7168*rnd}
        """)
        O = self.RL_OFF
        for q in range(7):
            I(f"""
            v_add_u32 v{self.RL_D}, {64*q}, v{V_L}
            v_mul_u32_u24 v{self.RL_D+1}, 4682, v{self.RL_D}
            v_lshrrev_b32 v{self.RL_D+1}, 16, v{self.RL_D+1}
            v_mul_u32_u24 v{O+q}, {3456-224}, v{self.RL_D+1}
            v_lshl_add_u32 v{O+q}, v{self.RL_D}, 4, v{O+q}
            """)
        for q in range(7):
            I(f"s_mov_b32 m0, s{A0}\ns_add_u32 s{A0}, s{A0}, 1024\nbuffer_load_dwordx4 v{O+q}, {sr(S_A)}, s{u} offen lds")
        I(f"""
        v_lshrrev_b32 v{self.RL_TR}, 2, v{V_T}
        v_lshl_add_u32 v{self.RL_TR}, v{V_G}, 2, v{self.RL_TR}
        v_mul_u32_u24 v{self.RL_TR}, 224, v{self.RL_TR}
        {lend}_tr:
        v_and_b32 v{self.RL_D}, 3, v{V_T}
        v_lshl_add_u32 v{self.RL_TR}, v{self.RL_D}, 3, v{self.RL_TR}
        s_mul_i32 s{A0}, s{S_WV}, 14336
        s_add_u32 s{A0}, s{A0}, {7168*rnd}
        v_add_u32 v{self.RL_TR}, s{A0}, v{self.RL_TR}
        {lend}:
        """)

    def rl_store(self, rnd):
        I = self.I
        self.S_RK, self.S_RD, self.RL_TR = self.S_RKS[rnd], self.S_RDS[rnd], self.RL_TRS[rnd]
        l7 = self.b.uid("L_rs7"); lend = self.b.uid("L_rse")
        D = self.RL_D
        I(f"s_cmp_eq_u32 s{self.S_RK}, 2\ns_cbranch_scc1 {lend}\ns_cmp_eq_u32 s{self.S_RK}, 1\ns_cbranch_scc1 {l7}")
        for (nt, rowb, last) in ((5, 160, False), (7, 224, True)):
            if last: I(f"{l7}:")
            for j in range(nt):
                I(f"ds_read_b64_tr_b16 v[{D+4*j}:{D+4*j+1}], v{self.RL_TR} offset:{32*j}")
                I(f"ds_read_b64_tr_b16 v[{D+4*j+2}:{D+4*j+3}], v{self.RL_TR} offset:{32*j+16*rowb}")
            if nt == 5: I(f"s_add_u32 s{ST+4}, s{self.S_RD}, 4096")
            else: I(f"s_mov_b32 s{ST+4}, s{self.S_RD2S[rnd]}")
            I("s_waitcnt lgkmcnt(0)")
            for j in range(nt):
                I(f"buffer_store_dwordx4 {vr(D+4*j)}, v{V_L16}, {sr(S_WS)}, s{self.S_RD if j < 4 else ST+4} offen offset:{1024*(j%4)} sc1")
            if not last: I(f"s_branch {lend}")
        I(f"{lend}:")

    def rl_flag(self):
        I = self.I
        lab = self.b.uid("L_rlp")
        I(f"""
        s_barrier
        s_cmp_lg_u32 s{S_WV}, 0
        s_cbranch_scc1 {lab}
        v_mov_b32 v252, s{S_TAG}
        v_mov_b32 v253, s{S_TAG+1}
        s_lshl_b32 s{ST+4}, s{S_W}, 7
        s_add_u32 s{ST+4}, s{ST+4}, {RLFLAG}
        v_mov_b32 v251, s{ST+4}
        s_mov_b64 exec, 1
        buffer_store_dwordx2 v[252:253], v251, {sr(S_WS)}, 0 offen sc1
        s_mov_b64 exec, -1
        {lab}:
        """)

    def phase_kvwait(self):
        I = self.I
        AT = self.AT
        lp = self.b.uid("L_kvw"); ok = self.b.uid("L_kvok")
        I(f"""
        v_lshlrev_b32 v{AT+3}, 7, v{V_L}
        s_mov_b32 s{ST}, {TIMEOUT}
        s_mov_b32 s{ST+1}, {KVFLAG}
        {lp}:
        buffer_load_dwordx4 {vr(AT+4)}, v{AT+3}, {sr(S_WS)}, s{ST+1} offen sc1
        """)
        I(f"""
        s_waitcnt vmcnt(0)
        v_cmp_ne_u32 vcc, s{S_TAG}, v{AT+4}
        s_mov_b64 s[{ST+2}:{ST+3}], vcc
        v_cmp_ne_u32 vcc, s{S_TAG+1}, v{AT+5}
        s_or_b64 s[{ST+2}:{ST+3}], s[{ST+2}:{ST+3}], vcc
        s_cmp_eq_u64 s[{ST+2}:{ST+3}], 0
        s_cbranch_scc1 {ok}
        """)
        self.spin_tail(ST, lp, 3)
        I(f"{ok}:")
        self.reduce_g([AT+6], AT+2, op="v_max_f32")
        for sh in (8, 4, 2, 1):
            I(f"v_mov_b32_dpp v{AT+2}, v{AT+6} row_ror:{sh} row_mask:0xf bank_mask:0xf\nv_max_f32 v{AT+6}, v{AT+6}, v{AT+2}")
        I(f"v_mov_b32 v{AT+1}, v{AT+6}")
        self.xid_publish()
        labg = self.b.uid("L_dg")
        I(f"s_cmp_lg_u32 s{self.S_PROD}, 2\ns_cbranch_scc1 {labg}")
        I(f"v_accvgpr_read_b32 v248, a250\nv_accvgpr_read_b32 v249, a251")
        self.MT = self.MT2
        self.mod_gemv(60, 63, 63, None)
        I("s_barrier")
        I(f"{labg}:")
        self.stamp("kvwait")

    def kv_loads(self, i, sK, sV):
        raise NotImplementedError

    def phase_attn(self, force_slow=False):
        I, C = self.I, self.C
        QA0, QA1, QB0, QB1, SA, SB, PA, PB, OA, OB, KB, VB, AT = (self.QA0, self.QA1, self.QB0, self.QB1, self.SA, self.SB,
            self.PA, self.PB, self.OA, self.OB, self.KB, self.VB, self.AT)
        sK, sV, cnt = 85, 86, 87
        vK1 = AT+2
        lab_slow = self.b.uid("L_slow"); lab_done = self.b.uid("L_adone")
        C("bound check: |q|^2 * kmax2 <= T^2 (log2 units) else true-max path")
        Tlim = 64.0
        I(f"""
        v_mul_f32 v{AT}, v{AT}, v{AT+1}
        v_and_b32 v{vK1}, 31, v{V_L}
        v_lshlrev_b32 v{vK1}, 3, v{vK1}
        s_mov_b32 s{ST+3}, {hex(f2u(Tlim*Tlim if not force_slow else -1.0))}
        v_cmp_nge_f32 vcc, s{ST+3}, v{AT}
        """)
        I(f"s_cmp_lg_u64 vcc, 0\ns_cselect_b32 s{self.S_SLOW}, 1, 0")
        for r in range(16): I(f"v_mov_b32 v{OA+r}, 0\nv_mov_b32 v{OB+r}, 0")
        KVL = self.L_KV
        vK16, vK8 = 200, 201
        KR, VR = 16, 48
        def kreg(buf): return KR + 8*buf
        def vreg(buf): return VR + 8*buf
        def rdK(t):
            k = kreg(t % 4); o = (t % 16)*KVT
            I(f"ds_read_b128 {ar(k)}, v{vK16} offset:{o}")
            I(f"ds_read_b64 a[{k+4}:{k+5}], v{vK8} offset:{o+1024}")
        def rdV(t, which=(0, 1)):
            v = vreg(t % 4); o = (t % 16)*KVT
            if 0 in which: I(f"ds_read_b128 {ar(v)}, v{vK16} offset:{o+1280}")
            if 1 in which: I(f"ds_read_b128 {ar(v+4)}, v{vK16} offset:{o+2304}")
        I(f"v_add_u32 v{vK16}, {KVL}, v{V_L16}\nv_add_u32 v{vK8}, {KVL}, v{vK1}\nv_mov_b32 v{self.V_BG}, v{V_L16}")
        for g in range(3): self.kv_dma(g)
        for r in range(16): I(f"v_mov_b32 v{SB+r}, 0xff800000")
        for r in range(8): I(f"v_mov_b32 v{PA+r}, 0")
        for r in range(8): I(f"v_accvgpr_write_b32 a{vreg(3)+r}, 0")
        self.rl_issue(0)
        I("s_waitcnt vmcnt(9)\ns_barrier")
        rdK(0); rdK(1); rdV(0)
        I(f"s_mov_b32 s{cnt}, 16")
        lp = self.b.uid("L_att"); lhk = [self.b.uid("L_hook") for _ in range(5)]; lback = [self.b.uid("L_back") for _ in range(4)]
        hooks = self.attn_hooks()
        mask = sum(1 << k for k in hooks)
        def exps(S, P, q):
            a = S + 4*q
            I(f"v_exp_f32 v{a}, v{a}\nv_exp_f32 v{a+1}, v{a+1}\nv_exp_f32 v{a+2}, v{a+2}\nv_exp_f32 v{a+3}, v{a+3}")
            I(f"v_cvt_pk_bf16_f32 v{P+2*q}, v{a}, v{a+1}\nv_cvt_pk_bf16_f32 v{P+2*q+1}, v{a+2}, v{a+3}")
        M16 = "v_mfma_f32_32x32x16_bf16"; M8 = "v_mfma_f32_32x32x8_bf16"
        SKS, SKL, SBM = 86, 85, 76
        def copy_slot(q, e):
            n = 2*(q & 1) + e
            if self.x_nokv: return
            if q < 2:
                if n == 3: I("s_mov_b64 exec, 0xffff")
                I(f"buffer_load_dwordx4 v{V_L16}, {sr(S_WS)}, s{SKS} offen offset:{1024*n} lds")
                if n == 3: I(f"s_mov_b64 exec, -1\ns_mov_b32 m0, s{SBM}")
            elif not self.noslot:
                I(f"buffer_load_dwordx4 v{self.V_BG}, {sr(S_WS)}, s{self.S_DS} offen offset:{1024*n} lds")
        def header(part):
            I("s_waitcnt vmcnt(12) lgkmcnt(4)")
            if not self.x_nobar: I("s_barrier")
            I(f"""
            s_bitcmp1_b32 s84, s{cnt}
            s_cbranch_scc1 {lhk[part]}
            {lback[part]}:
            s_add_u32 s{SKS}, s{SKS}, {4*KVT}
            s_add_u32 m0, s{SKL}, {((part + 3) % 4)*4*KVT}
            s_add_u32 s{self.S_DS}, s{self.S_DS}, s{self.S_INC}
            s_add_u32 s{SBM}, s{SBM}, s{self.S_INC}
            """)
        def body(i, qk=True, last=False):
            kb = kreg(i % 4); vb = vreg((i+3) % 4)
            k2 = kreg((i+2) % 4); ok = ((i+2) % 16)*KVT
            v1 = vreg((i+1) % 4); ov = ((i+1) % 16)*KVT
            if qk:
                I(f"{M16} {vr(SA,16)}, {ar(kb)}, {vr(QA0)}, 0")
                if not self.x_nords: I(f"ds_read_b128 {ar(k2)}, v{vK16} offset:{ok}")
            exps(SB, PB, 0)
            if qk:
                I(f"{M8} {vr(SA,16)}, a[{kb+4}:{kb+5}], v[{QA1}:{QA1+1}], {vr(SA,16)}")
            exps(SB, PB, 1)
            I(f"{M16} {vr(OA,16)}, {ar(vb)}, {vr(PA)}, {vr(OA,16)}")
            if qk and not self.x_nords: I(f"ds_read_b64 a[{k2+4}:{k2+5}], v{vK8} offset:{ok+1024}")
            exps(SB, PB, 2)
            I(f"{M16} {vr(OA,16)}, {ar(vb+4)}, {vr(PA+4)}, {vr(OA,16)}")
            if qk: copy_slot(i % 4, 0)
            exps(SB, PB, 3)
            if qk:
                I(f"{M16} {vr(SB,16)}, {ar(kb)}, {vr(QB0)}, 0")
                if not self.x_nords: I(f"ds_read_b128 {ar(v1)}, v{vK16} offset:{ov+1280}")
                exps(SA, PA, 0)
                I(f"{M8} {vr(SB,16)}, a[{kb+4}:{kb+5}], v[{QB1}:{QB1+1}], {vr(SB,16)}")
                copy_slot(i % 4, 1)
                exps(SA, PA, 1)
            I(f"{M16} {vr(OB,16)}, {ar(vb)}, {vr(PB)}, {vr(OB,16)}")
            if qk:
                if not self.x_nords: I(f"ds_read_b128 {ar(v1+4)}, v{vK16} offset:{ov+2304}")
                exps(SA, PA, 2)
            I(f"{M16} {vr(OB,16)}, {ar(vb+4)}, {vr(PB+4)}, {vr(OB,16)}")
            if qk:
                if i % 4 == 3:
                    I(f"s_sub_u32 s{cnt}, s{cnt}, 1")
                    header((i // 4 + 1) % 4)
                else:
                    I("s_waitcnt lgkmcnt(4)")
                exps(SA, PA, 3)
        I(f"""
        s_mul_i32 s{SKL}, s{S_WV}, {KVT}
        s_add_u32 s{SKS}, s{SKL}, {KV + 8*KVT}
        s_add_u32 s{SKL}, s{SKL}, {KVL}
        s_mov_b32 s{SBM}, {self.L_DUMMY}
        s_mov_b32 s{self.S_DS}, {KV}
        s_mov_b32 s{self.S_INC}, 0
        s_mov_b32 s84, {hex(mask)}
        """)
        I("s_waitcnt lgkmcnt(0)")
        lentry = self.b.uid("L_ent")
        I(f"""
        s_branch {lhk[4]}
        {lentry}:
        s_add_u32 s{SKS}, s{SKS}, {4*KVT}
        s_add_u32 m0, s{SKL}, {3*4*KVT}
        """)
        self.stamp("loop_in")
        I(f"{lp}:")
        for i in range(16): body(i)
        I(f"s_cmp_lg_u32 s{cnt}, 0\ns_cbranch_scc1 {lp}")
        self.stamp("loop_out")
        C("drain: iteration 64 (V_63)")
        I("s_waitcnt lgkmcnt(0)")
        body(0, qk=False)
        I(f"s_cmp_lg_u32 s{self.S_SLOW}, 0\ns_cbranch_scc1 {lab_slow}\ns_branch {lab_done}")
        I(f"{lhk[4]}:")
        self.hook_body(hooks, 16)
        I(f"s_branch {lentry}")
        for part in range(4):
            I(f"{lhk[part]}:")
            ks = [k for k in sorted(hooks, reverse=True) if (16 - k) % 4 == part and k != 16]
            for n_, k in enumerate(ks):
                nx = None
                if n_ < len(ks) - 1:
                    nx = self.b.uid("L_hk")
                    I(f"s_cmp_lg_u32 s{cnt}, {k}\ns_cbranch_scc1 {nx}")
                self.hook_body(hooks, k)
                I(f"s_branch {lback[part]}")
                if nx: I(f"{nx}:")
            if not ks: I(f"s_branch {lback[part]}")
        I(f"{lab_slow}:")
        for r in range(16): I(f"v_mov_b32 v{OA+r}, 0\nv_mov_b32 v{OB+r}, 0")
        MA_, MB_, T0 = AT+4, AT+5, AT+6
        I(f"v_mov_b32 v{MA_}, 0xff7fffff\nv_mov_b32 v{MB_}, 0xff7fffff")
        I(f"s_mov_b32 s{sK}, {KV}\ns_mov_b32 s{cnt}, 64")
        lp2 = self.b.uid("L_atts")
        I(f"{lp2}:")
        k0, v0 = kreg(0), vreg(0)
        I(f"""
        buffer_load_dwordx4 {ar(k0)}, v{V_L16}, {sr(S_WS)}, s{sK} offen
        buffer_load_dwordx2 a[{k0+4}:{k0+5}], v{vK1}, {sr(S_WS)}, s{sK} offen offset:1024
        buffer_load_dwordx4 {ar(v0)}, v{V_L16}, {sr(S_WS)}, s{sK} offen offset:1280
        buffer_load_dwordx4 {ar(v0+4)}, v{V_L16}, {sr(S_WS)}, s{sK} offen offset:2304
        s_add_u32 s{sK}, s{sK}, {KVT}
        s_waitcnt vmcnt(0)
        """)
        for (S, P, O, Q0, Q1, Mx) in ((SA, PA, OA, QA0, QA1, MA_), (SB, PB, OB, QB0, QB1, MB_)):
            I(f"{M16} {vr(S,16)}, {ar(kreg(0))}, {vr(Q0)}, 0")
            I(f"{M8} {vr(S,16)}, a[{kreg(0)+4}:{kreg(0)+5}], v[{Q1}:{Q1+1}], {vr(S,16)}")
            I(f"v_max3_f32 v{T0}, v{S}, v{S+1}, v{S+2}")
            for r in range(3, 15, 2): I(f"v_max3_f32 v{T0}, v{T0}, v{S+r}, v{S+r+1}")
            I(f"v_max_f32 v{T0}, v{T0}, v{S+15}")
            I(f"v_mov_b32 v{T0+1}, v{T0}\nv_permlane32_swap_b32 v{T0}, v{T0+1}\nv_max_f32 v{T0}, v{T0}, v{T0+1}")
            I(f"v_max_f32 v{T0}, v{T0}, v{Mx}")
            I(f"v_sub_f32 v{T0+1}, v{Mx}, v{T0}\nv_exp_f32 v{T0+1}, v{T0+1}\nv_mov_b32 v{Mx}, v{T0}")
            for r in range(16): I(f"v_mul_f32 v{O+r}, v{O+r}, v{T0+1}")
            for r in range(16): I(f"v_sub_f32 v{S+r}, v{S+r}, v{T0}")
            for q in range(4): exps(S, P, q)
            I(f"{M16} {vr(O,16)}, {ar(vreg(0))}, {vr(P)}, {vr(O,16)}")
            I(f"{M16} {vr(O,16)}, {ar(vreg(0)+4)}, {vr(P+4)}, {vr(O,16)}")
        I(f"s_sub_u32 s{cnt}, s{cnt}, 1\ns_cmp_lg_u32 s{cnt}, 0\ns_cbranch_scc1 {lp2}")
        I(f"{lab_done}:")
        I("s_waitcnt vmcnt(0)\ns_barrier")
        self.stamp("attn")
        self.mod_fetch()
        self.ring_state_after_attn()
        C("normalise and store O in the B-fragment layout of the wo GEMM")
        T = AT
        PK = SA
        I(f"""
        v_lshlrev_b32 v{self.V_L8}, 3, v{V_L}
        s_mul_i32 s{ST}, s{S_WV}, 3072
        s_add_u32 s{ST}, s{ST}, {144*1024}
        v_mul_u32_u24 v{T}, 176, v{V_T}
        v_add_u32 v{T}, s{ST}, v{T}
        v_lshl_add_u32 v{T+1}, v{V_G}, 3, v{T}
        v_bfe_u32 v{T+4}, v{V_L}, 4, 1
        v_mul_u32_u24 v{T+4}, 40, v{T+4}
        v_add_u32 v{T}, v{T}, v{T+4}
        v_lshrrev_b32 v{T+4}, 5, v{V_L}
        v_lshl_add_u32 v{T}, v{T+4}, 3, v{T}
        """)
        for (O, u) in ((OA, 0), (OB, 1)):
            I(f"v_mov_b32 v{T+2}, v{O+8}\nv_mov_b32 v{T+3}, v{O+8}\nv_permlane32_swap_b32 v{T+2}, v{T+3}")
            I(f"v_rcp_f32 v{T+3}, v{T+3}")
            for run in range(3):
                a = O + 4*run
                for r in range(4): I(f"v_mul_f32 v{a+r}, v{a+r}, v{T+3}")
                I(f"v_cvt_pk_bf16_f32 v{a}, v{a}, v{a+1}\nv_cvt_pk_bf16_f32 v{a+1}, v{a+2}, v{a+3}")
                if run == 2: I(f"s_mov_b32 exec_hi, 0")
                I(f"ds_write_b64 v{T}, v[{a}:{a+1}] offset:{80*u + 16*run}")
                if run == 2: I(f"s_mov_b32 exec_hi, -1")
        I("s_waitcnt lgkmcnt(0)")
        for j in range(5):
            I(f"ds_read_b64 v[{PK+2*j}:{PK+2*j+1}], v{T+1} offset:{32*j}")
        I(f"s_mul_i32 s{self.S_T5}, s{S_M}, 5")
        self.tile_base(ST+4, S_TT, 20, OF)
        I("s_waitcnt lgkmcnt(0)")
        self.store_frag(PK, 5, ST+4, self.S_T5)
        self.publish(PH_O); self.vm_drained()
        I("s_barrier")
        self.refill(); self.drip(4)
        self.stamp("opub")

    def dual(self, fn):
        I = self.I
        ls = self.b.uid("L_sl"); lj = self.b.uid("L_sj")
        I(f"s_cmp_eq_u32 s{S_FAST}, 0\ns_cbranch_scc1 {ls}")
        fn("")
        I(f"s_branch {lj}\n{ls}:")
        fn(" sc1")
        I(f"{lj}:")

    def xid_publish(self):
        I = self.I
        lab = self.b.uid("L_xp")
        I(f"""
        s_cmp_lg_u32 s{S_WV}, 0
        s_cbranch_scc1 {lab}
        s_getreg_b32 s{ST}, hwreg(HW_REG_XCC_ID)
        s_and_b32 s{ST}, s{ST}, 15
        v_mov_b32 v252, s{ST}
        v_mov_b32 v253, 0
        v_mov_b32 v254, s{S_TAG}
        v_mov_b32 v255, s{S_TAG+1}
        s_lshl_b32 s{ST}, s{S_RB}, 7
        s_lshl_b32 s{ST+1}, s{S_M}, 4
        s_add_u32 s{ST}, s{ST}, s{ST+1}
        s_add_u32 s{ST}, s{ST}, {XIDG}
        v_mov_b32 v251, s{ST}
        s_mov_b64 exec, 1
        buffer_store_dwordx4 v[252:255], v251, {sr(S_WS)}, 0 offen sc1
        s_mov_b64 exec, -1
        {lab}:
        """)

    XV = 240
    def xid_issue(self):
        I = self.I
        I(f"""
        s_and_b32 s{ST+5}, s{S_RB}, 28
        s_lshl_b32 s{ST+5}, s{ST+5}, 7
        s_add_u32 s{ST+5}, s{ST+5}, {XIDG}
        v_and_b32 v251, 31, v{V_L}
        v_lshlrev_b32 v251, 4, v251
        buffer_load_dwordx4 {vr(self.XV)}, v251, {sr(S_WS)}, s{ST+5} offen sc1
        """)

    def xid_eval(self):
        I = self.I
        X = self.XV
        lp = self.b.uid("L_xc"); ok = self.b.uid("L_xcok")
        I(f"""
        s_mov_b32 s{ST+4}, {TIMEOUT}
        {lp}:
        v_cmp_ne_u32 vcc, s{S_TAG}, v{X+2}
        s_mov_b64 s[{ST+6}:{ST+7}], vcc
        v_cmp_ne_u32 vcc, s{S_TAG+1}, v{X+3}
        s_or_b64 s[{ST+6}:{ST+7}], s[{ST+6}:{ST+7}], vcc
        s_cmp_eq_u64 s[{ST+6}:{ST+7}], 0
        s_cbranch_scc1 {ok}
        """)
        self.xid_issue()
        I("s_waitcnt vmcnt(0)")
        self.spin_tail(ST+4, lp, 14)
        I(f"""
        {ok}:
        s_getreg_b32 s{ST+4}, hwreg(HW_REG_XCC_ID)
        s_and_b32 s{ST+4}, s{ST+4}, 15
        v_cmp_ne_u32 vcc, s{ST+4}, v{X}
        s_cmp_eq_u64 vcc, 0
        s_cselect_b32 s{S_FAST}, {0 if self.force_global else 1}, 0
        """)

    def rl_poll_issue(self):
        I = self.I
        lab = self.b.uid("L_rpi")
        T = 232
        I(f"s_cmp_lg_u32 s{S_WV}, 0\ns_cbranch_scc1 {lab}\nv_lshlrev_b32 v250, 7, v{V_L}")
        for i in range(4):
            I(f"s_mov_b32 s{ST+5}, {RLFLAG + i*8192}\nbuffer_load_dwordx2 v[{T+2*i}:{T+1+2*i}], v250, {sr(S_WS)}, s{ST+5} offen sc1")
        I(f"{lab}:")

    def rl_poll_eval(self):
        I = self.I
        lab = self.b.uid("L_rw"); lp = self.b.uid("L_rwp"); ok = self.b.uid("L_rwok")
        T = 232
        I(f"s_cmp_lg_u32 s{S_WV}, 0\ns_cbranch_scc1 {lab}\ns_mov_b32 s{ST+4}, {TIMEOUT}\n{lp}:\ns_mov_b64 s[{ST+6}:{ST+7}], 0")
        for i in range(4):
            I(f"""
            v_cmp_ne_u32 vcc, s{S_TAG}, v{T+2*i}
            s_or_b64 s[{ST+6}:{ST+7}], s[{ST+6}:{ST+7}], vcc
            v_cmp_ne_u32 vcc, s{S_TAG+1}, v{T+1+2*i}
            s_or_b64 s[{ST+6}:{ST+7}], s[{ST+6}:{ST+7}], vcc
            """)
        I(f"s_cmp_eq_u64 s[{ST+6}:{ST+7}], 0\ns_cbranch_scc1 {ok}")
        self.rl_poll_issue()
        I("s_waitcnt vmcnt(0)")
        self.spin_tail(ST+4, lp, 4)
        I(f"{ok}:\n{lab}:\ns_barrier")

    def publish(self, ph, both=False, vmn=0, line_sreg=None):
        I = self.I
        ln = S_TT if line_sreg is None else line_sreg
        I(f"""
        v_mov_b32 v254, s{S_TAG}
        v_mov_b32 v255, s{S_TAG+1}
        s_lshl_b32 s{ST}, s{ln}, 7
        s_lshl_b32 s{ST+1}, s{S_M}, 3
        s_add_u32 s{ST}, s{ST}, s{ST+1}
        s_add_u32 s{ST}, s{ST}, {CFLAG + ph*CF_PH}
        v_mov_b32 v253, s{ST}
        s_mov_b32 s{ST+1}, {CF_LOC}
        s_waitcnt vmcnt({vmn})
        s_mov_b64 exec, 1
        """)
        def st(f):
            if f == "":
                I(f"buffer_store_dwordx2 v[254:255], v253, {sr(S_WS)}, s{ST+1} offen")
                if both: I(f"buffer_store_dwordx2 v[254:255], v253, {sr(S_WS)}, 0 offen sc1")
            else:
                I(f"buffer_store_dwordx2 v[254:255], v253, {sr(S_WS)}, 0 offen sc1")
        self.dual(st)
        I(f"s_mov_b64 exec, -1")

    def publish_drip(self, ph, both=False, line_sreg=None):
        if self.detail == 2: self.stamp(f"e_sto{ph}")
        self.publish(ph, both=both, vmn=0, line_sreg=line_sreg)
        self.vmq = []
        self.drip(self.pub_after)

    def wait_flags(self, ph, lines, code, work=None):
        I = self.I
        lp = self.b.uid("L_wfp"); ok = self.b.uid("L_wfok")
        I(f"v_mov_b32 v251, s{lines[0]}")
        if len(lines) > 1:
            I(f"v_lshrrev_b32 v250, 3, v{V_L}\nv_and_b32 v250, 3, v250")
            for i, r in enumerate(lines[1:], 1):
                I(f"v_cmp_eq_u32 vcc, {i}, v250\nv_mov_b32 v252, s{r}\nv_cndmask_b32 v251, v251, v252, vcc")
        I(f"""
        v_lshrrev_b32 v250, 4, v251
        s_lshr_b32 s{ST}, s{S_RB}, 2
        v_cmp_eq_u32 vcc, s{ST}, v250
        s_mul_i32 s{ST}, s{S_FAST}, {CF_LOC}
        v_mov_b32 v252, s{ST}
        v_cndmask_b32 v250, 0, v252, vcc
        v_lshl_add_u32 v251, v251, 7, v250
        v_and_b32 v252, 7, v{V_L}
        v_lshl_add_u32 v251, v252, 3, v251
        s_mov_b32 s{ST+1}, {CFLAG + ph*CF_PH}
        s_mov_b32 s{ST}, {TIMEOUT}
        buffer_load_dwordx2 v[254:255], v251, {sr(S_WS)}, s{ST+1} offen sc1
        """)
        n0 = len(self.vmq)
        self.drip(self.shadow_f)
        nsh = len(self.vmq) - n0
        if work: work()
        ok2 = self.b.uid("L_wfo2")
        def check(lo, hi, tgt=None):
            tgt = tgt or ok2
            I(f"""
            v_cmp_ne_u32 vcc, s{S_TAG}, v{lo}
            s_mov_b64 s[{ST+2}:{ST+3}], vcc
            v_cmp_ne_u32 vcc, s{S_TAG+1}, v{hi}
            s_or_b64 s[{ST+2}:{ST+3}], s[{ST+2}:{ST+3}], vcc
            s_cmp_eq_u64 s[{ST+2}:{ST+3}], 0
            s_cbranch_scc1 {tgt}
            """)
        I(f"s_waitcnt vmcnt({nsh})")
        check(254, 255, ok)
        I(f"""
        buffer_load_dwordx2 v[254:255], v251, {sr(S_WS)}, s{ST+1} offen sc1
        {lp}:
        s_sleep 2
        buffer_load_dwordx2 v[252:253], v251, {sr(S_WS)}, s{ST+1} offen sc1
        s_waitcnt vmcnt(1)
        """)
        check(254, 255)
        I(f"""
        s_sleep 2
        buffer_load_dwordx2 v[254:255], v251, {sr(S_WS)}, s{ST+1} offen sc1
        s_waitcnt vmcnt(1)
        """)
        check(252, 253)
        self.spin_tail(ST, lp, code)
        I(f"{ok2}:\n{ok}:")
        self.vmq = self.vmq[len(self.vmq)-nsh:] if nsh else []

    X2, H = 4, 24
    ACC = 44
    MS_GA = 64
    WB = 100
    MS_A2, MS_SB = 160, 180
    GT = 200
    RING = 160
    F_WO, F_W1, F_W2, F_W3, F_W4 = 0, 100, 200, 304, 448
    NUNITS = 45
    S_T5 = 29
    S_SRC = 30
    S_WA, S_W3 , S_W4 = 90, 91, 92
    S_LW = 93
    S_DM, S_DS, S_AO, S_AO2 = 94, 95, 88, 89

    def vm_issue(self, tag): self.vmq.append(tag)
    def vm_wait(self, tag):
        if tag not in self.vmq: return
        i = len(self.vmq) - 1 - self.vmq[::-1].index(tag)
        n = len(self.vmq) - 1 - i
        self.I(f"s_waitcnt vmcnt({min(n, 63)})")
        self.vmq = self.vmq[i+1:]
    def vm_drained(self): self.vmq = []

    def ring_regs(self):
        I = self.I
        I(f"""
        s_lshl_b32 s{self.S_LW}, s{S_WV}, 12
        s_mul_i32 s{self.S_WA}, s{S_M}, {WSA_M}
        s_add_u32 s{self.S_WA}, s{self.S_WA}, {WSA}
        s_add_u32 s{self.S_WA}, s{self.S_WA}, s{self.S_LW}
        s_and_b32 s{self.S_W3}, s{S_RB}, 1
        s_lshl_b32 s{self.S_W3}, s{self.S_W3}, 3
        s_add_u32 s{self.S_W3}, s{self.S_W3}, s{S_M}
        s_mul_i32 s{self.S_W3}, s{self.S_W3}, {W3S_M}
        s_add_u32 s{self.S_W3}, s{self.S_W3}, {W3S}
        s_add_u32 s{self.S_W3}, s{self.S_W3}, s{self.S_LW}
        s_mul_i32 s{self.S_W4}, s{S_M}, {W4S_M}
        s_add_u32 s{self.S_W4}, s{self.S_W4}, {W4S}
        s_add_u32 s{self.S_W4}, s{self.S_W4}, s{self.S_LW}
        """)

    def refill(self, maxn=99):
        n = 0
        while self.units_queued < self.NUNITS and n < maxn:
            u = self.units_queued
            if 16*u + 15 - self.RING > self.consumed: break
            for q in range(4):
                self.pend.append((("u", u, q), (lambda u=u, q=q: self.emit_dma(u, q))))
            self.units_queued += 1; n += 1
        self.resort()

    def resort(self):
        ctx = getattr(self, "loop_ctx", None)
        if ctx is None: return
        F0, NT, S = ctx
        def key(e):
            t = e[0]
            if t[0] == "a": return t[2]
            F = 16*t[1]
            if F + 15 < F0: return -100
            st = max(0, (F - F0)//NT)
            if st >= S: return 1000 + t[1]
            return 4*(st//4) - 2 - 1
        self.pend.sort(key=key)

    def emit_dma(self, u, q, track=True):
        I = self.I
        if q == 0:
            F = 16*u
            if F < 304: base, off = self.S_WA, F*1024
            elif F < 448: base, off = self.S_W3, (F-304)*1024
            else: base, off = self.S_W4, (F-448)*1024
            slot = (F % self.RING)*1024
            I(f"s_add_u32 s{self.S_DM}, s{self.S_LW}, {slot}\ns_mov_b32 m0, s{self.S_DM}\ns_add_u32 s{self.S_DS}, s{base}, {off}")
        I(f"buffer_load_dwordx4 v{V_L16}, {sr(S_WS)}, s{self.S_DS} offen offset:{1024*q} lds")
        if track:
            self.vm_issue(("u", u) if q == 3 else ("ux", u, q))
            if q == 3: self.units_issued = u + 1

    def drip(self, n=1):
        while n > 0 and self.pend:
            tag, fn = self.pend.pop(0)
            fn(); n -= 1

    def flush_until(self, tag):
        if not any(t == tag for t, _ in self.pend): return
        while True:
            t, fn = self.pend.pop(0)
            fn()
            if t == tag: return

    def need_units(self, Fmax):
        u = Fmax // 16
        assert u < self.units_queued, (u, self.units_queued)
        self.flush_until(("u", u, 3))
        self.vm_wait(("u", u))

    def gemm(self, S, NT, F0, aops, abases, burst, rate, cap=99, post_barrier=True, resident=False, chunk=4, accf=None, filler=None, fill_n=0):
        I = self.I
        WB, ACC, T = self.WB, self.ACC, self.GT
        nt = len(abases)
        vb = [T, T+1, T+2]
        stride = 4*NT
        if accf is None: accf = lambda tt, j: ACC + 4*(tt*NT + j)
        filler = list(filler or [])
        def rd1(s, j):
            off = ((F0 + s*NT + j) % self.RING)*1024
            k, o = divmod(off, 61440)
            I(f"ds_read_b128 {vr(WB + stride*(s % 3) + 4*j)}, v{vb[k]} offset:{o}")
        while self.pend and self.pend[0][0][0] == "u" and self.pend[0][0][2] != 0: self.drip(1)
        keep = []
        if resident:
            keep = [e for e in self.pend if e[0][0] == "u"]
            self.pend = []
        self.pend = list(aops) + self.pend
        self.loop_ctx = (F0, NT, S)
        if not resident: self.refill(cap)
        self.drip(burst)
        for j in range(NT): rd1(0, j)
        for j in range(NT): rd1(1, j)
        acc_rate = 0.0
        for s in range(S):
            if not resident and s + 2 < S and (s + 2) % chunk == 0:
                last = min(S, s + 2 + chunk) - 1
                if F0 + last*NT + NT - 1 > self.visible or self.units_queued < self.NUNITS:
                    self.need_units(F0 + last*NT + NT - 1)
                    I("s_barrier")
                    self.visible = max(self.visible, F0 + last*NT + NT - 1)
                    self.consumed = max(self.consumed, F0 + (s-1)*NT + NT - 1)
                    self.refill(cap)
            if self.detail == F0 and s % 4 == 0: self.stamp(f"d_k{s}")
            nout = NT if s + 1 < S else 0
            I(f"s_waitcnt lgkmcnt({min(nout, 15)})")
            for tt in range(nt):
                self.flush_until(("a", tt, s))
                self.vm_wait(("a", tt, s))
            acc_rate += rate
            nm = nt*NT
            slots = []
            while acc_rate >= 1.0:
                slots.append(1); acc_rate -= 1.0
            pos = {(k*nm)//max(1, len(slots)) : 0 for k in range(len(slots))}
            for k in range(len(slots)): pos[(k*nm)//len(slots)] += 1
            i = 0
            for tt in range(nt):
                for j in range(NT):
                    c = '0' if s == 0 else vr(accf(tt, j))
                    I(f"v_mfma_f32_16x16x32_bf16 {vr(accf(tt, j))}, {vr(WB+stride*(s%3)+4*j)}, {ar(abases[tt]+4*s)}, {c}")
                    if i < NT and s + 2 < S: rd1(s+2, i)
                    if pos.get(i): self.drip(pos[i])
                    for _ in range(fill_n):
                        if filler: I(filler.pop(0))
                    i += 1
        for x in filler: I(x)
        self.pending_consumed = {299: 303, 443: 447}.get(F0 + S*NT - 1, F0 + S*NT - 1)
        self.loop_ctx = None
        self.pend = self.pend + keep
        if post_barrier:
            I("s_barrier")
            self.after_barrier()
            self.refill()
            self.drip({0: self.post_drip, 100: self.post_drip, 200: self.post_drip2, 384: self.post_drip3, 304: self.post_drip3}.get(F0, 0))

    def after_barrier(self):
        self.consumed = max(self.consumed, getattr(self, "pending_consumed", -1))

    def lds_bases(self):
        T = self.GT
        self.I(f"v_mov_b32 v{T}, v{V_L16}\nv_add_u32 v{T+1}, 61440, v{V_L16}\nv_add_u32 v{T+2}, {2*61440}, v{V_L16}")

    def a_op(self, tt, s, abase, vaddr, base_sreg, base_add, soff_reg, split=(), vaddr8=None):
        def fn():
            if s % 4 == 0:
                if base_sreg is None: self.I(f"s_mov_b32 s{soff_reg}, {base_add + 1024*s}")
                else: self.I(f"s_add_u32 s{soff_reg}, s{base_sreg}, {base_add + 1024*s}")
            r = abase + 4*s
            if s in split:
                self.I(f"buffer_load_dwordx2 a[{r}:{r+1}], v{vaddr8}, {sr(S_WS)}, s{soff_reg} offen offset:{1024*(s % 4)} sc1")
                self.vm_issue(("ah", tt, s))
                self.I(f"buffer_load_dwordx2 a[{r+2}:{r+3}], v{vaddr8}, {sr(S_WS)}, s{soff_reg} offen offset:{1024*(s % 4)+512} sc1")
            else:
                self.I(f"buffer_load_dwordx4 {ar(r)}, v{vaddr}, {sr(S_WS)}, s{soff_reg} offen offset:{1024*(s % 4)} sc1")
            self.vm_issue(("a", tt, s))
        return (("a", tt, s), fn)

    RAW_GA, RAW_SB, RAW_CB, RAW_GB = 140, 150, 214, 240
    def mod_fetch(self):
        I = self.I
        I(f"v_lshlrev_b32 v244, 4, v{V_G}\nv_add_u32 v244, {self.L_MODW}, v244")
        for (dst, off) in ((self.RAW_GA, 0), (self.RAW_SB, 320), (self.RAW_CB, 640)):
            for j in range(5):
                I(f"ds_read_b64 v[{dst+2*j}:{dst+2*j+1}], v244 offset:{off + 64*j}")

    def gb_fetch(self):
        I = self.I
        I(f"s_mul_i32 s{ST+5}, s{S_M}, 320\nv_lshlrev_b32 v244, 4, v{V_G}\ns_add_u32 s{ST+5}, s{ST+5}, {MODG + 5*2560}")
        for j in range(5):
            I(f"buffer_load_dwordx2 a[{self.RAW_GB+2*j}:{self.RAW_GB+2*j+1}], v244, {sr(S_WS)}, s{ST+5} offen offset:{64*j} sc1")
            self.vm_issue(("gb",))

    def mod_unpack(self):
        I = self.I
        for src, dst in ((self.RAW_GA, self.MS_GA), (self.RAW_SB, self.MS_SB), (self.RAW_CB, self.MS_A2)):
            for i in range(10):
                I(f"v_lshlrev_b32 v{dst+2*i}, 16, v{src+i}\nv_and_b32 v{dst+2*i+1}, 0xffff0000, v{src+i}")
        self.one_plus_bf16(self.MS_A2, 20)

    def one_plus_bf16(self, r, n):
        I = self.I
        for i in range(0, n, 2):
            I(f"""
            v_add_f32 v{r+i}, 1.0, v{r+i}
            v_add_f32 v{r+i+1}, 1.0, v{r+i+1}
            v_cvt_pk_bf16_f32 v{r+i}, v{r+i}, v{r+i+1}
            v_and_b32 v{r+i+1}, 0xffff0000, v{r+i}
            v_lshlrev_b32 v{r+i}, 16, v{r+i}
            """)

    def ln_stats(self, src, which, mu, rs, code, fine=0):
        I = self.I
        T = self.GT + 4
        I(f"v_pk_add_f32 v[{T}:{T+1}], v[{src}:{src+1}], v[{src+2}:{src+3}]\nv_pk_mul_f32 v[{T+2}:{T+3}], v[{src}:{src+1}], v[{src}:{src+1}]")
        I(f"v_pk_fma_f32 v[{T+2}:{T+3}], v[{src+2}:{src+3}], v[{src+2}:{src+3}], v[{T+2}:{T+3}]")
        for i in range(4, 20, 2):
            I(f"v_pk_add_f32 v[{T}:{T+1}], v[{T}:{T+1}], v[{src+i}:{src+i+1}]\nv_pk_fma_f32 v[{T+2}:{T+3}], v[{src+i}:{src+i+1}], v[{src+i}:{src+i+1}], v[{T+2}:{T+3}]")
            if i in (8, 14): self.drip(fine)
        I(f"v_add_f32 v{T}, v{T}, v{T+1}\nv_add_f32 v{T+1}, v{T+2}, v{T+3}")
        self.reduce_g([T, T+1], T+4)
        I(f"""
        v_mov_b32 v{T+2}, s{S_TAG}
        v_mov_b32 v{T+3}, s{S_TAG+1}
        s_lshl_b32 s{ST+4}, s{S_RB}, 13
        s_lshl_b32 s{ST+5}, s{S_WV}, 8
        s_add_u32 s{ST+4}, s{ST+4}, s{ST+5}
        s_add_u32 s{ST+4}, s{ST+4}, {STAT + which*STAT_SZ}
        s_lshl_b32 s{ST+5}, s{S_M}, 10
        s_add_u32 s{ST+5}, s{ST+5}, s{ST+4}
        v_lshlrev_b32 v{T+4}, 4, v{V_T}
        s_mov_b64 exec, 0xffff
        """)
        self.dual(lambda f: I(f"buffer_store_dwordx4 {vr(T)}, v{T+4}, {sr(S_WS)}, s{ST+5} offen{f}"))
        I("s_mov_b64 exec, -1")
        if self.detail == 2: self.stamp(f"e_st{which}")
        I(f"""
        s_mov_b64 exec, -1
        v_lshl_add_u32 v{T+5}, v{V_G}, 11, v{T+4}
        s_mov_b32 s{ST}, {TIMEOUT}
        """)
        lp = self.b.uid("L_ls"); ok = self.b.uid("L_lsok"); lchk = self.b.uid("L_lsc")
        I(f"""
        buffer_load_dwordx4 {vr(T+8)}, v{T+5}, {sr(S_WS)}, s{ST+4} offen sc1
        buffer_load_dwordx4 {vr(T+12)}, v{T+5}, {sr(S_WS)}, s{ST+4} offen offset:1024 sc1
        """)
        n0 = len(self.vmq)
        self.drip(self.shadow_s)
        nsh = len(self.vmq) - n0
        I(f"""
        s_waitcnt vmcnt({nsh})
        s_branch {lchk}
        {lp}:
        buffer_load_dwordx4 {vr(T+8)}, v{T+5}, {sr(S_WS)}, s{ST+4} offen sc1
        buffer_load_dwordx4 {vr(T+12)}, v{T+5}, {sr(S_WS)}, s{ST+4} offen offset:1024 sc1
        s_waitcnt vmcnt(0)
        {lchk}:
        v_cmp_ne_u32 vcc, s{S_TAG}, v{T+10}
        s_mov_b64 s[{ST+2}:{ST+3}], vcc
        v_cmp_ne_u32 vcc, s{S_TAG+1}, v{T+11}
        s_or_b64 s[{ST+2}:{ST+3}], s[{ST+2}:{ST+3}], vcc
        v_cmp_ne_u32 vcc, s{S_TAG}, v{T+14}
        s_or_b64 s[{ST+2}:{ST+3}], s[{ST+2}:{ST+3}], vcc
        v_cmp_ne_u32 vcc, s{S_TAG+1}, v{T+15}
        s_or_b64 s[{ST+2}:{ST+3}], s[{ST+2}:{ST+3}], vcc
        s_cmp_eq_u64 s[{ST+2}:{ST+3}], 0
        s_cbranch_scc1 {ok}
        """)
        self.spin_tail(ST, lp, code)
        self.vmq = self.vmq[len(self.vmq)-nsh:] if nsh else []
        I(f"{ok}:")
        if self.detail == 2: self.stamp(f"e_got{which}")
        I(f"""
        v_add_f32 v{T}, v{T+8}, v{T+12}
        v_add_f32 v{T+1}, v{T+9}, v{T+13}
        """)
        self.reduce_g([T, T+1], T+4)
        I(f"""
        v_mul_f32 v{mu}, {1.0/640!r}, v{T}
        v_mul_f32 v{T+1}, {1.0/640!r}, v{T+1}
        v_fma_f32 v{T+1}, -v{mu}, v{mu}, v{T+1}
        v_max_f32 v{T+1}, 0, v{T+1}
        v_add_f32 v{T+1}, 0x3727c5ac, v{T+1}
        v_rsq_f32 v{rs}, v{T+1}
        s_nop 0
        v_mul_f32 v{mu}, -v{mu}, v{rs}
        v_mov_b32 v{rs+1}, v{rs}
        v_mov_b32 v{mu+1}, v{mu}
        """)

    V_L8 = 203
    SPLIT20 = (2, 7, 12, 17)
    SPLIT54 = (3, 10, 17, 24, 31, 38)
    def pack_tiles(self, src, ntile, dst=None):
        if dst is None: dst = src
        for j in range(ntile):
            a = src + 4*j; d = dst + 2*j
            self.I(f"v_cvt_pk_bf16_f32 v{d}, v{a}, v{a+1}\nv_cvt_pk_bf16_f32 v{d+1}, v{a+2}, v{a+3}")

    def store_frag(self, pk, ntile, base_sreg, tile0_sreg, skip_last_sreg=None, force_sc1=False, count=True):
        I = self.I
        lodd = self.b.uid("L_so"); lj = self.b.uid("L_sj")
        I(f"""
        s_lshr_b32 s{ST+5}, s{tile0_sreg}, 1
        s_lshl_b32 s{ST+5}, s{ST+5}, 10
        s_add_u32 s{ST+5}, s{ST+5}, s{base_sreg}
        s_bitcmp1_b32 s{tile0_sreg}, 0
        s_cbranch_scc1 {lodd}
        """)
        def variant(odd, f):
            if not odd:
                for p in range(ntile//2):
                    I(f"buffer_store_dwordx4 {vr(pk+4*p)}, v{V_L16}, {sr(S_WS)}, s{ST+5} offen offset:{1024*p}{f}")
                if ntile % 2:
                    lab = None
                    if skip_last_sreg is not None:
                        lab = self.b.uid("L_sk")
                        I(f"s_cmp_lg_u32 s{skip_last_sreg}, 0\ns_cbranch_scc1 {lab}")
                    j = ntile-1
                    I(f"buffer_store_dwordx2 v[{pk+2*j}:{pk+2*j+1}], v{self.V_L8}, {sr(S_WS)}, s{ST+5} offen offset:{1024*(ntile//2)}{f}")
                    if lab: I(f"{lab}:")
            else:
                I(f"buffer_store_dwordx2 v[{pk}:{pk+1}], v{self.V_L8}, {sr(S_WS)}, s{ST+5} offen offset:512{f}")
                for p in range(ntile//2):
                    I(f"buffer_store_dwordx4 {vr(pk+2+4*p)}, v{V_L16}, {sr(S_WS)}, s{ST+5} offen offset:{1024*(p+1)}{f}")
        if force_sc1: variant(False, " sc1")
        else: self.dual(lambda f: variant(False, f))
        I(f"s_branch {lj}\n{lodd}:")
        if force_sc1: variant(True, " sc1")
        else: self.dual(lambda f: variant(True, f))
        I(f"{lj}:")
        if count:
            for j in range(ntile//2): self.vm_issue(("st",))

    def tile_base(self, dst_sreg, tt_sreg, S, base_off):
        self.I(f"s_mul_i32 s{dst_sreg}, s{tt_sreg}, {S*1024}\ns_add_u32 s{dst_sreg}, s{dst_sreg}, {base_off}")

    def gelu(self, r, n, drip=0):
        I = self.I
        T = self.GT + 4
        c1 = -2.0 * 0.7978845608028654 * 1.4426950408889634
        c2 = c1 * 0.044715
        C1, ONE = T+8, T+10
        I(f"""
        s_mov_b32 s{ST+8}, {hex(f2u(c2))}
        s_mov_b32 s{ST+9}, {hex(f2u(c2))}
        v_mov_b32 v{C1}, {hex(f2u(c1))}
        v_mov_b32 v{C1+1}, {hex(f2u(c1))}
        v_mov_b32 v{ONE}, 1.0
        v_mov_b32 v{ONE+1}, 1.0
        """)
        P = lambda x: f"v[{x}:{x+1}]"
        for i in range(0, n, 4):
            x0, x1, t0, t1 = r+i, r+i+2, T, T+2
            I(f"v_pk_mul_f32 {P(t0)}, {P(x0)}, {P(x0)}\nv_pk_mul_f32 {P(t1)}, {P(x1)}, {P(x1)}")
            I(f"v_pk_fma_f32 {P(t0)}, {P(t0)}, s[{ST+8}:{ST+9}], {P(C1)}\nv_pk_fma_f32 {P(t1)}, {P(t1)}, s[{ST+8}:{ST+9}], {P(C1)}")
            I(f"v_pk_mul_f32 {P(t0)}, {P(t0)}, {P(x0)}\nv_pk_mul_f32 {P(t1)}, {P(t1)}, {P(x1)}")
            for q in range(4): I(f"v_exp_f32 v{T+q}, v{T+q}")
            I(f"v_pk_add_f32 {P(t0)}, {P(t0)}, {P(ONE)}\nv_pk_add_f32 {P(t1)}, {P(t1)}, {P(ONE)}")
            for q in range(4): I(f"v_rcp_f32 v{T+q}, v{T+q}")
            I(f"v_pk_mul_f32 {P(x0)}, {P(x0)}, {P(t0)}\nv_pk_mul_f32 {P(x1)}, {P(x1)}, {P(t1)}")
            self.drip(drip)

    def collect(self, fn):
        saved = self.b.items
        self.b.items = []
        fn()
        out = [it.text for it in self.b.items if isinstance(it, Ins)]
        self.b.items = saved
        return out

    def phase_entry(self, ph_wait, lines, code, F0, NT, between=None, upto=None):
        last = F0 + 4*NT - 1 if upto is None else upto
        self.need_units(last)
        self.I("s_barrier")
        self.visible = max(getattr(self, "visible", -1), last)
        self.after_barrier()
        if self.detail == F0: self.stamp("d_bar")
        self.wait_flags(ph_wait, lines, code, work=between)
        if self.detail == F0: self.stamp("d_flags")
        if self.detail == 2: self.stamp(f"e_fl{ph_wait}")

    def small_gemm(self, F0, act, ph_wait, rbs, code, shift=False, between=None, pf=()):
        I, C = self.I, self.C
        def shift_addr():
            T = self.GT + 8
            I(f"s_lshl_b32 s{ST+4}, s{S_TT}, 4\ns_lshr_b32 s{ST+5}, s{S_RB}, 2")
            for q, dl in enumerate((-1, 1, -2, 2)):
                side = 1 if dl < 0 else 0
                I(f"""
                v_add_u32 v{T+4}, s{ST+4}, v{V_T}
                v_add_u32 v{T+4}, {dl & 0xffffffff}, v{T+4}          ; token'
                v_lshrrev_b32 v{T+5}, 4, v{T+4}
                v_mul_u32_u24 v{T+5}, 20480, v{T+5}
                v_add_u32 v{T+5}, {act}, v{T+5}
                v_lshrrev_b32 v{T+6}, 8, v{T+4}
                v_lshlrev_b32 v{T+7}, 1, v{T+6}
                v_add_u32 v{T+7}, {side}, v{T+7}
                v_mul_u32_u24 v{T+7}, 20480, v{T+7}
                v_add_u32 v{T+7}, {HG}, v{T+7}
                v_cmp_eq_u32 vcc, s{ST+5}, v{T+6}
                v_cndmask_b32 v{T+5}, v{T+7}, v{T+5}, vcc
                v_and_b32 v{T+6}, 15, v{T+4}
                v_lshl_add_u32 v{T+6}, v{V_G}, 4, v{T+6}              ; g*16 + t'
                v_lshl_add_u32 v{T+7}, v{T+6}, 3, v{T+5}
                v_lshl_add_u32 v{T+5}, v{T+6}, 4, v{T+5}
                v_cmp_gt_u32 vcc, 0x800, v{T+4}
                v_mov_b32 v{T+6}, 0x80000000
                v_cndmask_b32 v{T+q}, v{T+6}, v{T+5}, vcc
                v_cndmask_b32 v{self.GT+20+q}, v{T+6}, v{T+7}, vcc
                """)
        if shift: between = shift_addr
        self.phase_entry(ph_wait, rbs, code, F0, 5, between, upto=(F0+99 if self.resident else None))
        if not shift:
            I(f"s_mul_i32 s{self.S_SRC}, s{S_TT}, {20*1024}\ns_add_u32 s{self.S_SRC}, s{self.S_SRC}, {act}")
            aops = [self.a_op(0, s, 16, V_L16, self.S_SRC, 0, self.S_AO, self.SPLIT20, self.V_L8) for s in range(20)]
        else:
            T = self.GT + 8
            aops = [self.a_op(0, s, 16, T + s // 5, None, 0, self.S_AO, self.SPLIT20, self.GT + 20 + s // 5) for s in range(20)]
        if self.use_pf: aops += [(("a", 9, 19), (lambda p=p: self.pf_op(*p))) for p in pf]
        if (self.h4t_where == 1 and F0 == self.F_W1) or (self.h4t_where == 2 and F0 == self.F_W2) or (self.h4t_where == 4 and F0 == self.F_WO):
            def h4t():
                self.act_touch(H4F, 54*1024); self.vm_issue(("pf",))
            aops.append((("a", 9, 19), h4t))
        self.gemm(20, 5, F0, aops, [16], burst=self.burst, rate=self.rate_small, cap=self.cap_small, resident=self.resident)

    def phase_wo(self):
        I, C = self.I, self.C
        X2, H, ACC, T = self.X2, self.H, self.ACC, self.GT
        self.lds_bases()
        def pre():
            self.mod_unpack()
            for j in range(5):
                for q in range(2):
                    I(f"v_accvgpr_read_b32 v{T+4}, a{2*j+q}")
                    I(f"v_lshlrev_b32 v{X2+4*j+2*q}, 16, v{T+4}\nv_and_b32 v{X2+4*j+2*q+1}, 0xffff0000, v{T+4}")
        self.small_gemm(self.F_WO, OF, PH_O, [S_TT], 6, pf=[("3", 0)], between=pre)
        self.stamp("wo_mm")
        P = lambda x: f"v[{x}:{x+1}]"
        f = self.fine
        for i in range(0, 20, 2): I(f"v_pk_fma_f32 {P(X2+i)}, {P(self.MS_GA+i)}, {P(ACC+i)}, {P(X2+i)}")
        mu, rs = T+30, T+32
        self.ln_stats(X2, 0, mu, rs, 7, fine=f)
        for i in range(0, 20, 2):
            I(f"v_pk_fma_f32 {P(H+i)}, {P(X2+i)}, {P(rs)}, {P(mu)}")
            I(f"v_pk_fma_f32 {P(H+i)}, {P(H+i)}, {P(self.MS_A2+i)}, {P(self.MS_SB+i)}")
            if i in (0, 8): self.drip(f)
        self.ln_stats(H, 1, mu, rs, 8, fine=f)
        self.drip(f)
        for i in range(0, 20, 2): I(f"v_pk_fma_f32 {P(ACC+i)}, {P(H+i)}, {P(rs)}, {P(mu)}")
        self.pack_tiles(ACC, 5)
        self.tile_base(ST+4, S_TT, 20, L2F)
        self.store_frag(ACC, 5, ST+4, self.S_T5)
        self.publish_drip(PH_L2)
        self.stamp("l2pub")

    def phase_w1(self):
        I = self.I
        self.small_gemm(self.F_W1, L2F, PH_L2, [S_TT], 9, pf=[("3", 1)])
        self.stamp("w1_mm")
        self.gb_fetch()
        self.gelu(self.ACC, 20, drip=self.gd1)
        self.pack_tiles(self.ACC, 5)
        self.tile_base(ST+4, S_TT, 20, GF)
        self.store_frag(self.ACC, 5, ST+4, self.S_T5)
        lab = self.b.uid("L_hal")
        I(f"""
        s_and_b32 s{ST+6}, s{S_TT}, 15
        s_add_u32 s{ST+6}, s{ST+6}, 1
        s_and_b32 s{ST+7}, s{ST+6}, 14
        s_cmp_eq_u32 s{ST+7}, 0
        s_cbranch_scc0 {lab}
        s_lshr_b32 s{ST+7}, s{S_TT}, 4
        s_lshl_b32 s{ST+7}, s{ST+7}, 1
        s_lshr_b32 s{ST+6}, s{ST+6}, 4
        s_add_u32 s{ST+7}, s{ST+7}, s{ST+6}
        s_mul_i32 s{ST+4}, s{ST+7}, 20480
        s_add_u32 s{ST+4}, s{ST+4}, {HG}
        """)
        self.store_frag(self.ACC, 5, ST+4, self.S_T5, force_sc1=True, count=False)
        I(f"{lab}:")
        self.publish_drip(PH_G, both=True)
        self.stamp("gpub")

    def phase_w2(self):
        I = self.I
        X2, H, ACC, T = self.X2, self.H, self.ACC, self.GT
        I(f"""
        s_sub_u32 s{ST+10}, s{S_TT}, 1
        s_max_i32 s{ST+10}, s{ST+10}, 0
        s_add_u32 s{ST+11}, s{S_TT}, 1
        s_min_u32 s{ST+11}, s{ST+11}, 127
        """)
        self.small_gemm(self.F_W2, GF, PH_G, [S_TT, ST+10, ST+11], 10, shift=True, pf=[("4", 0)])
        self.stamp("w2_mm")
        P = lambda x: f"v[{x}:{x+1}]"
        for i in range(0, 20, 2): I(f"v_pk_add_f32 {P(H+i)}, {P(H+i)}, {P(ACC+i)}")
        mu, rs = T+30, T+32
        self.ln_stats(H, 2, mu, rs, 11, fine=self.fine)
        self.drip(self.fine)
        for i in range(0, 20, 2): I(f"v_pk_fma_f32 {P(ACC+i)}, {P(H+i)}, {P(rs)}, {P(mu)}")
        self.pack_tiles(ACC, 5)
        self.tile_base(ST+4, S_TT, 20, L3F)
        self.store_frag(ACC, 5, ST+4, self.S_T5)
        self.publish_drip(PH_L3)
        self.stamp("l3pub")

    def phase_w3(self):
        I, C = self.I, self.C
        ACC = self.ACC
        m16, t0, skip, rbA, rbB, ttb = ST+10, ST+11, ST+12, ST+13, ST+14, ST+15
        I(f"""
        s_and_b32 s{m16}, s{S_RB}, 1
        s_lshl_b32 s{m16}, s{m16}, 3
        s_add_u32 s{m16}, s{m16}, s{S_M}
        s_mul_i32 s{t0}, s{m16}, 7
        s_sub_u32 s{ST}, s{m16}, 12
        s_max_i32 s{ST}, s{ST}, 0
        s_sub_u32 s{t0}, s{t0}, s{ST}
        s_cmp_ge_u32 s{m16}, 12
        s_cselect_b32 s{skip}, 1, 0
        s_and_b32 s{rbA}, s{S_RB}, 30
        s_add_u32 s{rbB}, s{rbA}, 1
        s_lshl_b32 s{ttb}, s{rbA}, 2
        s_lshl_b32 s{ST}, s{S_WV}, 1
        s_add_u32 s{ttb}, s{ttb}, s{ST}
        """)
        I(f"s_add_u32 s{rbA}, s{ttb}, 1")
        self.phase_entry(PH_L3, [ttb, rbA], 12, self.F_W3, 4 if self.w3split else 7)
        I(f"s_mul_i32 s{self.S_SRC}, s{ttb}, {20*1024}\ns_add_u32 s{self.S_SRC}, s{self.S_SRC}, {L3F}")
        aops = []
        for s in range(20):
            aops.append(self.a_op(0, s, 16, V_L16, self.S_SRC, 0, self.S_AO, self.SPLIT20, self.V_L8))
            aops.append(self.a_op(1, s, 96, V_L16, self.S_SRC, 20*1024, self.S_AO2, self.SPLIT20, self.V_L8))
        if self.use_pf: aops.insert(16, (("a", 9, 8), (lambda: self.pf_op("4", 1))))
        def h4t():
            self.act_touch(H4F, 54*1024); self.vm_issue(("pf",))
        if self.h4t_where == 3: aops.append((("a", 9, 19), h4t))
        if not self.w3split:
            self.gemm(20, 7, self.F_W3, aops, [16, 96], burst=2*self.burst, rate=self.rate_w3)
            self.stamp("w3_mm")
            self.gelu(ACC, 56, drip=self.gd3)
        else:
            self.gemm(20, 4, self.F_W3, aops, [16, 96], burst=2*self.burst, rate=self.rate_w3a, accf=lambda tt, j: ACC + 28*tt + 4*j, post_barrier=False)
            F2 = self.F_W3 + 80
            self.need_units(F2 + 4*3 - 1)
            I("s_barrier")
            self.visible = max(self.visible, F2 + 11)
            self.after_barrier()
            fill = self.collect(lambda: (self.gelu(ACC, 16), self.gelu(ACC+28, 16)))
            self.gemm(20, 3, F2, [], [16, 96], burst=0, rate=self.rate_w3b, accf=lambda tt, j: ACC + 28*tt + 16 + 4*j, filler=fill, fill_n=self.fill_n)
            self.stamp("w3_mm")
            self.gelu(ACC+16, 12, drip=self.gd3)
            self.gelu(ACC+44, 12, drip=self.gd3)
        self.pack_tiles(ACC, 7)
        self.pack_tiles(ACC+28, 7)
        self.tile_base(ST+4, ttb, 54, H4F)
        self.store_frag(ACC, 7, ST+4, t0, skip_last_sreg=skip, force_sc1=(self.h4mode == 2))
        I(f"s_add_u32 s{ST+4}, s{ST+4}, {54*1024}")
        self.store_frag(ACC+28, 7, ST+4, t0, skip_last_sreg=skip, force_sc1=(self.h4mode == 2))
        self.publish_drip(PH_H4)
        self.stamp("h4pub")

    def phase_w4(self):
        I, C = self.I, self.C
        X2, H, ACC, T = self.X2, self.H, self.ACC, self.GT
        rbA, rbB = ST+13, ST+14
        I(f"""
        s_and_b32 s{rbA}, s{S_TT}, 7
        s_lshr_b32 s{rbA}, s{rbA}, 1
        s_and_b32 s{rbB}, s{S_RB}, 30
        s_lshl_b32 s{rbB}, s{rbB}, 2
        s_add_u32 s{rbA}, s{rbA}, s{rbB}
        s_add_u32 s{rbB}, s{rbA}, 4
        """)
        self.phase_entry(PH_H4, [rbA, rbB], 13, self.F_W4, 5, upto=(607 if self.resident else None))
        I(f"s_mul_i32 s{self.S_SRC}, s{S_TT}, {54*1024}\ns_add_u32 s{self.S_SRC}, s{self.S_SRC}, {H4F}")
        if self.wb_early:
            lab = self.b.uid("L_wb")
            I(f"""
            s_lshr_b32 s{ST}, s{S_W}, 3
            s_lshl_b32 s{ST}, s{ST}, 2
            s_add_u32 s{ST}, s{ST}, s{S_WV}
            s_cmp_lg_u32 s{ST}, {self.wb_who}
            s_cbranch_scc1 {lab}
            buffer_wbl2 sc1
            {lab}:
            """)
        aops = [self.a_op(0, s, 16, V_L16, self.S_SRC, 0, self.S_AO, self.SPLIT54, self.V_L8) for s in range(54)]
        self.gemm(54, 5, self.F_W4, aops, [16], burst=self.burst4, rate=self.rate_w4, post_barrier=False, chunk=self.chunk4)
        self.stamp("w4_mm")
        MS = self.WB
        for j in range(5):
            I(f"""
            v_accvgpr_read_b32 v{T+4}, a{self.RAW_GB+2*j}
            v_accvgpr_read_b32 v{T+5}, a{self.RAW_GB+2*j+1}
            v_lshlrev_b32 v{MS+4*j}, 16, v{T+4}
            v_and_b32 v{MS+4*j+1}, 0xffff0000, v{T+4}
            v_lshlrev_b32 v{MS+4*j+2}, 16, v{T+5}
            v_and_b32 v{MS+4*j+3}, 0xffff0000, v{T+5}
            """)
        for i in range(0, 20, 2):
            I(f"v_pk_add_f32 v[{ACC+i}:{ACC+i+1}], v[{ACC+i}:{ACC+i+1}], v[{H+i}:{H+i+1}]")
            I(f"v_pk_fma_f32 v[{ACC+i}:{ACC+i+1}], v[{ACC+i}:{ACC+i+1}], v[{MS+i}:{MS+i+1}], v[{X2+i}:{X2+i+1}]")
        self.srd(S_A, P_OUT, 2048*1280)
        I(f"""
        s_lshl_b32 s{ST}, s{S_TT}, 4
        v_add_u32 v{T+4}, s{ST}, v{V_T}
        v_mul_u32_u24 v{T+4}, 1280, v{T+4}
        v_lshl_add_u32 v{T+4}, v{V_G}, 3, v{T+4}
        s_mul_i32 s{ST}, s{S_M}, 160
        """)
        self.pack_tiles(ACC, 5)
        for j in range(5):
            a = ACC + 2*j
            I(f"buffer_store_dwordx2 v[{a}:{a+1}], v{T+4}, {sr(S_A)}, s{ST} offen offset:{32*j}{' sc1' if self.out_sc1 else ''}")
        self.stamp("out")

    def l2_prefetch(self, which, part):
        I = self.I
        T = 246
        rbl = ST + 4
        I(f"v_lshlrev_b32 v{T}, 7, v{V_L}\ns_and_b32 s{rbl}, s{S_RB}, 3")
        if which == "A":
            base, start, chunk, shl = self.S_WA, 96*1024, 6656, 0
        elif which == "3":
            base, start, chunk, shl = self.S_W3, 0, 9216, 1
        else:
            base, start, chunk, shl = self.S_W4, 0, 8704, 0
        I(f"""
        s_lshr_b32 s{ST+5}, s{rbl}, {shl}
        s_lshl_b32 s{ST+5}, s{ST+5}, 2
        s_add_u32 s{ST+5}, s{ST+5}, s{S_WV}
        s_lshl_b32 s{ST+5}, s{ST+5}, 1
        s_add_u32 s{ST+5}, s{ST+5}, {part}
        s_mul_i32 s{ST+5}, s{ST+5}, {chunk}
        s_add_u32 s{ST+5}, s{ST+5}, s{base}
        s_sub_u32 s{ST+5}, s{ST+5}, s{self.S_LW}
        s_add_u32 s{ST+5}, s{ST+5}, {start}
        """)
        if chunk < 8192:
            I(f"v_cmp_gt_u32 vcc, {chunk//128}, v{V_L}\ns_and_saveexec_b64 s[{ST+6}:{ST+7}], vcc")
        I(f"buffer_load_dword a254, v{T}, {sr(S_WS)}, s{ST+5} offen")
        if chunk < 8192:
            I(f"s_mov_b64 exec, s[{ST+6}:{ST+7}]")
        if chunk > 8192:
            I(f"s_add_u32 s{ST+5}, s{ST+5}, 8192\nv_cmp_gt_u32 vcc, {(chunk-8192)//128}, v{V_L}\ns_and_saveexec_b64 s[{ST+6}:{ST+7}], vcc")
            I(f"buffer_load_dword a253, v{T}, {sr(S_WS)}, s{ST+5} offen")
            I(f"s_mov_b64 exec, s[{ST+6}:{ST+7}]")
        return 2 if chunk > 8192 else 1

    def tlb_touch(self):
        I = self.I
        n = (WS_END + (1 << 20) - 1) >> 20
        I(f"""
        v_lshlrev_b32 v245, 20, v{V_L}
        v_cmp_gt_u32 vcc, {n}, v{V_L}
        s_and_saveexec_b64 s[{ST+6}:{ST+7}], vcc
        buffer_load_dword a255, v245, {sr(S_WS)}, 0 offen
        s_mov_b64 exec, s[{ST+6}:{ST+7}]
        """)

    def mall_touch(self, base, nbytes):
        I = self.I
        per_wave = -(-nbytes // 1024 // 128) * 128
        lines = per_wave // 128
        assert lines <= 128
        I(f"""
        v_lshlrev_b32 v245, 7, v{V_L}
        s_lshl_b32 s{ST+5}, s{S_W}, 2
        s_add_u32 s{ST+5}, s{ST+5}, s{S_WV}
        s_mul_i32 s{ST+5}, s{ST+5}, {per_wave}
        s_add_u32 s{ST+5}, s{ST+5}, {base}
        """)
        n0 = min(lines, 64)
        if n0 < 64: I(f"v_cmp_gt_u32 vcc, {n0}, v{V_L}\ns_and_saveexec_b64 s[{ST+6}:{ST+7}], vcc")
        I(f"buffer_load_dword a255, v245, {sr(S_WS)}, s{ST+5} offen")
        if n0 < 64: I(f"s_mov_b64 exec, s[{ST+6}:{ST+7}]")

    def act_touch(self, base, per_tile):
        I = self.I
        per_wave = 16*per_tile // 128
        lines = per_wave // 128
        I(f"""
        v_lshlrev_b32 v245, 7, v{V_L}
        s_lshr_b32 s{ST+5}, s{S_RB}, 2
        s_mul_i32 s{ST+5}, s{ST+5}, {16*per_tile}
        s_and_b32 s{ST+6}, s{S_RB}, 3
        s_lshl_b32 s{ST+6}, s{ST+6}, 3
        s_add_u32 s{ST+6}, s{ST+6}, s{S_M}
        s_lshl_b32 s{ST+6}, s{ST+6}, 2
        s_add_u32 s{ST+6}, s{ST+6}, s{S_WV}
        s_mul_i32 s{ST+6}, s{ST+6}, {per_wave}
        s_add_u32 s{ST+5}, s{ST+5}, s{ST+6}
        s_add_u32 s{ST+5}, s{ST+5}, {base}
        """)
        n0 = min(lines, 64)
        if n0 < 64: I(f"v_cmp_gt_u32 vcc, {n0}, v{V_L}\ns_and_saveexec_b64 s[{ST+6}:{ST+7}], vcc")
        I(f"buffer_load_dword a255, v245, {sr(S_WS)}, s{ST+5} offen")
        if n0 < 64: I(f"s_mov_b64 exec, s[{ST+6}:{ST+7}]")

    def sync_touch(self):
        I = self.I
        l3 = self.b.uid("L_st3"); lj = self.b.uid("L_stj")
        I(f"""
        s_cmp_eq_u32 s{S_WV}, 3
        s_cbranch_scc1 {l3}
        v_lshlrev_b32 v245, 7, v{V_L}
        s_mul_i32 s{ST+5}, s{S_WV}, {STAT_SZ}
        s_lshl_b32 s{ST+6}, s{S_RB}, 13
        s_add_u32 s{ST+5}, s{ST+5}, s{ST+6}
        s_add_u32 s{ST+5}, s{ST+5}, {STAT}
        buffer_load_dword a255, v245, {sr(S_WS)}, s{ST+5} offen
        s_branch {lj}
        {l3}:
        v_lshrrev_b32 v245, 4, v{V_L}
        v_lshlrev_b32 v245, 14, v245
        v_and_b32 v244, 15, v{V_L}
        v_lshl_add_u32 v245, v244, 7, v245
        s_and_b32 s{ST+5}, s{S_RB}, 28
        s_lshl_b32 s{ST+5}, s{ST+5}, 9
        s_add_u32 s{ST+5}, s{ST+5}, {CFLAG + CF_LOC}
        buffer_load_dword a255, v245, {sr(S_WS)}, s{ST+5} offen
        s_add_u32 s{ST+5}, s{ST+5}, {4*CF_PH}
        v_lshlrev_b32 v245, 7, v244
        buffer_load_dword a255, v245, {sr(S_WS)}, s{ST+5} offen
        {lj}:
        s_sub_u32 s{ST+5}, s{S_TT}, 1
        s_max_i32 s{ST+5}, s{ST+5}, 0
        s_lshl_b32 s{ST+5}, s{ST+5}, 7
        s_add_u32 s{ST+5}, s{ST+5}, {CFLAG + PH_G*CF_PH}
        v_lshlrev_b32 v245, 7, v{V_L}
        s_mov_b64 exec, 7
        buffer_load_dword a255, v245, {sr(S_WS)}, s{ST+5} offen
        s_mov_b64 exec, -1
        """)

    def pf_op(self, which, part):
        n = self.l2_prefetch(which, part)
        for i in range(n): self.vm_issue(("pf",))

    def hook_body(self, hooks, k):
        if self.detail == 1: self.stamp(f"h{k}i")
        hooks[k]()
        if self.detail == 1: self.stamp(f"h{k}o")

    L_KV = 108*1024
    S_INC = 75
    S_SLOW = 77
    def kv_dma(self, g):
        I = self.I
        I(f"""
        s_mul_i32 s{ST+5}, s{S_WV}, {KVT}
        s_add_u32 s{ST+4}, s{ST+5}, {self.L_KV + (4*g % 16)*KVT}
        s_mov_b32 m0, s{ST+4}
        s_add_u32 s{ST+5}, s{ST+5}, {KV + 4*g*KVT}
        buffer_load_dwordx4 v{V_L16}, {sr(S_WS)}, s{ST+5} offen lds
        buffer_load_dwordx4 v{V_L16}, {sr(S_WS)}, s{ST+5} offen offset:1024 lds
        buffer_load_dwordx4 v{V_L16}, {sr(S_WS)}, s{ST+5} offen offset:2048 lds
        s_mov_b64 exec, 0xffff
        buffer_load_dwordx4 v{V_L16}, {sr(S_WS)}, s{ST+5} offen offset:3072 lds
        s_mov_b64 exec, -1
        """)

    L_DUMMY = 104*1024
    V_BG = 202
    L_MODW = 96*1024
    def slot_setup(self, kind, arg=0):
        I = self.I
        DS = self.S_DS
        if kind == "unit":
            I(f"s_add_u32 s{DS}, s{self.S_WA}, {(16*arg-16)*1024 & 0xffffffff}\ns_add_u32 s76, s{self.S_LW}, {(16*arg-16)*1024 & 0xffffffff}\ns_mov_b32 s{self.S_INC}, 16384")
            return
        if kind == "act":
            base, per_tile, part = arg
            per_wave = 16*per_tile // 128
            I(f"""
            s_lshr_b32 s{DS}, s{S_RB}, 2
            s_mul_i32 s{DS}, s{DS}, {16*per_tile}
            s_and_b32 s{ST+6}, s{S_RB}, 3
            s_lshl_b32 s{ST+6}, s{ST+6}, 3
            s_add_u32 s{ST+6}, s{ST+6}, s{S_M}
            s_lshl_b32 s{ST+6}, s{ST+6}, 2
            s_add_u32 s{ST+6}, s{ST+6}, s{S_WV}
            s_mul_i32 s{ST+6}, s{ST+6}, {per_wave}
            s_add_u32 s{DS}, s{DS}, s{ST+6}
            s_add_u32 s{DS}, s{DS}, {base + 4096*part}
            """)
        elif kind == "mod":
            I(f"""
            v_mul_u32_u24 v245, 3277, v{V_L}
            v_lshrrev_b32 v245, 16, v245                        ; lane / 20
            v_mul_u32_u24 v{self.V_BG}, {2560 - 320}, v245
            v_add_u32 v{self.V_BG}, v{self.V_BG}, v{V_L16}      ; slice * 2560 + (lane % 20) * 16
            s_mul_i32 s{DS}, s{S_M}, 320
            s_add_u32 s{DS}, s{DS}, {MODG + 2*2560}
            s_mov_b32 s76, {self.L_MODW}
            s_mov_b32 s{self.S_INC}, 0
            """)
            return
        elif kind == "wsa":
            I(f"""
            s_and_b32 s{ST+6}, s{S_RB}, 3
            s_lshl_b32 s{ST+6}, s{ST+6}, 2
            s_add_u32 s{ST+6}, s{ST+6}, s{S_WV}
            s_mul_i32 s{ST+6}, s{ST+6}, {8*1024}
            s_add_u32 s{DS}, s{self.S_WA}, s{ST+6}
            s_sub_u32 s{DS}, s{DS}, s{self.S_LW}
            s_add_u32 s{DS}, s{DS}, {96*1024 + 4096*arg}
            """)
        else:
            I(f"s_mov_b32 s{DS}, {KV}")
        I(f"s_mov_b32 s76, {self.L_DUMMY}")

    def attn_hooks(self):
        I = self.I
        J = {}
        J[15] = (lambda: self.rl_issue(1), 0)
        def j14():
            lab = self.b.uid("L_j14")
            I(f"s_cmp_ge_u32 s{S_WV}, 2\ns_cbranch_scc1 {lab}\ns_waitcnt vmcnt(16)")
            self.rl_store(0)
            I(f"{lab}:")
        J[14] = (j14, 0)
        def j13():
            lab = self.b.uid("L_j13")
            I("s_waitcnt vmcnt(16)")
            I(f"s_cmp_lt_u32 s{S_WV}, 2\ns_cbranch_scc1 {lab}")
            self.rl_store(0)
            I(f"{lab}:")
            self.rl_store(1)
            self.sync_touch()
        J[13] = (j13, 2)
        def j11():
            I("s_waitcnt vmcnt(16)")
            self.rl_flag()
        J[11] = (j11, 0)
        def j8(): self.xid_issue(); self.rl_poll_issue(); self.ring_regs()
        J[8] = (j8, 1)
        def j7():
            I("s_waitcnt vmcnt(8)")
            self.rl_poll_eval()
        J[7] = (j7, 0)
        J[2] = (self.xid_eval, 0)
        if self.pfA:
            J[6] = (lambda: self.l2_prefetch("A", 0), 1); J[4] = (lambda: self.l2_prefetch("A", 1), 1)
        if self.pf3:
            J[6] = (lambda: self.l2_prefetch("3", 0), 2); J[4] = (lambda: self.l2_prefetch("3", 1), 2)
        if self.pf4:
            J[3] = (lambda: (self.l2_prefetch("4", 0), self.l2_prefetch("4", 1)), 2)
        SL = {16: ("act", (OF, 20480, 0)), 15: ("act", (L2F, 20480, 0)), 14: ("none", 0), 13: ("act", (H4F, 54*1024, 0)), 11: ("act", (H4F, 54*1024, 1)),
              10: ("none", 0), 7: ("unit", 0), 1: ("mod", 0)}
        if self.h4mode >= 1:
            del SL[13]; del SL[11]
        if not ALIAS: SL[14] = ("act", (GF, 20480, 0)); SL[13] = ("act", (L3F, 20480, 0))
        H = {}
        def mk(k):
            def f():
                if k in J and not self.nojobs: J[k][0]()
                if k in SL: self.slot_setup(*(SL[k] if not self.nojobs else ("none", 0)))
            return f
        for k in range(16, 0, -1):
            if k in J or k in SL: H[k] = mk(k)
        return H

    def ring_state_after_attn(self):
        self.units_issued = 6
        self.units_queued = 6
        self.pend = []
        self.consumed = -1
        self.vmq = []

    def build(self, force_slow=False, force_global=False):
        I = self.I
        self.force_global = force_global
        phases = [self.phase_start, self.phase_kv, self.phase_q, self.phase_kvwait,
                  lambda: self.phase_attn(force_slow), self.phase_wo, self.phase_w1, self.phase_w2, self.phase_w3, self.phase_w4]
        self.prologue()
        for i, p in enumerate(phases):
            if i >= self.stop_after: break
            p()
        if self.dbg_time:
            lab = self.b.uid("L_dt")
            self.srd(S_C, P_DBG, 256)
            I(f"""
            s_and_b32 s{ST}, s{S_W}, 63
            s_cmp_lg_u32 s{ST}, 63
            s_cbranch_scc1 {lab}
            s_cmp_lg_u32 s{S_WV}, 0
            s_cbranch_scc1 {lab}
            s_memrealtime s[{ST+2}:{ST+3}]
            s_lshr_b32 s{ST}, s{S_W}, 6
            s_lshl_b32 s{ST}, s{ST}, 2
            s_add_u32 s{ST}, s{ST}, 32
            s_waitcnt lgkmcnt(0)
            s_sub_u32 s{ST+2}, s{ST+2}, s{S_TAG}
            v_mov_b32 v254, s{ST+2}
            v_mov_b32 v253, s{ST}
            buffer_store_dword v254, v253, {sr(S_C)}, 0 offen sc1
            {lab}:
            """)
        I(f"""
        s_waitcnt vmcnt(0) lgkmcnt(0)
        s_endpgm
        L_fail:
        s_waitcnt vmcnt(0) lgkmcnt(0)
        """)
        self.srd(S_C, P_DBG, 256)
        I(f"""
        v_mov_b32 v254, s{S_ERR}
        v_mov_b32 v255, s{S_W}
        v_mov_b32 v253, 16
        buffer_store_dwordx2 v[254:255], v253, {sr(S_C)}, 0 offen sc1
        s_waitcnt vmcnt(0)
        L_end:
        s_endpgm
        L_code_end:
        """)
        text, n = finalize(self.b, check=not (self.x_nords or self.x_nokv or self.noslot), align=bool(self.align))
        hdr = open("adaLN_cond__grouped_kv_mqa__mixer_s_mlp__prompt.s.ref").read().split("; Override launch")[0]
        lines = [l for l in hdr.strip().split("\n")]
        lines.append(f"; @launch grid=(256,1,1) block=(256,1,1) lds={LDS_SZ}")
        lines += DOC.strip("\n").split("\n")
        return kernel_file(lines, [(NAME, text, 512, 256, 102)]), n

if __name__ == "__main__":
    import argparse
    ap = argparse.ArgumentParser()
    ap.add_argument("-o", default="adaLN_cond__grouped_kv_mqa__mixer_s_mlp__prompt.s")
    ap.add_argument("--stop", type=int, default=99)
    ap.add_argument("--stamps", action="store_true")
    ap.add_argument("--slow", action="store_true")
    ap.add_argument("--detail", type=int, default=-1)
    ap.add_argument("--cap", type=int, default=99)
    ap.add_argument("--set", action="append", default=[])
    ap.add_argument("--global", dest="glob", action="store_true")
    a = ap.parse_args()
    g = Gen(stop_after=a.stop, stamps=a.stamps)
    g.detail = a.detail
    g.cap_small = a.cap
    for kv in a.set:
        k_, v_ = kv.split('=')
        setattr(g, k_, float(v_) if '.' in v_ else int(v_))
    txt, n = g.build(force_slow=a.slow, force_global=a.glob)
    open(a.o, "w").write(txt)
    print("wrote", a.o, len(txt), "bytes; auto nops:", n, "stamps:", getattr(g, "stamp_names", None))
```

```python
import sys
from common import *

import struct
def f2u(x): return struct.unpack("<I", struct.pack("<f", x))[0]

NAME = "adaLN_cond__grouped_kv_mqa__mixer_s_mlp__prompt_kernel"
MODG   = 0x000000
KVFLAG = 0x004000
RLFLAG = 0x008000
STAT   = 0x020000
STAT_SZ = 32*8*64*16
KV     = 0x100000
KVT    = 3328
OF     = 0x200000
ACT_SZ = 128*20*1024
L2F    = OF + ACT_SZ
import os
ALIAS = os.environ.get('NOALIAS') is None
GF     = OF if ALIAS else L2F + ACT_SZ
L3F    = L2F if ALIAS else L2F + 2*ACT_SZ
H4F    = L2F + 3*ACT_SZ
H4_SZ  = 128*54*1024
WSA    = H4F + H4_SZ
WSA_M  = 304*1024
W3S    = WSA + 8*WSA_M
W3S_M  = 144*1024
W4S    = W3S + 16*W3S_M
W4S_M  = 272*1024
HG     = W4S + 8*W4S_M
XIDG   = HG + 16*20*1024
CFLAG  = XIDG + 4096
CF_LOC = 8*128*128
CF_PH  = 128*128
WS_END = CFLAG + 2*CF_LOC + 64*1024
DBGA   = WS_END
WS_REC = 0x4000000
PH_O, PH_L2, PH_G, PH_L3, PH_H4 = 0, 1, 2, 3, 4

L_WQ   = 0
L_WK   = 102400
L_WM   = 102400
L_SC   = 143360
L_MOD  = 144640
L_QS   = 149760
L_MISC = 161024
LDS_SZ = 163840
L_RL   = 0
L_W    = 0

S_WS = 4
S_A  = 8
S_B  = 12
S_C  = 16
S_TAG = 20
S_WV, S_M, S_RB, S_W = 22, 23, 24, 25
S_T0 = 26
S_TT = 27
S_ERR = 28
S_FAST = 3
P_X, P_WQ, P_WK, P_WV, P_WO, P_BX, P_W1, P_W2, P_W3, P_W4, P_C, P_WM, P_OUT, P_DBG, P_WS = [32 + 2*i for i in range(15)]
ST = 62

def sr(b, n=4): return f"s[{b}:{b+n-1}]"
def vr(b, n=4): return f"v[{b}:{b+n-1}]" if n > 1 else f"v{b}"
def ar(b, n=4): return f"a[{b}:{b+n-1}]" if n > 1 else f"a{b}"

V_L, V_T, V_G, V_L16 = 0, 1, 2, 3

TIMEOUT = 400000


DOC = """
;
;  1. mod = silu(c) @ w_mod (column blocks spread over workgroups), LN(x), h = LN(x)*(1+ca)+sa, K / V^T (members 0,1), Q.
;     The scores are used without subtracting a maximum only while a run-time bound proves it safe:
;     |q|^2 * max_k |k|^2 <= 64^2 (log2 units, Cauchy-Schwarz), so every exp2 argument lies in [-64, 64].
;  3. wo, LN, LN, w1 + gelu, token shift + w2, LN, w3 + gelu, w4: 64x80 output tiles, activations exchanged through d_ws in fragment order.
"""

class Gen:
    def __init__(self, stop_after=99, stamps=False):
        self.b = Builder()
        self.stop_after = stop_after
        self.stamps = stamps
        self.nstamp = 0
        self.detail = -1
        self.nojobs = 0
        self.dbg_time = 0
        self.align = 1
        self.x_nobar = 0
        self.x_nokv = 0
        self.x_nords = 0
        self.noslot = 0
        self.in_slow = False
        self.cap_small = 99
        self.burst = 6
        self.rate_small = 1.3
        self.rate_w3 = 3.5
        self.rate_w4 = 1.6
        self.epi_drip = 8
        self.post_drip = 0
        self.fine = 0
        self.xymode = 0
        self.tlb_early = 1
        self.gsleep = 0
        self.h4mode = 2
        self.wb_early = 0
        self.wb_who = 0
        self.out_sc1 = 0
        self.wq_touch = 1
        self.w3split = 0
        self.rate_w3a = 2.2
        self.rate_w3b = 1.5
        self.fill_n = 2
        self.pfA = 1
        self.pf4 = 0
        self.post_drip2 = 0
        self.post_drip3 = 0
        self.res3 = 0
        self.w4defer = 0
        self.shadow_f = 3
        self.shadow_s = 3
        self.resident = 0
        self.chunk4 = 4
        self.pub_after = 0
        self.visible = -1
        self.epi_drip2 = 6
        self.gd1 = 1
        self.gd3 = 2
        self.burst4 = 10
        self.use_pf = 0
        self.tlb_warm = 0
        self.touch_act = 0
        self.h4t_where = 0
        self.use_mall = 0
        self.pf3 = 0
        self.pub_drip = 0
    def I(self, t): self.b.I(t)
    def C(self, t): self.b.C(t)

    def srd(self, s, ptr, nbytes, add=0):
        if add:
            self.I(f"s_add_u32 s{s}, s{ptr}, {add}\ns_addc_u32 s{s+1}, s{ptr+1}, 0")
        else:
            self.I(f"s_mov_b32 s{s}, s{ptr}\ns_mov_b32 s{s+1}, s{ptr+1}")
        self.I(f"s_mov_b32 s{s+2}, {nbytes}\ns_mov_b32 s{s+3}, 0x20000")

    def stamp(self, name):
        if not self.stamps: return
        k = self.nstamp; self.nstamp += 1
        lab = self.b.uid("L_st")
        self.C(f"stamp {k}: {name}")
        self.I(f"""
        s_cmp_lg_u32 s{S_WV}, 0
        s_cbranch_scc1 {lab}
        s_memrealtime s[100:101]
        s_memtime s[96:97]
        s_lshl_b32 s99, s{S_W}, 11
        s_add_u32 s99, s99, {DBGA + 16*k}
        s_waitcnt lgkmcnt(0)
        v_mov_b32 v252, s100
        v_mov_b32 v253, s101
        v_mov_b32 v254, s96
        v_mov_b32 v255, s97
        v_mov_b32 v251, s99
        buffer_store_dwordx4 v[252:255], v251, {sr(S_WS)}, 0 offen
        s_nop 1
        {lab}:
        """)
        self.stamp_names = getattr(self, "stamp_names", []) + [name]

    def spin_tail(self, cnt, loop, code):
        if code in (2, 3) and self.gsleep: self.I(f"s_sleep {self.gsleep}")
        self.I(f"""
        s_sub_u32 s{cnt}, s{cnt}, 1
        s_cmp_lg_u32 s{cnt}, 0
        s_cbranch_scc1 {loop}
        s_mov_b32 s{S_ERR}, {code}
        s_branch L_fail
        """)

    def get_tag(self):
        lp = self.b.uid("L_tag"); ok = self.b.uid("L_tagok")
        self.srd(S_C, P_DBG, 256)
        self.I(f"""
        s_mov_b32 s{ST}, {TIMEOUT}
        v_mov_b32 v252, 0
        {lp}:
        buffer_load_dwordx2 v[254:255], v252, {sr(S_C)}, 0 offen sc1
        s_waitcnt vmcnt(0)
        v_readfirstlane_b32 s{S_TAG}, v254
        v_readfirstlane_b32 s{S_TAG+1}, v255
        s_cmp_lg_u32 s{S_TAG}, 0
        s_cbranch_scc1 {ok}
        """)
        self.spin_tail(ST, lp, 1)
        self.I(f"{ok}:")

    def reduce_g(self, regs, tmp, op="v_add_f32"):
        for sw in ("v_permlane16_swap_b32", "v_permlane32_swap_b32"):
            for i, r in enumerate(regs):
                self.I(f"v_mov_b32 v{tmp+i}, v{r}")
            for i, r in enumerate(regs):
                self.I(f"{sw} v{r}, v{tmp+i}")
            for i, r in enumerate(regs):
                self.I(f"{op} v{r}, v{r}, v{tmp+i}")

    def prologue(self):
        I = self.I
        I(f"""
        s_cmp_ge_u32 s2, 256
        s_cbranch_scc1 L_end
        s_load_dwordx16 s[32:47], s[0:1], 0
        s_load_dwordx8 s[48:55], s[0:1], 64
        s_load_dwordx4 s[56:59], s[0:1], 96
        s_load_dwordx2 s[60:61], s[0:1], 112
        v_lshrrev_b32 v1, 6, v0
        v_and_b32 v{V_L}, 63, v0
        v_readfirstlane_b32 s{S_WV}, v1
        v_and_b32 v{V_T}, 15, v{V_L}
        v_lshrrev_b32 v{V_G}, 4, v{V_L}
        v_lshlrev_b32 v{V_L16}, 4, v{V_L}
        s_mov_b32 s{S_W}, s2
        s_and_b32 s{ST}, s2, 7
        s_lshr_b32 s{ST+1}, s2, 3
        s_and_b32 s{S_M}, s{ST+1}, 7
        s_lshr_b32 s{ST+1}, s{ST+1}, 3
        s_lshl_b32 s{ST}, s{ST}, 2
        s_add_u32 s{S_RB}, s{ST}, s{ST+1}
        s_lshl_b32 s{S_T0}, s{S_RB}, 6
        s_lshl_b32 s{S_TT}, s{S_RB}, 2
        s_add_u32 s{S_TT}, s{S_TT}, s{S_WV}
        s_mov_b32 s{S_ERR}, 0
        """)
        self.C("request the kernel's own code into this XCD's L2: workgroup j of the 32 in a row group takes lines 16j..16j+15 (wave 0)")
        labc = self.b.uid("L_cp")
        I(f"""
        s_cmp_lg_u32 s{S_WV}, 0
        s_cbranch_scc1 {labc}
        s_getpc_b64 s[{ST+2}:{ST+3}]
        L_pcref:
        s_lshr_b32 s{ST+4}, s2, 3
        s_lshl_b32 s{ST+4}, s{ST+4}, 11                       ; 16 lines * 128 B
        v_lshlrev_b32 v4, 7, v{V_L}
        v_add_u32 v4, s{ST+4}, v4
        v_cmp_gt_u32 vcc, L_code_end-L_pcref-4, v4
        s_and_b64 vcc, vcc, 0xffff
        s_and_saveexec_b64 s[{ST+4}:{ST+5}], vcc
        s_cbranch_execz {labc}_x
        global_load_dword a252, v4, s[{ST+2}:{ST+3}]
        {labc}_x:
        s_mov_b64 exec, s[{ST+4}:{ST+5}]
        {labc}:
        s_waitcnt lgkmcnt(0)
        """)
        self.srd(S_WS, P_WS, WS_REC)
        lab = self.b.uid("L_non")
        self.srd(S_C, P_DBG, 256)
        I(f"""
        s_lshl_b32 s{ST}, s2, 2
        s_add_u32 s{ST}, s{ST}, s{S_WV}
        s_cmp_lg_u32 s{ST}, 0
        s_cbranch_scc1 {lab}
        s_memrealtime s[{S_TAG}:{S_TAG+1}]
        s_waitcnt lgkmcnt(0)
        s_or_b32 s{S_TAG}, s{S_TAG}, 1
        v_mov_b32 v254, s{S_TAG}
        v_mov_b32 v255, s{S_TAG+1}
        v_mov_b32 v252, 0
        s_mov_b64 exec, 1
        buffer_store_dwordx2 v[254:255], v252, {sr(S_C)}, 0 offen sc1
        s_mov_b64 exec, -1
        {lab}:
        """)
        self.stamp("start")

    XF = 4
    XH = 84
    TMP = 244

    def tag_issue(self):
        self.srd(S_C, P_DBG, 256)
        self.I(f"v_mov_b32 v241, 0\nbuffer_load_dwordx2 v[242:243], v241, {sr(S_C)}, 0 offen sc1")

    def tag_eval(self):
        I = self.I
        lp = self.b.uid("L_tag"); ok = self.b.uid("L_tagok")
        I(f"""
        s_mov_b32 s{ST}, {TIMEOUT}
        {lp}:
        v_readfirstlane_b32 s{S_TAG}, v242
        v_readfirstlane_b32 s{S_TAG+1}, v243
        s_cmp_lg_u32 s{S_TAG}, 0
        s_cbranch_scc1 {ok}
        """)
        self.tag_issue()
        I("s_waitcnt vmcnt(0)")
        self.spin_tail(ST, lp, 1)
        I(f"{ok}:")

    S_PROD2 = 80
    S_PROD, S_P = 80, 81

    LWM, LSC, LMI = L_WM, L_SC, L_MISC + 64
    def mod_dma(self, cdst=None):
        I = self.I
        TMP = self.MT
        self.srd(S_B, P_C, 1280)
        I(f"""
        s_mul_i32 s{ST+4}, s{S_WV}, 320
        v_lshlrev_b32 v{TMP+2}, 3, v{V_L}
        buffer_load_dwordx2 {cdst or f'v[{TMP+4}:{TMP+5}]'}, v{TMP+2}, {sr(S_B)}, s{ST+4} offen
        """)
        self.srd(S_A, P_WM, 640*7680)
        I(f"""
        v_lshrrev_b32 v{TMP}, 2, v{V_L}
        v_mul_u32_u24 v{TMP}, 7680, v{TMP}
        v_and_b32 v{TMP+1}, 3, v{V_L}
        v_lshl_add_u32 v{TMP}, v{TMP+1}, 4, v{TMP}
        s_mul_i32 s{ST+1}, s{S_WV}, {160*7680}
        s_lshl_b32 s{ST+2}, s{self.S_P}, 6                   ; p*64 bytes
        s_add_u32 s{ST+1}, s{ST+1}, s{ST+2}
        s_mul_i32 s{ST+3}, s{S_WV}, {160*64}
        s_add_u32 s{ST+3}, s{ST+3}, {self.LWM}
        """)
        for i in range(10):
            I(f"""
            s_mov_b32 m0, s{ST+3}
            s_add_u32 s{ST+3}, s{ST+3}, 1024
            buffer_load_dwordx4 v{TMP}, {sr(S_A)}, s{ST+1} offen lds
            s_add_u32 s{ST+1}, s{ST+1}, {16*7680}
            """)

    MT2 = 244
    MT3 = 228
    MT = 228
    def mod_gemv(self, W, wait_c, wait_w, wait_tag, BBr=None):
        I = self.I
        TMP = self.MT
        T = TMP + 4
        I(f"""
        s_waitcnt vmcnt({wait_c})
        v_lshlrev_b32 v{TMP+6}, 16, v{T}
        v_and_b32 v{TMP+7}, 0xffff0000, v{T}
        v_lshlrev_b32 v{TMP+8}, 16, v{T+1}
        v_and_b32 v{TMP+9}, 0xffff0000, v{T+1}
        """)
        for i in range(4):
            r = TMP + 6 + i
            I(f"""
            v_mul_f32 v{TMP+3}, 0xbfb8aa3b, v{r}
            v_exp_f32 v{TMP+3}, v{TMP+3}
            v_add_f32 v{TMP+3}, 1.0, v{TMP+3}
            v_rcp_f32 v{TMP+3}, v{TMP+3}
            v_mul_f32 v{r}, v{r}, v{TMP+3}
            """)
        va, vb, WA, BB, ACC = W, W+1, W+4, W+44, W+64
        if BBr is not None: BB, ACC = BBr, W+44
        I(f"""
        v_cvt_pk_bf16_f32 v{T}, v{TMP+6}, v{TMP+7}
        v_cvt_pk_bf16_f32 v{T+1}, v{TMP+8}, v{TMP+9}
        s_mul_i32 s{ST+4}, s{S_WV}, 320
        s_add_u32 s{ST+4}, s{ST+4}, {self.LSC}
        v_lshlrev_b32 v{TMP+2}, 3, v{V_L}
        v_add_u32 v{TMP+2}, s{ST+4}, v{TMP+2}
        s_mov_b32 exec_hi, 0xff
        ds_write_b64 v{TMP+2}, v[{T}:{T+1}]
        s_mov_b32 exec_hi, -1
        v_lshrrev_b32 v{va}, 2, v{V_T}
        v_lshl_add_u32 v{va}, v{V_G}, 2, v{va}
        v_lshlrev_b32 v{va}, 6, v{va}                       ; 64*(4g+(i>>2))
        v_and_b32 v{vb}, 3, v{V_T}
        v_lshl_add_u32 v{va}, v{vb}, 3, v{va}
        s_mul_i32 s{ST}, s{S_WV}, {160*64}
        s_add_u32 s{ST}, s{ST}, {self.LWM}
        v_add_u32 v{va}, s{ST}, v{va}
        v_lshlrev_b32 v{vb}, 3, v{V_G}
        v_add_u32 v{vb}, s{ST+4}, v{vb}
        s_waitcnt vmcnt({wait_w}) lgkmcnt(0)
        """)
        for s_ in range(5):
            I(f"ds_read_b64 v[{BB+4*s_}:{BB+4*s_+1}], v{vb} offset:{64*s_}\nds_read_b64 v[{BB+4*s_+2}:{BB+4*s_+3}], v{vb} offset:{64*s_+32}")
        for s_ in range(5):
            for tl in range(2):
                W_ = WA + 8*s_ + 4*tl
                I(f"ds_read_b64_tr_b16 v[{W_}:{W_+1}], v{va} offset:{2048*s_+32*tl}\nds_read_b64_tr_b16 v[{W_+2}:{W_+3}], v{va} offset:{2048*s_+32*tl+1024}")
        I("s_waitcnt lgkmcnt(0)")
        for s_ in range(5):
            for tl in range(2):
                I(f"v_mfma_f32_16x16x32_bf16 {vr(ACC+4*tl)}, {vr(WA+8*s_+4*tl)}, {vr(BB+4*s_)}, {'0' if s_ == 0 else vr(ACC+4*tl)}")
        I(f"""
        s_lshl_b32 s{ST}, s{S_WV}, 7
        s_add_u32 s{ST}, s{ST}, {self.LMI}
        v_lshlrev_b32 v{va}, 4, v{V_G}
        v_add_u32 v{va}, s{ST}, v{va}
        v_cmp_eq_u32 vcc, 0, v{V_T}
        s_and_saveexec_b64 s[{ST+4}:{ST+5}], vcc
        ds_write_b128 v{va}, {vr(ACC)}
        ds_write_b128 v{va}, {vr(ACC+4)} offset:64
        s_mov_b64 exec, s[{ST+4}:{ST+5}]
        s_waitcnt lgkmcnt(0)
        s_barrier
        """)
        lab_gd = self.b.uid("L_gd")
        I(f"s_cmp_lg_u32 s{S_WV}, 0\ns_cbranch_scc1 {lab_gd}")
        I(f"""
        v_lshlrev_b32 v{va}, 4, v{V_L}
        v_and_b32 v{va}, 0x7f, v{va}
        v_add_u32 v{va}, {self.LMI}, v{va}
        ds_read_b128 {vr(WA)}, v{va}
        ds_read_b128 {vr(WA+4)}, v{va} offset:128
        ds_read_b128 {vr(WA+8)}, v{va} offset:256
        ds_read_b128 {vr(WA+12)}, v{va} offset:384
        """)
        if wait_tag is not None:
            I(f"s_waitcnt vmcnt({wait_tag})")
            self.tag_eval()
        I("s_waitcnt lgkmcnt(0)")
        for r in range(4):
            I(f"v_add_f32 v{WA+r}, v{WA+r}, v{WA+4+r}\nv_add_f32 v{WA+8+r}, v{WA+8+r}, v{WA+12+r}\nv_add_f32 v{WA+r}, v{WA+r}, v{WA+8+r}")
        I(f"""
        v_cvt_pk_bf16_f32 v{ACC+4}, v{WA}, v{WA+1}
        v_cvt_pk_bf16_f32 v{ACC+5}, v{WA+2}, v{WA+3}
        v_mov_b32 v{ACC+6}, s{S_TAG}
        v_mov_b32 v{ACC+7}, s{S_TAG+1}
        s_lshl_b32 s{ST}, s{self.S_P}, 7                     ; p*8 granules*16 B
        s_mov_b64 exec, 0xff
        buffer_store_dwordx4 {vr(ACC+4)}, v{V_L16}, {sr(S_WS)}, s{ST} offen offset:{MODG} sc1
        s_mov_b64 exec, -1
        {lab_gd}:
        """)

    def line_touch(self, srd, voff, soff, nl):
        I = self.I
        if nl < 64: I(f"v_cmp_gt_u32 vcc, {nl}, v{V_L}\ns_and_saveexec_b64 s[{ST+6}:{ST+7}], vcc")
        I(f"buffer_load_dword a255, v{voff}, {sr(srd)}, s{soff} offen")
        if nl < 64: I(f"s_mov_b64 exec, s[{ST+6}:{ST+7}]")

    def wq_ops(self):
        I = self.I
        V = 239
        so, lo = ST+12, ST+13
        self.srd(S_A, P_WQ, 640*1280)
        I(f"""
        v_mul_u32_u24 v{V}, 205, v{V_L}
        v_lshrrev_b32 v{V}, 11, v{V}
        v_mul_u32_u24 v{V-1}, 10, v{V}
        v_sub_u32 v{V-1}, v{V_L}, v{V-1}
        v_mul_u32_u24 v{V}, 1280, v{V}
        v_lshl_add_u32 v{V}, v{V-1}, 4, v{V}
        s_mul_i32 s{so}, s{S_M}, 160
        s_mul_i32 s{lo}, s{S_WV}, {6*1280}
        s_add_u32 s{so}, s{so}, s{lo}
        s_mul_i32 s{lo}, s{S_WV}, 960
        s_sub_u32 m0, s{lo}, 3840
        s_sub_u32 s{so}, s{so}, {24*1280}
        """)
        def mk(i):
            def f():
                if i == 26:
                    lab = self.b.uid("L_wq")
                    I(f"""
                    s_cmp_ge_u32 s{S_WV}, 3
                    s_cbranch_scc1 {lab}
                    s_cmp_eq_u32 s{S_WV}, 2
                    s_mov_b32 s{ST+14}, 0x0fffffff
                    s_cselect_b32 exec_hi, 0xff, s{ST+14}
                    s_add_u32 m0, m0, 3840
                    s_add_u32 s{so}, s{so}, {24*1280}
                    buffer_load_dwordx4 v{V}, {sr(S_A)}, s{so} offen lds
                    s_mov_b32 exec_hi, -1
                    {lab}:
                    """)
                else:
                    I(f"""
                    s_add_u32 m0, m0, 3840
                    s_add_u32 s{so}, s{so}, {24*1280}
                    buffer_load_dwordx4 v{V}, {sr(S_A)}, s{so} offen lds
                    """)
            return f
        return [mk(i) for i in range(27)]

    def phase_start(self):
        I, C = self.I, self.C
        XF, XH, TMP = self.XF, self.XH, self.TMP
        PR, P = self.S_PROD, self.S_P
        C("---- mod producers: members 2..5; column pair P = x + 8k (k = 2*rbl + (m-2)/2) < 60, block p = 2P + (m-2)%2; P < 20 is critical")
        I(f"""
        s_sub_u32 s{ST}, s{S_M}, 2                           ; m-2
        s_and_b32 s{ST+1}, s{S_RB}, 3
        s_lshl_b32 s{ST+1}, s{ST+1}, 1
        s_lshr_b32 s{ST+2}, s{ST}, 1
        s_add_u32 s{ST+1}, s{ST+1}, s{ST+2}
        s_lshl_b32 s{ST+1}, s{ST+1}, 3
        s_lshr_b32 s{ST+2}, s{S_RB}, 2
        s_add_u32 s{ST+1}, s{ST+1}, s{ST+2}                  ; P
        s_lshl_b32 s{P}, s{ST+1}, 1
        s_and_b32 s{ST+2}, s{ST}, 1
        s_add_u32 s{P}, s{P}, s{ST+2}
        s_cmp_lt_u32 s{ST+1}, 20
        s_cselect_b32 s{PR}, 1, 2
        s_cmp_lt_u32 s{ST+1}, 60
        s_cselect_b32 s{PR}, s{PR}, 0
        s_cmp_lt_u32 s{ST}, 4
        s_cselect_b32 s{PR}, s{PR}, 0
        """)
        C("every workgroup requests 1/32 of the critical w_mod lines of its row group: 3 column pairs x 640 rows = 1920 lines, 60 per workgroup (15 per wave)")
        self.srd(S_A, P_WM, 640*7680)
        I(f"""
        s_and_b32 s{ST}, s{S_RB}, 3
        s_lshl_b32 s{ST}, s{ST}, 3
        s_add_u32 s{ST}, s{ST}, s{S_M}
        s_lshl_b32 s{ST}, s{ST}, 2
        s_add_u32 s{ST}, s{ST}, s{S_WV}
        s_mul_i32 s{ST}, s{ST}, 15
        v_add_u32 v{XH}, s{ST}, v{V_L}
        v_mul_u32_u24 v{XH+1}, 6554, v{XH}
        v_lshrrev_b32 v{XH+1}, 22, v{XH+1}                   ; /640
        v_mul_u32_u24 v{XH+2}, 640, v{XH+1}
        v_sub_u32 v{XH+2}, v{XH}, v{XH+2}                    ; row
        v_mul_u32_u24 v{XH+2}, 7680, v{XH+2}
        v_lshlrev_b32 v{XH+1}, 10, v{XH+1}
        v_add_u32 v{XH+2}, v{XH+2}, v{XH+1}
        s_lshr_b32 s{ST}, s{S_RB}, 2
        s_lshl_b32 s{ST}, s{ST}, 7                           ; x * 128 B
        """)
        self.line_touch(S_A, XH+2, ST, 15)
        self.srd(S_C, P_X, 2048*1280)
        XO = XH
        I(f"""
        v_lshlrev_b32 v{XO+6}, 7, v{V_L}
        s_lshl_b32 s{ST}, s{S_M}, 2
        s_add_u32 s{ST}, s{ST}, s{S_WV}
        s_mul_i32 s{ST}, s{ST}, 2560
        s_mul_i32 s{ST+1}, s{S_RB}, {64*1280}
        s_add_u32 s{ST}, s{ST}, s{ST+1}
        """)
        self.line_touch(S_C, XO+6, ST, 20)
        lab_np = self.b.uid("L_np"); lab_j = self.b.uid("L_npj")
        I(f"s_cmp_lg_u32 s{PR}, 1\ns_cbranch_scc1 {lab_np}")
        self.mod_dma()
        self.tag_issue()
        self.mod_gemv(XH+8, 11, 1, 0)
        self.srd(S_C, P_X, 2048*1280)
        I(f"s_branch {lab_j}\n{lab_np}:")
        self.tag_issue()
        self.srd(S_C, P_X, 2048*1280)
        I(f"{lab_j}:")
        self.stamp("modpub")
        C("x: the wave's rows -> LDS, 16-byte chunks XOR-swizzled by the row")
        I(f"s_lshl_b32 s{ST}, s{S_TT}, 4")
        for qq in range(4):
            I(f"""
            v_add_u32 v{XO+4}, {4*qq}, v{V_G}                      ; row
            v_xor_b32 v{XO+5}, v{XO+4}, v{V_T}
            v_add_u32 v{XO+4}, s{ST}, v{XO+4}
            v_mul_u32_u24 v{XO+4}, 1280, v{XO+4}
            v_lshl_add_u32 v{XO+qq}, v{XO+5}, 4, v{XO+4}
            """)
        I(f"s_mul_i32 s{ST+1}, s{S_WV}, 20480")
        for G in range(5):
            I(f"s_mov_b32 s{ST+2}, {256*G}")
            for qq in range(4):
                I(f"s_mov_b32 m0, s{ST+1}\ns_add_u32 s{ST+1}, s{ST+1}, 1024\nbuffer_load_dwordx4 v{XO+qq}, {sr(S_C)}, s{ST+2} offen lds")
        lab_nk = self.b.uid("L_nk")
        I(f"""
        s_cmp_ge_u32 s{S_M}, 2
        s_cbranch_scc1 {lab_nk}
        s_cmp_eq_u32 s{S_M}, 0
        s_cselect_b32 s{S_A}, s{P_WK}, s{P_WV}
        s_cselect_b32 s{S_A+1}, s{P_WK+1}, s{P_WV+1}
        s_mov_b32 s{S_A+2}, 25600
        s_mov_b32 s{S_A+3}, 0x20000
        s_mul_i32 s{ST}, s{S_WV}, 7168
        s_add_u32 s{ST+1}, s{ST}, {L_WK}
        """)
        for i in range(7):
            I(f"""
            s_mov_b32 m0, s{ST+1}
            s_add_u32 s{ST+1}, s{ST+1}, 1024
            buffer_load_dwordx4 v{V_L16}, {sr(S_A)}, s{ST} offen lds
            s_add_u32 s{ST}, s{ST}, 1024
            """)
        I(f"{lab_nk}:")
        if self.wq_touch == 1:
            C("wq: request this workgroup's 1/32 of the matrix (200 lines, 50 per wave)")
            self.srd(S_B, P_WQ, 640*1280)
            I(f"""
            s_and_b32 s{ST}, s{S_RB}, 3
            s_lshl_b32 s{ST}, s{ST}, 3
            s_add_u32 s{ST}, s{ST}, s{S_M}
            s_lshl_b32 s{ST}, s{ST}, 2
            s_add_u32 s{ST}, s{ST}, s{S_WV}
            s_mul_i32 s{ST}, s{ST}, 6400
            """)
            self.line_touch(S_B, XO+6, ST, 50)
        else:
            I(f"v_mov_b32 v{XO+7}, 0\nbuffer_load_dword a255, v{XO+7}, {sr(S_C)}, 0 offen")
        self.stamp("issued")
        C("x fragments: lane (t,g): k = 32s+4g (+16)")
        AD = XH + 8
        I(f"""
        s_mul_i32 s{ST}, s{S_WV}, 20480
        v_lshlrev_b32 v{TMP}, 8, v{V_T}
        v_add_u32 v{TMP}, s{ST}, v{TMP}
        v_and_b32 v{TMP+1}, 1, v{V_G}
        v_lshl_add_u32 v{TMP}, v{TMP+1}, 3, v{TMP}            ; + 8*(g&1)
        v_lshrrev_b32 v{TMP+1}, 1, v{V_G}                     ; g>>1
        """)
        for a_ in range(4):
            for e in range(2):
                I(f"""
                v_add_u32 v{TMP+2}, {4*a_+2*e}, v{TMP+1}
                v_xor_b32 v{TMP+2}, v{TMP+2}, v{V_T}
                v_lshl_add_u32 v{AD+2*a_+e}, v{TMP+2}, 4, v{TMP}
                """)
        RS_ = XH + 16
        I(f"s_mul_i32 s{ST+1}, s{S_M}, 10")
        for j in range(5):
            I(f"""
            s_add_u32 s{ST+2}, s{ST+1}, {2*j}
            v_add_u32 v{TMP+2}, s{ST+2}, v{TMP+1}
            v_lshrrev_b32 v{TMP+3}, 4, v{TMP+2}
            v_and_b32 v{TMP+2}, 15, v{TMP+2}
            v_xor_b32 v{TMP+2}, v{TMP+2}, v{V_T}
            v_lshl_add_u32 v{TMP+2}, v{TMP+2}, 4, v{TMP}
            v_lshl_add_u32 v{RS_+j}, v{TMP+3}, 12, v{TMP+2}
            """)
        lw1 = self.b.uid("L_xw"); lwj = self.b.uid("L_xw")
        I(f"""
        s_cmp_lt_u32 s{S_M}, 2
        s_cbranch_scc1 {lw1}
        s_waitcnt vmcnt(1)
        s_branch {lwj}
        {lw1}:
        s_waitcnt vmcnt(8)
        {lwj}:
        """)
        for s_ in range(20):
            for e in range(2):
                I(f"ds_read_b64 v[{XF+4*s_+2*e}:{XF+4*s_+2*e+1}], v{AD+2*(s_&3)+e} offset:{4096*(s_>>2)}")
        for j in range(5):
            I(f"ds_read_b64 v[{XH+24+2*j}:{XH+25+2*j}], v{RS_+j}")
        self.tag_eval()
        I("s_waitcnt lgkmcnt(0)")
        for j in range(10): I(f"v_accvgpr_write_b32 a{j}, v{XH+24+j}")
        I("s_barrier")
        if self.wq_touch == 2:
            self.srd(S_B, P_WQ, 640*1280)
            I(f"""
            v_lshlrev_b32 v{XH+6}, 7, v{V_L}
            s_and_b32 s{ST}, s{S_RB}, 3
            s_lshl_b32 s{ST}, s{ST}, 3
            s_add_u32 s{ST}, s{ST}, s{S_M}
            s_lshl_b32 s{ST}, s{ST}, 2
            s_add_u32 s{ST}, s{ST}, s{S_WV}
            s_mul_i32 s{ST}, s{ST}, 6400
            """)
            self.line_touch(S_B, XH+6, ST, 50)
        wq = self.wq_ops()
        if self.tlb_early:
            labt = self.b.uid("L_tlb")
            I(f"s_cmp_lg_u32 s{S_WV}, 3\ns_cbranch_scc1 {labt}\nv_lshlrev_b32 v{XH+7}, 20, v{V_L}")
            I(f"s_mov_b64 exec, {hex((1 << ((WS_END >> 20) + 1)) - 1)}\nbuffer_load_dword a254, v{XH+7}, {sr(S_WS)}, 0 offen\ns_mov_b64 exec, 7")
            for ptr, nb in ((P_WO, 640*1280), (P_W1, 640*1280), (P_W2, 640*1280), (P_W3, 640*3456), (P_W4, 1728*1280), (P_OUT, 2048*1280)):
                self.srd(S_B, ptr, nb)
                I(f"buffer_load_dword a254, v{XH+7}, {sr(S_B)}, 0 offen")
            I(f"s_mov_b64 exec, -1\n{labt}:")
        self.stamp("xfrag")
        C("LN1 stats: sum via ones-MFMA, sumsq via Gram diagonal")
        ONES, D1, D2 = TMP, TMP+4, TMP+8
        for i in range(4): I(f"v_mov_b32 v{ONES+i}, 0x3f803f80")
        for s in range(20):
            I(f"v_mfma_f32_16x16x32_bf16 {vr(D1)}, {vr(ONES)}, {vr(XF+4*s)}, {'0' if s == 0 else vr(D1)}")
            I(f"v_mfma_f32_16x16x32_bf16 {vr(D2)}, {vr(XF+4*s)}, {vr(XF+4*s)}, {'0' if s == 0 else vr(D2)}")
            if s % 2 == 0 and wq: wq.pop(0)()
        MU, RS, T1, T2 = XH, XH+1, XH+2, XH+3
        I(f"""
        v_and_b32 v{T1}, 3, v{V_T}
        v_cmp_eq_u32 vcc, 1, v{T1}
        v_cndmask_b32 v{T2}, v{D2}, v{D2+1}, vcc
        v_cmp_eq_u32 vcc, 2, v{T1}
        v_cndmask_b32 v{T2}, v{T2}, v{D2+2}, vcc
        v_cmp_eq_u32 vcc, 3, v{T1}
        v_cndmask_b32 v{T2}, v{T2}, v{D2+3}, vcc
        v_lshrrev_b32 v{T1}, 2, v{V_T}
        v_lshl_add_u32 v{T1}, v{T1}, 4, v{V_T}
        v_lshlrev_b32 v{T1}, 2, v{T1}
        ds_bpermute_b32 v{T2}, v{T1}, v{T2}
        v_mul_f32 v{MU}, {1.0/640!r}, v{D1}
        s_waitcnt lgkmcnt(0)
        v_mul_f32 v{T2}, {1.0/640!r}, v{T2}
        v_fma_f32 v{T2}, -v{MU}, v{MU}, v{T2}
        v_max_f32 v{T2}, 0, v{T2}
        v_add_f32 v{T2}, 0x3727c5ac, v{T2}
        v_rsq_f32 v{RS}, v{T2}
        s_nop 0
        v_mul_f32 v{MU}, v{MU}, v{RS}
        v_sub_f32 v{TMP}, 0, v{MU}                           ; -mu*rstd
        v_mov_b32 v{TMP+1}, v{TMP}
        v_mov_b32 v{TMP+2}, v{RS}
        v_mov_b32 v{TMP+3}, v{RS}
        """)
        C("xhat = x*rstd - mu*rstd (fp32)")
        for s in range(20):
            for q in range(4):
                src = XF + 4*s + q
                d = XH + 8*s + 2*q
                if d + 1 >= 238 and False: pass
                I(f"v_lshlrev_b32 v{d}, 16, v{src}\nv_and_b32 v{d+1}, 0xffff0000, v{src}")
            for q in range(4):
                d = XH + 8*s + 2*q
                I(f"v_pk_fma_f32 v[{d}:{d+1}], v[{d}:{d+1}], v[{TMP+2}:{TMP+3}], v[{TMP}:{TMP+1}]")
            if s < 17 and wq: wq.pop(0)()
        assert not wq
        self.stamp("xhat")
        G0 = TMP+4
        lp = self.b.uid("L_mp"); ok = self.b.uid("L_mpok")
        I(f"""
        s_mul_i32 s{ST+1}, s{S_WV}, {80*16}
        v_add_u32 v{TMP+2}, s{ST+1}, v{V_L16}
        v_add_u32 v{TMP+3}, 1024, v{TMP+2}
        v_cmp_gt_u32 vcc, 16, v{V_L}
        v_cndmask_b32 v{TMP+3}, v{TMP+2}, v{TMP+3}, vcc
        s_mov_b32 s{ST}, {TIMEOUT}
        {lp}:
        buffer_load_dwordx4 {vr(G0)}, v{TMP+2}, {sr(S_WS)}, 0 offen offset:{MODG} sc1
        buffer_load_dwordx4 {vr(G0+4)}, v{TMP+3}, {sr(S_WS)}, 0 offen offset:{MODG} sc1
        s_waitcnt vmcnt(0)
        v_cmp_ne_u32 vcc, s{S_TAG}, v{G0+2}
        s_mov_b64 s[{ST+2}:{ST+3}], vcc
        v_cmp_ne_u32 vcc, s{S_TAG+1}, v{G0+3}
        s_or_b64 s[{ST+2}:{ST+3}], s[{ST+2}:{ST+3}], vcc
        v_cmp_ne_u32 vcc, s{S_TAG}, v{G0+6}
        s_or_b64 s[{ST+2}:{ST+3}], s[{ST+2}:{ST+3}], vcc
        v_cmp_ne_u32 vcc, s{S_TAG+1}, v{G0+7}
        s_or_b64 s[{ST+2}:{ST+3}], s[{ST+2}:{ST+3}], vcc
        s_cmp_eq_u64 s[{ST+2}:{ST+3}], 0
        s_cbranch_scc1 {ok}
        """)
        self.spin_tail(ST, lp, 2)
        I(f"{ok}:")
        for blk, av in ((G0, TMP+2), (G0+4, TMP+3)):
            I(f"""
            v_and_b32 v{blk+3}, 0xffff0000, v{blk+1}
            v_lshlrev_b32 v{blk+2}, 16, v{blk+1}
            v_and_b32 v{blk+1}, 0xffff0000, v{blk}
            v_lshlrev_b32 v{blk}, 16, v{blk}
            """)
        lab_a = self.b.uid("L_a")
        I(f"s_cmp_lt_u32 s{S_WV}, 2\ns_cbranch_scc1 {lab_a}")
        for blk in (G0, G0+4):
            for q in range(4): I(f"v_add_f32 v{blk+q}, 1.0, v{blk+q}")
            I(f"""
            v_cvt_pk_bf16_f32 v{blk}, v{blk}, v{blk+1}
            v_cvt_pk_bf16_f32 v{blk+2}, v{blk+2}, v{blk+3}
            v_and_b32 v{blk+1}, 0xffff0000, v{blk}
            v_lshlrev_b32 v{blk}, 16, v{blk}
            v_and_b32 v{blk+3}, 0xffff0000, v{blk+2}
            v_lshlrev_b32 v{blk+2}, 16, v{blk+2}
            """)
        I(f"""
        {lab_a}:
        v_add_u32 v{TMP+2}, {L_MOD}, v{TMP+2}
        v_add_u32 v{TMP+3}, {L_MOD}, v{TMP+3}
        ds_write_b128 v{TMP+2}, {vr(G0)}
        ds_write_b128 v{TMP+3}, {vr(G0+4)}
        s_waitcnt lgkmcnt(0)
        s_barrier
        """)
        self.stamp("modgot")
        C("h1 = xhat*A + B -> bf16 fragments (overwrites XF).  all DMAs (wq, wk) were waited by vmcnt(0) above, barrier publishes them")
        va = TMP
        I(f"v_lshlrev_b32 v{va}, 4, v{V_G}\nv_add_u32 v{va}, {L_MOD}, v{va}")
        def buf(s): return (XF + 48 + 16*(s & 1)) if s < 12 else (XH + 16*(s & 1))
        def rd(s):
            B_ = buf(s)
            for hf in range(2):
                I(f"ds_read_b128 {vr(B_+4*hf)}, v{va} offset:{2560 + 128*s + 64*hf}")
                I(f"ds_read_b128 {vr(B_+8+4*hf)}, v{va} offset:{128*s + 64*hf}")
        rd(0)
        for s in range(20):
            if s + 1 < 20: rd(s+1)
            I(f"s_waitcnt lgkmcnt({4 if s + 1 < 20 else 0})")
            B_ = buf(s)
            for q in range(4):
                d = XH + 8*s + 2*q
                I(f"v_pk_fma_f32 v[{d}:{d+1}], v[{d}:{d+1}], v[{B_+2*q}:{B_+2*q+1}], v[{B_+8+2*q}:{B_+8+2*q+1}]")
            for q in range(4):
                d = XH + 8*s + 2*q
                I(f"v_cvt_pk_bf16_f32 v{XF+4*s+q}, v{d}, v{d+1}")
        labd = self.b.uid("L_dg")
        I(f"s_cmp_lg_u32 s{self.S_PROD}, 2\ns_cbranch_scc1 {labd}")
        self.MT = self.MT3
        self.mod_dma(cdst="a[250:251]")
        I(f"{labd}:")
        self.stamp("h1")

    def phase_kv(self):
        I, C = self.I, self.C
        XF, XH = self.XF, self.XH
        lab_end = self.b.uid("L_kvend"); lab_v = self.b.uid("L_v"); lab_pub = self.b.uid("L_kvpub")
        va, vb, W0, ACC0, ACC1, T = XH, XH+1, XH+4, XH+24, XH+28, XH+32
        I(f"""
        s_cmp_ge_u32 s{S_M}, 2
        s_cbranch_scc1 {lab_end}
        v_lshrrev_b32 v{va}, 2, v{V_T}
        v_lshl_add_u32 v{va}, v{V_G}, 2, v{va}
        v_mul_u32_u24 v{va}, 40, v{va}
        v_and_b32 v{vb}, 3, v{V_T}
        v_lshl_add_u32 v{va}, v{vb}, 3, v{va}
        v_add_u32 v{va}, {L_WK}, v{va}
        s_cmp_eq_u32 s{S_M}, 1
        s_cbranch_scc1 {lab_v}
        """)
        def loop(isv):
            WK = XH + 48
            def rd(s):
                o = WK + (s % 4)*8
                I(f"""
                ds_read_b64_tr_b16 v[{o}:{o+1}], v{va} offset:{1280*s}
                ds_read_b64_tr_b16 v[{o+2}:{o+3}], v{va} offset:{1280*s+640}
                ds_read_b64_tr_b16 v[{o+4}:{o+5}], v{va} offset:{1280*s+32}
                ds_read_b64_tr_b16 v[{o+6}:{o+7}], v{va} offset:{1280*s+672}
                """)
            for s in range(3): rd(s)
            for s in range(20):
                if s + 3 < 20: rd(s+3)
                I(f"s_waitcnt lgkmcnt({4*min(3, 19-s)})")
                o2 = WK + (s % 4)*8
                for tl, acc in ((0, ACC0), (1, ACC1)):
                    w = vr(o2+4*tl); x = vr(XF+4*s)
                    c = '0' if s == 0 else vr(acc)
                    if isv: I(f"v_mfma_f32_16x16x32_bf16 {vr(acc)}, {x}, {w}, {c}")
                    else:   I(f"v_mfma_f32_16x16x32_bf16 {vr(acc)}, {w}, {x}, {c}")
        C("K: D[dim 4g+r][token t]")
        loop(False)
        I(f"""
        v_mul_f32 v{T}, v{ACC0}, v{ACC0}
        v_fmac_f32 v{T}, v{ACC0+1}, v{ACC0+1}
        v_fmac_f32 v{T}, v{ACC0+2}, v{ACC0+2}
        v_fmac_f32 v{T}, v{ACC0+3}, v{ACC0+3}
        v_mul_f32 v{T+1}, v{ACC1}, v{ACC1}
        v_fmac_f32 v{T+1}, v{ACC1+1}, v{ACC1+1}
        v_fmac_f32 v{T+1}, v{ACC1+2}, v{ACC1+2}
        v_fmac_f32 v{T+1}, v{ACC1+3}, v{ACC1+3}
        v_cmp_eq_u32 vcc, 0, v{V_G}
        v_cndmask_b32 v{T+1}, 0, v{T+1}, vcc
        v_add_f32 v{T}, v{T}, v{T+1}
        """)
        self.reduce_g([T], T+2)
        for sh in (8, 4, 2, 1):
            I(f"v_mov_b32_dpp v{T+2}, v{T} row_ror:{sh} row_mask:0xf bank_mask:0xf\nv_max_f32 v{T}, v{T}, v{T+2}")
        I(f"""
        s_lshl_b32 s{ST}, s{S_WV}, 2
        s_add_u32 s{ST}, s{ST}, {L_MISC}
        v_mov_b32 v{T+2}, s{ST}
        ds_write_b32 v{T+2}, v{T}
        """)
        I(f"""
        v_cvt_pk_bf16_f32 v{T+4}, v{ACC0}, v{ACC0+1}
        v_cvt_pk_bf16_f32 v{T+5}, v{ACC0+2}, v{ACC0+3}
        v_cvt_pk_bf16_f32 v{T+6}, v{ACC1}, v{ACC1+1}
        v_cvt_pk_bf16_f32 v{T+7}, v{ACC1+2}, v{ACC1+3}
        s_lshr_b32 s{ST}, s{S_TT}, 1
        s_mul_i32 s{ST}, s{ST}, {KVT}
        s_add_u32 s{ST}, s{ST}, {KV}
        s_and_b32 s{ST+1}, s{S_TT}, 1
        s_lshl_b32 s{ST+1}, s{ST+1}, 4
        v_add_u32 v{T+8}, s{ST+1}, v{V_T}                    ; kk
        v_lshrrev_b32 v{T+9}, 1, v{V_G}
        v_lshl_add_u32 v{T+9}, v{T+9}, 5, v{T+8}             ; kk+32*(g>>1)
        v_lshlrev_b32 v{T+9}, 4, v{T+9}
        v_and_b32 v{T+10}, 1, v{V_G}
        v_lshl_add_u32 v{T+9}, v{T+10}, 3, v{T+9}
        buffer_store_dwordx2 v[{T+4}:{T+5}], v{T+9}, {sr(S_WS)}, s{ST} offen sc1
        v_lshlrev_b32 v{T+8}, 3, v{T+8}
        v_cmp_eq_u32 vcc, 0, v{V_G}
        s_and_saveexec_b64 s[{ST+4}:{ST+5}], vcc
        buffer_store_dwordx2 v[{T+6}:{T+7}], v{T+8}, {sr(S_WS)}, s{ST} offen offset:1024 sc1
        s_mov_b64 exec, s[{ST+4}:{ST+5}]
        s_branch {lab_pub}
        {lab_v}:
        """)
        C("V^T: D[token 4g+r][d = lane&15]")
        loop(True)
        I(f"""
        v_cvt_pk_bf16_f32 v{T+4}, v{ACC0}, v{ACC0+1}
        v_cvt_pk_bf16_f32 v{T+5}, v{ACC0+2}, v{ACC0+3}
        v_cvt_pk_bf16_f32 v{T+6}, v{ACC1}, v{ACC1+1}
        v_cvt_pk_bf16_f32 v{T+7}, v{ACC1+2}, v{ACC1+3}
        v_cmp_gt_u32 vcc, 4, v{V_T}
        v_cndmask_b32 v{T+6}, 0, v{T+6}, vcc
        v_cndmask_b32 v{T+7}, 0, v{T+7}, vcc
        v_cmp_eq_u32 vcc, 4, v{V_T}
        v_mov_b32 v{T+11}, 0x3f803f80
        v_cndmask_b32 v{T+6}, v{T+6}, v{T+11}, vcc
        v_cndmask_b32 v{T+7}, v{T+7}, v{T+11}, vcc
        s_lshr_b32 s{ST}, s{S_TT}, 1
        s_mul_i32 s{ST}, s{ST}, {KVT}
        s_and_b32 s{ST+1}, s{S_TT}, 1
        s_lshl_b32 s{ST+1}, s{ST+1}, 10
        s_add_u32 s{ST}, s{ST}, s{ST+1}
        s_add_u32 s{ST}, s{ST}, {KV+1280}
        v_and_b32 v{T+9}, 1, v{V_G}
        v_lshl_add_u32 v{T+9}, v{T+9}, 5, v{V_T}             ; d + 32*(g&1)
        v_lshlrev_b32 v{T+9}, 4, v{T+9}
        v_lshrrev_b32 v{T+10}, 1, v{V_G}
        v_lshl_add_u32 v{T+9}, v{T+10}, 3, v{T+9}
        buffer_store_dwordx2 v[{T+4}:{T+5}], v{T+9}, {sr(S_WS)}, s{ST} offen sc1
        buffer_store_dwordx2 v[{T+6}:{T+7}], v{T+9}, {sr(S_WS)}, s{ST} offen offset:256 sc1
        v_mov_b32 v{T}, 0
        s_lshl_b32 s{ST}, s{S_WV}, 2
        s_add_u32 s{ST}, s{ST}, {L_MISC}
        v_mov_b32 v{T+2}, s{ST}
        ds_write_b32 v{T+2}, v{T}
        {lab_pub}:
        s_waitcnt vmcnt(0) lgkmcnt(0)
        s_barrier
        """)
        lab_np = self.b.uid("L_kvnp")
        I(f"""
        s_cmp_lg_u32 s{S_WV}, 0
        s_cbranch_scc1 {lab_np}
        v_mov_b32 v{T+2}, {L_MISC}
        ds_read_b128 {vr(T+4)}, v{T+2}
        s_waitcnt lgkmcnt(0)
        v_max_f32 v{T+4}, v{T+4}, v{T+5}
        v_max_f32 v{T+6}, v{T+6}, v{T+7}
        v_max_f32 v{T+6}, v{T+4}, v{T+6}
        v_mov_b32 v{T+4}, s{S_TAG}
        v_mov_b32 v{T+5}, s{S_TAG+1}
        v_mov_b32 v{T+7}, 0
        s_lshl_b32 s{ST}, s{S_RB}, 1
        s_add_u32 s{ST}, s{ST}, s{S_M}
        s_lshl_b32 s{ST}, s{ST}, 7
        s_add_u32 s{ST}, s{ST}, {KVFLAG}
        v_mov_b32 v{T+2}, s{ST}
        s_mov_b64 exec, 1
        buffer_store_dwordx4 {vr(T+4)}, v{T+2}, {sr(S_WS)}, 0 offen sc1
        s_mov_b64 exec, -1
        {lab_np}:
        {lab_end}:
        """)
        self.stamp("kvpub")

    QA0, QA1, QB0, QB1 = 44, 48, 52, 56
    SA, SB = 60, 76
    PA, PB = 92, 100
    OA, OB = 108, 124
    KB = 140
    VB = 172
    AT = 204

    def phase_q(self):
        I, C = self.I, self.C
        XF, XH = self.XF, self.XH
        va, vb, WB, ACC = XH, XH+1, XH+4, XH+64
        I(f"""
        v_lshrrev_b32 v{va}, 2, v{V_T}
        v_lshl_add_u32 v{va}, v{V_G}, 2, v{va}
        v_mul_u32_u24 v{va}, 160, v{va}
        v_and_b32 v{vb}, 3, v{V_T}
        v_lshl_add_u32 v{va}, v{vb}, 3, v{va}
        v_add_u32 v{vb}, 51200, v{va}
        """)
        issued = []
        def rd1(s, j):
            base = va if s < 10 else vb
            o = 5120*(s % 10)
            W_ = WB + 20*(s % 3) + 4*j
            I(f"ds_read_b64_tr_b16 v[{W_}:{W_+1}], v{base} offset:{L_WQ + o + 32*j}")
            I(f"ds_read_b64_tr_b16 v[{W_+2}:{W_+3}], v{base} offset:{L_WQ + o + 32*j + 2560}")
            issued.append((s, j))
        for s in range(2):
            for j in range(5): rd1(s, j)
        for s in range(20):
            younger = 2*(len(issued) - 1 - issued.index((s, 4)))
            I(f"s_waitcnt lgkmcnt({min(15, younger)})")
            for j in range(5):
                I(f"v_mfma_f32_16x16x32_bf16 {vr(ACC+4*j)}, {vr(WB+20*(s%3)+4*j)}, {vr(XF+4*s)}, {'0' if s == 0 else vr(ACC+4*j)}")
                if s + 2 < 20: rd1(s+2, j)
        qs = (20 ** -0.5) * 1.4426950408889634
        I(f"s_mov_b32 s{ST}, {hex(f2u(qs))}")
        C("scale, pack, write wave-private [16][176B] tile")
        I(f"""
        s_mul_i32 s{ST+1}, s{S_WV}, {16*176}
        s_add_u32 s{ST+1}, s{ST+1}, {L_QS}
        v_mul_u32_u24 v{va}, 176, v{V_T}
        v_lshl_add_u32 v{va}, v{V_G}, 3, v{va}
        v_add_u32 v{va}, s{ST+1}, v{va}
        """)
        for j in range(5):
            a = ACC + 4*j
            for r in range(4): I(f"v_mul_f32 v{a+r}, s{ST}, v{a+r}")
            I(f"v_cvt_pk_bf16_f32 v{a}, v{a}, v{a+1}\nv_cvt_pk_bf16_f32 v{a+1}, v{a+2}, v{a+3}")
            I(f"ds_write_b64 v{va}, v[{a}:{a+1}] offset:{32*j}")
        AT = self.AT
        I(f"""
        v_mul_u32_u24 v{vb}, 176, v{V_T}
        v_bfe_u32 v{va}, v{V_L}, 4, 1
        v_mul_u32_u24 v{va}, 40, v{va}
        v_add_u32 v{vb}, v{vb}, v{va}
        v_add_u32 v{vb}, s{ST+1}, v{vb}                      ; token*176 + (q>>4)*40
        v_lshrrev_b32 v{va}, 5, v{V_L}
        v_lshl_add_u32 v{va}, v{va}, 4, v{vb}                ; + 16h
        s_waitcnt lgkmcnt(0)
        ds_read_b64 v[{self.QA0}:{self.QA0+1}], v{va}
        ds_read_b64 v[{self.QA0+2}:{self.QA0+3}], v{va} offset:8
        ds_read_b64 v[{self.QB0}:{self.QB0+1}], v{va} offset:80
        ds_read_b64 v[{self.QB0+2}:{self.QB0+3}], v{va} offset:88
        ds_read_b64 v[{self.QA1}:{self.QA1+1}], v{vb} offset:32
        ds_read_b64 v[{self.QB1}:{self.QB1+1}], v{vb} offset:112
        v_cmp_gt_u32 vcc, 32, v{V_L}
        s_waitcnt lgkmcnt(0)
        """)
        for r in (self.QA1, self.QA1+1, self.QB1, self.QB1+1):
            I(f"v_cndmask_b32 v{r}, 0, v{r}, vcc")
        for (t, q0, q1) in ((AT, self.QA0, self.QA1), (AT+1, self.QB0, self.QB1)):
            I(f"v_mov_b32 v{t}, 0")
            for r in (q0, q0+1, q0+2, q0+3, q1, q1+1):
                I(f"v_dot2_f32_bf16 v{t}, v{r}, v{r}, v{t}")
        for t in (AT, AT+1):
            I(f"v_mov_b32 v{AT+2}, v{t}\nv_permlane32_swap_b32 v{t}, v{AT+2}\nv_add_f32 v{t}, v{t}, v{AT+2}")
        I(f"v_max_f32 v{AT}, v{AT}, v{AT+1}")
        I("s_barrier")
        self.stamp("qproj")

    RL_OFF, RL_TR, RL_D = 4, 11, 12
    S_RKS, S_RDS, RL_TRS = (78, 82), (79, 83), (11, 40)
    S_RD2S = (74, 73)
    def rl_issue(self, rnd):
        I = self.I
        self.S_RK, self.S_RD, self.RL_TR = self.S_RKS[rnd], self.S_RDS[rnd], self.RL_TRS[rnd]
        u, A0, A1 = ST+4, ST+5, ST+6
        lk4 = self.b.uid("L_r4"); lk3 = self.b.uid("L_r3"); lA = self.b.uid("L_rA"); lend = self.b.uid("L_re")
        I(f"""
        s_lshl_b32 s{u}, s{S_W}, 2
        s_add_u32 s{u}, s{u}, s{S_WV}
        """)
        if rnd == 1:
            I(f"""
            s_mov_b32 s{self.S_RK}, 2
            s_cmp_lt_u32 s{S_M}, 6
            s_cbranch_scc1 {lend}
            s_lshl_b32 s{u}, s{S_RB}, 1
            s_add_u32 s{u}, s{u}, s{S_M}
            s_sub_u32 s{u}, s{u}, 6
            s_lshl_b32 s{u}, s{u}, 2
            s_add_u32 s{u}, s{u}, s{S_WV}
            s_add_u32 s{u}, s{u}, 1024
            s_cmp_ge_u32 s{u}, 1232
            s_cbranch_scc1 {lend}
            s_branch {lk3}
            """)
        else:
            I(f"""
            s_cmp_ge_u32 s{u}, 912
            s_cbranch_scc1 {lk3}
            s_cmp_ge_u32 s{u}, 480
            s_cbranch_scc1 {lk4}
            s_mul_i32 s{A0}, s{u}, 410
            s_lshr_b32 s{A0}, s{A0}, 16                 ; p = u/160
            s_mul_i32 s{A1}, s{A0}, 160
            s_sub_u32 s{u}, s{u}, s{A1}                 ; r
            s_cmp_eq_u32 s{A0}, 1
            s_cselect_b32 s{S_A}, s{P_W1}, s{P_WO}
            s_cselect_b32 s{S_A+1}, s{P_W1+1}, s{P_WO+1}
            s_cmp_eq_u32 s{A0}, 2
            s_cselect_b32 s{S_A}, s{P_W2}, s{S_A}
            s_cselect_b32 s{S_A+1}, s{P_W2+1}, s{S_A+1}
            s_mov_b32 s{S_A+2}, {640*1280}
            s_mul_i32 s{A0}, s{A0}, 100                 ; p*100
            s_mul_i32 s{A1}, s{u}, 3277
            s_lshr_b32 s{A1}, s{A1}, 16                 ; m = r/20
            s_mul_i32 s{ST+7}, s{A1}, 20
            s_sub_u32 s{u}, s{u}, s{ST+7}               ; kb
            s_mul_i32 s{ST+7}, s{u}, 5
            s_add_u32 s{A0}, s{A0}, s{ST+7}
            s_lshl_b32 s{A0}, s{A0}, 10
            s_mul_i32 s{ST+7}, s{A1}, {WSA_M}
            s_add_u32 s{A0}, s{A0}, s{ST+7}
            s_add_u32 s{self.S_RD}, s{A0}, {WSA}
            s_branch {lA}
            {lk4}:
            s_sub_u32 s{u}, s{u}, 480
            s_mov_b32 s{S_A}, s{P_W4}
            s_mov_b32 s{S_A+1}, s{P_W4+1}
            s_mov_b32 s{S_A+2}, {1728*1280}
            s_mul_i32 s{A1}, s{u}, 1214
            s_lshr_b32 s{A1}, s{A1}, 16                 ; m = r/54
            s_mul_i32 s{ST+7}, s{A1}, 54
            s_sub_u32 s{u}, s{u}, s{ST+7}               ; kb
            s_mul_i32 s{A0}, s{u}, 5120
            s_mul_i32 s{ST+7}, s{A1}, {W4S_M}
            s_add_u32 s{A0}, s{A0}, s{ST+7}
            s_add_u32 s{self.S_RD}, s{A0}, {W4S}
            {lA}:
            s_mov_b32 s{S_A+3}, 0x20000
            s_mov_b32 s{self.S_RK}, 0
            s_mul_i32 s{u}, s{u}, {32*1280}
            s_mul_i32 s{A1}, s{A1}, 160
            s_add_u32 s{u}, s{u}, s{A1}
            s_mul_i32 s{A0}, s{S_WV}, 14336
            """)
            O = self.RL_OFF
            for q in range(5):
                I(f"""
                v_add_u32 v{O+5}, {64*q}, v{V_L}
                v_mul_u32_u24 v{O+6}, 6554, v{O+5}
                v_lshrrev_b32 v{O+6}, 16, v{O+6}
                v_mul_u32_u24 v{O+q}, {1280-160}, v{O+6}
                v_lshl_add_u32 v{O+q}, v{O+5}, 4, v{O+q}
                """)
            for q in range(5):
                I(f"s_mov_b32 m0, s{A0}\ns_add_u32 s{A0}, s{A0}, 1024\nbuffer_load_dwordx4 v{O+q}, {sr(S_A)}, s{u} offen lds")
            I(f"""
            v_lshrrev_b32 v{self.RL_TR}, 2, v{V_T}
            v_lshl_add_u32 v{self.RL_TR}, v{V_G}, 2, v{self.RL_TR}
            v_mul_u32_u24 v{self.RL_TR}, 160, v{self.RL_TR}
            s_branch {lend}_tr
            """)
        I(f"""
        {lk3}:
        s_sub_u32 s{u}, s{u}, 912
        s_mov_b32 s{S_A}, s{P_W3}
        s_mov_b32 s{S_A+1}, s{P_W3+1}
        s_mov_b32 s{S_A+2}, {640*3456}
        s_mov_b32 s{S_A+3}, 0x20000
        s_mov_b32 s{self.S_RK}, 1
        s_mul_i32 s{A1}, s{u}, 3277
        s_lshr_b32 s{A1}, s{A1}, 16                 ; m16 = r/20
        s_mul_i32 s{ST+7}, s{A1}, 20
        s_sub_u32 s{u}, s{u}, s{ST+7}               ; kb
        s_mul_i32 s{ST+7}, s{A1}, {W3S_M}
        s_add_u32 s{ST+7}, s{ST+7}, {W3S}
        s_mul_i32 s{A0}, s{u}, {4096 if self.w3split else 7168}
        s_add_u32 s{self.S_RD}, s{A0}, s{ST+7}               ; tiles 0..3
        s_mul_i32 s{A0}, s{u}, {3072 if self.w3split else 7168}
        s_add_u32 s{A0}, s{A0}, s{ST+7}
        s_add_u32 s{self.S_RD2S[rnd]}, s{A0}, {80*1024 if self.w3split else 4096}      ; tiles 4..6
        s_mul_i32 s{A0}, s{A1}, 7
        s_sub_u32 s{ST+7}, s{A1}, 12
        s_max_i32 s{ST+7}, s{ST+7}, 0
        s_sub_u32 s{A0}, s{A0}, s{ST+7}
        s_lshl_b32 s{A0}, s{A0}, 5
        s_mul_i32 s{u}, s{u}, {32*3456}
        s_add_u32 s{u}, s{u}, s{A0}
        s_mul_i32 s{A0}, s{S_WV}, 14336
        s_add_u32 s{A0}, s{A0}, {7168*rnd}
        """)
        O = self.RL_OFF
        for q in range(7):
            I(f"""
            v_add_u32 v{self.RL_D}, {64*q}, v{V_L}
            v_mul_u32_u24 v{self.RL_D+1}, 4682, v{self.RL_D}
            v_lshrrev_b32 v{self.RL_D+1}, 16, v{self.RL_D+1}
            v_mul_u32_u24 v{O+q}, {3456-224}, v{self.RL_D+1}
            v_lshl_add_u32 v{O+q}, v{self.RL_D}, 4, v{O+q}
            """)
        for q in range(7):
            I(f"s_mov_b32 m0, s{A0}\ns_add_u32 s{A0}, s{A0}, 1024\nbuffer_load_dwordx4 v{O+q}, {sr(S_A)}, s{u} offen lds")
        I(f"""
        v_lshrrev_b32 v{self.RL_TR}, 2, v{V_T}
        v_lshl_add_u32 v{self.RL_TR}, v{V_G}, 2, v{self.RL_TR}
        v_mul_u32_u24 v{self.RL_TR}, 224, v{self.RL_TR}
        {lend}_tr:
        v_and_b32 v{self.RL_D}, 3, v{V_T}
        v_lshl_add_u32 v{self.RL_TR}, v{self.RL_D}, 3, v{self.RL_TR}
        s_mul_i32 s{A0}, s{S_WV}, 14336
        s_add_u32 s{A0}, s{A0}, {7168*rnd}
        v_add_u32 v{self.RL_TR}, s{A0}, v{self.RL_TR}
        {lend}:
        """)

    def rl_store(self, rnd):
        I = self.I
        self.S_RK, self.S_RD, self.RL_TR = self.S_RKS[rnd], self.S_RDS[rnd], self.RL_TRS[rnd]
        l7 = self.b.uid("L_rs7"); lend = self.b.uid("L_rse")
        D = self.RL_D
        I(f"s_cmp_eq_u32 s{self.S_RK}, 2\ns_cbranch_scc1 {lend}\ns_cmp_eq_u32 s{self.S_RK}, 1\ns_cbranch_scc1 {l7}")
        for (nt, rowb, last) in ((5, 160, False), (7, 224, True)):
            if last: I(f"{l7}:")
            for j in range(nt):
                I(f"ds_read_b64_tr_b16 v[{D+4*j}:{D+4*j+1}], v{self.RL_TR} offset:{32*j}")
                I(f"ds_read_b64_tr_b16 v[{D+4*j+2}:{D+4*j+3}], v{self.RL_TR} offset:{32*j+16*rowb}")
            if nt == 5: I(f"s_add_u32 s{ST+4}, s{self.S_RD}, 4096")
            else: I(f"s_mov_b32 s{ST+4}, s{self.S_RD2S[rnd]}")
            I("s_waitcnt lgkmcnt(0)")
            for j in range(nt):
                I(f"buffer_store_dwordx4 {vr(D+4*j)}, v{V_L16}, {sr(S_WS)}, s{self.S_RD if j < 4 else ST+4} offen offset:{1024*(j%4)} sc1")
            if not last: I(f"s_branch {lend}")
        I(f"{lend}:")

    def rl_flag(self):
        I = self.I
        lab = self.b.uid("L_rlp")
        I(f"""
        s_barrier
        s_cmp_lg_u32 s{S_WV}, 0
        s_cbranch_scc1 {lab}
        v_mov_b32 v252, s{S_TAG}
        v_mov_b32 v253, s{S_TAG+1}
        s_lshl_b32 s{ST+4}, s{S_W}, 7
        s_add_u32 s{ST+4}, s{ST+4}, {RLFLAG}
        v_mov_b32 v251, s{ST+4}
        s_mov_b64 exec, 1
        buffer_store_dwordx2 v[252:253], v251, {sr(S_WS)}, 0 offen sc1
        s_mov_b64 exec, -1
        {lab}:
        """)

    def phase_kvwait(self):
        I = self.I
        AT = self.AT
        lp = self.b.uid("L_kvw"); ok = self.b.uid("L_kvok")
        I(f"""
        v_lshlrev_b32 v{AT+3}, 7, v{V_L}
        s_mov_b32 s{ST}, {TIMEOUT}
        s_mov_b32 s{ST+1}, {KVFLAG}
        {lp}:
        buffer_load_dwordx4 {vr(AT+4)}, v{AT+3}, {sr(S_WS)}, s{ST+1} offen sc1
        """)
        I(f"""
        s_waitcnt vmcnt(0)
        v_cmp_ne_u32 vcc, s{S_TAG}, v{AT+4}
        s_mov_b64 s[{ST+2}:{ST+3}], vcc
        v_cmp_ne_u32 vcc, s{S_TAG+1}, v{AT+5}
        s_or_b64 s[{ST+2}:{ST+3}], s[{ST+2}:{ST+3}], vcc
        s_cmp_eq_u64 s[{ST+2}:{ST+3}], 0
        s_cbranch_scc1 {ok}
        """)
        self.spin_tail(ST, lp, 3)
        I(f"{ok}:")
        self.reduce_g([AT+6], AT+2, op="v_max_f32")
        for sh in (8, 4, 2, 1):
            I(f"v_mov_b32_dpp v{AT+2}, v{AT+6} row_ror:{sh} row_mask:0xf bank_mask:0xf\nv_max_f32 v{AT+6}, v{AT+6}, v{AT+2}")
        I(f"v_mov_b32 v{AT+1}, v{AT+6}")
        self.xid_publish()
        labg = self.b.uid("L_dg")
        I(f"s_cmp_lg_u32 s{self.S_PROD}, 2\ns_cbranch_scc1 {labg}")
        I(f"v_accvgpr_read_b32 v248, a250\nv_accvgpr_read_b32 v249, a251")
        self.MT = self.MT2
        self.mod_gemv(60, 63, 63, None)
        I("s_barrier")
        I(f"{labg}:")
        self.stamp("kvwait")

    def kv_loads(self, i, sK, sV):
        raise NotImplementedError

    def phase_attn(self, force_slow=False):
        I, C = self.I, self.C
        QA0, QA1, QB0, QB1, SA, SB, PA, PB, OA, OB, KB, VB, AT = (self.QA0, self.QA1, self.QB0, self.QB1, self.SA, self.SB,
            self.PA, self.PB, self.OA, self.OB, self.KB, self.VB, self.AT)
        sK, sV, cnt = 85, 86, 87
        vK1 = AT+2
        lab_slow = self.b.uid("L_slow"); lab_done = self.b.uid("L_adone")
        C("bound check: |q|^2 * kmax2 <= T^2 (log2 units) else true-max path")
        Tlim = 64.0
        I(f"""
        v_mul_f32 v{AT}, v{AT}, v{AT+1}
        v_and_b32 v{vK1}, 31, v{V_L}
        v_lshlrev_b32 v{vK1}, 3, v{vK1}
        s_mov_b32 s{ST+3}, {hex(f2u(Tlim*Tlim if not force_slow else -1.0))}
        v_cmp_nge_f32 vcc, s{ST+3}, v{AT}
        """)
        I(f"s_cmp_lg_u64 vcc, 0\ns_cselect_b32 s{self.S_SLOW}, 1, 0")
        for r in range(16): I(f"v_mov_b32 v{OA+r}, 0\nv_mov_b32 v{OB+r}, 0")
        KVL = self.L_KV
        vK16, vK8 = 200, 201
        KR, VR = 16, 48
        def kreg(buf): return KR + 8*buf
        def vreg(buf): return VR + 8*buf
        def rdK(t):
            k = kreg(t % 4); o = (t % 16)*KVT
            I(f"ds_read_b128 {ar(k)}, v{vK16} offset:{o}")
            I(f"ds_read_b64 a[{k+4}:{k+5}], v{vK8} offset:{o+1024}")
        def rdV(t, which=(0, 1)):
            v = vreg(t % 4); o = (t % 16)*KVT
            if 0 in which: I(f"ds_read_b128 {ar(v)}, v{vK16} offset:{o+1280}")
            if 1 in which: I(f"ds_read_b128 {ar(v+4)}, v{vK16} offset:{o+2304}")
        I(f"v_add_u32 v{vK16}, {KVL}, v{V_L16}\nv_add_u32 v{vK8}, {KVL}, v{vK1}\nv_mov_b32 v{self.V_BG}, v{V_L16}")
        for g in range(3): self.kv_dma(g)
        for r in range(16): I(f"v_mov_b32 v{SB+r}, 0xff800000")
        for r in range(8): I(f"v_mov_b32 v{PA+r}, 0")
        for r in range(8): I(f"v_accvgpr_write_b32 a{vreg(3)+r}, 0")
        self.rl_issue(0)
        I("s_waitcnt vmcnt(9)\ns_barrier")
        rdK(0); rdK(1); rdV(0)
        I(f"s_mov_b32 s{cnt}, 16")
        lp = self.b.uid("L_att"); lhk = [self.b.uid("L_hook") for _ in range(5)]; lback = [self.b.uid("L_back") for _ in range(4)]
        hooks = self.attn_hooks()
        mask = sum(1 << k for k in hooks)
        def exps(S, P, q):
            a = S + 4*q
            I(f"v_exp_f32 v{a}, v{a}\nv_exp_f32 v{a+1}, v{a+1}\nv_exp_f32 v{a+2}, v{a+2}\nv_exp_f32 v{a+3}, v{a+3}")
            I(f"v_cvt_pk_bf16_f32 v{P+2*q}, v{a}, v{a+1}\nv_cvt_pk_bf16_f32 v{P+2*q+1}, v{a+2}, v{a+3}")
        M16 = "v_mfma_f32_32x32x16_bf16"; M8 = "v_mfma_f32_32x32x8_bf16"
        SKS, SKL, SBM = 86, 85, 76
        def copy_slot(q, e):
            n = 2*(q & 1) + e
            if self.x_nokv: return
            if q < 2:
                if n == 3: I("s_mov_b64 exec, 0xffff")
                I(f"buffer_load_dwordx4 v{V_L16}, {sr(S_WS)}, s{SKS} offen offset:{1024*n} lds")
                if n == 3: I(f"s_mov_b64 exec, -1\ns_mov_b32 m0, s{SBM}")
            elif not self.noslot:
                I(f"buffer_load_dwordx4 v{self.V_BG}, {sr(S_WS)}, s{self.S_DS} offen offset:{1024*n} lds")
        def header(part):
            I("s_waitcnt vmcnt(12) lgkmcnt(4)")
            if not self.x_nobar: I("s_barrier")
            I(f"""
            s_bitcmp1_b32 s84, s{cnt}
            s_cbranch_scc1 {lhk[part]}
            {lback[part]}:
            s_add_u32 s{SKS}, s{SKS}, {4*KVT}
            s_add_u32 m0, s{SKL}, {((part + 3) % 4)*4*KVT}
            s_add_u32 s{self.S_DS}, s{self.S_DS}, s{self.S_INC}
            s_add_u32 s{SBM}, s{SBM}, s{self.S_INC}
            """)
        def body(i, qk=True, last=False):
            kb = kreg(i % 4); vb = vreg((i+3) % 4)
            k2 = kreg((i+2) % 4); ok = ((i+2) % 16)*KVT
            v1 = vreg((i+1) % 4); ov = ((i+1) % 16)*KVT
            if qk:
                I(f"{M16} {vr(SA,16)}, {ar(kb)}, {vr(QA0)}, 0")
                if not self.x_nords: I(f"ds_read_b128 {ar(k2)}, v{vK16} offset:{ok}")
            exps(SB, PB, 0)
            if qk:
                I(f"{M8} {vr(SA,16)}, a[{kb+4}:{kb+5}], v[{QA1}:{QA1+1}], {vr(SA,16)}")
            exps(SB, PB, 1)
            I(f"{M16} {vr(OA,16)}, {ar(vb)}, {vr(PA)}, {vr(OA,16)}")
            if qk and not self.x_nords: I(f"ds_read_b64 a[{k2+4}:{k2+5}], v{vK8} offset:{ok+1024}")
            exps(SB, PB, 2)
            I(f"{M16} {vr(OA,16)}, {ar(vb+4)}, {vr(PA+4)}, {vr(OA,16)}")
            if qk: copy_slot(i % 4, 0)
            exps(SB, PB, 3)
            if qk:
                I(f"{M16} {vr(SB,16)}, {ar(kb)}, {vr(QB0)}, 0")
                if not self.x_nords: I(f"ds_read_b128 {ar(v1)}, v{vK16} offset:{ov+1280}")
                exps(SA, PA, 0)
                I(f"{M8} {vr(SB,16)}, a[{kb+4}:{kb+5}], v[{QB1}:{QB1+1}], {vr(SB,16)}")
                copy_slot(i % 4, 1)
                exps(SA, PA, 1)
            I(f"{M16} {vr(OB,16)}, {ar(vb)}, {vr(PB)}, {vr(OB,16)}")
            if qk:
                if not self.x_nords: I(f"ds_read_b128 {ar(v1+4)}, v{vK16} offset:{ov+2304}")
                exps(SA, PA, 2)
            I(f"{M16} {vr(OB,16)}, {ar(vb+4)}, {vr(PB+4)}, {vr(OB,16)}")
            if qk:
                if i % 4 == 3:
                    I(f"s_sub_u32 s{cnt}, s{cnt}, 1")
                    header((i // 4 + 1) % 4)
                else:
                    I("s_waitcnt lgkmcnt(4)")
                exps(SA, PA, 3)
        I(f"""
        s_mul_i32 s{SKL}, s{S_WV}, {KVT}
        s_add_u32 s{SKS}, s{SKL}, {KV + 8*KVT}
        s_add_u32 s{SKL}, s{SKL}, {KVL}
        s_mov_b32 s{SBM}, {self.L_DUMMY}
        s_mov_b32 s{self.S_DS}, {KV}
        s_mov_b32 s{self.S_INC}, 0
        s_mov_b32 s84, {hex(mask)}
        """)
        I("s_waitcnt lgkmcnt(0)")
        lentry = self.b.uid("L_ent")
        I(f"""
        s_branch {lhk[4]}
        {lentry}:
        s_add_u32 s{SKS}, s{SKS}, {4*KVT}
        s_add_u32 m0, s{SKL}, {3*4*KVT}
        """)
        self.stamp("loop_in")
        I(f"{lp}:")
        for i in range(16): body(i)
        I(f"s_cmp_lg_u32 s{cnt}, 0\ns_cbranch_scc1 {lp}")
        self.stamp("loop_out")
        C("drain: iteration 64 (V_63)")
        I("s_waitcnt lgkmcnt(0)")
        body(0, qk=False)
        I(f"s_cmp_lg_u32 s{self.S_SLOW}, 0\ns_cbranch_scc1 {lab_slow}\ns_branch {lab_done}")
        I(f"{lhk[4]}:")
        self.hook_body(hooks, 16)
        I(f"s_branch {lentry}")
        for part in range(4):
            I(f"{lhk[part]}:")
            ks = [k for k in sorted(hooks, reverse=True) if (16 - k) % 4 == part and k != 16]
            for n_, k in enumerate(ks):
                nx = None
                if n_ < len(ks) - 1:
                    nx = self.b.uid("L_hk")
                    I(f"s_cmp_lg_u32 s{cnt}, {k}\ns_cbranch_scc1 {nx}")
                self.hook_body(hooks, k)
                I(f"s_branch {lback[part]}")
                if nx: I(f"{nx}:")
            if not ks: I(f"s_branch {lback[part]}")
        I(f"{lab_slow}:")
        for r in range(16): I(f"v_mov_b32 v{OA+r}, 0\nv_mov_b32 v{OB+r}, 0")
        MA_, MB_, T0 = AT+4, AT+5, AT+6
        I(f"v_mov_b32 v{MA_}, 0xff7fffff\nv_mov_b32 v{MB_}, 0xff7fffff")
        I(f"s_mov_b32 s{sK}, {KV}\ns_mov_b32 s{cnt}, 64")
        lp2 = self.b.uid("L_atts")
        I(f"{lp2}:")
        k0, v0 = kreg(0), vreg(0)
        I(f"""
        buffer_load_dwordx4 {ar(k0)}, v{V_L16}, {sr(S_WS)}, s{sK} offen
        buffer_load_dwordx2 a[{k0+4}:{k0+5}], v{vK1}, {sr(S_WS)}, s{sK} offen offset:1024
        buffer_load_dwordx4 {ar(v0)}, v{V_L16}, {sr(S_WS)}, s{sK} offen offset:1280
        buffer_load_dwordx4 {ar(v0+4)}, v{V_L16}, {sr(S_WS)}, s{sK} offen offset:2304
        s_add_u32 s{sK}, s{sK}, {KVT}
        s_waitcnt vmcnt(0)
        """)
        for (S, P, O, Q0, Q1, Mx) in ((SA, PA, OA, QA0, QA1, MA_), (SB, PB, OB, QB0, QB1, MB_)):
            I(f"{M16} {vr(S,16)}, {ar(kreg(0))}, {vr(Q0)}, 0")
            I(f"{M8} {vr(S,16)}, a[{kreg(0)+4}:{kreg(0)+5}], v[{Q1}:{Q1+1}], {vr(S,16)}")
            I(f"v_max3_f32 v{T0}, v{S}, v{S+1}, v{S+2}")
            for r in range(3, 15, 2): I(f"v_max3_f32 v{T0}, v{T0}, v{S+r}, v{S+r+1}")
            I(f"v_max_f32 v{T0}, v{T0}, v{S+15}")
            I(f"v_mov_b32 v{T0+1}, v{T0}\nv_permlane32_swap_b32 v{T0}, v{T0+1}\nv_max_f32 v{T0}, v{T0}, v{T0+1}")
            I(f"v_max_f32 v{T0}, v{T0}, v{Mx}")
            I(f"v_sub_f32 v{T0+1}, v{Mx}, v{T0}\nv_exp_f32 v{T0+1}, v{T0+1}\nv_mov_b32 v{Mx}, v{T0}")
            for r in range(16): I(f"v_mul_f32 v{O+r}, v{O+r}, v{T0+1}")
            for r in range(16): I(f"v_sub_f32 v{S+r}, v{S+r}, v{T0}")
            for q in range(4): exps(S, P, q)
            I(f"{M16} {vr(O,16)}, {ar(vreg(0))}, {vr(P)}, {vr(O,16)}")
            I(f"{M16} {vr(O,16)}, {ar(vreg(0)+4)}, {vr(P+4)}, {vr(O,16)}")
        I(f"s_sub_u32 s{cnt}, s{cnt}, 1\ns_cmp_lg_u32 s{cnt}, 0\ns_cbranch_scc1 {lp2}")
        I(f"{lab_done}:")
        I("s_waitcnt vmcnt(0)\ns_barrier")
        self.stamp("attn")
        self.mod_fetch()
        self.ring_state_after_attn()
        C("normalise and store O in the B-fragment layout of the wo GEMM")
        T = AT
        PK = SA
        I(f"""
        v_lshlrev_b32 v{self.V_L8}, 3, v{V_L}
        s_mul_i32 s{ST}, s{S_WV}, 3072
        s_add_u32 s{ST}, s{ST}, {144*1024}
        v_mul_u32_u24 v{T}, 176, v{V_T}
        v_add_u32 v{T}, s{ST}, v{T}
        v_lshl_add_u32 v{T+1}, v{V_G}, 3, v{T}
        v_bfe_u32 v{T+4}, v{V_L}, 4, 1
        v_mul_u32_u24 v{T+4}, 40, v{T+4}
        v_add_u32 v{T}, v{T}, v{T+4}
        v_lshrrev_b32 v{T+4}, 5, v{V_L}
        v_lshl_add_u32 v{T}, v{T+4}, 3, v{T}
        """)
        for (O, u) in ((OA, 0), (OB, 1)):
            I(f"v_mov_b32 v{T+2}, v{O+8}\nv_mov_b32 v{T+3}, v{O+8}\nv_permlane32_swap_b32 v{T+2}, v{T+3}")
            I(f"v_rcp_f32 v{T+3}, v{T+3}")
            for run in range(3):
                a = O + 4*run
                for r in range(4): I(f"v_mul_f32 v{a+r}, v{a+r}, v{T+3}")
                I(f"v_cvt_pk_bf16_f32 v{a}, v{a}, v{a+1}\nv_cvt_pk_bf16_f32 v{a+1}, v{a+2}, v{a+3}")
                if run == 2: I(f"s_mov_b32 exec_hi, 0")
                I(f"ds_write_b64 v{T}, v[{a}:{a+1}] offset:{80*u + 16*run}")
                if run == 2: I(f"s_mov_b32 exec_hi, -1")
        I("s_waitcnt lgkmcnt(0)")
        for j in range(5):
            I(f"ds_read_b64 v[{PK+2*j}:{PK+2*j+1}], v{T+1} offset:{32*j}")
        I(f"s_mul_i32 s{self.S_T5}, s{S_M}, 5")
        self.tile_base(ST+4, S_TT, 20, OF)
        I("s_waitcnt lgkmcnt(0)")
        self.store_frag(PK, 5, ST+4, self.S_T5, force_sc1=bool(self.xymode & 1))
        self.publish(PH_O); self.vm_drained()
        I("s_barrier")
        self.refill(); self.drip(4)
        self.stamp("opub")

    def dual(self, fn):
        I = self.I
        ls = self.b.uid("L_sl"); lj = self.b.uid("L_sj")
        I(f"s_cmp_eq_u32 s{S_FAST}, 0\ns_cbranch_scc1 {ls}")
        fn("")
        I(f"s_branch {lj}\n{ls}:")
        fn(" sc1")
        I(f"{lj}:")

    def xid_publish(self):
        I = self.I
        lab = self.b.uid("L_xp")
        I(f"""
        s_cmp_lg_u32 s{S_WV}, 0
        s_cbranch_scc1 {lab}
        s_getreg_b32 s{ST}, hwreg(HW_REG_XCC_ID)
        s_and_b32 s{ST}, s{ST}, 15
        v_mov_b32 v252, s{ST}
        v_mov_b32 v253, 0
        v_mov_b32 v254, s{S_TAG}
        v_mov_b32 v255, s{S_TAG+1}
        s_lshl_b32 s{ST}, s{S_RB}, 7
        s_lshl_b32 s{ST+1}, s{S_M}, 4
        s_add_u32 s{ST}, s{ST}, s{ST+1}
        s_add_u32 s{ST}, s{ST}, {XIDG}
        v_mov_b32 v251, s{ST}
        s_mov_b64 exec, 1
        buffer_store_dwordx4 v[252:255], v251, {sr(S_WS)}, 0 offen sc1
        s_mov_b64 exec, -1
        {lab}:
        """)

    XV = 240
    def xid_issue(self):
        I = self.I
        I(f"""
        s_and_b32 s{ST+5}, s{S_RB}, 28
        s_lshl_b32 s{ST+5}, s{ST+5}, 7
        s_add_u32 s{ST+5}, s{ST+5}, {XIDG}
        v_and_b32 v251, 31, v{V_L}
        v_lshlrev_b32 v251, 4, v251
        buffer_load_dwordx4 {vr(self.XV)}, v251, {sr(S_WS)}, s{ST+5} offen sc1
        """)

    def xid_eval(self):
        I = self.I
        X = self.XV
        lp = self.b.uid("L_xc"); ok = self.b.uid("L_xcok")
        I(f"""
        s_mov_b32 s{ST+4}, {TIMEOUT}
        {lp}:
        v_cmp_ne_u32 vcc, s{S_TAG}, v{X+2}
        s_mov_b64 s[{ST+6}:{ST+7}], vcc
        v_cmp_ne_u32 vcc, s{S_TAG+1}, v{X+3}
        s_or_b64 s[{ST+6}:{ST+7}], s[{ST+6}:{ST+7}], vcc
        s_cmp_eq_u64 s[{ST+6}:{ST+7}], 0
        s_cbranch_scc1 {ok}
        """)
        self.xid_issue()
        I("s_waitcnt vmcnt(0)")
        self.spin_tail(ST+4, lp, 14)
        I(f"""
        {ok}:
        s_getreg_b32 s{ST+4}, hwreg(HW_REG_XCC_ID)
        s_and_b32 s{ST+4}, s{ST+4}, 15
        v_cmp_ne_u32 vcc, s{ST+4}, v{X}
        s_cmp_eq_u64 vcc, 0
        s_cselect_b32 s{S_FAST}, {0 if self.force_global else 1}, 0
        """)

    def rl_poll_issue(self):
        I = self.I
        lab = self.b.uid("L_rpi")
        T = 232
        I(f"s_cmp_lg_u32 s{S_WV}, 0\ns_cbranch_scc1 {lab}\nv_lshlrev_b32 v250, 7, v{V_L}")
        for i in range(4):
            I(f"s_mov_b32 s{ST+5}, {RLFLAG + i*8192}\nbuffer_load_dwordx2 v[{T+2*i}:{T+1+2*i}], v250, {sr(S_WS)}, s{ST+5} offen sc1")
        I(f"{lab}:")

    def rl_poll_eval(self):
        I = self.I
        lab = self.b.uid("L_rw"); lp = self.b.uid("L_rwp"); ok = self.b.uid("L_rwok")
        T = 232
        I(f"s_cmp_lg_u32 s{S_WV}, 0\ns_cbranch_scc1 {lab}\ns_mov_b32 s{ST+4}, {TIMEOUT}\n{lp}:\ns_mov_b64 s[{ST+6}:{ST+7}], 0")
        for i in range(4):
            I(f"""
            v_cmp_ne_u32 vcc, s{S_TAG}, v{T+2*i}
            s_or_b64 s[{ST+6}:{ST+7}], s[{ST+6}:{ST+7}], vcc
            v_cmp_ne_u32 vcc, s{S_TAG+1}, v{T+1+2*i}
            s_or_b64 s[{ST+6}:{ST+7}], s[{ST+6}:{ST+7}], vcc
            """)
        I(f"s_cmp_eq_u64 s[{ST+6}:{ST+7}], 0\ns_cbranch_scc1 {ok}")
        self.rl_poll_issue()
        I("s_waitcnt vmcnt(0)")
        self.spin_tail(ST+4, lp, 4)
        I(f"{ok}:\n{lab}:\ns_barrier")

    def publish(self, ph, both=False, vmn=0, line_sreg=None):
        I = self.I
        ln = S_TT if line_sreg is None else line_sreg
        I(f"""
        v_mov_b32 v254, s{S_TAG}
        v_mov_b32 v255, s{S_TAG+1}
        s_lshl_b32 s{ST}, s{ln}, 7
        s_lshl_b32 s{ST+1}, s{S_M}, 3
        s_add_u32 s{ST}, s{ST}, s{ST+1}
        s_add_u32 s{ST}, s{ST}, {CFLAG + ph*CF_PH}
        v_mov_b32 v253, s{ST}
        s_mov_b32 s{ST+1}, {CF_LOC}
        s_waitcnt vmcnt({vmn})
        s_mov_b64 exec, 1
        """)
        def st(f):
            if f == "":
                I(f"buffer_store_dwordx2 v[254:255], v253, {sr(S_WS)}, s{ST+1} offen")
                if both: I(f"buffer_store_dwordx2 v[254:255], v253, {sr(S_WS)}, 0 offen sc1")
            else:
                I(f"buffer_store_dwordx2 v[254:255], v253, {sr(S_WS)}, 0 offen sc1")
        self.dual(st)
        I(f"s_mov_b64 exec, -1")

    def publish_drip(self, ph, both=False, line_sreg=None):
        if self.detail == 2: self.stamp(f"e_sto{ph}")
        self.publish(ph, both=both, vmn=0, line_sreg=line_sreg)
        self.vmq = []
        self.drip(self.pub_after)

    def wait_flags(self, ph, lines, code, work=None):
        I = self.I
        lp = self.b.uid("L_wfp"); ok = self.b.uid("L_wfok")
        I(f"v_mov_b32 v251, s{lines[0]}")
        if len(lines) > 1:
            I(f"v_lshrrev_b32 v250, 3, v{V_L}\nv_and_b32 v250, 3, v250")
            for i, r in enumerate(lines[1:], 1):
                I(f"v_cmp_eq_u32 vcc, {i}, v250\nv_mov_b32 v252, s{r}\nv_cndmask_b32 v251, v251, v252, vcc")
        I(f"""
        v_lshrrev_b32 v250, 4, v251
        s_lshr_b32 s{ST}, s{S_RB}, 2
        v_cmp_eq_u32 vcc, s{ST}, v250
        s_mul_i32 s{ST}, s{S_FAST}, {CF_LOC}
        v_mov_b32 v252, s{ST}
        v_cndmask_b32 v250, 0, v252, vcc
        v_lshl_add_u32 v251, v251, 7, v250
        v_and_b32 v252, 7, v{V_L}
        v_lshl_add_u32 v251, v252, 3, v251
        s_mov_b32 s{ST+1}, {CFLAG + ph*CF_PH}
        s_mov_b32 s{ST}, {TIMEOUT}
        buffer_load_dwordx2 v[254:255], v251, {sr(S_WS)}, s{ST+1} offen sc1
        """)
        n0 = len(self.vmq)
        self.drip(self.shadow_f)
        nsh = len(self.vmq) - n0
        if work: work()
        ok2 = self.b.uid("L_wfo2")
        def check(lo, hi, tgt=None):
            tgt = tgt or ok2
            I(f"""
            v_cmp_ne_u32 vcc, s{S_TAG}, v{lo}
            s_mov_b64 s[{ST+2}:{ST+3}], vcc
            v_cmp_ne_u32 vcc, s{S_TAG+1}, v{hi}
            s_or_b64 s[{ST+2}:{ST+3}], s[{ST+2}:{ST+3}], vcc
            s_cmp_eq_u64 s[{ST+2}:{ST+3}], 0
            s_cbranch_scc1 {tgt}
            """)
        I(f"s_waitcnt vmcnt({nsh})")
        check(254, 255, ok)
        I(f"""
        buffer_load_dwordx2 v[254:255], v251, {sr(S_WS)}, s{ST+1} offen sc1
        {lp}:
        s_sleep 2
        buffer_load_dwordx2 v[252:253], v251, {sr(S_WS)}, s{ST+1} offen sc1
        s_waitcnt vmcnt(1)
        """)
        check(254, 255)
        I(f"""
        s_sleep 2
        buffer_load_dwordx2 v[254:255], v251, {sr(S_WS)}, s{ST+1} offen sc1
        s_waitcnt vmcnt(1)
        """)
        check(252, 253)
        self.spin_tail(ST, lp, code)
        I(f"{ok2}:\n{ok}:")
        self.vmq = self.vmq[len(self.vmq)-nsh:] if nsh else []

    X2, H = 4, 24
    ACC = 44
    MS_GA = 64
    WB = 100
    MS_A2, MS_SB = 160, 180
    GT = 200
    RING = 160
    F_WO, F_W1, F_W2, F_W3, F_W4 = 0, 100, 200, 304, 448
    NUNITS = 45
    S_T5 = 29
    S_SRC = 30
    S_WA, S_W3 , S_W4 = 90, 91, 92
    S_LW = 93
    S_DM, S_DS, S_AO, S_AO2 = 94, 95, 88, 89

    def vm_issue(self, tag): self.vmq.append(tag)
    def vm_wait(self, tag):
        if tag not in self.vmq: return
        i = len(self.vmq) - 1 - self.vmq[::-1].index(tag)
        n = len(self.vmq) - 1 - i
        self.I(f"s_waitcnt vmcnt({min(n, 63)})")
        self.vmq = self.vmq[i+1:]
    def vm_drained(self): self.vmq = []

    def ring_regs(self):
        I = self.I
        I(f"""
        s_lshl_b32 s{self.S_LW}, s{S_WV}, 12
        s_mul_i32 s{self.S_WA}, s{S_M}, {WSA_M}
        s_add_u32 s{self.S_WA}, s{self.S_WA}, {WSA}
        s_add_u32 s{self.S_WA}, s{self.S_WA}, s{self.S_LW}
        s_and_b32 s{self.S_W3}, s{S_RB}, 1
        s_lshl_b32 s{self.S_W3}, s{self.S_W3}, 3
        s_add_u32 s{self.S_W3}, s{self.S_W3}, s{S_M}
        s_mul_i32 s{self.S_W3}, s{self.S_W3}, {W3S_M}
        s_add_u32 s{self.S_W3}, s{self.S_W3}, {W3S}
        s_add_u32 s{self.S_W3}, s{self.S_W3}, s{self.S_LW}
        s_mul_i32 s{self.S_W4}, s{S_M}, {W4S_M}
        s_add_u32 s{self.S_W4}, s{self.S_W4}, {W4S}
        s_add_u32 s{self.S_W4}, s{self.S_W4}, s{self.S_LW}
        """)

    def refill(self, maxn=99):
        n = 0
        while self.units_queued < self.NUNITS and n < maxn:
            u = self.units_queued
            if 16*u + 15 - self.RING > self.consumed: break
            for q in range(4):
                self.pend.append((("u", u, q), (lambda u=u, q=q: self.emit_dma(u, q))))
            self.units_queued += 1; n += 1
        self.resort()

    def resort(self):
        ctx = getattr(self, "loop_ctx", None)
        if ctx is None: return
        F0, NT, S = ctx
        def key(e):
            t = e[0]
            if t[0] == "a": return t[2]
            F = 16*t[1]
            if F + 15 < F0: return -100
            st = max(0, (F - F0)//NT)
            if st >= S: return 1000 + t[1]
            return 4*(st//4) - 2 - 1
        self.pend.sort(key=key)

    def emit_dma(self, u, q, track=True):
        I = self.I
        if q == 0:
            F = 16*u
            if F < 304: base, off = self.S_WA, F*1024
            elif F < 448: base, off = self.S_W3, (F-304)*1024
            else: base, off = self.S_W4, (F-448)*1024
            slot = (F % self.RING)*1024
            I(f"s_add_u32 s{self.S_DM}, s{self.S_LW}, {slot}\ns_mov_b32 m0, s{self.S_DM}\ns_add_u32 s{self.S_DS}, s{base}, {off}")
        I(f"buffer_load_dwordx4 v{V_L16}, {sr(S_WS)}, s{self.S_DS} offen offset:{1024*q} lds")
        if track:
            self.vm_issue(("u", u) if q == 3 else ("ux", u, q))
            if q == 3: self.units_issued = u + 1

    def drip(self, n=1):
        while n > 0 and self.pend:
            tag, fn = self.pend.pop(0)
            fn(); n -= 1

    def flush_until(self, tag):
        if not any(t == tag for t, _ in self.pend): return
        while True:
            t, fn = self.pend.pop(0)
            fn()
            if t == tag: return

    def need_units(self, Fmax):
        u = Fmax // 16
        assert u < self.units_queued, (u, self.units_queued)
        self.flush_until(("u", u, 3))
        self.vm_wait(("u", u))

    def gemm(self, S, NT, F0, aops, abases, burst, rate, cap=99, post_barrier=True, resident=False, chunk=4, accf=None, filler=None, fill_n=0):
        I = self.I
        WB, ACC, T = self.WB, self.ACC, self.GT
        nt = len(abases)
        vb = [T, T+1, T+2]
        stride = 4*NT
        if accf is None: accf = lambda tt, j: ACC + 4*(tt*NT + j)
        filler = list(filler or [])
        def rd1(s, j):
            off = ((F0 + s*NT + j) % self.RING)*1024
            k, o = divmod(off, 61440)
            I(f"ds_read_b128 {vr(WB + stride*(s % 3) + 4*j)}, v{vb[k]} offset:{o}")
        while self.pend and self.pend[0][0][0] == "u" and self.pend[0][0][2] != 0: self.drip(1)
        keep = []
        if resident:
            keep = [e for e in self.pend if e[0][0] == "u"]
            self.pend = []
        self.pend = list(aops) + self.pend
        self.loop_ctx = (F0, NT, S)
        if not resident: self.refill(cap)
        self.drip(burst)
        for j in range(NT): rd1(0, j)
        for j in range(NT): rd1(1, j)
        acc_rate = 0.0
        for s in range(S):
            if not resident and s + 2 < S and (s + 2) % chunk == 0:
                last = min(S, s + 2 + chunk) - 1
                if F0 + last*NT + NT - 1 > self.visible or self.units_queued < self.NUNITS:
                    self.need_units(F0 + last*NT + NT - 1)
                    I("s_barrier")
                    self.visible = max(self.visible, F0 + last*NT + NT - 1)
                    self.consumed = max(self.consumed, F0 + (s-1)*NT + NT - 1)
                    self.refill(cap)
            if self.detail == F0 and s % 4 == 0: self.stamp(f"d_k{s}")
            nout = NT if s + 1 < S else 0
            I(f"s_waitcnt lgkmcnt({min(nout, 15)})")
            for tt in range(nt):
                self.flush_until(("a", tt, s))
                self.vm_wait(("a", tt, s))
            acc_rate += rate
            nm = nt*NT
            slots = []
            while acc_rate >= 1.0:
                slots.append(1); acc_rate -= 1.0
            pos = {(k*nm)//max(1, len(slots)) : 0 for k in range(len(slots))}
            for k in range(len(slots)): pos[(k*nm)//len(slots)] += 1
            i = 0
            for tt in range(nt):
                for j in range(NT):
                    c = '0' if s == 0 else vr(accf(tt, j))
                    I(f"v_mfma_f32_16x16x32_bf16 {vr(accf(tt, j))}, {vr(WB+stride*(s%3)+4*j)}, {ar(abases[tt]+4*s)}, {c}")
                    if i < NT and s + 2 < S: rd1(s+2, i)
                    if pos.get(i): self.drip(pos[i])
                    for _ in range(fill_n):
                        if filler: I(filler.pop(0))
                    i += 1
        for x in filler: I(x)
        self.pending_consumed = {299: 303, 443: 447}.get(F0 + S*NT - 1, F0 + S*NT - 1)
        self.loop_ctx = None
        self.pend = self.pend + keep
        if post_barrier:
            I("s_barrier")
            self.after_barrier()
            self.refill()
            self.drip({0: self.post_drip, 100: self.post_drip, 200: self.post_drip2, 384: self.post_drip3, 304: self.post_drip3}.get(F0, 0))

    def after_barrier(self):
        self.consumed = max(self.consumed, getattr(self, "pending_consumed", -1))

    def lds_bases(self):
        T = self.GT
        self.I(f"v_mov_b32 v{T}, v{V_L16}\nv_add_u32 v{T+1}, 61440, v{V_L16}\nv_add_u32 v{T+2}, {2*61440}, v{V_L16}")

    def a_op(self, tt, s, abase, vaddr, base_sreg, base_add, soff_reg, split=(), vaddr8=None):
        def fn():
            if s % 4 == 0:
                if base_sreg is None: self.I(f"s_mov_b32 s{soff_reg}, {base_add + 1024*s}")
                else: self.I(f"s_add_u32 s{soff_reg}, s{base_sreg}, {base_add + 1024*s}")
            r = abase + 4*s
            if s in split:
                self.I(f"buffer_load_dwordx2 a[{r}:{r+1}], v{vaddr8}, {sr(S_WS)}, s{soff_reg} offen offset:{1024*(s % 4)} sc1")
                self.vm_issue(("ah", tt, s))
                self.I(f"buffer_load_dwordx2 a[{r+2}:{r+3}], v{vaddr8}, {sr(S_WS)}, s{soff_reg} offen offset:{1024*(s % 4)+512} sc1")
            else:
                self.I(f"buffer_load_dwordx4 {ar(r)}, v{vaddr}, {sr(S_WS)}, s{soff_reg} offen offset:{1024*(s % 4)} sc1")
            self.vm_issue(("a", tt, s))
        return (("a", tt, s), fn)

    RAW_GA, RAW_SB, RAW_CB, RAW_GB = 140, 150, 214, 240
    def mod_fetch(self):
        I = self.I
        I(f"v_lshlrev_b32 v244, 4, v{V_G}\nv_add_u32 v244, {self.L_MODW}, v244")
        for (dst, off) in ((self.RAW_GA, 0), (self.RAW_SB, 320), (self.RAW_CB, 640)):
            for j in range(5):
                I(f"ds_read_b64 v[{dst+2*j}:{dst+2*j+1}], v244 offset:{off + 64*j}")

    def gb_fetch(self):
        I = self.I
        I(f"s_mul_i32 s{ST+5}, s{S_M}, 320\nv_lshlrev_b32 v244, 4, v{V_G}\ns_add_u32 s{ST+5}, s{ST+5}, {MODG + 5*2560}")
        for j in range(5):
            I(f"buffer_load_dwordx2 a[{self.RAW_GB+2*j}:{self.RAW_GB+2*j+1}], v244, {sr(S_WS)}, s{ST+5} offen offset:{64*j} sc1")
            self.vm_issue(("gb",))

    def mod_unpack(self):
        I = self.I
        for src, dst in ((self.RAW_GA, self.MS_GA), (self.RAW_SB, self.MS_SB), (self.RAW_CB, self.MS_A2)):
            for i in range(10):
                I(f"v_lshlrev_b32 v{dst+2*i}, 16, v{src+i}\nv_and_b32 v{dst+2*i+1}, 0xffff0000, v{src+i}")
        self.one_plus_bf16(self.MS_A2, 20)

    def one_plus_bf16(self, r, n):
        I = self.I
        for i in range(0, n, 2):
            I(f"""
            v_add_f32 v{r+i}, 1.0, v{r+i}
            v_add_f32 v{r+i+1}, 1.0, v{r+i+1}
            v_cvt_pk_bf16_f32 v{r+i}, v{r+i}, v{r+i+1}
            v_and_b32 v{r+i+1}, 0xffff0000, v{r+i}
            v_lshlrev_b32 v{r+i}, 16, v{r+i}
            """)

    def ln_stats(self, src, which, mu, rs, code, fine=0):
        I = self.I
        T = self.GT + 4
        I(f"v_pk_add_f32 v[{T}:{T+1}], v[{src}:{src+1}], v[{src+2}:{src+3}]\nv_pk_mul_f32 v[{T+2}:{T+3}], v[{src}:{src+1}], v[{src}:{src+1}]")
        I(f"v_pk_fma_f32 v[{T+2}:{T+3}], v[{src+2}:{src+3}], v[{src+2}:{src+3}], v[{T+2}:{T+3}]")
        for i in range(4, 20, 2):
            I(f"v_pk_add_f32 v[{T}:{T+1}], v[{T}:{T+1}], v[{src+i}:{src+i+1}]\nv_pk_fma_f32 v[{T+2}:{T+3}], v[{src+i}:{src+i+1}], v[{src+i}:{src+i+1}], v[{T+2}:{T+3}]")
            if i in (8, 14): self.drip(fine)
        I(f"v_add_f32 v{T}, v{T}, v{T+1}\nv_add_f32 v{T+1}, v{T+2}, v{T+3}")
        self.reduce_g([T, T+1], T+4)
        I(f"""
        v_mov_b32 v{T+2}, s{S_TAG}
        v_mov_b32 v{T+3}, s{S_TAG+1}
        s_lshl_b32 s{ST+4}, s{S_RB}, 13
        s_lshl_b32 s{ST+5}, s{S_WV}, 8
        s_add_u32 s{ST+4}, s{ST+4}, s{ST+5}
        s_add_u32 s{ST+4}, s{ST+4}, {STAT + which*STAT_SZ}
        s_lshl_b32 s{ST+5}, s{S_M}, 10
        s_add_u32 s{ST+5}, s{ST+5}, s{ST+4}
        v_lshlrev_b32 v{T+4}, 4, v{V_T}
        s_mov_b64 exec, 0xffff
        """)
        self.dual(lambda f: I(f"buffer_store_dwordx4 {vr(T)}, v{T+4}, {sr(S_WS)}, s{ST+5} offen{f}"))
        I("s_mov_b64 exec, -1")
        if self.detail == 2: self.stamp(f"e_st{which}")
        I(f"""
        s_mov_b64 exec, -1
        v_lshl_add_u32 v{T+5}, v{V_G}, 11, v{T+4}
        s_mov_b32 s{ST}, {TIMEOUT}
        """)
        lp = self.b.uid("L_ls"); ok = self.b.uid("L_lsok"); lchk = self.b.uid("L_lsc")
        I(f"""
        buffer_load_dwordx4 {vr(T+8)}, v{T+5}, {sr(S_WS)}, s{ST+4} offen sc1
        buffer_load_dwordx4 {vr(T+12)}, v{T+5}, {sr(S_WS)}, s{ST+4} offen offset:1024 sc1
        """)
        n0 = len(self.vmq)
        self.drip(self.shadow_s)
        nsh = len(self.vmq) - n0
        I(f"""
        s_waitcnt vmcnt({nsh})
        s_branch {lchk}
        {lp}:
        buffer_load_dwordx4 {vr(T+8)}, v{T+5}, {sr(S_WS)}, s{ST+4} offen sc1
        buffer_load_dwordx4 {vr(T+12)}, v{T+5}, {sr(S_WS)}, s{ST+4} offen offset:1024 sc1
        s_waitcnt vmcnt(0)
        {lchk}:
        v_cmp_ne_u32 vcc, s{S_TAG}, v{T+10}
        s_mov_b64 s[{ST+2}:{ST+3}], vcc
        v_cmp_ne_u32 vcc, s{S_TAG+1}, v{T+11}
        s_or_b64 s[{ST+2}:{ST+3}], s[{ST+2}:{ST+3}], vcc
        v_cmp_ne_u32 vcc, s{S_TAG}, v{T+14}
        s_or_b64 s[{ST+2}:{ST+3}], s[{ST+2}:{ST+3}], vcc
        v_cmp_ne_u32 vcc, s{S_TAG+1}, v{T+15}
        s_or_b64 s[{ST+2}:{ST+3}], s[{ST+2}:{ST+3}], vcc
        s_cmp_eq_u64 s[{ST+2}:{ST+3}], 0
        s_cbranch_scc1 {ok}
        """)
        self.spin_tail(ST, lp, code)
        self.vmq = self.vmq[len(self.vmq)-nsh:] if nsh else []
        I(f"{ok}:")
        if self.detail == 2: self.stamp(f"e_got{which}")
        I(f"""
        v_add_f32 v{T}, v{T+8}, v{T+12}
        v_add_f32 v{T+1}, v{T+9}, v{T+13}
        """)
        self.reduce_g([T, T+1], T+4)
        I(f"""
        v_mul_f32 v{mu}, {1.0/640!r}, v{T}
        v_mul_f32 v{T+1}, {1.0/640!r}, v{T+1}
        v_fma_f32 v{T+1}, -v{mu}, v{mu}, v{T+1}
        v_max_f32 v{T+1}, 0, v{T+1}
        v_add_f32 v{T+1}, 0x3727c5ac, v{T+1}
        v_rsq_f32 v{rs}, v{T+1}
        s_nop 0
        v_mul_f32 v{mu}, -v{mu}, v{rs}
        v_mov_b32 v{rs+1}, v{rs}
        v_mov_b32 v{mu+1}, v{mu}
        """)

    V_L8 = 203
    SPLIT20 = (2, 7, 12, 17)
    SPLIT54 = (3, 10, 17, 24, 31, 38)
    def pack_tiles(self, src, ntile, dst=None):
        if dst is None: dst = src
        for j in range(ntile):
            a = src + 4*j; d = dst + 2*j
            self.I(f"v_cvt_pk_bf16_f32 v{d}, v{a}, v{a+1}\nv_cvt_pk_bf16_f32 v{d+1}, v{a+2}, v{a+3}")

    def store_frag(self, pk, ntile, base_sreg, tile0_sreg, skip_last_sreg=None, force_sc1=False, count=True):
        I = self.I
        lodd = self.b.uid("L_so"); lj = self.b.uid("L_sj")
        I(f"""
        s_lshr_b32 s{ST+5}, s{tile0_sreg}, 1
        s_lshl_b32 s{ST+5}, s{ST+5}, 10
        s_add_u32 s{ST+5}, s{ST+5}, s{base_sreg}
        s_bitcmp1_b32 s{tile0_sreg}, 0
        s_cbranch_scc1 {lodd}
        """)
        def variant(odd, f):
            if not odd:
                for p in range(ntile//2):
                    I(f"buffer_store_dwordx4 {vr(pk+4*p)}, v{V_L16}, {sr(S_WS)}, s{ST+5} offen offset:{1024*p}{f}")
                if ntile % 2:
                    lab = None
                    if skip_last_sreg is not None:
                        lab = self.b.uid("L_sk")
                        I(f"s_cmp_lg_u32 s{skip_last_sreg}, 0\ns_cbranch_scc1 {lab}")
                    j = ntile-1
                    I(f"buffer_store_dwordx2 v[{pk+2*j}:{pk+2*j+1}], v{self.V_L8}, {sr(S_WS)}, s{ST+5} offen offset:{1024*(ntile//2)}{f}")
                    if lab: I(f"{lab}:")
            else:
                I(f"buffer_store_dwordx2 v[{pk}:{pk+1}], v{self.V_L8}, {sr(S_WS)}, s{ST+5} offen offset:512{f}")
                for p in range(ntile//2):
                    I(f"buffer_store_dwordx4 {vr(pk+2+4*p)}, v{V_L16}, {sr(S_WS)}, s{ST+5} offen offset:{1024*(p+1)}{f}")
        if force_sc1: variant(False, " sc1")
        else: self.dual(lambda f: variant(False, f))
        I(f"s_branch {lj}\n{lodd}:")
        if force_sc1: variant(True, " sc1")
        else: self.dual(lambda f: variant(True, f))
        I(f"{lj}:")
        if count:
            for j in range(ntile//2): self.vm_issue(("st",))

    def tile_base(self, dst_sreg, tt_sreg, S, base_off):
        self.I(f"s_mul_i32 s{dst_sreg}, s{tt_sreg}, {S*1024}\ns_add_u32 s{dst_sreg}, s{dst_sreg}, {base_off}")

    def gelu(self, r, n, drip=0):
        I = self.I
        T = self.GT + 4
        c1 = -2.0 * 0.7978845608028654 * 1.4426950408889634
        c2 = c1 * 0.044715
        C1, ONE = T+8, T+10
        I(f"""
        s_mov_b32 s{ST+8}, {hex(f2u(c2))}
        s_mov_b32 s{ST+9}, {hex(f2u(c2))}
        v_mov_b32 v{C1}, {hex(f2u(c1))}
        v_mov_b32 v{C1+1}, {hex(f2u(c1))}
        v_mov_b32 v{ONE}, 1.0
        v_mov_b32 v{ONE+1}, 1.0
        """)
        P = lambda x: f"v[{x}:{x+1}]"
        for i in range(0, n, 4):
            x0, x1, t0, t1 = r+i, r+i+2, T, T+2
            I(f"v_pk_mul_f32 {P(t0)}, {P(x0)}, {P(x0)}\nv_pk_mul_f32 {P(t1)}, {P(x1)}, {P(x1)}")
            I(f"v_pk_fma_f32 {P(t0)}, {P(t0)}, s[{ST+8}:{ST+9}], {P(C1)}\nv_pk_fma_f32 {P(t1)}, {P(t1)}, s[{ST+8}:{ST+9}], {P(C1)}")
            I(f"v_pk_mul_f32 {P(t0)}, {P(t0)}, {P(x0)}\nv_pk_mul_f32 {P(t1)}, {P(t1)}, {P(x1)}")
            for q in range(4): I(f"v_exp_f32 v{T+q}, v{T+q}")
            I(f"v_pk_add_f32 {P(t0)}, {P(t0)}, {P(ONE)}\nv_pk_add_f32 {P(t1)}, {P(t1)}, {P(ONE)}")
            for q in range(4): I(f"v_rcp_f32 v{T+q}, v{T+q}")
            I(f"v_pk_mul_f32 {P(x0)}, {P(x0)}, {P(t0)}\nv_pk_mul_f32 {P(x1)}, {P(x1)}, {P(t1)}")
            self.drip(drip)

    def collect(self, fn):
        saved = self.b.items
        self.b.items = []
        fn()
        out = [it.text for it in self.b.items if isinstance(it, Ins)]
        self.b.items = saved
        return out

    def phase_entry(self, ph_wait, lines, code, F0, NT, between=None, upto=None):
        last = F0 + 4*NT - 1 if upto is None else upto
        self.need_units(last)
        self.I("s_barrier")
        self.visible = max(getattr(self, "visible", -1), last)
        self.after_barrier()
        if self.detail == F0: self.stamp("d_bar")
        self.wait_flags(ph_wait, lines, code, work=between)
        if self.detail == F0: self.stamp("d_flags")
        if self.detail == 2: self.stamp(f"e_fl{ph_wait}")

    def small_gemm(self, F0, act, ph_wait, rbs, code, shift=False, between=None, pf=()):
        I, C = self.I, self.C
        def shift_addr():
            T = self.GT + 8
            I(f"s_lshl_b32 s{ST+4}, s{S_TT}, 4\ns_lshr_b32 s{ST+5}, s{S_RB}, 2")
            for q, dl in enumerate((-1, 1, -2, 2)):
                side = 1 if dl < 0 else 0
                I(f"""
                v_add_u32 v{T+4}, s{ST+4}, v{V_T}
                v_add_u32 v{T+4}, {dl & 0xffffffff}, v{T+4}          ; token'
                v_lshrrev_b32 v{T+5}, 4, v{T+4}
                v_mul_u32_u24 v{T+5}, 20480, v{T+5}
                v_add_u32 v{T+5}, {act}, v{T+5}
                v_lshrrev_b32 v{T+6}, 8, v{T+4}
                v_lshlrev_b32 v{T+7}, 1, v{T+6}
                v_add_u32 v{T+7}, {side}, v{T+7}
                v_mul_u32_u24 v{T+7}, 20480, v{T+7}
                v_add_u32 v{T+7}, {HG}, v{T+7}
                v_cmp_eq_u32 vcc, s{ST+5}, v{T+6}
                v_cndmask_b32 v{T+5}, v{T+7}, v{T+5}, vcc
                v_and_b32 v{T+6}, 15, v{T+4}
                v_lshl_add_u32 v{T+6}, v{V_G}, 4, v{T+6}              ; g*16 + t'
                v_lshl_add_u32 v{T+7}, v{T+6}, 3, v{T+5}
                v_lshl_add_u32 v{T+5}, v{T+6}, 4, v{T+5}
                v_cmp_gt_u32 vcc, 0x800, v{T+4}
                v_mov_b32 v{T+6}, 0x80000000
                v_cndmask_b32 v{T+q}, v{T+6}, v{T+5}, vcc
                v_cndmask_b32 v{self.GT+20+q}, v{T+6}, v{T+7}, vcc
                """)
        if shift: between = shift_addr
        self.phase_entry(ph_wait, rbs, code, F0, 5, between, upto=(F0+99 if self.resident else None))
        if not shift:
            I(f"s_mul_i32 s{self.S_SRC}, s{S_TT}, {20*1024}\ns_add_u32 s{self.S_SRC}, s{self.S_SRC}, {act}")
            aops = [self.a_op(0, s, 16, V_L16, self.S_SRC, 0, self.S_AO, self.SPLIT20, self.V_L8) for s in range(20)]
        else:
            T = self.GT + 8
            aops = [self.a_op(0, s, 16, T + s // 5, None, 0, self.S_AO, self.SPLIT20, self.GT + 20 + s // 5) for s in range(20)]
        if self.use_pf: aops += [(("a", 9, 19), (lambda p=p: self.pf_op(*p))) for p in pf]
        if (self.h4t_where == 1 and F0 == self.F_W1) or (self.h4t_where == 2 and F0 == self.F_W2) or (self.h4t_where == 4 and F0 == self.F_WO):
            def h4t():
                self.act_touch(H4F, 54*1024); self.vm_issue(("pf",))
            aops.append((("a", 9, 19), h4t))
        self.gemm(20, 5, F0, aops, [16], burst=self.burst, rate=self.rate_small, cap=self.cap_small, resident=self.resident)

    def phase_wo(self):
        I, C = self.I, self.C
        X2, H, ACC, T = self.X2, self.H, self.ACC, self.GT
        self.lds_bases()
        def pre():
            self.mod_unpack()
            for j in range(5):
                for q in range(2):
                    I(f"v_accvgpr_read_b32 v{T+4}, a{2*j+q}")
                    I(f"v_lshlrev_b32 v{X2+4*j+2*q}, 16, v{T+4}\nv_and_b32 v{X2+4*j+2*q+1}, 0xffff0000, v{T+4}")
        self.small_gemm(self.F_WO, OF, PH_O, [S_TT], 6, pf=[("3", 0)], between=pre)
        self.stamp("wo_mm")
        P = lambda x: f"v[{x}:{x+1}]"
        f = self.fine
        for i in range(0, 20, 2): I(f"v_pk_fma_f32 {P(X2+i)}, {P(self.MS_GA+i)}, {P(ACC+i)}, {P(X2+i)}")
        mu, rs = T+30, T+32
        self.ln_stats(X2, 0, mu, rs, 7, fine=f)
        for i in range(0, 20, 2):
            I(f"v_pk_fma_f32 {P(H+i)}, {P(X2+i)}, {P(rs)}, {P(mu)}")
            I(f"v_pk_fma_f32 {P(H+i)}, {P(H+i)}, {P(self.MS_A2+i)}, {P(self.MS_SB+i)}")
            if i in (0, 8): self.drip(f)
        self.ln_stats(H, 1, mu, rs, 8, fine=f)
        self.drip(f)
        for i in range(0, 20, 2): I(f"v_pk_fma_f32 {P(ACC+i)}, {P(H+i)}, {P(rs)}, {P(mu)}")
        self.pack_tiles(ACC, 5)
        self.tile_base(ST+4, S_TT, 20, L2F)
        self.store_frag(ACC, 5, ST+4, self.S_T5, force_sc1=bool(self.xymode & 1))
        self.publish_drip(PH_L2)
        self.stamp("l2pub")

    def phase_w1(self):
        I = self.I
        self.small_gemm(self.F_W1, L2F, PH_L2, [S_TT], 9, pf=[("3", 1)])
        self.stamp("w1_mm")
        self.gb_fetch()
        self.gelu(self.ACC, 20, drip=self.gd1)
        self.pack_tiles(self.ACC, 5)
        self.tile_base(ST+4, S_TT, 20, GF)
        self.store_frag(self.ACC, 5, ST+4, self.S_T5)
        lab = self.b.uid("L_hal")
        I(f"""
        s_and_b32 s{ST+6}, s{S_TT}, 15
        s_add_u32 s{ST+6}, s{ST+6}, 1
        s_and_b32 s{ST+7}, s{ST+6}, 14
        s_cmp_eq_u32 s{ST+7}, 0
        s_cbranch_scc0 {lab}
        s_lshr_b32 s{ST+7}, s{S_TT}, 4
        s_lshl_b32 s{ST+7}, s{ST+7}, 1
        s_lshr_b32 s{ST+6}, s{ST+6}, 4
        s_add_u32 s{ST+7}, s{ST+7}, s{ST+6}
        s_mul_i32 s{ST+4}, s{ST+7}, 20480
        s_add_u32 s{ST+4}, s{ST+4}, {HG}
        """)
        self.store_frag(self.ACC, 5, ST+4, self.S_T5, force_sc1=True, count=False)
        I(f"{lab}:")
        self.publish_drip(PH_G, both=True)
        self.stamp("gpub")

    def phase_w2(self):
        I = self.I
        X2, H, ACC, T = self.X2, self.H, self.ACC, self.GT
        I(f"""
        s_sub_u32 s{ST+10}, s{S_TT}, 1
        s_max_i32 s{ST+10}, s{ST+10}, 0
        s_add_u32 s{ST+11}, s{S_TT}, 1
        s_min_u32 s{ST+11}, s{ST+11}, 127
        """)
        self.small_gemm(self.F_W2, GF, PH_G, [S_TT, ST+10, ST+11], 10, shift=True, pf=[("4", 0)])
        self.stamp("w2_mm")
        P = lambda x: f"v[{x}:{x+1}]"
        for i in range(0, 20, 2): I(f"v_pk_add_f32 {P(H+i)}, {P(H+i)}, {P(ACC+i)}")
        mu, rs = T+30, T+32
        self.ln_stats(H, 2, mu, rs, 11, fine=self.fine)
        self.drip(self.fine)
        for i in range(0, 20, 2): I(f"v_pk_fma_f32 {P(ACC+i)}, {P(H+i)}, {P(rs)}, {P(mu)}")
        self.pack_tiles(ACC, 5)
        self.tile_base(ST+4, S_TT, 20, L3F)
        self.store_frag(ACC, 5, ST+4, self.S_T5)
        self.publish_drip(PH_L3)
        self.stamp("l3pub")

    def phase_w3(self):
        I, C = self.I, self.C
        ACC = self.ACC
        m16, t0, skip, rbA, rbB, ttb = ST+10, ST+11, ST+12, ST+13, ST+14, ST+15
        I(f"""
        s_and_b32 s{m16}, s{S_RB}, 1
        s_lshl_b32 s{m16}, s{m16}, 3
        s_add_u32 s{m16}, s{m16}, s{S_M}
        s_mul_i32 s{t0}, s{m16}, 7
        s_sub_u32 s{ST}, s{m16}, 12
        s_max_i32 s{ST}, s{ST}, 0
        s_sub_u32 s{t0}, s{t0}, s{ST}
        s_cmp_ge_u32 s{m16}, 12
        s_cselect_b32 s{skip}, 1, 0
        s_and_b32 s{rbA}, s{S_RB}, 30
        s_add_u32 s{rbB}, s{rbA}, 1
        s_lshl_b32 s{ttb}, s{rbA}, 2
        s_lshl_b32 s{ST}, s{S_WV}, 1
        s_add_u32 s{ttb}, s{ttb}, s{ST}
        """)
        I(f"s_add_u32 s{rbA}, s{ttb}, 1")
        self.phase_entry(PH_L3, [ttb, rbA], 12, self.F_W3, 4 if self.w3split else 7)
        I(f"s_mul_i32 s{self.S_SRC}, s{ttb}, {20*1024}\ns_add_u32 s{self.S_SRC}, s{self.S_SRC}, {L3F}")
        aops = []
        for s in range(20):
            aops.append(self.a_op(0, s, 16, V_L16, self.S_SRC, 0, self.S_AO, self.SPLIT20, self.V_L8))
            aops.append(self.a_op(1, s, 96, V_L16, self.S_SRC, 20*1024, self.S_AO2, self.SPLIT20, self.V_L8))
        if self.use_pf: aops.insert(16, (("a", 9, 8), (lambda: self.pf_op("4", 1))))
        def h4t():
            self.act_touch(H4F, 54*1024); self.vm_issue(("pf",))
        if self.h4t_where == 3: aops.append((("a", 9, 19), h4t))
        if not self.w3split:
            self.gemm(20, 7, self.F_W3, aops, [16, 96], burst=2*self.burst, rate=self.rate_w3)
            self.stamp("w3_mm")
            self.gelu(ACC, 56, drip=self.gd3)
        else:
            self.gemm(20, 4, self.F_W3, aops, [16, 96], burst=2*self.burst, rate=self.rate_w3a, accf=lambda tt, j: ACC + 28*tt + 4*j, post_barrier=False)
            F2 = self.F_W3 + 80
            self.need_units(F2 + 4*3 - 1)
            I("s_barrier")
            self.visible = max(self.visible, F2 + 11)
            self.after_barrier()
            fill = self.collect(lambda: (self.gelu(ACC, 16), self.gelu(ACC+28, 16)))
            self.gemm(20, 3, F2, [], [16, 96], burst=0, rate=self.rate_w3b, accf=lambda tt, j: ACC + 28*tt + 16 + 4*j, filler=fill, fill_n=self.fill_n)
            self.stamp("w3_mm")
            self.gelu(ACC+16, 12, drip=self.gd3)
            self.gelu(ACC+44, 12, drip=self.gd3)
        self.pack_tiles(ACC, 7)
        self.pack_tiles(ACC+28, 7)
        self.tile_base(ST+4, ttb, 54, H4F)
        self.store_frag(ACC, 7, ST+4, t0, skip_last_sreg=skip, force_sc1=(self.h4mode == 2))
        I(f"s_add_u32 s{ST+4}, s{ST+4}, {54*1024}")
        self.store_frag(ACC+28, 7, ST+4, t0, skip_last_sreg=skip, force_sc1=(self.h4mode == 2))
        self.publish_drip(PH_H4)
        self.stamp("h4pub")

    def phase_w4(self):
        I, C = self.I, self.C
        X2, H, ACC, T = self.X2, self.H, self.ACC, self.GT
        rbA, rbB = ST+13, ST+14
        I(f"""
        s_and_b32 s{rbA}, s{S_TT}, 7
        s_lshr_b32 s{rbA}, s{rbA}, 1
        s_and_b32 s{rbB}, s{S_RB}, 30
        s_lshl_b32 s{rbB}, s{rbB}, 2
        s_add_u32 s{rbA}, s{rbA}, s{rbB}
        s_add_u32 s{rbB}, s{rbA}, 4
        """)
        self.phase_entry(PH_H4, [rbA, rbB], 13, self.F_W4, 5, upto=(607 if self.resident else None))
        I(f"s_mul_i32 s{self.S_SRC}, s{S_TT}, {54*1024}\ns_add_u32 s{self.S_SRC}, s{self.S_SRC}, {H4F}")
        if self.wb_early:
            lab = self.b.uid("L_wb")
            I(f"""
            s_lshr_b32 s{ST}, s{S_W}, 3
            s_lshl_b32 s{ST}, s{ST}, 2
            s_add_u32 s{ST}, s{ST}, s{S_WV}
            s_cmp_lg_u32 s{ST}, {self.wb_who}
            s_cbranch_scc1 {lab}
            buffer_wbl2 sc1
            {lab}:
            """)
        aops = [self.a_op(0, s, 16, V_L16, self.S_SRC, 0, self.S_AO, self.SPLIT54, self.V_L8) for s in range(54)]
        self.gemm(54, 5, self.F_W4, aops, [16], burst=self.burst4, rate=self.rate_w4, post_barrier=False, chunk=self.chunk4)
        self.stamp("w4_mm")
        MS = self.WB
        for j in range(5):
            I(f"""
            v_accvgpr_read_b32 v{T+4}, a{self.RAW_GB+2*j}
            v_accvgpr_read_b32 v{T+5}, a{self.RAW_GB+2*j+1}
            v_lshlrev_b32 v{MS+4*j}, 16, v{T+4}
            v_and_b32 v{MS+4*j+1}, 0xffff0000, v{T+4}
            v_lshlrev_b32 v{MS+4*j+2}, 16, v{T+5}
            v_and_b32 v{MS+4*j+3}, 0xffff0000, v{T+5}
            """)
        for i in range(0, 20, 2):
            I(f"v_pk_add_f32 v[{ACC+i}:{ACC+i+1}], v[{ACC+i}:{ACC+i+1}], v[{H+i}:{H+i+1}]")
            I(f"v_pk_fma_f32 v[{ACC+i}:{ACC+i+1}], v[{ACC+i}:{ACC+i+1}], v[{MS+i}:{MS+i+1}], v[{X2+i}:{X2+i+1}]")
        self.srd(S_A, P_OUT, 2048*1280)
        I(f"""
        s_lshl_b32 s{ST}, s{S_TT}, 4
        v_add_u32 v{T+4}, s{ST}, v{V_T}
        v_mul_u32_u24 v{T+4}, 1280, v{T+4}
        v_lshl_add_u32 v{T+4}, v{V_G}, 3, v{T+4}
        s_mul_i32 s{ST}, s{S_M}, 160
        """)
        self.pack_tiles(ACC, 5)
        for j in range(5):
            a = ACC + 2*j
            I(f"buffer_store_dwordx2 v[{a}:{a+1}], v{T+4}, {sr(S_A)}, s{ST} offen offset:{32*j}{' sc1' if self.out_sc1 else ''}")
        self.stamp("out")

    def l2_prefetch(self, which, part):
        I = self.I
        T = 246
        rbl = ST + 4
        I(f"v_lshlrev_b32 v{T}, 7, v{V_L}\ns_and_b32 s{rbl}, s{S_RB}, 3")
        if which == "A":
            base, start, chunk, shl = self.S_WA, 96*1024, 6656, 0
        elif which == "3":
            base, start, chunk, shl = self.S_W3, 0, 9216, 1
        else:
            base, start, chunk, shl = self.S_W4, 0, 8704, 0
        I(f"""
        s_lshr_b32 s{ST+5}, s{rbl}, {shl}
        s_lshl_b32 s{ST+5}, s{ST+5}, 2
        s_add_u32 s{ST+5}, s{ST+5}, s{S_WV}
        s_lshl_b32 s{ST+5}, s{ST+5}, 1
        s_add_u32 s{ST+5}, s{ST+5}, {part}
        s_mul_i32 s{ST+5}, s{ST+5}, {chunk}
        s_add_u32 s{ST+5}, s{ST+5}, s{base}
        s_sub_u32 s{ST+5}, s{ST+5}, s{self.S_LW}
        s_add_u32 s{ST+5}, s{ST+5}, {start}
        """)
        if chunk < 8192:
            I(f"v_cmp_gt_u32 vcc, {chunk//128}, v{V_L}\ns_and_saveexec_b64 s[{ST+6}:{ST+7}], vcc")
        I(f"buffer_load_dword a254, v{T}, {sr(S_WS)}, s{ST+5} offen")
        if chunk < 8192:
            I(f"s_mov_b64 exec, s[{ST+6}:{ST+7}]")
        if chunk > 8192:
            I(f"s_add_u32 s{ST+5}, s{ST+5}, 8192\nv_cmp_gt_u32 vcc, {(chunk-8192)//128}, v{V_L}\ns_and_saveexec_b64 s[{ST+6}:{ST+7}], vcc")
            I(f"buffer_load_dword a253, v{T}, {sr(S_WS)}, s{ST+5} offen")
            I(f"s_mov_b64 exec, s[{ST+6}:{ST+7}]")
        return 2 if chunk > 8192 else 1

    def tlb_touch(self):
        I = self.I
        n = (WS_END + (1 << 20) - 1) >> 20
        I(f"""
        v_lshlrev_b32 v245, 20, v{V_L}
        v_cmp_gt_u32 vcc, {n}, v{V_L}
        s_and_saveexec_b64 s[{ST+6}:{ST+7}], vcc
        buffer_load_dword a255, v245, {sr(S_WS)}, 0 offen
        s_mov_b64 exec, s[{ST+6}:{ST+7}]
        """)

    def mall_touch(self, base, nbytes):
        I = self.I
        per_wave = -(-nbytes // 1024 // 128) * 128
        lines = per_wave // 128
        assert lines <= 128
        I(f"""
        v_lshlrev_b32 v245, 7, v{V_L}
        s_lshl_b32 s{ST+5}, s{S_W}, 2
        s_add_u32 s{ST+5}, s{ST+5}, s{S_WV}
        s_mul_i32 s{ST+5}, s{ST+5}, {per_wave}
        s_add_u32 s{ST+5}, s{ST+5}, {base}
        """)
        n0 = min(lines, 64)
        if n0 < 64: I(f"v_cmp_gt_u32 vcc, {n0}, v{V_L}\ns_and_saveexec_b64 s[{ST+6}:{ST+7}], vcc")
        I(f"buffer_load_dword a255, v245, {sr(S_WS)}, s{ST+5} offen")
        if n0 < 64: I(f"s_mov_b64 exec, s[{ST+6}:{ST+7}]")

    def act_touch(self, base, per_tile):
        I = self.I
        per_wave = 16*per_tile // 128
        lines = per_wave // 128
        I(f"""
        v_lshlrev_b32 v245, 7, v{V_L}
        s_lshr_b32 s{ST+5}, s{S_RB}, 2
        s_mul_i32 s{ST+5}, s{ST+5}, {16*per_tile}
        s_and_b32 s{ST+6}, s{S_RB}, 3
        s_lshl_b32 s{ST+6}, s{ST+6}, 3
        s_add_u32 s{ST+6}, s{ST+6}, s{S_M}
        s_lshl_b32 s{ST+6}, s{ST+6}, 2
        s_add_u32 s{ST+6}, s{ST+6}, s{S_WV}
        s_mul_i32 s{ST+6}, s{ST+6}, {per_wave}
        s_add_u32 s{ST+5}, s{ST+5}, s{ST+6}
        s_add_u32 s{ST+5}, s{ST+5}, {base}
        """)
        n0 = min(lines, 64)
        if n0 < 64: I(f"v_cmp_gt_u32 vcc, {n0}, v{V_L}\ns_and_saveexec_b64 s[{ST+6}:{ST+7}], vcc")
        I(f"buffer_load_dword a255, v245, {sr(S_WS)}, s{ST+5} offen")
        if n0 < 64: I(f"s_mov_b64 exec, s[{ST+6}:{ST+7}]")

    def sync_touch(self):
        I = self.I
        l3 = self.b.uid("L_st3"); lj = self.b.uid("L_stj")
        I(f"""
        s_cmp_eq_u32 s{S_WV}, 3
        s_cbranch_scc1 {l3}
        v_lshlrev_b32 v245, 7, v{V_L}
        s_mul_i32 s{ST+5}, s{S_WV}, {STAT_SZ}
        s_lshl_b32 s{ST+6}, s{S_RB}, 13
        s_add_u32 s{ST+5}, s{ST+5}, s{ST+6}
        s_add_u32 s{ST+5}, s{ST+5}, {STAT}
        buffer_load_dword a255, v245, {sr(S_WS)}, s{ST+5} offen
        s_branch {lj}
        {l3}:
        v_lshrrev_b32 v245, 4, v{V_L}
        v_lshlrev_b32 v245, 14, v245
        v_and_b32 v244, 15, v{V_L}
        v_lshl_add_u32 v245, v244, 7, v245
        s_and_b32 s{ST+5}, s{S_RB}, 28
        s_lshl_b32 s{ST+5}, s{ST+5}, 9
        s_add_u32 s{ST+5}, s{ST+5}, {CFLAG + CF_LOC}
        buffer_load_dword a255, v245, {sr(S_WS)}, s{ST+5} offen
        s_add_u32 s{ST+5}, s{ST+5}, {4*CF_PH}
        v_lshlrev_b32 v245, 7, v244
        buffer_load_dword a255, v245, {sr(S_WS)}, s{ST+5} offen
        {lj}:
        s_sub_u32 s{ST+5}, s{S_TT}, 1
        s_max_i32 s{ST+5}, s{ST+5}, 0
        s_lshl_b32 s{ST+5}, s{ST+5}, 7
        s_add_u32 s{ST+5}, s{ST+5}, {CFLAG + PH_G*CF_PH}
        v_lshlrev_b32 v245, 7, v{V_L}
        s_mov_b64 exec, 7
        buffer_load_dword a255, v245, {sr(S_WS)}, s{ST+5} offen
        s_mov_b64 exec, -1
        """)

    def pf_op(self, which, part):
        n = self.l2_prefetch(which, part)
        for i in range(n): self.vm_issue(("pf",))

    def hook_body(self, hooks, k):
        if self.detail == 1: self.stamp(f"h{k}i")
        hooks[k]()
        if self.detail == 1: self.stamp(f"h{k}o")

    L_KV = 108*1024
    S_INC = 75
    S_SLOW = 77
    def kv_dma(self, g):
        I = self.I
        I(f"""
        s_mul_i32 s{ST+5}, s{S_WV}, {KVT}
        s_add_u32 s{ST+4}, s{ST+5}, {self.L_KV + (4*g % 16)*KVT}
        s_mov_b32 m0, s{ST+4}
        s_add_u32 s{ST+5}, s{ST+5}, {KV + 4*g*KVT}
        buffer_load_dwordx4 v{V_L16}, {sr(S_WS)}, s{ST+5} offen lds
        buffer_load_dwordx4 v{V_L16}, {sr(S_WS)}, s{ST+5} offen offset:1024 lds
        buffer_load_dwordx4 v{V_L16}, {sr(S_WS)}, s{ST+5} offen offset:2048 lds
        s_mov_b64 exec, 0xffff
        buffer_load_dwordx4 v{V_L16}, {sr(S_WS)}, s{ST+5} offen offset:3072 lds
        s_mov_b64 exec, -1
        """)

    L_DUMMY = 104*1024
    V_BG = 202
    L_MODW = 96*1024
    def slot_setup(self, kind, arg=0):
        I = self.I
        DS = self.S_DS
        if kind == "unit":
            I(f"s_add_u32 s{DS}, s{self.S_WA}, {(16*arg-16)*1024 & 0xffffffff}\ns_add_u32 s76, s{self.S_LW}, {(16*arg-16)*1024 & 0xffffffff}\ns_mov_b32 s{self.S_INC}, 16384")
            return
        if kind == "act":
            base, per_tile, part = arg
            per_wave = 16*per_tile // 128
            I(f"""
            s_lshr_b32 s{DS}, s{S_RB}, 2
            s_mul_i32 s{DS}, s{DS}, {16*per_tile}
            s_and_b32 s{ST+6}, s{S_RB}, 3
            s_lshl_b32 s{ST+6}, s{ST+6}, 3
            s_add_u32 s{ST+6}, s{ST+6}, s{S_M}
            s_lshl_b32 s{ST+6}, s{ST+6}, 2
            s_add_u32 s{ST+6}, s{ST+6}, s{S_WV}
            s_mul_i32 s{ST+6}, s{ST+6}, {per_wave}
            s_add_u32 s{DS}, s{DS}, s{ST+6}
            s_add_u32 s{DS}, s{DS}, {base + 4096*part}
            """)
        elif kind == "mod":
            I(f"""
            v_mul_u32_u24 v245, 3277, v{V_L}
            v_lshrrev_b32 v245, 16, v245                        ; lane / 20
            v_mul_u32_u24 v{self.V_BG}, {2560 - 320}, v245
            v_add_u32 v{self.V_BG}, v{self.V_BG}, v{V_L16}      ; slice * 2560 + (lane % 20) * 16
            s_mul_i32 s{DS}, s{S_M}, 320
            s_add_u32 s{DS}, s{DS}, {MODG + 2*2560}
            s_mov_b32 s76, {self.L_MODW}
            s_mov_b32 s{self.S_INC}, 0
            """)
            return
        elif kind == "wsa":
            I(f"""
            s_and_b32 s{ST+6}, s{S_RB}, 3
            s_lshl_b32 s{ST+6}, s{ST+6}, 2
            s_add_u32 s{ST+6}, s{ST+6}, s{S_WV}
            s_mul_i32 s{ST+6}, s{ST+6}, {8*1024}
            s_add_u32 s{DS}, s{self.S_WA}, s{ST+6}
            s_sub_u32 s{DS}, s{DS}, s{self.S_LW}
            s_add_u32 s{DS}, s{DS}, {96*1024 + 4096*arg}
            """)
        else:
            I(f"s_mov_b32 s{DS}, {KV}")
        I(f"s_mov_b32 s76, {self.L_DUMMY}")

    def attn_hooks(self):
        I = self.I
        J = {}
        J[15] = (lambda: self.rl_issue(1), 0)
        def j14():
            lab = self.b.uid("L_j14")
            I(f"s_cmp_ge_u32 s{S_WV}, 2\ns_cbranch_scc1 {lab}\ns_waitcnt vmcnt(16)")
            self.rl_store(0)
            I(f"{lab}:")
        J[14] = (j14, 0)
        def j13():
            lab = self.b.uid("L_j13")
            I("s_waitcnt vmcnt(16)")
            I(f"s_cmp_lt_u32 s{S_WV}, 2\ns_cbranch_scc1 {lab}")
            self.rl_store(0)
            I(f"{lab}:")
            self.rl_store(1)
            self.sync_touch()
        J[13] = (j13, 2)
        def j11():
            I("s_waitcnt vmcnt(16)")
            self.rl_flag()
        J[11] = (j11, 0)
        def j8(): self.xid_issue(); self.rl_poll_issue(); self.ring_regs()
        J[8] = (j8, 1)
        def j7():
            I("s_waitcnt vmcnt(8)")
            self.rl_poll_eval()
        J[7] = (j7, 0)
        J[2] = (self.xid_eval, 0)
        if self.pfA:
            J[6] = (lambda: self.l2_prefetch("A", 0), 1); J[4] = (lambda: self.l2_prefetch("A", 1), 1)
        if self.pf3:
            J[6] = (lambda: self.l2_prefetch("3", 0), 2); J[4] = (lambda: self.l2_prefetch("3", 1), 2)
        if self.pf4:
            J[3] = (lambda: (self.l2_prefetch("4", 0), self.l2_prefetch("4", 1)), 2)
        SL = {16: ("act", (OF, 20480, 0)), 15: ("act", (L2F, 20480, 0)), 14: ("none", 0), 13: ("act", (H4F, 54*1024, 0)), 11: ("act", (H4F, 54*1024, 1)),
              10: ("none", 0), 7: ("unit", 0), 1: ("mod", 0)}
        if self.h4mode >= 1:
            del SL[13]; del SL[11]
        if self.xymode:
            SL[16] = ("none", 0); del SL[15]
        if not ALIAS: SL[14] = ("act", (GF, 20480, 0)); SL[13] = ("act", (L3F, 20480, 0))
        H = {}
        def mk(k):
            def f():
                if k in J and not self.nojobs: J[k][0]()
                if k in SL: self.slot_setup(*(SL[k] if not self.nojobs else ("none", 0)))
            return f
        for k in range(16, 0, -1):
            if k in J or k in SL: H[k] = mk(k)
        return H

    def ring_state_after_attn(self):
        self.units_issued = 6
        self.units_queued = 6
        self.pend = []
        self.consumed = -1
        self.vmq = []

    def build(self, force_slow=False, force_global=False):
        I = self.I
        self.force_global = force_global
        phases = [self.phase_start, self.phase_kv, self.phase_q, self.phase_kvwait,
                  lambda: self.phase_attn(force_slow), self.phase_wo, self.phase_w1, self.phase_w2, self.phase_w3, self.phase_w4]
        self.prologue()
        for i, p in enumerate(phases):
            if i >= self.stop_after: break
            p()
        if self.dbg_time:
            lab = self.b.uid("L_dt")
            self.srd(S_C, P_DBG, 256)
            I(f"""
            s_and_b32 s{ST}, s{S_W}, 63
            s_cmp_lg_u32 s{ST}, 63
            s_cbranch_scc1 {lab}
            s_cmp_lg_u32 s{S_WV}, 0
            s_cbranch_scc1 {lab}
            s_memrealtime s[{ST+2}:{ST+3}]
            s_lshr_b32 s{ST}, s{S_W}, 6
            s_lshl_b32 s{ST}, s{ST}, 2
            s_add_u32 s{ST}, s{ST}, 32
            s_waitcnt lgkmcnt(0)
            s_sub_u32 s{ST+2}, s{ST+2}, s{S_TAG}
            v_mov_b32 v254, s{ST+2}
            v_mov_b32 v253, s{ST}
            buffer_store_dword v254, v253, {sr(S_C)}, 0 offen sc1
            {lab}:
            """)
        I(f"""
        s_waitcnt vmcnt(0) lgkmcnt(0)
        s_endpgm
        L_fail:
        s_waitcnt vmcnt(0) lgkmcnt(0)
        """)
        self.srd(S_C, P_DBG, 256)
        I(f"""
        v_mov_b32 v254, s{S_ERR}
        v_mov_b32 v255, s{S_W}
        v_mov_b32 v253, 16
        buffer_store_dwordx2 v[254:255], v253, {sr(S_C)}, 0 offen sc1
        s_waitcnt vmcnt(0)
        L_end:
        s_endpgm
        L_code_end:
        """)
        text, n = finalize(self.b, check=not (self.x_nords or self.x_nokv or self.noslot), align=bool(self.align))
        hdr = open("adaLN_cond__grouped_kv_mqa__mixer_s_mlp__prompt.s.ref").read().split("; Override launch")[0]
        lines = [l for l in hdr.strip().split("\n")]
        lines.append(f"; @launch grid=(256,1,1) block=(256,1,1) lds={LDS_SZ}")
        lines += DOC.strip("\n").split("\n")
        return kernel_file(lines, [(NAME, text, 512, 256, 102)]), n

if __name__ == "__main__":
    import argparse
    ap = argparse.ArgumentParser()
    ap.add_argument("-o", default="adaLN_cond__grouped_kv_mqa__mixer_s_mlp__prompt.s")
    ap.add_argument("--stop", type=int, default=99)
    ap.add_argument("--stamps", action="store_true")
    ap.add_argument("--slow", action="store_true")
    ap.add_argument("--detail", type=int, default=-1)
    ap.add_argument("--cap", type=int, default=99)
    ap.add_argument("--set", action="append", default=[])
    ap.add_argument("--global", dest="glob", action="store_true")
    a = ap.parse_args()
    g = Gen(stop_after=a.stop, stamps=a.stamps)
    g.detail = a.detail
    g.cap_small = a.cap
    for kv in a.set:
        k_, v_ = kv.split('=')
        setattr(g, k_, float(v_) if '.' in v_ else int(v_))
    txt, n = g.build(force_slow=a.slow, force_global=a.glob)
    open(a.o, "w").write(txt)
    print("wrote", a.o, len(txt), "bytes; auto nops:", n, "stamps:", getattr(g, "stamp_names", None))
```

```python
import sys
from common import *

import struct
def f2u(x): return struct.unpack("<I", struct.pack("<f", x))[0]

NAME = "adaLN_cond__grouped_kv_mqa__mixer_s_mlp__prompt_kernel"
MODG   = 0x000000
KVFLAG = 0x004000
RLFLAG = 0x008000
STAT   = 0x020000
STAT_SZ = 32*8*64*16
KV     = 0x100000
KVT    = 3328
OF     = 0x200000
ACT_SZ = 128*20*1024
L2F    = OF + ACT_SZ
import os
ALIAS = os.environ.get('NOALIAS') is None
GF     = OF if ALIAS else L2F + ACT_SZ
L3F    = L2F if ALIAS else L2F + 2*ACT_SZ
H4F    = L2F + 3*ACT_SZ
H4_SZ  = 128*54*1024
WSA    = H4F + H4_SZ
WSA_M  = 304*1024
W3S    = WSA + 8*WSA_M
W3S_M  = 144*1024
W4S    = W3S + 16*W3S_M
W4S_M  = 272*1024
HG     = W4S + 8*W4S_M
XIDG   = HG + 16*20*1024
CFLAG  = XIDG + 4096
CF_LOC = 8*128*128
CF_PH  = 128*128
WS_END = CFLAG + 2*CF_LOC + 64*1024
DBGA   = WS_END
WS_REC = 0x4000000
PH_O, PH_L2, PH_G, PH_L3, PH_H4 = 0, 1, 2, 3, 4

L_WQ   = 0
L_WK   = 102400
L_WM   = 102400
L_SC   = 143360
L_MOD  = 144640
L_QS   = 149760
L_MISC = 161024
LDS_SZ = 163840
L_RL   = 0
L_W    = 0

S_WS = 4
S_A  = 8
S_B  = 12
S_C  = 16
S_TAG = 20
S_WV, S_M, S_RB, S_W = 22, 23, 24, 25
S_T0 = 26
S_TT = 27
S_ERR = 28
S_FAST = 3
P_X, P_WQ, P_WK, P_WV, P_WO, P_BX, P_W1, P_W2, P_W3, P_W4, P_C, P_WM, P_OUT, P_DBG, P_WS = [32 + 2*i for i in range(15)]
ST = 62

def sr(b, n=4): return f"s[{b}:{b+n-1}]"
def vr(b, n=4): return f"v[{b}:{b+n-1}]" if n > 1 else f"v{b}"
def ar(b, n=4): return f"a[{b}:{b+n-1}]" if n > 1 else f"a{b}"

V_L, V_T, V_G, V_L16 = 0, 1, 2, 3

TIMEOUT = 400000


DOC = """
;
;  1. mod = silu(c) @ w_mod (column blocks spread over workgroups), LN(x), h = LN(x)*(1+ca)+sa, K / V^T (members 0,1), Q.
;     The scores are used without subtracting a maximum only while a run-time bound proves it safe:
;     |q|^2 * max_k |k|^2 <= 64^2 (log2 units, Cauchy-Schwarz), so every exp2 argument lies in [-64, 64].
;  3. wo, LN, LN, w1 + gelu, token shift + w2, LN, w3 + gelu, w4: 64x80 output tiles, activations exchanged through d_ws in fragment order.
"""

class Gen:
    def __init__(self, stop_after=99, stamps=False):
        self.b = Builder()
        self.stop_after = stop_after
        self.stamps = stamps
        self.nstamp = 0
        self.detail = -1
        self.nojobs = 0
        self.dbg_time = 0
        self.align = 1
        self.x_nobar = 0
        self.x_nokv = 0
        self.x_nords = 0
        self.noslot = 0
        self.in_slow = False
        self.cap_small = 99
        self.burst = 6
        self.rate_small = 1.3
        self.rate_w3 = 3.5
        self.rate_w4 = 1.6
        self.epi_drip = 8
        self.post_drip = 0
        self.fine = 0
        self.xymode = 0
        self.tlb_early = 1
        self.gsleep = 0
        self.h4mode = 2
        self.wb_early = 0
        self.wb_who = 0
        self.out_sc1 = 0
        self.wq_touch = 1
        self.w3split = 0
        self.rate_w3a = 2.2
        self.rate_w3b = 1.5
        self.fill_n = 2
        self.pfA = 1
        self.pf4 = 0
        self.post_drip2 = 0
        self.post_drip3 = 0
        self.res3 = 0
        self.w4defer = 0
        self.shadow_f = 3
        self.shadow_s = 3
        self.resident = 0
        self.chunk4 = 4
        self.pub_after = 0
        self.visible = -1
        self.epi_drip2 = 6
        self.gd1 = 1
        self.gd3 = 2
        self.burst4 = 10
        self.use_pf = 0
        self.tlb_warm = 0
        self.touch_act = 0
        self.h4t_where = 0
        self.use_mall = 0
        self.pf3 = 0
        self.pub_drip = 0
    def I(self, t): self.b.I(t)
    def C(self, t): self.b.C(t)

    def srd(self, s, ptr, nbytes, add=0):
        if add:
            self.I(f"s_add_u32 s{s}, s{ptr}, {add}\ns_addc_u32 s{s+1}, s{ptr+1}, 0")
        else:
            self.I(f"s_mov_b32 s{s}, s{ptr}\ns_mov_b32 s{s+1}, s{ptr+1}")
        self.I(f"s_mov_b32 s{s+2}, {nbytes}\ns_mov_b32 s{s+3}, 0x20000")

    def stamp(self, name):
        if not self.stamps: return
        k = self.nstamp; self.nstamp += 1
        lab = self.b.uid("L_st")
        self.C(f"stamp {k}: {name}")
        self.I(f"""
        s_cmp_lg_u32 s{S_WV}, 0
        s_cbranch_scc1 {lab}
        s_memrealtime s[100:101]
        s_memtime s[96:97]
        s_lshl_b32 s99, s{S_W}, 11
        s_add_u32 s99, s99, {DBGA + 16*k}
        s_waitcnt lgkmcnt(0)
        v_mov_b32 v252, s100
        v_mov_b32 v253, s101
        v_mov_b32 v254, s96
        v_mov_b32 v255, s97
        v_mov_b32 v251, s99
        buffer_store_dwordx4 v[252:255], v251, {sr(S_WS)}, 0 offen
        s_nop 1
        {lab}:
        """)
        self.stamp_names = getattr(self, "stamp_names", []) + [name]

    def spin_tail(self, cnt, loop, code):
        if code in (2, 3) and self.gsleep: self.I(f"s_sleep {self.gsleep}")
        self.I(f"""
        s_sub_u32 s{cnt}, s{cnt}, 1
        s_cmp_lg_u32 s{cnt}, 0
        s_cbranch_scc1 {loop}
        s_mov_b32 s{S_ERR}, {code}
        s_branch L_fail
        """)

    def get_tag(self):
        lp = self.b.uid("L_tag"); ok = self.b.uid("L_tagok")
        self.srd(S_C, P_DBG, 256)
        self.I(f"""
        s_mov_b32 s{ST}, {TIMEOUT}
        v_mov_b32 v252, 0
        {lp}:
        buffer_load_dwordx2 v[254:255], v252, {sr(S_C)}, 0 offen sc1
        s_waitcnt vmcnt(0)
        v_readfirstlane_b32 s{S_TAG}, v254
        v_readfirstlane_b32 s{S_TAG+1}, v255
        s_cmp_lg_u32 s{S_TAG}, 0
        s_cbranch_scc1 {ok}
        """)
        self.spin_tail(ST, lp, 1)
        self.I(f"{ok}:")

    def reduce_g(self, regs, tmp, op="v_add_f32"):
        for sw in ("v_permlane16_swap_b32", "v_permlane32_swap_b32"):
            for i, r in enumerate(regs):
                self.I(f"v_mov_b32 v{tmp+i}, v{r}")
            for i, r in enumerate(regs):
                self.I(f"{sw} v{r}, v{tmp+i}")
            for i, r in enumerate(regs):
                self.I(f"{op} v{r}, v{r}, v{tmp+i}")

    def prologue(self):
        I = self.I
        I(f"""
        s_cmp_ge_u32 s2, 256
        s_cbranch_scc1 L_end
        s_load_dwordx16 s[32:47], s[0:1], 0
        s_load_dwordx8 s[48:55], s[0:1], 64
        s_load_dwordx4 s[56:59], s[0:1], 96
        s_load_dwordx2 s[60:61], s[0:1], 112
        v_lshrrev_b32 v1, 6, v0
        v_and_b32 v{V_L}, 63, v0
        v_readfirstlane_b32 s{S_WV}, v1
        v_and_b32 v{V_T}, 15, v{V_L}
        v_lshrrev_b32 v{V_G}, 4, v{V_L}
        v_lshlrev_b32 v{V_L16}, 4, v{V_L}
        s_mov_b32 s{S_W}, s2
        s_and_b32 s{ST}, s2, 7
        s_lshr_b32 s{ST+1}, s2, 3
        s_and_b32 s{S_M}, s{ST+1}, 7
        s_lshr_b32 s{ST+1}, s{ST+1}, 3
        s_lshl_b32 s{ST}, s{ST}, 2
        s_add_u32 s{S_RB}, s{ST}, s{ST+1}
        s_lshl_b32 s{S_T0}, s{S_RB}, 6
        s_lshl_b32 s{S_TT}, s{S_RB}, 2
        s_add_u32 s{S_TT}, s{S_TT}, s{S_WV}
        s_mov_b32 s{S_ERR}, 0
        """)
        self.C("request the kernel's own code into this XCD's L2: workgroup j of the 32 in a row group takes lines 16j..16j+15 (wave 0)")
        labc = self.b.uid("L_cp")
        I(f"""
        s_cmp_lg_u32 s{S_WV}, 0
        s_cbranch_scc1 {labc}
        s_getpc_b64 s[{ST+2}:{ST+3}]
        L_pcref:
        s_lshr_b32 s{ST+4}, s2, 3
        s_lshl_b32 s{ST+4}, s{ST+4}, 11                       ; 16 lines * 128 B
        v_lshlrev_b32 v4, 7, v{V_L}
        v_add_u32 v4, s{ST+4}, v4
        v_cmp_gt_u32 vcc, L_code_end-L_pcref-4, v4
        s_and_b64 vcc, vcc, 0xffff
        s_and_saveexec_b64 s[{ST+4}:{ST+5}], vcc
        s_cbranch_execz {labc}_x
        global_load_dword a252, v4, s[{ST+2}:{ST+3}]
        {labc}_x:
        s_mov_b64 exec, s[{ST+4}:{ST+5}]
        {labc}:
        s_waitcnt lgkmcnt(0)
        """)
        self.srd(S_WS, P_WS, WS_REC)
        lab = self.b.uid("L_non")
        self.srd(S_C, P_DBG, 256)
        I(f"""
        s_lshl_b32 s{ST}, s2, 2
        s_add_u32 s{ST}, s{ST}, s{S_WV}
        s_cmp_lg_u32 s{ST}, 0
        s_cbranch_scc1 {lab}
        s_memrealtime s[{S_TAG}:{S_TAG+1}]
        s_waitcnt lgkmcnt(0)
        s_or_b32 s{S_TAG}, s{S_TAG}, 1
        v_mov_b32 v254, s{S_TAG}
        v_mov_b32 v255, s{S_TAG+1}
        v_mov_b32 v252, 0
        s_mov_b64 exec, 1
        buffer_store_dwordx2 v[254:255], v252, {sr(S_C)}, 0 offen sc1
        s_mov_b64 exec, -1
        {lab}:
        """)
        self.stamp("start")

    XF = 4
    XH = 84
    TMP = 244

    def tag_issue(self):
        self.srd(S_C, P_DBG, 256)
        self.I(f"v_mov_b32 v241, 0\nbuffer_load_dwordx2 v[242:243], v241, {sr(S_C)}, 0 offen sc1")

    def tag_eval(self):
        I = self.I
        lp = self.b.uid("L_tag"); ok = self.b.uid("L_tagok")
        I(f"""
        s_mov_b32 s{ST}, {TIMEOUT}
        {lp}:
        v_readfirstlane_b32 s{S_TAG}, v242
        v_readfirstlane_b32 s{S_TAG+1}, v243
        s_cmp_lg_u32 s{S_TAG}, 0
        s_cbranch_scc1 {ok}
        """)
        self.tag_issue()
        I("s_waitcnt vmcnt(0)")
        self.spin_tail(ST, lp, 1)
        I(f"{ok}:")

    S_PROD2 = 80
    S_PROD, S_P = 80, 81

    LWM, LSC, LMI = L_WM, L_SC, L_MISC + 64
    def mod_dma(self, cdst=None):
        I = self.I
        TMP = self.MT
        self.srd(S_B, P_C, 1280)
        I(f"""
        s_mul_i32 s{ST+4}, s{S_WV}, 320
        v_lshlrev_b32 v{TMP+2}, 3, v{V_L}
        buffer_load_dwordx2 {cdst or f'v[{TMP+4}:{TMP+5}]'}, v{TMP+2}, {sr(S_B)}, s{ST+4} offen
        """)
        self.srd(S_A, P_WM, 640*7680)
        I(f"""
        v_lshrrev_b32 v{TMP}, 2, v{V_L}
        v_mul_u32_u24 v{TMP}, 7680, v{TMP}
        v_and_b32 v{TMP+1}, 3, v{V_L}
        v_lshl_add_u32 v{TMP}, v{TMP+1}, 4, v{TMP}
        s_mul_i32 s{ST+1}, s{S_WV}, {160*7680}
        s_lshl_b32 s{ST+2}, s{self.S_P}, 6                   ; p*64 bytes
        s_add_u32 s{ST+1}, s{ST+1}, s{ST+2}
        s_mul_i32 s{ST+3}, s{S_WV}, {160*64}
        s_add_u32 s{ST+3}, s{ST+3}, {self.LWM}
        """)
        for i in range(10):
            I(f"""
            s_mov_b32 m0, s{ST+3}
            s_add_u32 s{ST+3}, s{ST+3}, 1024
            buffer_load_dwordx4 v{TMP}, {sr(S_A)}, s{ST+1} offen lds
            s_add_u32 s{ST+1}, s{ST+1}, {16*7680}
            """)

    MT2 = 244
    MT3 = 228
    MT = 228
    def mod_gemv(self, W, wait_c, wait_w, wait_tag, BBr=None):
        I = self.I
        TMP = self.MT
        T = TMP + 4
        I(f"""
        s_waitcnt vmcnt({wait_c})
        v_lshlrev_b32 v{TMP+6}, 16, v{T}
        v_and_b32 v{TMP+7}, 0xffff0000, v{T}
        v_lshlrev_b32 v{TMP+8}, 16, v{T+1}
        v_and_b32 v{TMP+9}, 0xffff0000, v{T+1}
        """)
        for i in range(4):
            r = TMP + 6 + i
            I(f"""
            v_mul_f32 v{TMP+3}, 0xbfb8aa3b, v{r}
            v_exp_f32 v{TMP+3}, v{TMP+3}
            v_add_f32 v{TMP+3}, 1.0, v{TMP+3}
            v_rcp_f32 v{TMP+3}, v{TMP+3}
            v_mul_f32 v{r}, v{r}, v{TMP+3}
            """)
        va, vb, WA, BB, ACC = W, W+1, W+4, W+44, W+64
        if BBr is not None: BB, ACC = BBr, W+44
        I(f"""
        v_cvt_pk_bf16_f32 v{T}, v{TMP+6}, v{TMP+7}
        v_cvt_pk_bf16_f32 v{T+1}, v{TMP+8}, v{TMP+9}
        s_mul_i32 s{ST+4}, s{S_WV}, 320
        s_add_u32 s{ST+4}, s{ST+4}, {self.LSC}
        v_lshlrev_b32 v{TMP+2}, 3, v{V_L}
        v_add_u32 v{TMP+2}, s{ST+4}, v{TMP+2}
        s_mov_b32 exec_hi, 0xff
        ds_write_b64 v{TMP+2}, v[{T}:{T+1}]
        s_mov_b32 exec_hi, -1
        v_lshrrev_b32 v{va}, 2, v{V_T}
        v_lshl_add_u32 v{va}, v{V_G}, 2, v{va}
        v_lshlrev_b32 v{va}, 6, v{va}                       ; 64*(4g+(i>>2))
        v_and_b32 v{vb}, 3, v{V_T}
        v_lshl_add_u32 v{va}, v{vb}, 3, v{va}
        s_mul_i32 s{ST}, s{S_WV}, {160*64}
        s_add_u32 s{ST}, s{ST}, {self.LWM}
        v_add_u32 v{va}, s{ST}, v{va}
        v_lshlrev_b32 v{vb}, 3, v{V_G}
        v_add_u32 v{vb}, s{ST+4}, v{vb}
        s_waitcnt vmcnt({wait_w}) lgkmcnt(0)
        """)
        for s_ in range(5):
            I(f"ds_read_b64 v[{BB+4*s_}:{BB+4*s_+1}], v{vb} offset:{64*s_}\nds_read_b64 v[{BB+4*s_+2}:{BB+4*s_+3}], v{vb} offset:{64*s_+32}")
        for s_ in range(5):
            for tl in range(2):
                W_ = WA + 8*s_ + 4*tl
                I(f"ds_read_b64_tr_b16 v[{W_}:{W_+1}], v{va} offset:{2048*s_+32*tl}\nds_read_b64_tr_b16 v[{W_+2}:{W_+3}], v{va} offset:{2048*s_+32*tl+1024}")
        I("s_waitcnt lgkmcnt(0)")
        for s_ in range(5):
            for tl in range(2):
                I(f"v_mfma_f32_16x16x32_bf16 {vr(ACC+4*tl)}, {vr(WA+8*s_+4*tl)}, {vr(BB+4*s_)}, {'0' if s_ == 0 else vr(ACC+4*tl)}")
        I(f"""
        s_lshl_b32 s{ST}, s{S_WV}, 7
        s_add_u32 s{ST}, s{ST}, {self.LMI}
        v_lshlrev_b32 v{va}, 4, v{V_G}
        v_add_u32 v{va}, s{ST}, v{va}
        v_cmp_eq_u32 vcc, 0, v{V_T}
        s_and_saveexec_b64 s[{ST+4}:{ST+5}], vcc
        ds_write_b128 v{va}, {vr(ACC)}
        ds_write_b128 v{va}, {vr(ACC+4)} offset:64
        s_mov_b64 exec, s[{ST+4}:{ST+5}]
        s_waitcnt lgkmcnt(0)
        s_barrier
        """)
        lab_gd = self.b.uid("L_gd")
        I(f"s_cmp_lg_u32 s{S_WV}, 0\ns_cbranch_scc1 {lab_gd}")
        I(f"""
        v_lshlrev_b32 v{va}, 4, v{V_L}
        v_and_b32 v{va}, 0x7f, v{va}
        v_add_u32 v{va}, {self.LMI}, v{va}
        ds_read_b128 {vr(WA)}, v{va}
        ds_read_b128 {vr(WA+4)}, v{va} offset:128
        ds_read_b128 {vr(WA+8)}, v{va} offset:256
        ds_read_b128 {vr(WA+12)}, v{va} offset:384
        """)
        if wait_tag is not None:
            I(f"s_waitcnt vmcnt({wait_tag})")
            self.tag_eval()
        I("s_waitcnt lgkmcnt(0)")
        for r in range(4):
            I(f"v_add_f32 v{WA+r}, v{WA+r}, v{WA+4+r}\nv_add_f32 v{WA+8+r}, v{WA+8+r}, v{WA+12+r}\nv_add_f32 v{WA+r}, v{WA+r}, v{WA+8+r}")
        I(f"""
        v_cvt_pk_bf16_f32 v{ACC+4}, v{WA}, v{WA+1}
        v_cvt_pk_bf16_f32 v{ACC+5}, v{WA+2}, v{WA+3}
        v_mov_b32 v{ACC+6}, s{S_TAG}
        v_mov_b32 v{ACC+7}, s{S_TAG+1}
        s_lshl_b32 s{ST}, s{self.S_P}, 7                     ; p*8 granules*16 B
        s_mov_b64 exec, 0xff
        buffer_store_dwordx4 {vr(ACC+4)}, v{V_L16}, {sr(S_WS)}, s{ST} offen offset:{MODG} sc1
        s_mov_b64 exec, -1
        {lab_gd}:
        """)

    def line_touch(self, srd, voff, soff, nl):
        I = self.I
        if nl < 64: I(f"v_cmp_gt_u32 vcc, {nl}, v{V_L}\ns_and_saveexec_b64 s[{ST+6}:{ST+7}], vcc")
        I(f"buffer_load_dword a255, v{voff}, {sr(srd)}, s{soff} offen")
        if nl < 64: I(f"s_mov_b64 exec, s[{ST+6}:{ST+7}]")

    def wq_ops(self):
        I = self.I
        V = 239
        so, lo = ST+12, ST+13
        self.srd(S_A, P_WQ, 640*1280)
        I(f"""
        v_mul_u32_u24 v{V}, 205, v{V_L}
        v_lshrrev_b32 v{V}, 11, v{V}
        v_mul_u32_u24 v{V-1}, 10, v{V}
        v_sub_u32 v{V-1}, v{V_L}, v{V-1}
        v_mul_u32_u24 v{V}, 1280, v{V}
        v_lshl_add_u32 v{V}, v{V-1}, 4, v{V}
        s_mul_i32 s{so}, s{S_M}, 160
        s_mul_i32 s{lo}, s{S_WV}, {6*1280}
        s_add_u32 s{so}, s{so}, s{lo}
        s_mul_i32 s{lo}, s{S_WV}, 960
        s_sub_u32 m0, s{lo}, 3840
        s_sub_u32 s{so}, s{so}, {24*1280}
        """)
        def mk(i):
            def f():
                if i == 26:
                    lab = self.b.uid("L_wq")
                    I(f"""
                    s_cmp_ge_u32 s{S_WV}, 3
                    s_cbranch_scc1 {lab}
                    s_cmp_eq_u32 s{S_WV}, 2
                    s_mov_b32 s{ST+14}, 0x0fffffff
                    s_cselect_b32 exec_hi, 0xff, s{ST+14}
                    s_add_u32 m0, m0, 3840
                    s_add_u32 s{so}, s{so}, {24*1280}
                    buffer_load_dwordx4 v{V}, {sr(S_A)}, s{so} offen lds
                    s_mov_b32 exec_hi, -1
                    {lab}:
                    """)
                else:
                    I(f"""
                    s_add_u32 m0, m0, 3840
                    s_add_u32 s{so}, s{so}, {24*1280}
                    buffer_load_dwordx4 v{V}, {sr(S_A)}, s{so} offen lds
                    """)
            return f
        return [mk(i) for i in range(27)]

    def phase_start(self):
        I, C = self.I, self.C
        XF, XH, TMP = self.XF, self.XH, self.TMP
        PR, P = self.S_PROD, self.S_P
        C("---- mod producers: members 2..5; column pair P = x + 8k (k = 2*rbl + (m-2)/2) < 60, block p = 2P + (m-2)%2; P < 20 is critical")
        I(f"""
        s_sub_u32 s{ST}, s{S_M}, 2                           ; m-2
        s_and_b32 s{ST+1}, s{S_RB}, 3
        s_lshl_b32 s{ST+1}, s{ST+1}, 1
        s_lshr_b32 s{ST+2}, s{ST}, 1
        s_add_u32 s{ST+1}, s{ST+1}, s{ST+2}
        s_lshl_b32 s{ST+1}, s{ST+1}, 3
        s_lshr_b32 s{ST+2}, s{S_RB}, 2
        s_add_u32 s{ST+1}, s{ST+1}, s{ST+2}                  ; P
        s_lshl_b32 s{P}, s{ST+1}, 1
        s_and_b32 s{ST+2}, s{ST}, 1
        s_add_u32 s{P}, s{P}, s{ST+2}
        s_cmp_lt_u32 s{ST+1}, 20
        s_cselect_b32 s{PR}, 1, 2
        s_cmp_lt_u32 s{ST+1}, 60
        s_cselect_b32 s{PR}, s{PR}, 0
        s_cmp_lt_u32 s{ST}, 4
        s_cselect_b32 s{PR}, s{PR}, 0
        """)
        C("every workgroup requests 1/32 of the critical w_mod lines of its row group: 3 column pairs x 640 rows = 1920 lines, 60 per workgroup (15 per wave)")
        self.srd(S_A, P_WM, 640*7680)
        I(f"""
        s_and_b32 s{ST}, s{S_RB}, 3
        s_lshl_b32 s{ST}, s{ST}, 3
        s_add_u32 s{ST}, s{ST}, s{S_M}
        s_lshl_b32 s{ST}, s{ST}, 2
        s_add_u32 s{ST}, s{ST}, s{S_WV}
        s_mul_i32 s{ST}, s{ST}, 15
        v_add_u32 v{XH}, s{ST}, v{V_L}
        v_mul_u32_u24 v{XH+1}, 6554, v{XH}
        v_lshrrev_b32 v{XH+1}, 22, v{XH+1}                   ; /640
        v_mul_u32_u24 v{XH+2}, 640, v{XH+1}
        v_sub_u32 v{XH+2}, v{XH}, v{XH+2}                    ; row
        v_mul_u32_u24 v{XH+2}, 7680, v{XH+2}
        v_lshlrev_b32 v{XH+1}, 10, v{XH+1}
        v_add_u32 v{XH+2}, v{XH+2}, v{XH+1}
        s_lshr_b32 s{ST}, s{S_RB}, 2
        s_lshl_b32 s{ST}, s{ST}, 7                           ; x * 128 B
        """)
        self.line_touch(S_A, XH+2, ST, 15)
        self.srd(S_C, P_X, 2048*1280)
        XO = XH
        I(f"""
        v_lshlrev_b32 v{XO+6}, 7, v{V_L}
        s_lshl_b32 s{ST}, s{S_M}, 2
        s_add_u32 s{ST}, s{ST}, s{S_WV}
        s_mul_i32 s{ST}, s{ST}, 2560
        s_mul_i32 s{ST+1}, s{S_RB}, {64*1280}
        s_add_u32 s{ST}, s{ST}, s{ST+1}
        """)
        self.line_touch(S_C, XO+6, ST, 20)
        lab_np = self.b.uid("L_np"); lab_j = self.b.uid("L_npj")
        I(f"s_cmp_lg_u32 s{PR}, 1\ns_cbranch_scc1 {lab_np}")
        self.mod_dma()
        self.tag_issue()
        self.mod_gemv(XH+8, 11, 1, 0)
        self.srd(S_C, P_X, 2048*1280)
        I(f"s_branch {lab_j}\n{lab_np}:")
        self.tag_issue()
        self.srd(S_C, P_X, 2048*1280)
        I(f"{lab_j}:")
        self.stamp("modpub")
        C("x: the wave's rows -> LDS, 16-byte chunks XOR-swizzled by the row")
        I(f"s_lshl_b32 s{ST}, s{S_TT}, 4")
        for qq in range(4):
            I(f"""
            v_add_u32 v{XO+4}, {4*qq}, v{V_G}                      ; row
            v_xor_b32 v{XO+5}, v{XO+4}, v{V_T}
            v_add_u32 v{XO+4}, s{ST}, v{XO+4}
            v_mul_u32_u24 v{XO+4}, 1280, v{XO+4}
            v_lshl_add_u32 v{XO+qq}, v{XO+5}, 4, v{XO+4}
            """)
        I(f"s_mul_i32 s{ST+1}, s{S_WV}, 20480")
        for G in range(5):
            I(f"s_mov_b32 s{ST+2}, {256*G}")
            for qq in range(4):
                I(f"s_mov_b32 m0, s{ST+1}\ns_add_u32 s{ST+1}, s{ST+1}, 1024\nbuffer_load_dwordx4 v{XO+qq}, {sr(S_C)}, s{ST+2} offen lds")
        lab_nk = self.b.uid("L_nk")
        I(f"""
        s_cmp_ge_u32 s{S_M}, 2
        s_cbranch_scc1 {lab_nk}
        s_cmp_eq_u32 s{S_M}, 0
        s_cselect_b32 s{S_A}, s{P_WK}, s{P_WV}
        s_cselect_b32 s{S_A+1}, s{P_WK+1}, s{P_WV+1}
        s_mov_b32 s{S_A+2}, 25600
        s_mov_b32 s{S_A+3}, 0x20000
        s_mul_i32 s{ST}, s{S_WV}, 7168
        s_add_u32 s{ST+1}, s{ST}, {L_WK}
        """)
        for i in range(7):
            I(f"""
            s_mov_b32 m0, s{ST+1}
            s_add_u32 s{ST+1}, s{ST+1}, 1024
            buffer_load_dwordx4 v{V_L16}, {sr(S_A)}, s{ST} offen lds
            s_add_u32 s{ST}, s{ST}, 1024
            """)
        I(f"{lab_nk}:")
        if self.wq_touch == 1:
            C("wq: request this workgroup's 1/32 of the matrix (200 lines, 50 per wave)")
            self.srd(S_B, P_WQ, 640*1280)
            I(f"""
            s_and_b32 s{ST}, s{S_RB}, 3
            s_lshl_b32 s{ST}, s{ST}, 3
            s_add_u32 s{ST}, s{ST}, s{S_M}
            s_lshl_b32 s{ST}, s{ST}, 2
            s_add_u32 s{ST}, s{ST}, s{S_WV}
            s_mul_i32 s{ST}, s{ST}, 6400
            """)
            self.line_touch(S_B, XO+6, ST, 50)
        else:
            I(f"v_mov_b32 v{XO+7}, 0\nbuffer_load_dword a255, v{XO+7}, {sr(S_C)}, 0 offen")
        self.stamp("issued")
        C("x fragments: lane (t,g): k = 32s+4g (+16)")
        AD = XH + 8
        I(f"""
        s_mul_i32 s{ST}, s{S_WV}, 20480
        v_lshlrev_b32 v{TMP}, 8, v{V_T}
        v_add_u32 v{TMP}, s{ST}, v{TMP}
        v_and_b32 v{TMP+1}, 1, v{V_G}
        v_lshl_add_u32 v{TMP}, v{TMP+1}, 3, v{TMP}            ; + 8*(g&1)
        v_lshrrev_b32 v{TMP+1}, 1, v{V_G}                     ; g>>1
        """)
        for a_ in range(4):
            for e in range(2):
                I(f"""
                v_add_u32 v{TMP+2}, {4*a_+2*e}, v{TMP+1}
                v_xor_b32 v{TMP+2}, v{TMP+2}, v{V_T}
                v_lshl_add_u32 v{AD+2*a_+e}, v{TMP+2}, 4, v{TMP}
                """)
        RS_ = XH + 16
        I(f"s_mul_i32 s{ST+1}, s{S_M}, 10")
        for j in range(5):
            I(f"""
            s_add_u32 s{ST+2}, s{ST+1}, {2*j}
            v_add_u32 v{TMP+2}, s{ST+2}, v{TMP+1}
            v_lshrrev_b32 v{TMP+3}, 4, v{TMP+2}
            v_and_b32 v{TMP+2}, 15, v{TMP+2}
            v_xor_b32 v{TMP+2}, v{TMP+2}, v{V_T}
            v_lshl_add_u32 v{TMP+2}, v{TMP+2}, 4, v{TMP}
            v_lshl_add_u32 v{RS_+j}, v{TMP+3}, 12, v{TMP+2}
            """)
        lw1 = self.b.uid("L_xw"); lwj = self.b.uid("L_xw")
        I(f"""
        s_cmp_lt_u32 s{S_M}, 2
        s_cbranch_scc1 {lw1}
        s_waitcnt vmcnt(1)
        s_branch {lwj}
        {lw1}:
        s_waitcnt vmcnt(8)
        {lwj}:
        """)
        for s_ in range(20):
            for e in range(2):
                I(f"ds_read_b64 v[{XF+4*s_+2*e}:{XF+4*s_+2*e+1}], v{AD+2*(s_&3)+e} offset:{4096*(s_>>2)}")
        for j in range(5):
            I(f"ds_read_b64 v[{XH+24+2*j}:{XH+25+2*j}], v{RS_+j}")
        self.tag_eval()
        I("s_waitcnt lgkmcnt(0)")
        for j in range(10): I(f"v_accvgpr_write_b32 a{j}, v{XH+24+j}")
        I("s_barrier")
        if self.wq_touch == 2:
            self.srd(S_B, P_WQ, 640*1280)
            I(f"""
            v_lshlrev_b32 v{XH+6}, 7, v{V_L}
            s_and_b32 s{ST}, s{S_RB}, 3
            s_lshl_b32 s{ST}, s{ST}, 3
            s_add_u32 s{ST}, s{ST}, s{S_M}
            s_lshl_b32 s{ST}, s{ST}, 2
            s_add_u32 s{ST}, s{ST}, s{S_WV}
            s_mul_i32 s{ST}, s{ST}, 6400
            """)
            self.line_touch(S_B, XH+6, ST, 50)
        wq = self.wq_ops()
        if self.tlb_early:
            labt = self.b.uid("L_tlb")
            I(f"s_cmp_lg_u32 s{S_WV}, 3\ns_cbranch_scc1 {labt}\nv_lshlrev_b32 v{XH+7}, 20, v{V_L}")
            I(f"s_mov_b64 exec, {hex((1 << ((WS_END >> 20) + 1)) - 1)}\nbuffer_load_dword a254, v{XH+7}, {sr(S_WS)}, 0 offen\ns_mov_b64 exec, 7")
            for ptr, nb in ((P_WO, 640*1280), (P_W1, 640*1280), (P_W2, 640*1280), (P_W3, 640*3456), (P_W4, 1728*1280), (P_OUT, 2048*1280)):
                self.srd(S_B, ptr, nb)
                I(f"buffer_load_dword a254, v{XH+7}, {sr(S_B)}, 0 offen")
            I(f"s_mov_b64 exec, -1\n{labt}:")
        self.stamp("xfrag")
        C("LN1 stats: sum via ones-MFMA, sumsq via Gram diagonal")
        ONES, D1, D2 = TMP, TMP+4, TMP+8
        for i in range(4): I(f"v_mov_b32 v{ONES+i}, 0x3f803f80")
        for s in range(20):
            I(f"v_mfma_f32_16x16x32_bf16 {vr(D1)}, {vr(ONES)}, {vr(XF+4*s)}, {'0' if s == 0 else vr(D1)}")
            I(f"v_mfma_f32_16x16x32_bf16 {vr(D2)}, {vr(XF+4*s)}, {vr(XF+4*s)}, {'0' if s == 0 else vr(D2)}")
            if s % 2 == 0 and wq: wq.pop(0)()
        MU, RS, T1, T2 = XH, XH+1, XH+2, XH+3
        I(f"""
        v_and_b32 v{T1}, 3, v{V_T}
        v_cmp_eq_u32 vcc, 1, v{T1}
        v_cndmask_b32 v{T2}, v{D2}, v{D2+1}, vcc
        v_cmp_eq_u32 vcc, 2, v{T1}
        v_cndmask_b32 v{T2}, v{T2}, v{D2+2}, vcc
        v_cmp_eq_u32 vcc, 3, v{T1}
        v_cndmask_b32 v{T2}, v{T2}, v{D2+3}, vcc
        v_lshrrev_b32 v{T1}, 2, v{V_T}
        v_lshl_add_u32 v{T1}, v{T1}, 4, v{V_T}
        v_lshlrev_b32 v{T1}, 2, v{T1}
        ds_bpermute_b32 v{T2}, v{T1}, v{T2}
        v_mul_f32 v{MU}, {1.0/640!r}, v{D1}
        s_waitcnt lgkmcnt(0)
        v_mul_f32 v{T2}, {1.0/640!r}, v{T2}
        v_fma_f32 v{T2}, -v{MU}, v{MU}, v{T2}
        v_max_f32 v{T2}, 0, v{T2}
        v_add_f32 v{T2}, 0x3727c5ac, v{T2}
        v_rsq_f32 v{RS}, v{T2}
        s_nop 0
        v_mul_f32 v{MU}, v{MU}, v{RS}
        v_sub_f32 v{TMP}, 0, v{MU}                           ; -mu*rstd
        v_mov_b32 v{TMP+1}, v{TMP}
        v_mov_b32 v{TMP+2}, v{RS}
        v_mov_b32 v{TMP+3}, v{RS}
        """)
        C("xhat = x*rstd - mu*rstd (fp32)")
        for s in range(20):
            for q in range(4):
                src = XF + 4*s + q
                d = XH + 8*s + 2*q
                if d + 1 >= 238 and False: pass
                I(f"v_lshlrev_b32 v{d}, 16, v{src}\nv_and_b32 v{d+1}, 0xffff0000, v{src}")
            for q in range(4):
                d = XH + 8*s + 2*q
                I(f"v_pk_fma_f32 v[{d}:{d+1}], v[{d}:{d+1}], v[{TMP+2}:{TMP+3}], v[{TMP}:{TMP+1}]")
            if s < 17 and wq: wq.pop(0)()
        assert not wq
        self.stamp("xhat")
        G0 = TMP+4
        lp = self.b.uid("L_mp"); ok = self.b.uid("L_mpok")
        I(f"""
        s_mul_i32 s{ST+1}, s{S_WV}, {80*16}
        v_add_u32 v{TMP+2}, s{ST+1}, v{V_L16}
        v_add_u32 v{TMP+3}, 1024, v{TMP+2}
        v_cmp_gt_u32 vcc, 16, v{V_L}
        v_cndmask_b32 v{TMP+3}, v{TMP+2}, v{TMP+3}, vcc
        s_mov_b32 s{ST}, {TIMEOUT}
        {lp}:
        buffer_load_dwordx4 {vr(G0)}, v{TMP+2}, {sr(S_WS)}, 0 offen offset:{MODG} sc1
        buffer_load_dwordx4 {vr(G0+4)}, v{TMP+3}, {sr(S_WS)}, 0 offen offset:{MODG} sc1
        s_waitcnt vmcnt(0)
        v_cmp_ne_u32 vcc, s{S_TAG}, v{G0+2}
        s_mov_b64 s[{ST+2}:{ST+3}], vcc
        v_cmp_ne_u32 vcc, s{S_TAG+1}, v{G0+3}
        s_or_b64 s[{ST+2}:{ST+3}], s[{ST+2}:{ST+3}], vcc
        v_cmp_ne_u32 vcc, s{S_TAG}, v{G0+6}
        s_or_b64 s[{ST+2}:{ST+3}], s[{ST+2}:{ST+3}], vcc
        v_cmp_ne_u32 vcc, s{S_TAG+1}, v{G0+7}
        s_or_b64 s[{ST+2}:{ST+3}], s[{ST+2}:{ST+3}], vcc
        s_cmp_eq_u64 s[{ST+2}:{ST+3}], 0
        s_cbranch_scc1 {ok}
        """)
        self.spin_tail(ST, lp, 2)
        I(f"{ok}:")
        for blk, av in ((G0, TMP+2), (G0+4, TMP+3)):
            I(f"""
            v_and_b32 v{blk+3}, 0xffff0000, v{blk+1}
            v_lshlrev_b32 v{blk+2}, 16, v{blk+1}
            v_and_b32 v{blk+1}, 0xffff0000, v{blk}
            v_lshlrev_b32 v{blk}, 16, v{blk}
            """)
        lab_a = self.b.uid("L_a")
        I(f"s_cmp_lt_u32 s{S_WV}, 2\ns_cbranch_scc1 {lab_a}")
        for blk in (G0, G0+4):
            for q in range(4): I(f"v_add_f32 v{blk+q}, 1.0, v{blk+q}")
            I(f"""
            v_cvt_pk_bf16_f32 v{blk}, v{blk}, v{blk+1}
            v_cvt_pk_bf16_f32 v{blk+2}, v{blk+2}, v{blk+3}
            v_and_b32 v{blk+1}, 0xffff0000, v{blk}
            v_lshlrev_b32 v{blk}, 16, v{blk}
            v_and_b32 v{blk+3}, 0xffff0000, v{blk+2}
            v_lshlrev_b32 v{blk+2}, 16, v{blk+2}
            """)
        I(f"""
        {lab_a}:
        v_add_u32 v{TMP+2}, {L_MOD}, v{TMP+2}
        v_add_u32 v{TMP+3}, {L_MOD}, v{TMP+3}
        ds_write_b128 v{TMP+2}, {vr(G0)}
        ds_write_b128 v{TMP+3}, {vr(G0+4)}
        s_waitcnt lgkmcnt(0)
        s_barrier
        """)
        self.stamp("modgot")
        C("h1 = xhat*A + B -> bf16 fragments (overwrites XF).  all DMAs (wq, wk) were waited by vmcnt(0) above, barrier publishes them")
        va = TMP
        I(f"v_lshlrev_b32 v{va}, 4, v{V_G}\nv_add_u32 v{va}, {L_MOD}, v{va}")
        def buf(s): return (XF + 48 + 16*(s & 1)) if s < 12 else (XH + 16*(s & 1))
        def rd(s):
            B_ = buf(s)
            for hf in range(2):
                I(f"ds_read_b128 {vr(B_+4*hf)}, v{va} offset:{2560 + 128*s + 64*hf}")
                I(f"ds_read_b128 {vr(B_+8+4*hf)}, v{va} offset:{128*s + 64*hf}")
        rd(0)
        for s in range(20):
            if s + 1 < 20: rd(s+1)
            I(f"s_waitcnt lgkmcnt({4 if s + 1 < 20 else 0})")
            B_ = buf(s)
            for q in range(4):
                d = XH + 8*s + 2*q
                I(f"v_pk_fma_f32 v[{d}:{d+1}], v[{d}:{d+1}], v[{B_+2*q}:{B_+2*q+1}], v[{B_+8+2*q}:{B_+8+2*q+1}]")
            for q in range(4):
                d = XH + 8*s + 2*q
                I(f"v_cvt_pk_bf16_f32 v{XF+4*s+q}, v{d}, v{d+1}")
        labd = self.b.uid("L_dg")
        I(f"s_cmp_lg_u32 s{self.S_PROD}, 2\ns_cbranch_scc1 {labd}")
        self.MT = self.MT3
        self.mod_dma(cdst="a[250:251]")
        I(f"{labd}:")
        self.stamp("h1")

    def phase_kv(self):
        I, C = self.I, self.C
        XF, XH = self.XF, self.XH
        lab_end = self.b.uid("L_kvend"); lab_v = self.b.uid("L_v"); lab_pub = self.b.uid("L_kvpub")
        va, vb, W0, ACC0, ACC1, T = XH, XH+1, XH+4, XH+24, XH+28, XH+32
        I(f"""
        s_cmp_ge_u32 s{S_M}, 2
        s_cbranch_scc1 {lab_end}
        v_lshrrev_b32 v{va}, 2, v{V_T}
        v_lshl_add_u32 v{va}, v{V_G}, 2, v{va}
        v_mul_u32_u24 v{va}, 40, v{va}
        v_and_b32 v{vb}, 3, v{V_T}
        v_lshl_add_u32 v{va}, v{vb}, 3, v{va}
        v_add_u32 v{va}, {L_WK}, v{va}
        s_cmp_eq_u32 s{S_M}, 1
        s_cbranch_scc1 {lab_v}
        """)
        def loop(isv):
            WK = XH + 48
            def rd(s):
                o = WK + (s % 4)*8
                I(f"""
                ds_read_b64_tr_b16 v[{o}:{o+1}], v{va} offset:{1280*s}
                ds_read_b64_tr_b16 v[{o+2}:{o+3}], v{va} offset:{1280*s+640}
                ds_read_b64_tr_b16 v[{o+4}:{o+5}], v{va} offset:{1280*s+32}
                ds_read_b64_tr_b16 v[{o+6}:{o+7}], v{va} offset:{1280*s+672}
                """)
            for s in range(3): rd(s)
            for s in range(20):
                if s + 3 < 20: rd(s+3)
                I(f"s_waitcnt lgkmcnt({4*min(3, 19-s)})")
                o2 = WK + (s % 4)*8
                for tl, acc in ((0, ACC0), (1, ACC1)):
                    w = vr(o2+4*tl); x = vr(XF+4*s)
                    c = '0' if s == 0 else vr(acc)
                    if isv: I(f"v_mfma_f32_16x16x32_bf16 {vr(acc)}, {x}, {w}, {c}")
                    else:   I(f"v_mfma_f32_16x16x32_bf16 {vr(acc)}, {w}, {x}, {c}")
        C("K: D[dim 4g+r][token t]")
        loop(False)
        I(f"""
        v_mul_f32 v{T}, v{ACC0}, v{ACC0}
        v_fmac_f32 v{T}, v{ACC0+1}, v{ACC0+1}
        v_fmac_f32 v{T}, v{ACC0+2}, v{ACC0+2}
        v_fmac_f32 v{T}, v{ACC0+3}, v{ACC0+3}
        v_mul_f32 v{T+1}, v{ACC1}, v{ACC1}
        v_fmac_f32 v{T+1}, v{ACC1+1}, v{ACC1+1}
        v_fmac_f32 v{T+1}, v{ACC1+2}, v{ACC1+2}
        v_fmac_f32 v{T+1}, v{ACC1+3}, v{ACC1+3}
        v_cmp_eq_u32 vcc, 0, v{V_G}
        v_cndmask_b32 v{T+1}, 0, v{T+1}, vcc
        v_add_f32 v{T}, v{T}, v{T+1}
        """)
        self.reduce_g([T], T+2)
        for sh in (8, 4, 2, 1):
            I(f"v_mov_b32_dpp v{T+2}, v{T} row_ror:{sh} row_mask:0xf bank_mask:0xf\nv_max_f32 v{T}, v{T}, v{T+2}")
        I(f"""
        s_lshl_b32 s{ST}, s{S_WV}, 2
        s_add_u32 s{ST}, s{ST}, {L_MISC}
        v_mov_b32 v{T+2}, s{ST}
        ds_write_b32 v{T+2}, v{T}
        """)
        I(f"""
        v_cvt_pk_bf16_f32 v{T+4}, v{ACC0}, v{ACC0+1}
        v_cvt_pk_bf16_f32 v{T+5}, v{ACC0+2}, v{ACC0+3}
        v_cvt_pk_bf16_f32 v{T+6}, v{ACC1}, v{ACC1+1}
        v_cvt_pk_bf16_f32 v{T+7}, v{ACC1+2}, v{ACC1+3}
        s_lshr_b32 s{ST}, s{S_TT}, 1
        s_mul_i32 s{ST}, s{ST}, {KVT}
        s_add_u32 s{ST}, s{ST}, {KV}
        s_and_b32 s{ST+1}, s{S_TT}, 1
        s_lshl_b32 s{ST+1}, s{ST+1}, 4
        v_add_u32 v{T+8}, s{ST+1}, v{V_T}                    ; kk
        v_lshrrev_b32 v{T+9}, 1, v{V_G}
        v_lshl_add_u32 v{T+9}, v{T+9}, 5, v{T+8}             ; kk+32*(g>>1)
        v_lshlrev_b32 v{T+9}, 4, v{T+9}
        v_and_b32 v{T+10}, 1, v{V_G}
        v_lshl_add_u32 v{T+9}, v{T+10}, 3, v{T+9}
        buffer_store_dwordx2 v[{T+4}:{T+5}], v{T+9}, {sr(S_WS)}, s{ST} offen sc1
        v_lshlrev_b32 v{T+8}, 3, v{T+8}
        v_cmp_eq_u32 vcc, 0, v{V_G}
        s_and_saveexec_b64 s[{ST+4}:{ST+5}], vcc
        buffer_store_dwordx2 v[{T+6}:{T+7}], v{T+8}, {sr(S_WS)}, s{ST} offen offset:1024 sc1
        s_mov_b64 exec, s[{ST+4}:{ST+5}]
        s_branch {lab_pub}
        {lab_v}:
        """)
        C("V^T: D[token 4g+r][d = lane&15]")
        loop(True)
        I(f"""
        v_cvt_pk_bf16_f32 v{T+4}, v{ACC0}, v{ACC0+1}
        v_cvt_pk_bf16_f32 v{T+5}, v{ACC0+2}, v{ACC0+3}
        v_cvt_pk_bf16_f32 v{T+6}, v{ACC1}, v{ACC1+1}
        v_cvt_pk_bf16_f32 v{T+7}, v{ACC1+2}, v{ACC1+3}
        v_cmp_gt_u32 vcc, 4, v{V_T}
        v_cndmask_b32 v{T+6}, 0, v{T+6}, vcc
        v_cndmask_b32 v{T+7}, 0, v{T+7}, vcc
        v_cmp_eq_u32 vcc, 4, v{V_T}
        v_mov_b32 v{T+11}, 0x3f803f80
        v_cndmask_b32 v{T+6}, v{T+6}, v{T+11}, vcc
        v_cndmask_b32 v{T+7}, v{T+7}, v{T+11}, vcc
        s_lshr_b32 s{ST}, s{S_TT}, 1
        s_mul_i32 s{ST}, s{ST}, {KVT}
        s_and_b32 s{ST+1}, s{S_TT}, 1
        s_lshl_b32 s{ST+1}, s{ST+1}, 10
        s_add_u32 s{ST}, s{ST}, s{ST+1}
        s_add_u32 s{ST}, s{ST}, {KV+1280}
        v_and_b32 v{T+9}, 1, v{V_G}
        v_lshl_add_u32 v{T+9}, v{T+9}, 5, v{V_T}             ; d + 32*(g&1)
        v_lshlrev_b32 v{T+9}, 4, v{T+9}
        v_lshrrev_b32 v{T+10}, 1, v{V_G}
        v_lshl_add_u32 v{T+9}, v{T+10}, 3, v{T+9}
        buffer_store_dwordx2 v[{T+4}:{T+5}], v{T+9}, {sr(S_WS)}, s{ST} offen sc1
        buffer_store_dwordx2 v[{T+6}:{T+7}], v{T+9}, {sr(S_WS)}, s{ST} offen offset:256 sc1
        v_mov_b32 v{T}, 0
        s_lshl_b32 s{ST}, s{S_WV}, 2
        s_add_u32 s{ST}, s{ST}, {L_MISC}
        v_mov_b32 v{T+2}, s{ST}
        ds_write_b32 v{T+2}, v{T}
        {lab_pub}:
        s_waitcnt vmcnt(0) lgkmcnt(0)
        s_barrier
        """)
        lab_np = self.b.uid("L_kvnp")
        I(f"""
        s_cmp_lg_u32 s{S_WV}, 0
        s_cbranch_scc1 {lab_np}
        v_mov_b32 v{T+2}, {L_MISC}
        ds_read_b128 {vr(T+4)}, v{T+2}
        s_waitcnt lgkmcnt(0)
        v_max_f32 v{T+4}, v{T+4}, v{T+5}
        v_max_f32 v{T+6}, v{T+6}, v{T+7}
        v_max_f32 v{T+6}, v{T+4}, v{T+6}
        v_mov_b32 v{T+4}, s{S_TAG}
        v_mov_b32 v{T+5}, s{S_TAG+1}
        v_mov_b32 v{T+7}, 0
        s_lshl_b32 s{ST}, s{S_RB}, 1
        s_add_u32 s{ST}, s{ST}, s{S_M}
        s_lshl_b32 s{ST}, s{ST}, 7
        s_add_u32 s{ST}, s{ST}, {KVFLAG}
        v_mov_b32 v{T+2}, s{ST}
        s_mov_b64 exec, 1
        buffer_store_dwordx4 {vr(T+4)}, v{T+2}, {sr(S_WS)}, 0 offen sc1
        s_mov_b64 exec, -1
        {lab_np}:
        {lab_end}:
        """)
        self.stamp("kvpub")

    QA0, QA1, QB0, QB1 = 44, 48, 52, 56
    SA, SB = 60, 76
    PA, PB = 92, 100
    OA, OB = 108, 124
    KB = 140
    VB = 172
    AT = 204

    def phase_q(self):
        I, C = self.I, self.C
        XF, XH = self.XF, self.XH
        va, vb, WB, ACC = XH, XH+1, XH+4, XH+64
        I(f"""
        v_lshrrev_b32 v{va}, 2, v{V_T}
        v_lshl_add_u32 v{va}, v{V_G}, 2, v{va}
        v_mul_u32_u24 v{va}, 160, v{va}
        v_and_b32 v{vb}, 3, v{V_T}
        v_lshl_add_u32 v{va}, v{vb}, 3, v{va}
        v_add_u32 v{vb}, 51200, v{va}
        """)
        issued = []
        def rd1(s, j):
            base = va if s < 10 else vb
            o = 5120*(s % 10)
            W_ = WB + 20*(s % 3) + 4*j
            I(f"ds_read_b64_tr_b16 v[{W_}:{W_+1}], v{base} offset:{L_WQ + o + 32*j}")
            I(f"ds_read_b64_tr_b16 v[{W_+2}:{W_+3}], v{base} offset:{L_WQ + o + 32*j + 2560}")
            issued.append((s, j))
        for s in range(2):
            for j in range(5): rd1(s, j)
        for s in range(20):
            younger = 2*(len(issued) - 1 - issued.index((s, 4)))
            I(f"s_waitcnt lgkmcnt({min(15, younger)})")
            for j in range(5):
                I(f"v_mfma_f32_16x16x32_bf16 {vr(ACC+4*j)}, {vr(WB+20*(s%3)+4*j)}, {vr(XF+4*s)}, {'0' if s == 0 else vr(ACC+4*j)}")
                if s + 2 < 20: rd1(s+2, j)
        qs = (20 ** -0.5) * 1.4426950408889634
        I(f"s_mov_b32 s{ST}, {hex(f2u(qs))}")
        C("scale, pack, write wave-private [16][176B] tile")
        I(f"""
        s_mul_i32 s{ST+1}, s{S_WV}, {16*176}
        s_add_u32 s{ST+1}, s{ST+1}, {L_QS}
        v_mul_u32_u24 v{va}, 176, v{V_T}
        v_lshl_add_u32 v{va}, v{V_G}, 3, v{va}
        v_add_u32 v{va}, s{ST+1}, v{va}
        """)
        for j in range(5):
            a = ACC + 4*j
            for r in range(4): I(f"v_mul_f32 v{a+r}, s{ST}, v{a+r}")
            I(f"v_cvt_pk_bf16_f32 v{a}, v{a}, v{a+1}\nv_cvt_pk_bf16_f32 v{a+1}, v{a+2}, v{a+3}")
            I(f"ds_write_b64 v{va}, v[{a}:{a+1}] offset:{32*j}")
        AT = self.AT
        I(f"""
        v_mul_u32_u24 v{vb}, 176, v{V_T}
        v_bfe_u32 v{va}, v{V_L}, 4, 1
        v_mul_u32_u24 v{va}, 40, v{va}
        v_add_u32 v{vb}, v{vb}, v{va}
        v_add_u32 v{vb}, s{ST+1}, v{vb}                      ; token*176 + (q>>4)*40
        v_lshrrev_b32 v{va}, 5, v{V_L}
        v_lshl_add_u32 v{va}, v{va}, 4, v{vb}                ; + 16h
        s_waitcnt lgkmcnt(0)
        ds_read_b64 v[{self.QA0}:{self.QA0+1}], v{va}
        ds_read_b64 v[{self.QA0+2}:{self.QA0+3}], v{va} offset:8
        ds_read_b64 v[{self.QB0}:{self.QB0+1}], v{va} offset:80
        ds_read_b64 v[{self.QB0+2}:{self.QB0+3}], v{va} offset:88
        ds_read_b64 v[{self.QA1}:{self.QA1+1}], v{vb} offset:32
        ds_read_b64 v[{self.QB1}:{self.QB1+1}], v{vb} offset:112
        v_cmp_gt_u32 vcc, 32, v{V_L}
        s_waitcnt lgkmcnt(0)
        """)
        for r in (self.QA1, self.QA1+1, self.QB1, self.QB1+1):
            I(f"v_cndmask_b32 v{r}, 0, v{r}, vcc")
        for (t, q0, q1) in ((AT, self.QA0, self.QA1), (AT+1, self.QB0, self.QB1)):
            I(f"v_mov_b32 v{t}, 0")
            for r in (q0, q0+1, q0+2, q0+3, q1, q1+1):
                I(f"v_dot2_f32_bf16 v{t}, v{r}, v{r}, v{t}")
        for t in (AT, AT+1):
            I(f"v_mov_b32 v{AT+2}, v{t}\nv_permlane32_swap_b32 v{t}, v{AT+2}\nv_add_f32 v{t}, v{t}, v{AT+2}")
        I(f"v_max_f32 v{AT}, v{AT}, v{AT+1}")
        I("s_barrier")
        self.stamp("qproj")

    RL_OFF, RL_TR, RL_D = 4, 11, 12
    S_RKS, S_RDS, RL_TRS = (78, 82), (79, 83), (11, 40)
    S_RD2S = (74, 73)
    def rl_issue(self, rnd):
        I = self.I
        self.S_RK, self.S_RD, self.RL_TR = self.S_RKS[rnd], self.S_RDS[rnd], self.RL_TRS[rnd]
        u, A0, A1 = ST+4, ST+5, ST+6
        lk4 = self.b.uid("L_r4"); lk3 = self.b.uid("L_r3"); lA = self.b.uid("L_rA"); lend = self.b.uid("L_re")
        I(f"""
        s_lshl_b32 s{u}, s{S_W}, 2
        s_add_u32 s{u}, s{u}, s{S_WV}
        """)
        if rnd == 1:
            I(f"""
            s_mov_b32 s{self.S_RK}, 2
            s_cmp_lt_u32 s{S_M}, 6
            s_cbranch_scc1 {lend}
            s_lshl_b32 s{u}, s{S_RB}, 1
            s_add_u32 s{u}, s{u}, s{S_M}
            s_sub_u32 s{u}, s{u}, 6
            s_lshl_b32 s{u}, s{u}, 2
            s_add_u32 s{u}, s{u}, s{S_WV}
            s_add_u32 s{u}, s{u}, 1024
            s_cmp_ge_u32 s{u}, 1232
            s_cbranch_scc1 {lend}
            s_branch {lk3}
            """)
        else:
            I(f"""
            s_cmp_ge_u32 s{u}, 912
            s_cbranch_scc1 {lk3}
            s_cmp_ge_u32 s{u}, 480
            s_cbranch_scc1 {lk4}
            s_mul_i32 s{A0}, s{u}, 410
            s_lshr_b32 s{A0}, s{A0}, 16                 ; p = u/160
            s_mul_i32 s{A1}, s{A0}, 160
            s_sub_u32 s{u}, s{u}, s{A1}                 ; r
            s_cmp_eq_u32 s{A0}, 1
            s_cselect_b32 s{S_A}, s{P_W1}, s{P_WO}
            s_cselect_b32 s{S_A+1}, s{P_W1+1}, s{P_WO+1}
            s_cmp_eq_u32 s{A0}, 2
            s_cselect_b32 s{S_A}, s{P_W2}, s{S_A}
            s_cselect_b32 s{S_A+1}, s{P_W2+1}, s{S_A+1}
            s_mov_b32 s{S_A+2}, {640*1280}
            s_mul_i32 s{A0}, s{A0}, 100                 ; p*100
            s_mul_i32 s{A1}, s{u}, 3277
            s_lshr_b32 s{A1}, s{A1}, 16                 ; m = r/20
            s_mul_i32 s{ST+7}, s{A1}, 20
            s_sub_u32 s{u}, s{u}, s{ST+7}               ; kb
            s_mul_i32 s{ST+7}, s{u}, 5
            s_add_u32 s{A0}, s{A0}, s{ST+7}
            s_lshl_b32 s{A0}, s{A0}, 10
            s_mul_i32 s{ST+7}, s{A1}, {WSA_M}
            s_add_u32 s{A0}, s{A0}, s{ST+7}
            s_add_u32 s{self.S_RD}, s{A0}, {WSA}
            s_branch {lA}
            {lk4}:
            s_sub_u32 s{u}, s{u}, 480
            s_mov_b32 s{S_A}, s{P_W4}
            s_mov_b32 s{S_A+1}, s{P_W4+1}
            s_mov_b32 s{S_A+2}, {1728*1280}
            s_mul_i32 s{A1}, s{u}, 1214
            s_lshr_b32 s{A1}, s{A1}, 16                 ; m = r/54
            s_mul_i32 s{ST+7}, s{A1}, 54
            s_sub_u32 s{u}, s{u}, s{ST+7}               ; kb
            s_mul_i32 s{A0}, s{u}, 5120
            s_mul_i32 s{ST+7}, s{A1}, {W4S_M}
            s_add_u32 s{A0}, s{A0}, s{ST+7}
            s_add_u32 s{self.S_RD}, s{A0}, {W4S}
            {lA}:
            s_mov_b32 s{S_A+3}, 0x20000
            s_mov_b32 s{self.S_RK}, 0
            s_mul_i32 s{u}, s{u}, {32*1280}
            s_mul_i32 s{A1}, s{A1}, 160
            s_add_u32 s{u}, s{u}, s{A1}
            s_mul_i32 s{A0}, s{S_WV}, 14336
            """)
            O = self.RL_OFF
            for q in range(5):
                I(f"""
                v_add_u32 v{O+5}, {64*q}, v{V_L}
                v_mul_u32_u24 v{O+6}, 6554, v{O+5}
                v_lshrrev_b32 v{O+6}, 16, v{O+6}
                v_mul_u32_u24 v{O+q}, {1280-160}, v{O+6}
                v_lshl_add_u32 v{O+q}, v{O+5}, 4, v{O+q}
                """)
            for q in range(5):
                I(f"s_mov_b32 m0, s{A0}\ns_add_u32 s{A0}, s{A0}, 1024\nbuffer_load_dwordx4 v{O+q}, {sr(S_A)}, s{u} offen lds")
            I(f"""
            v_lshrrev_b32 v{self.RL_TR}, 2, v{V_T}
            v_lshl_add_u32 v{self.RL_TR}, v{V_G}, 2, v{self.RL_TR}
            v_mul_u32_u24 v{self.RL_TR}, 160, v{self.RL_TR}
            s_branch {lend}_tr
            """)
        I(f"""
        {lk3}:
        s_sub_u32 s{u}, s{u}, 912
        s_mov_b32 s{S_A}, s{P_W3}
        s_mov_b32 s{S_A+1}, s{P_W3+1}
        s_mov_b32 s{S_A+2}, {640*3456}
        s_mov_b32 s{S_A+3}, 0x20000
        s_mov_b32 s{self.S_RK}, 1
        s_mul_i32 s{A1}, s{u}, 3277
        s_lshr_b32 s{A1}, s{A1}, 16                 ; m16 = r/20
        s_mul_i32 s{ST+7}, s{A1}, 20
        s_sub_u32 s{u}, s{u}, s{ST+7}               ; kb
        s_mul_i32 s{ST+7}, s{A1}, {W3S_M}
        s_add_u32 s{ST+7}, s{ST+7}, {W3S}
        s_mul_i32 s{A0}, s{u}, {4096 if self.w3split else 7168}
        s_add_u32 s{self.S_RD}, s{A0}, s{ST+7}               ; tiles 0..3
        s_mul_i32 s{A0}, s{u}, {3072 if self.w3split else 7168}
        s_add_u32 s{A0}, s{A0}, s{ST+7}
        s_add_u32 s{self.S_RD2S[rnd]}, s{A0}, {80*1024 if self.w3split else 4096}      ; tiles 4..6
        s_mul_i32 s{A0}, s{A1}, 7
        s_sub_u32 s{ST+7}, s{A1}, 12
        s_max_i32 s{ST+7}, s{ST+7}, 0
        s_sub_u32 s{A0}, s{A0}, s{ST+7}
        s_lshl_b32 s{A0}, s{A0}, 5
        s_mul_i32 s{u}, s{u}, {32*3456}
        s_add_u32 s{u}, s{u}, s{A0}
        s_mul_i32 s{A0}, s{S_WV}, 14336
        s_add_u32 s{A0}, s{A0}, {7168*rnd}
        """)
        O = self.RL_OFF
        for q in range(7):
            I(f"""
            v_add_u32 v{self.RL_D}, {64*q}, v{V_L}
            v_mul_u32_u24 v{self.RL_D+1}, 4682, v{self.RL_D}
            v_lshrrev_b32 v{self.RL_D+1}, 16, v{self.RL_D+1}
            v_mul_u32_u24 v{O+q}, {3456-224}, v{self.RL_D+1}
            v_lshl_add_u32 v{O+q}, v{self.RL_D}, 4, v{O+q}
            """)
        for q in range(7):
            I(f"s_mov_b32 m0, s{A0}\ns_add_u32 s{A0}, s{A0}, 1024\nbuffer_load_dwordx4 v{O+q}, {sr(S_A)}, s{u} offen lds")
        I(f"""
        v_lshrrev_b32 v{self.RL_TR}, 2, v{V_T}
        v_lshl_add_u32 v{self.RL_TR}, v{V_G}, 2, v{self.RL_TR}
        v_mul_u32_u24 v{self.RL_TR}, 224, v{self.RL_TR}
        {lend}_tr:
        v_and_b32 v{self.RL_D}, 3, v{V_T}
        v_lshl_add_u32 v{self.RL_TR}, v{self.RL_D}, 3, v{self.RL_TR}
        s_mul_i32 s{A0}, s{S_WV}, 14336
        s_add_u32 s{A0}, s{A0}, {7168*rnd}
        v_add_u32 v{self.RL_TR}, s{A0}, v{self.RL_TR}
        {lend}:
        """)

    def rl_store(self, rnd):
        I = self.I
        self.S_RK, self.S_RD, self.RL_TR = self.S_RKS[rnd], self.S_RDS[rnd], self.RL_TRS[rnd]
        l7 = self.b.uid("L_rs7"); lend = self.b.uid("L_rse")
        D = self.RL_D
        I(f"s_cmp_eq_u32 s{self.S_RK}, 2\ns_cbranch_scc1 {lend}\ns_cmp_eq_u32 s{self.S_RK}, 1\ns_cbranch_scc1 {l7}")
        for (nt, rowb, last) in ((5, 160, False), (7, 224, True)):
            if last: I(f"{l7}:")
            for j in range(nt):
                I(f"ds_read_b64_tr_b16 v[{D+4*j}:{D+4*j+1}], v{self.RL_TR} offset:{32*j}")
                I(f"ds_read_b64_tr_b16 v[{D+4*j+2}:{D+4*j+3}], v{self.RL_TR} offset:{32*j+16*rowb}")
            if nt == 5: I(f"s_add_u32 s{ST+4}, s{self.S_RD}, 4096")
            else: I(f"s_mov_b32 s{ST+4}, s{self.S_RD2S[rnd]}")
            I("s_waitcnt lgkmcnt(0)")
            for j in range(nt):
                I(f"buffer_store_dwordx4 {vr(D+4*j)}, v{V_L16}, {sr(S_WS)}, s{self.S_RD if j < 4 else ST+4} offen offset:{1024*(j%4)} sc1")
            if not last: I(f"s_branch {lend}")
        I(f"{lend}:")

    def rl_flag(self):
        I = self.I
        lab = self.b.uid("L_rlp")
        I(f"""
        s_barrier
        s_cmp_lg_u32 s{S_WV}, 0
        s_cbranch_scc1 {lab}
        v_mov_b32 v252, s{S_TAG}
        v_mov_b32 v253, s{S_TAG+1}
        s_lshl_b32 s{ST+4}, s{S_W}, 7
        s_add_u32 s{ST+4}, s{ST+4}, {RLFLAG}
        v_mov_b32 v251, s{ST+4}
        s_mov_b64 exec, 1
        buffer_store_dwordx2 v[252:253], v251, {sr(S_WS)}, 0 offen sc1
        s_mov_b64 exec, -1
        {lab}:
        """)

    def phase_kvwait(self):
        I = self.I
        AT = self.AT
        lp = self.b.uid("L_kvw"); ok = self.b.uid("L_kvok")
        I(f"""
        v_lshlrev_b32 v{AT+3}, 7, v{V_L}
        s_mov_b32 s{ST}, {TIMEOUT}
        s_mov_b32 s{ST+1}, {KVFLAG}
        s_cmp_eq_u32 s{self.S_PROD}, 2
        s_cselect_b32 s{ST+8}, 1, 0
        {lp}:
        buffer_load_dwordx4 {vr(AT+4)}, v{AT+3}, {sr(S_WS)}, s{ST+1} offen sc1
        """)
        I(f"""
        s_waitcnt vmcnt(0)
        v_cmp_ne_u32 vcc, s{S_TAG}, v{AT+4}
        s_mov_b64 s[{ST+2}:{ST+3}], vcc
        v_cmp_ne_u32 vcc, s{S_TAG+1}, v{AT+5}
        s_or_b64 s[{ST+2}:{ST+3}], s[{ST+2}:{ST+3}], vcc
        s_cmp_eq_u64 s[{ST+2}:{ST+3}], 0
        s_cbranch_scc1 {ok}
        """)
        lsk = self.b.uid("L_kve")
        I(f"""
        s_and_b32 s{ST+2}, s{ST+2}, 0xfff
        s_or_b32 s{ST+2}, s{ST+2}, s{ST+8}
        s_cmp_lg_u32 s{ST+2}, 0
        s_cbranch_scc1 {lsk}
        """)
        for g in range(3): self.kv_dma(g)
        I(f"s_mov_b32 s{ST+8}, 1\n{lsk}:")
        self.spin_tail(ST, lp, 3)
        I(f"{ok}:")
        lsk2 = self.b.uid("L_kve")
        I(f"s_cmp_lg_u32 s{ST+8}, 0\ns_cbranch_scc1 {lsk2}")
        for g in range(3): self.kv_dma(g)
        I(f"{lsk2}:")
        self.reduce_g([AT+6], AT+2, op="v_max_f32")
        for sh in (8, 4, 2, 1):
            I(f"v_mov_b32_dpp v{AT+2}, v{AT+6} row_ror:{sh} row_mask:0xf bank_mask:0xf\nv_max_f32 v{AT+6}, v{AT+6}, v{AT+2}")
        I(f"v_mov_b32 v{AT+1}, v{AT+6}")
        self.xid_publish()
        labg = self.b.uid("L_dg")
        I(f"s_cmp_lg_u32 s{self.S_PROD}, 2\ns_cbranch_scc1 {labg}")
        I(f"v_accvgpr_read_b32 v248, a250\nv_accvgpr_read_b32 v249, a251")
        self.MT = self.MT2
        self.mod_gemv(60, 63, 63, None)
        I("s_barrier")
        for g in range(3): self.kv_dma(g)
        I(f"{labg}:")
        self.stamp("kvwait")

    def kv_loads(self, i, sK, sV):
        raise NotImplementedError

    def phase_attn(self, force_slow=False):
        I, C = self.I, self.C
        QA0, QA1, QB0, QB1, SA, SB, PA, PB, OA, OB, KB, VB, AT = (self.QA0, self.QA1, self.QB0, self.QB1, self.SA, self.SB,
            self.PA, self.PB, self.OA, self.OB, self.KB, self.VB, self.AT)
        sK, sV, cnt = 85, 86, 87
        vK1 = AT+2
        lab_slow = self.b.uid("L_slow"); lab_done = self.b.uid("L_adone")
        C("bound check: |q|^2 * kmax2 <= T^2 (log2 units) else true-max path")
        Tlim = 64.0
        I(f"""
        v_mul_f32 v{AT}, v{AT}, v{AT+1}
        v_and_b32 v{vK1}, 31, v{V_L}
        v_lshlrev_b32 v{vK1}, 3, v{vK1}
        s_mov_b32 s{ST+3}, {hex(f2u(Tlim*Tlim if not force_slow else -1.0))}
        v_cmp_nge_f32 vcc, s{ST+3}, v{AT}
        """)
        I(f"s_cmp_lg_u64 vcc, 0\ns_cselect_b32 s{self.S_SLOW}, 1, 0")
        for r in range(16): I(f"v_mov_b32 v{OA+r}, 0\nv_mov_b32 v{OB+r}, 0")
        KVL = self.L_KV
        vK16, vK8 = 200, 201
        KR, VR = 16, 48
        def kreg(buf): return KR + 8*buf
        def vreg(buf): return VR + 8*buf
        def rdK(t):
            k = kreg(t % 4); o = (t % 16)*KVT
            I(f"ds_read_b128 {ar(k)}, v{vK16} offset:{o}")
            I(f"ds_read_b64 a[{k+4}:{k+5}], v{vK8} offset:{o+1024}")
        def rdV(t, which=(0, 1)):
            v = vreg(t % 4); o = (t % 16)*KVT
            if 0 in which: I(f"ds_read_b128 {ar(v)}, v{vK16} offset:{o+1280}")
            if 1 in which: I(f"ds_read_b128 {ar(v+4)}, v{vK16} offset:{o+2304}")
        I(f"v_add_u32 v{vK16}, {KVL}, v{V_L16}\nv_add_u32 v{vK8}, {KVL}, v{vK1}\nv_mov_b32 v{self.V_BG}, v{V_L16}")
        for r in range(16): I(f"v_mov_b32 v{SB+r}, 0xff800000")
        for r in range(8): I(f"v_mov_b32 v{PA+r}, 0")
        for r in range(8): I(f"v_accvgpr_write_b32 a{vreg(3)+r}, 0")
        self.rl_issue(0)
        I("s_waitcnt vmcnt(9)\ns_barrier")
        rdK(0); rdK(1); rdV(0)
        I(f"s_mov_b32 s{cnt}, 16")
        lp = self.b.uid("L_att"); lhk = [self.b.uid("L_hook") for _ in range(5)]; lback = [self.b.uid("L_back") for _ in range(4)]
        hooks = self.attn_hooks()
        mask = sum(1 << k for k in hooks)
        def exps(S, P, q):
            a = S + 4*q
            I(f"v_exp_f32 v{a}, v{a}\nv_exp_f32 v{a+1}, v{a+1}\nv_exp_f32 v{a+2}, v{a+2}\nv_exp_f32 v{a+3}, v{a+3}")
            I(f"v_cvt_pk_bf16_f32 v{P+2*q}, v{a}, v{a+1}\nv_cvt_pk_bf16_f32 v{P+2*q+1}, v{a+2}, v{a+3}")
        M16 = "v_mfma_f32_32x32x16_bf16"; M8 = "v_mfma_f32_32x32x8_bf16"
        SKS, SKL, SBM = 86, 85, 76
        def copy_slot(q, e):
            n = 2*(q & 1) + e
            if self.x_nokv: return
            if q < 2:
                if n == 3: I("s_mov_b64 exec, 0xffff")
                I(f"buffer_load_dwordx4 v{V_L16}, {sr(S_WS)}, s{SKS} offen offset:{1024*n} lds")
                if n == 3: I(f"s_mov_b64 exec, -1\ns_mov_b32 m0, s{SBM}")
            elif not self.noslot:
                I(f"buffer_load_dwordx4 v{self.V_BG}, {sr(S_WS)}, s{self.S_DS} offen offset:{1024*n} lds")
        def header(part):
            I("s_waitcnt vmcnt(12) lgkmcnt(4)")
            if not self.x_nobar: I("s_barrier")
            I(f"""
            s_bitcmp1_b32 s84, s{cnt}
            s_cbranch_scc1 {lhk[part]}
            {lback[part]}:
            s_add_u32 s{SKS}, s{SKS}, {4*KVT}
            s_add_u32 m0, s{SKL}, {((part + 3) % 4)*4*KVT}
            s_add_u32 s{self.S_DS}, s{self.S_DS}, s{self.S_INC}
            s_add_u32 s{SBM}, s{SBM}, s{self.S_INC}
            """)
        def body(i, qk=True, last=False):
            kb = kreg(i % 4); vb = vreg((i+3) % 4)
            k2 = kreg((i+2) % 4); ok = ((i+2) % 16)*KVT
            v1 = vreg((i+1) % 4); ov = ((i+1) % 16)*KVT
            if qk:
                I(f"{M16} {vr(SA,16)}, {ar(kb)}, {vr(QA0)}, 0")
                if not self.x_nords: I(f"ds_read_b128 {ar(k2)}, v{vK16} offset:{ok}")
            exps(SB, PB, 0)
            if qk:
                I(f"{M8} {vr(SA,16)}, a[{kb+4}:{kb+5}], v[{QA1}:{QA1+1}], {vr(SA,16)}")
            exps(SB, PB, 1)
            I(f"{M16} {vr(OA,16)}, {ar(vb)}, {vr(PA)}, {vr(OA,16)}")
            if qk and not self.x_nords: I(f"ds_read_b64 a[{k2+4}:{k2+5}], v{vK8} offset:{ok+1024}")
            exps(SB, PB, 2)
            I(f"{M16} {vr(OA,16)}, {ar(vb+4)}, {vr(PA+4)}, {vr(OA,16)}")
            if qk: copy_slot(i % 4, 0)
            exps(SB, PB, 3)
            if qk:
                I(f"{M16} {vr(SB,16)}, {ar(kb)}, {vr(QB0)}, 0")
                if not self.x_nords: I(f"ds_read_b128 {ar(v1)}, v{vK16} offset:{ov+1280}")
                exps(SA, PA, 0)
                I(f"{M8} {vr(SB,16)}, a[{kb+4}:{kb+5}], v[{QB1}:{QB1+1}], {vr(SB,16)}")
                copy_slot(i % 4, 1)
                exps(SA, PA, 1)
            I(f"{M16} {vr(OB,16)}, {ar(vb)}, {vr(PB)}, {vr(OB,16)}")
            if qk:
                if not self.x_nords: I(f"ds_read_b128 {ar(v1+4)}, v{vK16} offset:{ov+2304}")
                exps(SA, PA, 2)
            I(f"{M16} {vr(OB,16)}, {ar(vb+4)}, {vr(PB+4)}, {vr(OB,16)}")
            if qk:
                if i % 4 == 3:
                    I(f"s_sub_u32 s{cnt}, s{cnt}, 1")
                    header((i // 4 + 1) % 4)
                else:
                    I("s_waitcnt lgkmcnt(4)")
                exps(SA, PA, 3)
        I(f"""
        s_mul_i32 s{SKL}, s{S_WV}, {KVT}
        s_add_u32 s{SKS}, s{SKL}, {KV + 8*KVT}
        s_add_u32 s{SKL}, s{SKL}, {KVL}
        s_mov_b32 s{SBM}, {self.L_DUMMY}
        s_mov_b32 s{self.S_DS}, {KV}
        s_mov_b32 s{self.S_INC}, 0
        s_mov_b32 s84, {hex(mask)}
        """)
        I("s_waitcnt lgkmcnt(0)")
        lentry = self.b.uid("L_ent")
        I(f"""
        s_branch {lhk[4]}
        {lentry}:
        s_add_u32 s{SKS}, s{SKS}, {4*KVT}
        s_add_u32 m0, s{SKL}, {3*4*KVT}
        """)
        self.stamp("loop_in")
        I(f"{lp}:")
        for i in range(16): body(i)
        I(f"s_cmp_lg_u32 s{cnt}, 0\ns_cbranch_scc1 {lp}")
        self.stamp("loop_out")
        C("drain: iteration 64 (V_63)")
        I("s_waitcnt lgkmcnt(0)")
        body(0, qk=False)
        I(f"s_cmp_lg_u32 s{self.S_SLOW}, 0\ns_cbranch_scc1 {lab_slow}\ns_branch {lab_done}")
        I(f"{lhk[4]}:")
        self.hook_body(hooks, 16)
        I(f"s_branch {lentry}")
        for part in range(4):
            I(f"{lhk[part]}:")
            ks = [k for k in sorted(hooks, reverse=True) if (16 - k) % 4 == part and k != 16]
            for n_, k in enumerate(ks):
                nx = None
                if n_ < len(ks) - 1:
                    nx = self.b.uid("L_hk")
                    I(f"s_cmp_lg_u32 s{cnt}, {k}\ns_cbranch_scc1 {nx}")
                self.hook_body(hooks, k)
                I(f"s_branch {lback[part]}")
                if nx: I(f"{nx}:")
            if not ks: I(f"s_branch {lback[part]}")
        I(f"{lab_slow}:")
        for r in range(16): I(f"v_mov_b32 v{OA+r}, 0\nv_mov_b32 v{OB+r}, 0")
        MA_, MB_, T0 = AT+4, AT+5, AT+6
        I(f"v_mov_b32 v{MA_}, 0xff7fffff\nv_mov_b32 v{MB_}, 0xff7fffff")
        I(f"s_mov_b32 s{sK}, {KV}\ns_mov_b32 s{cnt}, 64")
        lp2 = self.b.uid("L_atts")
        I(f"{lp2}:")
        k0, v0 = kreg(0), vreg(0)
        I(f"""
        buffer_load_dwordx4 {ar(k0)}, v{V_L16}, {sr(S_WS)}, s{sK} offen
        buffer_load_dwordx2 a[{k0+4}:{k0+5}], v{vK1}, {sr(S_WS)}, s{sK} offen offset:1024
        buffer_load_dwordx4 {ar(v0)}, v{V_L16}, {sr(S_WS)}, s{sK} offen offset:1280
        buffer_load_dwordx4 {ar(v0+4)}, v{V_L16}, {sr(S_WS)}, s{sK} offen offset:2304
        s_add_u32 s{sK}, s{sK}, {KVT}
        s_waitcnt vmcnt(0)
        """)
        for (S, P, O, Q0, Q1, Mx) in ((SA, PA, OA, QA0, QA1, MA_), (SB, PB, OB, QB0, QB1, MB_)):
            I(f"{M16} {vr(S,16)}, {ar(kreg(0))}, {vr(Q0)}, 0")
            I(f"{M8} {vr(S,16)}, a[{kreg(0)+4}:{kreg(0)+5}], v[{Q1}:{Q1+1}], {vr(S,16)}")
            I(f"v_max3_f32 v{T0}, v{S}, v{S+1}, v{S+2}")
            for r in range(3, 15, 2): I(f"v_max3_f32 v{T0}, v{T0}, v{S+r}, v{S+r+1}")
            I(f"v_max_f32 v{T0}, v{T0}, v{S+15}")
            I(f"v_mov_b32 v{T0+1}, v{T0}\nv_permlane32_swap_b32 v{T0}, v{T0+1}\nv_max_f32 v{T0}, v{T0}, v{T0+1}")
            I(f"v_max_f32 v{T0}, v{T0}, v{Mx}")
            I(f"v_sub_f32 v{T0+1}, v{Mx}, v{T0}\nv_exp_f32 v{T0+1}, v{T0+1}\nv_mov_b32 v{Mx}, v{T0}")
            for r in range(16): I(f"v_mul_f32 v{O+r}, v{O+r}, v{T0+1}")
            for r in range(16): I(f"v_sub_f32 v{S+r}, v{S+r}, v{T0}")
            for q in range(4): exps(S, P, q)
            I(f"{M16} {vr(O,16)}, {ar(vreg(0))}, {vr(P)}, {vr(O,16)}")
            I(f"{M16} {vr(O,16)}, {ar(vreg(0)+4)}, {vr(P+4)}, {vr(O,16)}")
        I(f"s_sub_u32 s{cnt}, s{cnt}, 1\ns_cmp_lg_u32 s{cnt}, 0\ns_cbranch_scc1 {lp2}")
        I(f"{lab_done}:")
        I("s_waitcnt vmcnt(0)\ns_barrier")
        self.stamp("attn")
        self.mod_fetch()
        self.ring_state_after_attn()
        C("normalise and store O in the B-fragment layout of the wo GEMM")
        T = AT
        PK = SA
        I(f"""
        v_lshlrev_b32 v{self.V_L8}, 3, v{V_L}
        s_mul_i32 s{ST}, s{S_WV}, 3072
        s_add_u32 s{ST}, s{ST}, {144*1024}
        v_mul_u32_u24 v{T}, 176, v{V_T}
        v_add_u32 v{T}, s{ST}, v{T}
        v_lshl_add_u32 v{T+1}, v{V_G}, 3, v{T}
        v_bfe_u32 v{T+4}, v{V_L}, 4, 1
        v_mul_u32_u24 v{T+4}, 40, v{T+4}
        v_add_u32 v{T}, v{T}, v{T+4}
        v_lshrrev_b32 v{T+4}, 5, v{V_L}
        v_lshl_add_u32 v{T}, v{T+4}, 3, v{T}
        """)
        for (O, u) in ((OA, 0), (OB, 1)):
            I(f"v_mov_b32 v{T+2}, v{O+8}\nv_mov_b32 v{T+3}, v{O+8}\nv_permlane32_swap_b32 v{T+2}, v{T+3}")
            I(f"v_rcp_f32 v{T+3}, v{T+3}")
            for run in range(3):
                a = O + 4*run
                for r in range(4): I(f"v_mul_f32 v{a+r}, v{a+r}, v{T+3}")
                I(f"v_cvt_pk_bf16_f32 v{a}, v{a}, v{a+1}\nv_cvt_pk_bf16_f32 v{a+1}, v{a+2}, v{a+3}")
                if run == 2: I(f"s_mov_b32 exec_hi, 0")
                I(f"ds_write_b64 v{T}, v[{a}:{a+1}] offset:{80*u + 16*run}")
                if run == 2: I(f"s_mov_b32 exec_hi, -1")
        I("s_waitcnt lgkmcnt(0)")
        for j in range(5):
            I(f"ds_read_b64 v[{PK+2*j}:{PK+2*j+1}], v{T+1} offset:{32*j}")
        I(f"s_mul_i32 s{self.S_T5}, s{S_M}, 5")
        self.tile_base(ST+4, S_TT, 20, OF)
        I("s_waitcnt lgkmcnt(0)")
        self.store_frag(PK, 5, ST+4, self.S_T5, force_sc1=bool(self.xymode & 1))
        self.publish(PH_O); self.vm_drained()
        I("s_barrier")
        self.refill(); self.drip(4)
        self.stamp("opub")

    def dual(self, fn):
        I = self.I
        ls = self.b.uid("L_sl"); lj = self.b.uid("L_sj")
        I(f"s_cmp_eq_u32 s{S_FAST}, 0\ns_cbranch_scc1 {ls}")
        fn("")
        I(f"s_branch {lj}\n{ls}:")
        fn(" sc1")
        I(f"{lj}:")

    def xid_publish(self):
        I = self.I
        lab = self.b.uid("L_xp")
        I(f"""
        s_cmp_lg_u32 s{S_WV}, 0
        s_cbranch_scc1 {lab}
        s_getreg_b32 s{ST}, hwreg(HW_REG_XCC_ID)
        s_and_b32 s{ST}, s{ST}, 15
        v_mov_b32 v252, s{ST}
        v_mov_b32 v253, 0
        v_mov_b32 v254, s{S_TAG}
        v_mov_b32 v255, s{S_TAG+1}
        s_lshl_b32 s{ST}, s{S_RB}, 7
        s_lshl_b32 s{ST+1}, s{S_M}, 4
        s_add_u32 s{ST}, s{ST}, s{ST+1}
        s_add_u32 s{ST}, s{ST}, {XIDG}
        v_mov_b32 v251, s{ST}
        s_mov_b64 exec, 1
        buffer_store_dwordx4 v[252:255], v251, {sr(S_WS)}, 0 offen sc1
        s_mov_b64 exec, -1
        {lab}:
        """)

    XV = 240
    def xid_issue(self):
        I = self.I
        I(f"""
        s_and_b32 s{ST+5}, s{S_RB}, 28
        s_lshl_b32 s{ST+5}, s{ST+5}, 7
        s_add_u32 s{ST+5}, s{ST+5}, {XIDG}
        v_and_b32 v251, 31, v{V_L}
        v_lshlrev_b32 v251, 4, v251
        buffer_load_dwordx4 {vr(self.XV)}, v251, {sr(S_WS)}, s{ST+5} offen sc1
        """)

    def xid_eval(self):
        I = self.I
        X = self.XV
        lp = self.b.uid("L_xc"); ok = self.b.uid("L_xcok")
        I(f"""
        s_mov_b32 s{ST+4}, {TIMEOUT}
        {lp}:
        v_cmp_ne_u32 vcc, s{S_TAG}, v{X+2}
        s_mov_b64 s[{ST+6}:{ST+7}], vcc
        v_cmp_ne_u32 vcc, s{S_TAG+1}, v{X+3}
        s_or_b64 s[{ST+6}:{ST+7}], s[{ST+6}:{ST+7}], vcc
        s_cmp_eq_u64 s[{ST+6}:{ST+7}], 0
        s_cbranch_scc1 {ok}
        """)
        self.xid_issue()
        I("s_waitcnt vmcnt(0)")
        self.spin_tail(ST+4, lp, 14)
        I(f"""
        {ok}:
        s_getreg_b32 s{ST+4}, hwreg(HW_REG_XCC_ID)
        s_and_b32 s{ST+4}, s{ST+4}, 15
        v_cmp_ne_u32 vcc, s{ST+4}, v{X}
        s_cmp_eq_u64 vcc, 0
        s_cselect_b32 s{S_FAST}, {0 if self.force_global else 1}, 0
        """)

    def rl_poll_issue(self):
        I = self.I
        lab = self.b.uid("L_rpi")
        T = 232
        I(f"s_cmp_lg_u32 s{S_WV}, 0\ns_cbranch_scc1 {lab}\nv_lshlrev_b32 v250, 7, v{V_L}")
        for i in range(4):
            I(f"s_mov_b32 s{ST+5}, {RLFLAG + i*8192}\nbuffer_load_dwordx2 v[{T+2*i}:{T+1+2*i}], v250, {sr(S_WS)}, s{ST+5} offen sc1")
        I(f"{lab}:")

    def rl_poll_eval(self):
        I = self.I
        lab = self.b.uid("L_rw"); lp = self.b.uid("L_rwp"); ok = self.b.uid("L_rwok")
        T = 232
        I(f"s_cmp_lg_u32 s{S_WV}, 0\ns_cbranch_scc1 {lab}\ns_mov_b32 s{ST+4}, {TIMEOUT}\n{lp}:\ns_mov_b64 s[{ST+6}:{ST+7}], 0")
        for i in range(4):
            I(f"""
            v_cmp_ne_u32 vcc, s{S_TAG}, v{T+2*i}
            s_or_b64 s[{ST+6}:{ST+7}], s[{ST+6}:{ST+7}], vcc
            v_cmp_ne_u32 vcc, s{S_TAG+1}, v{T+1+2*i}
            s_or_b64 s[{ST+6}:{ST+7}], s[{ST+6}:{ST+7}], vcc
            """)
        I(f"s_cmp_eq_u64 s[{ST+6}:{ST+7}], 0\ns_cbranch_scc1 {ok}")
        self.rl_poll_issue()
        I("s_waitcnt vmcnt(0)")
        self.spin_tail(ST+4, lp, 4)
        I(f"{ok}:\n{lab}:\ns_barrier")

    def publish(self, ph, both=False, vmn=0, line_sreg=None):
        I = self.I
        ln = S_TT if line_sreg is None else line_sreg
        I(f"""
        v_mov_b32 v254, s{S_TAG}
        v_mov_b32 v255, s{S_TAG+1}
        s_lshl_b32 s{ST}, s{ln}, 7
        s_lshl_b32 s{ST+1}, s{S_M}, 3
        s_add_u32 s{ST}, s{ST}, s{ST+1}
        s_add_u32 s{ST}, s{ST}, {CFLAG + ph*CF_PH}
        v_mov_b32 v253, s{ST}
        s_mov_b32 s{ST+1}, {CF_LOC}
        s_waitcnt vmcnt({vmn})
        s_mov_b64 exec, 1
        """)
        def st(f):
            if f == "":
                I(f"buffer_store_dwordx2 v[254:255], v253, {sr(S_WS)}, s{ST+1} offen")
                if both: I(f"buffer_store_dwordx2 v[254:255], v253, {sr(S_WS)}, 0 offen sc1")
            else:
                I(f"buffer_store_dwordx2 v[254:255], v253, {sr(S_WS)}, 0 offen sc1")
        self.dual(st)
        I(f"s_mov_b64 exec, -1")

    def publish_drip(self, ph, both=False, line_sreg=None):
        if self.detail == 2: self.stamp(f"e_sto{ph}")
        self.publish(ph, both=both, vmn=0, line_sreg=line_sreg)
        self.vmq = []
        self.drip(self.pub_after)

    def wait_flags(self, ph, lines, code, work=None):
        I = self.I
        lp = self.b.uid("L_wfp"); ok = self.b.uid("L_wfok")
        I(f"v_mov_b32 v251, s{lines[0]}")
        if len(lines) > 1:
            I(f"v_lshrrev_b32 v250, 3, v{V_L}\nv_and_b32 v250, 3, v250")
            for i, r in enumerate(lines[1:], 1):
                I(f"v_cmp_eq_u32 vcc, {i}, v250\nv_mov_b32 v252, s{r}\nv_cndmask_b32 v251, v251, v252, vcc")
        I(f"""
        v_lshrrev_b32 v250, 4, v251
        s_lshr_b32 s{ST}, s{S_RB}, 2
        v_cmp_eq_u32 vcc, s{ST}, v250
        s_mul_i32 s{ST}, s{S_FAST}, {CF_LOC}
        v_mov_b32 v252, s{ST}
        v_cndmask_b32 v250, 0, v252, vcc
        v_lshl_add_u32 v251, v251, 7, v250
        v_and_b32 v252, 7, v{V_L}
        v_lshl_add_u32 v251, v252, 3, v251
        s_mov_b32 s{ST+1}, {CFLAG + ph*CF_PH}
        s_mov_b32 s{ST}, {TIMEOUT}
        buffer_load_dwordx2 v[254:255], v251, {sr(S_WS)}, s{ST+1} offen sc1
        """)
        n0 = len(self.vmq)
        self.drip(self.shadow_f)
        nsh = len(self.vmq) - n0
        if work: work()
        ok2 = self.b.uid("L_wfo2")
        def check(lo, hi, tgt=None):
            tgt = tgt or ok2
            I(f"""
            v_cmp_ne_u32 vcc, s{S_TAG}, v{lo}
            s_mov_b64 s[{ST+2}:{ST+3}], vcc
            v_cmp_ne_u32 vcc, s{S_TAG+1}, v{hi}
            s_or_b64 s[{ST+2}:{ST+3}], s[{ST+2}:{ST+3}], vcc
            s_cmp_eq_u64 s[{ST+2}:{ST+3}], 0
            s_cbranch_scc1 {tgt}
            """)
        I(f"s_waitcnt vmcnt({nsh})")
        check(254, 255, ok)
        I(f"""
        buffer_load_dwordx2 v[254:255], v251, {sr(S_WS)}, s{ST+1} offen sc1
        {lp}:
        s_sleep 2
        buffer_load_dwordx2 v[252:253], v251, {sr(S_WS)}, s{ST+1} offen sc1
        s_waitcnt vmcnt(1)
        """)
        check(254, 255)
        I(f"""
        s_sleep 2
        buffer_load_dwordx2 v[254:255], v251, {sr(S_WS)}, s{ST+1} offen sc1
        s_waitcnt vmcnt(1)
        """)
        check(252, 253)
        self.spin_tail(ST, lp, code)
        I(f"{ok2}:\n{ok}:")
        self.vmq = self.vmq[len(self.vmq)-nsh:] if nsh else []

    X2, H = 4, 24
    ACC = 44
    MS_GA = 64
    WB = 100
    MS_A2, MS_SB = 160, 180
    GT = 200
    RING = 160
    F_WO, F_W1, F_W2, F_W3, F_W4 = 0, 100, 200, 304, 448
    NUNITS = 45
    S_T5 = 29
    S_SRC = 30
    S_WA, S_W3 , S_W4 = 90, 91, 92
    S_LW = 93
    S_DM, S_DS, S_AO, S_AO2 = 94, 95, 88, 89

    def vm_issue(self, tag): self.vmq.append(tag)
    def vm_wait(self, tag):
        if tag not in self.vmq: return
        i = len(self.vmq) - 1 - self.vmq[::-1].index(tag)
        n = len(self.vmq) - 1 - i
        self.I(f"s_waitcnt vmcnt({min(n, 63)})")
        self.vmq = self.vmq[i+1:]
    def vm_drained(self): self.vmq = []

    def ring_regs(self):
        I = self.I
        I(f"""
        s_lshl_b32 s{self.S_LW}, s{S_WV}, 12
        s_mul_i32 s{self.S_WA}, s{S_M}, {WSA_M}
        s_add_u32 s{self.S_WA}, s{self.S_WA}, {WSA}
        s_add_u32 s{self.S_WA}, s{self.S_WA}, s{self.S_LW}
        s_and_b32 s{self.S_W3}, s{S_RB}, 1
        s_lshl_b32 s{self.S_W3}, s{self.S_W3}, 3
        s_add_u32 s{self.S_W3}, s{self.S_W3}, s{S_M}
        s_mul_i32 s{self.S_W3}, s{self.S_W3}, {W3S_M}
        s_add_u32 s{self.S_W3}, s{self.S_W3}, {W3S}
        s_add_u32 s{self.S_W3}, s{self.S_W3}, s{self.S_LW}
        s_mul_i32 s{self.S_W4}, s{S_M}, {W4S_M}
        s_add_u32 s{self.S_W4}, s{self.S_W4}, {W4S}
        s_add_u32 s{self.S_W4}, s{self.S_W4}, s{self.S_LW}
        """)

    def refill(self, maxn=99):
        n = 0
        while self.units_queued < self.NUNITS and n < maxn:
            u = self.units_queued
            if 16*u + 15 - self.RING > self.consumed: break
            for q in range(4):
                self.pend.append((("u", u, q), (lambda u=u, q=q: self.emit_dma(u, q))))
            self.units_queued += 1; n += 1
        self.resort()

    def resort(self):
        ctx = getattr(self, "loop_ctx", None)
        if ctx is None: return
        F0, NT, S = ctx
        def key(e):
            t = e[0]
            if t[0] == "a": return t[2]
            F = 16*t[1]
            if F + 15 < F0: return -100
            st = max(0, (F - F0)//NT)
            if st >= S: return 1000 + t[1]
            return 4*(st//4) - 2 - 1
        self.pend.sort(key=key)

    def emit_dma(self, u, q, track=True):
        I = self.I
        if q == 0:
            F = 16*u
            if F < 304: base, off = self.S_WA, F*1024
            elif F < 448: base, off = self.S_W3, (F-304)*1024
            else: base, off = self.S_W4, (F-448)*1024
            slot = (F % self.RING)*1024
            I(f"s_add_u32 s{self.S_DM}, s{self.S_LW}, {slot}\ns_mov_b32 m0, s{self.S_DM}\ns_add_u32 s{self.S_DS}, s{base}, {off}")
        I(f"buffer_load_dwordx4 v{V_L16}, {sr(S_WS)}, s{self.S_DS} offen offset:{1024*q} lds")
        if track:
            self.vm_issue(("u", u) if q == 3 else ("ux", u, q))
            if q == 3: self.units_issued = u + 1

    def drip(self, n=1):
        while n > 0 and self.pend:
            tag, fn = self.pend.pop(0)
            fn(); n -= 1

    def flush_until(self, tag):
        if not any(t == tag for t, _ in self.pend): return
        while True:
            t, fn = self.pend.pop(0)
            fn()
            if t == tag: return

    def need_units(self, Fmax):
        u = Fmax // 16
        assert u < self.units_queued, (u, self.units_queued)
        self.flush_until(("u", u, 3))
        self.vm_wait(("u", u))

    def gemm(self, S, NT, F0, aops, abases, burst, rate, cap=99, post_barrier=True, resident=False, chunk=4, accf=None, filler=None, fill_n=0):
        I = self.I
        WB, ACC, T = self.WB, self.ACC, self.GT
        nt = len(abases)
        vb = [T, T+1, T+2]
        stride = 4*NT
        if accf is None: accf = lambda tt, j: ACC + 4*(tt*NT + j)
        filler = list(filler or [])
        def rd1(s, j):
            off = ((F0 + s*NT + j) % self.RING)*1024
            k, o = divmod(off, 61440)
            I(f"ds_read_b128 {vr(WB + stride*(s % 3) + 4*j)}, v{vb[k]} offset:{o}")
        while self.pend and self.pend[0][0][0] == "u" and self.pend[0][0][2] != 0: self.drip(1)
        keep = []
        if resident:
            keep = [e for e in self.pend if e[0][0] == "u"]
            self.pend = []
        self.pend = list(aops) + self.pend
        self.loop_ctx = (F0, NT, S)
        if not resident: self.refill(cap)
        self.drip(burst)
        for j in range(NT): rd1(0, j)
        for j in range(NT): rd1(1, j)
        acc_rate = 0.0
        for s in range(S):
            if not resident and s + 2 < S and (s + 2) % chunk == 0:
                last = min(S, s + 2 + chunk) - 1
                if F0 + last*NT + NT - 1 > self.visible or self.units_queued < self.NUNITS:
                    self.need_units(F0 + last*NT + NT - 1)
                    I("s_barrier")
                    self.visible = max(self.visible, F0 + last*NT + NT - 1)
                    self.consumed = max(self.consumed, F0 + (s-1)*NT + NT - 1)
                    self.refill(cap)
            if self.detail == F0 and s % 4 == 0: self.stamp(f"d_k{s}")
            nout = NT if s + 1 < S else 0
            I(f"s_waitcnt lgkmcnt({min(nout, 15)})")
            for tt in range(nt):
                self.flush_until(("a", tt, s))
                self.vm_wait(("a", tt, s))
            acc_rate += rate
            nm = nt*NT
            slots = []
            while acc_rate >= 1.0:
                slots.append(1); acc_rate -= 1.0
            pos = {(k*nm)//max(1, len(slots)) : 0 for k in range(len(slots))}
            for k in range(len(slots)): pos[(k*nm)//len(slots)] += 1
            i = 0
            for tt in range(nt):
                for j in range(NT):
                    c = '0' if s == 0 else vr(accf(tt, j))
                    I(f"v_mfma_f32_16x16x32_bf16 {vr(accf(tt, j))}, {vr(WB+stride*(s%3)+4*j)}, {ar(abases[tt]+4*s)}, {c}")
                    if i < NT and s + 2 < S: rd1(s+2, i)
                    if pos.get(i): self.drip(pos[i])
                    for _ in range(fill_n):
                        if filler: I(filler.pop(0))
                    i += 1
        for x in filler: I(x)
        self.pending_consumed = {299: 303, 443: 447}.get(F0 + S*NT - 1, F0 + S*NT - 1)
        self.loop_ctx = None
        self.pend = self.pend + keep
        if post_barrier:
            I("s_barrier")
            self.after_barrier()
            self.refill()
            self.drip({0: self.post_drip, 100: self.post_drip, 200: self.post_drip2, 384: self.post_drip3, 304: self.post_drip3}.get(F0, 0))

    def after_barrier(self):
        self.consumed = max(self.consumed, getattr(self, "pending_consumed", -1))

    def lds_bases(self):
        T = self.GT
        self.I(f"v_mov_b32 v{T}, v{V_L16}\nv_add_u32 v{T+1}, 61440, v{V_L16}\nv_add_u32 v{T+2}, {2*61440}, v{V_L16}")

    def a_op(self, tt, s, abase, vaddr, base_sreg, base_add, soff_reg, split=(), vaddr8=None):
        def fn():
            if s % 4 == 0:
                if base_sreg is None: self.I(f"s_mov_b32 s{soff_reg}, {base_add + 1024*s}")
                else: self.I(f"s_add_u32 s{soff_reg}, s{base_sreg}, {base_add + 1024*s}")
            r = abase + 4*s
            if s in split:
                self.I(f"buffer_load_dwordx2 a[{r}:{r+1}], v{vaddr8}, {sr(S_WS)}, s{soff_reg} offen offset:{1024*(s % 4)} sc1")
                self.vm_issue(("ah", tt, s))
                self.I(f"buffer_load_dwordx2 a[{r+2}:{r+3}], v{vaddr8}, {sr(S_WS)}, s{soff_reg} offen offset:{1024*(s % 4)+512} sc1")
            else:
                self.I(f"buffer_load_dwordx4 {ar(r)}, v{vaddr}, {sr(S_WS)}, s{soff_reg} offen offset:{1024*(s % 4)} sc1")
            self.vm_issue(("a", tt, s))
        return (("a", tt, s), fn)

    RAW_GA, RAW_SB, RAW_CB, RAW_GB = 140, 150, 214, 240
    def mod_fetch(self):
        I = self.I
        I(f"v_lshlrev_b32 v244, 4, v{V_G}\nv_add_u32 v244, {self.L_MODW}, v244")
        for (dst, off) in ((self.RAW_GA, 0), (self.RAW_SB, 320), (self.RAW_CB, 640)):
            for j in range(5):
                I(f"ds_read_b64 v[{dst+2*j}:{dst+2*j+1}], v244 offset:{off + 64*j}")

    def gb_fetch(self):
        I = self.I
        I(f"s_mul_i32 s{ST+5}, s{S_M}, 320\nv_lshlrev_b32 v244, 4, v{V_G}\ns_add_u32 s{ST+5}, s{ST+5}, {MODG + 5*2560}")
        for j in range(5):
            I(f"buffer_load_dwordx2 a[{self.RAW_GB+2*j}:{self.RAW_GB+2*j+1}], v244, {sr(S_WS)}, s{ST+5} offen offset:{64*j} sc1")
            self.vm_issue(("gb",))

    def mod_unpack(self):
        I = self.I
        for src, dst in ((self.RAW_GA, self.MS_GA), (self.RAW_SB, self.MS_SB), (self.RAW_CB, self.MS_A2)):
            for i in range(10):
                I(f"v_lshlrev_b32 v{dst+2*i}, 16, v{src+i}\nv_and_b32 v{dst+2*i+1}, 0xffff0000, v{src+i}")
        self.one_plus_bf16(self.MS_A2, 20)

    def one_plus_bf16(self, r, n):
        I = self.I
        for i in range(0, n, 2):
            I(f"""
            v_add_f32 v{r+i}, 1.0, v{r+i}
            v_add_f32 v{r+i+1}, 1.0, v{r+i+1}
            v_cvt_pk_bf16_f32 v{r+i}, v{r+i}, v{r+i+1}
            v_and_b32 v{r+i+1}, 0xffff0000, v{r+i}
            v_lshlrev_b32 v{r+i}, 16, v{r+i}
            """)

    def ln_stats(self, src, which, mu, rs, code, fine=0):
        I = self.I
        T = self.GT + 4
        I(f"v_pk_add_f32 v[{T}:{T+1}], v[{src}:{src+1}], v[{src+2}:{src+3}]\nv_pk_mul_f32 v[{T+2}:{T+3}], v[{src}:{src+1}], v[{src}:{src+1}]")
        I(f"v_pk_fma_f32 v[{T+2}:{T+3}], v[{src+2}:{src+3}], v[{src+2}:{src+3}], v[{T+2}:{T+3}]")
        for i in range(4, 20, 2):
            I(f"v_pk_add_f32 v[{T}:{T+1}], v[{T}:{T+1}], v[{src+i}:{src+i+1}]\nv_pk_fma_f32 v[{T+2}:{T+3}], v[{src+i}:{src+i+1}], v[{src+i}:{src+i+1}], v[{T+2}:{T+3}]")
            if i in (8, 14): self.drip(fine)
        I(f"v_add_f32 v{T}, v{T}, v{T+1}\nv_add_f32 v{T+1}, v{T+2}, v{T+3}")
        self.reduce_g([T, T+1], T+4)
        I(f"""
        v_mov_b32 v{T+2}, s{S_TAG}
        v_mov_b32 v{T+3}, s{S_TAG+1}
        s_lshl_b32 s{ST+4}, s{S_RB}, 13
        s_lshl_b32 s{ST+5}, s{S_WV}, 8
        s_add_u32 s{ST+4}, s{ST+4}, s{ST+5}
        s_add_u32 s{ST+4}, s{ST+4}, {STAT + which*STAT_SZ}
        s_lshl_b32 s{ST+5}, s{S_M}, 10
        s_add_u32 s{ST+5}, s{ST+5}, s{ST+4}
        v_lshlrev_b32 v{T+4}, 4, v{V_T}
        s_mov_b64 exec, 0xffff
        """)
        self.dual(lambda f: I(f"buffer_store_dwordx4 {vr(T)}, v{T+4}, {sr(S_WS)}, s{ST+5} offen{f}"))
        I("s_mov_b64 exec, -1")
        if self.detail == 2: self.stamp(f"e_st{which}")
        I(f"""
        s_mov_b64 exec, -1
        v_lshl_add_u32 v{T+5}, v{V_G}, 11, v{T+4}
        s_mov_b32 s{ST}, {TIMEOUT}
        """)
        lp = self.b.uid("L_ls"); ok = self.b.uid("L_lsok"); lchk = self.b.uid("L_lsc")
        I(f"""
        buffer_load_dwordx4 {vr(T+8)}, v{T+5}, {sr(S_WS)}, s{ST+4} offen sc1
        buffer_load_dwordx4 {vr(T+12)}, v{T+5}, {sr(S_WS)}, s{ST+4} offen offset:1024 sc1
        """)
        n0 = len(self.vmq)
        self.drip(self.shadow_s)
        nsh = len(self.vmq) - n0
        I(f"""
        s_waitcnt vmcnt({nsh})
        s_branch {lchk}
        {lp}:
        buffer_load_dwordx4 {vr(T+8)}, v{T+5}, {sr(S_WS)}, s{ST+4} offen sc1
        buffer_load_dwordx4 {vr(T+12)}, v{T+5}, {sr(S_WS)}, s{ST+4} offen offset:1024 sc1
        s_waitcnt vmcnt(0)
        {lchk}:
        v_cmp_ne_u32 vcc, s{S_TAG}, v{T+10}
        s_mov_b64 s[{ST+2}:{ST+3}], vcc
        v_cmp_ne_u32 vcc, s{S_TAG+1}, v{T+11}
        s_or_b64 s[{ST+2}:{ST+3}], s[{ST+2}:{ST+3}], vcc
        v_cmp_ne_u32 vcc, s{S_TAG}, v{T+14}
        s_or_b64 s[{ST+2}:{ST+3}], s[{ST+2}:{ST+3}], vcc
        v_cmp_ne_u32 vcc, s{S_TAG+1}, v{T+15}
        s_or_b64 s[{ST+2}:{ST+3}], s[{ST+2}:{ST+3}], vcc
        s_cmp_eq_u64 s[{ST+2}:{ST+3}], 0
        s_cbranch_scc1 {ok}
        """)
        self.spin_tail(ST, lp, code)
        self.vmq = self.vmq[len(self.vmq)-nsh:] if nsh else []
        I(f"{ok}:")
        if self.detail == 2: self.stamp(f"e_got{which}")
        I(f"""
        v_add_f32 v{T}, v{T+8}, v{T+12}
        v_add_f32 v{T+1}, v{T+9}, v{T+13}
        """)
        self.reduce_g([T, T+1], T+4)
        I(f"""
        v_mul_f32 v{mu}, {1.0/640!r}, v{T}
        v_mul_f32 v{T+1}, {1.0/640!r}, v{T+1}
        v_fma_f32 v{T+1}, -v{mu}, v{mu}, v{T+1}
        v_max_f32 v{T+1}, 0, v{T+1}
        v_add_f32 v{T+1}, 0x3727c5ac, v{T+1}
        v_rsq_f32 v{rs}, v{T+1}
        s_nop 0
        v_mul_f32 v{mu}, -v{mu}, v{rs}
        v_mov_b32 v{rs+1}, v{rs}
        v_mov_b32 v{mu+1}, v{mu}
        """)

    V_L8 = 203
    SPLIT20 = (2, 7, 12, 17)
    SPLIT54 = (3, 10, 17, 24, 31, 38)
    def pack_tiles(self, src, ntile, dst=None):
        if dst is None: dst = src
        for j in range(ntile):
            a = src + 4*j; d = dst + 2*j
            self.I(f"v_cvt_pk_bf16_f32 v{d}, v{a}, v{a+1}\nv_cvt_pk_bf16_f32 v{d+1}, v{a+2}, v{a+3}")

    def store_frag(self, pk, ntile, base_sreg, tile0_sreg, skip_last_sreg=None, force_sc1=False, count=True):
        I = self.I
        lodd = self.b.uid("L_so"); lj = self.b.uid("L_sj")
        I(f"""
        s_lshr_b32 s{ST+5}, s{tile0_sreg}, 1
        s_lshl_b32 s{ST+5}, s{ST+5}, 10
        s_add_u32 s{ST+5}, s{ST+5}, s{base_sreg}
        s_bitcmp1_b32 s{tile0_sreg}, 0
        s_cbranch_scc1 {lodd}
        """)
        def variant(odd, f):
            if not odd:
                for p in range(ntile//2):
                    I(f"buffer_store_dwordx4 {vr(pk+4*p)}, v{V_L16}, {sr(S_WS)}, s{ST+5} offen offset:{1024*p}{f}")
                if ntile % 2:
                    lab = None
                    if skip_last_sreg is not None:
                        lab = self.b.uid("L_sk")
                        I(f"s_cmp_lg_u32 s{skip_last_sreg}, 0\ns_cbranch_scc1 {lab}")
                    j = ntile-1
                    I(f"buffer_store_dwordx2 v[{pk+2*j}:{pk+2*j+1}], v{self.V_L8}, {sr(S_WS)}, s{ST+5} offen offset:{1024*(ntile//2)}{f}")
                    if lab: I(f"{lab}:")
            else:
                I(f"buffer_store_dwordx2 v[{pk}:{pk+1}], v{self.V_L8}, {sr(S_WS)}, s{ST+5} offen offset:512{f}")
                for p in range(ntile//2):
                    I(f"buffer_store_dwordx4 {vr(pk+2+4*p)}, v{V_L16}, {sr(S_WS)}, s{ST+5} offen offset:{1024*(p+1)}{f}")
        if force_sc1: variant(False, " sc1")
        else: self.dual(lambda f: variant(False, f))
        I(f"s_branch {lj}\n{lodd}:")
        if force_sc1: variant(True, " sc1")
        else: self.dual(lambda f: variant(True, f))
        I(f"{lj}:")
        if count:
            for j in range(ntile//2): self.vm_issue(("st",))

    def tile_base(self, dst_sreg, tt_sreg, S, base_off):
        self.I(f"s_mul_i32 s{dst_sreg}, s{tt_sreg}, {S*1024}\ns_add_u32 s{dst_sreg}, s{dst_sreg}, {base_off}")

    def gelu(self, r, n, drip=0):
        I = self.I
        T = self.GT + 4
        c1 = -2.0 * 0.7978845608028654 * 1.4426950408889634
        c2 = c1 * 0.044715
        C1, ONE = T+8, T+10
        I(f"""
        s_mov_b32 s{ST+8}, {hex(f2u(c2))}
        s_mov_b32 s{ST+9}, {hex(f2u(c2))}
        v_mov_b32 v{C1}, {hex(f2u(c1))}
        v_mov_b32 v{C1+1}, {hex(f2u(c1))}
        v_mov_b32 v{ONE}, 1.0
        v_mov_b32 v{ONE+1}, 1.0
        """)
        P = lambda x: f"v[{x}:{x+1}]"
        for i in range(0, n, 4):
            x0, x1, t0, t1 = r+i, r+i+2, T, T+2
            I(f"v_pk_mul_f32 {P(t0)}, {P(x0)}, {P(x0)}\nv_pk_mul_f32 {P(t1)}, {P(x1)}, {P(x1)}")
            I(f"v_pk_fma_f32 {P(t0)}, {P(t0)}, s[{ST+8}:{ST+9}], {P(C1)}\nv_pk_fma_f32 {P(t1)}, {P(t1)}, s[{ST+8}:{ST+9}], {P(C1)}")
            I(f"v_pk_mul_f32 {P(t0)}, {P(t0)}, {P(x0)}\nv_pk_mul_f32 {P(t1)}, {P(t1)}, {P(x1)}")
            for q in range(4): I(f"v_exp_f32 v{T+q}, v{T+q}")
            I(f"v_pk_add_f32 {P(t0)}, {P(t0)}, {P(ONE)}\nv_pk_add_f32 {P(t1)}, {P(t1)}, {P(ONE)}")
            for q in range(4): I(f"v_rcp_f32 v{T+q}, v{T+q}")
            I(f"v_pk_mul_f32 {P(x0)}, {P(x0)}, {P(t0)}\nv_pk_mul_f32 {P(x1)}, {P(x1)}, {P(t1)}")
            self.drip(drip)

    def collect(self, fn):
        saved = self.b.items
        self.b.items = []
        fn()
        out = [it.text for it in self.b.items if isinstance(it, Ins)]
        self.b.items = saved
        return out

    def phase_entry(self, ph_wait, lines, code, F0, NT, between=None, upto=None):
        last = F0 + 4*NT - 1 if upto is None else upto
        self.need_units(last)
        self.I("s_barrier")
        self.visible = max(getattr(self, "visible", -1), last)
        self.after_barrier()
        if self.detail == F0: self.stamp("d_bar")
        self.wait_flags(ph_wait, lines, code, work=between)
        if self.detail == F0: self.stamp("d_flags")
        if self.detail == 2: self.stamp(f"e_fl{ph_wait}")

    def small_gemm(self, F0, act, ph_wait, rbs, code, shift=False, between=None, pf=()):
        I, C = self.I, self.C
        def shift_addr():
            T = self.GT + 8
            I(f"s_lshl_b32 s{ST+4}, s{S_TT}, 4\ns_lshr_b32 s{ST+5}, s{S_RB}, 2")
            for q, dl in enumerate((-1, 1, -2, 2)):
                side = 1 if dl < 0 else 0
                I(f"""
                v_add_u32 v{T+4}, s{ST+4}, v{V_T}
                v_add_u32 v{T+4}, {dl & 0xffffffff}, v{T+4}          ; token'
                v_lshrrev_b32 v{T+5}, 4, v{T+4}
                v_mul_u32_u24 v{T+5}, 20480, v{T+5}
                v_add_u32 v{T+5}, {act}, v{T+5}
                v_lshrrev_b32 v{T+6}, 8, v{T+4}
                v_lshlrev_b32 v{T+7}, 1, v{T+6}
                v_add_u32 v{T+7}, {side}, v{T+7}
                v_mul_u32_u24 v{T+7}, 20480, v{T+7}
                v_add_u32 v{T+7}, {HG}, v{T+7}
                v_cmp_eq_u32 vcc, s{ST+5}, v{T+6}
                v_cndmask_b32 v{T+5}, v{T+7}, v{T+5}, vcc
                v_and_b32 v{T+6}, 15, v{T+4}
                v_lshl_add_u32 v{T+6}, v{V_G}, 4, v{T+6}              ; g*16 + t'
                v_lshl_add_u32 v{T+7}, v{T+6}, 3, v{T+5}
                v_lshl_add_u32 v{T+5}, v{T+6}, 4, v{T+5}
                v_cmp_gt_u32 vcc, 0x800, v{T+4}
                v_mov_b32 v{T+6}, 0x80000000
                v_cndmask_b32 v{T+q}, v{T+6}, v{T+5}, vcc
                v_cndmask_b32 v{self.GT+20+q}, v{T+6}, v{T+7}, vcc
                """)
        if shift: between = shift_addr
        self.phase_entry(ph_wait, rbs, code, F0, 5, between, upto=(F0+99 if self.resident else None))
        if not shift:
            I(f"s_mul_i32 s{self.S_SRC}, s{S_TT}, {20*1024}\ns_add_u32 s{self.S_SRC}, s{self.S_SRC}, {act}")
            aops = [self.a_op(0, s, 16, V_L16, self.S_SRC, 0, self.S_AO, self.SPLIT20, self.V_L8) for s in range(20)]
        else:
            T = self.GT + 8
            aops = [self.a_op(0, s, 16, T + s // 5, None, 0, self.S_AO, self.SPLIT20, self.GT + 20 + s // 5) for s in range(20)]
        if self.use_pf: aops += [(("a", 9, 19), (lambda p=p: self.pf_op(*p))) for p in pf]
        if (self.h4t_where == 1 and F0 == self.F_W1) or (self.h4t_where == 2 and F0 == self.F_W2) or (self.h4t_where == 4 and F0 == self.F_WO):
            def h4t():
                self.act_touch(H4F, 54*1024); self.vm_issue(("pf",))
            aops.append((("a", 9, 19), h4t))
        self.gemm(20, 5, F0, aops, [16], burst=self.burst, rate=self.rate_small, cap=self.cap_small, resident=self.resident)

    def phase_wo(self):
        I, C = self.I, self.C
        X2, H, ACC, T = self.X2, self.H, self.ACC, self.GT
        self.lds_bases()
        def pre():
            self.mod_unpack()
            for j in range(5):
                for q in range(2):
                    I(f"v_accvgpr_read_b32 v{T+4}, a{2*j+q}")
                    I(f"v_lshlrev_b32 v{X2+4*j+2*q}, 16, v{T+4}\nv_and_b32 v{X2+4*j+2*q+1}, 0xffff0000, v{T+4}")
        self.small_gemm(self.F_WO, OF, PH_O, [S_TT], 6, pf=[("3", 0)], between=pre)
        self.stamp("wo_mm")
        P = lambda x: f"v[{x}:{x+1}]"
        f = self.fine
        for i in range(0, 20, 2): I(f"v_pk_fma_f32 {P(X2+i)}, {P(self.MS_GA+i)}, {P(ACC+i)}, {P(X2+i)}")
        mu, rs = T+30, T+32
        self.ln_stats(X2, 0, mu, rs, 7, fine=f)
        for i in range(0, 20, 2):
            I(f"v_pk_fma_f32 {P(H+i)}, {P(X2+i)}, {P(rs)}, {P(mu)}")
            I(f"v_pk_fma_f32 {P(H+i)}, {P(H+i)}, {P(self.MS_A2+i)}, {P(self.MS_SB+i)}")
            if i in (0, 8): self.drip(f)
        self.ln_stats(H, 1, mu, rs, 8, fine=f)
        self.drip(f)
        for i in range(0, 20, 2): I(f"v_pk_fma_f32 {P(ACC+i)}, {P(H+i)}, {P(rs)}, {P(mu)}")
        self.pack_tiles(ACC, 5)
        self.tile_base(ST+4, S_TT, 20, L2F)
        self.store_frag(ACC, 5, ST+4, self.S_T5, force_sc1=bool(self.xymode & 1))
        self.publish_drip(PH_L2)
        self.stamp("l2pub")

    def phase_w1(self):
        I = self.I
        self.small_gemm(self.F_W1, L2F, PH_L2, [S_TT], 9, pf=[("3", 1)])
        self.stamp("w1_mm")
        self.gb_fetch()
        self.gelu(self.ACC, 20, drip=self.gd1)
        self.pack_tiles(self.ACC, 5)
        self.tile_base(ST+4, S_TT, 20, GF)
        self.store_frag(self.ACC, 5, ST+4, self.S_T5)
        lab = self.b.uid("L_hal")
        I(f"""
        s_and_b32 s{ST+6}, s{S_TT}, 15
        s_add_u32 s{ST+6}, s{ST+6}, 1
        s_and_b32 s{ST+7}, s{ST+6}, 14
        s_cmp_eq_u32 s{ST+7}, 0
        s_cbranch_scc0 {lab}
        s_lshr_b32 s{ST+7}, s{S_TT}, 4
        s_lshl_b32 s{ST+7}, s{ST+7}, 1
        s_lshr_b32 s{ST+6}, s{ST+6}, 4
        s_add_u32 s{ST+7}, s{ST+7}, s{ST+6}
        s_mul_i32 s{ST+4}, s{ST+7}, 20480
        s_add_u32 s{ST+4}, s{ST+4}, {HG}
        """)
        self.store_frag(self.ACC, 5, ST+4, self.S_T5, force_sc1=True, count=False)
        I(f"{lab}:")
        self.publish_drip(PH_G, both=True)
        self.stamp("gpub")

    def phase_w2(self):
        I = self.I
        X2, H, ACC, T = self.X2, self.H, self.ACC, self.GT
        I(f"""
        s_sub_u32 s{ST+10}, s{S_TT}, 1
        s_max_i32 s{ST+10}, s{ST+10}, 0
        s_add_u32 s{ST+11}, s{S_TT}, 1
        s_min_u32 s{ST+11}, s{ST+11}, 127
        """)
        self.small_gemm(self.F_W2, GF, PH_G, [S_TT, ST+10, ST+11], 10, shift=True, pf=[("4", 0)])
        self.stamp("w2_mm")
        P = lambda x: f"v[{x}:{x+1}]"
        for i in range(0, 20, 2): I(f"v_pk_add_f32 {P(H+i)}, {P(H+i)}, {P(ACC+i)}")
        mu, rs = T+30, T+32
        self.ln_stats(H, 2, mu, rs, 11, fine=self.fine)
        self.drip(self.fine)
        for i in range(0, 20, 2): I(f"v_pk_fma_f32 {P(ACC+i)}, {P(H+i)}, {P(rs)}, {P(mu)}")
        self.pack_tiles(ACC, 5)
        self.tile_base(ST+4, S_TT, 20, L3F)
        self.store_frag(ACC, 5, ST+4, self.S_T5)
        self.publish_drip(PH_L3)
        self.stamp("l3pub")

    def phase_w3(self):
        I, C = self.I, self.C
        ACC = self.ACC
        m16, t0, skip, rbA, rbB, ttb = ST+10, ST+11, ST+12, ST+13, ST+14, ST+15
        I(f"""
        s_and_b32 s{m16}, s{S_RB}, 1
        s_lshl_b32 s{m16}, s{m16}, 3
        s_add_u32 s{m16}, s{m16}, s{S_M}
        s_mul_i32 s{t0}, s{m16}, 7
        s_sub_u32 s{ST}, s{m16}, 12
        s_max_i32 s{ST}, s{ST}, 0
        s_sub_u32 s{t0}, s{t0}, s{ST}
        s_cmp_ge_u32 s{m16}, 12
        s_cselect_b32 s{skip}, 1, 0
        s_and_b32 s{rbA}, s{S_RB}, 30
        s_add_u32 s{rbB}, s{rbA}, 1
        s_lshl_b32 s{ttb}, s{rbA}, 2
        s_lshl_b32 s{ST}, s{S_WV}, 1
        s_add_u32 s{ttb}, s{ttb}, s{ST}
        """)
        I(f"s_add_u32 s{rbA}, s{ttb}, 1")
        self.phase_entry(PH_L3, [ttb, rbA], 12, self.F_W3, 4 if self.w3split else 7)
        I(f"s_mul_i32 s{self.S_SRC}, s{ttb}, {20*1024}\ns_add_u32 s{self.S_SRC}, s{self.S_SRC}, {L3F}")
        aops = []
        for s in range(20):
            aops.append(self.a_op(0, s, 16, V_L16, self.S_SRC, 0, self.S_AO, self.SPLIT20, self.V_L8))
            aops.append(self.a_op(1, s, 96, V_L16, self.S_SRC, 20*1024, self.S_AO2, self.SPLIT20, self.V_L8))
        if self.use_pf: aops.insert(16, (("a", 9, 8), (lambda: self.pf_op("4", 1))))
        def h4t():
            self.act_touch(H4F, 54*1024); self.vm_issue(("pf",))
        if self.h4t_where == 3: aops.append((("a", 9, 19), h4t))
        if not self.w3split:
            self.gemm(20, 7, self.F_W3, aops, [16, 96], burst=2*self.burst, rate=self.rate_w3)
            self.stamp("w3_mm")
            self.gelu(ACC, 56, drip=self.gd3)
        else:
            self.gemm(20, 4, self.F_W3, aops, [16, 96], burst=2*self.burst, rate=self.rate_w3a, accf=lambda tt, j: ACC + 28*tt + 4*j, post_barrier=False)
            F2 = self.F_W3 + 80
            self.need_units(F2 + 4*3 - 1)
            I("s_barrier")
            self.visible = max(self.visible, F2 + 11)
            self.after_barrier()
            fill = self.collect(lambda: (self.gelu(ACC, 16), self.gelu(ACC+28, 16)))
            self.gemm(20, 3, F2, [], [16, 96], burst=0, rate=self.rate_w3b, accf=lambda tt, j: ACC + 28*tt + 16 + 4*j, filler=fill, fill_n=self.fill_n)
            self.stamp("w3_mm")
            self.gelu(ACC+16, 12, drip=self.gd3)
            self.gelu(ACC+44, 12, drip=self.gd3)
        self.pack_tiles(ACC, 7)
        self.pack_tiles(ACC+28, 7)
        self.tile_base(ST+4, ttb, 54, H4F)
        self.store_frag(ACC, 7, ST+4, t0, skip_last_sreg=skip, force_sc1=(self.h4mode == 2))
        I(f"s_add_u32 s{ST+4}, s{ST+4}, {54*1024}")
        self.store_frag(ACC+28, 7, ST+4, t0, skip_last_sreg=skip, force_sc1=(self.h4mode == 2))
        self.publish_drip(PH_H4)
        self.stamp("h4pub")

    def phase_w4(self):
        I, C = self.I, self.C
        X2, H, ACC, T = self.X2, self.H, self.ACC, self.GT
        rbA, rbB = ST+13, ST+14
        I(f"""
        s_and_b32 s{rbA}, s{S_TT}, 7
        s_lshr_b32 s{rbA}, s{rbA}, 1
        s_and_b32 s{rbB}, s{S_RB}, 30
        s_lshl_b32 s{rbB}, s{rbB}, 2
        s_add_u32 s{rbA}, s{rbA}, s{rbB}
        s_add_u32 s{rbB}, s{rbA}, 4
        """)
        self.phase_entry(PH_H4, [rbA, rbB], 13, self.F_W4, 5, upto=(607 if self.resident else None))
        I(f"s_mul_i32 s{self.S_SRC}, s{S_TT}, {54*1024}\ns_add_u32 s{self.S_SRC}, s{self.S_SRC}, {H4F}")
        if self.wb_early:
            lab = self.b.uid("L_wb")
            I(f"""
            s_lshr_b32 s{ST}, s{S_W}, 3
            s_lshl_b32 s{ST}, s{ST}, 2
            s_add_u32 s{ST}, s{ST}, s{S_WV}
            s_cmp_lg_u32 s{ST}, {self.wb_who}
            s_cbranch_scc1 {lab}
            buffer_wbl2 sc1
            {lab}:
            """)
        aops = [self.a_op(0, s, 16, V_L16, self.S_SRC, 0, self.S_AO, self.SPLIT54, self.V_L8) for s in range(54)]
        self.gemm(54, 5, self.F_W4, aops, [16], burst=self.burst4, rate=self.rate_w4, post_barrier=False, chunk=self.chunk4)
        self.stamp("w4_mm")
        MS = self.WB
        for j in range(5):
            I(f"""
            v_accvgpr_read_b32 v{T+4}, a{self.RAW_GB+2*j}
            v_accvgpr_read_b32 v{T+5}, a{self.RAW_GB+2*j+1}
            v_lshlrev_b32 v{MS+4*j}, 16, v{T+4}
            v_and_b32 v{MS+4*j+1}, 0xffff0000, v{T+4}
            v_lshlrev_b32 v{MS+4*j+2}, 16, v{T+5}
            v_and_b32 v{MS+4*j+3}, 0xffff0000, v{T+5}
            """)
        for i in range(0, 20, 2):
            I(f"v_pk_add_f32 v[{ACC+i}:{ACC+i+1}], v[{ACC+i}:{ACC+i+1}], v[{H+i}:{H+i+1}]")
            I(f"v_pk_fma_f32 v[{ACC+i}:{ACC+i+1}], v[{ACC+i}:{ACC+i+1}], v[{MS+i}:{MS+i+1}], v[{X2+i}:{X2+i+1}]")
        self.srd(S_A, P_OUT, 2048*1280)
        I(f"""
        s_lshl_b32 s{ST}, s{S_TT}, 4
        v_add_u32 v{T+4}, s{ST}, v{V_T}
        v_mul_u32_u24 v{T+4}, 1280, v{T+4}
        v_lshl_add_u32 v{T+4}, v{V_G}, 3, v{T+4}
        s_mul_i32 s{ST}, s{S_M}, 160
        """)
        self.pack_tiles(ACC, 5)
        for j in range(5):
            a = ACC + 2*j
            I(f"buffer_store_dwordx2 v[{a}:{a+1}], v{T+4}, {sr(S_A)}, s{ST} offen offset:{32*j}{' sc1' if self.out_sc1 else ''}")
        self.stamp("out")

    def l2_prefetch(self, which, part):
        I = self.I
        T = 246
        rbl = ST + 4
        I(f"v_lshlrev_b32 v{T}, 7, v{V_L}\ns_and_b32 s{rbl}, s{S_RB}, 3")
        if which == "A":
            base, start, chunk, shl = self.S_WA, 96*1024, 6656, 0
        elif which == "3":
            base, start, chunk, shl = self.S_W3, 0, 9216, 1
        else:
            base, start, chunk, shl = self.S_W4, 0, 8704, 0
        I(f"""
        s_lshr_b32 s{ST+5}, s{rbl}, {shl}
        s_lshl_b32 s{ST+5}, s{ST+5}, 2
        s_add_u32 s{ST+5}, s{ST+5}, s{S_WV}
        s_lshl_b32 s{ST+5}, s{ST+5}, 1
        s_add_u32 s{ST+5}, s{ST+5}, {part}
        s_mul_i32 s{ST+5}, s{ST+5}, {chunk}
        s_add_u32 s{ST+5}, s{ST+5}, s{base}
        s_sub_u32 s{ST+5}, s{ST+5}, s{self.S_LW}
        s_add_u32 s{ST+5}, s{ST+5}, {start}
        """)
        if chunk < 8192:
            I(f"v_cmp_gt_u32 vcc, {chunk//128}, v{V_L}\ns_and_saveexec_b64 s[{ST+6}:{ST+7}], vcc")
        I(f"buffer_load_dword a254, v{T}, {sr(S_WS)}, s{ST+5} offen")
        if chunk < 8192:
            I(f"s_mov_b64 exec, s[{ST+6}:{ST+7}]")
        if chunk > 8192:
            I(f"s_add_u32 s{ST+5}, s{ST+5}, 8192\nv_cmp_gt_u32 vcc, {(chunk-8192)//128}, v{V_L}\ns_and_saveexec_b64 s[{ST+6}:{ST+7}], vcc")
            I(f"buffer_load_dword a253, v{T}, {sr(S_WS)}, s{ST+5} offen")
            I(f"s_mov_b64 exec, s[{ST+6}:{ST+7}]")
        return 2 if chunk > 8192 else 1

    def tlb_touch(self):
        I = self.I
        n = (WS_END + (1 << 20) - 1) >> 20
        I(f"""
        v_lshlrev_b32 v245, 20, v{V_L}
        v_cmp_gt_u32 vcc, {n}, v{V_L}
        s_and_saveexec_b64 s[{ST+6}:{ST+7}], vcc
        buffer_load_dword a255, v245, {sr(S_WS)}, 0 offen
        s_mov_b64 exec, s[{ST+6}:{ST+7}]
        """)

    def mall_touch(self, base, nbytes):
        I = self.I
        per_wave = -(-nbytes // 1024 // 128) * 128
        lines = per_wave // 128
        assert lines <= 128
        I(f"""
        v_lshlrev_b32 v245, 7, v{V_L}
        s_lshl_b32 s{ST+5}, s{S_W}, 2
        s_add_u32 s{ST+5}, s{ST+5}, s{S_WV}
        s_mul_i32 s{ST+5}, s{ST+5}, {per_wave}
        s_add_u32 s{ST+5}, s{ST+5}, {base}
        """)
        n0 = min(lines, 64)
        if n0 < 64: I(f"v_cmp_gt_u32 vcc, {n0}, v{V_L}\ns_and_saveexec_b64 s[{ST+6}:{ST+7}], vcc")
        I(f"buffer_load_dword a255, v245, {sr(S_WS)}, s{ST+5} offen")
        if n0 < 64: I(f"s_mov_b64 exec, s[{ST+6}:{ST+7}]")

    def act_touch(self, base, per_tile):
        I = self.I
        per_wave = 16*per_tile // 128
        lines = per_wave // 128
        I(f"""
        v_lshlrev_b32 v245, 7, v{V_L}
        s_lshr_b32 s{ST+5}, s{S_RB}, 2
        s_mul_i32 s{ST+5}, s{ST+5}, {16*per_tile}
        s_and_b32 s{ST+6}, s{S_RB}, 3
        s_lshl_b32 s{ST+6}, s{ST+6}, 3
        s_add_u32 s{ST+6}, s{ST+6}, s{S_M}
        s_lshl_b32 s{ST+6}, s{ST+6}, 2
        s_add_u32 s{ST+6}, s{ST+6}, s{S_WV}
        s_mul_i32 s{ST+6}, s{ST+6}, {per_wave}
        s_add_u32 s{ST+5}, s{ST+5}, s{ST+6}
        s_add_u32 s{ST+5}, s{ST+5}, {base}
        """)
        n0 = min(lines, 64)
        if n0 < 64: I(f"v_cmp_gt_u32 vcc, {n0}, v{V_L}\ns_and_saveexec_b64 s[{ST+6}:{ST+7}], vcc")
        I(f"buffer_load_dword a255, v245, {sr(S_WS)}, s{ST+5} offen")
        if n0 < 64: I(f"s_mov_b64 exec, s[{ST+6}:{ST+7}]")

    def sync_touch(self):
        I = self.I
        l3 = self.b.uid("L_st3"); lj = self.b.uid("L_stj")
        I(f"""
        s_cmp_eq_u32 s{S_WV}, 3
        s_cbranch_scc1 {l3}
        v_lshlrev_b32 v245, 7, v{V_L}
        s_mul_i32 s{ST+5}, s{S_WV}, {STAT_SZ}
        s_lshl_b32 s{ST+6}, s{S_RB}, 13
        s_add_u32 s{ST+5}, s{ST+5}, s{ST+6}
        s_add_u32 s{ST+5}, s{ST+5}, {STAT}
        buffer_load_dword a255, v245, {sr(S_WS)}, s{ST+5} offen
        s_branch {lj}
        {l3}:
        v_lshrrev_b32 v245, 4, v{V_L}
        v_lshlrev_b32 v245, 14, v245
        v_and_b32 v244, 15, v{V_L}
        v_lshl_add_u32 v245, v244, 7, v245
        s_and_b32 s{ST+5}, s{S_RB}, 28
        s_lshl_b32 s{ST+5}, s{ST+5}, 9
        s_add_u32 s{ST+5}, s{ST+5}, {CFLAG + CF_LOC}
        buffer_load_dword a255, v245, {sr(S_WS)}, s{ST+5} offen
        s_add_u32 s{ST+5}, s{ST+5}, {4*CF_PH}
        v_lshlrev_b32 v245, 7, v244
        buffer_load_dword a255, v245, {sr(S_WS)}, s{ST+5} offen
        {lj}:
        s_sub_u32 s{ST+5}, s{S_TT}, 1
        s_max_i32 s{ST+5}, s{ST+5}, 0
        s_lshl_b32 s{ST+5}, s{ST+5}, 7
        s_add_u32 s{ST+5}, s{ST+5}, {CFLAG + PH_G*CF_PH}
        v_lshlrev_b32 v245, 7, v{V_L}
        s_mov_b64 exec, 7
        buffer_load_dword a255, v245, {sr(S_WS)}, s{ST+5} offen
        s_mov_b64 exec, -1
        """)

    def pf_op(self, which, part):
        n = self.l2_prefetch(which, part)
        for i in range(n): self.vm_issue(("pf",))

    def hook_body(self, hooks, k):
        if self.detail == 1: self.stamp(f"h{k}i")
        hooks[k]()
        if self.detail == 1: self.stamp(f"h{k}o")

    L_KV = 108*1024
    S_INC = 75
    S_SLOW = 77
    def kv_dma(self, g):
        I = self.I
        I(f"""
        s_mul_i32 s{ST+5}, s{S_WV}, {KVT}
        s_add_u32 s{ST+4}, s{ST+5}, {self.L_KV + (4*g % 16)*KVT}
        s_mov_b32 m0, s{ST+4}
        s_add_u32 s{ST+5}, s{ST+5}, {KV + 4*g*KVT}
        buffer_load_dwordx4 v{V_L16}, {sr(S_WS)}, s{ST+5} offen lds
        buffer_load_dwordx4 v{V_L16}, {sr(S_WS)}, s{ST+5} offen offset:1024 lds
        buffer_load_dwordx4 v{V_L16}, {sr(S_WS)}, s{ST+5} offen offset:2048 lds
        s_mov_b64 exec, 0xffff
        buffer_load_dwordx4 v{V_L16}, {sr(S_WS)}, s{ST+5} offen offset:3072 lds
        s_mov_b64 exec, -1
        """)

    L_DUMMY = 104*1024
    V_BG = 202
    L_MODW = 96*1024
    def slot_setup(self, kind, arg=0):
        I = self.I
        DS = self.S_DS
        if kind == "unit":
            I(f"s_add_u32 s{DS}, s{self.S_WA}, {(16*arg-16)*1024 & 0xffffffff}\ns_add_u32 s76, s{self.S_LW}, {(16*arg-16)*1024 & 0xffffffff}\ns_mov_b32 s{self.S_INC}, 16384")
            return
        if kind == "act":
            base, per_tile, part = arg
            per_wave = 16*per_tile // 128
            I(f"""
            s_lshr_b32 s{DS}, s{S_RB}, 2
            s_mul_i32 s{DS}, s{DS}, {16*per_tile}
            s_and_b32 s{ST+6}, s{S_RB}, 3
            s_lshl_b32 s{ST+6}, s{ST+6}, 3
            s_add_u32 s{ST+6}, s{ST+6}, s{S_M}
            s_lshl_b32 s{ST+6}, s{ST+6}, 2
            s_add_u32 s{ST+6}, s{ST+6}, s{S_WV}
            s_mul_i32 s{ST+6}, s{ST+6}, {per_wave}
            s_add_u32 s{DS}, s{DS}, s{ST+6}
            s_add_u32 s{DS}, s{DS}, {base + 4096*part}
            """)
        elif kind == "mod":
            I(f"""
            v_mul_u32_u24 v245, 3277, v{V_L}
            v_lshrrev_b32 v245, 16, v245                        ; lane / 20
            v_mul_u32_u24 v{self.V_BG}, {2560 - 320}, v245
            v_add_u32 v{self.V_BG}, v{self.V_BG}, v{V_L16}      ; slice * 2560 + (lane % 20) * 16
            s_mul_i32 s{DS}, s{S_M}, 320
            s_add_u32 s{DS}, s{DS}, {MODG + 2*2560}
            s_mov_b32 s76, {self.L_MODW}
            s_mov_b32 s{self.S_INC}, 0
            """)
            return
        elif kind == "wsa":
            I(f"""
            s_and_b32 s{ST+6}, s{S_RB}, 3
            s_lshl_b32 s{ST+6}, s{ST+6}, 2
            s_add_u32 s{ST+6}, s{ST+6}, s{S_WV}
            s_mul_i32 s{ST+6}, s{ST+6}, {8*1024}
            s_add_u32 s{DS}, s{self.S_WA}, s{ST+6}
            s_sub_u32 s{DS}, s{DS}, s{self.S_LW}
            s_add_u32 s{DS}, s{DS}, {96*1024 + 4096*arg}
            """)
        else:
            I(f"s_mov_b32 s{DS}, {KV}")
        I(f"s_mov_b32 s76, {self.L_DUMMY}")

    def attn_hooks(self):
        I = self.I
        J = {}
        J[15] = (lambda: self.rl_issue(1), 0)
        def j14():
            lab = self.b.uid("L_j14")
            I(f"s_cmp_ge_u32 s{S_WV}, 2\ns_cbranch_scc1 {lab}\ns_waitcnt vmcnt(16)")
            self.rl_store(0)
            I(f"{lab}:")
        J[14] = (j14, 0)
        def j13():
            lab = self.b.uid("L_j13")
            I("s_waitcnt vmcnt(16)")
            I(f"s_cmp_lt_u32 s{S_WV}, 2\ns_cbranch_scc1 {lab}")
            self.rl_store(0)
            I(f"{lab}:")
            self.rl_store(1)
            self.sync_touch()
        J[13] = (j13, 2)
        def j11():
            I("s_waitcnt vmcnt(16)")
            self.rl_flag()
        J[11] = (j11, 0)
        def j8(): self.xid_issue(); self.rl_poll_issue(); self.ring_regs()
        J[8] = (j8, 1)
        def j7():
            I("s_waitcnt vmcnt(8)")
            self.rl_poll_eval()
        J[7] = (j7, 0)
        J[2] = (self.xid_eval, 0)
        if self.pfA:
            J[6] = (lambda: self.l2_prefetch("A", 0), 1); J[4] = (lambda: self.l2_prefetch("A", 1), 1)
        if self.pf3:
            J[6] = (lambda: self.l2_prefetch("3", 0), 2); J[4] = (lambda: self.l2_prefetch("3", 1), 2)
        if self.pf4:
            J[3] = (lambda: (self.l2_prefetch("4", 0), self.l2_prefetch("4", 1)), 2)
        SL = {16: ("act", (OF, 20480, 0)), 15: ("act", (L2F, 20480, 0)), 14: ("none", 0), 13: ("act", (H4F, 54*1024, 0)), 11: ("act", (H4F, 54*1024, 1)),
              10: ("none", 0), 7: ("unit", 0), 1: ("mod", 0)}
        if self.h4mode >= 1:
            del SL[13]; del SL[11]
        if self.xymode:
            SL[16] = ("none", 0); del SL[15]
        if not ALIAS: SL[14] = ("act", (GF, 20480, 0)); SL[13] = ("act", (L3F, 20480, 0))
        H = {}
        def mk(k):
            def f():
                if k in J and not self.nojobs: J[k][0]()
                if k in SL: self.slot_setup(*(SL[k] if not self.nojobs else ("none", 0)))
            return f
        for k in range(16, 0, -1):
            if k in J or k in SL: H[k] = mk(k)
        return H

    def ring_state_after_attn(self):
        self.units_issued = 6
        self.units_queued = 6
        self.pend = []
        self.consumed = -1
        self.vmq = []

    def build(self, force_slow=False, force_global=False):
        I = self.I
        self.force_global = force_global
        phases = [self.phase_start, self.phase_kv, self.phase_q, self.phase_kvwait,
                  lambda: self.phase_attn(force_slow), self.phase_wo, self.phase_w1, self.phase_w2, self.phase_w3, self.phase_w4]
        self.prologue()
        for i, p in enumerate(phases):
            if i >= self.stop_after: break
            p()
        if self.dbg_time:
            lab = self.b.uid("L_dt")
            self.srd(S_C, P_DBG, 256)
            I(f"""
            s_and_b32 s{ST}, s{S_W}, 63
            s_cmp_lg_u32 s{ST}, 63
            s_cbranch_scc1 {lab}
            s_cmp_lg_u32 s{S_WV}, 0
            s_cbranch_scc1 {lab}
            s_memrealtime s[{ST+2}:{ST+3}]
            s_lshr_b32 s{ST}, s{S_W}, 6
            s_lshl_b32 s{ST}, s{ST}, 2
            s_add_u32 s{ST}, s{ST}, 32
            s_waitcnt lgkmcnt(0)
            s_sub_u32 s{ST+2}, s{ST+2}, s{S_TAG}
            v_mov_b32 v254, s{ST+2}
            v_mov_b32 v253, s{ST}
            buffer_store_dword v254, v253, {sr(S_C)}, 0 offen sc1
            {lab}:
            """)
        I(f"""
        s_waitcnt vmcnt(0) lgkmcnt(0)
        s_endpgm
        L_fail:
        s_waitcnt vmcnt(0) lgkmcnt(0)
        """)
        self.srd(S_C, P_DBG, 256)
        I(f"""
        v_mov_b32 v254, s{S_ERR}
        v_mov_b32 v255, s{S_W}
        v_mov_b32 v253, 16
        buffer_store_dwordx2 v[254:255], v253, {sr(S_C)}, 0 offen sc1
        s_waitcnt vmcnt(0)
        L_end:
        s_endpgm
        L_code_end:
        """)
        text, n = finalize(self.b, check=not (self.x_nords or self.x_nokv or self.noslot), align=bool(self.align))
        hdr = open("adaLN_cond__grouped_kv_mqa__mixer_s_mlp__prompt.s.ref").read().split("; Override launch")[0]
        lines = [l for l in hdr.strip().split("\n")]
        lines.append(f"; @launch grid=(256,1,1) block=(256,1,1) lds={LDS_SZ}")
        lines += DOC.strip("\n").split("\n")
        return kernel_file(lines, [(NAME, text, 512, 256, 102)]), n

if __name__ == "__main__":
    import argparse
    ap = argparse.ArgumentParser()
    ap.add_argument("-o", default="adaLN_cond__grouped_kv_mqa__mixer_s_mlp__prompt.s")
    ap.add_argument("--stop", type=int, default=99)
    ap.add_argument("--stamps", action="store_true")
    ap.add_argument("--slow", action="store_true")
    ap.add_argument("--detail", type=int, default=-1)
    ap.add_argument("--cap", type=int, default=99)
    ap.add_argument("--set", action="append", default=[])
    ap.add_argument("--global", dest="glob", action="store_true")
    a = ap.parse_args()
    g = Gen(stop_after=a.stop, stamps=a.stamps)
    g.detail = a.detail
    g.cap_small = a.cap
    for kv in a.set:
        k_, v_ = kv.split('=')
        setattr(g, k_, float(v_) if '.' in v_ else int(v_))
    txt, n = g.build(force_slow=a.slow, force_global=a.glob)
    open(a.o, "w").write(txt)
    print("wrote", a.o, len(txt), "bytes; auto nops:", n, "stamps:", getattr(g, "stamp_names", None))
```
